```python
import torch

def _softmax(x, axis=-1):
    return torch.softmax(x, dim=axis)
def _gelu(x):
    return torch.nn.functional.gelu(x, approximate="tanh")
def _silu(x):
    return torch.nn.functional.silu(x)
def _sigmoid(x):
    return torch.sigmoid(x)
def _layernorm(x, axis=-1, eps=1e-5):
    m = x.mean(dim=axis, keepdim=True)
    v = x.var(dim=axis, keepdim=True, unbiased=False)
    return (x - m) / torch.sqrt(v + eps)
def _scatter_add(tgt, idx, src, axis=0):
    return tgt.clone().index_add_(axis, idx, src)
def _segment_sum(src, seg, n):
    out = torch.zeros((n,) + src.shape[1:], dtype=src.dtype)
    return out.index_add_(0, seg, src)
def _pad(x, pw):
    flat = tuple(v for pair in reversed(pw) for v in pair)
    return torch.nn.functional.pad(x, flat)

kernel_name = 'sequential_preLN__spectral_gfnet__mixer_token_mlp__prompt'

def setup_inputs():

    _w = (lambda a: (lambda t: t.to(torch.bfloat16) if t.is_floating_point() else t)(torch.as_tensor(a)))
    def _A_setup():
        B, S, D = 1, 2048, 1024
        Df = D // 2 + 1
        return {
            "x": _w((lambda *s: torch.randn(*s, dtype=torch.bfloat16) * 0.05)(B, S, D)),
            "w_r": _w((lambda *s: torch.randn(*s, dtype=torch.bfloat16) * 0.4)(S, Df) * 0.02),
            "w_i": _w((lambda *s: torch.randn(*s, dtype=torch.bfloat16) * 0.4)(S, Df) * 0.02),
        }
    _A_in = _A_setup()

    def _B_setup():
        B, S, D, F = 1, 2048, 1024, 3584
        return {
            "x": _w((lambda *s: torch.randn(*s, dtype=torch.bfloat16) * 0.05)(B, S, D)),
            "w1": _w((lambda *s: torch.randn(*s, dtype=torch.bfloat16) * 0.4)(S, F) * (S ** -0.5)),
            "b1": _w((lambda *s: torch.randn(*s, dtype=torch.bfloat16) * 3.2)(F) * 0.02),
            "w2": _w((lambda *s: torch.randn(*s, dtype=torch.bfloat16) * 0.8)(F, S) * (F ** -0.5)),
            "b2": _w((lambda *s: torch.randn(*s, dtype=torch.bfloat16) * 3.2)(S) * 0.02),
        }
    _B_in = _B_setup()

    return {
        "A_x": _A_in["x"],
        "A_w_r": _A_in["w_r"],
        "A_w_i": _A_in["w_i"],
        "B_x": _B_in["x"],
        "B_w1": _B_in["w1"],
        "B_b1": _B_in["b1"],
        "B_w2": _B_in["w2"],
        "B_b2": _B_in["b2"],
    }

def reference(A_x, A_w_r, A_w_i, B_x, B_w1, B_b1, B_w2, B_b2):
    def _A_ref(x, w_r, w_i):
        B, S, D = x.shape
        X = (lambda x, axes=(-2,-1): torch.fft.rfft2(x.float(), dim=axes))(x, axes=(-2, -1))
        W = w_r + 1j * w_i
        X = X * W
        y = (lambda x, s, axes=(-2,-1): torch.fft.irfft2(x, s=s, dim=axes).to(torch.bfloat16))(X, (S, D), axes=(-2, -1))
        return y

    def _B_ref(x, w1, b1, w2, b2):
        B, S, D = x.shape
        h = _layernorm(x, axis=-1)
        u = torch.einsum("bsd,sf->bdf", h, w1) + b1
        u = _gelu(u)
        y = torch.einsum("bdf,fs->bds", u, w2) + b2
        return (lambda x, *d: x.permute(*d))(y, 0, 2, 1)

    x = A_x
    h = x + _A_ref(_layernorm(x, axis=-1), A_w_r, A_w_i)
    h2 = h + _B_ref(_layernorm(h, axis=-1), B_w1, B_b1, B_w2, B_b2)
    return h2
```

```python
import re

class B:
    def __init__(self):
        self.lines = []
    def __call__(self, s=""):
        for l in s.split("\n"):
            self.lines.append(l)
    def label(self, name):
        self.lines.append(name + ":")
    def text(self):
        return "\n".join(self.lines) + "\n"

def vr(b, n=1):
    return f"v{b}" if n == 1 else f"v[{b}:{b+n-1}]"
def sr(b, n=1):
    return f"s{b}" if n == 1 else f"s[{b}:{b+n-1}]"
def ar(b, n=1):
    return f"a{b}" if n == 1 else f"a[{b}:{b+n-1}]"

def kd(name, vgpr, sgpr=96, accum=None, kernarg=88):
    accum = accum if accum is not None else ((vgpr + 3) // 4) * 4
    return f""".section .rodata,"a"
.p2align 6
.amdhsa_kernel {name}
  .amdhsa_next_free_vgpr {vgpr}
  .amdhsa_next_free_sgpr {sgpr}
  .amdhsa_accum_offset {accum}
  .amdhsa_group_segment_fixed_size 0
  .amdhsa_kernarg_size {kernarg}
  .amdhsa_user_sgpr_count 2
  .amdhsa_user_sgpr_kernarg_segment_ptr 1
  .amdhsa_system_sgpr_workgroup_id_x 1
  .amdhsa_float_denorm_mode_32 3
.end_amdhsa_kernel
.text
"""

_reg = re.compile(r"(-|\|)?\b([vas])(\d+)\b|(-|\|)?\b([vas])\[(\d+):(\d+)\]")
def regs_of(op):
    out = set()
    for m in re.finditer(r"\b([vas])\[(\d+):(\d+)\]|\b([vas])(\d+)\b", op):
        if m.group(1):
            for i in range(int(m.group(2)), int(m.group(3)) + 1):
                out.add((m.group(1), i))
        else:
            out.add((m.group(4), int(m.group(5))))
    if re.search(r"\bvcc\b", op): out.add(("s", "vcc"))
    if re.search(r"\bexec\b", op): out.add(("s", "exec"))
    if re.search(r"\bm0\b", op): out.add(("s", "m0"))
    return out

TRANS = ("v_exp_f32", "v_log_f32", "v_rcp_f32", "v_rsq_f32", "v_sqrt_f32", "v_sin_f32", "v_cos_f32")

class Ins:
    def __init__(self, line):
        self.line = line
        t = line.split(";")[0].strip()
        self.t = t
        parts = t.split(None, 1)
        self.op = parts[0]
        rest = parts[1] if len(parts) > 1 else ""
        ops, depth, cur = [], 0, ""
        for ch in rest:
            if ch == "[": depth += 1
            if ch == "]": depth -= 1
            if ch == "," and depth == 0:
                ops.append(cur.strip()); cur = ""
            else:
                cur += ch
        if cur.strip(): ops.append(cur.strip())
        self.ops = ops
        op = self.op
        self.is_mfma = op.startswith("v_mfma")
        self.is_valu = op.startswith("v_") and not self.is_mfma
        self.is_vmem = op.startswith(("buffer_", "global_"))
        self.is_ds = op.startswith("ds_")
        self.is_salu = op.startswith("s_")
        self.dst = set(); self.src = set()
        def first_tok(o): return o.split()[0] if o.split() else o
        if self.is_mfma:
            self.dst = regs_of(ops[0]); self.A = regs_of(ops[1]); self.Bm = regs_of(ops[2]); self.C = regs_of(first_tok(ops[3]))
            self.src = self.A | self.Bm | self.C
            self.passes = 8 if "32x32" in op else 4
        elif self.is_valu:
            nd = 1
            if op.startswith("v_cmp"):
                self.dst = regs_of(ops[0]); srcs = ops[1:]
                if op.startswith("v_cmpx"): self.dst |= {("s", "exec")}
            elif op.startswith(("v_add_co", "v_sub_co", "v_addc_co", "v_subb_co", "v_subrev_co", "v_mad_u64", "v_div_scale")):
                self.dst = regs_of(ops[0]) | regs_of(ops[1]); srcs = ops[2:]
            elif op.startswith(("v_permlane16_swap", "v_permlane32_swap")):
                self.dst = regs_of(ops[0]) | regs_of(ops[1]); srcs = ops[0:2]
            elif op.startswith(("v_fmac", "v_pk_fmac", "v_dot2c", "v_writelane")):
                self.dst = regs_of(ops[0]); srcs = ops[0:]
            else:
                self.dst = regs_of(ops[0]); srcs = ops[1:]
            for o in srcs: self.src |= regs_of(o)
            if op.startswith("v_cndmask") and len(ops) == 3: self.src |= {("s", "vcc")}
            if "_dpp" in op or "row_" in t or "quad_perm" in t:
                self.dpp = True
                if "bound_ctrl" not in t: self.src |= self.dst
            else: self.dpp = False
        elif self.is_vmem:
            if "_load" in op and "lds" not in t.split() and "_lds_" not in op:
                self.dst = regs_of(ops[0])
                for o in ops[1:]: self.src |= regs_of(o)
            elif "atomic" in op and ("sc0" in t.split()):
                self.dst = regs_of(ops[0]) if op.startswith("buffer") else regs_of(ops[0])
                for o in ops: self.src |= regs_of(o)
            else:
                for o in ops: self.src |= regs_of(o)
                if "lds" in t.split() or "_lds_" in op: self.src |= {("s", "m0")}
            self.wide_store = ("store" in op) and ("x3" in op or "x4" in op)
            if self.wide_store:
                self.sdata = regs_of(ops[0]) if op.startswith("buffer") else regs_of(ops[1])
        elif self.is_ds:
            if op.startswith(("ds_read", "ds_bpermute", "ds_swizzle", "ds_permute")):
                self.dst = regs_of(ops[0])
                for o in ops[1:]: self.src |= regs_of(o)
            else:
                for o in ops: self.src |= regs_of(o)
        elif self.is_salu:
            if op.startswith(("s_cmp", "s_cbranch", "s_branch", "s_waitcnt", "s_barrier", "s_nop", "s_endpgm", "s_setprio", "s_sleep", "s_bitcmp")):
                for o in ops: self.src |= regs_of(o)
            else:
                self.dst = regs_of(ops[0])
                for o in ops[1:]: self.src |= regs_of(o)
                if "saveexec" in op: self.dst |= {("s", "exec")}
    def states(self):
        if self.op == "s_nop": return int(self.ops[0], 0) + 1
        return 1

def _v(s): return {r for r in s if r[0] in "va"}
def _s(s): return {r for r in s if r[0] == "s"}

def check_seq(ins, report):
    n = len(ins)
    for i, c in enumerate(ins):
        dist = 0
        for j in range(i - 1, -1, -1):
            p = ins[j]
            need = 0; why = ""
            if p.is_valu:
                pv = _v(p.dst); ps = _s(p.dst)
                if c.is_mfma and pv & c.src: need, why = 2, "VALU->MFMA src"
                if c.is_valu and getattr(c, "dpp", False) and pv & _v(c.src): need, why = max(need, 2), "VALU->DPP"
                if c.op.startswith("v_permlane") and pv & c.src: need, why = max(need, 2), "VALU->permlane"
                if c.op.startswith(("v_readlane", "v_readfirstlane")) and pv & regs_of(c.ops[1]): need, why = max(need, 1), "VALU->readlane"
                if p.op in TRANS and c.is_valu and c.op not in TRANS and pv & c.src: need, why = max(need, 1), "trans->use"
                if p.op in TRANS and (c.is_valu or c.is_mfma) and pv & c.src and need < 1: need, why = 1, "trans->use"
                if ps:
                    if c.is_valu and ps & c.src and ("s", "exec") not in ps: need, why = max(need, 2), "VALU sgpr->VALU"
                    if c.is_vmem and ps & c.src: need, why = max(need, 5), "VALU sgpr->VMEM"
                    if c.op.startswith(("v_readlane", "v_writelane")) and len(c.ops) > 2 and ps & regs_of(c.ops[2]): need, why = max(need, 4), "VALU sgpr->lane select"
                    if ("s", "exec") in ps and (c.is_mfma or getattr(c, "dpp", False)): need, why = max(need, 5), "VALU exec"
            if p.is_mfma:
                rd = 8 if p.passes == 4 else 12
                if c.is_mfma:
                    if p.dst & (c.A | c.Bm): need, why = rd, "MFMA D->MFMA A/B"
                    elif p.dst & c.C and p.dst != c.C: need, why = (6 if p.passes == 4 else 10), "MFMA D->C overlap"
                    elif p.dst & c.C and p.passes != c.passes: need, why = (6 if p.passes == 4 else 10), "MFMA D->C other shape"
                    elif p.dst & c.dst and not (p.dst & c.C): need, why = rd, "MFMA D->MFMA D WAW"
                elif (c.is_valu or c.is_vmem or c.is_ds) and (p.dst & (c.src | c.dst)): need, why = rd, "MFMA D->read/write"
                if c.is_valu and p.C & c.dst and need == 0: need, why = (3 if p.passes == 4 else 7), "MFMA C WAR"
            if p.is_vmem and getattr(p, "wide_store", False) and c.is_valu and p.sdata & c.dst: need, why = max(need, 2), "wide store WAR"
            if p.is_salu and ("s", "m0") in p.dst and ("s", "m0") in c.src and c.is_vmem: need, why = max(need, 1), "m0->lds dma"
            if need > dist:
                report.append(f"HAZARD {why}: need {need} have {dist}\n    P: {p.t}\n    C: {c.t}")
            dist += p.states()
            if dist > 20: break

def check_text(text):
    lines = [l for l in text.split("\n")]
    prog = []
    labels = {}
    for l in lines:
        t = l.split(";")[0].strip()
        if not t or t.startswith("."): continue
        if t.endswith(":"):
            labels[t[:-1]] = len(prog); continue
        prog.append(Ins(l))
    report = []
    check_seq(prog, report)
    for i, ins in enumerate(prog):
        if ins.op.startswith(("s_cbranch", "s_branch")):
            tgt = labels.get(ins.ops[0])
            if tgt is None: continue
            pre = prog[max(0, i - 24): i + 1]
            post = prog[tgt: tgt + 24]
            seq = pre + post
            rep = []
            check_seq(seq, rep)
            rep0 = []
            check_seq(pre, rep0); check_seq(post, rep0)
            for r in rep:
                if r not in rep0: report.append("(edge %s) " % ins.t + r)
    seen = set(); out = []
    for r in report:
        if r not in seen: seen.add(r); out.append(r)
    return out
```

```python
from asmlib import *
from gemm import srd, WS_X1, WS_X2, WS_H, WS_LN2, S_W, f2u, wave_id

MIMIC = True

S_T = 46
SRD_A, SRD_B, SRD_C, SRD_D = 24, 28, 32, 36

def sincos(b, vcos, vsin, vnum, log2den, vtmp):
    b(f"  v_and_b32 v{vtmp}, {(1<<log2den)-1}, v{vnum}")
    b(f"  v_cvt_f32_u32 v{vtmp}, v{vtmp}")
    b(f"  v_mul_f32 v{vtmp}, {hex(f2u(2.0**-log2den))}, v{vtmp}")
    b(f"  v_cos_f32 v{vcos}, v{vtmp}")
    b(f"  v_sin_f32 v{vsin}, v{vtmp}")

def wave_reduce(b, regs, tmpl=None):
    steps = ["row_ror:8", "row_ror:4", "row_ror:2", "row_ror:1"]
    n = len(regs)
    pad = max(0, 2 - (n - 1))
    for st in steps:
        if pad: b(f"  s_nop {pad-1}")
        for r in regs:
            b(f"  v_add_f32_dpp v{r}, v{r}, v{r} {st} row_mask:0xf bank_mask:0xf")
    for st, rm in (("row_bcast:15", "0xa"), ("row_bcast:31", "0xc")):
        if pad: b(f"  s_nop {pad-1}")
        for r in regs:
            b(f"  v_add_f32_dpp v{r}, v{r}, v{r} {st} row_mask:{rm} bank_mask:0xf")

def rnd_bf16_s(b, vdst, vsrc):
    b(f"  v_cvt_pk_bf16_f32 v{vdst}, v{vsrc}, v{vsrc}")
    b(f"  v_lshlrev_b32 v{vdst}, 16, v{vdst}")

def layernorm16(b, X, T, s_mean, s_rstd):
    b(f"  v_add_f32 v{T}, v{X}, v{X+1}")
    b(f"  v_add_f32 v{T+1}, v{X+2}, v{X+3}")
    for i in range(4, 16, 2):
        b(f"  v_add_f32 v{T}, v{T}, v{X+i}")
        b(f"  v_add_f32 v{T+1}, v{T+1}, v{X+i+1}")
    b(f"  v_add_f32 v{T}, v{T}, v{T+1}")
    wave_reduce(b, [T])
    b(f"  s_nop 0")
    b(f"  v_readlane_b32 s{s_mean}, v{T}, 63")
    b(f"  s_nop 1")
    ln_finish(b, X, T, s_mean, s_rstd)

def ln_finish(b, X, T, s_mean, s_rstd):
    b(f"  v_mov_b32 v{T}, s{s_mean}")
    b(f"  v_mul_f32 v{T}, {hex(f2u(1.0/1024))}, v{T}")
    b(f"  v_sub_f32 v{T+2}, v{X}, v{T}")
    b(f"  v_sub_f32 v{T+3}, v{X+1}, v{T}")
    b(f"  v_mul_f32 v{T+4}, v{T+2}, v{T+2}")
    b(f"  v_mul_f32 v{T+5}, v{T+3}, v{T+3}")
    for i in range(2, 16, 2):
        b(f"  v_sub_f32 v{T+2}, v{X+i}, v{T}")
        b(f"  v_sub_f32 v{T+3}, v{X+i+1}, v{T}")
        b(f"  v_fmac_f32 v{T+4}, v{T+2}, v{T+2}")
        b(f"  v_fmac_f32 v{T+5}, v{T+3}, v{T+3}")
    b(f"  v_add_f32 v{T+4}, v{T+4}, v{T+5}")
    wave_reduce(b, [T+4])
    b(f"  s_nop 0")
    b(f"  v_readlane_b32 s{s_rstd}, v{T+4}, 63")
    b(f"  s_nop 1")
    b(f"  v_mov_b32 v{T+4}, s{s_rstd}")
    b(f"  v_mul_f32 v{T+4}, {hex(f2u(1.0/1024))}, v{T+4}      ; var")
    if MIMIC:
        rnd_bf16_s(b, T, T)
        rnd_bf16_s(b, T+4, T+4)
        b(f"  v_add_f32 v{T+4}, {hex(f2u(1e-5))}, v{T+4}")
        rnd_bf16_s(b, T+4, T+4)
        b(f"  v_sqrt_f32 v{T+4}, v{T+4}")
        b(f"  s_nop 0")
        rnd_bf16_s(b, T+4, T+4)
        b(f"  v_rcp_f32 v{T+4}, v{T+4}")
        for i in range(0, 16, 2):
            b(f"  v_sub_f32 v{X+i}, v{X+i}, v{T}")
            b(f"  v_sub_f32 v{X+i+1}, v{X+i+1}, v{T}")
        for i in range(0, 16, 2):
            b(f"  v_cvt_pk_bf16_f32 v{X+i}, v{X+i}, v{X+i+1}")
        for i in range(0, 16, 2):
            b(f"  v_and_b32 v{X+i+1}, 0xffff0000, v{X+i}")
            b(f"  v_lshlrev_b32 v{X+i}, 16, v{X+i}")
        for i in range(16):
            b(f"  v_mul_f32 v{X+i}, v{X+i}, v{T+4}")
    else:
        b(f"  v_add_f32 v{T+4}, {hex(f2u(1e-5))}, v{T+4}")
        b(f"  v_rsq_f32 v{T+4}, v{T+4}")
        for i in range(16):
            b(f"  v_sub_f32 v{X+i}, v{X+i}, v{T}")
        for i in range(16):
            b(f"  v_mul_f32 v{X+i}, v{X+i}, v{T+4}")

def cmul_pk(b, outr, outi, inr, ini, c, s, t, conj):
    for h in (0, 2):
        b(f"  v_pk_mul_f32 {vr(t+h,2)}, {vr(ini+h,2)}, {vr(s+h,2)}")
        b(f"  v_pk_mul_f32 {vr(t+4+h,2)}, {vr(inr+h,2)}, {vr(s+h,2)}")
    for h in (0, 2):
        ng1 = " neg_lo:[0,0,1] neg_hi:[0,0,1]" if conj else ""
        ng2 = "" if conj else " neg_lo:[0,0,1] neg_hi:[0,0,1]"
        b(f"  v_pk_fma_f32 {vr(outr+h,2)}, {vr(inr+h,2)}, {vr(c+h,2)}, {vr(t+h,2)}{ng1}")
        b(f"  v_pk_fma_f32 {vr(outi+h,2)}, {vr(ini+h,2)}, {vr(c+h,2)}, {vr(t+4+h,2)}{ng2}")

MF32 = "v_mfma_f32_16x16x32_bf16"
MF16 = "v_mfma_f32_16x16x16_bf16"

P1_M1 = 0
P1_M2 = 4096
P1_TW = 8192
P1_EX = 16384
P1_LDS = 32768

def p1_tables(b):
    b(f"  v_and_b32 v10, 255, v0            ; e")
    b(f"  v_lshrrev_b32 v11, 8, v0          ; u")
    b(f"  v_bfe_u32 v12, v10, 2, 4          ; lane&15")
    b(f"  v_lshl_add_u32 v12, v11, 4, v12   ; k1")
    b(f"  v_lshrrev_b32 v13, 6, v10         ; g")
    b(f"  v_and_b32 v14, 3, v10")
    b(f"  v_lshlrev_b32 v13, 3, v13")
    b(f"  v_lshl_add_u32 v13, v14, 1, v13   ; a0")
    b(f"  v_mul_u32_u24 v15, v13, v12       ; a0*k1")
    b(f"  v_add_u32 v16, v15, v12           ; (a0+1)*k1")
    sincos(b, 17, 18, 15, 5, 21)
    sincos(b, 19, 20, 16, 5, 21)
    b(f"  v_lshlrev_b32 v22, 2, v10")
    b(f"  v_lshl_add_u32 v22, v11, 11, v22  ; u*2048 + e*4")
    b(f"  v_cvt_pk_bf16_f32 v23, v17, v19")
    b(f"  v_cvt_pk_bf16_f32 v24, -v18, -v20")
    b(f"  ds_write_b32 v22, v23 offset:{P1_M1}")
    b(f"  ds_write_b32 v22, v24 offset:{P1_M1+1024}")
    b(f"  v_bfe_u32 v12, v10, 2, 4          ; k2")
    b(f"  v_mul_u32_u24 v15, v13, v12")
    b(f"  v_add_u32 v16, v15, v12")
    sincos(b, 17, 18, 15, 5, 21)
    sincos(b, 19, 20, 16, 5, 21)
    b(f"  v_lshlrev_b32 v22, 2, v10")
    b(f"  v_cvt_pk_bf16_f32 v23, v17, v19")
    b(f"  v_cvt_pk_bf16_f32 v24, v18, v20")
    b(f"  v_cvt_pk_bf16_f32 v25, -v18, -v20")
    b(f"  ds_write_b32 v22, v23 offset:{P1_M2}")
    b(f"  ds_write_b32 v22, v24 offset:{P1_M2+1024}")
    b(f"  ds_write_b32 v22, v25 offset:{P1_M2+2048}")
    b(f"  v_bfe_u32 v12, v10, 2, 4")
    b(f"  v_lshl_add_u32 v12, v11, 4, v12   ; k1")
    b(f"  v_mul_u32_u24 v15, v13, v12       ; b0*k1 (beta=0), v13 = 8g+2r")
    b(f"  v_add_u32 v16, v15, v12")
    sincos(b, 17, 18, 15, 10, 21)
    sincos(b, 19, 20, 16, 10, 21)
    b(f"  v_lshlrev_b32 v22, 2, v10")
    b(f"  v_lshl_add_u32 v22, v11, 11, v22  ; u*2048 + e*4")
    b(f"  ds_write_b32 v22, v17 offset:{P1_TW}")
    b(f"  ds_write_b32 v22, v18 offset:{P1_TW+1024}")
    b(f"  ds_write_b32 v22, v19 offset:{P1_TW+4096}")
    b(f"  ds_write_b32 v22, v20 offset:{P1_TW+4096+1024}")

def gmat(b, dst, s_s1, inverse, t0):
    if not inverse:
        b(f"  v_lshrrev_b32 v{t0}, 1, v8            ; j1")
        b(f"  v_lshlrev_b32 v{t0+1}, 9, v9          ; 512 g")
        b(f"  v_add_u32 v{t0+1}, s{s_s1}, v{t0+1}   ; s(e=0)")
        b(f"  v_add_u32 v{t0+2}, 256, v{t0+1}       ; s(e=1)")
        b(f"  v_mul_u32_u24 v{t0+1}, v{t0}, v{t0+1}")
        b(f"  v_mul_u32_u24 v{t0+2}, v{t0}, v{t0+2}")
    else:
        b(f"  v_lshrrev_b32 v{t0}, 1, v8            ; t")
        b(f"  v_lshlrev_b32 v{t0}, 8, v{t0}")
        b(f"  v_add_u32 v{t0}, s{s_s1}, v{t0}       ; s")
        b(f"  v_lshlrev_b32 v{t0+1}, 1, v9          ; j1(e=0)")
        b(f"  v_add_u32 v{t0+2}, 1, v{t0+1}")
        b(f"  v_mul_u32_u24 v{t0+1}, v{t0}, v{t0+1}")
        b(f"  v_mul_u32_u24 v{t0+2}, v{t0}, v{t0+2}")
    sincos(b, t0+3, t0+4, t0+1, 11, t0+7)
    sincos(b, t0+5, t0+6, t0+2, 11, t0+7)
    b(f"  v_and_b32 v{t0+7}, 1, v8")
    b(f"  v_cmp_eq_u32 vcc, 1, v{t0+7}")
    b(f"  s_nop 1")
    for e in range(2):
        c, s = t0 + 3 + 2 * e, t0 + 4 + 2 * e
        if inverse:
            sc = hex(f2u(2.0 ** -21))
            b(f"  v_mul_f32 v{c}, {sc}, v{c}")
            b(f"  v_mul_f32 v{s}, {sc}, v{s}")
        b(f"  v_cndmask_b32 v{t0+8}, v{c}, v{s}, vcc")
        b(f"  v_cndmask_b32 v{t0+9}, v{s}, v{c}, vcc")
        if not inverse:
            b(f"  v_xor_b32 v{t0+7}, 0x80000000, v{t0+8}")
            b(f"  v_cndmask_b32 v{t0+8}, v{t0+8}, v{t0+7}, vcc")
        else:
            b(f"  v_xor_b32 v{t0+7}, 0x80000000, v{t0+9}")
            b(f"  v_cndmask_b32 v{t0+9}, v{t0+7}, v{t0+9}, vcc")
        b(f"  v_cvt_pk_bf16_f32 v{dst+e}, v{t0+8}, v{t0+9}")

def p1_phase(b, pre="p1", sf=""):
    wave_id(b)
    srd(b, SRD_A, 4, 4 << 20)
    srd(b, SRD_B, 8, 4 << 20, WS_X1)
    b(f"  v_and_b32 v8, 15, v7          ; c")
    b(f"  v_lshrrev_b32 v9, 4, v7       ; g")
    b(f"  s_lshl_b32 s{S_T}, s{S_W}, 8")
    b(f"  s_add_u32 s{S_T}, s{S_T}, s2          ; s")
    b(f"  s_lshl_b32 s{S_T+1}, s{S_T}, 11")
    b(f"  v_lshlrev_b32 v1, 9, v9")
    b(f"  v_lshl_add_u32 v1, v8, 2, v1")
    XD = 32
    for i in range(8):
        b(f"  buffer_load_dword v{XD+i}, v1, s[{SRD_A}:{SRD_A+3}], s{S_T+1} offen offset:{64*i}")
    p1_tables(b)
    GM = 30
    gmat(b, GM, 2, False, 10)
    b(f"  s_waitcnt lgkmcnt(0)")
    b(f"  s_barrier")
    M1, M2, TW = 96, 112, 128
    b(f"  v_lshlrev_b32 v2, 4, v7")
    for i in range(4): b(f"  ds_read_b128 {vr(M1+4*i,4)}, v2 offset:{P1_M1+1024*i}")
    for i in range(3): b(f"  ds_read_b128 {vr(M2+4*i,4)}, v2 offset:{P1_M2+1024*i}")
    for i in range(8): b(f"  ds_read_b128 {vr(TW+4*i,4)}, v2 offset:{P1_TW+1024*i}")
    X = 40
    b(f"  s_waitcnt vmcnt(0)")
    for i in range(8):
        b(f"  v_lshlrev_b32 v{X+i}, 16, v{XD+i}")
        b(f"  v_and_b32 v{X+8+i}, 0xffff0000, v{XD+i}")
    T = 56
    b(f"  v_add_f32 v{T}, v{X}, v{X+1}")
    b(f"  v_add_f32 v{T+1}, v{X+8}, v{X+9}")
    for i in range(2, 8):
        b(f"  v_add_f32 v{T}, v{T}, v{X+i}")
        b(f"  v_add_f32 v{T+1}, v{T+1}, v{X+8+i}")
    wave_reduce(b, [T, T+1])
    b(f"  v_sub_f32 v{T+2}, v{T}, v{T+1}       ; E - O")
    b(f"  v_add_f32 v{T}, v{T}, v{T+1}")
    b(f"  s_nop 0")
    b(f"  v_readlane_b32 s{S_T+2}, v{T}, 63")
    b(f"  v_readlane_b32 s{S_T+4}, v{T+2}, 63")
    b(f"  s_nop 1")
    ln_finish(b, X, T, S_T+2, S_T+3)
    b(f"  v_mul_f32 v{T+6}, s{S_T+4}, v{T+4}")
    A = 64
    for be in range(2):
        for i in range(4):
            b(f"  v_cvt_pk_bf16_f32 v{A+4*be+i}, v{X+8*be+2*i}, v{X+8*be+2*i+1}")
    b(f"  s_waitcnt lgkmcnt(0)")
    b(f"  v_readlane_b32 s{S_T+5}, v{T+6}, 0")
    Y = 160
    for be in range(2):
        for u in range(2):
            for c in range(2):
                d = Y + ((be * 2 + u) * 2 + c) * 4
                b(f"  {MF32} {vr(d,4)}, {vr(A+4*be,4)}, {vr(M1+4*(2*u+c),4)}, 0")
    b(f"  s_nop 4")
    Bp = 72; W = 32; O = 40
    for u in range(2):
        for be in range(2):
            y = Y + ((be * 2 + u) * 2) * 4
            tw = TW + (be * 4 + u * 2) * 4
            cmul_pk(b, O + 8 * be, O + 8 * be + 4, y, y + 4, tw, tw + 4, W, False)
        for r in range(4):
            b(f"  v_cvt_pk_bf16_f32 v{Bp+8*u+r}, v{O+r}, v{O+8+r}")
            b(f"  v_cvt_pk_bf16_f32 v{Bp+8*u+4+r}, v{O+4+r}, v{O+12+r}")
    XO = 160
    b(f"  s_nop 1")
    for u in range(2):
        re, im = XO + 8 * u, XO + 8 * u + 4
        b(f"  {MF32} {vr(re,4)}, {vr(M2,4)}, {vr(Bp+8*u,4)}, 0")
        b(f"  {MF32} {vr(im,4)}, {vr(M2,4)}, {vr(Bp+8*u+4,4)}, 0")
        b(f"  {MF32} {vr(re,4)}, {vr(M2+4,4)}, {vr(Bp+8*u+4,4)}, {vr(re,4)}")
        b(f"  {MF32} {vr(im,4)}, {vr(M2+8,4)}, {vr(Bp+8*u,4)}, {vr(im,4)}")
    b(f"  s_and_b32 s{S_T+6}, s{S_W}, 1")
    b(f"  s_lshl_b32 s{S_T+6}, s{S_T+6}, 8")
    b(f"  s_lshr_b32 s{S_T+7}, s{S_W}, 1")
    b(f"  s_lshl_b32 s{S_T+7}, s{S_T+7}, 6")
    b(f"  s_add_u32 s{S_T+6}, s{S_T+6}, s{S_T+7}")
    b(f"  v_lshlrev_b32 v3, 12, v9")
    b(f"  v_lshl_add_u32 v3, v8, 2, v3")
    b(f"  v_add_u32 v3, s{S_T+6}, v3")
    b(f"  s_nop 2")
    b(f"  v_writelane_b32 v{XO}, s{S_T+5}, 0")
    b(f"  v_writelane_b32 v{XO+4}, 0, 0")
    PK = 32
    for u in range(2):
        for r in range(4):
            b(f"  v_cvt_pk_bf16_f32 v{PK+4*u+r}, v{XO+8*u+r}, v{XO+8*u+4+r}")
    for u in range(2):
        for r in range(4):
            b(f"  ds_write_b32 v3, v{PK+4*u+r} offset:{P1_EX + u*512 + r*1024}")
    b(f"  s_waitcnt lgkmcnt(0)")
    b(f"  s_barrier")
    b(f"  v_lshlrev_b32 v4, 6, v9")
    b(f"  v_lshl_add_u32 v4, v8, 2, v4")
    b(f"  s_lshl_b32 s{S_T+6}, s{S_W}, 11")
    b(f"  s_add_u32 s{S_T+6}, s{S_T+6}, {P1_EX}")
    b(f"  v_add_u32 v4, s{S_T+6}, v4")
    Bd = 40
    for i in range(4):
        b(f"  ds_read2st64_b32 {vr(Bd+2*i,2)}, v4 offset0:{2*i} offset1:{2*i+1}")
    b(f"  v_lshlrev_b32 v5, 15, v9")
    b(f"  v_lshl_add_u32 v5, v8, 2, v5")
    b(f"  s_and_b32 s{S_T+6}, s2, 15")
    b(f"  s_lshl_b32 s{S_T+6}, s{S_T+6}, 4")
    b(f"  s_lshr_b32 s{S_T+7}, s2, 4")
    b(f"  s_add_u32 s{S_T+6}, s{S_T+6}, s{S_T+7}")
    b(f"  s_lshl_b32 s{S_T+6}, s{S_T+6}, 6       ; pos*64")
    b(f"  s_lshl_b32 s{S_T+7}, s{S_W}, 19        ; 4w*131072")
    b(f"  s_add_u32 s{S_T+6}, s{S_T+6}, s{S_T+7}")
    D = 48
    for i in range(4):
        b(f"  s_waitcnt lgkmcnt({3-i})")
        b(f"  {MF16} {vr(D+4*i,4)}, {vr(GM,2)}, {vr(Bd+2*i,2)}, 0")
    b(f"  s_nop 4")
    for i in range(4):
        b(f"  v_cvt_pk_bf16_f32 v{64+2*i}, v{D+4*i}, v{D+4*i+1}")
        b(f"  v_cvt_pk_bf16_f32 v{65+2*i}, v{D+4*i+2}, v{D+4*i+3}")
        for e in range(2):
            b(f"  s_add_u32 s{S_T+7}, s{S_T+6}, {i*131072 + e*16384}")
            b(f"  buffer_store_dword v{64+2*i+e}, v5, s[{SRD_B}:{SRD_B+3}], s{S_T+7} offen{sf}")

P2_F = 0
P2_X = 2048
P2_W = P2_X + 16 * 1040
P2_LDS = P2_W + 16 * 1040

def p2_phase(b, pre="p2", sf=""):
    wave_id(b)
    srd(b, SRD_A, 8, 4 << 20, WS_X1)
    srd(b, SRD_B, 8, 4 << 20, WS_X2)
    srd(b, SRD_C, 4, 2048 * 1026)
    srd(b, SRD_D, 6, 2048 * 1026)
    b(f"  s_and_b32 s{S_T}, s2, 7              ; j1")
    b(f"  s_lshr_b32 s{S_T+1}, s2, 3           ; kb")
    b(f"  s_lshl_b32 s{S_T+2}, s2, 14")
    b(f"  v_lshlrev_b32 v1, 4, v0")
    XL = 32
    b(f"  buffer_load_dwordx4 {vr(XL,4)}, v1, s[{SRD_A}:{SRD_A+3}], s{S_T+2} offen")
    b(f"  s_add_u32 s{S_T+3}, s{S_T+2}, 8192")
    b(f"  buffer_load_dwordx4 {vr(XL+4,4)}, v1, s[{SRD_A}:{SRD_A+3}], s{S_T+3} offen")
    b(f"  v_and_b32 v10, 1, v0                 ; half")
    b(f"  v_bfe_u32 v11, v0, 5, 4              ; c")
    b(f"  v_bfe_u32 v12, v0, 1, 4              ; e")
    b(f"  v_lshl_add_u32 v13, v12, 4, v11      ; j2")
    b(f"  v_lshlrev_b32 v13, 3, v13")
    b(f"  v_add_u32 v13, s{S_T}, v13           ; j")
    b(f"  v_mul_u32_u24 v13, 1026, v13")
    b(f"  v_lshlrev_b32 v14, 4, v10")
    b(f"  v_add_u32 v14, v13, v14")
    b(f"  s_lshl_b32 s{S_T+3}, s{S_T+1}, 5")
    WL = 40
    b(f"  buffer_load_dwordx4 {vr(WL,4)}, v14, s[{SRD_C}:{SRD_C+3}], s{S_T+3} offen")
    b(f"  buffer_load_dwordx4 {vr(WL+4,4)}, v14, s[{SRD_D}:{SRD_D+3}], s{S_T+3} offen")
    b(f"  s_cmp_lg_u32 s{S_T+1}, 0")
    b(f"  s_cbranch_scc1 {pre}_nonyq")
    b(f"  buffer_load_ushort v48, v13, s[{SRD_C}:{SRD_C+3}], 0 offen offset:1024")
    b(f"  buffer_load_ushort v49, v13, s[{SRD_D}:{SRD_D+3}], 0 offen offset:1024")
    b(f"  s_waitcnt vmcnt(0)")
    b(f"  v_cmp_eq_u32 vcc, 0, v10")
    b(f"  v_and_b32 v50, 0xffff0000, v{WL}")
    b(f"  v_or_b32 v50, v50, v48")
    b(f"  v_cndmask_b32 v{WL}, v{WL}, v50, vcc")
    b(f"  v_and_b32 v50, 0xffff0000, v{WL+4}")
    b(f"  v_or_b32 v50, v50, v49")
    b(f"  v_cndmask_b32 v{WL+4}, v{WL+4}, v50, vcc")
    b.label(f"{pre}_nonyq")
    b(f"  v_and_b32 v15, 255, v0")
    b(f"  v_bfe_u32 v16, v15, 2, 4             ; x")
    b(f"  v_lshrrev_b32 v17, 6, v15            ; g")
    b(f"  v_and_b32 v18, 3, v15")
    b(f"  v_lshl_add_u32 v17, v17, 2, v18      ; 4g+i")
    b(f"  v_mul_u32_u24 v17, v17, v16")
    sincos(b, 18, 19, 17, 4, 20)
    b(f"  v_cmp_gt_u32 vcc, 256, v0            ; matrix 0 ?")
    b(f"  v_xor_b32 v20, 0x80000000, v19       ; -sin")
    b(f"  s_nop 0")
    b(f"  v_cndmask_b32 v21, v20, v18, vcc")
    b(f"  v_cndmask_b32 v22, v18, v19, vcc")
    b(f"  v_cvt_pk_bf16_f32 v21, v21, v22")
    b(f"  v_lshlrev_b32 v22, 2, v0")
    b(f"  ds_write_b32 v22, v21 offset:{P2_F}")
    b(f"  v_and_b32 v8, 15, v7")
    b(f"  v_lshrrev_b32 v9, 4, v7")
    TC, TS = 64, 68
    b(f"  v_lshlrev_b32 v16, 2, v9")
    for r in range(4):
        b(f"  v_add_u32 v17, {r}, v16")
        b(f"  v_mul_u32_u24 v17, v17, v8")
        sincos(b, TC + r, TS + r, 17, 8, 20)
    b(f"  v_and_b32 v16, 3, v0                 ; i")
    b(f"  v_mul_u32_u24 v16, {4*1040}, v16")
    b(f"  v_lshrrev_b32 v17, 6, v0             ; b (0..7)")
    b(f"  v_lshl_add_u32 v16, v17, 6, v16")
    b(f"  v_bfe_u32 v17, v0, 2, 2              ; a&3")
    b(f"  v_lshl_add_u32 v16, v17, 2, v16")
    b(f"  v_bfe_u32 v17, v0, 4, 2              ; a>>2")
    b(f"  v_lshl_add_u32 v2, v17, 4, v16       ; first")
    b(f"  v_xor_b32 v17, 2, v17                ; (a>>2 + 2)&3")
    b(f"  v_lshl_add_u32 v3, v17, 4, v16")
    b(f"  v_add_u32 v3, 512, v3                ; second (b+8)")
    b(f"  v_mul_u32_u24 v16, {4*1040}, v10")
    b(f"  v_lshl_add_u32 v16, v11, 6, v16")
    b(f"  v_and_b32 v17, 3, v12")
    b(f"  v_lshl_add_u32 v16, v17, 2, v16")
    b(f"  v_lshrrev_b32 v17, 2, v12")
    b(f"  v_lshrrev_b32 v18, 3, v11            ; c>>3")
    b(f"  v_lshlrev_b32 v18, 1, v18")
    b(f"  v_xor_b32 v17, v17, v18")
    b(f"  v_lshl_add_u32 v4, v17, 4, v16")
    b(f"  s_waitcnt vmcnt(2)")
    for j in range(4):
        b(f"  ds_write_b32 v2, v{XL+j} offset:{P2_X + j*1040}")
        b(f"  ds_write_b32 v3, v{XL+4+j} offset:{P2_X + j*1040}")
    b(f"  s_waitcnt vmcnt(0)")
    for j in range(4):
        b(f"  ds_write_b32 v4, v{WL+j} offset:{P2_W + j*1040}")
        b(f"  ds_write_b32 v4, v{WL+4+j} offset:{P2_W + 8*1040 + j*1040}")
    b(f"  s_waitcnt lgkmcnt(0)")
    b(f"  s_barrier")
    b(f"  v_lshrrev_b32 v16, 3, v8")
    b(f"  v_lshlrev_b32 v16, 1, v16")
    b(f"  v_xor_b32 v16, v16, v9")
    b(f"  v_lshlrev_b32 v16, 4, v16")
    b(f"  v_lshl_add_u32 v16, v8, 6, v16")
    b(f"  s_mul_i32 s{S_T+4}, s{S_W}, {2*1040}")
    b(f"  s_mul_i32 s{S_T+5}, s{S_W}, 1040")
    b(f"  v_add_u32 v5, s{S_T+4}, v16          ; X columns 2w, 2w+1")
    b(f"  v_add_u32 v6, s{S_T+5}, v16          ; W pair w")
    b(f"  v_lshlrev_b32 v17, 4, v7")
    FR, FI = 72, 76
    AX = 32; WR, WI = 40, 44
    b(f"  ds_read_b128 {vr(FR,4)}, v17 offset:{P2_F}")
    b(f"  ds_read_b128 {vr(FI,4)}, v17 offset:{P2_F+1024}")
    b(f"  ds_read_b128 {vr(AX,4)}, v5 offset:{P2_X}")
    b(f"  ds_read_b128 {vr(AX+4,4)}, v5 offset:{P2_X+1040}")
    b(f"  ds_read_b128 {vr(WR,4)}, v6 offset:{P2_W}")
    b(f"  ds_read_b128 {vr(WI,4)}, v6 offset:{P2_W+8*1040}")
    Dq = [80, 88]
    Oq = [96, 104]
    Tq = [112, 120]
    Pq = [128, 132]
    Wq = [136, 144]
    def stage(form, src):
        for k in range(2):
            d = Dq[k]
            if form == 'A':
                b(f"  {MF32} {vr(d,4)}, {vr(src[k],4)}, {vr(FR,4)}, 0")
                b(f"  {MF32} {vr(d+4,4)}, {vr(src[k],4)}, {vr(FI,4)}, 0")
            else:
                b(f"  {MF32} {vr(d,4)}, {vr(FR,4)}, {vr(src[k],4)}, 0")
                b(f"  {MF32} {vr(d+4,4)}, {vr(FI,4)}, {vr(src[k],4)}, 0")
    def twiddle_pack():
        for k in range(2):
            cmul_pk(b, Oq[k], Oq[k] + 4, Dq[k], Dq[k] + 4, TC, TS, Tq[k], False)
        for k in range(2):
            for r in range(4):
                b(f"  v_cvt_pk_bf16_f32 v{Pq[k]+r}, v{Oq[k]+r}, v{Oq[k]+4+r}")
        b(f"  s_nop 1")
    b(f"  s_waitcnt lgkmcnt(2)")
    stage('A', [AX, AX + 4])
    b(f"  s_waitcnt lgkmcnt(0)")
    for r in range(4):
        b(f"  v_lshlrev_b32 v{Wq[0]+r}, 16, v{WR+r}")
        b(f"  v_lshlrev_b32 v{Wq[0]+4+r}, 16, v{WI+r}")
        b(f"  v_and_b32 v{Wq[1]+r}, 0xffff0000, v{WR+r}")
        b(f"  v_and_b32 v{Wq[1]+4+r}, 0xffff0000, v{WI+r}")
    twiddle_pack()
    stage('B', Pq)
    b(f"  s_nop 5")
    for k in range(2):
        cmul_pk(b, Oq[k], Oq[k] + 4, Dq[k], Dq[k] + 4, Wq[k], Wq[k] + 4, Tq[k], True)
    for k in range(2):
        for r in range(4):
            b(f"  v_cvt_pk_bf16_f32 v{Pq[k]+r}, v{Oq[k]+r}, -v{Oq[k]+4+r}")
    b(f"  s_nop 1")
    stage('A', Pq)
    b(f"  s_nop 5")
    twiddle_pack()
    stage('B', Pq)
    b(f"  s_nop 5")
    for k in range(2):
        for r in range(4):
            b(f"  v_cvt_pk_bf16_f32 v{Pq[k]+r}, v{Dq[k]+r}, -v{Dq[k]+4+r}")
    b(f"  ds_write_b128 v5, {vr(Pq[0],4)} offset:{P2_X}")
    b(f"  ds_write_b128 v5, {vr(Pq[1],4)} offset:{P2_X+1040}")
    b(f"  s_waitcnt lgkmcnt(0)")
    b(f"  s_barrier")
    for j in range(4):
        b(f"  ds_read_b32 v{XL+j}, v2 offset:{P2_X + j*1040}")
        b(f"  ds_read_b32 v{XL+4+j}, v3 offset:{P2_X + j*1040}")
    b(f"  v_bfe_u32 v16, v0, 2, 4              ; a")
    b(f"  v_lshrrev_b32 v17, 6, v0             ; b")
    b(f"  v_lshl_add_u32 v16, v16, 4, v17      ; s1")
    b(f"  v_lshlrev_b32 v16, 14, v16")
    b(f"  v_and_b32 v17, 3, v0")
    b(f"  v_lshl_add_u32 v16, v17, 4, v16")
    b(f"  s_lshl_b32 s{S_T+4}, s{S_T}, 11")
    b(f"  s_lshl_b32 s{S_T+5}, s{S_T+1}, 6")
    b(f"  s_add_u32 s{S_T+4}, s{S_T+4}, s{S_T+5}")
    b(f"  s_add_u32 s{S_T+5}, s{S_T+4}, {8*16384}")
    b(f"  s_waitcnt lgkmcnt(0)")
    b(f"  buffer_store_dwordx4 {vr(XL,4)}, v16, s[{SRD_B}:{SRD_B+3}], s{S_T+4} offen{sf}")
    b(f"  buffer_store_dwordx4 {vr(XL+4,4)}, v16, s[{SRD_B}:{SRD_B+3}], s{S_T+5} offen{sf}")

P3_M3 = 0
P3_M4 = 4096
P3_TW = 8192
P3_EX = 16384
P3_LN = 32768
P3_RS = 2624
P3_LDS = P3_LN + 8 * P3_RS

def p3_tables(b):
    b(f"  v_and_b32 v10, 255, v0            ; e")
    b(f"  v_lshrrev_b32 v11, 8, v0")
    b(f"  v_bfe_u32 v12, v10, 2, 4          ; n = lane&15")
    b(f"  v_lshrrev_b32 v13, 6, v10         ; g")
    b(f"  v_and_b32 v14, 3, v10             ; r")
    b(f"  v_lshl_add_u32 v13, v13, 2, v14   ; 4g + r")
    b(f"  v_lshrrev_b32 v15, 2, v12")
    b(f"  v_lshlrev_b32 v15, 3, v15")
    b(f"  v_and_b32 v16, 3, v12")
    b(f"  v_add_u32 v15, v15, v16           ; b(n,0)")
    b(f"  v_lshl_add_u32 v16, v11, 2, v15   ; b(n, sel)")
    b(f"  v_mul_u32_u24 v17, v16, v13")
    sincos(b, 18, 19, 17, 5, 20)
    b(f"  v_lshlrev_b32 v22, 2, v10")
    b(f"  v_lshl_add_u32 v22, v11, 11, v22  ; sel*2048 + e*4")
    b(f"  v_cvt_pk_bf16_f32 v23, v18, -v19")
    b(f"  v_cvt_pk_bf16_f32 v24, v19, v18")
    b(f"  ds_write_b32 v22, v23 offset:{P3_M3}")
    b(f"  ds_write_b32 v22, v24 offset:{P3_M3+1024}")
    b(f"  v_lshl_add_u32 v17, v11, 4, v13   ; k1")
    for z in range(2):
        b(f"  v_add_u32 v21, {16*z}, v12")
        b(f"  v_mul_u32_u24 v21, v21, v17")
        sincos(b, 18, 19, 21, 5, 20)
        b(f"  v_add_f32 v18, v18, v18")
        b(f"  v_mul_f32 v19, -2.0, v19")
        b(f"  v_cvt_pk_bf16_f32 v23, v18, v19")
        b(f"  ds_write_b32 v22, v23 offset:{P3_M4+1024*z}")
    for v in range(2):
        b(f"  v_add_u32 v21, {4*v}, v15")
        b(f"  v_mul_u32_u24 v21, v21, v17")
        sincos(b, 18, 19, 21, 10, 20)
        b(f"  v_lshlrev_b32 v23, 2, v10")
        b(f"  v_lshl_add_u32 v23, v11, 12, v23   ; u*4096 + e*4")
        b(f"  ds_write_b32 v23, v18 offset:{P3_TW+2048*v}")
        b(f"  ds_write_b32 v23, v19 offset:{P3_TW+2048*v+1024}")

def p3_phase(b, pre="p3", sf=""):
    wave_id(b)
    srd(b, SRD_A, 8, 4 << 20, WS_X2)
    srd(b, SRD_B, 4, 4 << 20)
    srd(b, SRD_C, 8, 4 << 20, WS_H)
    srd(b, SRD_D, 8, 4 << 20, WS_LN2)
    b(f"  v_and_b32 v8, 15, v7          ; c")
    b(f"  v_lshrrev_b32 v9, 4, v7       ; g")
    b(f"  v_lshlrev_b32 v1, 12, v9")
    b(f"  v_lshl_add_u32 v1, v8, 2, v1")
    b(f"  s_lshl_b32 s{S_T}, s2, 14")
    b(f"  s_and_b32 s{S_T+1}, s{S_W}, 1")
    b(f"  s_lshl_b32 s{S_T+1}, s{S_T+1}, 6")
    b(f"  s_lshr_b32 s{S_T+2}, s{S_W}, 1")
    b(f"  s_lshl_b32 s{S_T+2}, s{S_T+2}, 9")
    b(f"  s_add_u32 s{S_T}, s{S_T}, s{S_T+1}")
    b(f"  s_add_u32 s{S_T}, s{S_T}, s{S_T+2}")
    Bd = 32
    for i in range(4):
        for e in range(2):
            b(f"  buffer_load_dword v{Bd+2*i+e}, v1, s[{SRD_A}:{SRD_A+3}], s{S_T} offen offset:{e*2048+i*128}")
    b(f"  s_lshl_b32 s{S_T+3}, s{S_W}, 8")
    b(f"  s_add_u32 s{S_T+3}, s{S_T+3}, s2")
    b(f"  s_lshl_b32 s{S_T+3}, s{S_T+3}, 11       ; s*2048")
    b(f"  v_lshlrev_b32 v2, 6, v8")
    b(f"  v_lshl_add_u32 v2, v9, 4, v2")
    XR = 192
    for z in range(2):
        b(f"  buffer_load_dwordx4 {vr(XR+4*z,4)}, v2, s[{SRD_B}:{SRD_B+3}], s{S_T+3} offen offset:{1024*z}")
    p3_tables(b)
    GM = 30
    gmat(b, GM, 2, True, 10)
    D = 40
    b(f"  s_nop 0")
    b(f"  s_waitcnt vmcnt(2)")
    for i in range(4):
        b(f"  {MF16} {vr(D+4*i,4)}, {vr(GM,2)}, {vr(Bd+2*i,2)}, 0")
    b(f"  v_lshlrev_b32 v3, 12, v9")
    b(f"  v_lshl_add_u32 v3, v8, 4, v3")
    b(f"  s_lshl_b32 s{S_T+1}, s{S_T+1}, 4        ; u*1024")
    b(f"  s_lshr_b32 s{S_T+2}, s{S_T+2}, 1        ; q4*256")
    b(f"  s_add_u32 s{S_T+1}, s{S_T+1}, s{S_T+2}")
    b(f"  v_add_u32 v3, s{S_T+1}, v3")
    b(f"  s_nop 3")
    PK = 56
    for e in range(2):
        for i in range(4):
            b(f"  v_cvt_pk_bf16_f32 v{PK+4*e+i}, v{D+4*i+2*e}, v{D+4*i+2*e+1}")
    b(f"  ds_write_b128 v3, {vr(PK,4)} offset:{P3_EX}")
    b(f"  ds_write_b128 v3, {vr(PK+4,4)} offset:{P3_EX+2048}")
    b(f"  s_waitcnt lgkmcnt(0)")
    b(f"  s_barrier")
    M3, M4, TW = 96, 112, 128
    b(f"  v_lshlrev_b32 v4, 4, v7")
    b(f"  v_lshlrev_b32 v5, 8, v9")
    b(f"  v_lshl_add_u32 v5, v8, 4, v5")
    b(f"  s_lshl_b32 s{S_T+1}, s{S_W}, 11")
    b(f"  v_add_u32 v5, s{S_T+1}, v5")
    AU = 32
    b(f"  ds_read_b128 {vr(AU,4)}, v5 offset:{P3_EX}")
    b(f"  ds_read_b128 {vr(AU+4,4)}, v5 offset:{P3_EX+1024}")
    for i in range(4): b(f"  ds_read_b128 {vr(M3+4*i,4)}, v4 offset:{P3_M3+1024*i}")
    for i in range(8): b(f"  ds_read_b128 {vr(TW+4*i,4)}, v4 offset:{P3_TW+1024*i}")
    b(f"  s_waitcnt lgkmcnt(12)")
    b(f"  v_readlane_b32 s{S_T+4}, v{AU}, 0")
    b(f"  v_writelane_b32 v{AU}, 0, 0")
    b(f"  s_waitcnt lgkmcnt(8)")
    b(f"  s_lshl_b32 s{S_T+4}, s{S_T+4}, 16")
    for i in range(4): b(f"  ds_read_b128 {vr(M4+4*i,4)}, v4 offset:{P3_M4+1024*i}")
    TT = 160
    for u in range(2):
        for v in range(2):
            for c in range(2):
                d = TT + ((u * 2 + v) * 2 + c) * 4
                b(f"  {MF32} {vr(d,4)}, {vr(AU+4*u,4)}, {vr(M3+4*(2*v+c),4)}, 0")
    CI = 60
    b(f"  v_mov_b32 v{CI}, s{S_T+4}")
    b(f"  v_xor_b32 v{CI+1}, 0x80000000, v{CI}")
    b(f"  v_mov_b32 v{CI+2}, v{CI}")
    b(f"  v_mov_b32 v{CI+3}, v{CI+1}")
    b(f"  s_waitcnt lgkmcnt(0)")
    b(f"  s_nop 1")
    A2 = 64; O = 40; W = 80
    for u in range(2):
        for v in range(2):
            t = TT + ((u * 2 + v) * 2) * 4
            tw = TW + ((u * 2 + v) * 2) * 4
            cmul_pk(b, O, O + 4, t, t + 4, tw, tw + 4, W, True)
            for r in range(4):
                b(f"  v_cvt_pk_bf16_f32 v{A2+(u*2+v)*4+r}, v{O+r}, v{O+4+r}")
    Y = 160
    b(f"  s_nop 1")
    for z in range(2):
        for v in range(2):
            d = Y + (z * 2 + v) * 4
            b(f"  {MF32} {vr(d,4)}, {vr(A2+(0*2+v)*4,4)}, {vr(M4+(0*2+z)*4,4)}, {vr(CI,4)}")
    for z in range(2):
        for v in range(2):
            d = Y + (z * 2 + v) * 4
            b(f"  {MF32} {vr(d,4)}, {vr(A2+(1*2+v)*4,4)}, {vr(M4+(1*2+z)*4,4)}, {vr(d,4)}")
    b(f"  s_waitcnt vmcnt(0)")
    b(f"  s_nop 6")
    X = 40; HP = 32
    for z in range(2):
        for dd in range(4):
            y0 = Y + z * 8 + 2 * dd
            xd = XR + 4 * z + dd
            t = 64 + 4 * (dd % 2)
            b(f"  v_cvt_pk_bf16_f32 v{t}, v{y0}, v{y0+1}")
            b(f"  v_lshlrev_b32 v{t+1}, 16, v{xd}")
            b(f"  v_and_b32 v{t+2}, 0xffff0000, v{xd}")
            b(f"  v_and_b32 v{t+3}, 0xffff0000, v{t}")
            b(f"  v_lshlrev_b32 v{t}, 16, v{t}")
            b(f"  v_add_f32 v{t+1}, v{t+1}, v{t}")
            b(f"  v_add_f32 v{t+2}, v{t+2}, v{t+3}")
            b(f"  v_cvt_pk_bf16_f32 v{HP+4*z+dd}, v{t+1}, v{t+2}")
    for z in range(2):
        b(f"  buffer_store_dwordx4 {vr(HP+4*z,4)}, v2, s[{SRD_C}:{SRD_C+3}], s{S_T+3} offen offset:{1024*z}{sf}")
    for i in range(8):
        b(f"  v_lshlrev_b32 v{X+2*i}, 16, v{HP+i}")
        b(f"  v_and_b32 v{X+2*i+1}, 0xffff0000, v{HP+i}")
    layernorm16(b, X, 64, S_T+5, S_T+6)
    LP = 72
    for i in range(8):
        b(f"  v_cvt_pk_bf16_f32 v{LP+i}, v{X+2*i}, v{X+2*i+1}")
    b(f"  v_mul_u32_u24 v3, 80, v8")
    b(f"  v_lshl_add_u32 v3, v9, 4, v3")
    b(f"  s_mul_i32 s{S_T+1}, s{S_W}, {P3_RS}")
    b(f"  v_add_u32 v3, s{S_T+1}, v3")
    for z in range(2):
        b(f"  ds_write_b128 v3, {vr(LP+4*z,4)} offset:{P3_LN + z*16*80}")
    b(f"  s_waitcnt lgkmcnt(0)")
    b(f"  s_barrier")
    b(f"  v_bfe_u32 v10, v7, 2, 2")
    b(f"  v_mul_u32_u24 v10, {P3_RS}, v10")
    b(f"  v_lshrrev_b32 v11, 5, v7")
    b(f"  v_mul_u32_u24 v12, 80, v11")
    b(f"  v_add_u32 v10, v10, v12")
    b(f"  v_and_b32 v12, 1, v7")
    b(f"  v_lshl_add_u32 v10, v12, 5, v10")
    b(f"  v_bfe_u32 v12, v7, 4, 1")
    b(f"  v_lshl_add_u32 v10, v12, 4, v10")
    b(f"  v_bfe_u32 v12, v7, 1, 1")
    b(f"  v_lshl_add_u32 v10, v12, 3, v10")
    b(f"  s_mul_i32 s{S_T+1}, s{S_W}, {4*80}")
    b(f"  v_add_u32 v10, s{S_T+1}, v10")
    for ps in range(2):
        b(f"  ds_read_b64_tr_b16 {vr(32+4*ps,2)}, v10 offset:{P3_LN + ps*160}")
        b(f"  ds_read_b64_tr_b16 {vr(34+4*ps,2)}, v10 offset:{P3_LN + ps*160 + 4*P3_RS}")
    b(f"  v_lshlrev_b32 v11, 17, v11")
    b(f"  v_and_b32 v12, 31, v7")
    b(f"  v_lshl_add_u32 v11, v12, 4, v11")
    b(f"  s_lshl_b32 s{S_T+1}, s{S_W}, 19")
    b(f"  s_lshl_b32 s{S_T+2}, s2, 9              ; jk*1024 + h*512 = s1*512")
    b(f"  s_add_u32 s{S_T+1}, s{S_T+1}, s{S_T+2}")
    b(f"  s_add_u32 s{S_T+2}, s{S_T+1}, {2*131072}")
    b(f"  s_waitcnt lgkmcnt(2)")
    b(f"  buffer_store_dwordx4 v[32:35], v11, s[{SRD_D}:{SRD_D+3}], s{S_T+1} offen{sf}")
    b(f"  s_waitcnt lgkmcnt(0)")
    b(f"  buffer_store_dwordx4 v[36:39], v11, s[{SRD_D}:{SRD_D+3}], s{S_T+2} offen{sf}")
```

```python
from asmlib import *
import struct
f2u = lambda x: struct.unpack("<I", struct.pack("<f", x))[0]

WS_X1 = 0
WS_X2 = 4 << 20
WS_H = 8 << 20
WS_LN2 = 12 << 20
WS_U = 16 << 20
U_BYTES = 3584 * 1024 * 2

OPT = set()
R = 8
STAGE = 16384
PR = 16
DQ = 7

def srd(b, s, base_pair, size, off=0):
    if off:
        b(f"  s_add_u32 s{s}, s{base_pair}, {off}")
        b(f"  s_addc_u32 s{s+1}, s{base_pair+1}, 0")
    else:
        b(f"  s_mov_b32 s{s}, s{base_pair}")
        b(f"  s_mov_b32 s{s+1}, s{base_pair+1}")
    b(f"  s_mov_b32 s{s+2}, {size}")
    b(f"  s_mov_b32 s{s+3}, 0x00020000")

class GemmCfg:
    pass

def g1_cfg():
    c = GemmCfg()
    c.name = "g1"; c.NB = 4; c.NS = 32; c.KS = 4; c.rowb = 256
    return c
def g2_cfg():
    c = GemmCfg()
    c.name = "g2"; c.NB = 2; c.NS = 28; c.KS = 8; c.rowb = 128
    return c

V_P = 1
V_T = 2
V_ACC = 32
S_W = 20
S_POFF = 21
S_IT = 22
S_DELTA = 23
SRD_P = 24
SRD_T = 28
SRD_O = 32
SRD_X = 36
SRD_Y = 40
S_TILE_A = 44
S_TILE_B = 45
S_TMP = 46

def gemm_compute(b, c, pre):
    NB, NS, KS = c.NB, c.NS, c.KS
    acc = lambda nb: V_ACC + nb * 16
    VT = V_ACC + NB * 16
    VPR = VT + 32
    c.VT, c.VPR = VT, VPR
    c.vend = VPR + 4 * PR
    tf = lambda q: VT + (q % 8) * 4
    pr = lambda j: VPR + (j % PR) * 4
    FPI = 64
    def tread(q):
        if "notr" in OPT: return
        ql = q % FPI
        lslot, within = ql // 16, ql % 16
        ks, nb = within // NB, within % NB
        off = lslot * STAGE + ks * 16 * c.rowb
        b(f"  ds_read_b64_tr_b16 {vr(tf(q),2)}, v{V_T+nb} offset:{off}")
        b(f"  ds_read_b64_tr_b16 {vr(tf(q)+2,2)}, v{V_T+nb} offset:{off+4*c.rowb}")
    def pload(j):
        if "nop" in OPT: return
        b(f"  buffer_load_dwordx4 {vr(pr(j),4)}, v{V_P}, s[{SRD_P}:{SRD_P+3}], s{S_POFF} offen offset:{(j%4)*1024}")
        if j % 4 == 3:
            b(f"  s_add_u32 s{S_POFF}, s{S_POFF}, 4096")
            if "wrap" in OPT: b(f"  s_and_b32 s{S_POFF}, s{S_POFF}, 0x7fff")
    def mfma(q):
        if "nomfma" in OPT: return
        nb = q % NB; j = q // NB; a = acc(nb)
        if c.name == "g1":
            b(f"  v_mfma_f32_32x32x16_bf16 {vr(a,16)}, {vr(tf(q),4)}, {vr(pr(j),4)}, {vr(a,16)}")
        else:
            b(f"  v_mfma_f32_32x32x16_bf16 {vr(a,16)}, {vr(pr(j),4)}, {vr(tf(q),4)}, {vr(a,16)}")
    b(f"  s_mov_b32 s{S_POFF}, 0")
    for j in range(PR - 1): pload(j)
    for i in range(NB * 16): b(f"  v_mov_b32 v{V_ACC+i}, 0")
    b(f"  s_mov_b32 s{S_DELTA}, {4*STAGE}")
    b(f"  s_mov_b32 s{S_IT}, {NS//4 - 1}")
    if "time" in OPT: b("  s_memtime s[60:61]")
    b("  s_barrier")
    if "time" in OPT: b("  s_memtime s[62:63]\n  s_waitcnt lgkmcnt(0)")
    for q in range(DQ): tread(q)
    KPI = FPI // NB
    def body(last):
        for q in range(FPI):
            j = q // NB
            qn = q + DQ
            do_read = not (last and qn >= FPI)
            do_pload = False
            if q % NB == 0:
                rem = KPI - 1 - j
                if (not last) or (j + PR - 1 < KPI):
                    b(f"  s_waitcnt vmcnt({PR-2})")
                    do_pload = True
                else:
                    b(f"  s_waitcnt vmcnt({min(PR-2, rem)})")
            if do_read and qn % 16 == 0:
                b("  s_barrier")
            if do_read and qn == FPI:
                for i in range(NB): b(f"  v_add_u32 v{V_T+i}, s{S_DELTA}, v{V_T+i}")
                b(f"  s_sub_u32 s{S_DELTA}, 0, s{S_DELTA}")
            if q % 2 == 0:
                left = min(DQ - 2, FPI - 2 - q) if last else DQ - 2
                b(f"  s_waitcnt lgkmcnt({2*left})")
            mfma(q)
            if do_pload: pload(j + PR - 1)
            if do_read: tread(qn)
    b.label(f"{pre}_loop")
    body(False)
    b(f"  s_sub_u32 s{S_IT}, s{S_IT}, 1")
    b(f"  s_cmp_lg_u32 s{S_IT}, 0")
    b(f"  s_cbranch_scc1 {pre}_loop")
    body(True)
    if "time" in OPT:
        b("  s_memtime s[64:65]\n  s_waitcnt lgkmcnt(0)")
        b("  s_load_dwordx2 s[66:67], s[0:1], 72\n  s_waitcnt lgkmcnt(0)")
        b("  s_mov_b32 s68, s66\n  s_mov_b32 s69, s67\n  s_mov_b32 s70, 4096\n  s_mov_b32 s71, 0x00020000")
        b("  s_sub_u32 s64, s64, s62\n  s_sub_u32 s62, s62, s60\n  v_mov_b32 v30, s62\n  v_mov_b32 v31, s64")
        b(f"  s_lshl_b32 s72, s2, 3\n  s_lshl_b32 s73, s{S_W}, 11\n  s_add_u32 s72, s72, s73\n  v_mov_b32 v29, s72")
        b("  buffer_store_dwordx2 v[30:31], v29, s[68:71], 0 offen")

def gemm_loader(b, c, pre, voff):
    NS, L = c.NS, 4
    S_SOFF, S_M0, S_N = S_TMP + 2, S_TMP + 3, S_TMP + 4
    def issue():
        for i in range(L if "nodma" not in OPT else 0):
            b(f"  s_add_u32 m0, s{S_M0}, {4096*i}")
            b(f"  s_nop 0")
            b(f"  buffer_load_dwordx4 v{voff[i]}, s[{SRD_T}:{SRD_T+3}], s{S_SOFF} offen lds")
        if "wrap" not in OPT: b(f"  s_add_u32 s{S_SOFF}, s{S_SOFF}, s{S_TMP+1}")
        b(f"  s_add_u32 s{S_M0}, s{S_M0}, {STAGE}")
        b(f"  s_cmp_ge_u32 s{S_M0}, s{S_N+1}")
        b(f"  s_cselect_b32 s{S_N+2}, {R*STAGE}, 0")
        b(f"  s_sub_u32 s{S_M0}, s{S_M0}, s{S_N+2}")
    b(f"  s_mov_b32 s{S_SOFF}, 0")
    b(f"  s_mov_b32 s{S_M0}, s{S_TMP}")
    b(f"  s_add_u32 s{S_N+1}, s{S_TMP}, {R*STAGE}")
    for n in range(R - 2): issue()
    nmain = NS - (R - 2)
    b(f"  s_mov_b32 s{S_N}, {nmain}")
    b.label(f"{pre}_lloop")
    b(f"  s_waitcnt vmcnt({(R-3)*L})")
    b("  s_barrier")
    issue()
    b(f"  s_sub_u32 s{S_N}, s{S_N}, 1")
    b(f"  s_cmp_lg_u32 s{S_N}, 0")
    b(f"  s_cbranch_scc1 {pre}_lloop")
    for i in range(R - 2):
        b(f"  s_waitcnt vmcnt({(R-3-i)*L})")
        b("  s_barrier")

def wave_id(b):
    b(f"  v_lshrrev_b32 v6, 6, v0")
    b(f"  s_nop 0")
    b(f"  v_readfirstlane_b32 s{S_W}, v6")
    b(f"  v_and_b32 v7, 63, v0        ; lane")
    b(f"  s_nop 3")

def g1_ids(b, exit_label):
    b(f"  s_lshr_b32 s{S_TMP}, s2, 3")
    b(f"  s_cmp_ge_u32 s{S_TMP}, 28")
    b(f"  s_cbranch_scc1 {exit_label}")
    b(f"  s_mul_i32 s{S_TMP+1}, s{S_TMP}, 37")
    b(f"  s_lshr_b32 s{S_TMP+1}, s{S_TMP+1}, 8       ; i/7 (i<28)")
    b(f"  s_mul_i32 s{S_TMP+2}, s{S_TMP+1}, 7")
    b(f"  s_sub_u32 s{S_TMP+2}, s{S_TMP}, s{S_TMP+2}  ; i%7")
    b(f"  s_and_b32 s{S_TMP+3}, s2, 7")
    b(f"  s_lshr_b32 s{S_TMP+4}, s{S_TMP+3}, 1")
    b(f"  s_mul_i32 s{S_TMP+4}, s{S_TMP+4}, 7")
    b(f"  s_add_u32 s{S_TILE_A}, s{S_TMP+4}, s{S_TMP+2}     ; ft")
    b(f"  s_and_b32 s{S_TMP+3}, s{S_TMP+3}, 1")
    b(f"  s_lshl_b32 s{S_TMP+3}, s{S_TMP+3}, 2")
    b(f"  s_add_u32 s{S_TILE_B}, s{S_TMP+3}, s{S_TMP+1}     ; dt")

def lane_geom(b):
    b(f"  v_and_b32 v8, 31, v7")
    b(f"  v_lshrrev_b32 v9, 5, v7      ; h")
    b(f"  v_bfe_u32 v18, v7, 2, 2      ; r")
    b(f"  v_bfe_u32 v19, v7, 4, 1      ; G&1")
    b(f"  v_and_b32 v22, 3, v7         ; c")

def g1_phase(b, pre="g1", store_flags=""):
    c = g1_cfg()
    g1_ids(b, f"{pre}_done")
    wave_id(b)
    srd(b, SRD_P, 8, 4 << 20, WS_LN2)
    srd(b, SRD_T, 4, 2048 * 3584 * 2)
    srd(b, SRD_O, 8, U_BYTES, WS_U)
    srd(b, SRD_X, 6, 3584 * 2)
    b(f"  s_cmp_ge_u32 s{S_W}, 4")
    b(f"  s_cbranch_scc1 {pre}_loader")
    lane_geom(b)
    b(f"  s_lshl_b32 s{S_TMP}, s{S_TILE_B}, 2")
    b(f"  s_add_u32 s{S_TMP}, s{S_TMP}, s{S_W}")
    b(f"  s_lshl_b32 s{S_TMP+2}, s{S_TMP}, 17          ; dblk*131072")
    b(f"  v_lshlrev_b32 v10, 4, v7")
    b(f"  v_add_u32 v{V_P}, s{S_TMP+2}, v10")
    b(f"  s_lshl_b32 s{S_TMP+1}, s{S_TILE_A}, 8       ; f0*2")
    b(f"  v_lshlrev_b32 v11, 3, v9")
    b(f"  v_add_u32 v11, s{S_TMP+1}, v11")
    BV = 192
    for fb in range(4):
        for i in range(4):
            b(f"  buffer_load_dwordx2 {vr(BV+2*(4*fb+i),2)}, v11, s[{SRD_X}:{SRD_X+3}], 0 offen offset:{64*fb+16*i}")
    b(f"  v_lshl_add_u32 v20, v9, 3, v18")
    b(f"  v_lshlrev_b32 v20, 8, v20")
    b(f"  v_lshl_add_u32 v20, v18, 6, v20")
    b(f"  v_lshl_add_u32 v20, v19, 5, v20")
    b(f"  v_lshl_add_u32 v{V_T}, v22, 3, v20")
    for fb in range(1, 4):
        b(f"  v_xor_b32 v{V_T+fb}, {64*fb}, v{V_T}")
    b(f"  s_mul_i32 s{S_TMP+2}, s{S_TMP}, 229376")
    b(f"  s_lshl_b32 s{S_TMP+1}, s{S_TILE_A}, 13")
    b(f"  s_add_u32 s{S_TMP+1}, s{S_TMP+1}, s{S_TMP+2}")
    b(f"  v_add_u32 v28, s{S_TMP+1}, v10")
    gemm_compute(b, c, pre)
    assert c.vend <= BV
    K1 = -2.0 * 0.7978845608028654 * 1.4426950408889634
    K2 = K1 * 0.044715
    T = c.VPR
    b(f"  s_waitcnt vmcnt(0)")
    b(f"  v_mov_b32 v{T}, {hex(f2u(K1))}")
    b(f"  v_mov_b32 v{T+1}, {hex(f2u(K1))}")
    b(f"  v_mov_b32 v{T+2}, {hex(f2u(K2))}")
    b(f"  v_mov_b32 v{T+3}, {hex(f2u(K2))}")
    b(f"  s_mov_b32 s{S_TMP}, 0xffff0000")
    b(f"  s_nop 7")
    W = T + 8
    for fb in range(4):
        for ip in range(2):
            o = W + 24 + 4 * ((fb * 2 + ip) % 2)
            for ii in range(2):
                i = 2 * ip + ii
                a = V_ACC + fb * 16 + 4 * i
                bv = BV + 2 * (4 * fb + i)
                z = W + 12 * ii; t = z + 4; bi = z + 8
                b(f"  v_lshlrev_b32 v{bi}, 16, v{bv}")
                b(f"  v_and_b32 v{bi+1}, s{S_TMP}, v{bv}")
                b(f"  v_lshlrev_b32 v{bi+2}, 16, v{bv+1}")
                b(f"  v_and_b32 v{bi+3}, s{S_TMP}, v{bv+1}")
                for h in (0, 2): b(f"  v_pk_add_f32 {vr(z+h,2)}, {vr(a+h,2)}, {vr(bi+h,2)}")
                for h in (0, 2): b(f"  v_pk_mul_f32 {vr(t+h,2)}, {vr(z+h,2)}, {vr(z+h,2)}")
                for h in (0, 2): b(f"  v_pk_fma_f32 {vr(t+h,2)}, {vr(t+h,2)}, {vr(T+2,2)}, {vr(T,2)}")
                for h in (0, 2): b(f"  v_pk_mul_f32 {vr(t+h,2)}, {vr(t+h,2)}, {vr(z+h,2)}")
                for r in range(4): b(f"  v_exp_f32 v{t+r}, v{t+r}")
                for h in (0, 2): b(f"  v_pk_add_f32 {vr(t+h,2)}, {vr(t+h,2)}, 1.0 op_sel_hi:[1,0]")
                for r in range(4): b(f"  v_rcp_f32 v{t+r}, v{t+r}")
                for h in (0, 2): b(f"  v_pk_mul_f32 {vr(z+h,2)}, {vr(z+h,2)}, {vr(t+h,2)}")
                b(f"  v_cvt_pk_bf16_f32 v{o+2*ii}, v{z}, v{z+1}")
                b(f"  v_cvt_pk_bf16_f32 v{o+2*ii+1}, v{z+2}, v{z+3}")
            b(f"  s_mov_b32 s{S_TMP+1}, {(2*fb+ip)*1024}")
            b(f"  s_nop 0")
            b(f"  v_permlane32_swap_b32 v{o}, v{o+2}")
            b(f"  v_permlane32_swap_b32 v{o+1}, v{o+3}")
            b(f"  buffer_store_dwordx4 {vr(o,4)}, v28, s[{SRD_O}:{SRD_O+3}], s{S_TMP+1} offen{store_flags}")
    b(f"  s_branch {pre}_done")
    b.label(f"{pre}_loader")
    b(f"  s_sub_u32 s{S_TMP+5}, s{S_W}, 4      ; w'")
    vo = [10, 11, 12, 13]
    for i in range(4):
        b(f"  s_lshl_b32 s{S_TMP+6}, s{S_TMP+5}, 2")
        b(f"  s_add_u32 s{S_TMP+6}, s{S_TMP+6}, {16*i}")
        b(f"  v_lshrrev_b32 v14, 4, v7")
        b(f"  v_add_u32 v14, s{S_TMP+6}, v14          ; row 0..63")
        b(f"  v_and_b32 v15, 3, v14")
        b(f"  v_lshlrev_b32 v15, 2, v15")
        b(f"  v_and_b32 v16, 15, v7")
        b(f"  v_xor_b32 v16, v16, v15                 ; q")
        b(f"  v_lshrrev_b32 v17, 3, v14")
        b(f"  v_and_b32 v18, 7, v14")
        b(f"  v_lshl_add_u32 v17, v18, 8, v17         ; s")
        b(f"  v_mul_u32_u24 v17, 7168, v17")
        b(f"  v_lshl_add_u32 v17, v16, 4, v17")
        b(f"  s_lshl_b32 s{S_TMP+6}, s{S_TILE_A}, 8")
        b(f"  v_add_u32 v{vo[i]}, s{S_TMP+6}, v17")
    b(f"  s_lshl_b32 s{S_TMP}, s{S_TMP+5}, 10")
    b(f"  s_mov_b32 s{S_TMP+1}, {8*7168}")
    gemm_loader(b, c, pre, vo)
    b.label(f"{pre}_done")
    return c

def g2_phase(b, pre="g2"):
    c = g2_cfg()
    b(f"  s_and_b32 s{S_TMP}, s2, 1")
    b(f"  s_lshl_b32 s{S_TMP}, s{S_TMP}, 2")
    b(f"  s_lshr_b32 s{S_TMP+1}, s2, 3")
    b(f"  s_and_b32 s{S_TMP+2}, s{S_TMP+1}, 3")
    b(f"  s_add_u32 s{S_TILE_A}, s{S_TMP}, s{S_TMP+2}     ; dt")
    b(f"  s_lshr_b32 s{S_TMP}, s2, 1")
    b(f"  s_and_b32 s{S_TMP}, s{S_TMP}, 3")
    b(f"  s_lshl_b32 s{S_TMP}, s{S_TMP}, 3")
    b(f"  s_lshr_b32 s{S_TMP+1}, s{S_TMP+1}, 2")
    b(f"  s_add_u32 s{S_TILE_B}, s{S_TMP}, s{S_TMP+1}     ; st")
    wave_id(b)
    srd(b, SRD_P, 8, U_BYTES, WS_U)
    srd(b, SRD_T, 4, 2048 * 3584 * 2)
    srd(b, SRD_O, 10, 4 << 20)
    srd(b, SRD_X, 6, 2048 * 2)
    srd(b, SRD_Y, 8, 4 << 20, WS_H)
    b(f"  s_cmp_ge_u32 s{S_W}, 4")
    b(f"  s_cbranch_scc1 {pre}_loader")
    lane_geom(b)
    b(f"  s_lshl_b32 s{S_TMP}, s{S_TILE_A}, 2")
    b(f"  s_add_u32 s{S_TMP}, s{S_TMP}, s{S_W}        ; dblk")
    b(f"  s_mul_i32 s{S_TMP+2}, s{S_TMP}, 229376")
    b(f"  v_lshlrev_b32 v10, 4, v7")
    b(f"  v_add_u32 v{V_P}, s{S_TMP+2}, v10")
    b(f"  s_lshl_b32 s{S_TMP+1}, s{S_TILE_B}, 6       ; s0")
    b(f"  v_add_u32 v11, s{S_TMP+1}, v8              ; s0 + s'")
    b(f"  v_lshlrev_b32 v16, 1, v11")
    for sb in range(2):
        b(f"  buffer_load_ushort v{12+sb}, v16, s[{SRD_X}:{SRD_X+3}], 0 offen offset:{64*sb}")
    b(f"  v_lshlrev_b32 v17, 11, v11")
    b(f"  v_lshl_add_u32 v17, v9, 5, v17")
    b(f"  s_lshl_b32 s{S_TMP+2}, s{S_TMP}, 6")
    b(f"  v_add_u32 v28, s{S_TMP+2}, v17")
    HV = 160
    for sb in range(2):
        b(f"  s_mov_b32 s{S_TMP+1}, {sb*65536}")
        b(f"  buffer_load_dwordx4 {vr(HV+8*sb,4)}, v28, s[{SRD_Y}:{SRD_Y+3}], s{S_TMP+1} offen")
        b(f"  buffer_load_dwordx4 {vr(HV+8*sb+4,4)}, v28, s[{SRD_Y}:{SRD_Y+3}], s{S_TMP+1} offen offset:16")
    b(f"  v_lshl_add_u32 v20, v9, 3, v18            ; row")
    b(f"  v_bfe_u32 v21, v18, 1, 1")
    b(f"  v_lshlrev_b32 v20, 7, v20")
    b(f"  v_lshl_add_u32 v20, v21, 6, v20")
    b(f"  v_lshl_add_u32 v20, v19, 5, v20")
    b(f"  v_lshl_add_u32 v{V_T}, v22, 3, v20")
    b(f"  v_xor_b32 v{V_T+1}, 64, v{V_T}")
    gemm_compute(b, c, pre)
    assert c.vend <= HV
    T = c.VT
    b(f"  s_waitcnt vmcnt(0)")
    b(f"  s_mov_b32 s{S_TMP}, 0xffff0000")
    for sb in range(2):
        b(f"  v_lshlrev_b32 v{12+sb}, 16, v{12+sb}")
    b(f"  s_nop 9")
    for sb in range(2):
        for half in range(2):
            o = T + 4 * ((sb * 2 + half) % 2)
            for dd in range(4):
                a = V_ACC + sb * 16 + half * 8 + 2 * dd
                hv = HV + 8 * sb + 4 * half + dd
                t0 = T + 8 + 4 * dd
                b(f"  v_add_f32 v{t0}, v{a}, v{12+sb}")
                b(f"  v_add_f32 v{t0+1}, v{a+1}, v{12+sb}")
                b(f"  v_lshlrev_b32 v{t0+2}, 16, v{hv}")
                b(f"  v_and_b32 v{t0+3}, s{S_TMP}, v{hv}")
                b(f"  v_add_f32 v{t0}, v{t0}, v{t0+2}")
                b(f"  v_add_f32 v{t0+1}, v{t0+1}, v{t0+3}")
                b(f"  v_cvt_pk_bf16_f32 v{o+dd}, v{t0}, v{t0+1}")
            b(f"  s_mov_b32 s{S_TMP+1}, {sb*65536}")
            b(f"  buffer_store_dwordx4 {vr(o,4)}, v28, s[{SRD_O}:{SRD_O+3}], s{S_TMP+1} offen offset:{16*half}")
    b(f"  s_branch {pre}_done")
    b.label(f"{pre}_loader")
    b(f"  s_sub_u32 s{S_TMP+5}, s{S_W}, 4")
    vo = [10, 11, 12, 13]
    for i in range(4):
        b(f"  s_lshl_b32 s{S_TMP+6}, s{S_TMP+5}, 3")
        b(f"  s_add_u32 s{S_TMP+6}, s{S_TMP+6}, {32*i}")
        b(f"  v_lshrrev_b32 v14, 3, v7")
        b(f"  v_add_u32 v14, s{S_TMP+6}, v14          ; row")
        b(f"  v_bfe_u32 v15, v14, 1, 1")
        b(f"  v_lshlrev_b32 v15, 2, v15")
        b(f"  v_and_b32 v16, 7, v7")
        b(f"  v_xor_b32 v16, v16, v15                 ; q")
        b(f"  v_lshlrev_b32 v14, 12, v14              ; row*4096")
        b(f"  v_lshl_add_u32 v14, v16, 4, v14")
        b(f"  s_lshl_b32 s{S_TMP+6}, s{S_TILE_B}, 7   ; s0*2")
        b(f"  v_add_u32 v{vo[i]}, s{S_TMP+6}, v14")
    b(f"  s_lshl_b32 s{S_TMP}, s{S_TMP+5}, 10")
    b(f"  s_mov_b32 s{S_TMP+1}, {128*4096}")
    gemm_loader(b, c, pre, vo)
    b.label(f"{pre}_done")
    return c
```

```python
import sys
from asmlib import *
import gemm, fft
from gemm import *
from fft import *
NAME = "sequential_preLN__spectral_gfnet__mixer_token_mlp__prompt"
out = sys.argv[1] if len(sys.argv) > 1 else "multi.s"
gemm.OPT.update(sys.argv[2:])
hdr = open(f"cdna_kernels/{NAME}.s.ref").read().split("; Override launch")[0]
b = B()
b(hdr.rstrip("\n"))
b(f"; @launch kernel=p1_kernel grid=(256,1,1) block=(512,1,1) lds={P1_LDS}")
b(f"; @launch kernel=p2_kernel grid=(256,1,1) block=(512,1,1) lds={P2_LDS}")
b(f"; @launch kernel=p3_kernel grid=(256,1,1) block=(512,1,1) lds={P3_LDS}")
b("; @launch kernel=g1_kernel grid=(256,1,1) block=(512,1,1) lds=131072")
b("; @launch kernel=g2_kernel grid=(256,1,1) block=(512,1,1) lds=131072")
b('.amdgcn_target "amdgcn-amd-amdhsa--gfx950"\n.text')
def head(name):
    b(f".globl {name}\n.p2align 8\n.type {name},@function\n{name}:")
    b(f"  s_cmp_ge_u32 s2, 256\n  s_cbranch_scc1 {name}_exit")
def tail(name, vg):
    b(f"{name}_exit:\n  s_endpgm")
    b(kd(name, vg))
head("p1_kernel")
b("  s_load_dwordx2 s[4:5], s[0:1], 0\n  s_load_dwordx2 s[8:9], s[0:1], 80\n  s_waitcnt lgkmcnt(0)")
p1_phase(b); tail("p1_kernel", 192)
head("p2_kernel")
b("  s_load_dwordx4 s[4:7], s[0:1], 8\n  s_load_dwordx2 s[8:9], s[0:1], 80\n  s_waitcnt lgkmcnt(0)")
p2_phase(b); tail("p2_kernel", 160)
head("p3_kernel")
b("  s_load_dwordx2 s[4:5], s[0:1], 0\n  s_load_dwordx2 s[8:9], s[0:1], 80\n  s_waitcnt lgkmcnt(0)")
p3_phase(b); tail("p3_kernel", 200)
head("g1_kernel")
b("  s_load_dwordx4 s[4:7], s[0:1], 32\n  s_load_dwordx2 s[8:9], s[0:1], 80\n  s_waitcnt lgkmcnt(0)")
g1_phase(b); tail("g1_kernel", 224)
head("g2_kernel")
b("  s_load_dwordx4 s[4:7], s[0:1], 48\n  s_load_dwordx2 s[8:9], s[0:1], 80\n  s_load_dwordx2 s[10:11], s[0:1], 64\n  s_waitcnt lgkmcnt(0)")
g2_phase(b); tail("g2_kernel", 224)
t = b.text()
open(out, "w").write(t)
rep = check_text(t)
print("\n".join(rep) if rep else "no hazards found")
```

```python
from asmlib import *
from gemm import srd, WS_X1, WS_X2, WS_H, WS_LN2, S_W, f2u, wave_id

MIMIC = True

S_T = 46
SRD_A, SRD_B, SRD_C, SRD_D = 24, 28, 32, 36

def sincos(b, vcos, vsin, vnum, log2den, vtmp):
    b(f"  v_and_b32 v{vtmp}, {(1<<log2den)-1}, v{vnum}")
    b(f"  v_cvt_f32_u32 v{vtmp}, v{vtmp}")
    b(f"  v_mul_f32 v{vtmp}, {hex(f2u(2.0**-log2den))}, v{vtmp}")
    b(f"  v_cos_f32 v{vcos}, v{vtmp}")
    b(f"  v_sin_f32 v{vsin}, v{vtmp}")

def wave_reduce(b, regs, tmpl=None):
    steps = ["row_ror:8", "row_ror:4", "row_ror:2", "row_ror:1"]
    n = len(regs)
    pad = max(0, 2 - (n - 1))
    for st in steps:
        if pad: b(f"  s_nop {pad-1}")
        for r in regs:
            b(f"  v_add_f32_dpp v{r}, v{r}, v{r} {st} row_mask:0xf bank_mask:0xf")
    for st, rm in (("row_bcast:15", "0xa"), ("row_bcast:31", "0xc")):
        if pad: b(f"  s_nop {pad-1}")
        for r in regs:
            b(f"  v_add_f32_dpp v{r}, v{r}, v{r} {st} row_mask:{rm} bank_mask:0xf")

def rnd_bf16_s(b, vdst, vsrc):
    b(f"  v_cvt_pk_bf16_f32 v{vdst}, v{vsrc}, v{vsrc}")
    b(f"  v_lshlrev_b32 v{vdst}, 16, v{vdst}")

def layernorm16(b, X, T, s_mean, s_rstd):
    b(f"  v_add_f32 v{T}, v{X}, v{X+1}")
    b(f"  v_add_f32 v{T+1}, v{X+2}, v{X+3}")
    for i in range(4, 16, 2):
        b(f"  v_add_f32 v{T}, v{T}, v{X+i}")
        b(f"  v_add_f32 v{T+1}, v{T+1}, v{X+i+1}")
    b(f"  v_add_f32 v{T}, v{T}, v{T+1}")
    wave_reduce(b, [T])
    b(f"  s_nop 0")
    b(f"  v_readlane_b32 s{s_mean}, v{T}, 63")
    b(f"  s_nop 1")
    ln_finish(b, X, T, s_mean, s_rstd)

def ln_finish(b, X, T, s_mean, s_rstd):
    b(f"  v_mov_b32 v{T}, s{s_mean}")
    b(f"  v_mul_f32 v{T}, {hex(f2u(1.0/1024))}, v{T}")
    b(f"  v_sub_f32 v{T+2}, v{X}, v{T}")
    b(f"  v_sub_f32 v{T+3}, v{X+1}, v{T}")
    b(f"  v_mul_f32 v{T+4}, v{T+2}, v{T+2}")
    b(f"  v_mul_f32 v{T+5}, v{T+3}, v{T+3}")
    for i in range(2, 16, 2):
        b(f"  v_sub_f32 v{T+2}, v{X+i}, v{T}")
        b(f"  v_sub_f32 v{T+3}, v{X+i+1}, v{T}")
        b(f"  v_fmac_f32 v{T+4}, v{T+2}, v{T+2}")
        b(f"  v_fmac_f32 v{T+5}, v{T+3}, v{T+3}")
    b(f"  v_add_f32 v{T+4}, v{T+4}, v{T+5}")
    wave_reduce(b, [T+4])
    b(f"  s_nop 0")
    b(f"  v_readlane_b32 s{s_rstd}, v{T+4}, 63")
    b(f"  s_nop 1")
    b(f"  v_mov_b32 v{T+4}, s{s_rstd}")
    b(f"  v_mul_f32 v{T+4}, {hex(f2u(1.0/1024))}, v{T+4}      ; var")
    if MIMIC:
        rnd_bf16_s(b, T, T)
        rnd_bf16_s(b, T+4, T+4)
        b(f"  v_add_f32 v{T+4}, {hex(f2u(1e-5))}, v{T+4}")
        rnd_bf16_s(b, T+4, T+4)
        b(f"  v_sqrt_f32 v{T+4}, v{T+4}")
        b(f"  s_nop 0")
        rnd_bf16_s(b, T+4, T+4)
        b(f"  v_rcp_f32 v{T+4}, v{T+4}")
        for i in range(0, 16, 2):
            b(f"  v_sub_f32 v{X+i}, v{X+i}, v{T}")
            b(f"  v_sub_f32 v{X+i+1}, v{X+i+1}, v{T}")
        for i in range(0, 16, 2):
            b(f"  v_cvt_pk_bf16_f32 v{X+i}, v{X+i}, v{X+i+1}")
        for i in range(0, 16, 2):
            b(f"  v_and_b32 v{X+i+1}, 0xffff0000, v{X+i}")
            b(f"  v_lshlrev_b32 v{X+i}, 16, v{X+i}")
        for i in range(16):
            b(f"  v_mul_f32 v{X+i}, v{X+i}, v{T+4}")
    else:
        b(f"  v_add_f32 v{T+4}, {hex(f2u(1e-5))}, v{T+4}")
        b(f"  v_rsq_f32 v{T+4}, v{T+4}")
        for i in range(16):
            b(f"  v_sub_f32 v{X+i}, v{X+i}, v{T}")
        for i in range(16):
            b(f"  v_mul_f32 v{X+i}, v{X+i}, v{T+4}")

def cmul_pk(b, outr, outi, inr, ini, c, s, t, conj):
    for h in (0, 2):
        b(f"  v_pk_mul_f32 {vr(t+h,2)}, {vr(ini+h,2)}, {vr(s+h,2)}")
        b(f"  v_pk_mul_f32 {vr(t+4+h,2)}, {vr(inr+h,2)}, {vr(s+h,2)}")
    for h in (0, 2):
        ng1 = " neg_lo:[0,0,1] neg_hi:[0,0,1]" if conj else ""
        ng2 = "" if conj else " neg_lo:[0,0,1] neg_hi:[0,0,1]"
        b(f"  v_pk_fma_f32 {vr(outr+h,2)}, {vr(inr+h,2)}, {vr(c+h,2)}, {vr(t+h,2)}{ng1}")
        b(f"  v_pk_fma_f32 {vr(outi+h,2)}, {vr(ini+h,2)}, {vr(c+h,2)}, {vr(t+4+h,2)}{ng2}")

def prefetch(b, srd_s, ptr_pair, nbytes, stride, part, nparts, vaddr, vdst, stmp):
    chunk = nbytes // nparts // 256
    start = part * (nbytes // nparts)
    per_instr = 64 * stride
    n_instr_total = -(-chunk // per_instr)
    n_per_wave = -(-n_instr_total // 8)
    srd(b, srd_s, ptr_pair, nbytes)
    b(f"  s_mul_i32 s{stmp}, s2, {chunk}")
    b(f"  s_mul_i32 s{stmp+1}, s{S_W}, {n_per_wave*per_instr}")
    b(f"  s_add_u32 s{stmp}, s{stmp}, s{stmp+1}")
    b(f"  s_add_u32 s{stmp}, s{stmp}, {start}")
    b(f"  v_mul_u32_u24 v{vaddr}, {stride}, v7")
    for i in range(n_per_wave):
        b(f"  buffer_load_dword v{vdst}, v{vaddr}, s[{srd_s}:{srd_s+3}], s{stmp} offen")
        b(f"  s_add_u32 s{stmp}, s{stmp}, {per_instr}")
    return n_per_wave

PF = {}
PF_STRIDE = 128
def do_prefetch(b, phase):
    n = 0
    for (ko, nbytes, part, nparts) in PF.get(phase, []):
        b(f"  s_load_dwordx2 s[60:61], s[0:1], {ko}")
        b(f"  s_waitcnt lgkmcnt(0)")
        n += prefetch(b, 56, 60, nbytes, PF_STRIDE, part, nparts, 29, 28, 62)
    return n

MF32 = "v_mfma_f32_16x16x32_bf16"
MF16 = "v_mfma_f32_16x16x16_bf16"

P1_M1 = 0
P1_M2 = 4096
P1_TW = 8192
P1_EX = 16384
P1_LDS = 32768

def p1_tables(b):
    b(f"  v_and_b32 v10, 255, v0            ; e")
    b(f"  v_lshrrev_b32 v11, 8, v0          ; u")
    b(f"  v_bfe_u32 v12, v10, 2, 4          ; lane&15")
    b(f"  v_lshl_add_u32 v12, v11, 4, v12   ; k1")
    b(f"  v_lshrrev_b32 v13, 6, v10         ; g")
    b(f"  v_and_b32 v14, 3, v10")
    b(f"  v_lshlrev_b32 v13, 3, v13")
    b(f"  v_lshl_add_u32 v13, v14, 1, v13   ; a0")
    b(f"  v_mul_u32_u24 v15, v13, v12       ; a0*k1")
    b(f"  v_add_u32 v16, v15, v12           ; (a0+1)*k1")
    sincos(b, 17, 18, 15, 5, 21)
    sincos(b, 19, 20, 16, 5, 21)
    b(f"  v_lshlrev_b32 v22, 2, v10")
    b(f"  v_lshl_add_u32 v22, v11, 11, v22  ; u*2048 + e*4")
    b(f"  v_cvt_pk_bf16_f32 v23, v17, v19")
    b(f"  v_cvt_pk_bf16_f32 v24, -v18, -v20")
    b(f"  ds_write_b32 v22, v23 offset:{P1_M1}")
    b(f"  ds_write_b32 v22, v24 offset:{P1_M1+1024}")
    b(f"  v_bfe_u32 v12, v10, 2, 4          ; k2")
    b(f"  v_mul_u32_u24 v15, v13, v12")
    b(f"  v_add_u32 v16, v15, v12")
    sincos(b, 17, 18, 15, 5, 21)
    sincos(b, 19, 20, 16, 5, 21)
    b(f"  v_lshlrev_b32 v22, 2, v10")
    b(f"  v_cvt_pk_bf16_f32 v23, v17, v19")
    b(f"  v_cvt_pk_bf16_f32 v24, v18, v20")
    b(f"  v_cvt_pk_bf16_f32 v25, -v18, -v20")
    b(f"  ds_write_b32 v22, v23 offset:{P1_M2}")
    b(f"  ds_write_b32 v22, v24 offset:{P1_M2+1024}")
    b(f"  ds_write_b32 v22, v25 offset:{P1_M2+2048}")
    b(f"  v_bfe_u32 v12, v10, 2, 4")
    b(f"  v_lshl_add_u32 v12, v11, 4, v12   ; k1")
    b(f"  v_mul_u32_u24 v15, v13, v12       ; b0*k1 (beta=0), v13 = 8g+2r")
    b(f"  v_add_u32 v16, v15, v12")
    sincos(b, 17, 18, 15, 10, 21)
    sincos(b, 19, 20, 16, 10, 21)
    b(f"  v_lshlrev_b32 v22, 2, v10")
    b(f"  v_lshl_add_u32 v22, v11, 11, v22  ; u*2048 + e*4")
    b(f"  ds_write_b32 v22, v17 offset:{P1_TW}")
    b(f"  ds_write_b32 v22, v18 offset:{P1_TW+1024}")
    b(f"  ds_write_b32 v22, v19 offset:{P1_TW+4096}")
    b(f"  ds_write_b32 v22, v20 offset:{P1_TW+4096+1024}")

def gmat(b, dst, s_s1, inverse, t0):
    if not inverse:
        b(f"  v_lshrrev_b32 v{t0}, 1, v8            ; j1")
        b(f"  v_lshlrev_b32 v{t0+1}, 9, v9          ; 512 g")
        b(f"  v_add_u32 v{t0+1}, s{s_s1}, v{t0+1}   ; s(e=0)")
        b(f"  v_add_u32 v{t0+2}, 256, v{t0+1}       ; s(e=1)")
        b(f"  v_mul_u32_u24 v{t0+1}, v{t0}, v{t0+1}")
        b(f"  v_mul_u32_u24 v{t0+2}, v{t0}, v{t0+2}")
    else:
        b(f"  v_lshrrev_b32 v{t0}, 1, v8            ; t")
        b(f"  v_lshlrev_b32 v{t0}, 8, v{t0}")
        b(f"  v_add_u32 v{t0}, s{s_s1}, v{t0}       ; s")
        b(f"  v_lshlrev_b32 v{t0+1}, 1, v9          ; j1(e=0)")
        b(f"  v_add_u32 v{t0+2}, 1, v{t0+1}")
        b(f"  v_mul_u32_u24 v{t0+1}, v{t0}, v{t0+1}")
        b(f"  v_mul_u32_u24 v{t0+2}, v{t0}, v{t0+2}")
    sincos(b, t0+3, t0+4, t0+1, 11, t0+7)
    sincos(b, t0+5, t0+6, t0+2, 11, t0+7)
    b(f"  v_and_b32 v{t0+7}, 1, v8")
    b(f"  v_cmp_eq_u32 vcc, 1, v{t0+7}")
    b(f"  s_nop 1")
    for e in range(2):
        c, s = t0 + 3 + 2 * e, t0 + 4 + 2 * e
        if inverse:
            sc = hex(f2u(2.0 ** -21))
            b(f"  v_mul_f32 v{c}, {sc}, v{c}")
            b(f"  v_mul_f32 v{s}, {sc}, v{s}")
        b(f"  v_cndmask_b32 v{t0+8}, v{c}, v{s}, vcc")
        b(f"  v_cndmask_b32 v{t0+9}, v{s}, v{c}, vcc")
        if not inverse:
            b(f"  v_xor_b32 v{t0+7}, 0x80000000, v{t0+8}")
            b(f"  v_cndmask_b32 v{t0+8}, v{t0+8}, v{t0+7}, vcc")
        else:
            b(f"  v_xor_b32 v{t0+7}, 0x80000000, v{t0+9}")
            b(f"  v_cndmask_b32 v{t0+9}, v{t0+7}, v{t0+9}, vcc")
        b(f"  v_cvt_pk_bf16_f32 v{dst+e}, v{t0+8}, v{t0+9}")

def p1_phase(b, pre="p1", sf=""):
    wave_id(b)
    srd(b, SRD_A, 4, 4 << 20)
    srd(b, SRD_B, 8, 4 << 20, WS_X1)
    b(f"  v_and_b32 v8, 15, v7          ; c")
    b(f"  v_lshrrev_b32 v9, 4, v7       ; g")
    b(f"  s_lshl_b32 s{S_T}, s{S_W}, 8")
    b(f"  s_add_u32 s{S_T}, s{S_T}, s2          ; s")
    b(f"  s_lshl_b32 s{S_T+1}, s{S_T}, 11")
    b(f"  v_lshlrev_b32 v1, 9, v9")
    b(f"  v_lshl_add_u32 v1, v8, 2, v1")
    XD = 32
    for i in range(8):
        b(f"  buffer_load_dword v{XD+i}, v1, s[{SRD_A}:{SRD_A+3}], s{S_T+1} offen offset:{64*i}")
    npf = do_prefetch(b, "p1")
    p1_tables(b)
    GM = 30
    gmat(b, GM, 2, False, 10)
    b(f"  s_waitcnt lgkmcnt(0)")
    b(f"  s_barrier")
    M1, M2, TW = 96, 112, 128
    b(f"  v_lshlrev_b32 v2, 4, v7")
    for i in range(4): b(f"  ds_read_b128 {vr(M1+4*i,4)}, v2 offset:{P1_M1+1024*i}")
    for i in range(3): b(f"  ds_read_b128 {vr(M2+4*i,4)}, v2 offset:{P1_M2+1024*i}")
    for i in range(8): b(f"  ds_read_b128 {vr(TW+4*i,4)}, v2 offset:{P1_TW+1024*i}")
    X = 40
    b(f"  s_waitcnt vmcnt({npf})")
    for i in range(8):
        b(f"  v_lshlrev_b32 v{X+i}, 16, v{XD+i}")
        b(f"  v_and_b32 v{X+8+i}, 0xffff0000, v{XD+i}")
    T = 56
    b(f"  v_add_f32 v{T}, v{X}, v{X+1}")
    b(f"  v_add_f32 v{T+1}, v{X+8}, v{X+9}")
    for i in range(2, 8):
        b(f"  v_add_f32 v{T}, v{T}, v{X+i}")
        b(f"  v_add_f32 v{T+1}, v{T+1}, v{X+8+i}")
    wave_reduce(b, [T, T+1])
    b(f"  v_sub_f32 v{T+2}, v{T}, v{T+1}       ; E - O")
    b(f"  v_add_f32 v{T}, v{T}, v{T+1}")
    b(f"  s_nop 0")
    b(f"  v_readlane_b32 s{S_T+2}, v{T}, 63")
    b(f"  v_readlane_b32 s{S_T+4}, v{T+2}, 63")
    b(f"  s_nop 1")
    ln_finish(b, X, T, S_T+2, S_T+3)
    b(f"  v_mul_f32 v{T+6}, s{S_T+4}, v{T+4}")
    A = 64
    for be in range(2):
        for i in range(4):
            b(f"  v_cvt_pk_bf16_f32 v{A+4*be+i}, v{X+8*be+2*i}, v{X+8*be+2*i+1}")
    b(f"  s_waitcnt lgkmcnt(0)")
    b(f"  v_readlane_b32 s{S_T+5}, v{T+6}, 0")
    Y = 160
    for be in range(2):
        for u in range(2):
            for c in range(2):
                d = Y + ((be * 2 + u) * 2 + c) * 4
                b(f"  {MF32} {vr(d,4)}, {vr(A+4*be,4)}, {vr(M1+4*(2*u+c),4)}, 0")
    b(f"  s_nop 4")
    Bp = 72; W = 32; O = 40
    for u in range(2):
        for be in range(2):
            y = Y + ((be * 2 + u) * 2) * 4
            tw = TW + (be * 4 + u * 2) * 4
            cmul_pk(b, O + 8 * be, O + 8 * be + 4, y, y + 4, tw, tw + 4, W, False)
        for r in range(4):
            b(f"  v_cvt_pk_bf16_f32 v{Bp+8*u+r}, v{O+r}, v{O+8+r}")
            b(f"  v_cvt_pk_bf16_f32 v{Bp+8*u+4+r}, v{O+4+r}, v{O+12+r}")
    XO = 160
    b(f"  s_nop 1")
    for u in range(2):
        re, im = XO + 8 * u, XO + 8 * u + 4
        b(f"  {MF32} {vr(re,4)}, {vr(M2,4)}, {vr(Bp+8*u,4)}, 0")
        b(f"  {MF32} {vr(im,4)}, {vr(M2,4)}, {vr(Bp+8*u+4,4)}, 0")
        b(f"  {MF32} {vr(re,4)}, {vr(M2+4,4)}, {vr(Bp+8*u+4,4)}, {vr(re,4)}")
        b(f"  {MF32} {vr(im,4)}, {vr(M2+8,4)}, {vr(Bp+8*u,4)}, {vr(im,4)}")
    b(f"  s_and_b32 s{S_T+6}, s{S_W}, 1")
    b(f"  s_lshl_b32 s{S_T+6}, s{S_T+6}, 8")
    b(f"  s_lshr_b32 s{S_T+7}, s{S_W}, 1")
    b(f"  s_lshl_b32 s{S_T+7}, s{S_T+7}, 6")
    b(f"  s_add_u32 s{S_T+6}, s{S_T+6}, s{S_T+7}")
    b(f"  v_lshlrev_b32 v3, 12, v9")
    b(f"  v_lshl_add_u32 v3, v8, 2, v3")
    b(f"  v_add_u32 v3, s{S_T+6}, v3")
    b(f"  s_nop 2")
    b(f"  v_writelane_b32 v{XO}, s{S_T+5}, 0")
    b(f"  v_writelane_b32 v{XO+4}, 0, 0")
    PK = 32
    for u in range(2):
        for r in range(4):
            b(f"  v_cvt_pk_bf16_f32 v{PK+4*u+r}, v{XO+8*u+r}, v{XO+8*u+4+r}")
    for u in range(2):
        for r in range(4):
            b(f"  ds_write_b32 v3, v{PK+4*u+r} offset:{P1_EX + u*512 + r*1024}")
    b(f"  s_waitcnt lgkmcnt(0)")
    b(f"  s_barrier")
    b(f"  v_lshlrev_b32 v4, 6, v9")
    b(f"  v_lshl_add_u32 v4, v8, 2, v4")
    b(f"  s_lshl_b32 s{S_T+6}, s{S_W}, 11")
    b(f"  s_add_u32 s{S_T+6}, s{S_T+6}, {P1_EX}")
    b(f"  v_add_u32 v4, s{S_T+6}, v4")
    Bd = 40
    for i in range(4):
        b(f"  ds_read2st64_b32 {vr(Bd+2*i,2)}, v4 offset0:{2*i} offset1:{2*i+1}")
    b(f"  v_lshlrev_b32 v5, 15, v9")
    b(f"  v_lshl_add_u32 v5, v8, 2, v5")
    b(f"  s_and_b32 s{S_T+6}, s2, 15")
    b(f"  s_lshl_b32 s{S_T+6}, s{S_T+6}, 4")
    b(f"  s_lshr_b32 s{S_T+7}, s2, 4")
    b(f"  s_add_u32 s{S_T+6}, s{S_T+6}, s{S_T+7}")
    b(f"  s_lshl_b32 s{S_T+6}, s{S_T+6}, 6       ; pos*64")
    b(f"  s_lshl_b32 s{S_T+7}, s{S_W}, 19        ; 4w*131072")
    b(f"  s_add_u32 s{S_T+6}, s{S_T+6}, s{S_T+7}")
    D = 48
    for i in range(4):
        b(f"  s_waitcnt lgkmcnt({3-i})")
        b(f"  {MF16} {vr(D+4*i,4)}, {vr(GM,2)}, {vr(Bd+2*i,2)}, 0")
    b(f"  s_nop 4")
    for i in range(4):
        b(f"  v_cvt_pk_bf16_f32 v{64+2*i}, v{D+4*i}, v{D+4*i+1}")
        b(f"  v_cvt_pk_bf16_f32 v{65+2*i}, v{D+4*i+2}, v{D+4*i+3}")
        for e in range(2):
            b(f"  s_add_u32 s{S_T+7}, s{S_T+6}, {i*131072 + e*16384}")
            b(f"  buffer_store_dword v{64+2*i+e}, v5, s[{SRD_B}:{SRD_B+3}], s{S_T+7} offen{sf}")

P2_F = 0
P2_X = 2048
P2_W = P2_X + 16 * 1040
P2_LDS = P2_W + 16 * 1040

def p2_phase(b, pre="p2", sf=""):
    wave_id(b)
    srd(b, SRD_A, 8, 4 << 20, WS_X1)
    srd(b, SRD_B, 8, 4 << 20, WS_X2)
    srd(b, SRD_C, 4, 2048 * 1026)
    srd(b, SRD_D, 6, 2048 * 1026)
    b(f"  s_and_b32 s{S_T}, s2, 7              ; j1")
    b(f"  s_lshr_b32 s{S_T+1}, s2, 3           ; kb")
    b(f"  s_lshl_b32 s{S_T+2}, s2, 14")
    b(f"  v_lshlrev_b32 v1, 4, v0")
    XL = 32
    b(f"  buffer_load_dwordx4 {vr(XL,4)}, v1, s[{SRD_A}:{SRD_A+3}], s{S_T+2} offen")
    b(f"  s_add_u32 s{S_T+3}, s{S_T+2}, 8192")
    b(f"  buffer_load_dwordx4 {vr(XL+4,4)}, v1, s[{SRD_A}:{SRD_A+3}], s{S_T+3} offen")
    b(f"  v_and_b32 v10, 1, v0                 ; half")
    b(f"  v_bfe_u32 v11, v0, 5, 4              ; c")
    b(f"  v_bfe_u32 v12, v0, 1, 4              ; e")
    b(f"  v_lshl_add_u32 v13, v12, 4, v11      ; j2")
    b(f"  v_lshlrev_b32 v13, 3, v13")
    b(f"  v_add_u32 v13, s{S_T}, v13           ; j")
    b(f"  v_mul_u32_u24 v13, 1026, v13")
    b(f"  v_lshlrev_b32 v14, 4, v10")
    b(f"  v_add_u32 v14, v13, v14")
    b(f"  s_lshl_b32 s{S_T+3}, s{S_T+1}, 5")
    WL = 40
    b(f"  buffer_load_dwordx4 {vr(WL,4)}, v14, s[{SRD_C}:{SRD_C+3}], s{S_T+3} offen")
    b(f"  buffer_load_dwordx4 {vr(WL+4,4)}, v14, s[{SRD_D}:{SRD_D+3}], s{S_T+3} offen")
    b(f"  s_cmp_lg_u32 s{S_T+1}, 0")
    b(f"  s_cbranch_scc1 {pre}_nonyq")
    b(f"  buffer_load_ushort v48, v13, s[{SRD_C}:{SRD_C+3}], 0 offen offset:1024")
    b(f"  buffer_load_ushort v49, v13, s[{SRD_D}:{SRD_D+3}], 0 offen offset:1024")
    b(f"  s_waitcnt vmcnt(0)")
    b(f"  v_cmp_eq_u32 vcc, 0, v10")
    b(f"  v_and_b32 v50, 0xffff0000, v{WL}")
    b(f"  v_or_b32 v50, v50, v48")
    b(f"  v_cndmask_b32 v{WL}, v{WL}, v50, vcc")
    b(f"  v_and_b32 v50, 0xffff0000, v{WL+4}")
    b(f"  v_or_b32 v50, v50, v49")
    b(f"  v_cndmask_b32 v{WL+4}, v{WL+4}, v50, vcc")
    b.label(f"{pre}_nonyq")
    npf = do_prefetch(b, "p2")
    b(f"  v_and_b32 v15, 255, v0")
    b(f"  v_bfe_u32 v16, v15, 2, 4             ; x")
    b(f"  v_lshrrev_b32 v17, 6, v15            ; g")
    b(f"  v_and_b32 v18, 3, v15")
    b(f"  v_lshl_add_u32 v17, v17, 2, v18      ; 4g+i")
    b(f"  v_mul_u32_u24 v17, v17, v16")
    sincos(b, 18, 19, 17, 4, 20)
    b(f"  v_cmp_gt_u32 vcc, 256, v0            ; matrix 0 ?")
    b(f"  v_xor_b32 v20, 0x80000000, v19       ; -sin")
    b(f"  s_nop 0")
    b(f"  v_cndmask_b32 v21, v20, v18, vcc")
    b(f"  v_cndmask_b32 v22, v18, v19, vcc")
    b(f"  v_cvt_pk_bf16_f32 v21, v21, v22")
    b(f"  v_lshlrev_b32 v22, 2, v0")
    b(f"  ds_write_b32 v22, v21 offset:{P2_F}")
    b(f"  v_and_b32 v8, 15, v7")
    b(f"  v_lshrrev_b32 v9, 4, v7")
    TC, TS = 64, 68
    b(f"  v_lshlrev_b32 v16, 2, v9")
    for r in range(4):
        b(f"  v_add_u32 v17, {r}, v16")
        b(f"  v_mul_u32_u24 v17, v17, v8")
        sincos(b, TC + r, TS + r, 17, 8, 20)
    b(f"  v_and_b32 v16, 3, v0                 ; i")
    b(f"  v_mul_u32_u24 v16, {4*1040}, v16")
    b(f"  v_lshrrev_b32 v17, 6, v0             ; b (0..7)")
    b(f"  v_lshl_add_u32 v16, v17, 6, v16")
    b(f"  v_bfe_u32 v17, v0, 2, 2              ; a&3")
    b(f"  v_lshl_add_u32 v16, v17, 2, v16")
    b(f"  v_bfe_u32 v17, v0, 4, 2              ; a>>2")
    b(f"  v_lshl_add_u32 v2, v17, 4, v16       ; first")
    b(f"  v_xor_b32 v17, 2, v17                ; (a>>2 + 2)&3")
    b(f"  v_lshl_add_u32 v3, v17, 4, v16")
    b(f"  v_add_u32 v3, 512, v3                ; second (b+8)")
    b(f"  v_mul_u32_u24 v16, {4*1040}, v10")
    b(f"  v_lshl_add_u32 v16, v11, 6, v16")
    b(f"  v_and_b32 v17, 3, v12")
    b(f"  v_lshl_add_u32 v16, v17, 2, v16")
    b(f"  v_lshrrev_b32 v17, 2, v12")
    b(f"  v_lshrrev_b32 v18, 3, v11            ; c>>3")
    b(f"  v_lshlrev_b32 v18, 1, v18")
    b(f"  v_xor_b32 v17, v17, v18")
    b(f"  v_lshl_add_u32 v4, v17, 4, v16")
    b(f"  s_waitcnt vmcnt({2+npf})")
    for j in range(4):
        b(f"  ds_write_b32 v2, v{XL+j} offset:{P2_X + j*1040}")
        b(f"  ds_write_b32 v3, v{XL+4+j} offset:{P2_X + j*1040}")
    b(f"  s_waitcnt vmcnt({npf})")
    for j in range(4):
        b(f"  ds_write_b32 v4, v{WL+j} offset:{P2_W + j*1040}")
        b(f"  ds_write_b32 v4, v{WL+4+j} offset:{P2_W + 8*1040 + j*1040}")
    b(f"  s_waitcnt lgkmcnt(0)")
    b(f"  s_barrier")
    b(f"  v_lshrrev_b32 v16, 3, v8")
    b(f"  v_lshlrev_b32 v16, 1, v16")
    b(f"  v_xor_b32 v16, v16, v9")
    b(f"  v_lshlrev_b32 v16, 4, v16")
    b(f"  v_lshl_add_u32 v16, v8, 6, v16")
    b(f"  s_mul_i32 s{S_T+4}, s{S_W}, {2*1040}")
    b(f"  s_mul_i32 s{S_T+5}, s{S_W}, 1040")
    b(f"  v_add_u32 v5, s{S_T+4}, v16          ; X columns 2w, 2w+1")
    b(f"  v_add_u32 v6, s{S_T+5}, v16          ; W pair w")
    b(f"  v_lshlrev_b32 v17, 4, v7")
    FR, FI = 72, 76
    AX = 32; WR, WI = 40, 44
    b(f"  ds_read_b128 {vr(FR,4)}, v17 offset:{P2_F}")
    b(f"  ds_read_b128 {vr(FI,4)}, v17 offset:{P2_F+1024}")
    b(f"  ds_read_b128 {vr(AX,4)}, v5 offset:{P2_X}")
    b(f"  ds_read_b128 {vr(AX+4,4)}, v5 offset:{P2_X+1040}")
    b(f"  ds_read_b128 {vr(WR,4)}, v6 offset:{P2_W}")
    b(f"  ds_read_b128 {vr(WI,4)}, v6 offset:{P2_W+8*1040}")
    Dq = [80, 88]
    Oq = [96, 104]
    Tq = [112, 120]
    Pq = [128, 132]
    Wq = [136, 144]
    def stage(form, src):
        for k in range(2):
            d = Dq[k]
            if form == 'A':
                b(f"  {MF32} {vr(d,4)}, {vr(src[k],4)}, {vr(FR,4)}, 0")
                b(f"  {MF32} {vr(d+4,4)}, {vr(src[k],4)}, {vr(FI,4)}, 0")
            else:
                b(f"  {MF32} {vr(d,4)}, {vr(FR,4)}, {vr(src[k],4)}, 0")
                b(f"  {MF32} {vr(d+4,4)}, {vr(FI,4)}, {vr(src[k],4)}, 0")
    def twiddle_pack():
        for k in range(2):
            cmul_pk(b, Oq[k], Oq[k] + 4, Dq[k], Dq[k] + 4, TC, TS, Tq[k], False)
        for k in range(2):
            for r in range(4):
                b(f"  v_cvt_pk_bf16_f32 v{Pq[k]+r}, v{Oq[k]+r}, v{Oq[k]+4+r}")
        b(f"  s_nop 1")
    b(f"  s_waitcnt lgkmcnt(2)")
    stage('A', [AX, AX + 4])
    b(f"  s_waitcnt lgkmcnt(0)")
    for r in range(4):
        b(f"  v_lshlrev_b32 v{Wq[0]+r}, 16, v{WR+r}")
        b(f"  v_lshlrev_b32 v{Wq[0]+4+r}, 16, v{WI+r}")
        b(f"  v_and_b32 v{Wq[1]+r}, 0xffff0000, v{WR+r}")
        b(f"  v_and_b32 v{Wq[1]+4+r}, 0xffff0000, v{WI+r}")
    twiddle_pack()
    stage('B', Pq)
    b(f"  s_nop 5")
    for k in range(2):
        cmul_pk(b, Oq[k], Oq[k] + 4, Dq[k], Dq[k] + 4, Wq[k], Wq[k] + 4, Tq[k], True)
    for k in range(2):
        for r in range(4):
            b(f"  v_cvt_pk_bf16_f32 v{Pq[k]+r}, v{Oq[k]+r}, -v{Oq[k]+4+r}")
    b(f"  s_nop 1")
    stage('A', Pq)
    b(f"  s_nop 5")
    twiddle_pack()
    stage('B', Pq)
    b(f"  s_nop 5")
    for k in range(2):
        for r in range(4):
            b(f"  v_cvt_pk_bf16_f32 v{Pq[k]+r}, v{Dq[k]+r}, -v{Dq[k]+4+r}")
    b(f"  ds_write_b128 v5, {vr(Pq[0],4)} offset:{P2_X}")
    b(f"  ds_write_b128 v5, {vr(Pq[1],4)} offset:{P2_X+1040}")
    b(f"  s_waitcnt lgkmcnt(0)")
    b(f"  s_barrier")
    for j in range(4):
        b(f"  ds_read_b32 v{XL+j}, v2 offset:{P2_X + j*1040}")
        b(f"  ds_read_b32 v{XL+4+j}, v3 offset:{P2_X + j*1040}")
    b(f"  v_bfe_u32 v16, v0, 2, 4              ; a")
    b(f"  v_lshrrev_b32 v17, 6, v0             ; b")
    b(f"  v_lshl_add_u32 v16, v16, 4, v17      ; s1")
    b(f"  v_lshlrev_b32 v16, 14, v16")
    b(f"  v_and_b32 v17, 3, v0")
    b(f"  v_lshl_add_u32 v16, v17, 4, v16")
    b(f"  s_lshl_b32 s{S_T+4}, s{S_T}, 11")
    b(f"  s_lshl_b32 s{S_T+5}, s{S_T+1}, 6")
    b(f"  s_add_u32 s{S_T+4}, s{S_T+4}, s{S_T+5}")
    b(f"  s_add_u32 s{S_T+5}, s{S_T+4}, {8*16384}")
    b(f"  s_waitcnt lgkmcnt(0)")
    b(f"  buffer_store_dwordx4 {vr(XL,4)}, v16, s[{SRD_B}:{SRD_B+3}], s{S_T+4} offen{sf}")
    b(f"  buffer_store_dwordx4 {vr(XL+4,4)}, v16, s[{SRD_B}:{SRD_B+3}], s{S_T+5} offen{sf}")

P3_M3 = 0
P3_M4 = 4096
P3_TW = 8192
P3_EX = 16384
P3_LN = 32768
P3_RS = 2624
P3_LDS = P3_LN + 8 * P3_RS

def p3_tables(b):
    b(f"  v_and_b32 v10, 255, v0            ; e")
    b(f"  v_lshrrev_b32 v11, 8, v0")
    b(f"  v_bfe_u32 v12, v10, 2, 4          ; n = lane&15")
    b(f"  v_lshrrev_b32 v13, 6, v10         ; g")
    b(f"  v_and_b32 v14, 3, v10             ; r")
    b(f"  v_lshl_add_u32 v13, v13, 2, v14   ; 4g + r")
    b(f"  v_lshrrev_b32 v15, 2, v12")
    b(f"  v_lshlrev_b32 v15, 3, v15")
    b(f"  v_and_b32 v16, 3, v12")
    b(f"  v_add_u32 v15, v15, v16           ; b(n,0)")
    b(f"  v_lshl_add_u32 v16, v11, 2, v15   ; b(n, sel)")
    b(f"  v_mul_u32_u24 v17, v16, v13")
    sincos(b, 18, 19, 17, 5, 20)
    b(f"  v_lshlrev_b32 v22, 2, v10")
    b(f"  v_lshl_add_u32 v22, v11, 11, v22  ; sel*2048 + e*4")
    b(f"  v_cvt_pk_bf16_f32 v23, v18, -v19")
    b(f"  v_cvt_pk_bf16_f32 v24, v19, v18")
    b(f"  ds_write_b32 v22, v23 offset:{P3_M3}")
    b(f"  ds_write_b32 v22, v24 offset:{P3_M3+1024}")
    b(f"  v_lshl_add_u32 v17, v11, 4, v13   ; k1")
    for z in range(2):
        b(f"  v_add_u32 v21, {16*z}, v12")
        b(f"  v_mul_u32_u24 v21, v21, v17")
        sincos(b, 18, 19, 21, 5, 20)
        b(f"  v_add_f32 v18, v18, v18")
        b(f"  v_mul_f32 v19, -2.0, v19")
        b(f"  v_cvt_pk_bf16_f32 v23, v18, v19")
        b(f"  ds_write_b32 v22, v23 offset:{P3_M4+1024*z}")
    for v in range(2):
        b(f"  v_add_u32 v21, {4*v}, v15")
        b(f"  v_mul_u32_u24 v21, v21, v17")
        sincos(b, 18, 19, 21, 10, 20)
        b(f"  v_lshlrev_b32 v23, 2, v10")
        b(f"  v_lshl_add_u32 v23, v11, 12, v23   ; u*4096 + e*4")
        b(f"  ds_write_b32 v23, v18 offset:{P3_TW+2048*v}")
        b(f"  ds_write_b32 v23, v19 offset:{P3_TW+2048*v+1024}")

def p3_phase(b, pre="p3", sf=""):
    wave_id(b)
    srd(b, SRD_A, 8, 4 << 20, WS_X2)
    srd(b, SRD_B, 4, 4 << 20)
    srd(b, SRD_C, 8, 4 << 20, WS_H)
    srd(b, SRD_D, 8, 4 << 20, WS_LN2)
    b(f"  v_and_b32 v8, 15, v7          ; c")
    b(f"  v_lshrrev_b32 v9, 4, v7       ; g")
    b(f"  v_lshlrev_b32 v1, 12, v9")
    b(f"  v_lshl_add_u32 v1, v8, 2, v1")
    b(f"  s_lshl_b32 s{S_T}, s2, 14")
    b(f"  s_and_b32 s{S_T+1}, s{S_W}, 1")
    b(f"  s_lshl_b32 s{S_T+1}, s{S_T+1}, 6")
    b(f"  s_lshr_b32 s{S_T+2}, s{S_W}, 1")
    b(f"  s_lshl_b32 s{S_T+2}, s{S_T+2}, 9")
    b(f"  s_add_u32 s{S_T}, s{S_T}, s{S_T+1}")
    b(f"  s_add_u32 s{S_T}, s{S_T}, s{S_T+2}")
    Bd = 32
    for i in range(4):
        for e in range(2):
            b(f"  buffer_load_dword v{Bd+2*i+e}, v1, s[{SRD_A}:{SRD_A+3}], s{S_T} offen offset:{e*2048+i*128}")
    b(f"  s_lshl_b32 s{S_T+3}, s{S_W}, 8")
    b(f"  s_add_u32 s{S_T+3}, s{S_T+3}, s2")
    b(f"  s_lshl_b32 s{S_T+3}, s{S_T+3}, 11       ; s*2048")
    b(f"  v_lshlrev_b32 v2, 6, v8")
    b(f"  v_lshl_add_u32 v2, v9, 4, v2")
    XR = 192
    for z in range(2):
        b(f"  buffer_load_dwordx4 {vr(XR+4*z,4)}, v2, s[{SRD_B}:{SRD_B+3}], s{S_T+3} offen offset:{1024*z}")
    npf = do_prefetch(b, "p3")
    p3_tables(b)
    GM = 30
    gmat(b, GM, 2, True, 10)
    D = 40
    b(f"  s_nop 0")
    b(f"  s_waitcnt vmcnt({2+npf})")
    for i in range(4):
        b(f"  {MF16} {vr(D+4*i,4)}, {vr(GM,2)}, {vr(Bd+2*i,2)}, 0")
    b(f"  v_lshlrev_b32 v3, 12, v9")
    b(f"  v_lshl_add_u32 v3, v8, 4, v3")
    b(f"  s_lshl_b32 s{S_T+1}, s{S_T+1}, 4        ; u*1024")
    b(f"  s_lshr_b32 s{S_T+2}, s{S_T+2}, 1        ; q4*256")
    b(f"  s_add_u32 s{S_T+1}, s{S_T+1}, s{S_T+2}")
    b(f"  v_add_u32 v3, s{S_T+1}, v3")
    b(f"  s_nop 3")
    PK = 56
    for e in range(2):
        for i in range(4):
            b(f"  v_cvt_pk_bf16_f32 v{PK+4*e+i}, v{D+4*i+2*e}, v{D+4*i+2*e+1}")
    b(f"  ds_write_b128 v3, {vr(PK,4)} offset:{P3_EX}")
    b(f"  ds_write_b128 v3, {vr(PK+4,4)} offset:{P3_EX+2048}")
    b(f"  s_waitcnt lgkmcnt(0)")
    b(f"  s_barrier")
    M3, M4, TW = 96, 112, 128
    b(f"  v_lshlrev_b32 v4, 4, v7")
    b(f"  v_lshlrev_b32 v5, 8, v9")
    b(f"  v_lshl_add_u32 v5, v8, 4, v5")
    b(f"  s_lshl_b32 s{S_T+1}, s{S_W}, 11")
    b(f"  v_add_u32 v5, s{S_T+1}, v5")
    AU = 32
    b(f"  ds_read_b128 {vr(AU,4)}, v5 offset:{P3_EX}")
    b(f"  ds_read_b128 {vr(AU+4,4)}, v5 offset:{P3_EX+1024}")
    for i in range(4): b(f"  ds_read_b128 {vr(M3+4*i,4)}, v4 offset:{P3_M3+1024*i}")
    for i in range(8): b(f"  ds_read_b128 {vr(TW+4*i,4)}, v4 offset:{P3_TW+1024*i}")
    b(f"  s_waitcnt lgkmcnt(12)")
    b(f"  v_readlane_b32 s{S_T+4}, v{AU}, 0")
    b(f"  v_writelane_b32 v{AU}, 0, 0")
    b(f"  s_waitcnt lgkmcnt(8)")
    b(f"  s_lshl_b32 s{S_T+4}, s{S_T+4}, 16")
    for i in range(4): b(f"  ds_read_b128 {vr(M4+4*i,4)}, v4 offset:{P3_M4+1024*i}")
    TT = 160
    for u in range(2):
        for v in range(2):
            for c in range(2):
                d = TT + ((u * 2 + v) * 2 + c) * 4
                b(f"  {MF32} {vr(d,4)}, {vr(AU+4*u,4)}, {vr(M3+4*(2*v+c),4)}, 0")
    CI = 60
    b(f"  v_mov_b32 v{CI}, s{S_T+4}")
    b(f"  v_xor_b32 v{CI+1}, 0x80000000, v{CI}")
    b(f"  v_mov_b32 v{CI+2}, v{CI}")
    b(f"  v_mov_b32 v{CI+3}, v{CI+1}")
    b(f"  s_waitcnt lgkmcnt(0)")
    b(f"  s_nop 1")
    A2 = 64; O = 40; W = 80
    for u in range(2):
        for v in range(2):
            t = TT + ((u * 2 + v) * 2) * 4
            tw = TW + ((u * 2 + v) * 2) * 4
            cmul_pk(b, O, O + 4, t, t + 4, tw, tw + 4, W, True)
            for r in range(4):
                b(f"  v_cvt_pk_bf16_f32 v{A2+(u*2+v)*4+r}, v{O+r}, v{O+4+r}")
    Y = 160
    b(f"  s_nop 1")
    for z in range(2):
        for v in range(2):
            d = Y + (z * 2 + v) * 4
            b(f"  {MF32} {vr(d,4)}, {vr(A2+(0*2+v)*4,4)}, {vr(M4+(0*2+z)*4,4)}, {vr(CI,4)}")
    for z in range(2):
        for v in range(2):
            d = Y + (z * 2 + v) * 4
            b(f"  {MF32} {vr(d,4)}, {vr(A2+(1*2+v)*4,4)}, {vr(M4+(1*2+z)*4,4)}, {vr(d,4)}")
    b(f"  s_waitcnt vmcnt({npf})")
    b(f"  s_nop 6")
    X = 40; HP = 32
    for z in range(2):
        for dd in range(4):
            y0 = Y + z * 8 + 2 * dd
            xd = XR + 4 * z + dd
            t = 64 + 4 * (dd % 2)
            b(f"  v_cvt_pk_bf16_f32 v{t}, v{y0}, v{y0+1}")
            b(f"  v_lshlrev_b32 v{t+1}, 16, v{xd}")
            b(f"  v_and_b32 v{t+2}, 0xffff0000, v{xd}")
            b(f"  v_and_b32 v{t+3}, 0xffff0000, v{t}")
            b(f"  v_lshlrev_b32 v{t}, 16, v{t}")
            b(f"  v_add_f32 v{t+1}, v{t+1}, v{t}")
            b(f"  v_add_f32 v{t+2}, v{t+2}, v{t+3}")
            b(f"  v_cvt_pk_bf16_f32 v{HP+4*z+dd}, v{t+1}, v{t+2}")
    for z in range(2):
        b(f"  buffer_store_dwordx4 {vr(HP+4*z,4)}, v2, s[{SRD_C}:{SRD_C+3}], s{S_T+3} offen offset:{1024*z}{sf}")
    for i in range(8):
        b(f"  v_lshlrev_b32 v{X+2*i}, 16, v{HP+i}")
        b(f"  v_and_b32 v{X+2*i+1}, 0xffff0000, v{HP+i}")
    layernorm16(b, X, 64, S_T+5, S_T+6)
    LP = 72
    for i in range(8):
        b(f"  v_cvt_pk_bf16_f32 v{LP+i}, v{X+2*i}, v{X+2*i+1}")
    b(f"  v_mul_u32_u24 v3, 80, v8")
    b(f"  v_lshl_add_u32 v3, v9, 4, v3")
    b(f"  s_mul_i32 s{S_T+1}, s{S_W}, {P3_RS}")
    b(f"  v_add_u32 v3, s{S_T+1}, v3")
    for z in range(2):
        b(f"  ds_write_b128 v3, {vr(LP+4*z,4)} offset:{P3_LN + z*16*80}")
    b(f"  s_waitcnt lgkmcnt(0)")
    b(f"  s_barrier")
    b(f"  v_bfe_u32 v10, v7, 2, 2")
    b(f"  v_mul_u32_u24 v10, {P3_RS}, v10")
    b(f"  v_lshrrev_b32 v11, 5, v7")
    b(f"  v_mul_u32_u24 v12, 80, v11")
    b(f"  v_add_u32 v10, v10, v12")
    b(f"  v_and_b32 v12, 1, v7")
    b(f"  v_lshl_add_u32 v10, v12, 5, v10")
    b(f"  v_bfe_u32 v12, v7, 4, 1")
    b(f"  v_lshl_add_u32 v10, v12, 4, v10")
    b(f"  v_bfe_u32 v12, v7, 1, 1")
    b(f"  v_lshl_add_u32 v10, v12, 3, v10")
    b(f"  s_mul_i32 s{S_T+1}, s{S_W}, {4*80}")
    b(f"  v_add_u32 v10, s{S_T+1}, v10")
    for ps in range(2):
        b(f"  ds_read_b64_tr_b16 {vr(32+4*ps,2)}, v10 offset:{P3_LN + ps*160}")
        b(f"  ds_read_b64_tr_b16 {vr(34+4*ps,2)}, v10 offset:{P3_LN + ps*160 + 4*P3_RS}")
    b(f"  v_lshlrev_b32 v11, 17, v11")
    b(f"  v_and_b32 v12, 31, v7")
    b(f"  v_lshl_add_u32 v11, v12, 4, v11")
    b(f"  s_lshl_b32 s{S_T+1}, s{S_W}, 19")
    b(f"  s_lshl_b32 s{S_T+2}, s2, 9              ; jk*1024 + h*512 = s1*512")
    b(f"  s_add_u32 s{S_T+1}, s{S_T+1}, s{S_T+2}")
    b(f"  s_add_u32 s{S_T+2}, s{S_T+1}, {2*131072}")
    b(f"  s_waitcnt lgkmcnt(2)")
    b(f"  buffer_store_dwordx4 v[32:35], v11, s[{SRD_D}:{SRD_D+3}], s{S_T+1} offen{sf}")
    b(f"  s_waitcnt lgkmcnt(0)")
    b(f"  buffer_store_dwordx4 v[36:39], v11, s[{SRD_D}:{SRD_D+3}], s{S_T+2} offen{sf}")
```

```python
import sys
from asmlib import *
import gemm, fft
from gemm import *
from fft import *
NAME = "sequential_preLN__spectral_gfnet__mixer_token_mlp__prompt"
out = sys.argv[1] if len(sys.argv) > 1 else "multi.s"
gemm.OPT.update(sys.argv[2:])
W1B = 2048*3584*2; WB = 2048*1026
if "pf64" in gemm.OPT: fft.PF_STRIDE = 64
if "pfA" in gemm.OPT:
    fft.PF["p1"] = [(32, W1B, 0, 1)]
    fft.PF["p2"] = [(48, W1B, 0, 1)]
if "pfB" in gemm.OPT:
    fft.PF["p1"] = [(32, W1B, 0, 2), (32, W1B, 1, 2)]
    fft.PF["p3"] = [(48, W1B, 0, 1)]
if "pfC" in gemm.OPT:
    fft.PF["p1"] = [(32, W1B, 0, 1), (48, W1B, 0, 1)]

hdr = open(f"cdna_kernels/{NAME}.s.ref").read().split("; Override launch")[0]
b = B()
b(hdr.rstrip("\n"))
b(f"; @launch kernel=p1_kernel grid=(256,1,1) block=(512,1,1) lds={P1_LDS}")
b(f"; @launch kernel=p2_kernel grid=(256,1,1) block=(512,1,1) lds={P2_LDS}")
b(f"; @launch kernel=p3_kernel grid=(256,1,1) block=(512,1,1) lds={P3_LDS}")
b("; @launch kernel=g1_kernel grid=(256,1,1) block=(512,1,1) lds=131072")
b("; @launch kernel=g2_kernel grid=(256,1,1) block=(512,1,1) lds=131072")
b('.amdgcn_target "amdgcn-amd-amdhsa--gfx950"\n.text')
def head(name):
    b(f".globl {name}\n.p2align 8\n.type {name},@function\n{name}:")
    b(f"  s_cmp_ge_u32 s2, 256\n  s_cbranch_scc1 {name}_exit")
def tail(name, vg):
    b(f"{name}_exit:\n  s_endpgm")
    b(kd(name, vg))
head("p1_kernel")
b("  s_load_dwordx2 s[4:5], s[0:1], 0\n  s_load_dwordx2 s[8:9], s[0:1], 80\n  s_waitcnt lgkmcnt(0)")
p1_phase(b); tail("p1_kernel", 192)
head("p2_kernel")
b("  s_load_dwordx4 s[4:7], s[0:1], 8\n  s_load_dwordx2 s[8:9], s[0:1], 80\n  s_waitcnt lgkmcnt(0)")
p2_phase(b); tail("p2_kernel", 160)
head("p3_kernel")
b("  s_load_dwordx2 s[4:5], s[0:1], 0\n  s_load_dwordx2 s[8:9], s[0:1], 80\n  s_waitcnt lgkmcnt(0)")
p3_phase(b); tail("p3_kernel", 200)
head("g1_kernel")
b("  s_load_dwordx4 s[4:7], s[0:1], 32\n  s_load_dwordx2 s[8:9], s[0:1], 80\n  s_waitcnt lgkmcnt(0)")
g1_phase(b); tail("g1_kernel", 224)
head("g2_kernel")
b("  s_load_dwordx4 s[4:7], s[0:1], 48\n  s_load_dwordx2 s[8:9], s[0:1], 80\n  s_load_dwordx2 s[10:11], s[0:1], 64\n  s_waitcnt lgkmcnt(0)")
g2_phase(b); tail("g2_kernel", 224)
t = b.text()
open(out, "w").write(t)
rep = check_text(t)
print("\n".join(rep) if rep else "no hazards found")
```

```python
import sys
from asmlib import *
import gemm, fft
from gemm import (srd, f2u, WS_X1, WS_X2, WS_H, WS_LN2, WS_U, U_BYTES, S_W, R, STAGE, PR, DQ,
                  V_P, V_T, V_ACC, S_POFF, S_IT, S_DELTA, SRD_P, SRD_T, SRD_O, SRD_X, SRD_Y, S_TILE_A, S_TILE_B, S_TMP,
                  g1_cfg, g2_cfg, lane_geom)
from fft import sincos, wave_reduce, ln_finish, layernorm16, cmul_pk, gmat, MF32, MF16

OPT = set()
PFN = [4, 3, 4, 3]
WS_CNT = 30 << 20
WS_STAMP = 31 << 20
W1B = 2048 * 3584 * 2
WB = 2048 * 1026

P_X, P_WR, P_WI, P_W1, P_B1, P_W2, P_B2, P_OUT, P_DBG, P_WS = 64, 66, 68, 70, 72, 74, 76, 78, 80, 82
SRD_CNT = 12
S_T = 46
SRD_A, SRD_B, SRD_C, SRD_D = 24, 28, 32, 36
SRD_PF = 56
S_STAMP = 84
SF = " sc1"
LF = ""

L1_M1, L1_M2, L1_TW, L1_EX = 0, 4096, 8192, 16384
L2_F = 32768; L2_X = L2_F + 2048; L2_W = L2_X + 16 * 1040
L3_M3 = 98304; L3_M4 = L3_M3 + 4096; L3_TW = L3_M3 + 8192; L3_EX = L3_M3 + 16384
L3_LN = L3_EX + 16384; L3_RS = 2624
LDS_TOTAL = L3_LN + 8 * L3_RS
assert LDS_TOTAL <= 163840

STAMPS = ["entry", "p1 x landed", "p1 stores issued", "p1 arrived", "x1 released", "p2 x landed", "p2 stores issued",
          "x2 released", "p3 x2 landed", "p3 stores issued", "x3 released", "g1 main done", "g1 stores issued", "x4 released",
          "g2 main done", "g2 stores issued", "end", "x1 drained", "x2 drained", "x3 drained", "x4 drained", "p1 tables done", "p1 ln done", "p1 fft done", "p3 ifft done", "p3 ln done", "c:g1 start", "c:g1 end", "c:g2 start", "c:g2 end"]
nstamp = [len(STAMPS)]
W1F = lambda: " nt" if "ntw1" in OPT else ""
W2F = lambda: " nt" if "ntw2" in OPT else ""
XF = lambda: " nt" if "ntx" in OPT else ""
def stamp(b, name):
    if "stamp" not in OPT: return
    i = STAMPS.index(name)
    op = "s_memtime" if name.startswith("c:") else "s_memrealtime"
    b(f"  {op} s[{S_STAMP}:{S_STAMP+1}]   ; stamp {i}: {name}")
    b(f"  s_waitcnt lgkmcnt(0)")
    b(f"  v_writelane_b32 v231, s{S_STAMP}, {i}")

def stamp_flush(b):
    if "stamp" not in OPT: return
    srd(b, 24, P_WS, 1 << 20, WS_STAMP)
    b(f"  s_lshl_b32 s46, s2, 3")
    b(f"  s_add_u32 s46, s46, s{S_W}")
    b(f"  s_lshl_b32 s46, s46, 7            ; (wg*8+wave)*128")
    b(f"  v_lshlrev_b32 v2, 2, v7")
    b(f"  s_mov_b64 s[48:49], exec")
    b(f"  s_mov_b64 exec, 0xffffffff")
    b(f"  buffer_store_dword v231, v2, s[24:27], s46 offen")
    b(f"  s_mov_b64 exec, s[48:49]")

def arrive(b, bar, shard_sreg, first=False, label="", drained=False):
    if not drained: b(f"  s_waitcnt vmcnt(0)")
    stamp(b, f"x{bar+1} drained")
    b(f"  s_barrier")
    b(f"  s_cmp_lg_u32 s{S_W}, 0")
    b(f"  s_cbranch_scc1 {label}_arr_skip")
    if first:
        b(f"  s_mov_b32 s11, 100000")
        b.label(f"{label}_rdy")
        b(f"  v_readfirstlane_b32 s10, v27")
        b(f"  s_nop 3")
        b(f"  s_cmp_lg_u32 s10, 0")
        b(f"  s_cbranch_scc1 {label}_rdy_ok")
        b(f"  buffer_load_dword v27, v26, s[{SRD_PF}:{SRD_PF+3}], 0 offen sc1")
        b(f"  s_waitcnt vmcnt(0)")
        b(f"  s_sub_u32 s11, s11, 1")
        b(f"  s_cmp_lg_u32 s11, 0")
        b(f"  s_cbranch_scc1 {label}_rdy")
        b.label(f"{label}_rdy_ok")
    b(f"  s_lshl_b32 s10, s{shard_sreg}, 8")
    b(f"  s_add_u32 s10, s10, {bar*4096}")
    b(f"  v_mov_b32 v228, s10")
    b(f"  v_mov_b32 v229, 1")
    b(f"  s_mov_b64 s[16:17], exec")
    b(f"  s_mov_b64 exec, 1")
    b(f"  buffer_atomic_add v229, v228, s[{SRD_CNT}:{SRD_CNT+3}], 0 offen sc1")
    b(f"  s_mov_b64 exec, s[16:17]")
    b.label(f"{label}_arr_skip")

def wait(b, bar, target, label, single_sreg=None):
    b(f"  s_cmp_lg_u32 s{S_W}, 0")
    b(f"  s_cbranch_scc1 {label}_w_skip")
    if single_sreg is None:
        b(f"  v_and_b32 v228, 15, v7")
        b(f"  v_lshlrev_b32 v228, 8, v228")
        b(f"  v_add_u32 v228, {bar*4096}, v228")
    else:
        b(f"  s_lshl_b32 s10, s{single_sreg}, 8")
        b(f"  s_add_u32 s10, s10, {bar*4096}")
        b(f"  v_mov_b32 v228, s10")
    b(f"  s_mov_b32 s11, 200000")
    b.label(f"{label}_poll")
    b(f"  buffer_load_dword v229, v228, s[{SRD_CNT}:{SRD_CNT+3}], 0 offen sc1")
    b(f"  s_waitcnt vmcnt(0)")
    b(f"  v_cmp_le_u32 vcc, {target}, v229")
    b(f"  s_nop 1")
    b(f"  s_cmp_eq_u64 vcc, exec")
    b(f"  s_cbranch_scc1 {label}_w_skip")
    b(f"  s_sub_u32 s11, s11, 1")
    b(f"  s_cmp_lg_u32 s11, 0")
    b(f"  s_cbranch_scc1 {label}_poll")
    b.label(f"{label}_w_skip")
    b(f"  s_barrier")

def prefetch(b, ptr_pair, nbytes, start, length, who_scale, who_sreg, vaddr, vdst, stmp, paced=False):
    chunk = -(-length // who_scale)
    n_per_wave = -(-chunk // (512 * 128))
    stride = -(-chunk // (512 * n_per_wave))
    stride = (stride + 3) // 4 * 4
    per_instr = 64 * stride
    srd(b, SRD_PF, ptr_pair, nbytes)
    b(f"  s_mul_i32 s{stmp}, s{who_sreg}, {chunk}")
    b(f"  s_mul_i32 s{stmp+1}, s{S_W}, {n_per_wave*per_instr}")
    b(f"  s_add_u32 s{stmp}, s{stmp}, s{stmp+1}")
    if start: b(f"  s_add_u32 s{stmp}, s{stmp}, {start}")
    b(f"  v_mul_u32_u24 v{vaddr}, {stride}, v7")
    for i in range(n_per_wave):
        b(f"  buffer_load_dword v{vdst}, v{vaddr}, s[{SRD_PF}:{SRD_PF+3}], s{stmp} offen")
        if i + 1 < n_per_wave: b(f"  s_add_u32 s{stmp}, s{stmp}, {per_instr}")
        if paced: b(f"  s_waitcnt vmcnt(0)")
    return n_per_wave

V_DUMMY = 232
def pf_wide(b, ptr_pair, nbytes, s_base, n, wave_lo, wave_hi, label):
    b(f"  s_cmp_lt_u32 s{S_W}, {wave_lo}")
    b(f"  s_cbranch_scc1 {label}")
    if wave_hi < 8:
        b(f"  s_cmp_ge_u32 s{S_W}, {wave_hi}")
        b(f"  s_cbranch_scc1 {label}")
    srd(b, SRD_PF, ptr_pair, nbytes)
    b(f"  s_sub_u32 s{S_T+9}, s{S_W}, {wave_lo}")
    b(f"  s_mul_i32 s{S_T+9}, s{S_T+9}, {n*1024}")
    b(f"  s_add_u32 s{S_T+9}, s{S_T+9}, s{s_base}")
    b(f"  v_lshlrev_b32 v29, 4, v7")
    for i in range(n):
        if i and i % 4 == 0: b(f"  s_add_u32 s{S_T+9}, s{S_T+9}, 4096")
        b(f"  buffer_load_dwordx4 {vr(V_DUMMY,4)}, v29, s[{SRD_PF}:{SRD_PF+3}], s{S_T+9} offen offset:{(i%4)*1024}")
    b.label(label)

def w1_share_base(b, sreg, part):
    b(f"  s_mul_i32 s{sreg}, s2, {W1B // 256}")
    if part: b(f"  s_add_u32 s{sreg}, s{sreg}, {part}")

def w1_first_half_base(b, sreg, part):
    b(f"  s_and_b32 s{sreg}, s2, 7")
    b(f"  s_mul_i32 s{sreg}, s{sreg}, {256*7168}")
    b(f"  s_lshr_b32 s{S_T+9}, s2, 3")
    b(f"  s_mul_i32 s{S_T+9}, s{S_T+9}, {4*7168}")
    b(f"  s_add_u32 s{sreg}, s{sreg}, s{S_T+9}")
    if part: b(f"  s_add_u32 s{sreg}, s{sreg}, {part}")

def p1_tables(b):
    M1, M2, TW = L1_M1, L1_M2, L1_TW
    b(f"  v_and_b32 v10, 255, v0            ; e")
    b(f"  v_lshrrev_b32 v11, 8, v0          ; u")
    b(f"  v_bfe_u32 v12, v10, 2, 4          ; lane&15")
    b(f"  v_lshl_add_u32 v12, v11, 4, v12   ; k1")
    b(f"  v_lshrrev_b32 v13, 6, v10         ; g")
    b(f"  v_and_b32 v14, 3, v10")
    b(f"  v_lshlrev_b32 v13, 3, v13")
    b(f"  v_lshl_add_u32 v13, v14, 1, v13   ; a0 = 8g + 2i")
    b(f"  v_mul_u32_u24 v15, v13, v12       ; a0*k1")
    b(f"  v_add_u32 v16, v15, v12           ; (a0+1)*k1")
    sincos(b, 17, 18, 15, 5, 21)
    sincos(b, 19, 20, 16, 5, 21)
    b(f"  v_lshlrev_b32 v22, 2, v10")
    b(f"  v_lshl_add_u32 v22, v11, 11, v22  ; u*2048 + e*4")
    b(f"  v_cvt_pk_bf16_f32 v23, v17, v19")
    b(f"  v_cvt_pk_bf16_f32 v24, -v18, -v20")
    b(f"  ds_write_b32 v22, v23 offset:{M1}")
    b(f"  ds_write_b32 v22, v24 offset:{M1+1024}")
    sincos(b, 17, 18, 15, 10, 21)
    sincos(b, 19, 20, 16, 10, 21)
    b(f"  ds_write_b32 v22, v17 offset:{TW}")
    b(f"  ds_write_b32 v22, v18 offset:{TW+1024}")
    b(f"  ds_write_b32 v22, v19 offset:{TW+4096}")
    b(f"  ds_write_b32 v22, v20 offset:{TW+4096+1024}")
    b(f"  v_bfe_u32 v12, v10, 2, 4          ; k2")
    b(f"  v_mul_u32_u24 v15, v13, v12")
    b(f"  v_add_u32 v16, v15, v12")
    sincos(b, 17, 18, 15, 5, 21)
    sincos(b, 19, 20, 16, 5, 21)
    b(f"  v_lshlrev_b32 v22, 2, v10")
    b(f"  v_cvt_pk_bf16_f32 v23, v17, v19")
    b(f"  v_cvt_pk_bf16_f32 v24, v18, v20")
    b(f"  v_cvt_pk_bf16_f32 v25, -v18, -v20")
    b(f"  ds_write_b32 v22, v23 offset:{M2}")
    b(f"  ds_write_b32 v22, v24 offset:{M2+1024}")
    b(f"  ds_write_b32 v22, v25 offset:{M2+2048}")

def p1(b):
    srd(b, SRD_A, P_X, 4 << 20)
    srd(b, SRD_B, P_WS, 4 << 20, WS_X1)
    b(f"  s_lshl_b32 s{S_T}, s{S_W}, 8")
    b(f"  s_add_u32 s{S_T}, s{S_T}, s2          ; s")
    b(f"  s_lshl_b32 s{S_T+1}, s{S_T}, 11")
    b(f"  v_lshlrev_b32 v1, 9, v9")
    b(f"  v_lshl_add_u32 v1, v8, 2, v1")
    XD = 32
    for i in range(8):
        b(f"  buffer_load_dword v{XD+i}, v1, s[{SRD_A}:{SRD_A+3}], s{S_T+1} offen offset:{64*i}{XF()}")
    b(f"  s_cmp_ge_u32 s2, 16")
    b(f"  s_cbranch_scc1 p1_noreset")
    b(f"  s_cmp_lg_u32 s{S_W}, 0")
    b(f"  s_cbranch_scc1 p1_noreset")
    b(f"  s_lshl_b32 s{S_T+2}, s2, 8")
    b(f"  v_lshlrev_b32 v2, 12, v7")
    b(f"  v_add_u32 v2, s{S_T+2}, v2")
    b(f"  v_mov_b32 v3, 0")
    b(f"  s_mov_b64 s[48:49], exec")
    b(f"  s_mov_b64 exec, 15")
    b(f"  buffer_store_dword v3, v2, s[{SRD_CNT}:{SRD_CNT+3}], 0 offen sc1")
    b(f"  s_mov_b64 exec, s[48:49]")
    b.label("p1_noreset")
    npf = 0
    p1_tables(b)
    GM = 30
    gmat(b, GM, 2, False, 10)
    b(f"  s_waitcnt lgkmcnt(0)")
    stamp(b, "p1 tables done")
    b(f"  s_barrier")
    npf = 0
    if "nopf" not in OPT:
        b(f"  s_mul_i32 s{S_T+8}, s2, 8208")
        if "ntx" not in OPT:
            pf_wide(b, P_WR, WB, S_T + 8, 3, 0, 3, "pf_p1a")
            pf_wide(b, P_WI, WB, S_T + 8, 3, 0, 3, "pf_p1b")
        if "ntw1" not in OPT and PFN[0]:
            w1_share_base(b, S_T + 8, 0)
            pf_wide(b, P_W1, W1B, S_T + 8, PFN[0], 4, 8, "pf_p1c")
    M1, M2, TW = 96, 112, 128
    b(f"  v_lshlrev_b32 v2, 4, v7")
    for i in range(4): b(f"  ds_read_b128 {vr(M1+4*i,4)}, v2 offset:{L1_M1+1024*i}")
    for i in range(3): b(f"  ds_read_b128 {vr(M2+4*i,4)}, v2 offset:{L1_M2+1024*i}")
    for i in range(8): b(f"  ds_read_b128 {vr(TW+4*i,4)}, v2 offset:{L1_TW+1024*i}")
    X = 40
    if "nopf" not in OPT:
        b(f"  s_cmp_eq_u32 s{S_W}, 3")
        b(f"  s_cbranch_scc1 p1_xw0")
        b(f"  s_cmp_ge_u32 s{S_W}, 4")
        b(f"  s_cbranch_scc1 p1_xw4")
        b(f"  s_waitcnt vmcnt({0 if 'ntx' in OPT else 6})")
        b(f"  s_branch p1_xwd")
        b.label("p1_xw4")
        b(f"  s_waitcnt vmcnt({0 if 'ntw1' in OPT else PFN[0]})")
        b(f"  s_branch p1_xwd")
        b.label("p1_xw0")
    b(f"  s_waitcnt vmcnt(0)")
    if "nopf" not in OPT: b.label("p1_xwd")
    stamp(b, "p1 x landed")
    srd(b, SRD_PF, P_DBG, 256)
    b(f"  s_and_b32 s{S_T+8}, s2, 15")
    b(f"  s_lshl_b32 s{S_T+9}, s{S_T+8}, 2")
    b(f"  v_mov_b32 v26, s{S_T+9}")
    b(f"  s_cmp_ge_u32 s2, 16")
    b(f"  s_cbranch_scc1 p1_noflag")
    b(f"  s_cmp_lg_u32 s{S_W}, 0")
    b(f"  s_cbranch_scc1 p1_noflag")
    b(f"  v_mov_b32 v3, 1")
    b(f"  s_mov_b64 s[48:49], exec")
    b(f"  s_mov_b64 exec, 1")
    b(f"  buffer_store_dword v3, v26, s[{SRD_PF}:{SRD_PF+3}], 0 offen sc1")
    b(f"  s_mov_b64 exec, s[48:49]")
    b.label("p1_noflag")
    for i in range(8):
        b(f"  v_lshlrev_b32 v{X+i}, 16, v{XD+i}")
        b(f"  v_and_b32 v{X+8+i}, 0xffff0000, v{XD+i}")
    T = 56
    b(f"  v_add_f32 v{T}, v{X}, v{X+1}")
    b(f"  v_add_f32 v{T+1}, v{X+8}, v{X+9}")
    for i in range(2, 8):
        b(f"  v_add_f32 v{T}, v{T}, v{X+i}")
        b(f"  v_add_f32 v{T+1}, v{T+1}, v{X+8+i}")
    wave_reduce(b, [T, T+1])
    b(f"  v_sub_f32 v{T+2}, v{T}, v{T+1}       ; E - O")
    b(f"  v_add_f32 v{T}, v{T}, v{T+1}")
    b(f"  s_nop 0")
    b(f"  v_readlane_b32 s{S_T+2}, v{T}, 63")
    b(f"  v_readlane_b32 s{S_T+4}, v{T+2}, 63")
    b(f"  s_nop 1")
    ln_finish(b, X, T, S_T+2, S_T+3)
    b(f"  v_mul_f32 v{T+6}, s{S_T+4}, v{T+4}")
    stamp(b, "p1 ln done")
    A = 64
    for be in range(2):
        for i in range(4):
            b(f"  v_cvt_pk_bf16_f32 v{A+4*be+i}, v{X+8*be+2*i}, v{X+8*be+2*i+1}")
    b(f"  s_waitcnt lgkmcnt(0)")
    b(f"  v_readlane_b32 s{S_T+5}, v{T+6}, 0")
    Y = 160
    for be in range(2):
        for u in range(2):
            for c in range(2):
                d = Y + ((be * 2 + u) * 2 + c) * 4
                b(f"  {MF32} {vr(d,4)}, {vr(A+4*be,4)}, {vr(M1+4*(2*u+c),4)}, 0")
    b(f"  s_nop 4")
    Bp = 72; W = 32; O = 40
    for u in range(2):
        for be in range(2):
            y = Y + ((be * 2 + u) * 2) * 4
            tw = TW + (be * 4 + u * 2) * 4
            cmul_pk(b, O + 8 * be, O + 8 * be + 4, y, y + 4, tw, tw + 4, W, False)
        for r in range(4):
            b(f"  v_cvt_pk_bf16_f32 v{Bp+8*u+r}, v{O+r}, v{O+8+r}")
            b(f"  v_cvt_pk_bf16_f32 v{Bp+8*u+4+r}, v{O+4+r}, v{O+12+r}")
    XO = 160
    b(f"  s_nop 1")
    for u in range(2):
        re, im = XO + 8 * u, XO + 8 * u + 4
        b(f"  {MF32} {vr(re,4)}, {vr(M2,4)}, {vr(Bp+8*u,4)}, 0")
        b(f"  {MF32} {vr(im,4)}, {vr(M2,4)}, {vr(Bp+8*u+4,4)}, 0")
        b(f"  {MF32} {vr(re,4)}, {vr(M2+4,4)}, {vr(Bp+8*u+4,4)}, {vr(re,4)}")
        b(f"  {MF32} {vr(im,4)}, {vr(M2+8,4)}, {vr(Bp+8*u,4)}, {vr(im,4)}")
    b(f"  buffer_load_dword v27, v26, s[{SRD_PF}:{SRD_PF+3}], 0 offen sc1")
    b(f"  s_and_b32 s{S_T+6}, s{S_W}, 1")
    b(f"  s_lshl_b32 s{S_T+6}, s{S_T+6}, 8")
    b(f"  s_lshr_b32 s{S_T+7}, s{S_W}, 1")
    b(f"  s_lshl_b32 s{S_T+7}, s{S_T+7}, 6")
    b(f"  s_add_u32 s{S_T+6}, s{S_T+6}, s{S_T+7}")
    b(f"  v_lshlrev_b32 v3, 12, v9")
    b(f"  v_lshl_add_u32 v3, v8, 2, v3")
    b(f"  v_add_u32 v3, s{S_T+6}, v3")
    b(f"  s_nop 2")
    b(f"  v_writelane_b32 v{XO}, s{S_T+5}, 0")
    b(f"  v_writelane_b32 v{XO+4}, 0, 0")
    PK = 32
    for u in range(2):
        for r in range(4):
            b(f"  v_cvt_pk_bf16_f32 v{PK+4*u+r}, v{XO+8*u+r}, v{XO+8*u+4+r}")
    for u in range(2):
        for r in range(4):
            b(f"  ds_write_b32 v3, v{PK+4*u+r} offset:{L1_EX + u*512 + r*1024}")
    b(f"  s_waitcnt lgkmcnt(0)")
    stamp(b, "p1 fft done")
    b(f"  s_barrier")
    b(f"  v_lshlrev_b32 v4, 6, v9")
    b(f"  v_lshl_add_u32 v4, v8, 2, v4")
    b(f"  s_lshl_b32 s{S_T+6}, s{S_W}, 11")
    b(f"  s_add_u32 s{S_T+6}, s{S_T+6}, {L1_EX}")
    b(f"  v_add_u32 v4, s{S_T+6}, v4")
    Bd = 40
    for i in range(4):
        b(f"  ds_read2st64_b32 {vr(Bd+2*i,2)}, v4 offset0:{2*i} offset1:{2*i+1}")
    b(f"  v_lshlrev_b32 v5, 15, v9")
    b(f"  v_lshl_add_u32 v5, v8, 2, v5")
    b(f"  s_and_b32 s{S_T+6}, s2, 15")
    b(f"  s_lshl_b32 s{S_T+6}, s{S_T+6}, 4")
    b(f"  s_lshr_b32 s{S_T+7}, s2, 4")
    b(f"  s_add_u32 s{S_T+6}, s{S_T+6}, s{S_T+7}")
    b(f"  s_lshl_b32 s{S_T+6}, s{S_T+6}, 6       ; pos*64")
    b(f"  s_lshl_b32 s{S_T+7}, s{S_W}, 19        ; 4w*131072")
    b(f"  s_add_u32 s{S_T+6}, s{S_T+6}, s{S_T+7}")
    D = 48
    for i in range(4):
        b(f"  s_waitcnt lgkmcnt({3-i})")
        b(f"  {MF16} {vr(D+4*i,4)}, {vr(GM,2)}, {vr(Bd+2*i,2)}, 0")
    b(f"  s_nop 4")
    for i in range(4):
        b(f"  v_cvt_pk_bf16_f32 v{64+2*i}, v{D+4*i}, v{D+4*i+1}")
        b(f"  v_cvt_pk_bf16_f32 v{65+2*i}, v{D+4*i+2}, v{D+4*i+3}")
        for e in range(2):
            b(f"  s_add_u32 s{S_T+7}, s{S_T+6}, {i*131072 + e*16384}")
            b(f"  buffer_store_dword v{64+2*i+e}, v5, s[{SRD_B}:{SRD_B+3}], s{S_T+7} offen{SF}")
    stamp(b, "p1 stores issued")
    b(f"  s_and_b32 s{S_T+8}, s2, 15")
    arrive(b, 0, S_T + 8, first=True, label="x1")
    stamp(b, "p1 arrived")

XL2, WL2 = 32, 40
TC2, TS2 = 64, 68
def p2_setup(b):
    srd(b, SRD_A, P_WS, 4 << 20, WS_X1)
    srd(b, SRD_B, P_WS, 4 << 20, WS_X2)
    srd(b, SRD_C, P_WR, WB)
    srd(b, SRD_D, P_WI, WB)
    b(f"  s_and_b32 s{S_T}, s2, 7              ; j1")
    b(f"  s_lshr_b32 s{S_T+1}, s2, 3           ; kb")
    b(f"  v_and_b32 v10, 1, v0                 ; half")
    b(f"  v_bfe_u32 v11, v0, 5, 4              ; c")
    b(f"  v_bfe_u32 v12, v0, 1, 4              ; e")
    b(f"  v_lshl_add_u32 v13, v12, 4, v11      ; j2")
    b(f"  v_lshlrev_b32 v13, 3, v13")
    b(f"  v_add_u32 v13, s{S_T}, v13           ; j")
    b(f"  v_mul_u32_u24 v13, 1026, v13")
    b(f"  v_lshlrev_b32 v14, 4, v10")
    b(f"  v_add_u32 v14, v13, v14")
    b(f"  s_lshl_b32 s{S_T+3}, s{S_T+1}, 5")
    WL = WL2
    b(f"  v_mov_b32 v24, v14")
    b(f"  v_mov_b32 v25, v13")
    b(f"  v_mov_b32 v26, v10                   ; half")
    b(f"  s_mov_b32 s45, s{S_T+3}              ; kb*32")
    WL = WL2
    b(f"  buffer_load_dwordx4 {vr(WL,4)}, v24, s[{SRD_C}:{SRD_C+3}], s45 offen{XF()}")
    b(f"  buffer_load_dwordx4 {vr(WL+4,4)}, v24, s[{SRD_D}:{SRD_D+3}], s45 offen{XF()}")
    b(f"  s_cmp_lg_u32 s{S_T+1}, 0")
    b(f"  s_cbranch_scc1 p2_nonyq")
    b(f"  buffer_load_ushort v48, v25, s[{SRD_C}:{SRD_C+3}], 0 offen offset:1024")
    b(f"  buffer_load_ushort v49, v25, s[{SRD_D}:{SRD_D+3}], 0 offen offset:1024")
    b(f"  s_waitcnt vmcnt(0)")
    b(f"  v_cmp_eq_u32 vcc, 0, v26")
    b(f"  v_and_b32 v50, 0xffff0000, v{WL}")
    b(f"  v_or_b32 v50, v50, v48")
    b(f"  v_cndmask_b32 v{WL}, v{WL}, v50, vcc")
    b(f"  v_and_b32 v50, 0xffff0000, v{WL+4}")
    b(f"  v_or_b32 v50, v50, v49")
    b(f"  v_cndmask_b32 v{WL+4}, v{WL+4}, v50, vcc")
    b.label("p2_nonyq")
    npf = 0
    b(f"  v_and_b32 v15, 255, v0")
    b(f"  v_bfe_u32 v16, v15, 2, 4             ; x")
    b(f"  v_lshrrev_b32 v17, 6, v15            ; g")
    b(f"  v_and_b32 v18, 3, v15")
    b(f"  v_lshl_add_u32 v17, v17, 2, v18      ; 4g+i")
    b(f"  v_mul_u32_u24 v17, v17, v16")
    sincos(b, 18, 19, 17, 4, 20)
    b(f"  v_cmp_gt_u32 vcc, 256, v0            ; matrix 0 ?")
    b(f"  v_xor_b32 v20, 0x80000000, v19       ; -sin")
    b(f"  s_nop 0")
    b(f"  v_cndmask_b32 v21, v20, v18, vcc")
    b(f"  v_cndmask_b32 v22, v18, v19, vcc")
    b(f"  v_cvt_pk_bf16_f32 v21, v21, v22")
    b(f"  v_lshlrev_b32 v22, 2, v0")
    b(f"  ds_write_b32 v22, v21 offset:{L2_F}")
    b(f"  v_lshlrev_b32 v16, 2, v9")
    for r in range(4):
        b(f"  v_add_u32 v17, {r}, v16")
        b(f"  v_mul_u32_u24 v17, v17, v8")
        sincos(b, TC2 + r, TS2 + r, 17, 8, 20)
    b(f"  v_and_b32 v16, 3, v0                 ; i")
    b(f"  v_mul_u32_u24 v16, {4*1040}, v16")
    b(f"  v_lshrrev_b32 v17, 6, v0             ; b (0..7)")
    b(f"  v_lshl_add_u32 v16, v17, 6, v16")
    b(f"  v_bfe_u32 v17, v0, 2, 2              ; a&3")
    b(f"  v_lshl_add_u32 v16, v17, 2, v16")
    b(f"  v_bfe_u32 v17, v0, 4, 2              ; a>>2")
    b(f"  v_lshl_add_u32 v21, v17, 4, v16      ; first")
    b(f"  v_xor_b32 v17, 2, v17")
    b(f"  v_lshl_add_u32 v22, v17, 4, v16")
    b(f"  v_add_u32 v22, 512, v22              ; second (b+8)")
    b(f"  v_mul_u32_u24 v16, {4*1040}, v10")
    b(f"  v_lshl_add_u32 v16, v11, 6, v16")
    b(f"  v_and_b32 v17, 3, v12")
    b(f"  v_lshl_add_u32 v16, v17, 2, v16")
    b(f"  v_lshrrev_b32 v17, 2, v12")
    b(f"  v_lshrrev_b32 v18, 3, v11            ; c>>3")
    b(f"  v_lshlrev_b32 v18, 1, v18")
    b(f"  v_xor_b32 v17, v17, v18")
    b(f"  v_lshl_add_u32 v23, v17, 4, v16")
    b(f"  v_lshrrev_b32 v16, 3, v8")
    b(f"  v_lshlrev_b32 v16, 1, v16")
    b(f"  v_xor_b32 v16, v16, v9")
    b(f"  v_lshlrev_b32 v16, 4, v16")
    b(f"  v_lshl_add_u32 v16, v8, 6, v16")
    b(f"  s_mul_i32 s{S_T+4}, s{S_W}, {2*1040}")
    b(f"  s_mul_i32 s{S_T+5}, s{S_W}, 1040")
    b(f"  v_add_u32 v5, s{S_T+4}, v16")
    b(f"  v_add_u32 v6, s{S_T+5}, v16")
    b(f"  v_lshlrev_b32 v1, 4, v0")
    b(f"  s_lshl_b32 s{S_T+2}, s2, 14")
    b(f"  s_add_u32 s{S_T+3}, s{S_T+2}, 8192")
    b(f"  s_waitcnt lgkmcnt(0)")

def p2_main(b):
    XL = XL2; TC, TS = TC2, TS2
    b(f"  buffer_load_dwordx4 {vr(XL,4)}, v1, s[{SRD_A}:{SRD_A+3}], s{S_T+2} offen{LF}")
    b(f"  buffer_load_dwordx4 {vr(XL+4,4)}, v1, s[{SRD_A}:{SRD_A+3}], s{S_T+3} offen{LF}")
    WL = WL2
    b(f"  v_lshlrev_b32 v17, 4, v7")
    FR, FI = 72, 76
    AX = 48; WR, WI = 152, 156
    b(f"  ds_read_b128 {vr(FR,4)}, v17 offset:{L2_F}")
    b(f"  ds_read_b128 {vr(FI,4)}, v17 offset:{L2_F+1024}")
    Dq = [80, 88]; Oq = [96, 104]; Tq = [112, 120]; Pq = [128, 132]; Wq = [136, 144]
    b(f"  s_waitcnt vmcnt(0)")
    stamp(b, "p2 x landed")
    for j in range(4):
        b(f"  ds_write_b32 v21, v{XL+j} offset:{L2_X + j*1040}")
        b(f"  ds_write_b32 v22, v{XL+4+j} offset:{L2_X + j*1040}")
    for j in range(4):
        b(f"  ds_write_b32 v23, v{WL+j} offset:{L2_W + j*1040}")
        b(f"  ds_write_b32 v23, v{WL+4+j} offset:{L2_W + 8*1040 + j*1040}")
    if "nopf" not in OPT and "ntw1" not in OPT and PFN[1]:
        w1_share_base(b, S_T + 8, PFN[0] * 4096)
        pf_wide(b, P_W1, W1B, S_T + 8, PFN[1], 4, 8, "pf_p2a")
    b(f"  s_waitcnt lgkmcnt(0)")
    b(f"  s_barrier")
    b(f"  ds_read_b128 {vr(AX,4)}, v5 offset:{L2_X}")
    b(f"  ds_read_b128 {vr(AX+4,4)}, v5 offset:{L2_X+1040}")
    b(f"  ds_read_b128 {vr(WR,4)}, v6 offset:{L2_W}")
    b(f"  ds_read_b128 {vr(WI,4)}, v6 offset:{L2_W+8*1040}")
    def stage(form, src):
        for k in range(2):
            d = Dq[k]
            if form == 'A':
                b(f"  {MF32} {vr(d,4)}, {vr(src[k],4)}, {vr(FR,4)}, 0")
                b(f"  {MF32} {vr(d+4,4)}, {vr(src[k],4)}, {vr(FI,4)}, 0")
            else:
                b(f"  {MF32} {vr(d,4)}, {vr(FR,4)}, {vr(src[k],4)}, 0")
                b(f"  {MF32} {vr(d+4,4)}, {vr(FI,4)}, {vr(src[k],4)}, 0")
    def twiddle_pack():
        for k in range(2):
            cmul_pk(b, Oq[k], Oq[k] + 4, Dq[k], Dq[k] + 4, TC, TS, Tq[k], False)
        for k in range(2):
            for r in range(4):
                b(f"  v_cvt_pk_bf16_f32 v{Pq[k]+r}, v{Oq[k]+r}, v{Oq[k]+4+r}")
        b(f"  s_nop 1")
    b(f"  s_waitcnt lgkmcnt(2)")
    stage('A', [AX, AX + 4])
    b(f"  s_waitcnt lgkmcnt(0)")
    for r in range(4):
        b(f"  v_lshlrev_b32 v{Wq[0]+r}, 16, v{WR+r}")
        b(f"  v_lshlrev_b32 v{Wq[0]+4+r}, 16, v{WI+r}")
        b(f"  v_and_b32 v{Wq[1]+r}, 0xffff0000, v{WR+r}")
        b(f"  v_and_b32 v{Wq[1]+4+r}, 0xffff0000, v{WI+r}")
    twiddle_pack()
    stage('B', Pq)
    b(f"  s_nop 5")
    for k in range(2):
        cmul_pk(b, Oq[k], Oq[k] + 4, Dq[k], Dq[k] + 4, Wq[k], Wq[k] + 4, Tq[k], True)
    for k in range(2):
        for r in range(4):
            b(f"  v_cvt_pk_bf16_f32 v{Pq[k]+r}, v{Oq[k]+r}, -v{Oq[k]+4+r}")
    b(f"  s_nop 1")
    stage('A', Pq)
    b(f"  s_nop 5")
    twiddle_pack()
    stage('B', Pq)
    b(f"  s_nop 5")
    for k in range(2):
        for r in range(4):
            b(f"  v_cvt_pk_bf16_f32 v{Pq[k]+r}, v{Dq[k]+r}, -v{Dq[k]+4+r}")
    b(f"  ds_write_b128 v5, {vr(Pq[0],4)} offset:{L2_X}")
    b(f"  ds_write_b128 v5, {vr(Pq[1],4)} offset:{L2_X+1040}")
    b(f"  s_waitcnt lgkmcnt(0)")
    b(f"  s_barrier")
    for j in range(4):
        b(f"  ds_read_b32 v{XL+j}, v21 offset:{L2_X + j*1040}")
        b(f"  ds_read_b32 v{XL+4+j}, v22 offset:{L2_X + j*1040}")
    b(f"  v_bfe_u32 v16, v0, 2, 4              ; a")
    b(f"  v_lshrrev_b32 v17, 6, v0             ; b")
    b(f"  v_lshl_add_u32 v16, v16, 4, v17      ; s1")
    b(f"  v_lshlrev_b32 v16, 14, v16")
    b(f"  v_and_b32 v17, 3, v0")
    b(f"  v_lshl_add_u32 v16, v17, 4, v16")
    b(f"  s_lshl_b32 s{S_T+4}, s{S_T}, 11")
    b(f"  s_lshl_b32 s{S_T+5}, s{S_T+1}, 6")
    b(f"  s_add_u32 s{S_T+4}, s{S_T+4}, s{S_T+5}")
    b(f"  s_add_u32 s{S_T+5}, s{S_T+4}, {8*16384}")
    b(f"  s_waitcnt lgkmcnt(0)")
    b(f"  buffer_store_dwordx4 {vr(XL,4)}, v16, s[{SRD_B}:{SRD_B+3}], s{S_T+4} offen{SF}")
    b(f"  buffer_store_dwordx4 {vr(XL+4,4)}, v16, s[{SRD_B}:{SRD_B+3}], s{S_T+5} offen{SF}")
    stamp(b, "p2 stores issued")
    b(f"  s_and_b32 s{S_T+8}, s2, 15")
    arrive(b, 1, S_T + 8, label="x2")

V_LO = 224
S_G1A = 60
def g1_ids(b):
    b(f"  s_lshr_b32 s{S_T}, s2, 3                 ; i")
    b(f"  s_cmp_lt_u32 s{S_T}, 28")
    b(f"  s_cselect_b32 s62, 1, 0")
    b(f"  s_mul_i32 s{S_T+1}, s{S_T}, 37")
    b(f"  s_lshr_b32 s{S_T+1}, s{S_T+1}, 8         ; i/7")
    b(f"  s_mul_i32 s{S_T+2}, s{S_T+1}, 7")
    b(f"  s_sub_u32 s{S_T+2}, s{S_T}, s{S_T+2}     ; i%7")
    b(f"  s_and_b32 s{S_T+3}, s2, 7")
    b(f"  s_lshr_b32 s{S_T+4}, s{S_T+3}, 1")
    b(f"  s_mul_i32 s{S_T+4}, s{S_T+4}, 7")
    b(f"  s_add_u32 s60, s{S_T+4}, s{S_T+2}        ; ft")
    b(f"  s_and_b32 s{S_T+3}, s{S_T+3}, 1")
    b(f"  s_lshl_b32 s{S_T+3}, s{S_T+3}, 2")
    b(f"  s_add_u32 s61, s{S_T+3}, s{S_T+1}        ; dt")

S_SOFF, S_M0, S_N = 4, 5, 6
def loader_issue(b, voff, fl=""):
    for i in range(4):
        b(f"  s_add_u32 m0, s{S_M0}, {4096*i}")
        b(f"  s_nop 0")
        b(f"  buffer_load_dwordx4 v{voff+i}, s[{SRD_T}:{SRD_T+3}], s{S_SOFF} offen{fl} lds")
    b(f"  s_add_u32 s{S_SOFF}, s{S_SOFF}, s9")
    b(f"  s_add_u32 s{S_M0}, s{S_M0}, {STAGE}")
    b(f"  s_cmp_ge_u32 s{S_M0}, s{S_N+1}")
    b(f"  s_cselect_b32 s{S_N+2}, {R*STAGE}, 0")
    b(f"  s_sub_u32 s{S_M0}, s{S_M0}, s{S_N+2}")

def loader_init(b, step_bytes):
    b(f"  s_sub_u32 s50, s{S_W}, 4")
    b(f"  s_lshl_b32 s{S_M0}, s50, 10")
    b(f"  s_add_u32 s{S_N+1}, s{S_M0}, {R*STAGE}")
    b(f"  s_mov_b32 s{S_SOFF}, 0")
    b(f"  s_mov_b32 s9, {step_bytes}")

def g1_loader_addr(b):
    b(f"  s_sub_u32 s50, s{S_W}, 4      ; w'")
    for i in range(4):
        b(f"  s_lshl_b32 s49, s50, 2")
        b(f"  s_add_u32 s49, s49, {16*i}")
        b(f"  v_lshrrev_b32 v14, 4, v7")
        b(f"  v_add_u32 v14, s49, v14                 ; row 0..63")
        b(f"  v_and_b32 v15, 3, v14")
        b(f"  v_lshlrev_b32 v15, 2, v15")
        b(f"  v_and_b32 v16, 15, v7")
        b(f"  v_xor_b32 v16, v16, v15                 ; q")
        b(f"  v_lshrrev_b32 v17, 3, v14")
        b(f"  v_and_b32 v18, 7, v14")
        b(f"  v_lshl_add_u32 v17, v18, 8, v17         ; s")
        b(f"  v_mul_u32_u24 v17, 7168, v17")
        b(f"  v_lshl_add_u32 v17, v16, 4, v17")
        b(f"  s_lshl_b32 s49, s60, 8")
        b(f"  v_add_u32 v{V_LO+i}, s49, v17")

def g2_ids(b):
    b(f"  s_and_b32 s{S_T}, s2, 1")
    b(f"  s_lshl_b32 s{S_T}, s{S_T}, 2")
    b(f"  s_lshr_b32 s{S_T+1}, s2, 3")
    b(f"  s_and_b32 s{S_T+2}, s{S_T+1}, 3")
    b(f"  s_add_u32 s{S_TILE_A}, s{S_T}, s{S_T+2}     ; dt")
    b(f"  s_lshr_b32 s{S_T}, s2, 1")
    b(f"  s_and_b32 s{S_T}, s{S_T}, 3")
    b(f"  s_lshl_b32 s{S_T}, s{S_T}, 3")
    b(f"  s_lshr_b32 s{S_T+1}, s{S_T+1}, 2")
    b(f"  s_add_u32 s{S_TILE_B}, s{S_T}, s{S_T+1}     ; st")

def g2_loader_addr(b):
    b(f"  s_sub_u32 s50, s{S_W}, 4")
    for i in range(4):
        b(f"  s_lshl_b32 s49, s50, 3")
        b(f"  s_add_u32 s49, s49, {32*i}")
        b(f"  v_lshrrev_b32 v14, 3, v7")
        b(f"  v_add_u32 v14, s49, v14                 ; row")
        b(f"  v_bfe_u32 v15, v14, 1, 1")
        b(f"  v_lshlrev_b32 v15, 2, v15")
        b(f"  v_and_b32 v16, 7, v7")
        b(f"  v_xor_b32 v16, v16, v15                 ; q")
        b(f"  v_lshlrev_b32 v14, 12, v14              ; row*4096")
        b(f"  v_lshl_add_u32 v14, v16, 4, v14")
        b(f"  s_lshl_b32 s49, s{S_TILE_B}, 7          ; s0*2")
        b(f"  v_add_u32 v{V_LO+i}, s49, v14")

def loader_loop(b, NS, pre, fl=""):
    nmain = NS - (R - 2)
    b(f"  s_mov_b32 s{S_N}, {nmain}")
    b.label(f"{pre}_lloop")
    b(f"  s_waitcnt vmcnt({(R-3)*4})")
    b("  s_barrier")
    loader_issue(b, V_LO, fl)
    b(f"  s_sub_u32 s{S_N}, s{S_N}, 1")
    b(f"  s_cmp_lg_u32 s{S_N}, 0")
    b(f"  s_cbranch_scc1 {pre}_lloop")
    for i in range(R - 2):
        b(f"  s_waitcnt vmcnt({(R-3-i)*4})")
        b("  s_barrier")

BD3 = 32; XR3 = 192; GM3 = 30
def p3_tables(b):
    b(f"  v_and_b32 v10, 255, v0            ; e")
    b(f"  v_lshrrev_b32 v11, 8, v0")
    b(f"  v_bfe_u32 v12, v10, 2, 4          ; n = lane&15")
    b(f"  v_lshrrev_b32 v13, 6, v10         ; g")
    b(f"  v_and_b32 v14, 3, v10             ; r")
    b(f"  v_lshl_add_u32 v13, v13, 2, v14   ; 4g + r")
    b(f"  v_lshrrev_b32 v15, 2, v12")
    b(f"  v_lshlrev_b32 v15, 3, v15")
    b(f"  v_and_b32 v16, 3, v12")
    b(f"  v_add_u32 v15, v15, v16           ; b(n,0)")
    b(f"  v_lshl_add_u32 v16, v11, 2, v15   ; b(n, sel)")
    b(f"  v_mul_u32_u24 v17, v16, v13")
    sincos(b, 18, 19, 17, 5, 20)
    b(f"  v_lshlrev_b32 v22, 2, v10")
    b(f"  v_lshl_add_u32 v22, v11, 11, v22  ; sel*2048 + e*4")
    b(f"  v_add_u32 v22, {L3_M3}, v22")
    b(f"  v_cvt_pk_bf16_f32 v23, v18, -v19")
    b(f"  v_cvt_pk_bf16_f32 v24, v19, v18")
    b(f"  ds_write_b32 v22, v23")
    b(f"  ds_write_b32 v22, v24 offset:1024")
    b(f"  v_lshl_add_u32 v17, v11, 4, v13   ; k1")
    for z in range(2):
        b(f"  v_add_u32 v21, {16*z}, v12")
        b(f"  v_mul_u32_u24 v21, v21, v17")
        sincos(b, 18, 19, 21, 5, 20)
        b(f"  v_add_f32 v18, v18, v18")
        b(f"  v_mul_f32 v19, -2.0, v19")
        b(f"  v_cvt_pk_bf16_f32 v23, v18, v19")
        b(f"  ds_write_b32 v22, v23 offset:{4096+1024*z}")
    b(f"  v_lshlrev_b32 v23, 2, v10")
    b(f"  v_lshl_add_u32 v23, v11, 12, v23   ; u*4096 + e*4")
    b(f"  v_add_u32 v23, {L3_TW}, v23")
    for v in range(2):
        b(f"  v_add_u32 v21, {4*v}, v15")
        b(f"  v_mul_u32_u24 v21, v21, v17")
        sincos(b, 18, 19, 21, 10, 20)
        b(f"  ds_write_b32 v23, v18 offset:{2048*v}")
        b(f"  ds_write_b32 v23, v19 offset:{2048*v+1024}")

def p3_setup(b):
    srd(b, SRD_A, P_WS, 4 << 20, WS_X2)
    srd(b, SRD_B, P_X, 4 << 20)
    srd(b, SRD_C, P_WS, 4 << 20, WS_H)
    srd(b, SRD_D, P_WS, 4 << 20, WS_LN2)
    b(f"  s_lshl_b32 s{S_T+3}, s{S_W}, 8")
    b(f"  s_add_u32 s{S_T+3}, s{S_T+3}, s2")
    b(f"  s_lshl_b32 s{S_T+3}, s{S_T+3}, 11       ; s*2048")
    b(f"  v_lshlrev_b32 v4, 6, v8")
    b(f"  v_lshl_add_u32 v4, v9, 4, v4")
    for z in range(2):
        b(f"  buffer_load_dwordx4 {vr(XR3+4*z,4)}, v4, s[{SRD_B}:{SRD_B+3}], s{S_T+3} offen offset:{1024*z}")
    b(f"  s_mov_b32 s63, s{S_T+3}")
    if "nopf" not in OPT and "ntw1" not in OPT:
        if PFN[2]:
            w1_share_base(b, S_T + 8, (PFN[0] + PFN[1]) * 4096)
            pf_wide(b, P_W1, W1B, S_T + 8, PFN[2], 4, 8, "pf_p3a")
    g1_ids(b)
    g1_loader_addr(b)
    loader_init(b, 8 * 7168)
    p3_tables(b)
    gmat(b, GM3, 2, True, 10)
    b(f"  v_lshlrev_b32 v1, 12, v9")
    b(f"  v_lshl_add_u32 v1, v8, 2, v1")
    b(f"  s_lshl_b32 s{S_T}, s2, 14")
    b(f"  s_and_b32 s{S_T+1}, s{S_W}, 1")
    b(f"  s_lshl_b32 s{S_T+1}, s{S_T+1}, 6")
    b(f"  s_lshr_b32 s{S_T+2}, s{S_W}, 1")
    b(f"  s_lshl_b32 s{S_T+2}, s{S_T+2}, 9")
    b(f"  s_add_u32 s{S_T}, s{S_T}, s{S_T+1}")
    b(f"  s_add_u32 s44, s{S_T}, s{S_T+2}          ; X2 soffset")
    b(f"  s_lshl_b32 s{S_T+1}, s{S_T+1}, 4        ; u*1024")
    b(f"  s_lshr_b32 s{S_T+2}, s{S_T+2}, 1        ; q4*256")
    b(f"  s_add_u32 s45, s{S_T+1}, s{S_T+2}")
    b(f"  s_waitcnt lgkmcnt(0)")

def p3_main(b):
    Bd, XR, GM = BD3, XR3, GM3
    for i in range(4):
        for e in range(2):
            b(f"  buffer_load_dword v{Bd+2*i+e}, v1, s[{SRD_A}:{SRD_A+3}], s44 offen offset:{e*2048+i*128}{LF}")
    npf = 0
    D = 40
    b(f"  v_lshlrev_b32 v3, 12, v9")
    b(f"  v_lshl_add_u32 v3, v8, 4, v3")
    b(f"  v_add_u32 v3, s45, v3")
    b(f"  v_add_u32 v3, {L3_EX}, v3")
    M3, M4, TW = 96, 112, 128
    b(f"  v_lshlrev_b32 v6, 4, v7")
    b(f"  v_add_u32 v6, {L3_M3}, v6")
    for i in range(4): b(f"  ds_read_b128 {vr(M3+4*i,4)}, v6 offset:{1024*i}")
    for i in range(4): b(f"  ds_read_b128 {vr(M4+4*i,4)}, v6 offset:{4096+1024*i}")
    b(f"  s_waitcnt lgkmcnt(0)")
    for i in range(8): b(f"  ds_read_b128 {vr(TW+4*i,4)}, v6 offset:{8192+1024*i}")
    b(f"  s_waitcnt vmcnt({npf})")
    stamp(b, "p3 x2 landed")
    if "nopf" not in OPT and "ntw1" not in OPT and PFN[3]:
        w1_share_base(b, S_T + 8, (PFN[0] + PFN[1] + PFN[2]) * 4096)
        pf_wide(b, P_W1, W1B, S_T + 8, PFN[3], 4, 8, "pf_p3b")
    for i in range(4):
        b(f"  {MF16} {vr(D+4*i,4)}, {vr(GM,2)}, {vr(Bd+2*i,2)}, 0")
    b(f"  s_nop 4")
    PK = 56
    for e in range(2):
        for i in range(4):
            b(f"  v_cvt_pk_bf16_f32 v{PK+4*e+i}, v{D+4*i+2*e}, v{D+4*i+2*e+1}")
    b(f"  ds_write_b128 v3, {vr(PK,4)}")
    b(f"  ds_write_b128 v3, {vr(PK+4,4)} offset:2048")
    b(f"  s_waitcnt lgkmcnt(0)")
    b(f"  s_barrier")
    b(f"  v_lshlrev_b32 v5, 8, v9")
    b(f"  v_lshl_add_u32 v5, v8, 4, v5")
    b(f"  s_lshl_b32 s{S_T+1}, s{S_W}, 11")
    b(f"  s_add_u32 s{S_T+1}, s{S_T+1}, {L3_EX}")
    b(f"  v_add_u32 v5, s{S_T+1}, v5")
    AU = 32
    b(f"  ds_read_b128 {vr(AU,4)}, v5")
    b(f"  ds_read_b128 {vr(AU+4,4)}, v5 offset:1024")
    b(f"  s_waitcnt lgkmcnt(0)")
    b(f"  v_readlane_b32 s{S_T+4}, v{AU}, 0")
    b(f"  v_writelane_b32 v{AU}, 0, 0")
    b(f"  s_nop 1")
    b(f"  s_lshl_b32 s{S_T+4}, s{S_T+4}, 16")
    TT = 160
    for u in range(2):
        for v in range(2):
            for c in range(2):
                d = TT + ((u * 2 + v) * 2 + c) * 4
                b(f"  {MF32} {vr(d,4)}, {vr(AU+4*u,4)}, {vr(M3+4*(2*v+c),4)}, 0")
    CI = 60
    b(f"  v_mov_b32 v{CI}, s{S_T+4}")
    b(f"  v_xor_b32 v{CI+1}, 0x80000000, v{CI}")
    b(f"  v_mov_b32 v{CI+2}, v{CI}")
    b(f"  v_mov_b32 v{CI+3}, v{CI+1}")
    b(f"  s_nop 1")
    A2 = 64; O = 40; W = 80
    for u in range(2):
        for v in range(2):
            t = TT + ((u * 2 + v) * 2) * 4
            tw = TW + ((u * 2 + v) * 2) * 4
            cmul_pk(b, O, O + 4, t, t + 4, tw, tw + 4, W, True)
            for r in range(4):
                b(f"  v_cvt_pk_bf16_f32 v{A2+(u*2+v)*4+r}, v{O+r}, v{O+4+r}")
    Y = 160
    b(f"  s_nop 1")
    for z in range(2):
        for v in range(2):
            d = Y + (z * 2 + v) * 4
            b(f"  {MF32} {vr(d,4)}, {vr(A2+(0*2+v)*4,4)}, {vr(M4+(0*2+z)*4,4)}, {vr(CI,4)}")
    for z in range(2):
        for v in range(2):
            d = Y + (z * 2 + v) * 4
            b(f"  {MF32} {vr(d,4)}, {vr(A2+(1*2+v)*4,4)}, {vr(M4+(1*2+z)*4,4)}, {vr(d,4)}")
    b(f"  s_nop 7")
    X = 40; HP = 32
    stamp(b, "p3 ifft done")
    for z in range(2):
        for dd in range(4):
            y0 = Y + z * 8 + 2 * dd
            xd = XR + 4 * z + dd
            t = 64 + 4 * (dd % 2)
            b(f"  v_cvt_pk_bf16_f32 v{t}, v{y0}, v{y0+1}")
            b(f"  v_lshlrev_b32 v{t+1}, 16, v{xd}")
            b(f"  v_and_b32 v{t+2}, 0xffff0000, v{xd}")
            b(f"  v_and_b32 v{t+3}, 0xffff0000, v{t}")
            b(f"  v_lshlrev_b32 v{t}, 16, v{t}")
            b(f"  v_add_f32 v{t+1}, v{t+1}, v{t}")
            b(f"  v_add_f32 v{t+2}, v{t+2}, v{t+3}")
            b(f"  v_cvt_pk_bf16_f32 v{HP+4*z+dd}, v{t+1}, v{t+2}")
    for z in range(2):
        b(f"  buffer_store_dwordx4 {vr(HP+4*z,4)}, v4, s[{SRD_C}:{SRD_C+3}], s63 offen offset:{1024*z}{SF}")
    for i in range(8):
        b(f"  v_lshlrev_b32 v{X+2*i}, 16, v{HP+i}")
        b(f"  v_and_b32 v{X+2*i+1}, 0xffff0000, v{HP+i}")
    layernorm16(b, X, 64, S_T+5, S_T+6)
    LP = 72
    stamp(b, "p3 ln done")
    for i in range(8):
        b(f"  v_cvt_pk_bf16_f32 v{LP+i}, v{X+2*i}, v{X+2*i+1}")
    b(f"  v_mul_u32_u24 v3, 80, v8")
    b(f"  v_lshl_add_u32 v3, v9, 4, v3")
    b(f"  s_mul_i32 s{S_T+1}, s{S_W}, {L3_RS}")
    b(f"  s_add_u32 s{S_T+1}, s{S_T+1}, {L3_LN}")
    b(f"  v_add_u32 v3, s{S_T+1}, v3")
    for z in range(2):
        b(f"  ds_write_b128 v3, {vr(LP+4*z,4)} offset:{z*16*80}")
    b(f"  s_waitcnt lgkmcnt(0)")
    b(f"  s_barrier")
    b(f"  v_bfe_u32 v10, v7, 2, 2")
    b(f"  v_mul_u32_u24 v10, {L3_RS}, v10")
    b(f"  v_lshrrev_b32 v11, 5, v7")
    b(f"  v_mul_u32_u24 v12, 80, v11")
    b(f"  v_add_u32 v10, v10, v12")
    b(f"  v_and_b32 v12, 1, v7")
    b(f"  v_lshl_add_u32 v10, v12, 5, v10")
    b(f"  v_bfe_u32 v12, v7, 4, 1")
    b(f"  v_lshl_add_u32 v10, v12, 4, v10")
    b(f"  v_bfe_u32 v12, v7, 1, 1")
    b(f"  v_lshl_add_u32 v10, v12, 3, v10")
    b(f"  s_mul_i32 s{S_T+1}, s{S_W}, {4*80}")
    b(f"  s_add_u32 s{S_T+1}, s{S_T+1}, {L3_LN}")
    b(f"  v_add_u32 v10, s{S_T+1}, v10")
    for ps in range(2):
        b(f"  ds_read_b64_tr_b16 {vr(32+4*ps,2)}, v10 offset:{ps*160}")
        b(f"  ds_read_b64_tr_b16 {vr(34+4*ps,2)}, v10 offset:{ps*160 + 4*L3_RS}")
    b(f"  v_lshlrev_b32 v11, 17, v11")
    b(f"  v_and_b32 v12, 31, v7")
    b(f"  v_lshl_add_u32 v11, v12, 4, v11")
    b(f"  s_lshl_b32 s{S_T+1}, s{S_W}, 19")
    b(f"  s_lshl_b32 s{S_T+2}, s2, 9")
    b(f"  s_add_u32 s{S_T+1}, s{S_T+1}, s{S_T+2}")
    b(f"  s_add_u32 s{S_T+2}, s{S_T+1}, {2*131072}")
    b(f"  s_waitcnt lgkmcnt(2)")
    b(f"  buffer_store_dwordx4 v[32:35], v11, s[{SRD_D}:{SRD_D+3}], s{S_T+1} offen{SF}")
    b(f"  s_waitcnt lgkmcnt(0)")
    b(f"  buffer_store_dwordx4 v[36:39], v11, s[{SRD_D}:{SRD_D+3}], s{S_T+2} offen{SF}")
    stamp(b, "p3 stores issued")
    b(f"  s_and_b32 s{S_T+8}, s2, 15")
    arrive(b, 2, S_T + 8, label="x3")
    srd(b, SRD_T, P_W1, W1B)
    b(f"  s_cmp_lt_u32 s{S_W}, 4")
    b(f"  s_cbranch_scc1 p3_nodma")
    b(f"  s_cmp_eq_u32 s62, 0")
    b(f"  s_cbranch_scc1 p3_nodma")
    for n in range(2): loader_issue(b, V_LO, W1F())
    b.label("p3_nodma")

def gemm_core(b, c, pre, after_setup, after_prologue=None):
    NB, NS = c.NB, c.NS
    acc = lambda nb: V_ACC + nb * 16
    VT = V_ACC + NB * 16
    VPR = VT + 32
    c.VT, c.VPR = VT, VPR
    c.vend = VPR + 4 * PR
    tf = lambda q: VT + (q % 8) * 4
    pr = lambda j: VPR + (j % PR) * 4
    FPI = 64
    KPI = FPI // NB
    def tread(q):
        ql = q % FPI
        lslot, within = ql // 16, ql % 16
        ks, nb = within // NB, within % NB
        off = lslot * STAGE + ks * 16 * c.rowb
        b(f"  ds_read_b64_tr_b16 {vr(tf(q),2)}, v{V_T+nb} offset:{off}")
        b(f"  ds_read_b64_tr_b16 {vr(tf(q)+2,2)}, v{V_T+nb} offset:{off+4*c.rowb}")
    def pload(j):
        b(f"  buffer_load_dwordx4 {vr(pr(j),4)}, v{V_P}, s[{SRD_P}:{SRD_P+3}], s{S_POFF} offen offset:{(j%4)*1024}{LF}")
        if j % 4 == 3: b(f"  s_add_u32 s{S_POFF}, s{S_POFF}, 4096")
    def mfma(q):
        nb = q % NB; j = q // NB; a = acc(nb)
        if c.name == "g1":
            b(f"  v_mfma_f32_32x32x16_bf16 {vr(a,16)}, {vr(tf(q),4)}, {vr(pr(j),4)}, {vr(a,16)}")
        else:
            b(f"  v_mfma_f32_32x32x16_bf16 {vr(a,16)}, {vr(pr(j),4)}, {vr(tf(q),4)}, {vr(a,16)}")
    b(f"  s_mov_b32 s{S_POFF}, 0")
    b(f"  s_mov_b32 s{S_DELTA}, {4*STAGE}")
    b(f"  s_mov_b32 s{S_IT}, {NS//4 - 1}")
    after_setup()
    for j in range(PR - 1): pload(j)
    if after_prologue: after_prologue()
    b("  s_barrier")
    for q in range(DQ): tread(q)
    def body(last):
        for q in range(FPI):
            j = q // NB
            qn = q + DQ
            do_read = not (last and qn >= FPI)
            do_pload = False
            if q % NB == 0:
                rem = KPI - 1 - j
                if (not last) or (j + PR - 1 < KPI):
                    b(f"  s_waitcnt vmcnt({PR-2})")
                    do_pload = True
                else:
                    b(f"  s_waitcnt vmcnt({min(PR-2, rem)})")
            if do_read and qn % 16 == 0:
                b("  s_barrier")
            if do_read and qn == FPI:
                for i in range(NB): b(f"  v_add_u32 v{V_T+i}, s{S_DELTA}, v{V_T+i}")
                b(f"  s_sub_u32 s{S_DELTA}, 0, s{S_DELTA}")
            if q % 2 == 0:
                left = min(DQ - 2, FPI - 2 - q) if last else DQ - 2
                b(f"  s_waitcnt lgkmcnt({2*left})")
            mfma(q)
            if do_pload: pload(j + PR - 1)
            if do_read: tread(qn)
    b.label(f"{pre}_loop")
    body(False)
    b(f"  s_sub_u32 s{S_IT}, s{S_IT}, 1")
    b(f"  s_cmp_lg_u32 s{S_IT}, 0")
    b(f"  s_cbranch_scc1 {pre}_loop")
    body(True)

def idle_w1(b):
    srd(b, SRD_PF, P_W1, W1B)
    b(f"  s_and_b32 s51, s50, 7")
    b(f"  s_mul_i32 s51, s51, {256*7168}")
    b(f"  s_lshr_b32 s52, s50, 3")
    b(f"  s_mul_i32 s52, s52, {4*7168}")
    b(f"  s_add_u32 s51, s51, s52")
    b(f"  s_add_u32 s51, s51, {128*7168}")
    b(f"  s_mov_b32 s52, 7")
    b.label("pf_w1b")
    for i in range(4): b(f"  buffer_load_dwordx4 {vr(V_DUMMY,4)}, v29, s[{SRD_PF}:{SRD_PF+3}], s51 offen offset:{1024*i}")
    b(f"  s_add_u32 s51, s51, 4096")
    b(f"  s_waitcnt vmcnt(4)")
    b(f"  s_sub_u32 s52, s52, 1")
    b(f"  s_cmp_lg_u32 s52, 0")
    b(f"  s_cbranch_scc1 pf_w1b")

def idle_w2(b):
    srd(b, SRD_PF, P_W2, W1B)
    b(f"  s_mul_i32 s51, s50, {W1B // 256}")
    b(f"  s_mov_b32 s52, 14")
    b.label("pf_w2")
    for i in range(4): b(f"  buffer_load_dwordx4 {vr(V_DUMMY,4)}, v29, s[{SRD_PF}:{SRD_PF+3}], s51 offen offset:{1024*i}")
    b(f"  s_add_u32 s51, s51, 4096")
    b(f"  s_waitcnt vmcnt(4)")
    b(f"  s_sub_u32 s52, s52, 1")
    b(f"  s_cmp_lg_u32 s52, 0")
    b(f"  s_cbranch_scc1 pf_w2")
    b(f"  s_waitcnt vmcnt(0)")

def g1(b):
    c = g1_cfg()
    b(f"  s_cmp_eq_u32 s62, 0")
    b(f"  s_cbranch_scc1 g1_inactive")
    srd(b, SRD_P, P_WS, 4 << 20, WS_LN2)
    srd(b, SRD_T, P_W1, W1B)
    srd(b, SRD_O, P_WS, U_BYTES, WS_U)
    srd(b, SRD_X, P_B1, 3584 * 2)
    b(f"  s_cmp_ge_u32 s{S_W}, 4")
    b(f"  s_cbranch_scc1 g1_loader")
    lane_geom(b)
    b(f"  s_lshl_b32 s{S_TMP}, s61, 2")
    b(f"  s_add_u32 s{S_TMP}, s{S_TMP}, s{S_W}            ; dblk")
    b(f"  s_lshl_b32 s{S_TMP+2}, s{S_TMP}, 17")
    b(f"  v_lshlrev_b32 v10, 4, v7")
    b(f"  v_add_u32 v{V_P}, s{S_TMP+2}, v10")
    b(f"  s_lshl_b32 s{S_TMP+1}, s60, 8       ; f0*2")
    b(f"  v_lshlrev_b32 v11, 3, v9")
    b(f"  v_add_u32 v11, s{S_TMP+1}, v11")
    BV = 192
    for fb in range(4):
        for i in range(4):
            b(f"  buffer_load_dwordx2 {vr(BV+2*(4*fb+i),2)}, v11, s[{SRD_X}:{SRD_X+3}], 0 offen offset:{64*fb+16*i}")
    b(f"  v_lshl_add_u32 v20, v9, 3, v18")
    b(f"  v_lshlrev_b32 v20, 8, v20")
    b(f"  v_lshl_add_u32 v20, v18, 6, v20")
    b(f"  v_lshl_add_u32 v20, v19, 5, v20")
    b(f"  v_lshl_add_u32 v{V_T}, v22, 3, v20")
    for fb in range(1, 4):
        b(f"  v_xor_b32 v{V_T+fb}, {64*fb}, v{V_T}")
    b(f"  s_mul_i32 s{S_TMP+2}, s{S_TMP}, 229376")
    b(f"  s_lshl_b32 s{S_TMP+1}, s60, 13")
    b(f"  s_add_u32 s{S_TMP+1}, s{S_TMP+1}, s{S_TMP+2}")
    b(f"  v_add_u32 v28, s{S_TMP+1}, v10")
    b(f"  s_waitcnt vmcnt(0)")
    for fb in range(4):
        for i in range(4):
            bv = BV + 2 * (4 * fb + i); a = V_ACC + fb * 16 + 4 * i
            b(f"  v_lshlrev_b32 v{a}, 16, v{bv}")
            b(f"  v_and_b32 v{a+1}, 0xffff0000, v{bv}")
            b(f"  v_lshlrev_b32 v{a+2}, 16, v{bv+1}")
            b(f"  v_and_b32 v{a+3}, 0xffff0000, v{bv+1}")
    def w3():
        wait(b, 2, 16, "x3c")
        stamp(b, "x3 released")
        stamp(b, "c:g1 start")
    gemm_core(b, c, "g1", w3)
    stamp(b, "c:g1 end")
    stamp(b, "g1 main done")
    K1 = -2.0 * 0.7978845608028654 * 1.4426950408889634
    K2 = K1 * 0.044715
    T = c.VPR
    b(f"  v_mov_b32 v{T}, {hex(f2u(K1))}")
    b(f"  v_mov_b32 v{T+1}, {hex(f2u(K1))}")
    b(f"  v_mov_b32 v{T+2}, {hex(f2u(K2))}")
    b(f"  v_mov_b32 v{T+3}, {hex(f2u(K2))}")
    b(f"  s_nop 7")
    W = T + 8
    for fb in range(4):
        a = V_ACC + fb * 16; t = W; o = W + 16 + 8 * (fb % 2)
        for h in range(0, 16, 2): b(f"  v_pk_mul_f32 {vr(t+h,2)}, {vr(a+h,2)}, {vr(a+h,2)}")
        for h in range(0, 16, 2): b(f"  v_pk_fma_f32 {vr(t+h,2)}, {vr(t+h,2)}, {vr(T+2,2)}, {vr(T,2)}")
        for h in range(0, 16, 2): b(f"  v_pk_mul_f32 {vr(t+h,2)}, {vr(t+h,2)}, {vr(a+h,2)}")
        for r in range(16): b(f"  v_exp_f32 v{t+r}, v{t+r}")
        for h in range(0, 16, 2): b(f"  v_pk_add_f32 {vr(t+h,2)}, {vr(t+h,2)}, 1.0 op_sel_hi:[1,0]")
        for r in range(16): b(f"  v_rcp_f32 v{t+r}, v{t+r}")
        for h in range(0, 16, 2): b(f"  v_pk_mul_f32 {vr(t+h,2)}, {vr(a+h,2)}, {vr(t+h,2)}")
        for i in range(4):
            b(f"  v_cvt_pk_bf16_f32 v{o+2*i}, v{t+4*i}, v{t+4*i+1}")
            b(f"  v_cvt_pk_bf16_f32 v{o+2*i+1}, v{t+4*i+2}, v{t+4*i+3}")
        for ip in range(2):
            oo = o + 4 * ip
            b(f"  s_mov_b32 s{S_TMP+1}, {(2*fb+ip)*1024}")
            b(f"  s_nop 0")
            b(f"  v_permlane32_swap_b32 v{oo}, v{oo+2}")
            b(f"  v_permlane32_swap_b32 v{oo+1}, v{oo+3}")
            b(f"  buffer_store_dwordx4 {vr(oo,4)}, v28, s[{SRD_O}:{SRD_O+3}], s{S_TMP+1} offen{SF}")
    stamp(b, "g1 stores issued")
    b(f"  s_waitcnt vmcnt(0)")
    b(f"  s_branch g1_join")
    b.label("g1_loader")
    b(f"  s_sub_u32 s50, s{S_W}, 4")
    b(f"  s_lshl_b32 s49, s50, 10")
    b(f"  s_add_u32 s{S_N+1}, s49, {R*STAGE}")
    b(f"  s_barrier")
    for n in range(R - 4): loader_issue(b, V_LO, W1F())
    loader_loop(b, c.NS, "g1", W1F())
    stamp(b, "g1 main done")
    g2_prologue_loader(b)
    stamp(b, "g1 stores issued")
    b.label("g1_join")
    arrive(b, 3, 61, label="x4", drained=True)
    b(f"  s_branch g2_start")
    b.label("g1_inactive")
    if "nopf" not in OPT:
        b(f"  s_sub_u32 s50, s2, 224")
        b(f"  s_lshl_b32 s50, s50, 3")
        b(f"  s_add_u32 s50, s50, s{S_W}")
        b(f"  v_lshlrev_b32 v29, 4, v7")
        idle_w2(b)
    b(f"  s_cmp_lt_u32 s{S_W}, 4")
    b(f"  s_cbranch_scc1 g2_start_inactive")
    g2_prologue_loader(b)
    b.label("g2_start_inactive")
    return c

def g2_prologue_loader(b):
    g2_ids(b)
    srd(b, SRD_T, P_W2, W1B)
    g2_loader_addr(b)
    loader_init(b, 128 * 4096)
    for n in range(2): loader_issue(b, V_LO, W2F())

def g2(b):
    c = g2_cfg()
    b.label("g2_start")
    g2_ids(b)
    srd(b, SRD_P, P_WS, U_BYTES, WS_U)
    srd(b, SRD_O, P_OUT, 4 << 20)
    srd(b, SRD_X, P_B2, 2048 * 2)
    srd(b, SRD_Y, P_WS, 4 << 20, WS_H)
    b(f"  s_cmp_ge_u32 s{S_W}, 4")
    b(f"  s_cbranch_scc1 g2_loader")
    lane_geom(b)
    b(f"  s_lshl_b32 s{S_TMP}, s{S_TILE_A}, 2")
    b(f"  s_add_u32 s{S_TMP}, s{S_TMP}, s{S_W}        ; dblk")
    b(f"  s_mul_i32 s{S_TMP+2}, s{S_TMP}, 229376")
    b(f"  v_lshlrev_b32 v10, 4, v7")
    b(f"  v_add_u32 v{V_P}, s{S_TMP+2}, v10")
    b(f"  s_lshl_b32 s{S_TMP+1}, s{S_TILE_B}, 6       ; s0")
    b(f"  v_add_u32 v11, s{S_TMP+1}, v8              ; s0 + s'")
    b(f"  v_lshlrev_b32 v16, 1, v11")
    for sb in range(2):
        b(f"  buffer_load_ushort v{12+sb}, v16, s[{SRD_X}:{SRD_X+3}], 0 offen offset:{64*sb}")
    b(f"  v_lshlrev_b32 v17, 11, v11")
    b(f"  v_lshl_add_u32 v17, v9, 5, v17")
    b(f"  s_lshl_b32 s{S_TMP+2}, s{S_TMP}, 6")
    b(f"  v_add_u32 v28, s{S_TMP+2}, v17")
    HV = 160
    b(f"  v_lshl_add_u32 v20, v9, 3, v18            ; row")
    b(f"  v_bfe_u32 v21, v18, 1, 1")
    b(f"  v_lshlrev_b32 v20, 7, v20")
    b(f"  v_lshl_add_u32 v20, v21, 6, v20")
    b(f"  v_lshl_add_u32 v20, v19, 5, v20")
    b(f"  v_lshl_add_u32 v{V_T}, v22, 3, v20")
    b(f"  v_xor_b32 v{V_T+1}, 64, v{V_T}")
    for i in range(32): b(f"  v_mov_b32 v{V_ACC+i}, 0")
    def w4():
        wait(b, 3, 28, "x4c", single_sreg=S_TILE_A)
        stamp(b, "x4 released")
        stamp(b, "c:g2 start")
    def hloads():
        for sb in range(2):
            b(f"  s_mov_b32 s{S_TMP+1}, {sb*65536}")
            b(f"  buffer_load_dwordx4 {vr(HV+8*sb,4)}, v28, s[{SRD_Y}:{SRD_Y+3}], s{S_TMP+1} offen{LF}")
            b(f"  buffer_load_dwordx4 {vr(HV+8*sb+4,4)}, v28, s[{SRD_Y}:{SRD_Y+3}], s{S_TMP+1} offen offset:16{LF}")
    gemm_core(b, c, "g2", w4, hloads)
    stamp(b, "c:g2 end")
    stamp(b, "g2 main done")
    T = c.VT
    b(f"  s_mov_b32 s{S_TMP}, 0xffff0000")
    for sb in range(2):
        b(f"  v_lshlrev_b32 v{12+sb}, 16, v{12+sb}")
    b(f"  s_nop 9")
    for sb in range(2):
        for half in range(2):
            o = T + 4 * ((sb * 2 + half) % 2)
            for dd in range(4):
                a = V_ACC + sb * 16 + half * 8 + 2 * dd
                hv = HV + 8 * sb + 4 * half + dd
                t0 = T + 8 + 4 * dd
                b(f"  v_cvt_pk_bf16_f32 v{t0}, v{a}, v{a+1}")
                b(f"  v_and_b32 v{t0+1}, s{S_TMP}, v{t0}")
                b(f"  v_lshlrev_b32 v{t0}, 16, v{t0}")
                b(f"  v_add_f32 v{t0}, v{t0}, v{12+sb}")
                b(f"  v_add_f32 v{t0+1}, v{t0+1}, v{12+sb}")
                b(f"  v_cvt_pk_bf16_f32 v{t0}, v{t0}, v{t0+1}")
                b(f"  v_and_b32 v{t0+1}, s{S_TMP}, v{t0}")
                b(f"  v_lshlrev_b32 v{t0}, 16, v{t0}")
                b(f"  v_lshlrev_b32 v{t0+2}, 16, v{hv}")
                b(f"  v_and_b32 v{t0+3}, s{S_TMP}, v{hv}")
                b(f"  v_add_f32 v{t0}, v{t0}, v{t0+2}")
                b(f"  v_add_f32 v{t0+1}, v{t0+1}, v{t0+3}")
                b(f"  v_cvt_pk_bf16_f32 v{o+dd}, v{t0}, v{t0+1}")
            b(f"  s_mov_b32 s{S_TMP+1}, {sb*65536}")
            b(f"  buffer_store_dwordx4 {vr(o,4)}, v28, s[{SRD_O}:{SRD_O+3}], s{S_TMP+1} offen offset:{16*half}")
    stamp(b, "g2 stores issued")
    b(f"  s_branch g2_done")
    b.label("g2_loader")
    b(f"  s_barrier")
    for n in range(R - 4): loader_issue(b, V_LO, W2F())
    loader_loop(b, c.NS, "g2", W2F())
    b.label("g2_done")

def build():
    NAME = "sequential_preLN__spectral_gfnet__mixer_token_mlp__prompt"
    hdr = open(f"cdna_kernels/{NAME}.s.ref").read().split("; Override launch")[0]
    K = NAME + "_kernel"
    b = B()
    b(hdr.rstrip("\n"))
    b(f"; @launch grid=(256,1,1) block=(512,1,1) lds={LDS_TOTAL}")
    b('.amdgcn_target "amdgcn-amd-amdhsa--gfx950"\n.text')
    b(f".globl {K}\n.p2align 8\n.type {K},@function\n{K}:")
    b(f"  s_cmp_ge_u32 s2, 256\n  s_cbranch_scc1 k_exit")
    if "stamp" in OPT: b("  v_mov_b32 v231, 0")
    stamp(b, "entry")
    b(f"  s_load_dwordx4 s[{P_X}:{P_X+3}], s[0:1], 0        ; x, w_r")
    b(f"  s_load_dwordx2 s[{P_WI}:{P_WI+1}], s[0:1], 16")
    b(f"  s_load_dwordx2 s[{P_W1}:{P_W1+1}], s[0:1], 32")
    b(f"  s_load_dwordx4 s[{P_B1}:{P_B1+3}], s[0:1], 40     ; b1, w2")
    b(f"  s_load_dwordx4 s[{P_B2}:{P_B2+3}], s[0:1], 56     ; b2, out")
    b(f"  s_load_dwordx4 s[{P_DBG}:{P_DBG+3}], s[0:1], 72")
    b(f"  v_lshrrev_b32 v6, 6, v0")
    b(f"  v_and_b32 v7, 63, v0        ; lane")
    b(f"  v_readfirstlane_b32 s{S_W}, v6")
    b(f"  v_and_b32 v8, 15, v7          ; c")
    b(f"  v_lshrrev_b32 v9, 4, v7       ; g")
    b(f"  s_waitcnt lgkmcnt(0)")
    srd(b, SRD_CNT, P_WS, 65536, WS_CNT)
    p1(b)
    p2_setup(b)
    wait(b, 0, 16, "x1c")
    stamp(b, "x1 released")
    p2_main(b)
    p3_setup(b)
    wait(b, 1, 16, "x2c")
    stamp(b, "x2 released")
    p3_main(b)
    g1(b)
    g2(b)
    b(f"  s_waitcnt vmcnt(0)")
    stamp(b, "end")
    stamp_flush(b)
    b("k_exit:\n  s_endpgm")
    b(kd(K, 240, sgpr=102))
    return b.text()

if __name__ == "__main__":
    out = sys.argv[1]
    OPT.update(sys.argv[2:])
    for o in sys.argv[2:]:
        if o.startswith("pfn="): PFN[:] = [int(c) for c in o[4:].split(",")]
    gemm.OPT.update(sys.argv[2:])
    t = build()
    open(out, "w").write(t)
    rep = check_text(t)
    print("\n".join(rep) if rep else "no hazards found", "| stamps:", nstamp[0])
```

```python
import sys
from asmlib import *
import gemm, fft
from gemm import (srd, f2u, WS_X1, WS_X2, WS_H, WS_LN2, WS_U, U_BYTES, S_W, R, STAGE, PR, DQ,
                  V_P, V_T, V_ACC, S_POFF, S_IT, S_DELTA, SRD_P, SRD_T, SRD_O, SRD_X, SRD_Y, S_TILE_A, S_TILE_B, S_TMP,
                  g1_cfg, g2_cfg, lane_geom)
from fft import sincos, wave_reduce, ln_finish, layernorm16, cmul_pk, gmat, MF32, MF16

OPT = set()
PFN = [4, 3, 4, 3]
WS_CNT = 30 << 20
WS_STAMP = 31 << 20
W1B = 2048 * 3584 * 2
WB = 2048 * 1026

P_X, P_WR, P_WI, P_W1, P_B1, P_W2, P_B2, P_OUT, P_DBG, P_WS = 64, 66, 68, 70, 72, 74, 76, 78, 80, 82
SRD_CNT = 12
S_T = 46
SRD_A, SRD_B, SRD_C, SRD_D = 24, 28, 32, 36
SRD_PF = 56
S_STAMP = 84
SF = " sc1"
LF = ""

L1_M1, L1_M2, L1_TW, L1_EX = 0, 4096, 8192, 16384
L2_F = 32768; L2_X = L2_F + 2048; L2_W = L2_X + 16 * 1040
L3_M3 = 98304; L3_M4 = L3_M3 + 4096; L3_TW = L3_M3 + 8192; L3_EX = L3_M3 + 16384
L3_LN = L3_EX + 16384; L3_RS = 2624
LDS_TOTAL = L3_LN + 8 * L3_RS
assert LDS_TOTAL <= 163840

STAMPS = ["entry", "p1 x landed", "p1 stores issued", "p1 arrived", "x1 released", "p2 x landed", "p2 stores issued",
          "x2 released", "p3 x2 landed", "p3 stores issued", "x3 released", "g1 main done", "g1 stores issued", "x4 released",
          "g2 main done", "g2 stores issued", "end", "x1 drained", "x2 drained", "x3 drained", "x4 drained", "p1 tables done", "p1 ln done", "p1 fft done", "p3 ifft done", "p3 ln done", "c:g1 start", "c:g1 end", "c:g2 start", "c:g2 end"]
nstamp = [len(STAMPS)]
W1F = lambda: " nt" if "ntw1" in OPT else ""
W2F = lambda: " nt" if "ntw2" in OPT else ""
XF = lambda: " nt" if "ntx" in OPT else ""
def stamp(b, name):
    if "stamp" not in OPT: return
    i = STAMPS.index(name)
    op = "s_memtime" if name.startswith("c:") else "s_memrealtime"
    b(f"  {op} s[{S_STAMP}:{S_STAMP+1}]   ; stamp {i}: {name}")
    b(f"  s_waitcnt lgkmcnt(0)")
    b(f"  v_writelane_b32 v231, s{S_STAMP}, {i}")

def stamp_flush(b):
    if "stamp" not in OPT: return
    if "dbgtime" in OPT:
        b(f"  s_cmp_lg_u32 s2, 100")
        b(f"  s_cbranch_scc1 dbg_skip")
        b(f"  s_cmp_lg_u32 s{S_W}, 0")
        b(f"  s_cbranch_scc1 dbg_skip")
        srd(b, 24, P_DBG, 256)
        b(f"  v_readlane_b32 s46, v231, 0")
        b(f"  s_nop 1")
        b(f"  v_subrev_u32 v3, s46, v231")
        b(f"  v_lshlrev_b32 v2, 2, v7")
        b(f"  v_subrev_u32 v2, 4, v2")
        b(f"  s_mov_b64 s[48:49], exec")
        b(f"  s_mov_b64 exec, 0x1fffe")
        b(f"  buffer_store_dword v3, v2, s[24:27], 0 offen")
        b(f"  s_mov_b64 exec, s[48:49]")
        b.label("dbg_skip")
        return
    srd(b, 24, P_WS, 1 << 20, WS_STAMP)
    b(f"  s_lshl_b32 s46, s2, 3")
    b(f"  s_add_u32 s46, s46, s{S_W}")
    b(f"  s_lshl_b32 s46, s46, 7            ; (wg*8+wave)*128")
    b(f"  v_lshlrev_b32 v2, 2, v7")
    b(f"  s_mov_b64 s[48:49], exec")
    b(f"  s_mov_b64 exec, 0xffffffff")
    b(f"  buffer_store_dword v231, v2, s[24:27], s46 offen")
    b(f"  s_mov_b64 exec, s[48:49]")

def arrive(b, bar, shard_sreg, first=False, label="", drained=False):
    if not drained: b(f"  s_waitcnt vmcnt(0)")
    stamp(b, f"x{bar+1} drained")
    b(f"  s_barrier")
    b(f"  s_cmp_lg_u32 s{S_W}, 0")
    b(f"  s_cbranch_scc1 {label}_arr_skip")
    if first:
        b(f"  s_mov_b32 s11, 100000")
        b.label(f"{label}_rdy")
        b(f"  v_readfirstlane_b32 s10, v27")
        b(f"  s_nop 3")
        b(f"  s_cmp_lg_u32 s10, 0")
        b(f"  s_cbranch_scc1 {label}_rdy_ok")
        b(f"  buffer_load_dword v27, v26, s[{SRD_PF}:{SRD_PF+3}], 0 offen sc1")
        b(f"  s_waitcnt vmcnt(0)")
        b(f"  s_sub_u32 s11, s11, 1")
        b(f"  s_cmp_lg_u32 s11, 0")
        b(f"  s_cbranch_scc1 {label}_rdy")
        b.label(f"{label}_rdy_ok")
    b(f"  s_lshl_b32 s10, s{shard_sreg}, 8")
    b(f"  s_add_u32 s10, s10, {bar*4096}")
    b(f"  v_mov_b32 v228, s10")
    b(f"  v_mov_b32 v229, 1")
    b(f"  s_mov_b64 s[16:17], exec")
    b(f"  s_mov_b64 exec, 1")
    b(f"  buffer_atomic_add v229, v228, s[{SRD_CNT}:{SRD_CNT+3}], 0 offen sc1")
    b(f"  s_mov_b64 exec, s[16:17]")
    b.label(f"{label}_arr_skip")

def wait(b, bar, target, label, single_sreg=None):
    b(f"  s_cmp_lg_u32 s{S_W}, 0")
    b(f"  s_cbranch_scc1 {label}_w_skip")
    if single_sreg is None:
        b(f"  v_and_b32 v228, 15, v7")
        b(f"  v_lshlrev_b32 v228, 8, v228")
        b(f"  v_add_u32 v228, {bar*4096}, v228")
    else:
        b(f"  s_lshl_b32 s10, s{single_sreg}, 8")
        b(f"  s_add_u32 s10, s10, {bar*4096}")
        b(f"  v_mov_b32 v228, s10")
    b(f"  s_mov_b32 s11, 200000")
    b.label(f"{label}_poll")
    b(f"  buffer_load_dword v229, v228, s[{SRD_CNT}:{SRD_CNT+3}], 0 offen sc1")
    b(f"  s_waitcnt vmcnt(0)")
    b(f"  v_cmp_le_u32 vcc, {target}, v229")
    b(f"  s_nop 1")
    b(f"  s_cmp_eq_u64 vcc, exec")
    b(f"  s_cbranch_scc1 {label}_w_skip")
    b(f"  s_sub_u32 s11, s11, 1")
    b(f"  s_cmp_lg_u32 s11, 0")
    b(f"  s_cbranch_scc1 {label}_poll")
    b.label(f"{label}_w_skip")
    b(f"  s_barrier")

def prefetch(b, ptr_pair, nbytes, start, length, who_scale, who_sreg, vaddr, vdst, stmp, paced=False):
    chunk = -(-length // who_scale)
    n_per_wave = -(-chunk // (512 * 128))
    stride = -(-chunk // (512 * n_per_wave))
    stride = (stride + 3) // 4 * 4
    per_instr = 64 * stride
    srd(b, SRD_PF, ptr_pair, nbytes)
    b(f"  s_mul_i32 s{stmp}, s{who_sreg}, {chunk}")
    b(f"  s_mul_i32 s{stmp+1}, s{S_W}, {n_per_wave*per_instr}")
    b(f"  s_add_u32 s{stmp}, s{stmp}, s{stmp+1}")
    if start: b(f"  s_add_u32 s{stmp}, s{stmp}, {start}")
    b(f"  v_mul_u32_u24 v{vaddr}, {stride}, v7")
    for i in range(n_per_wave):
        b(f"  buffer_load_dword v{vdst}, v{vaddr}, s[{SRD_PF}:{SRD_PF+3}], s{stmp} offen")
        if i + 1 < n_per_wave: b(f"  s_add_u32 s{stmp}, s{stmp}, {per_instr}")
        if paced: b(f"  s_waitcnt vmcnt(0)")
    return n_per_wave

V_DUMMY = 232
def pf_wide(b, ptr_pair, nbytes, s_base, n, wave_lo, wave_hi, label):
    b(f"  s_cmp_lt_u32 s{S_W}, {wave_lo}")
    b(f"  s_cbranch_scc1 {label}")
    if wave_hi < 8:
        b(f"  s_cmp_ge_u32 s{S_W}, {wave_hi}")
        b(f"  s_cbranch_scc1 {label}")
    srd(b, SRD_PF, ptr_pair, nbytes)
    b(f"  s_sub_u32 s{S_T+9}, s{S_W}, {wave_lo}")
    b(f"  s_mul_i32 s{S_T+9}, s{S_T+9}, {n*1024}")
    b(f"  s_add_u32 s{S_T+9}, s{S_T+9}, s{s_base}")
    b(f"  v_lshlrev_b32 v29, 4, v7")
    for i in range(n):
        if i and i % 4 == 0: b(f"  s_add_u32 s{S_T+9}, s{S_T+9}, 4096")
        b(f"  buffer_load_dwordx4 {vr(V_DUMMY,4)}, v29, s[{SRD_PF}:{SRD_PF+3}], s{S_T+9} offen offset:{(i%4)*1024}")
    b.label(label)

def w1_share_base(b, sreg, part):
    b(f"  s_mul_i32 s{sreg}, s2, {W1B // 256}")
    if part: b(f"  s_add_u32 s{sreg}, s{sreg}, {part}")

def w1_first_half_base(b, sreg, part):
    b(f"  s_and_b32 s{sreg}, s2, 7")
    b(f"  s_mul_i32 s{sreg}, s{sreg}, {256*7168}")
    b(f"  s_lshr_b32 s{S_T+9}, s2, 3")
    b(f"  s_mul_i32 s{S_T+9}, s{S_T+9}, {4*7168}")
    b(f"  s_add_u32 s{sreg}, s{sreg}, s{S_T+9}")
    if part: b(f"  s_add_u32 s{sreg}, s{sreg}, {part}")

def p1_tables(b):
    M1, M2, TW = L1_M1, L1_M2, L1_TW
    b(f"  v_and_b32 v10, 255, v0            ; e")
    b(f"  v_lshrrev_b32 v11, 8, v0          ; u")
    b(f"  v_bfe_u32 v12, v10, 2, 4          ; lane&15")
    b(f"  v_lshl_add_u32 v12, v11, 4, v12   ; k1")
    b(f"  v_lshrrev_b32 v13, 6, v10         ; g")
    b(f"  v_and_b32 v14, 3, v10")
    b(f"  v_lshlrev_b32 v13, 3, v13")
    b(f"  v_lshl_add_u32 v13, v14, 1, v13   ; a0 = 8g + 2i")
    b(f"  v_mul_u32_u24 v15, v13, v12       ; a0*k1")
    b(f"  v_add_u32 v16, v15, v12           ; (a0+1)*k1")
    sincos(b, 17, 18, 15, 5, 21)
    sincos(b, 19, 20, 16, 5, 21)
    b(f"  v_lshlrev_b32 v22, 2, v10")
    b(f"  v_lshl_add_u32 v22, v11, 11, v22  ; u*2048 + e*4")
    b(f"  v_cvt_pk_bf16_f32 v23, v17, v19")
    b(f"  v_cvt_pk_bf16_f32 v24, -v18, -v20")
    b(f"  ds_write_b32 v22, v23 offset:{M1}")
    b(f"  ds_write_b32 v22, v24 offset:{M1+1024}")
    sincos(b, 17, 18, 15, 10, 21)
    sincos(b, 19, 20, 16, 10, 21)
    b(f"  ds_write_b32 v22, v17 offset:{TW}")
    b(f"  ds_write_b32 v22, v18 offset:{TW+1024}")
    b(f"  ds_write_b32 v22, v19 offset:{TW+4096}")
    b(f"  ds_write_b32 v22, v20 offset:{TW+4096+1024}")
    b(f"  v_bfe_u32 v12, v10, 2, 4          ; k2")
    b(f"  v_mul_u32_u24 v15, v13, v12")
    b(f"  v_add_u32 v16, v15, v12")
    sincos(b, 17, 18, 15, 5, 21)
    sincos(b, 19, 20, 16, 5, 21)
    b(f"  v_lshlrev_b32 v22, 2, v10")
    b(f"  v_cvt_pk_bf16_f32 v23, v17, v19")
    b(f"  v_cvt_pk_bf16_f32 v24, v18, v20")
    b(f"  v_cvt_pk_bf16_f32 v25, -v18, -v20")
    b(f"  ds_write_b32 v22, v23 offset:{M2}")
    b(f"  ds_write_b32 v22, v24 offset:{M2+1024}")
    b(f"  ds_write_b32 v22, v25 offset:{M2+2048}")

def p1(b):
    srd(b, SRD_A, P_X, 4 << 20)
    srd(b, SRD_B, P_WS, 4 << 20, WS_X1)
    b(f"  s_lshl_b32 s{S_T}, s{S_W}, 8")
    b(f"  s_add_u32 s{S_T}, s{S_T}, s2          ; s")
    b(f"  s_lshl_b32 s{S_T+1}, s{S_T}, 11")
    b(f"  v_lshlrev_b32 v1, 9, v9")
    b(f"  v_lshl_add_u32 v1, v8, 2, v1")
    XD = 32
    for i in range(8):
        b(f"  buffer_load_dword v{XD+i}, v1, s[{SRD_A}:{SRD_A+3}], s{S_T+1} offen offset:{64*i}{XF()}")
    b(f"  s_cmp_ge_u32 s2, 16")
    b(f"  s_cbranch_scc1 p1_noreset")
    b(f"  s_cmp_lg_u32 s{S_W}, 0")
    b(f"  s_cbranch_scc1 p1_noreset")
    b(f"  s_lshl_b32 s{S_T+2}, s2, 8")
    b(f"  v_lshlrev_b32 v2, 12, v7")
    b(f"  v_add_u32 v2, s{S_T+2}, v2")
    b(f"  v_mov_b32 v3, 0")
    b(f"  s_mov_b64 s[48:49], exec")
    b(f"  s_mov_b64 exec, 15")
    b(f"  buffer_store_dword v3, v2, s[{SRD_CNT}:{SRD_CNT+3}], 0 offen sc1")
    b(f"  s_mov_b64 exec, s[48:49]")
    b.label("p1_noreset")
    npf = 0
    p1_tables(b)
    GM = 30
    gmat(b, GM, 2, False, 10)
    b(f"  s_waitcnt lgkmcnt(0)")
    stamp(b, "p1 tables done")
    b(f"  s_barrier")
    npf = 0
    if "nopf" not in OPT:
        b(f"  s_mul_i32 s{S_T+8}, s2, 8208")
        if "ntx" not in OPT:
            pf_wide(b, P_WR, WB, S_T + 8, 3, 0, 3, "pf_p1a")
            pf_wide(b, P_WI, WB, S_T + 8, 3, 0, 3, "pf_p1b")
        if "ntw1" not in OPT and PFN[0]:
            w1_share_base(b, S_T + 8, 0)
            pf_wide(b, P_W1, W1B, S_T + 8, PFN[0], 4, 8, "pf_p1c")
    M1, M2, TW = 96, 112, 128
    b(f"  v_lshlrev_b32 v2, 4, v7")
    for i in range(4): b(f"  ds_read_b128 {vr(M1+4*i,4)}, v2 offset:{L1_M1+1024*i}")
    for i in range(3): b(f"  ds_read_b128 {vr(M2+4*i,4)}, v2 offset:{L1_M2+1024*i}")
    for i in range(8): b(f"  ds_read_b128 {vr(TW+4*i,4)}, v2 offset:{L1_TW+1024*i}")
    X = 40
    if "nopf" not in OPT:
        b(f"  s_cmp_eq_u32 s{S_W}, 3")
        b(f"  s_cbranch_scc1 p1_xw0")
        b(f"  s_cmp_ge_u32 s{S_W}, 4")
        b(f"  s_cbranch_scc1 p1_xw4")
        b(f"  s_waitcnt vmcnt({0 if 'ntx' in OPT else 6})")
        b(f"  s_branch p1_xwd")
        b.label("p1_xw4")
        b(f"  s_waitcnt vmcnt({0 if 'ntw1' in OPT else PFN[0]})")
        b(f"  s_branch p1_xwd")
        b.label("p1_xw0")
    b(f"  s_waitcnt vmcnt(0)")
    if "nopf" not in OPT: b.label("p1_xwd")
    stamp(b, "p1 x landed")
    srd(b, SRD_PF, P_DBG, 256)
    b(f"  s_and_b32 s{S_T+8}, s2, 15")
    b(f"  s_lshl_b32 s{S_T+9}, s{S_T+8}, 2")
    b(f"  s_add_u32 s{S_T+9}, s{S_T+9}, 64")
    b(f"  v_mov_b32 v26, s{S_T+9}")
    b(f"  s_cmp_ge_u32 s2, 16")
    b(f"  s_cbranch_scc1 p1_noflag")
    b(f"  s_cmp_lg_u32 s{S_W}, 0")
    b(f"  s_cbranch_scc1 p1_noflag")
    b(f"  v_mov_b32 v3, 1")
    b(f"  s_mov_b64 s[48:49], exec")
    b(f"  s_mov_b64 exec, 1")
    b(f"  buffer_store_dword v3, v26, s[{SRD_PF}:{SRD_PF+3}], 0 offen sc1")
    b(f"  s_mov_b64 exec, s[48:49]")
    b.label("p1_noflag")
    for i in range(8):
        b(f"  v_lshlrev_b32 v{X+i}, 16, v{XD+i}")
        b(f"  v_and_b32 v{X+8+i}, 0xffff0000, v{XD+i}")
    T = 56
    b(f"  v_add_f32 v{T}, v{X}, v{X+1}")
    b(f"  v_add_f32 v{T+1}, v{X+8}, v{X+9}")
    for i in range(2, 8):
        b(f"  v_add_f32 v{T}, v{T}, v{X+i}")
        b(f"  v_add_f32 v{T+1}, v{T+1}, v{X+8+i}")
    wave_reduce(b, [T, T+1])
    b(f"  v_sub_f32 v{T+2}, v{T}, v{T+1}       ; E - O")
    b(f"  v_add_f32 v{T}, v{T}, v{T+1}")
    b(f"  s_nop 0")
    b(f"  v_readlane_b32 s{S_T+2}, v{T}, 63")
    b(f"  v_readlane_b32 s{S_T+4}, v{T+2}, 63")
    b(f"  s_nop 1")
    ln_finish(b, X, T, S_T+2, S_T+3)
    b(f"  v_mul_f32 v{T+6}, s{S_T+4}, v{T+4}")
    stamp(b, "p1 ln done")
    A = 64
    for be in range(2):
        for i in range(4):
            b(f"  v_cvt_pk_bf16_f32 v{A+4*be+i}, v{X+8*be+2*i}, v{X+8*be+2*i+1}")
    b(f"  s_waitcnt lgkmcnt(0)")
    b(f"  v_readlane_b32 s{S_T+5}, v{T+6}, 0")
    Y = 160
    for be in range(2):
        for u in range(2):
            for c in range(2):
                d = Y + ((be * 2 + u) * 2 + c) * 4
                b(f"  {MF32} {vr(d,4)}, {vr(A+4*be,4)}, {vr(M1+4*(2*u+c),4)}, 0")
    b(f"  s_nop 4")
    Bp = 72; W = 32; O = 40
    for u in range(2):
        for be in range(2):
            y = Y + ((be * 2 + u) * 2) * 4
            tw = TW + (be * 4 + u * 2) * 4
            cmul_pk(b, O + 8 * be, O + 8 * be + 4, y, y + 4, tw, tw + 4, W, False)
        for r in range(4):
            b(f"  v_cvt_pk_bf16_f32 v{Bp+8*u+r}, v{O+r}, v{O+8+r}")
            b(f"  v_cvt_pk_bf16_f32 v{Bp+8*u+4+r}, v{O+4+r}, v{O+12+r}")
    XO = 160
    b(f"  s_nop 1")
    for u in range(2):
        re, im = XO + 8 * u, XO + 8 * u + 4
        b(f"  {MF32} {vr(re,4)}, {vr(M2,4)}, {vr(Bp+8*u,4)}, 0")
        b(f"  {MF32} {vr(im,4)}, {vr(M2,4)}, {vr(Bp+8*u+4,4)}, 0")
        b(f"  {MF32} {vr(re,4)}, {vr(M2+4,4)}, {vr(Bp+8*u+4,4)}, {vr(re,4)}")
        b(f"  {MF32} {vr(im,4)}, {vr(M2+8,4)}, {vr(Bp+8*u,4)}, {vr(im,4)}")
    b(f"  buffer_load_dword v27, v26, s[{SRD_PF}:{SRD_PF+3}], 0 offen sc1")
    b(f"  s_and_b32 s{S_T+6}, s{S_W}, 1")
    b(f"  s_lshl_b32 s{S_T+6}, s{S_T+6}, 8")
    b(f"  s_lshr_b32 s{S_T+7}, s{S_W}, 1")
    b(f"  s_lshl_b32 s{S_T+7}, s{S_T+7}, 6")
    b(f"  s_add_u32 s{S_T+6}, s{S_T+6}, s{S_T+7}")
    b(f"  v_lshlrev_b32 v3, 12, v9")
    b(f"  v_lshl_add_u32 v3, v8, 2, v3")
    b(f"  v_add_u32 v3, s{S_T+6}, v3")
    b(f"  s_nop 2")
    b(f"  v_writelane_b32 v{XO}, s{S_T+5}, 0")
    b(f"  v_writelane_b32 v{XO+4}, 0, 0")
    PK = 32
    for u in range(2):
        for r in range(4):
            b(f"  v_cvt_pk_bf16_f32 v{PK+4*u+r}, v{XO+8*u+r}, v{XO+8*u+4+r}")
    for u in range(2):
        for r in range(4):
            b(f"  ds_write_b32 v3, v{PK+4*u+r} offset:{L1_EX + u*512 + r*1024}")
    b(f"  s_waitcnt lgkmcnt(0)")
    stamp(b, "p1 fft done")
    b(f"  s_barrier")
    b(f"  v_lshlrev_b32 v4, 6, v9")
    b(f"  v_lshl_add_u32 v4, v8, 2, v4")
    b(f"  s_lshl_b32 s{S_T+6}, s{S_W}, 11")
    b(f"  s_add_u32 s{S_T+6}, s{S_T+6}, {L1_EX}")
    b(f"  v_add_u32 v4, s{S_T+6}, v4")
    Bd = 40
    for i in range(4):
        b(f"  ds_read2st64_b32 {vr(Bd+2*i,2)}, v4 offset0:{2*i} offset1:{2*i+1}")
    b(f"  v_lshlrev_b32 v5, 15, v9")
    b(f"  v_lshl_add_u32 v5, v8, 2, v5")
    b(f"  s_and_b32 s{S_T+6}, s2, 15")
    b(f"  s_lshl_b32 s{S_T+6}, s{S_T+6}, 4")
    b(f"  s_lshr_b32 s{S_T+7}, s2, 4")
    b(f"  s_add_u32 s{S_T+6}, s{S_T+6}, s{S_T+7}")
    b(f"  s_lshl_b32 s{S_T+6}, s{S_T+6}, 6       ; pos*64")
    b(f"  s_lshl_b32 s{S_T+7}, s{S_W}, 19        ; 4w*131072")
    b(f"  s_add_u32 s{S_T+6}, s{S_T+6}, s{S_T+7}")
    D = 48
    for i in range(4):
        b(f"  s_waitcnt lgkmcnt({3-i})")
        b(f"  {MF16} {vr(D+4*i,4)}, {vr(GM,2)}, {vr(Bd+2*i,2)}, 0")
    b(f"  s_nop 4")
    for i in range(4):
        b(f"  v_cvt_pk_bf16_f32 v{64+2*i}, v{D+4*i}, v{D+4*i+1}")
        b(f"  v_cvt_pk_bf16_f32 v{65+2*i}, v{D+4*i+2}, v{D+4*i+3}")
        for e in range(2):
            b(f"  s_add_u32 s{S_T+7}, s{S_T+6}, {i*131072 + e*16384}")
            b(f"  buffer_store_dword v{64+2*i+e}, v5, s[{SRD_B}:{SRD_B+3}], s{S_T+7} offen{SF}")
    stamp(b, "p1 stores issued")
    b(f"  s_and_b32 s{S_T+8}, s2, 15")
    arrive(b, 0, S_T + 8, first=True, label="x1")
    stamp(b, "p1 arrived")

XL2, WL2 = 32, 40
TC2, TS2 = 64, 68
def p2_setup(b):
    srd(b, SRD_A, P_WS, 4 << 20, WS_X1)
    srd(b, SRD_B, P_WS, 4 << 20, WS_X2)
    srd(b, SRD_C, P_WR, WB)
    srd(b, SRD_D, P_WI, WB)
    b(f"  s_and_b32 s{S_T}, s2, 7              ; j1")
    b(f"  s_lshr_b32 s{S_T+1}, s2, 3           ; kb")
    b(f"  v_and_b32 v10, 1, v0                 ; half")
    b(f"  v_bfe_u32 v11, v0, 5, 4              ; c")
    b(f"  v_bfe_u32 v12, v0, 1, 4              ; e")
    b(f"  v_lshl_add_u32 v13, v12, 4, v11      ; j2")
    b(f"  v_lshlrev_b32 v13, 3, v13")
    b(f"  v_add_u32 v13, s{S_T}, v13           ; j")
    b(f"  v_mul_u32_u24 v13, 1026, v13")
    b(f"  v_lshlrev_b32 v14, 4, v10")
    b(f"  v_add_u32 v14, v13, v14")
    b(f"  s_lshl_b32 s{S_T+3}, s{S_T+1}, 5")
    WL = WL2
    b(f"  v_mov_b32 v24, v14")
    b(f"  v_mov_b32 v25, v13")
    b(f"  v_mov_b32 v26, v10                   ; half")
    b(f"  s_mov_b32 s45, s{S_T+3}              ; kb*32")
    WL = WL2
    b(f"  buffer_load_dwordx4 {vr(WL,4)}, v24, s[{SRD_C}:{SRD_C+3}], s45 offen{XF()}")
    b(f"  buffer_load_dwordx4 {vr(WL+4,4)}, v24, s[{SRD_D}:{SRD_D+3}], s45 offen{XF()}")
    b(f"  s_cmp_lg_u32 s{S_T+1}, 0")
    b(f"  s_cbranch_scc1 p2_nonyq")
    b(f"  buffer_load_ushort v48, v25, s[{SRD_C}:{SRD_C+3}], 0 offen offset:1024")
    b(f"  buffer_load_ushort v49, v25, s[{SRD_D}:{SRD_D+3}], 0 offen offset:1024")
    b(f"  s_waitcnt vmcnt(0)")
    b(f"  v_cmp_eq_u32 vcc, 0, v26")
    b(f"  v_and_b32 v50, 0xffff0000, v{WL}")
    b(f"  v_or_b32 v50, v50, v48")
    b(f"  v_cndmask_b32 v{WL}, v{WL}, v50, vcc")
    b(f"  v_and_b32 v50, 0xffff0000, v{WL+4}")
    b(f"  v_or_b32 v50, v50, v49")
    b(f"  v_cndmask_b32 v{WL+4}, v{WL+4}, v50, vcc")
    b.label("p2_nonyq")
    npf = 0
    b(f"  v_and_b32 v15, 255, v0")
    b(f"  v_bfe_u32 v16, v15, 2, 4             ; x")
    b(f"  v_lshrrev_b32 v17, 6, v15            ; g")
    b(f"  v_and_b32 v18, 3, v15")
    b(f"  v_lshl_add_u32 v17, v17, 2, v18      ; 4g+i")
    b(f"  v_mul_u32_u24 v17, v17, v16")
    sincos(b, 18, 19, 17, 4, 20)
    b(f"  v_cmp_gt_u32 vcc, 256, v0            ; matrix 0 ?")
    b(f"  v_xor_b32 v20, 0x80000000, v19       ; -sin")
    b(f"  s_nop 0")
    b(f"  v_cndmask_b32 v21, v20, v18, vcc")
    b(f"  v_cndmask_b32 v22, v18, v19, vcc")
    b(f"  v_cvt_pk_bf16_f32 v21, v21, v22")
    b(f"  v_lshlrev_b32 v22, 2, v0")
    b(f"  ds_write_b32 v22, v21 offset:{L2_F}")
    b(f"  v_lshlrev_b32 v16, 2, v9")
    for r in range(4):
        b(f"  v_add_u32 v17, {r}, v16")
        b(f"  v_mul_u32_u24 v17, v17, v8")
        sincos(b, TC2 + r, TS2 + r, 17, 8, 20)
    b(f"  v_and_b32 v16, 3, v0                 ; i")
    b(f"  v_mul_u32_u24 v16, {4*1040}, v16")
    b(f"  v_lshrrev_b32 v17, 6, v0             ; b (0..7)")
    b(f"  v_lshl_add_u32 v16, v17, 6, v16")
    b(f"  v_bfe_u32 v17, v0, 2, 2              ; a&3")
    b(f"  v_lshl_add_u32 v16, v17, 2, v16")
    b(f"  v_bfe_u32 v17, v0, 4, 2              ; a>>2")
    b(f"  v_lshl_add_u32 v21, v17, 4, v16      ; first")
    b(f"  v_xor_b32 v17, 2, v17")
    b(f"  v_lshl_add_u32 v22, v17, 4, v16")
    b(f"  v_add_u32 v22, 512, v22              ; second (b+8)")
    b(f"  v_mul_u32_u24 v16, {4*1040}, v10")
    b(f"  v_lshl_add_u32 v16, v11, 6, v16")
    b(f"  v_and_b32 v17, 3, v12")
    b(f"  v_lshl_add_u32 v16, v17, 2, v16")
    b(f"  v_lshrrev_b32 v17, 2, v12")
    b(f"  v_lshrrev_b32 v18, 3, v11            ; c>>3")
    b(f"  v_lshlrev_b32 v18, 1, v18")
    b(f"  v_xor_b32 v17, v17, v18")
    b(f"  v_lshl_add_u32 v23, v17, 4, v16")
    b(f"  v_lshrrev_b32 v16, 3, v8")
    b(f"  v_lshlrev_b32 v16, 1, v16")
    b(f"  v_xor_b32 v16, v16, v9")
    b(f"  v_lshlrev_b32 v16, 4, v16")
    b(f"  v_lshl_add_u32 v16, v8, 6, v16")
    b(f"  s_mul_i32 s{S_T+4}, s{S_W}, {2*1040}")
    b(f"  s_mul_i32 s{S_T+5}, s{S_W}, 1040")
    b(f"  v_add_u32 v5, s{S_T+4}, v16")
    b(f"  v_add_u32 v6, s{S_T+5}, v16")
    b(f"  v_lshlrev_b32 v1, 4, v0")
    b(f"  s_lshl_b32 s{S_T+2}, s2, 14")
    b(f"  s_add_u32 s{S_T+3}, s{S_T+2}, 8192")
    b(f"  s_waitcnt lgkmcnt(0)")

def p2_main(b):
    XL = XL2; TC, TS = TC2, TS2
    b(f"  buffer_load_dwordx4 {vr(XL,4)}, v1, s[{SRD_A}:{SRD_A+3}], s{S_T+2} offen{LF}")
    b(f"  buffer_load_dwordx4 {vr(XL+4,4)}, v1, s[{SRD_A}:{SRD_A+3}], s{S_T+3} offen{LF}")
    WL = WL2
    b(f"  v_lshlrev_b32 v17, 4, v7")
    FR, FI = 72, 76
    AX = 48; WR, WI = 152, 156
    b(f"  ds_read_b128 {vr(FR,4)}, v17 offset:{L2_F}")
    b(f"  ds_read_b128 {vr(FI,4)}, v17 offset:{L2_F+1024}")
    Dq = [80, 88]; Oq = [96, 104]; Tq = [112, 120]; Pq = [128, 132]; Wq = [136, 144]
    b(f"  s_waitcnt vmcnt(0)")
    stamp(b, "p2 x landed")
    for j in range(4):
        b(f"  ds_write_b32 v21, v{XL+j} offset:{L2_X + j*1040}")
        b(f"  ds_write_b32 v22, v{XL+4+j} offset:{L2_X + j*1040}")
    for j in range(4):
        b(f"  ds_write_b32 v23, v{WL+j} offset:{L2_W + j*1040}")
        b(f"  ds_write_b32 v23, v{WL+4+j} offset:{L2_W + 8*1040 + j*1040}")
    if "nopf" not in OPT and "ntw1" not in OPT and PFN[1]:
        w1_share_base(b, S_T + 8, PFN[0] * 4096)
        pf_wide(b, P_W1, W1B, S_T + 8, PFN[1], 4, 8, "pf_p2a")
    b(f"  s_waitcnt lgkmcnt(0)")
    b(f"  s_barrier")
    b(f"  ds_read_b128 {vr(AX,4)}, v5 offset:{L2_X}")
    b(f"  ds_read_b128 {vr(AX+4,4)}, v5 offset:{L2_X+1040}")
    b(f"  ds_read_b128 {vr(WR,4)}, v6 offset:{L2_W}")
    b(f"  ds_read_b128 {vr(WI,4)}, v6 offset:{L2_W+8*1040}")
    def stage(form, src):
        for k in range(2):
            d = Dq[k]
            if form == 'A':
                b(f"  {MF32} {vr(d,4)}, {vr(src[k],4)}, {vr(FR,4)}, 0")
                b(f"  {MF32} {vr(d+4,4)}, {vr(src[k],4)}, {vr(FI,4)}, 0")
            else:
                b(f"  {MF32} {vr(d,4)}, {vr(FR,4)}, {vr(src[k],4)}, 0")
                b(f"  {MF32} {vr(d+4,4)}, {vr(FI,4)}, {vr(src[k],4)}, 0")
    def twiddle_pack():
        for k in range(2):
            cmul_pk(b, Oq[k], Oq[k] + 4, Dq[k], Dq[k] + 4, TC, TS, Tq[k], False)
        for k in range(2):
            for r in range(4):
                b(f"  v_cvt_pk_bf16_f32 v{Pq[k]+r}, v{Oq[k]+r}, v{Oq[k]+4+r}")
        b(f"  s_nop 1")
    b(f"  s_waitcnt lgkmcnt(2)")
    stage('A', [AX, AX + 4])
    b(f"  s_waitcnt lgkmcnt(0)")
    for r in range(4):
        b(f"  v_lshlrev_b32 v{Wq[0]+r}, 16, v{WR+r}")
        b(f"  v_lshlrev_b32 v{Wq[0]+4+r}, 16, v{WI+r}")
        b(f"  v_and_b32 v{Wq[1]+r}, 0xffff0000, v{WR+r}")
        b(f"  v_and_b32 v{Wq[1]+4+r}, 0xffff0000, v{WI+r}")
    twiddle_pack()
    stage('B', Pq)
    b(f"  s_nop 5")
    for k in range(2):
        cmul_pk(b, Oq[k], Oq[k] + 4, Dq[k], Dq[k] + 4, Wq[k], Wq[k] + 4, Tq[k], True)
    for k in range(2):
        for r in range(4):
            b(f"  v_cvt_pk_bf16_f32 v{Pq[k]+r}, v{Oq[k]+r}, -v{Oq[k]+4+r}")
    b(f"  s_nop 1")
    stage('A', Pq)
    b(f"  s_nop 5")
    twiddle_pack()
    stage('B', Pq)
    b(f"  s_nop 5")
    for k in range(2):
        for r in range(4):
            b(f"  v_cvt_pk_bf16_f32 v{Pq[k]+r}, v{Dq[k]+r}, -v{Dq[k]+4+r}")
    b(f"  ds_write_b128 v5, {vr(Pq[0],4)} offset:{L2_X}")
    b(f"  ds_write_b128 v5, {vr(Pq[1],4)} offset:{L2_X+1040}")
    b(f"  s_waitcnt lgkmcnt(0)")
    b(f"  s_barrier")
    for j in range(4):
        b(f"  ds_read_b32 v{XL+j}, v21 offset:{L2_X + j*1040}")
        b(f"  ds_read_b32 v{XL+4+j}, v22 offset:{L2_X + j*1040}")
    b(f"  v_bfe_u32 v16, v0, 2, 4              ; a")
    b(f"  v_lshrrev_b32 v17, 6, v0             ; b")
    b(f"  v_lshl_add_u32 v16, v16, 4, v17      ; s1")
    b(f"  v_lshlrev_b32 v16, 14, v16")
    b(f"  v_and_b32 v17, 3, v0")
    b(f"  v_lshl_add_u32 v16, v17, 4, v16")
    b(f"  s_lshl_b32 s{S_T+4}, s{S_T}, 11")
    b(f"  s_lshl_b32 s{S_T+5}, s{S_T+1}, 6")
    b(f"  s_add_u32 s{S_T+4}, s{S_T+4}, s{S_T+5}")
    b(f"  s_add_u32 s{S_T+5}, s{S_T+4}, {8*16384}")
    b(f"  s_waitcnt lgkmcnt(0)")
    b(f"  buffer_store_dwordx4 {vr(XL,4)}, v16, s[{SRD_B}:{SRD_B+3}], s{S_T+4} offen{SF}")
    b(f"  buffer_store_dwordx4 {vr(XL+4,4)}, v16, s[{SRD_B}:{SRD_B+3}], s{S_T+5} offen{SF}")
    stamp(b, "p2 stores issued")
    b(f"  s_and_b32 s{S_T+8}, s2, 15")
    arrive(b, 1, S_T + 8, label="x2")

V_LO = 224
S_G1A = 60
def g1_ids(b):
    b(f"  s_lshr_b32 s{S_T}, s2, 3                 ; i")
    b(f"  s_cmp_lt_u32 s{S_T}, 28")
    b(f"  s_cselect_b32 s62, 1, 0")
    b(f"  s_mul_i32 s{S_T+1}, s{S_T}, 37")
    b(f"  s_lshr_b32 s{S_T+1}, s{S_T+1}, 8         ; i/7")
    b(f"  s_mul_i32 s{S_T+2}, s{S_T+1}, 7")
    b(f"  s_sub_u32 s{S_T+2}, s{S_T}, s{S_T+2}     ; i%7")
    b(f"  s_and_b32 s{S_T+3}, s2, 7")
    b(f"  s_lshr_b32 s{S_T+4}, s{S_T+3}, 1")
    b(f"  s_mul_i32 s{S_T+4}, s{S_T+4}, 7")
    b(f"  s_add_u32 s60, s{S_T+4}, s{S_T+2}        ; ft")
    b(f"  s_and_b32 s{S_T+3}, s{S_T+3}, 1")
    b(f"  s_lshl_b32 s{S_T+3}, s{S_T+3}, 2")
    b(f"  s_add_u32 s61, s{S_T+3}, s{S_T+1}        ; dt")

S_SOFF, S_M0, S_N = 4, 5, 6
def loader_issue(b, voff, fl=""):
    for i in range(4):
        b(f"  s_add_u32 m0, s{S_M0}, {4096*i}")
        b(f"  s_nop 0")
        b(f"  buffer_load_dwordx4 v{voff+i}, s[{SRD_T}:{SRD_T+3}], s{S_SOFF} offen{fl} lds")
    b(f"  s_add_u32 s{S_SOFF}, s{S_SOFF}, s9")
    b(f"  s_add_u32 s{S_M0}, s{S_M0}, {STAGE}")
    b(f"  s_cmp_ge_u32 s{S_M0}, s{S_N+1}")
    b(f"  s_cselect_b32 s{S_N+2}, {R*STAGE}, 0")
    b(f"  s_sub_u32 s{S_M0}, s{S_M0}, s{S_N+2}")

def loader_init(b, step_bytes):
    b(f"  s_sub_u32 s50, s{S_W}, 4")
    b(f"  s_lshl_b32 s{S_M0}, s50, 10")
    b(f"  s_add_u32 s{S_N+1}, s{S_M0}, {R*STAGE}")
    b(f"  s_mov_b32 s{S_SOFF}, 0")
    b(f"  s_mov_b32 s9, {step_bytes}")

def g1_loader_addr(b):
    b(f"  s_sub_u32 s50, s{S_W}, 4      ; w'")
    for i in range(4):
        b(f"  s_lshl_b32 s49, s50, 2")
        b(f"  s_add_u32 s49, s49, {16*i}")
        b(f"  v_lshrrev_b32 v14, 4, v7")
        b(f"  v_add_u32 v14, s49, v14                 ; row 0..63")
        b(f"  v_and_b32 v15, 3, v14")
        b(f"  v_lshlrev_b32 v15, 2, v15")
        b(f"  v_and_b32 v16, 15, v7")
        b(f"  v_xor_b32 v16, v16, v15                 ; q")
        b(f"  v_lshrrev_b32 v17, 3, v14")
        b(f"  v_and_b32 v18, 7, v14")
        b(f"  v_lshl_add_u32 v17, v18, 8, v17         ; s")
        b(f"  v_mul_u32_u24 v17, 7168, v17")
        b(f"  v_lshl_add_u32 v17, v16, 4, v17")
        b(f"  s_lshl_b32 s49, s60, 8")
        b(f"  v_add_u32 v{V_LO+i}, s49, v17")

def g2_ids(b):
    b(f"  s_and_b32 s{S_T}, s2, 1")
    b(f"  s_lshl_b32 s{S_T}, s{S_T}, 2")
    b(f"  s_lshr_b32 s{S_T+1}, s2, 3")
    b(f"  s_and_b32 s{S_T+2}, s{S_T+1}, 3")
    b(f"  s_add_u32 s{S_TILE_A}, s{S_T}, s{S_T+2}     ; dt")
    b(f"  s_lshr_b32 s{S_T}, s2, 1")
    b(f"  s_and_b32 s{S_T}, s{S_T}, 3")
    b(f"  s_lshl_b32 s{S_T}, s{S_T}, 3")
    b(f"  s_lshr_b32 s{S_T+1}, s{S_T+1}, 2")
    b(f"  s_add_u32 s{S_TILE_B}, s{S_T}, s{S_T+1}     ; st")

def g2_loader_addr(b):
    b(f"  s_sub_u32 s50, s{S_W}, 4")
    for i in range(4):
        b(f"  s_lshl_b32 s49, s50, 3")
        b(f"  s_add_u32 s49, s49, {32*i}")
        b(f"  v_lshrrev_b32 v14, 3, v7")
        b(f"  v_add_u32 v14, s49, v14                 ; row")
        b(f"  v_bfe_u32 v15, v14, 1, 1")
        b(f"  v_lshlrev_b32 v15, 2, v15")
        b(f"  v_and_b32 v16, 7, v7")
        b(f"  v_xor_b32 v16, v16, v15                 ; q")
        b(f"  v_lshlrev_b32 v14, 12, v14              ; row*4096")
        b(f"  v_lshl_add_u32 v14, v16, 4, v14")
        b(f"  s_lshl_b32 s49, s{S_TILE_B}, 7          ; s0*2")
        b(f"  v_add_u32 v{V_LO+i}, s49, v14")

def loader_loop(b, NS, pre, fl=""):
    nmain = NS - (R - 2)
    b(f"  s_mov_b32 s{S_N}, {nmain}")
    b.label(f"{pre}_lloop")
    b(f"  s_waitcnt vmcnt({(R-3)*4})")
    b("  s_barrier")
    loader_issue(b, V_LO, fl)
    b(f"  s_sub_u32 s{S_N}, s{S_N}, 1")
    b(f"  s_cmp_lg_u32 s{S_N}, 0")
    b(f"  s_cbranch_scc1 {pre}_lloop")
    for i in range(R - 2):
        b(f"  s_waitcnt vmcnt({(R-3-i)*4})")
        b("  s_barrier")

BD3 = 32; XR3 = 192; GM3 = 30
def p3_tables(b):
    b(f"  v_and_b32 v10, 255, v0            ; e")
    b(f"  v_lshrrev_b32 v11, 8, v0")
    b(f"  v_bfe_u32 v12, v10, 2, 4          ; n = lane&15")
    b(f"  v_lshrrev_b32 v13, 6, v10         ; g")
    b(f"  v_and_b32 v14, 3, v10             ; r")
    b(f"  v_lshl_add_u32 v13, v13, 2, v14   ; 4g + r")
    b(f"  v_lshrrev_b32 v15, 2, v12")
    b(f"  v_lshlrev_b32 v15, 3, v15")
    b(f"  v_and_b32 v16, 3, v12")
    b(f"  v_add_u32 v15, v15, v16           ; b(n,0)")
    b(f"  v_lshl_add_u32 v16, v11, 2, v15   ; b(n, sel)")
    b(f"  v_mul_u32_u24 v17, v16, v13")
    sincos(b, 18, 19, 17, 5, 20)
    b(f"  v_lshlrev_b32 v22, 2, v10")
    b(f"  v_lshl_add_u32 v22, v11, 11, v22  ; sel*2048 + e*4")
    b(f"  v_add_u32 v22, {L3_M3}, v22")
    b(f"  v_cvt_pk_bf16_f32 v23, v18, -v19")
    b(f"  v_cvt_pk_bf16_f32 v24, v19, v18")
    b(f"  ds_write_b32 v22, v23")
    b(f"  ds_write_b32 v22, v24 offset:1024")
    b(f"  v_lshl_add_u32 v17, v11, 4, v13   ; k1")
    for z in range(2):
        b(f"  v_add_u32 v21, {16*z}, v12")
        b(f"  v_mul_u32_u24 v21, v21, v17")
        sincos(b, 18, 19, 21, 5, 20)
        b(f"  v_add_f32 v18, v18, v18")
        b(f"  v_mul_f32 v19, -2.0, v19")
        b(f"  v_cvt_pk_bf16_f32 v23, v18, v19")
        b(f"  ds_write_b32 v22, v23 offset:{4096+1024*z}")
    b(f"  v_lshlrev_b32 v23, 2, v10")
    b(f"  v_lshl_add_u32 v23, v11, 12, v23   ; u*4096 + e*4")
    b(f"  v_add_u32 v23, {L3_TW}, v23")
    for v in range(2):
        b(f"  v_add_u32 v21, {4*v}, v15")
        b(f"  v_mul_u32_u24 v21, v21, v17")
        sincos(b, 18, 19, 21, 10, 20)
        b(f"  ds_write_b32 v23, v18 offset:{2048*v}")
        b(f"  ds_write_b32 v23, v19 offset:{2048*v+1024}")

def p3_setup(b):
    srd(b, SRD_A, P_WS, 4 << 20, WS_X2)
    srd(b, SRD_B, P_X, 4 << 20)
    srd(b, SRD_C, P_WS, 4 << 20, WS_H)
    srd(b, SRD_D, P_WS, 4 << 20, WS_LN2)
    b(f"  s_lshl_b32 s{S_T+3}, s{S_W}, 8")
    b(f"  s_add_u32 s{S_T+3}, s{S_T+3}, s2")
    b(f"  s_lshl_b32 s{S_T+3}, s{S_T+3}, 11       ; s*2048")
    b(f"  v_lshlrev_b32 v4, 6, v8")
    b(f"  v_lshl_add_u32 v4, v9, 4, v4")
    for z in range(2):
        b(f"  buffer_load_dwordx4 {vr(XR3+4*z,4)}, v4, s[{SRD_B}:{SRD_B+3}], s{S_T+3} offen offset:{1024*z}")
    b(f"  s_mov_b32 s63, s{S_T+3}")
    if "nopf" not in OPT and "ntw1" not in OPT:
        if PFN[2]:
            w1_share_base(b, S_T + 8, (PFN[0] + PFN[1]) * 4096)
            pf_wide(b, P_W1, W1B, S_T + 8, PFN[2], 4, 8, "pf_p3a")
    g1_ids(b)
    g1_loader_addr(b)
    loader_init(b, 8 * 7168)
    p3_tables(b)
    gmat(b, GM3, 2, True, 10)
    b(f"  v_lshlrev_b32 v1, 12, v9")
    b(f"  v_lshl_add_u32 v1, v8, 2, v1")
    b(f"  s_lshl_b32 s{S_T}, s2, 14")
    b(f"  s_and_b32 s{S_T+1}, s{S_W}, 1")
    b(f"  s_lshl_b32 s{S_T+1}, s{S_T+1}, 6")
    b(f"  s_lshr_b32 s{S_T+2}, s{S_W}, 1")
    b(f"  s_lshl_b32 s{S_T+2}, s{S_T+2}, 9")
    b(f"  s_add_u32 s{S_T}, s{S_T}, s{S_T+1}")
    b(f"  s_add_u32 s44, s{S_T}, s{S_T+2}          ; X2 soffset")
    b(f"  s_lshl_b32 s{S_T+1}, s{S_T+1}, 4        ; u*1024")
    b(f"  s_lshr_b32 s{S_T+2}, s{S_T+2}, 1        ; q4*256")
    b(f"  s_add_u32 s45, s{S_T+1}, s{S_T+2}")
    b(f"  s_waitcnt lgkmcnt(0)")

def p3_main(b):
    Bd, XR, GM = BD3, XR3, GM3
    for i in range(4):
        for e in range(2):
            b(f"  buffer_load_dword v{Bd+2*i+e}, v1, s[{SRD_A}:{SRD_A+3}], s44 offen offset:{e*2048+i*128}{LF}")
    npf = 0
    D = 40
    b(f"  v_lshlrev_b32 v3, 12, v9")
    b(f"  v_lshl_add_u32 v3, v8, 4, v3")
    b(f"  v_add_u32 v3, s45, v3")
    b(f"  v_add_u32 v3, {L3_EX}, v3")
    M3, M4, TW = 96, 112, 128
    b(f"  v_lshlrev_b32 v6, 4, v7")
    b(f"  v_add_u32 v6, {L3_M3}, v6")
    for i in range(4): b(f"  ds_read_b128 {vr(M3+4*i,4)}, v6 offset:{1024*i}")
    for i in range(4): b(f"  ds_read_b128 {vr(M4+4*i,4)}, v6 offset:{4096+1024*i}")
    b(f"  s_waitcnt lgkmcnt(0)")
    for i in range(8): b(f"  ds_read_b128 {vr(TW+4*i,4)}, v6 offset:{8192+1024*i}")
    b(f"  s_waitcnt vmcnt({npf})")
    stamp(b, "p3 x2 landed")
    if "nopf" not in OPT and "ntw1" not in OPT and PFN[3]:
        w1_share_base(b, S_T + 8, (PFN[0] + PFN[1] + PFN[2]) * 4096)
        pf_wide(b, P_W1, W1B, S_T + 8, PFN[3], 4, 8, "pf_p3b")
    for i in range(4):
        b(f"  {MF16} {vr(D+4*i,4)}, {vr(GM,2)}, {vr(Bd+2*i,2)}, 0")
    b(f"  s_nop 4")
    PK = 56
    for e in range(2):
        for i in range(4):
            b(f"  v_cvt_pk_bf16_f32 v{PK+4*e+i}, v{D+4*i+2*e}, v{D+4*i+2*e+1}")
    b(f"  ds_write_b128 v3, {vr(PK,4)}")
    b(f"  ds_write_b128 v3, {vr(PK+4,4)} offset:2048")
    b(f"  s_waitcnt lgkmcnt(0)")
    b(f"  s_barrier")
    b(f"  v_lshlrev_b32 v5, 8, v9")
    b(f"  v_lshl_add_u32 v5, v8, 4, v5")
    b(f"  s_lshl_b32 s{S_T+1}, s{S_W}, 11")
    b(f"  s_add_u32 s{S_T+1}, s{S_T+1}, {L3_EX}")
    b(f"  v_add_u32 v5, s{S_T+1}, v5")
    AU = 32
    b(f"  ds_read_b128 {vr(AU,4)}, v5")
    b(f"  ds_read_b128 {vr(AU+4,4)}, v5 offset:1024")
    b(f"  s_waitcnt lgkmcnt(0)")
    b(f"  v_readlane_b32 s{S_T+4}, v{AU}, 0")
    b(f"  v_writelane_b32 v{AU}, 0, 0")
    b(f"  s_nop 1")
    b(f"  s_lshl_b32 s{S_T+4}, s{S_T+4}, 16")
    TT = 160
    for u in range(2):
        for v in range(2):
            for c in range(2):
                d = TT + ((u * 2 + v) * 2 + c) * 4
                b(f"  {MF32} {vr(d,4)}, {vr(AU+4*u,4)}, {vr(M3+4*(2*v+c),4)}, 0")
    CI = 60
    b(f"  v_mov_b32 v{CI}, s{S_T+4}")
    b(f"  v_xor_b32 v{CI+1}, 0x80000000, v{CI}")
    b(f"  v_mov_b32 v{CI+2}, v{CI}")
    b(f"  v_mov_b32 v{CI+3}, v{CI+1}")
    b(f"  s_nop 1")
    A2 = 64; O = 40; W = 80
    for u in range(2):
        for v in range(2):
            t = TT + ((u * 2 + v) * 2) * 4
            tw = TW + ((u * 2 + v) * 2) * 4
            cmul_pk(b, O, O + 4, t, t + 4, tw, tw + 4, W, True)
            for r in range(4):
                b(f"  v_cvt_pk_bf16_f32 v{A2+(u*2+v)*4+r}, v{O+r}, v{O+4+r}")
    Y = 160
    b(f"  s_nop 1")
    for z in range(2):
        for v in range(2):
            d = Y + (z * 2 + v) * 4
            b(f"  {MF32} {vr(d,4)}, {vr(A2+(0*2+v)*4,4)}, {vr(M4+(0*2+z)*4,4)}, {vr(CI,4)}")
    for z in range(2):
        for v in range(2):
            d = Y + (z * 2 + v) * 4
            b(f"  {MF32} {vr(d,4)}, {vr(A2+(1*2+v)*4,4)}, {vr(M4+(1*2+z)*4,4)}, {vr(d,4)}")
    b(f"  s_nop 7")
    X = 40; HP = 32
    stamp(b, "p3 ifft done")
    for z in range(2):
        for dd in range(4):
            y0 = Y + z * 8 + 2 * dd
            xd = XR + 4 * z + dd
            t = 64 + 4 * (dd % 2)
            b(f"  v_cvt_pk_bf16_f32 v{t}, v{y0}, v{y0+1}")
            b(f"  v_lshlrev_b32 v{t+1}, 16, v{xd}")
            b(f"  v_and_b32 v{t+2}, 0xffff0000, v{xd}")
            b(f"  v_and_b32 v{t+3}, 0xffff0000, v{t}")
            b(f"  v_lshlrev_b32 v{t}, 16, v{t}")
            b(f"  v_add_f32 v{t+1}, v{t+1}, v{t}")
            b(f"  v_add_f32 v{t+2}, v{t+2}, v{t+3}")
            b(f"  v_cvt_pk_bf16_f32 v{HP+4*z+dd}, v{t+1}, v{t+2}")
    for z in range(2):
        b(f"  buffer_store_dwordx4 {vr(HP+4*z,4)}, v4, s[{SRD_C}:{SRD_C+3}], s63 offen offset:{1024*z}{SF}")
    for i in range(8):
        b(f"  v_lshlrev_b32 v{X+2*i}, 16, v{HP+i}")
        b(f"  v_and_b32 v{X+2*i+1}, 0xffff0000, v{HP+i}")
    layernorm16(b, X, 64, S_T+5, S_T+6)
    LP = 72
    stamp(b, "p3 ln done")
    for i in range(8):
        b(f"  v_cvt_pk_bf16_f32 v{LP+i}, v{X+2*i}, v{X+2*i+1}")
    b(f"  v_mul_u32_u24 v3, 80, v8")
    b(f"  v_lshl_add_u32 v3, v9, 4, v3")
    b(f"  s_mul_i32 s{S_T+1}, s{S_W}, {L3_RS}")
    b(f"  s_add_u32 s{S_T+1}, s{S_T+1}, {L3_LN}")
    b(f"  v_add_u32 v3, s{S_T+1}, v3")
    for z in range(2):
        b(f"  ds_write_b128 v3, {vr(LP+4*z,4)} offset:{z*16*80}")
    b(f"  s_waitcnt lgkmcnt(0)")
    b(f"  s_barrier")
    b(f"  v_bfe_u32 v10, v7, 2, 2")
    b(f"  v_mul_u32_u24 v10, {L3_RS}, v10")
    b(f"  v_lshrrev_b32 v11, 5, v7")
    b(f"  v_mul_u32_u24 v12, 80, v11")
    b(f"  v_add_u32 v10, v10, v12")
    b(f"  v_and_b32 v12, 1, v7")
    b(f"  v_lshl_add_u32 v10, v12, 5, v10")
    b(f"  v_bfe_u32 v12, v7, 4, 1")
    b(f"  v_lshl_add_u32 v10, v12, 4, v10")
    b(f"  v_bfe_u32 v12, v7, 1, 1")
    b(f"  v_lshl_add_u32 v10, v12, 3, v10")
    b(f"  s_mul_i32 s{S_T+1}, s{S_W}, {4*80}")
    b(f"  s_add_u32 s{S_T+1}, s{S_T+1}, {L3_LN}")
    b(f"  v_add_u32 v10, s{S_T+1}, v10")
    for ps in range(2):
        b(f"  ds_read_b64_tr_b16 {vr(32+4*ps,2)}, v10 offset:{ps*160}")
        b(f"  ds_read_b64_tr_b16 {vr(34+4*ps,2)}, v10 offset:{ps*160 + 4*L3_RS}")
    b(f"  v_lshlrev_b32 v11, 17, v11")
    b(f"  v_and_b32 v12, 31, v7")
    b(f"  v_lshl_add_u32 v11, v12, 4, v11")
    b(f"  s_lshl_b32 s{S_T+1}, s{S_W}, 19")
    b(f"  s_lshl_b32 s{S_T+2}, s2, 9")
    b(f"  s_add_u32 s{S_T+1}, s{S_T+1}, s{S_T+2}")
    b(f"  s_add_u32 s{S_T+2}, s{S_T+1}, {2*131072}")
    b(f"  s_waitcnt lgkmcnt(2)")
    b(f"  buffer_store_dwordx4 v[32:35], v11, s[{SRD_D}:{SRD_D+3}], s{S_T+1} offen{SF}")
    b(f"  s_waitcnt lgkmcnt(0)")
    b(f"  buffer_store_dwordx4 v[36:39], v11, s[{SRD_D}:{SRD_D+3}], s{S_T+2} offen{SF}")
    stamp(b, "p3 stores issued")
    b(f"  s_and_b32 s{S_T+8}, s2, 15")
    arrive(b, 2, S_T + 8, label="x3")
    srd(b, SRD_T, P_W1, W1B)
    b(f"  s_cmp_lt_u32 s{S_W}, 4")
    b(f"  s_cbranch_scc1 p3_nodma")
    b(f"  s_cmp_eq_u32 s62, 0")
    b(f"  s_cbranch_scc1 p3_nodma")
    for n in range(2): loader_issue(b, V_LO, W1F())
    b.label("p3_nodma")

def gemm_core(b, c, pre, after_setup, after_prologue=None):
    NB, NS = c.NB, c.NS
    acc = lambda nb: V_ACC + nb * 16
    VT = V_ACC + NB * 16
    VPR = VT + 32
    c.VT, c.VPR = VT, VPR
    c.vend = VPR + 4 * PR
    tf = lambda q: VT + (q % 8) * 4
    pr = lambda j: VPR + (j % PR) * 4
    FPI = 64
    KPI = FPI // NB
    def tread(q):
        ql = q % FPI
        lslot, within = ql // 16, ql % 16
        ks, nb = within // NB, within % NB
        off = lslot * STAGE + ks * 16 * c.rowb
        b(f"  ds_read_b64_tr_b16 {vr(tf(q),2)}, v{V_T+nb} offset:{off}")
        b(f"  ds_read_b64_tr_b16 {vr(tf(q)+2,2)}, v{V_T+nb} offset:{off+4*c.rowb}")
    def pload(j):
        b(f"  buffer_load_dwordx4 {vr(pr(j),4)}, v{V_P}, s[{SRD_P}:{SRD_P+3}], s{S_POFF} offen offset:{(j%4)*1024}{LF}")
        if j % 4 == 3: b(f"  s_add_u32 s{S_POFF}, s{S_POFF}, 4096")
    def mfma(q):
        nb = q % NB; j = q // NB; a = acc(nb)
        if c.name == "g1":
            b(f"  v_mfma_f32_32x32x16_bf16 {vr(a,16)}, {vr(tf(q),4)}, {vr(pr(j),4)}, {vr(a,16)}")
        else:
            b(f"  v_mfma_f32_32x32x16_bf16 {vr(a,16)}, {vr(pr(j),4)}, {vr(tf(q),4)}, {vr(a,16)}")
    b(f"  s_mov_b32 s{S_POFF}, 0")
    b(f"  s_mov_b32 s{S_DELTA}, {4*STAGE}")
    b(f"  s_mov_b32 s{S_IT}, {NS//4 - 1}")
    after_setup()
    for j in range(PR - 1): pload(j)
    if after_prologue: after_prologue()
    b("  s_barrier")
    for q in range(DQ): tread(q)
    def body(last):
        for q in range(FPI):
            j = q // NB
            qn = q + DQ
            do_read = not (last and qn >= FPI)
            do_pload = False
            if q % NB == 0:
                rem = KPI - 1 - j
                if (not last) or (j + PR - 1 < KPI):
                    b(f"  s_waitcnt vmcnt({PR-2})")
                    do_pload = True
                else:
                    b(f"  s_waitcnt vmcnt({min(PR-2, rem)})")
            if do_read and qn % 16 == 0:
                b("  s_barrier")
            if do_read and qn == FPI:
                for i in range(NB): b(f"  v_add_u32 v{V_T+i}, s{S_DELTA}, v{V_T+i}")
                b(f"  s_sub_u32 s{S_DELTA}, 0, s{S_DELTA}")
            if q % 2 == 0:
                left = min(DQ - 2, FPI - 2 - q) if last else DQ - 2
                b(f"  s_waitcnt lgkmcnt({2*left})")
            mfma(q)
            if do_pload: pload(j + PR - 1)
            if do_read: tread(qn)
    b.label(f"{pre}_loop")
    body(False)
    b(f"  s_sub_u32 s{S_IT}, s{S_IT}, 1")
    b(f"  s_cmp_lg_u32 s{S_IT}, 0")
    b(f"  s_cbranch_scc1 {pre}_loop")
    body(True)

def idle_w1(b):
    srd(b, SRD_PF, P_W1, W1B)
    b(f"  s_and_b32 s51, s50, 7")
    b(f"  s_mul_i32 s51, s51, {256*7168}")
    b(f"  s_lshr_b32 s52, s50, 3")
    b(f"  s_mul_i32 s52, s52, {4*7168}")
    b(f"  s_add_u32 s51, s51, s52")
    b(f"  s_add_u32 s51, s51, {128*7168}")
    b(f"  s_mov_b32 s52, 7")
    b.label("pf_w1b")
    for i in range(4): b(f"  buffer_load_dwordx4 {vr(V_DUMMY,4)}, v29, s[{SRD_PF}:{SRD_PF+3}], s51 offen offset:{1024*i}")
    b(f"  s_add_u32 s51, s51, 4096")
    b(f"  s_waitcnt vmcnt(4)")
    b(f"  s_sub_u32 s52, s52, 1")
    b(f"  s_cmp_lg_u32 s52, 0")
    b(f"  s_cbranch_scc1 pf_w1b")

def idle_w2(b):
    srd(b, SRD_PF, P_W2, W1B)
    b(f"  s_mul_i32 s51, s50, {W1B // 256}")
    b(f"  s_mov_b32 s52, 14")
    b.label("pf_w2")
    for i in range(4): b(f"  buffer_load_dwordx4 {vr(V_DUMMY,4)}, v29, s[{SRD_PF}:{SRD_PF+3}], s51 offen offset:{1024*i}")
    b(f"  s_add_u32 s51, s51, 4096")
    b(f"  s_waitcnt vmcnt(4)")
    b(f"  s_sub_u32 s52, s52, 1")
    b(f"  s_cmp_lg_u32 s52, 0")
    b(f"  s_cbranch_scc1 pf_w2")
    b(f"  s_waitcnt vmcnt(0)")

def g1(b):
    c = g1_cfg()
    b(f"  s_cmp_eq_u32 s62, 0")
    b(f"  s_cbranch_scc1 g1_inactive")
    srd(b, SRD_P, P_WS, 4 << 20, WS_LN2)
    srd(b, SRD_T, P_W1, W1B)
    srd(b, SRD_O, P_WS, U_BYTES, WS_U)
    srd(b, SRD_X, P_B1, 3584 * 2)
    b(f"  s_cmp_ge_u32 s{S_W}, 4")
    b(f"  s_cbranch_scc1 g1_loader")
    lane_geom(b)
    b(f"  s_lshl_b32 s{S_TMP}, s61, 2")
    b(f"  s_add_u32 s{S_TMP}, s{S_TMP}, s{S_W}            ; dblk")
    b(f"  s_lshl_b32 s{S_TMP+2}, s{S_TMP}, 17")
    b(f"  v_lshlrev_b32 v10, 4, v7")
    b(f"  v_add_u32 v{V_P}, s{S_TMP+2}, v10")
    b(f"  s_lshl_b32 s{S_TMP+1}, s60, 8       ; f0*2")
    b(f"  v_lshlrev_b32 v11, 3, v9")
    b(f"  v_add_u32 v11, s{S_TMP+1}, v11")
    BV = 192
    for fb in range(4):
        for i in range(4):
            b(f"  buffer_load_dwordx2 {vr(BV+2*(4*fb+i),2)}, v11, s[{SRD_X}:{SRD_X+3}], 0 offen offset:{64*fb+16*i}")
    b(f"  v_lshl_add_u32 v20, v9, 3, v18")
    b(f"  v_lshlrev_b32 v20, 8, v20")
    b(f"  v_lshl_add_u32 v20, v18, 6, v20")
    b(f"  v_lshl_add_u32 v20, v19, 5, v20")
    b(f"  v_lshl_add_u32 v{V_T}, v22, 3, v20")
    for fb in range(1, 4):
        b(f"  v_xor_b32 v{V_T+fb}, {64*fb}, v{V_T}")
    b(f"  s_mul_i32 s{S_TMP+2}, s{S_TMP}, 229376")
    b(f"  s_lshl_b32 s{S_TMP+1}, s60, 13")
    b(f"  s_add_u32 s{S_TMP+1}, s{S_TMP+1}, s{S_TMP+2}")
    b(f"  v_add_u32 v28, s{S_TMP+1}, v10")
    b(f"  s_waitcnt vmcnt(0)")
    for fb in range(4):
        for i in range(4):
            bv = BV + 2 * (4 * fb + i); a = V_ACC + fb * 16 + 4 * i
            b(f"  v_lshlrev_b32 v{a}, 16, v{bv}")
            b(f"  v_and_b32 v{a+1}, 0xffff0000, v{bv}")
            b(f"  v_lshlrev_b32 v{a+2}, 16, v{bv+1}")
            b(f"  v_and_b32 v{a+3}, 0xffff0000, v{bv+1}")
    def w3():
        wait(b, 2, 16, "x3c")
        stamp(b, "x3 released")
        stamp(b, "c:g1 start")
    gemm_core(b, c, "g1", w3)
    stamp(b, "c:g1 end")
    stamp(b, "g1 main done")
    K1 = -2.0 * 0.7978845608028654 * 1.4426950408889634
    K2 = K1 * 0.044715
    T = c.VPR
    b(f"  v_mov_b32 v{T}, {hex(f2u(K1))}")
    b(f"  v_mov_b32 v{T+1}, {hex(f2u(K1))}")
    b(f"  v_mov_b32 v{T+2}, {hex(f2u(K2))}")
    b(f"  v_mov_b32 v{T+3}, {hex(f2u(K2))}")
    b(f"  s_nop 7")
    W = T + 8
    for fb in range(4):
        a = V_ACC + fb * 16; t = W; o = W + 16 + 8 * (fb % 2)
        for h in range(0, 16, 2): b(f"  v_pk_mul_f32 {vr(t+h,2)}, {vr(a+h,2)}, {vr(a+h,2)}")
        for h in range(0, 16, 2): b(f"  v_pk_fma_f32 {vr(t+h,2)}, {vr(t+h,2)}, {vr(T+2,2)}, {vr(T,2)}")
        for h in range(0, 16, 2): b(f"  v_pk_mul_f32 {vr(t+h,2)}, {vr(t+h,2)}, {vr(a+h,2)}")
        for r in range(16): b(f"  v_exp_f32 v{t+r}, v{t+r}")
        for h in range(0, 16, 2): b(f"  v_pk_add_f32 {vr(t+h,2)}, {vr(t+h,2)}, 1.0 op_sel_hi:[1,0]")
        for r in range(16): b(f"  v_rcp_f32 v{t+r}, v{t+r}")
        for h in range(0, 16, 2): b(f"  v_pk_mul_f32 {vr(t+h,2)}, {vr(a+h,2)}, {vr(t+h,2)}")
        for i in range(4):
            b(f"  v_cvt_pk_bf16_f32 v{o+2*i}, v{t+4*i}, v{t+4*i+1}")
            b(f"  v_cvt_pk_bf16_f32 v{o+2*i+1}, v{t+4*i+2}, v{t+4*i+3}")
        for ip in range(2):
            oo = o + 4 * ip
            b(f"  s_mov_b32 s{S_TMP+1}, {(2*fb+ip)*1024}")
            b(f"  s_nop 0")
            b(f"  v_permlane32_swap_b32 v{oo}, v{oo+2}")
            b(f"  v_permlane32_swap_b32 v{oo+1}, v{oo+3}")
            b(f"  buffer_store_dwordx4 {vr(oo,4)}, v28, s[{SRD_O}:{SRD_O+3}], s{S_TMP+1} offen{SF}")
    stamp(b, "g1 stores issued")
    b(f"  s_waitcnt vmcnt(0)")
    b(f"  s_branch g1_join")
    b.label("g1_loader")
    b(f"  s_sub_u32 s50, s{S_W}, 4")
    b(f"  s_lshl_b32 s49, s50, 10")
    b(f"  s_add_u32 s{S_N+1}, s49, {R*STAGE}")
    b(f"  s_barrier")
    for n in range(R - 4): loader_issue(b, V_LO, W1F())
    loader_loop(b, c.NS, "g1", W1F())
    stamp(b, "g1 main done")
    g2_prologue_loader(b)
    stamp(b, "g1 stores issued")
    b.label("g1_join")
    arrive(b, 3, 61, label="x4", drained=True)
    b(f"  s_branch g2_start")
    b.label("g1_inactive")
    if "nopf" not in OPT:
        b(f"  s_sub_u32 s50, s2, 224")
        b(f"  s_lshl_b32 s50, s50, 3")
        b(f"  s_add_u32 s50, s50, s{S_W}")
        b(f"  v_lshlrev_b32 v29, 4, v7")
        idle_w2(b)
    b(f"  s_cmp_lt_u32 s{S_W}, 4")
    b(f"  s_cbranch_scc1 g2_start_inactive")
    g2_prologue_loader(b)
    b.label("g2_start_inactive")
    return c

def g2_prologue_loader(b):
    g2_ids(b)
    srd(b, SRD_T, P_W2, W1B)
    g2_loader_addr(b)
    loader_init(b, 128 * 4096)
    for n in range(2): loader_issue(b, V_LO, W2F())

def g2(b):
    c = g2_cfg()
    b.label("g2_start")
    g2_ids(b)
    srd(b, SRD_P, P_WS, U_BYTES, WS_U)
    srd(b, SRD_O, P_OUT, 4 << 20)
    srd(b, SRD_X, P_B2, 2048 * 2)
    srd(b, SRD_Y, P_WS, 4 << 20, WS_H)
    b(f"  s_cmp_ge_u32 s{S_W}, 4")
    b(f"  s_cbranch_scc1 g2_loader")
    lane_geom(b)
    b(f"  s_lshl_b32 s{S_TMP}, s{S_TILE_A}, 2")
    b(f"  s_add_u32 s{S_TMP}, s{S_TMP}, s{S_W}        ; dblk")
    b(f"  s_mul_i32 s{S_TMP+2}, s{S_TMP}, 229376")
    b(f"  v_lshlrev_b32 v10, 4, v7")
    b(f"  v_add_u32 v{V_P}, s{S_TMP+2}, v10")
    b(f"  s_lshl_b32 s{S_TMP+1}, s{S_TILE_B}, 6       ; s0")
    b(f"  v_add_u32 v11, s{S_TMP+1}, v8              ; s0 + s'")
    b(f"  v_lshlrev_b32 v16, 1, v11")
    for sb in range(2):
        b(f"  buffer_load_ushort v{12+sb}, v16, s[{SRD_X}:{SRD_X+3}], 0 offen offset:{64*sb}")
    b(f"  v_lshlrev_b32 v17, 11, v11")
    b(f"  v_lshl_add_u32 v17, v9, 5, v17")
    b(f"  s_lshl_b32 s{S_TMP+2}, s{S_TMP}, 6")
    b(f"  v_add_u32 v28, s{S_TMP+2}, v17")
    HV = 160
    b(f"  v_lshl_add_u32 v20, v9, 3, v18            ; row")
    b(f"  v_bfe_u32 v21, v18, 1, 1")
    b(f"  v_lshlrev_b32 v20, 7, v20")
    b(f"  v_lshl_add_u32 v20, v21, 6, v20")
    b(f"  v_lshl_add_u32 v20, v19, 5, v20")
    b(f"  v_lshl_add_u32 v{V_T}, v22, 3, v20")
    b(f"  v_xor_b32 v{V_T+1}, 64, v{V_T}")
    for i in range(32): b(f"  v_mov_b32 v{V_ACC+i}, 0")
    def w4():
        wait(b, 3, 28, "x4c", single_sreg=S_TILE_A)
        stamp(b, "x4 released")
        stamp(b, "c:g2 start")
    def hloads():
        for sb in range(2):
            b(f"  s_mov_b32 s{S_TMP+1}, {sb*65536}")
            b(f"  buffer_load_dwordx4 {vr(HV+8*sb,4)}, v28, s[{SRD_Y}:{SRD_Y+3}], s{S_TMP+1} offen{LF}")
            b(f"  buffer_load_dwordx4 {vr(HV+8*sb+4,4)}, v28, s[{SRD_Y}:{SRD_Y+3}], s{S_TMP+1} offen offset:16{LF}")
    gemm_core(b, c, "g2", w4, hloads)
    stamp(b, "c:g2 end")
    stamp(b, "g2 main done")
    T = c.VT
    b(f"  s_mov_b32 s{S_TMP}, 0xffff0000")
    for sb in range(2):
        b(f"  v_lshlrev_b32 v{12+sb}, 16, v{12+sb}")
    b(f"  s_nop 9")
    for sb in range(2):
        for half in range(2):
            o = T + 4 * ((sb * 2 + half) % 2)
            for dd in range(4):
                a = V_ACC + sb * 16 + half * 8 + 2 * dd
                hv = HV + 8 * sb + 4 * half + dd
                t0 = T + 8 + 4 * dd
                b(f"  v_cvt_pk_bf16_f32 v{t0}, v{a}, v{a+1}")
                b(f"  v_and_b32 v{t0+1}, s{S_TMP}, v{t0}")
                b(f"  v_lshlrev_b32 v{t0}, 16, v{t0}")
                b(f"  v_add_f32 v{t0}, v{t0}, v{12+sb}")
                b(f"  v_add_f32 v{t0+1}, v{t0+1}, v{12+sb}")
                b(f"  v_cvt_pk_bf16_f32 v{t0}, v{t0}, v{t0+1}")
                b(f"  v_and_b32 v{t0+1}, s{S_TMP}, v{t0}")
                b(f"  v_lshlrev_b32 v{t0}, 16, v{t0}")
                b(f"  v_lshlrev_b32 v{t0+2}, 16, v{hv}")
                b(f"  v_and_b32 v{t0+3}, s{S_TMP}, v{hv}")
                b(f"  v_add_f32 v{t0}, v{t0}, v{t0+2}")
                b(f"  v_add_f32 v{t0+1}, v{t0+1}, v{t0+3}")
                b(f"  v_cvt_pk_bf16_f32 v{o+dd}, v{t0}, v{t0+1}")
            b(f"  s_mov_b32 s{S_TMP+1}, {sb*65536}")
            b(f"  buffer_store_dwordx4 {vr(o,4)}, v28, s[{SRD_O}:{SRD_O+3}], s{S_TMP+1} offen offset:{16*half}")
    stamp(b, "g2 stores issued")
    b(f"  s_branch g2_done")
    b.label("g2_loader")
    b(f"  s_barrier")
    for n in range(R - 4): loader_issue(b, V_LO, W2F())
    loader_loop(b, c.NS, "g2", W2F())
    b.label("g2_done")

def build():
    NAME = "sequential_preLN__spectral_gfnet__mixer_token_mlp__prompt"
    hdr = open(f"cdna_kernels/{NAME}.s.ref").read().split("; Override launch")[0]
    K = NAME + "_kernel"
    b = B()
    b(hdr.rstrip("\n"))
    b(f"; @launch grid=(256,1,1) block=(512,1,1) lds={LDS_TOTAL}")
    b('.amdgcn_target "amdgcn-amd-amdhsa--gfx950"\n.text')
    b(f".globl {K}\n.p2align 8\n.type {K},@function\n{K}:")
    b(f"  s_cmp_ge_u32 s2, 256\n  s_cbranch_scc1 k_exit")
    if "stamp" in OPT: b("  v_mov_b32 v231, 0")
    stamp(b, "entry")
    b(f"  s_load_dwordx4 s[{P_X}:{P_X+3}], s[0:1], 0        ; x, w_r")
    b(f"  s_load_dwordx2 s[{P_WI}:{P_WI+1}], s[0:1], 16")
    b(f"  s_load_dwordx2 s[{P_W1}:{P_W1+1}], s[0:1], 32")
    b(f"  s_load_dwordx4 s[{P_B1}:{P_B1+3}], s[0:1], 40     ; b1, w2")
    b(f"  s_load_dwordx4 s[{P_B2}:{P_B2+3}], s[0:1], 56     ; b2, out")
    b(f"  s_load_dwordx4 s[{P_DBG}:{P_DBG+3}], s[0:1], 72")
    b(f"  v_lshrrev_b32 v6, 6, v0")
    b(f"  v_and_b32 v7, 63, v0        ; lane")
    b(f"  v_readfirstlane_b32 s{S_W}, v6")
    b(f"  v_and_b32 v8, 15, v7          ; c")
    b(f"  v_lshrrev_b32 v9, 4, v7       ; g")
    b(f"  s_waitcnt lgkmcnt(0)")
    srd(b, SRD_CNT, P_WS, 65536, WS_CNT)
    p1(b)
    p2_setup(b)
    wait(b, 0, 16, "x1c")
    stamp(b, "x1 released")
    p2_main(b)
    p3_setup(b)
    wait(b, 1, 16, "x2c")
    stamp(b, "x2 released")
    p3_main(b)
    g1(b)
    g2(b)
    b(f"  s_waitcnt vmcnt(0)")
    stamp(b, "end")
    stamp_flush(b)
    b("k_exit:\n  s_endpgm")
    b(kd(K, 240, sgpr=102))
    return b.text()

if __name__ == "__main__":
    out = sys.argv[1]
    OPT.update(sys.argv[2:])
    for o in sys.argv[2:]:
        if o.startswith("pfn="): PFN[:] = [int(c) for c in o[4:].split(",")]
    gemm.OPT.update(sys.argv[2:])
    t = build()
    open(out, "w").write(t)
    rep = check_text(t)
    print("\n".join(rep) if rep else "no hazards found", "| stamps:", nstamp[0])
```

```python
import sys
from asmlib import *
import gemm, fft
from gemm import (srd, f2u, WS_X1, WS_X2, WS_H, WS_LN2, WS_U, U_BYTES, S_W, R, STAGE, PR, DQ,
                  V_P, V_T, V_ACC, S_POFF, S_IT, S_DELTA, SRD_P, SRD_T, SRD_O, SRD_X, SRD_Y, S_TILE_A, S_TILE_B, S_TMP,
                  g1_cfg, g2_cfg, lane_geom)
from fft import sincos, wave_reduce, ln_finish, layernorm16, cmul_pk, gmat, MF32, MF16

OPT = set()
DELTA = 0.0
PFN = [4, 3, 4, 3]
WS_CNT = 30 << 20
WS_STAMP = 31 << 20
W1B = 2048 * 3584 * 2
WB = 2048 * 1026

P_X, P_WR, P_WI, P_W1, P_B1, P_W2, P_B2, P_OUT, P_DBG, P_WS = 64, 66, 68, 70, 72, 74, 76, 78, 80, 82
SRD_CNT = 12
S_T = 46
SRD_A, SRD_B, SRD_C, SRD_D = 24, 28, 32, 36
SRD_PF = 56
S_STAMP = 84
SF = " sc1"
LF = ""

L1_M1, L1_M2, L1_TW, L1_EX = 0, 4096, 8192, 16384
L2_F = 32768; L2_X = L2_F + 2048; L2_W = L2_X + 16 * 1040
L3_M3 = 98304; L3_M4 = L3_M3 + 4096; L3_TW = L3_M3 + 8192; L3_EX = L3_M3 + 16384
L3_LN = L3_EX + 16384; L3_RS = 2624
LDS_TOTAL = L3_LN + 8 * L3_RS
assert LDS_TOTAL <= 163840

STAMPS = ["entry", "p1 x landed", "p1 stores issued", "p1 arrived", "x1 released", "p2 x landed", "p2 stores issued",
          "x2 released", "p3 x2 landed", "p3 stores issued", "x3 released", "g1 main done", "g1 stores issued", "x4 released",
          "g2 main done", "g2 stores issued", "end", "x1 drained", "x2 drained", "x3 drained", "x4 drained", "p1 tables done", "p1 ln done", "p1 fft done", "p3 ifft done", "p3 ln done", "c:g1 start", "c:g1 end", "c:g2 start", "c:g2 end"]
nstamp = [len(STAMPS)]
W1F = lambda: " nt" if "ntw1" in OPT else ""
W2F = lambda: " nt" if "ntw2" in OPT else ""
XF = lambda: " nt" if "ntx" in OPT else ""
def stamp(b, name):
    if "stamp" not in OPT: return
    i = STAMPS.index(name)
    op = "s_memtime" if name.startswith("c:") else "s_memrealtime"
    b(f"  {op} s[{S_STAMP}:{S_STAMP+1}]   ; stamp {i}: {name}")
    b(f"  s_waitcnt lgkmcnt(0)")
    b(f"  v_writelane_b32 v231, s{S_STAMP}, {i}")

def stamp_flush(b):
    if "stamp" not in OPT: return
    if "dbgtime" in OPT:
        b(f"  s_cmp_lg_u32 s2, 100")
        b(f"  s_cbranch_scc1 dbg_skip")
        b(f"  s_cmp_lg_u32 s{S_W}, 0")
        b(f"  s_cbranch_scc1 dbg_skip")
        srd(b, 24, P_DBG, 256)
        b(f"  v_readlane_b32 s46, v231, 0")
        b(f"  s_nop 1")
        b(f"  v_subrev_u32 v3, s46, v231")
        b(f"  v_lshlrev_b32 v2, 2, v7")
        b(f"  v_subrev_u32 v2, 4, v2")
        b(f"  s_mov_b64 s[48:49], exec")
        b(f"  s_mov_b64 exec, 0x1fffe")
        b(f"  buffer_store_dword v3, v2, s[24:27], 0 offen")
        b(f"  s_mov_b64 exec, s[48:49]")
        b.label("dbg_skip")
        return
    srd(b, 24, P_WS, 1 << 20, WS_STAMP)
    b(f"  s_lshl_b32 s46, s2, 3")
    b(f"  s_add_u32 s46, s46, s{S_W}")
    b(f"  s_lshl_b32 s46, s46, 7            ; (wg*8+wave)*128")
    b(f"  v_lshlrev_b32 v2, 2, v7")
    b(f"  s_mov_b64 s[48:49], exec")
    b(f"  s_mov_b64 exec, 0xffffffff")
    b(f"  buffer_store_dword v231, v2, s[24:27], s46 offen")
    b(f"  s_mov_b64 exec, s[48:49]")

def arrive(b, bar, shard_sreg, first=False, label="", drained=False):
    if not drained: b(f"  s_waitcnt vmcnt(0)")
    stamp(b, f"x{bar+1} drained")
    b(f"  s_barrier")
    b(f"  s_cmp_lg_u32 s{S_W}, 0")
    b(f"  s_cbranch_scc1 {label}_arr_skip")
    if first:
        b(f"  s_mov_b32 s11, 100000")
        b.label(f"{label}_rdy")
        b(f"  v_readfirstlane_b32 s10, v27")
        b(f"  s_nop 3")
        b(f"  s_cmp_lg_u32 s10, 0")
        b(f"  s_cbranch_scc1 {label}_rdy_ok")
        b(f"  buffer_load_dword v27, v26, s[{SRD_PF}:{SRD_PF+3}], 0 offen sc1")
        b(f"  s_waitcnt vmcnt(0)")
        b(f"  s_sub_u32 s11, s11, 1")
        b(f"  s_cmp_lg_u32 s11, 0")
        b(f"  s_cbranch_scc1 {label}_rdy")
        b.label(f"{label}_rdy_ok")
    b(f"  s_lshl_b32 s10, s{shard_sreg}, 8")
    b(f"  s_add_u32 s10, s10, {bar*4096}")
    b(f"  v_mov_b32 v228, s10")
    b(f"  v_mov_b32 v229, 1")
    b(f"  s_mov_b64 s[16:17], exec")
    b(f"  s_mov_b64 exec, 1")
    b(f"  buffer_atomic_add v229, v228, s[{SRD_CNT}:{SRD_CNT+3}], 0 offen sc1")
    b(f"  s_mov_b64 exec, s[16:17]")
    b.label(f"{label}_arr_skip")

def wait(b, bar, target, label, single_sreg=None):
    b(f"  s_cmp_lg_u32 s{S_W}, 0")
    b(f"  s_cbranch_scc1 {label}_w_skip")
    if single_sreg is None:
        b(f"  v_and_b32 v228, 15, v7")
        b(f"  v_lshlrev_b32 v228, 8, v228")
        b(f"  v_add_u32 v228, {bar*4096}, v228")
    else:
        b(f"  s_lshl_b32 s10, s{single_sreg}, 8")
        b(f"  s_add_u32 s10, s10, {bar*4096}")
        b(f"  v_mov_b32 v228, s10")
    b(f"  s_mov_b32 s11, 200000")
    b.label(f"{label}_poll")
    b(f"  buffer_load_dword v229, v228, s[{SRD_CNT}:{SRD_CNT+3}], 0 offen sc1")
    b(f"  s_waitcnt vmcnt(0)")
    b(f"  v_cmp_le_u32 vcc, {target}, v229")
    b(f"  s_nop 1")
    b(f"  s_cmp_eq_u64 vcc, exec")
    b(f"  s_cbranch_scc1 {label}_w_skip")
    b(f"  s_sub_u32 s11, s11, 1")
    b(f"  s_cmp_lg_u32 s11, 0")
    b(f"  s_cbranch_scc1 {label}_poll")
    b.label(f"{label}_w_skip")
    b(f"  s_barrier")

def prefetch(b, ptr_pair, nbytes, start, length, who_scale, who_sreg, vaddr, vdst, stmp, paced=False):
    chunk = -(-length // who_scale)
    n_per_wave = -(-chunk // (512 * 128))
    stride = -(-chunk // (512 * n_per_wave))
    stride = (stride + 3) // 4 * 4
    per_instr = 64 * stride
    srd(b, SRD_PF, ptr_pair, nbytes)
    b(f"  s_mul_i32 s{stmp}, s{who_sreg}, {chunk}")
    b(f"  s_mul_i32 s{stmp+1}, s{S_W}, {n_per_wave*per_instr}")
    b(f"  s_add_u32 s{stmp}, s{stmp}, s{stmp+1}")
    if start: b(f"  s_add_u32 s{stmp}, s{stmp}, {start}")
    b(f"  v_mul_u32_u24 v{vaddr}, {stride}, v7")
    for i in range(n_per_wave):
        b(f"  buffer_load_dword v{vdst}, v{vaddr}, s[{SRD_PF}:{SRD_PF+3}], s{stmp} offen")
        if i + 1 < n_per_wave: b(f"  s_add_u32 s{stmp}, s{stmp}, {per_instr}")
        if paced: b(f"  s_waitcnt vmcnt(0)")
    return n_per_wave

V_DUMMY = 232
def pf_wide(b, ptr_pair, nbytes, s_base, n, wave_lo, wave_hi, label):
    b(f"  s_cmp_lt_u32 s{S_W}, {wave_lo}")
    b(f"  s_cbranch_scc1 {label}")
    if wave_hi < 8:
        b(f"  s_cmp_ge_u32 s{S_W}, {wave_hi}")
        b(f"  s_cbranch_scc1 {label}")
    srd(b, SRD_PF, ptr_pair, nbytes)
    b(f"  s_sub_u32 s{S_T+9}, s{S_W}, {wave_lo}")
    b(f"  s_mul_i32 s{S_T+9}, s{S_T+9}, {n*1024}")
    b(f"  s_add_u32 s{S_T+9}, s{S_T+9}, s{s_base}")
    b(f"  v_lshlrev_b32 v29, 4, v7")
    for i in range(n):
        if i and i % 4 == 0: b(f"  s_add_u32 s{S_T+9}, s{S_T+9}, 4096")
        b(f"  buffer_load_dwordx4 {vr(V_DUMMY,4)}, v29, s[{SRD_PF}:{SRD_PF+3}], s{S_T+9} offen offset:{(i%4)*1024}")
    b.label(label)

def w1_share_base(b, sreg, part):
    b(f"  s_mul_i32 s{sreg}, s2, {W1B // 256}")
    if part: b(f"  s_add_u32 s{sreg}, s{sreg}, {part}")

def w1_first_half_base(b, sreg, part):
    b(f"  s_and_b32 s{sreg}, s2, 7")
    b(f"  s_mul_i32 s{sreg}, s{sreg}, {256*7168}")
    b(f"  s_lshr_b32 s{S_T+9}, s2, 3")
    b(f"  s_mul_i32 s{S_T+9}, s{S_T+9}, {4*7168}")
    b(f"  s_add_u32 s{sreg}, s{sreg}, s{S_T+9}")
    if part: b(f"  s_add_u32 s{sreg}, s{sreg}, {part}")

def p1_tables(b):
    M1, M2, TW = L1_M1, L1_M2, L1_TW
    b(f"  v_and_b32 v10, 255, v0            ; e")
    b(f"  v_lshrrev_b32 v11, 8, v0          ; u")
    b(f"  v_bfe_u32 v12, v10, 2, 4          ; lane&15")
    b(f"  v_lshl_add_u32 v12, v11, 4, v12   ; k1")
    b(f"  v_lshrrev_b32 v13, 6, v10         ; g")
    b(f"  v_and_b32 v14, 3, v10")
    b(f"  v_lshlrev_b32 v13, 3, v13")
    b(f"  v_lshl_add_u32 v13, v14, 1, v13   ; a0 = 8g + 2i")
    b(f"  v_mul_u32_u24 v15, v13, v12       ; a0*k1")
    b(f"  v_add_u32 v16, v15, v12           ; (a0+1)*k1")
    sincos(b, 17, 18, 15, 5, 21)
    sincos(b, 19, 20, 16, 5, 21)
    b(f"  v_lshlrev_b32 v22, 2, v10")
    b(f"  v_lshl_add_u32 v22, v11, 11, v22  ; u*2048 + e*4")
    b(f"  v_cvt_pk_bf16_f32 v23, v17, v19")
    b(f"  v_cvt_pk_bf16_f32 v24, -v18, -v20")
    b(f"  ds_write_b32 v22, v23 offset:{M1}")
    b(f"  ds_write_b32 v22, v24 offset:{M1+1024}")
    sincos(b, 17, 18, 15, 10, 21)
    sincos(b, 19, 20, 16, 10, 21)
    b(f"  ds_write_b32 v22, v17 offset:{TW}")
    b(f"  ds_write_b32 v22, v18 offset:{TW+1024}")
    b(f"  ds_write_b32 v22, v19 offset:{TW+4096}")
    b(f"  ds_write_b32 v22, v20 offset:{TW+4096+1024}")
    b(f"  v_bfe_u32 v12, v10, 2, 4          ; k2")
    b(f"  v_mul_u32_u24 v15, v13, v12")
    b(f"  v_add_u32 v16, v15, v12")
    sincos(b, 17, 18, 15, 5, 21)
    sincos(b, 19, 20, 16, 5, 21)
    b(f"  v_lshlrev_b32 v22, 2, v10")
    b(f"  v_cvt_pk_bf16_f32 v23, v17, v19")
    b(f"  v_cvt_pk_bf16_f32 v24, v18, v20")
    b(f"  v_cvt_pk_bf16_f32 v25, -v18, -v20")
    b(f"  ds_write_b32 v22, v23 offset:{M2}")
    b(f"  ds_write_b32 v22, v24 offset:{M2+1024}")
    b(f"  ds_write_b32 v22, v25 offset:{M2+2048}")

def p1(b):
    srd(b, SRD_A, P_X, 4 << 20)
    srd(b, SRD_B, P_WS, 4 << 20, WS_X1)
    b(f"  s_lshl_b32 s{S_T}, s{S_W}, 8")
    b(f"  s_add_u32 s{S_T}, s{S_T}, s2          ; s")
    b(f"  s_lshl_b32 s{S_T+1}, s{S_T}, 11")
    b(f"  v_lshlrev_b32 v1, 9, v9")
    b(f"  v_lshl_add_u32 v1, v8, 2, v1")
    XD = 32
    for i in range(8):
        b(f"  buffer_load_dword v{XD+i}, v1, s[{SRD_A}:{SRD_A+3}], s{S_T+1} offen offset:{64*i}{XF()}")
    b(f"  s_cmp_ge_u32 s2, 16")
    b(f"  s_cbranch_scc1 p1_noreset")
    b(f"  s_cmp_lg_u32 s{S_W}, 0")
    b(f"  s_cbranch_scc1 p1_noreset")
    b(f"  s_lshl_b32 s{S_T+2}, s2, 8")
    b(f"  v_lshlrev_b32 v2, 12, v7")
    b(f"  v_add_u32 v2, s{S_T+2}, v2")
    b(f"  v_mov_b32 v3, 0")
    b(f"  s_mov_b64 s[48:49], exec")
    b(f"  s_mov_b64 exec, 15")
    b(f"  buffer_store_dword v3, v2, s[{SRD_CNT}:{SRD_CNT+3}], 0 offen sc1")
    b(f"  s_mov_b64 exec, s[48:49]")
    b.label("p1_noreset")
    npf = 0
    p1_tables(b)
    GM = 30
    gmat(b, GM, 2, False, 10)
    b(f"  s_waitcnt lgkmcnt(0)")
    stamp(b, "p1 tables done")
    b(f"  s_barrier")
    npf = 0
    if "nopf" not in OPT:
        b(f"  s_mul_i32 s{S_T+8}, s2, 8208")
        if "ntx" not in OPT:
            pf_wide(b, P_WR, WB, S_T + 8, 3, 0, 3, "pf_p1a")
            pf_wide(b, P_WI, WB, S_T + 8, 3, 0, 3, "pf_p1b")
        if "ntw1" not in OPT and PFN[0]:
            w1_share_base(b, S_T + 8, 0)
            pf_wide(b, P_W1, W1B, S_T + 8, PFN[0], 4, 8, "pf_p1c")
    M1, M2, TW = 96, 112, 128
    b(f"  v_lshlrev_b32 v2, 4, v7")
    for i in range(4): b(f"  ds_read_b128 {vr(M1+4*i,4)}, v2 offset:{L1_M1+1024*i}")
    for i in range(3): b(f"  ds_read_b128 {vr(M2+4*i,4)}, v2 offset:{L1_M2+1024*i}")
    for i in range(8): b(f"  ds_read_b128 {vr(TW+4*i,4)}, v2 offset:{L1_TW+1024*i}")
    X = 40
    if "nopf" not in OPT:
        b(f"  s_cmp_eq_u32 s{S_W}, 3")
        b(f"  s_cbranch_scc1 p1_xw0")
        b(f"  s_cmp_ge_u32 s{S_W}, 4")
        b(f"  s_cbranch_scc1 p1_xw4")
        b(f"  s_waitcnt vmcnt({0 if 'ntx' in OPT else 6})")
        b(f"  s_branch p1_xwd")
        b.label("p1_xw4")
        b(f"  s_waitcnt vmcnt({0 if 'ntw1' in OPT else PFN[0]})")
        b(f"  s_branch p1_xwd")
        b.label("p1_xw0")
    b(f"  s_waitcnt vmcnt(0)")
    if "nopf" not in OPT: b.label("p1_xwd")
    stamp(b, "p1 x landed")
    srd(b, SRD_PF, P_DBG, 256)
    b(f"  s_and_b32 s{S_T+8}, s2, 15")
    b(f"  s_lshl_b32 s{S_T+9}, s{S_T+8}, 2")
    b(f"  s_add_u32 s{S_T+9}, s{S_T+9}, 64")
    b(f"  v_mov_b32 v26, s{S_T+9}")
    b(f"  s_cmp_ge_u32 s2, 16")
    b(f"  s_cbranch_scc1 p1_noflag")
    b(f"  s_cmp_lg_u32 s{S_W}, 0")
    b(f"  s_cbranch_scc1 p1_noflag")
    b(f"  v_mov_b32 v3, 1")
    b(f"  s_mov_b64 s[48:49], exec")
    b(f"  s_mov_b64 exec, 1")
    b(f"  buffer_store_dword v3, v26, s[{SRD_PF}:{SRD_PF+3}], 0 offen sc1")
    b(f"  s_mov_b64 exec, s[48:49]")
    b.label("p1_noflag")
    for i in range(8):
        b(f"  v_lshlrev_b32 v{X+i}, 16, v{XD+i}")
        b(f"  v_and_b32 v{X+8+i}, 0xffff0000, v{XD+i}")
    T = 56
    b(f"  v_add_f32 v{T}, v{X}, v{X+1}")
    b(f"  v_add_f32 v{T+1}, v{X+8}, v{X+9}")
    for i in range(2, 8):
        b(f"  v_add_f32 v{T}, v{T}, v{X+i}")
        b(f"  v_add_f32 v{T+1}, v{T+1}, v{X+8+i}")
    wave_reduce(b, [T, T+1])
    b(f"  v_sub_f32 v{T+2}, v{T}, v{T+1}       ; E - O")
    b(f"  v_add_f32 v{T}, v{T}, v{T+1}")
    b(f"  s_nop 0")
    b(f"  v_readlane_b32 s{S_T+2}, v{T}, 63")
    b(f"  v_readlane_b32 s{S_T+4}, v{T+2}, 63")
    b(f"  s_nop 1")
    ln_finish(b, X, T, S_T+2, S_T+3)
    b(f"  v_mul_f32 v{T+6}, s{S_T+4}, v{T+4}")
    stamp(b, "p1 ln done")
    A = 64
    for be in range(2):
        for i in range(4):
            b(f"  v_cvt_pk_bf16_f32 v{A+4*be+i}, v{X+8*be+2*i}, v{X+8*be+2*i+1}")
    b(f"  s_waitcnt lgkmcnt(0)")
    b(f"  v_readlane_b32 s{S_T+5}, v{T+6}, 0")
    Y = 160
    for be in range(2):
        for u in range(2):
            for c in range(2):
                d = Y + ((be * 2 + u) * 2 + c) * 4
                b(f"  {MF32} {vr(d,4)}, {vr(A+4*be,4)}, {vr(M1+4*(2*u+c),4)}, 0")
    b(f"  s_nop 4")
    Bp = 72; W = 32; O = 40
    for u in range(2):
        for be in range(2):
            y = Y + ((be * 2 + u) * 2) * 4
            tw = TW + (be * 4 + u * 2) * 4
            cmul_pk(b, O + 8 * be, O + 8 * be + 4, y, y + 4, tw, tw + 4, W, False)
        for r in range(4):
            b(f"  v_cvt_pk_bf16_f32 v{Bp+8*u+r}, v{O+r}, v{O+8+r}")
            b(f"  v_cvt_pk_bf16_f32 v{Bp+8*u+4+r}, v{O+4+r}, v{O+12+r}")
    XO = 160
    b(f"  s_nop 1")
    for u in range(2):
        re, im = XO + 8 * u, XO + 8 * u + 4
        b(f"  {MF32} {vr(re,4)}, {vr(M2,4)}, {vr(Bp+8*u,4)}, 0")
        b(f"  {MF32} {vr(im,4)}, {vr(M2,4)}, {vr(Bp+8*u+4,4)}, 0")
        b(f"  {MF32} {vr(re,4)}, {vr(M2+4,4)}, {vr(Bp+8*u+4,4)}, {vr(re,4)}")
        b(f"  {MF32} {vr(im,4)}, {vr(M2+8,4)}, {vr(Bp+8*u,4)}, {vr(im,4)}")
    b(f"  buffer_load_dword v27, v26, s[{SRD_PF}:{SRD_PF+3}], 0 offen sc1")
    b(f"  s_and_b32 s{S_T+6}, s{S_W}, 1")
    b(f"  s_lshl_b32 s{S_T+6}, s{S_T+6}, 8")
    b(f"  s_lshr_b32 s{S_T+7}, s{S_W}, 1")
    b(f"  s_lshl_b32 s{S_T+7}, s{S_T+7}, 6")
    b(f"  s_add_u32 s{S_T+6}, s{S_T+6}, s{S_T+7}")
    b(f"  v_lshlrev_b32 v3, 12, v9")
    b(f"  v_lshl_add_u32 v3, v8, 2, v3")
    b(f"  v_add_u32 v3, s{S_T+6}, v3")
    b(f"  s_nop 2")
    b(f"  v_writelane_b32 v{XO}, s{S_T+5}, 0")
    b(f"  v_writelane_b32 v{XO+4}, 0, 0")
    PK = 32
    for u in range(2):
        for r in range(4):
            b(f"  v_cvt_pk_bf16_f32 v{PK+4*u+r}, v{XO+8*u+r}, v{XO+8*u+4+r}")
    for u in range(2):
        for r in range(4):
            b(f"  ds_write_b32 v3, v{PK+4*u+r} offset:{L1_EX + u*512 + r*1024}")
    b(f"  s_waitcnt lgkmcnt(0)")
    stamp(b, "p1 fft done")
    b(f"  s_barrier")
    b(f"  v_lshlrev_b32 v4, 6, v9")
    b(f"  v_lshl_add_u32 v4, v8, 2, v4")
    b(f"  s_lshl_b32 s{S_T+6}, s{S_W}, 11")
    b(f"  s_add_u32 s{S_T+6}, s{S_T+6}, {L1_EX}")
    b(f"  v_add_u32 v4, s{S_T+6}, v4")
    Bd = 40
    for i in range(4):
        b(f"  ds_read2st64_b32 {vr(Bd+2*i,2)}, v4 offset0:{2*i} offset1:{2*i+1}")
    b(f"  v_lshlrev_b32 v5, 15, v9")
    b(f"  v_lshl_add_u32 v5, v8, 2, v5")
    b(f"  s_and_b32 s{S_T+6}, s2, 15")
    b(f"  s_lshl_b32 s{S_T+6}, s{S_T+6}, 4")
    b(f"  s_lshr_b32 s{S_T+7}, s2, 4")
    b(f"  s_add_u32 s{S_T+6}, s{S_T+6}, s{S_T+7}")
    b(f"  s_lshl_b32 s{S_T+6}, s{S_T+6}, 6       ; pos*64")
    b(f"  s_lshl_b32 s{S_T+7}, s{S_W}, 19        ; 4w*131072")
    b(f"  s_add_u32 s{S_T+6}, s{S_T+6}, s{S_T+7}")
    D = 48
    for i in range(4):
        b(f"  s_waitcnt lgkmcnt({3-i})")
        b(f"  {MF16} {vr(D+4*i,4)}, {vr(GM,2)}, {vr(Bd+2*i,2)}, 0")
    b(f"  s_nop 4")
    for i in range(4):
        b(f"  v_cvt_pk_bf16_f32 v{64+2*i}, v{D+4*i}, v{D+4*i+1}")
        b(f"  v_cvt_pk_bf16_f32 v{65+2*i}, v{D+4*i+2}, v{D+4*i+3}")
        for e in range(2):
            b(f"  s_add_u32 s{S_T+7}, s{S_T+6}, {i*131072 + e*16384}")
            b(f"  buffer_store_dword v{64+2*i+e}, v5, s[{SRD_B}:{SRD_B+3}], s{S_T+7} offen{SF}")
    stamp(b, "p1 stores issued")
    b(f"  s_and_b32 s{S_T+8}, s2, 15")
    arrive(b, 0, S_T + 8, first=True, label="x1")
    stamp(b, "p1 arrived")

XL2, WL2 = 32, 40
TC2, TS2 = 64, 68
def p2_setup(b):
    srd(b, SRD_A, P_WS, 4 << 20, WS_X1)
    srd(b, SRD_B, P_WS, 4 << 20, WS_X2)
    srd(b, SRD_C, P_WR, WB)
    srd(b, SRD_D, P_WI, WB)
    b(f"  s_and_b32 s{S_T}, s2, 7              ; j1")
    b(f"  s_lshr_b32 s{S_T+1}, s2, 3           ; kb")
    b(f"  v_and_b32 v10, 1, v0                 ; half")
    b(f"  v_bfe_u32 v11, v0, 5, 4              ; c")
    b(f"  v_bfe_u32 v12, v0, 1, 4              ; e")
    b(f"  v_lshl_add_u32 v13, v12, 4, v11      ; j2")
    b(f"  v_lshlrev_b32 v13, 3, v13")
    b(f"  v_add_u32 v13, s{S_T}, v13           ; j")
    b(f"  v_mul_u32_u24 v13, 1026, v13")
    b(f"  v_lshlrev_b32 v14, 4, v10")
    b(f"  v_add_u32 v14, v13, v14")
    b(f"  s_lshl_b32 s{S_T+3}, s{S_T+1}, 5")
    WL = WL2
    b(f"  v_mov_b32 v24, v14")
    b(f"  v_mov_b32 v25, v13")
    b(f"  v_mov_b32 v26, v10                   ; half")
    b(f"  s_mov_b32 s45, s{S_T+3}              ; kb*32")
    WL = WL2
    b(f"  buffer_load_dwordx4 {vr(WL,4)}, v24, s[{SRD_C}:{SRD_C+3}], s45 offen{XF()}")
    b(f"  buffer_load_dwordx4 {vr(WL+4,4)}, v24, s[{SRD_D}:{SRD_D+3}], s45 offen{XF()}")
    b(f"  s_cmp_lg_u32 s{S_T+1}, 0")
    b(f"  s_cbranch_scc1 p2_nonyq")
    b(f"  buffer_load_ushort v48, v25, s[{SRD_C}:{SRD_C+3}], 0 offen offset:1024")
    b(f"  buffer_load_ushort v49, v25, s[{SRD_D}:{SRD_D+3}], 0 offen offset:1024")
    b(f"  s_waitcnt vmcnt(0)")
    b(f"  v_cmp_eq_u32 vcc, 0, v26")
    b(f"  v_and_b32 v50, 0xffff0000, v{WL}")
    b(f"  v_or_b32 v50, v50, v48")
    b(f"  v_cndmask_b32 v{WL}, v{WL}, v50, vcc")
    b(f"  v_and_b32 v50, 0xffff0000, v{WL+4}")
    b(f"  v_or_b32 v50, v50, v49")
    b(f"  v_cndmask_b32 v{WL+4}, v{WL+4}, v50, vcc")
    b.label("p2_nonyq")
    npf = 0
    b(f"  v_and_b32 v15, 255, v0")
    b(f"  v_bfe_u32 v16, v15, 2, 4             ; x")
    b(f"  v_lshrrev_b32 v17, 6, v15            ; g")
    b(f"  v_and_b32 v18, 3, v15")
    b(f"  v_lshl_add_u32 v17, v17, 2, v18      ; 4g+i")
    b(f"  v_mul_u32_u24 v17, v17, v16")
    sincos(b, 18, 19, 17, 4, 20)
    b(f"  v_cmp_gt_u32 vcc, 256, v0            ; matrix 0 ?")
    b(f"  v_xor_b32 v20, 0x80000000, v19       ; -sin")
    b(f"  s_nop 0")
    b(f"  v_cndmask_b32 v21, v20, v18, vcc")
    b(f"  v_cndmask_b32 v22, v18, v19, vcc")
    b(f"  v_cvt_pk_bf16_f32 v21, v21, v22")
    b(f"  v_lshlrev_b32 v22, 2, v0")
    b(f"  ds_write_b32 v22, v21 offset:{L2_F}")
    b(f"  v_lshlrev_b32 v16, 2, v9")
    for r in range(4):
        b(f"  v_add_u32 v17, {r}, v16")
        b(f"  v_mul_u32_u24 v17, v17, v8")
        sincos(b, TC2 + r, TS2 + r, 17, 8, 20)
    b(f"  v_and_b32 v16, 3, v0                 ; i")
    b(f"  v_mul_u32_u24 v16, {4*1040}, v16")
    b(f"  v_lshrrev_b32 v17, 6, v0             ; b (0..7)")
    b(f"  v_lshl_add_u32 v16, v17, 6, v16")
    b(f"  v_bfe_u32 v17, v0, 2, 2              ; a&3")
    b(f"  v_lshl_add_u32 v16, v17, 2, v16")
    b(f"  v_bfe_u32 v17, v0, 4, 2              ; a>>2")
    b(f"  v_lshl_add_u32 v21, v17, 4, v16      ; first")
    b(f"  v_xor_b32 v17, 2, v17")
    b(f"  v_lshl_add_u32 v22, v17, 4, v16")
    b(f"  v_add_u32 v22, 512, v22              ; second (b+8)")
    b(f"  v_mul_u32_u24 v16, {4*1040}, v10")
    b(f"  v_lshl_add_u32 v16, v11, 6, v16")
    b(f"  v_and_b32 v17, 3, v12")
    b(f"  v_lshl_add_u32 v16, v17, 2, v16")
    b(f"  v_lshrrev_b32 v17, 2, v12")
    b(f"  v_lshrrev_b32 v18, 3, v11            ; c>>3")
    b(f"  v_lshlrev_b32 v18, 1, v18")
    b(f"  v_xor_b32 v17, v17, v18")
    b(f"  v_lshl_add_u32 v23, v17, 4, v16")
    b(f"  v_lshrrev_b32 v16, 3, v8")
    b(f"  v_lshlrev_b32 v16, 1, v16")
    b(f"  v_xor_b32 v16, v16, v9")
    b(f"  v_lshlrev_b32 v16, 4, v16")
    b(f"  v_lshl_add_u32 v16, v8, 6, v16")
    b(f"  s_mul_i32 s{S_T+4}, s{S_W}, {2*1040}")
    b(f"  s_mul_i32 s{S_T+5}, s{S_W}, 1040")
    b(f"  v_add_u32 v5, s{S_T+4}, v16")
    b(f"  v_add_u32 v6, s{S_T+5}, v16")
    b(f"  v_lshlrev_b32 v1, 4, v0")
    b(f"  s_lshl_b32 s{S_T+2}, s2, 14")
    b(f"  s_add_u32 s{S_T+3}, s{S_T+2}, 8192")
    b(f"  s_waitcnt lgkmcnt(0)")

def p2_main(b):
    XL = XL2; TC, TS = TC2, TS2
    b(f"  buffer_load_dwordx4 {vr(XL,4)}, v1, s[{SRD_A}:{SRD_A+3}], s{S_T+2} offen{LF}")
    b(f"  buffer_load_dwordx4 {vr(XL+4,4)}, v1, s[{SRD_A}:{SRD_A+3}], s{S_T+3} offen{LF}")
    WL = WL2
    b(f"  v_lshlrev_b32 v17, 4, v7")
    FR, FI = 72, 76
    AX = 48; WR, WI = 152, 156
    b(f"  ds_read_b128 {vr(FR,4)}, v17 offset:{L2_F}")
    b(f"  ds_read_b128 {vr(FI,4)}, v17 offset:{L2_F+1024}")
    Dq = [80, 88]; Oq = [96, 104]; Tq = [112, 120]; Pq = [128, 132]; Wq = [136, 144]
    b(f"  s_waitcnt vmcnt(0)")
    stamp(b, "p2 x landed")
    for j in range(4):
        b(f"  ds_write_b32 v21, v{XL+j} offset:{L2_X + j*1040}")
        b(f"  ds_write_b32 v22, v{XL+4+j} offset:{L2_X + j*1040}")
    for j in range(4):
        b(f"  ds_write_b32 v23, v{WL+j} offset:{L2_W + j*1040}")
        b(f"  ds_write_b32 v23, v{WL+4+j} offset:{L2_W + 8*1040 + j*1040}")
    if "nopf" not in OPT and "ntw1" not in OPT and PFN[1]:
        w1_share_base(b, S_T + 8, PFN[0] * 4096)
        pf_wide(b, P_W1, W1B, S_T + 8, PFN[1], 4, 8, "pf_p2a")
    b(f"  s_waitcnt lgkmcnt(0)")
    b(f"  s_barrier")
    b(f"  ds_read_b128 {vr(AX,4)}, v5 offset:{L2_X}")
    b(f"  ds_read_b128 {vr(AX+4,4)}, v5 offset:{L2_X+1040}")
    b(f"  ds_read_b128 {vr(WR,4)}, v6 offset:{L2_W}")
    b(f"  ds_read_b128 {vr(WI,4)}, v6 offset:{L2_W+8*1040}")
    def stage(form, src):
        for k in range(2):
            d = Dq[k]
            if form == 'A':
                b(f"  {MF32} {vr(d,4)}, {vr(src[k],4)}, {vr(FR,4)}, 0")
                b(f"  {MF32} {vr(d+4,4)}, {vr(src[k],4)}, {vr(FI,4)}, 0")
            else:
                b(f"  {MF32} {vr(d,4)}, {vr(FR,4)}, {vr(src[k],4)}, 0")
                b(f"  {MF32} {vr(d+4,4)}, {vr(FI,4)}, {vr(src[k],4)}, 0")
    def twiddle_pack():
        for k in range(2):
            cmul_pk(b, Oq[k], Oq[k] + 4, Dq[k], Dq[k] + 4, TC, TS, Tq[k], False)
        for k in range(2):
            for r in range(4):
                b(f"  v_cvt_pk_bf16_f32 v{Pq[k]+r}, v{Oq[k]+r}, v{Oq[k]+4+r}")
        b(f"  s_nop 1")
    b(f"  s_waitcnt lgkmcnt(2)")
    stage('A', [AX, AX + 4])
    b(f"  s_waitcnt lgkmcnt(0)")
    for r in range(4):
        b(f"  v_lshlrev_b32 v{Wq[0]+r}, 16, v{WR+r}")
        b(f"  v_lshlrev_b32 v{Wq[0]+4+r}, 16, v{WI+r}")
        b(f"  v_and_b32 v{Wq[1]+r}, 0xffff0000, v{WR+r}")
        b(f"  v_and_b32 v{Wq[1]+4+r}, 0xffff0000, v{WI+r}")
    twiddle_pack()
    stage('B', Pq)
    b(f"  s_nop 5")
    for k in range(2):
        cmul_pk(b, Oq[k], Oq[k] + 4, Dq[k], Dq[k] + 4, Wq[k], Wq[k] + 4, Tq[k], True)
    for k in range(2):
        for r in range(4):
            b(f"  v_cvt_pk_bf16_f32 v{Pq[k]+r}, v{Oq[k]+r}, -v{Oq[k]+4+r}")
    b(f"  s_nop 1")
    stage('A', Pq)
    b(f"  s_nop 5")
    twiddle_pack()
    stage('B', Pq)
    b(f"  s_nop 5")
    for k in range(2):
        for r in range(4):
            b(f"  v_cvt_pk_bf16_f32 v{Pq[k]+r}, v{Dq[k]+r}, -v{Dq[k]+4+r}")
    b(f"  ds_write_b128 v5, {vr(Pq[0],4)} offset:{L2_X}")
    b(f"  ds_write_b128 v5, {vr(Pq[1],4)} offset:{L2_X+1040}")
    b(f"  s_waitcnt lgkmcnt(0)")
    b(f"  s_barrier")
    for j in range(4):
        b(f"  ds_read_b32 v{XL+j}, v21 offset:{L2_X + j*1040}")
        b(f"  ds_read_b32 v{XL+4+j}, v22 offset:{L2_X + j*1040}")
    b(f"  v_bfe_u32 v16, v0, 2, 4              ; a")
    b(f"  v_lshrrev_b32 v17, 6, v0             ; b")
    b(f"  v_lshl_add_u32 v16, v16, 4, v17      ; s1")
    b(f"  v_lshlrev_b32 v16, 14, v16")
    b(f"  v_and_b32 v17, 3, v0")
    b(f"  v_lshl_add_u32 v16, v17, 4, v16")
    b(f"  s_lshl_b32 s{S_T+4}, s{S_T}, 11")
    b(f"  s_lshl_b32 s{S_T+5}, s{S_T+1}, 6")
    b(f"  s_add_u32 s{S_T+4}, s{S_T+4}, s{S_T+5}")
    b(f"  s_add_u32 s{S_T+5}, s{S_T+4}, {8*16384}")
    b(f"  s_waitcnt lgkmcnt(0)")
    b(f"  buffer_store_dwordx4 {vr(XL,4)}, v16, s[{SRD_B}:{SRD_B+3}], s{S_T+4} offen{SF}")
    b(f"  buffer_store_dwordx4 {vr(XL+4,4)}, v16, s[{SRD_B}:{SRD_B+3}], s{S_T+5} offen{SF}")
    stamp(b, "p2 stores issued")
    b(f"  s_and_b32 s{S_T+8}, s2, 15")
    arrive(b, 1, S_T + 8, label="x2")

V_LO = 224
S_G1A = 60
def g1_ids(b):
    b(f"  s_lshr_b32 s{S_T}, s2, 3                 ; i")
    b(f"  s_cmp_lt_u32 s{S_T}, 28")
    b(f"  s_cselect_b32 s62, 1, 0")
    b(f"  s_mul_i32 s{S_T+1}, s{S_T}, 37")
    b(f"  s_lshr_b32 s{S_T+1}, s{S_T+1}, 8         ; i/7")
    b(f"  s_mul_i32 s{S_T+2}, s{S_T+1}, 7")
    b(f"  s_sub_u32 s{S_T+2}, s{S_T}, s{S_T+2}     ; i%7")
    b(f"  s_and_b32 s{S_T+3}, s2, 7")
    b(f"  s_lshr_b32 s{S_T+4}, s{S_T+3}, 1")
    b(f"  s_mul_i32 s{S_T+4}, s{S_T+4}, 7")
    b(f"  s_add_u32 s60, s{S_T+4}, s{S_T+2}        ; ft")
    b(f"  s_and_b32 s{S_T+3}, s{S_T+3}, 1")
    b(f"  s_lshl_b32 s{S_T+3}, s{S_T+3}, 2")
    b(f"  s_add_u32 s61, s{S_T+3}, s{S_T+1}        ; dt")

S_SOFF, S_M0, S_N = 4, 5, 6
def loader_issue(b, voff, fl=""):
    for i in range(4):
        b(f"  s_add_u32 m0, s{S_M0}, {4096*i}")
        b(f"  s_nop 0")
        b(f"  buffer_load_dwordx4 v{voff+i}, s[{SRD_T}:{SRD_T+3}], s{S_SOFF} offen{fl} lds")
    b(f"  s_add_u32 s{S_SOFF}, s{S_SOFF}, s9")
    b(f"  s_add_u32 s{S_M0}, s{S_M0}, {STAGE}")
    b(f"  s_cmp_ge_u32 s{S_M0}, s{S_N+1}")
    b(f"  s_cselect_b32 s{S_N+2}, {R*STAGE}, 0")
    b(f"  s_sub_u32 s{S_M0}, s{S_M0}, s{S_N+2}")

def loader_init(b, step_bytes):
    b(f"  s_sub_u32 s50, s{S_W}, 4")
    b(f"  s_lshl_b32 s{S_M0}, s50, 10")
    b(f"  s_add_u32 s{S_N+1}, s{S_M0}, {R*STAGE}")
    b(f"  s_mov_b32 s{S_SOFF}, 0")
    b(f"  s_mov_b32 s9, {step_bytes}")

def g1_loader_addr(b):
    b(f"  s_sub_u32 s50, s{S_W}, 4      ; w'")
    for i in range(4):
        b(f"  s_lshl_b32 s49, s50, 2")
        b(f"  s_add_u32 s49, s49, {16*i}")
        b(f"  v_lshrrev_b32 v14, 4, v7")
        b(f"  v_add_u32 v14, s49, v14                 ; row 0..63")
        b(f"  v_and_b32 v15, 3, v14")
        b(f"  v_lshlrev_b32 v15, 2, v15")
        b(f"  v_and_b32 v16, 15, v7")
        b(f"  v_xor_b32 v16, v16, v15                 ; q")
        b(f"  v_lshrrev_b32 v17, 3, v14")
        b(f"  v_and_b32 v18, 7, v14")
        b(f"  v_lshl_add_u32 v17, v18, 8, v17         ; s")
        b(f"  v_mul_u32_u24 v17, 7168, v17")
        b(f"  v_lshl_add_u32 v17, v16, 4, v17")
        b(f"  s_lshl_b32 s49, s60, 8")
        b(f"  v_add_u32 v{V_LO+i}, s49, v17")

def g2_ids(b):
    b(f"  s_and_b32 s{S_T}, s2, 1")
    b(f"  s_lshl_b32 s{S_T}, s{S_T}, 2")
    b(f"  s_lshr_b32 s{S_T+1}, s2, 3")
    b(f"  s_and_b32 s{S_T+2}, s{S_T+1}, 3")
    b(f"  s_add_u32 s{S_TILE_A}, s{S_T}, s{S_T+2}     ; dt")
    b(f"  s_lshr_b32 s{S_T}, s2, 1")
    b(f"  s_and_b32 s{S_T}, s{S_T}, 3")
    b(f"  s_lshl_b32 s{S_T}, s{S_T}, 3")
    b(f"  s_lshr_b32 s{S_T+1}, s{S_T+1}, 2")
    b(f"  s_add_u32 s{S_TILE_B}, s{S_T}, s{S_T+1}     ; st")

def g2_loader_addr(b):
    b(f"  s_sub_u32 s50, s{S_W}, 4")
    for i in range(4):
        b(f"  s_lshl_b32 s49, s50, 3")
        b(f"  s_add_u32 s49, s49, {32*i}")
        b(f"  v_lshrrev_b32 v14, 3, v7")
        b(f"  v_add_u32 v14, s49, v14                 ; row")
        b(f"  v_bfe_u32 v15, v14, 1, 1")
        b(f"  v_lshlrev_b32 v15, 2, v15")
        b(f"  v_and_b32 v16, 7, v7")
        b(f"  v_xor_b32 v16, v16, v15                 ; q")
        b(f"  v_lshlrev_b32 v14, 12, v14              ; row*4096")
        b(f"  v_lshl_add_u32 v14, v16, 4, v14")
        b(f"  s_lshl_b32 s49, s{S_TILE_B}, 7          ; s0*2")
        b(f"  v_add_u32 v{V_LO+i}, s49, v14")

def loader_loop(b, NS, pre, fl=""):
    nmain = NS - (R - 2)
    b(f"  s_mov_b32 s{S_N}, {nmain}")
    b.label(f"{pre}_lloop")
    b(f"  s_waitcnt vmcnt({(R-3)*4})")
    b("  s_barrier")
    loader_issue(b, V_LO, fl)
    b(f"  s_sub_u32 s{S_N}, s{S_N}, 1")
    b(f"  s_cmp_lg_u32 s{S_N}, 0")
    b(f"  s_cbranch_scc1 {pre}_lloop")
    for i in range(R - 2):
        b(f"  s_waitcnt vmcnt({(R-3-i)*4})")
        b("  s_barrier")

BD3 = 32; XR3 = 192; GM3 = 30
def p3_tables(b):
    b(f"  v_and_b32 v10, 255, v0            ; e")
    b(f"  v_lshrrev_b32 v11, 8, v0")
    b(f"  v_bfe_u32 v12, v10, 2, 4          ; n = lane&15")
    b(f"  v_lshrrev_b32 v13, 6, v10         ; g")
    b(f"  v_and_b32 v14, 3, v10             ; r")
    b(f"  v_lshl_add_u32 v13, v13, 2, v14   ; 4g + r")
    b(f"  v_lshrrev_b32 v15, 2, v12")
    b(f"  v_lshlrev_b32 v15, 3, v15")
    b(f"  v_and_b32 v16, 3, v12")
    b(f"  v_add_u32 v15, v15, v16           ; b(n,0)")
    b(f"  v_lshl_add_u32 v16, v11, 2, v15   ; b(n, sel)")
    b(f"  v_mul_u32_u24 v17, v16, v13")
    sincos(b, 18, 19, 17, 5, 20)
    b(f"  v_lshlrev_b32 v22, 2, v10")
    b(f"  v_lshl_add_u32 v22, v11, 11, v22  ; sel*2048 + e*4")
    b(f"  v_add_u32 v22, {L3_M3}, v22")
    b(f"  v_cvt_pk_bf16_f32 v23, v18, -v19")
    b(f"  v_cvt_pk_bf16_f32 v24, v19, v18")
    b(f"  ds_write_b32 v22, v23")
    b(f"  ds_write_b32 v22, v24 offset:1024")
    b(f"  v_lshl_add_u32 v17, v11, 4, v13   ; k1")
    for z in range(2):
        b(f"  v_add_u32 v21, {16*z}, v12")
        b(f"  v_mul_u32_u24 v21, v21, v17")
        sincos(b, 18, 19, 21, 5, 20)
        b(f"  v_add_f32 v18, v18, v18")
        b(f"  v_mul_f32 v19, -2.0, v19")
        b(f"  v_cvt_pk_bf16_f32 v23, v18, v19")
        b(f"  ds_write_b32 v22, v23 offset:{4096+1024*z}")
    b(f"  v_lshlrev_b32 v23, 2, v10")
    b(f"  v_lshl_add_u32 v23, v11, 12, v23   ; u*4096 + e*4")
    b(f"  v_add_u32 v23, {L3_TW}, v23")
    for v in range(2):
        b(f"  v_add_u32 v21, {4*v}, v15")
        b(f"  v_mul_u32_u24 v21, v21, v17")
        sincos(b, 18, 19, 21, 10, 20)
        b(f"  ds_write_b32 v23, v18 offset:{2048*v}")
        b(f"  ds_write_b32 v23, v19 offset:{2048*v+1024}")

def p3_setup(b):
    srd(b, SRD_A, P_WS, 4 << 20, WS_X2)
    srd(b, SRD_B, P_X, 4 << 20)
    srd(b, SRD_C, P_WS, 4 << 20, WS_H)
    srd(b, SRD_D, P_WS, 4 << 20, WS_LN2)
    b(f"  s_lshl_b32 s{S_T+3}, s{S_W}, 8")
    b(f"  s_add_u32 s{S_T+3}, s{S_T+3}, s2")
    b(f"  s_lshl_b32 s{S_T+3}, s{S_T+3}, 11       ; s*2048")
    b(f"  v_lshlrev_b32 v4, 6, v8")
    b(f"  v_lshl_add_u32 v4, v9, 4, v4")
    for z in range(2):
        b(f"  buffer_load_dwordx4 {vr(XR3+4*z,4)}, v4, s[{SRD_B}:{SRD_B+3}], s{S_T+3} offen offset:{1024*z}")
    b(f"  s_mov_b32 s63, s{S_T+3}")
    if "nopf" not in OPT and "ntw1" not in OPT:
        if PFN[2]:
            w1_share_base(b, S_T + 8, (PFN[0] + PFN[1]) * 4096)
            pf_wide(b, P_W1, W1B, S_T + 8, PFN[2], 4, 8, "pf_p3a")
    g1_ids(b)
    g1_loader_addr(b)
    loader_init(b, 8 * 7168)
    p3_tables(b)
    gmat(b, GM3, 2, True, 10)
    b(f"  v_lshlrev_b32 v1, 12, v9")
    b(f"  v_lshl_add_u32 v1, v8, 2, v1")
    b(f"  s_lshl_b32 s{S_T}, s2, 14")
    b(f"  s_and_b32 s{S_T+1}, s{S_W}, 1")
    b(f"  s_lshl_b32 s{S_T+1}, s{S_T+1}, 6")
    b(f"  s_lshr_b32 s{S_T+2}, s{S_W}, 1")
    b(f"  s_lshl_b32 s{S_T+2}, s{S_T+2}, 9")
    b(f"  s_add_u32 s{S_T}, s{S_T}, s{S_T+1}")
    b(f"  s_add_u32 s44, s{S_T}, s{S_T+2}          ; X2 soffset")
    b(f"  s_lshl_b32 s{S_T+1}, s{S_T+1}, 4        ; u*1024")
    b(f"  s_lshr_b32 s{S_T+2}, s{S_T+2}, 1        ; q4*256")
    b(f"  s_add_u32 s45, s{S_T+1}, s{S_T+2}")
    b(f"  s_waitcnt lgkmcnt(0)")

def p3_main(b):
    Bd, XR, GM = BD3, XR3, GM3
    for i in range(4):
        for e in range(2):
            b(f"  buffer_load_dword v{Bd+2*i+e}, v1, s[{SRD_A}:{SRD_A+3}], s44 offen offset:{e*2048+i*128}{LF}")
    npf = 0
    D = 40
    b(f"  v_lshlrev_b32 v3, 12, v9")
    b(f"  v_lshl_add_u32 v3, v8, 4, v3")
    b(f"  v_add_u32 v3, s45, v3")
    b(f"  v_add_u32 v3, {L3_EX}, v3")
    M3, M4, TW = 96, 112, 128
    b(f"  v_lshlrev_b32 v6, 4, v7")
    b(f"  v_add_u32 v6, {L3_M3}, v6")
    for i in range(4): b(f"  ds_read_b128 {vr(M3+4*i,4)}, v6 offset:{1024*i}")
    for i in range(4): b(f"  ds_read_b128 {vr(M4+4*i,4)}, v6 offset:{4096+1024*i}")
    b(f"  s_waitcnt lgkmcnt(0)")
    for i in range(8): b(f"  ds_read_b128 {vr(TW+4*i,4)}, v6 offset:{8192+1024*i}")
    b(f"  s_waitcnt vmcnt({npf})")
    stamp(b, "p3 x2 landed")
    if "nopf" not in OPT and "ntw1" not in OPT and PFN[3]:
        w1_share_base(b, S_T + 8, (PFN[0] + PFN[1] + PFN[2]) * 4096)
        pf_wide(b, P_W1, W1B, S_T + 8, PFN[3], 4, 8, "pf_p3b")
    for i in range(4):
        b(f"  {MF16} {vr(D+4*i,4)}, {vr(GM,2)}, {vr(Bd+2*i,2)}, 0")
    b(f"  s_nop 4")
    PK = 56
    for e in range(2):
        for i in range(4):
            b(f"  v_cvt_pk_bf16_f32 v{PK+4*e+i}, v{D+4*i+2*e}, v{D+4*i+2*e+1}")
    b(f"  ds_write_b128 v3, {vr(PK,4)}")
    b(f"  ds_write_b128 v3, {vr(PK+4,4)} offset:2048")
    b(f"  s_waitcnt lgkmcnt(0)")
    b(f"  s_barrier")
    b(f"  v_lshlrev_b32 v5, 8, v9")
    b(f"  v_lshl_add_u32 v5, v8, 4, v5")
    b(f"  s_lshl_b32 s{S_T+1}, s{S_W}, 11")
    b(f"  s_add_u32 s{S_T+1}, s{S_T+1}, {L3_EX}")
    b(f"  v_add_u32 v5, s{S_T+1}, v5")
    AU = 32
    b(f"  ds_read_b128 {vr(AU,4)}, v5")
    b(f"  ds_read_b128 {vr(AU+4,4)}, v5 offset:1024")
    b(f"  s_waitcnt lgkmcnt(0)")
    b(f"  v_readlane_b32 s{S_T+4}, v{AU}, 0")
    b(f"  v_writelane_b32 v{AU}, 0, 0")
    b(f"  s_nop 1")
    b(f"  s_lshl_b32 s{S_T+4}, s{S_T+4}, 16")
    TT = 160
    for u in range(2):
        for v in range(2):
            for c in range(2):
                d = TT + ((u * 2 + v) * 2 + c) * 4
                b(f"  {MF32} {vr(d,4)}, {vr(AU+4*u,4)}, {vr(M3+4*(2*v+c),4)}, 0")
    CI = 60
    b(f"  v_mov_b32 v{CI}, s{S_T+4}")
    b(f"  v_xor_b32 v{CI+1}, 0x80000000, v{CI}")
    b(f"  v_mov_b32 v{CI+2}, v{CI}")
    b(f"  v_mov_b32 v{CI+3}, v{CI+1}")
    b(f"  s_nop 1")
    A2 = 64; O = 40; W = 80
    for u in range(2):
        for v in range(2):
            t = TT + ((u * 2 + v) * 2) * 4
            tw = TW + ((u * 2 + v) * 2) * 4
            cmul_pk(b, O, O + 4, t, t + 4, tw, tw + 4, W, True)
            for r in range(4):
                b(f"  v_cvt_pk_bf16_f32 v{A2+(u*2+v)*4+r}, v{O+r}, v{O+4+r}")
    Y = 160
    b(f"  s_nop 1")
    for z in range(2):
        for v in range(2):
            d = Y + (z * 2 + v) * 4
            b(f"  {MF32} {vr(d,4)}, {vr(A2+(0*2+v)*4,4)}, {vr(M4+(0*2+z)*4,4)}, {vr(CI,4)}")
    for z in range(2):
        for v in range(2):
            d = Y + (z * 2 + v) * 4
            b(f"  {MF32} {vr(d,4)}, {vr(A2+(1*2+v)*4,4)}, {vr(M4+(1*2+z)*4,4)}, {vr(d,4)}")
    b(f"  s_nop 7")
    X = 40; HP = 32
    stamp(b, "p3 ifft done")
    for z in range(2):
        for dd in range(4):
            y0 = Y + z * 8 + 2 * dd
            xd = XR + 4 * z + dd
            t = 64 + 4 * (dd % 2)
            b(f"  v_cvt_pk_bf16_f32 v{t}, v{y0}, v{y0+1}")
            b(f"  v_lshlrev_b32 v{t+1}, 16, v{xd}")
            b(f"  v_and_b32 v{t+2}, 0xffff0000, v{xd}")
            b(f"  v_and_b32 v{t+3}, 0xffff0000, v{t}")
            b(f"  v_lshlrev_b32 v{t}, 16, v{t}")
            b(f"  v_add_f32 v{t+1}, v{t+1}, v{t}")
            b(f"  v_add_f32 v{t+2}, v{t+2}, v{t+3}")
            b(f"  v_cvt_pk_bf16_f32 v{HP+4*z+dd}, v{t+1}, v{t+2}")
    for z in range(2):
        b(f"  buffer_store_dwordx4 {vr(HP+4*z,4)}, v4, s[{SRD_C}:{SRD_C+3}], s63 offen offset:{1024*z}{SF}")
    for i in range(8):
        b(f"  v_lshlrev_b32 v{X+2*i}, 16, v{HP+i}")
        b(f"  v_and_b32 v{X+2*i+1}, 0xffff0000, v{HP+i}")
    layernorm16(b, X, 64, S_T+5, S_T+6)
    LP = 72
    stamp(b, "p3 ln done")
    for i in range(8):
        b(f"  v_cvt_pk_bf16_f32 v{LP+i}, v{X+2*i}, v{X+2*i+1}")
    b(f"  v_mul_u32_u24 v3, 80, v8")
    b(f"  v_lshl_add_u32 v3, v9, 4, v3")
    b(f"  s_mul_i32 s{S_T+1}, s{S_W}, {L3_RS}")
    b(f"  s_add_u32 s{S_T+1}, s{S_T+1}, {L3_LN}")
    b(f"  v_add_u32 v3, s{S_T+1}, v3")
    for z in range(2):
        b(f"  ds_write_b128 v3, {vr(LP+4*z,4)} offset:{z*16*80}")
    b(f"  s_waitcnt lgkmcnt(0)")
    b(f"  s_barrier")
    b(f"  v_bfe_u32 v10, v7, 2, 2")
    b(f"  v_mul_u32_u24 v10, {L3_RS}, v10")
    b(f"  v_lshrrev_b32 v11, 5, v7")
    b(f"  v_mul_u32_u24 v12, 80, v11")
    b(f"  v_add_u32 v10, v10, v12")
    b(f"  v_and_b32 v12, 1, v7")
    b(f"  v_lshl_add_u32 v10, v12, 5, v10")
    b(f"  v_bfe_u32 v12, v7, 4, 1")
    b(f"  v_lshl_add_u32 v10, v12, 4, v10")
    b(f"  v_bfe_u32 v12, v7, 1, 1")
    b(f"  v_lshl_add_u32 v10, v12, 3, v10")
    b(f"  s_mul_i32 s{S_T+1}, s{S_W}, {4*80}")
    b(f"  s_add_u32 s{S_T+1}, s{S_T+1}, {L3_LN}")
    b(f"  v_add_u32 v10, s{S_T+1}, v10")
    for ps in range(2):
        b(f"  ds_read_b64_tr_b16 {vr(32+4*ps,2)}, v10 offset:{ps*160}")
        b(f"  ds_read_b64_tr_b16 {vr(34+4*ps,2)}, v10 offset:{ps*160 + 4*L3_RS}")
    b(f"  v_lshlrev_b32 v11, 17, v11")
    b(f"  v_and_b32 v12, 31, v7")
    b(f"  v_lshl_add_u32 v11, v12, 4, v11")
    b(f"  s_lshl_b32 s{S_T+1}, s{S_W}, 19")
    b(f"  s_lshl_b32 s{S_T+2}, s2, 9")
    b(f"  s_add_u32 s{S_T+1}, s{S_T+1}, s{S_T+2}")
    b(f"  s_add_u32 s{S_T+2}, s{S_T+1}, {2*131072}")
    b(f"  s_waitcnt lgkmcnt(2)")
    b(f"  buffer_store_dwordx4 v[32:35], v11, s[{SRD_D}:{SRD_D+3}], s{S_T+1} offen{SF}")
    b(f"  s_waitcnt lgkmcnt(0)")
    b(f"  buffer_store_dwordx4 v[36:39], v11, s[{SRD_D}:{SRD_D+3}], s{S_T+2} offen{SF}")
    stamp(b, "p3 stores issued")
    b(f"  s_and_b32 s{S_T+8}, s2, 15")
    arrive(b, 2, S_T + 8, label="x3")
    srd(b, SRD_T, P_W1, W1B)
    b(f"  s_cmp_lt_u32 s{S_W}, 4")
    b(f"  s_cbranch_scc1 p3_nodma")
    b(f"  s_cmp_eq_u32 s62, 0")
    b(f"  s_cbranch_scc1 p3_nodma")
    for n in range(2): loader_issue(b, V_LO, W1F())
    b.label("p3_nodma")

def gemm_core(b, c, pre, after_setup, after_prologue=None):
    NB, NS = c.NB, c.NS
    acc = lambda nb: V_ACC + nb * 16
    VT = V_ACC + NB * 16
    VPR = VT + 32
    c.VT, c.VPR = VT, VPR
    c.vend = VPR + 4 * PR
    tf = lambda q: VT + (q % 8) * 4
    pr = lambda j: VPR + (j % PR) * 4
    FPI = 64
    KPI = FPI // NB
    def tread(q):
        ql = q % FPI
        lslot, within = ql // 16, ql % 16
        ks, nb = within // NB, within % NB
        off = lslot * STAGE + ks * 16 * c.rowb
        b(f"  ds_read_b64_tr_b16 {vr(tf(q),2)}, v{V_T+nb} offset:{off}")
        b(f"  ds_read_b64_tr_b16 {vr(tf(q)+2,2)}, v{V_T+nb} offset:{off+4*c.rowb}")
    def pload(j):
        b(f"  buffer_load_dwordx4 {vr(pr(j),4)}, v{V_P}, s[{SRD_P}:{SRD_P+3}], s{S_POFF} offen offset:{(j%4)*1024}{LF}")
        if j % 4 == 3: b(f"  s_add_u32 s{S_POFF}, s{S_POFF}, 4096")
    def mfma(q):
        nb = q % NB; j = q // NB; a = acc(nb)
        if c.name == "g1":
            b(f"  v_mfma_f32_32x32x16_bf16 {vr(a,16)}, {vr(tf(q),4)}, {vr(pr(j),4)}, {vr(a,16)}")
        else:
            b(f"  v_mfma_f32_32x32x16_bf16 {vr(a,16)}, {vr(pr(j),4)}, {vr(tf(q),4)}, {vr(a,16)}")
    b(f"  s_mov_b32 s{S_POFF}, 0")
    b(f"  s_mov_b32 s{S_DELTA}, {4*STAGE}")
    b(f"  s_mov_b32 s{S_IT}, {NS//4 - 1}")
    after_setup()
    for j in range(PR - 1): pload(j)
    if after_prologue: after_prologue()
    b("  s_barrier")
    for q in range(DQ): tread(q)
    def body(last):
        for q in range(FPI):
            j = q // NB
            qn = q + DQ
            do_read = not (last and qn >= FPI)
            do_pload = False
            if q % NB == 0:
                rem = KPI - 1 - j
                if (not last) or (j + PR - 1 < KPI):
                    b(f"  s_waitcnt vmcnt({PR-2})")
                    do_pload = True
                else:
                    b(f"  s_waitcnt vmcnt({min(PR-2, rem)})")
            if do_read and qn % 16 == 0:
                b("  s_barrier")
            if do_read and qn == FPI:
                for i in range(NB): b(f"  v_add_u32 v{V_T+i}, s{S_DELTA}, v{V_T+i}")
                b(f"  s_sub_u32 s{S_DELTA}, 0, s{S_DELTA}")
            if q % 2 == 0:
                left = min(DQ - 2, FPI - 2 - q) if last else DQ - 2
                b(f"  s_waitcnt lgkmcnt({2*left})")
            mfma(q)
            if do_pload: pload(j + PR - 1)
            if do_read: tread(qn)
    b.label(f"{pre}_loop")
    body(False)
    b(f"  s_sub_u32 s{S_IT}, s{S_IT}, 1")
    b(f"  s_cmp_lg_u32 s{S_IT}, 0")
    b(f"  s_cbranch_scc1 {pre}_loop")
    body(True)

def idle_w1(b):
    srd(b, SRD_PF, P_W1, W1B)
    b(f"  s_and_b32 s51, s50, 7")
    b(f"  s_mul_i32 s51, s51, {256*7168}")
    b(f"  s_lshr_b32 s52, s50, 3")
    b(f"  s_mul_i32 s52, s52, {4*7168}")
    b(f"  s_add_u32 s51, s51, s52")
    b(f"  s_add_u32 s51, s51, {128*7168}")
    b(f"  s_mov_b32 s52, 7")
    b.label("pf_w1b")
    for i in range(4): b(f"  buffer_load_dwordx4 {vr(V_DUMMY,4)}, v29, s[{SRD_PF}:{SRD_PF+3}], s51 offen offset:{1024*i}")
    b(f"  s_add_u32 s51, s51, 4096")
    b(f"  s_waitcnt vmcnt(4)")
    b(f"  s_sub_u32 s52, s52, 1")
    b(f"  s_cmp_lg_u32 s52, 0")
    b(f"  s_cbranch_scc1 pf_w1b")

def idle_w2(b):
    srd(b, SRD_PF, P_W2, W1B)
    b(f"  s_mul_i32 s51, s50, {W1B // 256}")
    b(f"  s_mov_b32 s52, 14")
    b.label("pf_w2")
    for i in range(4): b(f"  buffer_load_dwordx4 {vr(V_DUMMY,4)}, v29, s[{SRD_PF}:{SRD_PF+3}], s51 offen offset:{1024*i}")
    b(f"  s_add_u32 s51, s51, 4096")
    b(f"  s_waitcnt vmcnt(4)")
    b(f"  s_sub_u32 s52, s52, 1")
    b(f"  s_cmp_lg_u32 s52, 0")
    b(f"  s_cbranch_scc1 pf_w2")
    b(f"  s_waitcnt vmcnt(0)")

def g1(b):
    c = g1_cfg()
    b(f"  s_cmp_eq_u32 s62, 0")
    b(f"  s_cbranch_scc1 g1_inactive")
    srd(b, SRD_P, P_WS, 4 << 20, WS_LN2)
    srd(b, SRD_T, P_W1, W1B)
    srd(b, SRD_O, P_WS, U_BYTES, WS_U)
    srd(b, SRD_X, P_B1, 3584 * 2)
    b(f"  s_cmp_ge_u32 s{S_W}, 4")
    b(f"  s_cbranch_scc1 g1_loader")
    lane_geom(b)
    b(f"  s_lshl_b32 s{S_TMP}, s61, 2")
    b(f"  s_add_u32 s{S_TMP}, s{S_TMP}, s{S_W}            ; dblk")
    b(f"  s_lshl_b32 s{S_TMP+2}, s{S_TMP}, 17")
    b(f"  v_lshlrev_b32 v10, 4, v7")
    b(f"  v_add_u32 v{V_P}, s{S_TMP+2}, v10")
    b(f"  s_lshl_b32 s{S_TMP+1}, s60, 8       ; f0*2")
    b(f"  v_lshlrev_b32 v11, 3, v9")
    b(f"  v_add_u32 v11, s{S_TMP+1}, v11")
    BV = 192
    for fb in range(4):
        for i in range(4):
            b(f"  buffer_load_dwordx2 {vr(BV+2*(4*fb+i),2)}, v11, s[{SRD_X}:{SRD_X+3}], 0 offen offset:{64*fb+16*i}")
    b(f"  v_lshl_add_u32 v20, v9, 3, v18")
    b(f"  v_lshlrev_b32 v20, 8, v20")
    b(f"  v_lshl_add_u32 v20, v18, 6, v20")
    b(f"  v_lshl_add_u32 v20, v19, 5, v20")
    b(f"  v_lshl_add_u32 v{V_T}, v22, 3, v20")
    for fb in range(1, 4):
        b(f"  v_xor_b32 v{V_T+fb}, {64*fb}, v{V_T}")
    b(f"  s_mul_i32 s{S_TMP+2}, s{S_TMP}, 229376")
    b(f"  s_lshl_b32 s{S_TMP+1}, s60, 13")
    b(f"  s_add_u32 s{S_TMP+1}, s{S_TMP+1}, s{S_TMP+2}")
    b(f"  v_add_u32 v28, s{S_TMP+1}, v10")
    b(f"  s_waitcnt vmcnt(0)")
    for fb in range(4):
        for i in range(4):
            bv = BV + 2 * (4 * fb + i); a = V_ACC + fb * 16 + 4 * i
            b(f"  v_lshlrev_b32 v{a}, 16, v{bv}")
            b(f"  v_and_b32 v{a+1}, 0xffff0000, v{bv}")
            b(f"  v_lshlrev_b32 v{a+2}, 16, v{bv+1}")
            b(f"  v_and_b32 v{a+3}, 0xffff0000, v{bv+1}")
    def w3():
        wait(b, 2, 16, "x3c")
        stamp(b, "x3 released")
        stamp(b, "c:g1 start")
    gemm_core(b, c, "g1", w3)
    stamp(b, "c:g1 end")
    stamp(b, "g1 main done")
    K1 = -2.0 * 0.7978845608028654 * 1.4426950408889634
    K2 = K1 * 0.044715
    T = c.VPR
    b(f"  v_mov_b32 v{T}, {hex(f2u(K1))}")
    b(f"  v_mov_b32 v{T+1}, {hex(f2u(K1))}")
    b(f"  v_mov_b32 v{T+2}, {hex(f2u(K2))}")
    b(f"  v_mov_b32 v{T+3}, {hex(f2u(K2))}")
    b(f"  s_nop 7")
    W = T + 8
    for fb in range(4):
        a = V_ACC + fb * 16; t = W; o = W + 16 + 8 * (fb % 2)
        for h in range(0, 16, 2): b(f"  v_pk_mul_f32 {vr(t+h,2)}, {vr(a+h,2)}, {vr(a+h,2)}")
        for h in range(0, 16, 2): b(f"  v_pk_fma_f32 {vr(t+h,2)}, {vr(t+h,2)}, {vr(T+2,2)}, {vr(T,2)}")
        for h in range(0, 16, 2): b(f"  v_pk_mul_f32 {vr(t+h,2)}, {vr(t+h,2)}, {vr(a+h,2)}")
        for r in range(16): b(f"  v_exp_f32 v{t+r}, v{t+r}")
        for h in range(0, 16, 2): b(f"  v_pk_add_f32 {vr(t+h,2)}, {vr(t+h,2)}, 1.0 op_sel_hi:[1,0]")
        for r in range(16): b(f"  v_rcp_f32 v{t+r}, v{t+r}")
        for h in range(0, 16, 2): b(f"  v_pk_mul_f32 {vr(t+h,2)}, {vr(a+h,2)}, {vr(t+h,2)}")
        for i in range(4):
            b(f"  v_cvt_pk_bf16_f32 v{o+2*i}, v{t+4*i}, v{t+4*i+1}")
            b(f"  v_cvt_pk_bf16_f32 v{o+2*i+1}, v{t+4*i+2}, v{t+4*i+3}")
        for ip in range(2):
            oo = o + 4 * ip
            b(f"  s_mov_b32 s{S_TMP+1}, {(2*fb+ip)*1024}")
            b(f"  s_nop 0")
            b(f"  v_permlane32_swap_b32 v{oo}, v{oo+2}")
            b(f"  v_permlane32_swap_b32 v{oo+1}, v{oo+3}")
            b(f"  buffer_store_dwordx4 {vr(oo,4)}, v28, s[{SRD_O}:{SRD_O+3}], s{S_TMP+1} offen{SF}")
    stamp(b, "g1 stores issued")
    b(f"  s_waitcnt vmcnt(0)")
    b(f"  s_branch g1_join")
    b.label("g1_loader")
    b(f"  s_sub_u32 s50, s{S_W}, 4")
    b(f"  s_lshl_b32 s49, s50, 10")
    b(f"  s_add_u32 s{S_N+1}, s49, {R*STAGE}")
    b(f"  s_barrier")
    for n in range(R - 4): loader_issue(b, V_LO, W1F())
    loader_loop(b, c.NS, "g1", W1F())
    stamp(b, "g1 main done")
    g2_prologue_loader(b)
    stamp(b, "g1 stores issued")
    b.label("g1_join")
    arrive(b, 3, 61, label="x4", drained=True)
    b(f"  s_branch g2_start")
    b.label("g1_inactive")
    if "nopf" not in OPT:
        b(f"  s_sub_u32 s50, s2, 224")
        b(f"  s_lshl_b32 s50, s50, 3")
        b(f"  s_add_u32 s50, s50, s{S_W}")
        b(f"  v_lshlrev_b32 v29, 4, v7")
        idle_w2(b)
    b(f"  s_cmp_lt_u32 s{S_W}, 4")
    b(f"  s_cbranch_scc1 g2_start_inactive")
    g2_prologue_loader(b)
    b.label("g2_start_inactive")
    return c

def g2_prologue_loader(b):
    g2_ids(b)
    srd(b, SRD_T, P_W2, W1B)
    g2_loader_addr(b)
    loader_init(b, 128 * 4096)
    for n in range(2): loader_issue(b, V_LO, W2F())

def g2(b):
    c = g2_cfg()
    b.label("g2_start")
    g2_ids(b)
    srd(b, SRD_P, P_WS, U_BYTES, WS_U)
    srd(b, SRD_O, P_OUT, 4 << 20)
    srd(b, SRD_X, P_B2, 2048 * 2)
    srd(b, SRD_Y, P_WS, 4 << 20, WS_H)
    b(f"  s_cmp_ge_u32 s{S_W}, 4")
    b(f"  s_cbranch_scc1 g2_loader")
    lane_geom(b)
    b(f"  s_lshl_b32 s{S_TMP}, s{S_TILE_A}, 2")
    b(f"  s_add_u32 s{S_TMP}, s{S_TMP}, s{S_W}        ; dblk")
    b(f"  s_mul_i32 s{S_TMP+2}, s{S_TMP}, 229376")
    b(f"  v_lshlrev_b32 v10, 4, v7")
    b(f"  v_add_u32 v{V_P}, s{S_TMP+2}, v10")
    b(f"  s_lshl_b32 s{S_TMP+1}, s{S_TILE_B}, 6       ; s0")
    b(f"  v_add_u32 v11, s{S_TMP+1}, v8              ; s0 + s'")
    b(f"  v_lshlrev_b32 v16, 1, v11")
    for sb in range(2):
        b(f"  buffer_load_ushort v{12+sb}, v16, s[{SRD_X}:{SRD_X+3}], 0 offen offset:{64*sb}")
    b(f"  v_lshlrev_b32 v17, 11, v11")
    b(f"  v_lshl_add_u32 v17, v9, 5, v17")
    b(f"  s_lshl_b32 s{S_TMP+2}, s{S_TMP}, 6")
    b(f"  v_add_u32 v28, s{S_TMP+2}, v17")
    HV = 160
    b(f"  v_lshl_add_u32 v20, v9, 3, v18            ; row")
    b(f"  v_bfe_u32 v21, v18, 1, 1")
    b(f"  v_lshlrev_b32 v20, 7, v20")
    b(f"  v_lshl_add_u32 v20, v21, 6, v20")
    b(f"  v_lshl_add_u32 v20, v19, 5, v20")
    b(f"  v_lshl_add_u32 v{V_T}, v22, 3, v20")
    b(f"  v_xor_b32 v{V_T+1}, 64, v{V_T}")
    for i in range(32): b(f"  v_mov_b32 v{V_ACC+i}, 0")
    def w4():
        wait(b, 3, 28, "x4c", single_sreg=S_TILE_A)
        stamp(b, "x4 released")
        stamp(b, "c:g2 start")
    def hloads():
        for sb in range(2):
            b(f"  s_mov_b32 s{S_TMP+1}, {sb*65536}")
            b(f"  buffer_load_dwordx4 {vr(HV+8*sb,4)}, v28, s[{SRD_Y}:{SRD_Y+3}], s{S_TMP+1} offen{LF}")
            b(f"  buffer_load_dwordx4 {vr(HV+8*sb+4,4)}, v28, s[{SRD_Y}:{SRD_Y+3}], s{S_TMP+1} offen offset:16{LF}")
    gemm_core(b, c, "g2", w4, hloads)
    stamp(b, "c:g2 end")
    stamp(b, "g2 main done")
    T = c.VT
    b(f"  s_mov_b32 s{S_TMP}, 0xffff0000")
    for sb in range(2):
        b(f"  v_lshlrev_b32 v{12+sb}, 16, v{12+sb}")
    b(f"  s_nop 9")
    for sb in range(2):
        for half in range(2):
            o = T + 4 * ((sb * 2 + half) % 2)
            for dd in range(4):
                a = V_ACC + sb * 16 + half * 8 + 2 * dd
                hv = HV + 8 * sb + 4 * half + dd
                t0 = T + 8 + 4 * dd
                b(f"  v_cvt_pk_bf16_f32 v{t0}, v{a}, v{a+1}")
                b(f"  v_and_b32 v{t0+1}, s{S_TMP}, v{t0}")
                b(f"  v_lshlrev_b32 v{t0}, 16, v{t0}")
                b(f"  v_add_f32 v{t0}, v{t0}, v{12+sb}")
                b(f"  v_add_f32 v{t0+1}, v{t0+1}, v{12+sb}")
                b(f"  v_cvt_pk_bf16_f32 v{t0}, v{t0}, v{t0+1}")
                b(f"  v_and_b32 v{t0+1}, s{S_TMP}, v{t0}")
                b(f"  v_lshlrev_b32 v{t0}, 16, v{t0}")
                b(f"  v_lshlrev_b32 v{t0+2}, 16, v{hv}")
                b(f"  v_and_b32 v{t0+3}, s{S_TMP}, v{hv}")
                b(f"  v_add_f32 v{t0}, v{t0}, v{t0+2}")
                b(f"  v_add_f32 v{t0+1}, v{t0+1}, v{t0+3}")
                if DELTA:
                    b(f"  v_add_f32 v{t0}, {hex(f2u(DELTA))}, v{t0}")
                    b(f"  v_add_f32 v{t0+1}, {hex(f2u(DELTA))}, v{t0+1}")
                b(f"  v_cvt_pk_bf16_f32 v{o+dd}, v{t0}, v{t0+1}")
            b(f"  s_mov_b32 s{S_TMP+1}, {sb*65536}")
            b(f"  buffer_store_dwordx4 {vr(o,4)}, v28, s[{SRD_O}:{SRD_O+3}], s{S_TMP+1} offen offset:{16*half}")
    stamp(b, "g2 stores issued")
    b(f"  s_branch g2_done")
    b.label("g2_loader")
    b(f"  s_barrier")
    for n in range(R - 4): loader_issue(b, V_LO, W2F())
    loader_loop(b, c.NS, "g2", W2F())
    b.label("g2_done")

def build():
    NAME = "sequential_preLN__spectral_gfnet__mixer_token_mlp__prompt"
    hdr = open(f"cdna_kernels/{NAME}.s.ref").read().split("; Override launch")[0]
    K = NAME + "_kernel"
    b = B()
    b(hdr.rstrip("\n"))
    b(f"; @launch grid=(256,1,1) block=(512,1,1) lds={LDS_TOTAL}")
    b('.amdgcn_target "amdgcn-amd-amdhsa--gfx950"\n.text')
    b(f".globl {K}\n.p2align 8\n.type {K},@function\n{K}:")
    b(f"  s_cmp_ge_u32 s2, 256\n  s_cbranch_scc1 k_exit")
    if "stamp" in OPT: b("  v_mov_b32 v231, 0")
    stamp(b, "entry")
    b(f"  s_load_dwordx4 s[{P_X}:{P_X+3}], s[0:1], 0        ; x, w_r")
    b(f"  s_load_dwordx2 s[{P_WI}:{P_WI+1}], s[0:1], 16")
    b(f"  s_load_dwordx2 s[{P_W1}:{P_W1+1}], s[0:1], 32")
    b(f"  s_load_dwordx4 s[{P_B1}:{P_B1+3}], s[0:1], 40     ; b1, w2")
    b(f"  s_load_dwordx4 s[{P_B2}:{P_B2+3}], s[0:1], 56     ; b2, out")
    b(f"  s_load_dwordx4 s[{P_DBG}:{P_DBG+3}], s[0:1], 72")
    b(f"  v_lshrrev_b32 v6, 6, v0")
    b(f"  v_and_b32 v7, 63, v0        ; lane")
    b(f"  v_readfirstlane_b32 s{S_W}, v6")
    b(f"  v_and_b32 v8, 15, v7          ; c")
    b(f"  v_lshrrev_b32 v9, 4, v7       ; g")
    b(f"  s_waitcnt lgkmcnt(0)")
    srd(b, SRD_CNT, P_WS, 65536, WS_CNT)
    p1(b)
    p2_setup(b)
    wait(b, 0, 16, "x1c")
    stamp(b, "x1 released")
    p2_main(b)
    p3_setup(b)
    wait(b, 1, 16, "x2c")
    stamp(b, "x2 released")
    p3_main(b)
    g1(b)
    g2(b)
    b(f"  s_waitcnt vmcnt(0)")
    stamp(b, "end")
    stamp_flush(b)
    b("k_exit:\n  s_endpgm")
    b(kd(K, 240, sgpr=102))
    return b.text()

if __name__ == "__main__":
    out = sys.argv[1]
    OPT.update(sys.argv[2:])
    for o in sys.argv[2:]:
        if o.startswith("delta="): DELTA = float(o[6:])
        if o.startswith("pfn="): PFN[:] = [int(c) for c in o[4:].split(",")]
    gemm.OPT.update(sys.argv[2:])
    t = build()
    open(out, "w").write(t)
    rep = check_text(t)
    print("\n".join(rep) if rep else "no hazards found", "| stamps:", nstamp[0])
```

```python
import sys
from asmlib import *
import gemm, fft
from gemm import (srd, f2u, WS_X1, WS_X2, WS_H, WS_LN2, WS_U, U_BYTES, S_W, R, STAGE, PR, DQ,
                  V_P, V_T, V_ACC, S_POFF, S_IT, S_DELTA, SRD_P, SRD_T, SRD_O, SRD_X, SRD_Y, S_TILE_A, S_TILE_B, S_TMP,
                  g1_cfg, g2_cfg, lane_geom)
from fft import sincos, wave_reduce, ln_finish, layernorm16, cmul_pk, gmat, MF32, MF16

OPT = set()
PFN = [0, 4, 0, 4]
WS_CNT = 30 << 20
WS_STAMP = 31 << 20
WS_XCH = 24 << 20
W1B = 2048 * 3584 * 2
WB = 2048 * 1026

P_X, P_WR, P_WI, P_W1, P_B1, P_W2, P_B2, P_OUT, P_DBG, P_WS = 64, 66, 68, 70, 72, 74, 76, 78, 80, 82
SRD_CNT = 12
S_T = 46
SRD_A, SRD_B, SRD_C, SRD_D = 24, 28, 32, 36
SRD_PF = 56
S_STAMP = 84
SF = " sc1"
LF = ""

L1_M1, L1_M2, L1_TW, L1_EX = 0, 4096, 8192, 16384
L2_F = 32768; L2_X = L2_F + 2048; L2_W = L2_X + 16 * 1040
L3_M3 = 98304; L3_M4 = L3_M3 + 4096; L3_TW = L3_M3 + 8192; L3_EX = L3_M3 + 16384
L3_LN = L3_EX + 16384; L3_RS = 2624
LDS_TOTAL = L3_LN + 8 * L3_RS
assert LDS_TOTAL <= 163840

STAMPS = ["entry", "p1 x landed", "p1 stores issued", "p1 arrived", "x1 released", "p2 x landed", "p2 stores issued",
          "x2 released", "p3 x2 landed", "p3 stores issued", "x3 released", "g1 main done", "g1 stores issued", "x4 released",
          "g2 main done", "g2 stores issued", "end", "x1 drained", "x2 drained", "x3 drained", "x4 drained", "p1 tables done", "p1 ln done", "p1 fft done", "p3 ifft done", "p3 ln done", "c:g1 start", "c:g1 end", "c:g2 start", "c:g2 end", "g2 x landed"]
nstamp = [len(STAMPS)]
SENT = lambda: "bar" not in OPT
SK = lambda: "nosk" not in OPT
W1F = lambda: " nt" if "ntw1" in OPT else ""
W2F = lambda: " nt" if "ntw2" in OPT else ""
XF = lambda: " nt" if "ntx" in OPT else ""
def stamp(b, name):
    if "stamp" not in OPT: return
    i = STAMPS.index(name)
    op = "s_memtime" if name.startswith("c:") else "s_memrealtime"
    b(f"  {op} s[{S_STAMP}:{S_STAMP+1}]   ; stamp {i}: {name}")
    b(f"  s_waitcnt lgkmcnt(0)")
    b(f"  v_writelane_b32 v231, s{S_STAMP}, {i}")

def stamp_flush(b):
    if "stamp" not in OPT: return
    if "dbgtime" in OPT:
        b(f"  s_cmp_lg_u32 s2, 100")
        b(f"  s_cbranch_scc1 dbg_skip")
        b(f"  s_cmp_lg_u32 s{S_W}, 0")
        b(f"  s_cbranch_scc1 dbg_skip")
        srd(b, 24, P_DBG, 256)
        b(f"  v_readlane_b32 s46, v231, 0")
        b(f"  s_nop 1")
        b(f"  v_subrev_u32 v3, s46, v231")
        b(f"  v_lshlrev_b32 v2, 2, v7")
        b(f"  v_subrev_u32 v2, 4, v2")
        b(f"  s_mov_b64 s[48:49], exec")
        b(f"  s_mov_b64 exec, 0x1fffe")
        b(f"  buffer_store_dword v3, v2, s[24:27], 0 offen")
        b(f"  s_mov_b64 exec, s[48:49]")
        b.label("dbg_skip")
        return
    srd(b, 24, P_WS, 1 << 20, WS_STAMP)
    b(f"  s_lshl_b32 s46, s2, 3")
    b(f"  s_add_u32 s46, s46, s{S_W}")
    b(f"  s_lshl_b32 s46, s46, 7            ; (wg*8+wave)*128")
    b(f"  v_lshlrev_b32 v2, 2, v7")
    b(f"  s_mov_b64 s[48:49], exec")
    b(f"  s_mov_b64 exec, 0xffffffff")
    b(f"  buffer_store_dword v231, v2, s[24:27], s46 offen")
    b(f"  s_mov_b64 exec, s[48:49]")

def arrive(b, bar, shard_sreg, first=False, label="", drained=False):
    if not drained: b(f"  s_waitcnt vmcnt(0)")
    stamp(b, f"x{bar+1} drained")
    b(f"  s_barrier")
    b(f"  s_cmp_lg_u32 s{S_W}, 0")
    b(f"  s_cbranch_scc1 {label}_arr_skip")
    if first:
        b(f"  s_mov_b32 s11, 100000")
        b.label(f"{label}_rdy")
        b(f"  v_cmp_ne_u32 vcc, 0, v27")
        b(f"  s_nop 1")
        b(f"  s_cmp_eq_u64 vcc, exec")
        b(f"  s_cbranch_scc1 {label}_rdy_ok")
        b(f"  buffer_load_dword v27, v26, s[{SRD_PF}:{SRD_PF+3}], 0 offen sc1")
        b(f"  s_waitcnt vmcnt(0)")
        b(f"  s_sub_u32 s11, s11, 1")
        b(f"  s_cmp_lg_u32 s11, 0")
        b(f"  s_cbranch_scc1 {label}_rdy")
        b.label(f"{label}_rdy_ok")
    b(f"  s_lshl_b32 s10, s{shard_sreg}, 8")
    b(f"  s_add_u32 s10, s10, {bar*4096}")
    b(f"  v_mov_b32 v228, s10")
    b(f"  v_mov_b32 v229, 1")
    b(f"  s_mov_b64 s[16:17], exec")
    b(f"  s_mov_b64 exec, 1")
    b(f"  buffer_atomic_add v229, v228, s[{SRD_CNT}:{SRD_CNT+3}], 0 offen sc1")
    b(f"  s_mov_b64 exec, s[16:17]")
    b.label(f"{label}_arr_skip")

def wait(b, bar, target, label, single_sreg=None):
    b(f"  s_cmp_lg_u32 s{S_W}, 0")
    b(f"  s_cbranch_scc1 {label}_w_skip")
    if single_sreg is None:
        b(f"  v_and_b32 v228, 15, v7")
        b(f"  v_lshlrev_b32 v228, 8, v228")
        b(f"  v_add_u32 v228, {bar*4096}, v228")
    else:
        b(f"  s_lshl_b32 s10, s{single_sreg}, 8")
        b(f"  s_add_u32 s10, s10, {bar*4096}")
        b(f"  v_mov_b32 v228, s10")
    b(f"  s_mov_b32 s11, 200000")
    b.label(f"{label}_poll")
    b(f"  buffer_load_dword v229, v228, s[{SRD_CNT}:{SRD_CNT+3}], 0 offen sc1")
    b(f"  s_waitcnt vmcnt(0)")
    b(f"  v_cmp_le_u32 vcc, {target}, v229")
    b(f"  s_nop 1")
    b(f"  s_cmp_eq_u64 vcc, exec")
    b(f"  s_cbranch_scc1 {label}_w_skip")
    b(f"  s_sub_u32 s11, s11, 1")
    b(f"  s_cmp_lg_u32 s11, 0")
    b(f"  s_cbranch_scc1 {label}_poll")
    b.label(f"{label}_w_skip")
    b(f"  s_barrier")

def prefetch(b, ptr_pair, nbytes, start, length, who_scale, who_sreg, vaddr, vdst, stmp, paced=False):
    chunk = -(-length // who_scale)
    n_per_wave = -(-chunk // (512 * 128))
    stride = -(-chunk // (512 * n_per_wave))
    stride = (stride + 3) // 4 * 4
    per_instr = 64 * stride
    srd(b, SRD_PF, ptr_pair, nbytes)
    b(f"  s_mul_i32 s{stmp}, s{who_sreg}, {chunk}")
    b(f"  s_mul_i32 s{stmp+1}, s{S_W}, {n_per_wave*per_instr}")
    b(f"  s_add_u32 s{stmp}, s{stmp}, s{stmp+1}")
    if start: b(f"  s_add_u32 s{stmp}, s{stmp}, {start}")
    b(f"  v_mul_u32_u24 v{vaddr}, {stride}, v7")
    for i in range(n_per_wave):
        b(f"  buffer_load_dword v{vdst}, v{vaddr}, s[{SRD_PF}:{SRD_PF+3}], s{stmp} offen")
        if i + 1 < n_per_wave: b(f"  s_add_u32 s{stmp}, s{stmp}, {per_instr}")
        if paced: b(f"  s_waitcnt vmcnt(0)")
    return n_per_wave

V_DUMMY = 232
def pf_wide(b, ptr_pair, nbytes, s_base, n, wave_lo, wave_hi, label):
    b(f"  s_cmp_lt_u32 s{S_W}, {wave_lo}")
    b(f"  s_cbranch_scc1 {label}")
    if wave_hi < 8:
        b(f"  s_cmp_ge_u32 s{S_W}, {wave_hi}")
        b(f"  s_cbranch_scc1 {label}")
    srd(b, SRD_PF, ptr_pair, nbytes)
    b(f"  s_sub_u32 s{S_T+9}, s{S_W}, {wave_lo}")
    b(f"  s_mul_i32 s{S_T+9}, s{S_T+9}, {n*1024}")
    b(f"  s_add_u32 s{S_T+9}, s{S_T+9}, s{s_base}")
    b(f"  v_lshlrev_b32 v29, 4, v7")
    for i in range(n):
        if i and i % 4 == 0: b(f"  s_add_u32 s{S_T+9}, s{S_T+9}, 4096")
        b(f"  buffer_load_dwordx4 {vr(V_DUMMY,4)}, v29, s[{SRD_PF}:{SRD_PF+3}], s{S_T+9} offen offset:{(i%4)*1024}")
    b.label(label)

def w1_share_base(b, sreg, part):
    b(f"  s_mul_i32 s{sreg}, s2, {W1B // 256}")
    if part: b(f"  s_add_u32 s{sreg}, s{sreg}, {part}")

def w1_first_half_base(b, sreg, part):
    b(f"  s_and_b32 s{sreg}, s2, 7")
    b(f"  s_mul_i32 s{sreg}, s{sreg}, {256*7168}")
    b(f"  s_lshr_b32 s{S_T+9}, s2, 3")
    b(f"  s_mul_i32 s{S_T+9}, s{S_T+9}, {4*7168}")
    b(f"  s_add_u32 s{sreg}, s{sreg}, s{S_T+9}")
    if part: b(f"  s_add_u32 s{sreg}, s{sreg}, {part}")

def p1_tables(b):
    M1, M2, TW = L1_M1, L1_M2, L1_TW
    b(f"  v_and_b32 v10, 255, v0            ; e")
    b(f"  v_lshrrev_b32 v11, 8, v0          ; u")
    b(f"  v_bfe_u32 v12, v10, 2, 4          ; lane&15")
    b(f"  v_lshl_add_u32 v12, v11, 4, v12   ; k1")
    b(f"  v_lshrrev_b32 v13, 6, v10         ; g")
    b(f"  v_and_b32 v14, 3, v10")
    b(f"  v_lshlrev_b32 v13, 3, v13")
    b(f"  v_lshl_add_u32 v13, v14, 1, v13   ; a0 = 8g + 2i")
    b(f"  v_mul_u32_u24 v15, v13, v12       ; a0*k1")
    b(f"  v_add_u32 v16, v15, v12           ; (a0+1)*k1")
    sincos(b, 17, 18, 15, 5, 21)
    sincos(b, 19, 20, 16, 5, 21)
    b(f"  v_lshlrev_b32 v22, 2, v10")
    b(f"  v_lshl_add_u32 v22, v11, 11, v22  ; u*2048 + e*4")
    b(f"  v_cvt_pk_bf16_f32 v23, v17, v19")
    b(f"  v_cvt_pk_bf16_f32 v24, -v18, -v20")
    b(f"  ds_write_b32 v22, v23 offset:{M1}")
    b(f"  ds_write_b32 v22, v24 offset:{M1+1024}")
    sincos(b, 17, 18, 15, 10, 21)
    sincos(b, 19, 20, 16, 10, 21)
    b(f"  ds_write_b32 v22, v17 offset:{TW}")
    b(f"  ds_write_b32 v22, v18 offset:{TW+1024}")
    b(f"  ds_write_b32 v22, v19 offset:{TW+4096}")
    b(f"  ds_write_b32 v22, v20 offset:{TW+4096+1024}")
    b(f"  v_bfe_u32 v12, v10, 2, 4          ; k2")
    b(f"  v_mul_u32_u24 v15, v13, v12")
    b(f"  v_add_u32 v16, v15, v12")
    sincos(b, 17, 18, 15, 5, 21)
    sincos(b, 19, 20, 16, 5, 21)
    b(f"  v_lshlrev_b32 v22, 2, v10")
    b(f"  v_cvt_pk_bf16_f32 v23, v17, v19")
    b(f"  v_cvt_pk_bf16_f32 v24, v18, v20")
    b(f"  v_cvt_pk_bf16_f32 v25, -v18, -v20")
    b(f"  ds_write_b32 v22, v23 offset:{M2}")
    b(f"  ds_write_b32 v22, v24 offset:{M2+1024}")
    b(f"  ds_write_b32 v22, v25 offset:{M2+2048}")

def x1_store_addr(b):
    b(f"  v_lshlrev_b32 v5, 15, v9")
    b(f"  v_lshl_add_u32 v5, v8, 2, v5")
    b(f"  s_and_b32 s{S_T+6}, s2, 15")
    b(f"  s_lshl_b32 s{S_T+6}, s{S_T+6}, 4")
    b(f"  s_lshr_b32 s{S_T+7}, s2, 4")
    b(f"  s_add_u32 s{S_T+6}, s{S_T+6}, s{S_T+7}")
    b(f"  s_lshl_b32 s{S_T+6}, s{S_T+6}, 6       ; pos*64")
    b(f"  s_lshl_b32 s{S_T+7}, s{S_W}, 19        ; 4w*131072")
    b(f"  s_add_u32 s44, s{S_T+6}, s{S_T+7}")

def p1(b):
    srd(b, SRD_A, P_X, 4 << 20)
    srd(b, SRD_B, P_WS, 4 << 20, WS_X1)
    b(f"  s_lshl_b32 s{S_T}, s{S_W}, 8")
    b(f"  s_add_u32 s{S_T}, s{S_T}, s2          ; s")
    b(f"  s_lshl_b32 s{S_T+1}, s{S_T}, 11")
    b(f"  v_lshlrev_b32 v1, 9, v9")
    b(f"  v_lshl_add_u32 v1, v8, 2, v1")
    XD = 32
    for i in range(8):
        b(f"  buffer_load_dword v{XD+i}, v1, s[{SRD_A}:{SRD_A+3}], s{S_T+1} offen offset:{64*i}{XF()}")
    b(f"  s_cmp_ge_u32 s2, 16")
    b(f"  s_cbranch_scc1 p1_noreset")
    b(f"  s_cmp_lg_u32 s{S_W}, 0")
    b(f"  s_cbranch_scc1 p1_noreset")
    b(f"  s_lshl_b32 s{S_T+2}, s2, 8")
    b(f"  v_lshlrev_b32 v2, 12, v7")
    b(f"  v_add_u32 v2, s{S_T+2}, v2")
    b(f"  v_mov_b32 v3, 0")
    b(f"  s_mov_b64 s[48:49], exec")
    b(f"  s_mov_b64 exec, 15")
    b(f"  buffer_store_dword v3, v2, s[{SRD_CNT}:{SRD_CNT+3}], 0 offen sc1")
    b(f"  s_mov_b64 exec, s[48:49]")
    b.label("p1_noreset")
    NCLR = 0
    x1_store_addr(b)
    if SENT():
        b(f"  v_mov_b32 v60, -1")
        b(f"  v_mov_b32 v61, -1")
        b(f"  v_mov_b32 v62, -1")
        b(f"  v_mov_b32 v63, -1")
        b(f"  v_bfe_u32 v2, v7, 2, 3              ; j1")
        b(f"  v_lshrrev_b32 v3, 5, v7             ; i (0,1)")
        b(f"  v_lshlrev_b32 v2, 14, v2")
        b(f"  v_lshl_add_u32 v2, v3, 17, v2")
        b(f"  v_and_b32 v3, 3, v7")
        b(f"  v_lshl_add_u32 v2, v3, 4, v2")
        b(f"  buffer_store_dwordx4 v[60:63], v2, s[{SRD_B}:{SRD_B+3}], s44 offen{SF}")
        b(f"  s_add_u32 s{S_T+7}, s44, {2*131072}")
        b(f"  buffer_store_dwordx4 v[60:63], v2, s[{SRD_B}:{SRD_B+3}], s{S_T+7} offen{SF}")
        NCLR = 2
    npf = 0
    p1_tables(b)
    GM = 30
    gmat(b, GM, 2, False, 10)
    b(f"  s_waitcnt lgkmcnt(0)")
    stamp(b, "p1 tables done")
    b(f"  s_barrier")
    npf = 0
    if "nopf" not in OPT:
        b(f"  s_mul_i32 s{S_T+8}, s2, 8208")
        if "ntx" not in OPT and "wpf" in OPT:
            pf_wide(b, P_WR, WB, S_T + 8, 3, 0, 3, "pf_p1a")
            pf_wide(b, P_WI, WB, S_T + 8, 3, 0, 3, "pf_p1b")
        if "ntw1" not in OPT and PFN[0]:
            w1_share_base(b, S_T + 8, 0)
            pf_wide(b, P_W1, W1B, S_T + 8, PFN[0], 4, 8, "pf_p1c")
    M1, M2, TW = 96, 112, 128
    b(f"  v_lshlrev_b32 v2, 4, v7")
    for i in range(4): b(f"  ds_read_b128 {vr(M1+4*i,4)}, v2 offset:{L1_M1+1024*i}")
    for i in range(3): b(f"  ds_read_b128 {vr(M2+4*i,4)}, v2 offset:{L1_M2+1024*i}")
    for i in range(8): b(f"  ds_read_b128 {vr(TW+4*i,4)}, v2 offset:{L1_TW+1024*i}")
    X = 40
    nW = 0 if ("nopf" in OPT or "ntx" in OPT or "wpf" not in OPT) else 6
    n1 = 0 if ("nopf" in OPT or "ntw1" in OPT) else PFN[0]
    b(f"  s_cmp_eq_u32 s{S_W}, 3")
    b(f"  s_cbranch_scc1 p1_xw0")
    b(f"  s_cmp_ge_u32 s{S_W}, 4")
    b(f"  s_cbranch_scc1 p1_xw4")
    b(f"  s_waitcnt vmcnt({NCLR + nW})")
    b(f"  s_branch p1_xwd")
    b.label("p1_xw4")
    b(f"  s_waitcnt vmcnt({NCLR + n1})")
    b(f"  s_branch p1_xwd")
    b.label("p1_xw0")
    b(f"  s_waitcnt vmcnt({NCLR})")
    b.label("p1_xwd")
    stamp(b, "p1 x landed")
    srd(b, SRD_PF, P_DBG, 256)
    b(f"  s_and_b32 s{S_T+8}, s2, 15")
    b(f"  s_lshl_b32 s{S_T+9}, s{S_T+8}, 2")
    b(f"  s_add_u32 s{S_T+9}, s{S_T+9}, 64")
    b(f"  v_mov_b32 v25, s{S_T+9}")
    b(f"  v_lshlrev_b32 v26, 2, v8")
    b(f"  v_add_u32 v26, 64, v26")
    b(f"  s_cmp_ge_u32 s2, 16")
    b(f"  s_cbranch_scc1 p1_noflag")
    b(f"  s_cmp_lg_u32 s{S_W}, 0")
    b(f"  s_cbranch_scc1 p1_noflag")
    b(f"  v_mov_b32 v3, 1")
    b(f"  s_mov_b64 s[48:49], exec")
    b(f"  s_mov_b64 exec, 1")
    b(f"  buffer_store_dword v3, v25, s[{SRD_PF}:{SRD_PF+3}], 0 offen sc1")
    b(f"  s_mov_b64 exec, s[48:49]")
    b.label("p1_noflag")
    for i in range(8):
        b(f"  v_lshlrev_b32 v{X+i}, 16, v{XD+i}")
        b(f"  v_and_b32 v{X+8+i}, 0xffff0000, v{XD+i}")
    T = 56
    b(f"  v_add_f32 v{T}, v{X}, v{X+1}")
    b(f"  v_add_f32 v{T+1}, v{X+8}, v{X+9}")
    for i in range(2, 8):
        b(f"  v_add_f32 v{T}, v{T}, v{X+i}")
        b(f"  v_add_f32 v{T+1}, v{T+1}, v{X+8+i}")
    wave_reduce(b, [T, T+1])
    b(f"  v_sub_f32 v{T+2}, v{T}, v{T+1}       ; E - O")
    b(f"  v_add_f32 v{T}, v{T}, v{T+1}")
    b(f"  s_nop 0")
    b(f"  v_readlane_b32 s{S_T+2}, v{T}, 63")
    b(f"  v_readlane_b32 s{S_T+4}, v{T+2}, 63")
    b(f"  s_nop 1")
    ln_finish(b, X, T, S_T+2, S_T+3)
    b(f"  v_mul_f32 v{T+6}, s{S_T+4}, v{T+4}")
    stamp(b, "p1 ln done")
    if SENT():
        b(f"  buffer_load_dword v27, v26, s[{SRD_PF}:{SRD_PF+3}], 0 offen sc1")
        b(f"  s_and_b32 s{S_T+8}, s2, 15")
        arrive(b, 0, S_T + 8, first=True, label="x1")
        stamp(b, "p1 arrived")
        srd(b, SRD_C, P_WS, 4 << 20, WS_X2)
        for i in range(4): b(f"  v_mov_b32 v{200+i}, -1")
        b(f"  v_lshlrev_b32 v2, 4, v0")
        b(f"  s_lshl_b32 s{S_T+7}, s2, 14")
        b(f"  buffer_store_dwordx4 v[200:203], v2, s[{SRD_C}:{SRD_C+3}], s{S_T+7} offen{SF}")
        b(f"  s_add_u32 s{S_T+7}, s{S_T+7}, 8192")
        b(f"  buffer_store_dwordx4 v[200:203], v2, s[{SRD_C}:{SRD_C+3}], s{S_T+7} offen{SF}")
    A = 64
    for be in range(2):
        for i in range(4):
            b(f"  v_cvt_pk_bf16_f32 v{A+4*be+i}, v{X+8*be+2*i}, v{X+8*be+2*i+1}")
    b(f"  s_waitcnt lgkmcnt(0)")
    b(f"  v_readlane_b32 s{S_T+5}, v{T+6}, 0")
    Y = 160
    for be in range(2):
        for u in range(2):
            for c in range(2):
                d = Y + ((be * 2 + u) * 2 + c) * 4
                b(f"  {MF32} {vr(d,4)}, {vr(A+4*be,4)}, {vr(M1+4*(2*u+c),4)}, 0")
    b(f"  s_nop 4")
    Bp = 72; W = 32; O = 40
    for u in range(2):
        for be in range(2):
            y = Y + ((be * 2 + u) * 2) * 4
            tw = TW + (be * 4 + u * 2) * 4
            cmul_pk(b, O + 8 * be, O + 8 * be + 4, y, y + 4, tw, tw + 4, W, False)
        for r in range(4):
            b(f"  v_cvt_pk_bf16_f32 v{Bp+8*u+r}, v{O+r}, v{O+8+r}")
            b(f"  v_cvt_pk_bf16_f32 v{Bp+8*u+4+r}, v{O+4+r}, v{O+12+r}")
    XO = 160
    b(f"  s_nop 1")
    for u in range(2):
        re, im = XO + 8 * u, XO + 8 * u + 4
        b(f"  {MF32} {vr(re,4)}, {vr(M2,4)}, {vr(Bp+8*u,4)}, 0")
        b(f"  {MF32} {vr(im,4)}, {vr(M2,4)}, {vr(Bp+8*u+4,4)}, 0")
        b(f"  {MF32} {vr(re,4)}, {vr(M2+4,4)}, {vr(Bp+8*u+4,4)}, {vr(re,4)}")
        b(f"  {MF32} {vr(im,4)}, {vr(M2+8,4)}, {vr(Bp+8*u,4)}, {vr(im,4)}")
    b(f"  s_and_b32 s{S_T+6}, s{S_W}, 1")
    b(f"  s_lshl_b32 s{S_T+6}, s{S_T+6}, 8")
    b(f"  s_lshr_b32 s{S_T+7}, s{S_W}, 1")
    b(f"  s_lshl_b32 s{S_T+7}, s{S_T+7}, 6")
    b(f"  s_add_u32 s{S_T+6}, s{S_T+6}, s{S_T+7}")
    b(f"  v_lshlrev_b32 v3, 12, v9")
    b(f"  v_lshl_add_u32 v3, v8, 2, v3")
    b(f"  v_add_u32 v3, s{S_T+6}, v3")
    b(f"  s_nop 2")
    b(f"  v_writelane_b32 v{XO}, s{S_T+5}, 0")
    b(f"  v_writelane_b32 v{XO+4}, 0, 0")
    PK = 32
    for u in range(2):
        for r in range(4):
            b(f"  v_cvt_pk_bf16_f32 v{PK+4*u+r}, v{XO+8*u+r}, v{XO+8*u+4+r}")
    for u in range(2):
        for r in range(4):
            b(f"  ds_write_b32 v3, v{PK+4*u+r} offset:{L1_EX + u*512 + r*1024}")
    if SENT(): b(f"  s_waitcnt lgkmcnt(0) vmcnt(0)")
    else:
        b(f"  buffer_load_dword v27, v26, s[{SRD_PF}:{SRD_PF+3}], 0 offen sc1")
        b(f"  s_waitcnt lgkmcnt(0)")
    stamp(b, "p1 fft done")
    b(f"  s_barrier")
    b(f"  v_lshlrev_b32 v4, 6, v9")
    b(f"  v_lshl_add_u32 v4, v8, 2, v4")
    b(f"  s_lshl_b32 s{S_T+6}, s{S_W}, 11")
    b(f"  s_add_u32 s{S_T+6}, s{S_T+6}, {L1_EX}")
    b(f"  v_add_u32 v4, s{S_T+6}, v4")
    Bd = 40
    for i in range(4):
        b(f"  ds_read2st64_b32 {vr(Bd+2*i,2)}, v4 offset0:{2*i} offset1:{2*i+1}")
    D = 48
    for i in range(4):
        b(f"  s_waitcnt lgkmcnt({3-i})")
        b(f"  {MF16} {vr(D+4*i,4)}, {vr(GM,2)}, {vr(Bd+2*i,2)}, 0")
    b(f"  s_nop 4")
    for i in range(4):
        b(f"  v_cvt_pk_bf16_f32 v{64+2*i}, v{D+4*i}, v{D+4*i+1}")
        b(f"  v_cvt_pk_bf16_f32 v{65+2*i}, v{D+4*i+2}, v{D+4*i+3}")
        b(f"  v_min_u32 v{64+2*i}, 0xfffffffe, v{64+2*i}")
        b(f"  v_min_u32 v{65+2*i}, 0xfffffffe, v{65+2*i}")
        for e in range(2):
            b(f"  s_add_u32 s{S_T+7}, s44, {i*131072 + e*16384}")
            b(f"  buffer_store_dword v{64+2*i+e}, v5, s[{SRD_B}:{SRD_B+3}], s{S_T+7} offen{SF}")
    stamp(b, "p1 stores issued")
    if not SENT():
        b(f"  s_and_b32 s{S_T+8}, s2, 15")
        arrive(b, 0, S_T + 8, first=True, label="x1")
        stamp(b, "p1 arrived")

XL2, WL2 = 32, 40
TC2, TS2 = 64, 68
def p2_setup(b):
    srd(b, SRD_A, P_WS, 4 << 20, WS_X1)
    srd(b, SRD_B, P_WS, 4 << 20, WS_X2)
    srd(b, SRD_C, P_WR, WB)
    srd(b, SRD_D, P_WI, WB)
    b(f"  s_and_b32 s{S_T}, s2, 7              ; j1")
    b(f"  s_lshr_b32 s{S_T+1}, s2, 3           ; kb")
    b(f"  v_and_b32 v10, 1, v0                 ; half")
    b(f"  v_bfe_u32 v11, v0, 5, 4              ; c")
    b(f"  v_bfe_u32 v12, v0, 1, 4              ; e")
    b(f"  v_lshl_add_u32 v13, v12, 4, v11      ; j2")
    b(f"  v_lshlrev_b32 v13, 3, v13")
    b(f"  v_add_u32 v13, s{S_T}, v13           ; j")
    b(f"  v_mul_u32_u24 v13, 1026, v13")
    b(f"  v_lshlrev_b32 v14, 4, v10")
    b(f"  v_add_u32 v14, v13, v14")
    b(f"  s_lshl_b32 s{S_T+3}, s{S_T+1}, 5")
    WL = WL2
    b(f"  v_mov_b32 v24, v14")
    b(f"  v_mov_b32 v25, v13")
    b(f"  v_mov_b32 v26, v10                   ; half")
    b(f"  s_mov_b32 s45, s{S_T+3}              ; kb*32")
    WL = WL2
    b(f"  buffer_load_dwordx4 {vr(WL,4)}, v24, s[{SRD_C}:{SRD_C+3}], s45 offen{XF()}")
    b(f"  buffer_load_dwordx4 {vr(WL+4,4)}, v24, s[{SRD_D}:{SRD_D+3}], s45 offen{XF()}")
    b(f"  s_cmp_lg_u32 s{S_T+1}, 0")
    b(f"  s_cbranch_scc1 p2_nonyq")
    b(f"  buffer_load_ushort v48, v25, s[{SRD_C}:{SRD_C+3}], 0 offen offset:1024")
    b(f"  buffer_load_ushort v49, v25, s[{SRD_D}:{SRD_D+3}], 0 offen offset:1024")
    b(f"  s_waitcnt vmcnt(0)")
    b(f"  v_cmp_eq_u32 vcc, 0, v26")
    b(f"  v_and_b32 v50, 0xffff0000, v{WL}")
    b(f"  v_or_b32 v50, v50, v48")
    b(f"  v_cndmask_b32 v{WL}, v{WL}, v50, vcc")
    b(f"  v_and_b32 v50, 0xffff0000, v{WL+4}")
    b(f"  v_or_b32 v50, v50, v49")
    b(f"  v_cndmask_b32 v{WL+4}, v{WL+4}, v50, vcc")
    b.label("p2_nonyq")
    npf = 0
    b(f"  v_and_b32 v15, 255, v0")
    b(f"  v_bfe_u32 v16, v15, 2, 4             ; x")
    b(f"  v_lshrrev_b32 v17, 6, v15            ; g")
    b(f"  v_and_b32 v18, 3, v15")
    b(f"  v_lshl_add_u32 v17, v17, 2, v18      ; 4g+i")
    b(f"  v_mul_u32_u24 v17, v17, v16")
    sincos(b, 18, 19, 17, 4, 20)
    b(f"  v_cmp_gt_u32 vcc, 256, v0            ; matrix 0 ?")
    b(f"  v_xor_b32 v20, 0x80000000, v19       ; -sin")
    b(f"  s_nop 0")
    b(f"  v_cndmask_b32 v21, v20, v18, vcc")
    b(f"  v_cndmask_b32 v22, v18, v19, vcc")
    b(f"  v_cvt_pk_bf16_f32 v21, v21, v22")
    b(f"  v_lshlrev_b32 v22, 2, v0")
    b(f"  ds_write_b32 v22, v21 offset:{L2_F}")
    b(f"  v_lshlrev_b32 v16, 2, v9")
    for r in range(4):
        b(f"  v_add_u32 v17, {r}, v16")
        b(f"  v_mul_u32_u24 v17, v17, v8")
        sincos(b, TC2 + r, TS2 + r, 17, 8, 20)
    b(f"  v_and_b32 v16, 3, v0                 ; i")
    b(f"  v_mul_u32_u24 v16, {4*1040}, v16")
    b(f"  v_lshrrev_b32 v17, 6, v0             ; b (0..7)")
    b(f"  v_lshl_add_u32 v16, v17, 6, v16")
    b(f"  v_bfe_u32 v17, v0, 2, 2              ; a&3")
    b(f"  v_lshl_add_u32 v16, v17, 2, v16")
    b(f"  v_bfe_u32 v17, v0, 4, 2              ; a>>2")
    b(f"  v_lshl_add_u32 v21, v17, 4, v16      ; first")
    b(f"  v_xor_b32 v17, 2, v17")
    b(f"  v_lshl_add_u32 v22, v17, 4, v16")
    b(f"  v_add_u32 v22, 512, v22              ; second (b+8)")
    b(f"  v_mul_u32_u24 v16, {4*1040}, v10")
    b(f"  v_lshl_add_u32 v16, v11, 6, v16")
    b(f"  v_and_b32 v17, 3, v12")
    b(f"  v_lshl_add_u32 v16, v17, 2, v16")
    b(f"  v_lshrrev_b32 v17, 2, v12")
    b(f"  v_lshrrev_b32 v18, 3, v11            ; c>>3")
    b(f"  v_lshlrev_b32 v18, 1, v18")
    b(f"  v_xor_b32 v17, v17, v18")
    b(f"  v_lshl_add_u32 v23, v17, 4, v16")
    b(f"  v_lshrrev_b32 v16, 3, v8")
    b(f"  v_lshlrev_b32 v16, 1, v16")
    b(f"  v_xor_b32 v16, v16, v9")
    b(f"  v_lshlrev_b32 v16, 4, v16")
    b(f"  v_lshl_add_u32 v16, v8, 6, v16")
    b(f"  s_mul_i32 s{S_T+4}, s{S_W}, {2*1040}")
    b(f"  s_mul_i32 s{S_T+5}, s{S_W}, 1040")
    b(f"  v_add_u32 v5, s{S_T+4}, v16")
    b(f"  v_add_u32 v6, s{S_T+5}, v16")
    b(f"  v_lshlrev_b32 v1, 4, v0")
    b(f"  s_lshl_b32 s{S_T+2}, s2, 14")
    b(f"  s_add_u32 s{S_T+3}, s{S_T+2}, 8192")
    b(f"  s_waitcnt lgkmcnt(0)")

def sentinel_check(b, R0, pre, n=8):
    b(f"  v_max3_u32 v16, v{R0}, v{R0+1}, v{R0+2}")
    b(f"  v_max3_u32 v17, v{R0+3}, v{R0+4}, v{R0+5}")
    b(f"  v_max3_u32 v16, v16, v{R0+6}, v{R0+7}")
    for i in range(8, n, 2): b(f"  v_max3_u32 v17, v17, v{R0+i}, v{R0+i+1}")
    b(f"  v_max_u32 v16, v16, v17")
    b(f"  v_cmp_eq_u32 vcc, -1, v16")
    b(f"  s_sub_u32 s11, s11, 1")
    b(f"  s_cmp_eq_u32 s11, 0")
    b(f"  s_cbranch_scc1 {pre}_got")
    b(f"  s_cmp_lg_u64 vcc, 0")
    b(f"  s_cbranch_scc1 {pre}_poll")
    b.label(f"{pre}_got")

def p2_main(b):
    XL = XL2; TC, TS = TC2, TS2
    if SENT():
        b(f"  s_mov_b32 s11, 200000")
        b.label("p2_poll")
    b(f"  buffer_load_dwordx4 {vr(XL,4)}, v1, s[{SRD_A}:{SRD_A+3}], s{S_T+2} offen sc1")
    b(f"  buffer_load_dwordx4 {vr(XL+4,4)}, v1, s[{SRD_A}:{SRD_A+3}], s{S_T+3} offen sc1")
    b(f"  s_waitcnt vmcnt(0)")
    if SENT(): sentinel_check(b, XL, "p2")
    WL = WL2
    b(f"  v_lshlrev_b32 v17, 4, v7")
    FR, FI = 72, 76
    AX = 48; WR, WI = 152, 156
    b(f"  ds_read_b128 {vr(FR,4)}, v17 offset:{L2_F}")
    b(f"  ds_read_b128 {vr(FI,4)}, v17 offset:{L2_F+1024}")
    Dq = [80, 88]; Oq = [96, 104]; Tq = [112, 120]; Pq = [128, 132]; Wq = [136, 144]
    stamp(b, "p2 x landed")
    for j in range(4):
        b(f"  ds_write_b32 v21, v{XL+j} offset:{L2_X + j*1040}")
        b(f"  ds_write_b32 v22, v{XL+4+j} offset:{L2_X + j*1040}")
    for j in range(4):
        b(f"  ds_write_b32 v23, v{WL+j} offset:{L2_W + j*1040}")
        b(f"  ds_write_b32 v23, v{WL+4+j} offset:{L2_W + 8*1040 + j*1040}")
    if "nopf" not in OPT and "ntw1" not in OPT and PFN[1]:
        w1_share_base(b, S_T + 8, PFN[0] * 4096)
        pf_wide(b, P_W1, W1B, S_T + 8, PFN[1], 4, 8, "pf_p2a")
    b(f"  s_waitcnt lgkmcnt(0)")
    b(f"  s_barrier")
    b(f"  ds_read_b128 {vr(AX,4)}, v5 offset:{L2_X}")
    b(f"  ds_read_b128 {vr(AX+4,4)}, v5 offset:{L2_X+1040}")
    b(f"  ds_read_b128 {vr(WR,4)}, v6 offset:{L2_W}")
    b(f"  ds_read_b128 {vr(WI,4)}, v6 offset:{L2_W+8*1040}")
    def stage(form, src):
        for k in range(2):
            d = Dq[k]
            if form == 'A':
                b(f"  {MF32} {vr(d,4)}, {vr(src[k],4)}, {vr(FR,4)}, 0")
                b(f"  {MF32} {vr(d+4,4)}, {vr(src[k],4)}, {vr(FI,4)}, 0")
            else:
                b(f"  {MF32} {vr(d,4)}, {vr(FR,4)}, {vr(src[k],4)}, 0")
                b(f"  {MF32} {vr(d+4,4)}, {vr(FI,4)}, {vr(src[k],4)}, 0")
    def twiddle_pack():
        for k in range(2):
            cmul_pk(b, Oq[k], Oq[k] + 4, Dq[k], Dq[k] + 4, TC, TS, Tq[k], False)
        for k in range(2):
            for r in range(4):
                b(f"  v_cvt_pk_bf16_f32 v{Pq[k]+r}, v{Oq[k]+r}, v{Oq[k]+4+r}")
        b(f"  s_nop 1")
    b(f"  s_waitcnt lgkmcnt(2)")
    stage('A', [AX, AX + 4])
    b(f"  s_waitcnt lgkmcnt(0)")
    for r in range(4):
        b(f"  v_lshlrev_b32 v{Wq[0]+r}, 16, v{WR+r}")
        b(f"  v_lshlrev_b32 v{Wq[0]+4+r}, 16, v{WI+r}")
        b(f"  v_and_b32 v{Wq[1]+r}, 0xffff0000, v{WR+r}")
        b(f"  v_and_b32 v{Wq[1]+4+r}, 0xffff0000, v{WI+r}")
    twiddle_pack()
    stage('B', Pq)
    b(f"  s_nop 5")
    for k in range(2):
        cmul_pk(b, Oq[k], Oq[k] + 4, Dq[k], Dq[k] + 4, Wq[k], Wq[k] + 4, Tq[k], True)
    for k in range(2):
        for r in range(4):
            b(f"  v_cvt_pk_bf16_f32 v{Pq[k]+r}, v{Oq[k]+r}, -v{Oq[k]+4+r}")
    b(f"  s_nop 1")
    stage('A', Pq)
    b(f"  s_nop 5")
    twiddle_pack()
    stage('B', Pq)
    b(f"  s_nop 5")
    for k in range(2):
        for r in range(4):
            b(f"  v_cvt_pk_bf16_f32 v{Pq[k]+r}, v{Dq[k]+r}, -v{Dq[k]+4+r}")
    b(f"  ds_write_b128 v5, {vr(Pq[0],4)} offset:{L2_X}")
    b(f"  ds_write_b128 v5, {vr(Pq[1],4)} offset:{L2_X+1040}")
    b(f"  s_waitcnt lgkmcnt(0)")
    b(f"  s_barrier")
    for j in range(4):
        b(f"  ds_read_b32 v{XL+j}, v21 offset:{L2_X + j*1040}")
        b(f"  ds_read_b32 v{XL+4+j}, v22 offset:{L2_X + j*1040}")
    b(f"  v_bfe_u32 v16, v0, 2, 4              ; a")
    b(f"  v_lshrrev_b32 v17, 6, v0             ; b")
    b(f"  v_lshl_add_u32 v16, v16, 4, v17      ; s1")
    b(f"  v_lshlrev_b32 v16, 14, v16")
    b(f"  v_and_b32 v17, 3, v0")
    b(f"  v_lshl_add_u32 v16, v17, 4, v16")
    b(f"  s_lshl_b32 s{S_T+4}, s{S_T}, 11")
    b(f"  s_lshl_b32 s{S_T+5}, s{S_T+1}, 6")
    b(f"  s_add_u32 s{S_T+4}, s{S_T+4}, s{S_T+5}")
    b(f"  s_add_u32 s{S_T+5}, s{S_T+4}, {8*16384}")
    b(f"  s_waitcnt lgkmcnt(0)")
    for j in range(8): b(f"  v_min_u32 v{XL+j}, 0xfffffffe, v{XL+j}")
    b(f"  buffer_store_dwordx4 {vr(XL,4)}, v16, s[{SRD_B}:{SRD_B+3}], s{S_T+4} offen{SF}")
    b(f"  buffer_store_dwordx4 {vr(XL+4,4)}, v16, s[{SRD_B}:{SRD_B+3}], s{S_T+5} offen{SF}")
    stamp(b, "p2 stores issued")
    if not SENT():
        b(f"  s_and_b32 s{S_T+8}, s2, 15")
        arrive(b, 1, S_T + 8, label="x2")

V_LO = 224
S_G1A = 60
def g1_ids(b):
    b(f"  s_lshr_b32 s{S_T}, s2, 3                 ; i")
    b(f"  s_cmp_lt_u32 s{S_T}, 28")
    b(f"  s_cselect_b32 s62, 1, 0")
    b(f"  s_mul_i32 s{S_T+1}, s{S_T}, 37")
    b(f"  s_lshr_b32 s{S_T+1}, s{S_T+1}, 8         ; i/7")
    b(f"  s_mul_i32 s{S_T+2}, s{S_T+1}, 7")
    b(f"  s_sub_u32 s{S_T+2}, s{S_T}, s{S_T+2}     ; i%7")
    b(f"  s_and_b32 s{S_T+3}, s2, 7")
    b(f"  s_lshr_b32 s{S_T+4}, s{S_T+3}, 1")
    b(f"  s_mul_i32 s{S_T+4}, s{S_T+4}, 7")
    b(f"  s_add_u32 s60, s{S_T+4}, s{S_T+2}        ; ft")
    b(f"  s_and_b32 s{S_T+3}, s{S_T+3}, 1")
    b(f"  s_lshl_b32 s{S_T+3}, s{S_T+3}, 2")
    b(f"  s_add_u32 s61, s{S_T+3}, s{S_T+1}        ; dt")

S_SOFF, S_M0, S_N = 4, 5, 6
def loader_issue(b, voff, fl=""):
    for i in range(4):
        b(f"  s_add_u32 m0, s{S_M0}, {4096*i}")
        b(f"  s_nop 0")
        b(f"  buffer_load_dwordx4 v{voff+i}, s[{SRD_T}:{SRD_T+3}], s{S_SOFF} offen{fl} lds")
    b(f"  s_add_u32 s{S_SOFF}, s{S_SOFF}, s9")
    b(f"  s_add_u32 s{S_M0}, s{S_M0}, {STAGE}")
    b(f"  s_cmp_ge_u32 s{S_M0}, s{S_N+1}")
    b(f"  s_cselect_b32 s{S_N+2}, {R*STAGE}, 0")
    b(f"  s_sub_u32 s{S_M0}, s{S_M0}, s{S_N+2}")

def loader_init(b, step_bytes):
    b(f"  s_sub_u32 s50, s{S_W}, 4")
    b(f"  s_lshl_b32 s{S_M0}, s50, 10")
    b(f"  s_add_u32 s{S_N+1}, s{S_M0}, {R*STAGE}")
    b(f"  s_mov_b32 s{S_SOFF}, 0")
    b(f"  s_mov_b32 s9, {step_bytes}")

def g1_loader_addr(b):
    b(f"  s_sub_u32 s50, s{S_W}, 4      ; w'")
    for i in range(4):
        b(f"  s_lshl_b32 s49, s50, 2")
        b(f"  s_add_u32 s49, s49, {16*i}")
        b(f"  v_lshrrev_b32 v14, 4, v7")
        b(f"  v_add_u32 v14, s49, v14                 ; row 0..63")
        b(f"  v_and_b32 v15, 3, v14")
        b(f"  v_lshlrev_b32 v15, 2, v15")
        b(f"  v_and_b32 v16, 15, v7")
        b(f"  v_xor_b32 v16, v16, v15                 ; q")
        b(f"  v_lshrrev_b32 v17, 3, v14")
        b(f"  v_and_b32 v18, 7, v14")
        b(f"  v_lshl_add_u32 v17, v18, 8, v17         ; s")
        b(f"  v_mul_u32_u24 v17, 7168, v17")
        b(f"  v_lshl_add_u32 v17, v16, 4, v17")
        b(f"  s_lshl_b32 s49, s60, 8")
        b(f"  v_add_u32 v{V_LO+i}, s49, v17")

def g2_ids(b):
    if SK():
        b(f"  s_lshr_b32 s{S_T+1}, s2, 3")
        b(f"  s_lshr_b32 s{S_TILE_A}, s{S_T+1}, 2          ; dt")
        b(f"  s_lshr_b32 s{S_T}, s2, 1")
        b(f"  s_and_b32 s{S_T}, s{S_T}, 3")
        b(f"  s_lshl_b32 s{S_T}, s{S_T}, 2")
        b(f"  s_and_b32 s{S_T+1}, s{S_T+1}, 3")
        b(f"  s_add_u32 s{S_TILE_B}, s{S_T}, s{S_T+1}      ; st2")
        b(f"  s_and_b32 s19, s2, 1                       ; kh")
        return
    b(f"  s_and_b32 s{S_T}, s2, 1")
    b(f"  s_lshl_b32 s{S_T}, s{S_T}, 2")
    b(f"  s_lshr_b32 s{S_T+1}, s2, 3")
    b(f"  s_and_b32 s{S_T+2}, s{S_T+1}, 3")
    b(f"  s_add_u32 s{S_TILE_A}, s{S_T}, s{S_T+2}     ; dt")
    b(f"  s_lshr_b32 s{S_T}, s2, 1")
    b(f"  s_and_b32 s{S_T}, s{S_T}, 3")
    b(f"  s_lshl_b32 s{S_T}, s{S_T}, 3")
    b(f"  s_lshr_b32 s{S_T+1}, s{S_T+1}, 2")
    b(f"  s_add_u32 s{S_TILE_B}, s{S_T}, s{S_T+1}     ; st")

def g2_loader_addr(b):
    if SK():
        b(f"  s_sub_u32 s50, s{S_W}, 4")
        for i in range(4):
            b(f"  s_lshl_b32 s49, s50, 2")
            b(f"  s_add_u32 s49, s49, {16*i}")
            b(f"  v_lshrrev_b32 v14, 4, v7")
            b(f"  v_add_u32 v14, s49, v14                 ; row 0..63")
            b(f"  v_and_b32 v15, 3, v14")
            b(f"  v_lshlrev_b32 v15, 2, v15")
            b(f"  v_and_b32 v16, 15, v7")
            b(f"  v_xor_b32 v16, v16, v15                 ; q")
            b(f"  v_lshlrev_b32 v14, 12, v14              ; row*4096")
            b(f"  v_lshl_add_u32 v14, v16, 4, v14")
            b(f"  s_lshl_b32 s49, s{S_TILE_B}, 8          ; s0*2")
            b(f"  s_mul_i32 s48, s19, {1792*4096}         ; k half")
            b(f"  s_add_u32 s49, s49, s48")
            b(f"  v_add_u32 v{V_LO+i}, s49, v14")
        return
    b(f"  s_sub_u32 s50, s{S_W}, 4")
    for i in range(4):
        b(f"  s_lshl_b32 s49, s50, 3")
        b(f"  s_add_u32 s49, s49, {32*i}")
        b(f"  v_lshrrev_b32 v14, 3, v7")
        b(f"  v_add_u32 v14, s49, v14                 ; row")
        b(f"  v_bfe_u32 v15, v14, 1, 1")
        b(f"  v_lshlrev_b32 v15, 2, v15")
        b(f"  v_and_b32 v16, 7, v7")
        b(f"  v_xor_b32 v16, v16, v15                 ; q")
        b(f"  v_lshlrev_b32 v14, 12, v14              ; row*4096")
        b(f"  v_lshl_add_u32 v14, v16, 4, v14")
        b(f"  s_lshl_b32 s49, s{S_TILE_B}, 7          ; s0*2")
        b(f"  v_add_u32 v{V_LO+i}, s49, v14")

def loader_loop(b, NS, pre, fl=""):
    nmain = NS - (R - 2)
    b(f"  s_mov_b32 s{S_N}, {nmain}")
    b.label(f"{pre}_lloop")
    b(f"  s_waitcnt vmcnt({(R-3)*4})")
    b("  s_barrier")
    loader_issue(b, V_LO, fl)
    b(f"  s_sub_u32 s{S_N}, s{S_N}, 1")
    b(f"  s_cmp_lg_u32 s{S_N}, 0")
    b(f"  s_cbranch_scc1 {pre}_lloop")
    for i in range(R - 2):
        b(f"  s_waitcnt vmcnt({(R-3-i)*4})")
        b("  s_barrier")

BD3 = 32; XR3 = 192; GM3 = 30
def p3_tables(b):
    b(f"  v_and_b32 v10, 255, v0            ; e")
    b(f"  v_lshrrev_b32 v11, 8, v0")
    b(f"  v_bfe_u32 v12, v10, 2, 4          ; n = lane&15")
    b(f"  v_lshrrev_b32 v13, 6, v10         ; g")
    b(f"  v_and_b32 v14, 3, v10             ; r")
    b(f"  v_lshl_add_u32 v13, v13, 2, v14   ; 4g + r")
    b(f"  v_lshrrev_b32 v15, 2, v12")
    b(f"  v_lshlrev_b32 v15, 3, v15")
    b(f"  v_and_b32 v16, 3, v12")
    b(f"  v_add_u32 v15, v15, v16           ; b(n,0)")
    b(f"  v_lshl_add_u32 v16, v11, 2, v15   ; b(n, sel)")
    b(f"  v_mul_u32_u24 v17, v16, v13")
    sincos(b, 18, 19, 17, 5, 20)
    b(f"  v_lshlrev_b32 v22, 2, v10")
    b(f"  v_lshl_add_u32 v22, v11, 11, v22  ; sel*2048 + e*4")
    b(f"  v_add_u32 v22, {L3_M3}, v22")
    b(f"  v_cvt_pk_bf16_f32 v23, v18, -v19")
    b(f"  v_cvt_pk_bf16_f32 v24, v19, v18")
    b(f"  ds_write_b32 v22, v23")
    b(f"  ds_write_b32 v22, v24 offset:1024")
    b(f"  v_lshl_add_u32 v17, v11, 4, v13   ; k1")
    for z in range(2):
        b(f"  v_add_u32 v21, {16*z}, v12")
        b(f"  v_mul_u32_u24 v21, v21, v17")
        sincos(b, 18, 19, 21, 5, 20)
        b(f"  v_add_f32 v18, v18, v18")
        b(f"  v_mul_f32 v19, -2.0, v19")
        b(f"  v_cvt_pk_bf16_f32 v23, v18, v19")
        b(f"  ds_write_b32 v22, v23 offset:{4096+1024*z}")
    b(f"  v_lshlrev_b32 v23, 2, v10")
    b(f"  v_lshl_add_u32 v23, v11, 12, v23   ; u*4096 + e*4")
    b(f"  v_add_u32 v23, {L3_TW}, v23")
    for v in range(2):
        b(f"  v_add_u32 v21, {4*v}, v15")
        b(f"  v_mul_u32_u24 v21, v21, v17")
        sincos(b, 18, 19, 21, 10, 20)
        b(f"  ds_write_b32 v23, v18 offset:{2048*v}")
        b(f"  ds_write_b32 v23, v19 offset:{2048*v+1024}")

def p3_setup(b):
    srd(b, SRD_A, P_WS, 4 << 20, WS_X2)
    srd(b, SRD_B, P_X, 4 << 20)
    srd(b, SRD_C, P_WS, 4 << 20, WS_H)
    srd(b, SRD_D, P_WS, 4 << 20, WS_LN2)
    b(f"  s_lshl_b32 s{S_T+3}, s{S_W}, 8")
    b(f"  s_add_u32 s{S_T+3}, s{S_T+3}, s2")
    b(f"  s_lshl_b32 s{S_T+3}, s{S_T+3}, 11       ; s*2048")
    b(f"  v_lshlrev_b32 v4, 6, v8")
    b(f"  v_lshl_add_u32 v4, v9, 4, v4")
    for z in range(2):
        b(f"  buffer_load_dwordx4 {vr(XR3+4*z,4)}, v4, s[{SRD_B}:{SRD_B+3}], s{S_T+3} offen offset:{1024*z}")
    b(f"  s_mov_b32 s63, s{S_T+3}")
    if SK():
        srd(b, SRD_PF, P_WS, 4 << 20, WS_XCH)
        for i in range(4): b(f"  v_mov_b32 v{200+i}, -1")
        b(f"  v_lshlrev_b32 v2, 4, v0")
        b(f"  s_lshl_b32 s{S_T+8}, s2, 14")
        b(f"  buffer_store_dwordx4 v[200:203], v2, s[{SRD_PF}:{SRD_PF+3}], s{S_T+8} offen{SF}")
        b(f"  s_add_u32 s{S_T+8}, s{S_T+8}, 8192")
        b(f"  buffer_store_dwordx4 v[200:203], v2, s[{SRD_PF}:{SRD_PF+3}], s{S_T+8} offen{SF}")
    if "nopf" not in OPT and "ntw1" not in OPT:
        if PFN[2]:
            w1_share_base(b, S_T + 8, (PFN[0] + PFN[1]) * 4096)
            pf_wide(b, P_W1, W1B, S_T + 8, PFN[2], 4, 8, "pf_p3a")
    g1_ids(b)
    g1_loader_addr(b)
    loader_init(b, 8 * 7168)
    p3_tables(b)
    gmat(b, GM3, 2, True, 10)
    b(f"  v_lshlrev_b32 v1, 12, v9")
    b(f"  v_lshl_add_u32 v1, v8, 2, v1")
    b(f"  s_lshl_b32 s{S_T}, s2, 14")
    b(f"  s_and_b32 s{S_T+1}, s{S_W}, 1")
    b(f"  s_lshl_b32 s{S_T+1}, s{S_T+1}, 6")
    b(f"  s_lshr_b32 s{S_T+2}, s{S_W}, 1")
    b(f"  s_lshl_b32 s{S_T+2}, s{S_T+2}, 9")
    b(f"  s_add_u32 s{S_T}, s{S_T}, s{S_T+1}")
    b(f"  s_add_u32 s44, s{S_T}, s{S_T+2}          ; X2 soffset")
    b(f"  s_lshl_b32 s{S_T+1}, s{S_T+1}, 4        ; u*1024")
    b(f"  s_lshr_b32 s{S_T+2}, s{S_T+2}, 1        ; q4*256")
    b(f"  s_add_u32 s45, s{S_T+1}, s{S_T+2}")
    b(f"  s_waitcnt lgkmcnt(0)")

def p3_main(b):
    Bd, XR, GM = BD3, XR3, GM3
    D = 40
    b(f"  v_lshlrev_b32 v3, 12, v9")
    b(f"  v_lshl_add_u32 v3, v8, 4, v3")
    b(f"  v_add_u32 v3, s45, v3")
    b(f"  v_add_u32 v3, {L3_EX}, v3")
    M3, M4, TW = 96, 112, 128
    b(f"  v_lshlrev_b32 v6, 4, v7")
    b(f"  v_add_u32 v6, {L3_M3}, v6")
    for i in range(4): b(f"  ds_read_b128 {vr(M3+4*i,4)}, v6 offset:{1024*i}")
    for i in range(4): b(f"  ds_read_b128 {vr(M4+4*i,4)}, v6 offset:{4096+1024*i}")
    b(f"  s_waitcnt lgkmcnt(0)")
    for i in range(8): b(f"  ds_read_b128 {vr(TW+4*i,4)}, v6 offset:{8192+1024*i}")
    if SENT():
        b(f"  s_mov_b32 s11, 200000")
        b.label("p3_poll")
    for i in range(4):
        for e in range(2):
            b(f"  buffer_load_dword v{Bd+2*i+e}, v1, s[{SRD_A}:{SRD_A+3}], s44 offen offset:{e*2048+i*128} sc1")
    b(f"  s_waitcnt vmcnt(0)")
    if SENT(): sentinel_check(b, Bd, "p3")
    stamp(b, "p3 x2 landed")
    if "nopf" not in OPT and "ntw1" not in OPT and PFN[3]:
        w1_share_base(b, S_T + 8, (PFN[0] + PFN[1] + PFN[2]) * 4096)
        pf_wide(b, P_W1, W1B, S_T + 8, PFN[3], 4, 8, "pf_p3b")
    for i in range(4):
        b(f"  {MF16} {vr(D+4*i,4)}, {vr(GM,2)}, {vr(Bd+2*i,2)}, 0")
    b(f"  s_nop 4")
    PK = 56
    for e in range(2):
        for i in range(4):
            b(f"  v_cvt_pk_bf16_f32 v{PK+4*e+i}, v{D+4*i+2*e}, v{D+4*i+2*e+1}")
    b(f"  ds_write_b128 v3, {vr(PK,4)}")
    b(f"  ds_write_b128 v3, {vr(PK+4,4)} offset:2048")
    b(f"  s_waitcnt lgkmcnt(0)")
    b(f"  s_barrier")
    b(f"  v_lshlrev_b32 v5, 8, v9")
    b(f"  v_lshl_add_u32 v5, v8, 4, v5")
    b(f"  s_lshl_b32 s{S_T+1}, s{S_W}, 11")
    b(f"  s_add_u32 s{S_T+1}, s{S_T+1}, {L3_EX}")
    b(f"  v_add_u32 v5, s{S_T+1}, v5")
    AU = 32
    b(f"  ds_read_b128 {vr(AU,4)}, v5")
    b(f"  ds_read_b128 {vr(AU+4,4)}, v5 offset:1024")
    b(f"  s_waitcnt lgkmcnt(0)")
    b(f"  v_readlane_b32 s{S_T+4}, v{AU}, 0")
    b(f"  v_writelane_b32 v{AU}, 0, 0")
    b(f"  s_nop 1")
    b(f"  s_lshl_b32 s{S_T+4}, s{S_T+4}, 16")
    TT = 160
    for u in range(2):
        for v in range(2):
            for c in range(2):
                d = TT + ((u * 2 + v) * 2 + c) * 4
                b(f"  {MF32} {vr(d,4)}, {vr(AU+4*u,4)}, {vr(M3+4*(2*v+c),4)}, 0")
    CI = 60
    b(f"  v_mov_b32 v{CI}, s{S_T+4}")
    b(f"  v_xor_b32 v{CI+1}, 0x80000000, v{CI}")
    b(f"  v_mov_b32 v{CI+2}, v{CI}")
    b(f"  v_mov_b32 v{CI+3}, v{CI+1}")
    b(f"  s_nop 1")
    A2 = 64; O = 40; W = 80
    for u in range(2):
        for v in range(2):
            t = TT + ((u * 2 + v) * 2) * 4
            tw = TW + ((u * 2 + v) * 2) * 4
            cmul_pk(b, O, O + 4, t, t + 4, tw, tw + 4, W, True)
            for r in range(4):
                b(f"  v_cvt_pk_bf16_f32 v{A2+(u*2+v)*4+r}, v{O+r}, v{O+4+r}")
    Y = 160
    b(f"  s_nop 1")
    for z in range(2):
        for v in range(2):
            d = Y + (z * 2 + v) * 4
            b(f"  {MF32} {vr(d,4)}, {vr(A2+(0*2+v)*4,4)}, {vr(M4+(0*2+z)*4,4)}, {vr(CI,4)}")
    for z in range(2):
        for v in range(2):
            d = Y + (z * 2 + v) * 4
            b(f"  {MF32} {vr(d,4)}, {vr(A2+(1*2+v)*4,4)}, {vr(M4+(1*2+z)*4,4)}, {vr(d,4)}")
    b(f"  s_nop 7")
    X = 40; HP = 32
    stamp(b, "p3 ifft done")
    for z in range(2):
        for dd in range(4):
            y0 = Y + z * 8 + 2 * dd
            xd = XR + 4 * z + dd
            t = 64 + 4 * (dd % 2)
            b(f"  v_cvt_pk_bf16_f32 v{t}, v{y0}, v{y0+1}")
            b(f"  v_lshlrev_b32 v{t+1}, 16, v{xd}")
            b(f"  v_and_b32 v{t+2}, 0xffff0000, v{xd}")
            b(f"  v_and_b32 v{t+3}, 0xffff0000, v{t}")
            b(f"  v_lshlrev_b32 v{t}, 16, v{t}")
            b(f"  v_add_f32 v{t+1}, v{t+1}, v{t}")
            b(f"  v_add_f32 v{t+2}, v{t+2}, v{t+3}")
            b(f"  v_cvt_pk_bf16_f32 v{HP+4*z+dd}, v{t+1}, v{t+2}")
    for z in range(2):
        b(f"  buffer_store_dwordx4 {vr(HP+4*z,4)}, v4, s[{SRD_C}:{SRD_C+3}], s63 offen offset:{1024*z}{SF}")
    for i in range(8):
        b(f"  v_lshlrev_b32 v{X+2*i}, 16, v{HP+i}")
        b(f"  v_and_b32 v{X+2*i+1}, 0xffff0000, v{HP+i}")
    layernorm16(b, X, 64, S_T+5, S_T+6)
    LP = 72
    stamp(b, "p3 ln done")
    for i in range(8):
        b(f"  v_cvt_pk_bf16_f32 v{LP+i}, v{X+2*i}, v{X+2*i+1}")
    b(f"  v_mul_u32_u24 v3, 80, v8")
    b(f"  v_lshl_add_u32 v3, v9, 4, v3")
    b(f"  s_mul_i32 s{S_T+1}, s{S_W}, {L3_RS}")
    b(f"  s_add_u32 s{S_T+1}, s{S_T+1}, {L3_LN}")
    b(f"  v_add_u32 v3, s{S_T+1}, v3")
    for z in range(2):
        b(f"  ds_write_b128 v3, {vr(LP+4*z,4)} offset:{z*16*80}")
    b(f"  s_waitcnt lgkmcnt(0)")
    b(f"  s_barrier")
    b(f"  v_bfe_u32 v10, v7, 2, 2")
    b(f"  v_mul_u32_u24 v10, {L3_RS}, v10")
    b(f"  v_lshrrev_b32 v11, 5, v7")
    b(f"  v_mul_u32_u24 v12, 80, v11")
    b(f"  v_add_u32 v10, v10, v12")
    b(f"  v_and_b32 v12, 1, v7")
    b(f"  v_lshl_add_u32 v10, v12, 5, v10")
    b(f"  v_bfe_u32 v12, v7, 4, 1")
    b(f"  v_lshl_add_u32 v10, v12, 4, v10")
    b(f"  v_bfe_u32 v12, v7, 1, 1")
    b(f"  v_lshl_add_u32 v10, v12, 3, v10")
    b(f"  s_mul_i32 s{S_T+1}, s{S_W}, {4*80}")
    b(f"  s_add_u32 s{S_T+1}, s{S_T+1}, {L3_LN}")
    b(f"  v_add_u32 v10, s{S_T+1}, v10")
    for ps in range(2):
        b(f"  ds_read_b64_tr_b16 {vr(32+4*ps,2)}, v10 offset:{ps*160}")
        b(f"  ds_read_b64_tr_b16 {vr(34+4*ps,2)}, v10 offset:{ps*160 + 4*L3_RS}")
    b(f"  v_lshlrev_b32 v11, 17, v11")
    b(f"  v_and_b32 v12, 31, v7")
    b(f"  v_lshl_add_u32 v11, v12, 4, v11")
    b(f"  s_lshl_b32 s{S_T+1}, s{S_W}, 19")
    b(f"  s_lshl_b32 s{S_T+2}, s2, 9")
    b(f"  s_add_u32 s{S_T+1}, s{S_T+1}, s{S_T+2}")
    b(f"  s_add_u32 s{S_T+2}, s{S_T+1}, {2*131072}")
    b(f"  s_waitcnt lgkmcnt(2)")
    b(f"  buffer_store_dwordx4 v[32:35], v11, s[{SRD_D}:{SRD_D+3}], s{S_T+1} offen{SF}")
    b(f"  s_waitcnt lgkmcnt(0)")
    b(f"  buffer_store_dwordx4 v[36:39], v11, s[{SRD_D}:{SRD_D+3}], s{S_T+2} offen{SF}")
    stamp(b, "p3 stores issued")
    b(f"  s_and_b32 s{S_T+8}, s2, 15")
    arrive(b, 2, S_T + 8, label="x3")
    srd(b, SRD_T, P_W1, W1B)
    b(f"  s_cmp_lt_u32 s{S_W}, 4")
    b(f"  s_cbranch_scc1 p3_nodma")
    b(f"  s_cmp_eq_u32 s62, 0")
    b(f"  s_cbranch_scc1 p3_nodma")
    for n in range(2): loader_issue(b, V_LO, W1F())
    b.label("p3_nodma")

def gemm_core(b, c, pre, after_setup, after_prologue=None):
    NB, NS = c.NB, c.NS
    acc = lambda nb: V_ACC + nb * 16
    VT = V_ACC + NB * 16
    VPR = VT + 32
    c.VT, c.VPR = VT, VPR
    c.vend = VPR + 4 * PR
    tf = lambda q: VT + (q % 8) * 4
    pr = lambda j: VPR + (j % PR) * 4
    FPI = 64
    KPI = FPI // NB
    def tread(q):
        ql = q % FPI
        lslot, within = ql // 16, ql % 16
        ks, nb = within // NB, within % NB
        off = lslot * STAGE + ks * 16 * c.rowb
        b(f"  ds_read_b64_tr_b16 {vr(tf(q),2)}, v{V_T+nb} offset:{off}")
        b(f"  ds_read_b64_tr_b16 {vr(tf(q)+2,2)}, v{V_T+nb} offset:{off+4*c.rowb}")
    def pload(j):
        b(f"  buffer_load_dwordx4 {vr(pr(j),4)}, v{V_P}, s[{SRD_P}:{SRD_P+3}], s{S_POFF} offen offset:{(j%4)*1024}{LF}")
        if j % 4 == 3: b(f"  s_add_u32 s{S_POFF}, s{S_POFF}, 4096")
    def mfma(q):
        nb = q % NB; j = q // NB; a = acc(nb)
        if c.name == "g1":
            b(f"  v_mfma_f32_32x32x16_bf16 {vr(a,16)}, {vr(tf(q),4)}, {vr(pr(j),4)}, {vr(a,16)}")
        else:
            b(f"  v_mfma_f32_32x32x16_bf16 {vr(a,16)}, {vr(pr(j),4)}, {vr(tf(q),4)}, {vr(a,16)}")
    b(f"  s_mov_b32 s{S_POFF}, 0")
    b(f"  s_mov_b32 s{S_DELTA}, {4*STAGE}")
    b(f"  s_mov_b32 s{S_IT}, {NS//4 - 1}")
    after_setup()
    for j in range(PR - 1): pload(j)
    if after_prologue: after_prologue()
    b("  s_barrier")
    for q in range(DQ): tread(q)
    def body(last):
        for q in range(FPI):
            j = q // NB
            qn = q + DQ
            do_read = not (last and qn >= FPI)
            do_pload = False
            if q % NB == 0:
                rem = KPI - 1 - j
                if (not last) or (j + PR - 1 < KPI):
                    b(f"  s_waitcnt vmcnt({PR-2})")
                    do_pload = True
                else:
                    b(f"  s_waitcnt vmcnt({min(PR-2, rem)})")
            if do_read and qn % 16 == 0:
                b("  s_barrier")
            if do_read and qn == FPI:
                for i in range(NB): b(f"  v_add_u32 v{V_T+i}, s{S_DELTA}, v{V_T+i}")
                b(f"  s_sub_u32 s{S_DELTA}, 0, s{S_DELTA}")
            if q % 2 == 0:
                left = min(DQ - 2, FPI - 2 - q) if last else DQ - 2
                b(f"  s_waitcnt lgkmcnt({2*left})")
            mfma(q)
            if do_pload: pload(j + PR - 1)
            if do_read: tread(qn)
    b.label(f"{pre}_loop")
    body(False)
    b(f"  s_sub_u32 s{S_IT}, s{S_IT}, 1")
    b(f"  s_cmp_lg_u32 s{S_IT}, 0")
    b(f"  s_cbranch_scc1 {pre}_loop")
    body(True)

def idle_w1(b):
    srd(b, SRD_PF, P_W1, W1B)
    b(f"  s_and_b32 s51, s50, 7")
    b(f"  s_mul_i32 s51, s51, {256*7168}")
    b(f"  s_lshr_b32 s52, s50, 3")
    b(f"  s_mul_i32 s52, s52, {4*7168}")
    b(f"  s_add_u32 s51, s51, s52")
    b(f"  s_add_u32 s51, s51, {128*7168}")
    b(f"  s_mov_b32 s52, 7")
    b.label("pf_w1b")
    for i in range(4): b(f"  buffer_load_dwordx4 {vr(V_DUMMY,4)}, v29, s[{SRD_PF}:{SRD_PF+3}], s51 offen offset:{1024*i}")
    b(f"  s_add_u32 s51, s51, 4096")
    b(f"  s_waitcnt vmcnt(4)")
    b(f"  s_sub_u32 s52, s52, 1")
    b(f"  s_cmp_lg_u32 s52, 0")
    b(f"  s_cbranch_scc1 pf_w1b")

def idle_w2(b):
    srd(b, SRD_PF, P_W2, W1B)
    b(f"  s_mul_i32 s51, s50, {W1B // 256}")
    b(f"  s_mov_b32 s52, 14")
    b.label("pf_w2")
    for i in range(4): b(f"  buffer_load_dwordx4 {vr(V_DUMMY,4)}, v29, s[{SRD_PF}:{SRD_PF+3}], s51 offen offset:{1024*i}")
    b(f"  s_add_u32 s51, s51, 4096")
    b(f"  s_waitcnt vmcnt(4)")
    b(f"  s_sub_u32 s52, s52, 1")
    b(f"  s_cmp_lg_u32 s52, 0")
    b(f"  s_cbranch_scc1 pf_w2")
    b(f"  s_waitcnt vmcnt(0)")

def g1(b):
    c = g1_cfg()
    b(f"  s_cmp_eq_u32 s62, 0")
    b(f"  s_cbranch_scc1 g1_inactive")
    srd(b, SRD_P, P_WS, 4 << 20, WS_LN2)
    srd(b, SRD_T, P_W1, W1B)
    srd(b, SRD_O, P_WS, U_BYTES, WS_U)
    srd(b, SRD_X, P_B1, 3584 * 2)
    b(f"  s_cmp_ge_u32 s{S_W}, 4")
    b(f"  s_cbranch_scc1 g1_loader")
    lane_geom(b)
    b(f"  s_lshl_b32 s{S_TMP}, s61, 2")
    b(f"  s_add_u32 s{S_TMP}, s{S_TMP}, s{S_W}            ; dblk")
    b(f"  s_lshl_b32 s{S_TMP+2}, s{S_TMP}, 17")
    b(f"  v_lshlrev_b32 v10, 4, v7")
    b(f"  v_add_u32 v{V_P}, s{S_TMP+2}, v10")
    b(f"  s_lshl_b32 s{S_TMP+1}, s60, 8       ; f0*2")
    b(f"  v_lshlrev_b32 v11, 3, v9")
    b(f"  v_add_u32 v11, s{S_TMP+1}, v11")
    BV = 192
    for fb in range(4):
        for i in range(4):
            b(f"  buffer_load_dwordx2 {vr(BV+2*(4*fb+i),2)}, v11, s[{SRD_X}:{SRD_X+3}], 0 offen offset:{64*fb+16*i}")
    b(f"  v_lshl_add_u32 v20, v9, 3, v18")
    b(f"  v_lshlrev_b32 v20, 8, v20")
    b(f"  v_lshl_add_u32 v20, v18, 6, v20")
    b(f"  v_lshl_add_u32 v20, v19, 5, v20")
    b(f"  v_lshl_add_u32 v{V_T}, v22, 3, v20")
    for fb in range(1, 4):
        b(f"  v_xor_b32 v{V_T+fb}, {64*fb}, v{V_T}")
    b(f"  s_mul_i32 s{S_TMP+2}, s{S_TMP}, 229376")
    b(f"  s_lshl_b32 s{S_TMP+1}, s60, 13")
    b(f"  s_add_u32 s{S_TMP+1}, s{S_TMP+1}, s{S_TMP+2}")
    b(f"  v_add_u32 v28, s{S_TMP+1}, v10")
    b(f"  s_waitcnt vmcnt(0)")
    for fb in range(4):
        for i in range(4):
            bv = BV + 2 * (4 * fb + i); a = V_ACC + fb * 16 + 4 * i
            b(f"  v_lshlrev_b32 v{a}, 16, v{bv}")
            b(f"  v_and_b32 v{a+1}, 0xffff0000, v{bv}")
            b(f"  v_lshlrev_b32 v{a+2}, 16, v{bv+1}")
            b(f"  v_and_b32 v{a+3}, 0xffff0000, v{bv+1}")
    def w3():
        wait(b, 2, 16, "x3c")
        stamp(b, "x3 released")
        stamp(b, "c:g1 start")
    gemm_core(b, c, "g1", w3)
    stamp(b, "c:g1 end")
    stamp(b, "g1 main done")
    K1 = -2.0 * 0.7978845608028654 * 1.4426950408889634
    K2 = K1 * 0.044715
    T = c.VPR
    b(f"  v_mov_b32 v{T}, {hex(f2u(K1))}")
    b(f"  v_mov_b32 v{T+1}, {hex(f2u(K1))}")
    b(f"  v_mov_b32 v{T+2}, {hex(f2u(K2))}")
    b(f"  v_mov_b32 v{T+3}, {hex(f2u(K2))}")
    b(f"  s_nop 7")
    W = T + 8
    for fb in range(4):
        a = V_ACC + fb * 16; t = W; o = W + 16 + 8 * (fb % 2)
        for h in range(0, 16, 2): b(f"  v_pk_mul_f32 {vr(t+h,2)}, {vr(a+h,2)}, {vr(a+h,2)}")
        for h in range(0, 16, 2): b(f"  v_pk_fma_f32 {vr(t+h,2)}, {vr(t+h,2)}, {vr(T+2,2)}, {vr(T,2)}")
        for h in range(0, 16, 2): b(f"  v_pk_mul_f32 {vr(t+h,2)}, {vr(t+h,2)}, {vr(a+h,2)}")
        for r in range(16): b(f"  v_exp_f32 v{t+r}, v{t+r}")
        for h in range(0, 16, 2): b(f"  v_pk_add_f32 {vr(t+h,2)}, {vr(t+h,2)}, 1.0 op_sel_hi:[1,0]")
        for r in range(16): b(f"  v_rcp_f32 v{t+r}, v{t+r}")
        for h in range(0, 16, 2): b(f"  v_pk_mul_f32 {vr(t+h,2)}, {vr(a+h,2)}, {vr(t+h,2)}")
        for i in range(4):
            b(f"  v_cvt_pk_bf16_f32 v{o+2*i}, v{t+4*i}, v{t+4*i+1}")
            b(f"  v_cvt_pk_bf16_f32 v{o+2*i+1}, v{t+4*i+2}, v{t+4*i+3}")
        for ip in range(2):
            oo = o + 4 * ip
            b(f"  s_mov_b32 s{S_TMP+1}, {(2*fb+ip)*1024}")
            b(f"  s_nop 0")
            b(f"  v_permlane32_swap_b32 v{oo}, v{oo+2}")
            b(f"  v_permlane32_swap_b32 v{oo+1}, v{oo+3}")
            b(f"  buffer_store_dwordx4 {vr(oo,4)}, v28, s[{SRD_O}:{SRD_O+3}], s{S_TMP+1} offen{SF}")
    stamp(b, "g1 stores issued")
    b(f"  s_waitcnt vmcnt(0)")
    b(f"  s_branch g1_join")
    b.label("g1_loader")
    b(f"  s_sub_u32 s50, s{S_W}, 4")
    b(f"  s_lshl_b32 s49, s50, 10")
    b(f"  s_add_u32 s{S_N+1}, s49, {R*STAGE}")
    b(f"  s_barrier                      ; matches the barrier inside wait(x3)")
    for n in range(R - 4): loader_issue(b, V_LO, W1F())
    loader_loop(b, c.NS, "g1", W1F())
    stamp(b, "g1 main done")
    g2_prologue_loader(b)
    stamp(b, "g1 stores issued")
    b.label("g1_join")
    if SK():
        b(f"  s_cmp_ge_u32 s60, 14")
        b(f"  s_cselect_b32 s18, 1, 0")
        b(f"  s_lshl_b32 s10, s61, 1")
        b(f"  s_add_u32 s18, s18, s10")
        arrive(b, 3, 18, label="x4", drained=True)
    else:
        arrive(b, 3, 61, label="x4", drained=True)
    b(f"  s_branch g2_start")
    b.label("g1_inactive")
    if "nopf" not in OPT:
        b(f"  s_sub_u32 s50, s2, 224")
        b(f"  s_lshl_b32 s50, s50, 3")
        b(f"  s_add_u32 s50, s50, s{S_W}")
        b(f"  v_lshlrev_b32 v29, 4, v7")
        idle_w2(b)
    b(f"  s_cmp_lt_u32 s{S_W}, 4")
    b(f"  s_cbranch_scc1 g2_start_inactive")
    g2_prologue_loader(b)
    b.label("g2_start_inactive")
    return c

def g2_prologue_loader(b):
    g2_ids(b)
    srd(b, SRD_T, P_W2, W1B)
    g2_loader_addr(b)
    loader_init(b, (64 if SK() else 128) * 4096)
    for n in range(2): loader_issue(b, V_LO, W2F())

def g2_sk(b):
    c = g1_cfg(); c.name = "g2"; c.NS = 28
    b.label("g2_start")
    g2_ids(b)
    srd(b, SRD_P, P_WS, U_BYTES, WS_U)
    srd(b, SRD_O, P_OUT, 4 << 20)
    srd(b, SRD_X, P_B2, 2048 * 2)
    srd(b, SRD_Y, P_WS, 4 << 20, WS_H)
    b(f"  s_cmp_ge_u32 s{S_W}, 4")
    b(f"  s_cbranch_scc1 g2_loader")
    lane_geom(b)
    b(f"  s_lshl_b32 s{S_TMP}, s{S_TILE_A}, 2")
    b(f"  s_add_u32 s{S_TMP}, s{S_TMP}, s{S_W}        ; dblk")
    b(f"  s_mul_i32 s{S_TMP+2}, s{S_TMP}, 229376")
    b(f"  s_mul_i32 s{S_TMP+3}, s19, {112*1024}       ; k half")
    b(f"  s_add_u32 s{S_TMP+2}, s{S_TMP+2}, s{S_TMP+3}")
    b(f"  v_lshlrev_b32 v10, 4, v7")
    b(f"  v_add_u32 v{V_P}, s{S_TMP+2}, v10")
    b(f"  s_lshl_b32 s{S_TMP+1}, s{S_TILE_B}, 7")
    b(f"  s_lshl_b32 s{S_TMP+3}, s19, 6")
    b(f"  s_add_u32 s{S_TMP+1}, s{S_TMP+1}, s{S_TMP+3}")
    b(f"  v_add_u32 v11, s{S_TMP+1}, v8              ; s0 + s'")
    b(f"  v_lshlrev_b32 v16, 1, v11")
    for sb in range(2):
        b(f"  buffer_load_ushort v{12+sb}, v16, s[{SRD_X}:{SRD_X+3}], 0 offen offset:{64*sb}")
    b(f"  v_lshlrev_b32 v17, 11, v11")
    b(f"  v_lshl_add_u32 v17, v9, 5, v17")
    b(f"  s_lshl_b32 s{S_TMP+2}, s{S_TMP}, 6")
    b(f"  v_add_u32 v28, s{S_TMP+2}, v17")
    HV = 192
    b(f"  v_lshl_add_u32 v20, v9, 3, v18")
    b(f"  v_lshlrev_b32 v20, 8, v20")
    b(f"  v_lshl_add_u32 v20, v18, 6, v20")
    b(f"  v_lshl_add_u32 v20, v19, 5, v20")
    b(f"  v_lshl_add_u32 v{V_T}, v22, 3, v20")
    for fb in range(1, 4):
        b(f"  v_xor_b32 v{V_T+fb}, {64*fb}, v{V_T}")
    b(f"  s_lshl_b32 s{S_TMP+1}, s{S_W}, 12")
    b(f"  s_lshl_b32 s{S_TMP+2}, s2, 14")
    b(f"  s_add_u32 s{S_TMP+2}, s{S_TMP+2}, s{S_TMP+1}")
    b(f"  v_add_u32 v29, s{S_TMP+2}, v10")
    b(f"  s_xor_b32 s{S_TMP+2}, s2, 1")
    b(f"  s_lshl_b32 s{S_TMP+2}, s{S_TMP+2}, 14")
    b(f"  s_add_u32 s{S_TMP+2}, s{S_TMP+2}, s{S_TMP+1}")
    b(f"  v_add_u32 v30, s{S_TMP+2}, v10")
    for i in range(64): b(f"  v_mov_b32 v{V_ACC+i}, 0")
    def w4():
        b(f"  s_lshl_b32 s18, s{S_TILE_A}, 1")
        b(f"  s_add_u32 s18, s18, s19")
        wait(b, 3, 14, "x4c", single_sreg=18)
        stamp(b, "x4 released")
        stamp(b, "c:g2 start")
    def hloads():
        for sb in range(2):
            b(f"  s_mov_b32 s{S_TMP+1}, {sb*65536}")
            b(f"  buffer_load_dwordx4 {vr(HV+8*sb,4)}, v28, s[{SRD_Y}:{SRD_Y+3}], s{S_TMP+1} offen{LF}")
            b(f"  buffer_load_dwordx4 {vr(HV+8*sb+4,4)}, v28, s[{SRD_Y}:{SRD_Y+3}], s{S_TMP+1} offen offset:16{LF}")
    gemm_core(b, c, "g2", w4, hloads)
    stamp(b, "c:g2 end")
    stamp(b, "g2 main done")
    srd(b, SRD_X, P_WS, 4 << 20, WS_XCH)
    T = c.VT
    b(f"  s_cmp_eq_u32 s19, 0")
    b(f"  s_cbranch_scc1 g2_send23")
    def pack_send(first):
        for blk in range(2):
            a = V_ACC + (first + blk) * 16
            for i in range(8):
                b(f"  v_cvt_pk_bf16_f32 v{T+8*blk+i}, v{a+2*i}, v{a+2*i+1}")
            for i in range(8):
                b(f"  v_min_u32 v{T+8*blk+i}, 0xfffffffe, v{T+8*blk+i}")
            for p in range(2):
                b(f"  buffer_store_dwordx4 {vr(T+8*blk+4*p,4)}, v30, s[{SRD_X}:{SRD_X+3}], 0 offen offset:{(2*blk+p)*1024}{SF}")
    b(f"  s_nop 7")
    pack_send(0)
    for i in range(32): b(f"  v_mov_b32 v{V_ACC+i}, v{V_ACC+32+i}")
    b(f"  s_branch g2_sent")
    b.label("g2_send23")
    b(f"  s_nop 7")
    pack_send(2)
    b.label("g2_sent")
    RX = c.VPR
    b(f"  s_mov_b32 s11, 200000")
    b.label("g2x_poll")
    for k in range(4):
        b(f"  buffer_load_dwordx4 {vr(RX+4*k,4)}, v29, s[{SRD_X}:{SRD_X+3}], 0 offen offset:{k*1024} sc1")
    b(f"  s_waitcnt vmcnt(0)")
    sentinel_check(b, RX, "g2x", n=16)
    stamp(b, "g2 x landed")
    b(f"  s_mov_b32 s{S_TMP}, 0xffff0000")
    for blk in range(2):
        for i in range(8):
            a = V_ACC + blk * 16 + 2 * i; r = RX + 8 * blk + i
            b(f"  v_lshlrev_b32 v16, 16, v{r}")
            b(f"  v_and_b32 v17, s{S_TMP}, v{r}")
            b(f"  v_add_f32 v{a}, v{a}, v16")
            b(f"  v_add_f32 v{a+1}, v{a+1}, v17")
    for sb in range(2):
        b(f"  v_lshlrev_b32 v{12+sb}, 16, v{12+sb}")
    for sb in range(2):
        for half in range(2):
            o = T + 4 * ((sb * 2 + half) % 2)
            for dd in range(4):
                a = V_ACC + sb * 16 + half * 8 + 2 * dd
                hv = HV + 8 * sb + 4 * half + dd
                t0 = T + 8 + 4 * dd
                b(f"  v_cvt_pk_bf16_f32 v{t0}, v{a}, v{a+1}")
                b(f"  v_and_b32 v{t0+1}, s{S_TMP}, v{t0}")
                b(f"  v_lshlrev_b32 v{t0}, 16, v{t0}")
                b(f"  v_add_f32 v{t0}, v{t0}, v{12+sb}")
                b(f"  v_add_f32 v{t0+1}, v{t0+1}, v{12+sb}")
                b(f"  v_cvt_pk_bf16_f32 v{t0}, v{t0}, v{t0+1}")
                b(f"  v_and_b32 v{t0+1}, s{S_TMP}, v{t0}")
                b(f"  v_lshlrev_b32 v{t0}, 16, v{t0}")
                b(f"  v_lshlrev_b32 v{t0+2}, 16, v{hv}")
                b(f"  v_and_b32 v{t0+3}, s{S_TMP}, v{hv}")
                b(f"  v_add_f32 v{t0}, v{t0}, v{t0+2}")
                b(f"  v_add_f32 v{t0+1}, v{t0+1}, v{t0+3}")
                b(f"  v_cvt_pk_bf16_f32 v{o+dd}, v{t0}, v{t0+1}")
            b(f"  s_mov_b32 s{S_TMP+1}, {sb*65536}")
            b(f"  buffer_store_dwordx4 {vr(o,4)}, v28, s[{SRD_O}:{SRD_O+3}], s{S_TMP+1} offen offset:{16*half}")
    stamp(b, "g2 stores issued")
    b(f"  s_branch g2_done")
    b.label("g2_loader")
    b(f"  s_barrier                      ; matches the barrier inside wait(x4)")
    for n in range(R - 4): loader_issue(b, V_LO, W2F())
    loader_loop(b, c.NS, "g2", W2F())
    b.label("g2_done")

def g2(b):
    if SK(): return g2_sk(b)
    c = g2_cfg()
    b.label("g2_start")
    g2_ids(b)
    srd(b, SRD_P, P_WS, U_BYTES, WS_U)
    srd(b, SRD_O, P_OUT, 4 << 20)
    srd(b, SRD_X, P_B2, 2048 * 2)
    srd(b, SRD_Y, P_WS, 4 << 20, WS_H)
    b(f"  s_cmp_ge_u32 s{S_W}, 4")
    b(f"  s_cbranch_scc1 g2_loader")
    lane_geom(b)
    b(f"  s_lshl_b32 s{S_TMP}, s{S_TILE_A}, 2")
    b(f"  s_add_u32 s{S_TMP}, s{S_TMP}, s{S_W}        ; dblk")
    b(f"  s_mul_i32 s{S_TMP+2}, s{S_TMP}, 229376")
    b(f"  v_lshlrev_b32 v10, 4, v7")
    b(f"  v_add_u32 v{V_P}, s{S_TMP+2}, v10")
    b(f"  s_lshl_b32 s{S_TMP+1}, s{S_TILE_B}, 6       ; s0")
    b(f"  v_add_u32 v11, s{S_TMP+1}, v8              ; s0 + s'")
    b(f"  v_lshlrev_b32 v16, 1, v11")
    for sb in range(2):
        b(f"  buffer_load_ushort v{12+sb}, v16, s[{SRD_X}:{SRD_X+3}], 0 offen offset:{64*sb}")
    b(f"  v_lshlrev_b32 v17, 11, v11")
    b(f"  v_lshl_add_u32 v17, v9, 5, v17")
    b(f"  s_lshl_b32 s{S_TMP+2}, s{S_TMP}, 6")
    b(f"  v_add_u32 v28, s{S_TMP+2}, v17")
    HV = 160
    b(f"  v_lshl_add_u32 v20, v9, 3, v18            ; row")
    b(f"  v_bfe_u32 v21, v18, 1, 1")
    b(f"  v_lshlrev_b32 v20, 7, v20")
    b(f"  v_lshl_add_u32 v20, v21, 6, v20")
    b(f"  v_lshl_add_u32 v20, v19, 5, v20")
    b(f"  v_lshl_add_u32 v{V_T}, v22, 3, v20")
    b(f"  v_xor_b32 v{V_T+1}, 64, v{V_T}")
    for i in range(32): b(f"  v_mov_b32 v{V_ACC+i}, 0")
    def w4():
        wait(b, 3, 28, "x4c", single_sreg=S_TILE_A)
        stamp(b, "x4 released")
        stamp(b, "c:g2 start")
    def hloads():
        for sb in range(2):
            b(f"  s_mov_b32 s{S_TMP+1}, {sb*65536}")
            b(f"  buffer_load_dwordx4 {vr(HV+8*sb,4)}, v28, s[{SRD_Y}:{SRD_Y+3}], s{S_TMP+1} offen{LF}")
            b(f"  buffer_load_dwordx4 {vr(HV+8*sb+4,4)}, v28, s[{SRD_Y}:{SRD_Y+3}], s{S_TMP+1} offen offset:16{LF}")
    gemm_core(b, c, "g2", w4, hloads)
    stamp(b, "c:g2 end")
    stamp(b, "g2 main done")
    T = c.VT
    b(f"  s_mov_b32 s{S_TMP}, 0xffff0000")
    for sb in range(2):
        b(f"  v_lshlrev_b32 v{12+sb}, 16, v{12+sb}")
    b(f"  s_nop 9")
    for sb in range(2):
        for half in range(2):
            o = T + 4 * ((sb * 2 + half) % 2)
            for dd in range(4):
                a = V_ACC + sb * 16 + half * 8 + 2 * dd
                hv = HV + 8 * sb + 4 * half + dd
                t0 = T + 8 + 4 * dd
                b(f"  v_cvt_pk_bf16_f32 v{t0}, v{a}, v{a+1}")
                b(f"  v_and_b32 v{t0+1}, s{S_TMP}, v{t0}")
                b(f"  v_lshlrev_b32 v{t0}, 16, v{t0}")
                b(f"  v_add_f32 v{t0}, v{t0}, v{12+sb}")
                b(f"  v_add_f32 v{t0+1}, v{t0+1}, v{12+sb}")
                b(f"  v_cvt_pk_bf16_f32 v{t0}, v{t0}, v{t0+1}")
                b(f"  v_and_b32 v{t0+1}, s{S_TMP}, v{t0}")
                b(f"  v_lshlrev_b32 v{t0}, 16, v{t0}")
                b(f"  v_lshlrev_b32 v{t0+2}, 16, v{hv}")
                b(f"  v_and_b32 v{t0+3}, s{S_TMP}, v{hv}")
                b(f"  v_add_f32 v{t0}, v{t0}, v{t0+2}")
                b(f"  v_add_f32 v{t0+1}, v{t0+1}, v{t0+3}")
                b(f"  v_cvt_pk_bf16_f32 v{o+dd}, v{t0}, v{t0+1}")
            b(f"  s_mov_b32 s{S_TMP+1}, {sb*65536}")
            b(f"  buffer_store_dwordx4 {vr(o,4)}, v28, s[{SRD_O}:{SRD_O+3}], s{S_TMP+1} offen offset:{16*half}")
    stamp(b, "g2 stores issued")
    b(f"  s_branch g2_done")
    b.label("g2_loader")
    b(f"  s_barrier                      ; matches the barrier inside wait(x4)")
    for n in range(R - 4): loader_issue(b, V_LO, W2F())
    loader_loop(b, c.NS, "g2", W2F())
    b.label("g2_done")

def build():
    NAME = "sequential_preLN__spectral_gfnet__mixer_token_mlp__prompt"
    hdr = open(f"cdna_kernels/{NAME}.s.ref").read().split("; Override launch")[0]
    K = NAME + "_kernel"
    b = B()
    b(hdr.rstrip("\n"))
    b(f"; @launch grid=(256,1,1) block=(512,1,1) lds={LDS_TOTAL}")
    b('.amdgcn_target "amdgcn-amd-amdhsa--gfx950"\n.text')
    b(f".globl {K}\n.p2align 8\n.type {K},@function\n{K}:")
    b(f"  s_cmp_ge_u32 s2, 256\n  s_cbranch_scc1 k_exit")
    if "stamp" in OPT: b("  v_mov_b32 v231, 0")
    stamp(b, "entry")
    b(f"  s_load_dwordx4 s[{P_X}:{P_X+3}], s[0:1], 0        ; x, w_r")
    b(f"  s_load_dwordx2 s[{P_WI}:{P_WI+1}], s[0:1], 16")
    b(f"  s_load_dwordx2 s[{P_W1}:{P_W1+1}], s[0:1], 32")
    b(f"  s_load_dwordx4 s[{P_B1}:{P_B1+3}], s[0:1], 40     ; b1, w2")
    b(f"  s_load_dwordx4 s[{P_B2}:{P_B2+3}], s[0:1], 56     ; b2, out")
    b(f"  s_load_dwordx4 s[{P_DBG}:{P_DBG+3}], s[0:1], 72")
    b(f"  v_lshrrev_b32 v6, 6, v0")
    b(f"  v_and_b32 v7, 63, v0        ; lane")
    b(f"  v_readfirstlane_b32 s{S_W}, v6")
    b(f"  v_and_b32 v8, 15, v7          ; c")
    b(f"  v_lshrrev_b32 v9, 4, v7       ; g")
    b(f"  s_waitcnt lgkmcnt(0)")
    srd(b, SRD_CNT, P_WS, 65536, WS_CNT)
    p1(b)
    p2_setup(b)
    wait(b, 0, 16, "x1c")
    stamp(b, "x1 released")
    p2_main(b)
    p3_setup(b)
    if SENT(): b("  s_barrier")
    else: wait(b, 1, 16, "x2c")
    stamp(b, "x2 released")
    p3_main(b)
    g1(b)
    g2(b)
    b(f"  s_waitcnt vmcnt(0)")
    stamp(b, "end")
    stamp_flush(b)
    b("k_exit:\n  s_endpgm")
    b(kd(K, 240, sgpr=102))
    return b.text()

if __name__ == "__main__":
    out = sys.argv[1]
    OPT.update(sys.argv[2:])
    for o in sys.argv[2:]:
        if o.startswith("pfn="): PFN[:] = [int(c) for c in o[4:].split(",")]
    gemm.OPT.update(sys.argv[2:])
    t = build()
    open(out, "w").write(t)
    rep = check_text(t)
    print("\n".join(rep) if rep else "no hazards found", "| stamps:", nstamp[0])
```

```python
import sys
from asmlib import *
import gemm, fft
from gemm import (srd, f2u, WS_X1, WS_X2, WS_H, WS_LN2, WS_U, U_BYTES, S_W, R, STAGE, PR, DQ,
                  V_P, V_T, V_ACC, S_POFF, S_IT, S_DELTA, SRD_P, SRD_T, SRD_O, SRD_X, SRD_Y, S_TILE_A, S_TILE_B, S_TMP,
                  g1_cfg, g2_cfg, lane_geom)
from fft import sincos, wave_reduce, ln_finish, layernorm16, cmul_pk, gmat, MF32, MF16

OPT = set()
PFN = [0, 4, 0, 4]
WS_CNT = 30 << 20
WS_STAMP = 31 << 20
WS_XCH = 24 << 20
W1B = 2048 * 3584 * 2
WB = 2048 * 1026

P_X, P_WR, P_WI, P_W1, P_B1, P_W2, P_B2, P_OUT, P_DBG, P_WS = 64, 66, 68, 70, 72, 74, 76, 78, 80, 82
SRD_CNT = 12
S_T = 46
SRD_A, SRD_B, SRD_C, SRD_D = 24, 28, 32, 36
SRD_PF = 56
S_STAMP = 84
SF = " sc1"
LF = ""

L1_M1, L1_M2, L1_TW, L1_EX = 0, 4096, 8192, 16384
L2_F = 32768; L2_X = L2_F + 2048; L2_W = L2_X + 16 * 1040
L3_M3 = 98304; L3_M4 = L3_M3 + 4096; L3_TW = L3_M3 + 8192; L3_EX = L3_M3 + 16384
L3_LN = L3_EX + 16384; L3_RS = 2624
LDS_TOTAL = L3_LN + 8 * L3_RS
assert LDS_TOTAL <= 163840

STAMPS = ["entry", "p1 x landed", "p1 stores issued", "p1 arrived", "x1 released", "p2 x landed", "p2 stores issued",
          "x2 released", "p3 x2 landed", "p3 stores issued", "x3 released", "g1 main done", "g1 stores issued", "x4 released",
          "g2 main done", "g2 stores issued", "end", "x1 drained", "x2 drained", "x3 drained", "x4 drained", "p1 tables done", "p1 ln done", "p1 fft done", "p3 ifft done", "p3 ln done", "c:g1 start", "c:g1 end", "c:g2 start", "c:g2 end", "g2 x landed"]
nstamp = [len(STAMPS)]
SENT = lambda: "bar" not in OPT
SK = lambda: "nosk" not in OPT
W1F = lambda: " nt" if "ntw1" in OPT else ""
W2F = lambda: " nt" if "ntw2" in OPT else ""
XF = lambda: " nt" if "ntx" in OPT else ""
def stamp(b, name):
    if "stamp" not in OPT: return
    i = STAMPS.index(name)
    op = "s_memtime" if name.startswith("c:") else "s_memrealtime"
    b(f"  {op} s[{S_STAMP}:{S_STAMP+1}]   ; stamp {i}: {name}")
    b(f"  s_waitcnt lgkmcnt(0)")
    b(f"  v_writelane_b32 v231, s{S_STAMP}, {i}")

def stamp_flush(b):
    if "stamp" not in OPT: return
    if "dbgtime" in OPT:
        b(f"  s_cmp_lg_u32 s2, 100")
        b(f"  s_cbranch_scc1 dbg_skip")
        b(f"  s_cmp_lg_u32 s{S_W}, 0")
        b(f"  s_cbranch_scc1 dbg_skip")
        srd(b, 24, P_DBG, 256)
        b(f"  v_readlane_b32 s46, v231, 0")
        b(f"  s_nop 1")
        b(f"  v_subrev_u32 v3, s46, v231")
        b(f"  v_lshlrev_b32 v2, 2, v7")
        b(f"  v_subrev_u32 v2, 4, v2")
        b(f"  s_mov_b64 s[48:49], exec")
        b(f"  s_mov_b64 exec, 0x1fffe")
        b(f"  buffer_store_dword v3, v2, s[24:27], 0 offen")
        b(f"  s_mov_b64 exec, s[48:49]")
        b.label("dbg_skip")
        return
    srd(b, 24, P_WS, 1 << 20, WS_STAMP)
    b(f"  s_lshl_b32 s46, s2, 3")
    b(f"  s_add_u32 s46, s46, s{S_W}")
    b(f"  s_lshl_b32 s46, s46, 7            ; (wg*8+wave)*128")
    b(f"  v_lshlrev_b32 v2, 2, v7")
    b(f"  s_mov_b64 s[48:49], exec")
    b(f"  s_mov_b64 exec, 0xffffffff")
    b(f"  buffer_store_dword v231, v2, s[24:27], s46 offen")
    b(f"  s_mov_b64 exec, s[48:49]")

def arrive(b, bar, shard_sreg, first=False, label="", drained=False):
    if not drained: b(f"  s_waitcnt vmcnt(0)")
    stamp(b, f"x{bar+1} drained")
    b(f"  s_barrier")
    b(f"  s_cmp_lg_u32 s{S_W}, 0")
    b(f"  s_cbranch_scc1 {label}_arr_skip")
    if first:
        b(f"  s_mov_b32 s11, 100000")
        b.label(f"{label}_rdy")
        b(f"  v_cmp_ne_u32 vcc, 0, v27")
        b(f"  s_nop 1")
        b(f"  s_cmp_eq_u64 vcc, exec")
        b(f"  s_cbranch_scc1 {label}_rdy_ok")
        b(f"  buffer_load_dword v27, v26, s[{SRD_PF}:{SRD_PF+3}], 0 offen sc1")
        b(f"  s_waitcnt vmcnt(0)")
        b(f"  s_sub_u32 s11, s11, 1")
        b(f"  s_cmp_lg_u32 s11, 0")
        b(f"  s_cbranch_scc1 {label}_rdy")
        b.label(f"{label}_rdy_ok")
    b(f"  s_lshl_b32 s10, s{shard_sreg}, 8")
    b(f"  s_add_u32 s10, s10, {bar*4096}")
    b(f"  v_mov_b32 v228, s10")
    b(f"  v_mov_b32 v229, 1")
    b(f"  s_mov_b64 s[16:17], exec")
    b(f"  s_mov_b64 exec, 1")
    b(f"  buffer_atomic_add v229, v228, s[{SRD_CNT}:{SRD_CNT+3}], 0 offen sc1")
    b(f"  s_mov_b64 exec, s[16:17]")
    b.label(f"{label}_arr_skip")

def wait(b, bar, target, label, single_sreg=None):
    b(f"  s_cmp_lg_u32 s{S_W}, 0")
    b(f"  s_cbranch_scc1 {label}_w_skip")
    if single_sreg is None:
        b(f"  v_and_b32 v228, 15, v7")
        b(f"  v_lshlrev_b32 v228, 8, v228")
        b(f"  v_add_u32 v228, {bar*4096}, v228")
    else:
        b(f"  s_lshl_b32 s10, s{single_sreg}, 8")
        b(f"  s_add_u32 s10, s10, {bar*4096}")
        b(f"  v_mov_b32 v228, s10")
    b(f"  s_mov_b32 s11, 200000")
    b.label(f"{label}_poll")
    b(f"  buffer_load_dword v229, v228, s[{SRD_CNT}:{SRD_CNT+3}], 0 offen sc1")
    b(f"  s_waitcnt vmcnt(0)")
    b(f"  v_cmp_le_u32 vcc, {target}, v229")
    b(f"  s_nop 1")
    b(f"  s_cmp_eq_u64 vcc, exec")
    b(f"  s_cbranch_scc1 {label}_w_skip")
    b(f"  s_sub_u32 s11, s11, 1")
    b(f"  s_cmp_lg_u32 s11, 0")
    b(f"  s_cbranch_scc1 {label}_poll")
    b.label(f"{label}_w_skip")
    b(f"  s_barrier")

def prefetch(b, ptr_pair, nbytes, start, length, who_scale, who_sreg, vaddr, vdst, stmp, paced=False):
    chunk = -(-length // who_scale)
    n_per_wave = -(-chunk // (512 * 128))
    stride = -(-chunk // (512 * n_per_wave))
    stride = (stride + 3) // 4 * 4
    per_instr = 64 * stride
    srd(b, SRD_PF, ptr_pair, nbytes)
    b(f"  s_mul_i32 s{stmp}, s{who_sreg}, {chunk}")
    b(f"  s_mul_i32 s{stmp+1}, s{S_W}, {n_per_wave*per_instr}")
    b(f"  s_add_u32 s{stmp}, s{stmp}, s{stmp+1}")
    if start: b(f"  s_add_u32 s{stmp}, s{stmp}, {start}")
    b(f"  v_mul_u32_u24 v{vaddr}, {stride}, v7")
    for i in range(n_per_wave):
        b(f"  buffer_load_dword v{vdst}, v{vaddr}, s[{SRD_PF}:{SRD_PF+3}], s{stmp} offen")
        if i + 1 < n_per_wave: b(f"  s_add_u32 s{stmp}, s{stmp}, {per_instr}")
        if paced: b(f"  s_waitcnt vmcnt(0)")
    return n_per_wave

V_DUMMY = 232
def pf_wide(b, ptr_pair, nbytes, s_base, n, wave_lo, wave_hi, label):
    b(f"  s_cmp_lt_u32 s{S_W}, {wave_lo}")
    b(f"  s_cbranch_scc1 {label}")
    if wave_hi < 8:
        b(f"  s_cmp_ge_u32 s{S_W}, {wave_hi}")
        b(f"  s_cbranch_scc1 {label}")
    srd(b, SRD_PF, ptr_pair, nbytes)
    b(f"  s_sub_u32 s{S_T+9}, s{S_W}, {wave_lo}")
    b(f"  s_mul_i32 s{S_T+9}, s{S_T+9}, {n*1024}")
    b(f"  s_add_u32 s{S_T+9}, s{S_T+9}, s{s_base}")
    b(f"  v_lshlrev_b32 v29, 4, v7")
    for i in range(n):
        if i and i % 4 == 0: b(f"  s_add_u32 s{S_T+9}, s{S_T+9}, 4096")
        b(f"  buffer_load_dwordx4 {vr(V_DUMMY,4)}, v29, s[{SRD_PF}:{SRD_PF+3}], s{S_T+9} offen offset:{(i%4)*1024}")
    b.label(label)

def w1_share_base(b, sreg, part):
    b(f"  s_mul_i32 s{sreg}, s2, {W1B // 256}")
    if part: b(f"  s_add_u32 s{sreg}, s{sreg}, {part}")

def w1_first_half_base(b, sreg, part):
    b(f"  s_and_b32 s{sreg}, s2, 7")
    b(f"  s_mul_i32 s{sreg}, s{sreg}, {256*7168}")
    b(f"  s_lshr_b32 s{S_T+9}, s2, 3")
    b(f"  s_mul_i32 s{S_T+9}, s{S_T+9}, {4*7168}")
    b(f"  s_add_u32 s{sreg}, s{sreg}, s{S_T+9}")
    if part: b(f"  s_add_u32 s{sreg}, s{sreg}, {part}")

def p1_tables(b):
    M1, M2, TW = L1_M1, L1_M2, L1_TW
    b(f"  v_and_b32 v10, 255, v0            ; e")
    b(f"  v_lshrrev_b32 v11, 8, v0          ; u")
    b(f"  v_bfe_u32 v12, v10, 2, 4          ; lane&15")
    b(f"  v_lshl_add_u32 v12, v11, 4, v12   ; k1")
    b(f"  v_lshrrev_b32 v13, 6, v10         ; g")
    b(f"  v_and_b32 v14, 3, v10")
    b(f"  v_lshlrev_b32 v13, 3, v13")
    b(f"  v_lshl_add_u32 v13, v14, 1, v13   ; a0 = 8g + 2i")
    b(f"  v_mul_u32_u24 v15, v13, v12       ; a0*k1")
    b(f"  v_add_u32 v16, v15, v12           ; (a0+1)*k1")
    sincos(b, 17, 18, 15, 5, 21)
    sincos(b, 19, 20, 16, 5, 21)
    b(f"  v_lshlrev_b32 v22, 2, v10")
    b(f"  v_lshl_add_u32 v22, v11, 11, v22  ; u*2048 + e*4")
    b(f"  v_cvt_pk_bf16_f32 v23, v17, v19")
    b(f"  v_cvt_pk_bf16_f32 v24, -v18, -v20")
    b(f"  ds_write_b32 v22, v23 offset:{M1}")
    b(f"  ds_write_b32 v22, v24 offset:{M1+1024}")
    sincos(b, 17, 18, 15, 10, 21)
    sincos(b, 19, 20, 16, 10, 21)
    b(f"  ds_write_b32 v22, v17 offset:{TW}")
    b(f"  ds_write_b32 v22, v18 offset:{TW+1024}")
    b(f"  ds_write_b32 v22, v19 offset:{TW+4096}")
    b(f"  ds_write_b32 v22, v20 offset:{TW+4096+1024}")
    b(f"  v_bfe_u32 v12, v10, 2, 4          ; k2")
    b(f"  v_mul_u32_u24 v15, v13, v12")
    b(f"  v_add_u32 v16, v15, v12")
    sincos(b, 17, 18, 15, 5, 21)
    sincos(b, 19, 20, 16, 5, 21)
    b(f"  v_lshlrev_b32 v22, 2, v10")
    b(f"  v_cvt_pk_bf16_f32 v23, v17, v19")
    b(f"  v_cvt_pk_bf16_f32 v24, v18, v20")
    b(f"  v_cvt_pk_bf16_f32 v25, -v18, -v20")
    b(f"  ds_write_b32 v22, v23 offset:{M2}")
    b(f"  ds_write_b32 v22, v24 offset:{M2+1024}")
    b(f"  ds_write_b32 v22, v25 offset:{M2+2048}")

def x1_store_addr(b):
    b(f"  v_lshlrev_b32 v5, 15, v9")
    b(f"  v_lshl_add_u32 v5, v8, 2, v5")
    b(f"  s_and_b32 s{S_T+6}, s2, 15")
    b(f"  s_lshl_b32 s{S_T+6}, s{S_T+6}, 4")
    b(f"  s_lshr_b32 s{S_T+7}, s2, 4")
    b(f"  s_add_u32 s{S_T+6}, s{S_T+6}, s{S_T+7}")
    b(f"  s_lshl_b32 s{S_T+6}, s{S_T+6}, 6       ; pos*64")
    b(f"  s_lshl_b32 s{S_T+7}, s{S_W}, 19        ; 4w*131072")
    b(f"  s_add_u32 s44, s{S_T+6}, s{S_T+7}")

def p1(b):
    srd(b, SRD_A, P_X, 4 << 20)
    srd(b, SRD_B, P_WS, 4 << 20, WS_X1)
    b(f"  s_lshl_b32 s{S_T}, s{S_W}, 8")
    b(f"  s_add_u32 s{S_T}, s{S_T}, s2          ; s")
    b(f"  s_lshl_b32 s{S_T+1}, s{S_T}, 11")
    b(f"  v_lshlrev_b32 v1, 9, v9")
    b(f"  v_lshl_add_u32 v1, v8, 2, v1")
    XD = 32
    for i in range(8):
        b(f"  buffer_load_dword v{XD+i}, v1, s[{SRD_A}:{SRD_A+3}], s{S_T+1} offen offset:{64*i}{XF()}")
    b(f"  s_cmp_ge_u32 s2, 16")
    b(f"  s_cbranch_scc1 p1_noreset")
    b(f"  s_cmp_lg_u32 s{S_W}, 0")
    b(f"  s_cbranch_scc1 p1_noreset")
    b(f"  s_lshl_b32 s{S_T+2}, s2, 8")
    b(f"  v_lshlrev_b32 v2, 12, v7")
    b(f"  v_add_u32 v2, s{S_T+2}, v2")
    b(f"  v_mov_b32 v3, 0")
    b(f"  s_mov_b64 s[48:49], exec")
    b(f"  s_mov_b64 exec, 15")
    b(f"  buffer_store_dword v3, v2, s[{SRD_CNT}:{SRD_CNT+3}], 0 offen sc1")
    b(f"  s_mov_b64 exec, s[48:49]")
    b.label("p1_noreset")
    NCLR = 0
    x1_store_addr(b)
    if SENT():
        b(f"  v_mov_b32 v60, -1")
        b(f"  v_mov_b32 v61, -1")
        b(f"  v_mov_b32 v62, -1")
        b(f"  v_mov_b32 v63, -1")
        b(f"  v_bfe_u32 v2, v7, 2, 3              ; j1")
        b(f"  v_lshrrev_b32 v3, 5, v7             ; i (0,1)")
        b(f"  v_lshlrev_b32 v2, 14, v2")
        b(f"  v_lshl_add_u32 v2, v3, 17, v2")
        b(f"  v_and_b32 v3, 3, v7")
        b(f"  v_lshl_add_u32 v2, v3, 4, v2")
        b(f"  buffer_store_dwordx4 v[60:63], v2, s[{SRD_B}:{SRD_B+3}], s44 offen{SF}")
        b(f"  s_add_u32 s{S_T+7}, s44, {2*131072}")
        b(f"  buffer_store_dwordx4 v[60:63], v2, s[{SRD_B}:{SRD_B+3}], s{S_T+7} offen{SF}")
        NCLR = 2
    npf = 0
    p1_tables(b)
    GM = 30
    gmat(b, GM, 2, False, 10)
    b(f"  s_waitcnt lgkmcnt(0)")
    stamp(b, "p1 tables done")
    b(f"  s_barrier")
    npf = 0
    if "nopf" not in OPT:
        b(f"  s_mul_i32 s{S_T+8}, s2, 8208")
        if "ntx" not in OPT and "wpf" in OPT:
            pf_wide(b, P_WR, WB, S_T + 8, 3, 0, 3, "pf_p1a")
            pf_wide(b, P_WI, WB, S_T + 8, 3, 0, 3, "pf_p1b")
        if "ntw1" not in OPT and PFN[0]:
            w1_share_base(b, S_T + 8, 0)
            pf_wide(b, P_W1, W1B, S_T + 8, PFN[0], 4, 8, "pf_p1c")
    M1, M2, TW = 96, 112, 128
    b(f"  v_lshlrev_b32 v2, 4, v7")
    for i in range(4): b(f"  ds_read_b128 {vr(M1+4*i,4)}, v2 offset:{L1_M1+1024*i}")
    for i in range(3): b(f"  ds_read_b128 {vr(M2+4*i,4)}, v2 offset:{L1_M2+1024*i}")
    for i in range(8): b(f"  ds_read_b128 {vr(TW+4*i,4)}, v2 offset:{L1_TW+1024*i}")
    X = 40
    nW = 0 if ("nopf" in OPT or "ntx" in OPT or "wpf" not in OPT) else 6
    n1 = 0 if ("nopf" in OPT or "ntw1" in OPT) else PFN[0]
    b(f"  s_cmp_eq_u32 s{S_W}, 3")
    b(f"  s_cbranch_scc1 p1_xw0")
    b(f"  s_cmp_ge_u32 s{S_W}, 4")
    b(f"  s_cbranch_scc1 p1_xw4")
    b(f"  s_waitcnt vmcnt({NCLR + nW})")
    b(f"  s_branch p1_xwd")
    b.label("p1_xw4")
    b(f"  s_waitcnt vmcnt({NCLR + n1})")
    b(f"  s_branch p1_xwd")
    b.label("p1_xw0")
    b(f"  s_waitcnt vmcnt({NCLR})")
    b.label("p1_xwd")
    stamp(b, "p1 x landed")
    srd(b, SRD_PF, P_DBG, 256)
    b(f"  s_and_b32 s{S_T+8}, s2, 15")
    b(f"  s_lshl_b32 s{S_T+9}, s{S_T+8}, 2")
    b(f"  s_add_u32 s{S_T+9}, s{S_T+9}, 64")
    b(f"  v_mov_b32 v25, s{S_T+9}")
    b(f"  v_lshlrev_b32 v26, 2, v8")
    b(f"  v_add_u32 v26, 64, v26")
    b(f"  s_cmp_ge_u32 s2, 16")
    b(f"  s_cbranch_scc1 p1_noflag")
    b(f"  s_cmp_lg_u32 s{S_W}, 0")
    b(f"  s_cbranch_scc1 p1_noflag")
    b(f"  v_mov_b32 v3, 1")
    b(f"  s_mov_b64 s[48:49], exec")
    b(f"  s_mov_b64 exec, 1")
    b(f"  buffer_store_dword v3, v25, s[{SRD_PF}:{SRD_PF+3}], 0 offen sc1")
    b(f"  s_mov_b64 exec, s[48:49]")
    b.label("p1_noflag")
    for i in range(8):
        b(f"  v_lshlrev_b32 v{X+i}, 16, v{XD+i}")
        b(f"  v_and_b32 v{X+8+i}, 0xffff0000, v{XD+i}")
    T = 56
    b(f"  v_add_f32 v{T}, v{X}, v{X+1}")
    b(f"  v_add_f32 v{T+1}, v{X+8}, v{X+9}")
    for i in range(2, 8):
        b(f"  v_add_f32 v{T}, v{T}, v{X+i}")
        b(f"  v_add_f32 v{T+1}, v{T+1}, v{X+8+i}")
    wave_reduce(b, [T, T+1])
    b(f"  v_sub_f32 v{T+2}, v{T}, v{T+1}       ; E - O")
    b(f"  v_add_f32 v{T}, v{T}, v{T+1}")
    b(f"  s_nop 0")
    b(f"  v_readlane_b32 s{S_T+2}, v{T}, 63")
    b(f"  v_readlane_b32 s{S_T+4}, v{T+2}, 63")
    b(f"  s_nop 1")
    ln_finish(b, X, T, S_T+2, S_T+3)
    b(f"  v_mul_f32 v{T+6}, s{S_T+4}, v{T+4}")
    stamp(b, "p1 ln done")
    if SENT():
        b(f"  buffer_load_dword v27, v26, s[{SRD_PF}:{SRD_PF+3}], 0 offen sc1")
        b(f"  s_and_b32 s{S_T+8}, s2, 15")
        arrive(b, 0, S_T + 8, first=True, label="x1")
        stamp(b, "p1 arrived")
        srd(b, SRD_C, P_WS, 4 << 20, WS_X2)
        for i in range(4): b(f"  v_mov_b32 v{200+i}, -1")
        b(f"  v_lshlrev_b32 v2, 4, v0")
        b(f"  s_lshl_b32 s{S_T+7}, s2, 14")
        b(f"  buffer_store_dwordx4 v[200:203], v2, s[{SRD_C}:{SRD_C+3}], s{S_T+7} offen{SF}")
        b(f"  s_add_u32 s{S_T+7}, s{S_T+7}, 8192")
        b(f"  buffer_store_dwordx4 v[200:203], v2, s[{SRD_C}:{SRD_C+3}], s{S_T+7} offen{SF}")
    A = 64
    for be in range(2):
        for i in range(4):
            b(f"  v_cvt_pk_bf16_f32 v{A+4*be+i}, v{X+8*be+2*i}, v{X+8*be+2*i+1}")
    b(f"  s_waitcnt lgkmcnt(0)")
    b(f"  v_readlane_b32 s{S_T+5}, v{T+6}, 0")
    Y = 160
    for be in range(2):
        for u in range(2):
            for c in range(2):
                d = Y + ((be * 2 + u) * 2 + c) * 4
                b(f"  {MF32} {vr(d,4)}, {vr(A+4*be,4)}, {vr(M1+4*(2*u+c),4)}, 0")
    b(f"  s_nop 4")
    Bp = 72; W = 32; O = 40
    for u in range(2):
        for be in range(2):
            y = Y + ((be * 2 + u) * 2) * 4
            tw = TW + (be * 4 + u * 2) * 4
            cmul_pk(b, O + 8 * be, O + 8 * be + 4, y, y + 4, tw, tw + 4, W, False)
        for r in range(4):
            b(f"  v_cvt_pk_bf16_f32 v{Bp+8*u+r}, v{O+r}, v{O+8+r}")
            b(f"  v_cvt_pk_bf16_f32 v{Bp+8*u+4+r}, v{O+4+r}, v{O+12+r}")
    XO = 160
    b(f"  s_nop 1")
    for u in range(2):
        re, im = XO + 8 * u, XO + 8 * u + 4
        b(f"  {MF32} {vr(re,4)}, {vr(M2,4)}, {vr(Bp+8*u,4)}, 0")
        b(f"  {MF32} {vr(im,4)}, {vr(M2,4)}, {vr(Bp+8*u+4,4)}, 0")
        b(f"  {MF32} {vr(re,4)}, {vr(M2+4,4)}, {vr(Bp+8*u+4,4)}, {vr(re,4)}")
        b(f"  {MF32} {vr(im,4)}, {vr(M2+8,4)}, {vr(Bp+8*u,4)}, {vr(im,4)}")
    b(f"  s_and_b32 s{S_T+6}, s{S_W}, 1")
    b(f"  s_lshl_b32 s{S_T+6}, s{S_T+6}, 8")
    b(f"  s_lshr_b32 s{S_T+7}, s{S_W}, 1")
    b(f"  s_lshl_b32 s{S_T+7}, s{S_T+7}, 6")
    b(f"  s_add_u32 s{S_T+6}, s{S_T+6}, s{S_T+7}")
    b(f"  v_lshlrev_b32 v3, 12, v9")
    b(f"  v_lshl_add_u32 v3, v8, 2, v3")
    b(f"  v_add_u32 v3, s{S_T+6}, v3")
    b(f"  s_nop 2")
    b(f"  v_writelane_b32 v{XO}, s{S_T+5}, 0")
    b(f"  v_writelane_b32 v{XO+4}, 0, 0")
    PK = 32
    for u in range(2):
        for r in range(4):
            b(f"  v_cvt_pk_bf16_f32 v{PK+4*u+r}, v{XO+8*u+r}, v{XO+8*u+4+r}")
    for u in range(2):
        for r in range(4):
            b(f"  ds_write_b32 v3, v{PK+4*u+r} offset:{L1_EX + u*512 + r*1024}")
    if SENT(): b(f"  s_waitcnt lgkmcnt(0) vmcnt(0)")
    else:
        b(f"  buffer_load_dword v27, v26, s[{SRD_PF}:{SRD_PF+3}], 0 offen sc1")
        b(f"  s_waitcnt lgkmcnt(0)")
    stamp(b, "p1 fft done")
    b(f"  s_barrier")
    b(f"  v_lshlrev_b32 v4, 6, v9")
    b(f"  v_lshl_add_u32 v4, v8, 2, v4")
    b(f"  s_lshl_b32 s{S_T+6}, s{S_W}, 11")
    b(f"  s_add_u32 s{S_T+6}, s{S_T+6}, {L1_EX}")
    b(f"  v_add_u32 v4, s{S_T+6}, v4")
    Bd = 40
    for i in range(4):
        b(f"  ds_read2st64_b32 {vr(Bd+2*i,2)}, v4 offset0:{2*i} offset1:{2*i+1}")
    D = 48
    for i in range(4):
        b(f"  s_waitcnt lgkmcnt({3-i})")
        b(f"  {MF16} {vr(D+4*i,4)}, {vr(GM,2)}, {vr(Bd+2*i,2)}, 0")
    b(f"  s_nop 4")
    for i in range(4):
        b(f"  v_cvt_pk_bf16_f32 v{64+2*i}, v{D+4*i}, v{D+4*i+1}")
        b(f"  v_cvt_pk_bf16_f32 v{65+2*i}, v{D+4*i+2}, v{D+4*i+3}")
        b(f"  v_min_u32 v{64+2*i}, 0xfffffffe, v{64+2*i}")
        b(f"  v_min_u32 v{65+2*i}, 0xfffffffe, v{65+2*i}")
        for e in range(2):
            b(f"  s_add_u32 s{S_T+7}, s44, {i*131072 + e*16384}")
            b(f"  buffer_store_dword v{64+2*i+e}, v5, s[{SRD_B}:{SRD_B+3}], s{S_T+7} offen{SF}")
    stamp(b, "p1 stores issued")
    if not SENT():
        b(f"  s_and_b32 s{S_T+8}, s2, 15")
        arrive(b, 0, S_T + 8, first=True, label="x1")
        stamp(b, "p1 arrived")

XL2, WL2 = 32, 40
TC2, TS2 = 64, 68
def p2_setup(b):
    srd(b, SRD_A, P_WS, 4 << 20, WS_X1)
    srd(b, SRD_B, P_WS, 4 << 20, WS_X2)
    srd(b, SRD_C, P_WR, WB)
    srd(b, SRD_D, P_WI, WB)
    b(f"  s_and_b32 s{S_T}, s2, 7              ; j1")
    b(f"  s_lshr_b32 s{S_T+1}, s2, 3           ; kb")
    b(f"  v_and_b32 v10, 1, v0                 ; half")
    b(f"  v_bfe_u32 v11, v0, 5, 4              ; c")
    b(f"  v_bfe_u32 v12, v0, 1, 4              ; e")
    b(f"  v_lshl_add_u32 v13, v12, 4, v11      ; j2")
    b(f"  v_lshlrev_b32 v13, 3, v13")
    b(f"  v_add_u32 v13, s{S_T}, v13           ; j")
    b(f"  v_mul_u32_u24 v13, 1026, v13")
    b(f"  v_lshlrev_b32 v14, 4, v10")
    b(f"  v_add_u32 v14, v13, v14")
    b(f"  s_lshl_b32 s{S_T+3}, s{S_T+1}, 5")
    WL = WL2
    b(f"  v_mov_b32 v24, v14")
    b(f"  v_mov_b32 v25, v13")
    b(f"  v_mov_b32 v26, v10                   ; half")
    b(f"  s_mov_b32 s45, s{S_T+3}              ; kb*32")
    WL = WL2
    b(f"  buffer_load_dwordx4 {vr(WL,4)}, v24, s[{SRD_C}:{SRD_C+3}], s45 offen{XF()}")
    b(f"  buffer_load_dwordx4 {vr(WL+4,4)}, v24, s[{SRD_D}:{SRD_D+3}], s45 offen{XF()}")
    b(f"  s_cmp_lg_u32 s{S_T+1}, 0")
    b(f"  s_cbranch_scc1 p2_nonyq")
    b(f"  buffer_load_ushort v48, v25, s[{SRD_C}:{SRD_C+3}], 0 offen offset:1024")
    b(f"  buffer_load_ushort v49, v25, s[{SRD_D}:{SRD_D+3}], 0 offen offset:1024")
    b(f"  s_waitcnt vmcnt(0)")
    b(f"  v_cmp_eq_u32 vcc, 0, v26")
    b(f"  v_and_b32 v50, 0xffff0000, v{WL}")
    b(f"  v_or_b32 v50, v50, v48")
    b(f"  v_cndmask_b32 v{WL}, v{WL}, v50, vcc")
    b(f"  v_and_b32 v50, 0xffff0000, v{WL+4}")
    b(f"  v_or_b32 v50, v50, v49")
    b(f"  v_cndmask_b32 v{WL+4}, v{WL+4}, v50, vcc")
    b.label("p2_nonyq")
    npf = 0
    b(f"  v_and_b32 v15, 255, v0")
    b(f"  v_bfe_u32 v16, v15, 2, 4             ; x")
    b(f"  v_lshrrev_b32 v17, 6, v15            ; g")
    b(f"  v_and_b32 v18, 3, v15")
    b(f"  v_lshl_add_u32 v17, v17, 2, v18      ; 4g+i")
    b(f"  v_mul_u32_u24 v17, v17, v16")
    sincos(b, 18, 19, 17, 4, 20)
    b(f"  v_cmp_gt_u32 vcc, 256, v0            ; matrix 0 ?")
    b(f"  v_xor_b32 v20, 0x80000000, v19       ; -sin")
    b(f"  s_nop 0")
    b(f"  v_cndmask_b32 v21, v20, v18, vcc")
    b(f"  v_cndmask_b32 v22, v18, v19, vcc")
    b(f"  v_cvt_pk_bf16_f32 v21, v21, v22")
    b(f"  v_lshlrev_b32 v22, 2, v0")
    b(f"  ds_write_b32 v22, v21 offset:{L2_F}")
    b(f"  v_lshlrev_b32 v16, 2, v9")
    for r in range(4):
        b(f"  v_add_u32 v17, {r}, v16")
        b(f"  v_mul_u32_u24 v17, v17, v8")
        sincos(b, TC2 + r, TS2 + r, 17, 8, 20)
    b(f"  v_and_b32 v16, 3, v0                 ; i")
    b(f"  v_mul_u32_u24 v16, {4*1040}, v16")
    b(f"  v_lshrrev_b32 v17, 6, v0             ; b (0..7)")
    b(f"  v_lshl_add_u32 v16, v17, 6, v16")
    b(f"  v_bfe_u32 v17, v0, 2, 2              ; a&3")
    b(f"  v_lshl_add_u32 v16, v17, 2, v16")
    b(f"  v_bfe_u32 v17, v0, 4, 2              ; a>>2")
    b(f"  v_lshl_add_u32 v21, v17, 4, v16      ; first")
    b(f"  v_xor_b32 v17, 2, v17")
    b(f"  v_lshl_add_u32 v22, v17, 4, v16")
    b(f"  v_add_u32 v22, 512, v22              ; second (b+8)")
    b(f"  v_mul_u32_u24 v16, {4*1040}, v10")
    b(f"  v_lshl_add_u32 v16, v11, 6, v16")
    b(f"  v_and_b32 v17, 3, v12")
    b(f"  v_lshl_add_u32 v16, v17, 2, v16")
    b(f"  v_lshrrev_b32 v17, 2, v12")
    b(f"  v_lshrrev_b32 v18, 3, v11            ; c>>3")
    b(f"  v_lshlrev_b32 v18, 1, v18")
    b(f"  v_xor_b32 v17, v17, v18")
    b(f"  v_lshl_add_u32 v23, v17, 4, v16")
    b(f"  v_lshrrev_b32 v16, 3, v8")
    b(f"  v_lshlrev_b32 v16, 1, v16")
    b(f"  v_xor_b32 v16, v16, v9")
    b(f"  v_lshlrev_b32 v16, 4, v16")
    b(f"  v_lshl_add_u32 v16, v8, 6, v16")
    b(f"  s_mul_i32 s{S_T+4}, s{S_W}, {2*1040}")
    b(f"  s_mul_i32 s{S_T+5}, s{S_W}, 1040")
    b(f"  v_add_u32 v5, s{S_T+4}, v16")
    b(f"  v_add_u32 v6, s{S_T+5}, v16")
    b(f"  v_lshlrev_b32 v1, 4, v0")
    b(f"  s_lshl_b32 s{S_T+2}, s2, 14")
    b(f"  s_add_u32 s{S_T+3}, s{S_T+2}, 8192")
    b(f"  s_waitcnt lgkmcnt(0)")

def sentinel_check(b, R0, pre, n=8):
    b(f"  v_max3_u32 v16, v{R0}, v{R0+1}, v{R0+2}")
    b(f"  v_max3_u32 v17, v{R0+3}, v{R0+4}, v{R0+5}")
    b(f"  v_max3_u32 v16, v16, v{R0+6}, v{R0+7}")
    for i in range(8, n, 2): b(f"  v_max3_u32 v17, v17, v{R0+i}, v{R0+i+1}")
    b(f"  v_max_u32 v16, v16, v17")
    b(f"  v_cmp_eq_u32 vcc, -1, v16")
    b(f"  s_sub_u32 s11, s11, 1")
    b(f"  s_cmp_eq_u32 s11, 0")
    b(f"  s_cbranch_scc1 {pre}_got")
    b(f"  s_cmp_lg_u64 vcc, 0")
    b(f"  s_cbranch_scc1 {pre}_poll")
    b.label(f"{pre}_got")

def p2_main(b):
    XL = XL2; TC, TS = TC2, TS2
    if SENT():
        b(f"  s_mov_b32 s11, 200000")
        b.label("p2_poll")
    b(f"  buffer_load_dwordx4 {vr(XL,4)}, v1, s[{SRD_A}:{SRD_A+3}], s{S_T+2} offen sc1")
    b(f"  buffer_load_dwordx4 {vr(XL+4,4)}, v1, s[{SRD_A}:{SRD_A+3}], s{S_T+3} offen sc1")
    b(f"  s_waitcnt vmcnt(0)")
    if SENT(): sentinel_check(b, XL, "p2")
    WL = WL2
    b(f"  v_lshlrev_b32 v17, 4, v7")
    FR, FI = 72, 76
    AX = 48; WR, WI = 152, 156
    b(f"  ds_read_b128 {vr(FR,4)}, v17 offset:{L2_F}")
    b(f"  ds_read_b128 {vr(FI,4)}, v17 offset:{L2_F+1024}")
    Dq = [80, 88]; Oq = [96, 104]; Tq = [112, 120]; Pq = [128, 132]; Wq = [136, 144]
    stamp(b, "p2 x landed")
    for j in range(4):
        b(f"  ds_write_b32 v21, v{XL+j} offset:{L2_X + j*1040}")
        b(f"  ds_write_b32 v22, v{XL+4+j} offset:{L2_X + j*1040}")
    for j in range(4):
        b(f"  ds_write_b32 v23, v{WL+j} offset:{L2_W + j*1040}")
        b(f"  ds_write_b32 v23, v{WL+4+j} offset:{L2_W + 8*1040 + j*1040}")
    if "nopf" not in OPT and "ntw1" not in OPT and PFN[1]:
        w1_share_base(b, S_T + 8, PFN[0] * 4096)
        pf_wide(b, P_W1, W1B, S_T + 8, PFN[1], 4, 8, "pf_p2a")
    b(f"  s_waitcnt lgkmcnt(0)")
    b(f"  s_barrier")
    b(f"  ds_read_b128 {vr(AX,4)}, v5 offset:{L2_X}")
    b(f"  ds_read_b128 {vr(AX+4,4)}, v5 offset:{L2_X+1040}")
    b(f"  ds_read_b128 {vr(WR,4)}, v6 offset:{L2_W}")
    b(f"  ds_read_b128 {vr(WI,4)}, v6 offset:{L2_W+8*1040}")
    def stage(form, src):
        for k in range(2):
            d = Dq[k]
            if form == 'A':
                b(f"  {MF32} {vr(d,4)}, {vr(src[k],4)}, {vr(FR,4)}, 0")
                b(f"  {MF32} {vr(d+4,4)}, {vr(src[k],4)}, {vr(FI,4)}, 0")
            else:
                b(f"  {MF32} {vr(d,4)}, {vr(FR,4)}, {vr(src[k],4)}, 0")
                b(f"  {MF32} {vr(d+4,4)}, {vr(FI,4)}, {vr(src[k],4)}, 0")
    def twiddle_pack():
        for k in range(2):
            cmul_pk(b, Oq[k], Oq[k] + 4, Dq[k], Dq[k] + 4, TC, TS, Tq[k], False)
        for k in range(2):
            for r in range(4):
                b(f"  v_cvt_pk_bf16_f32 v{Pq[k]+r}, v{Oq[k]+r}, v{Oq[k]+4+r}")
        b(f"  s_nop 1")
    b(f"  s_waitcnt lgkmcnt(2)")
    stage('A', [AX, AX + 4])
    b(f"  s_waitcnt lgkmcnt(0)")
    for r in range(4):
        b(f"  v_lshlrev_b32 v{Wq[0]+r}, 16, v{WR+r}")
        b(f"  v_lshlrev_b32 v{Wq[0]+4+r}, 16, v{WI+r}")
        b(f"  v_and_b32 v{Wq[1]+r}, 0xffff0000, v{WR+r}")
        b(f"  v_and_b32 v{Wq[1]+4+r}, 0xffff0000, v{WI+r}")
    twiddle_pack()
    stage('B', Pq)
    b(f"  s_nop 5")
    for k in range(2):
        cmul_pk(b, Oq[k], Oq[k] + 4, Dq[k], Dq[k] + 4, Wq[k], Wq[k] + 4, Tq[k], True)
    for k in range(2):
        for r in range(4):
            b(f"  v_cvt_pk_bf16_f32 v{Pq[k]+r}, v{Oq[k]+r}, -v{Oq[k]+4+r}")
    b(f"  s_nop 1")
    stage('A', Pq)
    b(f"  s_nop 5")
    twiddle_pack()
    stage('B', Pq)
    b(f"  s_nop 5")
    for k in range(2):
        for r in range(4):
            b(f"  v_cvt_pk_bf16_f32 v{Pq[k]+r}, v{Dq[k]+r}, -v{Dq[k]+4+r}")
    b(f"  ds_write_b128 v5, {vr(Pq[0],4)} offset:{L2_X}")
    b(f"  ds_write_b128 v5, {vr(Pq[1],4)} offset:{L2_X+1040}")
    b(f"  s_waitcnt lgkmcnt(0)")
    b(f"  s_barrier")
    for j in range(4):
        b(f"  ds_read_b32 v{XL+j}, v21 offset:{L2_X + j*1040}")
        b(f"  ds_read_b32 v{XL+4+j}, v22 offset:{L2_X + j*1040}")
    b(f"  v_bfe_u32 v16, v0, 2, 4              ; a")
    b(f"  v_lshrrev_b32 v17, 6, v0             ; b")
    b(f"  v_lshl_add_u32 v16, v16, 4, v17      ; s1")
    b(f"  v_lshlrev_b32 v16, 14, v16")
    b(f"  v_and_b32 v17, 3, v0")
    b(f"  v_lshl_add_u32 v16, v17, 4, v16")
    b(f"  s_lshl_b32 s{S_T+4}, s{S_T}, 11")
    b(f"  s_lshl_b32 s{S_T+5}, s{S_T+1}, 6")
    b(f"  s_add_u32 s{S_T+4}, s{S_T+4}, s{S_T+5}")
    b(f"  s_add_u32 s{S_T+5}, s{S_T+4}, {8*16384}")
    b(f"  s_waitcnt lgkmcnt(0)")
    for j in range(8): b(f"  v_min_u32 v{XL+j}, 0xfffffffe, v{XL+j}")
    b(f"  buffer_store_dwordx4 {vr(XL,4)}, v16, s[{SRD_B}:{SRD_B+3}], s{S_T+4} offen{SF}")
    b(f"  buffer_store_dwordx4 {vr(XL+4,4)}, v16, s[{SRD_B}:{SRD_B+3}], s{S_T+5} offen{SF}")
    stamp(b, "p2 stores issued")
    if not SENT():
        b(f"  s_and_b32 s{S_T+8}, s2, 15")
        arrive(b, 1, S_T + 8, label="x2")

V_LO = 224
S_G1A = 60
def g1_ids(b):
    b(f"  s_lshr_b32 s{S_T}, s2, 3                 ; i")
    b(f"  s_cmp_lt_u32 s{S_T}, 28")
    b(f"  s_cselect_b32 s62, 1, 0")
    b(f"  s_mul_i32 s{S_T+1}, s{S_T}, 37")
    b(f"  s_lshr_b32 s{S_T+1}, s{S_T+1}, 8         ; i/7")
    b(f"  s_mul_i32 s{S_T+2}, s{S_T+1}, 7")
    b(f"  s_sub_u32 s{S_T+2}, s{S_T}, s{S_T+2}     ; i%7")
    b(f"  s_and_b32 s{S_T+3}, s2, 7")
    b(f"  s_lshr_b32 s{S_T+4}, s{S_T+3}, 1")
    b(f"  s_mul_i32 s{S_T+4}, s{S_T+4}, 7")
    b(f"  s_add_u32 s60, s{S_T+4}, s{S_T+2}        ; ft")
    b(f"  s_and_b32 s{S_T+3}, s{S_T+3}, 1")
    b(f"  s_lshl_b32 s{S_T+3}, s{S_T+3}, 2")
    b(f"  s_add_u32 s61, s{S_T+3}, s{S_T+1}        ; dt")

S_SOFF, S_M0, S_N = 4, 5, 6
def loader_issue(b, voff, fl=""):
    for i in range(4):
        b(f"  s_add_u32 m0, s{S_M0}, {4096*i}")
        b(f"  s_nop 0")
        b(f"  buffer_load_dwordx4 v{voff+i}, s[{SRD_T}:{SRD_T+3}], s{S_SOFF} offen{fl} lds")
    b(f"  s_add_u32 s{S_SOFF}, s{S_SOFF}, s9")
    b(f"  s_add_u32 s{S_M0}, s{S_M0}, {STAGE}")
    b(f"  s_cmp_ge_u32 s{S_M0}, s{S_N+1}")
    b(f"  s_cselect_b32 s{S_N+2}, {R*STAGE}, 0")
    b(f"  s_sub_u32 s{S_M0}, s{S_M0}, s{S_N+2}")

def loader_init(b, step_bytes):
    b(f"  s_sub_u32 s50, s{S_W}, 4")
    b(f"  s_lshl_b32 s{S_M0}, s50, 10")
    b(f"  s_add_u32 s{S_N+1}, s{S_M0}, {R*STAGE}")
    b(f"  s_mov_b32 s{S_SOFF}, 0")
    b(f"  s_mov_b32 s9, {step_bytes}")

def g1_loader_addr(b):
    b(f"  s_sub_u32 s50, s{S_W}, 4      ; w'")
    for i in range(4):
        b(f"  s_lshl_b32 s49, s50, 2")
        b(f"  s_add_u32 s49, s49, {16*i}")
        b(f"  v_lshrrev_b32 v14, 4, v7")
        b(f"  v_add_u32 v14, s49, v14                 ; row 0..63")
        b(f"  v_and_b32 v15, 3, v14")
        b(f"  v_lshlrev_b32 v15, 2, v15")
        b(f"  v_and_b32 v16, 15, v7")
        b(f"  v_xor_b32 v16, v16, v15                 ; q")
        b(f"  v_lshrrev_b32 v17, 3, v14")
        b(f"  v_and_b32 v18, 7, v14")
        b(f"  v_lshl_add_u32 v17, v18, 8, v17         ; s")
        b(f"  v_mul_u32_u24 v17, 7168, v17")
        b(f"  v_lshl_add_u32 v17, v16, 4, v17")
        b(f"  s_lshl_b32 s49, s60, 8")
        b(f"  v_add_u32 v{V_LO+i}, s49, v17")

def g2_ids(b):
    if SK():
        b(f"  s_lshr_b32 s{S_T+1}, s2, 3")
        b(f"  s_lshr_b32 s{S_TILE_A}, s{S_T+1}, 2          ; dt")
        b(f"  s_lshr_b32 s{S_T}, s2, 1")
        b(f"  s_and_b32 s{S_T}, s{S_T}, 3")
        b(f"  s_lshl_b32 s{S_T}, s{S_T}, 2")
        b(f"  s_and_b32 s{S_T+1}, s{S_T+1}, 3")
        b(f"  s_add_u32 s{S_TILE_B}, s{S_T}, s{S_T+1}      ; st2")
        b(f"  s_and_b32 s19, s2, 1                       ; kh")
        return
    b(f"  s_and_b32 s{S_T}, s2, 1")
    b(f"  s_lshl_b32 s{S_T}, s{S_T}, 2")
    b(f"  s_lshr_b32 s{S_T+1}, s2, 3")
    b(f"  s_and_b32 s{S_T+2}, s{S_T+1}, 3")
    b(f"  s_add_u32 s{S_TILE_A}, s{S_T}, s{S_T+2}     ; dt")
    b(f"  s_lshr_b32 s{S_T}, s2, 1")
    b(f"  s_and_b32 s{S_T}, s{S_T}, 3")
    b(f"  s_lshl_b32 s{S_T}, s{S_T}, 3")
    b(f"  s_lshr_b32 s{S_T+1}, s{S_T+1}, 2")
    b(f"  s_add_u32 s{S_TILE_B}, s{S_T}, s{S_T+1}     ; st")

def g2_loader_addr(b):
    if SK():
        b(f"  s_sub_u32 s50, s{S_W}, 4")
        for i in range(4):
            b(f"  s_lshl_b32 s49, s50, 2")
            b(f"  s_add_u32 s49, s49, {16*i}")
            b(f"  v_lshrrev_b32 v14, 4, v7")
            b(f"  v_add_u32 v14, s49, v14                 ; row 0..63")
            b(f"  v_and_b32 v15, 3, v14")
            b(f"  v_lshlrev_b32 v15, 2, v15")
            b(f"  v_and_b32 v16, 15, v7")
            b(f"  v_xor_b32 v16, v16, v15                 ; q")
            b(f"  v_lshlrev_b32 v14, 12, v14              ; row*4096")
            b(f"  v_lshl_add_u32 v14, v16, 4, v14")
            b(f"  s_lshl_b32 s49, s{S_TILE_B}, 8          ; s0*2")
            b(f"  s_mul_i32 s48, s19, {1792*4096}         ; k half")
            b(f"  s_add_u32 s49, s49, s48")
            b(f"  v_add_u32 v{V_LO+i}, s49, v14")
        return
    b(f"  s_sub_u32 s50, s{S_W}, 4")
    for i in range(4):
        b(f"  s_lshl_b32 s49, s50, 3")
        b(f"  s_add_u32 s49, s49, {32*i}")
        b(f"  v_lshrrev_b32 v14, 3, v7")
        b(f"  v_add_u32 v14, s49, v14                 ; row")
        b(f"  v_bfe_u32 v15, v14, 1, 1")
        b(f"  v_lshlrev_b32 v15, 2, v15")
        b(f"  v_and_b32 v16, 7, v7")
        b(f"  v_xor_b32 v16, v16, v15                 ; q")
        b(f"  v_lshlrev_b32 v14, 12, v14              ; row*4096")
        b(f"  v_lshl_add_u32 v14, v16, 4, v14")
        b(f"  s_lshl_b32 s49, s{S_TILE_B}, 7          ; s0*2")
        b(f"  v_add_u32 v{V_LO+i}, s49, v14")

def loader_loop(b, NS, pre, fl=""):
    nmain = NS - (R - 2)
    b(f"  s_mov_b32 s{S_N}, {nmain}")
    b.label(f"{pre}_lloop")
    b(f"  s_waitcnt vmcnt({(R-3)*4})")
    b("  s_barrier")
    loader_issue(b, V_LO, fl)
    b(f"  s_sub_u32 s{S_N}, s{S_N}, 1")
    b(f"  s_cmp_lg_u32 s{S_N}, 0")
    b(f"  s_cbranch_scc1 {pre}_lloop")
    for i in range(R - 2):
        b(f"  s_waitcnt vmcnt({(R-3-i)*4})")
        b("  s_barrier")

BD3 = 32; XR3 = 192; GM3 = 30
def p3_tables(b):
    b(f"  v_and_b32 v10, 255, v0            ; e")
    b(f"  v_lshrrev_b32 v11, 8, v0")
    b(f"  v_bfe_u32 v12, v10, 2, 4          ; n = lane&15")
    b(f"  v_lshrrev_b32 v13, 6, v10         ; g")
    b(f"  v_and_b32 v14, 3, v10             ; r")
    b(f"  v_lshl_add_u32 v13, v13, 2, v14   ; 4g + r")
    b(f"  v_lshrrev_b32 v15, 2, v12")
    b(f"  v_lshlrev_b32 v15, 3, v15")
    b(f"  v_and_b32 v16, 3, v12")
    b(f"  v_add_u32 v15, v15, v16           ; b(n,0)")
    b(f"  v_lshl_add_u32 v16, v11, 2, v15   ; b(n, sel)")
    b(f"  v_mul_u32_u24 v17, v16, v13")
    sincos(b, 18, 19, 17, 5, 20)
    b(f"  v_lshlrev_b32 v22, 2, v10")
    b(f"  v_lshl_add_u32 v22, v11, 11, v22  ; sel*2048 + e*4")
    b(f"  v_add_u32 v22, {L3_M3}, v22")
    b(f"  v_cvt_pk_bf16_f32 v23, v18, -v19")
    b(f"  v_cvt_pk_bf16_f32 v24, v19, v18")
    b(f"  ds_write_b32 v22, v23")
    b(f"  ds_write_b32 v22, v24 offset:1024")
    b(f"  v_lshl_add_u32 v17, v11, 4, v13   ; k1")
    for z in range(2):
        b(f"  v_add_u32 v21, {16*z}, v12")
        b(f"  v_mul_u32_u24 v21, v21, v17")
        sincos(b, 18, 19, 21, 5, 20)
        b(f"  v_add_f32 v18, v18, v18")
        b(f"  v_mul_f32 v19, -2.0, v19")
        b(f"  v_cvt_pk_bf16_f32 v23, v18, v19")
        b(f"  ds_write_b32 v22, v23 offset:{4096+1024*z}")
    b(f"  v_lshlrev_b32 v23, 2, v10")
    b(f"  v_lshl_add_u32 v23, v11, 12, v23   ; u*4096 + e*4")
    b(f"  v_add_u32 v23, {L3_TW}, v23")
    for v in range(2):
        b(f"  v_add_u32 v21, {4*v}, v15")
        b(f"  v_mul_u32_u24 v21, v21, v17")
        sincos(b, 18, 19, 21, 10, 20)
        b(f"  ds_write_b32 v23, v18 offset:{2048*v}")
        b(f"  ds_write_b32 v23, v19 offset:{2048*v+1024}")

def p3_setup(b):
    srd(b, SRD_A, P_WS, 4 << 20, WS_X2)
    srd(b, SRD_B, P_X, 4 << 20)
    srd(b, SRD_C, P_WS, 4 << 20, WS_H)
    srd(b, SRD_D, P_WS, 4 << 20, WS_LN2)
    b(f"  s_lshl_b32 s{S_T+3}, s{S_W}, 8")
    b(f"  s_add_u32 s{S_T+3}, s{S_T+3}, s2")
    b(f"  s_lshl_b32 s{S_T+3}, s{S_T+3}, 11       ; s*2048")
    b(f"  v_lshlrev_b32 v4, 6, v8")
    b(f"  v_lshl_add_u32 v4, v9, 4, v4")
    for z in range(2):
        b(f"  buffer_load_dwordx4 {vr(XR3+4*z,4)}, v4, s[{SRD_B}:{SRD_B+3}], s{S_T+3} offen offset:{1024*z}")
    b(f"  s_mov_b32 s63, s{S_T+3}")
    if SK():
        srd(b, SRD_PF, P_WS, 4 << 20, WS_XCH)
        for i in range(4): b(f"  v_mov_b32 v{200+i}, -1")
        b(f"  v_lshlrev_b32 v2, 4, v0")
        b(f"  s_lshl_b32 s{S_T+8}, s2, 14")
        b(f"  buffer_store_dwordx4 v[200:203], v2, s[{SRD_PF}:{SRD_PF+3}], s{S_T+8} offen{SF}")
        b(f"  s_add_u32 s{S_T+8}, s{S_T+8}, 8192")
        b(f"  buffer_store_dwordx4 v[200:203], v2, s[{SRD_PF}:{SRD_PF+3}], s{S_T+8} offen{SF}")
    if "nopf" not in OPT and "ntw1" not in OPT:
        if PFN[2]:
            w1_share_base(b, S_T + 8, (PFN[0] + PFN[1]) * 4096)
            pf_wide(b, P_W1, W1B, S_T + 8, PFN[2], 4, 8, "pf_p3a")
    g1_ids(b)
    g1_loader_addr(b)
    loader_init(b, 8 * 7168)
    p3_tables(b)
    gmat(b, GM3, 2, True, 10)
    b(f"  v_lshlrev_b32 v1, 12, v9")
    b(f"  v_lshl_add_u32 v1, v8, 2, v1")
    b(f"  s_lshl_b32 s{S_T}, s2, 14")
    b(f"  s_and_b32 s{S_T+1}, s{S_W}, 1")
    b(f"  s_lshl_b32 s{S_T+1}, s{S_T+1}, 6")
    b(f"  s_lshr_b32 s{S_T+2}, s{S_W}, 1")
    b(f"  s_lshl_b32 s{S_T+2}, s{S_T+2}, 9")
    b(f"  s_add_u32 s{S_T}, s{S_T}, s{S_T+1}")
    b(f"  s_add_u32 s44, s{S_T}, s{S_T+2}          ; X2 soffset")
    b(f"  s_lshl_b32 s{S_T+1}, s{S_T+1}, 4        ; u*1024")
    b(f"  s_lshr_b32 s{S_T+2}, s{S_T+2}, 1        ; q4*256")
    b(f"  s_add_u32 s45, s{S_T+1}, s{S_T+2}")
    b(f"  s_waitcnt lgkmcnt(0)")

def p3_main(b):
    Bd, XR, GM = BD3, XR3, GM3
    D = 40
    b(f"  v_lshlrev_b32 v3, 12, v9")
    b(f"  v_lshl_add_u32 v3, v8, 4, v3")
    b(f"  v_add_u32 v3, s45, v3")
    b(f"  v_add_u32 v3, {L3_EX}, v3")
    M3, M4, TW = 96, 112, 128
    b(f"  v_lshlrev_b32 v6, 4, v7")
    b(f"  v_add_u32 v6, {L3_M3}, v6")
    for i in range(4): b(f"  ds_read_b128 {vr(M3+4*i,4)}, v6 offset:{1024*i}")
    for i in range(4): b(f"  ds_read_b128 {vr(M4+4*i,4)}, v6 offset:{4096+1024*i}")
    b(f"  s_waitcnt lgkmcnt(0)")
    for i in range(8): b(f"  ds_read_b128 {vr(TW+4*i,4)}, v6 offset:{8192+1024*i}")
    if SENT():
        b(f"  s_mov_b32 s11, 200000")
        b.label("p3_poll")
    for i in range(4):
        for e in range(2):
            b(f"  buffer_load_dword v{Bd+2*i+e}, v1, s[{SRD_A}:{SRD_A+3}], s44 offen offset:{e*2048+i*128} sc1")
    b(f"  s_waitcnt vmcnt(0)")
    if SENT(): sentinel_check(b, Bd, "p3")
    stamp(b, "p3 x2 landed")
    if "nopf" not in OPT and "ntw1" not in OPT and PFN[3]:
        w1_share_base(b, S_T + 8, (PFN[0] + PFN[1] + PFN[2]) * 4096)
        pf_wide(b, P_W1, W1B, S_T + 8, PFN[3], 4, 8, "pf_p3b")
    for i in range(4):
        b(f"  {MF16} {vr(D+4*i,4)}, {vr(GM,2)}, {vr(Bd+2*i,2)}, 0")
    b(f"  s_nop 4")
    PK = 56
    for e in range(2):
        for i in range(4):
            b(f"  v_cvt_pk_bf16_f32 v{PK+4*e+i}, v{D+4*i+2*e}, v{D+4*i+2*e+1}")
    b(f"  ds_write_b128 v3, {vr(PK,4)}")
    b(f"  ds_write_b128 v3, {vr(PK+4,4)} offset:2048")
    b(f"  s_waitcnt lgkmcnt(0)")
    b(f"  s_barrier")
    b(f"  v_lshlrev_b32 v5, 8, v9")
    b(f"  v_lshl_add_u32 v5, v8, 4, v5")
    b(f"  s_lshl_b32 s{S_T+1}, s{S_W}, 11")
    b(f"  s_add_u32 s{S_T+1}, s{S_T+1}, {L3_EX}")
    b(f"  v_add_u32 v5, s{S_T+1}, v5")
    AU = 32
    b(f"  ds_read_b128 {vr(AU,4)}, v5")
    b(f"  ds_read_b128 {vr(AU+4,4)}, v5 offset:1024")
    b(f"  s_waitcnt lgkmcnt(0)")
    b(f"  v_readlane_b32 s{S_T+4}, v{AU}, 0")
    b(f"  v_writelane_b32 v{AU}, 0, 0")
    b(f"  s_nop 1")
    b(f"  s_lshl_b32 s{S_T+4}, s{S_T+4}, 16")
    TT = 160
    for u in range(2):
        for v in range(2):
            for c in range(2):
                d = TT + ((u * 2 + v) * 2 + c) * 4
                b(f"  {MF32} {vr(d,4)}, {vr(AU+4*u,4)}, {vr(M3+4*(2*v+c),4)}, 0")
    CI = 60
    b(f"  v_mov_b32 v{CI}, s{S_T+4}")
    b(f"  v_xor_b32 v{CI+1}, 0x80000000, v{CI}")
    b(f"  v_mov_b32 v{CI+2}, v{CI}")
    b(f"  v_mov_b32 v{CI+3}, v{CI+1}")
    b(f"  s_nop 1")
    A2 = 64; O = 40; W = 80
    for u in range(2):
        for v in range(2):
            t = TT + ((u * 2 + v) * 2) * 4
            tw = TW + ((u * 2 + v) * 2) * 4
            cmul_pk(b, O, O + 4, t, t + 4, tw, tw + 4, W, True)
            for r in range(4):
                b(f"  v_cvt_pk_bf16_f32 v{A2+(u*2+v)*4+r}, v{O+r}, v{O+4+r}")
    Y = 160
    b(f"  s_nop 1")
    for z in range(2):
        for v in range(2):
            d = Y + (z * 2 + v) * 4
            b(f"  {MF32} {vr(d,4)}, {vr(A2+(0*2+v)*4,4)}, {vr(M4+(0*2+z)*4,4)}, {vr(CI,4)}")
    for z in range(2):
        for v in range(2):
            d = Y + (z * 2 + v) * 4
            b(f"  {MF32} {vr(d,4)}, {vr(A2+(1*2+v)*4,4)}, {vr(M4+(1*2+z)*4,4)}, {vr(d,4)}")
    b(f"  s_nop 7")
    X = 40; HP = 32
    stamp(b, "p3 ifft done")
    for z in range(2):
        for dd in range(4):
            y0 = Y + z * 8 + 2 * dd
            xd = XR + 4 * z + dd
            t = 64 + 4 * (dd % 2)
            b(f"  v_cvt_pk_bf16_f32 v{t}, v{y0}, v{y0+1}")
            b(f"  v_lshlrev_b32 v{t+1}, 16, v{xd}")
            b(f"  v_and_b32 v{t+2}, 0xffff0000, v{xd}")
            b(f"  v_and_b32 v{t+3}, 0xffff0000, v{t}")
            b(f"  v_lshlrev_b32 v{t}, 16, v{t}")
            b(f"  v_add_f32 v{t+1}, v{t+1}, v{t}")
            b(f"  v_add_f32 v{t+2}, v{t+2}, v{t+3}")
            b(f"  v_cvt_pk_bf16_f32 v{HP+4*z+dd}, v{t+1}, v{t+2}")
    for z in range(2):
        b(f"  buffer_store_dwordx4 {vr(HP+4*z,4)}, v4, s[{SRD_C}:{SRD_C+3}], s63 offen offset:{1024*z}{SF}")
    for i in range(8):
        b(f"  v_lshlrev_b32 v{X+2*i}, 16, v{HP+i}")
        b(f"  v_and_b32 v{X+2*i+1}, 0xffff0000, v{HP+i}")
    layernorm16(b, X, 64, S_T+5, S_T+6)
    LP = 72
    stamp(b, "p3 ln done")
    for i in range(8):
        b(f"  v_cvt_pk_bf16_f32 v{LP+i}, v{X+2*i}, v{X+2*i+1}")
    b(f"  v_mul_u32_u24 v3, 80, v8")
    b(f"  v_lshl_add_u32 v3, v9, 4, v3")
    b(f"  s_mul_i32 s{S_T+1}, s{S_W}, {L3_RS}")
    b(f"  s_add_u32 s{S_T+1}, s{S_T+1}, {L3_LN}")
    b(f"  v_add_u32 v3, s{S_T+1}, v3")
    for z in range(2):
        b(f"  ds_write_b128 v3, {vr(LP+4*z,4)} offset:{z*16*80}")
    b(f"  s_waitcnt lgkmcnt(0)")
    b(f"  s_barrier")
    b(f"  v_bfe_u32 v10, v7, 2, 2")
    b(f"  v_mul_u32_u24 v10, {L3_RS}, v10")
    b(f"  v_lshrrev_b32 v11, 5, v7")
    b(f"  v_mul_u32_u24 v12, 80, v11")
    b(f"  v_add_u32 v10, v10, v12")
    b(f"  v_and_b32 v12, 1, v7")
    b(f"  v_lshl_add_u32 v10, v12, 5, v10")
    b(f"  v_bfe_u32 v12, v7, 4, 1")
    b(f"  v_lshl_add_u32 v10, v12, 4, v10")
    b(f"  v_bfe_u32 v12, v7, 1, 1")
    b(f"  v_lshl_add_u32 v10, v12, 3, v10")
    b(f"  s_mul_i32 s{S_T+1}, s{S_W}, {4*80}")
    b(f"  s_add_u32 s{S_T+1}, s{S_T+1}, {L3_LN}")
    b(f"  v_add_u32 v10, s{S_T+1}, v10")
    for ps in range(2):
        b(f"  ds_read_b64_tr_b16 {vr(32+4*ps,2)}, v10 offset:{ps*160}")
        b(f"  ds_read_b64_tr_b16 {vr(34+4*ps,2)}, v10 offset:{ps*160 + 4*L3_RS}")
    b(f"  v_lshlrev_b32 v11, 17, v11")
    b(f"  v_and_b32 v12, 31, v7")
    b(f"  v_lshl_add_u32 v11, v12, 4, v11")
    b(f"  s_lshl_b32 s{S_T+1}, s{S_W}, 19")
    b(f"  s_lshl_b32 s{S_T+2}, s2, 9")
    b(f"  s_add_u32 s{S_T+1}, s{S_T+1}, s{S_T+2}")
    b(f"  s_add_u32 s{S_T+2}, s{S_T+1}, {2*131072}")
    b(f"  s_waitcnt lgkmcnt(2)")
    b(f"  buffer_store_dwordx4 v[32:35], v11, s[{SRD_D}:{SRD_D+3}], s{S_T+1} offen{SF}")
    b(f"  s_waitcnt lgkmcnt(0)")
    b(f"  buffer_store_dwordx4 v[36:39], v11, s[{SRD_D}:{SRD_D+3}], s{S_T+2} offen{SF}")
    stamp(b, "p3 stores issued")
    b(f"  s_and_b32 s{S_T+8}, s2, 15")
    arrive(b, 2, S_T + 8, label="x3")
    srd(b, SRD_T, P_W1, W1B)
    b(f"  s_cmp_lt_u32 s{S_W}, 4")
    b(f"  s_cbranch_scc1 p3_nodma")
    b(f"  s_cmp_eq_u32 s62, 0")
    b(f"  s_cbranch_scc1 p3_nodma")
    for n in range(2): loader_issue(b, V_LO, W1F())
    b.label("p3_nodma")

def gemm_core(b, c, pre, after_setup, after_prologue=None):
    NB, NS = c.NB, c.NS
    acc = lambda nb: V_ACC + nb * 16
    VT = V_ACC + NB * 16
    VPR = VT + 32
    c.VT, c.VPR = VT, VPR
    c.vend = VPR + 4 * PR
    tf = lambda q: VT + (q % 8) * 4
    pr = lambda j: VPR + (j % PR) * 4
    FPI = 64
    KPI = FPI // NB
    def tread(q):
        ql = q % FPI
        lslot, within = ql // 16, ql % 16
        ks, nb = within // NB, within % NB
        off = lslot * STAGE + ks * 16 * c.rowb
        b(f"  ds_read_b64_tr_b16 {vr(tf(q),2)}, v{V_T+nb} offset:{off}")
        b(f"  ds_read_b64_tr_b16 {vr(tf(q)+2,2)}, v{V_T+nb} offset:{off+4*c.rowb}")
    def pload(j):
        b(f"  buffer_load_dwordx4 {vr(pr(j),4)}, v{V_P}, s[{SRD_P}:{SRD_P+3}], s{S_POFF} offen offset:{(j%4)*1024}{LF}")
        if j % 4 == 3: b(f"  s_add_u32 s{S_POFF}, s{S_POFF}, 4096")
    def mfma(q):
        nb = q % NB; j = q // NB; a = acc(nb)
        if "m16fake" in OPT:
            o = 8 * (j % 2)
            b(f"  v_mfma_f32_16x16x32_bf16 {vr(a+o,4)}, {vr(tf(q),4)}, {vr(pr(j),4)}, {vr(a+o,4)}")
            b(f"  v_mfma_f32_16x16x32_bf16 {vr(a+o+4,4)}, {vr(pr(j),4)}, {vr(tf(q),4)}, {vr(a+o+4,4)}")
            return
        if c.name == "g1":
            b(f"  v_mfma_f32_32x32x16_bf16 {vr(a,16)}, {vr(tf(q),4)}, {vr(pr(j),4)}, {vr(a,16)}")
        else:
            b(f"  v_mfma_f32_32x32x16_bf16 {vr(a,16)}, {vr(pr(j),4)}, {vr(tf(q),4)}, {vr(a,16)}")
    b(f"  s_mov_b32 s{S_POFF}, 0")
    b(f"  s_mov_b32 s{S_DELTA}, {4*STAGE}")
    b(f"  s_mov_b32 s{S_IT}, {NS//4 - 1}")
    after_setup()
    for j in range(PR - 1): pload(j)
    if after_prologue: after_prologue()
    b("  s_barrier")
    for q in range(DQ): tread(q)
    def body(last):
        for q in range(FPI):
            j = q // NB
            qn = q + DQ
            do_read = not (last and qn >= FPI)
            do_pload = False
            if q % NB == 0:
                rem = KPI - 1 - j
                if (not last) or (j + PR - 1 < KPI):
                    b(f"  s_waitcnt vmcnt({PR-2})")
                    do_pload = True
                else:
                    b(f"  s_waitcnt vmcnt({min(PR-2, rem)})")
            if do_read and qn % 16 == 0:
                b("  s_barrier")
            if do_read and qn == FPI:
                for i in range(NB): b(f"  v_add_u32 v{V_T+i}, s{S_DELTA}, v{V_T+i}")
                b(f"  s_sub_u32 s{S_DELTA}, 0, s{S_DELTA}")
            if q % 2 == 0:
                left = min(DQ - 2, FPI - 2 - q) if last else DQ - 2
                b(f"  s_waitcnt lgkmcnt({2*left})")
            mfma(q)
            if do_pload: pload(j + PR - 1)
            if do_read: tread(qn)
    b.label(f"{pre}_loop")
    body(False)
    b(f"  s_sub_u32 s{S_IT}, s{S_IT}, 1")
    b(f"  s_cmp_lg_u32 s{S_IT}, 0")
    b(f"  s_cbranch_scc1 {pre}_loop")
    body(True)

def idle_w1(b):
    srd(b, SRD_PF, P_W1, W1B)
    b(f"  s_and_b32 s51, s50, 7")
    b(f"  s_mul_i32 s51, s51, {256*7168}")
    b(f"  s_lshr_b32 s52, s50, 3")
    b(f"  s_mul_i32 s52, s52, {4*7168}")
    b(f"  s_add_u32 s51, s51, s52")
    b(f"  s_add_u32 s51, s51, {128*7168}")
    b(f"  s_mov_b32 s52, 7")
    b.label("pf_w1b")
    for i in range(4): b(f"  buffer_load_dwordx4 {vr(V_DUMMY,4)}, v29, s[{SRD_PF}:{SRD_PF+3}], s51 offen offset:{1024*i}")
    b(f"  s_add_u32 s51, s51, 4096")
    b(f"  s_waitcnt vmcnt(4)")
    b(f"  s_sub_u32 s52, s52, 1")
    b(f"  s_cmp_lg_u32 s52, 0")
    b(f"  s_cbranch_scc1 pf_w1b")

def idle_w2(b):
    srd(b, SRD_PF, P_W2, W1B)
    b(f"  s_mul_i32 s51, s50, {W1B // 256}")
    b(f"  s_mov_b32 s52, 14")
    b.label("pf_w2")
    for i in range(4): b(f"  buffer_load_dwordx4 {vr(V_DUMMY,4)}, v29, s[{SRD_PF}:{SRD_PF+3}], s51 offen offset:{1024*i}")
    b(f"  s_add_u32 s51, s51, 4096")
    b(f"  s_waitcnt vmcnt({0 if 'idlepace' in OPT else 4})")
    b(f"  s_sub_u32 s52, s52, 1")
    b(f"  s_cmp_lg_u32 s52, 0")
    b(f"  s_cbranch_scc1 pf_w2")
    b(f"  s_waitcnt vmcnt(0)")

def g1(b):
    c = g1_cfg()
    b(f"  s_cmp_eq_u32 s62, 0")
    b(f"  s_cbranch_scc1 g1_inactive")
    srd(b, SRD_P, P_WS, 4 << 20, WS_LN2)
    srd(b, SRD_T, P_W1, W1B)
    srd(b, SRD_O, P_WS, U_BYTES, WS_U)
    srd(b, SRD_X, P_B1, 3584 * 2)
    b(f"  s_cmp_ge_u32 s{S_W}, 4")
    b(f"  s_cbranch_scc1 g1_loader")
    lane_geom(b)
    b(f"  s_lshl_b32 s{S_TMP}, s61, 2")
    b(f"  s_add_u32 s{S_TMP}, s{S_TMP}, s{S_W}            ; dblk")
    b(f"  s_lshl_b32 s{S_TMP+2}, s{S_TMP}, 17")
    b(f"  v_lshlrev_b32 v10, 4, v7")
    b(f"  v_add_u32 v{V_P}, s{S_TMP+2}, v10")
    b(f"  s_lshl_b32 s{S_TMP+1}, s60, 8       ; f0*2")
    b(f"  v_lshlrev_b32 v11, 3, v9")
    b(f"  v_add_u32 v11, s{S_TMP+1}, v11")
    BV = 192
    for fb in range(4):
        for i in range(4):
            b(f"  buffer_load_dwordx2 {vr(BV+2*(4*fb+i),2)}, v11, s[{SRD_X}:{SRD_X+3}], 0 offen offset:{64*fb+16*i}")
    b(f"  v_lshl_add_u32 v20, v9, 3, v18")
    b(f"  v_lshlrev_b32 v20, 8, v20")
    b(f"  v_lshl_add_u32 v20, v18, 6, v20")
    b(f"  v_lshl_add_u32 v20, v19, 5, v20")
    b(f"  v_lshl_add_u32 v{V_T}, v22, 3, v20")
    for fb in range(1, 4):
        b(f"  v_xor_b32 v{V_T+fb}, {64*fb}, v{V_T}")
    b(f"  s_mul_i32 s{S_TMP+2}, s{S_TMP}, 229376")
    b(f"  s_lshl_b32 s{S_TMP+1}, s60, 13")
    b(f"  s_add_u32 s{S_TMP+1}, s{S_TMP+1}, s{S_TMP+2}")
    b(f"  v_add_u32 v28, s{S_TMP+1}, v10")
    b(f"  s_waitcnt vmcnt(0)")
    for fb in range(4):
        for i in range(4):
            bv = BV + 2 * (4 * fb + i); a = V_ACC + fb * 16 + 4 * i
            b(f"  v_lshlrev_b32 v{a}, 16, v{bv}")
            b(f"  v_and_b32 v{a+1}, 0xffff0000, v{bv}")
            b(f"  v_lshlrev_b32 v{a+2}, 16, v{bv+1}")
            b(f"  v_and_b32 v{a+3}, 0xffff0000, v{bv+1}")
    def w3():
        wait(b, 2, 16, "x3c")
        stamp(b, "x3 released")
        stamp(b, "c:g1 start")
    gemm_core(b, c, "g1", w3)
    stamp(b, "c:g1 end")
    stamp(b, "g1 main done")
    K1 = -2.0 * 0.7978845608028654 * 1.4426950408889634
    K2 = K1 * 0.044715
    T = c.VPR
    b(f"  v_mov_b32 v{T}, {hex(f2u(K1))}")
    b(f"  v_mov_b32 v{T+1}, {hex(f2u(K1))}")
    b(f"  v_mov_b32 v{T+2}, {hex(f2u(K2))}")
    b(f"  v_mov_b32 v{T+3}, {hex(f2u(K2))}")
    b(f"  s_nop 7")
    W = T + 8
    for fb in range(4):
        a = V_ACC + fb * 16; t = W; o = W + 16 + 8 * (fb % 2)
        for h in range(0, 16, 2): b(f"  v_pk_mul_f32 {vr(t+h,2)}, {vr(a+h,2)}, {vr(a+h,2)}")
        for h in range(0, 16, 2): b(f"  v_pk_fma_f32 {vr(t+h,2)}, {vr(t+h,2)}, {vr(T+2,2)}, {vr(T,2)}")
        for h in range(0, 16, 2): b(f"  v_pk_mul_f32 {vr(t+h,2)}, {vr(t+h,2)}, {vr(a+h,2)}")
        for r in range(16): b(f"  v_exp_f32 v{t+r}, v{t+r}")
        for h in range(0, 16, 2): b(f"  v_pk_add_f32 {vr(t+h,2)}, {vr(t+h,2)}, 1.0 op_sel_hi:[1,0]")
        for r in range(16): b(f"  v_rcp_f32 v{t+r}, v{t+r}")
        for h in range(0, 16, 2): b(f"  v_pk_mul_f32 {vr(t+h,2)}, {vr(a+h,2)}, {vr(t+h,2)}")
        for i in range(4):
            b(f"  v_cvt_pk_bf16_f32 v{o+2*i}, v{t+4*i}, v{t+4*i+1}")
            b(f"  v_cvt_pk_bf16_f32 v{o+2*i+1}, v{t+4*i+2}, v{t+4*i+3}")
        for ip in range(2):
            oo = o + 4 * ip
            b(f"  s_mov_b32 s{S_TMP+1}, {(2*fb+ip)*1024}")
            b(f"  s_nop 0")
            b(f"  v_permlane32_swap_b32 v{oo}, v{oo+2}")
            b(f"  v_permlane32_swap_b32 v{oo+1}, v{oo+3}")
            b(f"  buffer_store_dwordx4 {vr(oo,4)}, v28, s[{SRD_O}:{SRD_O+3}], s{S_TMP+1} offen{SF}")
    stamp(b, "g1 stores issued")
    b(f"  s_waitcnt vmcnt(0)")
    b(f"  s_branch g1_join")
    b.label("g1_loader")
    b(f"  s_sub_u32 s50, s{S_W}, 4")
    b(f"  s_lshl_b32 s49, s50, 10")
    b(f"  s_add_u32 s{S_N+1}, s49, {R*STAGE}")
    b(f"  s_barrier                      ; matches the barrier inside wait(x3)")
    for n in range(R - 4): loader_issue(b, V_LO, W1F())
    loader_loop(b, c.NS, "g1", W1F())
    stamp(b, "g1 main done")
    g2_prologue_loader(b)
    stamp(b, "g1 stores issued")
    b.label("g1_join")
    if SK():
        b(f"  s_cmp_ge_u32 s60, 14")
        b(f"  s_cselect_b32 s18, 1, 0")
        b(f"  s_lshl_b32 s10, s61, 1")
        b(f"  s_add_u32 s18, s18, s10")
        arrive(b, 3, 18, label="x4", drained=True)
    else:
        arrive(b, 3, 61, label="x4", drained=True)
    b(f"  s_branch g2_start")
    b.label("g1_inactive")
    if "nopf" not in OPT:
        b(f"  s_sub_u32 s50, s2, 224")
        b(f"  s_lshl_b32 s50, s50, 3")
        b(f"  s_add_u32 s50, s50, s{S_W}")
        b(f"  v_lshlrev_b32 v29, 4, v7")
        if "noidle" not in OPT: idle_w2(b)
    b(f"  s_cmp_lt_u32 s{S_W}, 4")
    b(f"  s_cbranch_scc1 g2_start_inactive")
    g2_prologue_loader(b)
    b.label("g2_start_inactive")
    return c

def g2_prologue_loader(b):
    g2_ids(b)
    srd(b, SRD_T, P_W2, W1B)
    g2_loader_addr(b)
    loader_init(b, (64 if SK() else 128) * 4096)
    for n in range(2): loader_issue(b, V_LO, W2F())

def g2_sk(b):
    c = g1_cfg(); c.name = "g2"; c.NS = 28
    b.label("g2_start")
    g2_ids(b)
    srd(b, SRD_P, P_WS, U_BYTES, WS_U)
    srd(b, SRD_O, P_OUT, 4 << 20)
    srd(b, SRD_X, P_B2, 2048 * 2)
    srd(b, SRD_Y, P_WS, 4 << 20, WS_H)
    b(f"  s_cmp_ge_u32 s{S_W}, 4")
    b(f"  s_cbranch_scc1 g2_loader")
    lane_geom(b)
    b(f"  s_lshl_b32 s{S_TMP}, s{S_TILE_A}, 2")
    b(f"  s_add_u32 s{S_TMP}, s{S_TMP}, s{S_W}        ; dblk")
    b(f"  s_mul_i32 s{S_TMP+2}, s{S_TMP}, 229376")
    b(f"  s_mul_i32 s{S_TMP+3}, s19, {112*1024}       ; k half")
    b(f"  s_add_u32 s{S_TMP+2}, s{S_TMP+2}, s{S_TMP+3}")
    b(f"  v_lshlrev_b32 v10, 4, v7")
    b(f"  v_add_u32 v{V_P}, s{S_TMP+2}, v10")
    b(f"  s_lshl_b32 s{S_TMP+1}, s{S_TILE_B}, 7")
    b(f"  s_lshl_b32 s{S_TMP+3}, s19, 6")
    b(f"  s_add_u32 s{S_TMP+1}, s{S_TMP+1}, s{S_TMP+3}")
    b(f"  v_add_u32 v11, s{S_TMP+1}, v8              ; s0 + s'")
    b(f"  v_lshlrev_b32 v16, 1, v11")
    for sb in range(2):
        b(f"  buffer_load_ushort v{12+sb}, v16, s[{SRD_X}:{SRD_X+3}], 0 offen offset:{64*sb}")
    b(f"  v_lshlrev_b32 v17, 11, v11")
    b(f"  v_lshl_add_u32 v17, v9, 5, v17")
    b(f"  s_lshl_b32 s{S_TMP+2}, s{S_TMP}, 6")
    b(f"  v_add_u32 v28, s{S_TMP+2}, v17")
    HV = 192
    b(f"  v_lshl_add_u32 v20, v9, 3, v18")
    b(f"  v_lshlrev_b32 v20, 8, v20")
    b(f"  v_lshl_add_u32 v20, v18, 6, v20")
    b(f"  v_lshl_add_u32 v20, v19, 5, v20")
    b(f"  v_lshl_add_u32 v{V_T}, v22, 3, v20")
    for fb in range(1, 4):
        b(f"  v_xor_b32 v{V_T+fb}, {64*fb}, v{V_T}")
    b(f"  s_lshl_b32 s{S_TMP+1}, s{S_W}, 12")
    b(f"  s_lshl_b32 s{S_TMP+2}, s2, 14")
    b(f"  s_add_u32 s{S_TMP+2}, s{S_TMP+2}, s{S_TMP+1}")
    b(f"  v_add_u32 v29, s{S_TMP+2}, v10")
    b(f"  s_xor_b32 s{S_TMP+2}, s2, 1")
    b(f"  s_lshl_b32 s{S_TMP+2}, s{S_TMP+2}, 14")
    b(f"  s_add_u32 s{S_TMP+2}, s{S_TMP+2}, s{S_TMP+1}")
    b(f"  v_add_u32 v30, s{S_TMP+2}, v10")
    for i in range(64): b(f"  v_mov_b32 v{V_ACC+i}, 0")
    def w4():
        b(f"  s_lshl_b32 s18, s{S_TILE_A}, 1")
        b(f"  s_add_u32 s18, s18, s19")
        wait(b, 3, 14, "x4c", single_sreg=18)
        stamp(b, "x4 released")
        stamp(b, "c:g2 start")
    def hloads():
        for sb in range(2):
            b(f"  s_mov_b32 s{S_TMP+1}, {sb*65536}")
            b(f"  buffer_load_dwordx4 {vr(HV+8*sb,4)}, v28, s[{SRD_Y}:{SRD_Y+3}], s{S_TMP+1} offen{LF}")
            b(f"  buffer_load_dwordx4 {vr(HV+8*sb+4,4)}, v28, s[{SRD_Y}:{SRD_Y+3}], s{S_TMP+1} offen offset:16{LF}")
    gemm_core(b, c, "g2", w4, hloads)
    stamp(b, "c:g2 end")
    stamp(b, "g2 main done")
    srd(b, SRD_X, P_WS, 4 << 20, WS_XCH)
    T = c.VT
    b(f"  s_cmp_eq_u32 s19, 0")
    b(f"  s_cbranch_scc1 g2_send23")
    def pack_send(first):
        for blk in range(2):
            a = V_ACC + (first + blk) * 16
            for i in range(8):
                b(f"  v_cvt_pk_bf16_f32 v{T+8*blk+i}, v{a+2*i}, v{a+2*i+1}")
            for i in range(8):
                b(f"  v_min_u32 v{T+8*blk+i}, 0xfffffffe, v{T+8*blk+i}")
            for p in range(2):
                b(f"  buffer_store_dwordx4 {vr(T+8*blk+4*p,4)}, v30, s[{SRD_X}:{SRD_X+3}], 0 offen offset:{(2*blk+p)*1024}{SF}")
    b(f"  s_nop 7")
    pack_send(0)
    for i in range(32): b(f"  v_mov_b32 v{V_ACC+i}, v{V_ACC+32+i}")
    b(f"  s_branch g2_sent")
    b.label("g2_send23")
    b(f"  s_nop 7")
    pack_send(2)
    b.label("g2_sent")
    RX = c.VPR
    b(f"  s_mov_b32 s11, 200000")
    b.label("g2x_poll")
    for k in range(4):
        b(f"  buffer_load_dwordx4 {vr(RX+4*k,4)}, v29, s[{SRD_X}:{SRD_X+3}], 0 offen offset:{k*1024} sc1")
    b(f"  s_waitcnt vmcnt(0)")
    sentinel_check(b, RX, "g2x", n=16)
    stamp(b, "g2 x landed")
    b(f"  s_mov_b32 s{S_TMP}, 0xffff0000")
    for blk in range(2):
        for i in range(8):
            a = V_ACC + blk * 16 + 2 * i; r = RX + 8 * blk + i
            b(f"  v_lshlrev_b32 v16, 16, v{r}")
            b(f"  v_and_b32 v17, s{S_TMP}, v{r}")
            b(f"  v_add_f32 v{a}, v{a}, v16")
            b(f"  v_add_f32 v{a+1}, v{a+1}, v17")
    for sb in range(2):
        b(f"  v_lshlrev_b32 v{12+sb}, 16, v{12+sb}")
    for sb in range(2):
        for half in range(2):
            o = T + 4 * ((sb * 2 + half) % 2)
            for dd in range(4):
                a = V_ACC + sb * 16 + half * 8 + 2 * dd
                hv = HV + 8 * sb + 4 * half + dd
                t0 = T + 8 + 4 * dd
                b(f"  v_cvt_pk_bf16_f32 v{t0}, v{a}, v{a+1}")
                b(f"  v_and_b32 v{t0+1}, s{S_TMP}, v{t0}")
                b(f"  v_lshlrev_b32 v{t0}, 16, v{t0}")
                b(f"  v_add_f32 v{t0}, v{t0}, v{12+sb}")
                b(f"  v_add_f32 v{t0+1}, v{t0+1}, v{12+sb}")
                b(f"  v_cvt_pk_bf16_f32 v{t0}, v{t0}, v{t0+1}")
                b(f"  v_and_b32 v{t0+1}, s{S_TMP}, v{t0}")
                b(f"  v_lshlrev_b32 v{t0}, 16, v{t0}")
                b(f"  v_lshlrev_b32 v{t0+2}, 16, v{hv}")
                b(f"  v_and_b32 v{t0+3}, s{S_TMP}, v{hv}")
                b(f"  v_add_f32 v{t0}, v{t0}, v{t0+2}")
                b(f"  v_add_f32 v{t0+1}, v{t0+1}, v{t0+3}")
                b(f"  v_cvt_pk_bf16_f32 v{o+dd}, v{t0}, v{t0+1}")
            b(f"  s_mov_b32 s{S_TMP+1}, {sb*65536}")
            b(f"  buffer_store_dwordx4 {vr(o,4)}, v28, s[{SRD_O}:{SRD_O+3}], s{S_TMP+1} offen offset:{16*half}")
    stamp(b, "g2 stores issued")
    b(f"  s_branch g2_done")
    b.label("g2_loader")
    b(f"  s_barrier                      ; matches the barrier inside wait(x4)")
    for n in range(R - 4): loader_issue(b, V_LO, W2F())
    loader_loop(b, c.NS, "g2", W2F())
    b.label("g2_done")

def g2(b):
    if SK(): return g2_sk(b)
    c = g2_cfg()
    b.label("g2_start")
    g2_ids(b)
    srd(b, SRD_P, P_WS, U_BYTES, WS_U)
    srd(b, SRD_O, P_OUT, 4 << 20)
    srd(b, SRD_X, P_B2, 2048 * 2)
    srd(b, SRD_Y, P_WS, 4 << 20, WS_H)
    b(f"  s_cmp_ge_u32 s{S_W}, 4")
    b(f"  s_cbranch_scc1 g2_loader")
    lane_geom(b)
    b(f"  s_lshl_b32 s{S_TMP}, s{S_TILE_A}, 2")
    b(f"  s_add_u32 s{S_TMP}, s{S_TMP}, s{S_W}        ; dblk")
    b(f"  s_mul_i32 s{S_TMP+2}, s{S_TMP}, 229376")
    b(f"  v_lshlrev_b32 v10, 4, v7")
    b(f"  v_add_u32 v{V_P}, s{S_TMP+2}, v10")
    b(f"  s_lshl_b32 s{S_TMP+1}, s{S_TILE_B}, 6       ; s0")
    b(f"  v_add_u32 v11, s{S_TMP+1}, v8              ; s0 + s'")
    b(f"  v_lshlrev_b32 v16, 1, v11")
    for sb in range(2):
        b(f"  buffer_load_ushort v{12+sb}, v16, s[{SRD_X}:{SRD_X+3}], 0 offen offset:{64*sb}")
    b(f"  v_lshlrev_b32 v17, 11, v11")
    b(f"  v_lshl_add_u32 v17, v9, 5, v17")
    b(f"  s_lshl_b32 s{S_TMP+2}, s{S_TMP}, 6")
    b(f"  v_add_u32 v28, s{S_TMP+2}, v17")
    HV = 160
    b(f"  v_lshl_add_u32 v20, v9, 3, v18            ; row")
    b(f"  v_bfe_u32 v21, v18, 1, 1")
    b(f"  v_lshlrev_b32 v20, 7, v20")
    b(f"  v_lshl_add_u32 v20, v21, 6, v20")
    b(f"  v_lshl_add_u32 v20, v19, 5, v20")
    b(f"  v_lshl_add_u32 v{V_T}, v22, 3, v20")
    b(f"  v_xor_b32 v{V_T+1}, 64, v{V_T}")
    for i in range(32): b(f"  v_mov_b32 v{V_ACC+i}, 0")
    def w4():
        wait(b, 3, 28, "x4c", single_sreg=S_TILE_A)
        stamp(b, "x4 released")
        stamp(b, "c:g2 start")
    def hloads():
        for sb in range(2):
            b(f"  s_mov_b32 s{S_TMP+1}, {sb*65536}")
            b(f"  buffer_load_dwordx4 {vr(HV+8*sb,4)}, v28, s[{SRD_Y}:{SRD_Y+3}], s{S_TMP+1} offen{LF}")
            b(f"  buffer_load_dwordx4 {vr(HV+8*sb+4,4)}, v28, s[{SRD_Y}:{SRD_Y+3}], s{S_TMP+1} offen offset:16{LF}")
    gemm_core(b, c, "g2", w4, hloads)
    stamp(b, "c:g2 end")
    stamp(b, "g2 main done")
    T = c.VT
    b(f"  s_mov_b32 s{S_TMP}, 0xffff0000")
    for sb in range(2):
        b(f"  v_lshlrev_b32 v{12+sb}, 16, v{12+sb}")
    b(f"  s_nop 9")
    for sb in range(2):
        for half in range(2):
            o = T + 4 * ((sb * 2 + half) % 2)
            for dd in range(4):
                a = V_ACC + sb * 16 + half * 8 + 2 * dd
                hv = HV + 8 * sb + 4 * half + dd
                t0 = T + 8 + 4 * dd
                b(f"  v_cvt_pk_bf16_f32 v{t0}, v{a}, v{a+1}")
                b(f"  v_and_b32 v{t0+1}, s{S_TMP}, v{t0}")
                b(f"  v_lshlrev_b32 v{t0}, 16, v{t0}")
                b(f"  v_add_f32 v{t0}, v{t0}, v{12+sb}")
                b(f"  v_add_f32 v{t0+1}, v{t0+1}, v{12+sb}")
                b(f"  v_cvt_pk_bf16_f32 v{t0}, v{t0}, v{t0+1}")
                b(f"  v_and_b32 v{t0+1}, s{S_TMP}, v{t0}")
                b(f"  v_lshlrev_b32 v{t0}, 16, v{t0}")
                b(f"  v_lshlrev_b32 v{t0+2}, 16, v{hv}")
                b(f"  v_and_b32 v{t0+3}, s{S_TMP}, v{hv}")
                b(f"  v_add_f32 v{t0}, v{t0}, v{t0+2}")
                b(f"  v_add_f32 v{t0+1}, v{t0+1}, v{t0+3}")
                b(f"  v_cvt_pk_bf16_f32 v{o+dd}, v{t0}, v{t0+1}")
            b(f"  s_mov_b32 s{S_TMP+1}, {sb*65536}")
            b(f"  buffer_store_dwordx4 {vr(o,4)}, v28, s[{SRD_O}:{SRD_O+3}], s{S_TMP+1} offen offset:{16*half}")
    stamp(b, "g2 stores issued")
    b(f"  s_branch g2_done")
    b.label("g2_loader")
    b(f"  s_barrier                      ; matches the barrier inside wait(x4)")
    for n in range(R - 4): loader_issue(b, V_LO, W2F())
    loader_loop(b, c.NS, "g2", W2F())
    b.label("g2_done")

def build():
    NAME = "sequential_preLN__spectral_gfnet__mixer_token_mlp__prompt"
    hdr = open(f"cdna_kernels/{NAME}.s.ref").read().split("; Override launch")[0]
    K = NAME + "_kernel"
    b = B()
    b(hdr.rstrip("\n"))
    b(f"; @launch grid=(256,1,1) block=(512,1,1) lds={LDS_TOTAL}")
    b('.amdgcn_target "amdgcn-amd-amdhsa--gfx950"\n.text')
    b(f".globl {K}\n.p2align 8\n.type {K},@function\n{K}:")
    b(f"  s_cmp_ge_u32 s2, 256\n  s_cbranch_scc1 k_exit")
    if "stamp" in OPT: b("  v_mov_b32 v231, 0")
    stamp(b, "entry")
    b(f"  s_load_dwordx4 s[{P_X}:{P_X+3}], s[0:1], 0        ; x, w_r")
    b(f"  s_load_dwordx2 s[{P_WI}:{P_WI+1}], s[0:1], 16")
    b(f"  s_load_dwordx2 s[{P_W1}:{P_W1+1}], s[0:1], 32")
    b(f"  s_load_dwordx4 s[{P_B1}:{P_B1+3}], s[0:1], 40     ; b1, w2")
    b(f"  s_load_dwordx4 s[{P_B2}:{P_B2+3}], s[0:1], 56     ; b2, out")
    b(f"  s_load_dwordx4 s[{P_DBG}:{P_DBG+3}], s[0:1], 72")
    b(f"  v_lshrrev_b32 v6, 6, v0")
    b(f"  v_and_b32 v7, 63, v0        ; lane")
    b(f"  v_readfirstlane_b32 s{S_W}, v6")
    b(f"  v_and_b32 v8, 15, v7          ; c")
    b(f"  v_lshrrev_b32 v9, 4, v7       ; g")
    b(f"  s_waitcnt lgkmcnt(0)")
    srd(b, SRD_CNT, P_WS, 65536, WS_CNT)
    p1(b)
    p2_setup(b)
    wait(b, 0, 16, "x1c")
    stamp(b, "x1 released")
    p2_main(b)
    p3_setup(b)
    if SENT(): b("  s_barrier")
    else: wait(b, 1, 16, "x2c")
    stamp(b, "x2 released")
    p3_main(b)
    g1(b)
    g2(b)
    b(f"  s_waitcnt vmcnt(0)")
    stamp(b, "end")
    stamp_flush(b)
    b("k_exit:\n  s_endpgm")
    b(kd(K, 240, sgpr=102))
    return b.text()

if __name__ == "__main__":
    out = sys.argv[1]
    OPT.update(sys.argv[2:])
    for o in sys.argv[2:]:
        if o.startswith("pfn="): PFN[:] = [int(c) for c in o[4:].split(",")]
    gemm.OPT.update(sys.argv[2:])
    t = build()
    open(out, "w").write(t)
    rep = check_text(t)
    print("\n".join(rep) if rep else "no hazards found", "| stamps:", nstamp[0])
```

```python
import sys
from asmlib import *
import gemm, fft
from gemm import (srd, f2u, WS_X1, WS_X2, WS_H, WS_LN2, WS_U, U_BYTES, S_W, R, STAGE, PR, DQ,
                  V_P, V_T, V_ACC, S_POFF, S_IT, S_DELTA, SRD_P, SRD_T, SRD_O, SRD_X, SRD_Y, S_TILE_A, S_TILE_B, S_TMP,
                  g1_cfg, g2_cfg, lane_geom)
from fft import sincos, wave_reduce, ln_finish, layernorm16, cmul_pk, gmat, MF32, MF16

OPT = set()
PFN = [0, 4, 0, 4]
WS_CNT = 30 << 20
WS_STAMP = 31 << 20
WS_XCH = 24 << 20
W1B = 2048 * 3584 * 2
WB = 2048 * 1026

P_X, P_WR, P_WI, P_W1, P_B1, P_W2, P_B2, P_OUT, P_DBG, P_WS = 64, 66, 68, 70, 72, 74, 76, 78, 80, 82
SRD_CNT = 12
S_T = 46
SRD_A, SRD_B, SRD_C, SRD_D = 24, 28, 32, 36
SRD_PF = 56
S_STAMP = 84
SF = " sc1"
LF = ""

L1_M1, L1_M2, L1_TW, L1_EX = 0, 4096, 8192, 16384
L2_F = 32768; L2_X = L2_F + 2048; L2_W = L2_X + 16 * 1040
L3_M3 = 98304; L3_M4 = L3_M3 + 4096; L3_TW = L3_M3 + 8192; L3_EX = L3_M3 + 16384
L3_LN = L3_EX + 16384; L3_RS = 2624
LDS_TOTAL = L3_LN + 8 * L3_RS
assert LDS_TOTAL <= 163840

STAMPS = ["entry", "p1 x landed", "p1 stores issued", "p1 arrived", "x1 released", "p2 x landed", "p2 stores issued",
          "x2 released", "p3 x2 landed", "p3 stores issued", "x3 released", "g1 main done", "g1 stores issued", "x4 released",
          "g2 main done", "g2 stores issued", "end", "x1 drained", "x2 drained", "x3 drained", "x4 drained", "p1 tables done", "p1 ln done", "p1 fft done", "p3 ifft done", "p3 ln done", "c:g1 start", "c:g1 end", "c:g2 start", "c:g2 end", "g2 x landed"]
nstamp = [len(STAMPS)]
SENT = lambda: "bar" not in OPT
SK = lambda: "nosk" not in OPT
W1F = lambda: " nt" if "ntw1" in OPT else ""
W2F = lambda: " nt" if "ntw2" in OPT else ""
XF = lambda: " nt" if "ntx" in OPT else ""
def stamp(b, name):
    if "stamp" not in OPT: return
    i = STAMPS.index(name)
    op = "s_memtime" if name.startswith("c:") else "s_memrealtime"
    b(f"  {op} s[{S_STAMP}:{S_STAMP+1}]   ; stamp {i}: {name}")
    b(f"  s_waitcnt lgkmcnt(0)")
    b(f"  v_writelane_b32 v231, s{S_STAMP}, {i}")

def stamp_flush(b):
    if "stamp" not in OPT: return
    if "dbgtime" in OPT:
        b(f"  s_cmp_lg_u32 s2, 100")
        b(f"  s_cbranch_scc1 dbg_skip")
        b(f"  s_cmp_lg_u32 s{S_W}, 0")
        b(f"  s_cbranch_scc1 dbg_skip")
        srd(b, 24, P_DBG, 256)
        b(f"  v_readlane_b32 s46, v231, 0")
        b(f"  s_nop 1")
        b(f"  v_subrev_u32 v3, s46, v231")
        b(f"  v_lshlrev_b32 v2, 2, v7")
        b(f"  v_subrev_u32 v2, 4, v2")
        b(f"  s_mov_b64 s[48:49], exec")
        b(f"  s_mov_b64 exec, 0x1fffe")
        b(f"  buffer_store_dword v3, v2, s[24:27], 0 offen")
        b(f"  s_mov_b64 exec, s[48:49]")
        b.label("dbg_skip")
        return
    srd(b, 24, P_WS, 1 << 20, WS_STAMP)
    b(f"  s_lshl_b32 s46, s2, 3")
    b(f"  s_add_u32 s46, s46, s{S_W}")
    b(f"  s_lshl_b32 s46, s46, 7            ; (wg*8+wave)*128")
    b(f"  v_lshlrev_b32 v2, 2, v7")
    b(f"  s_mov_b64 s[48:49], exec")
    b(f"  s_mov_b64 exec, 0xffffffff")
    b(f"  buffer_store_dword v231, v2, s[24:27], s46 offen")
    b(f"  s_mov_b64 exec, s[48:49]")

def arrive(b, bar, shard_sreg, first=False, label="", drained=False):
    if not drained: b(f"  s_waitcnt vmcnt(0)")
    stamp(b, f"x{bar+1} drained")
    b(f"  s_barrier")
    b(f"  s_cmp_lg_u32 s{S_W}, 0")
    b(f"  s_cbranch_scc1 {label}_arr_skip")
    if first:
        b(f"  s_mov_b32 s11, 100000")
        b.label(f"{label}_rdy")
        b(f"  v_cmp_ne_u32 vcc, 0, v27")
        b(f"  s_nop 1")
        b(f"  s_cmp_eq_u64 vcc, exec")
        b(f"  s_cbranch_scc1 {label}_rdy_ok")
        b(f"  buffer_load_dword v27, v26, s[{SRD_PF}:{SRD_PF+3}], 0 offen sc1")
        b(f"  s_waitcnt vmcnt(0)")
        b(f"  s_sub_u32 s11, s11, 1")
        b(f"  s_cmp_lg_u32 s11, 0")
        b(f"  s_cbranch_scc1 {label}_rdy")
        b.label(f"{label}_rdy_ok")
    b(f"  s_lshl_b32 s10, s{shard_sreg}, 8")
    b(f"  s_add_u32 s10, s10, {bar*4096}")
    b(f"  v_mov_b32 v228, s10")
    b(f"  v_mov_b32 v229, 1")
    b(f"  s_mov_b64 s[16:17], exec")
    b(f"  s_mov_b64 exec, 1")
    b(f"  buffer_atomic_add v229, v228, s[{SRD_CNT}:{SRD_CNT+3}], 0 offen sc1")
    b(f"  s_mov_b64 exec, s[16:17]")
    b.label(f"{label}_arr_skip")

def wait(b, bar, target, label, single_sreg=None):
    b(f"  s_cmp_lg_u32 s{S_W}, 0")
    b(f"  s_cbranch_scc1 {label}_w_skip")
    if single_sreg is None:
        b(f"  v_and_b32 v228, 15, v7")
        b(f"  v_lshlrev_b32 v228, 8, v228")
        b(f"  v_add_u32 v228, {bar*4096}, v228")
    else:
        b(f"  s_lshl_b32 s10, s{single_sreg}, 8")
        b(f"  s_add_u32 s10, s10, {bar*4096}")
        b(f"  v_mov_b32 v228, s10")
    b(f"  s_mov_b32 s11, 200000")
    b.label(f"{label}_poll")
    b(f"  buffer_load_dword v229, v228, s[{SRD_CNT}:{SRD_CNT+3}], 0 offen sc1")
    b(f"  s_waitcnt vmcnt(0)")
    b(f"  v_cmp_le_u32 vcc, {target}, v229")
    b(f"  s_nop 1")
    b(f"  s_cmp_eq_u64 vcc, exec")
    b(f"  s_cbranch_scc1 {label}_w_skip")
    b(f"  s_sub_u32 s11, s11, 1")
    b(f"  s_cmp_lg_u32 s11, 0")
    b(f"  s_cbranch_scc1 {label}_poll")
    b.label(f"{label}_w_skip")
    b(f"  s_barrier")

def prefetch(b, ptr_pair, nbytes, start, length, who_scale, who_sreg, vaddr, vdst, stmp, paced=False):
    chunk = -(-length // who_scale)
    n_per_wave = -(-chunk // (512 * 128))
    stride = -(-chunk // (512 * n_per_wave))
    stride = (stride + 3) // 4 * 4
    per_instr = 64 * stride
    srd(b, SRD_PF, ptr_pair, nbytes)
    b(f"  s_mul_i32 s{stmp}, s{who_sreg}, {chunk}")
    b(f"  s_mul_i32 s{stmp+1}, s{S_W}, {n_per_wave*per_instr}")
    b(f"  s_add_u32 s{stmp}, s{stmp}, s{stmp+1}")
    if start: b(f"  s_add_u32 s{stmp}, s{stmp}, {start}")
    b(f"  v_mul_u32_u24 v{vaddr}, {stride}, v7")
    for i in range(n_per_wave):
        b(f"  buffer_load_dword v{vdst}, v{vaddr}, s[{SRD_PF}:{SRD_PF+3}], s{stmp} offen")
        if i + 1 < n_per_wave: b(f"  s_add_u32 s{stmp}, s{stmp}, {per_instr}")
        if paced: b(f"  s_waitcnt vmcnt(0)")
    return n_per_wave

V_DUMMY = 232
def pf_wide(b, ptr_pair, nbytes, s_base, n, wave_lo, wave_hi, label):
    b(f"  s_cmp_lt_u32 s{S_W}, {wave_lo}")
    b(f"  s_cbranch_scc1 {label}")
    if wave_hi < 8:
        b(f"  s_cmp_ge_u32 s{S_W}, {wave_hi}")
        b(f"  s_cbranch_scc1 {label}")
    srd(b, SRD_PF, ptr_pair, nbytes)
    b(f"  s_sub_u32 s{S_T+9}, s{S_W}, {wave_lo}")
    b(f"  s_mul_i32 s{S_T+9}, s{S_T+9}, {n*1024}")
    b(f"  s_add_u32 s{S_T+9}, s{S_T+9}, s{s_base}")
    b(f"  v_lshlrev_b32 v29, 4, v7")
    for i in range(n):
        if i and i % 4 == 0: b(f"  s_add_u32 s{S_T+9}, s{S_T+9}, 4096")
        b(f"  buffer_load_dwordx4 {vr(V_DUMMY,4)}, v29, s[{SRD_PF}:{SRD_PF+3}], s{S_T+9} offen offset:{(i%4)*1024}")
    b.label(label)

def w1_share_base(b, sreg, part):
    b(f"  s_mul_i32 s{sreg}, s2, {W1B // 256}")
    if part: b(f"  s_add_u32 s{sreg}, s{sreg}, {part}")

def w1_first_half_base(b, sreg, part):
    b(f"  s_and_b32 s{sreg}, s2, 7")
    b(f"  s_mul_i32 s{sreg}, s{sreg}, {256*7168}")
    b(f"  s_lshr_b32 s{S_T+9}, s2, 3")
    b(f"  s_mul_i32 s{S_T+9}, s{S_T+9}, {4*7168}")
    b(f"  s_add_u32 s{sreg}, s{sreg}, s{S_T+9}")
    if part: b(f"  s_add_u32 s{sreg}, s{sreg}, {part}")

def p1_tables(b):
    M1, M2, TW = L1_M1, L1_M2, L1_TW
    b(f"  v_and_b32 v10, 255, v0            ; e")
    b(f"  v_lshrrev_b32 v11, 8, v0          ; u")
    b(f"  v_bfe_u32 v12, v10, 2, 4          ; lane&15")
    b(f"  v_lshl_add_u32 v12, v11, 4, v12   ; k1")
    b(f"  v_lshrrev_b32 v13, 6, v10         ; g")
    b(f"  v_and_b32 v14, 3, v10")
    b(f"  v_lshlrev_b32 v13, 3, v13")
    b(f"  v_lshl_add_u32 v13, v14, 1, v13   ; a0 = 8g + 2i")
    b(f"  v_mul_u32_u24 v15, v13, v12       ; a0*k1")
    b(f"  v_add_u32 v16, v15, v12           ; (a0+1)*k1")
    sincos(b, 17, 18, 15, 5, 21)
    sincos(b, 19, 20, 16, 5, 21)
    b(f"  v_lshlrev_b32 v22, 2, v10")
    b(f"  v_lshl_add_u32 v22, v11, 11, v22  ; u*2048 + e*4")
    b(f"  v_cvt_pk_bf16_f32 v23, v17, v19")
    b(f"  v_cvt_pk_bf16_f32 v24, -v18, -v20")
    b(f"  ds_write_b32 v22, v23 offset:{M1}")
    b(f"  ds_write_b32 v22, v24 offset:{M1+1024}")
    sincos(b, 17, 18, 15, 10, 21)
    sincos(b, 19, 20, 16, 10, 21)
    b(f"  ds_write_b32 v22, v17 offset:{TW}")
    b(f"  ds_write_b32 v22, v18 offset:{TW+1024}")
    b(f"  ds_write_b32 v22, v19 offset:{TW+4096}")
    b(f"  ds_write_b32 v22, v20 offset:{TW+4096+1024}")
    b(f"  v_bfe_u32 v12, v10, 2, 4          ; k2")
    b(f"  v_mul_u32_u24 v15, v13, v12")
    b(f"  v_add_u32 v16, v15, v12")
    sincos(b, 17, 18, 15, 5, 21)
    sincos(b, 19, 20, 16, 5, 21)
    b(f"  v_lshlrev_b32 v22, 2, v10")
    b(f"  v_cvt_pk_bf16_f32 v23, v17, v19")
    b(f"  v_cvt_pk_bf16_f32 v24, v18, v20")
    b(f"  v_cvt_pk_bf16_f32 v25, -v18, -v20")
    b(f"  ds_write_b32 v22, v23 offset:{M2}")
    b(f"  ds_write_b32 v22, v24 offset:{M2+1024}")
    b(f"  ds_write_b32 v22, v25 offset:{M2+2048}")

def ln_fast(b, X, T, S0, alt):
    b(f"  v_readlane_b32 s{S0}, v{X}, 0              ; pivot")
    b(f"  s_nop 1")
    for i in range(0, 16, 2):
        b(f"  v_pk_add_f32 {vr(X+i,2)}, {vr(X+i,2)}, s[{S0}:{S0+1}] op_sel_hi:[1,0] neg_lo:[0,1] neg_hi:[0,1]")
    b(f"  v_pk_add_f32 {vr(T,2)}, {vr(X,2)}, {vr(X+2,2)}")
    b(f"  v_pk_add_f32 {vr(T+2,2)}, {vr(X+8,2)}, {vr(X+10,2)}")
    b(f"  v_pk_mul_f32 {vr(T+4,2)}, {vr(X,2)}, {vr(X,2)}")
    b(f"  v_pk_add_f32 {vr(T,2)}, {vr(T,2)}, {vr(X+4,2)}")
    b(f"  v_pk_add_f32 {vr(T+2,2)}, {vr(T+2,2)}, {vr(X+12,2)}")
    b(f"  v_pk_fma_f32 {vr(T+4,2)}, {vr(X+2,2)}, {vr(X+2,2)}, {vr(T+4,2)}")
    b(f"  v_pk_add_f32 {vr(T,2)}, {vr(T,2)}, {vr(X+6,2)}")
    b(f"  v_pk_add_f32 {vr(T+2,2)}, {vr(T+2,2)}, {vr(X+14,2)}")
    for i in range(4, 16, 2):
        b(f"  v_pk_fma_f32 {vr(T+4,2)}, {vr(X+i,2)}, {vr(X+i,2)}, {vr(T+4,2)}")
    b(f"  v_add_f32 v{T}, v{T}, v{T+1}")
    b(f"  v_add_f32 v{T+2}, v{T+2}, v{T+3}")
    if not alt: b(f"  v_add_f32 v{T}, v{T}, v{T+2}")
    b(f"  v_add_f32 v{T+4}, v{T+4}, v{T+5}           ; squares")
    if alt:
        wave_reduce(b, [T, T+2, T+4])
        b(f"  v_sub_f32 v{T+1}, v{T}, v{T+2}             ; E - O")
        b(f"  v_add_f32 v{T}, v{T}, v{T+2}")
        b(f"  s_nop 0")
        b(f"  v_readlane_b32 s{S0+2}, v{T}, 63")
        b(f"  v_readlane_b32 s{S0+3}, v{T+4}, 63")
        b(f"  v_readlane_b32 s{S0+4}, v{T+1}, 63")
    else:
        wave_reduce(b, [T, T+4])
        b(f"  s_nop 0")
        b(f"  v_readlane_b32 s{S0+2}, v{T}, 63")
        b(f"  v_readlane_b32 s{S0+3}, v{T+4}, 63")
    b(f"  s_nop 0")
    b(f"  v_mov_b32 v{T}, {hex(f2u(1.0/1024))}")
    b(f"  v_mul_f32 v{T+1}, s{S0+2}, v{T}")
    b(f"  v_mul_f32 v{T+2}, s{S0+3}, v{T}")
    b(f"  v_fma_f32 v{T+2}, -v{T+1}, v{T+1}, v{T+2}  ; variance")
    b(f"  v_max_f32 v{T+2}, 0, v{T+2}")
    b(f"  v_add_f32 v{T+2}, {hex(f2u(1e-5))}, v{T+2}")
    b(f"  v_rsq_f32 v{T+4}, v{T+2}")
    b(f"  s_nop 0")
    b(f"  v_mul_f32 v{T+8}, -v{T+1}, v{T+4}          ; -mean*rstd")
    if alt: b(f"  v_mul_f32 v{T+6}, s{S0+4}, v{T+4}")
    for i in range(0, 16, 2):
        b(f"  v_pk_fma_f32 {vr(X+i,2)}, {vr(X+i,2)}, {vr(T+4,2)}, {vr(T+8,2)} op_sel_hi:[1,0,0]")

def x1_store_addr(b):
    b(f"  v_lshlrev_b32 v5, 15, v9")
    b(f"  v_lshl_add_u32 v5, v8, 2, v5")
    b(f"  s_and_b32 s{S_T+6}, s2, 15")
    b(f"  s_lshl_b32 s{S_T+6}, s{S_T+6}, 4")
    b(f"  s_lshr_b32 s{S_T+7}, s2, 4")
    b(f"  s_add_u32 s{S_T+6}, s{S_T+6}, s{S_T+7}")
    b(f"  s_lshl_b32 s{S_T+6}, s{S_T+6}, 6       ; pos*64")
    b(f"  s_lshl_b32 s{S_T+7}, s{S_W}, 19        ; 4w*131072")
    b(f"  s_add_u32 s44, s{S_T+6}, s{S_T+7}")

def w_early(b):
    srd(b, SRD_C, P_WR, WB)
    srd(b, SRD_D, P_WI, WB)
    b(f"  s_and_b32 s{S_T+2}, s2, 7              ; j1")
    b(f"  v_and_b32 v215, 1, v0                ; half")
    b(f"  v_bfe_u32 v11, v0, 5, 4              ; c")
    b(f"  v_bfe_u32 v12, v0, 1, 4              ; e")
    b(f"  v_lshl_add_u32 v13, v12, 4, v11      ; j2")
    b(f"  v_lshlrev_b32 v13, 3, v13")
    b(f"  v_add_u32 v13, s{S_T+2}, v13         ; j")
    b(f"  v_mul_u32_u24 v214, 1026, v13")
    b(f"  v_lshl_add_u32 v14, v215, 4, v214")
    b(f"  s_lshr_b32 s{S_T+3}, s2, 3           ; kb")
    b(f"  s_lshl_b32 s{S_T+3}, s{S_T+3}, 5")
    b(f"  buffer_load_dwordx4 {vr(WE,4)}, v14, s[{SRD_C}:{SRD_C+3}], s{S_T+3} offen{XF()}")
    b(f"  buffer_load_dwordx4 {vr(WE+4,4)}, v14, s[{SRD_D}:{SRD_D+3}], s{S_T+3} offen{XF()}")

def p1(b):
    srd(b, SRD_A, P_X, 4 << 20)
    srd(b, SRD_B, P_WS, 4 << 20, WS_X1)
    b(f"  s_lshl_b32 s{S_T}, s{S_W}, 8")
    b(f"  s_add_u32 s{S_T}, s{S_T}, s2          ; s")
    b(f"  s_lshl_b32 s{S_T+1}, s{S_T}, 11")
    b(f"  v_lshlrev_b32 v1, 9, v9")
    b(f"  v_lshl_add_u32 v1, v8, 2, v1")
    XD = 32
    for i in range(8):
        b(f"  buffer_load_dword v{XD+i}, v1, s[{SRD_A}:{SRD_A+3}], s{S_T+1} offen offset:{64*i}{XF()}")
    b(f"  s_cmp_ge_u32 s2, 16")
    b(f"  s_cbranch_scc1 p1_noreset")
    b(f"  s_cmp_lg_u32 s{S_W}, 0")
    b(f"  s_cbranch_scc1 p1_noreset")
    b(f"  s_lshl_b32 s{S_T+2}, s2, 8")
    b(f"  v_lshlrev_b32 v2, 12, v7")
    b(f"  v_add_u32 v2, s{S_T+2}, v2")
    b(f"  v_mov_b32 v3, 0")
    b(f"  s_mov_b64 s[48:49], exec")
    b(f"  s_mov_b64 exec, 15")
    b(f"  buffer_store_dword v3, v2, s[{SRD_CNT}:{SRD_CNT+3}], 0 offen sc1")
    b(f"  s_mov_b64 exec, s[48:49]")
    b.label("p1_noreset")
    NCLR = 0
    NWE = 0
    x1_store_addr(b)
    if SENT():
        b(f"  v_mov_b32 v60, -1")
        b(f"  v_mov_b32 v61, -1")
        b(f"  v_mov_b32 v62, -1")
        b(f"  v_mov_b32 v63, -1")
        b(f"  v_bfe_u32 v2, v7, 2, 3              ; j1")
        b(f"  v_lshrrev_b32 v3, 5, v7             ; i (0,1)")
        b(f"  v_lshlrev_b32 v2, 14, v2")
        b(f"  v_lshl_add_u32 v2, v3, 17, v2")
        b(f"  v_and_b32 v3, 3, v7")
        b(f"  v_lshl_add_u32 v2, v3, 4, v2")
        b(f"  buffer_store_dwordx4 v[60:63], v2, s[{SRD_B}:{SRD_B+3}], s44 offen{SF}")
        b(f"  s_add_u32 s{S_T+7}, s44, {2*131072}")
        b(f"  buffer_store_dwordx4 v[60:63], v2, s[{SRD_B}:{SRD_B+3}], s{S_T+7} offen{SF}")
        NCLR = 2
    if "wearly" in OPT:
        w_early(b); NCLR += 2
    npf = 0
    p1_tables(b)
    GM = 30
    gmat(b, GM, 2, False, 10)
    b(f"  s_waitcnt lgkmcnt(0)")
    stamp(b, "p1 tables done")
    b(f"  s_barrier")
    npf = 0
    if "nopf" not in OPT:
        b(f"  s_mul_i32 s{S_T+8}, s2, 8208")
        if "ntx" not in OPT and "wpf" in OPT:
            pf_wide(b, P_WR, WB, S_T + 8, 3, 0, 3, "pf_p1a")
            pf_wide(b, P_WI, WB, S_T + 8, 3, 0, 3, "pf_p1b")
        if "ntw1" not in OPT and PFN[0]:
            w1_share_base(b, S_T + 8, 0)
            pf_wide(b, P_W1, W1B, S_T + 8, PFN[0], 4, 8, "pf_p1c")
    M1, M2, TW = 96, 112, 128
    b(f"  v_lshlrev_b32 v2, 4, v7")
    for i in range(4): b(f"  ds_read_b128 {vr(M1+4*i,4)}, v2 offset:{L1_M1+1024*i}")
    for i in range(3): b(f"  ds_read_b128 {vr(M2+4*i,4)}, v2 offset:{L1_M2+1024*i}")
    for i in range(8): b(f"  ds_read_b128 {vr(TW+4*i,4)}, v2 offset:{L1_TW+1024*i}")
    X = 40
    nW = 0 if ("nopf" in OPT or "ntx" in OPT or "wpf" not in OPT) else 6
    n1 = 0 if ("nopf" in OPT or "ntw1" in OPT) else PFN[0]
    b(f"  s_cmp_eq_u32 s{S_W}, 3")
    b(f"  s_cbranch_scc1 p1_xw0")
    b(f"  s_cmp_ge_u32 s{S_W}, 4")
    b(f"  s_cbranch_scc1 p1_xw4")
    b(f"  s_waitcnt vmcnt({NCLR + nW})")
    b(f"  s_branch p1_xwd")
    b.label("p1_xw4")
    b(f"  s_waitcnt vmcnt({NCLR + n1})")
    b(f"  s_branch p1_xwd")
    b.label("p1_xw0")
    b(f"  s_waitcnt vmcnt({NCLR})")
    b.label("p1_xwd")
    stamp(b, "p1 x landed")
    if "wearly" in OPT:
        b(f"  s_cmp_ge_u32 s2, 8")
        b(f"  s_cbranch_scc1 p1_nonyq")
        b(f"  buffer_load_ushort v212, v214, s[{SRD_C}:{SRD_C+3}], 0 offen offset:1024")
        b(f"  buffer_load_ushort v213, v214, s[{SRD_D}:{SRD_D+3}], 0 offen offset:1024")
        b.label("p1_nonyq")
    srd(b, SRD_PF, P_DBG, 256)
    b(f"  s_and_b32 s{S_T+8}, s2, 15")
    b(f"  s_lshl_b32 s{S_T+9}, s{S_T+8}, 2")
    b(f"  s_add_u32 s{S_T+9}, s{S_T+9}, 64")
    b(f"  v_mov_b32 v25, s{S_T+9}")
    b(f"  v_lshlrev_b32 v26, 2, v8")
    b(f"  v_add_u32 v26, 64, v26")
    b(f"  s_cmp_ge_u32 s2, 16")
    b(f"  s_cbranch_scc1 p1_noflag")
    b(f"  s_cmp_lg_u32 s{S_W}, 0")
    b(f"  s_cbranch_scc1 p1_noflag")
    b(f"  v_mov_b32 v3, 1")
    b(f"  s_mov_b64 s[48:49], exec")
    b(f"  s_mov_b64 exec, 1")
    b(f"  buffer_store_dword v3, v25, s[{SRD_PF}:{SRD_PF+3}], 0 offen sc1")
    b(f"  s_mov_b64 exec, s[48:49]")
    b.label("p1_noflag")
    for i in range(8):
        b(f"  v_lshlrev_b32 v{X+i}, 16, v{XD+i}")
        b(f"  v_and_b32 v{X+8+i}, 0xffff0000, v{XD+i}")
    T = 56
    ln_fast(b, X, T, S_T + 2, True)
    stamp(b, "p1 ln done")
    if SENT():
        b(f"  buffer_load_dword v27, v26, s[{SRD_PF}:{SRD_PF+3}], 0 offen sc1")
        b(f"  s_and_b32 s{S_T+8}, s2, 15")
        arrive(b, 0, S_T + 8, first=True, label="x1")
        stamp(b, "p1 arrived")
        srd(b, SRD_C, P_WS, 4 << 20, WS_X2)
        for i in range(4): b(f"  v_mov_b32 v{200+i}, -1")
        b(f"  v_lshlrev_b32 v2, 4, v0")
        b(f"  s_lshl_b32 s{S_T+7}, s2, 14")
        b(f"  buffer_store_dwordx4 v[200:203], v2, s[{SRD_C}:{SRD_C+3}], s{S_T+7} offen{SF}")
        b(f"  s_add_u32 s{S_T+7}, s{S_T+7}, 8192")
        b(f"  buffer_store_dwordx4 v[200:203], v2, s[{SRD_C}:{SRD_C+3}], s{S_T+7} offen{SF}")
    A = 64
    for be in range(2):
        for i in range(4):
            b(f"  v_cvt_pk_bf16_f32 v{A+4*be+i}, v{X+8*be+2*i}, v{X+8*be+2*i+1}")
    b(f"  s_waitcnt lgkmcnt(0)")
    b(f"  v_readlane_b32 s{S_T+5}, v{T+6}, 0")
    Y = 160
    for be in range(2):
        for u in range(2):
            for c in range(2):
                d = Y + ((be * 2 + u) * 2 + c) * 4
                b(f"  {MF32} {vr(d,4)}, {vr(A+4*be,4)}, {vr(M1+4*(2*u+c),4)}, 0")
    b(f"  s_nop 4")
    Bp = 72; W = 32; O = 40
    for u in range(2):
        for be in range(2):
            y = Y + ((be * 2 + u) * 2) * 4
            tw = TW + (be * 4 + u * 2) * 4
            cmul_pk(b, O + 8 * be, O + 8 * be + 4, y, y + 4, tw, tw + 4, W, False)
        for r in range(4):
            b(f"  v_cvt_pk_bf16_f32 v{Bp+8*u+r}, v{O+r}, v{O+8+r}")
            b(f"  v_cvt_pk_bf16_f32 v{Bp+8*u+4+r}, v{O+4+r}, v{O+12+r}")
    XO = 160
    b(f"  s_nop 1")
    for u in range(2):
        re, im = XO + 8 * u, XO + 8 * u + 4
        b(f"  {MF32} {vr(re,4)}, {vr(M2,4)}, {vr(Bp+8*u,4)}, 0")
        b(f"  {MF32} {vr(im,4)}, {vr(M2,4)}, {vr(Bp+8*u+4,4)}, 0")
        b(f"  {MF32} {vr(re,4)}, {vr(M2+4,4)}, {vr(Bp+8*u+4,4)}, {vr(re,4)}")
        b(f"  {MF32} {vr(im,4)}, {vr(M2+8,4)}, {vr(Bp+8*u,4)}, {vr(im,4)}")
    b(f"  s_and_b32 s{S_T+6}, s{S_W}, 1")
    b(f"  s_lshl_b32 s{S_T+6}, s{S_T+6}, 8")
    b(f"  s_lshr_b32 s{S_T+7}, s{S_W}, 1")
    b(f"  s_lshl_b32 s{S_T+7}, s{S_T+7}, 6")
    b(f"  s_add_u32 s{S_T+6}, s{S_T+6}, s{S_T+7}")
    b(f"  v_lshlrev_b32 v3, 12, v9")
    b(f"  v_lshl_add_u32 v3, v8, 2, v3")
    b(f"  v_add_u32 v3, s{S_T+6}, v3")
    b(f"  s_nop 2")
    b(f"  v_writelane_b32 v{XO}, s{S_T+5}, 0")
    b(f"  v_writelane_b32 v{XO+4}, 0, 0")
    PK = 32
    for u in range(2):
        for r in range(4):
            b(f"  v_cvt_pk_bf16_f32 v{PK+4*u+r}, v{XO+8*u+r}, v{XO+8*u+4+r}")
    for u in range(2):
        for r in range(4):
            b(f"  ds_write_b32 v3, v{PK+4*u+r} offset:{L1_EX + u*512 + r*1024}")
    if SENT(): b(f"  s_waitcnt lgkmcnt(0) vmcnt(0)")
    else:
        b(f"  buffer_load_dword v27, v26, s[{SRD_PF}:{SRD_PF+3}], 0 offen sc1")
        b(f"  s_waitcnt lgkmcnt(0)")
    stamp(b, "p1 fft done")
    b(f"  s_barrier")
    b(f"  v_lshlrev_b32 v4, 6, v9")
    b(f"  v_lshl_add_u32 v4, v8, 2, v4")
    b(f"  s_lshl_b32 s{S_T+6}, s{S_W}, 11")
    b(f"  s_add_u32 s{S_T+6}, s{S_T+6}, {L1_EX}")
    b(f"  v_add_u32 v4, s{S_T+6}, v4")
    Bd = 40
    for i in range(4):
        b(f"  ds_read2st64_b32 {vr(Bd+2*i,2)}, v4 offset0:{2*i} offset1:{2*i+1}")
    D = 48
    for i in range(4):
        b(f"  s_waitcnt lgkmcnt({3-i})")
        b(f"  {MF16} {vr(D+4*i,4)}, {vr(GM,2)}, {vr(Bd+2*i,2)}, 0")
    b(f"  s_nop 4")
    for i in range(4):
        b(f"  v_cvt_pk_bf16_f32 v{64+2*i}, v{D+4*i}, v{D+4*i+1}")
        b(f"  v_cvt_pk_bf16_f32 v{65+2*i}, v{D+4*i+2}, v{D+4*i+3}")
        b(f"  v_min_u32 v{64+2*i}, 0xfffffffe, v{64+2*i}")
        b(f"  v_min_u32 v{65+2*i}, 0xfffffffe, v{65+2*i}")
        for e in range(2):
            b(f"  s_add_u32 s{S_T+7}, s44, {i*131072 + e*16384}")
            b(f"  buffer_store_dword v{64+2*i+e}, v5, s[{SRD_B}:{SRD_B+3}], s{S_T+7} offen{SF}")
    stamp(b, "p1 stores issued")
    if not SENT():
        b(f"  s_and_b32 s{S_T+8}, s2, 15")
        arrive(b, 0, S_T + 8, first=True, label="x1")
        stamp(b, "p1 arrived")

XL2, WL2 = 32, 40
WE = 204
TC2, TS2 = 64, 68
def p2_setup(b):
    srd(b, SRD_A, P_WS, 4 << 20, WS_X1)
    srd(b, SRD_B, P_WS, 4 << 20, WS_X2)
    srd(b, SRD_C, P_WR, WB)
    srd(b, SRD_D, P_WI, WB)
    b(f"  s_and_b32 s{S_T}, s2, 7              ; j1")
    b(f"  s_lshr_b32 s{S_T+1}, s2, 3           ; kb")
    b(f"  v_and_b32 v10, 1, v0                 ; half")
    b(f"  v_bfe_u32 v11, v0, 5, 4              ; c")
    b(f"  v_bfe_u32 v12, v0, 1, 4              ; e")
    b(f"  v_lshl_add_u32 v13, v12, 4, v11      ; j2")
    b(f"  v_lshlrev_b32 v13, 3, v13")
    b(f"  v_add_u32 v13, s{S_T}, v13           ; j")
    b(f"  v_mul_u32_u24 v13, 1026, v13")
    b(f"  v_lshlrev_b32 v14, 4, v10")
    b(f"  v_add_u32 v14, v13, v14")
    b(f"  s_lshl_b32 s{S_T+3}, s{S_T+1}, 5")
    if "wearly" in OPT:
        b(f"  s_cmp_lg_u32 s{S_T+1}, 0")
        b(f"  s_cbranch_scc1 p2_nonyq")
        b(f"  s_waitcnt vmcnt(0)")
        b(f"  v_cmp_eq_u32 vcc, 0, v215")
        b(f"  v_and_b32 v50, 0xffff0000, v{WE}")
        b(f"  v_or_b32 v50, v50, v212")
        b(f"  v_cndmask_b32 v{WE}, v{WE}, v50, vcc")
        b(f"  v_and_b32 v50, 0xffff0000, v{WE+4}")
        b(f"  v_or_b32 v50, v50, v213")
        b(f"  v_cndmask_b32 v{WE+4}, v{WE+4}, v50, vcc")
        b.label("p2_nonyq")
    else:
        WL = WL2
        b(f"  v_mov_b32 v24, v14")
        b(f"  v_mov_b32 v25, v13")
        b(f"  v_mov_b32 v26, v10                   ; half")
        b(f"  s_mov_b32 s45, s{S_T+3}              ; kb*32")
        WL = WL2
        b(f"  buffer_load_dwordx4 {vr(WL,4)}, v24, s[{SRD_C}:{SRD_C+3}], s45 offen{XF()}")
        b(f"  buffer_load_dwordx4 {vr(WL+4,4)}, v24, s[{SRD_D}:{SRD_D+3}], s45 offen{XF()}")
        b(f"  s_cmp_lg_u32 s{S_T+1}, 0")
        b(f"  s_cbranch_scc1 p2_nonyq")
        b(f"  buffer_load_ushort v48, v25, s[{SRD_C}:{SRD_C+3}], 0 offen offset:1024")
        b(f"  buffer_load_ushort v49, v25, s[{SRD_D}:{SRD_D+3}], 0 offen offset:1024")
        b(f"  s_waitcnt vmcnt(0)")
        b(f"  v_cmp_eq_u32 vcc, 0, v26")
        b(f"  v_and_b32 v50, 0xffff0000, v{WL}")
        b(f"  v_or_b32 v50, v50, v48")
        b(f"  v_cndmask_b32 v{WL}, v{WL}, v50, vcc")
        b(f"  v_and_b32 v50, 0xffff0000, v{WL+4}")
        b(f"  v_or_b32 v50, v50, v49")
        b(f"  v_cndmask_b32 v{WL+4}, v{WL+4}, v50, vcc")
        b.label("p2_nonyq")
    npf = 0
    b(f"  v_and_b32 v15, 255, v0")
    b(f"  v_bfe_u32 v16, v15, 2, 4             ; x")
    b(f"  v_lshrrev_b32 v17, 6, v15            ; g")
    b(f"  v_and_b32 v18, 3, v15")
    b(f"  v_lshl_add_u32 v17, v17, 2, v18      ; 4g+i")
    b(f"  v_mul_u32_u24 v17, v17, v16")
    sincos(b, 18, 19, 17, 4, 20)
    b(f"  v_cmp_gt_u32 vcc, 256, v0            ; matrix 0 ?")
    b(f"  v_xor_b32 v20, 0x80000000, v19       ; -sin")
    b(f"  s_nop 0")
    b(f"  v_cndmask_b32 v21, v20, v18, vcc")
    b(f"  v_cndmask_b32 v22, v18, v19, vcc")
    b(f"  v_cvt_pk_bf16_f32 v21, v21, v22")
    b(f"  v_lshlrev_b32 v22, 2, v0")
    b(f"  ds_write_b32 v22, v21 offset:{L2_F}")
    b(f"  v_lshlrev_b32 v16, 2, v9")
    for r in range(4):
        b(f"  v_add_u32 v17, {r}, v16")
        b(f"  v_mul_u32_u24 v17, v17, v8")
        sincos(b, TC2 + r, TS2 + r, 17, 8, 20)
    b(f"  v_and_b32 v16, 3, v0                 ; i")
    b(f"  v_mul_u32_u24 v16, {4*1040}, v16")
    b(f"  v_lshrrev_b32 v17, 6, v0             ; b (0..7)")
    b(f"  v_lshl_add_u32 v16, v17, 6, v16")
    b(f"  v_bfe_u32 v17, v0, 2, 2              ; a&3")
    b(f"  v_lshl_add_u32 v16, v17, 2, v16")
    b(f"  v_bfe_u32 v17, v0, 4, 2              ; a>>2")
    b(f"  v_lshl_add_u32 v21, v17, 4, v16      ; first")
    b(f"  v_xor_b32 v17, 2, v17")
    b(f"  v_lshl_add_u32 v22, v17, 4, v16")
    b(f"  v_add_u32 v22, 512, v22              ; second (b+8)")
    b(f"  v_mul_u32_u24 v16, {4*1040}, v10")
    b(f"  v_lshl_add_u32 v16, v11, 6, v16")
    b(f"  v_and_b32 v17, 3, v12")
    b(f"  v_lshl_add_u32 v16, v17, 2, v16")
    b(f"  v_lshrrev_b32 v17, 2, v12")
    b(f"  v_lshrrev_b32 v18, 3, v11            ; c>>3")
    b(f"  v_lshlrev_b32 v18, 1, v18")
    b(f"  v_xor_b32 v17, v17, v18")
    b(f"  v_lshl_add_u32 v23, v17, 4, v16")
    b(f"  v_lshrrev_b32 v16, 3, v8")
    b(f"  v_lshlrev_b32 v16, 1, v16")
    b(f"  v_xor_b32 v16, v16, v9")
    b(f"  v_lshlrev_b32 v16, 4, v16")
    b(f"  v_lshl_add_u32 v16, v8, 6, v16")
    b(f"  s_mul_i32 s{S_T+4}, s{S_W}, {2*1040}")
    b(f"  s_mul_i32 s{S_T+5}, s{S_W}, 1040")
    b(f"  v_add_u32 v5, s{S_T+4}, v16")
    b(f"  v_add_u32 v6, s{S_T+5}, v16")
    b(f"  v_lshlrev_b32 v1, 4, v0")
    b(f"  s_lshl_b32 s{S_T+2}, s2, 14")
    b(f"  s_add_u32 s{S_T+3}, s{S_T+2}, 8192")
    b(f"  s_waitcnt lgkmcnt(0)")

def sentinel_check(b, R0, pre, n=8):
    b(f"  v_max3_u32 v16, v{R0}, v{R0+1}, v{R0+2}")
    b(f"  v_max3_u32 v17, v{R0+3}, v{R0+4}, v{R0+5}")
    b(f"  v_max3_u32 v16, v16, v{R0+6}, v{R0+7}")
    for i in range(8, n, 2): b(f"  v_max3_u32 v17, v17, v{R0+i}, v{R0+i+1}")
    b(f"  v_max_u32 v16, v16, v17")
    b(f"  v_cmp_eq_u32 vcc, -1, v16")
    b(f"  s_sub_u32 s11, s11, 1")
    b(f"  s_cmp_eq_u32 s11, 0")
    b(f"  s_cbranch_scc1 {pre}_got")
    b(f"  s_cmp_lg_u64 vcc, 0")
    b(f"  s_cbranch_scc1 {pre}_poll")
    b.label(f"{pre}_got")

def p2_main(b):
    XL = XL2; TC, TS = TC2, TS2
    if SENT():
        b(f"  s_mov_b32 s11, 200000")
        b.label("p2_poll")
    b(f"  buffer_load_dwordx4 {vr(XL,4)}, v1, s[{SRD_A}:{SRD_A+3}], s{S_T+2} offen sc1")
    b(f"  buffer_load_dwordx4 {vr(XL+4,4)}, v1, s[{SRD_A}:{SRD_A+3}], s{S_T+3} offen sc1")
    b(f"  s_waitcnt vmcnt(0)")
    if SENT(): sentinel_check(b, XL, "p2")
    WL = WE if "wearly" in OPT else WL2
    b(f"  v_lshlrev_b32 v17, 4, v7")
    FR, FI = 72, 76
    AX = 48; WR, WI = 152, 156
    b(f"  ds_read_b128 {vr(FR,4)}, v17 offset:{L2_F}")
    b(f"  ds_read_b128 {vr(FI,4)}, v17 offset:{L2_F+1024}")
    Dq = [80, 88]; Oq = [96, 104]; Tq = [112, 120]; Pq = [128, 132]; Wq = [136, 144]
    stamp(b, "p2 x landed")
    for j in range(4):
        b(f"  ds_write_b32 v21, v{XL+j} offset:{L2_X + j*1040}")
        b(f"  ds_write_b32 v22, v{XL+4+j} offset:{L2_X + j*1040}")
    for j in range(4):
        b(f"  ds_write_b32 v23, v{WL+j} offset:{L2_W + j*1040}")
        b(f"  ds_write_b32 v23, v{WL+4+j} offset:{L2_W + 8*1040 + j*1040}")
    if "nopf" not in OPT and "ntw1" not in OPT and PFN[1]:
        w1_share_base(b, S_T + 8, PFN[0] * 4096)
        pf_wide(b, P_W1, W1B, S_T + 8, PFN[1], 4, 8, "pf_p2a")
    b(f"  s_waitcnt lgkmcnt(0)")
    b(f"  s_barrier")
    b(f"  ds_read_b128 {vr(AX,4)}, v5 offset:{L2_X}")
    b(f"  ds_read_b128 {vr(AX+4,4)}, v5 offset:{L2_X+1040}")
    b(f"  ds_read_b128 {vr(WR,4)}, v6 offset:{L2_W}")
    b(f"  ds_read_b128 {vr(WI,4)}, v6 offset:{L2_W+8*1040}")
    def stage(form, src):
        for k in range(2):
            d = Dq[k]
            if form == 'A':
                b(f"  {MF32} {vr(d,4)}, {vr(src[k],4)}, {vr(FR,4)}, 0")
                b(f"  {MF32} {vr(d+4,4)}, {vr(src[k],4)}, {vr(FI,4)}, 0")
            else:
                b(f"  {MF32} {vr(d,4)}, {vr(FR,4)}, {vr(src[k],4)}, 0")
                b(f"  {MF32} {vr(d+4,4)}, {vr(FI,4)}, {vr(src[k],4)}, 0")
    def twiddle_pack():
        for k in range(2):
            cmul_pk(b, Oq[k], Oq[k] + 4, Dq[k], Dq[k] + 4, TC, TS, Tq[k], False)
        for k in range(2):
            for r in range(4):
                b(f"  v_cvt_pk_bf16_f32 v{Pq[k]+r}, v{Oq[k]+r}, v{Oq[k]+4+r}")
        b(f"  s_nop 1")
    b(f"  s_waitcnt lgkmcnt(2)")
    stage('A', [AX, AX + 4])
    b(f"  s_waitcnt lgkmcnt(0)")
    for r in range(4):
        b(f"  v_lshlrev_b32 v{Wq[0]+r}, 16, v{WR+r}")
        b(f"  v_lshlrev_b32 v{Wq[0]+4+r}, 16, v{WI+r}")
        b(f"  v_and_b32 v{Wq[1]+r}, 0xffff0000, v{WR+r}")
        b(f"  v_and_b32 v{Wq[1]+4+r}, 0xffff0000, v{WI+r}")
    twiddle_pack()
    stage('B', Pq)
    b(f"  s_nop 5")
    for k in range(2):
        cmul_pk(b, Oq[k], Oq[k] + 4, Dq[k], Dq[k] + 4, Wq[k], Wq[k] + 4, Tq[k], True)
    for k in range(2):
        for r in range(4):
            b(f"  v_cvt_pk_bf16_f32 v{Pq[k]+r}, v{Oq[k]+r}, -v{Oq[k]+4+r}")
    b(f"  s_nop 1")
    stage('A', Pq)
    b(f"  s_nop 5")
    twiddle_pack()
    stage('B', Pq)
    b(f"  s_nop 5")
    for k in range(2):
        for r in range(4):
            b(f"  v_cvt_pk_bf16_f32 v{Pq[k]+r}, v{Dq[k]+r}, -v{Dq[k]+4+r}")
    b(f"  ds_write_b128 v5, {vr(Pq[0],4)} offset:{L2_X}")
    b(f"  ds_write_b128 v5, {vr(Pq[1],4)} offset:{L2_X+1040}")
    b(f"  s_waitcnt lgkmcnt(0)")
    b(f"  s_barrier")
    for j in range(4):
        b(f"  ds_read_b32 v{XL+j}, v21 offset:{L2_X + j*1040}")
        b(f"  ds_read_b32 v{XL+4+j}, v22 offset:{L2_X + j*1040}")
    b(f"  v_bfe_u32 v16, v0, 2, 4              ; a")
    b(f"  v_lshrrev_b32 v17, 6, v0             ; b")
    b(f"  v_lshl_add_u32 v16, v16, 4, v17      ; s1")
    b(f"  v_lshlrev_b32 v16, 14, v16")
    b(f"  v_and_b32 v17, 3, v0")
    b(f"  v_lshl_add_u32 v16, v17, 4, v16")
    b(f"  s_lshl_b32 s{S_T+4}, s{S_T}, 11")
    b(f"  s_lshl_b32 s{S_T+5}, s{S_T+1}, 6")
    b(f"  s_add_u32 s{S_T+4}, s{S_T+4}, s{S_T+5}")
    b(f"  s_add_u32 s{S_T+5}, s{S_T+4}, {8*16384}")
    b(f"  s_waitcnt lgkmcnt(0)")
    for j in range(8): b(f"  v_min_u32 v{XL+j}, 0xfffffffe, v{XL+j}")
    b(f"  buffer_store_dwordx4 {vr(XL,4)}, v16, s[{SRD_B}:{SRD_B+3}], s{S_T+4} offen{SF}")
    b(f"  buffer_store_dwordx4 {vr(XL+4,4)}, v16, s[{SRD_B}:{SRD_B+3}], s{S_T+5} offen{SF}")
    stamp(b, "p2 stores issued")
    if not SENT():
        b(f"  s_and_b32 s{S_T+8}, s2, 15")
        arrive(b, 1, S_T + 8, label="x2")

V_LO = 224
S_G1A = 60
def g1_ids(b):
    b(f"  s_lshr_b32 s{S_T}, s2, 3                 ; i")
    b(f"  s_cmp_lt_u32 s{S_T}, 28")
    b(f"  s_cselect_b32 s62, 1, 0")
    b(f"  s_mul_i32 s{S_T+1}, s{S_T}, 37")
    b(f"  s_lshr_b32 s{S_T+1}, s{S_T+1}, 8         ; i/7")
    b(f"  s_mul_i32 s{S_T+2}, s{S_T+1}, 7")
    b(f"  s_sub_u32 s{S_T+2}, s{S_T}, s{S_T+2}     ; i%7")
    b(f"  s_and_b32 s{S_T+3}, s2, 7")
    b(f"  s_lshr_b32 s{S_T+4}, s{S_T+3}, 1")
    b(f"  s_mul_i32 s{S_T+4}, s{S_T+4}, 7")
    b(f"  s_add_u32 s60, s{S_T+4}, s{S_T+2}        ; ft")
    b(f"  s_and_b32 s{S_T+3}, s{S_T+3}, 1")
    b(f"  s_lshl_b32 s{S_T+3}, s{S_T+3}, 2")
    b(f"  s_add_u32 s61, s{S_T+3}, s{S_T+1}        ; dt")

S_SOFF, S_M0, S_N = 4, 5, 6
def loader_issue(b, voff, fl=""):
    for i in range(4):
        b(f"  s_add_u32 m0, s{S_M0}, {4096*i}")
        b(f"  s_nop 0")
        b(f"  buffer_load_dwordx4 v{voff+i}, s[{SRD_T}:{SRD_T+3}], s{S_SOFF} offen{fl} lds")
    b(f"  s_add_u32 s{S_SOFF}, s{S_SOFF}, s9")
    b(f"  s_add_u32 s{S_M0}, s{S_M0}, {STAGE}")
    b(f"  s_cmp_ge_u32 s{S_M0}, s{S_N+1}")
    b(f"  s_cselect_b32 s{S_N+2}, {R*STAGE}, 0")
    b(f"  s_sub_u32 s{S_M0}, s{S_M0}, s{S_N+2}")

def loader_init(b, step_bytes):
    b(f"  s_sub_u32 s50, s{S_W}, 4")
    b(f"  s_lshl_b32 s{S_M0}, s50, 10")
    b(f"  s_add_u32 s{S_N+1}, s{S_M0}, {R*STAGE}")
    b(f"  s_mov_b32 s{S_SOFF}, 0")
    b(f"  s_mov_b32 s9, {step_bytes}")

def g1_loader_addr(b):
    b(f"  s_sub_u32 s50, s{S_W}, 4      ; w'")
    for i in range(4):
        b(f"  s_lshl_b32 s49, s50, 2")
        b(f"  s_add_u32 s49, s49, {16*i}")
        b(f"  v_lshrrev_b32 v14, 4, v7")
        b(f"  v_add_u32 v14, s49, v14                 ; row 0..63")
        b(f"  v_and_b32 v15, 3, v14")
        b(f"  v_lshlrev_b32 v15, 2, v15")
        b(f"  v_and_b32 v16, 15, v7")
        b(f"  v_xor_b32 v16, v16, v15                 ; q")
        b(f"  v_lshrrev_b32 v17, 3, v14")
        b(f"  v_and_b32 v18, 7, v14")
        b(f"  v_lshl_add_u32 v17, v18, 8, v17         ; s")
        b(f"  v_mul_u32_u24 v17, 7168, v17")
        b(f"  v_lshl_add_u32 v17, v16, 4, v17")
        b(f"  s_lshl_b32 s49, s60, 8")
        b(f"  v_add_u32 v{V_LO+i}, s49, v17")

def g2_ids(b):
    if SK():
        b(f"  s_lshr_b32 s{S_T+1}, s2, 3")
        b(f"  s_lshr_b32 s{S_TILE_A}, s{S_T+1}, 2          ; dt")
        b(f"  s_lshr_b32 s{S_T}, s2, 1")
        b(f"  s_and_b32 s{S_T}, s{S_T}, 3")
        b(f"  s_lshl_b32 s{S_T}, s{S_T}, 2")
        b(f"  s_and_b32 s{S_T+1}, s{S_T+1}, 3")
        b(f"  s_add_u32 s{S_TILE_B}, s{S_T}, s{S_T+1}      ; st2")
        b(f"  s_and_b32 s19, s2, 1                       ; kh")
        return
    b(f"  s_and_b32 s{S_T}, s2, 1")
    b(f"  s_lshl_b32 s{S_T}, s{S_T}, 2")
    b(f"  s_lshr_b32 s{S_T+1}, s2, 3")
    b(f"  s_and_b32 s{S_T+2}, s{S_T+1}, 3")
    b(f"  s_add_u32 s{S_TILE_A}, s{S_T}, s{S_T+2}     ; dt")
    b(f"  s_lshr_b32 s{S_T}, s2, 1")
    b(f"  s_and_b32 s{S_T}, s{S_T}, 3")
    b(f"  s_lshl_b32 s{S_T}, s{S_T}, 3")
    b(f"  s_lshr_b32 s{S_T+1}, s{S_T+1}, 2")
    b(f"  s_add_u32 s{S_TILE_B}, s{S_T}, s{S_T+1}     ; st")

def g2_loader_addr(b):
    if SK():
        b(f"  s_sub_u32 s50, s{S_W}, 4")
        for i in range(4):
            b(f"  s_lshl_b32 s49, s50, 2")
            b(f"  s_add_u32 s49, s49, {16*i}")
            b(f"  v_lshrrev_b32 v14, 4, v7")
            b(f"  v_add_u32 v14, s49, v14                 ; row 0..63")
            b(f"  v_and_b32 v15, 3, v14")
            b(f"  v_lshlrev_b32 v15, 2, v15")
            b(f"  v_and_b32 v16, 15, v7")
            b(f"  v_xor_b32 v16, v16, v15                 ; q")
            b(f"  v_lshlrev_b32 v14, 12, v14              ; row*4096")
            b(f"  v_lshl_add_u32 v14, v16, 4, v14")
            b(f"  s_lshl_b32 s49, s{S_TILE_B}, 8          ; s0*2")
            b(f"  s_mul_i32 s48, s19, {1792*4096}         ; k half")
            b(f"  s_add_u32 s49, s49, s48")
            b(f"  v_add_u32 v{V_LO+i}, s49, v14")
        return
    b(f"  s_sub_u32 s50, s{S_W}, 4")
    for i in range(4):
        b(f"  s_lshl_b32 s49, s50, 3")
        b(f"  s_add_u32 s49, s49, {32*i}")
        b(f"  v_lshrrev_b32 v14, 3, v7")
        b(f"  v_add_u32 v14, s49, v14                 ; row")
        b(f"  v_bfe_u32 v15, v14, 1, 1")
        b(f"  v_lshlrev_b32 v15, 2, v15")
        b(f"  v_and_b32 v16, 7, v7")
        b(f"  v_xor_b32 v16, v16, v15                 ; q")
        b(f"  v_lshlrev_b32 v14, 12, v14              ; row*4096")
        b(f"  v_lshl_add_u32 v14, v16, 4, v14")
        b(f"  s_lshl_b32 s49, s{S_TILE_B}, 7          ; s0*2")
        b(f"  v_add_u32 v{V_LO+i}, s49, v14")

def loader_loop(b, NS, pre, fl=""):
    nmain = NS - (R - 2)
    b(f"  s_mov_b32 s{S_N}, {nmain}")
    b.label(f"{pre}_lloop")
    b(f"  s_waitcnt vmcnt({(R-3)*4})")
    b("  s_barrier")
    loader_issue(b, V_LO, fl)
    b(f"  s_sub_u32 s{S_N}, s{S_N}, 1")
    b(f"  s_cmp_lg_u32 s{S_N}, 0")
    b(f"  s_cbranch_scc1 {pre}_lloop")
    for i in range(R - 2):
        b(f"  s_waitcnt vmcnt({(R-3-i)*4})")
        b("  s_barrier")

BD3 = 32; XR3 = 192; GM3 = 30
def p3_tables(b):
    b(f"  v_and_b32 v10, 255, v0            ; e")
    b(f"  v_lshrrev_b32 v11, 8, v0")
    b(f"  v_bfe_u32 v12, v10, 2, 4          ; n = lane&15")
    b(f"  v_lshrrev_b32 v13, 6, v10         ; g")
    b(f"  v_and_b32 v14, 3, v10             ; r")
    b(f"  v_lshl_add_u32 v13, v13, 2, v14   ; 4g + r")
    b(f"  v_lshrrev_b32 v15, 2, v12")
    b(f"  v_lshlrev_b32 v15, 3, v15")
    b(f"  v_and_b32 v16, 3, v12")
    b(f"  v_add_u32 v15, v15, v16           ; b(n,0)")
    b(f"  v_lshl_add_u32 v16, v11, 2, v15   ; b(n, sel)")
    b(f"  v_mul_u32_u24 v17, v16, v13")
    sincos(b, 18, 19, 17, 5, 20)
    b(f"  v_lshlrev_b32 v22, 2, v10")
    b(f"  v_lshl_add_u32 v22, v11, 11, v22  ; sel*2048 + e*4")
    b(f"  v_add_u32 v22, {L3_M3}, v22")
    b(f"  v_cvt_pk_bf16_f32 v23, v18, -v19")
    b(f"  v_cvt_pk_bf16_f32 v24, v19, v18")
    b(f"  ds_write_b32 v22, v23")
    b(f"  ds_write_b32 v22, v24 offset:1024")
    b(f"  v_lshl_add_u32 v17, v11, 4, v13   ; k1")
    for z in range(2):
        b(f"  v_add_u32 v21, {16*z}, v12")
        b(f"  v_mul_u32_u24 v21, v21, v17")
        sincos(b, 18, 19, 21, 5, 20)
        b(f"  v_add_f32 v18, v18, v18")
        b(f"  v_mul_f32 v19, -2.0, v19")
        b(f"  v_cvt_pk_bf16_f32 v23, v18, v19")
        b(f"  ds_write_b32 v22, v23 offset:{4096+1024*z}")
    b(f"  v_lshlrev_b32 v23, 2, v10")
    b(f"  v_lshl_add_u32 v23, v11, 12, v23   ; u*4096 + e*4")
    b(f"  v_add_u32 v23, {L3_TW}, v23")
    for v in range(2):
        b(f"  v_add_u32 v21, {4*v}, v15")
        b(f"  v_mul_u32_u24 v21, v21, v17")
        sincos(b, 18, 19, 21, 10, 20)
        b(f"  ds_write_b32 v23, v18 offset:{2048*v}")
        b(f"  ds_write_b32 v23, v19 offset:{2048*v+1024}")

def p3_setup(b):
    srd(b, SRD_A, P_WS, 4 << 20, WS_X2)
    srd(b, SRD_B, P_X, 4 << 20)
    srd(b, SRD_C, P_WS, 4 << 20, WS_H)
    srd(b, SRD_D, P_WS, 4 << 20, WS_LN2)
    b(f"  s_lshl_b32 s{S_T+3}, s{S_W}, 8")
    b(f"  s_add_u32 s{S_T+3}, s{S_T+3}, s2")
    b(f"  s_lshl_b32 s{S_T+3}, s{S_T+3}, 11       ; s*2048")
    b(f"  v_lshlrev_b32 v4, 6, v8")
    b(f"  v_lshl_add_u32 v4, v9, 4, v4")
    for z in range(2):
        b(f"  buffer_load_dwordx4 {vr(XR3+4*z,4)}, v4, s[{SRD_B}:{SRD_B+3}], s{S_T+3} offen offset:{1024*z}")
    b(f"  s_mov_b32 s63, s{S_T+3}")
    if SK():
        srd(b, SRD_PF, P_WS, 4 << 20, WS_XCH)
        for i in range(4): b(f"  v_mov_b32 v{200+i}, -1")
        b(f"  v_lshlrev_b32 v2, 4, v0")
        b(f"  s_lshl_b32 s{S_T+8}, s2, 14")
        b(f"  buffer_store_dwordx4 v[200:203], v2, s[{SRD_PF}:{SRD_PF+3}], s{S_T+8} offen{SF}")
        b(f"  s_add_u32 s{S_T+8}, s{S_T+8}, 8192")
        b(f"  buffer_store_dwordx4 v[200:203], v2, s[{SRD_PF}:{SRD_PF+3}], s{S_T+8} offen{SF}")
    if "nopf" not in OPT and "ntw1" not in OPT:
        if PFN[2]:
            w1_share_base(b, S_T + 8, (PFN[0] + PFN[1]) * 4096)
            pf_wide(b, P_W1, W1B, S_T + 8, PFN[2], 4, 8, "pf_p3a")
    g1_ids(b)
    g1_loader_addr(b)
    loader_init(b, 8 * 7168)
    p3_tables(b)
    gmat(b, GM3, 2, True, 10)
    b(f"  v_lshlrev_b32 v1, 12, v9")
    b(f"  v_lshl_add_u32 v1, v8, 2, v1")
    b(f"  s_lshl_b32 s{S_T}, s2, 14")
    b(f"  s_and_b32 s{S_T+1}, s{S_W}, 1")
    b(f"  s_lshl_b32 s{S_T+1}, s{S_T+1}, 6")
    b(f"  s_lshr_b32 s{S_T+2}, s{S_W}, 1")
    b(f"  s_lshl_b32 s{S_T+2}, s{S_T+2}, 9")
    b(f"  s_add_u32 s{S_T}, s{S_T}, s{S_T+1}")
    b(f"  s_add_u32 s44, s{S_T}, s{S_T+2}          ; X2 soffset")
    b(f"  s_lshl_b32 s{S_T+1}, s{S_T+1}, 4        ; u*1024")
    b(f"  s_lshr_b32 s{S_T+2}, s{S_T+2}, 1        ; q4*256")
    b(f"  s_add_u32 s45, s{S_T+1}, s{S_T+2}")
    b(f"  s_waitcnt lgkmcnt(0)")

def p3_main(b):
    Bd, XR, GM = BD3, XR3, GM3
    D = 40
    b(f"  v_lshlrev_b32 v3, 12, v9")
    b(f"  v_lshl_add_u32 v3, v8, 4, v3")
    b(f"  v_add_u32 v3, s45, v3")
    b(f"  v_add_u32 v3, {L3_EX}, v3")
    M3, M4, TW = 96, 112, 128
    b(f"  v_lshlrev_b32 v6, 4, v7")
    b(f"  v_add_u32 v6, {L3_M3}, v6")
    for i in range(4): b(f"  ds_read_b128 {vr(M3+4*i,4)}, v6 offset:{1024*i}")
    for i in range(4): b(f"  ds_read_b128 {vr(M4+4*i,4)}, v6 offset:{4096+1024*i}")
    b(f"  s_waitcnt lgkmcnt(0)")
    for i in range(8): b(f"  ds_read_b128 {vr(TW+4*i,4)}, v6 offset:{8192+1024*i}")
    if SENT():
        b(f"  s_mov_b32 s11, 200000")
        b.label("p3_poll")
    for i in range(4):
        for e in range(2):
            b(f"  buffer_load_dword v{Bd+2*i+e}, v1, s[{SRD_A}:{SRD_A+3}], s44 offen offset:{e*2048+i*128} sc1")
    b(f"  s_waitcnt vmcnt(0)")
    if SENT(): sentinel_check(b, Bd, "p3")
    stamp(b, "p3 x2 landed")
    if "nopf" not in OPT and "ntw1" not in OPT and PFN[3]:
        w1_share_base(b, S_T + 8, (PFN[0] + PFN[1] + PFN[2]) * 4096)
        pf_wide(b, P_W1, W1B, S_T + 8, PFN[3], 4, 8, "pf_p3b")
    for i in range(4):
        b(f"  {MF16} {vr(D+4*i,4)}, {vr(GM,2)}, {vr(Bd+2*i,2)}, 0")
    b(f"  s_nop 4")
    PK = 56
    for e in range(2):
        for i in range(4):
            b(f"  v_cvt_pk_bf16_f32 v{PK+4*e+i}, v{D+4*i+2*e}, v{D+4*i+2*e+1}")
    b(f"  ds_write_b128 v3, {vr(PK,4)}")
    b(f"  ds_write_b128 v3, {vr(PK+4,4)} offset:2048")
    b(f"  s_waitcnt lgkmcnt(0)")
    b(f"  s_barrier")
    b(f"  v_lshlrev_b32 v5, 8, v9")
    b(f"  v_lshl_add_u32 v5, v8, 4, v5")
    b(f"  s_lshl_b32 s{S_T+1}, s{S_W}, 11")
    b(f"  s_add_u32 s{S_T+1}, s{S_T+1}, {L3_EX}")
    b(f"  v_add_u32 v5, s{S_T+1}, v5")
    AU = 32
    b(f"  ds_read_b128 {vr(AU,4)}, v5")
    b(f"  ds_read_b128 {vr(AU+4,4)}, v5 offset:1024")
    b(f"  s_waitcnt lgkmcnt(0)")
    b(f"  v_readlane_b32 s{S_T+4}, v{AU}, 0")
    b(f"  v_writelane_b32 v{AU}, 0, 0")
    b(f"  s_nop 1")
    b(f"  s_lshl_b32 s{S_T+4}, s{S_T+4}, 16")
    TT = 160
    for u in range(2):
        for v in range(2):
            for c in range(2):
                d = TT + ((u * 2 + v) * 2 + c) * 4
                b(f"  {MF32} {vr(d,4)}, {vr(AU+4*u,4)}, {vr(M3+4*(2*v+c),4)}, 0")
    CI = 60
    b(f"  v_mov_b32 v{CI}, s{S_T+4}")
    b(f"  v_xor_b32 v{CI+1}, 0x80000000, v{CI}")
    b(f"  v_mov_b32 v{CI+2}, v{CI}")
    b(f"  v_mov_b32 v{CI+3}, v{CI+1}")
    b(f"  s_nop 1")
    A2 = 64; O = 40; W = 80
    for u in range(2):
        for v in range(2):
            t = TT + ((u * 2 + v) * 2) * 4
            tw = TW + ((u * 2 + v) * 2) * 4
            cmul_pk(b, O, O + 4, t, t + 4, tw, tw + 4, W, True)
            for r in range(4):
                b(f"  v_cvt_pk_bf16_f32 v{A2+(u*2+v)*4+r}, v{O+r}, v{O+4+r}")
    Y = 160
    b(f"  s_nop 1")
    for z in range(2):
        for v in range(2):
            d = Y + (z * 2 + v) * 4
            b(f"  {MF32} {vr(d,4)}, {vr(A2+(0*2+v)*4,4)}, {vr(M4+(0*2+z)*4,4)}, {vr(CI,4)}")
    for z in range(2):
        for v in range(2):
            d = Y + (z * 2 + v) * 4
            b(f"  {MF32} {vr(d,4)}, {vr(A2+(1*2+v)*4,4)}, {vr(M4+(1*2+z)*4,4)}, {vr(d,4)}")
    b(f"  s_nop 7")
    X = 40; HP = 32
    stamp(b, "p3 ifft done")
    for z in range(2):
        for dd in range(4):
            y0 = Y + z * 8 + 2 * dd
            xd = XR + 4 * z + dd
            t = 64 + 2 * (dd % 4)
            b(f"  v_lshlrev_b32 v{t}, 16, v{xd}")
            b(f"  v_and_b32 v{t+1}, 0xffff0000, v{xd}")
            b(f"  v_pk_add_f32 {vr(t,2)}, {vr(t,2)}, {vr(y0,2)}")
            b(f"  v_cvt_pk_bf16_f32 v{HP+4*z+dd}, v{t}, v{t+1}")
    for z in range(2):
        b(f"  buffer_store_dwordx4 {vr(HP+4*z,4)}, v4, s[{SRD_C}:{SRD_C+3}], s63 offen offset:{1024*z}{SF}")
    for i in range(8):
        b(f"  v_lshlrev_b32 v{X+2*i}, 16, v{HP+i}")
        b(f"  v_and_b32 v{X+2*i+1}, 0xffff0000, v{HP+i}")
    ln_fast(b, X, 64, S_T + 4, False)
    LP = 72
    stamp(b, "p3 ln done")
    for i in range(8):
        b(f"  v_cvt_pk_bf16_f32 v{LP+i}, v{X+2*i}, v{X+2*i+1}")
    b(f"  v_mul_u32_u24 v3, 80, v8")
    b(f"  v_lshl_add_u32 v3, v9, 4, v3")
    b(f"  s_mul_i32 s{S_T+1}, s{S_W}, {L3_RS}")
    b(f"  s_add_u32 s{S_T+1}, s{S_T+1}, {L3_LN}")
    b(f"  v_add_u32 v3, s{S_T+1}, v3")
    for z in range(2):
        b(f"  ds_write_b128 v3, {vr(LP+4*z,4)} offset:{z*16*80}")
    b(f"  s_waitcnt lgkmcnt(0)")
    b(f"  s_barrier")
    b(f"  v_bfe_u32 v10, v7, 2, 2")
    b(f"  v_mul_u32_u24 v10, {L3_RS}, v10")
    b(f"  v_lshrrev_b32 v11, 5, v7")
    b(f"  v_mul_u32_u24 v12, 80, v11")
    b(f"  v_add_u32 v10, v10, v12")
    b(f"  v_and_b32 v12, 1, v7")
    b(f"  v_lshl_add_u32 v10, v12, 5, v10")
    b(f"  v_bfe_u32 v12, v7, 4, 1")
    b(f"  v_lshl_add_u32 v10, v12, 4, v10")
    b(f"  v_bfe_u32 v12, v7, 1, 1")
    b(f"  v_lshl_add_u32 v10, v12, 3, v10")
    b(f"  s_mul_i32 s{S_T+1}, s{S_W}, {4*80}")
    b(f"  s_add_u32 s{S_T+1}, s{S_T+1}, {L3_LN}")
    b(f"  v_add_u32 v10, s{S_T+1}, v10")
    for ps in range(2):
        b(f"  ds_read_b64_tr_b16 {vr(32+4*ps,2)}, v10 offset:{ps*160}")
        b(f"  ds_read_b64_tr_b16 {vr(34+4*ps,2)}, v10 offset:{ps*160 + 4*L3_RS}")
    b(f"  v_lshlrev_b32 v11, 17, v11")
    b(f"  v_and_b32 v12, 31, v7")
    b(f"  v_lshl_add_u32 v11, v12, 4, v11")
    b(f"  s_lshl_b32 s{S_T+1}, s{S_W}, 19")
    b(f"  s_lshl_b32 s{S_T+2}, s2, 9")
    b(f"  s_add_u32 s{S_T+1}, s{S_T+1}, s{S_T+2}")
    b(f"  s_add_u32 s{S_T+2}, s{S_T+1}, {2*131072}")
    b(f"  s_waitcnt lgkmcnt(2)")
    b(f"  buffer_store_dwordx4 v[32:35], v11, s[{SRD_D}:{SRD_D+3}], s{S_T+1} offen{SF}")
    b(f"  s_waitcnt lgkmcnt(0)")
    b(f"  buffer_store_dwordx4 v[36:39], v11, s[{SRD_D}:{SRD_D+3}], s{S_T+2} offen{SF}")
    stamp(b, "p3 stores issued")
    b(f"  s_and_b32 s{S_T+8}, s2, 15")
    arrive(b, 2, S_T + 8, label="x3")
    srd(b, SRD_T, P_W1, W1B)
    b(f"  s_cmp_lt_u32 s{S_W}, 4")
    b(f"  s_cbranch_scc1 p3_nodma")
    b(f"  s_cmp_eq_u32 s62, 0")
    b(f"  s_cbranch_scc1 p3_nodma")
    for n in range(2): loader_issue(b, V_LO, W1F())
    b.label("p3_nodma")

def gemm_core(b, c, pre, after_setup, after_prologue=None):
    NB, NS = c.NB, c.NS
    acc = lambda nb: V_ACC + nb * 16
    VT = V_ACC + NB * 16
    VPR = VT + 32
    c.VT, c.VPR = VT, VPR
    c.vend = VPR + 4 * PR
    tf = lambda q: VT + (q % 8) * 4
    pr = lambda j: VPR + (j % PR) * 4
    FPI = 64
    KPI = FPI // NB
    def tread(q):
        ql = q % FPI
        lslot, within = ql // 16, ql % 16
        ks, nb = within // NB, within % NB
        off = lslot * STAGE + ks * 16 * c.rowb
        b(f"  ds_read_b64_tr_b16 {vr(tf(q),2)}, v{V_T+nb} offset:{off}")
        b(f"  ds_read_b64_tr_b16 {vr(tf(q)+2,2)}, v{V_T+nb} offset:{off+4*c.rowb}")
    def pload(j):
        b(f"  buffer_load_dwordx4 {vr(pr(j),4)}, v{V_P}, s[{SRD_P}:{SRD_P+3}], s{S_POFF} offen offset:{(j%4)*1024}{LF}")
        if j % 4 == 3: b(f"  s_add_u32 s{S_POFF}, s{S_POFF}, 4096")
    def mfma(q):
        nb = q % NB; j = q // NB; a = acc(nb)
        if "m16fake" in OPT:
            o = 8 * (j % 2)
            b(f"  v_mfma_f32_16x16x32_bf16 {vr(a+o,4)}, {vr(tf(q),4)}, {vr(pr(j),4)}, {vr(a+o,4)}")
            b(f"  v_mfma_f32_16x16x32_bf16 {vr(a+o+4,4)}, {vr(pr(j),4)}, {vr(tf(q),4)}, {vr(a+o+4,4)}")
            return
        if c.name == "g1":
            b(f"  v_mfma_f32_32x32x16_bf16 {vr(a,16)}, {vr(tf(q),4)}, {vr(pr(j),4)}, {vr(a,16)}")
        else:
            b(f"  v_mfma_f32_32x32x16_bf16 {vr(a,16)}, {vr(pr(j),4)}, {vr(tf(q),4)}, {vr(a,16)}")
    b(f"  s_mov_b32 s{S_POFF}, 0")
    b(f"  s_mov_b32 s{S_DELTA}, {4*STAGE}")
    b(f"  s_mov_b32 s{S_IT}, {NS//4 - 1}")
    after_setup()
    for j in range(PR - 1): pload(j)
    if after_prologue: after_prologue()
    b("  s_barrier")
    for q in range(DQ): tread(q)
    def body(last):
        for q in range(FPI):
            j = q // NB
            qn = q + DQ
            do_read = not (last and qn >= FPI)
            do_pload = False
            if q % NB == 0:
                rem = KPI - 1 - j
                if (not last) or (j + PR - 1 < KPI):
                    b(f"  s_waitcnt vmcnt({PR-2})")
                    do_pload = True
                else:
                    b(f"  s_waitcnt vmcnt({min(PR-2, rem)})")
            if do_read and qn % 16 == 0:
                b("  s_barrier")
            if do_read and qn == FPI:
                for i in range(NB): b(f"  v_add_u32 v{V_T+i}, s{S_DELTA}, v{V_T+i}")
                b(f"  s_sub_u32 s{S_DELTA}, 0, s{S_DELTA}")
            if q % 2 == 0:
                left = min(DQ - 2, FPI - 2 - q) if last else DQ - 2
                b(f"  s_waitcnt lgkmcnt({2*left})")
            mfma(q)
            if do_pload: pload(j + PR - 1)
            if do_read: tread(qn)
    b.label(f"{pre}_loop")
    body(False)
    b(f"  s_sub_u32 s{S_IT}, s{S_IT}, 1")
    b(f"  s_cmp_lg_u32 s{S_IT}, 0")
    b(f"  s_cbranch_scc1 {pre}_loop")
    body(True)

def idle_w1(b):
    srd(b, SRD_PF, P_W1, W1B)
    b(f"  s_and_b32 s51, s50, 7")
    b(f"  s_mul_i32 s51, s51, {256*7168}")
    b(f"  s_lshr_b32 s52, s50, 3")
    b(f"  s_mul_i32 s52, s52, {4*7168}")
    b(f"  s_add_u32 s51, s51, s52")
    b(f"  s_add_u32 s51, s51, {128*7168}")
    b(f"  s_mov_b32 s52, 7")
    b.label("pf_w1b")
    for i in range(4): b(f"  buffer_load_dwordx4 {vr(V_DUMMY,4)}, v29, s[{SRD_PF}:{SRD_PF+3}], s51 offen offset:{1024*i}")
    b(f"  s_add_u32 s51, s51, 4096")
    b(f"  s_waitcnt vmcnt(4)")
    b(f"  s_sub_u32 s52, s52, 1")
    b(f"  s_cmp_lg_u32 s52, 0")
    b(f"  s_cbranch_scc1 pf_w1b")

def idle_w2(b):
    srd(b, SRD_PF, P_W2, W1B)
    b(f"  s_mul_i32 s51, s50, {W1B // 256}")
    b(f"  s_mov_b32 s52, 14")
    b.label("pf_w2")
    for i in range(4): b(f"  buffer_load_dwordx4 {vr(V_DUMMY,4)}, v29, s[{SRD_PF}:{SRD_PF+3}], s51 offen offset:{1024*i}")
    b(f"  s_add_u32 s51, s51, 4096")
    b(f"  s_waitcnt vmcnt({0 if 'idlepace' in OPT else 4})")
    b(f"  s_sub_u32 s52, s52, 1")
    b(f"  s_cmp_lg_u32 s52, 0")
    b(f"  s_cbranch_scc1 pf_w2")
    b(f"  s_waitcnt vmcnt(0)")

def g1(b):
    c = g1_cfg()
    b(f"  s_cmp_eq_u32 s62, 0")
    b(f"  s_cbranch_scc1 g1_inactive")
    srd(b, SRD_P, P_WS, 4 << 20, WS_LN2)
    srd(b, SRD_T, P_W1, W1B)
    srd(b, SRD_O, P_WS, U_BYTES, WS_U)
    srd(b, SRD_X, P_B1, 3584 * 2)
    b(f"  s_cmp_ge_u32 s{S_W}, 4")
    b(f"  s_cbranch_scc1 g1_loader")
    lane_geom(b)
    b(f"  s_lshl_b32 s{S_TMP}, s61, 2")
    b(f"  s_add_u32 s{S_TMP}, s{S_TMP}, s{S_W}            ; dblk")
    b(f"  s_lshl_b32 s{S_TMP+2}, s{S_TMP}, 17")
    b(f"  v_lshlrev_b32 v10, 4, v7")
    b(f"  v_add_u32 v{V_P}, s{S_TMP+2}, v10")
    b(f"  s_lshl_b32 s{S_TMP+1}, s60, 8       ; f0*2")
    b(f"  v_lshlrev_b32 v11, 3, v9")
    b(f"  v_add_u32 v11, s{S_TMP+1}, v11")
    BV = 192
    for fb in range(4):
        for i in range(4):
            b(f"  buffer_load_dwordx2 {vr(BV+2*(4*fb+i),2)}, v11, s[{SRD_X}:{SRD_X+3}], 0 offen offset:{64*fb+16*i}")
    b(f"  v_lshl_add_u32 v20, v9, 3, v18")
    b(f"  v_lshlrev_b32 v20, 8, v20")
    b(f"  v_lshl_add_u32 v20, v18, 6, v20")
    b(f"  v_lshl_add_u32 v20, v19, 5, v20")
    b(f"  v_lshl_add_u32 v{V_T}, v22, 3, v20")
    for fb in range(1, 4):
        b(f"  v_xor_b32 v{V_T+fb}, {64*fb}, v{V_T}")
    b(f"  s_mul_i32 s{S_TMP+2}, s{S_TMP}, 229376")
    b(f"  s_lshl_b32 s{S_TMP+1}, s60, 13")
    b(f"  s_add_u32 s{S_TMP+1}, s{S_TMP+1}, s{S_TMP+2}")
    b(f"  v_add_u32 v28, s{S_TMP+1}, v10")
    b(f"  s_waitcnt vmcnt(0)")
    for fb in range(4):
        for i in range(4):
            bv = BV + 2 * (4 * fb + i); a = V_ACC + fb * 16 + 4 * i
            b(f"  v_lshlrev_b32 v{a}, 16, v{bv}")
            b(f"  v_and_b32 v{a+1}, 0xffff0000, v{bv}")
            b(f"  v_lshlrev_b32 v{a+2}, 16, v{bv+1}")
            b(f"  v_and_b32 v{a+3}, 0xffff0000, v{bv+1}")
    def w3():
        wait(b, 2, 16, "x3c")
        stamp(b, "x3 released")
        stamp(b, "c:g1 start")
    gemm_core(b, c, "g1", w3)
    stamp(b, "c:g1 end")
    stamp(b, "g1 main done")
    K1 = -2.0 * 0.7978845608028654 * 1.4426950408889634
    K2 = K1 * 0.044715
    T = c.VPR
    b(f"  v_mov_b32 v{T}, {hex(f2u(K1))}")
    b(f"  v_mov_b32 v{T+1}, {hex(f2u(K1))}")
    b(f"  v_mov_b32 v{T+2}, {hex(f2u(K2))}")
    b(f"  v_mov_b32 v{T+3}, {hex(f2u(K2))}")
    b(f"  s_nop 7")
    W = T + 8
    for fb in range(4):
        a = V_ACC + fb * 16; t = W; o = W + 16 + 8 * (fb % 2)
        for h in range(0, 16, 2): b(f"  v_pk_mul_f32 {vr(t+h,2)}, {vr(a+h,2)}, {vr(a+h,2)}")
        for h in range(0, 16, 2): b(f"  v_pk_fma_f32 {vr(t+h,2)}, {vr(t+h,2)}, {vr(T+2,2)}, {vr(T,2)}")
        for h in range(0, 16, 2): b(f"  v_pk_mul_f32 {vr(t+h,2)}, {vr(t+h,2)}, {vr(a+h,2)}")
        for r in range(16): b(f"  v_exp_f32 v{t+r}, v{t+r}")
        for h in range(0, 16, 2): b(f"  v_pk_add_f32 {vr(t+h,2)}, {vr(t+h,2)}, 1.0 op_sel_hi:[1,0]")
        for r in range(16): b(f"  v_rcp_f32 v{t+r}, v{t+r}")
        for h in range(0, 16, 2): b(f"  v_pk_mul_f32 {vr(t+h,2)}, {vr(a+h,2)}, {vr(t+h,2)}")
        for i in range(4):
            b(f"  v_cvt_pk_bf16_f32 v{o+2*i}, v{t+4*i}, v{t+4*i+1}")
            b(f"  v_cvt_pk_bf16_f32 v{o+2*i+1}, v{t+4*i+2}, v{t+4*i+3}")
        for ip in range(2):
            oo = o + 4 * ip
            b(f"  s_mov_b32 s{S_TMP+1}, {(2*fb+ip)*1024}")
            b(f"  s_nop 0")
            b(f"  v_permlane32_swap_b32 v{oo}, v{oo+2}")
            b(f"  v_permlane32_swap_b32 v{oo+1}, v{oo+3}")
            b(f"  buffer_store_dwordx4 {vr(oo,4)}, v28, s[{SRD_O}:{SRD_O+3}], s{S_TMP+1} offen{SF}")
    stamp(b, "g1 stores issued")
    b(f"  s_waitcnt vmcnt(0)")
    b(f"  s_branch g1_join")
    b.label("g1_loader")
    b(f"  s_sub_u32 s50, s{S_W}, 4")
    b(f"  s_lshl_b32 s49, s50, 10")
    b(f"  s_add_u32 s{S_N+1}, s49, {R*STAGE}")
    b(f"  s_barrier                      ; matches the barrier inside wait(x3)")
    for n in range(R - 4): loader_issue(b, V_LO, W1F())
    loader_loop(b, c.NS, "g1", W1F())
    stamp(b, "g1 main done")
    g2_prologue_loader(b)
    stamp(b, "g1 stores issued")
    b.label("g1_join")
    if SK():
        b(f"  s_cmp_ge_u32 s60, 14")
        b(f"  s_cselect_b32 s18, 1, 0")
        b(f"  s_lshl_b32 s10, s61, 1")
        b(f"  s_add_u32 s18, s18, s10")
        arrive(b, 3, 18, label="x4", drained=True)
    else:
        arrive(b, 3, 61, label="x4", drained=True)
    b(f"  s_branch g2_start")
    b.label("g1_inactive")
    if "nopf" not in OPT:
        b(f"  s_sub_u32 s50, s2, 224")
        b(f"  s_lshl_b32 s50, s50, 3")
        b(f"  s_add_u32 s50, s50, s{S_W}")
        b(f"  v_lshlrev_b32 v29, 4, v7")
        if "noidle" not in OPT: idle_w2(b)
    b(f"  s_cmp_lt_u32 s{S_W}, 4")
    b(f"  s_cbranch_scc1 g2_start_inactive")
    g2_prologue_loader(b)
    b.label("g2_start_inactive")
    return c

def g2_prologue_loader(b):
    g2_ids(b)
    srd(b, SRD_T, P_W2, W1B)
    g2_loader_addr(b)
    loader_init(b, (64 if SK() else 128) * 4096)
    for n in range(2): loader_issue(b, V_LO, W2F())

def g2_sk(b):
    c = g1_cfg(); c.name = "g2"; c.NS = 28
    b.label("g2_start")
    g2_ids(b)
    srd(b, SRD_P, P_WS, U_BYTES, WS_U)
    srd(b, SRD_O, P_OUT, 4 << 20)
    srd(b, SRD_X, P_B2, 2048 * 2)
    srd(b, SRD_Y, P_WS, 4 << 20, WS_H)
    b(f"  s_cmp_ge_u32 s{S_W}, 4")
    b(f"  s_cbranch_scc1 g2_loader")
    lane_geom(b)
    b(f"  s_lshl_b32 s{S_TMP}, s{S_TILE_A}, 2")
    b(f"  s_add_u32 s{S_TMP}, s{S_TMP}, s{S_W}        ; dblk")
    b(f"  s_mul_i32 s{S_TMP+2}, s{S_TMP}, 229376")
    b(f"  s_mul_i32 s{S_TMP+3}, s19, {112*1024}       ; k half")
    b(f"  s_add_u32 s{S_TMP+2}, s{S_TMP+2}, s{S_TMP+3}")
    b(f"  v_lshlrev_b32 v10, 4, v7")
    b(f"  v_add_u32 v{V_P}, s{S_TMP+2}, v10")
    b(f"  s_lshl_b32 s{S_TMP+1}, s{S_TILE_B}, 7")
    b(f"  s_lshl_b32 s{S_TMP+3}, s19, 6")
    b(f"  s_add_u32 s{S_TMP+1}, s{S_TMP+1}, s{S_TMP+3}")
    b(f"  v_add_u32 v11, s{S_TMP+1}, v8              ; s0 + s'")
    b(f"  v_lshlrev_b32 v16, 1, v11")
    for sb in range(2):
        b(f"  buffer_load_ushort v{12+sb}, v16, s[{SRD_X}:{SRD_X+3}], 0 offen offset:{64*sb}")
    b(f"  v_lshlrev_b32 v17, 11, v11")
    b(f"  v_lshl_add_u32 v17, v9, 5, v17")
    b(f"  s_lshl_b32 s{S_TMP+2}, s{S_TMP}, 6")
    b(f"  v_add_u32 v28, s{S_TMP+2}, v17")
    HV = 192
    b(f"  v_lshl_add_u32 v20, v9, 3, v18")
    b(f"  v_lshlrev_b32 v20, 8, v20")
    b(f"  v_lshl_add_u32 v20, v18, 6, v20")
    b(f"  v_lshl_add_u32 v20, v19, 5, v20")
    b(f"  v_lshl_add_u32 v{V_T}, v22, 3, v20")
    for fb in range(1, 4):
        b(f"  v_xor_b32 v{V_T+fb}, {64*fb}, v{V_T}")
    b(f"  s_lshl_b32 s{S_TMP+1}, s{S_W}, 12")
    b(f"  s_lshl_b32 s{S_TMP+2}, s2, 14")
    b(f"  s_add_u32 s{S_TMP+2}, s{S_TMP+2}, s{S_TMP+1}")
    b(f"  v_add_u32 v29, s{S_TMP+2}, v10")
    b(f"  s_xor_b32 s{S_TMP+2}, s2, 1")
    b(f"  s_lshl_b32 s{S_TMP+2}, s{S_TMP+2}, 14")
    b(f"  s_add_u32 s{S_TMP+2}, s{S_TMP+2}, s{S_TMP+1}")
    b(f"  v_add_u32 v30, s{S_TMP+2}, v10")
    for i in range(64): b(f"  v_mov_b32 v{V_ACC+i}, 0")
    def w4():
        b(f"  s_lshl_b32 s18, s{S_TILE_A}, 1")
        b(f"  s_add_u32 s18, s18, s19")
        wait(b, 3, 14, "x4c", single_sreg=18)
        stamp(b, "x4 released")
        stamp(b, "c:g2 start")
    def hloads():
        for sb in range(2):
            b(f"  s_mov_b32 s{S_TMP+1}, {sb*65536}")
            b(f"  buffer_load_dwordx4 {vr(HV+8*sb,4)}, v28, s[{SRD_Y}:{SRD_Y+3}], s{S_TMP+1} offen{LF}")
            b(f"  buffer_load_dwordx4 {vr(HV+8*sb+4,4)}, v28, s[{SRD_Y}:{SRD_Y+3}], s{S_TMP+1} offen offset:16{LF}")
    gemm_core(b, c, "g2", w4, hloads)
    stamp(b, "c:g2 end")
    stamp(b, "g2 main done")
    srd(b, SRD_X, P_WS, 4 << 20, WS_XCH)
    T = c.VT
    b(f"  s_cmp_eq_u32 s19, 0")
    b(f"  s_cbranch_scc1 g2_send23")
    def pack_send(first):
        for blk in range(2):
            a = V_ACC + (first + blk) * 16
            for i in range(8):
                b(f"  v_cvt_pk_bf16_f32 v{T+8*blk+i}, v{a+2*i}, v{a+2*i+1}")
            for i in range(8):
                b(f"  v_min_u32 v{T+8*blk+i}, 0xfffffffe, v{T+8*blk+i}")
            for p in range(2):
                b(f"  buffer_store_dwordx4 {vr(T+8*blk+4*p,4)}, v30, s[{SRD_X}:{SRD_X+3}], 0 offen offset:{(2*blk+p)*1024}{SF}")
    b(f"  s_nop 7")
    pack_send(0)
    for i in range(32): b(f"  v_mov_b32 v{V_ACC+i}, v{V_ACC+32+i}")
    b(f"  s_branch g2_sent")
    b.label("g2_send23")
    b(f"  s_nop 7")
    pack_send(2)
    b.label("g2_sent")
    RX = c.VPR
    b(f"  s_mov_b32 s11, 200000")
    b.label("g2x_poll")
    for k in range(4):
        b(f"  buffer_load_dwordx4 {vr(RX+4*k,4)}, v29, s[{SRD_X}:{SRD_X+3}], 0 offen offset:{k*1024} sc1")
    b(f"  s_waitcnt vmcnt(0)")
    sentinel_check(b, RX, "g2x", n=16)
    stamp(b, "g2 x landed")
    b(f"  s_mov_b32 s{S_TMP}, 0xffff0000")
    for blk in range(2):
        for i in range(8):
            a = V_ACC + blk * 16 + 2 * i; r = RX + 8 * blk + i
            b(f"  v_lshlrev_b32 v16, 16, v{r}")
            b(f"  v_and_b32 v17, s{S_TMP}, v{r}")
            b(f"  v_add_f32 v{a}, v{a}, v16")
            b(f"  v_add_f32 v{a+1}, v{a+1}, v17")
    for sb in range(2):
        b(f"  v_lshlrev_b32 v{12+sb}, 16, v{12+sb}")
    for sb in range(2):
        for half in range(2):
            o = T + 4 * ((sb * 2 + half) % 2)
            for dd in range(4):
                a = V_ACC + sb * 16 + half * 8 + 2 * dd
                hv = HV + 8 * sb + 4 * half + dd
                t0 = T + 8 + 4 * dd
                b(f"  v_lshlrev_b32 v{t0}, 16, v{hv}")
                b(f"  v_and_b32 v{t0+1}, s{S_TMP}, v{hv}")
                b(f"  v_pk_add_f32 {vr(t0,2)}, {vr(t0,2)}, {vr(a,2)}")
                b(f"  v_add_f32 v{t0}, v{t0}, v{12+sb}")
                b(f"  v_add_f32 v{t0+1}, v{t0+1}, v{12+sb}")
                b(f"  v_cvt_pk_bf16_f32 v{o+dd}, v{t0}, v{t0+1}")
            b(f"  s_mov_b32 s{S_TMP+1}, {sb*65536}")
            b(f"  buffer_store_dwordx4 {vr(o,4)}, v28, s[{SRD_O}:{SRD_O+3}], s{S_TMP+1} offen offset:{16*half}")
    stamp(b, "g2 stores issued")
    b(f"  s_branch g2_done")
    b.label("g2_loader")
    b(f"  s_barrier                      ; matches the barrier inside wait(x4)")
    for n in range(R - 4): loader_issue(b, V_LO, W2F())
    loader_loop(b, c.NS, "g2", W2F())
    b.label("g2_done")

def g2(b):
    if SK(): return g2_sk(b)
    c = g2_cfg()
    b.label("g2_start")
    g2_ids(b)
    srd(b, SRD_P, P_WS, U_BYTES, WS_U)
    srd(b, SRD_O, P_OUT, 4 << 20)
    srd(b, SRD_X, P_B2, 2048 * 2)
    srd(b, SRD_Y, P_WS, 4 << 20, WS_H)
    b(f"  s_cmp_ge_u32 s{S_W}, 4")
    b(f"  s_cbranch_scc1 g2_loader")
    lane_geom(b)
    b(f"  s_lshl_b32 s{S_TMP}, s{S_TILE_A}, 2")
    b(f"  s_add_u32 s{S_TMP}, s{S_TMP}, s{S_W}        ; dblk")
    b(f"  s_mul_i32 s{S_TMP+2}, s{S_TMP}, 229376")
    b(f"  v_lshlrev_b32 v10, 4, v7")
    b(f"  v_add_u32 v{V_P}, s{S_TMP+2}, v10")
    b(f"  s_lshl_b32 s{S_TMP+1}, s{S_TILE_B}, 6       ; s0")
    b(f"  v_add_u32 v11, s{S_TMP+1}, v8              ; s0 + s'")
    b(f"  v_lshlrev_b32 v16, 1, v11")
    for sb in range(2):
        b(f"  buffer_load_ushort v{12+sb}, v16, s[{SRD_X}:{SRD_X+3}], 0 offen offset:{64*sb}")
    b(f"  v_lshlrev_b32 v17, 11, v11")
    b(f"  v_lshl_add_u32 v17, v9, 5, v17")
    b(f"  s_lshl_b32 s{S_TMP+2}, s{S_TMP}, 6")
    b(f"  v_add_u32 v28, s{S_TMP+2}, v17")
    HV = 160
    b(f"  v_lshl_add_u32 v20, v9, 3, v18            ; row")
    b(f"  v_bfe_u32 v21, v18, 1, 1")
    b(f"  v_lshlrev_b32 v20, 7, v20")
    b(f"  v_lshl_add_u32 v20, v21, 6, v20")
    b(f"  v_lshl_add_u32 v20, v19, 5, v20")
    b(f"  v_lshl_add_u32 v{V_T}, v22, 3, v20")
    b(f"  v_xor_b32 v{V_T+1}, 64, v{V_T}")
    for i in range(32): b(f"  v_mov_b32 v{V_ACC+i}, 0")
    def w4():
        wait(b, 3, 28, "x4c", single_sreg=S_TILE_A)
        stamp(b, "x4 released")
        stamp(b, "c:g2 start")
    def hloads():
        for sb in range(2):
            b(f"  s_mov_b32 s{S_TMP+1}, {sb*65536}")
            b(f"  buffer_load_dwordx4 {vr(HV+8*sb,4)}, v28, s[{SRD_Y}:{SRD_Y+3}], s{S_TMP+1} offen{LF}")
            b(f"  buffer_load_dwordx4 {vr(HV+8*sb+4,4)}, v28, s[{SRD_Y}:{SRD_Y+3}], s{S_TMP+1} offen offset:16{LF}")
    gemm_core(b, c, "g2", w4, hloads)
    stamp(b, "c:g2 end")
    stamp(b, "g2 main done")
    T = c.VT
    b(f"  s_mov_b32 s{S_TMP}, 0xffff0000")
    for sb in range(2):
        b(f"  v_lshlrev_b32 v{12+sb}, 16, v{12+sb}")
    b(f"  s_nop 9")
    for sb in range(2):
        for half in range(2):
            o = T + 4 * ((sb * 2 + half) % 2)
            for dd in range(4):
                a = V_ACC + sb * 16 + half * 8 + 2 * dd
                hv = HV + 8 * sb + 4 * half + dd
                t0 = T + 8 + 4 * dd
                b(f"  v_cvt_pk_bf16_f32 v{t0}, v{a}, v{a+1}")
                b(f"  v_and_b32 v{t0+1}, s{S_TMP}, v{t0}")
                b(f"  v_lshlrev_b32 v{t0}, 16, v{t0}")
                b(f"  v_add_f32 v{t0}, v{t0}, v{12+sb}")
                b(f"  v_add_f32 v{t0+1}, v{t0+1}, v{12+sb}")
                b(f"  v_cvt_pk_bf16_f32 v{t0}, v{t0}, v{t0+1}")
                b(f"  v_and_b32 v{t0+1}, s{S_TMP}, v{t0}")
                b(f"  v_lshlrev_b32 v{t0}, 16, v{t0}")
                b(f"  v_lshlrev_b32 v{t0+2}, 16, v{hv}")
                b(f"  v_and_b32 v{t0+3}, s{S_TMP}, v{hv}")
                b(f"  v_add_f32 v{t0}, v{t0}, v{t0+2}")
                b(f"  v_add_f32 v{t0+1}, v{t0+1}, v{t0+3}")
                b(f"  v_cvt_pk_bf16_f32 v{o+dd}, v{t0}, v{t0+1}")
            b(f"  s_mov_b32 s{S_TMP+1}, {sb*65536}")
            b(f"  buffer_store_dwordx4 {vr(o,4)}, v28, s[{SRD_O}:{SRD_O+3}], s{S_TMP+1} offen offset:{16*half}")
    stamp(b, "g2 stores issued")
    b(f"  s_branch g2_done")
    b.label("g2_loader")
    b(f"  s_barrier                      ; matches the barrier inside wait(x4)")
    for n in range(R - 4): loader_issue(b, V_LO, W2F())
    loader_loop(b, c.NS, "g2", W2F())
    b.label("g2_done")

def build():
    NAME = "sequential_preLN__spectral_gfnet__mixer_token_mlp__prompt"
    hdr = open(f"cdna_kernels/{NAME}.s.ref").read().split("; Override launch")[0]
    K = NAME + "_kernel"
    b = B()
    b(hdr.rstrip("\n"))
    b(f"; @launch grid=(256,1,1) block=(512,1,1) lds={LDS_TOTAL}")
    b('.amdgcn_target "amdgcn-amd-amdhsa--gfx950"\n.text')
    b(f".globl {K}\n.p2align 8\n.type {K},@function\n{K}:")
    b(f"  s_cmp_ge_u32 s2, 256\n  s_cbranch_scc1 k_exit")
    if "stamp" in OPT: b("  v_mov_b32 v231, 0")
    stamp(b, "entry")
    b(f"  s_load_dwordx4 s[{P_X}:{P_X+3}], s[0:1], 0        ; x, w_r")
    b(f"  s_load_dwordx2 s[{P_WI}:{P_WI+1}], s[0:1], 16")
    b(f"  s_load_dwordx2 s[{P_W1}:{P_W1+1}], s[0:1], 32")
    b(f"  s_load_dwordx4 s[{P_B1}:{P_B1+3}], s[0:1], 40     ; b1, w2")
    b(f"  s_load_dwordx4 s[{P_B2}:{P_B2+3}], s[0:1], 56     ; b2, out")
    b(f"  s_load_dwordx4 s[{P_DBG}:{P_DBG+3}], s[0:1], 72")
    b(f"  v_lshrrev_b32 v6, 6, v0")
    b(f"  v_and_b32 v7, 63, v0        ; lane")
    b(f"  v_readfirstlane_b32 s{S_W}, v6")
    b(f"  v_and_b32 v8, 15, v7          ; c")
    b(f"  v_lshrrev_b32 v9, 4, v7       ; g")
    b(f"  s_waitcnt lgkmcnt(0)")
    srd(b, SRD_CNT, P_WS, 65536, WS_CNT)
    p1(b)
    p2_setup(b)
    wait(b, 0, 16, "x1c")
    stamp(b, "x1 released")
    p2_main(b)
    p3_setup(b)
    if SENT(): b("  s_barrier")
    else: wait(b, 1, 16, "x2c")
    stamp(b, "x2 released")
    p3_main(b)
    g1(b)
    g2(b)
    b(f"  s_waitcnt vmcnt(0)")
    stamp(b, "end")
    stamp_flush(b)
    b("k_exit:\n  s_endpgm")
    b(kd(K, 240, sgpr=102))
    return b.text()

if __name__ == "__main__":
    out = sys.argv[1]
    OPT.update(sys.argv[2:])
    for o in sys.argv[2:]:
        if o.startswith("pfn="): PFN[:] = [int(c) for c in o[4:].split(",")]
    gemm.OPT.update(sys.argv[2:])
    t = build()
    open(out, "w").write(t)
    rep = check_text(t)
    print("\n".join(rep) if rep else "no hazards found", "| stamps:", nstamp[0])
```

```python
import sys
from asmlib import *
import gemm, fft
from gemm import (srd, f2u, WS_X1, WS_X2, WS_H, WS_LN2, WS_U, U_BYTES, S_W, R, STAGE, PR, DQ,
                  V_P, V_T, V_ACC, S_POFF, S_IT, S_DELTA, SRD_P, SRD_T, SRD_O, SRD_X, SRD_Y, S_TILE_A, S_TILE_B, S_TMP,
                  g1_cfg, g2_cfg, lane_geom)
from fft import sincos, wave_reduce, ln_finish, layernorm16, cmul_pk, gmat, MF32, MF16

OPT = set()
PFN = [0, 4, 0, 4]
WS_CNT = 30 << 20
WS_STAMP = 31 << 20
WS_XCH = 24 << 20
W1B = 2048 * 3584 * 2
WB = 2048 * 1026

P_X, P_WR, P_WI, P_W1, P_B1, P_W2, P_B2, P_OUT, P_DBG, P_WS = 64, 66, 68, 70, 72, 74, 76, 78, 80, 82
SRD_CNT = 12
S_T = 46
SRD_A, SRD_B, SRD_C, SRD_D = 24, 28, 32, 36
SRD_PF = 56
S_STAMP = 84
SF = " sc1"
LF = ""

L1_M1, L1_M2, L1_TW, L1_EX = 0, 4096, 8192, 16384
L2_F = 32768; L2_X = L2_F + 2048; L2_W = L2_X + 16 * 1040
L3_M3 = 98304; L3_M4 = L3_M3 + 4096; L3_TW = L3_M3 + 8192; L3_EX = L3_M3 + 16384
L3_LN = L3_EX + 16384; L3_RS = 2624
LDS_TOTAL = L3_LN + 8 * L3_RS
assert LDS_TOTAL <= 163840

STAMPS = ["entry", "p1 x landed", "p1 stores issued", "p1 arrived", "x1 released", "p2 x landed", "p2 stores issued",
          "x2 released", "p3 x2 landed", "p3 stores issued", "x3 released", "g1 main done", "g1 stores issued", "x4 released",
          "g2 main done", "g2 stores issued", "end", "x1 drained", "x2 drained", "x3 drained", "x4 drained", "p1 tables done", "p1 ln done", "p1 fft done", "p3 ifft done", "p3 ln done", "c:g1 start", "c:g1 end", "c:g2 start", "c:g2 end", "g2 x landed"]
nstamp = [len(STAMPS)]
SENT = lambda: "bar" not in OPT
SK = lambda: "nosk" not in OPT
W1F = lambda: " nt" if "ntw1" in OPT else ""
W2F = lambda: " nt" if "ntw2" in OPT else ""
XF = lambda: " nt" if "ntx" in OPT else ""
def stamp(b, name):
    if "stamp" not in OPT: return
    i = STAMPS.index(name)
    op = "s_memtime" if name.startswith("c:") else "s_memrealtime"
    b(f"  {op} s[{S_STAMP}:{S_STAMP+1}]   ; stamp {i}: {name}")
    b(f"  s_waitcnt lgkmcnt(0)")
    b(f"  v_writelane_b32 v231, s{S_STAMP}, {i}")

def stamp_flush(b):
    if "stamp" not in OPT: return
    if "dbgmax" in OPT:
        b(f"  s_cmp_lg_u32 s{S_W}, 0")
        b(f"  s_cbranch_scc1 dbg_skip")
        srd(b, 24, P_DBG, 256)
        b(f"  v_readlane_b32 s46, v231, 0")
        b(f"  s_sub_u32 s47, 0, s46")
        b(f"  v_mov_b32 v3, v231")
        b(f"  v_writelane_b32 v3, s47, 0")
        b(f"  v_writelane_b32 v3, s46, 15")
        b(f"  v_lshlrev_b32 v2, 2, v7")
        b(f"  s_mov_b64 s[48:49], exec")
        b(f"  s_mov_b64 exec, 0xffff")
        b(f"  buffer_atomic_umax v3, v2, s[24:27], 0 offen sc1")
        b(f"  s_mov_b64 exec, s[48:49]")
        b.label("dbg_skip")
        return
    if "dbgtime" in OPT:
        b(f"  s_cmp_lg_u32 s2, 100")
        b(f"  s_cbranch_scc1 dbg_skip")
        b(f"  s_cmp_lg_u32 s{S_W}, 0")
        b(f"  s_cbranch_scc1 dbg_skip")
        srd(b, 24, P_DBG, 256)
        b(f"  v_readlane_b32 s46, v231, 0")
        b(f"  s_nop 1")
        b(f"  v_subrev_u32 v3, s46, v231")
        b(f"  v_lshlrev_b32 v2, 2, v7")
        b(f"  v_subrev_u32 v2, 4, v2")
        b(f"  s_mov_b64 s[48:49], exec")
        b(f"  s_mov_b64 exec, 0x1fffe")
        b(f"  buffer_store_dword v3, v2, s[24:27], 0 offen")
        b(f"  s_mov_b64 exec, s[48:49]")
        b.label("dbg_skip")
        return
    srd(b, 24, P_WS, 1 << 20, WS_STAMP)
    b(f"  s_lshl_b32 s46, s2, 3")
    b(f"  s_add_u32 s46, s46, s{S_W}")
    b(f"  s_lshl_b32 s46, s46, 7            ; (wg*8+wave)*128")
    b(f"  v_lshlrev_b32 v2, 2, v7")
    b(f"  s_mov_b64 s[48:49], exec")
    b(f"  s_mov_b64 exec, 0xffffffff")
    b(f"  buffer_store_dword v231, v2, s[24:27], s46 offen")
    b(f"  s_mov_b64 exec, s[48:49]")

def arrive(b, bar, shard_sreg, first=False, label="", drained=False):
    if not drained: b(f"  s_waitcnt vmcnt(0)")
    stamp(b, f"x{bar+1} drained")
    b(f"  s_barrier")
    b(f"  s_cmp_lg_u32 s{S_W}, 0")
    b(f"  s_cbranch_scc1 {label}_arr_skip")
    if first:
        b(f"  s_mov_b32 s11, 100000")
        b.label(f"{label}_rdy")
        b(f"  v_cmp_ne_u32 vcc, 0, v27")
        b(f"  s_nop 1")
        b(f"  s_cmp_eq_u64 vcc, exec")
        b(f"  s_cbranch_scc1 {label}_rdy_ok")
        b(f"  buffer_load_dword v27, v26, s[{SRD_PF}:{SRD_PF+3}], 0 offen sc1")
        b(f"  s_waitcnt vmcnt(0)")
        b(f"  s_sub_u32 s11, s11, 1")
        b(f"  s_cmp_lg_u32 s11, 0")
        b(f"  s_cbranch_scc1 {label}_rdy")
        b.label(f"{label}_rdy_ok")
    b(f"  s_lshl_b32 s10, s{shard_sreg}, 8")
    b(f"  s_add_u32 s10, s10, {bar*4096}")
    b(f"  v_mov_b32 v228, s10")
    b(f"  v_mov_b32 v229, 1")
    b(f"  s_mov_b64 s[16:17], exec")
    b(f"  s_mov_b64 exec, 1")
    b(f"  buffer_atomic_add v229, v228, s[{SRD_CNT}:{SRD_CNT+3}], 0 offen sc1")
    b(f"  s_mov_b64 exec, s[16:17]")
    b.label(f"{label}_arr_skip")

def wait(b, bar, target, label, single_sreg=None):
    b(f"  s_cmp_lg_u32 s{S_W}, 0")
    b(f"  s_cbranch_scc1 {label}_w_skip")
    if single_sreg is None:
        b(f"  v_and_b32 v228, 15, v7")
        b(f"  v_lshlrev_b32 v228, 8, v228")
        b(f"  v_add_u32 v228, {bar*4096}, v228")
    else:
        b(f"  s_lshl_b32 s10, s{single_sreg}, 8")
        b(f"  s_add_u32 s10, s10, {bar*4096}")
        b(f"  v_mov_b32 v228, s10")
    b(f"  s_mov_b32 s11, 200000")
    b.label(f"{label}_poll")
    b(f"  buffer_load_dword v229, v228, s[{SRD_CNT}:{SRD_CNT+3}], 0 offen sc1")
    b(f"  s_waitcnt vmcnt(0)")
    b(f"  v_cmp_le_u32 vcc, {target}, v229")
    b(f"  s_nop 1")
    b(f"  s_cmp_eq_u64 vcc, exec")
    b(f"  s_cbranch_scc1 {label}_w_skip")
    b(f"  s_sub_u32 s11, s11, 1")
    b(f"  s_cmp_lg_u32 s11, 0")
    b(f"  s_cbranch_scc1 {label}_poll")
    b.label(f"{label}_w_skip")
    b(f"  s_barrier")

def prefetch(b, ptr_pair, nbytes, start, length, who_scale, who_sreg, vaddr, vdst, stmp, paced=False):
    chunk = -(-length // who_scale)
    n_per_wave = -(-chunk // (512 * 128))
    stride = -(-chunk // (512 * n_per_wave))
    stride = (stride + 3) // 4 * 4
    per_instr = 64 * stride
    srd(b, SRD_PF, ptr_pair, nbytes)
    b(f"  s_mul_i32 s{stmp}, s{who_sreg}, {chunk}")
    b(f"  s_mul_i32 s{stmp+1}, s{S_W}, {n_per_wave*per_instr}")
    b(f"  s_add_u32 s{stmp}, s{stmp}, s{stmp+1}")
    if start: b(f"  s_add_u32 s{stmp}, s{stmp}, {start}")
    b(f"  v_mul_u32_u24 v{vaddr}, {stride}, v7")
    for i in range(n_per_wave):
        b(f"  buffer_load_dword v{vdst}, v{vaddr}, s[{SRD_PF}:{SRD_PF+3}], s{stmp} offen")
        if i + 1 < n_per_wave: b(f"  s_add_u32 s{stmp}, s{stmp}, {per_instr}")
        if paced: b(f"  s_waitcnt vmcnt(0)")
    return n_per_wave

V_DUMMY = 232
def pf_wide(b, ptr_pair, nbytes, s_base, n, wave_lo, wave_hi, label):
    b(f"  s_cmp_lt_u32 s{S_W}, {wave_lo}")
    b(f"  s_cbranch_scc1 {label}")
    if wave_hi < 8:
        b(f"  s_cmp_ge_u32 s{S_W}, {wave_hi}")
        b(f"  s_cbranch_scc1 {label}")
    srd(b, SRD_PF, ptr_pair, nbytes)
    b(f"  s_sub_u32 s{S_T+9}, s{S_W}, {wave_lo}")
    b(f"  s_mul_i32 s{S_T+9}, s{S_T+9}, {n*1024}")
    b(f"  s_add_u32 s{S_T+9}, s{S_T+9}, s{s_base}")
    b(f"  v_lshlrev_b32 v29, 4, v7")
    for i in range(n):
        if i and i % 4 == 0: b(f"  s_add_u32 s{S_T+9}, s{S_T+9}, 4096")
        b(f"  buffer_load_dwordx4 {vr(V_DUMMY,4)}, v29, s[{SRD_PF}:{SRD_PF+3}], s{S_T+9} offen offset:{(i%4)*1024}")
    b.label(label)

def w1_share_base(b, sreg, part):
    b(f"  s_mul_i32 s{sreg}, s2, {W1B // 256}")
    if part: b(f"  s_add_u32 s{sreg}, s{sreg}, {part}")

def w1_first_half_base(b, sreg, part):
    b(f"  s_and_b32 s{sreg}, s2, 7")
    b(f"  s_mul_i32 s{sreg}, s{sreg}, {256*7168}")
    b(f"  s_lshr_b32 s{S_T+9}, s2, 3")
    b(f"  s_mul_i32 s{S_T+9}, s{S_T+9}, {4*7168}")
    b(f"  s_add_u32 s{sreg}, s{sreg}, s{S_T+9}")
    if part: b(f"  s_add_u32 s{sreg}, s{sreg}, {part}")

def p1_tables(b):
    M1, M2, TW = L1_M1, L1_M2, L1_TW
    b(f"  v_and_b32 v10, 255, v0            ; e")
    b(f"  v_lshrrev_b32 v11, 8, v0          ; u")
    b(f"  v_bfe_u32 v12, v10, 2, 4          ; lane&15")
    b(f"  v_lshl_add_u32 v12, v11, 4, v12   ; k1")
    b(f"  v_lshrrev_b32 v13, 6, v10         ; g")
    b(f"  v_and_b32 v14, 3, v10")
    b(f"  v_lshlrev_b32 v13, 3, v13")
    b(f"  v_lshl_add_u32 v13, v14, 1, v13   ; a0 = 8g + 2i")
    b(f"  v_mul_u32_u24 v15, v13, v12       ; a0*k1")
    b(f"  v_add_u32 v16, v15, v12           ; (a0+1)*k1")
    sincos(b, 17, 18, 15, 5, 21)
    sincos(b, 19, 20, 16, 5, 21)
    b(f"  v_lshlrev_b32 v22, 2, v10")
    b(f"  v_lshl_add_u32 v22, v11, 11, v22  ; u*2048 + e*4")
    b(f"  v_cvt_pk_bf16_f32 v23, v17, v19")
    b(f"  v_cvt_pk_bf16_f32 v24, -v18, -v20")
    b(f"  ds_write_b32 v22, v23 offset:{M1}")
    b(f"  ds_write_b32 v22, v24 offset:{M1+1024}")
    sincos(b, 17, 18, 15, 10, 21)
    sincos(b, 19, 20, 16, 10, 21)
    b(f"  ds_write_b32 v22, v17 offset:{TW}")
    b(f"  ds_write_b32 v22, v18 offset:{TW+1024}")
    b(f"  ds_write_b32 v22, v19 offset:{TW+4096}")
    b(f"  ds_write_b32 v22, v20 offset:{TW+4096+1024}")
    b(f"  v_bfe_u32 v12, v10, 2, 4          ; k2")
    b(f"  v_mul_u32_u24 v15, v13, v12")
    b(f"  v_add_u32 v16, v15, v12")
    sincos(b, 17, 18, 15, 5, 21)
    sincos(b, 19, 20, 16, 5, 21)
    b(f"  v_lshlrev_b32 v22, 2, v10")
    b(f"  v_cvt_pk_bf16_f32 v23, v17, v19")
    b(f"  v_cvt_pk_bf16_f32 v24, v18, v20")
    b(f"  v_cvt_pk_bf16_f32 v25, -v18, -v20")
    b(f"  ds_write_b32 v22, v23 offset:{M2}")
    b(f"  ds_write_b32 v22, v24 offset:{M2+1024}")
    b(f"  ds_write_b32 v22, v25 offset:{M2+2048}")

def ln_fast(b, X, T, S0, alt):
    b(f"  v_readlane_b32 s{S0}, v{X}, 0              ; pivot")
    b(f"  s_nop 1")
    for i in range(0, 16, 2):
        b(f"  v_pk_add_f32 {vr(X+i,2)}, {vr(X+i,2)}, s[{S0}:{S0+1}] op_sel_hi:[1,0] neg_lo:[0,1] neg_hi:[0,1]")
    b(f"  v_pk_add_f32 {vr(T,2)}, {vr(X,2)}, {vr(X+2,2)}")
    b(f"  v_pk_add_f32 {vr(T+2,2)}, {vr(X+8,2)}, {vr(X+10,2)}")
    b(f"  v_pk_mul_f32 {vr(T+4,2)}, {vr(X,2)}, {vr(X,2)}")
    b(f"  v_pk_add_f32 {vr(T,2)}, {vr(T,2)}, {vr(X+4,2)}")
    b(f"  v_pk_add_f32 {vr(T+2,2)}, {vr(T+2,2)}, {vr(X+12,2)}")
    b(f"  v_pk_fma_f32 {vr(T+4,2)}, {vr(X+2,2)}, {vr(X+2,2)}, {vr(T+4,2)}")
    b(f"  v_pk_add_f32 {vr(T,2)}, {vr(T,2)}, {vr(X+6,2)}")
    b(f"  v_pk_add_f32 {vr(T+2,2)}, {vr(T+2,2)}, {vr(X+14,2)}")
    for i in range(4, 16, 2):
        b(f"  v_pk_fma_f32 {vr(T+4,2)}, {vr(X+i,2)}, {vr(X+i,2)}, {vr(T+4,2)}")
    b(f"  v_add_f32 v{T}, v{T}, v{T+1}")
    b(f"  v_add_f32 v{T+2}, v{T+2}, v{T+3}")
    if not alt: b(f"  v_add_f32 v{T}, v{T}, v{T+2}")
    b(f"  v_add_f32 v{T+4}, v{T+4}, v{T+5}           ; squares")
    if alt:
        wave_reduce(b, [T, T+2, T+4])
        b(f"  v_sub_f32 v{T+1}, v{T}, v{T+2}             ; E - O")
        b(f"  v_add_f32 v{T}, v{T}, v{T+2}")
        b(f"  s_nop 0")
        b(f"  v_readlane_b32 s{S0+2}, v{T}, 63")
        b(f"  v_readlane_b32 s{S0+3}, v{T+4}, 63")
        b(f"  v_readlane_b32 s{S0+4}, v{T+1}, 63")
    else:
        wave_reduce(b, [T, T+4])
        b(f"  s_nop 0")
        b(f"  v_readlane_b32 s{S0+2}, v{T}, 63")
        b(f"  v_readlane_b32 s{S0+3}, v{T+4}, 63")
    b(f"  s_nop 0")
    b(f"  v_mov_b32 v{T}, {hex(f2u(1.0/1024))}")
    b(f"  v_mul_f32 v{T+1}, s{S0+2}, v{T}")
    b(f"  v_mul_f32 v{T+2}, s{S0+3}, v{T}")
    b(f"  v_fma_f32 v{T+2}, -v{T+1}, v{T+1}, v{T+2}  ; variance")
    b(f"  v_max_f32 v{T+2}, 0, v{T+2}")
    b(f"  v_add_f32 v{T+2}, {hex(f2u(1e-5))}, v{T+2}")
    b(f"  v_rsq_f32 v{T+4}, v{T+2}")
    b(f"  s_nop 0")
    b(f"  v_mul_f32 v{T+8}, -v{T+1}, v{T+4}          ; -mean*rstd")
    if alt: b(f"  v_mul_f32 v{T+6}, s{S0+4}, v{T+4}")
    for i in range(0, 16, 2):
        b(f"  v_pk_fma_f32 {vr(X+i,2)}, {vr(X+i,2)}, {vr(T+4,2)}, {vr(T+8,2)} op_sel_hi:[1,0,0]")

def x1_store_addr(b):
    b(f"  v_lshlrev_b32 v5, 15, v9")
    b(f"  v_lshl_add_u32 v5, v8, 2, v5")
    b(f"  s_and_b32 s{S_T+6}, s2, 15")
    b(f"  s_lshl_b32 s{S_T+6}, s{S_T+6}, 4")
    b(f"  s_lshr_b32 s{S_T+7}, s2, 4")
    b(f"  s_add_u32 s{S_T+6}, s{S_T+6}, s{S_T+7}")
    b(f"  s_lshl_b32 s{S_T+6}, s{S_T+6}, 6       ; pos*64")
    b(f"  s_lshl_b32 s{S_T+7}, s{S_W}, 19        ; 4w*131072")
    b(f"  s_add_u32 s44, s{S_T+6}, s{S_T+7}")

def w_early(b):
    srd(b, SRD_C, P_WR, WB)
    srd(b, SRD_D, P_WI, WB)
    b(f"  s_and_b32 s{S_T+2}, s2, 7              ; j1")
    b(f"  v_and_b32 v215, 1, v0                ; half")
    b(f"  v_bfe_u32 v11, v0, 5, 4              ; c")
    b(f"  v_bfe_u32 v12, v0, 1, 4              ; e")
    b(f"  v_lshl_add_u32 v13, v12, 4, v11      ; j2")
    b(f"  v_lshlrev_b32 v13, 3, v13")
    b(f"  v_add_u32 v13, s{S_T+2}, v13         ; j")
    b(f"  v_mul_u32_u24 v214, 1026, v13")
    b(f"  v_lshl_add_u32 v14, v215, 4, v214")
    b(f"  s_lshr_b32 s{S_T+3}, s2, 3           ; kb")
    b(f"  s_lshl_b32 s{S_T+3}, s{S_T+3}, 5")
    b(f"  buffer_load_dwordx4 {vr(WE,4)}, v14, s[{SRD_C}:{SRD_C+3}], s{S_T+3} offen{XF()}")
    b(f"  buffer_load_dwordx4 {vr(WE+4,4)}, v14, s[{SRD_D}:{SRD_D+3}], s{S_T+3} offen{XF()}")

def p1(b):
    srd(b, SRD_A, P_X, 4 << 20)
    srd(b, SRD_B, P_WS, 4 << 20, WS_X1)
    b(f"  s_lshl_b32 s{S_T}, s{S_W}, 8")
    b(f"  s_add_u32 s{S_T}, s{S_T}, s2          ; s")
    b(f"  s_lshl_b32 s{S_T+1}, s{S_T}, 11")
    b(f"  v_lshlrev_b32 v1, 9, v9")
    b(f"  v_lshl_add_u32 v1, v8, 2, v1")
    XD = 32
    for i in range(8):
        b(f"  buffer_load_dword v{XD+i}, v1, s[{SRD_A}:{SRD_A+3}], s{S_T+1} offen offset:{64*i}{XF()}")
    b(f"  s_cmp_ge_u32 s2, 16")
    b(f"  s_cbranch_scc1 p1_noreset")
    b(f"  s_cmp_lg_u32 s{S_W}, 0")
    b(f"  s_cbranch_scc1 p1_noreset")
    b(f"  s_lshl_b32 s{S_T+2}, s2, 8")
    b(f"  v_lshlrev_b32 v2, 12, v7")
    b(f"  v_add_u32 v2, s{S_T+2}, v2")
    b(f"  v_mov_b32 v3, 0")
    b(f"  s_mov_b64 s[48:49], exec")
    b(f"  s_mov_b64 exec, 15")
    b(f"  buffer_store_dword v3, v2, s[{SRD_CNT}:{SRD_CNT+3}], 0 offen sc1")
    b(f"  s_mov_b64 exec, s[48:49]")
    b.label("p1_noreset")
    NCLR = 0
    NWE = 0
    x1_store_addr(b)
    if SENT():
        b(f"  v_mov_b32 v60, -1")
        b(f"  v_mov_b32 v61, -1")
        b(f"  v_mov_b32 v62, -1")
        b(f"  v_mov_b32 v63, -1")
        b(f"  v_bfe_u32 v2, v7, 2, 3              ; j1")
        b(f"  v_lshrrev_b32 v3, 5, v7             ; i (0,1)")
        b(f"  v_lshlrev_b32 v2, 14, v2")
        b(f"  v_lshl_add_u32 v2, v3, 17, v2")
        b(f"  v_and_b32 v3, 3, v7")
        b(f"  v_lshl_add_u32 v2, v3, 4, v2")
        b(f"  buffer_store_dwordx4 v[60:63], v2, s[{SRD_B}:{SRD_B+3}], s44 offen{SF}")
        b(f"  s_add_u32 s{S_T+7}, s44, {2*131072}")
        b(f"  buffer_store_dwordx4 v[60:63], v2, s[{SRD_B}:{SRD_B+3}], s{S_T+7} offen{SF}")
        NCLR = 2
    if "wearly" in OPT:
        w_early(b); NCLR += 2
    npf = 0
    p1_tables(b)
    GM = 30
    gmat(b, GM, 2, False, 10)
    b(f"  s_waitcnt lgkmcnt(0)")
    stamp(b, "p1 tables done")
    b(f"  s_barrier")
    npf = 0
    if "nopf" not in OPT:
        b(f"  s_mul_i32 s{S_T+8}, s2, 8208")
        if "ntx" not in OPT and "wpf" in OPT:
            pf_wide(b, P_WR, WB, S_T + 8, 3, 0, 3, "pf_p1a")
            pf_wide(b, P_WI, WB, S_T + 8, 3, 0, 3, "pf_p1b")
        if "ntw1" not in OPT and PFN[0]:
            w1_share_base(b, S_T + 8, 0)
            pf_wide(b, P_W1, W1B, S_T + 8, PFN[0], 4, 8, "pf_p1c")
    M1, M2, TW = 96, 112, 128
    b(f"  v_lshlrev_b32 v2, 4, v7")
    for i in range(4): b(f"  ds_read_b128 {vr(M1+4*i,4)}, v2 offset:{L1_M1+1024*i}")
    for i in range(3): b(f"  ds_read_b128 {vr(M2+4*i,4)}, v2 offset:{L1_M2+1024*i}")
    for i in range(8): b(f"  ds_read_b128 {vr(TW+4*i,4)}, v2 offset:{L1_TW+1024*i}")
    X = 40
    nW = 0 if ("nopf" in OPT or "ntx" in OPT or "wpf" not in OPT) else 6
    n1 = 0 if ("nopf" in OPT or "ntw1" in OPT) else PFN[0]
    b(f"  s_cmp_eq_u32 s{S_W}, 3")
    b(f"  s_cbranch_scc1 p1_xw0")
    b(f"  s_cmp_ge_u32 s{S_W}, 4")
    b(f"  s_cbranch_scc1 p1_xw4")
    b(f"  s_waitcnt vmcnt({NCLR + nW})")
    b(f"  s_branch p1_xwd")
    b.label("p1_xw4")
    b(f"  s_waitcnt vmcnt({NCLR + n1})")
    b(f"  s_branch p1_xwd")
    b.label("p1_xw0")
    b(f"  s_waitcnt vmcnt({NCLR})")
    b.label("p1_xwd")
    stamp(b, "p1 x landed")
    if "wearly" in OPT:
        b(f"  s_cmp_ge_u32 s2, 8")
        b(f"  s_cbranch_scc1 p1_nonyq")
        b(f"  buffer_load_ushort v212, v214, s[{SRD_C}:{SRD_C+3}], 0 offen offset:1024")
        b(f"  buffer_load_ushort v213, v214, s[{SRD_D}:{SRD_D+3}], 0 offen offset:1024")
        b.label("p1_nonyq")
    srd(b, SRD_PF, P_DBG, 256)
    b(f"  s_and_b32 s{S_T+8}, s2, 15")
    b(f"  s_lshl_b32 s{S_T+9}, s{S_T+8}, 2")
    b(f"  s_add_u32 s{S_T+9}, s{S_T+9}, 64")
    b(f"  v_mov_b32 v25, s{S_T+9}")
    b(f"  v_lshlrev_b32 v26, 2, v8")
    b(f"  v_add_u32 v26, 64, v26")
    b(f"  s_cmp_ge_u32 s2, 16")
    b(f"  s_cbranch_scc1 p1_noflag")
    b(f"  s_cmp_lg_u32 s{S_W}, 0")
    b(f"  s_cbranch_scc1 p1_noflag")
    b(f"  v_mov_b32 v3, 1")
    b(f"  s_mov_b64 s[48:49], exec")
    b(f"  s_mov_b64 exec, 1")
    b(f"  buffer_store_dword v3, v25, s[{SRD_PF}:{SRD_PF+3}], 0 offen sc1")
    b(f"  s_mov_b64 exec, s[48:49]")
    b.label("p1_noflag")
    for i in range(8):
        b(f"  v_lshlrev_b32 v{X+i}, 16, v{XD+i}")
        b(f"  v_and_b32 v{X+8+i}, 0xffff0000, v{XD+i}")
    T = 56
    ln_fast(b, X, T, S_T + 2, True)
    stamp(b, "p1 ln done")
    if SENT():
        b(f"  buffer_load_dword v27, v26, s[{SRD_PF}:{SRD_PF+3}], 0 offen sc1")
        b(f"  s_and_b32 s{S_T+8}, s2, 15")
        arrive(b, 0, S_T + 8, first=True, label="x1")
        stamp(b, "p1 arrived")
        srd(b, SRD_C, P_WS, 4 << 20, WS_X2)
        for i in range(4): b(f"  v_mov_b32 v{200+i}, -1")
        b(f"  v_lshlrev_b32 v2, 4, v0")
        b(f"  s_lshl_b32 s{S_T+7}, s2, 14")
        b(f"  buffer_store_dwordx4 v[200:203], v2, s[{SRD_C}:{SRD_C+3}], s{S_T+7} offen{SF}")
        b(f"  s_add_u32 s{S_T+7}, s{S_T+7}, 8192")
        b(f"  buffer_store_dwordx4 v[200:203], v2, s[{SRD_C}:{SRD_C+3}], s{S_T+7} offen{SF}")
    A = 64
    for be in range(2):
        for i in range(4):
            b(f"  v_cvt_pk_bf16_f32 v{A+4*be+i}, v{X+8*be+2*i}, v{X+8*be+2*i+1}")
    b(f"  s_waitcnt lgkmcnt(0)")
    b(f"  v_readlane_b32 s{S_T+5}, v{T+6}, 0")
    Y = 160
    for be in range(2):
        for u in range(2):
            for c in range(2):
                d = Y + ((be * 2 + u) * 2 + c) * 4
                b(f"  {MF32} {vr(d,4)}, {vr(A+4*be,4)}, {vr(M1+4*(2*u+c),4)}, 0")
    b(f"  s_nop 4")
    Bp = 72; W = 32; O = 40
    for u in range(2):
        for be in range(2):
            y = Y + ((be * 2 + u) * 2) * 4
            tw = TW + (be * 4 + u * 2) * 4
            cmul_pk(b, O + 8 * be, O + 8 * be + 4, y, y + 4, tw, tw + 4, W, False)
        for r in range(4):
            b(f"  v_cvt_pk_bf16_f32 v{Bp+8*u+r}, v{O+r}, v{O+8+r}")
            b(f"  v_cvt_pk_bf16_f32 v{Bp+8*u+4+r}, v{O+4+r}, v{O+12+r}")
    XO = 160
    b(f"  s_nop 1")
    for u in range(2):
        re, im = XO + 8 * u, XO + 8 * u + 4
        b(f"  {MF32} {vr(re,4)}, {vr(M2,4)}, {vr(Bp+8*u,4)}, 0")
        b(f"  {MF32} {vr(im,4)}, {vr(M2,4)}, {vr(Bp+8*u+4,4)}, 0")
        b(f"  {MF32} {vr(re,4)}, {vr(M2+4,4)}, {vr(Bp+8*u+4,4)}, {vr(re,4)}")
        b(f"  {MF32} {vr(im,4)}, {vr(M2+8,4)}, {vr(Bp+8*u,4)}, {vr(im,4)}")
    b(f"  s_and_b32 s{S_T+6}, s{S_W}, 1")
    b(f"  s_lshl_b32 s{S_T+6}, s{S_T+6}, 8")
    b(f"  s_lshr_b32 s{S_T+7}, s{S_W}, 1")
    b(f"  s_lshl_b32 s{S_T+7}, s{S_T+7}, 6")
    b(f"  s_add_u32 s{S_T+6}, s{S_T+6}, s{S_T+7}")
    b(f"  v_lshlrev_b32 v3, 12, v9")
    b(f"  v_lshl_add_u32 v3, v8, 2, v3")
    b(f"  v_add_u32 v3, s{S_T+6}, v3")
    b(f"  s_nop 2")
    b(f"  v_writelane_b32 v{XO}, s{S_T+5}, 0")
    b(f"  v_writelane_b32 v{XO+4}, 0, 0")
    PK = 32
    for u in range(2):
        for r in range(4):
            b(f"  v_cvt_pk_bf16_f32 v{PK+4*u+r}, v{XO+8*u+r}, v{XO+8*u+4+r}")
    for u in range(2):
        for r in range(4):
            b(f"  ds_write_b32 v3, v{PK+4*u+r} offset:{L1_EX + u*512 + r*1024}")
    if SENT(): b(f"  s_waitcnt lgkmcnt(0) vmcnt(0)")
    else:
        b(f"  buffer_load_dword v27, v26, s[{SRD_PF}:{SRD_PF+3}], 0 offen sc1")
        b(f"  s_waitcnt lgkmcnt(0)")
    stamp(b, "p1 fft done")
    b(f"  s_barrier")
    b(f"  v_lshlrev_b32 v4, 6, v9")
    b(f"  v_lshl_add_u32 v4, v8, 2, v4")
    b(f"  s_lshl_b32 s{S_T+6}, s{S_W}, 11")
    b(f"  s_add_u32 s{S_T+6}, s{S_T+6}, {L1_EX}")
    b(f"  v_add_u32 v4, s{S_T+6}, v4")
    Bd = 40
    for i in range(4):
        b(f"  ds_read2st64_b32 {vr(Bd+2*i,2)}, v4 offset0:{2*i} offset1:{2*i+1}")
    D = 48
    for i in range(4):
        b(f"  s_waitcnt lgkmcnt({3-i})")
        b(f"  {MF16} {vr(D+4*i,4)}, {vr(GM,2)}, {vr(Bd+2*i,2)}, 0")
    b(f"  s_nop 4")
    for i in range(4):
        b(f"  v_cvt_pk_bf16_f32 v{64+2*i}, v{D+4*i}, v{D+4*i+1}")
        b(f"  v_cvt_pk_bf16_f32 v{65+2*i}, v{D+4*i+2}, v{D+4*i+3}")
        b(f"  v_min_u32 v{64+2*i}, 0xfffffffe, v{64+2*i}")
        b(f"  v_min_u32 v{65+2*i}, 0xfffffffe, v{65+2*i}")
        for e in range(2):
            b(f"  s_add_u32 s{S_T+7}, s44, {i*131072 + e*16384}")
            b(f"  buffer_store_dword v{64+2*i+e}, v5, s[{SRD_B}:{SRD_B+3}], s{S_T+7} offen{SF}")
    stamp(b, "p1 stores issued")
    if not SENT():
        b(f"  s_and_b32 s{S_T+8}, s2, 15")
        arrive(b, 0, S_T + 8, first=True, label="x1")
        stamp(b, "p1 arrived")

XL2, WL2 = 32, 40
WE = 204
TC2, TS2 = 64, 68
def p2_setup(b):
    srd(b, SRD_A, P_WS, 4 << 20, WS_X1)
    srd(b, SRD_B, P_WS, 4 << 20, WS_X2)
    srd(b, SRD_C, P_WR, WB)
    srd(b, SRD_D, P_WI, WB)
    b(f"  s_and_b32 s{S_T}, s2, 7              ; j1")
    b(f"  s_lshr_b32 s{S_T+1}, s2, 3           ; kb")
    b(f"  v_and_b32 v10, 1, v0                 ; half")
    b(f"  v_bfe_u32 v11, v0, 5, 4              ; c")
    b(f"  v_bfe_u32 v12, v0, 1, 4              ; e")
    b(f"  v_lshl_add_u32 v13, v12, 4, v11      ; j2")
    b(f"  v_lshlrev_b32 v13, 3, v13")
    b(f"  v_add_u32 v13, s{S_T}, v13           ; j")
    b(f"  v_mul_u32_u24 v13, 1026, v13")
    b(f"  v_lshlrev_b32 v14, 4, v10")
    b(f"  v_add_u32 v14, v13, v14")
    b(f"  s_lshl_b32 s{S_T+3}, s{S_T+1}, 5")
    if "wearly" in OPT:
        b(f"  s_cmp_lg_u32 s{S_T+1}, 0")
        b(f"  s_cbranch_scc1 p2_nonyq")
        b(f"  s_waitcnt vmcnt(0)")
        b(f"  v_cmp_eq_u32 vcc, 0, v215")
        b(f"  v_and_b32 v50, 0xffff0000, v{WE}")
        b(f"  v_or_b32 v50, v50, v212")
        b(f"  v_cndmask_b32 v{WE}, v{WE}, v50, vcc")
        b(f"  v_and_b32 v50, 0xffff0000, v{WE+4}")
        b(f"  v_or_b32 v50, v50, v213")
        b(f"  v_cndmask_b32 v{WE+4}, v{WE+4}, v50, vcc")
        b.label("p2_nonyq")
    else:
        WL = WL2
        b(f"  v_mov_b32 v24, v14")
        b(f"  v_mov_b32 v25, v13")
        b(f"  v_mov_b32 v26, v10                   ; half")
        b(f"  s_mov_b32 s45, s{S_T+3}              ; kb*32")
        WL = WL2
        b(f"  buffer_load_dwordx4 {vr(WL,4)}, v24, s[{SRD_C}:{SRD_C+3}], s45 offen{XF()}")
        b(f"  buffer_load_dwordx4 {vr(WL+4,4)}, v24, s[{SRD_D}:{SRD_D+3}], s45 offen{XF()}")
        b(f"  s_cmp_lg_u32 s{S_T+1}, 0")
        b(f"  s_cbranch_scc1 p2_nonyq")
        b(f"  buffer_load_ushort v48, v25, s[{SRD_C}:{SRD_C+3}], 0 offen offset:1024")
        b(f"  buffer_load_ushort v49, v25, s[{SRD_D}:{SRD_D+3}], 0 offen offset:1024")
        b(f"  s_waitcnt vmcnt(0)")
        b(f"  v_cmp_eq_u32 vcc, 0, v26")
        b(f"  v_and_b32 v50, 0xffff0000, v{WL}")
        b(f"  v_or_b32 v50, v50, v48")
        b(f"  v_cndmask_b32 v{WL}, v{WL}, v50, vcc")
        b(f"  v_and_b32 v50, 0xffff0000, v{WL+4}")
        b(f"  v_or_b32 v50, v50, v49")
        b(f"  v_cndmask_b32 v{WL+4}, v{WL+4}, v50, vcc")
        b.label("p2_nonyq")
    npf = 0
    b(f"  v_and_b32 v15, 255, v0")
    b(f"  v_bfe_u32 v16, v15, 2, 4             ; x")
    b(f"  v_lshrrev_b32 v17, 6, v15            ; g")
    b(f"  v_and_b32 v18, 3, v15")
    b(f"  v_lshl_add_u32 v17, v17, 2, v18      ; 4g+i")
    b(f"  v_mul_u32_u24 v17, v17, v16")
    sincos(b, 18, 19, 17, 4, 20)
    b(f"  v_cmp_gt_u32 vcc, 256, v0            ; matrix 0 ?")
    b(f"  v_xor_b32 v20, 0x80000000, v19       ; -sin")
    b(f"  s_nop 0")
    b(f"  v_cndmask_b32 v21, v20, v18, vcc")
    b(f"  v_cndmask_b32 v22, v18, v19, vcc")
    b(f"  v_cvt_pk_bf16_f32 v21, v21, v22")
    b(f"  v_lshlrev_b32 v22, 2, v0")
    b(f"  ds_write_b32 v22, v21 offset:{L2_F}")
    b(f"  v_lshlrev_b32 v16, 2, v9")
    for r in range(4):
        b(f"  v_add_u32 v17, {r}, v16")
        b(f"  v_mul_u32_u24 v17, v17, v8")
        sincos(b, TC2 + r, TS2 + r, 17, 8, 20)
    b(f"  v_and_b32 v16, 3, v0                 ; i")
    b(f"  v_mul_u32_u24 v16, {4*1040}, v16")
    b(f"  v_lshrrev_b32 v17, 6, v0             ; b (0..7)")
    b(f"  v_lshl_add_u32 v16, v17, 6, v16")
    b(f"  v_bfe_u32 v17, v0, 2, 2              ; a&3")
    b(f"  v_lshl_add_u32 v16, v17, 2, v16")
    b(f"  v_bfe_u32 v17, v0, 4, 2              ; a>>2")
    b(f"  v_lshl_add_u32 v21, v17, 4, v16      ; first")
    b(f"  v_xor_b32 v17, 2, v17")
    b(f"  v_lshl_add_u32 v22, v17, 4, v16")
    b(f"  v_add_u32 v22, 512, v22              ; second (b+8)")
    b(f"  v_mul_u32_u24 v16, {4*1040}, v10")
    b(f"  v_lshl_add_u32 v16, v11, 6, v16")
    b(f"  v_and_b32 v17, 3, v12")
    b(f"  v_lshl_add_u32 v16, v17, 2, v16")
    b(f"  v_lshrrev_b32 v17, 2, v12")
    b(f"  v_lshrrev_b32 v18, 3, v11            ; c>>3")
    b(f"  v_lshlrev_b32 v18, 1, v18")
    b(f"  v_xor_b32 v17, v17, v18")
    b(f"  v_lshl_add_u32 v23, v17, 4, v16")
    b(f"  v_lshrrev_b32 v16, 3, v8")
    b(f"  v_lshlrev_b32 v16, 1, v16")
    b(f"  v_xor_b32 v16, v16, v9")
    b(f"  v_lshlrev_b32 v16, 4, v16")
    b(f"  v_lshl_add_u32 v16, v8, 6, v16")
    b(f"  s_mul_i32 s{S_T+4}, s{S_W}, {2*1040}")
    b(f"  s_mul_i32 s{S_T+5}, s{S_W}, 1040")
    b(f"  v_add_u32 v5, s{S_T+4}, v16")
    b(f"  v_add_u32 v6, s{S_T+5}, v16")
    b(f"  v_lshlrev_b32 v1, 4, v0")
    b(f"  s_lshl_b32 s{S_T+2}, s2, 14")
    b(f"  s_add_u32 s{S_T+3}, s{S_T+2}, 8192")
    b(f"  s_waitcnt lgkmcnt(0)")

def sentinel_check(b, R0, pre, n=8):
    b(f"  v_max3_u32 v16, v{R0}, v{R0+1}, v{R0+2}")
    b(f"  v_max3_u32 v17, v{R0+3}, v{R0+4}, v{R0+5}")
    b(f"  v_max3_u32 v16, v16, v{R0+6}, v{R0+7}")
    for i in range(8, n, 2): b(f"  v_max3_u32 v17, v17, v{R0+i}, v{R0+i+1}")
    b(f"  v_max_u32 v16, v16, v17")
    b(f"  v_cmp_eq_u32 vcc, -1, v16")
    b(f"  s_sub_u32 s11, s11, 1")
    b(f"  s_cmp_eq_u32 s11, 0")
    b(f"  s_cbranch_scc1 {pre}_got")
    b(f"  s_cmp_lg_u64 vcc, 0")
    b(f"  s_cbranch_scc1 {pre}_poll")
    b.label(f"{pre}_got")

def p2_main(b):
    XL = XL2; TC, TS = TC2, TS2
    if SENT():
        b(f"  s_mov_b32 s11, 200000")
        b.label("p2_poll")
    b(f"  buffer_load_dwordx4 {vr(XL,4)}, v1, s[{SRD_A}:{SRD_A+3}], s{S_T+2} offen sc1")
    b(f"  buffer_load_dwordx4 {vr(XL+4,4)}, v1, s[{SRD_A}:{SRD_A+3}], s{S_T+3} offen sc1")
    b(f"  s_waitcnt vmcnt(0)")
    if SENT(): sentinel_check(b, XL, "p2")
    WL = WE if "wearly" in OPT else WL2
    b(f"  v_lshlrev_b32 v17, 4, v7")
    FR, FI = 72, 76
    AX = 48; WR, WI = 152, 156
    b(f"  ds_read_b128 {vr(FR,4)}, v17 offset:{L2_F}")
    b(f"  ds_read_b128 {vr(FI,4)}, v17 offset:{L2_F+1024}")
    Dq = [80, 88]; Oq = [96, 104]; Tq = [112, 120]; Pq = [128, 132]; Wq = [136, 144]
    stamp(b, "p2 x landed")
    for j in range(4):
        b(f"  ds_write_b32 v21, v{XL+j} offset:{L2_X + j*1040}")
        b(f"  ds_write_b32 v22, v{XL+4+j} offset:{L2_X + j*1040}")
    for j in range(4):
        b(f"  ds_write_b32 v23, v{WL+j} offset:{L2_W + j*1040}")
        b(f"  ds_write_b32 v23, v{WL+4+j} offset:{L2_W + 8*1040 + j*1040}")
    if "nopf" not in OPT and "ntw1" not in OPT and PFN[1]:
        w1_share_base(b, S_T + 8, PFN[0] * 4096)
        pf_wide(b, P_W1, W1B, S_T + 8, PFN[1], 4, 8, "pf_p2a")
    b(f"  s_waitcnt lgkmcnt(0)")
    b(f"  s_barrier")
    b(f"  ds_read_b128 {vr(AX,4)}, v5 offset:{L2_X}")
    b(f"  ds_read_b128 {vr(AX+4,4)}, v5 offset:{L2_X+1040}")
    b(f"  ds_read_b128 {vr(WR,4)}, v6 offset:{L2_W}")
    b(f"  ds_read_b128 {vr(WI,4)}, v6 offset:{L2_W+8*1040}")
    def stage(form, src):
        for k in range(2):
            d = Dq[k]
            if form == 'A':
                b(f"  {MF32} {vr(d,4)}, {vr(src[k],4)}, {vr(FR,4)}, 0")
                b(f"  {MF32} {vr(d+4,4)}, {vr(src[k],4)}, {vr(FI,4)}, 0")
            else:
                b(f"  {MF32} {vr(d,4)}, {vr(FR,4)}, {vr(src[k],4)}, 0")
                b(f"  {MF32} {vr(d+4,4)}, {vr(FI,4)}, {vr(src[k],4)}, 0")
    def twiddle_pack():
        for k in range(2):
            cmul_pk(b, Oq[k], Oq[k] + 4, Dq[k], Dq[k] + 4, TC, TS, Tq[k], False)
        for k in range(2):
            for r in range(4):
                b(f"  v_cvt_pk_bf16_f32 v{Pq[k]+r}, v{Oq[k]+r}, v{Oq[k]+4+r}")
        b(f"  s_nop 1")
    b(f"  s_waitcnt lgkmcnt(2)")
    stage('A', [AX, AX + 4])
    b(f"  s_waitcnt lgkmcnt(0)")
    for r in range(4):
        b(f"  v_lshlrev_b32 v{Wq[0]+r}, 16, v{WR+r}")
        b(f"  v_lshlrev_b32 v{Wq[0]+4+r}, 16, v{WI+r}")
        b(f"  v_and_b32 v{Wq[1]+r}, 0xffff0000, v{WR+r}")
        b(f"  v_and_b32 v{Wq[1]+4+r}, 0xffff0000, v{WI+r}")
    twiddle_pack()
    stage('B', Pq)
    b(f"  s_nop 5")
    for k in range(2):
        cmul_pk(b, Oq[k], Oq[k] + 4, Dq[k], Dq[k] + 4, Wq[k], Wq[k] + 4, Tq[k], True)
    for k in range(2):
        for r in range(4):
            b(f"  v_cvt_pk_bf16_f32 v{Pq[k]+r}, v{Oq[k]+r}, -v{Oq[k]+4+r}")
    b(f"  s_nop 1")
    stage('A', Pq)
    b(f"  s_nop 5")
    twiddle_pack()
    stage('B', Pq)
    b(f"  s_nop 5")
    for k in range(2):
        for r in range(4):
            b(f"  v_cvt_pk_bf16_f32 v{Pq[k]+r}, v{Dq[k]+r}, -v{Dq[k]+4+r}")
    b(f"  ds_write_b128 v5, {vr(Pq[0],4)} offset:{L2_X}")
    b(f"  ds_write_b128 v5, {vr(Pq[1],4)} offset:{L2_X+1040}")
    b(f"  s_waitcnt lgkmcnt(0)")
    b(f"  s_barrier")
    for j in range(4):
        b(f"  ds_read_b32 v{XL+j}, v21 offset:{L2_X + j*1040}")
        b(f"  ds_read_b32 v{XL+4+j}, v22 offset:{L2_X + j*1040}")
    b(f"  v_bfe_u32 v16, v0, 2, 4              ; a")
    b(f"  v_lshrrev_b32 v17, 6, v0             ; b")
    b(f"  v_lshl_add_u32 v16, v16, 4, v17      ; s1")
    b(f"  v_lshlrev_b32 v16, 14, v16")
    b(f"  v_and_b32 v17, 3, v0")
    b(f"  v_lshl_add_u32 v16, v17, 4, v16")
    b(f"  s_lshl_b32 s{S_T+4}, s{S_T}, 11")
    b(f"  s_lshl_b32 s{S_T+5}, s{S_T+1}, 6")
    b(f"  s_add_u32 s{S_T+4}, s{S_T+4}, s{S_T+5}")
    b(f"  s_add_u32 s{S_T+5}, s{S_T+4}, {8*16384}")
    b(f"  s_waitcnt lgkmcnt(0)")
    for j in range(8): b(f"  v_min_u32 v{XL+j}, 0xfffffffe, v{XL+j}")
    b(f"  buffer_store_dwordx4 {vr(XL,4)}, v16, s[{SRD_B}:{SRD_B+3}], s{S_T+4} offen{SF}")
    b(f"  buffer_store_dwordx4 {vr(XL+4,4)}, v16, s[{SRD_B}:{SRD_B+3}], s{S_T+5} offen{SF}")
    stamp(b, "p2 stores issued")
    if not SENT():
        b(f"  s_and_b32 s{S_T+8}, s2, 15")
        arrive(b, 1, S_T + 8, label="x2")

V_LO = 224
S_G1A = 60
def g1_ids(b):
    b(f"  s_lshr_b32 s{S_T}, s2, 3                 ; i")
    b(f"  s_cmp_lt_u32 s{S_T}, 28")
    b(f"  s_cselect_b32 s62, 1, 0")
    b(f"  s_mul_i32 s{S_T+1}, s{S_T}, 37")
    b(f"  s_lshr_b32 s{S_T+1}, s{S_T+1}, 8         ; i/7")
    b(f"  s_mul_i32 s{S_T+2}, s{S_T+1}, 7")
    b(f"  s_sub_u32 s{S_T+2}, s{S_T}, s{S_T+2}     ; i%7")
    b(f"  s_and_b32 s{S_T+3}, s2, 7")
    b(f"  s_lshr_b32 s{S_T+4}, s{S_T+3}, 1")
    b(f"  s_mul_i32 s{S_T+4}, s{S_T+4}, 7")
    b(f"  s_add_u32 s60, s{S_T+4}, s{S_T+2}        ; ft")
    b(f"  s_and_b32 s{S_T+3}, s{S_T+3}, 1")
    b(f"  s_lshl_b32 s{S_T+3}, s{S_T+3}, 2")
    b(f"  s_add_u32 s61, s{S_T+3}, s{S_T+1}        ; dt")

S_SOFF, S_M0, S_N = 4, 5, 6
def loader_issue(b, voff, fl=""):
    for i in range(4):
        b(f"  s_add_u32 m0, s{S_M0}, {4096*i}")
        b(f"  s_nop 0")
        b(f"  buffer_load_dwordx4 v{voff+i}, s[{SRD_T}:{SRD_T+3}], s{S_SOFF} offen{fl} lds")
    b(f"  s_add_u32 s{S_SOFF}, s{S_SOFF}, s9")
    b(f"  s_add_u32 s{S_M0}, s{S_M0}, {STAGE}")
    b(f"  s_cmp_ge_u32 s{S_M0}, s{S_N+1}")
    b(f"  s_cselect_b32 s{S_N+2}, {R*STAGE}, 0")
    b(f"  s_sub_u32 s{S_M0}, s{S_M0}, s{S_N+2}")

def loader_init(b, step_bytes):
    b(f"  s_sub_u32 s50, s{S_W}, 4")
    b(f"  s_lshl_b32 s{S_M0}, s50, 10")
    b(f"  s_add_u32 s{S_N+1}, s{S_M0}, {R*STAGE}")
    b(f"  s_mov_b32 s{S_SOFF}, 0")
    b(f"  s_mov_b32 s9, {step_bytes}")

def g1_loader_addr(b):
    b(f"  s_sub_u32 s50, s{S_W}, 4      ; w'")
    for i in range(4):
        b(f"  s_lshl_b32 s49, s50, 2")
        b(f"  s_add_u32 s49, s49, {16*i}")
        b(f"  v_lshrrev_b32 v14, 4, v7")
        b(f"  v_add_u32 v14, s49, v14                 ; row 0..63")
        b(f"  v_and_b32 v15, 3, v14")
        b(f"  v_lshlrev_b32 v15, 2, v15")
        b(f"  v_and_b32 v16, 15, v7")
        b(f"  v_xor_b32 v16, v16, v15                 ; q")
        b(f"  v_lshrrev_b32 v17, 3, v14")
        b(f"  v_and_b32 v18, 7, v14")
        b(f"  v_lshl_add_u32 v17, v18, 8, v17         ; s")
        b(f"  v_mul_u32_u24 v17, 7168, v17")
        b(f"  v_lshl_add_u32 v17, v16, 4, v17")
        b(f"  s_lshl_b32 s49, s60, 8")
        b(f"  v_add_u32 v{V_LO+i}, s49, v17")

def g2_ids(b):
    if SK():
        b(f"  s_lshr_b32 s{S_T+1}, s2, 3")
        b(f"  s_lshr_b32 s{S_TILE_A}, s{S_T+1}, 2          ; dt")
        b(f"  s_lshr_b32 s{S_T}, s2, 1")
        b(f"  s_and_b32 s{S_T}, s{S_T}, 3")
        b(f"  s_lshl_b32 s{S_T}, s{S_T}, 2")
        b(f"  s_and_b32 s{S_T+1}, s{S_T+1}, 3")
        b(f"  s_add_u32 s{S_TILE_B}, s{S_T}, s{S_T+1}      ; st2")
        b(f"  s_and_b32 s19, s2, 1                       ; kh")
        return
    b(f"  s_and_b32 s{S_T}, s2, 1")
    b(f"  s_lshl_b32 s{S_T}, s{S_T}, 2")
    b(f"  s_lshr_b32 s{S_T+1}, s2, 3")
    b(f"  s_and_b32 s{S_T+2}, s{S_T+1}, 3")
    b(f"  s_add_u32 s{S_TILE_A}, s{S_T}, s{S_T+2}     ; dt")
    b(f"  s_lshr_b32 s{S_T}, s2, 1")
    b(f"  s_and_b32 s{S_T}, s{S_T}, 3")
    b(f"  s_lshl_b32 s{S_T}, s{S_T}, 3")
    b(f"  s_lshr_b32 s{S_T+1}, s{S_T+1}, 2")
    b(f"  s_add_u32 s{S_TILE_B}, s{S_T}, s{S_T+1}     ; st")

def g2_loader_addr(b):
    if SK():
        b(f"  s_sub_u32 s50, s{S_W}, 4")
        for i in range(4):
            b(f"  s_lshl_b32 s49, s50, 2")
            b(f"  s_add_u32 s49, s49, {16*i}")
            b(f"  v_lshrrev_b32 v14, 4, v7")
            b(f"  v_add_u32 v14, s49, v14                 ; row 0..63")
            b(f"  v_and_b32 v15, 3, v14")
            b(f"  v_lshlrev_b32 v15, 2, v15")
            b(f"  v_and_b32 v16, 15, v7")
            b(f"  v_xor_b32 v16, v16, v15                 ; q")
            b(f"  v_lshlrev_b32 v14, 12, v14              ; row*4096")
            b(f"  v_lshl_add_u32 v14, v16, 4, v14")
            b(f"  s_lshl_b32 s49, s{S_TILE_B}, 8          ; s0*2")
            b(f"  s_mul_i32 s48, s19, {1792*4096}         ; k half")
            b(f"  s_add_u32 s49, s49, s48")
            b(f"  v_add_u32 v{V_LO+i}, s49, v14")
        return
    b(f"  s_sub_u32 s50, s{S_W}, 4")
    for i in range(4):
        b(f"  s_lshl_b32 s49, s50, 3")
        b(f"  s_add_u32 s49, s49, {32*i}")
        b(f"  v_lshrrev_b32 v14, 3, v7")
        b(f"  v_add_u32 v14, s49, v14                 ; row")
        b(f"  v_bfe_u32 v15, v14, 1, 1")
        b(f"  v_lshlrev_b32 v15, 2, v15")
        b(f"  v_and_b32 v16, 7, v7")
        b(f"  v_xor_b32 v16, v16, v15                 ; q")
        b(f"  v_lshlrev_b32 v14, 12, v14              ; row*4096")
        b(f"  v_lshl_add_u32 v14, v16, 4, v14")
        b(f"  s_lshl_b32 s49, s{S_TILE_B}, 7          ; s0*2")
        b(f"  v_add_u32 v{V_LO+i}, s49, v14")

def loader_loop(b, NS, pre, fl=""):
    nmain = NS - (R - 2)
    b(f"  s_mov_b32 s{S_N}, {nmain}")
    b.label(f"{pre}_lloop")
    b(f"  s_waitcnt vmcnt({(R-3)*4})")
    b("  s_barrier")
    loader_issue(b, V_LO, fl)
    b(f"  s_sub_u32 s{S_N}, s{S_N}, 1")
    b(f"  s_cmp_lg_u32 s{S_N}, 0")
    b(f"  s_cbranch_scc1 {pre}_lloop")
    for i in range(R - 2):
        b(f"  s_waitcnt vmcnt({(R-3-i)*4})")
        b("  s_barrier")

BD3 = 32; XR3 = 192; GM3 = 30
def p3_tables(b):
    b(f"  v_and_b32 v10, 255, v0            ; e")
    b(f"  v_lshrrev_b32 v11, 8, v0")
    b(f"  v_bfe_u32 v12, v10, 2, 4          ; n = lane&15")
    b(f"  v_lshrrev_b32 v13, 6, v10         ; g")
    b(f"  v_and_b32 v14, 3, v10             ; r")
    b(f"  v_lshl_add_u32 v13, v13, 2, v14   ; 4g + r")
    b(f"  v_lshrrev_b32 v15, 2, v12")
    b(f"  v_lshlrev_b32 v15, 3, v15")
    b(f"  v_and_b32 v16, 3, v12")
    b(f"  v_add_u32 v15, v15, v16           ; b(n,0)")
    b(f"  v_lshl_add_u32 v16, v11, 2, v15   ; b(n, sel)")
    b(f"  v_mul_u32_u24 v17, v16, v13")
    sincos(b, 18, 19, 17, 5, 20)
    b(f"  v_lshlrev_b32 v22, 2, v10")
    b(f"  v_lshl_add_u32 v22, v11, 11, v22  ; sel*2048 + e*4")
    b(f"  v_add_u32 v22, {L3_M3}, v22")
    b(f"  v_cvt_pk_bf16_f32 v23, v18, -v19")
    b(f"  v_cvt_pk_bf16_f32 v24, v19, v18")
    b(f"  ds_write_b32 v22, v23")
    b(f"  ds_write_b32 v22, v24 offset:1024")
    b(f"  v_lshl_add_u32 v17, v11, 4, v13   ; k1")
    for z in range(2):
        b(f"  v_add_u32 v21, {16*z}, v12")
        b(f"  v_mul_u32_u24 v21, v21, v17")
        sincos(b, 18, 19, 21, 5, 20)
        b(f"  v_add_f32 v18, v18, v18")
        b(f"  v_mul_f32 v19, -2.0, v19")
        b(f"  v_cvt_pk_bf16_f32 v23, v18, v19")
        b(f"  ds_write_b32 v22, v23 offset:{4096+1024*z}")
    b(f"  v_lshlrev_b32 v23, 2, v10")
    b(f"  v_lshl_add_u32 v23, v11, 12, v23   ; u*4096 + e*4")
    b(f"  v_add_u32 v23, {L3_TW}, v23")
    for v in range(2):
        b(f"  v_add_u32 v21, {4*v}, v15")
        b(f"  v_mul_u32_u24 v21, v21, v17")
        sincos(b, 18, 19, 21, 10, 20)
        b(f"  ds_write_b32 v23, v18 offset:{2048*v}")
        b(f"  ds_write_b32 v23, v19 offset:{2048*v+1024}")

def p3_setup(b):
    srd(b, SRD_A, P_WS, 4 << 20, WS_X2)
    srd(b, SRD_B, P_X, 4 << 20)
    srd(b, SRD_C, P_WS, 4 << 20, WS_H)
    srd(b, SRD_D, P_WS, 4 << 20, WS_LN2)
    b(f"  s_lshl_b32 s{S_T+3}, s{S_W}, 8")
    b(f"  s_add_u32 s{S_T+3}, s{S_T+3}, s2")
    b(f"  s_lshl_b32 s{S_T+3}, s{S_T+3}, 11       ; s*2048")
    b(f"  v_lshlrev_b32 v4, 6, v8")
    b(f"  v_lshl_add_u32 v4, v9, 4, v4")
    for z in range(2):
        b(f"  buffer_load_dwordx4 {vr(XR3+4*z,4)}, v4, s[{SRD_B}:{SRD_B+3}], s{S_T+3} offen offset:{1024*z}")
    b(f"  s_mov_b32 s63, s{S_T+3}")
    if SK():
        srd(b, SRD_PF, P_WS, 4 << 20, WS_XCH)
        for i in range(4): b(f"  v_mov_b32 v{200+i}, -1")
        b(f"  v_lshlrev_b32 v2, 4, v0")
        b(f"  s_lshl_b32 s{S_T+8}, s2, 14")
        b(f"  buffer_store_dwordx4 v[200:203], v2, s[{SRD_PF}:{SRD_PF+3}], s{S_T+8} offen{SF}")
        b(f"  s_add_u32 s{S_T+8}, s{S_T+8}, 8192")
        b(f"  buffer_store_dwordx4 v[200:203], v2, s[{SRD_PF}:{SRD_PF+3}], s{S_T+8} offen{SF}")
    if "nopf" not in OPT and "ntw1" not in OPT:
        if PFN[2]:
            w1_share_base(b, S_T + 8, (PFN[0] + PFN[1]) * 4096)
            pf_wide(b, P_W1, W1B, S_T + 8, PFN[2], 4, 8, "pf_p3a")
    g1_ids(b)
    g1_loader_addr(b)
    loader_init(b, 8 * 7168)
    p3_tables(b)
    gmat(b, GM3, 2, True, 10)
    b(f"  v_lshlrev_b32 v1, 12, v9")
    b(f"  v_lshl_add_u32 v1, v8, 2, v1")
    b(f"  s_lshl_b32 s{S_T}, s2, 14")
    b(f"  s_and_b32 s{S_T+1}, s{S_W}, 1")
    b(f"  s_lshl_b32 s{S_T+1}, s{S_T+1}, 6")
    b(f"  s_lshr_b32 s{S_T+2}, s{S_W}, 1")
    b(f"  s_lshl_b32 s{S_T+2}, s{S_T+2}, 9")
    b(f"  s_add_u32 s{S_T}, s{S_T}, s{S_T+1}")
    b(f"  s_add_u32 s44, s{S_T}, s{S_T+2}          ; X2 soffset")
    b(f"  s_lshl_b32 s{S_T+1}, s{S_T+1}, 4        ; u*1024")
    b(f"  s_lshr_b32 s{S_T+2}, s{S_T+2}, 1        ; q4*256")
    b(f"  s_add_u32 s45, s{S_T+1}, s{S_T+2}")
    b(f"  s_waitcnt lgkmcnt(0)")

def p3_main(b):
    Bd, XR, GM = BD3, XR3, GM3
    D = 40
    b(f"  v_lshlrev_b32 v3, 12, v9")
    b(f"  v_lshl_add_u32 v3, v8, 4, v3")
    b(f"  v_add_u32 v3, s45, v3")
    b(f"  v_add_u32 v3, {L3_EX}, v3")
    M3, M4, TW = 96, 112, 128
    b(f"  v_lshlrev_b32 v6, 4, v7")
    b(f"  v_add_u32 v6, {L3_M3}, v6")
    for i in range(4): b(f"  ds_read_b128 {vr(M3+4*i,4)}, v6 offset:{1024*i}")
    for i in range(4): b(f"  ds_read_b128 {vr(M4+4*i,4)}, v6 offset:{4096+1024*i}")
    b(f"  s_waitcnt lgkmcnt(0)")
    for i in range(8): b(f"  ds_read_b128 {vr(TW+4*i,4)}, v6 offset:{8192+1024*i}")
    if SENT():
        b(f"  s_mov_b32 s11, 200000")
        b.label("p3_poll")
    for i in range(4):
        for e in range(2):
            b(f"  buffer_load_dword v{Bd+2*i+e}, v1, s[{SRD_A}:{SRD_A+3}], s44 offen offset:{e*2048+i*128} sc1")
    b(f"  s_waitcnt vmcnt(0)")
    if SENT(): sentinel_check(b, Bd, "p3")
    stamp(b, "p3 x2 landed")
    if "nopf" not in OPT and "ntw1" not in OPT and PFN[3]:
        w1_share_base(b, S_T + 8, (PFN[0] + PFN[1] + PFN[2]) * 4096)
        pf_wide(b, P_W1, W1B, S_T + 8, PFN[3], 4, 8, "pf_p3b")
    for i in range(4):
        b(f"  {MF16} {vr(D+4*i,4)}, {vr(GM,2)}, {vr(Bd+2*i,2)}, 0")
    b(f"  s_nop 4")
    PK = 56
    for e in range(2):
        for i in range(4):
            b(f"  v_cvt_pk_bf16_f32 v{PK+4*e+i}, v{D+4*i+2*e}, v{D+4*i+2*e+1}")
    b(f"  ds_write_b128 v3, {vr(PK,4)}")
    b(f"  ds_write_b128 v3, {vr(PK+4,4)} offset:2048")
    b(f"  s_waitcnt lgkmcnt(0)")
    b(f"  s_barrier")
    b(f"  v_lshlrev_b32 v5, 8, v9")
    b(f"  v_lshl_add_u32 v5, v8, 4, v5")
    b(f"  s_lshl_b32 s{S_T+1}, s{S_W}, 11")
    b(f"  s_add_u32 s{S_T+1}, s{S_T+1}, {L3_EX}")
    b(f"  v_add_u32 v5, s{S_T+1}, v5")
    AU = 32
    b(f"  ds_read_b128 {vr(AU,4)}, v5")
    b(f"  ds_read_b128 {vr(AU+4,4)}, v5 offset:1024")
    b(f"  s_waitcnt lgkmcnt(0)")
    b(f"  v_readlane_b32 s{S_T+4}, v{AU}, 0")
    b(f"  v_writelane_b32 v{AU}, 0, 0")
    b(f"  s_nop 1")
    b(f"  s_lshl_b32 s{S_T+4}, s{S_T+4}, 16")
    TT = 160
    for u in range(2):
        for v in range(2):
            for c in range(2):
                d = TT + ((u * 2 + v) * 2 + c) * 4
                b(f"  {MF32} {vr(d,4)}, {vr(AU+4*u,4)}, {vr(M3+4*(2*v+c),4)}, 0")
    CI = 60
    b(f"  v_mov_b32 v{CI}, s{S_T+4}")
    b(f"  v_xor_b32 v{CI+1}, 0x80000000, v{CI}")
    b(f"  v_mov_b32 v{CI+2}, v{CI}")
    b(f"  v_mov_b32 v{CI+3}, v{CI+1}")
    b(f"  s_nop 1")
    A2 = 64; O = 40; W = 80
    for u in range(2):
        for v in range(2):
            t = TT + ((u * 2 + v) * 2) * 4
            tw = TW + ((u * 2 + v) * 2) * 4
            cmul_pk(b, O, O + 4, t, t + 4, tw, tw + 4, W, True)
            for r in range(4):
                b(f"  v_cvt_pk_bf16_f32 v{A2+(u*2+v)*4+r}, v{O+r}, v{O+4+r}")
    Y = 160
    b(f"  s_nop 1")
    for z in range(2):
        for v in range(2):
            d = Y + (z * 2 + v) * 4
            b(f"  {MF32} {vr(d,4)}, {vr(A2+(0*2+v)*4,4)}, {vr(M4+(0*2+z)*4,4)}, {vr(CI,4)}")
    for z in range(2):
        for v in range(2):
            d = Y + (z * 2 + v) * 4
            b(f"  {MF32} {vr(d,4)}, {vr(A2+(1*2+v)*4,4)}, {vr(M4+(1*2+z)*4,4)}, {vr(d,4)}")
    b(f"  s_nop 7")
    X = 40; HP = 32
    stamp(b, "p3 ifft done")
    for z in range(2):
        for dd in range(4):
            y0 = Y + z * 8 + 2 * dd
            xd = XR + 4 * z + dd
            t = 64 + 2 * (dd % 4)
            b(f"  v_lshlrev_b32 v{t}, 16, v{xd}")
            b(f"  v_and_b32 v{t+1}, 0xffff0000, v{xd}")
            b(f"  v_pk_add_f32 {vr(t,2)}, {vr(t,2)}, {vr(y0,2)}")
            b(f"  v_cvt_pk_bf16_f32 v{HP+4*z+dd}, v{t}, v{t+1}")
    for z in range(2):
        b(f"  buffer_store_dwordx4 {vr(HP+4*z,4)}, v4, s[{SRD_C}:{SRD_C+3}], s63 offen offset:{1024*z}{SF}")
    for i in range(8):
        b(f"  v_lshlrev_b32 v{X+2*i}, 16, v{HP+i}")
        b(f"  v_and_b32 v{X+2*i+1}, 0xffff0000, v{HP+i}")
    ln_fast(b, X, 64, S_T + 4, False)
    LP = 72
    stamp(b, "p3 ln done")
    for i in range(8):
        b(f"  v_cvt_pk_bf16_f32 v{LP+i}, v{X+2*i}, v{X+2*i+1}")
    b(f"  v_mul_u32_u24 v3, 80, v8")
    b(f"  v_lshl_add_u32 v3, v9, 4, v3")
    b(f"  s_mul_i32 s{S_T+1}, s{S_W}, {L3_RS}")
    b(f"  s_add_u32 s{S_T+1}, s{S_T+1}, {L3_LN}")
    b(f"  v_add_u32 v3, s{S_T+1}, v3")
    for z in range(2):
        b(f"  ds_write_b128 v3, {vr(LP+4*z,4)} offset:{z*16*80}")
    b(f"  s_waitcnt lgkmcnt(0)")
    b(f"  s_barrier")
    b(f"  v_bfe_u32 v10, v7, 2, 2")
    b(f"  v_mul_u32_u24 v10, {L3_RS}, v10")
    b(f"  v_lshrrev_b32 v11, 5, v7")
    b(f"  v_mul_u32_u24 v12, 80, v11")
    b(f"  v_add_u32 v10, v10, v12")
    b(f"  v_and_b32 v12, 1, v7")
    b(f"  v_lshl_add_u32 v10, v12, 5, v10")
    b(f"  v_bfe_u32 v12, v7, 4, 1")
    b(f"  v_lshl_add_u32 v10, v12, 4, v10")
    b(f"  v_bfe_u32 v12, v7, 1, 1")
    b(f"  v_lshl_add_u32 v10, v12, 3, v10")
    b(f"  s_mul_i32 s{S_T+1}, s{S_W}, {4*80}")
    b(f"  s_add_u32 s{S_T+1}, s{S_T+1}, {L3_LN}")
    b(f"  v_add_u32 v10, s{S_T+1}, v10")
    for ps in range(2):
        b(f"  ds_read_b64_tr_b16 {vr(32+4*ps,2)}, v10 offset:{ps*160}")
        b(f"  ds_read_b64_tr_b16 {vr(34+4*ps,2)}, v10 offset:{ps*160 + 4*L3_RS}")
    b(f"  v_lshlrev_b32 v11, 17, v11")
    b(f"  v_and_b32 v12, 31, v7")
    b(f"  v_lshl_add_u32 v11, v12, 4, v11")
    b(f"  s_lshl_b32 s{S_T+1}, s{S_W}, 19")
    b(f"  s_lshl_b32 s{S_T+2}, s2, 9")
    b(f"  s_add_u32 s{S_T+1}, s{S_T+1}, s{S_T+2}")
    b(f"  s_add_u32 s{S_T+2}, s{S_T+1}, {2*131072}")
    b(f"  s_waitcnt lgkmcnt(2)")
    b(f"  buffer_store_dwordx4 v[32:35], v11, s[{SRD_D}:{SRD_D+3}], s{S_T+1} offen{SF}")
    b(f"  s_waitcnt lgkmcnt(0)")
    b(f"  buffer_store_dwordx4 v[36:39], v11, s[{SRD_D}:{SRD_D+3}], s{S_T+2} offen{SF}")
    stamp(b, "p3 stores issued")
    b(f"  s_and_b32 s{S_T+8}, s2, 15")
    arrive(b, 2, S_T + 8, label="x3")
    srd(b, SRD_T, P_W1, W1B)
    b(f"  s_cmp_lt_u32 s{S_W}, 4")
    b(f"  s_cbranch_scc1 p3_nodma")
    b(f"  s_cmp_eq_u32 s62, 0")
    b(f"  s_cbranch_scc1 p3_nodma")
    for n in range(2): loader_issue(b, V_LO, W1F())
    b.label("p3_nodma")

def gemm_core(b, c, pre, after_setup, after_prologue=None):
    NB, NS = c.NB, c.NS
    acc = lambda nb: V_ACC + nb * 16
    VT = V_ACC + NB * 16
    VPR = VT + 32
    c.VT, c.VPR = VT, VPR
    c.vend = VPR + 4 * PR
    tf = lambda q: VT + (q % 8) * 4
    pr = lambda j: VPR + (j % PR) * 4
    FPI = 64
    KPI = FPI // NB
    def tread(q):
        ql = q % FPI
        lslot, within = ql // 16, ql % 16
        ks, nb = within // NB, within % NB
        off = lslot * STAGE + ks * 16 * c.rowb
        b(f"  ds_read_b64_tr_b16 {vr(tf(q),2)}, v{V_T+nb} offset:{off}")
        b(f"  ds_read_b64_tr_b16 {vr(tf(q)+2,2)}, v{V_T+nb} offset:{off+4*c.rowb}")
    def pload(j):
        b(f"  buffer_load_dwordx4 {vr(pr(j),4)}, v{V_P}, s[{SRD_P}:{SRD_P+3}], s{S_POFF} offen offset:{(j%4)*1024}{LF}")
        if j % 4 == 3: b(f"  s_add_u32 s{S_POFF}, s{S_POFF}, 4096")
    def mfma(q):
        nb = q % NB; j = q // NB; a = acc(nb)
        if "m16fake" in OPT:
            o = 8 * (j % 2)
            b(f"  v_mfma_f32_16x16x32_bf16 {vr(a+o,4)}, {vr(tf(q),4)}, {vr(pr(j),4)}, {vr(a+o,4)}")
            b(f"  v_mfma_f32_16x16x32_bf16 {vr(a+o+4,4)}, {vr(pr(j),4)}, {vr(tf(q),4)}, {vr(a+o+4,4)}")
            return
        if c.name == "g1":
            b(f"  v_mfma_f32_32x32x16_bf16 {vr(a,16)}, {vr(tf(q),4)}, {vr(pr(j),4)}, {vr(a,16)}")
        else:
            b(f"  v_mfma_f32_32x32x16_bf16 {vr(a,16)}, {vr(pr(j),4)}, {vr(tf(q),4)}, {vr(a,16)}")
    b(f"  s_mov_b32 s{S_POFF}, 0")
    b(f"  s_mov_b32 s{S_DELTA}, {4*STAGE}")
    b(f"  s_mov_b32 s{S_IT}, {NS//4 - 1}")
    after_setup()
    for j in range(PR - 1): pload(j)
    if after_prologue: after_prologue()
    b("  s_barrier")
    for q in range(DQ): tread(q)
    def body(last):
        for q in range(FPI):
            j = q // NB
            qn = q + DQ
            do_read = not (last and qn >= FPI)
            do_pload = False
            if q % NB == 0:
                rem = KPI - 1 - j
                if (not last) or (j + PR - 1 < KPI):
                    b(f"  s_waitcnt vmcnt({PR-2})")
                    do_pload = True
                else:
                    b(f"  s_waitcnt vmcnt({min(PR-2, rem)})")
            if do_read and qn % 16 == 0:
                b("  s_barrier")
            if do_read and qn == FPI:
                for i in range(NB): b(f"  v_add_u32 v{V_T+i}, s{S_DELTA}, v{V_T+i}")
                b(f"  s_sub_u32 s{S_DELTA}, 0, s{S_DELTA}")
            if q % 2 == 0:
                left = min(DQ - 2, FPI - 2 - q) if last else DQ - 2
                b(f"  s_waitcnt lgkmcnt({2*left})")
            mfma(q)
            if do_pload: pload(j + PR - 1)
            if do_read: tread(qn)
    b.label(f"{pre}_loop")
    body(False)
    b(f"  s_sub_u32 s{S_IT}, s{S_IT}, 1")
    b(f"  s_cmp_lg_u32 s{S_IT}, 0")
    b(f"  s_cbranch_scc1 {pre}_loop")
    body(True)

def idle_w1(b):
    srd(b, SRD_PF, P_W1, W1B)
    b(f"  s_and_b32 s51, s50, 7")
    b(f"  s_mul_i32 s51, s51, {256*7168}")
    b(f"  s_lshr_b32 s52, s50, 3")
    b(f"  s_mul_i32 s52, s52, {4*7168}")
    b(f"  s_add_u32 s51, s51, s52")
    b(f"  s_add_u32 s51, s51, {128*7168}")
    b(f"  s_mov_b32 s52, 7")
    b.label("pf_w1b")
    for i in range(4): b(f"  buffer_load_dwordx4 {vr(V_DUMMY,4)}, v29, s[{SRD_PF}:{SRD_PF+3}], s51 offen offset:{1024*i}")
    b(f"  s_add_u32 s51, s51, 4096")
    b(f"  s_waitcnt vmcnt(4)")
    b(f"  s_sub_u32 s52, s52, 1")
    b(f"  s_cmp_lg_u32 s52, 0")
    b(f"  s_cbranch_scc1 pf_w1b")

def idle_w2(b):
    srd(b, SRD_PF, P_W2, W1B)
    b(f"  s_mul_i32 s51, s50, {W1B // 256}")
    b(f"  s_mov_b32 s52, 14")
    b.label("pf_w2")
    for i in range(4): b(f"  buffer_load_dwordx4 {vr(V_DUMMY,4)}, v29, s[{SRD_PF}:{SRD_PF+3}], s51 offen offset:{1024*i}")
    b(f"  s_add_u32 s51, s51, 4096")
    b(f"  s_waitcnt vmcnt({0 if 'idlepace' in OPT else 4})")
    b(f"  s_sub_u32 s52, s52, 1")
    b(f"  s_cmp_lg_u32 s52, 0")
    b(f"  s_cbranch_scc1 pf_w2")
    b(f"  s_waitcnt vmcnt(0)")

def g1(b):
    c = g1_cfg()
    b(f"  s_cmp_eq_u32 s62, 0")
    b(f"  s_cbranch_scc1 g1_inactive")
    srd(b, SRD_P, P_WS, 4 << 20, WS_LN2)
    srd(b, SRD_T, P_W1, W1B)
    srd(b, SRD_O, P_WS, U_BYTES, WS_U)
    srd(b, SRD_X, P_B1, 3584 * 2)
    b(f"  s_cmp_ge_u32 s{S_W}, 4")
    b(f"  s_cbranch_scc1 g1_loader")
    lane_geom(b)
    b(f"  s_lshl_b32 s{S_TMP}, s61, 2")
    b(f"  s_add_u32 s{S_TMP}, s{S_TMP}, s{S_W}            ; dblk")
    b(f"  s_lshl_b32 s{S_TMP+2}, s{S_TMP}, 17")
    b(f"  v_lshlrev_b32 v10, 4, v7")
    b(f"  v_add_u32 v{V_P}, s{S_TMP+2}, v10")
    b(f"  s_lshl_b32 s{S_TMP+1}, s60, 8       ; f0*2")
    b(f"  v_lshlrev_b32 v11, 3, v9")
    b(f"  v_add_u32 v11, s{S_TMP+1}, v11")
    BV = 192
    for fb in range(4):
        for i in range(4):
            b(f"  buffer_load_dwordx2 {vr(BV+2*(4*fb+i),2)}, v11, s[{SRD_X}:{SRD_X+3}], 0 offen offset:{64*fb+16*i}")
    b(f"  v_lshl_add_u32 v20, v9, 3, v18")
    b(f"  v_lshlrev_b32 v20, 8, v20")
    b(f"  v_lshl_add_u32 v20, v18, 6, v20")
    b(f"  v_lshl_add_u32 v20, v19, 5, v20")
    b(f"  v_lshl_add_u32 v{V_T}, v22, 3, v20")
    for fb in range(1, 4):
        b(f"  v_xor_b32 v{V_T+fb}, {64*fb}, v{V_T}")
    b(f"  s_mul_i32 s{S_TMP+2}, s{S_TMP}, 229376")
    b(f"  s_lshl_b32 s{S_TMP+1}, s60, 13")
    b(f"  s_add_u32 s{S_TMP+1}, s{S_TMP+1}, s{S_TMP+2}")
    b(f"  v_add_u32 v28, s{S_TMP+1}, v10")
    b(f"  s_waitcnt vmcnt(0)")
    for fb in range(4):
        for i in range(4):
            bv = BV + 2 * (4 * fb + i); a = V_ACC + fb * 16 + 4 * i
            b(f"  v_lshlrev_b32 v{a}, 16, v{bv}")
            b(f"  v_and_b32 v{a+1}, 0xffff0000, v{bv}")
            b(f"  v_lshlrev_b32 v{a+2}, 16, v{bv+1}")
            b(f"  v_and_b32 v{a+3}, 0xffff0000, v{bv+1}")
    def w3():
        wait(b, 2, 16, "x3c")
        stamp(b, "x3 released")
        stamp(b, "c:g1 start")
    gemm_core(b, c, "g1", w3)
    stamp(b, "c:g1 end")
    stamp(b, "g1 main done")
    K1 = -2.0 * 0.7978845608028654 * 1.4426950408889634
    K2 = K1 * 0.044715
    T = c.VPR
    b(f"  v_mov_b32 v{T}, {hex(f2u(K1))}")
    b(f"  v_mov_b32 v{T+1}, {hex(f2u(K1))}")
    b(f"  v_mov_b32 v{T+2}, {hex(f2u(K2))}")
    b(f"  v_mov_b32 v{T+3}, {hex(f2u(K2))}")
    b(f"  s_nop 7")
    W = T + 8
    for fb in range(4):
        a = V_ACC + fb * 16; t = W; o = W + 16 + 8 * (fb % 2)
        for h in range(0, 16, 2): b(f"  v_pk_mul_f32 {vr(t+h,2)}, {vr(a+h,2)}, {vr(a+h,2)}")
        for h in range(0, 16, 2): b(f"  v_pk_fma_f32 {vr(t+h,2)}, {vr(t+h,2)}, {vr(T+2,2)}, {vr(T,2)}")
        for h in range(0, 16, 2): b(f"  v_pk_mul_f32 {vr(t+h,2)}, {vr(t+h,2)}, {vr(a+h,2)}")
        for r in range(16): b(f"  v_exp_f32 v{t+r}, v{t+r}")
        for h in range(0, 16, 2): b(f"  v_pk_add_f32 {vr(t+h,2)}, {vr(t+h,2)}, 1.0 op_sel_hi:[1,0]")
        for r in range(16): b(f"  v_rcp_f32 v{t+r}, v{t+r}")
        for h in range(0, 16, 2): b(f"  v_pk_mul_f32 {vr(t+h,2)}, {vr(a+h,2)}, {vr(t+h,2)}")
        for i in range(4):
            b(f"  v_cvt_pk_bf16_f32 v{o+2*i}, v{t+4*i}, v{t+4*i+1}")
            b(f"  v_cvt_pk_bf16_f32 v{o+2*i+1}, v{t+4*i+2}, v{t+4*i+3}")
        for ip in range(2):
            oo = o + 4 * ip
            b(f"  s_mov_b32 s{S_TMP+1}, {(2*fb+ip)*1024}")
            b(f"  s_nop 0")
            b(f"  v_permlane32_swap_b32 v{oo}, v{oo+2}")
            b(f"  v_permlane32_swap_b32 v{oo+1}, v{oo+3}")
            b(f"  buffer_store_dwordx4 {vr(oo,4)}, v28, s[{SRD_O}:{SRD_O+3}], s{S_TMP+1} offen{SF}")
    stamp(b, "g1 stores issued")
    b(f"  s_waitcnt vmcnt(0)")
    b(f"  s_branch g1_join")
    b.label("g1_loader")
    b(f"  s_sub_u32 s50, s{S_W}, 4")
    b(f"  s_lshl_b32 s49, s50, 10")
    b(f"  s_add_u32 s{S_N+1}, s49, {R*STAGE}")
    b(f"  s_barrier                      ; matches the barrier inside wait(x3)")
    for n in range(R - 4): loader_issue(b, V_LO, W1F())
    loader_loop(b, c.NS, "g1", W1F())
    stamp(b, "g1 main done")
    g2_prologue_loader(b)
    stamp(b, "g1 stores issued")
    b.label("g1_join")
    if SK():
        b(f"  s_cmp_ge_u32 s60, 14")
        b(f"  s_cselect_b32 s18, 1, 0")
        b(f"  s_lshl_b32 s10, s61, 1")
        b(f"  s_add_u32 s18, s18, s10")
        arrive(b, 3, 18, label="x4", drained=True)
    else:
        arrive(b, 3, 61, label="x4", drained=True)
    b(f"  s_branch g2_start")
    b.label("g1_inactive")
    if "nopf" not in OPT:
        b(f"  s_sub_u32 s50, s2, 224")
        b(f"  s_lshl_b32 s50, s50, 3")
        b(f"  s_add_u32 s50, s50, s{S_W}")
        b(f"  v_lshlrev_b32 v29, 4, v7")
        if "noidle" not in OPT: idle_w2(b)
    b(f"  s_cmp_lt_u32 s{S_W}, 4")
    b(f"  s_cbranch_scc1 g2_start_inactive")
    g2_prologue_loader(b)
    b.label("g2_start_inactive")
    return c

def g2_prologue_loader(b):
    g2_ids(b)
    srd(b, SRD_T, P_W2, W1B)
    g2_loader_addr(b)
    loader_init(b, (64 if SK() else 128) * 4096)
    for n in range(2): loader_issue(b, V_LO, W2F())

def g2_sk(b):
    c = g1_cfg(); c.name = "g2"; c.NS = 28
    b.label("g2_start")
    g2_ids(b)
    srd(b, SRD_P, P_WS, U_BYTES, WS_U)
    srd(b, SRD_O, P_OUT, 4 << 20)
    srd(b, SRD_X, P_B2, 2048 * 2)
    srd(b, SRD_Y, P_WS, 4 << 20, WS_H)
    b(f"  s_cmp_ge_u32 s{S_W}, 4")
    b(f"  s_cbranch_scc1 g2_loader")
    lane_geom(b)
    b(f"  s_lshl_b32 s{S_TMP}, s{S_TILE_A}, 2")
    b(f"  s_add_u32 s{S_TMP}, s{S_TMP}, s{S_W}        ; dblk")
    b(f"  s_mul_i32 s{S_TMP+2}, s{S_TMP}, 229376")
    b(f"  s_mul_i32 s{S_TMP+3}, s19, {112*1024}       ; k half")
    b(f"  s_add_u32 s{S_TMP+2}, s{S_TMP+2}, s{S_TMP+3}")
    b(f"  v_lshlrev_b32 v10, 4, v7")
    b(f"  v_add_u32 v{V_P}, s{S_TMP+2}, v10")
    b(f"  s_lshl_b32 s{S_TMP+1}, s{S_TILE_B}, 7")
    b(f"  s_lshl_b32 s{S_TMP+3}, s19, 6")
    b(f"  s_add_u32 s{S_TMP+1}, s{S_TMP+1}, s{S_TMP+3}")
    b(f"  v_add_u32 v11, s{S_TMP+1}, v8              ; s0 + s'")
    b(f"  v_lshlrev_b32 v16, 1, v11")
    for sb in range(2):
        b(f"  buffer_load_ushort v{12+sb}, v16, s[{SRD_X}:{SRD_X+3}], 0 offen offset:{64*sb}")
    b(f"  v_lshlrev_b32 v17, 11, v11")
    b(f"  v_lshl_add_u32 v17, v9, 5, v17")
    b(f"  s_lshl_b32 s{S_TMP+2}, s{S_TMP}, 6")
    b(f"  v_add_u32 v28, s{S_TMP+2}, v17")
    HV = 192
    b(f"  v_lshl_add_u32 v20, v9, 3, v18")
    b(f"  v_lshlrev_b32 v20, 8, v20")
    b(f"  v_lshl_add_u32 v20, v18, 6, v20")
    b(f"  v_lshl_add_u32 v20, v19, 5, v20")
    b(f"  v_lshl_add_u32 v{V_T}, v22, 3, v20")
    for fb in range(1, 4):
        b(f"  v_xor_b32 v{V_T+fb}, {64*fb}, v{V_T}")
    b(f"  s_lshl_b32 s{S_TMP+1}, s{S_W}, 12")
    b(f"  s_lshl_b32 s{S_TMP+2}, s2, 14")
    b(f"  s_add_u32 s{S_TMP+2}, s{S_TMP+2}, s{S_TMP+1}")
    b(f"  v_add_u32 v29, s{S_TMP+2}, v10")
    b(f"  s_xor_b32 s{S_TMP+2}, s2, 1")
    b(f"  s_lshl_b32 s{S_TMP+2}, s{S_TMP+2}, 14")
    b(f"  s_add_u32 s{S_TMP+2}, s{S_TMP+2}, s{S_TMP+1}")
    b(f"  v_add_u32 v30, s{S_TMP+2}, v10")
    for i in range(64): b(f"  v_mov_b32 v{V_ACC+i}, 0")
    def w4():
        b(f"  s_lshl_b32 s18, s{S_TILE_A}, 1")
        b(f"  s_add_u32 s18, s18, s19")
        wait(b, 3, 14, "x4c", single_sreg=18)
        stamp(b, "x4 released")
        stamp(b, "c:g2 start")
    def hloads():
        for sb in range(2):
            b(f"  s_mov_b32 s{S_TMP+1}, {sb*65536}")
            b(f"  buffer_load_dwordx4 {vr(HV+8*sb,4)}, v28, s[{SRD_Y}:{SRD_Y+3}], s{S_TMP+1} offen{LF}")
            b(f"  buffer_load_dwordx4 {vr(HV+8*sb+4,4)}, v28, s[{SRD_Y}:{SRD_Y+3}], s{S_TMP+1} offen offset:16{LF}")
    gemm_core(b, c, "g2", w4, hloads)
    stamp(b, "c:g2 end")
    stamp(b, "g2 main done")
    srd(b, SRD_X, P_WS, 4 << 20, WS_XCH)
    T = c.VT
    b(f"  s_cmp_eq_u32 s19, 0")
    b(f"  s_cbranch_scc1 g2_send23")
    def pack_send(first):
        for blk in range(2):
            a = V_ACC + (first + blk) * 16
            for i in range(8):
                b(f"  v_cvt_pk_bf16_f32 v{T+8*blk+i}, v{a+2*i}, v{a+2*i+1}")
            for i in range(8):
                b(f"  v_min_u32 v{T+8*blk+i}, 0xfffffffe, v{T+8*blk+i}")
            for p in range(2):
                b(f"  buffer_store_dwordx4 {vr(T+8*blk+4*p,4)}, v30, s[{SRD_X}:{SRD_X+3}], 0 offen offset:{(2*blk+p)*1024}{SF}")
    b(f"  s_nop 7")
    pack_send(0)
    for i in range(32): b(f"  v_mov_b32 v{V_ACC+i}, v{V_ACC+32+i}")
    b(f"  s_branch g2_sent")
    b.label("g2_send23")
    b(f"  s_nop 7")
    pack_send(2)
    b.label("g2_sent")
    RX = c.VPR
    b(f"  s_mov_b32 s11, 200000")
    b.label("g2x_poll")
    for k in range(4):
        b(f"  buffer_load_dwordx4 {vr(RX+4*k,4)}, v29, s[{SRD_X}:{SRD_X+3}], 0 offen offset:{k*1024} sc1")
    b(f"  s_waitcnt vmcnt(0)")
    sentinel_check(b, RX, "g2x", n=16)
    stamp(b, "g2 x landed")
    b(f"  s_mov_b32 s{S_TMP}, 0xffff0000")
    for blk in range(2):
        for i in range(8):
            a = V_ACC + blk * 16 + 2 * i; r = RX + 8 * blk + i
            b(f"  v_lshlrev_b32 v16, 16, v{r}")
            b(f"  v_and_b32 v17, s{S_TMP}, v{r}")
            b(f"  v_add_f32 v{a}, v{a}, v16")
            b(f"  v_add_f32 v{a+1}, v{a+1}, v17")
    for sb in range(2):
        b(f"  v_lshlrev_b32 v{12+sb}, 16, v{12+sb}")
    for sb in range(2):
        for half in range(2):
            o = T + 4 * ((sb * 2 + half) % 2)
            for dd in range(4):
                a = V_ACC + sb * 16 + half * 8 + 2 * dd
                hv = HV + 8 * sb + 4 * half + dd
                t0 = T + 8 + 4 * dd
                b(f"  v_lshlrev_b32 v{t0}, 16, v{hv}")
                b(f"  v_and_b32 v{t0+1}, s{S_TMP}, v{hv}")
                b(f"  v_pk_add_f32 {vr(t0,2)}, {vr(t0,2)}, {vr(a,2)}")
                b(f"  v_add_f32 v{t0}, v{t0}, v{12+sb}")
                b(f"  v_add_f32 v{t0+1}, v{t0+1}, v{12+sb}")
                b(f"  v_cvt_pk_bf16_f32 v{o+dd}, v{t0}, v{t0+1}")
            b(f"  s_mov_b32 s{S_TMP+1}, {sb*65536}")
            b(f"  buffer_store_dwordx4 {vr(o,4)}, v28, s[{SRD_O}:{SRD_O+3}], s{S_TMP+1} offen offset:{16*half}")
    stamp(b, "g2 stores issued")
    b(f"  s_branch g2_done")
    b.label("g2_loader")
    b(f"  s_barrier                      ; matches the barrier inside wait(x4)")
    for n in range(R - 4): loader_issue(b, V_LO, W2F())
    loader_loop(b, c.NS, "g2", W2F())
    b.label("g2_done")

def g2(b):
    if SK(): return g2_sk(b)
    c = g2_cfg()
    b.label("g2_start")
    g2_ids(b)
    srd(b, SRD_P, P_WS, U_BYTES, WS_U)
    srd(b, SRD_O, P_OUT, 4 << 20)
    srd(b, SRD_X, P_B2, 2048 * 2)
    srd(b, SRD_Y, P_WS, 4 << 20, WS_H)
    b(f"  s_cmp_ge_u32 s{S_W}, 4")
    b(f"  s_cbranch_scc1 g2_loader")
    lane_geom(b)
    b(f"  s_lshl_b32 s{S_TMP}, s{S_TILE_A}, 2")
    b(f"  s_add_u32 s{S_TMP}, s{S_TMP}, s{S_W}        ; dblk")
    b(f"  s_mul_i32 s{S_TMP+2}, s{S_TMP}, 229376")
    b(f"  v_lshlrev_b32 v10, 4, v7")
    b(f"  v_add_u32 v{V_P}, s{S_TMP+2}, v10")
    b(f"  s_lshl_b32 s{S_TMP+1}, s{S_TILE_B}, 6       ; s0")
    b(f"  v_add_u32 v11, s{S_TMP+1}, v8              ; s0 + s'")
    b(f"  v_lshlrev_b32 v16, 1, v11")
    for sb in range(2):
        b(f"  buffer_load_ushort v{12+sb}, v16, s[{SRD_X}:{SRD_X+3}], 0 offen offset:{64*sb}")
    b(f"  v_lshlrev_b32 v17, 11, v11")
    b(f"  v_lshl_add_u32 v17, v9, 5, v17")
    b(f"  s_lshl_b32 s{S_TMP+2}, s{S_TMP}, 6")
    b(f"  v_add_u32 v28, s{S_TMP+2}, v17")
    HV = 160
    b(f"  v_lshl_add_u32 v20, v9, 3, v18            ; row")
    b(f"  v_bfe_u32 v21, v18, 1, 1")
    b(f"  v_lshlrev_b32 v20, 7, v20")
    b(f"  v_lshl_add_u32 v20, v21, 6, v20")
    b(f"  v_lshl_add_u32 v20, v19, 5, v20")
    b(f"  v_lshl_add_u32 v{V_T}, v22, 3, v20")
    b(f"  v_xor_b32 v{V_T+1}, 64, v{V_T}")
    for i in range(32): b(f"  v_mov_b32 v{V_ACC+i}, 0")
    def w4():
        wait(b, 3, 28, "x4c", single_sreg=S_TILE_A)
        stamp(b, "x4 released")
        stamp(b, "c:g2 start")
    def hloads():
        for sb in range(2):
            b(f"  s_mov_b32 s{S_TMP+1}, {sb*65536}")
            b(f"  buffer_load_dwordx4 {vr(HV+8*sb,4)}, v28, s[{SRD_Y}:{SRD_Y+3}], s{S_TMP+1} offen{LF}")
            b(f"  buffer_load_dwordx4 {vr(HV+8*sb+4,4)}, v28, s[{SRD_Y}:{SRD_Y+3}], s{S_TMP+1} offen offset:16{LF}")
    gemm_core(b, c, "g2", w4, hloads)
    stamp(b, "c:g2 end")
    stamp(b, "g2 main done")
    T = c.VT
    b(f"  s_mov_b32 s{S_TMP}, 0xffff0000")
    for sb in range(2):
        b(f"  v_lshlrev_b32 v{12+sb}, 16, v{12+sb}")
    b(f"  s_nop 9")
    for sb in range(2):
        for half in range(2):
            o = T + 4 * ((sb * 2 + half) % 2)
            for dd in range(4):
                a = V_ACC + sb * 16 + half * 8 + 2 * dd
                hv = HV + 8 * sb + 4 * half + dd
                t0 = T + 8 + 4 * dd
                b(f"  v_cvt_pk_bf16_f32 v{t0}, v{a}, v{a+1}")
                b(f"  v_and_b32 v{t0+1}, s{S_TMP}, v{t0}")
                b(f"  v_lshlrev_b32 v{t0}, 16, v{t0}")
                b(f"  v_add_f32 v{t0}, v{t0}, v{12+sb}")
                b(f"  v_add_f32 v{t0+1}, v{t0+1}, v{12+sb}")
                b(f"  v_cvt_pk_bf16_f32 v{t0}, v{t0}, v{t0+1}")
                b(f"  v_and_b32 v{t0+1}, s{S_TMP}, v{t0}")
                b(f"  v_lshlrev_b32 v{t0}, 16, v{t0}")
                b(f"  v_lshlrev_b32 v{t0+2}, 16, v{hv}")
                b(f"  v_and_b32 v{t0+3}, s{S_TMP}, v{hv}")
                b(f"  v_add_f32 v{t0}, v{t0}, v{t0+2}")
                b(f"  v_add_f32 v{t0+1}, v{t0+1}, v{t0+3}")
                b(f"  v_cvt_pk_bf16_f32 v{o+dd}, v{t0}, v{t0+1}")
            b(f"  s_mov_b32 s{S_TMP+1}, {sb*65536}")
            b(f"  buffer_store_dwordx4 {vr(o,4)}, v28, s[{SRD_O}:{SRD_O+3}], s{S_TMP+1} offen offset:{16*half}")
    stamp(b, "g2 stores issued")
    b(f"  s_branch g2_done")
    b.label("g2_loader")
    b(f"  s_barrier                      ; matches the barrier inside wait(x4)")
    for n in range(R - 4): loader_issue(b, V_LO, W2F())
    loader_loop(b, c.NS, "g2", W2F())
    b.label("g2_done")

def build():
    NAME = "sequential_preLN__spectral_gfnet__mixer_token_mlp__prompt"
    hdr = open(f"cdna_kernels/{NAME}.s.ref").read().split("; Override launch")[0]
    K = NAME + "_kernel"
    b = B()
    b(hdr.rstrip("\n"))
    b(f"; @launch grid=(256,1,1) block=(512,1,1) lds={LDS_TOTAL}")
    b('.amdgcn_target "amdgcn-amd-amdhsa--gfx950"\n.text')
    b(f".globl {K}\n.p2align 8\n.type {K},@function\n{K}:")
    b(f"  s_cmp_ge_u32 s2, 256\n  s_cbranch_scc1 k_exit")
    if "stamp" in OPT: b("  v_mov_b32 v231, 0")
    stamp(b, "entry")
    b(f"  s_load_dwordx4 s[{P_X}:{P_X+3}], s[0:1], 0        ; x, w_r")
    b(f"  s_load_dwordx2 s[{P_WI}:{P_WI+1}], s[0:1], 16")
    b(f"  s_load_dwordx2 s[{P_W1}:{P_W1+1}], s[0:1], 32")
    b(f"  s_load_dwordx4 s[{P_B1}:{P_B1+3}], s[0:1], 40     ; b1, w2")
    b(f"  s_load_dwordx4 s[{P_B2}:{P_B2+3}], s[0:1], 56     ; b2, out")
    b(f"  s_load_dwordx4 s[{P_DBG}:{P_DBG+3}], s[0:1], 72")
    b(f"  v_lshrrev_b32 v6, 6, v0")
    b(f"  v_and_b32 v7, 63, v0        ; lane")
    b(f"  v_readfirstlane_b32 s{S_W}, v6")
    b(f"  v_and_b32 v8, 15, v7          ; c")
    b(f"  v_lshrrev_b32 v9, 4, v7       ; g")
    b(f"  s_waitcnt lgkmcnt(0)")
    srd(b, SRD_CNT, P_WS, 65536, WS_CNT)
    p1(b)
    p2_setup(b)
    wait(b, 0, 16, "x1c")
    stamp(b, "x1 released")
    p2_main(b)
    p3_setup(b)
    if SENT(): b("  s_barrier")
    else: wait(b, 1, 16, "x2c")
    stamp(b, "x2 released")
    p3_main(b)
    g1(b)
    g2(b)
    b(f"  s_waitcnt vmcnt(0)")
    stamp(b, "end")
    stamp_flush(b)
    b("k_exit:\n  s_endpgm")
    b(kd(K, 240, sgpr=102))
    return b.text()

if __name__ == "__main__":
    out = sys.argv[1]
    OPT.update(sys.argv[2:])
    for o in sys.argv[2:]:
        if o.startswith("pfn="): PFN[:] = [int(c) for c in o[4:].split(",")]
    gemm.OPT.update(sys.argv[2:])
    t = build()
    open(out, "w").write(t)
    rep = check_text(t)
    print("\n".join(rep) if rep else "no hazards found", "| stamps:", nstamp[0])
```

```python
import sys
from asmlib import *
import gemm, fft
from gemm import (srd, f2u, WS_X1, WS_X2, WS_H, WS_LN2, WS_U, U_BYTES, S_W, R, STAGE, PR, DQ,
                  V_P, V_T, V_ACC, S_POFF, S_IT, S_DELTA, SRD_P, SRD_T, SRD_O, SRD_X, SRD_Y, S_TILE_A, S_TILE_B, S_TMP,
                  g1_cfg, g2_cfg, lane_geom)
from fft import sincos, wave_reduce, ln_finish, layernorm16, cmul_pk, gmat, MF32, MF16

OPT = set()
PFN = [0, 4, 0, 4]
WS_CNT = 30 << 20
WS_STAMP = 31 << 20
WS_XCH = 24 << 20
W1B = 2048 * 3584 * 2
WB = 2048 * 1026

P_X, P_WR, P_WI, P_W1, P_B1, P_W2, P_B2, P_OUT, P_DBG, P_WS = 64, 66, 68, 70, 72, 74, 76, 78, 80, 82
SRD_CNT = 12
S_T = 46
SRD_A, SRD_B, SRD_C, SRD_D = 24, 28, 32, 36
SRD_PF = 56
S_STAMP = 84
SF = " sc1"
LF = ""

L1_M1, L1_M2, L1_TW, L1_EX = 0, 4096, 8192, 16384
L2_F = 32768; L2_X = L2_F + 2048; L2_W = L2_X + 16 * 1040
L3_M3 = 98304; L3_M4 = L3_M3 + 4096; L3_TW = L3_M3 + 8192; L3_EX = L3_M3 + 16384
L3_LN = L3_EX + 16384; L3_RS = 2624
LDS_TOTAL = L3_LN + 8 * L3_RS
assert LDS_TOTAL <= 163840

STAMPS = ["entry", "p1 x landed", "p1 stores issued", "p1 arrived", "x1 released", "p2 x landed", "p2 stores issued",
          "x2 released", "p3 x2 landed", "p3 stores issued", "x3 released", "g1 main done", "g1 stores issued", "x4 released",
          "g2 main done", "g2 stores issued", "end", "x1 drained", "x2 drained", "x3 drained", "x4 drained", "p1 tables done", "p1 ln done", "p1 fft done", "p3 ifft done", "p3 ln done", "c:g1 start", "c:g1 end", "c:g2 start", "c:g2 end", "g2 x landed"]
nstamp = [len(STAMPS)]
SENT = lambda: "bar" not in OPT
SK = lambda: "nosk" not in OPT
W1F = lambda: " nt" if "ntw1" in OPT else ""
W2F = lambda: " nt" if "ntw2" in OPT else ""
XF = lambda: " nt" if "ntx" in OPT else ""
def stamp(b, name):
    if "stamp" not in OPT: return
    i = STAMPS.index(name)
    op = "s_memtime" if name.startswith("c:") else "s_memrealtime"
    b(f"  {op} s[{S_STAMP}:{S_STAMP+1}]   ; stamp {i}: {name}")
    b(f"  s_waitcnt lgkmcnt(0)")
    b(f"  v_writelane_b32 v231, s{S_STAMP}, {i}")

def stamp_flush(b):
    if "stamp" not in OPT: return
    if "dbgmax" in OPT:
        b(f"  s_cmp_lg_u32 s{S_W}, 0")
        b(f"  s_cbranch_scc1 dbg_skip")
        srd(b, 24, P_DBG, 256)
        b(f"  v_readlane_b32 s46, v231, 0")
        b(f"  s_sub_u32 s47, 0, s46")
        b(f"  v_mov_b32 v3, v231")
        b(f"  v_writelane_b32 v3, s47, 0")
        b(f"  v_writelane_b32 v3, s46, 15")
        b(f"  v_lshlrev_b32 v2, 2, v7")
        b(f"  s_mov_b64 s[48:49], exec")
        b(f"  s_mov_b64 exec, 0xffff")
        b(f"  buffer_atomic_umax v3, v2, s[24:27], 0 offen sc1")
        b(f"  s_mov_b64 exec, s[48:49]")
        b.label("dbg_skip")
        return
    if "dbgtime" in OPT:
        b(f"  s_cmp_lg_u32 s2, 100")
        b(f"  s_cbranch_scc1 dbg_skip")
        b(f"  s_cmp_lg_u32 s{S_W}, 0")
        b(f"  s_cbranch_scc1 dbg_skip")
        srd(b, 24, P_DBG, 256)
        b(f"  v_readlane_b32 s46, v231, 0")
        b(f"  s_nop 1")
        b(f"  v_subrev_u32 v3, s46, v231")
        b(f"  v_lshlrev_b32 v2, 2, v7")
        b(f"  v_subrev_u32 v2, 4, v2")
        b(f"  s_mov_b64 s[48:49], exec")
        b(f"  s_mov_b64 exec, 0x1fffe")
        b(f"  buffer_store_dword v3, v2, s[24:27], 0 offen")
        b(f"  s_mov_b64 exec, s[48:49]")
        b.label("dbg_skip")
        return
    srd(b, 24, P_WS, 1 << 20, WS_STAMP)
    b(f"  s_lshl_b32 s46, s2, 3")
    b(f"  s_add_u32 s46, s46, s{S_W}")
    b(f"  s_lshl_b32 s46, s46, 7            ; (wg*8+wave)*128")
    b(f"  v_lshlrev_b32 v2, 2, v7")
    b(f"  s_mov_b64 s[48:49], exec")
    b(f"  s_mov_b64 exec, 0xffffffff")
    b(f"  buffer_store_dword v231, v2, s[24:27], s46 offen")
    b(f"  s_mov_b64 exec, s[48:49]")

def arrive(b, bar, shard_sreg, first=False, label="", drained=False):
    if not drained: b(f"  s_waitcnt vmcnt(0)")
    stamp(b, f"x{bar+1} drained")
    b(f"  s_barrier")
    b(f"  s_cmp_lg_u32 s{S_W}, 0")
    b(f"  s_cbranch_scc1 {label}_arr_skip")
    if first:
        b(f"  s_mov_b32 s11, 100000")
        b.label(f"{label}_rdy")
        b(f"  v_cmp_ne_u32 vcc, 0, v27")
        b(f"  s_nop 1")
        b(f"  s_cmp_eq_u64 vcc, exec")
        b(f"  s_cbranch_scc1 {label}_rdy_ok")
        b(f"  buffer_load_dword v27, v26, s[{SRD_PF}:{SRD_PF+3}], 0 offen sc1")
        b(f"  s_waitcnt vmcnt(0)")
        b(f"  s_sub_u32 s11, s11, 1")
        b(f"  s_cmp_lg_u32 s11, 0")
        b(f"  s_cbranch_scc1 {label}_rdy")
        b.label(f"{label}_rdy_ok")
    b(f"  s_lshl_b32 s10, s{shard_sreg}, 8")
    b(f"  s_add_u32 s10, s10, {bar*4096}")
    b(f"  v_mov_b32 v228, s10")
    b(f"  v_mov_b32 v229, 1")
    b(f"  s_mov_b64 s[16:17], exec")
    b(f"  s_mov_b64 exec, 1")
    b(f"  buffer_atomic_add v229, v228, s[{SRD_CNT}:{SRD_CNT+3}], 0 offen sc1")
    b(f"  s_mov_b64 exec, s[16:17]")
    b.label(f"{label}_arr_skip")

def wait(b, bar, target, label, single_sreg=None):
    b(f"  s_cmp_lg_u32 s{S_W}, 0")
    b(f"  s_cbranch_scc1 {label}_w_skip")
    if single_sreg is None:
        b(f"  v_and_b32 v228, 15, v7")
        b(f"  v_lshlrev_b32 v228, 8, v228")
        b(f"  v_add_u32 v228, {bar*4096}, v228")
    else:
        b(f"  s_lshl_b32 s10, s{single_sreg}, 8")
        b(f"  s_add_u32 s10, s10, {bar*4096}")
        b(f"  v_mov_b32 v228, s10")
    b(f"  s_mov_b32 s11, 200000")
    b.label(f"{label}_poll")
    b(f"  buffer_load_dword v229, v228, s[{SRD_CNT}:{SRD_CNT+3}], 0 offen sc1")
    b(f"  s_waitcnt vmcnt(0)")
    b(f"  v_cmp_le_u32 vcc, {target}, v229")
    b(f"  s_nop 1")
    b(f"  s_cmp_eq_u64 vcc, exec")
    b(f"  s_cbranch_scc1 {label}_w_skip")
    b(f"  s_sub_u32 s11, s11, 1")
    b(f"  s_cmp_lg_u32 s11, 0")
    b(f"  s_cbranch_scc1 {label}_poll")
    b.label(f"{label}_w_skip")
    b(f"  s_barrier")

def prefetch(b, ptr_pair, nbytes, start, length, who_scale, who_sreg, vaddr, vdst, stmp, paced=False):
    chunk = -(-length // who_scale)
    n_per_wave = -(-chunk // (512 * 128))
    stride = -(-chunk // (512 * n_per_wave))
    stride = (stride + 3) // 4 * 4
    per_instr = 64 * stride
    srd(b, SRD_PF, ptr_pair, nbytes)
    b(f"  s_mul_i32 s{stmp}, s{who_sreg}, {chunk}")
    b(f"  s_mul_i32 s{stmp+1}, s{S_W}, {n_per_wave*per_instr}")
    b(f"  s_add_u32 s{stmp}, s{stmp}, s{stmp+1}")
    if start: b(f"  s_add_u32 s{stmp}, s{stmp}, {start}")
    b(f"  v_mul_u32_u24 v{vaddr}, {stride}, v7")
    for i in range(n_per_wave):
        b(f"  buffer_load_dword v{vdst}, v{vaddr}, s[{SRD_PF}:{SRD_PF+3}], s{stmp} offen")
        if i + 1 < n_per_wave: b(f"  s_add_u32 s{stmp}, s{stmp}, {per_instr}")
        if paced: b(f"  s_waitcnt vmcnt(0)")
    return n_per_wave

V_DUMMY = 232
def pf_wide(b, ptr_pair, nbytes, s_base, n, wave_lo, wave_hi, label):
    b(f"  s_cmp_lt_u32 s{S_W}, {wave_lo}")
    b(f"  s_cbranch_scc1 {label}")
    if wave_hi < 8:
        b(f"  s_cmp_ge_u32 s{S_W}, {wave_hi}")
        b(f"  s_cbranch_scc1 {label}")
    srd(b, SRD_PF, ptr_pair, nbytes)
    b(f"  s_sub_u32 s{S_T+9}, s{S_W}, {wave_lo}")
    b(f"  s_mul_i32 s{S_T+9}, s{S_T+9}, {n*1024}")
    b(f"  s_add_u32 s{S_T+9}, s{S_T+9}, s{s_base}")
    b(f"  v_lshlrev_b32 v29, 4, v7")
    for i in range(n):
        if i and i % 4 == 0: b(f"  s_add_u32 s{S_T+9}, s{S_T+9}, 4096")
        b(f"  buffer_load_dwordx4 {vr(V_DUMMY,4)}, v29, s[{SRD_PF}:{SRD_PF+3}], s{S_T+9} offen offset:{(i%4)*1024}")
    b.label(label)

def w1_share_base(b, sreg, part):
    b(f"  s_mul_i32 s{sreg}, s2, {W1B // 256}")
    if part: b(f"  s_add_u32 s{sreg}, s{sreg}, {part}")

def w1_first_half_base(b, sreg, part):
    b(f"  s_and_b32 s{sreg}, s2, 7")
    b(f"  s_mul_i32 s{sreg}, s{sreg}, {256*7168}")
    b(f"  s_lshr_b32 s{S_T+9}, s2, 3")
    b(f"  s_mul_i32 s{S_T+9}, s{S_T+9}, {4*7168}")
    b(f"  s_add_u32 s{sreg}, s{sreg}, s{S_T+9}")
    if part: b(f"  s_add_u32 s{sreg}, s{sreg}, {part}")

def p1_tables(b):
    M1, M2, TW = L1_M1, L1_M2, L1_TW
    b(f"  v_and_b32 v10, 255, v0            ; e")
    b(f"  v_lshrrev_b32 v11, 8, v0          ; u")
    b(f"  v_bfe_u32 v12, v10, 2, 4          ; lane&15")
    b(f"  v_lshl_add_u32 v12, v11, 4, v12   ; k1")
    b(f"  v_lshrrev_b32 v13, 6, v10         ; g")
    b(f"  v_and_b32 v14, 3, v10")
    b(f"  v_lshlrev_b32 v13, 3, v13")
    b(f"  v_lshl_add_u32 v13, v14, 1, v13   ; a0 = 8g + 2i")
    b(f"  v_mul_u32_u24 v15, v13, v12       ; a0*k1")
    b(f"  v_add_u32 v16, v15, v12           ; (a0+1)*k1")
    sincos(b, 17, 18, 15, 5, 21)
    sincos(b, 19, 20, 16, 5, 21)
    b(f"  v_lshlrev_b32 v22, 2, v10")
    b(f"  v_lshl_add_u32 v22, v11, 11, v22  ; u*2048 + e*4")
    b(f"  v_cvt_pk_bf16_f32 v23, v17, v19")
    b(f"  v_cvt_pk_bf16_f32 v24, -v18, -v20")
    b(f"  ds_write_b32 v22, v23 offset:{M1}")
    b(f"  ds_write_b32 v22, v24 offset:{M1+1024}")
    sincos(b, 17, 18, 15, 10, 21)
    sincos(b, 19, 20, 16, 10, 21)
    b(f"  ds_write_b32 v22, v17 offset:{TW}")
    b(f"  ds_write_b32 v22, v18 offset:{TW+1024}")
    b(f"  ds_write_b32 v22, v19 offset:{TW+4096}")
    b(f"  ds_write_b32 v22, v20 offset:{TW+4096+1024}")
    b(f"  v_bfe_u32 v12, v10, 2, 4          ; k2")
    b(f"  v_mul_u32_u24 v15, v13, v12")
    b(f"  v_add_u32 v16, v15, v12")
    sincos(b, 17, 18, 15, 5, 21)
    sincos(b, 19, 20, 16, 5, 21)
    b(f"  v_lshlrev_b32 v22, 2, v10")
    b(f"  v_cvt_pk_bf16_f32 v23, v17, v19")
    b(f"  v_cvt_pk_bf16_f32 v24, v18, v20")
    b(f"  v_cvt_pk_bf16_f32 v25, -v18, -v20")
    b(f"  ds_write_b32 v22, v23 offset:{M2}")
    b(f"  ds_write_b32 v22, v24 offset:{M2+1024}")
    b(f"  ds_write_b32 v22, v25 offset:{M2+2048}")

def ln_fast(b, X, T, S0, alt):
    b(f"  v_readlane_b32 s{S0}, v{X}, 0              ; pivot")
    b(f"  s_nop 1")
    for i in range(0, 16, 2):
        b(f"  v_pk_add_f32 {vr(X+i,2)}, {vr(X+i,2)}, s[{S0}:{S0+1}] op_sel_hi:[1,0] neg_lo:[0,1] neg_hi:[0,1]")
    b(f"  v_pk_add_f32 {vr(T,2)}, {vr(X,2)}, {vr(X+2,2)}")
    b(f"  v_pk_add_f32 {vr(T+2,2)}, {vr(X+8,2)}, {vr(X+10,2)}")
    b(f"  v_pk_mul_f32 {vr(T+4,2)}, {vr(X,2)}, {vr(X,2)}")
    b(f"  v_pk_add_f32 {vr(T,2)}, {vr(T,2)}, {vr(X+4,2)}")
    b(f"  v_pk_add_f32 {vr(T+2,2)}, {vr(T+2,2)}, {vr(X+12,2)}")
    b(f"  v_pk_fma_f32 {vr(T+4,2)}, {vr(X+2,2)}, {vr(X+2,2)}, {vr(T+4,2)}")
    b(f"  v_pk_add_f32 {vr(T,2)}, {vr(T,2)}, {vr(X+6,2)}")
    b(f"  v_pk_add_f32 {vr(T+2,2)}, {vr(T+2,2)}, {vr(X+14,2)}")
    for i in range(4, 16, 2):
        b(f"  v_pk_fma_f32 {vr(T+4,2)}, {vr(X+i,2)}, {vr(X+i,2)}, {vr(T+4,2)}")
    b(f"  v_add_f32 v{T}, v{T}, v{T+1}")
    b(f"  v_add_f32 v{T+2}, v{T+2}, v{T+3}")
    if not alt: b(f"  v_add_f32 v{T}, v{T}, v{T+2}")
    b(f"  v_add_f32 v{T+4}, v{T+4}, v{T+5}           ; squares")
    if alt:
        wave_reduce(b, [T, T+2, T+4])
        b(f"  v_sub_f32 v{T+1}, v{T}, v{T+2}             ; E - O")
        b(f"  v_add_f32 v{T}, v{T}, v{T+2}")
        b(f"  s_nop 0")
        b(f"  v_readlane_b32 s{S0+2}, v{T}, 63")
        b(f"  v_readlane_b32 s{S0+3}, v{T+4}, 63")
        b(f"  v_readlane_b32 s{S0+4}, v{T+1}, 63")
    else:
        wave_reduce(b, [T, T+4])
        b(f"  s_nop 0")
        b(f"  v_readlane_b32 s{S0+2}, v{T}, 63")
        b(f"  v_readlane_b32 s{S0+3}, v{T+4}, 63")
    b(f"  s_nop 0")
    b(f"  v_mov_b32 v{T}, {hex(f2u(1.0/1024))}")
    b(f"  v_mul_f32 v{T+1}, s{S0+2}, v{T}")
    b(f"  v_mul_f32 v{T+2}, s{S0+3}, v{T}")
    b(f"  v_fma_f32 v{T+2}, -v{T+1}, v{T+1}, v{T+2}  ; variance")
    b(f"  v_max_f32 v{T+2}, 0, v{T+2}")
    b(f"  v_add_f32 v{T+2}, {hex(f2u(1e-5))}, v{T+2}")
    b(f"  v_rsq_f32 v{T+4}, v{T+2}")
    b(f"  s_nop 0")
    b(f"  v_mul_f32 v{T+8}, -v{T+1}, v{T+4}          ; -mean*rstd")
    if alt: b(f"  v_mul_f32 v{T+6}, s{S0+4}, v{T+4}")
    for i in range(0, 16, 2):
        b(f"  v_pk_fma_f32 {vr(X+i,2)}, {vr(X+i,2)}, {vr(T+4,2)}, {vr(T+8,2)} op_sel_hi:[1,0,0]")

def x1_store_addr(b):
    b(f"  v_lshlrev_b32 v5, 15, v9")
    b(f"  v_lshl_add_u32 v5, v8, 2, v5")
    b(f"  s_and_b32 s{S_T+6}, s2, 15")
    b(f"  s_lshl_b32 s{S_T+6}, s{S_T+6}, 4")
    b(f"  s_lshr_b32 s{S_T+7}, s2, 4")
    b(f"  s_add_u32 s{S_T+6}, s{S_T+6}, s{S_T+7}")
    b(f"  s_lshl_b32 s{S_T+6}, s{S_T+6}, 6       ; pos*64")
    b(f"  s_lshl_b32 s{S_T+7}, s{S_W}, 19        ; 4w*131072")
    b(f"  s_add_u32 s44, s{S_T+6}, s{S_T+7}")

def w_early(b):
    srd(b, SRD_C, P_WR, WB)
    srd(b, SRD_D, P_WI, WB)
    b(f"  s_and_b32 s{S_T+2}, s2, 7              ; j1")
    b(f"  v_and_b32 v215, 1, v0                ; half")
    b(f"  v_bfe_u32 v11, v0, 5, 4              ; c")
    b(f"  v_bfe_u32 v12, v0, 1, 4              ; e")
    b(f"  v_lshl_add_u32 v13, v12, 4, v11      ; j2")
    b(f"  v_lshlrev_b32 v13, 3, v13")
    b(f"  v_add_u32 v13, s{S_T+2}, v13         ; j")
    b(f"  v_mul_u32_u24 v214, 1026, v13")
    b(f"  v_lshl_add_u32 v14, v215, 4, v214")
    b(f"  s_lshr_b32 s{S_T+3}, s2, 3           ; kb")
    b(f"  s_lshl_b32 s{S_T+3}, s{S_T+3}, 5")
    b(f"  buffer_load_dwordx4 {vr(WE,4)}, v14, s[{SRD_C}:{SRD_C+3}], s{S_T+3} offen{XF()}")
    b(f"  buffer_load_dwordx4 {vr(WE+4,4)}, v14, s[{SRD_D}:{SRD_D+3}], s{S_T+3} offen{XF()}")

def p1(b):
    srd(b, SRD_A, P_X, 4 << 20)
    srd(b, SRD_B, P_WS, 4 << 20, WS_X1)
    b(f"  s_lshl_b32 s{S_T}, s{S_W}, 8")
    b(f"  s_add_u32 s{S_T}, s{S_T}, s2          ; s")
    b(f"  s_lshl_b32 s{S_T+1}, s{S_T}, 11")
    b(f"  v_lshlrev_b32 v1, 9, v9")
    b(f"  v_lshl_add_u32 v1, v8, 2, v1")
    XD = 32
    b(f"  s_cmp_ge_u32 s2, 16")
    b(f"  s_cbranch_scc1 p1_noreset")
    b(f"  s_cmp_lg_u32 s{S_W}, 0")
    b(f"  s_cbranch_scc1 p1_noreset")
    b(f"  s_lshl_b32 s{S_T+2}, s2, 8")
    b(f"  v_lshlrev_b32 v2, 12, v7")
    b(f"  v_add_u32 v2, s{S_T+2}, v2")
    b(f"  v_mov_b32 v3, 0")
    b(f"  s_mov_b64 s[48:49], exec")
    b(f"  s_mov_b64 exec, 15")
    b(f"  buffer_store_dword v3, v2, s[{SRD_CNT}:{SRD_CNT+3}], 0 offen sc1")
    b(f"  s_mov_b64 exec, s[48:49]")
    b.label("p1_noreset")
    for i in range(8):
        b(f"  buffer_load_dword v{XD+i}, v1, s[{SRD_A}:{SRD_A+3}], s{S_T+1} offen offset:{64*i}{XF()}")
    NCLR = 0
    NWE = 0
    x1_store_addr(b)
    if SENT():
        b(f"  v_mov_b32 v60, -1")
        b(f"  v_mov_b32 v61, -1")
        b(f"  v_mov_b32 v62, -1")
        b(f"  v_mov_b32 v63, -1")
        b(f"  v_bfe_u32 v2, v7, 2, 3              ; j1")
        b(f"  v_lshrrev_b32 v3, 5, v7             ; i (0,1)")
        b(f"  v_lshlrev_b32 v2, 14, v2")
        b(f"  v_lshl_add_u32 v2, v3, 17, v2")
        b(f"  v_and_b32 v3, 3, v7")
        b(f"  v_lshl_add_u32 v2, v3, 4, v2")
        b(f"  buffer_store_dwordx4 v[60:63], v2, s[{SRD_B}:{SRD_B+3}], s44 offen{SF}")
        b(f"  s_add_u32 s{S_T+7}, s44, {2*131072}")
        b(f"  buffer_store_dwordx4 v[60:63], v2, s[{SRD_B}:{SRD_B+3}], s{S_T+7} offen{SF}")
        NCLR = 2
    if "wearly" in OPT:
        w_early(b); NCLR += 2
    npf = 0
    p1_tables(b)
    GM = 30
    gmat(b, GM, 2, False, 10)
    srd(b, SRD_PF, P_DBG, 256)
    b(f"  s_and_b32 s{S_T+8}, s2, 15")
    b(f"  s_lshl_b32 s{S_T+9}, s{S_T+8}, 2")
    b(f"  s_add_u32 s{S_T+9}, s{S_T+9}, 64")
    b(f"  v_mov_b32 v25, s{S_T+9}")
    b(f"  v_lshlrev_b32 v26, 2, v8")
    b(f"  v_add_u32 v26, 64, v26")
    b(f"  s_cmp_ge_u32 s2, 16")
    b(f"  s_cbranch_scc1 p1_noflag")
    b(f"  s_cmp_lg_u32 s{S_W}, 0")
    b(f"  s_cbranch_scc1 p1_noflag")
    b(f"  s_waitcnt vmcnt({8} + 0)".replace(" + 0", "") if NCLR == 0 else f"  s_waitcnt vmcnt({8 + NCLR})")
    b(f"  v_mov_b32 v3, 1")
    b(f"  s_mov_b64 s[48:49], exec")
    b(f"  s_mov_b64 exec, 1")
    b(f"  buffer_store_dword v3, v25, s[{SRD_PF}:{SRD_PF+3}], 0 offen sc1")
    b(f"  s_mov_b64 exec, s[48:49]")
    b.label("p1_noflag")
    b(f"  s_waitcnt lgkmcnt(0)")
    stamp(b, "p1 tables done")
    b(f"  s_barrier")
    npf = 0
    if "nopf" not in OPT:
        b(f"  s_mul_i32 s{S_T+8}, s2, 8208")
        if "ntx" not in OPT and "wpf" in OPT:
            pf_wide(b, P_WR, WB, S_T + 8, 3, 0, 3, "pf_p1a")
            pf_wide(b, P_WI, WB, S_T + 8, 3, 0, 3, "pf_p1b")
        if "ntw1" not in OPT and PFN[0]:
            w1_share_base(b, S_T + 8, 0)
            pf_wide(b, P_W1, W1B, S_T + 8, PFN[0], 4, 8, "pf_p1c")
    M1, M2, TW = 96, 112, 128
    b(f"  v_lshlrev_b32 v2, 4, v7")
    for i in range(4): b(f"  ds_read_b128 {vr(M1+4*i,4)}, v2 offset:{L1_M1+1024*i}")
    for i in range(3): b(f"  ds_read_b128 {vr(M2+4*i,4)}, v2 offset:{L1_M2+1024*i}")
    for i in range(8): b(f"  ds_read_b128 {vr(TW+4*i,4)}, v2 offset:{L1_TW+1024*i}")
    X = 40
    nW = 0 if ("nopf" in OPT or "ntx" in OPT or "wpf" not in OPT) else 6
    n1 = 0 if ("nopf" in OPT or "ntw1" in OPT) else PFN[0]
    b(f"  s_cmp_eq_u32 s{S_W}, 3")
    b(f"  s_cbranch_scc1 p1_xw0")
    b(f"  s_cmp_ge_u32 s{S_W}, 4")
    b(f"  s_cbranch_scc1 p1_xw4")
    b(f"  s_waitcnt vmcnt({NCLR + nW})")
    b(f"  s_branch p1_xwd")
    b.label("p1_xw4")
    b(f"  s_waitcnt vmcnt({NCLR + n1})")
    b(f"  s_branch p1_xwd")
    b.label("p1_xw0")
    b(f"  s_waitcnt vmcnt({NCLR})")
    b.label("p1_xwd")
    stamp(b, "p1 x landed")
    if "wearly" in OPT:
        b(f"  s_cmp_ge_u32 s2, 8")
        b(f"  s_cbranch_scc1 p1_nonyq")
        b(f"  buffer_load_ushort v212, v214, s[{SRD_C}:{SRD_C+3}], 0 offen offset:1024")
        b(f"  buffer_load_ushort v213, v214, s[{SRD_D}:{SRD_D+3}], 0 offen offset:1024")
        b.label("p1_nonyq")
    srd(b, SRD_PF, P_DBG, 256)
    for i in range(8):
        b(f"  v_lshlrev_b32 v{X+i}, 16, v{XD+i}")
        b(f"  v_and_b32 v{X+8+i}, 0xffff0000, v{XD+i}")
    T = 56
    ln_fast(b, X, T, S_T + 2, True)
    stamp(b, "p1 ln done")
    if SENT():
        b(f"  buffer_load_dword v27, v26, s[{SRD_PF}:{SRD_PF+3}], 0 offen sc1")
        b(f"  s_and_b32 s{S_T+8}, s2, 15")
        arrive(b, 0, S_T + 8, first=True, label="x1")
        stamp(b, "p1 arrived")
        srd(b, SRD_C, P_WS, 4 << 20, WS_X2)
        for i in range(4): b(f"  v_mov_b32 v{200+i}, -1")
        b(f"  v_lshlrev_b32 v2, 4, v0")
        b(f"  s_lshl_b32 s{S_T+7}, s2, 14")
        b(f"  buffer_store_dwordx4 v[200:203], v2, s[{SRD_C}:{SRD_C+3}], s{S_T+7} offen{SF}")
        b(f"  s_add_u32 s{S_T+7}, s{S_T+7}, 8192")
        b(f"  buffer_store_dwordx4 v[200:203], v2, s[{SRD_C}:{SRD_C+3}], s{S_T+7} offen{SF}")
    A = 64
    for be in range(2):
        for i in range(4):
            b(f"  v_cvt_pk_bf16_f32 v{A+4*be+i}, v{X+8*be+2*i}, v{X+8*be+2*i+1}")
    b(f"  s_waitcnt lgkmcnt(0)")
    b(f"  v_readlane_b32 s{S_T+5}, v{T+6}, 0")
    Y = 160
    for be in range(2):
        for u in range(2):
            for c in range(2):
                d = Y + ((be * 2 + u) * 2 + c) * 4
                b(f"  {MF32} {vr(d,4)}, {vr(A+4*be,4)}, {vr(M1+4*(2*u+c),4)}, 0")
    b(f"  s_nop 4")
    Bp = 72; W = 32; O = 40
    for u in range(2):
        for be in range(2):
            y = Y + ((be * 2 + u) * 2) * 4
            tw = TW + (be * 4 + u * 2) * 4
            cmul_pk(b, O + 8 * be, O + 8 * be + 4, y, y + 4, tw, tw + 4, W, False)
        for r in range(4):
            b(f"  v_cvt_pk_bf16_f32 v{Bp+8*u+r}, v{O+r}, v{O+8+r}")
            b(f"  v_cvt_pk_bf16_f32 v{Bp+8*u+4+r}, v{O+4+r}, v{O+12+r}")
    XO = 160
    b(f"  s_nop 1")
    for u in range(2):
        re, im = XO + 8 * u, XO + 8 * u + 4
        b(f"  {MF32} {vr(re,4)}, {vr(M2,4)}, {vr(Bp+8*u,4)}, 0")
        b(f"  {MF32} {vr(im,4)}, {vr(M2,4)}, {vr(Bp+8*u+4,4)}, 0")
        b(f"  {MF32} {vr(re,4)}, {vr(M2+4,4)}, {vr(Bp+8*u+4,4)}, {vr(re,4)}")
        b(f"  {MF32} {vr(im,4)}, {vr(M2+8,4)}, {vr(Bp+8*u,4)}, {vr(im,4)}")
    b(f"  s_and_b32 s{S_T+6}, s{S_W}, 1")
    b(f"  s_lshl_b32 s{S_T+6}, s{S_T+6}, 8")
    b(f"  s_lshr_b32 s{S_T+7}, s{S_W}, 1")
    b(f"  s_lshl_b32 s{S_T+7}, s{S_T+7}, 6")
    b(f"  s_add_u32 s{S_T+6}, s{S_T+6}, s{S_T+7}")
    b(f"  v_lshlrev_b32 v3, 12, v9")
    b(f"  v_lshl_add_u32 v3, v8, 2, v3")
    b(f"  v_add_u32 v3, s{S_T+6}, v3")
    b(f"  s_nop 2")
    b(f"  v_writelane_b32 v{XO}, s{S_T+5}, 0")
    b(f"  v_writelane_b32 v{XO+4}, 0, 0")
    PK = 32
    for u in range(2):
        for r in range(4):
            b(f"  v_cvt_pk_bf16_f32 v{PK+4*u+r}, v{XO+8*u+r}, v{XO+8*u+4+r}")
    for u in range(2):
        for r in range(4):
            b(f"  ds_write_b32 v3, v{PK+4*u+r} offset:{L1_EX + u*512 + r*1024}")
    if SENT(): b(f"  s_waitcnt lgkmcnt(0) vmcnt(0)")
    else:
        b(f"  buffer_load_dword v27, v26, s[{SRD_PF}:{SRD_PF+3}], 0 offen sc1")
        b(f"  s_waitcnt lgkmcnt(0)")
    stamp(b, "p1 fft done")
    b(f"  s_barrier")
    b(f"  v_lshlrev_b32 v4, 6, v9")
    b(f"  v_lshl_add_u32 v4, v8, 2, v4")
    b(f"  s_lshl_b32 s{S_T+6}, s{S_W}, 11")
    b(f"  s_add_u32 s{S_T+6}, s{S_T+6}, {L1_EX}")
    b(f"  v_add_u32 v4, s{S_T+6}, v4")
    Bd = 40
    for i in range(4):
        b(f"  ds_read2st64_b32 {vr(Bd+2*i,2)}, v4 offset0:{2*i} offset1:{2*i+1}")
    D = 48
    for i in range(4):
        b(f"  s_waitcnt lgkmcnt({3-i})")
        b(f"  {MF16} {vr(D+4*i,4)}, {vr(GM,2)}, {vr(Bd+2*i,2)}, 0")
    b(f"  s_nop 4")
    for i in range(4):
        b(f"  v_cvt_pk_bf16_f32 v{64+2*i}, v{D+4*i}, v{D+4*i+1}")
        b(f"  v_cvt_pk_bf16_f32 v{65+2*i}, v{D+4*i+2}, v{D+4*i+3}")
        b(f"  v_min_u32 v{64+2*i}, 0xfffffffe, v{64+2*i}")
        b(f"  v_min_u32 v{65+2*i}, 0xfffffffe, v{65+2*i}")
        for e in range(2):
            b(f"  s_add_u32 s{S_T+7}, s44, {i*131072 + e*16384}")
            b(f"  buffer_store_dword v{64+2*i+e}, v5, s[{SRD_B}:{SRD_B+3}], s{S_T+7} offen{SF}")
    stamp(b, "p1 stores issued")
    if not SENT():
        b(f"  s_and_b32 s{S_T+8}, s2, 15")
        arrive(b, 0, S_T + 8, first=True, label="x1")
        stamp(b, "p1 arrived")

XL2, WL2 = 32, 40
WE = 204
TC2, TS2 = 64, 68
def p2_setup(b):
    srd(b, SRD_A, P_WS, 4 << 20, WS_X1)
    srd(b, SRD_B, P_WS, 4 << 20, WS_X2)
    srd(b, SRD_C, P_WR, WB)
    srd(b, SRD_D, P_WI, WB)
    b(f"  s_and_b32 s{S_T}, s2, 7              ; j1")
    b(f"  s_lshr_b32 s{S_T+1}, s2, 3           ; kb")
    b(f"  v_and_b32 v10, 1, v0                 ; half")
    b(f"  v_bfe_u32 v11, v0, 5, 4              ; c")
    b(f"  v_bfe_u32 v12, v0, 1, 4              ; e")
    b(f"  v_lshl_add_u32 v13, v12, 4, v11      ; j2")
    b(f"  v_lshlrev_b32 v13, 3, v13")
    b(f"  v_add_u32 v13, s{S_T}, v13           ; j")
    b(f"  v_mul_u32_u24 v13, 1026, v13")
    b(f"  v_lshlrev_b32 v14, 4, v10")
    b(f"  v_add_u32 v14, v13, v14")
    b(f"  s_lshl_b32 s{S_T+3}, s{S_T+1}, 5")
    if "wearly" in OPT:
        b(f"  s_cmp_lg_u32 s{S_T+1}, 0")
        b(f"  s_cbranch_scc1 p2_nonyq")
        b(f"  s_waitcnt vmcnt(0)")
        b(f"  v_cmp_eq_u32 vcc, 0, v215")
        b(f"  v_and_b32 v50, 0xffff0000, v{WE}")
        b(f"  v_or_b32 v50, v50, v212")
        b(f"  v_cndmask_b32 v{WE}, v{WE}, v50, vcc")
        b(f"  v_and_b32 v50, 0xffff0000, v{WE+4}")
        b(f"  v_or_b32 v50, v50, v213")
        b(f"  v_cndmask_b32 v{WE+4}, v{WE+4}, v50, vcc")
        b.label("p2_nonyq")
    elif "wlate" in OPT:
        b(f"  v_mov_b32 v24, v14")
        b(f"  v_mov_b32 v25, v13")
        b(f"  v_mov_b32 v26, v10                   ; half")
        b(f"  s_mov_b32 s45, s{S_T+3}              ; kb*32")
    else:
        WL = WL2
        b(f"  v_mov_b32 v24, v14")
        b(f"  v_mov_b32 v25, v13")
        b(f"  v_mov_b32 v26, v10                   ; half")
        b(f"  s_mov_b32 s45, s{S_T+3}              ; kb*32")
        WL = WL2
        b(f"  buffer_load_dwordx4 {vr(WL,4)}, v24, s[{SRD_C}:{SRD_C+3}], s45 offen{XF()}")
        b(f"  buffer_load_dwordx4 {vr(WL+4,4)}, v24, s[{SRD_D}:{SRD_D+3}], s45 offen{XF()}")
        b(f"  s_cmp_lg_u32 s{S_T+1}, 0")
        b(f"  s_cbranch_scc1 p2_nonyq")
        b(f"  buffer_load_ushort v48, v25, s[{SRD_C}:{SRD_C+3}], 0 offen offset:1024")
        b(f"  buffer_load_ushort v49, v25, s[{SRD_D}:{SRD_D+3}], 0 offen offset:1024")
        b(f"  s_waitcnt vmcnt(0)")
        b(f"  v_cmp_eq_u32 vcc, 0, v26")
        b(f"  v_and_b32 v50, 0xffff0000, v{WL}")
        b(f"  v_or_b32 v50, v50, v48")
        b(f"  v_cndmask_b32 v{WL}, v{WL}, v50, vcc")
        b(f"  v_and_b32 v50, 0xffff0000, v{WL+4}")
        b(f"  v_or_b32 v50, v50, v49")
        b(f"  v_cndmask_b32 v{WL+4}, v{WL+4}, v50, vcc")
        b.label("p2_nonyq")
    npf = 0
    b(f"  v_and_b32 v15, 255, v0")
    b(f"  v_bfe_u32 v16, v15, 2, 4             ; x")
    b(f"  v_lshrrev_b32 v17, 6, v15            ; g")
    b(f"  v_and_b32 v18, 3, v15")
    b(f"  v_lshl_add_u32 v17, v17, 2, v18      ; 4g+i")
    b(f"  v_mul_u32_u24 v17, v17, v16")
    sincos(b, 18, 19, 17, 4, 20)
    b(f"  v_cmp_gt_u32 vcc, 256, v0            ; matrix 0 ?")
    b(f"  v_xor_b32 v20, 0x80000000, v19       ; -sin")
    b(f"  s_nop 0")
    b(f"  v_cndmask_b32 v21, v20, v18, vcc")
    b(f"  v_cndmask_b32 v22, v18, v19, vcc")
    b(f"  v_cvt_pk_bf16_f32 v21, v21, v22")
    b(f"  v_lshlrev_b32 v22, 2, v0")
    b(f"  ds_write_b32 v22, v21 offset:{L2_F}")
    b(f"  v_lshlrev_b32 v16, 2, v9")
    for r in range(4):
        b(f"  v_add_u32 v17, {r}, v16")
        b(f"  v_mul_u32_u24 v17, v17, v8")
        sincos(b, TC2 + r, TS2 + r, 17, 8, 20)
    b(f"  v_and_b32 v16, 3, v0                 ; i")
    b(f"  v_mul_u32_u24 v16, {4*1040}, v16")
    b(f"  v_lshrrev_b32 v17, 6, v0             ; b (0..7)")
    b(f"  v_lshl_add_u32 v16, v17, 6, v16")
    b(f"  v_bfe_u32 v17, v0, 2, 2              ; a&3")
    b(f"  v_lshl_add_u32 v16, v17, 2, v16")
    b(f"  v_bfe_u32 v17, v0, 4, 2              ; a>>2")
    b(f"  v_lshl_add_u32 v21, v17, 4, v16      ; first")
    b(f"  v_xor_b32 v17, 2, v17")
    b(f"  v_lshl_add_u32 v22, v17, 4, v16")
    b(f"  v_add_u32 v22, 512, v22              ; second (b+8)")
    b(f"  v_mul_u32_u24 v16, {4*1040}, v10")
    b(f"  v_lshl_add_u32 v16, v11, 6, v16")
    b(f"  v_and_b32 v17, 3, v12")
    b(f"  v_lshl_add_u32 v16, v17, 2, v16")
    b(f"  v_lshrrev_b32 v17, 2, v12")
    b(f"  v_lshrrev_b32 v18, 3, v11            ; c>>3")
    b(f"  v_lshlrev_b32 v18, 1, v18")
    b(f"  v_xor_b32 v17, v17, v18")
    b(f"  v_lshl_add_u32 v23, v17, 4, v16")
    b(f"  v_lshrrev_b32 v16, 3, v8")
    b(f"  v_lshlrev_b32 v16, 1, v16")
    b(f"  v_xor_b32 v16, v16, v9")
    b(f"  v_lshlrev_b32 v16, 4, v16")
    b(f"  v_lshl_add_u32 v16, v8, 6, v16")
    b(f"  s_mul_i32 s{S_T+4}, s{S_W}, {2*1040}")
    b(f"  s_mul_i32 s{S_T+5}, s{S_W}, 1040")
    b(f"  v_add_u32 v5, s{S_T+4}, v16")
    b(f"  v_add_u32 v6, s{S_T+5}, v16")
    b(f"  v_lshlrev_b32 v1, 4, v0")
    b(f"  s_lshl_b32 s{S_T+2}, s2, 14")
    b(f"  s_add_u32 s{S_T+3}, s{S_T+2}, 8192")
    b(f"  s_waitcnt lgkmcnt(0)")

def sentinel_check(b, R0, pre, n=8):
    b(f"  v_max3_u32 v16, v{R0}, v{R0+1}, v{R0+2}")
    b(f"  v_max3_u32 v17, v{R0+3}, v{R0+4}, v{R0+5}")
    b(f"  v_max3_u32 v16, v16, v{R0+6}, v{R0+7}")
    for i in range(8, n, 2): b(f"  v_max3_u32 v17, v17, v{R0+i}, v{R0+i+1}")
    b(f"  v_max_u32 v16, v16, v17")
    b(f"  v_cmp_eq_u32 vcc, -1, v16")
    b(f"  s_sub_u32 s11, s11, 1")
    b(f"  s_cmp_eq_u32 s11, 0")
    b(f"  s_cbranch_scc1 {pre}_got")
    b(f"  s_cmp_lg_u64 vcc, 0")
    b(f"  s_cbranch_scc1 {pre}_poll")
    b.label(f"{pre}_got")

def p2_main(b):
    XL = XL2; TC, TS = TC2, TS2
    if SENT():
        b(f"  s_mov_b32 s11, 200000")
        b.label("p2_poll")
    b(f"  buffer_load_dwordx4 {vr(XL,4)}, v1, s[{SRD_A}:{SRD_A+3}], s{S_T+2} offen sc1")
    b(f"  buffer_load_dwordx4 {vr(XL+4,4)}, v1, s[{SRD_A}:{SRD_A+3}], s{S_T+3} offen sc1")
    if "wlate" in OPT:
        assert not SENT()
        WL = WL2
        b(f"  buffer_load_dwordx4 {vr(WL,4)}, v24, s[{SRD_C}:{SRD_C+3}], s45 offen{XF()}")
        b(f"  buffer_load_dwordx4 {vr(WL+4,4)}, v24, s[{SRD_D}:{SRD_D+3}], s45 offen{XF()}")
        b(f"  s_cmp_lg_u32 s{S_T+1}, 0")
        b(f"  s_cbranch_scc1 p2_nonyq")
        b(f"  buffer_load_ushort v56, v25, s[{SRD_C}:{SRD_C+3}], 0 offen offset:1024")
        b(f"  buffer_load_ushort v57, v25, s[{SRD_D}:{SRD_D+3}], 0 offen offset:1024")
        b(f"  s_waitcnt vmcnt(0)")
        b(f"  v_cmp_eq_u32 vcc, 0, v26")
        b(f"  v_and_b32 v58, 0xffff0000, v{WL}")
        b(f"  v_or_b32 v58, v58, v56")
        b(f"  v_cndmask_b32 v{WL}, v{WL}, v58, vcc")
        b(f"  v_and_b32 v58, 0xffff0000, v{WL+4}")
        b(f"  v_or_b32 v58, v58, v57")
        b(f"  v_cndmask_b32 v{WL+4}, v{WL+4}, v58, vcc")
        b.label("p2_nonyq")
        b(f"  s_waitcnt vmcnt(2)")
    else:
        b(f"  s_waitcnt vmcnt(0)")
    if SENT(): sentinel_check(b, XL, "p2")
    WL = WE if "wearly" in OPT else WL2
    b(f"  v_lshlrev_b32 v17, 4, v7")
    FR, FI = 72, 76
    AX = 48; WR, WI = 152, 156
    b(f"  ds_read_b128 {vr(FR,4)}, v17 offset:{L2_F}")
    b(f"  ds_read_b128 {vr(FI,4)}, v17 offset:{L2_F+1024}")
    Dq = [80, 88]; Oq = [96, 104]; Tq = [112, 120]; Pq = [128, 132]; Wq = [136, 144]
    stamp(b, "p2 x landed")
    for j in range(4):
        b(f"  ds_write_b32 v21, v{XL+j} offset:{L2_X + j*1040}")
        b(f"  ds_write_b32 v22, v{XL+4+j} offset:{L2_X + j*1040}")
    if "wlate" in OPT: b(f"  s_waitcnt vmcnt(0)")
    for j in range(4):
        b(f"  ds_write_b32 v23, v{WL+j} offset:{L2_W + j*1040}")
        b(f"  ds_write_b32 v23, v{WL+4+j} offset:{L2_W + 8*1040 + j*1040}")
    if "nopf" not in OPT and "ntw1" not in OPT and PFN[1]:
        w1_share_base(b, S_T + 8, PFN[0] * 4096)
        pf_wide(b, P_W1, W1B, S_T + 8, PFN[1], 4, 8, "pf_p2a")
    b(f"  s_waitcnt lgkmcnt(0)")
    b(f"  s_barrier")
    b(f"  ds_read_b128 {vr(AX,4)}, v5 offset:{L2_X}")
    b(f"  ds_read_b128 {vr(AX+4,4)}, v5 offset:{L2_X+1040}")
    b(f"  ds_read_b128 {vr(WR,4)}, v6 offset:{L2_W}")
    b(f"  ds_read_b128 {vr(WI,4)}, v6 offset:{L2_W+8*1040}")
    def stage(form, src):
        for k in range(2):
            d = Dq[k]
            if form == 'A':
                b(f"  {MF32} {vr(d,4)}, {vr(src[k],4)}, {vr(FR,4)}, 0")
                b(f"  {MF32} {vr(d+4,4)}, {vr(src[k],4)}, {vr(FI,4)}, 0")
            else:
                b(f"  {MF32} {vr(d,4)}, {vr(FR,4)}, {vr(src[k],4)}, 0")
                b(f"  {MF32} {vr(d+4,4)}, {vr(FI,4)}, {vr(src[k],4)}, 0")
    def twiddle_pack():
        for k in range(2):
            cmul_pk(b, Oq[k], Oq[k] + 4, Dq[k], Dq[k] + 4, TC, TS, Tq[k], False)
        for k in range(2):
            for r in range(4):
                b(f"  v_cvt_pk_bf16_f32 v{Pq[k]+r}, v{Oq[k]+r}, v{Oq[k]+4+r}")
        b(f"  s_nop 1")
    b(f"  s_waitcnt lgkmcnt(2)")
    stage('A', [AX, AX + 4])
    b(f"  s_waitcnt lgkmcnt(0)")
    for r in range(4):
        b(f"  v_lshlrev_b32 v{Wq[0]+r}, 16, v{WR+r}")
        b(f"  v_lshlrev_b32 v{Wq[0]+4+r}, 16, v{WI+r}")
        b(f"  v_and_b32 v{Wq[1]+r}, 0xffff0000, v{WR+r}")
        b(f"  v_and_b32 v{Wq[1]+4+r}, 0xffff0000, v{WI+r}")
    twiddle_pack()
    stage('B', Pq)
    b(f"  s_nop 5")
    for k in range(2):
        cmul_pk(b, Oq[k], Oq[k] + 4, Dq[k], Dq[k] + 4, Wq[k], Wq[k] + 4, Tq[k], True)
    for k in range(2):
        for r in range(4):
            b(f"  v_cvt_pk_bf16_f32 v{Pq[k]+r}, v{Oq[k]+r}, -v{Oq[k]+4+r}")
    b(f"  s_nop 1")
    stage('A', Pq)
    b(f"  s_nop 5")
    twiddle_pack()
    stage('B', Pq)
    b(f"  s_nop 5")
    for k in range(2):
        for r in range(4):
            b(f"  v_cvt_pk_bf16_f32 v{Pq[k]+r}, v{Dq[k]+r}, -v{Dq[k]+4+r}")
    b(f"  ds_write_b128 v5, {vr(Pq[0],4)} offset:{L2_X}")
    b(f"  ds_write_b128 v5, {vr(Pq[1],4)} offset:{L2_X+1040}")
    b(f"  s_waitcnt lgkmcnt(0)")
    b(f"  s_barrier")
    for j in range(4):
        b(f"  ds_read_b32 v{XL+j}, v21 offset:{L2_X + j*1040}")
        b(f"  ds_read_b32 v{XL+4+j}, v22 offset:{L2_X + j*1040}")
    b(f"  v_bfe_u32 v16, v0, 2, 4              ; a")
    b(f"  v_lshrrev_b32 v17, 6, v0             ; b")
    b(f"  v_lshl_add_u32 v16, v16, 4, v17      ; s1")
    b(f"  v_lshlrev_b32 v16, 14, v16")
    b(f"  v_and_b32 v17, 3, v0")
    b(f"  v_lshl_add_u32 v16, v17, 4, v16")
    b(f"  s_lshl_b32 s{S_T+4}, s{S_T}, 11")
    b(f"  s_lshl_b32 s{S_T+5}, s{S_T+1}, 6")
    b(f"  s_add_u32 s{S_T+4}, s{S_T+4}, s{S_T+5}")
    b(f"  s_add_u32 s{S_T+5}, s{S_T+4}, {8*16384}")
    b(f"  s_waitcnt lgkmcnt(0)")
    for j in range(8): b(f"  v_min_u32 v{XL+j}, 0xfffffffe, v{XL+j}")
    b(f"  buffer_store_dwordx4 {vr(XL,4)}, v16, s[{SRD_B}:{SRD_B+3}], s{S_T+4} offen{SF}")
    b(f"  buffer_store_dwordx4 {vr(XL+4,4)}, v16, s[{SRD_B}:{SRD_B+3}], s{S_T+5} offen{SF}")
    stamp(b, "p2 stores issued")
    if not SENT():
        b(f"  s_and_b32 s{S_T+8}, s2, 15")
        arrive(b, 1, S_T + 8, label="x2")

V_LO = 224
S_G1A = 60
def g1_ids(b):
    b(f"  s_lshr_b32 s{S_T}, s2, 3                 ; i")
    b(f"  s_cmp_lt_u32 s{S_T}, 28")
    b(f"  s_cselect_b32 s62, 1, 0")
    b(f"  s_mul_i32 s{S_T+1}, s{S_T}, 37")
    b(f"  s_lshr_b32 s{S_T+1}, s{S_T+1}, 8         ; i/7")
    b(f"  s_mul_i32 s{S_T+2}, s{S_T+1}, 7")
    b(f"  s_sub_u32 s{S_T+2}, s{S_T}, s{S_T+2}     ; i%7")
    b(f"  s_and_b32 s{S_T+3}, s2, 7")
    b(f"  s_lshr_b32 s{S_T+4}, s{S_T+3}, 1")
    b(f"  s_mul_i32 s{S_T+4}, s{S_T+4}, 7")
    b(f"  s_add_u32 s60, s{S_T+4}, s{S_T+2}        ; ft")
    b(f"  s_and_b32 s{S_T+3}, s{S_T+3}, 1")
    b(f"  s_lshl_b32 s{S_T+3}, s{S_T+3}, 2")
    b(f"  s_add_u32 s61, s{S_T+3}, s{S_T+1}        ; dt")

S_SOFF, S_M0, S_N = 4, 5, 6
def loader_issue(b, voff, fl=""):
    for i in range(4):
        b(f"  s_add_u32 m0, s{S_M0}, {4096*i}")
        b(f"  s_nop 0")
        b(f"  buffer_load_dwordx4 v{voff+i}, s[{SRD_T}:{SRD_T+3}], s{S_SOFF} offen{fl} lds")
    b(f"  s_add_u32 s{S_SOFF}, s{S_SOFF}, s9")
    b(f"  s_add_u32 s{S_M0}, s{S_M0}, {STAGE}")
    b(f"  s_cmp_ge_u32 s{S_M0}, s{S_N+1}")
    b(f"  s_cselect_b32 s{S_N+2}, {R*STAGE}, 0")
    b(f"  s_sub_u32 s{S_M0}, s{S_M0}, s{S_N+2}")

def loader_init(b, step_bytes):
    b(f"  s_sub_u32 s50, s{S_W}, 4")
    b(f"  s_lshl_b32 s{S_M0}, s50, 10")
    b(f"  s_add_u32 s{S_N+1}, s{S_M0}, {R*STAGE}")
    b(f"  s_mov_b32 s{S_SOFF}, 0")
    b(f"  s_mov_b32 s9, {step_bytes}")

def g1_loader_addr(b):
    b(f"  s_sub_u32 s50, s{S_W}, 4      ; w'")
    for i in range(4):
        b(f"  s_lshl_b32 s49, s50, 2")
        b(f"  s_add_u32 s49, s49, {16*i}")
        b(f"  v_lshrrev_b32 v14, 4, v7")
        b(f"  v_add_u32 v14, s49, v14                 ; row 0..63")
        b(f"  v_and_b32 v15, 3, v14")
        b(f"  v_lshlrev_b32 v15, 2, v15")
        b(f"  v_and_b32 v16, 15, v7")
        b(f"  v_xor_b32 v16, v16, v15                 ; q")
        b(f"  v_lshrrev_b32 v17, 3, v14")
        b(f"  v_and_b32 v18, 7, v14")
        b(f"  v_lshl_add_u32 v17, v18, 8, v17         ; s")
        b(f"  v_mul_u32_u24 v17, 7168, v17")
        b(f"  v_lshl_add_u32 v17, v16, 4, v17")
        b(f"  s_lshl_b32 s49, s60, 8")
        b(f"  v_add_u32 v{V_LO+i}, s49, v17")

def g2_ids(b):
    if SK():
        b(f"  s_lshr_b32 s{S_T+1}, s2, 3")
        b(f"  s_lshr_b32 s{S_TILE_A}, s{S_T+1}, 2          ; dt")
        b(f"  s_lshr_b32 s{S_T}, s2, 1")
        b(f"  s_and_b32 s{S_T}, s{S_T}, 3")
        b(f"  s_lshl_b32 s{S_T}, s{S_T}, 2")
        b(f"  s_and_b32 s{S_T+1}, s{S_T+1}, 3")
        b(f"  s_add_u32 s{S_TILE_B}, s{S_T}, s{S_T+1}      ; st2")
        b(f"  s_and_b32 s19, s2, 1                       ; kh")
        return
    b(f"  s_and_b32 s{S_T}, s2, 1")
    b(f"  s_lshl_b32 s{S_T}, s{S_T}, 2")
    b(f"  s_lshr_b32 s{S_T+1}, s2, 3")
    b(f"  s_and_b32 s{S_T+2}, s{S_T+1}, 3")
    b(f"  s_add_u32 s{S_TILE_A}, s{S_T}, s{S_T+2}     ; dt")
    b(f"  s_lshr_b32 s{S_T}, s2, 1")
    b(f"  s_and_b32 s{S_T}, s{S_T}, 3")
    b(f"  s_lshl_b32 s{S_T}, s{S_T}, 3")
    b(f"  s_lshr_b32 s{S_T+1}, s{S_T+1}, 2")
    b(f"  s_add_u32 s{S_TILE_B}, s{S_T}, s{S_T+1}     ; st")

def g2_loader_addr(b):
    if SK():
        b(f"  s_sub_u32 s50, s{S_W}, 4")
        for i in range(4):
            b(f"  s_lshl_b32 s49, s50, 2")
            b(f"  s_add_u32 s49, s49, {16*i}")
            b(f"  v_lshrrev_b32 v14, 4, v7")
            b(f"  v_add_u32 v14, s49, v14                 ; row 0..63")
            b(f"  v_and_b32 v15, 3, v14")
            b(f"  v_lshlrev_b32 v15, 2, v15")
            b(f"  v_and_b32 v16, 15, v7")
            b(f"  v_xor_b32 v16, v16, v15                 ; q")
            b(f"  v_lshlrev_b32 v14, 12, v14              ; row*4096")
            b(f"  v_lshl_add_u32 v14, v16, 4, v14")
            b(f"  s_lshl_b32 s49, s{S_TILE_B}, 8          ; s0*2")
            b(f"  s_mul_i32 s48, s19, {1792*4096}         ; k half")
            b(f"  s_add_u32 s49, s49, s48")
            b(f"  v_add_u32 v{V_LO+i}, s49, v14")
        return
    b(f"  s_sub_u32 s50, s{S_W}, 4")
    for i in range(4):
        b(f"  s_lshl_b32 s49, s50, 3")
        b(f"  s_add_u32 s49, s49, {32*i}")
        b(f"  v_lshrrev_b32 v14, 3, v7")
        b(f"  v_add_u32 v14, s49, v14                 ; row")
        b(f"  v_bfe_u32 v15, v14, 1, 1")
        b(f"  v_lshlrev_b32 v15, 2, v15")
        b(f"  v_and_b32 v16, 7, v7")
        b(f"  v_xor_b32 v16, v16, v15                 ; q")
        b(f"  v_lshlrev_b32 v14, 12, v14              ; row*4096")
        b(f"  v_lshl_add_u32 v14, v16, 4, v14")
        b(f"  s_lshl_b32 s49, s{S_TILE_B}, 7          ; s0*2")
        b(f"  v_add_u32 v{V_LO+i}, s49, v14")

def loader_loop(b, NS, pre, fl=""):
    nmain = NS - (R - 2)
    b(f"  s_mov_b32 s{S_N}, {nmain}")
    b.label(f"{pre}_lloop")
    b(f"  s_waitcnt vmcnt({(R-3)*4})")
    b("  s_barrier")
    loader_issue(b, V_LO, fl)
    b(f"  s_sub_u32 s{S_N}, s{S_N}, 1")
    b(f"  s_cmp_lg_u32 s{S_N}, 0")
    b(f"  s_cbranch_scc1 {pre}_lloop")
    for i in range(R - 2):
        b(f"  s_waitcnt vmcnt({(R-3-i)*4})")
        b("  s_barrier")

BD3 = 32; XR3 = 192; GM3 = 30
def p3_tables(b):
    b(f"  v_and_b32 v10, 255, v0            ; e")
    b(f"  v_lshrrev_b32 v11, 8, v0")
    b(f"  v_bfe_u32 v12, v10, 2, 4          ; n = lane&15")
    b(f"  v_lshrrev_b32 v13, 6, v10         ; g")
    b(f"  v_and_b32 v14, 3, v10             ; r")
    b(f"  v_lshl_add_u32 v13, v13, 2, v14   ; 4g + r")
    b(f"  v_lshrrev_b32 v15, 2, v12")
    b(f"  v_lshlrev_b32 v15, 3, v15")
    b(f"  v_and_b32 v16, 3, v12")
    b(f"  v_add_u32 v15, v15, v16           ; b(n,0)")
    b(f"  v_lshl_add_u32 v16, v11, 2, v15   ; b(n, sel)")
    b(f"  v_mul_u32_u24 v17, v16, v13")
    sincos(b, 18, 19, 17, 5, 20)
    b(f"  v_lshlrev_b32 v22, 2, v10")
    b(f"  v_lshl_add_u32 v22, v11, 11, v22  ; sel*2048 + e*4")
    b(f"  v_add_u32 v22, {L3_M3}, v22")
    b(f"  v_cvt_pk_bf16_f32 v23, v18, -v19")
    b(f"  v_cvt_pk_bf16_f32 v24, v19, v18")
    b(f"  ds_write_b32 v22, v23")
    b(f"  ds_write_b32 v22, v24 offset:1024")
    b(f"  v_lshl_add_u32 v17, v11, 4, v13   ; k1")
    for z in range(2):
        b(f"  v_add_u32 v21, {16*z}, v12")
        b(f"  v_mul_u32_u24 v21, v21, v17")
        sincos(b, 18, 19, 21, 5, 20)
        b(f"  v_add_f32 v18, v18, v18")
        b(f"  v_mul_f32 v19, -2.0, v19")
        b(f"  v_cvt_pk_bf16_f32 v23, v18, v19")
        b(f"  ds_write_b32 v22, v23 offset:{4096+1024*z}")
    b(f"  v_lshlrev_b32 v23, 2, v10")
    b(f"  v_lshl_add_u32 v23, v11, 12, v23   ; u*4096 + e*4")
    b(f"  v_add_u32 v23, {L3_TW}, v23")
    for v in range(2):
        b(f"  v_add_u32 v21, {4*v}, v15")
        b(f"  v_mul_u32_u24 v21, v21, v17")
        sincos(b, 18, 19, 21, 10, 20)
        b(f"  ds_write_b32 v23, v18 offset:{2048*v}")
        b(f"  ds_write_b32 v23, v19 offset:{2048*v+1024}")

def p3_setup(b):
    srd(b, SRD_A, P_WS, 4 << 20, WS_X2)
    srd(b, SRD_B, P_X, 4 << 20)
    srd(b, SRD_C, P_WS, 4 << 20, WS_H)
    srd(b, SRD_D, P_WS, 4 << 20, WS_LN2)
    b(f"  s_lshl_b32 s{S_T+3}, s{S_W}, 8")
    b(f"  s_add_u32 s{S_T+3}, s{S_T+3}, s2")
    b(f"  s_lshl_b32 s{S_T+3}, s{S_T+3}, 11       ; s*2048")
    b(f"  v_lshlrev_b32 v4, 6, v8")
    b(f"  v_lshl_add_u32 v4, v9, 4, v4")
    for z in range(2):
        b(f"  buffer_load_dwordx4 {vr(XR3+4*z,4)}, v4, s[{SRD_B}:{SRD_B+3}], s{S_T+3} offen offset:{1024*z}")
    b(f"  s_mov_b32 s63, s{S_T+3}")
    if SK():
        srd(b, SRD_PF, P_WS, 4 << 20, WS_XCH)
        for i in range(4): b(f"  v_mov_b32 v{200+i}, -1")
        b(f"  v_lshlrev_b32 v2, 4, v0")
        b(f"  s_lshl_b32 s{S_T+8}, s2, 14")
        b(f"  buffer_store_dwordx4 v[200:203], v2, s[{SRD_PF}:{SRD_PF+3}], s{S_T+8} offen{SF}")
        b(f"  s_add_u32 s{S_T+8}, s{S_T+8}, 8192")
        b(f"  buffer_store_dwordx4 v[200:203], v2, s[{SRD_PF}:{SRD_PF+3}], s{S_T+8} offen{SF}")
    if "nopf" not in OPT and "ntw1" not in OPT:
        if PFN[2]:
            w1_share_base(b, S_T + 8, (PFN[0] + PFN[1]) * 4096)
            pf_wide(b, P_W1, W1B, S_T + 8, PFN[2], 4, 8, "pf_p3a")
    g1_ids(b)
    g1_loader_addr(b)
    loader_init(b, 8 * 7168)
    p3_tables(b)
    gmat(b, GM3, 2, True, 10)
    b(f"  v_lshlrev_b32 v1, 12, v9")
    b(f"  v_lshl_add_u32 v1, v8, 2, v1")
    b(f"  s_lshl_b32 s{S_T}, s2, 14")
    b(f"  s_and_b32 s{S_T+1}, s{S_W}, 1")
    b(f"  s_lshl_b32 s{S_T+1}, s{S_T+1}, 6")
    b(f"  s_lshr_b32 s{S_T+2}, s{S_W}, 1")
    b(f"  s_lshl_b32 s{S_T+2}, s{S_T+2}, 9")
    b(f"  s_add_u32 s{S_T}, s{S_T}, s{S_T+1}")
    b(f"  s_add_u32 s44, s{S_T}, s{S_T+2}          ; X2 soffset")
    b(f"  s_lshl_b32 s{S_T+1}, s{S_T+1}, 4        ; u*1024")
    b(f"  s_lshr_b32 s{S_T+2}, s{S_T+2}, 1        ; q4*256")
    b(f"  s_add_u32 s45, s{S_T+1}, s{S_T+2}")
    b(f"  s_waitcnt lgkmcnt(0)")

def p3_main(b):
    Bd, XR, GM = BD3, XR3, GM3
    D = 40
    b(f"  v_lshlrev_b32 v3, 12, v9")
    b(f"  v_lshl_add_u32 v3, v8, 4, v3")
    b(f"  v_add_u32 v3, s45, v3")
    b(f"  v_add_u32 v3, {L3_EX}, v3")
    M3, M4, TW = 96, 112, 128
    b(f"  v_lshlrev_b32 v6, 4, v7")
    b(f"  v_add_u32 v6, {L3_M3}, v6")
    for i in range(4): b(f"  ds_read_b128 {vr(M3+4*i,4)}, v6 offset:{1024*i}")
    for i in range(4): b(f"  ds_read_b128 {vr(M4+4*i,4)}, v6 offset:{4096+1024*i}")
    b(f"  s_waitcnt lgkmcnt(0)")
    for i in range(8): b(f"  ds_read_b128 {vr(TW+4*i,4)}, v6 offset:{8192+1024*i}")
    if SENT():
        b(f"  s_mov_b32 s11, 200000")
        b.label("p3_poll")
    for i in range(4):
        for e in range(2):
            b(f"  buffer_load_dword v{Bd+2*i+e}, v1, s[{SRD_A}:{SRD_A+3}], s44 offen offset:{e*2048+i*128} sc1")
    b(f"  s_waitcnt vmcnt(0)")
    if SENT(): sentinel_check(b, Bd, "p3")
    stamp(b, "p3 x2 landed")
    if "nopf" not in OPT and "ntw1" not in OPT and PFN[3]:
        w1_share_base(b, S_T + 8, (PFN[0] + PFN[1] + PFN[2]) * 4096)
        pf_wide(b, P_W1, W1B, S_T + 8, PFN[3], 4, 8, "pf_p3b")
    for i in range(4):
        b(f"  {MF16} {vr(D+4*i,4)}, {vr(GM,2)}, {vr(Bd+2*i,2)}, 0")
    b(f"  s_nop 4")
    PK = 56
    for e in range(2):
        for i in range(4):
            b(f"  v_cvt_pk_bf16_f32 v{PK+4*e+i}, v{D+4*i+2*e}, v{D+4*i+2*e+1}")
    b(f"  ds_write_b128 v3, {vr(PK,4)}")
    b(f"  ds_write_b128 v3, {vr(PK+4,4)} offset:2048")
    b(f"  s_waitcnt lgkmcnt(0)")
    b(f"  s_barrier")
    b(f"  v_lshlrev_b32 v5, 8, v9")
    b(f"  v_lshl_add_u32 v5, v8, 4, v5")
    b(f"  s_lshl_b32 s{S_T+1}, s{S_W}, 11")
    b(f"  s_add_u32 s{S_T+1}, s{S_T+1}, {L3_EX}")
    b(f"  v_add_u32 v5, s{S_T+1}, v5")
    AU = 32
    b(f"  ds_read_b128 {vr(AU,4)}, v5")
    b(f"  ds_read_b128 {vr(AU+4,4)}, v5 offset:1024")
    b(f"  s_waitcnt lgkmcnt(0)")
    b(f"  v_readlane_b32 s{S_T+4}, v{AU}, 0")
    b(f"  v_writelane_b32 v{AU}, 0, 0")
    b(f"  s_nop 1")
    b(f"  s_lshl_b32 s{S_T+4}, s{S_T+4}, 16")
    TT = 160
    for u in range(2):
        for v in range(2):
            for c in range(2):
                d = TT + ((u * 2 + v) * 2 + c) * 4
                b(f"  {MF32} {vr(d,4)}, {vr(AU+4*u,4)}, {vr(M3+4*(2*v+c),4)}, 0")
    CI = 60
    b(f"  v_mov_b32 v{CI}, s{S_T+4}")
    b(f"  v_xor_b32 v{CI+1}, 0x80000000, v{CI}")
    b(f"  v_mov_b32 v{CI+2}, v{CI}")
    b(f"  v_mov_b32 v{CI+3}, v{CI+1}")
    b(f"  s_nop 1")
    A2 = 64; O = 40; W = 80
    for u in range(2):
        for v in range(2):
            t = TT + ((u * 2 + v) * 2) * 4
            tw = TW + ((u * 2 + v) * 2) * 4
            cmul_pk(b, O, O + 4, t, t + 4, tw, tw + 4, W, True)
            for r in range(4):
                b(f"  v_cvt_pk_bf16_f32 v{A2+(u*2+v)*4+r}, v{O+r}, v{O+4+r}")
    Y = 160
    b(f"  s_nop 1")
    for z in range(2):
        for v in range(2):
            d = Y + (z * 2 + v) * 4
            b(f"  {MF32} {vr(d,4)}, {vr(A2+(0*2+v)*4,4)}, {vr(M4+(0*2+z)*4,4)}, {vr(CI,4)}")
    for z in range(2):
        for v in range(2):
            d = Y + (z * 2 + v) * 4
            b(f"  {MF32} {vr(d,4)}, {vr(A2+(1*2+v)*4,4)}, {vr(M4+(1*2+z)*4,4)}, {vr(d,4)}")
    b(f"  s_nop 7")
    X = 40; HP = 32
    stamp(b, "p3 ifft done")
    for z in range(2):
        for dd in range(4):
            y0 = Y + z * 8 + 2 * dd
            xd = XR + 4 * z + dd
            t = 64 + 2 * (dd % 4)
            b(f"  v_lshlrev_b32 v{t}, 16, v{xd}")
            b(f"  v_and_b32 v{t+1}, 0xffff0000, v{xd}")
            b(f"  v_pk_add_f32 {vr(t,2)}, {vr(t,2)}, {vr(y0,2)}")
            b(f"  v_cvt_pk_bf16_f32 v{HP+4*z+dd}, v{t}, v{t+1}")
    for z in range(2):
        b(f"  buffer_store_dwordx4 {vr(HP+4*z,4)}, v4, s[{SRD_C}:{SRD_C+3}], s63 offen offset:{1024*z}{SF}")
    for i in range(8):
        b(f"  v_lshlrev_b32 v{X+2*i}, 16, v{HP+i}")
        b(f"  v_and_b32 v{X+2*i+1}, 0xffff0000, v{HP+i}")
    ln_fast(b, X, 64, S_T + 4, False)
    LP = 72
    stamp(b, "p3 ln done")
    for i in range(8):
        b(f"  v_cvt_pk_bf16_f32 v{LP+i}, v{X+2*i}, v{X+2*i+1}")
    b(f"  v_mul_u32_u24 v3, 80, v8")
    b(f"  v_lshl_add_u32 v3, v9, 4, v3")
    b(f"  s_mul_i32 s{S_T+1}, s{S_W}, {L3_RS}")
    b(f"  s_add_u32 s{S_T+1}, s{S_T+1}, {L3_LN}")
    b(f"  v_add_u32 v3, s{S_T+1}, v3")
    for z in range(2):
        b(f"  ds_write_b128 v3, {vr(LP+4*z,4)} offset:{z*16*80}")
    b(f"  s_waitcnt lgkmcnt(0)")
    b(f"  s_barrier")
    b(f"  v_bfe_u32 v10, v7, 2, 2")
    b(f"  v_mul_u32_u24 v10, {L3_RS}, v10")
    b(f"  v_lshrrev_b32 v11, 5, v7")
    b(f"  v_mul_u32_u24 v12, 80, v11")
    b(f"  v_add_u32 v10, v10, v12")
    b(f"  v_and_b32 v12, 1, v7")
    b(f"  v_lshl_add_u32 v10, v12, 5, v10")
    b(f"  v_bfe_u32 v12, v7, 4, 1")
    b(f"  v_lshl_add_u32 v10, v12, 4, v10")
    b(f"  v_bfe_u32 v12, v7, 1, 1")
    b(f"  v_lshl_add_u32 v10, v12, 3, v10")
    b(f"  s_mul_i32 s{S_T+1}, s{S_W}, {4*80}")
    b(f"  s_add_u32 s{S_T+1}, s{S_T+1}, {L3_LN}")
    b(f"  v_add_u32 v10, s{S_T+1}, v10")
    for ps in range(2):
        b(f"  ds_read_b64_tr_b16 {vr(32+4*ps,2)}, v10 offset:{ps*160}")
        b(f"  ds_read_b64_tr_b16 {vr(34+4*ps,2)}, v10 offset:{ps*160 + 4*L3_RS}")
    b(f"  v_lshlrev_b32 v11, 17, v11")
    b(f"  v_and_b32 v12, 31, v7")
    b(f"  v_lshl_add_u32 v11, v12, 4, v11")
    b(f"  s_lshl_b32 s{S_T+1}, s{S_W}, 19")
    b(f"  s_lshl_b32 s{S_T+2}, s2, 9")
    b(f"  s_add_u32 s{S_T+1}, s{S_T+1}, s{S_T+2}")
    b(f"  s_add_u32 s{S_T+2}, s{S_T+1}, {2*131072}")
    b(f"  s_waitcnt lgkmcnt(2)")
    b(f"  buffer_store_dwordx4 v[32:35], v11, s[{SRD_D}:{SRD_D+3}], s{S_T+1} offen{SF}")
    b(f"  s_waitcnt lgkmcnt(0)")
    b(f"  buffer_store_dwordx4 v[36:39], v11, s[{SRD_D}:{SRD_D+3}], s{S_T+2} offen{SF}")
    stamp(b, "p3 stores issued")
    b(f"  s_and_b32 s{S_T+8}, s2, 15")
    arrive(b, 2, S_T + 8, label="x3")
    srd(b, SRD_T, P_W1, W1B)
    b(f"  s_cmp_lt_u32 s{S_W}, 4")
    b(f"  s_cbranch_scc1 p3_nodma")
    b(f"  s_cmp_eq_u32 s62, 0")
    b(f"  s_cbranch_scc1 p3_nodma")
    for n in range(2): loader_issue(b, V_LO, W1F())
    b.label("p3_nodma")

def gemm_core(b, c, pre, after_setup, after_prologue=None):
    NB, NS = c.NB, c.NS
    acc = lambda nb: V_ACC + nb * 16
    VT = V_ACC + NB * 16
    VPR = VT + 32
    c.VT, c.VPR = VT, VPR
    c.vend = VPR + 4 * PR
    tf = lambda q: VT + (q % 8) * 4
    pr = lambda j: VPR + (j % PR) * 4
    FPI = 64
    KPI = FPI // NB
    def tread(q):
        ql = q % FPI
        lslot, within = ql // 16, ql % 16
        ks, nb = within // NB, within % NB
        off = lslot * STAGE + ks * 16 * c.rowb
        b(f"  ds_read_b64_tr_b16 {vr(tf(q),2)}, v{V_T+nb} offset:{off}")
        b(f"  ds_read_b64_tr_b16 {vr(tf(q)+2,2)}, v{V_T+nb} offset:{off+4*c.rowb}")
    def pload(j):
        b(f"  buffer_load_dwordx4 {vr(pr(j),4)}, v{V_P}, s[{SRD_P}:{SRD_P+3}], s{S_POFF} offen offset:{(j%4)*1024}{LF}")
        if j % 4 == 3: b(f"  s_add_u32 s{S_POFF}, s{S_POFF}, 4096")
    def mfma(q):
        nb = q % NB; j = q // NB; a = acc(nb)
        if "m16fake" in OPT:
            o = 8 * (j % 2)
            b(f"  v_mfma_f32_16x16x32_bf16 {vr(a+o,4)}, {vr(tf(q),4)}, {vr(pr(j),4)}, {vr(a+o,4)}")
            b(f"  v_mfma_f32_16x16x32_bf16 {vr(a+o+4,4)}, {vr(pr(j),4)}, {vr(tf(q),4)}, {vr(a+o+4,4)}")
            return
        if c.name == "g1":
            b(f"  v_mfma_f32_32x32x16_bf16 {vr(a,16)}, {vr(tf(q),4)}, {vr(pr(j),4)}, {vr(a,16)}")
        else:
            b(f"  v_mfma_f32_32x32x16_bf16 {vr(a,16)}, {vr(pr(j),4)}, {vr(tf(q),4)}, {vr(a,16)}")
    b(f"  s_mov_b32 s{S_POFF}, 0")
    b(f"  s_mov_b32 s{S_DELTA}, {4*STAGE}")
    b(f"  s_mov_b32 s{S_IT}, {NS//4 - 1}")
    after_setup()
    for j in range(PR - 1): pload(j)
    if after_prologue: after_prologue()
    b("  s_barrier")
    for q in range(DQ): tread(q)
    def body(last):
        for q in range(FPI):
            j = q // NB
            qn = q + DQ
            do_read = not (last and qn >= FPI)
            do_pload = False
            if q % NB == 0:
                rem = KPI - 1 - j
                if (not last) or (j + PR - 1 < KPI):
                    b(f"  s_waitcnt vmcnt({PR-2})")
                    do_pload = True
                else:
                    b(f"  s_waitcnt vmcnt({min(PR-2, rem)})")
            if do_read and qn % 16 == 0:
                b("  s_barrier")
            if do_read and qn == FPI:
                for i in range(NB): b(f"  v_add_u32 v{V_T+i}, s{S_DELTA}, v{V_T+i}")
                b(f"  s_sub_u32 s{S_DELTA}, 0, s{S_DELTA}")
            if q % 2 == 0:
                left = min(DQ - 2, FPI - 2 - q) if last else DQ - 2
                b(f"  s_waitcnt lgkmcnt({2*left})")
            mfma(q)
            if do_pload: pload(j + PR - 1)
            if do_read: tread(qn)
    b.label(f"{pre}_loop")
    body(False)
    b(f"  s_sub_u32 s{S_IT}, s{S_IT}, 1")
    b(f"  s_cmp_lg_u32 s{S_IT}, 0")
    b(f"  s_cbranch_scc1 {pre}_loop")
    body(True)

def idle_w1(b):
    srd(b, SRD_PF, P_W1, W1B)
    b(f"  s_and_b32 s51, s50, 7")
    b(f"  s_mul_i32 s51, s51, {256*7168}")
    b(f"  s_lshr_b32 s52, s50, 3")
    b(f"  s_mul_i32 s52, s52, {4*7168}")
    b(f"  s_add_u32 s51, s51, s52")
    b(f"  s_add_u32 s51, s51, {128*7168}")
    b(f"  s_mov_b32 s52, 7")
    b.label("pf_w1b")
    for i in range(4): b(f"  buffer_load_dwordx4 {vr(V_DUMMY,4)}, v29, s[{SRD_PF}:{SRD_PF+3}], s51 offen offset:{1024*i}")
    b(f"  s_add_u32 s51, s51, 4096")
    b(f"  s_waitcnt vmcnt(4)")
    b(f"  s_sub_u32 s52, s52, 1")
    b(f"  s_cmp_lg_u32 s52, 0")
    b(f"  s_cbranch_scc1 pf_w1b")

def idle_w2(b):
    srd(b, SRD_PF, P_W2, W1B)
    b(f"  s_mul_i32 s51, s50, {W1B // 256}")
    b(f"  s_mov_b32 s52, 14")
    b.label("pf_w2")
    for i in range(4): b(f"  buffer_load_dwordx4 {vr(V_DUMMY,4)}, v29, s[{SRD_PF}:{SRD_PF+3}], s51 offen offset:{1024*i}")
    b(f"  s_add_u32 s51, s51, 4096")
    b(f"  s_waitcnt vmcnt({0 if 'idlepace' in OPT else 4})")
    b(f"  s_sub_u32 s52, s52, 1")
    b(f"  s_cmp_lg_u32 s52, 0")
    b(f"  s_cbranch_scc1 pf_w2")
    b(f"  s_waitcnt vmcnt(0)")

def g1(b):
    c = g1_cfg()
    b(f"  s_cmp_eq_u32 s62, 0")
    b(f"  s_cbranch_scc1 g1_inactive")
    srd(b, SRD_P, P_WS, 4 << 20, WS_LN2)
    srd(b, SRD_T, P_W1, W1B)
    srd(b, SRD_O, P_WS, U_BYTES, WS_U)
    srd(b, SRD_X, P_B1, 3584 * 2)
    b(f"  s_cmp_ge_u32 s{S_W}, 4")
    b(f"  s_cbranch_scc1 g1_loader")
    lane_geom(b)
    b(f"  s_lshl_b32 s{S_TMP}, s61, 2")
    b(f"  s_add_u32 s{S_TMP}, s{S_TMP}, s{S_W}            ; dblk")
    b(f"  s_lshl_b32 s{S_TMP+2}, s{S_TMP}, 17")
    b(f"  v_lshlrev_b32 v10, 4, v7")
    b(f"  v_add_u32 v{V_P}, s{S_TMP+2}, v10")
    b(f"  s_lshl_b32 s{S_TMP+1}, s60, 8       ; f0*2")
    b(f"  v_lshlrev_b32 v11, 3, v9")
    b(f"  v_add_u32 v11, s{S_TMP+1}, v11")
    BV = 192
    for fb in range(4):
        for i in range(4):
            b(f"  buffer_load_dwordx2 {vr(BV+2*(4*fb+i),2)}, v11, s[{SRD_X}:{SRD_X+3}], 0 offen offset:{64*fb+16*i}")
    b(f"  v_lshl_add_u32 v20, v9, 3, v18")
    b(f"  v_lshlrev_b32 v20, 8, v20")
    b(f"  v_lshl_add_u32 v20, v18, 6, v20")
    b(f"  v_lshl_add_u32 v20, v19, 5, v20")
    b(f"  v_lshl_add_u32 v{V_T}, v22, 3, v20")
    for fb in range(1, 4):
        b(f"  v_xor_b32 v{V_T+fb}, {64*fb}, v{V_T}")
    b(f"  s_mul_i32 s{S_TMP+2}, s{S_TMP}, 229376")
    b(f"  s_lshl_b32 s{S_TMP+1}, s60, 13")
    b(f"  s_add_u32 s{S_TMP+1}, s{S_TMP+1}, s{S_TMP+2}")
    b(f"  v_add_u32 v28, s{S_TMP+1}, v10")
    b(f"  s_waitcnt vmcnt(0)")
    for fb in range(4):
        for i in range(4):
            bv = BV + 2 * (4 * fb + i); a = V_ACC + fb * 16 + 4 * i
            b(f"  v_lshlrev_b32 v{a}, 16, v{bv}")
            b(f"  v_and_b32 v{a+1}, 0xffff0000, v{bv}")
            b(f"  v_lshlrev_b32 v{a+2}, 16, v{bv+1}")
            b(f"  v_and_b32 v{a+3}, 0xffff0000, v{bv+1}")
    def w3():
        wait(b, 2, 16, "x3c")
        stamp(b, "x3 released")
        stamp(b, "c:g1 start")
    gemm_core(b, c, "g1", w3)
    stamp(b, "c:g1 end")
    stamp(b, "g1 main done")
    K1 = -2.0 * 0.7978845608028654 * 1.4426950408889634
    K2 = K1 * 0.044715
    T = c.VPR
    b(f"  v_mov_b32 v{T}, {hex(f2u(K1))}")
    b(f"  v_mov_b32 v{T+1}, {hex(f2u(K1))}")
    b(f"  v_mov_b32 v{T+2}, {hex(f2u(K2))}")
    b(f"  v_mov_b32 v{T+3}, {hex(f2u(K2))}")
    b(f"  s_nop 7")
    W = T + 8
    for fb in range(4):
        a = V_ACC + fb * 16; t = W; o = W + 16 + 8 * (fb % 2)
        for h in range(0, 16, 2): b(f"  v_pk_mul_f32 {vr(t+h,2)}, {vr(a+h,2)}, {vr(a+h,2)}")
        for h in range(0, 16, 2): b(f"  v_pk_fma_f32 {vr(t+h,2)}, {vr(t+h,2)}, {vr(T+2,2)}, {vr(T,2)}")
        for h in range(0, 16, 2): b(f"  v_pk_mul_f32 {vr(t+h,2)}, {vr(t+h,2)}, {vr(a+h,2)}")
        for r in range(16): b(f"  v_exp_f32 v{t+r}, v{t+r}")
        for h in range(0, 16, 2): b(f"  v_pk_add_f32 {vr(t+h,2)}, {vr(t+h,2)}, 1.0 op_sel_hi:[1,0]")
        for r in range(16): b(f"  v_rcp_f32 v{t+r}, v{t+r}")
        for h in range(0, 16, 2): b(f"  v_pk_mul_f32 {vr(t+h,2)}, {vr(a+h,2)}, {vr(t+h,2)}")
        for i in range(4):
            b(f"  v_cvt_pk_bf16_f32 v{o+2*i}, v{t+4*i}, v{t+4*i+1}")
            b(f"  v_cvt_pk_bf16_f32 v{o+2*i+1}, v{t+4*i+2}, v{t+4*i+3}")
        for ip in range(2):
            oo = o + 4 * ip
            b(f"  s_mov_b32 s{S_TMP+1}, {(2*fb+ip)*1024}")
            b(f"  s_nop 0")
            b(f"  v_permlane32_swap_b32 v{oo}, v{oo+2}")
            b(f"  v_permlane32_swap_b32 v{oo+1}, v{oo+3}")
            b(f"  buffer_store_dwordx4 {vr(oo,4)}, v28, s[{SRD_O}:{SRD_O+3}], s{S_TMP+1} offen{SF}")
    stamp(b, "g1 stores issued")
    b(f"  s_waitcnt vmcnt(0)")
    b(f"  s_branch g1_join")
    b.label("g1_loader")
    b(f"  s_sub_u32 s50, s{S_W}, 4")
    b(f"  s_lshl_b32 s49, s50, 10")
    b(f"  s_add_u32 s{S_N+1}, s49, {R*STAGE}")
    b(f"  s_barrier                      ; matches the barrier inside wait(x3)")
    for n in range(R - 4): loader_issue(b, V_LO, W1F())
    loader_loop(b, c.NS, "g1", W1F())
    stamp(b, "g1 main done")
    g2_prologue_loader(b)
    stamp(b, "g1 stores issued")
    b.label("g1_join")
    if SK():
        b(f"  s_cmp_ge_u32 s60, 14")
        b(f"  s_cselect_b32 s18, 1, 0")
        b(f"  s_lshl_b32 s10, s61, 1")
        b(f"  s_add_u32 s18, s18, s10")
        arrive(b, 3, 18, label="x4", drained=True)
    else:
        arrive(b, 3, 61, label="x4", drained=True)
    b(f"  s_branch g2_start")
    b.label("g1_inactive")
    if "nopf" not in OPT:
        b(f"  s_sub_u32 s50, s2, 224")
        b(f"  s_lshl_b32 s50, s50, 3")
        b(f"  s_add_u32 s50, s50, s{S_W}")
        b(f"  v_lshlrev_b32 v29, 4, v7")
        if "noidle" not in OPT: idle_w2(b)
    b(f"  s_cmp_lt_u32 s{S_W}, 4")
    b(f"  s_cbranch_scc1 g2_start_inactive")
    g2_prologue_loader(b)
    b.label("g2_start_inactive")
    return c

def g2_prologue_loader(b):
    g2_ids(b)
    srd(b, SRD_T, P_W2, W1B)
    g2_loader_addr(b)
    loader_init(b, (64 if SK() else 128) * 4096)
    for n in range(2): loader_issue(b, V_LO, W2F())

def g2_sk(b):
    c = g1_cfg(); c.name = "g2"; c.NS = 28
    b.label("g2_start")
    g2_ids(b)
    srd(b, SRD_P, P_WS, U_BYTES, WS_U)
    srd(b, SRD_O, P_OUT, 4 << 20)
    srd(b, SRD_X, P_B2, 2048 * 2)
    srd(b, SRD_Y, P_WS, 4 << 20, WS_H)
    b(f"  s_cmp_ge_u32 s{S_W}, 4")
    b(f"  s_cbranch_scc1 g2_loader")
    lane_geom(b)
    b(f"  s_lshl_b32 s{S_TMP}, s{S_TILE_A}, 2")
    b(f"  s_add_u32 s{S_TMP}, s{S_TMP}, s{S_W}        ; dblk")
    b(f"  s_mul_i32 s{S_TMP+2}, s{S_TMP}, 229376")
    b(f"  s_mul_i32 s{S_TMP+3}, s19, {112*1024}       ; k half")
    b(f"  s_add_u32 s{S_TMP+2}, s{S_TMP+2}, s{S_TMP+3}")
    b(f"  v_lshlrev_b32 v10, 4, v7")
    b(f"  v_add_u32 v{V_P}, s{S_TMP+2}, v10")
    b(f"  s_lshl_b32 s{S_TMP+1}, s{S_TILE_B}, 7")
    b(f"  s_lshl_b32 s{S_TMP+3}, s19, 6")
    b(f"  s_add_u32 s{S_TMP+1}, s{S_TMP+1}, s{S_TMP+3}")
    b(f"  v_add_u32 v11, s{S_TMP+1}, v8              ; s0 + s'")
    b(f"  v_lshlrev_b32 v16, 1, v11")
    for sb in range(2):
        b(f"  buffer_load_ushort v{12+sb}, v16, s[{SRD_X}:{SRD_X+3}], 0 offen offset:{64*sb}")
    b(f"  v_lshlrev_b32 v17, 11, v11")
    b(f"  v_lshl_add_u32 v17, v9, 5, v17")
    b(f"  s_lshl_b32 s{S_TMP+2}, s{S_TMP}, 6")
    b(f"  v_add_u32 v28, s{S_TMP+2}, v17")
    HV = 192
    b(f"  v_lshl_add_u32 v20, v9, 3, v18")
    b(f"  v_lshlrev_b32 v20, 8, v20")
    b(f"  v_lshl_add_u32 v20, v18, 6, v20")
    b(f"  v_lshl_add_u32 v20, v19, 5, v20")
    b(f"  v_lshl_add_u32 v{V_T}, v22, 3, v20")
    for fb in range(1, 4):
        b(f"  v_xor_b32 v{V_T+fb}, {64*fb}, v{V_T}")
    b(f"  s_lshl_b32 s{S_TMP+1}, s{S_W}, 12")
    b(f"  s_lshl_b32 s{S_TMP+2}, s2, 14")
    b(f"  s_add_u32 s{S_TMP+2}, s{S_TMP+2}, s{S_TMP+1}")
    b(f"  v_add_u32 v29, s{S_TMP+2}, v10")
    b(f"  s_xor_b32 s{S_TMP+2}, s2, 1")
    b(f"  s_lshl_b32 s{S_TMP+2}, s{S_TMP+2}, 14")
    b(f"  s_add_u32 s{S_TMP+2}, s{S_TMP+2}, s{S_TMP+1}")
    b(f"  v_add_u32 v30, s{S_TMP+2}, v10")
    for i in range(64): b(f"  v_mov_b32 v{V_ACC+i}, 0")
    def w4():
        b(f"  s_lshl_b32 s18, s{S_TILE_A}, 1")
        b(f"  s_add_u32 s18, s18, s19")
        wait(b, 3, 14, "x4c", single_sreg=18)
        stamp(b, "x4 released")
        stamp(b, "c:g2 start")
    def hloads():
        for sb in range(2):
            b(f"  s_mov_b32 s{S_TMP+1}, {sb*65536}")
            b(f"  buffer_load_dwordx4 {vr(HV+8*sb,4)}, v28, s[{SRD_Y}:{SRD_Y+3}], s{S_TMP+1} offen{LF}")
            b(f"  buffer_load_dwordx4 {vr(HV+8*sb+4,4)}, v28, s[{SRD_Y}:{SRD_Y+3}], s{S_TMP+1} offen offset:16{LF}")
    gemm_core(b, c, "g2", w4, hloads)
    stamp(b, "c:g2 end")
    stamp(b, "g2 main done")
    srd(b, SRD_X, P_WS, 4 << 20, WS_XCH)
    T = c.VT
    b(f"  s_cmp_eq_u32 s19, 0")
    b(f"  s_cbranch_scc1 g2_send23")
    def pack_send(first):
        for blk in range(2):
            a = V_ACC + (first + blk) * 16
            for i in range(8):
                b(f"  v_cvt_pk_bf16_f32 v{T+8*blk+i}, v{a+2*i}, v{a+2*i+1}")
            for i in range(8):
                b(f"  v_min_u32 v{T+8*blk+i}, 0xfffffffe, v{T+8*blk+i}")
            for p in range(2):
                b(f"  buffer_store_dwordx4 {vr(T+8*blk+4*p,4)}, v30, s[{SRD_X}:{SRD_X+3}], 0 offen offset:{(2*blk+p)*1024}{SF}")
    b(f"  s_nop 7")
    pack_send(0)
    for i in range(32): b(f"  v_mov_b32 v{V_ACC+i}, v{V_ACC+32+i}")
    b(f"  s_branch g2_sent")
    b.label("g2_send23")
    b(f"  s_nop 7")
    pack_send(2)
    b.label("g2_sent")
    RX = c.VPR
    b(f"  s_mov_b32 s11, 200000")
    b.label("g2x_poll")
    for k in range(4):
        b(f"  buffer_load_dwordx4 {vr(RX+4*k,4)}, v29, s[{SRD_X}:{SRD_X+3}], 0 offen offset:{k*1024} sc1")
    b(f"  s_waitcnt vmcnt(0)")
    sentinel_check(b, RX, "g2x", n=16)
    stamp(b, "g2 x landed")
    b(f"  s_mov_b32 s{S_TMP}, 0xffff0000")
    for blk in range(2):
        for i in range(8):
            a = V_ACC + blk * 16 + 2 * i; r = RX + 8 * blk + i
            b(f"  v_lshlrev_b32 v16, 16, v{r}")
            b(f"  v_and_b32 v17, s{S_TMP}, v{r}")
            b(f"  v_add_f32 v{a}, v{a}, v16")
            b(f"  v_add_f32 v{a+1}, v{a+1}, v17")
    for sb in range(2):
        b(f"  v_lshlrev_b32 v{12+sb}, 16, v{12+sb}")
    for sb in range(2):
        for half in range(2):
            o = T + 4 * ((sb * 2 + half) % 2)
            for dd in range(4):
                a = V_ACC + sb * 16 + half * 8 + 2 * dd
                hv = HV + 8 * sb + 4 * half + dd
                t0 = T + 8 + 4 * dd
                b(f"  v_lshlrev_b32 v{t0}, 16, v{hv}")
                b(f"  v_and_b32 v{t0+1}, s{S_TMP}, v{hv}")
                b(f"  v_pk_add_f32 {vr(t0,2)}, {vr(t0,2)}, {vr(a,2)}")
                b(f"  v_add_f32 v{t0}, v{t0}, v{12+sb}")
                b(f"  v_add_f32 v{t0+1}, v{t0+1}, v{12+sb}")
                b(f"  v_cvt_pk_bf16_f32 v{o+dd}, v{t0}, v{t0+1}")
            b(f"  s_mov_b32 s{S_TMP+1}, {sb*65536}")
            b(f"  buffer_store_dwordx4 {vr(o,4)}, v28, s[{SRD_O}:{SRD_O+3}], s{S_TMP+1} offen offset:{16*half}")
    stamp(b, "g2 stores issued")
    b(f"  s_branch g2_done")
    b.label("g2_loader")
    b(f"  s_barrier                      ; matches the barrier inside wait(x4)")
    for n in range(R - 4): loader_issue(b, V_LO, W2F())
    loader_loop(b, c.NS, "g2", W2F())
    b.label("g2_done")

def g2(b):
    if SK(): return g2_sk(b)
    c = g2_cfg()
    b.label("g2_start")
    g2_ids(b)
    srd(b, SRD_P, P_WS, U_BYTES, WS_U)
    srd(b, SRD_O, P_OUT, 4 << 20)
    srd(b, SRD_X, P_B2, 2048 * 2)
    srd(b, SRD_Y, P_WS, 4 << 20, WS_H)
    b(f"  s_cmp_ge_u32 s{S_W}, 4")
    b(f"  s_cbranch_scc1 g2_loader")
    lane_geom(b)
    b(f"  s_lshl_b32 s{S_TMP}, s{S_TILE_A}, 2")
    b(f"  s_add_u32 s{S_TMP}, s{S_TMP}, s{S_W}        ; dblk")
    b(f"  s_mul_i32 s{S_TMP+2}, s{S_TMP}, 229376")
    b(f"  v_lshlrev_b32 v10, 4, v7")
    b(f"  v_add_u32 v{V_P}, s{S_TMP+2}, v10")
    b(f"  s_lshl_b32 s{S_TMP+1}, s{S_TILE_B}, 6       ; s0")
    b(f"  v_add_u32 v11, s{S_TMP+1}, v8              ; s0 + s'")
    b(f"  v_lshlrev_b32 v16, 1, v11")
    for sb in range(2):
        b(f"  buffer_load_ushort v{12+sb}, v16, s[{SRD_X}:{SRD_X+3}], 0 offen offset:{64*sb}")
    b(f"  v_lshlrev_b32 v17, 11, v11")
    b(f"  v_lshl_add_u32 v17, v9, 5, v17")
    b(f"  s_lshl_b32 s{S_TMP+2}, s{S_TMP}, 6")
    b(f"  v_add_u32 v28, s{S_TMP+2}, v17")
    HV = 160
    b(f"  v_lshl_add_u32 v20, v9, 3, v18            ; row")
    b(f"  v_bfe_u32 v21, v18, 1, 1")
    b(f"  v_lshlrev_b32 v20, 7, v20")
    b(f"  v_lshl_add_u32 v20, v21, 6, v20")
    b(f"  v_lshl_add_u32 v20, v19, 5, v20")
    b(f"  v_lshl_add_u32 v{V_T}, v22, 3, v20")
    b(f"  v_xor_b32 v{V_T+1}, 64, v{V_T}")
    for i in range(32): b(f"  v_mov_b32 v{V_ACC+i}, 0")
    def w4():
        wait(b, 3, 28, "x4c", single_sreg=S_TILE_A)
        stamp(b, "x4 released")
        stamp(b, "c:g2 start")
    def hloads():
        for sb in range(2):
            b(f"  s_mov_b32 s{S_TMP+1}, {sb*65536}")
            b(f"  buffer_load_dwordx4 {vr(HV+8*sb,4)}, v28, s[{SRD_Y}:{SRD_Y+3}], s{S_TMP+1} offen{LF}")
            b(f"  buffer_load_dwordx4 {vr(HV+8*sb+4,4)}, v28, s[{SRD_Y}:{SRD_Y+3}], s{S_TMP+1} offen offset:16{LF}")
    gemm_core(b, c, "g2", w4, hloads)
    stamp(b, "c:g2 end")
    stamp(b, "g2 main done")
    T = c.VT
    b(f"  s_mov_b32 s{S_TMP}, 0xffff0000")
    for sb in range(2):
        b(f"  v_lshlrev_b32 v{12+sb}, 16, v{12+sb}")
    b(f"  s_nop 9")
    for sb in range(2):
        for half in range(2):
            o = T + 4 * ((sb * 2 + half) % 2)
            for dd in range(4):
                a = V_ACC + sb * 16 + half * 8 + 2 * dd
                hv = HV + 8 * sb + 4 * half + dd
                t0 = T + 8 + 4 * dd
                b(f"  v_cvt_pk_bf16_f32 v{t0}, v{a}, v{a+1}")
                b(f"  v_and_b32 v{t0+1}, s{S_TMP}, v{t0}")
                b(f"  v_lshlrev_b32 v{t0}, 16, v{t0}")
                b(f"  v_add_f32 v{t0}, v{t0}, v{12+sb}")
                b(f"  v_add_f32 v{t0+1}, v{t0+1}, v{12+sb}")
                b(f"  v_cvt_pk_bf16_f32 v{t0}, v{t0}, v{t0+1}")
                b(f"  v_and_b32 v{t0+1}, s{S_TMP}, v{t0}")
                b(f"  v_lshlrev_b32 v{t0}, 16, v{t0}")
                b(f"  v_lshlrev_b32 v{t0+2}, 16, v{hv}")
                b(f"  v_and_b32 v{t0+3}, s{S_TMP}, v{hv}")
                b(f"  v_add_f32 v{t0}, v{t0}, v{t0+2}")
                b(f"  v_add_f32 v{t0+1}, v{t0+1}, v{t0+3}")
                b(f"  v_cvt_pk_bf16_f32 v{o+dd}, v{t0}, v{t0+1}")
            b(f"  s_mov_b32 s{S_TMP+1}, {sb*65536}")
            b(f"  buffer_store_dwordx4 {vr(o,4)}, v28, s[{SRD_O}:{SRD_O+3}], s{S_TMP+1} offen offset:{16*half}")
    stamp(b, "g2 stores issued")
    b(f"  s_branch g2_done")
    b.label("g2_loader")
    b(f"  s_barrier                      ; matches the barrier inside wait(x4)")
    for n in range(R - 4): loader_issue(b, V_LO, W2F())
    loader_loop(b, c.NS, "g2", W2F())
    b.label("g2_done")

def build():
    NAME = "sequential_preLN__spectral_gfnet__mixer_token_mlp__prompt"
    hdr = open(f"cdna_kernels/{NAME}.s.ref").read().split("; Override launch")[0]
    K = NAME + "_kernel"
    b = B()
    b(hdr.rstrip("\n"))
    b(f"; @launch grid=(256,1,1) block=(512,1,1) lds={LDS_TOTAL}")
    b('.amdgcn_target "amdgcn-amd-amdhsa--gfx950"\n.text')
    b(f".globl {K}\n.p2align 8\n.type {K},@function\n{K}:")
    b(f"  s_cmp_ge_u32 s2, 256\n  s_cbranch_scc1 k_exit")
    if "stamp" in OPT: b("  v_mov_b32 v231, 0")
    stamp(b, "entry")
    b(f"  s_load_dwordx4 s[{P_X}:{P_X+3}], s[0:1], 0        ; x, w_r")
    b(f"  s_load_dwordx2 s[{P_WI}:{P_WI+1}], s[0:1], 16")
    b(f"  s_load_dwordx2 s[{P_W1}:{P_W1+1}], s[0:1], 32")
    b(f"  s_load_dwordx4 s[{P_B1}:{P_B1+3}], s[0:1], 40     ; b1, w2")
    b(f"  s_load_dwordx4 s[{P_B2}:{P_B2+3}], s[0:1], 56     ; b2, out")
    b(f"  s_load_dwordx4 s[{P_DBG}:{P_DBG+3}], s[0:1], 72")
    b(f"  v_lshrrev_b32 v6, 6, v0")
    b(f"  v_and_b32 v7, 63, v0        ; lane")
    b(f"  v_readfirstlane_b32 s{S_W}, v6")
    b(f"  v_and_b32 v8, 15, v7          ; c")
    b(f"  v_lshrrev_b32 v9, 4, v7       ; g")
    b(f"  s_waitcnt lgkmcnt(0)")
    srd(b, SRD_CNT, P_WS, 65536, WS_CNT)
    p1(b)
    p2_setup(b)
    wait(b, 0, 16, "x1c")
    stamp(b, "x1 released")
    p2_main(b)
    p3_setup(b)
    if SENT(): b("  s_barrier")
    else: wait(b, 1, 16, "x2c")
    stamp(b, "x2 released")
    p3_main(b)
    g1(b)
    g2(b)
    b(f"  s_waitcnt vmcnt(0)")
    stamp(b, "end")
    stamp_flush(b)
    b("k_exit:\n  s_endpgm")
    b(kd(K, 240, sgpr=102))
    return b.text()

if __name__ == "__main__":
    out = sys.argv[1]
    OPT.update(sys.argv[2:])
    for o in sys.argv[2:]:
        if o.startswith("pfn="): PFN[:] = [int(c) for c in o[4:].split(",")]
    gemm.OPT.update(sys.argv[2:])
    t = build()
    open(out, "w").write(t)
    rep = check_text(t)
    print("\n".join(rep) if rep else "no hazards found", "| stamps:", nstamp[0])
```

```python
import sys
from asmlib import *
import gemm, fft
from gemm import (srd, f2u, WS_X1, WS_X2, WS_H, WS_LN2, WS_U, U_BYTES, S_W, R, STAGE, PR, DQ,
                  V_P, V_T, V_ACC, S_POFF, S_IT, S_DELTA, SRD_P, SRD_T, SRD_O, SRD_X, SRD_Y, S_TILE_A, S_TILE_B, S_TMP,
                  g1_cfg, g2_cfg, lane_geom)
from fft import sincos, wave_reduce, ln_finish, layernorm16, cmul_pk, gmat, MF32, MF16

OPT = set()
PFN = [0, 4, 0, 4]
WS_CNT = 30 << 20
WS_STAMP = 31 << 20
WS_XCH = 24 << 20
W1B = 2048 * 3584 * 2
WB = 2048 * 1026

P_X, P_WR, P_WI, P_W1, P_B1, P_W2, P_B2, P_OUT, P_DBG, P_WS = 64, 66, 68, 70, 72, 74, 76, 78, 80, 82
SRD_CNT = 12
S_T = 46
SRD_A, SRD_B, SRD_C, SRD_D = 24, 28, 32, 36
SRD_PF = 56
S_STAMP = 84
SF = " sc1"
LF = ""

L1_M1, L1_M2, L1_TW, L1_EX = 0, 4096, 8192, 16384
L2_F = 32768; L2_X = L2_F + 2048; L2_W = L2_X + 16 * 1040
L3_M3 = 98304; L3_M4 = L3_M3 + 4096; L3_TW = L3_M3 + 8192; L3_EX = L3_M3 + 16384
L3_LN = L3_EX + 16384; L3_RS = 2624
LDS_TOTAL = L3_LN + 8 * L3_RS
assert LDS_TOTAL <= 163840

STAMPS = ["entry", "p1 x landed", "p1 stores issued", "p1 arrived", "x1 released", "p2 x landed", "p2 stores issued",
          "x2 released", "p3 x2 landed", "p3 stores issued", "x3 released", "g1 main done", "g1 stores issued", "x4 released",
          "g2 main done", "g2 stores issued", "end", "x1 drained", "x2 drained", "x3 drained", "x4 drained", "p1 tables done", "p1 ln done", "p1 fft done", "p3 ifft done", "p3 ln done", "c:g1 start", "c:g1 end", "c:g2 start", "c:g2 end", "g2 x landed"]
nstamp = [len(STAMPS)]
SENT = lambda: "bar" not in OPT
SK = lambda: "nosk" not in OPT
W1F = lambda: " nt" if "ntw1" in OPT else ""
W2F = lambda: " nt" if "ntw2" in OPT else ""
XF = lambda: " nt" if "ntx" in OPT else ""
def stamp(b, name):
    if "stamp" not in OPT: return
    i = STAMPS.index(name)
    op = "s_memtime" if name.startswith("c:") else "s_memrealtime"
    b(f"  {op} s[{S_STAMP}:{S_STAMP+1}]   ; stamp {i}: {name}")
    b(f"  s_waitcnt lgkmcnt(0)")
    b(f"  v_writelane_b32 v231, s{S_STAMP}, {i}")

def stamp_flush(b):
    if "stamp" not in OPT: return
    if "dbgmax" in OPT:
        b(f"  s_cmp_lg_u32 s{S_W}, 0")
        b(f"  s_cbranch_scc1 dbg_skip")
        srd(b, 24, P_DBG, 256)
        b(f"  v_readlane_b32 s46, v231, 0")
        b(f"  s_sub_u32 s47, 0, s46")
        b(f"  v_mov_b32 v3, v231")
        b(f"  v_writelane_b32 v3, s47, 0")
        b(f"  v_writelane_b32 v3, s46, 15")
        b(f"  v_lshlrev_b32 v2, 2, v7")
        b(f"  s_mov_b64 s[48:49], exec")
        b(f"  s_mov_b64 exec, 0xffff")
        b(f"  buffer_atomic_umax v3, v2, s[24:27], 0 offen sc1")
        b(f"  s_mov_b64 exec, s[48:49]")
        b.label("dbg_skip")
        return
    if "dbgtime" in OPT:
        b(f"  s_cmp_lg_u32 s2, 100")
        b(f"  s_cbranch_scc1 dbg_skip")
        b(f"  s_cmp_lg_u32 s{S_W}, 0")
        b(f"  s_cbranch_scc1 dbg_skip")
        srd(b, 24, P_DBG, 256)
        b(f"  v_readlane_b32 s46, v231, 0")
        b(f"  s_nop 1")
        b(f"  v_subrev_u32 v3, s46, v231")
        b(f"  v_lshlrev_b32 v2, 2, v7")
        b(f"  v_subrev_u32 v2, 4, v2")
        b(f"  s_mov_b64 s[48:49], exec")
        b(f"  s_mov_b64 exec, 0x1fffe")
        b(f"  buffer_store_dword v3, v2, s[24:27], 0 offen")
        b(f"  s_mov_b64 exec, s[48:49]")
        b.label("dbg_skip")
        return
    srd(b, 24, P_WS, 1 << 20, WS_STAMP)
    b(f"  s_lshl_b32 s46, s2, 3")
    b(f"  s_add_u32 s46, s46, s{S_W}")
    b(f"  s_lshl_b32 s46, s46, 7            ; (wg*8+wave)*128")
    b(f"  v_lshlrev_b32 v2, 2, v7")
    b(f"  s_mov_b64 s[48:49], exec")
    b(f"  s_mov_b64 exec, 0xffffffff")
    b(f"  buffer_store_dword v231, v2, s[24:27], s46 offen")
    b(f"  s_mov_b64 exec, s[48:49]")

def arrive(b, bar, shard_sreg, first=False, label="", drained=False):
    if not drained: b(f"  s_waitcnt vmcnt(0)")
    stamp(b, f"x{bar+1} drained")
    b(f"  s_barrier")
    b(f"  s_cmp_lg_u32 s{S_W}, 0")
    b(f"  s_cbranch_scc1 {label}_arr_skip")
    if first:
        b(f"  s_mov_b32 s11, 100000")
        b.label(f"{label}_rdy")
        b(f"  v_cmp_ne_u32 vcc, 0, v27")
        b(f"  s_nop 1")
        b(f"  s_cmp_eq_u64 vcc, exec")
        b(f"  s_cbranch_scc1 {label}_rdy_ok")
        b(f"  buffer_load_dword v27, v26, s[{SRD_PF}:{SRD_PF+3}], 0 offen sc1")
        b(f"  s_waitcnt vmcnt(0)")
        b(f"  s_sub_u32 s11, s11, 1")
        b(f"  s_cmp_lg_u32 s11, 0")
        b(f"  s_cbranch_scc1 {label}_rdy")
        b.label(f"{label}_rdy_ok")
    b(f"  s_lshl_b32 s10, s{shard_sreg}, 8")
    b(f"  s_add_u32 s10, s10, {bar*4096}")
    b(f"  v_mov_b32 v228, s10")
    b(f"  v_mov_b32 v229, 1")
    b(f"  s_mov_b64 s[16:17], exec")
    b(f"  s_mov_b64 exec, 1")
    b(f"  buffer_atomic_add v229, v228, s[{SRD_CNT}:{SRD_CNT+3}], 0 offen sc1")
    b(f"  s_mov_b64 exec, s[16:17]")
    b.label(f"{label}_arr_skip")

def wait(b, bar, target, label, single_sreg=None):
    b(f"  s_cmp_lg_u32 s{S_W}, 0")
    b(f"  s_cbranch_scc1 {label}_w_skip")
    if single_sreg is None:
        b(f"  v_and_b32 v228, 15, v7")
        b(f"  v_lshlrev_b32 v228, 8, v228")
        b(f"  v_add_u32 v228, {bar*4096}, v228")
    else:
        b(f"  s_lshl_b32 s10, s{single_sreg}, 8")
        b(f"  s_add_u32 s10, s10, {bar*4096}")
        b(f"  v_mov_b32 v228, s10")
    b(f"  s_mov_b32 s11, 200000")
    b.label(f"{label}_poll")
    b(f"  buffer_load_dword v229, v228, s[{SRD_CNT}:{SRD_CNT+3}], 0 offen sc1")
    b(f"  s_waitcnt vmcnt(0)")
    b(f"  v_cmp_le_u32 vcc, {target}, v229")
    b(f"  s_nop 1")
    b(f"  s_cmp_eq_u64 vcc, exec")
    b(f"  s_cbranch_scc1 {label}_w_skip")
    b(f"  s_sub_u32 s11, s11, 1")
    b(f"  s_cmp_lg_u32 s11, 0")
    b(f"  s_cbranch_scc1 {label}_poll")
    b.label(f"{label}_w_skip")
    b(f"  s_barrier")

def prefetch(b, ptr_pair, nbytes, start, length, who_scale, who_sreg, vaddr, vdst, stmp, paced=False):
    chunk = -(-length // who_scale)
    n_per_wave = -(-chunk // (512 * 128))
    stride = -(-chunk // (512 * n_per_wave))
    stride = (stride + 3) // 4 * 4
    per_instr = 64 * stride
    srd(b, SRD_PF, ptr_pair, nbytes)
    b(f"  s_mul_i32 s{stmp}, s{who_sreg}, {chunk}")
    b(f"  s_mul_i32 s{stmp+1}, s{S_W}, {n_per_wave*per_instr}")
    b(f"  s_add_u32 s{stmp}, s{stmp}, s{stmp+1}")
    if start: b(f"  s_add_u32 s{stmp}, s{stmp}, {start}")
    b(f"  v_mul_u32_u24 v{vaddr}, {stride}, v7")
    for i in range(n_per_wave):
        b(f"  buffer_load_dword v{vdst}, v{vaddr}, s[{SRD_PF}:{SRD_PF+3}], s{stmp} offen")
        if i + 1 < n_per_wave: b(f"  s_add_u32 s{stmp}, s{stmp}, {per_instr}")
        if paced: b(f"  s_waitcnt vmcnt(0)")
    return n_per_wave

V_DUMMY = 232
def pf_wide(b, ptr_pair, nbytes, s_base, n, wave_lo, wave_hi, label):
    b(f"  s_cmp_lt_u32 s{S_W}, {wave_lo}")
    b(f"  s_cbranch_scc1 {label}")
    if wave_hi < 8:
        b(f"  s_cmp_ge_u32 s{S_W}, {wave_hi}")
        b(f"  s_cbranch_scc1 {label}")
    srd(b, SRD_PF, ptr_pair, nbytes)
    b(f"  s_sub_u32 s{S_T+9}, s{S_W}, {wave_lo}")
    b(f"  s_mul_i32 s{S_T+9}, s{S_T+9}, {n*1024}")
    b(f"  s_add_u32 s{S_T+9}, s{S_T+9}, s{s_base}")
    b(f"  v_lshlrev_b32 v29, 4, v7")
    for i in range(n):
        if i and i % 4 == 0: b(f"  s_add_u32 s{S_T+9}, s{S_T+9}, 4096")
        b(f"  buffer_load_dwordx4 {vr(V_DUMMY,4)}, v29, s[{SRD_PF}:{SRD_PF+3}], s{S_T+9} offen offset:{(i%4)*1024}")
    b.label(label)

def w1_share_base(b, sreg, part):
    b(f"  s_mul_i32 s{sreg}, s2, {W1B // 256}")
    if part: b(f"  s_add_u32 s{sreg}, s{sreg}, {part}")

def w1_first_half_base(b, sreg, part):
    b(f"  s_and_b32 s{sreg}, s2, 7")
    b(f"  s_mul_i32 s{sreg}, s{sreg}, {256*7168}")
    b(f"  s_lshr_b32 s{S_T+9}, s2, 3")
    b(f"  s_mul_i32 s{S_T+9}, s{S_T+9}, {4*7168}")
    b(f"  s_add_u32 s{sreg}, s{sreg}, s{S_T+9}")
    if part: b(f"  s_add_u32 s{sreg}, s{sreg}, {part}")

def p1_tables(b):
    M1, M2, TW = L1_M1, L1_M2, L1_TW
    b(f"  v_and_b32 v10, 255, v0            ; e")
    b(f"  v_lshrrev_b32 v11, 8, v0          ; u")
    b(f"  v_bfe_u32 v12, v10, 2, 4          ; lane&15")
    b(f"  v_lshl_add_u32 v12, v11, 4, v12   ; k1")
    b(f"  v_lshrrev_b32 v13, 6, v10         ; g")
    b(f"  v_and_b32 v14, 3, v10")
    b(f"  v_lshlrev_b32 v13, 3, v13")
    b(f"  v_lshl_add_u32 v13, v14, 1, v13   ; a0 = 8g + 2i")
    b(f"  v_mul_u32_u24 v15, v13, v12       ; a0*k1")
    b(f"  v_add_u32 v16, v15, v12           ; (a0+1)*k1")
    sincos(b, 17, 18, 15, 5, 21)
    sincos(b, 19, 20, 16, 5, 21)
    b(f"  v_lshlrev_b32 v22, 2, v10")
    b(f"  v_lshl_add_u32 v22, v11, 11, v22  ; u*2048 + e*4")
    b(f"  v_cvt_pk_bf16_f32 v23, v17, v19")
    b(f"  v_cvt_pk_bf16_f32 v24, -v18, -v20")
    b(f"  ds_write_b32 v22, v23 offset:{M1}")
    b(f"  ds_write_b32 v22, v24 offset:{M1+1024}")
    sincos(b, 17, 18, 15, 10, 21)
    sincos(b, 19, 20, 16, 10, 21)
    b(f"  ds_write_b32 v22, v17 offset:{TW}")
    b(f"  ds_write_b32 v22, v18 offset:{TW+1024}")
    b(f"  ds_write_b32 v22, v19 offset:{TW+4096}")
    b(f"  ds_write_b32 v22, v20 offset:{TW+4096+1024}")
    b(f"  v_bfe_u32 v12, v10, 2, 4          ; k2")
    b(f"  v_mul_u32_u24 v15, v13, v12")
    b(f"  v_add_u32 v16, v15, v12")
    sincos(b, 17, 18, 15, 5, 21)
    sincos(b, 19, 20, 16, 5, 21)
    b(f"  v_lshlrev_b32 v22, 2, v10")
    b(f"  v_cvt_pk_bf16_f32 v23, v17, v19")
    b(f"  v_cvt_pk_bf16_f32 v24, v18, v20")
    b(f"  v_cvt_pk_bf16_f32 v25, -v18, -v20")
    b(f"  ds_write_b32 v22, v23 offset:{M2}")
    b(f"  ds_write_b32 v22, v24 offset:{M2+1024}")
    b(f"  ds_write_b32 v22, v25 offset:{M2+2048}")

def ln_fast(b, X, T, S0, alt):
    b(f"  v_readlane_b32 s{S0}, v{X}, 0              ; pivot")
    b(f"  s_nop 1")
    for i in range(0, 16, 2):
        b(f"  v_pk_add_f32 {vr(X+i,2)}, {vr(X+i,2)}, s[{S0}:{S0+1}] op_sel_hi:[1,0] neg_lo:[0,1] neg_hi:[0,1]")
    b(f"  v_pk_add_f32 {vr(T,2)}, {vr(X,2)}, {vr(X+2,2)}")
    b(f"  v_pk_add_f32 {vr(T+2,2)}, {vr(X+8,2)}, {vr(X+10,2)}")
    b(f"  v_pk_mul_f32 {vr(T+4,2)}, {vr(X,2)}, {vr(X,2)}")
    b(f"  v_pk_add_f32 {vr(T,2)}, {vr(T,2)}, {vr(X+4,2)}")
    b(f"  v_pk_add_f32 {vr(T+2,2)}, {vr(T+2,2)}, {vr(X+12,2)}")
    b(f"  v_pk_fma_f32 {vr(T+4,2)}, {vr(X+2,2)}, {vr(X+2,2)}, {vr(T+4,2)}")
    b(f"  v_pk_add_f32 {vr(T,2)}, {vr(T,2)}, {vr(X+6,2)}")
    b(f"  v_pk_add_f32 {vr(T+2,2)}, {vr(T+2,2)}, {vr(X+14,2)}")
    for i in range(4, 16, 2):
        b(f"  v_pk_fma_f32 {vr(T+4,2)}, {vr(X+i,2)}, {vr(X+i,2)}, {vr(T+4,2)}")
    b(f"  v_add_f32 v{T}, v{T}, v{T+1}")
    b(f"  v_add_f32 v{T+2}, v{T+2}, v{T+3}")
    if not alt: b(f"  v_add_f32 v{T}, v{T}, v{T+2}")
    b(f"  v_add_f32 v{T+4}, v{T+4}, v{T+5}           ; squares")
    if alt:
        wave_reduce(b, [T, T+2, T+4])
        b(f"  v_sub_f32 v{T+1}, v{T}, v{T+2}             ; E - O")
        b(f"  v_add_f32 v{T}, v{T}, v{T+2}")
        b(f"  s_nop 0")
        b(f"  v_readlane_b32 s{S0+2}, v{T}, 63")
        b(f"  v_readlane_b32 s{S0+3}, v{T+4}, 63")
        b(f"  v_readlane_b32 s{S0+4}, v{T+1}, 63")
    else:
        wave_reduce(b, [T, T+4])
        b(f"  s_nop 0")
        b(f"  v_readlane_b32 s{S0+2}, v{T}, 63")
        b(f"  v_readlane_b32 s{S0+3}, v{T+4}, 63")
    b(f"  s_nop 0")
    b(f"  v_mov_b32 v{T}, {hex(f2u(1.0/1024))}")
    b(f"  v_mul_f32 v{T+1}, s{S0+2}, v{T}")
    b(f"  v_mul_f32 v{T+2}, s{S0+3}, v{T}")
    b(f"  v_fma_f32 v{T+2}, -v{T+1}, v{T+1}, v{T+2}  ; variance")
    b(f"  v_max_f32 v{T+2}, 0, v{T+2}")
    b(f"  v_add_f32 v{T+2}, {hex(f2u(1e-5))}, v{T+2}")
    b(f"  v_rsq_f32 v{T+4}, v{T+2}")
    b(f"  s_nop 0")
    b(f"  v_mul_f32 v{T+8}, -v{T+1}, v{T+4}          ; -mean*rstd")
    if alt: b(f"  v_mul_f32 v{T+6}, s{S0+4}, v{T+4}")
    for i in range(0, 16, 2):
        b(f"  v_pk_fma_f32 {vr(X+i,2)}, {vr(X+i,2)}, {vr(T+4,2)}, {vr(T+8,2)} op_sel_hi:[1,0,0]")

def x1_store_addr(b):
    b(f"  v_lshlrev_b32 v5, 15, v9")
    b(f"  v_lshl_add_u32 v5, v8, 2, v5")
    b(f"  s_and_b32 s{S_T+6}, s2, 15")
    b(f"  s_lshl_b32 s{S_T+6}, s{S_T+6}, 4")
    b(f"  s_lshr_b32 s{S_T+7}, s2, 4")
    b(f"  s_add_u32 s{S_T+6}, s{S_T+6}, s{S_T+7}")
    b(f"  s_lshl_b32 s{S_T+6}, s{S_T+6}, 6       ; pos*64")
    b(f"  s_lshl_b32 s{S_T+7}, s{S_W}, 19        ; 4w*131072")
    b(f"  s_add_u32 s44, s{S_T+6}, s{S_T+7}")

def w_early(b):
    srd(b, SRD_C, P_WR, WB)
    srd(b, SRD_D, P_WI, WB)
    b(f"  s_and_b32 s{S_T+2}, s2, 7              ; j1")
    b(f"  v_and_b32 v215, 1, v0                ; half")
    b(f"  v_bfe_u32 v11, v0, 5, 4              ; c")
    b(f"  v_bfe_u32 v12, v0, 1, 4              ; e")
    b(f"  v_lshl_add_u32 v13, v12, 4, v11      ; j2")
    b(f"  v_lshlrev_b32 v13, 3, v13")
    b(f"  v_add_u32 v13, s{S_T+2}, v13         ; j")
    b(f"  v_mul_u32_u24 v214, 1026, v13")
    b(f"  v_lshl_add_u32 v14, v215, 4, v214")
    b(f"  s_lshr_b32 s{S_T+3}, s2, 3           ; kb")
    b(f"  s_lshl_b32 s{S_T+3}, s{S_T+3}, 5")
    b(f"  buffer_load_dwordx4 {vr(WE,4)}, v14, s[{SRD_C}:{SRD_C+3}], s{S_T+3} offen{XF()}")
    b(f"  buffer_load_dwordx4 {vr(WE+4,4)}, v14, s[{SRD_D}:{SRD_D+3}], s{S_T+3} offen{XF()}")

def p1(b):
    srd(b, SRD_A, P_X, 4 << 20)
    srd(b, SRD_B, P_WS, 4 << 20, WS_X1)
    b(f"  s_lshl_b32 s{S_T}, s{S_W}, 8")
    b(f"  s_add_u32 s{S_T}, s{S_T}, s2          ; s")
    b(f"  s_lshl_b32 s{S_T+1}, s{S_T}, 11")
    b(f"  v_lshlrev_b32 v1, 9, v9")
    b(f"  v_lshl_add_u32 v1, v8, 2, v1")
    XD = 32
    b(f"  s_cmp_ge_u32 s2, 16")
    b(f"  s_cbranch_scc1 p1_noreset")
    b(f"  s_cmp_lg_u32 s{S_W}, 0")
    b(f"  s_cbranch_scc1 p1_noreset")
    b(f"  s_lshl_b32 s{S_T+2}, s2, 8")
    b(f"  v_lshlrev_b32 v2, 12, v7")
    b(f"  v_add_u32 v2, s{S_T+2}, v2")
    b(f"  v_mov_b32 v3, 0")
    b(f"  s_mov_b64 s[48:49], exec")
    b(f"  s_mov_b64 exec, 15")
    b(f"  buffer_store_dword v3, v2, s[{SRD_CNT}:{SRD_CNT+3}], 0 offen sc1")
    b(f"  s_mov_b64 exec, s[48:49]")
    b.label("p1_noreset")
    for i in range(8):
        b(f"  buffer_load_dword v{XD+i}, v1, s[{SRD_A}:{SRD_A+3}], s{S_T+1} offen offset:{64*i}{XF()}")
    NCLR = 0
    NWE = 0
    x1_store_addr(b)
    if SENT():
        b(f"  v_mov_b32 v60, -1")
        b(f"  v_mov_b32 v61, -1")
        b(f"  v_mov_b32 v62, -1")
        b(f"  v_mov_b32 v63, -1")
        b(f"  v_bfe_u32 v2, v7, 2, 3              ; j1")
        b(f"  v_lshrrev_b32 v3, 5, v7             ; i (0,1)")
        b(f"  v_lshlrev_b32 v2, 14, v2")
        b(f"  v_lshl_add_u32 v2, v3, 17, v2")
        b(f"  v_and_b32 v3, 3, v7")
        b(f"  v_lshl_add_u32 v2, v3, 4, v2")
        b(f"  buffer_store_dwordx4 v[60:63], v2, s[{SRD_B}:{SRD_B+3}], s44 offen{SF}")
        b(f"  s_add_u32 s{S_T+7}, s44, {2*131072}")
        b(f"  buffer_store_dwordx4 v[60:63], v2, s[{SRD_B}:{SRD_B+3}], s{S_T+7} offen{SF}")
        NCLR = 2
    if "tlbw" in OPT:
        b(f"  s_cmp_lg_u32 s{S_W}, 7")
        b(f"  s_cbranch_scc1 p1_notlb")
        b(f"  v_lshlrev_b32 v2, 21, v7")
        b(f"  v_min_u32 v2, {(15 << 21)}, v2")
        for ptr, size in ((P_WS, 32 << 20), (P_W1, W1B), (P_W2, W1B), (P_WR, WB), (P_WI, WB), (P_OUT, 4 << 20)):
            srd(b, SRD_PF, ptr, size)
            b(f"  s_mov_b64 s[16:17], exec")
            b(f"  s_mov_b64 exec, {(1 << min(16, -(-size // (2 << 20)))) - 1}")
            b(f"  buffer_load_dword v230, v2, s[{SRD_PF}:{SRD_PF+3}], 0 offen")
            b(f"  s_mov_b64 exec, s[16:17]")
        b.label("p1_notlb")
    if "wearly" in OPT:
        w_early(b); NCLR += 2
    npf = 0
    p1_tables(b)
    GM = 30
    gmat(b, GM, 2, False, 10)
    srd(b, SRD_PF, P_DBG, 256)
    b(f"  s_and_b32 s{S_T+8}, s2, 15")
    b(f"  s_lshl_b32 s{S_T+9}, s{S_T+8}, 2")
    b(f"  s_add_u32 s{S_T+9}, s{S_T+9}, 64")
    b(f"  v_mov_b32 v25, s{S_T+9}")
    b(f"  v_lshlrev_b32 v26, 2, v8")
    b(f"  v_add_u32 v26, 64, v26")
    b(f"  s_cmp_ge_u32 s2, 16")
    b(f"  s_cbranch_scc1 p1_noflag")
    b(f"  s_cmp_lg_u32 s{S_W}, 0")
    b(f"  s_cbranch_scc1 p1_noflag")
    b(f"  s_waitcnt vmcnt({8} + 0)".replace(" + 0", "") if NCLR == 0 else f"  s_waitcnt vmcnt({8 + NCLR})")
    b(f"  v_mov_b32 v3, 1")
    b(f"  s_mov_b64 s[48:49], exec")
    b(f"  s_mov_b64 exec, 1")
    b(f"  buffer_store_dword v3, v25, s[{SRD_PF}:{SRD_PF+3}], 0 offen sc1")
    b(f"  s_mov_b64 exec, s[48:49]")
    b.label("p1_noflag")
    b(f"  s_waitcnt lgkmcnt(0)")
    stamp(b, "p1 tables done")
    b(f"  s_barrier")
    npf = 0
    if "nopf" not in OPT:
        b(f"  s_mul_i32 s{S_T+8}, s2, 8208")
        if "ntx" not in OPT and "wpf" in OPT:
            pf_wide(b, P_WR, WB, S_T + 8, 3, 0, 3, "pf_p1a")
            pf_wide(b, P_WI, WB, S_T + 8, 3, 0, 3, "pf_p1b")
        if "ntw1" not in OPT and PFN[0]:
            w1_share_base(b, S_T + 8, 0)
            pf_wide(b, P_W1, W1B, S_T + 8, PFN[0], 4, 8, "pf_p1c")
    M1, M2, TW = 96, 112, 128
    b(f"  v_lshlrev_b32 v2, 4, v7")
    for i in range(4): b(f"  ds_read_b128 {vr(M1+4*i,4)}, v2 offset:{L1_M1+1024*i}")
    for i in range(3): b(f"  ds_read_b128 {vr(M2+4*i,4)}, v2 offset:{L1_M2+1024*i}")
    for i in range(8): b(f"  ds_read_b128 {vr(TW+4*i,4)}, v2 offset:{L1_TW+1024*i}")
    X = 40
    nW = 0 if ("nopf" in OPT or "ntx" in OPT or "wpf" not in OPT) else 6
    n1 = 0 if ("nopf" in OPT or "ntw1" in OPT) else PFN[0]
    b(f"  s_cmp_eq_u32 s{S_W}, 3")
    b(f"  s_cbranch_scc1 p1_xw0")
    b(f"  s_cmp_ge_u32 s{S_W}, 4")
    b(f"  s_cbranch_scc1 p1_xw4")
    b(f"  s_waitcnt vmcnt({NCLR + nW})")
    b(f"  s_branch p1_xwd")
    b.label("p1_xw4")
    if "tlbw" in OPT:
        b(f"  s_cmp_lg_u32 s{S_W}, 7")
        b(f"  s_cbranch_scc1 p1_xw5")
        b(f"  s_waitcnt vmcnt({NCLR + n1 + 6})")
        b(f"  s_branch p1_xwd")
        b.label("p1_xw5")
    b(f"  s_waitcnt vmcnt({NCLR + n1})")
    b(f"  s_branch p1_xwd")
    b.label("p1_xw0")
    b(f"  s_waitcnt vmcnt({NCLR})")
    b.label("p1_xwd")
    stamp(b, "p1 x landed")
    if "wearly" in OPT:
        b(f"  s_cmp_ge_u32 s2, 8")
        b(f"  s_cbranch_scc1 p1_nonyq")
        b(f"  buffer_load_ushort v212, v214, s[{SRD_C}:{SRD_C+3}], 0 offen offset:1024")
        b(f"  buffer_load_ushort v213, v214, s[{SRD_D}:{SRD_D+3}], 0 offen offset:1024")
        b.label("p1_nonyq")
    srd(b, SRD_PF, P_DBG, 256)
    for i in range(8):
        b(f"  v_lshlrev_b32 v{X+i}, 16, v{XD+i}")
        b(f"  v_and_b32 v{X+8+i}, 0xffff0000, v{XD+i}")
    T = 56
    ln_fast(b, X, T, S_T + 2, True)
    stamp(b, "p1 ln done")
    if SENT():
        b(f"  buffer_load_dword v27, v26, s[{SRD_PF}:{SRD_PF+3}], 0 offen sc1")
        b(f"  s_and_b32 s{S_T+8}, s2, 15")
        arrive(b, 0, S_T + 8, first=True, label="x1")
        stamp(b, "p1 arrived")
        srd(b, SRD_C, P_WS, 4 << 20, WS_X2)
        for i in range(4): b(f"  v_mov_b32 v{200+i}, -1")
        b(f"  v_lshlrev_b32 v2, 4, v0")
        b(f"  s_lshl_b32 s{S_T+7}, s2, 14")
        b(f"  buffer_store_dwordx4 v[200:203], v2, s[{SRD_C}:{SRD_C+3}], s{S_T+7} offen{SF}")
        b(f"  s_add_u32 s{S_T+7}, s{S_T+7}, 8192")
        b(f"  buffer_store_dwordx4 v[200:203], v2, s[{SRD_C}:{SRD_C+3}], s{S_T+7} offen{SF}")
    A = 64
    for be in range(2):
        for i in range(4):
            b(f"  v_cvt_pk_bf16_f32 v{A+4*be+i}, v{X+8*be+2*i}, v{X+8*be+2*i+1}")
    b(f"  s_waitcnt lgkmcnt(0)")
    b(f"  v_readlane_b32 s{S_T+5}, v{T+6}, 0")
    Y = 160
    for be in range(2):
        for u in range(2):
            for c in range(2):
                d = Y + ((be * 2 + u) * 2 + c) * 4
                b(f"  {MF32} {vr(d,4)}, {vr(A+4*be,4)}, {vr(M1+4*(2*u+c),4)}, 0")
    b(f"  s_nop 4")
    Bp = 72; W = 32; O = 40
    for u in range(2):
        for be in range(2):
            y = Y + ((be * 2 + u) * 2) * 4
            tw = TW + (be * 4 + u * 2) * 4
            cmul_pk(b, O + 8 * be, O + 8 * be + 4, y, y + 4, tw, tw + 4, W, False)
        for r in range(4):
            b(f"  v_cvt_pk_bf16_f32 v{Bp+8*u+r}, v{O+r}, v{O+8+r}")
            b(f"  v_cvt_pk_bf16_f32 v{Bp+8*u+4+r}, v{O+4+r}, v{O+12+r}")
    XO = 160
    b(f"  s_nop 1")
    for u in range(2):
        re, im = XO + 8 * u, XO + 8 * u + 4
        b(f"  {MF32} {vr(re,4)}, {vr(M2,4)}, {vr(Bp+8*u,4)}, 0")
        b(f"  {MF32} {vr(im,4)}, {vr(M2,4)}, {vr(Bp+8*u+4,4)}, 0")
        b(f"  {MF32} {vr(re,4)}, {vr(M2+4,4)}, {vr(Bp+8*u+4,4)}, {vr(re,4)}")
        b(f"  {MF32} {vr(im,4)}, {vr(M2+8,4)}, {vr(Bp+8*u,4)}, {vr(im,4)}")
    b(f"  s_and_b32 s{S_T+6}, s{S_W}, 1")
    b(f"  s_lshl_b32 s{S_T+6}, s{S_T+6}, 8")
    b(f"  s_lshr_b32 s{S_T+7}, s{S_W}, 1")
    b(f"  s_lshl_b32 s{S_T+7}, s{S_T+7}, 6")
    b(f"  s_add_u32 s{S_T+6}, s{S_T+6}, s{S_T+7}")
    b(f"  v_lshlrev_b32 v3, 12, v9")
    b(f"  v_lshl_add_u32 v3, v8, 2, v3")
    b(f"  v_add_u32 v3, s{S_T+6}, v3")
    b(f"  s_nop 2")
    b(f"  v_writelane_b32 v{XO}, s{S_T+5}, 0")
    b(f"  v_writelane_b32 v{XO+4}, 0, 0")
    PK = 32
    for u in range(2):
        for r in range(4):
            b(f"  v_cvt_pk_bf16_f32 v{PK+4*u+r}, v{XO+8*u+r}, v{XO+8*u+4+r}")
    for u in range(2):
        for r in range(4):
            b(f"  ds_write_b32 v3, v{PK+4*u+r} offset:{L1_EX + u*512 + r*1024}")
    if SENT(): b(f"  s_waitcnt lgkmcnt(0) vmcnt(0)")
    else:
        b(f"  buffer_load_dword v27, v26, s[{SRD_PF}:{SRD_PF+3}], 0 offen sc1")
        b(f"  s_waitcnt lgkmcnt(0)")
    stamp(b, "p1 fft done")
    b(f"  s_barrier")
    b(f"  v_lshlrev_b32 v4, 6, v9")
    b(f"  v_lshl_add_u32 v4, v8, 2, v4")
    b(f"  s_lshl_b32 s{S_T+6}, s{S_W}, 11")
    b(f"  s_add_u32 s{S_T+6}, s{S_T+6}, {L1_EX}")
    b(f"  v_add_u32 v4, s{S_T+6}, v4")
    Bd = 40
    for i in range(4):
        b(f"  ds_read2st64_b32 {vr(Bd+2*i,2)}, v4 offset0:{2*i} offset1:{2*i+1}")
    D = 48
    for i in range(4):
        b(f"  s_waitcnt lgkmcnt({3-i})")
        b(f"  {MF16} {vr(D+4*i,4)}, {vr(GM,2)}, {vr(Bd+2*i,2)}, 0")
    b(f"  s_nop 4")
    for i in range(4):
        b(f"  v_cvt_pk_bf16_f32 v{64+2*i}, v{D+4*i}, v{D+4*i+1}")
        b(f"  v_cvt_pk_bf16_f32 v{65+2*i}, v{D+4*i+2}, v{D+4*i+3}")
        b(f"  v_min_u32 v{64+2*i}, 0xfffffffe, v{64+2*i}")
        b(f"  v_min_u32 v{65+2*i}, 0xfffffffe, v{65+2*i}")
        for e in range(2):
            b(f"  s_add_u32 s{S_T+7}, s44, {i*131072 + e*16384}")
            b(f"  buffer_store_dword v{64+2*i+e}, v5, s[{SRD_B}:{SRD_B+3}], s{S_T+7} offen{SF}")
    stamp(b, "p1 stores issued")
    if not SENT():
        b(f"  s_and_b32 s{S_T+8}, s2, 15")
        arrive(b, 0, S_T + 8, first=True, label="x1")
        stamp(b, "p1 arrived")

XL2, WL2 = 32, 40
WE = 204
TC2, TS2 = 64, 68
def p2_setup(b):
    srd(b, SRD_A, P_WS, 4 << 20, WS_X1)
    srd(b, SRD_B, P_WS, 4 << 20, WS_X2)
    srd(b, SRD_C, P_WR, WB)
    srd(b, SRD_D, P_WI, WB)
    b(f"  s_and_b32 s{S_T}, s2, 7              ; j1")
    b(f"  s_lshr_b32 s{S_T+1}, s2, 3           ; kb")
    b(f"  v_and_b32 v10, 1, v0                 ; half")
    b(f"  v_bfe_u32 v11, v0, 5, 4              ; c")
    b(f"  v_bfe_u32 v12, v0, 1, 4              ; e")
    b(f"  v_lshl_add_u32 v13, v12, 4, v11      ; j2")
    b(f"  v_lshlrev_b32 v13, 3, v13")
    b(f"  v_add_u32 v13, s{S_T}, v13           ; j")
    b(f"  v_mul_u32_u24 v13, 1026, v13")
    b(f"  v_lshlrev_b32 v14, 4, v10")
    b(f"  v_add_u32 v14, v13, v14")
    b(f"  s_lshl_b32 s{S_T+3}, s{S_T+1}, 5")
    if "wearly" in OPT:
        b(f"  s_cmp_lg_u32 s{S_T+1}, 0")
        b(f"  s_cbranch_scc1 p2_nonyq")
        b(f"  s_waitcnt vmcnt(0)")
        b(f"  v_cmp_eq_u32 vcc, 0, v215")
        b(f"  v_and_b32 v50, 0xffff0000, v{WE}")
        b(f"  v_or_b32 v50, v50, v212")
        b(f"  v_cndmask_b32 v{WE}, v{WE}, v50, vcc")
        b(f"  v_and_b32 v50, 0xffff0000, v{WE+4}")
        b(f"  v_or_b32 v50, v50, v213")
        b(f"  v_cndmask_b32 v{WE+4}, v{WE+4}, v50, vcc")
        b.label("p2_nonyq")
    elif "wlate" in OPT:
        b(f"  v_mov_b32 v24, v14")
        b(f"  v_mov_b32 v25, v13")
        b(f"  v_mov_b32 v26, v10                   ; half")
        b(f"  s_mov_b32 s45, s{S_T+3}              ; kb*32")
    else:
        WL = WL2
        b(f"  v_mov_b32 v24, v14")
        b(f"  v_mov_b32 v25, v13")
        b(f"  v_mov_b32 v26, v10                   ; half")
        b(f"  s_mov_b32 s45, s{S_T+3}              ; kb*32")
        WL = WL2
        b(f"  buffer_load_dwordx4 {vr(WL,4)}, v24, s[{SRD_C}:{SRD_C+3}], s45 offen{XF()}")
        b(f"  buffer_load_dwordx4 {vr(WL+4,4)}, v24, s[{SRD_D}:{SRD_D+3}], s45 offen{XF()}")
        b(f"  s_cmp_lg_u32 s{S_T+1}, 0")
        b(f"  s_cbranch_scc1 p2_nonyq")
        b(f"  buffer_load_ushort v48, v25, s[{SRD_C}:{SRD_C+3}], 0 offen offset:1024")
        b(f"  buffer_load_ushort v49, v25, s[{SRD_D}:{SRD_D+3}], 0 offen offset:1024")
        b(f"  s_waitcnt vmcnt(0)")
        b(f"  v_cmp_eq_u32 vcc, 0, v26")
        b(f"  v_and_b32 v50, 0xffff0000, v{WL}")
        b(f"  v_or_b32 v50, v50, v48")
        b(f"  v_cndmask_b32 v{WL}, v{WL}, v50, vcc")
        b(f"  v_and_b32 v50, 0xffff0000, v{WL+4}")
        b(f"  v_or_b32 v50, v50, v49")
        b(f"  v_cndmask_b32 v{WL+4}, v{WL+4}, v50, vcc")
        b.label("p2_nonyq")
    npf = 0
    b(f"  v_and_b32 v15, 255, v0")
    b(f"  v_bfe_u32 v16, v15, 2, 4             ; x")
    b(f"  v_lshrrev_b32 v17, 6, v15            ; g")
    b(f"  v_and_b32 v18, 3, v15")
    b(f"  v_lshl_add_u32 v17, v17, 2, v18      ; 4g+i")
    b(f"  v_mul_u32_u24 v17, v17, v16")
    sincos(b, 18, 19, 17, 4, 20)
    b(f"  v_cmp_gt_u32 vcc, 256, v0            ; matrix 0 ?")
    b(f"  v_xor_b32 v20, 0x80000000, v19       ; -sin")
    b(f"  s_nop 0")
    b(f"  v_cndmask_b32 v21, v20, v18, vcc")
    b(f"  v_cndmask_b32 v22, v18, v19, vcc")
    b(f"  v_cvt_pk_bf16_f32 v21, v21, v22")
    b(f"  v_lshlrev_b32 v22, 2, v0")
    b(f"  ds_write_b32 v22, v21 offset:{L2_F}")
    b(f"  v_lshlrev_b32 v16, 2, v9")
    for r in range(4):
        b(f"  v_add_u32 v17, {r}, v16")
        b(f"  v_mul_u32_u24 v17, v17, v8")
        sincos(b, TC2 + r, TS2 + r, 17, 8, 20)
    b(f"  v_and_b32 v16, 3, v0                 ; i")
    b(f"  v_mul_u32_u24 v16, {4*1040}, v16")
    b(f"  v_lshrrev_b32 v17, 6, v0             ; b (0..7)")
    b(f"  v_lshl_add_u32 v16, v17, 6, v16")
    b(f"  v_bfe_u32 v17, v0, 2, 2              ; a&3")
    b(f"  v_lshl_add_u32 v16, v17, 2, v16")
    b(f"  v_bfe_u32 v17, v0, 4, 2              ; a>>2")
    b(f"  v_lshl_add_u32 v21, v17, 4, v16      ; first")
    b(f"  v_xor_b32 v17, 2, v17")
    b(f"  v_lshl_add_u32 v22, v17, 4, v16")
    b(f"  v_add_u32 v22, 512, v22              ; second (b+8)")
    b(f"  v_mul_u32_u24 v16, {4*1040}, v10")
    b(f"  v_lshl_add_u32 v16, v11, 6, v16")
    b(f"  v_and_b32 v17, 3, v12")
    b(f"  v_lshl_add_u32 v16, v17, 2, v16")
    b(f"  v_lshrrev_b32 v17, 2, v12")
    b(f"  v_lshrrev_b32 v18, 3, v11            ; c>>3")
    b(f"  v_lshlrev_b32 v18, 1, v18")
    b(f"  v_xor_b32 v17, v17, v18")
    b(f"  v_lshl_add_u32 v23, v17, 4, v16")
    b(f"  v_lshrrev_b32 v16, 3, v8")
    b(f"  v_lshlrev_b32 v16, 1, v16")
    b(f"  v_xor_b32 v16, v16, v9")
    b(f"  v_lshlrev_b32 v16, 4, v16")
    b(f"  v_lshl_add_u32 v16, v8, 6, v16")
    b(f"  s_mul_i32 s{S_T+4}, s{S_W}, {2*1040}")
    b(f"  s_mul_i32 s{S_T+5}, s{S_W}, 1040")
    b(f"  v_add_u32 v5, s{S_T+4}, v16")
    b(f"  v_add_u32 v6, s{S_T+5}, v16")
    b(f"  v_lshlrev_b32 v1, 4, v0")
    b(f"  s_lshl_b32 s{S_T+2}, s2, 14")
    b(f"  s_add_u32 s{S_T+3}, s{S_T+2}, 8192")
    b(f"  s_waitcnt lgkmcnt(0)")

def sentinel_check(b, R0, pre, n=8):
    b(f"  v_max3_u32 v16, v{R0}, v{R0+1}, v{R0+2}")
    b(f"  v_max3_u32 v17, v{R0+3}, v{R0+4}, v{R0+5}")
    b(f"  v_max3_u32 v16, v16, v{R0+6}, v{R0+7}")
    for i in range(8, n, 2): b(f"  v_max3_u32 v17, v17, v{R0+i}, v{R0+i+1}")
    b(f"  v_max_u32 v16, v16, v17")
    b(f"  v_cmp_eq_u32 vcc, -1, v16")
    b(f"  s_sub_u32 s11, s11, 1")
    b(f"  s_cmp_eq_u32 s11, 0")
    b(f"  s_cbranch_scc1 {pre}_got")
    b(f"  s_cmp_lg_u64 vcc, 0")
    b(f"  s_cbranch_scc1 {pre}_poll")
    b.label(f"{pre}_got")

def p2_main(b):
    XL = XL2; TC, TS = TC2, TS2
    if SENT():
        b(f"  s_mov_b32 s11, 200000")
        b.label("p2_poll")
    b(f"  buffer_load_dwordx4 {vr(XL,4)}, v1, s[{SRD_A}:{SRD_A+3}], s{S_T+2} offen sc1")
    b(f"  buffer_load_dwordx4 {vr(XL+4,4)}, v1, s[{SRD_A}:{SRD_A+3}], s{S_T+3} offen sc1")
    if "wlate" in OPT:
        assert not SENT()
        WL = WL2
        b(f"  buffer_load_dwordx4 {vr(WL,4)}, v24, s[{SRD_C}:{SRD_C+3}], s45 offen{XF()}")
        b(f"  buffer_load_dwordx4 {vr(WL+4,4)}, v24, s[{SRD_D}:{SRD_D+3}], s45 offen{XF()}")
        b(f"  s_cmp_lg_u32 s{S_T+1}, 0")
        b(f"  s_cbranch_scc1 p2_nonyq")
        b(f"  buffer_load_ushort v56, v25, s[{SRD_C}:{SRD_C+3}], 0 offen offset:1024")
        b(f"  buffer_load_ushort v57, v25, s[{SRD_D}:{SRD_D+3}], 0 offen offset:1024")
        b(f"  s_waitcnt vmcnt(0)")
        b(f"  v_cmp_eq_u32 vcc, 0, v26")
        b(f"  v_and_b32 v58, 0xffff0000, v{WL}")
        b(f"  v_or_b32 v58, v58, v56")
        b(f"  v_cndmask_b32 v{WL}, v{WL}, v58, vcc")
        b(f"  v_and_b32 v58, 0xffff0000, v{WL+4}")
        b(f"  v_or_b32 v58, v58, v57")
        b(f"  v_cndmask_b32 v{WL+4}, v{WL+4}, v58, vcc")
        b.label("p2_nonyq")
        b(f"  s_waitcnt vmcnt(2)")
    else:
        b(f"  s_waitcnt vmcnt(0)")
    if SENT(): sentinel_check(b, XL, "p2")
    WL = WE if "wearly" in OPT else WL2
    b(f"  v_lshlrev_b32 v17, 4, v7")
    FR, FI = 72, 76
    AX = 48; WR, WI = 152, 156
    b(f"  ds_read_b128 {vr(FR,4)}, v17 offset:{L2_F}")
    b(f"  ds_read_b128 {vr(FI,4)}, v17 offset:{L2_F+1024}")
    Dq = [80, 88]; Oq = [96, 104]; Tq = [112, 120]; Pq = [128, 132]; Wq = [136, 144]
    stamp(b, "p2 x landed")
    for j in range(4):
        b(f"  ds_write_b32 v21, v{XL+j} offset:{L2_X + j*1040}")
        b(f"  ds_write_b32 v22, v{XL+4+j} offset:{L2_X + j*1040}")
    if "wlate" in OPT: b(f"  s_waitcnt vmcnt(0)")
    for j in range(4):
        b(f"  ds_write_b32 v23, v{WL+j} offset:{L2_W + j*1040}")
        b(f"  ds_write_b32 v23, v{WL+4+j} offset:{L2_W + 8*1040 + j*1040}")
    if "nopf" not in OPT and "ntw1" not in OPT and PFN[1]:
        w1_share_base(b, S_T + 8, PFN[0] * 4096)
        pf_wide(b, P_W1, W1B, S_T + 8, PFN[1], 4, 8, "pf_p2a")
    b(f"  s_waitcnt lgkmcnt(0)")
    b(f"  s_barrier")
    b(f"  ds_read_b128 {vr(AX,4)}, v5 offset:{L2_X}")
    b(f"  ds_read_b128 {vr(AX+4,4)}, v5 offset:{L2_X+1040}")
    b(f"  ds_read_b128 {vr(WR,4)}, v6 offset:{L2_W}")
    b(f"  ds_read_b128 {vr(WI,4)}, v6 offset:{L2_W+8*1040}")
    def stage(form, src):
        for k in range(2):
            d = Dq[k]
            if form == 'A':
                b(f"  {MF32} {vr(d,4)}, {vr(src[k],4)}, {vr(FR,4)}, 0")
                b(f"  {MF32} {vr(d+4,4)}, {vr(src[k],4)}, {vr(FI,4)}, 0")
            else:
                b(f"  {MF32} {vr(d,4)}, {vr(FR,4)}, {vr(src[k],4)}, 0")
                b(f"  {MF32} {vr(d+4,4)}, {vr(FI,4)}, {vr(src[k],4)}, 0")
    def twiddle_pack():
        for k in range(2):
            cmul_pk(b, Oq[k], Oq[k] + 4, Dq[k], Dq[k] + 4, TC, TS, Tq[k], False)
        for k in range(2):
            for r in range(4):
                b(f"  v_cvt_pk_bf16_f32 v{Pq[k]+r}, v{Oq[k]+r}, v{Oq[k]+4+r}")
        b(f"  s_nop 1")
    b(f"  s_waitcnt lgkmcnt(2)")
    stage('A', [AX, AX + 4])
    b(f"  s_waitcnt lgkmcnt(0)")
    for r in range(4):
        b(f"  v_lshlrev_b32 v{Wq[0]+r}, 16, v{WR+r}")
        b(f"  v_lshlrev_b32 v{Wq[0]+4+r}, 16, v{WI+r}")
        b(f"  v_and_b32 v{Wq[1]+r}, 0xffff0000, v{WR+r}")
        b(f"  v_and_b32 v{Wq[1]+4+r}, 0xffff0000, v{WI+r}")
    twiddle_pack()
    stage('B', Pq)
    b(f"  s_nop 5")
    for k in range(2):
        cmul_pk(b, Oq[k], Oq[k] + 4, Dq[k], Dq[k] + 4, Wq[k], Wq[k] + 4, Tq[k], True)
    for k in range(2):
        for r in range(4):
            b(f"  v_cvt_pk_bf16_f32 v{Pq[k]+r}, v{Oq[k]+r}, -v{Oq[k]+4+r}")
    b(f"  s_nop 1")
    stage('A', Pq)
    b(f"  s_nop 5")
    twiddle_pack()
    stage('B', Pq)
    b(f"  s_nop 5")
    for k in range(2):
        for r in range(4):
            b(f"  v_cvt_pk_bf16_f32 v{Pq[k]+r}, v{Dq[k]+r}, -v{Dq[k]+4+r}")
    b(f"  ds_write_b128 v5, {vr(Pq[0],4)} offset:{L2_X}")
    b(f"  ds_write_b128 v5, {vr(Pq[1],4)} offset:{L2_X+1040}")
    b(f"  s_waitcnt lgkmcnt(0)")
    b(f"  s_barrier")
    for j in range(4):
        b(f"  ds_read_b32 v{XL+j}, v21 offset:{L2_X + j*1040}")
        b(f"  ds_read_b32 v{XL+4+j}, v22 offset:{L2_X + j*1040}")
    b(f"  v_bfe_u32 v16, v0, 2, 4              ; a")
    b(f"  v_lshrrev_b32 v17, 6, v0             ; b")
    b(f"  v_lshl_add_u32 v16, v16, 4, v17      ; s1")
    b(f"  v_lshlrev_b32 v16, 14, v16")
    b(f"  v_and_b32 v17, 3, v0")
    b(f"  v_lshl_add_u32 v16, v17, 4, v16")
    b(f"  s_lshl_b32 s{S_T+4}, s{S_T}, 11")
    b(f"  s_lshl_b32 s{S_T+5}, s{S_T+1}, 6")
    b(f"  s_add_u32 s{S_T+4}, s{S_T+4}, s{S_T+5}")
    b(f"  s_add_u32 s{S_T+5}, s{S_T+4}, {8*16384}")
    b(f"  s_waitcnt lgkmcnt(0)")
    for j in range(8): b(f"  v_min_u32 v{XL+j}, 0xfffffffe, v{XL+j}")
    b(f"  buffer_store_dwordx4 {vr(XL,4)}, v16, s[{SRD_B}:{SRD_B+3}], s{S_T+4} offen{SF}")
    b(f"  buffer_store_dwordx4 {vr(XL+4,4)}, v16, s[{SRD_B}:{SRD_B+3}], s{S_T+5} offen{SF}")
    stamp(b, "p2 stores issued")
    if not SENT():
        b(f"  s_and_b32 s{S_T+8}, s2, 15")
        arrive(b, 1, S_T + 8, label="x2")

V_LO = 224
S_G1A = 60
def g1_ids(b):
    b(f"  s_lshr_b32 s{S_T}, s2, 3                 ; i")
    b(f"  s_cmp_lt_u32 s{S_T}, 28")
    b(f"  s_cselect_b32 s62, 1, 0")
    b(f"  s_mul_i32 s{S_T+1}, s{S_T}, 37")
    b(f"  s_lshr_b32 s{S_T+1}, s{S_T+1}, 8         ; i/7")
    b(f"  s_mul_i32 s{S_T+2}, s{S_T+1}, 7")
    b(f"  s_sub_u32 s{S_T+2}, s{S_T}, s{S_T+2}     ; i%7")
    b(f"  s_and_b32 s{S_T+3}, s2, 7")
    b(f"  s_lshr_b32 s{S_T+4}, s{S_T+3}, 1")
    b(f"  s_mul_i32 s{S_T+4}, s{S_T+4}, 7")
    b(f"  s_add_u32 s60, s{S_T+4}, s{S_T+2}        ; ft")
    b(f"  s_and_b32 s{S_T+3}, s{S_T+3}, 1")
    b(f"  s_lshl_b32 s{S_T+3}, s{S_T+3}, 2")
    b(f"  s_add_u32 s61, s{S_T+3}, s{S_T+1}        ; dt")

S_SOFF, S_M0, S_N = 4, 5, 6
def loader_issue(b, voff, fl=""):
    for i in range(4):
        b(f"  s_add_u32 m0, s{S_M0}, {4096*i}")
        b(f"  s_nop 0")
        b(f"  buffer_load_dwordx4 v{voff+i}, s[{SRD_T}:{SRD_T+3}], s{S_SOFF} offen{fl} lds")
    b(f"  s_add_u32 s{S_SOFF}, s{S_SOFF}, s9")
    b(f"  s_add_u32 s{S_M0}, s{S_M0}, {STAGE}")
    b(f"  s_cmp_ge_u32 s{S_M0}, s{S_N+1}")
    b(f"  s_cselect_b32 s{S_N+2}, {R*STAGE}, 0")
    b(f"  s_sub_u32 s{S_M0}, s{S_M0}, s{S_N+2}")

def loader_init(b, step_bytes):
    b(f"  s_sub_u32 s50, s{S_W}, 4")
    b(f"  s_lshl_b32 s{S_M0}, s50, 10")
    b(f"  s_add_u32 s{S_N+1}, s{S_M0}, {R*STAGE}")
    b(f"  s_mov_b32 s{S_SOFF}, 0")
    b(f"  s_mov_b32 s9, {step_bytes}")

def g1_loader_addr(b):
    b(f"  s_sub_u32 s50, s{S_W}, 4      ; w'")
    for i in range(4):
        b(f"  s_lshl_b32 s49, s50, 2")
        b(f"  s_add_u32 s49, s49, {16*i}")
        b(f"  v_lshrrev_b32 v14, 4, v7")
        b(f"  v_add_u32 v14, s49, v14                 ; row 0..63")
        b(f"  v_and_b32 v15, 3, v14")
        b(f"  v_lshlrev_b32 v15, 2, v15")
        b(f"  v_and_b32 v16, 15, v7")
        b(f"  v_xor_b32 v16, v16, v15                 ; q")
        b(f"  v_lshrrev_b32 v17, 3, v14")
        b(f"  v_and_b32 v18, 7, v14")
        b(f"  v_lshl_add_u32 v17, v18, 8, v17         ; s")
        b(f"  v_mul_u32_u24 v17, 7168, v17")
        b(f"  v_lshl_add_u32 v17, v16, 4, v17")
        b(f"  s_lshl_b32 s49, s60, 8")
        b(f"  v_add_u32 v{V_LO+i}, s49, v17")

def g2_ids(b):
    if SK():
        b(f"  s_lshr_b32 s{S_T+1}, s2, 3")
        b(f"  s_lshr_b32 s{S_TILE_A}, s{S_T+1}, 2          ; dt")
        b(f"  s_lshr_b32 s{S_T}, s2, 1")
        b(f"  s_and_b32 s{S_T}, s{S_T}, 3")
        b(f"  s_lshl_b32 s{S_T}, s{S_T}, 2")
        b(f"  s_and_b32 s{S_T+1}, s{S_T+1}, 3")
        b(f"  s_add_u32 s{S_TILE_B}, s{S_T}, s{S_T+1}      ; st2")
        b(f"  s_and_b32 s19, s2, 1                       ; kh")
        return
    b(f"  s_and_b32 s{S_T}, s2, 1")
    b(f"  s_lshl_b32 s{S_T}, s{S_T}, 2")
    b(f"  s_lshr_b32 s{S_T+1}, s2, 3")
    b(f"  s_and_b32 s{S_T+2}, s{S_T+1}, 3")
    b(f"  s_add_u32 s{S_TILE_A}, s{S_T}, s{S_T+2}     ; dt")
    b(f"  s_lshr_b32 s{S_T}, s2, 1")
    b(f"  s_and_b32 s{S_T}, s{S_T}, 3")
    b(f"  s_lshl_b32 s{S_T}, s{S_T}, 3")
    b(f"  s_lshr_b32 s{S_T+1}, s{S_T+1}, 2")
    b(f"  s_add_u32 s{S_TILE_B}, s{S_T}, s{S_T+1}     ; st")

def g2_loader_addr(b):
    if SK():
        b(f"  s_sub_u32 s50, s{S_W}, 4")
        for i in range(4):
            b(f"  s_lshl_b32 s49, s50, 2")
            b(f"  s_add_u32 s49, s49, {16*i}")
            b(f"  v_lshrrev_b32 v14, 4, v7")
            b(f"  v_add_u32 v14, s49, v14                 ; row 0..63")
            b(f"  v_and_b32 v15, 3, v14")
            b(f"  v_lshlrev_b32 v15, 2, v15")
            b(f"  v_and_b32 v16, 15, v7")
            b(f"  v_xor_b32 v16, v16, v15                 ; q")
            b(f"  v_lshlrev_b32 v14, 12, v14              ; row*4096")
            b(f"  v_lshl_add_u32 v14, v16, 4, v14")
            b(f"  s_lshl_b32 s49, s{S_TILE_B}, 8          ; s0*2")
            b(f"  s_mul_i32 s48, s19, {1792*4096}         ; k half")
            b(f"  s_add_u32 s49, s49, s48")
            b(f"  v_add_u32 v{V_LO+i}, s49, v14")
        return
    b(f"  s_sub_u32 s50, s{S_W}, 4")
    for i in range(4):
        b(f"  s_lshl_b32 s49, s50, 3")
        b(f"  s_add_u32 s49, s49, {32*i}")
        b(f"  v_lshrrev_b32 v14, 3, v7")
        b(f"  v_add_u32 v14, s49, v14                 ; row")
        b(f"  v_bfe_u32 v15, v14, 1, 1")
        b(f"  v_lshlrev_b32 v15, 2, v15")
        b(f"  v_and_b32 v16, 7, v7")
        b(f"  v_xor_b32 v16, v16, v15                 ; q")
        b(f"  v_lshlrev_b32 v14, 12, v14              ; row*4096")
        b(f"  v_lshl_add_u32 v14, v16, 4, v14")
        b(f"  s_lshl_b32 s49, s{S_TILE_B}, 7          ; s0*2")
        b(f"  v_add_u32 v{V_LO+i}, s49, v14")

def loader_loop(b, NS, pre, fl=""):
    nmain = NS - (R - 2)
    b(f"  s_mov_b32 s{S_N}, {nmain}")
    b.label(f"{pre}_lloop")
    b(f"  s_waitcnt vmcnt({(R-3)*4})")
    b("  s_barrier")
    loader_issue(b, V_LO, fl)
    b(f"  s_sub_u32 s{S_N}, s{S_N}, 1")
    b(f"  s_cmp_lg_u32 s{S_N}, 0")
    b(f"  s_cbranch_scc1 {pre}_lloop")
    for i in range(R - 2):
        b(f"  s_waitcnt vmcnt({(R-3-i)*4})")
        b("  s_barrier")

BD3 = 32; XR3 = 192; GM3 = 30
def p3_tables(b):
    b(f"  v_and_b32 v10, 255, v0            ; e")
    b(f"  v_lshrrev_b32 v11, 8, v0")
    b(f"  v_bfe_u32 v12, v10, 2, 4          ; n = lane&15")
    b(f"  v_lshrrev_b32 v13, 6, v10         ; g")
    b(f"  v_and_b32 v14, 3, v10             ; r")
    b(f"  v_lshl_add_u32 v13, v13, 2, v14   ; 4g + r")
    b(f"  v_lshrrev_b32 v15, 2, v12")
    b(f"  v_lshlrev_b32 v15, 3, v15")
    b(f"  v_and_b32 v16, 3, v12")
    b(f"  v_add_u32 v15, v15, v16           ; b(n,0)")
    b(f"  v_lshl_add_u32 v16, v11, 2, v15   ; b(n, sel)")
    b(f"  v_mul_u32_u24 v17, v16, v13")
    sincos(b, 18, 19, 17, 5, 20)
    b(f"  v_lshlrev_b32 v22, 2, v10")
    b(f"  v_lshl_add_u32 v22, v11, 11, v22  ; sel*2048 + e*4")
    b(f"  v_add_u32 v22, {L3_M3}, v22")
    b(f"  v_cvt_pk_bf16_f32 v23, v18, -v19")
    b(f"  v_cvt_pk_bf16_f32 v24, v19, v18")
    b(f"  ds_write_b32 v22, v23")
    b(f"  ds_write_b32 v22, v24 offset:1024")
    b(f"  v_lshl_add_u32 v17, v11, 4, v13   ; k1")
    for z in range(2):
        b(f"  v_add_u32 v21, {16*z}, v12")
        b(f"  v_mul_u32_u24 v21, v21, v17")
        sincos(b, 18, 19, 21, 5, 20)
        b(f"  v_add_f32 v18, v18, v18")
        b(f"  v_mul_f32 v19, -2.0, v19")
        b(f"  v_cvt_pk_bf16_f32 v23, v18, v19")
        b(f"  ds_write_b32 v22, v23 offset:{4096+1024*z}")
    b(f"  v_lshlrev_b32 v23, 2, v10")
    b(f"  v_lshl_add_u32 v23, v11, 12, v23   ; u*4096 + e*4")
    b(f"  v_add_u32 v23, {L3_TW}, v23")
    for v in range(2):
        b(f"  v_add_u32 v21, {4*v}, v15")
        b(f"  v_mul_u32_u24 v21, v21, v17")
        sincos(b, 18, 19, 21, 10, 20)
        b(f"  ds_write_b32 v23, v18 offset:{2048*v}")
        b(f"  ds_write_b32 v23, v19 offset:{2048*v+1024}")

def p3_setup(b):
    srd(b, SRD_A, P_WS, 4 << 20, WS_X2)
    srd(b, SRD_B, P_X, 4 << 20)
    srd(b, SRD_C, P_WS, 4 << 20, WS_H)
    srd(b, SRD_D, P_WS, 4 << 20, WS_LN2)
    b(f"  s_lshl_b32 s{S_T+3}, s{S_W}, 8")
    b(f"  s_add_u32 s{S_T+3}, s{S_T+3}, s2")
    b(f"  s_lshl_b32 s{S_T+3}, s{S_T+3}, 11       ; s*2048")
    b(f"  v_lshlrev_b32 v4, 6, v8")
    b(f"  v_lshl_add_u32 v4, v9, 4, v4")
    for z in range(2):
        b(f"  buffer_load_dwordx4 {vr(XR3+4*z,4)}, v4, s[{SRD_B}:{SRD_B+3}], s{S_T+3} offen offset:{1024*z}")
    b(f"  s_mov_b32 s63, s{S_T+3}")
    if SK():
        srd(b, SRD_PF, P_WS, 4 << 20, WS_XCH)
        for i in range(4): b(f"  v_mov_b32 v{200+i}, -1")
        b(f"  v_lshlrev_b32 v2, 4, v0")
        b(f"  s_lshl_b32 s{S_T+8}, s2, 14")
        b(f"  buffer_store_dwordx4 v[200:203], v2, s[{SRD_PF}:{SRD_PF+3}], s{S_T+8} offen{SF}")
        b(f"  s_add_u32 s{S_T+8}, s{S_T+8}, 8192")
        b(f"  buffer_store_dwordx4 v[200:203], v2, s[{SRD_PF}:{SRD_PF+3}], s{S_T+8} offen{SF}")
    if "nopf" not in OPT and "ntw1" not in OPT:
        if PFN[2]:
            w1_share_base(b, S_T + 8, (PFN[0] + PFN[1]) * 4096)
            pf_wide(b, P_W1, W1B, S_T + 8, PFN[2], 4, 8, "pf_p3a")
    g1_ids(b)
    g1_loader_addr(b)
    loader_init(b, 8 * 7168)
    p3_tables(b)
    gmat(b, GM3, 2, True, 10)
    b(f"  v_lshlrev_b32 v1, 12, v9")
    b(f"  v_lshl_add_u32 v1, v8, 2, v1")
    b(f"  s_lshl_b32 s{S_T}, s2, 14")
    b(f"  s_and_b32 s{S_T+1}, s{S_W}, 1")
    b(f"  s_lshl_b32 s{S_T+1}, s{S_T+1}, 6")
    b(f"  s_lshr_b32 s{S_T+2}, s{S_W}, 1")
    b(f"  s_lshl_b32 s{S_T+2}, s{S_T+2}, 9")
    b(f"  s_add_u32 s{S_T}, s{S_T}, s{S_T+1}")
    b(f"  s_add_u32 s44, s{S_T}, s{S_T+2}          ; X2 soffset")
    b(f"  s_lshl_b32 s{S_T+1}, s{S_T+1}, 4        ; u*1024")
    b(f"  s_lshr_b32 s{S_T+2}, s{S_T+2}, 1        ; q4*256")
    b(f"  s_add_u32 s45, s{S_T+1}, s{S_T+2}")
    b(f"  s_waitcnt lgkmcnt(0)")

def p3_main(b):
    Bd, XR, GM = BD3, XR3, GM3
    D = 40
    b(f"  v_lshlrev_b32 v3, 12, v9")
    b(f"  v_lshl_add_u32 v3, v8, 4, v3")
    b(f"  v_add_u32 v3, s45, v3")
    b(f"  v_add_u32 v3, {L3_EX}, v3")
    M3, M4, TW = 96, 112, 128
    b(f"  v_lshlrev_b32 v6, 4, v7")
    b(f"  v_add_u32 v6, {L3_M3}, v6")
    for i in range(4): b(f"  ds_read_b128 {vr(M3+4*i,4)}, v6 offset:{1024*i}")
    for i in range(4): b(f"  ds_read_b128 {vr(M4+4*i,4)}, v6 offset:{4096+1024*i}")
    b(f"  s_waitcnt lgkmcnt(0)")
    for i in range(8): b(f"  ds_read_b128 {vr(TW+4*i,4)}, v6 offset:{8192+1024*i}")
    if SENT():
        b(f"  s_mov_b32 s11, 200000")
        b.label("p3_poll")
    for i in range(4):
        for e in range(2):
            b(f"  buffer_load_dword v{Bd+2*i+e}, v1, s[{SRD_A}:{SRD_A+3}], s44 offen offset:{e*2048+i*128} sc1")
    b(f"  s_waitcnt vmcnt(0)")
    if SENT(): sentinel_check(b, Bd, "p3")
    stamp(b, "p3 x2 landed")
    if "nopf" not in OPT and "ntw1" not in OPT and PFN[3]:
        w1_share_base(b, S_T + 8, (PFN[0] + PFN[1] + PFN[2]) * 4096)
        pf_wide(b, P_W1, W1B, S_T + 8, PFN[3], 4, 8, "pf_p3b")
    for i in range(4):
        b(f"  {MF16} {vr(D+4*i,4)}, {vr(GM,2)}, {vr(Bd+2*i,2)}, 0")
    b(f"  s_nop 4")
    PK = 56
    for e in range(2):
        for i in range(4):
            b(f"  v_cvt_pk_bf16_f32 v{PK+4*e+i}, v{D+4*i+2*e}, v{D+4*i+2*e+1}")
    b(f"  ds_write_b128 v3, {vr(PK,4)}")
    b(f"  ds_write_b128 v3, {vr(PK+4,4)} offset:2048")
    b(f"  s_waitcnt lgkmcnt(0)")
    b(f"  s_barrier")
    b(f"  v_lshlrev_b32 v5, 8, v9")
    b(f"  v_lshl_add_u32 v5, v8, 4, v5")
    b(f"  s_lshl_b32 s{S_T+1}, s{S_W}, 11")
    b(f"  s_add_u32 s{S_T+1}, s{S_T+1}, {L3_EX}")
    b(f"  v_add_u32 v5, s{S_T+1}, v5")
    AU = 32
    b(f"  ds_read_b128 {vr(AU,4)}, v5")
    b(f"  ds_read_b128 {vr(AU+4,4)}, v5 offset:1024")
    b(f"  s_waitcnt lgkmcnt(0)")
    b(f"  v_readlane_b32 s{S_T+4}, v{AU}, 0")
    b(f"  v_writelane_b32 v{AU}, 0, 0")
    b(f"  s_nop 1")
    b(f"  s_lshl_b32 s{S_T+4}, s{S_T+4}, 16")
    TT = 160
    for u in range(2):
        for v in range(2):
            for c in range(2):
                d = TT + ((u * 2 + v) * 2 + c) * 4
                b(f"  {MF32} {vr(d,4)}, {vr(AU+4*u,4)}, {vr(M3+4*(2*v+c),4)}, 0")
    CI = 60
    b(f"  v_mov_b32 v{CI}, s{S_T+4}")
    b(f"  v_xor_b32 v{CI+1}, 0x80000000, v{CI}")
    b(f"  v_mov_b32 v{CI+2}, v{CI}")
    b(f"  v_mov_b32 v{CI+3}, v{CI+1}")
    b(f"  s_nop 1")
    A2 = 64; O = 40; W = 80
    for u in range(2):
        for v in range(2):
            t = TT + ((u * 2 + v) * 2) * 4
            tw = TW + ((u * 2 + v) * 2) * 4
            cmul_pk(b, O, O + 4, t, t + 4, tw, tw + 4, W, True)
            for r in range(4):
                b(f"  v_cvt_pk_bf16_f32 v{A2+(u*2+v)*4+r}, v{O+r}, v{O+4+r}")
    Y = 160
    b(f"  s_nop 1")
    for z in range(2):
        for v in range(2):
            d = Y + (z * 2 + v) * 4
            b(f"  {MF32} {vr(d,4)}, {vr(A2+(0*2+v)*4,4)}, {vr(M4+(0*2+z)*4,4)}, {vr(CI,4)}")
    for z in range(2):
        for v in range(2):
            d = Y + (z * 2 + v) * 4
            b(f"  {MF32} {vr(d,4)}, {vr(A2+(1*2+v)*4,4)}, {vr(M4+(1*2+z)*4,4)}, {vr(d,4)}")
    b(f"  s_nop 7")
    X = 40; HP = 32
    stamp(b, "p3 ifft done")
    for z in range(2):
        for dd in range(4):
            y0 = Y + z * 8 + 2 * dd
            xd = XR + 4 * z + dd
            t = 64 + 2 * (dd % 4)
            b(f"  v_lshlrev_b32 v{t}, 16, v{xd}")
            b(f"  v_and_b32 v{t+1}, 0xffff0000, v{xd}")
            b(f"  v_pk_add_f32 {vr(t,2)}, {vr(t,2)}, {vr(y0,2)}")
            b(f"  v_cvt_pk_bf16_f32 v{HP+4*z+dd}, v{t}, v{t+1}")
    for z in range(2):
        b(f"  buffer_store_dwordx4 {vr(HP+4*z,4)}, v4, s[{SRD_C}:{SRD_C+3}], s63 offen offset:{1024*z}{SF}")
    for i in range(8):
        b(f"  v_lshlrev_b32 v{X+2*i}, 16, v{HP+i}")
        b(f"  v_and_b32 v{X+2*i+1}, 0xffff0000, v{HP+i}")
    ln_fast(b, X, 64, S_T + 4, False)
    LP = 72
    stamp(b, "p3 ln done")
    for i in range(8):
        b(f"  v_cvt_pk_bf16_f32 v{LP+i}, v{X+2*i}, v{X+2*i+1}")
    b(f"  v_mul_u32_u24 v3, 80, v8")
    b(f"  v_lshl_add_u32 v3, v9, 4, v3")
    b(f"  s_mul_i32 s{S_T+1}, s{S_W}, {L3_RS}")
    b(f"  s_add_u32 s{S_T+1}, s{S_T+1}, {L3_LN}")
    b(f"  v_add_u32 v3, s{S_T+1}, v3")
    for z in range(2):
        b(f"  ds_write_b128 v3, {vr(LP+4*z,4)} offset:{z*16*80}")
    b(f"  s_waitcnt lgkmcnt(0)")
    b(f"  s_barrier")
    b(f"  v_bfe_u32 v10, v7, 2, 2")
    b(f"  v_mul_u32_u24 v10, {L3_RS}, v10")
    b(f"  v_lshrrev_b32 v11, 5, v7")
    b(f"  v_mul_u32_u24 v12, 80, v11")
    b(f"  v_add_u32 v10, v10, v12")
    b(f"  v_and_b32 v12, 1, v7")
    b(f"  v_lshl_add_u32 v10, v12, 5, v10")
    b(f"  v_bfe_u32 v12, v7, 4, 1")
    b(f"  v_lshl_add_u32 v10, v12, 4, v10")
    b(f"  v_bfe_u32 v12, v7, 1, 1")
    b(f"  v_lshl_add_u32 v10, v12, 3, v10")
    b(f"  s_mul_i32 s{S_T+1}, s{S_W}, {4*80}")
    b(f"  s_add_u32 s{S_T+1}, s{S_T+1}, {L3_LN}")
    b(f"  v_add_u32 v10, s{S_T+1}, v10")
    for ps in range(2):
        b(f"  ds_read_b64_tr_b16 {vr(32+4*ps,2)}, v10 offset:{ps*160}")
        b(f"  ds_read_b64_tr_b16 {vr(34+4*ps,2)}, v10 offset:{ps*160 + 4*L3_RS}")
    b(f"  v_lshlrev_b32 v11, 17, v11")
    b(f"  v_and_b32 v12, 31, v7")
    b(f"  v_lshl_add_u32 v11, v12, 4, v11")
    b(f"  s_lshl_b32 s{S_T+1}, s{S_W}, 19")
    b(f"  s_lshl_b32 s{S_T+2}, s2, 9")
    b(f"  s_add_u32 s{S_T+1}, s{S_T+1}, s{S_T+2}")
    b(f"  s_add_u32 s{S_T+2}, s{S_T+1}, {2*131072}")
    b(f"  s_waitcnt lgkmcnt(2)")
    b(f"  buffer_store_dwordx4 v[32:35], v11, s[{SRD_D}:{SRD_D+3}], s{S_T+1} offen{SF}")
    b(f"  s_waitcnt lgkmcnt(0)")
    b(f"  buffer_store_dwordx4 v[36:39], v11, s[{SRD_D}:{SRD_D+3}], s{S_T+2} offen{SF}")
    stamp(b, "p3 stores issued")
    b(f"  s_and_b32 s{S_T+8}, s2, 15")
    arrive(b, 2, S_T + 8, label="x3")
    srd(b, SRD_T, P_W1, W1B)
    b(f"  s_cmp_lt_u32 s{S_W}, 4")
    b(f"  s_cbranch_scc1 p3_nodma")
    b(f"  s_cmp_eq_u32 s62, 0")
    b(f"  s_cbranch_scc1 p3_nodma")
    for n in range(2): loader_issue(b, V_LO, W1F())
    b.label("p3_nodma")

def gemm_core(b, c, pre, after_setup, after_prologue=None):
    NB, NS = c.NB, c.NS
    acc = lambda nb: V_ACC + nb * 16
    VT = V_ACC + NB * 16
    VPR = VT + 32
    c.VT, c.VPR = VT, VPR
    c.vend = VPR + 4 * PR
    tf = lambda q: VT + (q % 8) * 4
    pr = lambda j: VPR + (j % PR) * 4
    FPI = 64
    KPI = FPI // NB
    def tread(q):
        ql = q % FPI
        lslot, within = ql // 16, ql % 16
        ks, nb = within // NB, within % NB
        off = lslot * STAGE + ks * 16 * c.rowb
        b(f"  ds_read_b64_tr_b16 {vr(tf(q),2)}, v{V_T+nb} offset:{off}")
        b(f"  ds_read_b64_tr_b16 {vr(tf(q)+2,2)}, v{V_T+nb} offset:{off+4*c.rowb}")
    def pload(j):
        b(f"  buffer_load_dwordx4 {vr(pr(j),4)}, v{V_P}, s[{SRD_P}:{SRD_P+3}], s{S_POFF} offen offset:{(j%4)*1024}{LF}")
        if j % 4 == 3: b(f"  s_add_u32 s{S_POFF}, s{S_POFF}, 4096")
    def mfma(q):
        nb = q % NB; j = q // NB; a = acc(nb)
        if "m16fake" in OPT:
            o = 8 * (j % 2)
            b(f"  v_mfma_f32_16x16x32_bf16 {vr(a+o,4)}, {vr(tf(q),4)}, {vr(pr(j),4)}, {vr(a+o,4)}")
            b(f"  v_mfma_f32_16x16x32_bf16 {vr(a+o+4,4)}, {vr(pr(j),4)}, {vr(tf(q),4)}, {vr(a+o+4,4)}")
            return
        if c.name == "g1":
            b(f"  v_mfma_f32_32x32x16_bf16 {vr(a,16)}, {vr(tf(q),4)}, {vr(pr(j),4)}, {vr(a,16)}")
        else:
            b(f"  v_mfma_f32_32x32x16_bf16 {vr(a,16)}, {vr(pr(j),4)}, {vr(tf(q),4)}, {vr(a,16)}")
    b(f"  s_mov_b32 s{S_POFF}, 0")
    b(f"  s_mov_b32 s{S_DELTA}, {4*STAGE}")
    b(f"  s_mov_b32 s{S_IT}, {NS//4 - 1}")
    after_setup()
    for j in range(PR - 1): pload(j)
    if after_prologue: after_prologue()
    b("  s_barrier")
    for q in range(DQ): tread(q)
    def body(last):
        for q in range(FPI):
            j = q // NB
            qn = q + DQ
            do_read = not (last and qn >= FPI)
            do_pload = False
            if q % NB == 0:
                rem = KPI - 1 - j
                if (not last) or (j + PR - 1 < KPI):
                    b(f"  s_waitcnt vmcnt({PR-2})")
                    do_pload = True
                else:
                    b(f"  s_waitcnt vmcnt({min(PR-2, rem)})")
            if do_read and qn % 16 == 0:
                b("  s_barrier")
            if do_read and qn == FPI:
                for i in range(NB): b(f"  v_add_u32 v{V_T+i}, s{S_DELTA}, v{V_T+i}")
                b(f"  s_sub_u32 s{S_DELTA}, 0, s{S_DELTA}")
            if q % 2 == 0:
                left = min(DQ - 2, FPI - 2 - q) if last else DQ - 2
                b(f"  s_waitcnt lgkmcnt({2*left})")
            mfma(q)
            if do_pload: pload(j + PR - 1)
            if do_read: tread(qn)
    b.label(f"{pre}_loop")
    body(False)
    b(f"  s_sub_u32 s{S_IT}, s{S_IT}, 1")
    b(f"  s_cmp_lg_u32 s{S_IT}, 0")
    b(f"  s_cbranch_scc1 {pre}_loop")
    body(True)

def idle_w1(b):
    srd(b, SRD_PF, P_W1, W1B)
    b(f"  s_and_b32 s51, s50, 7")
    b(f"  s_mul_i32 s51, s51, {256*7168}")
    b(f"  s_lshr_b32 s52, s50, 3")
    b(f"  s_mul_i32 s52, s52, {4*7168}")
    b(f"  s_add_u32 s51, s51, s52")
    b(f"  s_add_u32 s51, s51, {128*7168}")
    b(f"  s_mov_b32 s52, 7")
    b.label("pf_w1b")
    for i in range(4): b(f"  buffer_load_dwordx4 {vr(V_DUMMY,4)}, v29, s[{SRD_PF}:{SRD_PF+3}], s51 offen offset:{1024*i}")
    b(f"  s_add_u32 s51, s51, 4096")
    b(f"  s_waitcnt vmcnt(4)")
    b(f"  s_sub_u32 s52, s52, 1")
    b(f"  s_cmp_lg_u32 s52, 0")
    b(f"  s_cbranch_scc1 pf_w1b")

def idle_w2(b):
    srd(b, SRD_PF, P_W2, W1B)
    b(f"  s_mul_i32 s51, s50, {W1B // 256}")
    b(f"  s_mov_b32 s52, 14")
    b.label("pf_w2")
    for i in range(4): b(f"  buffer_load_dwordx4 {vr(V_DUMMY,4)}, v29, s[{SRD_PF}:{SRD_PF+3}], s51 offen offset:{1024*i}")
    b(f"  s_add_u32 s51, s51, 4096")
    b(f"  s_waitcnt vmcnt({0 if 'idlepace' in OPT else 4})")
    b(f"  s_sub_u32 s52, s52, 1")
    b(f"  s_cmp_lg_u32 s52, 0")
    b(f"  s_cbranch_scc1 pf_w2")
    b(f"  s_waitcnt vmcnt(0)")

def g1(b):
    c = g1_cfg()
    b(f"  s_cmp_eq_u32 s62, 0")
    b(f"  s_cbranch_scc1 g1_inactive")
    srd(b, SRD_P, P_WS, 4 << 20, WS_LN2)
    srd(b, SRD_T, P_W1, W1B)
    srd(b, SRD_O, P_WS, U_BYTES, WS_U)
    srd(b, SRD_X, P_B1, 3584 * 2)
    b(f"  s_cmp_ge_u32 s{S_W}, 4")
    b(f"  s_cbranch_scc1 g1_loader")
    lane_geom(b)
    b(f"  s_lshl_b32 s{S_TMP}, s61, 2")
    b(f"  s_add_u32 s{S_TMP}, s{S_TMP}, s{S_W}            ; dblk")
    b(f"  s_lshl_b32 s{S_TMP+2}, s{S_TMP}, 17")
    b(f"  v_lshlrev_b32 v10, 4, v7")
    b(f"  v_add_u32 v{V_P}, s{S_TMP+2}, v10")
    b(f"  s_lshl_b32 s{S_TMP+1}, s60, 8       ; f0*2")
    b(f"  v_lshlrev_b32 v11, 3, v9")
    b(f"  v_add_u32 v11, s{S_TMP+1}, v11")
    BV = 192
    for fb in range(4):
        for i in range(4):
            b(f"  buffer_load_dwordx2 {vr(BV+2*(4*fb+i),2)}, v11, s[{SRD_X}:{SRD_X+3}], 0 offen offset:{64*fb+16*i}")
    b(f"  v_lshl_add_u32 v20, v9, 3, v18")
    b(f"  v_lshlrev_b32 v20, 8, v20")
    b(f"  v_lshl_add_u32 v20, v18, 6, v20")
    b(f"  v_lshl_add_u32 v20, v19, 5, v20")
    b(f"  v_lshl_add_u32 v{V_T}, v22, 3, v20")
    for fb in range(1, 4):
        b(f"  v_xor_b32 v{V_T+fb}, {64*fb}, v{V_T}")
    b(f"  s_mul_i32 s{S_TMP+2}, s{S_TMP}, 229376")
    b(f"  s_lshl_b32 s{S_TMP+1}, s60, 13")
    b(f"  s_add_u32 s{S_TMP+1}, s{S_TMP+1}, s{S_TMP+2}")
    b(f"  v_add_u32 v28, s{S_TMP+1}, v10")
    b(f"  s_waitcnt vmcnt(0)")
    for fb in range(4):
        for i in range(4):
            bv = BV + 2 * (4 * fb + i); a = V_ACC + fb * 16 + 4 * i
            b(f"  v_lshlrev_b32 v{a}, 16, v{bv}")
            b(f"  v_and_b32 v{a+1}, 0xffff0000, v{bv}")
            b(f"  v_lshlrev_b32 v{a+2}, 16, v{bv+1}")
            b(f"  v_and_b32 v{a+3}, 0xffff0000, v{bv+1}")
    def w3():
        wait(b, 2, 16, "x3c")
        stamp(b, "x3 released")
        stamp(b, "c:g1 start")
    gemm_core(b, c, "g1", w3)
    stamp(b, "c:g1 end")
    stamp(b, "g1 main done")
    K1 = -2.0 * 0.7978845608028654 * 1.4426950408889634
    K2 = K1 * 0.044715
    T = c.VPR
    b(f"  v_mov_b32 v{T}, {hex(f2u(K1))}")
    b(f"  v_mov_b32 v{T+1}, {hex(f2u(K1))}")
    b(f"  v_mov_b32 v{T+2}, {hex(f2u(K2))}")
    b(f"  v_mov_b32 v{T+3}, {hex(f2u(K2))}")
    b(f"  s_nop 7")
    W = T + 8
    for fb in range(4):
        a = V_ACC + fb * 16; t = W; o = W + 16 + 8 * (fb % 2)
        for h in range(0, 16, 2): b(f"  v_pk_mul_f32 {vr(t+h,2)}, {vr(a+h,2)}, {vr(a+h,2)}")
        for h in range(0, 16, 2): b(f"  v_pk_fma_f32 {vr(t+h,2)}, {vr(t+h,2)}, {vr(T+2,2)}, {vr(T,2)}")
        for h in range(0, 16, 2): b(f"  v_pk_mul_f32 {vr(t+h,2)}, {vr(t+h,2)}, {vr(a+h,2)}")
        for r in range(16): b(f"  v_exp_f32 v{t+r}, v{t+r}")
        for h in range(0, 16, 2): b(f"  v_pk_add_f32 {vr(t+h,2)}, {vr(t+h,2)}, 1.0 op_sel_hi:[1,0]")
        for r in range(16): b(f"  v_rcp_f32 v{t+r}, v{t+r}")
        for h in range(0, 16, 2): b(f"  v_pk_mul_f32 {vr(t+h,2)}, {vr(a+h,2)}, {vr(t+h,2)}")
        for i in range(4):
            b(f"  v_cvt_pk_bf16_f32 v{o+2*i}, v{t+4*i}, v{t+4*i+1}")
            b(f"  v_cvt_pk_bf16_f32 v{o+2*i+1}, v{t+4*i+2}, v{t+4*i+3}")
        for ip in range(2):
            oo = o + 4 * ip
            b(f"  s_mov_b32 s{S_TMP+1}, {(2*fb+ip)*1024}")
            b(f"  s_nop 0")
            b(f"  v_permlane32_swap_b32 v{oo}, v{oo+2}")
            b(f"  v_permlane32_swap_b32 v{oo+1}, v{oo+3}")
            b(f"  buffer_store_dwordx4 {vr(oo,4)}, v28, s[{SRD_O}:{SRD_O+3}], s{S_TMP+1} offen{SF}")
    stamp(b, "g1 stores issued")
    b(f"  s_waitcnt vmcnt(0)")
    b(f"  s_branch g1_join")
    b.label("g1_loader")
    b(f"  s_sub_u32 s50, s{S_W}, 4")
    b(f"  s_lshl_b32 s49, s50, 10")
    b(f"  s_add_u32 s{S_N+1}, s49, {R*STAGE}")
    b(f"  s_barrier                      ; matches the barrier inside wait(x3)")
    for n in range(R - 4): loader_issue(b, V_LO, W1F())
    loader_loop(b, c.NS, "g1", W1F())
    stamp(b, "g1 main done")
    g2_prologue_loader(b)
    stamp(b, "g1 stores issued")
    b.label("g1_join")
    if SK():
        b(f"  s_cmp_ge_u32 s60, 14")
        b(f"  s_cselect_b32 s18, 1, 0")
        b(f"  s_lshl_b32 s10, s61, 1")
        b(f"  s_add_u32 s18, s18, s10")
        arrive(b, 3, 18, label="x4", drained=True)
    else:
        arrive(b, 3, 61, label="x4", drained=True)
    b(f"  s_branch g2_start")
    b.label("g1_inactive")
    if "nopf" not in OPT:
        b(f"  s_sub_u32 s50, s2, 224")
        b(f"  s_lshl_b32 s50, s50, 3")
        b(f"  s_add_u32 s50, s50, s{S_W}")
        b(f"  v_lshlrev_b32 v29, 4, v7")
        if "noidle" not in OPT: idle_w2(b)
    b(f"  s_cmp_lt_u32 s{S_W}, 4")
    b(f"  s_cbranch_scc1 g2_start_inactive")
    g2_prologue_loader(b)
    b.label("g2_start_inactive")
    return c

def g2_prologue_loader(b):
    g2_ids(b)
    srd(b, SRD_T, P_W2, W1B)
    g2_loader_addr(b)
    loader_init(b, (64 if SK() else 128) * 4096)
    for n in range(2): loader_issue(b, V_LO, W2F())

def g2_sk(b):
    c = g1_cfg(); c.name = "g2"; c.NS = 28
    b.label("g2_start")
    g2_ids(b)
    srd(b, SRD_P, P_WS, U_BYTES, WS_U)
    srd(b, SRD_O, P_OUT, 4 << 20)
    srd(b, SRD_X, P_B2, 2048 * 2)
    srd(b, SRD_Y, P_WS, 4 << 20, WS_H)
    b(f"  s_cmp_ge_u32 s{S_W}, 4")
    b(f"  s_cbranch_scc1 g2_loader")
    lane_geom(b)
    b(f"  s_lshl_b32 s{S_TMP}, s{S_TILE_A}, 2")
    b(f"  s_add_u32 s{S_TMP}, s{S_TMP}, s{S_W}        ; dblk")
    b(f"  s_mul_i32 s{S_TMP+2}, s{S_TMP}, 229376")
    b(f"  s_mul_i32 s{S_TMP+3}, s19, {112*1024}       ; k half")
    b(f"  s_add_u32 s{S_TMP+2}, s{S_TMP+2}, s{S_TMP+3}")
    b(f"  v_lshlrev_b32 v10, 4, v7")
    b(f"  v_add_u32 v{V_P}, s{S_TMP+2}, v10")
    b(f"  s_lshl_b32 s{S_TMP+1}, s{S_TILE_B}, 7")
    b(f"  s_lshl_b32 s{S_TMP+3}, s19, 6")
    b(f"  s_add_u32 s{S_TMP+1}, s{S_TMP+1}, s{S_TMP+3}")
    b(f"  v_add_u32 v11, s{S_TMP+1}, v8              ; s0 + s'")
    b(f"  v_lshlrev_b32 v16, 1, v11")
    for sb in range(2):
        b(f"  buffer_load_ushort v{12+sb}, v16, s[{SRD_X}:{SRD_X+3}], 0 offen offset:{64*sb}")
    b(f"  v_lshlrev_b32 v17, 11, v11")
    b(f"  v_lshl_add_u32 v17, v9, 5, v17")
    b(f"  s_lshl_b32 s{S_TMP+2}, s{S_TMP}, 6")
    b(f"  v_add_u32 v28, s{S_TMP+2}, v17")
    HV = 192
    b(f"  v_lshl_add_u32 v20, v9, 3, v18")
    b(f"  v_lshlrev_b32 v20, 8, v20")
    b(f"  v_lshl_add_u32 v20, v18, 6, v20")
    b(f"  v_lshl_add_u32 v20, v19, 5, v20")
    b(f"  v_lshl_add_u32 v{V_T}, v22, 3, v20")
    for fb in range(1, 4):
        b(f"  v_xor_b32 v{V_T+fb}, {64*fb}, v{V_T}")
    b(f"  s_lshl_b32 s{S_TMP+1}, s{S_W}, 12")
    b(f"  s_lshl_b32 s{S_TMP+2}, s2, 14")
    b(f"  s_add_u32 s{S_TMP+2}, s{S_TMP+2}, s{S_TMP+1}")
    b(f"  v_add_u32 v29, s{S_TMP+2}, v10")
    b(f"  s_xor_b32 s{S_TMP+2}, s2, 1")
    b(f"  s_lshl_b32 s{S_TMP+2}, s{S_TMP+2}, 14")
    b(f"  s_add_u32 s{S_TMP+2}, s{S_TMP+2}, s{S_TMP+1}")
    b(f"  v_add_u32 v30, s{S_TMP+2}, v10")
    for i in range(64): b(f"  v_mov_b32 v{V_ACC+i}, 0")
    def w4():
        b(f"  s_lshl_b32 s18, s{S_TILE_A}, 1")
        b(f"  s_add_u32 s18, s18, s19")
        wait(b, 3, 14, "x4c", single_sreg=18)
        stamp(b, "x4 released")
        stamp(b, "c:g2 start")
    def hloads():
        for sb in range(2):
            b(f"  s_mov_b32 s{S_TMP+1}, {sb*65536}")
            b(f"  buffer_load_dwordx4 {vr(HV+8*sb,4)}, v28, s[{SRD_Y}:{SRD_Y+3}], s{S_TMP+1} offen{LF}")
            b(f"  buffer_load_dwordx4 {vr(HV+8*sb+4,4)}, v28, s[{SRD_Y}:{SRD_Y+3}], s{S_TMP+1} offen offset:16{LF}")
    gemm_core(b, c, "g2", w4, hloads)
    stamp(b, "c:g2 end")
    stamp(b, "g2 main done")
    srd(b, SRD_X, P_WS, 4 << 20, WS_XCH)
    T = c.VT
    b(f"  s_cmp_eq_u32 s19, 0")
    b(f"  s_cbranch_scc1 g2_send23")
    def pack_send(first):
        for blk in range(2):
            a = V_ACC + (first + blk) * 16
            for i in range(8):
                b(f"  v_cvt_pk_bf16_f32 v{T+8*blk+i}, v{a+2*i}, v{a+2*i+1}")
            for i in range(8):
                b(f"  v_min_u32 v{T+8*blk+i}, 0xfffffffe, v{T+8*blk+i}")
            for p in range(2):
                b(f"  buffer_store_dwordx4 {vr(T+8*blk+4*p,4)}, v30, s[{SRD_X}:{SRD_X+3}], 0 offen offset:{(2*blk+p)*1024}{SF}")
    b(f"  s_nop 7")
    pack_send(0)
    for i in range(32): b(f"  v_mov_b32 v{V_ACC+i}, v{V_ACC+32+i}")
    b(f"  s_branch g2_sent")
    b.label("g2_send23")
    b(f"  s_nop 7")
    pack_send(2)
    b.label("g2_sent")
    RX = c.VPR
    b(f"  s_mov_b32 s11, 200000")
    b.label("g2x_poll")
    for k in range(4):
        b(f"  buffer_load_dwordx4 {vr(RX+4*k,4)}, v29, s[{SRD_X}:{SRD_X+3}], 0 offen offset:{k*1024} sc1")
    b(f"  s_waitcnt vmcnt(0)")
    sentinel_check(b, RX, "g2x", n=16)
    stamp(b, "g2 x landed")
    b(f"  s_mov_b32 s{S_TMP}, 0xffff0000")
    for blk in range(2):
        for i in range(8):
            a = V_ACC + blk * 16 + 2 * i; r = RX + 8 * blk + i
            b(f"  v_lshlrev_b32 v16, 16, v{r}")
            b(f"  v_and_b32 v17, s{S_TMP}, v{r}")
            b(f"  v_add_f32 v{a}, v{a}, v16")
            b(f"  v_add_f32 v{a+1}, v{a+1}, v17")
    for sb in range(2):
        b(f"  v_lshlrev_b32 v{12+sb}, 16, v{12+sb}")
    for sb in range(2):
        for half in range(2):
            o = T + 4 * ((sb * 2 + half) % 2)
            for dd in range(4):
                a = V_ACC + sb * 16 + half * 8 + 2 * dd
                hv = HV + 8 * sb + 4 * half + dd
                t0 = T + 8 + 4 * dd
                b(f"  v_lshlrev_b32 v{t0}, 16, v{hv}")
                b(f"  v_and_b32 v{t0+1}, s{S_TMP}, v{hv}")
                b(f"  v_pk_add_f32 {vr(t0,2)}, {vr(t0,2)}, {vr(a,2)}")
                b(f"  v_add_f32 v{t0}, v{t0}, v{12+sb}")
                b(f"  v_add_f32 v{t0+1}, v{t0+1}, v{12+sb}")
                b(f"  v_cvt_pk_bf16_f32 v{o+dd}, v{t0}, v{t0+1}")
            b(f"  s_mov_b32 s{S_TMP+1}, {sb*65536}")
            b(f"  buffer_store_dwordx4 {vr(o,4)}, v28, s[{SRD_O}:{SRD_O+3}], s{S_TMP+1} offen offset:{16*half}")
    stamp(b, "g2 stores issued")
    b(f"  s_branch g2_done")
    b.label("g2_loader")
    b(f"  s_barrier                      ; matches the barrier inside wait(x4)")
    for n in range(R - 4): loader_issue(b, V_LO, W2F())
    loader_loop(b, c.NS, "g2", W2F())
    b.label("g2_done")

def g2(b):
    if SK(): return g2_sk(b)
    c = g2_cfg()
    b.label("g2_start")
    g2_ids(b)
    srd(b, SRD_P, P_WS, U_BYTES, WS_U)
    srd(b, SRD_O, P_OUT, 4 << 20)
    srd(b, SRD_X, P_B2, 2048 * 2)
    srd(b, SRD_Y, P_WS, 4 << 20, WS_H)
    b(f"  s_cmp_ge_u32 s{S_W}, 4")
    b(f"  s_cbranch_scc1 g2_loader")
    lane_geom(b)
    b(f"  s_lshl_b32 s{S_TMP}, s{S_TILE_A}, 2")
    b(f"  s_add_u32 s{S_TMP}, s{S_TMP}, s{S_W}        ; dblk")
    b(f"  s_mul_i32 s{S_TMP+2}, s{S_TMP}, 229376")
    b(f"  v_lshlrev_b32 v10, 4, v7")
    b(f"  v_add_u32 v{V_P}, s{S_TMP+2}, v10")
    b(f"  s_lshl_b32 s{S_TMP+1}, s{S_TILE_B}, 6       ; s0")
    b(f"  v_add_u32 v11, s{S_TMP+1}, v8              ; s0 + s'")
    b(f"  v_lshlrev_b32 v16, 1, v11")
    for sb in range(2):
        b(f"  buffer_load_ushort v{12+sb}, v16, s[{SRD_X}:{SRD_X+3}], 0 offen offset:{64*sb}")
    b(f"  v_lshlrev_b32 v17, 11, v11")
    b(f"  v_lshl_add_u32 v17, v9, 5, v17")
    b(f"  s_lshl_b32 s{S_TMP+2}, s{S_TMP}, 6")
    b(f"  v_add_u32 v28, s{S_TMP+2}, v17")
    HV = 160
    b(f"  v_lshl_add_u32 v20, v9, 3, v18            ; row")
    b(f"  v_bfe_u32 v21, v18, 1, 1")
    b(f"  v_lshlrev_b32 v20, 7, v20")
    b(f"  v_lshl_add_u32 v20, v21, 6, v20")
    b(f"  v_lshl_add_u32 v20, v19, 5, v20")
    b(f"  v_lshl_add_u32 v{V_T}, v22, 3, v20")
    b(f"  v_xor_b32 v{V_T+1}, 64, v{V_T}")
    for i in range(32): b(f"  v_mov_b32 v{V_ACC+i}, 0")
    def w4():
        wait(b, 3, 28, "x4c", single_sreg=S_TILE_A)
        stamp(b, "x4 released")
        stamp(b, "c:g2 start")
    def hloads():
        for sb in range(2):
            b(f"  s_mov_b32 s{S_TMP+1}, {sb*65536}")
            b(f"  buffer_load_dwordx4 {vr(HV+8*sb,4)}, v28, s[{SRD_Y}:{SRD_Y+3}], s{S_TMP+1} offen{LF}")
            b(f"  buffer_load_dwordx4 {vr(HV+8*sb+4,4)}, v28, s[{SRD_Y}:{SRD_Y+3}], s{S_TMP+1} offen offset:16{LF}")
    gemm_core(b, c, "g2", w4, hloads)
    stamp(b, "c:g2 end")
    stamp(b, "g2 main done")
    T = c.VT
    b(f"  s_mov_b32 s{S_TMP}, 0xffff0000")
    for sb in range(2):
        b(f"  v_lshlrev_b32 v{12+sb}, 16, v{12+sb}")
    b(f"  s_nop 9")
    for sb in range(2):
        for half in range(2):
            o = T + 4 * ((sb * 2 + half) % 2)
            for dd in range(4):
                a = V_ACC + sb * 16 + half * 8 + 2 * dd
                hv = HV + 8 * sb + 4 * half + dd
                t0 = T + 8 + 4 * dd
                b(f"  v_cvt_pk_bf16_f32 v{t0}, v{a}, v{a+1}")
                b(f"  v_and_b32 v{t0+1}, s{S_TMP}, v{t0}")
                b(f"  v_lshlrev_b32 v{t0}, 16, v{t0}")
                b(f"  v_add_f32 v{t0}, v{t0}, v{12+sb}")
                b(f"  v_add_f32 v{t0+1}, v{t0+1}, v{12+sb}")
                b(f"  v_cvt_pk_bf16_f32 v{t0}, v{t0}, v{t0+1}")
                b(f"  v_and_b32 v{t0+1}, s{S_TMP}, v{t0}")
                b(f"  v_lshlrev_b32 v{t0}, 16, v{t0}")
                b(f"  v_lshlrev_b32 v{t0+2}, 16, v{hv}")
                b(f"  v_and_b32 v{t0+3}, s{S_TMP}, v{hv}")
                b(f"  v_add_f32 v{t0}, v{t0}, v{t0+2}")
                b(f"  v_add_f32 v{t0+1}, v{t0+1}, v{t0+3}")
                b(f"  v_cvt_pk_bf16_f32 v{o+dd}, v{t0}, v{t0+1}")
            b(f"  s_mov_b32 s{S_TMP+1}, {sb*65536}")
            b(f"  buffer_store_dwordx4 {vr(o,4)}, v28, s[{SRD_O}:{SRD_O+3}], s{S_TMP+1} offen offset:{16*half}")
    stamp(b, "g2 stores issued")
    b(f"  s_branch g2_done")
    b.label("g2_loader")
    b(f"  s_barrier                      ; matches the barrier inside wait(x4)")
    for n in range(R - 4): loader_issue(b, V_LO, W2F())
    loader_loop(b, c.NS, "g2", W2F())
    b.label("g2_done")

def build():
    NAME = "sequential_preLN__spectral_gfnet__mixer_token_mlp__prompt"
    hdr = open(f"cdna_kernels/{NAME}.s.ref").read().split("; Override launch")[0]
    K = NAME + "_kernel"
    b = B()
    b(hdr.rstrip("\n"))
    b(f"; @launch grid=(256,1,1) block=(512,1,1) lds={LDS_TOTAL}")
    b('.amdgcn_target "amdgcn-amd-amdhsa--gfx950"\n.text')
    b(f".globl {K}\n.p2align 8\n.type {K},@function\n{K}:")
    b(f"  s_cmp_ge_u32 s2, 256\n  s_cbranch_scc1 k_exit")
    if "stamp" in OPT: b("  v_mov_b32 v231, 0")
    stamp(b, "entry")
    b(f"  s_load_dwordx4 s[{P_X}:{P_X+3}], s[0:1], 0        ; x, w_r")
    b(f"  s_load_dwordx2 s[{P_WI}:{P_WI+1}], s[0:1], 16")
    b(f"  s_load_dwordx2 s[{P_W1}:{P_W1+1}], s[0:1], 32")
    b(f"  s_load_dwordx4 s[{P_B1}:{P_B1+3}], s[0:1], 40     ; b1, w2")
    b(f"  s_load_dwordx4 s[{P_B2}:{P_B2+3}], s[0:1], 56     ; b2, out")
    b(f"  s_load_dwordx4 s[{P_DBG}:{P_DBG+3}], s[0:1], 72")
    b(f"  v_lshrrev_b32 v6, 6, v0")
    b(f"  v_and_b32 v7, 63, v0        ; lane")
    b(f"  v_readfirstlane_b32 s{S_W}, v6")
    b(f"  v_and_b32 v8, 15, v7          ; c")
    b(f"  v_lshrrev_b32 v9, 4, v7       ; g")
    b(f"  s_waitcnt lgkmcnt(0)")
    srd(b, SRD_CNT, P_WS, 65536, WS_CNT)
    p1(b)
    p2_setup(b)
    wait(b, 0, 16, "x1c")
    stamp(b, "x1 released")
    p2_main(b)
    p3_setup(b)
    if SENT(): b("  s_barrier")
    else: wait(b, 1, 16, "x2c")
    stamp(b, "x2 released")
    p3_main(b)
    g1(b)
    g2(b)
    b(f"  s_waitcnt vmcnt(0)")
    stamp(b, "end")
    stamp_flush(b)
    b("k_exit:\n  s_endpgm")
    b(kd(K, 240, sgpr=102))
    return b.text()

if __name__ == "__main__":
    out = sys.argv[1]
    OPT.update(sys.argv[2:])
    for o in sys.argv[2:]:
        if o.startswith("pfn="): PFN[:] = [int(c) for c in o[4:].split(",")]
    gemm.OPT.update(sys.argv[2:])
    t = build()
    open(out, "w").write(t)
    rep = check_text(t)
    print("\n".join(rep) if rep else "no hazards found", "| stamps:", nstamp[0])
```

```python
import sys
from asmlib import *
import gemm, fft
from gemm import (srd, f2u, WS_X1, WS_X2, WS_H, WS_LN2, WS_U, U_BYTES, S_W, R, STAGE, PR, DQ,
                  V_P, V_T, V_ACC, S_POFF, S_IT, S_DELTA, SRD_P, SRD_T, SRD_O, SRD_X, SRD_Y, S_TILE_A, S_TILE_B, S_TMP,
                  g1_cfg, g2_cfg, lane_geom)
from fft import sincos, wave_reduce, ln_finish, layernorm16, cmul_pk, gmat, MF32, MF16

OPT = set()
PFN = [0, 4, 0, 4]
WS_CNT = 30 << 20
WS_STAMP = 31 << 20
WS_XCH = 24 << 20
W1B = 2048 * 3584 * 2
WB = 2048 * 1026

P_X, P_WR, P_WI, P_W1, P_B1, P_W2, P_B2, P_OUT, P_DBG, P_WS = 64, 66, 68, 70, 72, 74, 76, 78, 80, 82
SRD_CNT = 12
S_T = 46
SRD_A, SRD_B, SRD_C, SRD_D = 24, 28, 32, 36
SRD_PF = 56
S_STAMP = 84
SF = " sc1"
LF = ""

L1_M1, L1_M2, L1_TW, L1_EX = 0, 4096, 8192, 16384
L2_F = 32768; L2_X = L2_F + 2048; L2_W = L2_X + 16 * 1040
L3_M3 = 98304; L3_M4 = L3_M3 + 4096; L3_TW = L3_M3 + 8192; L3_EX = L3_M3 + 16384
L3_LN = L3_EX + 16384; L3_RS = 2624
LDS_TOTAL = L3_LN + 8 * L3_RS
assert LDS_TOTAL <= 163840

STAMPS = ["entry", "p1 x landed", "p1 stores issued", "p1 arrived", "x1 released", "p2 x landed", "p2 stores issued",
          "x2 released", "p3 x2 landed", "p3 stores issued", "x3 released", "g1 main done", "g1 stores issued", "x4 released",
          "g2 main done", "g2 stores issued", "end", "x1 drained", "x2 drained", "x3 drained", "x4 drained", "p1 tables done", "p1 ln done", "p1 fft done", "p3 ifft done", "p3 ln done", "c:g1 start", "c:g1 end", "c:g2 start", "c:g2 end", "g2 x landed"]
nstamp = [len(STAMPS)]
SENT = lambda: "bar" not in OPT
SK = lambda: "nosk" not in OPT
W1F = lambda: " nt" if "ntw1" in OPT else ""
W2F = lambda: " nt" if "ntw2" in OPT else ""
XF = lambda: " nt" if "ntx" in OPT else ""
def stamp(b, name):
    if "stamp" not in OPT: return
    i = STAMPS.index(name)
    op = "s_memtime" if name.startswith("c:") else "s_memrealtime"
    b(f"  {op} s[{S_STAMP}:{S_STAMP+1}]   ; stamp {i}: {name}")
    b(f"  s_waitcnt lgkmcnt(0)")
    b(f"  v_writelane_b32 v231, s{S_STAMP}, {i}")

def stamp_flush(b):
    if "stamp" not in OPT: return
    if "dbgmax" in OPT:
        b(f"  s_cmp_lg_u32 s{S_W}, 0")
        b(f"  s_cbranch_scc1 dbg_skip")
        srd(b, 24, P_DBG, 256)
        b(f"  v_readlane_b32 s46, v231, 0")
        b(f"  s_sub_u32 s47, 0, s46")
        b(f"  v_mov_b32 v3, v231")
        b(f"  v_writelane_b32 v3, s47, 0")
        b(f"  v_writelane_b32 v3, s46, 15")
        b(f"  v_lshlrev_b32 v2, 2, v7")
        b(f"  s_mov_b64 s[48:49], exec")
        b(f"  s_mov_b64 exec, 0xffff")
        b(f"  buffer_atomic_umax v3, v2, s[24:27], 0 offen sc1")
        b(f"  s_mov_b64 exec, s[48:49]")
        b.label("dbg_skip")
        return
    if "dbgtime" in OPT:
        b(f"  s_cmp_lg_u32 s2, 100")
        b(f"  s_cbranch_scc1 dbg_skip")
        b(f"  s_cmp_lg_u32 s{S_W}, 0")
        b(f"  s_cbranch_scc1 dbg_skip")
        srd(b, 24, P_DBG, 256)
        b(f"  v_readlane_b32 s46, v231, 0")
        b(f"  s_nop 1")
        b(f"  v_subrev_u32 v3, s46, v231")
        b(f"  v_lshlrev_b32 v2, 2, v7")
        b(f"  v_subrev_u32 v2, 4, v2")
        b(f"  s_mov_b64 s[48:49], exec")
        b(f"  s_mov_b64 exec, 0x1fffe")
        b(f"  buffer_store_dword v3, v2, s[24:27], 0 offen")
        b(f"  s_mov_b64 exec, s[48:49]")
        b.label("dbg_skip")
        return
    srd(b, 24, P_WS, 1 << 20, WS_STAMP)
    b(f"  s_lshl_b32 s46, s2, 3")
    b(f"  s_add_u32 s46, s46, s{S_W}")
    b(f"  s_lshl_b32 s46, s46, 7            ; (wg*8+wave)*128")
    b(f"  v_lshlrev_b32 v2, 2, v7")
    b(f"  s_mov_b64 s[48:49], exec")
    b(f"  s_mov_b64 exec, 0xffffffff")
    b(f"  buffer_store_dword v231, v2, s[24:27], s46 offen")
    b(f"  s_mov_b64 exec, s[48:49]")

def arrive(b, bar, shard_sreg, first=False, label="", drained=False):
    if not drained: b(f"  s_waitcnt vmcnt(0)")
    stamp(b, f"x{bar+1} drained")
    b(f"  s_barrier")
    b(f"  s_cmp_lg_u32 s{S_W}, 0")
    b(f"  s_cbranch_scc1 {label}_arr_skip")
    if first:
        b(f"  s_mov_b32 s11, 100000")
        b.label(f"{label}_rdy")
        b(f"  v_cmp_ne_u32 vcc, 0, v27")
        b(f"  s_nop 1")
        b(f"  s_cmp_eq_u64 vcc, exec")
        b(f"  s_cbranch_scc1 {label}_rdy_ok")
        b(f"  buffer_load_dword v27, v26, s[{SRD_PF}:{SRD_PF+3}], 0 offen sc1")
        b(f"  s_waitcnt vmcnt(0)")
        b(f"  s_sub_u32 s11, s11, 1")
        b(f"  s_cmp_lg_u32 s11, 0")
        b(f"  s_cbranch_scc1 {label}_rdy")
        b.label(f"{label}_rdy_ok")
    b(f"  s_lshl_b32 s10, s{shard_sreg}, 8")
    b(f"  s_add_u32 s10, s10, {bar*4096}")
    b(f"  v_mov_b32 v228, s10")
    b(f"  v_mov_b32 v229, 1")
    b(f"  s_mov_b64 s[16:17], exec")
    b(f"  s_mov_b64 exec, 1")
    b(f"  buffer_atomic_add v229, v228, s[{SRD_CNT}:{SRD_CNT+3}], 0 offen sc1")
    b(f"  s_mov_b64 exec, s[16:17]")
    b.label(f"{label}_arr_skip")

def wait(b, bar, target, label, single_sreg=None):
    b(f"  s_cmp_lg_u32 s{S_W}, 0")
    b(f"  s_cbranch_scc1 {label}_w_skip")
    if single_sreg is None:
        b(f"  v_and_b32 v228, 15, v7")
        b(f"  v_lshlrev_b32 v228, 8, v228")
        b(f"  v_add_u32 v228, {bar*4096}, v228")
    else:
        b(f"  s_lshl_b32 s10, s{single_sreg}, 8")
        b(f"  s_add_u32 s10, s10, {bar*4096}")
        b(f"  v_mov_b32 v228, s10")
    b(f"  s_mov_b32 s11, 200000")
    b.label(f"{label}_poll")
    b(f"  buffer_load_dword v229, v228, s[{SRD_CNT}:{SRD_CNT+3}], 0 offen sc1")
    b(f"  s_waitcnt vmcnt(0)")
    b(f"  v_cmp_le_u32 vcc, {target}, v229")
    b(f"  s_nop 1")
    b(f"  s_cmp_eq_u64 vcc, exec")
    b(f"  s_cbranch_scc1 {label}_w_skip")
    b(f"  s_sub_u32 s11, s11, 1")
    b(f"  s_cmp_lg_u32 s11, 0")
    b(f"  s_cbranch_scc1 {label}_poll")
    b.label(f"{label}_w_skip")
    b(f"  s_barrier")

def prefetch(b, ptr_pair, nbytes, start, length, who_scale, who_sreg, vaddr, vdst, stmp, paced=False):
    chunk = -(-length // who_scale)
    n_per_wave = -(-chunk // (512 * 128))
    stride = -(-chunk // (512 * n_per_wave))
    stride = (stride + 3) // 4 * 4
    per_instr = 64 * stride
    srd(b, SRD_PF, ptr_pair, nbytes)
    b(f"  s_mul_i32 s{stmp}, s{who_sreg}, {chunk}")
    b(f"  s_mul_i32 s{stmp+1}, s{S_W}, {n_per_wave*per_instr}")
    b(f"  s_add_u32 s{stmp}, s{stmp}, s{stmp+1}")
    if start: b(f"  s_add_u32 s{stmp}, s{stmp}, {start}")
    b(f"  v_mul_u32_u24 v{vaddr}, {stride}, v7")
    for i in range(n_per_wave):
        b(f"  buffer_load_dword v{vdst}, v{vaddr}, s[{SRD_PF}:{SRD_PF+3}], s{stmp} offen")
        if i + 1 < n_per_wave: b(f"  s_add_u32 s{stmp}, s{stmp}, {per_instr}")
        if paced: b(f"  s_waitcnt vmcnt(0)")
    return n_per_wave

V_DUMMY = 232
def pf_wide(b, ptr_pair, nbytes, s_base, n, wave_lo, wave_hi, label):
    b(f"  s_cmp_lt_u32 s{S_W}, {wave_lo}")
    b(f"  s_cbranch_scc1 {label}")
    if wave_hi < 8:
        b(f"  s_cmp_ge_u32 s{S_W}, {wave_hi}")
        b(f"  s_cbranch_scc1 {label}")
    srd(b, SRD_PF, ptr_pair, nbytes)
    b(f"  s_sub_u32 s{S_T+9}, s{S_W}, {wave_lo}")
    b(f"  s_mul_i32 s{S_T+9}, s{S_T+9}, {n*1024}")
    b(f"  s_add_u32 s{S_T+9}, s{S_T+9}, s{s_base}")
    b(f"  v_lshlrev_b32 v29, 4, v7")
    for i in range(n):
        if i and i % 4 == 0: b(f"  s_add_u32 s{S_T+9}, s{S_T+9}, 4096")
        b(f"  buffer_load_dwordx4 {vr(V_DUMMY,4)}, v29, s[{SRD_PF}:{SRD_PF+3}], s{S_T+9} offen offset:{(i%4)*1024}")
    b.label(label)

def w1_share_base(b, sreg, part):
    b(f"  s_mul_i32 s{sreg}, s2, {W1B // 256}")
    if part: b(f"  s_add_u32 s{sreg}, s{sreg}, {part}")

def w1_first_half_base(b, sreg, part):
    b(f"  s_and_b32 s{sreg}, s2, 7")
    b(f"  s_mul_i32 s{sreg}, s{sreg}, {256*7168}")
    b(f"  s_lshr_b32 s{S_T+9}, s2, 3")
    b(f"  s_mul_i32 s{S_T+9}, s{S_T+9}, {4*7168}")
    b(f"  s_add_u32 s{sreg}, s{sreg}, s{S_T+9}")
    if part: b(f"  s_add_u32 s{sreg}, s{sreg}, {part}")

def p1_tables(b):
    M1, M2, TW = L1_M1, L1_M2, L1_TW
    b(f"  v_and_b32 v10, 255, v0            ; e")
    b(f"  v_lshrrev_b32 v11, 8, v0          ; u")
    b(f"  v_bfe_u32 v12, v10, 2, 4          ; lane&15")
    b(f"  v_lshl_add_u32 v12, v11, 4, v12   ; k1")
    b(f"  v_lshrrev_b32 v13, 6, v10         ; g")
    b(f"  v_and_b32 v14, 3, v10")
    b(f"  v_lshlrev_b32 v13, 3, v13")
    b(f"  v_lshl_add_u32 v13, v14, 1, v13   ; a0 = 8g + 2i")
    b(f"  v_mul_u32_u24 v15, v13, v12       ; a0*k1")
    b(f"  v_add_u32 v16, v15, v12           ; (a0+1)*k1")
    sincos(b, 17, 18, 15, 5, 21)
    sincos(b, 19, 20, 16, 5, 21)
    b(f"  v_lshlrev_b32 v22, 2, v10")
    b(f"  v_lshl_add_u32 v22, v11, 11, v22  ; u*2048 + e*4")
    b(f"  v_cvt_pk_bf16_f32 v23, v17, v19")
    b(f"  v_cvt_pk_bf16_f32 v24, -v18, -v20")
    b(f"  ds_write_b32 v22, v23 offset:{M1}")
    b(f"  ds_write_b32 v22, v24 offset:{M1+1024}")
    sincos(b, 17, 18, 15, 10, 21)
    sincos(b, 19, 20, 16, 10, 21)
    b(f"  ds_write_b32 v22, v17 offset:{TW}")
    b(f"  ds_write_b32 v22, v18 offset:{TW+1024}")
    b(f"  ds_write_b32 v22, v19 offset:{TW+4096}")
    b(f"  ds_write_b32 v22, v20 offset:{TW+4096+1024}")
    b(f"  v_bfe_u32 v12, v10, 2, 4          ; k2")
    b(f"  v_mul_u32_u24 v15, v13, v12")
    b(f"  v_add_u32 v16, v15, v12")
    sincos(b, 17, 18, 15, 5, 21)
    sincos(b, 19, 20, 16, 5, 21)
    b(f"  v_lshlrev_b32 v22, 2, v10")
    b(f"  v_cvt_pk_bf16_f32 v23, v17, v19")
    b(f"  v_cvt_pk_bf16_f32 v24, v18, v20")
    b(f"  v_cvt_pk_bf16_f32 v25, -v18, -v20")
    b(f"  ds_write_b32 v22, v23 offset:{M2}")
    b(f"  ds_write_b32 v22, v24 offset:{M2+1024}")
    b(f"  ds_write_b32 v22, v25 offset:{M2+2048}")

def ln_fast(b, X, T, S0, alt):
    b(f"  v_readlane_b32 s{S0}, v{X}, 0              ; pivot")
    b(f"  s_nop 1")
    for i in range(0, 16, 2):
        b(f"  v_pk_add_f32 {vr(X+i,2)}, {vr(X+i,2)}, s[{S0}:{S0+1}] op_sel_hi:[1,0] neg_lo:[0,1] neg_hi:[0,1]")
    b(f"  v_pk_add_f32 {vr(T,2)}, {vr(X,2)}, {vr(X+2,2)}")
    b(f"  v_pk_add_f32 {vr(T+2,2)}, {vr(X+8,2)}, {vr(X+10,2)}")
    b(f"  v_pk_mul_f32 {vr(T+4,2)}, {vr(X,2)}, {vr(X,2)}")
    b(f"  v_pk_add_f32 {vr(T,2)}, {vr(T,2)}, {vr(X+4,2)}")
    b(f"  v_pk_add_f32 {vr(T+2,2)}, {vr(T+2,2)}, {vr(X+12,2)}")
    b(f"  v_pk_fma_f32 {vr(T+4,2)}, {vr(X+2,2)}, {vr(X+2,2)}, {vr(T+4,2)}")
    b(f"  v_pk_add_f32 {vr(T,2)}, {vr(T,2)}, {vr(X+6,2)}")
    b(f"  v_pk_add_f32 {vr(T+2,2)}, {vr(T+2,2)}, {vr(X+14,2)}")
    for i in range(4, 16, 2):
        b(f"  v_pk_fma_f32 {vr(T+4,2)}, {vr(X+i,2)}, {vr(X+i,2)}, {vr(T+4,2)}")
    b(f"  v_add_f32 v{T}, v{T}, v{T+1}")
    b(f"  v_add_f32 v{T+2}, v{T+2}, v{T+3}")
    if not alt: b(f"  v_add_f32 v{T}, v{T}, v{T+2}")
    b(f"  v_add_f32 v{T+4}, v{T+4}, v{T+5}           ; squares")
    if alt:
        wave_reduce(b, [T, T+2, T+4])
        b(f"  v_sub_f32 v{T+1}, v{T}, v{T+2}             ; E - O")
        b(f"  v_add_f32 v{T}, v{T}, v{T+2}")
        b(f"  s_nop 0")
        b(f"  v_readlane_b32 s{S0+2}, v{T}, 63")
        b(f"  v_readlane_b32 s{S0+3}, v{T+4}, 63")
        b(f"  v_readlane_b32 s{S0+4}, v{T+1}, 63")
    else:
        wave_reduce(b, [T, T+4])
        b(f"  s_nop 0")
        b(f"  v_readlane_b32 s{S0+2}, v{T}, 63")
        b(f"  v_readlane_b32 s{S0+3}, v{T+4}, 63")
    b(f"  s_nop 0")
    b(f"  v_mov_b32 v{T}, {hex(f2u(1.0/1024))}")
    b(f"  v_mul_f32 v{T+1}, s{S0+2}, v{T}")
    b(f"  v_mul_f32 v{T+2}, s{S0+3}, v{T}")
    b(f"  v_fma_f32 v{T+2}, -v{T+1}, v{T+1}, v{T+2}  ; variance")
    b(f"  v_max_f32 v{T+2}, 0, v{T+2}")
    b(f"  v_add_f32 v{T+2}, {hex(f2u(1e-5))}, v{T+2}")
    b(f"  v_rsq_f32 v{T+4}, v{T+2}")
    b(f"  s_nop 0")
    b(f"  v_mul_f32 v{T+8}, -v{T+1}, v{T+4}          ; -mean*rstd")
    if alt: b(f"  v_mul_f32 v{T+6}, s{S0+4}, v{T+4}")
    for i in range(0, 16, 2):
        b(f"  v_pk_fma_f32 {vr(X+i,2)}, {vr(X+i,2)}, {vr(T+4,2)}, {vr(T+8,2)} op_sel_hi:[1,0,0]")

def x1_store_addr(b):
    b(f"  v_lshlrev_b32 v5, 15, v9")
    b(f"  v_lshl_add_u32 v5, v8, 2, v5")
    b(f"  s_and_b32 s{S_T+6}, s2, 15")
    b(f"  s_lshl_b32 s{S_T+6}, s{S_T+6}, 4")
    b(f"  s_lshr_b32 s{S_T+7}, s2, 4")
    b(f"  s_add_u32 s{S_T+6}, s{S_T+6}, s{S_T+7}")
    b(f"  s_lshl_b32 s{S_T+6}, s{S_T+6}, 6       ; pos*64")
    b(f"  s_lshl_b32 s{S_T+7}, s{S_W}, 19        ; 4w*131072")
    b(f"  s_add_u32 s44, s{S_T+6}, s{S_T+7}")

def w_early(b):
    srd(b, SRD_C, P_WR, WB)
    srd(b, SRD_D, P_WI, WB)
    b(f"  s_and_b32 s{S_T+2}, s2, 7              ; j1")
    b(f"  v_and_b32 v215, 1, v0                ; half")
    b(f"  v_bfe_u32 v11, v0, 5, 4              ; c")
    b(f"  v_bfe_u32 v12, v0, 1, 4              ; e")
    b(f"  v_lshl_add_u32 v13, v12, 4, v11      ; j2")
    b(f"  v_lshlrev_b32 v13, 3, v13")
    b(f"  v_add_u32 v13, s{S_T+2}, v13         ; j")
    b(f"  v_mul_u32_u24 v214, 1026, v13")
    b(f"  v_lshl_add_u32 v14, v215, 4, v214")
    b(f"  s_lshr_b32 s{S_T+3}, s2, 3           ; kb")
    b(f"  s_lshl_b32 s{S_T+3}, s{S_T+3}, 5")
    b(f"  buffer_load_dwordx4 {vr(WE,4)}, v14, s[{SRD_C}:{SRD_C+3}], s{S_T+3} offen{XF()}")
    b(f"  buffer_load_dwordx4 {vr(WE+4,4)}, v14, s[{SRD_D}:{SRD_D+3}], s{S_T+3} offen{XF()}")

def p1(b):
    srd(b, SRD_A, P_X, 4 << 20)
    srd(b, SRD_B, P_WS, 4 << 20, WS_X1)
    b(f"  s_lshl_b32 s{S_T}, s{S_W}, 8")
    b(f"  s_add_u32 s{S_T}, s{S_T}, s2          ; s")
    b(f"  s_lshl_b32 s{S_T+1}, s{S_T}, 11")
    b(f"  v_lshlrev_b32 v1, 9, v9")
    b(f"  v_lshl_add_u32 v1, v8, 2, v1")
    XD = 32
    b(f"  s_cmp_ge_u32 s2, 16")
    b(f"  s_cbranch_scc1 p1_noreset")
    b(f"  s_cmp_lg_u32 s{S_W}, 0")
    b(f"  s_cbranch_scc1 p1_noreset")
    b(f"  s_lshl_b32 s{S_T+2}, s2, 8")
    b(f"  v_lshlrev_b32 v2, 12, v7")
    b(f"  v_add_u32 v2, s{S_T+2}, v2")
    b(f"  v_mov_b32 v3, 0")
    b(f"  s_mov_b64 s[48:49], exec")
    b(f"  s_mov_b64 exec, 15")
    b(f"  buffer_store_dword v3, v2, s[{SRD_CNT}:{SRD_CNT+3}], 0 offen sc1")
    b(f"  s_mov_b64 exec, s[48:49]")
    b.label("p1_noreset")
    for i in range(8):
        b(f"  buffer_load_dword v{XD+i}, v1, s[{SRD_A}:{SRD_A+3}], s{S_T+1} offen offset:{64*i}{XF()}")
    NCLR = 0
    NWE = 0
    x1_store_addr(b)
    if SENT():
        b(f"  v_mov_b32 v60, -1")
        b(f"  v_mov_b32 v61, -1")
        b(f"  v_mov_b32 v62, -1")
        b(f"  v_mov_b32 v63, -1")
        b(f"  v_bfe_u32 v2, v7, 2, 3              ; j1")
        b(f"  v_lshrrev_b32 v3, 5, v7             ; i (0,1)")
        b(f"  v_lshlrev_b32 v2, 14, v2")
        b(f"  v_lshl_add_u32 v2, v3, 17, v2")
        b(f"  v_and_b32 v3, 3, v7")
        b(f"  v_lshl_add_u32 v2, v3, 4, v2")
        b(f"  buffer_store_dwordx4 v[60:63], v2, s[{SRD_B}:{SRD_B+3}], s44 offen{SF}")
        b(f"  s_add_u32 s{S_T+7}, s44, {2*131072}")
        b(f"  buffer_store_dwordx4 v[60:63], v2, s[{SRD_B}:{SRD_B+3}], s{S_T+7} offen{SF}")
        NCLR = 2
    if "tlbw" in OPT:
        b(f"  s_cmp_lg_u32 s{S_W}, 7")
        b(f"  s_cbranch_scc1 p1_notlb")
        sh = 20 if "tlb1m" in OPT else (19 if "tlb512k" in OPT else 21)
        b(f"  v_lshlrev_b32 v2, {sh}, v7")
        lst = [(P_WS, 32 << 20), (P_W1, W1B), (P_W2, W1B), (P_WR, WB), (P_WI, WB), (P_OUT, 4 << 20), (P_B1, 7168), (P_B2, 4096)]
        for ptr, size in lst:
            srd(b, SRD_PF, ptr, size)
            b(f"  s_mov_b64 s[16:17], exec")
            n = min(64, -(-size // (1 << sh)))
            b(f"  s_mov_b64 exec, {hex((1 << n) - 1)}")
            b(f"  buffer_load_dword v230, v2, s[{SRD_PF}:{SRD_PF+3}], 0 offen")
            b(f"  s_mov_b64 exec, s[16:17]")
        b.label("p1_notlb")
    if "wearly" in OPT:
        w_early(b); NCLR += 2
    npf = 0
    p1_tables(b)
    GM = 30
    gmat(b, GM, 2, False, 10)
    srd(b, SRD_PF, P_DBG, 256)
    b(f"  s_and_b32 s{S_T+8}, s2, 15")
    b(f"  s_lshl_b32 s{S_T+9}, s{S_T+8}, 2")
    b(f"  s_add_u32 s{S_T+9}, s{S_T+9}, 64")
    b(f"  v_mov_b32 v25, s{S_T+9}")
    b(f"  v_lshlrev_b32 v26, 2, v8")
    b(f"  v_add_u32 v26, 64, v26")
    b(f"  s_cmp_ge_u32 s2, 16")
    b(f"  s_cbranch_scc1 p1_noflag")
    b(f"  s_cmp_lg_u32 s{S_W}, 0")
    b(f"  s_cbranch_scc1 p1_noflag")
    b(f"  s_waitcnt vmcnt({8} + 0)".replace(" + 0", "") if NCLR == 0 else f"  s_waitcnt vmcnt({8 + NCLR})")
    b(f"  v_mov_b32 v3, 1")
    b(f"  s_mov_b64 s[48:49], exec")
    b(f"  s_mov_b64 exec, 1")
    b(f"  buffer_store_dword v3, v25, s[{SRD_PF}:{SRD_PF+3}], 0 offen sc1")
    b(f"  s_mov_b64 exec, s[48:49]")
    b.label("p1_noflag")
    b(f"  s_waitcnt lgkmcnt(0)")
    stamp(b, "p1 tables done")
    b(f"  s_barrier")
    npf = 0
    if "nopf" not in OPT:
        b(f"  s_mul_i32 s{S_T+8}, s2, 8208")
        if "ntx" not in OPT and "wpf" in OPT:
            pf_wide(b, P_WR, WB, S_T + 8, 3, 0, 3, "pf_p1a")
            pf_wide(b, P_WI, WB, S_T + 8, 3, 0, 3, "pf_p1b")
        if "ntw1" not in OPT and PFN[0]:
            w1_share_base(b, S_T + 8, 0)
            pf_wide(b, P_W1, W1B, S_T + 8, PFN[0], 4, 8, "pf_p1c")
    M1, M2, TW = 96, 112, 128
    b(f"  v_lshlrev_b32 v2, 4, v7")
    for i in range(4): b(f"  ds_read_b128 {vr(M1+4*i,4)}, v2 offset:{L1_M1+1024*i}")
    for i in range(3): b(f"  ds_read_b128 {vr(M2+4*i,4)}, v2 offset:{L1_M2+1024*i}")
    for i in range(8): b(f"  ds_read_b128 {vr(TW+4*i,4)}, v2 offset:{L1_TW+1024*i}")
    X = 40
    nW = 0 if ("nopf" in OPT or "ntx" in OPT or "wpf" not in OPT) else 6
    n1 = 0 if ("nopf" in OPT or "ntw1" in OPT) else PFN[0]
    b(f"  s_cmp_eq_u32 s{S_W}, 3")
    b(f"  s_cbranch_scc1 p1_xw0")
    b(f"  s_cmp_ge_u32 s{S_W}, 4")
    b(f"  s_cbranch_scc1 p1_xw4")
    b(f"  s_waitcnt vmcnt({NCLR + nW})")
    b(f"  s_branch p1_xwd")
    b.label("p1_xw4")
    if "tlbw" in OPT:
        b(f"  s_cmp_lg_u32 s{S_W}, 7")
        b(f"  s_cbranch_scc1 p1_xw5")
        b(f"  s_waitcnt vmcnt({NCLR + n1 + 8})")
        b(f"  s_branch p1_xwd")
        b.label("p1_xw5")
    b(f"  s_waitcnt vmcnt({NCLR + n1})")
    b(f"  s_branch p1_xwd")
    b.label("p1_xw0")
    b(f"  s_waitcnt vmcnt({NCLR})")
    b.label("p1_xwd")
    stamp(b, "p1 x landed")
    if "wearly" in OPT:
        b(f"  s_cmp_ge_u32 s2, 8")
        b(f"  s_cbranch_scc1 p1_nonyq")
        b(f"  buffer_load_ushort v212, v214, s[{SRD_C}:{SRD_C+3}], 0 offen offset:1024")
        b(f"  buffer_load_ushort v213, v214, s[{SRD_D}:{SRD_D+3}], 0 offen offset:1024")
        b.label("p1_nonyq")
    srd(b, SRD_PF, P_DBG, 256)
    for i in range(8):
        b(f"  v_lshlrev_b32 v{X+i}, 16, v{XD+i}")
        b(f"  v_and_b32 v{X+8+i}, 0xffff0000, v{XD+i}")
    T = 56
    ln_fast(b, X, T, S_T + 2, True)
    stamp(b, "p1 ln done")
    if SENT():
        b(f"  buffer_load_dword v27, v26, s[{SRD_PF}:{SRD_PF+3}], 0 offen sc1")
        b(f"  s_and_b32 s{S_T+8}, s2, 15")
        arrive(b, 0, S_T + 8, first=True, label="x1")
        stamp(b, "p1 arrived")
        srd(b, SRD_C, P_WS, 4 << 20, WS_X2)
        for i in range(4): b(f"  v_mov_b32 v{200+i}, -1")
        b(f"  v_lshlrev_b32 v2, 4, v0")
        b(f"  s_lshl_b32 s{S_T+7}, s2, 14")
        b(f"  buffer_store_dwordx4 v[200:203], v2, s[{SRD_C}:{SRD_C+3}], s{S_T+7} offen{SF}")
        b(f"  s_add_u32 s{S_T+7}, s{S_T+7}, 8192")
        b(f"  buffer_store_dwordx4 v[200:203], v2, s[{SRD_C}:{SRD_C+3}], s{S_T+7} offen{SF}")
    A = 64
    for be in range(2):
        for i in range(4):
            b(f"  v_cvt_pk_bf16_f32 v{A+4*be+i}, v{X+8*be+2*i}, v{X+8*be+2*i+1}")
    b(f"  s_waitcnt lgkmcnt(0)")
    b(f"  v_readlane_b32 s{S_T+5}, v{T+6}, 0")
    Y = 160
    for be in range(2):
        for u in range(2):
            for c in range(2):
                d = Y + ((be * 2 + u) * 2 + c) * 4
                b(f"  {MF32} {vr(d,4)}, {vr(A+4*be,4)}, {vr(M1+4*(2*u+c),4)}, 0")
    b(f"  s_nop 4")
    Bp = 72; W = 32; O = 40
    for u in range(2):
        for be in range(2):
            y = Y + ((be * 2 + u) * 2) * 4
            tw = TW + (be * 4 + u * 2) * 4
            cmul_pk(b, O + 8 * be, O + 8 * be + 4, y, y + 4, tw, tw + 4, W, False)
        for r in range(4):
            b(f"  v_cvt_pk_bf16_f32 v{Bp+8*u+r}, v{O+r}, v{O+8+r}")
            b(f"  v_cvt_pk_bf16_f32 v{Bp+8*u+4+r}, v{O+4+r}, v{O+12+r}")
    XO = 160
    b(f"  s_nop 1")
    for u in range(2):
        re, im = XO + 8 * u, XO + 8 * u + 4
        b(f"  {MF32} {vr(re,4)}, {vr(M2,4)}, {vr(Bp+8*u,4)}, 0")
        b(f"  {MF32} {vr(im,4)}, {vr(M2,4)}, {vr(Bp+8*u+4,4)}, 0")
        b(f"  {MF32} {vr(re,4)}, {vr(M2+4,4)}, {vr(Bp+8*u+4,4)}, {vr(re,4)}")
        b(f"  {MF32} {vr(im,4)}, {vr(M2+8,4)}, {vr(Bp+8*u,4)}, {vr(im,4)}")
    b(f"  s_and_b32 s{S_T+6}, s{S_W}, 1")
    b(f"  s_lshl_b32 s{S_T+6}, s{S_T+6}, 8")
    b(f"  s_lshr_b32 s{S_T+7}, s{S_W}, 1")
    b(f"  s_lshl_b32 s{S_T+7}, s{S_T+7}, 6")
    b(f"  s_add_u32 s{S_T+6}, s{S_T+6}, s{S_T+7}")
    b(f"  v_lshlrev_b32 v3, 12, v9")
    b(f"  v_lshl_add_u32 v3, v8, 2, v3")
    b(f"  v_add_u32 v3, s{S_T+6}, v3")
    b(f"  s_nop 2")
    b(f"  v_writelane_b32 v{XO}, s{S_T+5}, 0")
    b(f"  v_writelane_b32 v{XO+4}, 0, 0")
    PK = 32
    for u in range(2):
        for r in range(4):
            b(f"  v_cvt_pk_bf16_f32 v{PK+4*u+r}, v{XO+8*u+r}, v{XO+8*u+4+r}")
    for u in range(2):
        for r in range(4):
            b(f"  ds_write_b32 v3, v{PK+4*u+r} offset:{L1_EX + u*512 + r*1024}")
    if SENT(): b(f"  s_waitcnt lgkmcnt(0) vmcnt(0)")
    else:
        b(f"  buffer_load_dword v27, v26, s[{SRD_PF}:{SRD_PF+3}], 0 offen sc1")
        b(f"  s_waitcnt lgkmcnt(0)")
    stamp(b, "p1 fft done")
    b(f"  s_barrier")
    b(f"  v_lshlrev_b32 v4, 6, v9")
    b(f"  v_lshl_add_u32 v4, v8, 2, v4")
    b(f"  s_lshl_b32 s{S_T+6}, s{S_W}, 11")
    b(f"  s_add_u32 s{S_T+6}, s{S_T+6}, {L1_EX}")
    b(f"  v_add_u32 v4, s{S_T+6}, v4")
    Bd = 40
    for i in range(4):
        b(f"  ds_read2st64_b32 {vr(Bd+2*i,2)}, v4 offset0:{2*i} offset1:{2*i+1}")
    D = 48
    for i in range(4):
        b(f"  s_waitcnt lgkmcnt({3-i})")
        b(f"  {MF16} {vr(D+4*i,4)}, {vr(GM,2)}, {vr(Bd+2*i,2)}, 0")
    b(f"  s_nop 4")
    for i in range(4):
        b(f"  v_cvt_pk_bf16_f32 v{64+2*i}, v{D+4*i}, v{D+4*i+1}")
        b(f"  v_cvt_pk_bf16_f32 v{65+2*i}, v{D+4*i+2}, v{D+4*i+3}")
        b(f"  v_min_u32 v{64+2*i}, 0xfffffffe, v{64+2*i}")
        b(f"  v_min_u32 v{65+2*i}, 0xfffffffe, v{65+2*i}")
        for e in range(2):
            b(f"  s_add_u32 s{S_T+7}, s44, {i*131072 + e*16384}")
            b(f"  buffer_store_dword v{64+2*i+e}, v5, s[{SRD_B}:{SRD_B+3}], s{S_T+7} offen{SF}")
    stamp(b, "p1 stores issued")
    if not SENT():
        b(f"  s_and_b32 s{S_T+8}, s2, 15")
        arrive(b, 0, S_T + 8, first=True, label="x1")
        stamp(b, "p1 arrived")

XL2, WL2 = 32, 40
WE = 204
TC2, TS2 = 64, 68
def p2_setup(b):
    srd(b, SRD_A, P_WS, 4 << 20, WS_X1)
    srd(b, SRD_B, P_WS, 4 << 20, WS_X2)
    srd(b, SRD_C, P_WR, WB)
    srd(b, SRD_D, P_WI, WB)
    b(f"  s_and_b32 s{S_T}, s2, 7              ; j1")
    b(f"  s_lshr_b32 s{S_T+1}, s2, 3           ; kb")
    b(f"  v_and_b32 v10, 1, v0                 ; half")
    b(f"  v_bfe_u32 v11, v0, 5, 4              ; c")
    b(f"  v_bfe_u32 v12, v0, 1, 4              ; e")
    b(f"  v_lshl_add_u32 v13, v12, 4, v11      ; j2")
    b(f"  v_lshlrev_b32 v13, 3, v13")
    b(f"  v_add_u32 v13, s{S_T}, v13           ; j")
    b(f"  v_mul_u32_u24 v13, 1026, v13")
    b(f"  v_lshlrev_b32 v14, 4, v10")
    b(f"  v_add_u32 v14, v13, v14")
    b(f"  s_lshl_b32 s{S_T+3}, s{S_T+1}, 5")
    if "wearly" in OPT:
        b(f"  s_cmp_lg_u32 s{S_T+1}, 0")
        b(f"  s_cbranch_scc1 p2_nonyq")
        b(f"  s_waitcnt vmcnt(0)")
        b(f"  v_cmp_eq_u32 vcc, 0, v215")
        b(f"  v_and_b32 v50, 0xffff0000, v{WE}")
        b(f"  v_or_b32 v50, v50, v212")
        b(f"  v_cndmask_b32 v{WE}, v{WE}, v50, vcc")
        b(f"  v_and_b32 v50, 0xffff0000, v{WE+4}")
        b(f"  v_or_b32 v50, v50, v213")
        b(f"  v_cndmask_b32 v{WE+4}, v{WE+4}, v50, vcc")
        b.label("p2_nonyq")
    elif "wlate" in OPT:
        b(f"  v_mov_b32 v24, v14")
        b(f"  v_mov_b32 v25, v13")
        b(f"  v_mov_b32 v26, v10                   ; half")
        b(f"  s_mov_b32 s45, s{S_T+3}              ; kb*32")
    else:
        WL = WL2
        b(f"  v_mov_b32 v24, v14")
        b(f"  v_mov_b32 v25, v13")
        b(f"  v_mov_b32 v26, v10                   ; half")
        b(f"  s_mov_b32 s45, s{S_T+3}              ; kb*32")
        WL = WL2
        b(f"  buffer_load_dwordx4 {vr(WL,4)}, v24, s[{SRD_C}:{SRD_C+3}], s45 offen{XF()}")
        b(f"  buffer_load_dwordx4 {vr(WL+4,4)}, v24, s[{SRD_D}:{SRD_D+3}], s45 offen{XF()}")
        b(f"  s_cmp_lg_u32 s{S_T+1}, 0")
        b(f"  s_cbranch_scc1 p2_nonyq")
        b(f"  buffer_load_ushort v48, v25, s[{SRD_C}:{SRD_C+3}], 0 offen offset:1024")
        b(f"  buffer_load_ushort v49, v25, s[{SRD_D}:{SRD_D+3}], 0 offen offset:1024")
        b(f"  s_waitcnt vmcnt(0)")
        b(f"  v_cmp_eq_u32 vcc, 0, v26")
        b(f"  v_and_b32 v50, 0xffff0000, v{WL}")
        b(f"  v_or_b32 v50, v50, v48")
        b(f"  v_cndmask_b32 v{WL}, v{WL}, v50, vcc")
        b(f"  v_and_b32 v50, 0xffff0000, v{WL+4}")
        b(f"  v_or_b32 v50, v50, v49")
        b(f"  v_cndmask_b32 v{WL+4}, v{WL+4}, v50, vcc")
        b.label("p2_nonyq")
    npf = 0
    b(f"  v_and_b32 v15, 255, v0")
    b(f"  v_bfe_u32 v16, v15, 2, 4             ; x")
    b(f"  v_lshrrev_b32 v17, 6, v15            ; g")
    b(f"  v_and_b32 v18, 3, v15")
    b(f"  v_lshl_add_u32 v17, v17, 2, v18      ; 4g+i")
    b(f"  v_mul_u32_u24 v17, v17, v16")
    sincos(b, 18, 19, 17, 4, 20)
    b(f"  v_cmp_gt_u32 vcc, 256, v0            ; matrix 0 ?")
    b(f"  v_xor_b32 v20, 0x80000000, v19       ; -sin")
    b(f"  s_nop 0")
    b(f"  v_cndmask_b32 v21, v20, v18, vcc")
    b(f"  v_cndmask_b32 v22, v18, v19, vcc")
    b(f"  v_cvt_pk_bf16_f32 v21, v21, v22")
    b(f"  v_lshlrev_b32 v22, 2, v0")
    b(f"  ds_write_b32 v22, v21 offset:{L2_F}")
    b(f"  v_lshlrev_b32 v16, 2, v9")
    for r in range(4):
        b(f"  v_add_u32 v17, {r}, v16")
        b(f"  v_mul_u32_u24 v17, v17, v8")
        sincos(b, TC2 + r, TS2 + r, 17, 8, 20)
    b(f"  v_and_b32 v16, 3, v0                 ; i")
    b(f"  v_mul_u32_u24 v16, {4*1040}, v16")
    b(f"  v_lshrrev_b32 v17, 6, v0             ; b (0..7)")
    b(f"  v_lshl_add_u32 v16, v17, 6, v16")
    b(f"  v_bfe_u32 v17, v0, 2, 2              ; a&3")
    b(f"  v_lshl_add_u32 v16, v17, 2, v16")
    b(f"  v_bfe_u32 v17, v0, 4, 2              ; a>>2")
    b(f"  v_lshl_add_u32 v21, v17, 4, v16      ; first")
    b(f"  v_xor_b32 v17, 2, v17")
    b(f"  v_lshl_add_u32 v22, v17, 4, v16")
    b(f"  v_add_u32 v22, 512, v22              ; second (b+8)")
    b(f"  v_mul_u32_u24 v16, {4*1040}, v10")
    b(f"  v_lshl_add_u32 v16, v11, 6, v16")
    b(f"  v_and_b32 v17, 3, v12")
    b(f"  v_lshl_add_u32 v16, v17, 2, v16")
    b(f"  v_lshrrev_b32 v17, 2, v12")
    b(f"  v_lshrrev_b32 v18, 3, v11            ; c>>3")
    b(f"  v_lshlrev_b32 v18, 1, v18")
    b(f"  v_xor_b32 v17, v17, v18")
    b(f"  v_lshl_add_u32 v23, v17, 4, v16")
    b(f"  v_lshrrev_b32 v16, 3, v8")
    b(f"  v_lshlrev_b32 v16, 1, v16")
    b(f"  v_xor_b32 v16, v16, v9")
    b(f"  v_lshlrev_b32 v16, 4, v16")
    b(f"  v_lshl_add_u32 v16, v8, 6, v16")
    b(f"  s_mul_i32 s{S_T+4}, s{S_W}, {2*1040}")
    b(f"  s_mul_i32 s{S_T+5}, s{S_W}, 1040")
    b(f"  v_add_u32 v5, s{S_T+4}, v16")
    b(f"  v_add_u32 v6, s{S_T+5}, v16")
    b(f"  v_lshlrev_b32 v1, 4, v0")
    b(f"  s_lshl_b32 s{S_T+2}, s2, 14")
    b(f"  s_add_u32 s{S_T+3}, s{S_T+2}, 8192")
    b(f"  s_waitcnt lgkmcnt(0)")

def sentinel_check(b, R0, pre, n=8):
    b(f"  v_max3_u32 v16, v{R0}, v{R0+1}, v{R0+2}")
    b(f"  v_max3_u32 v17, v{R0+3}, v{R0+4}, v{R0+5}")
    b(f"  v_max3_u32 v16, v16, v{R0+6}, v{R0+7}")
    for i in range(8, n, 2): b(f"  v_max3_u32 v17, v17, v{R0+i}, v{R0+i+1}")
    b(f"  v_max_u32 v16, v16, v17")
    b(f"  v_cmp_eq_u32 vcc, -1, v16")
    b(f"  s_sub_u32 s11, s11, 1")
    b(f"  s_cmp_eq_u32 s11, 0")
    b(f"  s_cbranch_scc1 {pre}_got")
    b(f"  s_cmp_lg_u64 vcc, 0")
    b(f"  s_cbranch_scc1 {pre}_poll")
    b.label(f"{pre}_got")

def p2_main(b):
    XL = XL2; TC, TS = TC2, TS2
    if SENT():
        b(f"  s_mov_b32 s11, 200000")
        b.label("p2_poll")
    b(f"  buffer_load_dwordx4 {vr(XL,4)}, v1, s[{SRD_A}:{SRD_A+3}], s{S_T+2} offen sc1")
    b(f"  buffer_load_dwordx4 {vr(XL+4,4)}, v1, s[{SRD_A}:{SRD_A+3}], s{S_T+3} offen sc1")
    if "wlate" in OPT:
        assert not SENT()
        WL = WL2
        b(f"  buffer_load_dwordx4 {vr(WL,4)}, v24, s[{SRD_C}:{SRD_C+3}], s45 offen{XF()}")
        b(f"  buffer_load_dwordx4 {vr(WL+4,4)}, v24, s[{SRD_D}:{SRD_D+3}], s45 offen{XF()}")
        b(f"  s_cmp_lg_u32 s{S_T+1}, 0")
        b(f"  s_cbranch_scc1 p2_nonyq")
        b(f"  buffer_load_ushort v56, v25, s[{SRD_C}:{SRD_C+3}], 0 offen offset:1024")
        b(f"  buffer_load_ushort v57, v25, s[{SRD_D}:{SRD_D+3}], 0 offen offset:1024")
        b(f"  s_waitcnt vmcnt(0)")
        b(f"  v_cmp_eq_u32 vcc, 0, v26")
        b(f"  v_and_b32 v58, 0xffff0000, v{WL}")
        b(f"  v_or_b32 v58, v58, v56")
        b(f"  v_cndmask_b32 v{WL}, v{WL}, v58, vcc")
        b(f"  v_and_b32 v58, 0xffff0000, v{WL+4}")
        b(f"  v_or_b32 v58, v58, v57")
        b(f"  v_cndmask_b32 v{WL+4}, v{WL+4}, v58, vcc")
        b.label("p2_nonyq")
        b(f"  s_waitcnt vmcnt(2)")
    else:
        b(f"  s_waitcnt vmcnt(0)")
    if SENT(): sentinel_check(b, XL, "p2")
    WL = WE if "wearly" in OPT else WL2
    b(f"  v_lshlrev_b32 v17, 4, v7")
    FR, FI = 72, 76
    AX = 48; WR, WI = 152, 156
    b(f"  ds_read_b128 {vr(FR,4)}, v17 offset:{L2_F}")
    b(f"  ds_read_b128 {vr(FI,4)}, v17 offset:{L2_F+1024}")
    Dq = [80, 88]; Oq = [96, 104]; Tq = [112, 120]; Pq = [128, 132]; Wq = [136, 144]
    stamp(b, "p2 x landed")
    for j in range(4):
        b(f"  ds_write_b32 v21, v{XL+j} offset:{L2_X + j*1040}")
        b(f"  ds_write_b32 v22, v{XL+4+j} offset:{L2_X + j*1040}")
    if "wlate" in OPT: b(f"  s_waitcnt vmcnt(0)")
    for j in range(4):
        b(f"  ds_write_b32 v23, v{WL+j} offset:{L2_W + j*1040}")
        b(f"  ds_write_b32 v23, v{WL+4+j} offset:{L2_W + 8*1040 + j*1040}")
    if "nopf" not in OPT and "ntw1" not in OPT and PFN[1]:
        w1_share_base(b, S_T + 8, PFN[0] * 4096)
        pf_wide(b, P_W1, W1B, S_T + 8, PFN[1], 4, 8, "pf_p2a")
    b(f"  s_waitcnt lgkmcnt(0)")
    b(f"  s_barrier")
    b(f"  ds_read_b128 {vr(AX,4)}, v5 offset:{L2_X}")
    b(f"  ds_read_b128 {vr(AX+4,4)}, v5 offset:{L2_X+1040}")
    b(f"  ds_read_b128 {vr(WR,4)}, v6 offset:{L2_W}")
    b(f"  ds_read_b128 {vr(WI,4)}, v6 offset:{L2_W+8*1040}")
    def stage(form, src):
        for k in range(2):
            d = Dq[k]
            if form == 'A':
                b(f"  {MF32} {vr(d,4)}, {vr(src[k],4)}, {vr(FR,4)}, 0")
                b(f"  {MF32} {vr(d+4,4)}, {vr(src[k],4)}, {vr(FI,4)}, 0")
            else:
                b(f"  {MF32} {vr(d,4)}, {vr(FR,4)}, {vr(src[k],4)}, 0")
                b(f"  {MF32} {vr(d+4,4)}, {vr(FI,4)}, {vr(src[k],4)}, 0")
    def twiddle_pack():
        for k in range(2):
            cmul_pk(b, Oq[k], Oq[k] + 4, Dq[k], Dq[k] + 4, TC, TS, Tq[k], False)
        for k in range(2):
            for r in range(4):
                b(f"  v_cvt_pk_bf16_f32 v{Pq[k]+r}, v{Oq[k]+r}, v{Oq[k]+4+r}")
        b(f"  s_nop 1")
    b(f"  s_waitcnt lgkmcnt(2)")
    stage('A', [AX, AX + 4])
    b(f"  s_waitcnt lgkmcnt(0)")
    for r in range(4):
        b(f"  v_lshlrev_b32 v{Wq[0]+r}, 16, v{WR+r}")
        b(f"  v_lshlrev_b32 v{Wq[0]+4+r}, 16, v{WI+r}")
        b(f"  v_and_b32 v{Wq[1]+r}, 0xffff0000, v{WR+r}")
        b(f"  v_and_b32 v{Wq[1]+4+r}, 0xffff0000, v{WI+r}")
    twiddle_pack()
    stage('B', Pq)
    b(f"  s_nop 5")
    for k in range(2):
        cmul_pk(b, Oq[k], Oq[k] + 4, Dq[k], Dq[k] + 4, Wq[k], Wq[k] + 4, Tq[k], True)
    for k in range(2):
        for r in range(4):
            b(f"  v_cvt_pk_bf16_f32 v{Pq[k]+r}, v{Oq[k]+r}, -v{Oq[k]+4+r}")
    b(f"  s_nop 1")
    stage('A', Pq)
    b(f"  s_nop 5")
    twiddle_pack()
    stage('B', Pq)
    b(f"  s_nop 5")
    for k in range(2):
        for r in range(4):
            b(f"  v_cvt_pk_bf16_f32 v{Pq[k]+r}, v{Dq[k]+r}, -v{Dq[k]+4+r}")
    b(f"  ds_write_b128 v5, {vr(Pq[0],4)} offset:{L2_X}")
    b(f"  ds_write_b128 v5, {vr(Pq[1],4)} offset:{L2_X+1040}")
    b(f"  s_waitcnt lgkmcnt(0)")
    b(f"  s_barrier")
    for j in range(4):
        b(f"  ds_read_b32 v{XL+j}, v21 offset:{L2_X + j*1040}")
        b(f"  ds_read_b32 v{XL+4+j}, v22 offset:{L2_X + j*1040}")
    b(f"  v_bfe_u32 v16, v0, 2, 4              ; a")
    b(f"  v_lshrrev_b32 v17, 6, v0             ; b")
    b(f"  v_lshl_add_u32 v16, v16, 4, v17      ; s1")
    b(f"  v_lshlrev_b32 v16, 14, v16")
    b(f"  v_and_b32 v17, 3, v0")
    b(f"  v_lshl_add_u32 v16, v17, 4, v16")
    b(f"  s_lshl_b32 s{S_T+4}, s{S_T}, 11")
    b(f"  s_lshl_b32 s{S_T+5}, s{S_T+1}, 6")
    b(f"  s_add_u32 s{S_T+4}, s{S_T+4}, s{S_T+5}")
    b(f"  s_add_u32 s{S_T+5}, s{S_T+4}, {8*16384}")
    b(f"  s_waitcnt lgkmcnt(0)")
    for j in range(8): b(f"  v_min_u32 v{XL+j}, 0xfffffffe, v{XL+j}")
    b(f"  buffer_store_dwordx4 {vr(XL,4)}, v16, s[{SRD_B}:{SRD_B+3}], s{S_T+4} offen{SF}")
    b(f"  buffer_store_dwordx4 {vr(XL+4,4)}, v16, s[{SRD_B}:{SRD_B+3}], s{S_T+5} offen{SF}")
    stamp(b, "p2 stores issued")
    if not SENT():
        b(f"  s_and_b32 s{S_T+8}, s2, 15")
        arrive(b, 1, S_T + 8, label="x2")

V_LO = 224
S_G1A = 60
def g1_ids(b):
    b(f"  s_lshr_b32 s{S_T}, s2, 3                 ; i")
    b(f"  s_cmp_lt_u32 s{S_T}, 28")
    b(f"  s_cselect_b32 s62, 1, 0")
    b(f"  s_mul_i32 s{S_T+1}, s{S_T}, 37")
    b(f"  s_lshr_b32 s{S_T+1}, s{S_T+1}, 8         ; i/7")
    b(f"  s_mul_i32 s{S_T+2}, s{S_T+1}, 7")
    b(f"  s_sub_u32 s{S_T+2}, s{S_T}, s{S_T+2}     ; i%7")
    b(f"  s_and_b32 s{S_T+3}, s2, 7")
    b(f"  s_lshr_b32 s{S_T+4}, s{S_T+3}, 1")
    b(f"  s_mul_i32 s{S_T+4}, s{S_T+4}, 7")
    b(f"  s_add_u32 s60, s{S_T+4}, s{S_T+2}        ; ft")
    b(f"  s_and_b32 s{S_T+3}, s{S_T+3}, 1")
    b(f"  s_lshl_b32 s{S_T+3}, s{S_T+3}, 2")
    b(f"  s_add_u32 s61, s{S_T+3}, s{S_T+1}        ; dt")

S_SOFF, S_M0, S_N = 4, 5, 6
def loader_issue(b, voff, fl=""):
    for i in range(4):
        b(f"  s_add_u32 m0, s{S_M0}, {4096*i}")
        b(f"  s_nop 0")
        b(f"  buffer_load_dwordx4 v{voff+i}, s[{SRD_T}:{SRD_T+3}], s{S_SOFF} offen{fl} lds")
    b(f"  s_add_u32 s{S_SOFF}, s{S_SOFF}, s9")
    b(f"  s_add_u32 s{S_M0}, s{S_M0}, {STAGE}")
    b(f"  s_cmp_ge_u32 s{S_M0}, s{S_N+1}")
    b(f"  s_cselect_b32 s{S_N+2}, {R*STAGE}, 0")
    b(f"  s_sub_u32 s{S_M0}, s{S_M0}, s{S_N+2}")

def loader_init(b, step_bytes):
    b(f"  s_sub_u32 s50, s{S_W}, 4")
    b(f"  s_lshl_b32 s{S_M0}, s50, 10")
    b(f"  s_add_u32 s{S_N+1}, s{S_M0}, {R*STAGE}")
    b(f"  s_mov_b32 s{S_SOFF}, 0")
    b(f"  s_mov_b32 s9, {step_bytes}")

def g1_loader_addr(b):
    b(f"  s_sub_u32 s50, s{S_W}, 4      ; w'")
    for i in range(4):
        b(f"  s_lshl_b32 s49, s50, 2")
        b(f"  s_add_u32 s49, s49, {16*i}")
        b(f"  v_lshrrev_b32 v14, 4, v7")
        b(f"  v_add_u32 v14, s49, v14                 ; row 0..63")
        b(f"  v_and_b32 v15, 3, v14")
        b(f"  v_lshlrev_b32 v15, 2, v15")
        b(f"  v_and_b32 v16, 15, v7")
        b(f"  v_xor_b32 v16, v16, v15                 ; q")
        b(f"  v_lshrrev_b32 v17, 3, v14")
        b(f"  v_and_b32 v18, 7, v14")
        b(f"  v_lshl_add_u32 v17, v18, 8, v17         ; s")
        b(f"  v_mul_u32_u24 v17, 7168, v17")
        b(f"  v_lshl_add_u32 v17, v16, 4, v17")
        b(f"  s_lshl_b32 s49, s60, 8")
        b(f"  v_add_u32 v{V_LO+i}, s49, v17")

def g2_ids(b):
    if SK():
        b(f"  s_lshr_b32 s{S_T+1}, s2, 3")
        b(f"  s_lshr_b32 s{S_TILE_A}, s{S_T+1}, 2          ; dt")
        b(f"  s_lshr_b32 s{S_T}, s2, 1")
        b(f"  s_and_b32 s{S_T}, s{S_T}, 3")
        b(f"  s_lshl_b32 s{S_T}, s{S_T}, 2")
        b(f"  s_and_b32 s{S_T+1}, s{S_T+1}, 3")
        b(f"  s_add_u32 s{S_TILE_B}, s{S_T}, s{S_T+1}      ; st2")
        b(f"  s_and_b32 s19, s2, 1                       ; kh")
        return
    b(f"  s_and_b32 s{S_T}, s2, 1")
    b(f"  s_lshl_b32 s{S_T}, s{S_T}, 2")
    b(f"  s_lshr_b32 s{S_T+1}, s2, 3")
    b(f"  s_and_b32 s{S_T+2}, s{S_T+1}, 3")
    b(f"  s_add_u32 s{S_TILE_A}, s{S_T}, s{S_T+2}     ; dt")
    b(f"  s_lshr_b32 s{S_T}, s2, 1")
    b(f"  s_and_b32 s{S_T}, s{S_T}, 3")
    b(f"  s_lshl_b32 s{S_T}, s{S_T}, 3")
    b(f"  s_lshr_b32 s{S_T+1}, s{S_T+1}, 2")
    b(f"  s_add_u32 s{S_TILE_B}, s{S_T}, s{S_T+1}     ; st")

def g2_loader_addr(b):
    if SK():
        b(f"  s_sub_u32 s50, s{S_W}, 4")
        for i in range(4):
            b(f"  s_lshl_b32 s49, s50, 2")
            b(f"  s_add_u32 s49, s49, {16*i}")
            b(f"  v_lshrrev_b32 v14, 4, v7")
            b(f"  v_add_u32 v14, s49, v14                 ; row 0..63")
            b(f"  v_and_b32 v15, 3, v14")
            b(f"  v_lshlrev_b32 v15, 2, v15")
            b(f"  v_and_b32 v16, 15, v7")
            b(f"  v_xor_b32 v16, v16, v15                 ; q")
            b(f"  v_lshlrev_b32 v14, 12, v14              ; row*4096")
            b(f"  v_lshl_add_u32 v14, v16, 4, v14")
            b(f"  s_lshl_b32 s49, s{S_TILE_B}, 8          ; s0*2")
            b(f"  s_mul_i32 s48, s19, {1792*4096}         ; k half")
            b(f"  s_add_u32 s49, s49, s48")
            b(f"  v_add_u32 v{V_LO+i}, s49, v14")
        return
    b(f"  s_sub_u32 s50, s{S_W}, 4")
    for i in range(4):
        b(f"  s_lshl_b32 s49, s50, 3")
        b(f"  s_add_u32 s49, s49, {32*i}")
        b(f"  v_lshrrev_b32 v14, 3, v7")
        b(f"  v_add_u32 v14, s49, v14                 ; row")
        b(f"  v_bfe_u32 v15, v14, 1, 1")
        b(f"  v_lshlrev_b32 v15, 2, v15")
        b(f"  v_and_b32 v16, 7, v7")
        b(f"  v_xor_b32 v16, v16, v15                 ; q")
        b(f"  v_lshlrev_b32 v14, 12, v14              ; row*4096")
        b(f"  v_lshl_add_u32 v14, v16, 4, v14")
        b(f"  s_lshl_b32 s49, s{S_TILE_B}, 7          ; s0*2")
        b(f"  v_add_u32 v{V_LO+i}, s49, v14")

def loader_loop(b, NS, pre, fl=""):
    nmain = NS - (R - 2)
    b(f"  s_mov_b32 s{S_N}, {nmain}")
    b.label(f"{pre}_lloop")
    b(f"  s_waitcnt vmcnt({(R-3)*4})")
    b("  s_barrier")
    loader_issue(b, V_LO, fl)
    b(f"  s_sub_u32 s{S_N}, s{S_N}, 1")
    b(f"  s_cmp_lg_u32 s{S_N}, 0")
    b(f"  s_cbranch_scc1 {pre}_lloop")
    for i in range(R - 2):
        b(f"  s_waitcnt vmcnt({(R-3-i)*4})")
        b("  s_barrier")

BD3 = 32; XR3 = 192; GM3 = 30
def p3_tables(b):
    b(f"  v_and_b32 v10, 255, v0            ; e")
    b(f"  v_lshrrev_b32 v11, 8, v0")
    b(f"  v_bfe_u32 v12, v10, 2, 4          ; n = lane&15")
    b(f"  v_lshrrev_b32 v13, 6, v10         ; g")
    b(f"  v_and_b32 v14, 3, v10             ; r")
    b(f"  v_lshl_add_u32 v13, v13, 2, v14   ; 4g + r")
    b(f"  v_lshrrev_b32 v15, 2, v12")
    b(f"  v_lshlrev_b32 v15, 3, v15")
    b(f"  v_and_b32 v16, 3, v12")
    b(f"  v_add_u32 v15, v15, v16           ; b(n,0)")
    b(f"  v_lshl_add_u32 v16, v11, 2, v15   ; b(n, sel)")
    b(f"  v_mul_u32_u24 v17, v16, v13")
    sincos(b, 18, 19, 17, 5, 20)
    b(f"  v_lshlrev_b32 v22, 2, v10")
    b(f"  v_lshl_add_u32 v22, v11, 11, v22  ; sel*2048 + e*4")
    b(f"  v_add_u32 v22, {L3_M3}, v22")
    b(f"  v_cvt_pk_bf16_f32 v23, v18, -v19")
    b(f"  v_cvt_pk_bf16_f32 v24, v19, v18")
    b(f"  ds_write_b32 v22, v23")
    b(f"  ds_write_b32 v22, v24 offset:1024")
    b(f"  v_lshl_add_u32 v17, v11, 4, v13   ; k1")
    for z in range(2):
        b(f"  v_add_u32 v21, {16*z}, v12")
        b(f"  v_mul_u32_u24 v21, v21, v17")
        sincos(b, 18, 19, 21, 5, 20)
        b(f"  v_add_f32 v18, v18, v18")
        b(f"  v_mul_f32 v19, -2.0, v19")
        b(f"  v_cvt_pk_bf16_f32 v23, v18, v19")
        b(f"  ds_write_b32 v22, v23 offset:{4096+1024*z}")
    b(f"  v_lshlrev_b32 v23, 2, v10")
    b(f"  v_lshl_add_u32 v23, v11, 12, v23   ; u*4096 + e*4")
    b(f"  v_add_u32 v23, {L3_TW}, v23")
    for v in range(2):
        b(f"  v_add_u32 v21, {4*v}, v15")
        b(f"  v_mul_u32_u24 v21, v21, v17")
        sincos(b, 18, 19, 21, 10, 20)
        b(f"  ds_write_b32 v23, v18 offset:{2048*v}")
        b(f"  ds_write_b32 v23, v19 offset:{2048*v+1024}")

def p3_setup(b):
    srd(b, SRD_A, P_WS, 4 << 20, WS_X2)
    srd(b, SRD_B, P_X, 4 << 20)
    srd(b, SRD_C, P_WS, 4 << 20, WS_H)
    srd(b, SRD_D, P_WS, 4 << 20, WS_LN2)
    b(f"  s_lshl_b32 s{S_T+3}, s{S_W}, 8")
    b(f"  s_add_u32 s{S_T+3}, s{S_T+3}, s2")
    b(f"  s_lshl_b32 s{S_T+3}, s{S_T+3}, 11       ; s*2048")
    b(f"  v_lshlrev_b32 v4, 6, v8")
    b(f"  v_lshl_add_u32 v4, v9, 4, v4")
    for z in range(2):
        b(f"  buffer_load_dwordx4 {vr(XR3+4*z,4)}, v4, s[{SRD_B}:{SRD_B+3}], s{S_T+3} offen offset:{1024*z}")
    b(f"  s_mov_b32 s63, s{S_T+3}")
    if SK():
        srd(b, SRD_PF, P_WS, 4 << 20, WS_XCH)
        for i in range(4): b(f"  v_mov_b32 v{200+i}, -1")
        b(f"  v_lshlrev_b32 v2, 4, v0")
        b(f"  s_lshl_b32 s{S_T+8}, s2, 14")
        b(f"  buffer_store_dwordx4 v[200:203], v2, s[{SRD_PF}:{SRD_PF+3}], s{S_T+8} offen{SF}")
        b(f"  s_add_u32 s{S_T+8}, s{S_T+8}, 8192")
        b(f"  buffer_store_dwordx4 v[200:203], v2, s[{SRD_PF}:{SRD_PF+3}], s{S_T+8} offen{SF}")
    if "nopf" not in OPT and "ntw1" not in OPT:
        if PFN[2]:
            w1_share_base(b, S_T + 8, (PFN[0] + PFN[1]) * 4096)
            pf_wide(b, P_W1, W1B, S_T + 8, PFN[2], 4, 8, "pf_p3a")
    g1_ids(b)
    g1_loader_addr(b)
    loader_init(b, 8 * 7168)
    p3_tables(b)
    gmat(b, GM3, 2, True, 10)
    b(f"  v_lshlrev_b32 v1, 12, v9")
    b(f"  v_lshl_add_u32 v1, v8, 2, v1")
    b(f"  s_lshl_b32 s{S_T}, s2, 14")
    b(f"  s_and_b32 s{S_T+1}, s{S_W}, 1")
    b(f"  s_lshl_b32 s{S_T+1}, s{S_T+1}, 6")
    b(f"  s_lshr_b32 s{S_T+2}, s{S_W}, 1")
    b(f"  s_lshl_b32 s{S_T+2}, s{S_T+2}, 9")
    b(f"  s_add_u32 s{S_T}, s{S_T}, s{S_T+1}")
    b(f"  s_add_u32 s44, s{S_T}, s{S_T+2}          ; X2 soffset")
    b(f"  s_lshl_b32 s{S_T+1}, s{S_T+1}, 4        ; u*1024")
    b(f"  s_lshr_b32 s{S_T+2}, s{S_T+2}, 1        ; q4*256")
    b(f"  s_add_u32 s45, s{S_T+1}, s{S_T+2}")
    b(f"  s_waitcnt lgkmcnt(0)")

def p3_main(b):
    Bd, XR, GM = BD3, XR3, GM3
    D = 40
    b(f"  v_lshlrev_b32 v3, 12, v9")
    b(f"  v_lshl_add_u32 v3, v8, 4, v3")
    b(f"  v_add_u32 v3, s45, v3")
    b(f"  v_add_u32 v3, {L3_EX}, v3")
    M3, M4, TW = 96, 112, 128
    b(f"  v_lshlrev_b32 v6, 4, v7")
    b(f"  v_add_u32 v6, {L3_M3}, v6")
    for i in range(4): b(f"  ds_read_b128 {vr(M3+4*i,4)}, v6 offset:{1024*i}")
    for i in range(4): b(f"  ds_read_b128 {vr(M4+4*i,4)}, v6 offset:{4096+1024*i}")
    b(f"  s_waitcnt lgkmcnt(0)")
    for i in range(8): b(f"  ds_read_b128 {vr(TW+4*i,4)}, v6 offset:{8192+1024*i}")
    if SENT():
        b(f"  s_mov_b32 s11, 200000")
        b.label("p3_poll")
    for i in range(4):
        for e in range(2):
            b(f"  buffer_load_dword v{Bd+2*i+e}, v1, s[{SRD_A}:{SRD_A+3}], s44 offen offset:{e*2048+i*128} sc1")
    b(f"  s_waitcnt vmcnt(0)")
    if SENT(): sentinel_check(b, Bd, "p3")
    stamp(b, "p3 x2 landed")
    if "nopf" not in OPT and "ntw1" not in OPT and PFN[3]:
        w1_share_base(b, S_T + 8, (PFN[0] + PFN[1] + PFN[2]) * 4096)
        pf_wide(b, P_W1, W1B, S_T + 8, PFN[3], 4, 8, "pf_p3b")
    for i in range(4):
        b(f"  {MF16} {vr(D+4*i,4)}, {vr(GM,2)}, {vr(Bd+2*i,2)}, 0")
    b(f"  s_nop 4")
    PK = 56
    for e in range(2):
        for i in range(4):
            b(f"  v_cvt_pk_bf16_f32 v{PK+4*e+i}, v{D+4*i+2*e}, v{D+4*i+2*e+1}")
    b(f"  ds_write_b128 v3, {vr(PK,4)}")
    b(f"  ds_write_b128 v3, {vr(PK+4,4)} offset:2048")
    b(f"  s_waitcnt lgkmcnt(0)")
    b(f"  s_barrier")
    b(f"  v_lshlrev_b32 v5, 8, v9")
    b(f"  v_lshl_add_u32 v5, v8, 4, v5")
    b(f"  s_lshl_b32 s{S_T+1}, s{S_W}, 11")
    b(f"  s_add_u32 s{S_T+1}, s{S_T+1}, {L3_EX}")
    b(f"  v_add_u32 v5, s{S_T+1}, v5")
    AU = 32
    b(f"  ds_read_b128 {vr(AU,4)}, v5")
    b(f"  ds_read_b128 {vr(AU+4,4)}, v5 offset:1024")
    b(f"  s_waitcnt lgkmcnt(0)")
    b(f"  v_readlane_b32 s{S_T+4}, v{AU}, 0")
    b(f"  v_writelane_b32 v{AU}, 0, 0")
    b(f"  s_nop 1")
    b(f"  s_lshl_b32 s{S_T+4}, s{S_T+4}, 16")
    TT = 160
    for u in range(2):
        for v in range(2):
            for c in range(2):
                d = TT + ((u * 2 + v) * 2 + c) * 4
                b(f"  {MF32} {vr(d,4)}, {vr(AU+4*u,4)}, {vr(M3+4*(2*v+c),4)}, 0")
    CI = 60
    b(f"  v_mov_b32 v{CI}, s{S_T+4}")
    b(f"  v_xor_b32 v{CI+1}, 0x80000000, v{CI}")
    b(f"  v_mov_b32 v{CI+2}, v{CI}")
    b(f"  v_mov_b32 v{CI+3}, v{CI+1}")
    b(f"  s_nop 1")
    A2 = 64; O = 40; W = 80
    for u in range(2):
        for v in range(2):
            t = TT + ((u * 2 + v) * 2) * 4
            tw = TW + ((u * 2 + v) * 2) * 4
            cmul_pk(b, O, O + 4, t, t + 4, tw, tw + 4, W, True)
            for r in range(4):
                b(f"  v_cvt_pk_bf16_f32 v{A2+(u*2+v)*4+r}, v{O+r}, v{O+4+r}")
    Y = 160
    b(f"  s_nop 1")
    for z in range(2):
        for v in range(2):
            d = Y + (z * 2 + v) * 4
            b(f"  {MF32} {vr(d,4)}, {vr(A2+(0*2+v)*4,4)}, {vr(M4+(0*2+z)*4,4)}, {vr(CI,4)}")
    for z in range(2):
        for v in range(2):
            d = Y + (z * 2 + v) * 4
            b(f"  {MF32} {vr(d,4)}, {vr(A2+(1*2+v)*4,4)}, {vr(M4+(1*2+z)*4,4)}, {vr(d,4)}")
    b(f"  s_nop 7")
    X = 40; HP = 32
    stamp(b, "p3 ifft done")
    for z in range(2):
        for dd in range(4):
            y0 = Y + z * 8 + 2 * dd
            xd = XR + 4 * z + dd
            t = 64 + 2 * (dd % 4)
            b(f"  v_lshlrev_b32 v{t}, 16, v{xd}")
            b(f"  v_and_b32 v{t+1}, 0xffff0000, v{xd}")
            b(f"  v_pk_add_f32 {vr(t,2)}, {vr(t,2)}, {vr(y0,2)}")
            b(f"  v_cvt_pk_bf16_f32 v{HP+4*z+dd}, v{t}, v{t+1}")
    for z in range(2):
        b(f"  buffer_store_dwordx4 {vr(HP+4*z,4)}, v4, s[{SRD_C}:{SRD_C+3}], s63 offen offset:{1024*z}{SF}")
    for i in range(8):
        b(f"  v_lshlrev_b32 v{X+2*i}, 16, v{HP+i}")
        b(f"  v_and_b32 v{X+2*i+1}, 0xffff0000, v{HP+i}")
    ln_fast(b, X, 64, S_T + 4, False)
    LP = 72
    stamp(b, "p3 ln done")
    for i in range(8):
        b(f"  v_cvt_pk_bf16_f32 v{LP+i}, v{X+2*i}, v{X+2*i+1}")
    b(f"  v_mul_u32_u24 v3, 80, v8")
    b(f"  v_lshl_add_u32 v3, v9, 4, v3")
    b(f"  s_mul_i32 s{S_T+1}, s{S_W}, {L3_RS}")
    b(f"  s_add_u32 s{S_T+1}, s{S_T+1}, {L3_LN}")
    b(f"  v_add_u32 v3, s{S_T+1}, v3")
    for z in range(2):
        b(f"  ds_write_b128 v3, {vr(LP+4*z,4)} offset:{z*16*80}")
    b(f"  s_waitcnt lgkmcnt(0)")
    b(f"  s_barrier")
    b(f"  v_bfe_u32 v10, v7, 2, 2")
    b(f"  v_mul_u32_u24 v10, {L3_RS}, v10")
    b(f"  v_lshrrev_b32 v11, 5, v7")
    b(f"  v_mul_u32_u24 v12, 80, v11")
    b(f"  v_add_u32 v10, v10, v12")
    b(f"  v_and_b32 v12, 1, v7")
    b(f"  v_lshl_add_u32 v10, v12, 5, v10")
    b(f"  v_bfe_u32 v12, v7, 4, 1")
    b(f"  v_lshl_add_u32 v10, v12, 4, v10")
    b(f"  v_bfe_u32 v12, v7, 1, 1")
    b(f"  v_lshl_add_u32 v10, v12, 3, v10")
    b(f"  s_mul_i32 s{S_T+1}, s{S_W}, {4*80}")
    b(f"  s_add_u32 s{S_T+1}, s{S_T+1}, {L3_LN}")
    b(f"  v_add_u32 v10, s{S_T+1}, v10")
    for ps in range(2):
        b(f"  ds_read_b64_tr_b16 {vr(32+4*ps,2)}, v10 offset:{ps*160}")
        b(f"  ds_read_b64_tr_b16 {vr(34+4*ps,2)}, v10 offset:{ps*160 + 4*L3_RS}")
    b(f"  v_lshlrev_b32 v11, 17, v11")
    b(f"  v_and_b32 v12, 31, v7")
    b(f"  v_lshl_add_u32 v11, v12, 4, v11")
    b(f"  s_lshl_b32 s{S_T+1}, s{S_W}, 19")
    b(f"  s_lshl_b32 s{S_T+2}, s2, 9")
    b(f"  s_add_u32 s{S_T+1}, s{S_T+1}, s{S_T+2}")
    b(f"  s_add_u32 s{S_T+2}, s{S_T+1}, {2*131072}")
    b(f"  s_waitcnt lgkmcnt(2)")
    b(f"  buffer_store_dwordx4 v[32:35], v11, s[{SRD_D}:{SRD_D+3}], s{S_T+1} offen{SF}")
    b(f"  s_waitcnt lgkmcnt(0)")
    b(f"  buffer_store_dwordx4 v[36:39], v11, s[{SRD_D}:{SRD_D+3}], s{S_T+2} offen{SF}")
    stamp(b, "p3 stores issued")
    b(f"  s_and_b32 s{S_T+8}, s2, 15")
    arrive(b, 2, S_T + 8, label="x3")
    srd(b, SRD_T, P_W1, W1B)
    b(f"  s_cmp_lt_u32 s{S_W}, 4")
    b(f"  s_cbranch_scc1 p3_nodma")
    b(f"  s_cmp_eq_u32 s62, 0")
    b(f"  s_cbranch_scc1 p3_nodma")
    for n in range(2): loader_issue(b, V_LO, W1F())
    b.label("p3_nodma")

def gemm_core(b, c, pre, after_setup, after_prologue=None):
    NB, NS = c.NB, c.NS
    acc = lambda nb: V_ACC + nb * 16
    VT = V_ACC + NB * 16
    VPR = VT + 32
    c.VT, c.VPR = VT, VPR
    c.vend = VPR + 4 * PR
    tf = lambda q: VT + (q % 8) * 4
    pr = lambda j: VPR + (j % PR) * 4
    FPI = 64
    KPI = FPI // NB
    def tread(q):
        ql = q % FPI
        lslot, within = ql // 16, ql % 16
        ks, nb = within // NB, within % NB
        off = lslot * STAGE + ks * 16 * c.rowb
        b(f"  ds_read_b64_tr_b16 {vr(tf(q),2)}, v{V_T+nb} offset:{off}")
        b(f"  ds_read_b64_tr_b16 {vr(tf(q)+2,2)}, v{V_T+nb} offset:{off+4*c.rowb}")
    def pload(j):
        b(f"  buffer_load_dwordx4 {vr(pr(j),4)}, v{V_P}, s[{SRD_P}:{SRD_P+3}], s{S_POFF} offen offset:{(j%4)*1024}{LF}")
        if j % 4 == 3: b(f"  s_add_u32 s{S_POFF}, s{S_POFF}, 4096")
    def mfma(q):
        nb = q % NB; j = q // NB; a = acc(nb)
        if "m16fake" in OPT:
            o = 8 * (j % 2)
            b(f"  v_mfma_f32_16x16x32_bf16 {vr(a+o,4)}, {vr(tf(q),4)}, {vr(pr(j),4)}, {vr(a+o,4)}")
            b(f"  v_mfma_f32_16x16x32_bf16 {vr(a+o+4,4)}, {vr(pr(j),4)}, {vr(tf(q),4)}, {vr(a+o+4,4)}")
            return
        if c.name == "g1":
            b(f"  v_mfma_f32_32x32x16_bf16 {vr(a,16)}, {vr(tf(q),4)}, {vr(pr(j),4)}, {vr(a,16)}")
        else:
            b(f"  v_mfma_f32_32x32x16_bf16 {vr(a,16)}, {vr(pr(j),4)}, {vr(tf(q),4)}, {vr(a,16)}")
    b(f"  s_mov_b32 s{S_POFF}, 0")
    b(f"  s_mov_b32 s{S_DELTA}, {4*STAGE}")
    b(f"  s_mov_b32 s{S_IT}, {NS//4 - 1}")
    after_setup()
    for j in range(PR - 1): pload(j)
    if after_prologue: after_prologue()
    b("  s_barrier")
    for q in range(DQ): tread(q)
    def body(last):
        for q in range(FPI):
            j = q // NB
            qn = q + DQ
            do_read = not (last and qn >= FPI)
            do_pload = False
            if q % NB == 0:
                rem = KPI - 1 - j
                if (not last) or (j + PR - 1 < KPI):
                    b(f"  s_waitcnt vmcnt({PR-2})")
                    do_pload = True
                else:
                    b(f"  s_waitcnt vmcnt({min(PR-2, rem)})")
            if do_read and qn % 16 == 0:
                b("  s_barrier")
            if do_read and qn == FPI:
                for i in range(NB): b(f"  v_add_u32 v{V_T+i}, s{S_DELTA}, v{V_T+i}")
                b(f"  s_sub_u32 s{S_DELTA}, 0, s{S_DELTA}")
            if q % 2 == 0:
                left = min(DQ - 2, FPI - 2 - q) if last else DQ - 2
                b(f"  s_waitcnt lgkmcnt({2*left})")
            mfma(q)
            if do_pload: pload(j + PR - 1)
            if do_read: tread(qn)
    b.label(f"{pre}_loop")
    body(False)
    b(f"  s_sub_u32 s{S_IT}, s{S_IT}, 1")
    b(f"  s_cmp_lg_u32 s{S_IT}, 0")
    b(f"  s_cbranch_scc1 {pre}_loop")
    body(True)

def idle_w1(b):
    srd(b, SRD_PF, P_W1, W1B)
    b(f"  s_and_b32 s51, s50, 7")
    b(f"  s_mul_i32 s51, s51, {256*7168}")
    b(f"  s_lshr_b32 s52, s50, 3")
    b(f"  s_mul_i32 s52, s52, {4*7168}")
    b(f"  s_add_u32 s51, s51, s52")
    b(f"  s_add_u32 s51, s51, {128*7168}")
    b(f"  s_mov_b32 s52, 7")
    b.label("pf_w1b")
    for i in range(4): b(f"  buffer_load_dwordx4 {vr(V_DUMMY,4)}, v29, s[{SRD_PF}:{SRD_PF+3}], s51 offen offset:{1024*i}")
    b(f"  s_add_u32 s51, s51, 4096")
    b(f"  s_waitcnt vmcnt(4)")
    b(f"  s_sub_u32 s52, s52, 1")
    b(f"  s_cmp_lg_u32 s52, 0")
    b(f"  s_cbranch_scc1 pf_w1b")

def idle_w2(b):
    srd(b, SRD_PF, P_W2, W1B)
    b(f"  s_mul_i32 s51, s50, {W1B // 256}")
    b(f"  s_mov_b32 s52, 14")
    b.label("pf_w2")
    for i in range(4): b(f"  buffer_load_dwordx4 {vr(V_DUMMY,4)}, v29, s[{SRD_PF}:{SRD_PF+3}], s51 offen offset:{1024*i}")
    b(f"  s_add_u32 s51, s51, 4096")
    b(f"  s_waitcnt vmcnt({0 if 'idlepace' in OPT else 4})")
    b(f"  s_sub_u32 s52, s52, 1")
    b(f"  s_cmp_lg_u32 s52, 0")
    b(f"  s_cbranch_scc1 pf_w2")
    b(f"  s_waitcnt vmcnt(0)")

def g1(b):
    c = g1_cfg()
    b(f"  s_cmp_eq_u32 s62, 0")
    b(f"  s_cbranch_scc1 g1_inactive")
    srd(b, SRD_P, P_WS, 4 << 20, WS_LN2)
    srd(b, SRD_T, P_W1, W1B)
    srd(b, SRD_O, P_WS, U_BYTES, WS_U)
    srd(b, SRD_X, P_B1, 3584 * 2)
    b(f"  s_cmp_ge_u32 s{S_W}, 4")
    b(f"  s_cbranch_scc1 g1_loader")
    lane_geom(b)
    b(f"  s_lshl_b32 s{S_TMP}, s61, 2")
    b(f"  s_add_u32 s{S_TMP}, s{S_TMP}, s{S_W}            ; dblk")
    b(f"  s_lshl_b32 s{S_TMP+2}, s{S_TMP}, 17")
    b(f"  v_lshlrev_b32 v10, 4, v7")
    b(f"  v_add_u32 v{V_P}, s{S_TMP+2}, v10")
    b(f"  s_lshl_b32 s{S_TMP+1}, s60, 8       ; f0*2")
    b(f"  v_lshlrev_b32 v11, 3, v9")
    b(f"  v_add_u32 v11, s{S_TMP+1}, v11")
    BV = 192
    for fb in range(4):
        for i in range(4):
            b(f"  buffer_load_dwordx2 {vr(BV+2*(4*fb+i),2)}, v11, s[{SRD_X}:{SRD_X+3}], 0 offen offset:{64*fb+16*i}")
    b(f"  v_lshl_add_u32 v20, v9, 3, v18")
    b(f"  v_lshlrev_b32 v20, 8, v20")
    b(f"  v_lshl_add_u32 v20, v18, 6, v20")
    b(f"  v_lshl_add_u32 v20, v19, 5, v20")
    b(f"  v_lshl_add_u32 v{V_T}, v22, 3, v20")
    for fb in range(1, 4):
        b(f"  v_xor_b32 v{V_T+fb}, {64*fb}, v{V_T}")
    b(f"  s_mul_i32 s{S_TMP+2}, s{S_TMP}, 229376")
    b(f"  s_lshl_b32 s{S_TMP+1}, s60, 13")
    b(f"  s_add_u32 s{S_TMP+1}, s{S_TMP+1}, s{S_TMP+2}")
    b(f"  v_add_u32 v28, s{S_TMP+1}, v10")
    b(f"  s_waitcnt vmcnt(0)")
    for fb in range(4):
        for i in range(4):
            bv = BV + 2 * (4 * fb + i); a = V_ACC + fb * 16 + 4 * i
            b(f"  v_lshlrev_b32 v{a}, 16, v{bv}")
            b(f"  v_and_b32 v{a+1}, 0xffff0000, v{bv}")
            b(f"  v_lshlrev_b32 v{a+2}, 16, v{bv+1}")
            b(f"  v_and_b32 v{a+3}, 0xffff0000, v{bv+1}")
    def w3():
        wait(b, 2, 16, "x3c")
        stamp(b, "x3 released")
        stamp(b, "c:g1 start")
    gemm_core(b, c, "g1", w3)
    stamp(b, "c:g1 end")
    stamp(b, "g1 main done")
    K1 = -2.0 * 0.7978845608028654 * 1.4426950408889634
    K2 = K1 * 0.044715
    T = c.VPR
    b(f"  v_mov_b32 v{T}, {hex(f2u(K1))}")
    b(f"  v_mov_b32 v{T+1}, {hex(f2u(K1))}")
    b(f"  v_mov_b32 v{T+2}, {hex(f2u(K2))}")
    b(f"  v_mov_b32 v{T+3}, {hex(f2u(K2))}")
    b(f"  s_nop 7")
    W = T + 8
    for fb in range(4):
        a = V_ACC + fb * 16; t = W; o = W + 16 + 8 * (fb % 2)
        for h in range(0, 16, 2): b(f"  v_pk_mul_f32 {vr(t+h,2)}, {vr(a+h,2)}, {vr(a+h,2)}")
        for h in range(0, 16, 2): b(f"  v_pk_fma_f32 {vr(t+h,2)}, {vr(t+h,2)}, {vr(T+2,2)}, {vr(T,2)}")
        for h in range(0, 16, 2): b(f"  v_pk_mul_f32 {vr(t+h,2)}, {vr(t+h,2)}, {vr(a+h,2)}")
        for r in range(16): b(f"  v_exp_f32 v{t+r}, v{t+r}")
        for h in range(0, 16, 2): b(f"  v_pk_add_f32 {vr(t+h,2)}, {vr(t+h,2)}, 1.0 op_sel_hi:[1,0]")
        for r in range(16): b(f"  v_rcp_f32 v{t+r}, v{t+r}")
        for h in range(0, 16, 2): b(f"  v_pk_mul_f32 {vr(t+h,2)}, {vr(a+h,2)}, {vr(t+h,2)}")
        for i in range(4):
            b(f"  v_cvt_pk_bf16_f32 v{o+2*i}, v{t+4*i}, v{t+4*i+1}")
            b(f"  v_cvt_pk_bf16_f32 v{o+2*i+1}, v{t+4*i+2}, v{t+4*i+3}")
        for ip in range(2):
            oo = o + 4 * ip
            b(f"  s_mov_b32 s{S_TMP+1}, {(2*fb+ip)*1024}")
            b(f"  s_nop 0")
            b(f"  v_permlane32_swap_b32 v{oo}, v{oo+2}")
            b(f"  v_permlane32_swap_b32 v{oo+1}, v{oo+3}")
            b(f"  buffer_store_dwordx4 {vr(oo,4)}, v28, s[{SRD_O}:{SRD_O+3}], s{S_TMP+1} offen{SF}")
    stamp(b, "g1 stores issued")
    b(f"  s_waitcnt vmcnt(0)")
    b(f"  s_branch g1_join")
    b.label("g1_loader")
    b(f"  s_sub_u32 s50, s{S_W}, 4")
    b(f"  s_lshl_b32 s49, s50, 10")
    b(f"  s_add_u32 s{S_N+1}, s49, {R*STAGE}")
    b(f"  s_barrier                      ; matches the barrier inside wait(x3)")
    for n in range(R - 4): loader_issue(b, V_LO, W1F())
    loader_loop(b, c.NS, "g1", W1F())
    stamp(b, "g1 main done")
    g2_prologue_loader(b)
    stamp(b, "g1 stores issued")
    b.label("g1_join")
    if SK():
        b(f"  s_cmp_ge_u32 s60, 14")
        b(f"  s_cselect_b32 s18, 1, 0")
        b(f"  s_lshl_b32 s10, s61, 1")
        b(f"  s_add_u32 s18, s18, s10")
        arrive(b, 3, 18, label="x4", drained=True)
    else:
        arrive(b, 3, 61, label="x4", drained=True)
    b(f"  s_branch g2_start")
    b.label("g1_inactive")
    if "nopf" not in OPT:
        b(f"  s_sub_u32 s50, s2, 224")
        b(f"  s_lshl_b32 s50, s50, 3")
        b(f"  s_add_u32 s50, s50, s{S_W}")
        b(f"  v_lshlrev_b32 v29, 4, v7")
        if "noidle" not in OPT: idle_w2(b)
    b(f"  s_cmp_lt_u32 s{S_W}, 4")
    b(f"  s_cbranch_scc1 g2_start_inactive")
    g2_prologue_loader(b)
    b.label("g2_start_inactive")
    return c

def g2_prologue_loader(b):
    g2_ids(b)
    srd(b, SRD_T, P_W2, W1B)
    g2_loader_addr(b)
    loader_init(b, (64 if SK() else 128) * 4096)
    for n in range(2): loader_issue(b, V_LO, W2F())

def g2_sk(b):
    c = g1_cfg(); c.name = "g2"; c.NS = 28
    b.label("g2_start")
    g2_ids(b)
    srd(b, SRD_P, P_WS, U_BYTES, WS_U)
    srd(b, SRD_O, P_OUT, 4 << 20)
    srd(b, SRD_X, P_B2, 2048 * 2)
    srd(b, SRD_Y, P_WS, 4 << 20, WS_H)
    b(f"  s_cmp_ge_u32 s{S_W}, 4")
    b(f"  s_cbranch_scc1 g2_loader")
    lane_geom(b)
    b(f"  s_lshl_b32 s{S_TMP}, s{S_TILE_A}, 2")
    b(f"  s_add_u32 s{S_TMP}, s{S_TMP}, s{S_W}        ; dblk")
    b(f"  s_mul_i32 s{S_TMP+2}, s{S_TMP}, 229376")
    b(f"  s_mul_i32 s{S_TMP+3}, s19, {112*1024}       ; k half")
    b(f"  s_add_u32 s{S_TMP+2}, s{S_TMP+2}, s{S_TMP+3}")
    b(f"  v_lshlrev_b32 v10, 4, v7")
    b(f"  v_add_u32 v{V_P}, s{S_TMP+2}, v10")
    b(f"  s_lshl_b32 s{S_TMP+1}, s{S_TILE_B}, 7")
    b(f"  s_lshl_b32 s{S_TMP+3}, s19, 6")
    b(f"  s_add_u32 s{S_TMP+1}, s{S_TMP+1}, s{S_TMP+3}")
    b(f"  v_add_u32 v11, s{S_TMP+1}, v8              ; s0 + s'")
    b(f"  v_lshlrev_b32 v16, 1, v11")
    for sb in range(2):
        b(f"  buffer_load_ushort v{12+sb}, v16, s[{SRD_X}:{SRD_X+3}], 0 offen offset:{64*sb}")
    b(f"  v_lshlrev_b32 v17, 11, v11")
    b(f"  v_lshl_add_u32 v17, v9, 5, v17")
    b(f"  s_lshl_b32 s{S_TMP+2}, s{S_TMP}, 6")
    b(f"  v_add_u32 v28, s{S_TMP+2}, v17")
    HV = 192
    b(f"  v_lshl_add_u32 v20, v9, 3, v18")
    b(f"  v_lshlrev_b32 v20, 8, v20")
    b(f"  v_lshl_add_u32 v20, v18, 6, v20")
    b(f"  v_lshl_add_u32 v20, v19, 5, v20")
    b(f"  v_lshl_add_u32 v{V_T}, v22, 3, v20")
    for fb in range(1, 4):
        b(f"  v_xor_b32 v{V_T+fb}, {64*fb}, v{V_T}")
    b(f"  s_lshl_b32 s{S_TMP+1}, s{S_W}, 12")
    b(f"  s_lshl_b32 s{S_TMP+2}, s2, 14")
    b(f"  s_add_u32 s{S_TMP+2}, s{S_TMP+2}, s{S_TMP+1}")
    b(f"  v_add_u32 v29, s{S_TMP+2}, v10")
    b(f"  s_xor_b32 s{S_TMP+2}, s2, 1")
    b(f"  s_lshl_b32 s{S_TMP+2}, s{S_TMP+2}, 14")
    b(f"  s_add_u32 s{S_TMP+2}, s{S_TMP+2}, s{S_TMP+1}")
    b(f"  v_add_u32 v30, s{S_TMP+2}, v10")
    for i in range(64): b(f"  v_mov_b32 v{V_ACC+i}, 0")
    def w4():
        b(f"  s_lshl_b32 s18, s{S_TILE_A}, 1")
        b(f"  s_add_u32 s18, s18, s19")
        wait(b, 3, 14, "x4c", single_sreg=18)
        stamp(b, "x4 released")
        stamp(b, "c:g2 start")
    def hloads():
        for sb in range(2):
            b(f"  s_mov_b32 s{S_TMP+1}, {sb*65536}")
            b(f"  buffer_load_dwordx4 {vr(HV+8*sb,4)}, v28, s[{SRD_Y}:{SRD_Y+3}], s{S_TMP+1} offen{LF}")
            b(f"  buffer_load_dwordx4 {vr(HV+8*sb+4,4)}, v28, s[{SRD_Y}:{SRD_Y+3}], s{S_TMP+1} offen offset:16{LF}")
    gemm_core(b, c, "g2", w4, hloads)
    stamp(b, "c:g2 end")
    stamp(b, "g2 main done")
    srd(b, SRD_X, P_WS, 4 << 20, WS_XCH)
    T = c.VT
    b(f"  s_cmp_eq_u32 s19, 0")
    b(f"  s_cbranch_scc1 g2_send23")
    def pack_send(first):
        for blk in range(2):
            a = V_ACC + (first + blk) * 16
            for i in range(8):
                b(f"  v_cvt_pk_bf16_f32 v{T+8*blk+i}, v{a+2*i}, v{a+2*i+1}")
            for i in range(8):
                b(f"  v_min_u32 v{T+8*blk+i}, 0xfffffffe, v{T+8*blk+i}")
            for p in range(2):
                b(f"  buffer_store_dwordx4 {vr(T+8*blk+4*p,4)}, v30, s[{SRD_X}:{SRD_X+3}], 0 offen offset:{(2*blk+p)*1024}{SF}")
    b(f"  s_nop 7")
    pack_send(0)
    for i in range(32): b(f"  v_mov_b32 v{V_ACC+i}, v{V_ACC+32+i}")
    b(f"  s_branch g2_sent")
    b.label("g2_send23")
    b(f"  s_nop 7")
    pack_send(2)
    b.label("g2_sent")
    RX = c.VPR
    b(f"  s_mov_b32 s11, 200000")
    b.label("g2x_poll")
    for k in range(4):
        b(f"  buffer_load_dwordx4 {vr(RX+4*k,4)}, v29, s[{SRD_X}:{SRD_X+3}], 0 offen offset:{k*1024} sc1")
    b(f"  s_waitcnt vmcnt(0)")
    sentinel_check(b, RX, "g2x", n=16)
    stamp(b, "g2 x landed")
    b(f"  s_mov_b32 s{S_TMP}, 0xffff0000")
    for blk in range(2):
        for i in range(8):
            a = V_ACC + blk * 16 + 2 * i; r = RX + 8 * blk + i
            b(f"  v_lshlrev_b32 v16, 16, v{r}")
            b(f"  v_and_b32 v17, s{S_TMP}, v{r}")
            b(f"  v_add_f32 v{a}, v{a}, v16")
            b(f"  v_add_f32 v{a+1}, v{a+1}, v17")
    for sb in range(2):
        b(f"  v_lshlrev_b32 v{12+sb}, 16, v{12+sb}")
    for sb in range(2):
        for half in range(2):
            o = T + 4 * ((sb * 2 + half) % 2)
            for dd in range(4):
                a = V_ACC + sb * 16 + half * 8 + 2 * dd
                hv = HV + 8 * sb + 4 * half + dd
                t0 = T + 8 + 4 * dd
                b(f"  v_lshlrev_b32 v{t0}, 16, v{hv}")
                b(f"  v_and_b32 v{t0+1}, s{S_TMP}, v{hv}")
                b(f"  v_pk_add_f32 {vr(t0,2)}, {vr(t0,2)}, {vr(a,2)}")
                b(f"  v_add_f32 v{t0}, v{t0}, v{12+sb}")
                b(f"  v_add_f32 v{t0+1}, v{t0+1}, v{12+sb}")
                b(f"  v_cvt_pk_bf16_f32 v{o+dd}, v{t0}, v{t0+1}")
            b(f"  s_mov_b32 s{S_TMP+1}, {sb*65536}")
            b(f"  buffer_store_dwordx4 {vr(o,4)}, v28, s[{SRD_O}:{SRD_O+3}], s{S_TMP+1} offen offset:{16*half}")
    stamp(b, "g2 stores issued")
    b(f"  s_branch g2_done")
    b.label("g2_loader")
    b(f"  s_barrier                      ; matches the barrier inside wait(x4)")
    for n in range(R - 4): loader_issue(b, V_LO, W2F())
    loader_loop(b, c.NS, "g2", W2F())
    b.label("g2_done")

def g2(b):
    if SK(): return g2_sk(b)
    c = g2_cfg()
    b.label("g2_start")
    g2_ids(b)
    srd(b, SRD_P, P_WS, U_BYTES, WS_U)
    srd(b, SRD_O, P_OUT, 4 << 20)
    srd(b, SRD_X, P_B2, 2048 * 2)
    srd(b, SRD_Y, P_WS, 4 << 20, WS_H)
    b(f"  s_cmp_ge_u32 s{S_W}, 4")
    b(f"  s_cbranch_scc1 g2_loader")
    lane_geom(b)
    b(f"  s_lshl_b32 s{S_TMP}, s{S_TILE_A}, 2")
    b(f"  s_add_u32 s{S_TMP}, s{S_TMP}, s{S_W}        ; dblk")
    b(f"  s_mul_i32 s{S_TMP+2}, s{S_TMP}, 229376")
    b(f"  v_lshlrev_b32 v10, 4, v7")
    b(f"  v_add_u32 v{V_P}, s{S_TMP+2}, v10")
    b(f"  s_lshl_b32 s{S_TMP+1}, s{S_TILE_B}, 6       ; s0")
    b(f"  v_add_u32 v11, s{S_TMP+1}, v8              ; s0 + s'")
    b(f"  v_lshlrev_b32 v16, 1, v11")
    for sb in range(2):
        b(f"  buffer_load_ushort v{12+sb}, v16, s[{SRD_X}:{SRD_X+3}], 0 offen offset:{64*sb}")
    b(f"  v_lshlrev_b32 v17, 11, v11")
    b(f"  v_lshl_add_u32 v17, v9, 5, v17")
    b(f"  s_lshl_b32 s{S_TMP+2}, s{S_TMP}, 6")
    b(f"  v_add_u32 v28, s{S_TMP+2}, v17")
    HV = 160
    b(f"  v_lshl_add_u32 v20, v9, 3, v18            ; row")
    b(f"  v_bfe_u32 v21, v18, 1, 1")
    b(f"  v_lshlrev_b32 v20, 7, v20")
    b(f"  v_lshl_add_u32 v20, v21, 6, v20")
    b(f"  v_lshl_add_u32 v20, v19, 5, v20")
    b(f"  v_lshl_add_u32 v{V_T}, v22, 3, v20")
    b(f"  v_xor_b32 v{V_T+1}, 64, v{V_T}")
    for i in range(32): b(f"  v_mov_b32 v{V_ACC+i}, 0")
    def w4():
        wait(b, 3, 28, "x4c", single_sreg=S_TILE_A)
        stamp(b, "x4 released")
        stamp(b, "c:g2 start")
    def hloads():
        for sb in range(2):
            b(f"  s_mov_b32 s{S_TMP+1}, {sb*65536}")
            b(f"  buffer_load_dwordx4 {vr(HV+8*sb,4)}, v28, s[{SRD_Y}:{SRD_Y+3}], s{S_TMP+1} offen{LF}")
            b(f"  buffer_load_dwordx4 {vr(HV+8*sb+4,4)}, v28, s[{SRD_Y}:{SRD_Y+3}], s{S_TMP+1} offen offset:16{LF}")
    gemm_core(b, c, "g2", w4, hloads)
    stamp(b, "c:g2 end")
    stamp(b, "g2 main done")
    T = c.VT
    b(f"  s_mov_b32 s{S_TMP}, 0xffff0000")
    for sb in range(2):
        b(f"  v_lshlrev_b32 v{12+sb}, 16, v{12+sb}")
    b(f"  s_nop 9")
    for sb in range(2):
        for half in range(2):
            o = T + 4 * ((sb * 2 + half) % 2)
            for dd in range(4):
                a = V_ACC + sb * 16 + half * 8 + 2 * dd
                hv = HV + 8 * sb + 4 * half + dd
                t0 = T + 8 + 4 * dd
                b(f"  v_cvt_pk_bf16_f32 v{t0}, v{a}, v{a+1}")
                b(f"  v_and_b32 v{t0+1}, s{S_TMP}, v{t0}")
                b(f"  v_lshlrev_b32 v{t0}, 16, v{t0}")
                b(f"  v_add_f32 v{t0}, v{t0}, v{12+sb}")
                b(f"  v_add_f32 v{t0+1}, v{t0+1}, v{12+sb}")
                b(f"  v_cvt_pk_bf16_f32 v{t0}, v{t0}, v{t0+1}")
                b(f"  v_and_b32 v{t0+1}, s{S_TMP}, v{t0}")
                b(f"  v_lshlrev_b32 v{t0}, 16, v{t0}")
                b(f"  v_lshlrev_b32 v{t0+2}, 16, v{hv}")
                b(f"  v_and_b32 v{t0+3}, s{S_TMP}, v{hv}")
                b(f"  v_add_f32 v{t0}, v{t0}, v{t0+2}")
                b(f"  v_add_f32 v{t0+1}, v{t0+1}, v{t0+3}")
                b(f"  v_cvt_pk_bf16_f32 v{o+dd}, v{t0}, v{t0+1}")
            b(f"  s_mov_b32 s{S_TMP+1}, {sb*65536}")
            b(f"  buffer_store_dwordx4 {vr(o,4)}, v28, s[{SRD_O}:{SRD_O+3}], s{S_TMP+1} offen offset:{16*half}")
    stamp(b, "g2 stores issued")
    b(f"  s_branch g2_done")
    b.label("g2_loader")
    b(f"  s_barrier                      ; matches the barrier inside wait(x4)")
    for n in range(R - 4): loader_issue(b, V_LO, W2F())
    loader_loop(b, c.NS, "g2", W2F())
    b.label("g2_done")

def build():
    NAME = "sequential_preLN__spectral_gfnet__mixer_token_mlp__prompt"
    hdr = open(f"cdna_kernels/{NAME}.s.ref").read().split("; Override launch")[0]
    K = NAME + "_kernel"
    b = B()
    b(hdr.rstrip("\n"))
    b(f"; @launch grid=(256,1,1) block=(512,1,1) lds={LDS_TOTAL}")
    b('.amdgcn_target "amdgcn-amd-amdhsa--gfx950"\n.text')
    b(f".globl {K}\n.p2align 8\n.type {K},@function\n{K}:")
    b(f"  s_cmp_ge_u32 s2, 256\n  s_cbranch_scc1 k_exit")
    if "stamp" in OPT: b("  v_mov_b32 v231, 0")
    stamp(b, "entry")
    b(f"  s_load_dwordx4 s[{P_X}:{P_X+3}], s[0:1], 0        ; x, w_r")
    b(f"  s_load_dwordx2 s[{P_WI}:{P_WI+1}], s[0:1], 16")
    b(f"  s_load_dwordx2 s[{P_W1}:{P_W1+1}], s[0:1], 32")
    b(f"  s_load_dwordx4 s[{P_B1}:{P_B1+3}], s[0:1], 40     ; b1, w2")
    b(f"  s_load_dwordx4 s[{P_B2}:{P_B2+3}], s[0:1], 56     ; b2, out")
    b(f"  s_load_dwordx4 s[{P_DBG}:{P_DBG+3}], s[0:1], 72")
    b(f"  v_lshrrev_b32 v6, 6, v0")
    b(f"  v_and_b32 v7, 63, v0        ; lane")
    b(f"  v_readfirstlane_b32 s{S_W}, v6")
    b(f"  v_and_b32 v8, 15, v7          ; c")
    b(f"  v_lshrrev_b32 v9, 4, v7       ; g")
    b(f"  s_waitcnt lgkmcnt(0)")
    srd(b, SRD_CNT, P_WS, 65536, WS_CNT)
    p1(b)
    p2_setup(b)
    wait(b, 0, 16, "x1c")
    stamp(b, "x1 released")
    p2_main(b)
    p3_setup(b)
    if SENT(): b("  s_barrier")
    else: wait(b, 1, 16, "x2c")
    stamp(b, "x2 released")
    p3_main(b)
    g1(b)
    g2(b)
    b(f"  s_waitcnt vmcnt(0)")
    stamp(b, "end")
    stamp_flush(b)
    b("k_exit:\n  s_endpgm")
    b(kd(K, 240, sgpr=102))
    return b.text()

if __name__ == "__main__":
    out = sys.argv[1]
    OPT.update(sys.argv[2:])
    for o in sys.argv[2:]:
        if o.startswith("pfn="): PFN[:] = [int(c) for c in o[4:].split(",")]
    gemm.OPT.update(sys.argv[2:])
    t = build()
    open(out, "w").write(t)
    rep = check_text(t)
    print("\n".join(rep) if rep else "no hazards found", "| stamps:", nstamp[0])
```

```python
import sys
from asmlib import *
import gemm, fft
from gemm import (srd, f2u, WS_X1, WS_X2, WS_H, WS_LN2, WS_U, U_BYTES, S_W, R, STAGE, PR, DQ,
                  V_P, V_T, V_ACC, S_POFF, S_IT, S_DELTA, SRD_P, SRD_T, SRD_O, SRD_X, SRD_Y, S_TILE_A, S_TILE_B, S_TMP,
                  g1_cfg, g2_cfg, lane_geom)
from fft import sincos, wave_reduce, ln_finish, layernorm16, cmul_pk, gmat, MF32, MF16

OPT = set()
N7 = [0]
PFN = [0, 4, 0, 4]
WS_CNT = 30 << 20
WS_STAMP = 31 << 20
WS_XCH = 24 << 20
W1B = 2048 * 3584 * 2
WB = 2048 * 1026

P_X, P_WR, P_WI, P_W1, P_B1, P_W2, P_B2, P_OUT, P_DBG, P_WS = 64, 66, 68, 70, 72, 74, 76, 78, 80, 82
SRD_CNT = 12
S_T = 46
SRD_A, SRD_B, SRD_C, SRD_D = 24, 28, 32, 36
SRD_PF = 56
S_STAMP = 84
SF = " sc1"
LF = ""

L1_M1, L1_M2, L1_TW, L1_EX = 0, 4096, 8192, 16384
L2_F = 32768; L2_X = L2_F + 2048; L2_W = L2_X + 16 * 1040
L3_M3 = 98304; L3_M4 = L3_M3 + 4096; L3_TW = L3_M3 + 8192; L3_EX = L3_M3 + 16384
L3_LN = L3_EX + 16384; L3_RS = 2624
LDS_TOTAL = L3_LN + 8 * L3_RS
assert LDS_TOTAL <= 163840

STAMPS = ["entry", "p1 x landed", "p1 stores issued", "p1 arrived", "x1 released", "p2 x landed", "p2 stores issued",
          "x2 released", "p3 x2 landed", "p3 stores issued", "x3 released", "g1 main done", "g1 stores issued", "x4 released",
          "g2 main done", "g2 stores issued", "end", "x1 drained", "x2 drained", "x3 drained", "x4 drained", "p1 tables done", "p1 ln done", "p1 fft done", "p3 ifft done", "p3 ln done", "c:g1 start", "c:g1 end", "c:g2 start", "c:g2 end", "g2 x landed"]
nstamp = [len(STAMPS)]
SENT = lambda: "bar" not in OPT
SK = lambda: "nosk" not in OPT
W1F = lambda: " nt" if "ntw1" in OPT else ""
W2F = lambda: " nt" if "ntw2" in OPT else ""
XF = lambda: " nt" if "ntx" in OPT else ""
def stamp(b, name):
    if "stamp" not in OPT: return
    i = STAMPS.index(name)
    op = "s_memtime" if name.startswith("c:") else "s_memrealtime"
    b(f"  {op} s[{S_STAMP}:{S_STAMP+1}]   ; stamp {i}: {name}")
    b(f"  s_waitcnt lgkmcnt(0)")
    b(f"  v_writelane_b32 v231, s{S_STAMP}, {i}")

def stamp_flush(b):
    if "stamp" not in OPT: return
    if "dbgmax" in OPT:
        b(f"  s_cmp_lg_u32 s{S_W}, 0")
        b(f"  s_cbranch_scc1 dbg_skip")
        srd(b, 24, P_DBG, 256)
        b(f"  v_readlane_b32 s46, v231, 0")
        b(f"  s_sub_u32 s47, 0, s46")
        b(f"  v_mov_b32 v3, v231")
        b(f"  v_writelane_b32 v3, s47, 0")
        b(f"  v_writelane_b32 v3, s46, 15")
        b(f"  v_lshlrev_b32 v2, 2, v7")
        b(f"  s_mov_b64 s[48:49], exec")
        b(f"  s_mov_b64 exec, 0xffff")
        b(f"  buffer_atomic_umax v3, v2, s[24:27], 0 offen sc1")
        b(f"  s_mov_b64 exec, s[48:49]")
        b.label("dbg_skip")
        return
    if "dbgtime" in OPT:
        b(f"  s_cmp_lg_u32 s2, 100")
        b(f"  s_cbranch_scc1 dbg_skip")
        b(f"  s_cmp_lg_u32 s{S_W}, 0")
        b(f"  s_cbranch_scc1 dbg_skip")
        srd(b, 24, P_DBG, 256)
        b(f"  v_readlane_b32 s46, v231, 0")
        b(f"  s_nop 1")
        b(f"  v_subrev_u32 v3, s46, v231")
        b(f"  v_lshlrev_b32 v2, 2, v7")
        b(f"  v_subrev_u32 v2, 4, v2")
        b(f"  s_mov_b64 s[48:49], exec")
        b(f"  s_mov_b64 exec, 0x1fffe")
        b(f"  buffer_store_dword v3, v2, s[24:27], 0 offen")
        b(f"  s_mov_b64 exec, s[48:49]")
        b.label("dbg_skip")
        return
    srd(b, 24, P_WS, 1 << 20, WS_STAMP)
    b(f"  s_lshl_b32 s46, s2, 3")
    b(f"  s_add_u32 s46, s46, s{S_W}")
    b(f"  s_lshl_b32 s46, s46, 7            ; (wg*8+wave)*128")
    b(f"  v_lshlrev_b32 v2, 2, v7")
    b(f"  s_mov_b64 s[48:49], exec")
    b(f"  s_mov_b64 exec, 0xffffffff")
    b(f"  buffer_store_dword v231, v2, s[24:27], s46 offen")
    b(f"  s_mov_b64 exec, s[48:49]")

def arrive(b, bar, shard_sreg, first=False, label="", drained=False):
    if not drained: b(f"  s_waitcnt vmcnt(0)")
    stamp(b, f"x{bar+1} drained")
    b(f"  s_barrier")
    b(f"  s_cmp_lg_u32 s{S_W}, 0")
    b(f"  s_cbranch_scc1 {label}_arr_skip")
    if first:
        b(f"  s_mov_b32 s11, 100000")
        b.label(f"{label}_rdy")
        b(f"  v_cmp_ne_u32 vcc, 0, v27")
        b(f"  s_nop 1")
        b(f"  s_cmp_eq_u64 vcc, exec")
        b(f"  s_cbranch_scc1 {label}_rdy_ok")
        b(f"  buffer_load_dword v27, v26, s[{SRD_PF}:{SRD_PF+3}], 0 offen sc1")
        b(f"  s_waitcnt vmcnt(0)")
        b(f"  s_sub_u32 s11, s11, 1")
        b(f"  s_cmp_lg_u32 s11, 0")
        b(f"  s_cbranch_scc1 {label}_rdy")
        b.label(f"{label}_rdy_ok")
    b(f"  s_lshl_b32 s10, s{shard_sreg}, 8")
    b(f"  s_add_u32 s10, s10, {bar*4096}")
    b(f"  v_mov_b32 v228, s10")
    b(f"  v_mov_b32 v229, 1")
    b(f"  s_mov_b64 s[16:17], exec")
    b(f"  s_mov_b64 exec, 1")
    b(f"  buffer_atomic_add v229, v228, s[{SRD_CNT}:{SRD_CNT+3}], 0 offen sc1")
    b(f"  s_mov_b64 exec, s[16:17]")
    b.label(f"{label}_arr_skip")

def wait(b, bar, target, label, single_sreg=None):
    b(f"  s_cmp_lg_u32 s{S_W}, 0")
    b(f"  s_cbranch_scc1 {label}_w_skip")
    if single_sreg is None:
        b(f"  v_and_b32 v228, 15, v7")
        b(f"  v_lshlrev_b32 v228, 8, v228")
        b(f"  v_add_u32 v228, {bar*4096}, v228")
    else:
        b(f"  s_lshl_b32 s10, s{single_sreg}, 8")
        b(f"  s_add_u32 s10, s10, {bar*4096}")
        b(f"  v_mov_b32 v228, s10")
    b(f"  s_mov_b32 s11, 200000")
    b.label(f"{label}_poll")
    b(f"  buffer_load_dword v229, v228, s[{SRD_CNT}:{SRD_CNT+3}], 0 offen sc1")
    b(f"  s_waitcnt vmcnt(0)")
    b(f"  v_cmp_le_u32 vcc, {target}, v229")
    b(f"  s_nop 1")
    b(f"  s_cmp_eq_u64 vcc, exec")
    b(f"  s_cbranch_scc1 {label}_w_skip")
    b(f"  s_sub_u32 s11, s11, 1")
    b(f"  s_cmp_lg_u32 s11, 0")
    b(f"  s_cbranch_scc1 {label}_poll")
    b.label(f"{label}_w_skip")
    b(f"  s_barrier")

def prefetch(b, ptr_pair, nbytes, start, length, who_scale, who_sreg, vaddr, vdst, stmp, paced=False):
    chunk = -(-length // who_scale)
    n_per_wave = -(-chunk // (512 * 128))
    stride = -(-chunk // (512 * n_per_wave))
    stride = (stride + 3) // 4 * 4
    per_instr = 64 * stride
    srd(b, SRD_PF, ptr_pair, nbytes)
    b(f"  s_mul_i32 s{stmp}, s{who_sreg}, {chunk}")
    b(f"  s_mul_i32 s{stmp+1}, s{S_W}, {n_per_wave*per_instr}")
    b(f"  s_add_u32 s{stmp}, s{stmp}, s{stmp+1}")
    if start: b(f"  s_add_u32 s{stmp}, s{stmp}, {start}")
    b(f"  v_mul_u32_u24 v{vaddr}, {stride}, v7")
    for i in range(n_per_wave):
        b(f"  buffer_load_dword v{vdst}, v{vaddr}, s[{SRD_PF}:{SRD_PF+3}], s{stmp} offen")
        if i + 1 < n_per_wave: b(f"  s_add_u32 s{stmp}, s{stmp}, {per_instr}")
        if paced: b(f"  s_waitcnt vmcnt(0)")
    return n_per_wave

V_DUMMY = 232
def pf_wide(b, ptr_pair, nbytes, s_base, n, wave_lo, wave_hi, label):
    b(f"  s_cmp_lt_u32 s{S_W}, {wave_lo}")
    b(f"  s_cbranch_scc1 {label}")
    if wave_hi < 8:
        b(f"  s_cmp_ge_u32 s{S_W}, {wave_hi}")
        b(f"  s_cbranch_scc1 {label}")
    srd(b, SRD_PF, ptr_pair, nbytes)
    b(f"  s_sub_u32 s{S_T+9}, s{S_W}, {wave_lo}")
    b(f"  s_mul_i32 s{S_T+9}, s{S_T+9}, {n*1024}")
    b(f"  s_add_u32 s{S_T+9}, s{S_T+9}, s{s_base}")
    b(f"  v_lshlrev_b32 v29, 4, v7")
    for i in range(n):
        if i and i % 4 == 0: b(f"  s_add_u32 s{S_T+9}, s{S_T+9}, 4096")
        b(f"  buffer_load_dwordx4 {vr(V_DUMMY,4)}, v29, s[{SRD_PF}:{SRD_PF+3}], s{S_T+9} offen offset:{(i%4)*1024}")
    b.label(label)

def w1_share_base(b, sreg, part):
    b(f"  s_mul_i32 s{sreg}, s2, {W1B // 256}")
    if part: b(f"  s_add_u32 s{sreg}, s{sreg}, {part}")

def w1_first_half_base(b, sreg, part):
    b(f"  s_and_b32 s{sreg}, s2, 7")
    b(f"  s_mul_i32 s{sreg}, s{sreg}, {256*7168}")
    b(f"  s_lshr_b32 s{S_T+9}, s2, 3")
    b(f"  s_mul_i32 s{S_T+9}, s{S_T+9}, {4*7168}")
    b(f"  s_add_u32 s{sreg}, s{sreg}, s{S_T+9}")
    if part: b(f"  s_add_u32 s{sreg}, s{sreg}, {part}")

def p1_tables(b):
    M1, M2, TW = L1_M1, L1_M2, L1_TW
    b(f"  v_and_b32 v10, 255, v0            ; e")
    b(f"  v_lshrrev_b32 v11, 8, v0          ; u")
    b(f"  v_bfe_u32 v12, v10, 2, 4          ; lane&15")
    b(f"  v_lshl_add_u32 v12, v11, 4, v12   ; k1")
    b(f"  v_lshrrev_b32 v13, 6, v10         ; g")
    b(f"  v_and_b32 v14, 3, v10")
    b(f"  v_lshlrev_b32 v13, 3, v13")
    b(f"  v_lshl_add_u32 v13, v14, 1, v13   ; a0 = 8g + 2i")
    b(f"  v_mul_u32_u24 v15, v13, v12       ; a0*k1")
    b(f"  v_add_u32 v16, v15, v12           ; (a0+1)*k1")
    sincos(b, 17, 18, 15, 5, 21)
    sincos(b, 19, 20, 16, 5, 21)
    b(f"  v_lshlrev_b32 v22, 2, v10")
    b(f"  v_lshl_add_u32 v22, v11, 11, v22  ; u*2048 + e*4")
    b(f"  v_cvt_pk_bf16_f32 v23, v17, v19")
    b(f"  v_cvt_pk_bf16_f32 v24, -v18, -v20")
    b(f"  ds_write_b32 v22, v23 offset:{M1}")
    b(f"  ds_write_b32 v22, v24 offset:{M1+1024}")
    sincos(b, 17, 18, 15, 10, 21)
    sincos(b, 19, 20, 16, 10, 21)
    b(f"  ds_write_b32 v22, v17 offset:{TW}")
    b(f"  ds_write_b32 v22, v18 offset:{TW+1024}")
    b(f"  ds_write_b32 v22, v19 offset:{TW+4096}")
    b(f"  ds_write_b32 v22, v20 offset:{TW+4096+1024}")
    b(f"  v_bfe_u32 v12, v10, 2, 4          ; k2")
    b(f"  v_mul_u32_u24 v15, v13, v12")
    b(f"  v_add_u32 v16, v15, v12")
    sincos(b, 17, 18, 15, 5, 21)
    sincos(b, 19, 20, 16, 5, 21)
    b(f"  v_lshlrev_b32 v22, 2, v10")
    b(f"  v_cvt_pk_bf16_f32 v23, v17, v19")
    b(f"  v_cvt_pk_bf16_f32 v24, v18, v20")
    b(f"  v_cvt_pk_bf16_f32 v25, -v18, -v20")
    b(f"  ds_write_b32 v22, v23 offset:{M2}")
    b(f"  ds_write_b32 v22, v24 offset:{M2+1024}")
    b(f"  ds_write_b32 v22, v25 offset:{M2+2048}")

def ln_fast(b, X, T, S0, alt):
    b(f"  v_readlane_b32 s{S0}, v{X}, 0              ; pivot")
    b(f"  s_nop 1")
    for i in range(0, 16, 2):
        b(f"  v_pk_add_f32 {vr(X+i,2)}, {vr(X+i,2)}, s[{S0}:{S0+1}] op_sel_hi:[1,0] neg_lo:[0,1] neg_hi:[0,1]")
    b(f"  v_pk_add_f32 {vr(T,2)}, {vr(X,2)}, {vr(X+2,2)}")
    b(f"  v_pk_add_f32 {vr(T+2,2)}, {vr(X+8,2)}, {vr(X+10,2)}")
    b(f"  v_pk_mul_f32 {vr(T+4,2)}, {vr(X,2)}, {vr(X,2)}")
    b(f"  v_pk_add_f32 {vr(T,2)}, {vr(T,2)}, {vr(X+4,2)}")
    b(f"  v_pk_add_f32 {vr(T+2,2)}, {vr(T+2,2)}, {vr(X+12,2)}")
    b(f"  v_pk_fma_f32 {vr(T+4,2)}, {vr(X+2,2)}, {vr(X+2,2)}, {vr(T+4,2)}")
    b(f"  v_pk_add_f32 {vr(T,2)}, {vr(T,2)}, {vr(X+6,2)}")
    b(f"  v_pk_add_f32 {vr(T+2,2)}, {vr(T+2,2)}, {vr(X+14,2)}")
    for i in range(4, 16, 2):
        b(f"  v_pk_fma_f32 {vr(T+4,2)}, {vr(X+i,2)}, {vr(X+i,2)}, {vr(T+4,2)}")
    b(f"  v_add_f32 v{T}, v{T}, v{T+1}")
    b(f"  v_add_f32 v{T+2}, v{T+2}, v{T+3}")
    if not alt: b(f"  v_add_f32 v{T}, v{T}, v{T+2}")
    b(f"  v_add_f32 v{T+4}, v{T+4}, v{T+5}           ; squares")
    if alt:
        wave_reduce(b, [T, T+2, T+4])
        b(f"  v_sub_f32 v{T+1}, v{T}, v{T+2}             ; E - O")
        b(f"  v_add_f32 v{T}, v{T}, v{T+2}")
        b(f"  s_nop 0")
        b(f"  v_readlane_b32 s{S0+2}, v{T}, 63")
        b(f"  v_readlane_b32 s{S0+3}, v{T+4}, 63")
        b(f"  v_readlane_b32 s{S0+4}, v{T+1}, 63")
    else:
        wave_reduce(b, [T, T+4])
        b(f"  s_nop 0")
        b(f"  v_readlane_b32 s{S0+2}, v{T}, 63")
        b(f"  v_readlane_b32 s{S0+3}, v{T+4}, 63")
    b(f"  s_nop 0")
    b(f"  v_mov_b32 v{T}, {hex(f2u(1.0/1024))}")
    b(f"  v_mul_f32 v{T+1}, s{S0+2}, v{T}")
    b(f"  v_mul_f32 v{T+2}, s{S0+3}, v{T}")
    b(f"  v_fma_f32 v{T+2}, -v{T+1}, v{T+1}, v{T+2}  ; variance")
    b(f"  v_max_f32 v{T+2}, 0, v{T+2}")
    b(f"  v_add_f32 v{T+2}, {hex(f2u(1e-5))}, v{T+2}")
    b(f"  v_rsq_f32 v{T+4}, v{T+2}")
    b(f"  s_nop 0")
    b(f"  v_mul_f32 v{T+8}, -v{T+1}, v{T+4}          ; -mean*rstd")
    if alt: b(f"  v_mul_f32 v{T+6}, s{S0+4}, v{T+4}")
    for i in range(0, 16, 2):
        b(f"  v_pk_fma_f32 {vr(X+i,2)}, {vr(X+i,2)}, {vr(T+4,2)}, {vr(T+8,2)} op_sel_hi:[1,0,0]")

def x1_store_addr(b):
    b(f"  v_lshlrev_b32 v5, 15, v9")
    b(f"  v_lshl_add_u32 v5, v8, 2, v5")
    b(f"  s_and_b32 s{S_T+6}, s2, 15")
    b(f"  s_lshl_b32 s{S_T+6}, s{S_T+6}, 4")
    b(f"  s_lshr_b32 s{S_T+7}, s2, 4")
    b(f"  s_add_u32 s{S_T+6}, s{S_T+6}, s{S_T+7}")
    b(f"  s_lshl_b32 s{S_T+6}, s{S_T+6}, 6       ; pos*64")
    b(f"  s_lshl_b32 s{S_T+7}, s{S_W}, 19        ; 4w*131072")
    b(f"  s_add_u32 s44, s{S_T+6}, s{S_T+7}")

def w_early(b):
    srd(b, SRD_C, P_WR, WB)
    srd(b, SRD_D, P_WI, WB)
    b(f"  s_and_b32 s{S_T+2}, s2, 7              ; j1")
    b(f"  v_and_b32 v215, 1, v0                ; half")
    b(f"  v_bfe_u32 v11, v0, 5, 4              ; c")
    b(f"  v_bfe_u32 v12, v0, 1, 4              ; e")
    b(f"  v_lshl_add_u32 v13, v12, 4, v11      ; j2")
    b(f"  v_lshlrev_b32 v13, 3, v13")
    b(f"  v_add_u32 v13, s{S_T+2}, v13         ; j")
    b(f"  v_mul_u32_u24 v214, 1026, v13")
    b(f"  v_lshl_add_u32 v14, v215, 4, v214")
    b(f"  s_lshr_b32 s{S_T+3}, s2, 3           ; kb")
    b(f"  s_lshl_b32 s{S_T+3}, s{S_T+3}, 5")
    b(f"  buffer_load_dwordx4 {vr(WE,4)}, v14, s[{SRD_C}:{SRD_C+3}], s{S_T+3} offen{XF()}")
    b(f"  buffer_load_dwordx4 {vr(WE+4,4)}, v14, s[{SRD_D}:{SRD_D+3}], s{S_T+3} offen{XF()}")

def p1(b):
    srd(b, SRD_A, P_X, 4 << 20)
    srd(b, SRD_B, P_WS, 4 << 20, WS_X1)
    b(f"  s_lshl_b32 s{S_T}, s{S_W}, 8")
    b(f"  s_add_u32 s{S_T}, s{S_T}, s2          ; s")
    b(f"  s_lshl_b32 s{S_T+1}, s{S_T}, 11")
    b(f"  v_lshlrev_b32 v1, 9, v9")
    b(f"  v_lshl_add_u32 v1, v8, 2, v1")
    XD = 32
    b(f"  s_cmp_ge_u32 s2, 16")
    b(f"  s_cbranch_scc1 p1_noreset")
    b(f"  s_cmp_lg_u32 s{S_W}, 0")
    b(f"  s_cbranch_scc1 p1_noreset")
    b(f"  s_lshl_b32 s{S_T+2}, s2, 8")
    b(f"  v_lshlrev_b32 v2, 12, v7")
    b(f"  v_add_u32 v2, s{S_T+2}, v2")
    b(f"  v_mov_b32 v3, 0")
    b(f"  s_mov_b64 s[48:49], exec")
    b(f"  s_mov_b64 exec, 15")
    b(f"  buffer_store_dword v3, v2, s[{SRD_CNT}:{SRD_CNT+3}], 0 offen sc1")
    b(f"  s_mov_b64 exec, s[48:49]")
    b.label("p1_noreset")
    for i in range(8):
        b(f"  buffer_load_dword v{XD+i}, v1, s[{SRD_A}:{SRD_A+3}], s{S_T+1} offen offset:{64*i}{XF()}")
    NCLR = 0
    NWE = 0
    x1_store_addr(b)
    if SENT():
        b(f"  v_mov_b32 v60, -1")
        b(f"  v_mov_b32 v61, -1")
        b(f"  v_mov_b32 v62, -1")
        b(f"  v_mov_b32 v63, -1")
        b(f"  v_bfe_u32 v2, v7, 2, 3              ; j1")
        b(f"  v_lshrrev_b32 v3, 5, v7             ; i (0,1)")
        b(f"  v_lshlrev_b32 v2, 14, v2")
        b(f"  v_lshl_add_u32 v2, v3, 17, v2")
        b(f"  v_and_b32 v3, 3, v7")
        b(f"  v_lshl_add_u32 v2, v3, 4, v2")
        b(f"  buffer_store_dwordx4 v[60:63], v2, s[{SRD_B}:{SRD_B+3}], s44 offen{SF}")
        b(f"  s_add_u32 s{S_T+7}, s44, {2*131072}")
        b(f"  buffer_store_dwordx4 v[60:63], v2, s[{SRD_B}:{SRD_B+3}], s{S_T+7} offen{SF}")
        NCLR = 2
    if "tlbw" in OPT:
        b(f"  s_cmp_lg_u32 s{S_W}, 7")
        b(f"  s_cbranch_scc1 p1_notlb")
        sh = 20 if "tlb1m" in OPT else (19 if "tlb512k" in OPT else 21)
        b(f"  v_lshlrev_b32 v2, {sh}, v7")
        lst = [(P_WS, 32 << 20), (P_W1, W1B), (P_W2, W1B), (P_WR, WB), (P_WI, WB), (P_OUT, 4 << 20), (P_B1, 7168), (P_B2, 4096)]
        for ptr, size in lst:
            srd(b, SRD_PF, ptr, size)
            b(f"  s_mov_b64 s[16:17], exec")
            n = min(64, -(-size // (1 << sh)))
            b(f"  s_mov_b64 exec, {hex((1 << n) - 1)}")
            b(f"  buffer_load_dword v230, v2, s[{SRD_PF}:{SRD_PF+3}], 0 offen")
            b(f"  s_mov_b64 exec, s[16:17]")
        if "pf7" in OPT:
            n7 = 0
            if "wpf" in OPT:
                b(f"  s_mul_i32 s{S_T+8}, s2, 8208")
                b(f"  v_lshlrev_b32 v29, 4, v7")
                for ptr in (P_WR, P_WI):
                    srd(b, SRD_PF, ptr, WB)
                    b(f"  s_mov_b32 s{S_T+9}, s{S_T+8}")
                    for i in range(9):
                        if i and i % 4 == 0: b(f"  s_add_u32 s{S_T+9}, s{S_T+9}, 4096")
                        b(f"  buffer_load_dwordx4 {vr(V_DUMMY,4)}, v29, s[{SRD_PF}:{SRD_PF+3}], s{S_T+9} offen offset:{(i%4)*1024}")
                        n7 += 1
            if PFN[0]:
                w1_share_base(b, S_T + 9, 0)
                b(f"  v_lshlrev_b32 v29, 4, v7")
                srd(b, SRD_PF, P_W1, W1B)
                for i in range(4 * PFN[0]):
                    if i and i % 4 == 0: b(f"  s_add_u32 s{S_T+9}, s{S_T+9}, 4096")
                    b(f"  buffer_load_dwordx4 {vr(V_DUMMY,4)}, v29, s[{SRD_PF}:{SRD_PF+3}], s{S_T+9} offen offset:{(i%4)*1024}")
                    n7 += 1
            N7[0] = n7
        b.label("p1_notlb")
    if "wearly" in OPT:
        w_early(b); NCLR += 2
    npf = 0
    p1_tables(b)
    GM = 30
    gmat(b, GM, 2, False, 10)
    srd(b, SRD_PF, P_DBG, 256)
    b(f"  s_and_b32 s{S_T+8}, s2, 15")
    b(f"  s_lshl_b32 s{S_T+9}, s{S_T+8}, 2")
    b(f"  s_add_u32 s{S_T+9}, s{S_T+9}, 64")
    b(f"  v_mov_b32 v25, s{S_T+9}")
    b(f"  v_lshlrev_b32 v26, 2, v8")
    b(f"  v_add_u32 v26, 64, v26")
    b(f"  s_cmp_ge_u32 s2, 16")
    b(f"  s_cbranch_scc1 p1_noflag")
    b(f"  s_cmp_lg_u32 s{S_W}, 0")
    b(f"  s_cbranch_scc1 p1_noflag")
    b(f"  s_waitcnt vmcnt({8} + 0)".replace(" + 0", "") if NCLR == 0 else f"  s_waitcnt vmcnt({8 + NCLR})")
    b(f"  v_mov_b32 v3, 1")
    b(f"  s_mov_b64 s[48:49], exec")
    b(f"  s_mov_b64 exec, 1")
    b(f"  buffer_store_dword v3, v25, s[{SRD_PF}:{SRD_PF+3}], 0 offen sc1")
    b(f"  s_mov_b64 exec, s[48:49]")
    b.label("p1_noflag")
    b(f"  s_waitcnt lgkmcnt(0)")
    stamp(b, "p1 tables done")
    b(f"  s_barrier")
    npf = 0
    if "nopf" not in OPT:
        b(f"  s_mul_i32 s{S_T+8}, s2, 8208")
        if "ntx" not in OPT and "wpf" in OPT and "pf7" not in OPT:
            pf_wide(b, P_WR, WB, S_T + 8, 3, 0, 3, "pf_p1a")
            pf_wide(b, P_WI, WB, S_T + 8, 3, 0, 3, "pf_p1b")
        if "ntw1" not in OPT and PFN[0] and "pf7" not in OPT:
            w1_share_base(b, S_T + 8, 0)
            pf_wide(b, P_W1, W1B, S_T + 8, PFN[0], 4, 8, "pf_p1c")
    M1, M2, TW = 96, 112, 128
    b(f"  v_lshlrev_b32 v2, 4, v7")
    for i in range(4): b(f"  ds_read_b128 {vr(M1+4*i,4)}, v2 offset:{L1_M1+1024*i}")
    for i in range(3): b(f"  ds_read_b128 {vr(M2+4*i,4)}, v2 offset:{L1_M2+1024*i}")
    for i in range(8): b(f"  ds_read_b128 {vr(TW+4*i,4)}, v2 offset:{L1_TW+1024*i}")
    X = 40
    nW = 0 if ("nopf" in OPT or "ntx" in OPT or "wpf" not in OPT or "pf7" in OPT) else 6
    n1 = 0 if ("nopf" in OPT or "ntw1" in OPT or "pf7" in OPT) else PFN[0]
    b(f"  s_cmp_eq_u32 s{S_W}, 3")
    b(f"  s_cbranch_scc1 p1_xw0")
    b(f"  s_cmp_ge_u32 s{S_W}, 4")
    b(f"  s_cbranch_scc1 p1_xw4")
    b(f"  s_waitcnt vmcnt({NCLR + nW})")
    b(f"  s_branch p1_xwd")
    b.label("p1_xw4")
    if "tlbw" in OPT:
        b(f"  s_cmp_lg_u32 s{S_W}, 7")
        b(f"  s_cbranch_scc1 p1_xw5")
        b(f"  s_waitcnt vmcnt({min(63, NCLR + n1 + 8 + N7[0])})")
        b(f"  s_branch p1_xwd")
        b.label("p1_xw5")
    b(f"  s_waitcnt vmcnt({NCLR + n1})")
    b(f"  s_branch p1_xwd")
    b.label("p1_xw0")
    b(f"  s_waitcnt vmcnt({NCLR})")
    b.label("p1_xwd")
    stamp(b, "p1 x landed")
    if "wearly" in OPT:
        b(f"  s_cmp_ge_u32 s2, 8")
        b(f"  s_cbranch_scc1 p1_nonyq")
        b(f"  buffer_load_ushort v212, v214, s[{SRD_C}:{SRD_C+3}], 0 offen offset:1024")
        b(f"  buffer_load_ushort v213, v214, s[{SRD_D}:{SRD_D+3}], 0 offen offset:1024")
        b.label("p1_nonyq")
    srd(b, SRD_PF, P_DBG, 256)
    for i in range(8):
        b(f"  v_lshlrev_b32 v{X+i}, 16, v{XD+i}")
        b(f"  v_and_b32 v{X+8+i}, 0xffff0000, v{XD+i}")
    T = 56
    ln_fast(b, X, T, S_T + 2, True)
    stamp(b, "p1 ln done")
    if SENT():
        b(f"  buffer_load_dword v27, v26, s[{SRD_PF}:{SRD_PF+3}], 0 offen sc1")
        b(f"  s_and_b32 s{S_T+8}, s2, 15")
        arrive(b, 0, S_T + 8, first=True, label="x1")
        stamp(b, "p1 arrived")
        srd(b, SRD_C, P_WS, 4 << 20, WS_X2)
        for i in range(4): b(f"  v_mov_b32 v{200+i}, -1")
        b(f"  v_lshlrev_b32 v2, 4, v0")
        b(f"  s_lshl_b32 s{S_T+7}, s2, 14")
        b(f"  buffer_store_dwordx4 v[200:203], v2, s[{SRD_C}:{SRD_C+3}], s{S_T+7} offen{SF}")
        b(f"  s_add_u32 s{S_T+7}, s{S_T+7}, 8192")
        b(f"  buffer_store_dwordx4 v[200:203], v2, s[{SRD_C}:{SRD_C+3}], s{S_T+7} offen{SF}")
    A = 64
    for be in range(2):
        for i in range(4):
            b(f"  v_cvt_pk_bf16_f32 v{A+4*be+i}, v{X+8*be+2*i}, v{X+8*be+2*i+1}")
    b(f"  s_waitcnt lgkmcnt(0)")
    b(f"  v_readlane_b32 s{S_T+5}, v{T+6}, 0")
    Y = 160
    for be in range(2):
        for u in range(2):
            for c in range(2):
                d = Y + ((be * 2 + u) * 2 + c) * 4
                b(f"  {MF32} {vr(d,4)}, {vr(A+4*be,4)}, {vr(M1+4*(2*u+c),4)}, 0")
    b(f"  s_nop 4")
    Bp = 72; W = 32; O = 40
    for u in range(2):
        for be in range(2):
            y = Y + ((be * 2 + u) * 2) * 4
            tw = TW + (be * 4 + u * 2) * 4
            cmul_pk(b, O + 8 * be, O + 8 * be + 4, y, y + 4, tw, tw + 4, W, False)
        for r in range(4):
            b(f"  v_cvt_pk_bf16_f32 v{Bp+8*u+r}, v{O+r}, v{O+8+r}")
            b(f"  v_cvt_pk_bf16_f32 v{Bp+8*u+4+r}, v{O+4+r}, v{O+12+r}")
    XO = 160
    b(f"  s_nop 1")
    for u in range(2):
        re, im = XO + 8 * u, XO + 8 * u + 4
        b(f"  {MF32} {vr(re,4)}, {vr(M2,4)}, {vr(Bp+8*u,4)}, 0")
        b(f"  {MF32} {vr(im,4)}, {vr(M2,4)}, {vr(Bp+8*u+4,4)}, 0")
        b(f"  {MF32} {vr(re,4)}, {vr(M2+4,4)}, {vr(Bp+8*u+4,4)}, {vr(re,4)}")
        b(f"  {MF32} {vr(im,4)}, {vr(M2+8,4)}, {vr(Bp+8*u,4)}, {vr(im,4)}")
    b(f"  s_and_b32 s{S_T+6}, s{S_W}, 1")
    b(f"  s_lshl_b32 s{S_T+6}, s{S_T+6}, 8")
    b(f"  s_lshr_b32 s{S_T+7}, s{S_W}, 1")
    b(f"  s_lshl_b32 s{S_T+7}, s{S_T+7}, 6")
    b(f"  s_add_u32 s{S_T+6}, s{S_T+6}, s{S_T+7}")
    b(f"  v_lshlrev_b32 v3, 12, v9")
    b(f"  v_lshl_add_u32 v3, v8, 2, v3")
    b(f"  v_add_u32 v3, s{S_T+6}, v3")
    b(f"  s_nop 2")
    b(f"  v_writelane_b32 v{XO}, s{S_T+5}, 0")
    b(f"  v_writelane_b32 v{XO+4}, 0, 0")
    PK = 32
    for u in range(2):
        for r in range(4):
            b(f"  v_cvt_pk_bf16_f32 v{PK+4*u+r}, v{XO+8*u+r}, v{XO+8*u+4+r}")
    for u in range(2):
        for r in range(4):
            b(f"  ds_write_b32 v3, v{PK+4*u+r} offset:{L1_EX + u*512 + r*1024}")
    if SENT(): b(f"  s_waitcnt lgkmcnt(0) vmcnt(0)")
    else:
        b(f"  buffer_load_dword v27, v26, s[{SRD_PF}:{SRD_PF+3}], 0 offen sc1")
        b(f"  s_waitcnt lgkmcnt(0)")
    stamp(b, "p1 fft done")
    b(f"  s_barrier")
    b(f"  v_lshlrev_b32 v4, 6, v9")
    b(f"  v_lshl_add_u32 v4, v8, 2, v4")
    b(f"  s_lshl_b32 s{S_T+6}, s{S_W}, 11")
    b(f"  s_add_u32 s{S_T+6}, s{S_T+6}, {L1_EX}")
    b(f"  v_add_u32 v4, s{S_T+6}, v4")
    Bd = 40
    for i in range(4):
        b(f"  ds_read2st64_b32 {vr(Bd+2*i,2)}, v4 offset0:{2*i} offset1:{2*i+1}")
    D = 48
    for i in range(4):
        b(f"  s_waitcnt lgkmcnt({3-i})")
        b(f"  {MF16} {vr(D+4*i,4)}, {vr(GM,2)}, {vr(Bd+2*i,2)}, 0")
    b(f"  s_nop 4")
    for i in range(4):
        b(f"  v_cvt_pk_bf16_f32 v{64+2*i}, v{D+4*i}, v{D+4*i+1}")
        b(f"  v_cvt_pk_bf16_f32 v{65+2*i}, v{D+4*i+2}, v{D+4*i+3}")
        b(f"  v_min_u32 v{64+2*i}, 0xfffffffe, v{64+2*i}")
        b(f"  v_min_u32 v{65+2*i}, 0xfffffffe, v{65+2*i}")
        for e in range(2):
            b(f"  s_add_u32 s{S_T+7}, s44, {i*131072 + e*16384}")
            b(f"  buffer_store_dword v{64+2*i+e}, v5, s[{SRD_B}:{SRD_B+3}], s{S_T+7} offen{SF}")
    stamp(b, "p1 stores issued")
    if not SENT():
        b(f"  s_and_b32 s{S_T+8}, s2, 15")
        arrive(b, 0, S_T + 8, first=True, label="x1")
        stamp(b, "p1 arrived")

XL2, WL2 = 32, 40
WE = 204
TC2, TS2 = 64, 68
def p2_setup(b):
    srd(b, SRD_A, P_WS, 4 << 20, WS_X1)
    srd(b, SRD_B, P_WS, 4 << 20, WS_X2)
    srd(b, SRD_C, P_WR, WB)
    srd(b, SRD_D, P_WI, WB)
    b(f"  s_and_b32 s{S_T}, s2, 7              ; j1")
    b(f"  s_lshr_b32 s{S_T+1}, s2, 3           ; kb")
    b(f"  v_and_b32 v10, 1, v0                 ; half")
    b(f"  v_bfe_u32 v11, v0, 5, 4              ; c")
    b(f"  v_bfe_u32 v12, v0, 1, 4              ; e")
    b(f"  v_lshl_add_u32 v13, v12, 4, v11      ; j2")
    b(f"  v_lshlrev_b32 v13, 3, v13")
    b(f"  v_add_u32 v13, s{S_T}, v13           ; j")
    b(f"  v_mul_u32_u24 v13, 1026, v13")
    b(f"  v_lshlrev_b32 v14, 4, v10")
    b(f"  v_add_u32 v14, v13, v14")
    b(f"  s_lshl_b32 s{S_T+3}, s{S_T+1}, 5")
    if "wearly" in OPT:
        b(f"  s_cmp_lg_u32 s{S_T+1}, 0")
        b(f"  s_cbranch_scc1 p2_nonyq")
        b(f"  s_waitcnt vmcnt(0)")
        b(f"  v_cmp_eq_u32 vcc, 0, v215")
        b(f"  v_and_b32 v50, 0xffff0000, v{WE}")
        b(f"  v_or_b32 v50, v50, v212")
        b(f"  v_cndmask_b32 v{WE}, v{WE}, v50, vcc")
        b(f"  v_and_b32 v50, 0xffff0000, v{WE+4}")
        b(f"  v_or_b32 v50, v50, v213")
        b(f"  v_cndmask_b32 v{WE+4}, v{WE+4}, v50, vcc")
        b.label("p2_nonyq")
    elif "wlate" in OPT:
        b(f"  v_mov_b32 v24, v14")
        b(f"  v_mov_b32 v25, v13")
        b(f"  v_mov_b32 v26, v10                   ; half")
        b(f"  s_mov_b32 s45, s{S_T+3}              ; kb*32")
    else:
        WL = WL2
        b(f"  v_mov_b32 v24, v14")
        b(f"  v_mov_b32 v25, v13")
        b(f"  v_mov_b32 v26, v10                   ; half")
        b(f"  s_mov_b32 s45, s{S_T+3}              ; kb*32")
        WL = WL2
        b(f"  buffer_load_dwordx4 {vr(WL,4)}, v24, s[{SRD_C}:{SRD_C+3}], s45 offen{XF()}")
        b(f"  buffer_load_dwordx4 {vr(WL+4,4)}, v24, s[{SRD_D}:{SRD_D+3}], s45 offen{XF()}")
        b(f"  s_cmp_lg_u32 s{S_T+1}, 0")
        b(f"  s_cbranch_scc1 p2_nonyq")
        b(f"  buffer_load_ushort v48, v25, s[{SRD_C}:{SRD_C+3}], 0 offen offset:1024")
        b(f"  buffer_load_ushort v49, v25, s[{SRD_D}:{SRD_D+3}], 0 offen offset:1024")
        b(f"  s_waitcnt vmcnt(0)")
        b(f"  v_cmp_eq_u32 vcc, 0, v26")
        b(f"  v_and_b32 v50, 0xffff0000, v{WL}")
        b(f"  v_or_b32 v50, v50, v48")
        b(f"  v_cndmask_b32 v{WL}, v{WL}, v50, vcc")
        b(f"  v_and_b32 v50, 0xffff0000, v{WL+4}")
        b(f"  v_or_b32 v50, v50, v49")
        b(f"  v_cndmask_b32 v{WL+4}, v{WL+4}, v50, vcc")
        b.label("p2_nonyq")
    npf = 0
    b(f"  v_and_b32 v15, 255, v0")
    b(f"  v_bfe_u32 v16, v15, 2, 4             ; x")
    b(f"  v_lshrrev_b32 v17, 6, v15            ; g")
    b(f"  v_and_b32 v18, 3, v15")
    b(f"  v_lshl_add_u32 v17, v17, 2, v18      ; 4g+i")
    b(f"  v_mul_u32_u24 v17, v17, v16")
    sincos(b, 18, 19, 17, 4, 20)
    b(f"  v_cmp_gt_u32 vcc, 256, v0            ; matrix 0 ?")
    b(f"  v_xor_b32 v20, 0x80000000, v19       ; -sin")
    b(f"  s_nop 0")
    b(f"  v_cndmask_b32 v21, v20, v18, vcc")
    b(f"  v_cndmask_b32 v22, v18, v19, vcc")
    b(f"  v_cvt_pk_bf16_f32 v21, v21, v22")
    b(f"  v_lshlrev_b32 v22, 2, v0")
    b(f"  ds_write_b32 v22, v21 offset:{L2_F}")
    b(f"  v_lshlrev_b32 v16, 2, v9")
    for r in range(4):
        b(f"  v_add_u32 v17, {r}, v16")
        b(f"  v_mul_u32_u24 v17, v17, v8")
        sincos(b, TC2 + r, TS2 + r, 17, 8, 20)
    b(f"  v_and_b32 v16, 3, v0                 ; i")
    b(f"  v_mul_u32_u24 v16, {4*1040}, v16")
    b(f"  v_lshrrev_b32 v17, 6, v0             ; b (0..7)")
    b(f"  v_lshl_add_u32 v16, v17, 6, v16")
    b(f"  v_bfe_u32 v17, v0, 2, 2              ; a&3")
    b(f"  v_lshl_add_u32 v16, v17, 2, v16")
    b(f"  v_bfe_u32 v17, v0, 4, 2              ; a>>2")
    b(f"  v_lshl_add_u32 v21, v17, 4, v16      ; first")
    b(f"  v_xor_b32 v17, 2, v17")
    b(f"  v_lshl_add_u32 v22, v17, 4, v16")
    b(f"  v_add_u32 v22, 512, v22              ; second (b+8)")
    b(f"  v_mul_u32_u24 v16, {4*1040}, v10")
    b(f"  v_lshl_add_u32 v16, v11, 6, v16")
    b(f"  v_and_b32 v17, 3, v12")
    b(f"  v_lshl_add_u32 v16, v17, 2, v16")
    b(f"  v_lshrrev_b32 v17, 2, v12")
    b(f"  v_lshrrev_b32 v18, 3, v11            ; c>>3")
    b(f"  v_lshlrev_b32 v18, 1, v18")
    b(f"  v_xor_b32 v17, v17, v18")
    b(f"  v_lshl_add_u32 v23, v17, 4, v16")
    b(f"  v_lshrrev_b32 v16, 3, v8")
    b(f"  v_lshlrev_b32 v16, 1, v16")
    b(f"  v_xor_b32 v16, v16, v9")
    b(f"  v_lshlrev_b32 v16, 4, v16")
    b(f"  v_lshl_add_u32 v16, v8, 6, v16")
    b(f"  s_mul_i32 s{S_T+4}, s{S_W}, {2*1040}")
    b(f"  s_mul_i32 s{S_T+5}, s{S_W}, 1040")
    b(f"  v_add_u32 v5, s{S_T+4}, v16")
    b(f"  v_add_u32 v6, s{S_T+5}, v16")
    b(f"  v_lshlrev_b32 v1, 4, v0")
    b(f"  s_lshl_b32 s{S_T+2}, s2, 14")
    b(f"  s_add_u32 s{S_T+3}, s{S_T+2}, 8192")
    b(f"  s_waitcnt lgkmcnt(0)")

def sentinel_check(b, R0, pre, n=8):
    b(f"  v_max3_u32 v16, v{R0}, v{R0+1}, v{R0+2}")
    b(f"  v_max3_u32 v17, v{R0+3}, v{R0+4}, v{R0+5}")
    b(f"  v_max3_u32 v16, v16, v{R0+6}, v{R0+7}")
    for i in range(8, n, 2): b(f"  v_max3_u32 v17, v17, v{R0+i}, v{R0+i+1}")
    b(f"  v_max_u32 v16, v16, v17")
    b(f"  v_cmp_eq_u32 vcc, -1, v16")
    b(f"  s_sub_u32 s11, s11, 1")
    b(f"  s_cmp_eq_u32 s11, 0")
    b(f"  s_cbranch_scc1 {pre}_got")
    b(f"  s_cmp_lg_u64 vcc, 0")
    b(f"  s_cbranch_scc1 {pre}_poll")
    b.label(f"{pre}_got")

def p2_main(b):
    XL = XL2; TC, TS = TC2, TS2
    if SENT():
        b(f"  s_mov_b32 s11, 200000")
        b.label("p2_poll")
    b(f"  buffer_load_dwordx4 {vr(XL,4)}, v1, s[{SRD_A}:{SRD_A+3}], s{S_T+2} offen sc1")
    b(f"  buffer_load_dwordx4 {vr(XL+4,4)}, v1, s[{SRD_A}:{SRD_A+3}], s{S_T+3} offen sc1")
    if "wlate" in OPT:
        assert not SENT()
        WL = WL2
        b(f"  buffer_load_dwordx4 {vr(WL,4)}, v24, s[{SRD_C}:{SRD_C+3}], s45 offen{XF()}")
        b(f"  buffer_load_dwordx4 {vr(WL+4,4)}, v24, s[{SRD_D}:{SRD_D+3}], s45 offen{XF()}")
        b(f"  s_cmp_lg_u32 s{S_T+1}, 0")
        b(f"  s_cbranch_scc1 p2_nonyq")
        b(f"  buffer_load_ushort v56, v25, s[{SRD_C}:{SRD_C+3}], 0 offen offset:1024")
        b(f"  buffer_load_ushort v57, v25, s[{SRD_D}:{SRD_D+3}], 0 offen offset:1024")
        b(f"  s_waitcnt vmcnt(0)")
        b(f"  v_cmp_eq_u32 vcc, 0, v26")
        b(f"  v_and_b32 v58, 0xffff0000, v{WL}")
        b(f"  v_or_b32 v58, v58, v56")
        b(f"  v_cndmask_b32 v{WL}, v{WL}, v58, vcc")
        b(f"  v_and_b32 v58, 0xffff0000, v{WL+4}")
        b(f"  v_or_b32 v58, v58, v57")
        b(f"  v_cndmask_b32 v{WL+4}, v{WL+4}, v58, vcc")
        b.label("p2_nonyq")
        b(f"  s_waitcnt vmcnt(2)")
    else:
        b(f"  s_waitcnt vmcnt(0)")
    if SENT(): sentinel_check(b, XL, "p2")
    WL = WE if "wearly" in OPT else WL2
    b(f"  v_lshlrev_b32 v17, 4, v7")
    FR, FI = 72, 76
    AX = 48; WR, WI = 152, 156
    b(f"  ds_read_b128 {vr(FR,4)}, v17 offset:{L2_F}")
    b(f"  ds_read_b128 {vr(FI,4)}, v17 offset:{L2_F+1024}")
    Dq = [80, 88]; Oq = [96, 104]; Tq = [112, 120]; Pq = [128, 132]; Wq = [136, 144]
    stamp(b, "p2 x landed")
    for j in range(4):
        b(f"  ds_write_b32 v21, v{XL+j} offset:{L2_X + j*1040}")
        b(f"  ds_write_b32 v22, v{XL+4+j} offset:{L2_X + j*1040}")
    if "wlate" in OPT: b(f"  s_waitcnt vmcnt(0)")
    for j in range(4):
        b(f"  ds_write_b32 v23, v{WL+j} offset:{L2_W + j*1040}")
        b(f"  ds_write_b32 v23, v{WL+4+j} offset:{L2_W + 8*1040 + j*1040}")
    if "nopf" not in OPT and "ntw1" not in OPT and PFN[1]:
        w1_share_base(b, S_T + 8, PFN[0] * 4096)
        pf_wide(b, P_W1, W1B, S_T + 8, PFN[1], 4, 8, "pf_p2a")
    b(f"  s_waitcnt lgkmcnt(0)")
    b(f"  s_barrier")
    b(f"  ds_read_b128 {vr(AX,4)}, v5 offset:{L2_X}")
    b(f"  ds_read_b128 {vr(AX+4,4)}, v5 offset:{L2_X+1040}")
    b(f"  ds_read_b128 {vr(WR,4)}, v6 offset:{L2_W}")
    b(f"  ds_read_b128 {vr(WI,4)}, v6 offset:{L2_W+8*1040}")
    def stage(form, src):
        for k in range(2):
            d = Dq[k]
            if form == 'A':
                b(f"  {MF32} {vr(d,4)}, {vr(src[k],4)}, {vr(FR,4)}, 0")
                b(f"  {MF32} {vr(d+4,4)}, {vr(src[k],4)}, {vr(FI,4)}, 0")
            else:
                b(f"  {MF32} {vr(d,4)}, {vr(FR,4)}, {vr(src[k],4)}, 0")
                b(f"  {MF32} {vr(d+4,4)}, {vr(FI,4)}, {vr(src[k],4)}, 0")
    def twiddle_pack():
        for k in range(2):
            cmul_pk(b, Oq[k], Oq[k] + 4, Dq[k], Dq[k] + 4, TC, TS, Tq[k], False)
        for k in range(2):
            for r in range(4):
                b(f"  v_cvt_pk_bf16_f32 v{Pq[k]+r}, v{Oq[k]+r}, v{Oq[k]+4+r}")
        b(f"  s_nop 1")
    b(f"  s_waitcnt lgkmcnt(2)")
    stage('A', [AX, AX + 4])
    b(f"  s_waitcnt lgkmcnt(0)")
    for r in range(4):
        b(f"  v_lshlrev_b32 v{Wq[0]+r}, 16, v{WR+r}")
        b(f"  v_lshlrev_b32 v{Wq[0]+4+r}, 16, v{WI+r}")
        b(f"  v_and_b32 v{Wq[1]+r}, 0xffff0000, v{WR+r}")
        b(f"  v_and_b32 v{Wq[1]+4+r}, 0xffff0000, v{WI+r}")
    twiddle_pack()
    stage('B', Pq)
    b(f"  s_nop 5")
    for k in range(2):
        cmul_pk(b, Oq[k], Oq[k] + 4, Dq[k], Dq[k] + 4, Wq[k], Wq[k] + 4, Tq[k], True)
    for k in range(2):
        for r in range(4):
            b(f"  v_cvt_pk_bf16_f32 v{Pq[k]+r}, v{Oq[k]+r}, -v{Oq[k]+4+r}")
    b(f"  s_nop 1")
    stage('A', Pq)
    b(f"  s_nop 5")
    twiddle_pack()
    stage('B', Pq)
    b(f"  s_nop 5")
    for k in range(2):
        for r in range(4):
            b(f"  v_cvt_pk_bf16_f32 v{Pq[k]+r}, v{Dq[k]+r}, -v{Dq[k]+4+r}")
    b(f"  ds_write_b128 v5, {vr(Pq[0],4)} offset:{L2_X}")
    b(f"  ds_write_b128 v5, {vr(Pq[1],4)} offset:{L2_X+1040}")
    b(f"  s_waitcnt lgkmcnt(0)")
    b(f"  s_barrier")
    for j in range(4):
        b(f"  ds_read_b32 v{XL+j}, v21 offset:{L2_X + j*1040}")
        b(f"  ds_read_b32 v{XL+4+j}, v22 offset:{L2_X + j*1040}")
    b(f"  v_bfe_u32 v16, v0, 2, 4              ; a")
    b(f"  v_lshrrev_b32 v17, 6, v0             ; b")
    b(f"  v_lshl_add_u32 v16, v16, 4, v17      ; s1")
    b(f"  v_lshlrev_b32 v16, 14, v16")
    b(f"  v_and_b32 v17, 3, v0")
    b(f"  v_lshl_add_u32 v16, v17, 4, v16")
    b(f"  s_lshl_b32 s{S_T+4}, s{S_T}, 11")
    b(f"  s_lshl_b32 s{S_T+5}, s{S_T+1}, 6")
    b(f"  s_add_u32 s{S_T+4}, s{S_T+4}, s{S_T+5}")
    b(f"  s_add_u32 s{S_T+5}, s{S_T+4}, {8*16384}")
    b(f"  s_waitcnt lgkmcnt(0)")
    for j in range(8): b(f"  v_min_u32 v{XL+j}, 0xfffffffe, v{XL+j}")
    b(f"  buffer_store_dwordx4 {vr(XL,4)}, v16, s[{SRD_B}:{SRD_B+3}], s{S_T+4} offen{SF}")
    b(f"  buffer_store_dwordx4 {vr(XL+4,4)}, v16, s[{SRD_B}:{SRD_B+3}], s{S_T+5} offen{SF}")
    stamp(b, "p2 stores issued")
    if not SENT():
        b(f"  s_and_b32 s{S_T+8}, s2, 15")
        arrive(b, 1, S_T + 8, label="x2")

V_LO = 224
S_G1A = 60
def g1_ids(b):
    b(f"  s_lshr_b32 s{S_T}, s2, 3                 ; i")
    b(f"  s_cmp_lt_u32 s{S_T}, 28")
    b(f"  s_cselect_b32 s62, 1, 0")
    b(f"  s_mul_i32 s{S_T+1}, s{S_T}, 37")
    b(f"  s_lshr_b32 s{S_T+1}, s{S_T+1}, 8         ; i/7")
    b(f"  s_mul_i32 s{S_T+2}, s{S_T+1}, 7")
    b(f"  s_sub_u32 s{S_T+2}, s{S_T}, s{S_T+2}     ; i%7")
    b(f"  s_and_b32 s{S_T+3}, s2, 7")
    b(f"  s_lshr_b32 s{S_T+4}, s{S_T+3}, 1")
    b(f"  s_mul_i32 s{S_T+4}, s{S_T+4}, 7")
    b(f"  s_add_u32 s60, s{S_T+4}, s{S_T+2}        ; ft")
    b(f"  s_and_b32 s{S_T+3}, s{S_T+3}, 1")
    b(f"  s_lshl_b32 s{S_T+3}, s{S_T+3}, 2")
    b(f"  s_add_u32 s61, s{S_T+3}, s{S_T+1}        ; dt")

S_SOFF, S_M0, S_N = 4, 5, 6
def loader_issue(b, voff, fl=""):
    for i in range(4):
        b(f"  s_add_u32 m0, s{S_M0}, {4096*i}")
        b(f"  s_nop 0")
        b(f"  buffer_load_dwordx4 v{voff+i}, s[{SRD_T}:{SRD_T+3}], s{S_SOFF} offen{fl} lds")
    b(f"  s_add_u32 s{S_SOFF}, s{S_SOFF}, s9")
    b(f"  s_add_u32 s{S_M0}, s{S_M0}, {STAGE}")
    b(f"  s_cmp_ge_u32 s{S_M0}, s{S_N+1}")
    b(f"  s_cselect_b32 s{S_N+2}, {R*STAGE}, 0")
    b(f"  s_sub_u32 s{S_M0}, s{S_M0}, s{S_N+2}")

def loader_init(b, step_bytes):
    b(f"  s_sub_u32 s50, s{S_W}, 4")
    b(f"  s_lshl_b32 s{S_M0}, s50, 10")
    b(f"  s_add_u32 s{S_N+1}, s{S_M0}, {R*STAGE}")
    b(f"  s_mov_b32 s{S_SOFF}, 0")
    b(f"  s_mov_b32 s9, {step_bytes}")

def g1_loader_addr(b):
    b(f"  s_sub_u32 s50, s{S_W}, 4      ; w'")
    for i in range(4):
        b(f"  s_lshl_b32 s49, s50, 2")
        b(f"  s_add_u32 s49, s49, {16*i}")
        b(f"  v_lshrrev_b32 v14, 4, v7")
        b(f"  v_add_u32 v14, s49, v14                 ; row 0..63")
        b(f"  v_and_b32 v15, 3, v14")
        b(f"  v_lshlrev_b32 v15, 2, v15")
        b(f"  v_and_b32 v16, 15, v7")
        b(f"  v_xor_b32 v16, v16, v15                 ; q")
        b(f"  v_lshrrev_b32 v17, 3, v14")
        b(f"  v_and_b32 v18, 7, v14")
        b(f"  v_lshl_add_u32 v17, v18, 8, v17         ; s")
        b(f"  v_mul_u32_u24 v17, 7168, v17")
        b(f"  v_lshl_add_u32 v17, v16, 4, v17")
        b(f"  s_lshl_b32 s49, s60, 8")
        b(f"  v_add_u32 v{V_LO+i}, s49, v17")

def g2_ids(b):
    if SK():
        b(f"  s_lshr_b32 s{S_T+1}, s2, 3")
        b(f"  s_lshr_b32 s{S_TILE_A}, s{S_T+1}, 2          ; dt")
        b(f"  s_lshr_b32 s{S_T}, s2, 1")
        b(f"  s_and_b32 s{S_T}, s{S_T}, 3")
        b(f"  s_lshl_b32 s{S_T}, s{S_T}, 2")
        b(f"  s_and_b32 s{S_T+1}, s{S_T+1}, 3")
        b(f"  s_add_u32 s{S_TILE_B}, s{S_T}, s{S_T+1}      ; st2")
        b(f"  s_and_b32 s19, s2, 1                       ; kh")
        return
    b(f"  s_and_b32 s{S_T}, s2, 1")
    b(f"  s_lshl_b32 s{S_T}, s{S_T}, 2")
    b(f"  s_lshr_b32 s{S_T+1}, s2, 3")
    b(f"  s_and_b32 s{S_T+2}, s{S_T+1}, 3")
    b(f"  s_add_u32 s{S_TILE_A}, s{S_T}, s{S_T+2}     ; dt")
    b(f"  s_lshr_b32 s{S_T}, s2, 1")
    b(f"  s_and_b32 s{S_T}, s{S_T}, 3")
    b(f"  s_lshl_b32 s{S_T}, s{S_T}, 3")
    b(f"  s_lshr_b32 s{S_T+1}, s{S_T+1}, 2")
    b(f"  s_add_u32 s{S_TILE_B}, s{S_T}, s{S_T+1}     ; st")

def g2_loader_addr(b):
    if SK():
        b(f"  s_sub_u32 s50, s{S_W}, 4")
        for i in range(4):
            b(f"  s_lshl_b32 s49, s50, 2")
            b(f"  s_add_u32 s49, s49, {16*i}")
            b(f"  v_lshrrev_b32 v14, 4, v7")
            b(f"  v_add_u32 v14, s49, v14                 ; row 0..63")
            b(f"  v_and_b32 v15, 3, v14")
            b(f"  v_lshlrev_b32 v15, 2, v15")
            b(f"  v_and_b32 v16, 15, v7")
            b(f"  v_xor_b32 v16, v16, v15                 ; q")
            b(f"  v_lshlrev_b32 v14, 12, v14              ; row*4096")
            b(f"  v_lshl_add_u32 v14, v16, 4, v14")
            b(f"  s_lshl_b32 s49, s{S_TILE_B}, 8          ; s0*2")
            b(f"  s_mul_i32 s48, s19, {1792*4096}         ; k half")
            b(f"  s_add_u32 s49, s49, s48")
            b(f"  v_add_u32 v{V_LO+i}, s49, v14")
        return
    b(f"  s_sub_u32 s50, s{S_W}, 4")
    for i in range(4):
        b(f"  s_lshl_b32 s49, s50, 3")
        b(f"  s_add_u32 s49, s49, {32*i}")
        b(f"  v_lshrrev_b32 v14, 3, v7")
        b(f"  v_add_u32 v14, s49, v14                 ; row")
        b(f"  v_bfe_u32 v15, v14, 1, 1")
        b(f"  v_lshlrev_b32 v15, 2, v15")
        b(f"  v_and_b32 v16, 7, v7")
        b(f"  v_xor_b32 v16, v16, v15                 ; q")
        b(f"  v_lshlrev_b32 v14, 12, v14              ; row*4096")
        b(f"  v_lshl_add_u32 v14, v16, 4, v14")
        b(f"  s_lshl_b32 s49, s{S_TILE_B}, 7          ; s0*2")
        b(f"  v_add_u32 v{V_LO+i}, s49, v14")

def loader_loop(b, NS, pre, fl=""):
    nmain = NS - (R - 2)
    b(f"  s_mov_b32 s{S_N}, {nmain}")
    b.label(f"{pre}_lloop")
    b(f"  s_waitcnt vmcnt({(R-3)*4})")
    b("  s_barrier")
    loader_issue(b, V_LO, fl)
    b(f"  s_sub_u32 s{S_N}, s{S_N}, 1")
    b(f"  s_cmp_lg_u32 s{S_N}, 0")
    b(f"  s_cbranch_scc1 {pre}_lloop")
    for i in range(R - 2):
        b(f"  s_waitcnt vmcnt({(R-3-i)*4})")
        b("  s_barrier")

BD3 = 32; XR3 = 192; GM3 = 30
def p3_tables(b):
    b(f"  v_and_b32 v10, 255, v0            ; e")
    b(f"  v_lshrrev_b32 v11, 8, v0")
    b(f"  v_bfe_u32 v12, v10, 2, 4          ; n = lane&15")
    b(f"  v_lshrrev_b32 v13, 6, v10         ; g")
    b(f"  v_and_b32 v14, 3, v10             ; r")
    b(f"  v_lshl_add_u32 v13, v13, 2, v14   ; 4g + r")
    b(f"  v_lshrrev_b32 v15, 2, v12")
    b(f"  v_lshlrev_b32 v15, 3, v15")
    b(f"  v_and_b32 v16, 3, v12")
    b(f"  v_add_u32 v15, v15, v16           ; b(n,0)")
    b(f"  v_lshl_add_u32 v16, v11, 2, v15   ; b(n, sel)")
    b(f"  v_mul_u32_u24 v17, v16, v13")
    sincos(b, 18, 19, 17, 5, 20)
    b(f"  v_lshlrev_b32 v22, 2, v10")
    b(f"  v_lshl_add_u32 v22, v11, 11, v22  ; sel*2048 + e*4")
    b(f"  v_add_u32 v22, {L3_M3}, v22")
    b(f"  v_cvt_pk_bf16_f32 v23, v18, -v19")
    b(f"  v_cvt_pk_bf16_f32 v24, v19, v18")
    b(f"  ds_write_b32 v22, v23")
    b(f"  ds_write_b32 v22, v24 offset:1024")
    b(f"  v_lshl_add_u32 v17, v11, 4, v13   ; k1")
    for z in range(2):
        b(f"  v_add_u32 v21, {16*z}, v12")
        b(f"  v_mul_u32_u24 v21, v21, v17")
        sincos(b, 18, 19, 21, 5, 20)
        b(f"  v_add_f32 v18, v18, v18")
        b(f"  v_mul_f32 v19, -2.0, v19")
        b(f"  v_cvt_pk_bf16_f32 v23, v18, v19")
        b(f"  ds_write_b32 v22, v23 offset:{4096+1024*z}")
    b(f"  v_lshlrev_b32 v23, 2, v10")
    b(f"  v_lshl_add_u32 v23, v11, 12, v23   ; u*4096 + e*4")
    b(f"  v_add_u32 v23, {L3_TW}, v23")
    for v in range(2):
        b(f"  v_add_u32 v21, {4*v}, v15")
        b(f"  v_mul_u32_u24 v21, v21, v17")
        sincos(b, 18, 19, 21, 10, 20)
        b(f"  ds_write_b32 v23, v18 offset:{2048*v}")
        b(f"  ds_write_b32 v23, v19 offset:{2048*v+1024}")

def p3_setup(b):
    srd(b, SRD_A, P_WS, 4 << 20, WS_X2)
    srd(b, SRD_B, P_X, 4 << 20)
    srd(b, SRD_C, P_WS, 4 << 20, WS_H)
    srd(b, SRD_D, P_WS, 4 << 20, WS_LN2)
    b(f"  s_lshl_b32 s{S_T+3}, s{S_W}, 8")
    b(f"  s_add_u32 s{S_T+3}, s{S_T+3}, s2")
    b(f"  s_lshl_b32 s{S_T+3}, s{S_T+3}, 11       ; s*2048")
    b(f"  v_lshlrev_b32 v4, 6, v8")
    b(f"  v_lshl_add_u32 v4, v9, 4, v4")
    for z in range(2):
        b(f"  buffer_load_dwordx4 {vr(XR3+4*z,4)}, v4, s[{SRD_B}:{SRD_B+3}], s{S_T+3} offen offset:{1024*z}")
    b(f"  s_mov_b32 s63, s{S_T+3}")
    if SK():
        srd(b, SRD_PF, P_WS, 4 << 20, WS_XCH)
        for i in range(4): b(f"  v_mov_b32 v{200+i}, -1")
        b(f"  v_lshlrev_b32 v2, 4, v0")
        b(f"  s_lshl_b32 s{S_T+8}, s2, 14")
        b(f"  buffer_store_dwordx4 v[200:203], v2, s[{SRD_PF}:{SRD_PF+3}], s{S_T+8} offen{SF}")
        b(f"  s_add_u32 s{S_T+8}, s{S_T+8}, 8192")
        b(f"  buffer_store_dwordx4 v[200:203], v2, s[{SRD_PF}:{SRD_PF+3}], s{S_T+8} offen{SF}")
    if "nopf" not in OPT and "ntw1" not in OPT:
        if PFN[2]:
            w1_share_base(b, S_T + 8, (PFN[0] + PFN[1]) * 4096)
            pf_wide(b, P_W1, W1B, S_T + 8, PFN[2], 4, 8, "pf_p3a")
    g1_ids(b)
    g1_loader_addr(b)
    loader_init(b, 8 * 7168)
    p3_tables(b)
    gmat(b, GM3, 2, True, 10)
    b(f"  v_lshlrev_b32 v1, 12, v9")
    b(f"  v_lshl_add_u32 v1, v8, 2, v1")
    b(f"  s_lshl_b32 s{S_T}, s2, 14")
    b(f"  s_and_b32 s{S_T+1}, s{S_W}, 1")
    b(f"  s_lshl_b32 s{S_T+1}, s{S_T+1}, 6")
    b(f"  s_lshr_b32 s{S_T+2}, s{S_W}, 1")
    b(f"  s_lshl_b32 s{S_T+2}, s{S_T+2}, 9")
    b(f"  s_add_u32 s{S_T}, s{S_T}, s{S_T+1}")
    b(f"  s_add_u32 s44, s{S_T}, s{S_T+2}          ; X2 soffset")
    b(f"  s_lshl_b32 s{S_T+1}, s{S_T+1}, 4        ; u*1024")
    b(f"  s_lshr_b32 s{S_T+2}, s{S_T+2}, 1        ; q4*256")
    b(f"  s_add_u32 s45, s{S_T+1}, s{S_T+2}")
    b(f"  s_waitcnt lgkmcnt(0)")

def p3_main(b):
    Bd, XR, GM = BD3, XR3, GM3
    D = 40
    b(f"  v_lshlrev_b32 v3, 12, v9")
    b(f"  v_lshl_add_u32 v3, v8, 4, v3")
    b(f"  v_add_u32 v3, s45, v3")
    b(f"  v_add_u32 v3, {L3_EX}, v3")
    M3, M4, TW = 96, 112, 128
    b(f"  v_lshlrev_b32 v6, 4, v7")
    b(f"  v_add_u32 v6, {L3_M3}, v6")
    for i in range(4): b(f"  ds_read_b128 {vr(M3+4*i,4)}, v6 offset:{1024*i}")
    for i in range(4): b(f"  ds_read_b128 {vr(M4+4*i,4)}, v6 offset:{4096+1024*i}")
    b(f"  s_waitcnt lgkmcnt(0)")
    for i in range(8): b(f"  ds_read_b128 {vr(TW+4*i,4)}, v6 offset:{8192+1024*i}")
    if SENT():
        b(f"  s_mov_b32 s11, 200000")
        b.label("p3_poll")
    for i in range(4):
        for e in range(2):
            b(f"  buffer_load_dword v{Bd+2*i+e}, v1, s[{SRD_A}:{SRD_A+3}], s44 offen offset:{e*2048+i*128} sc1")
    b(f"  s_waitcnt vmcnt(0)")
    if SENT(): sentinel_check(b, Bd, "p3")
    stamp(b, "p3 x2 landed")
    if "nopf" not in OPT and "ntw1" not in OPT and PFN[3]:
        w1_share_base(b, S_T + 8, (PFN[0] + PFN[1] + PFN[2]) * 4096)
        pf_wide(b, P_W1, W1B, S_T + 8, PFN[3], 4, 8, "pf_p3b")
    for i in range(4):
        b(f"  {MF16} {vr(D+4*i,4)}, {vr(GM,2)}, {vr(Bd+2*i,2)}, 0")
    b(f"  s_nop 4")
    PK = 56
    for e in range(2):
        for i in range(4):
            b(f"  v_cvt_pk_bf16_f32 v{PK+4*e+i}, v{D+4*i+2*e}, v{D+4*i+2*e+1}")
    b(f"  ds_write_b128 v3, {vr(PK,4)}")
    b(f"  ds_write_b128 v3, {vr(PK+4,4)} offset:2048")
    b(f"  s_waitcnt lgkmcnt(0)")
    b(f"  s_barrier")
    b(f"  v_lshlrev_b32 v5, 8, v9")
    b(f"  v_lshl_add_u32 v5, v8, 4, v5")
    b(f"  s_lshl_b32 s{S_T+1}, s{S_W}, 11")
    b(f"  s_add_u32 s{S_T+1}, s{S_T+1}, {L3_EX}")
    b(f"  v_add_u32 v5, s{S_T+1}, v5")
    AU = 32
    b(f"  ds_read_b128 {vr(AU,4)}, v5")
    b(f"  ds_read_b128 {vr(AU+4,4)}, v5 offset:1024")
    b(f"  s_waitcnt lgkmcnt(0)")
    b(f"  v_readlane_b32 s{S_T+4}, v{AU}, 0")
    b(f"  v_writelane_b32 v{AU}, 0, 0")
    b(f"  s_nop 1")
    b(f"  s_lshl_b32 s{S_T+4}, s{S_T+4}, 16")
    TT = 160
    for u in range(2):
        for v in range(2):
            for c in range(2):
                d = TT + ((u * 2 + v) * 2 + c) * 4
                b(f"  {MF32} {vr(d,4)}, {vr(AU+4*u,4)}, {vr(M3+4*(2*v+c),4)}, 0")
    CI = 60
    b(f"  v_mov_b32 v{CI}, s{S_T+4}")
    b(f"  v_xor_b32 v{CI+1}, 0x80000000, v{CI}")
    b(f"  v_mov_b32 v{CI+2}, v{CI}")
    b(f"  v_mov_b32 v{CI+3}, v{CI+1}")
    b(f"  s_nop 1")
    A2 = 64; O = 40; W = 80
    for u in range(2):
        for v in range(2):
            t = TT + ((u * 2 + v) * 2) * 4
            tw = TW + ((u * 2 + v) * 2) * 4
            cmul_pk(b, O, O + 4, t, t + 4, tw, tw + 4, W, True)
            for r in range(4):
                b(f"  v_cvt_pk_bf16_f32 v{A2+(u*2+v)*4+r}, v{O+r}, v{O+4+r}")
    Y = 160
    b(f"  s_nop 1")
    for z in range(2):
        for v in range(2):
            d = Y + (z * 2 + v) * 4
            b(f"  {MF32} {vr(d,4)}, {vr(A2+(0*2+v)*4,4)}, {vr(M4+(0*2+z)*4,4)}, {vr(CI,4)}")
    for z in range(2):
        for v in range(2):
            d = Y + (z * 2 + v) * 4
            b(f"  {MF32} {vr(d,4)}, {vr(A2+(1*2+v)*4,4)}, {vr(M4+(1*2+z)*4,4)}, {vr(d,4)}")
    b(f"  s_nop 7")
    X = 40; HP = 32
    stamp(b, "p3 ifft done")
    for z in range(2):
        for dd in range(4):
            y0 = Y + z * 8 + 2 * dd
            xd = XR + 4 * z + dd
            t = 64 + 2 * (dd % 4)
            b(f"  v_lshlrev_b32 v{t}, 16, v{xd}")
            b(f"  v_and_b32 v{t+1}, 0xffff0000, v{xd}")
            b(f"  v_pk_add_f32 {vr(t,2)}, {vr(t,2)}, {vr(y0,2)}")
            b(f"  v_cvt_pk_bf16_f32 v{HP+4*z+dd}, v{t}, v{t+1}")
    for z in range(2):
        b(f"  buffer_store_dwordx4 {vr(HP+4*z,4)}, v4, s[{SRD_C}:{SRD_C+3}], s63 offen offset:{1024*z}{SF}")
    for i in range(8):
        b(f"  v_lshlrev_b32 v{X+2*i}, 16, v{HP+i}")
        b(f"  v_and_b32 v{X+2*i+1}, 0xffff0000, v{HP+i}")
    ln_fast(b, X, 64, S_T + 4, False)
    LP = 72
    stamp(b, "p3 ln done")
    for i in range(8):
        b(f"  v_cvt_pk_bf16_f32 v{LP+i}, v{X+2*i}, v{X+2*i+1}")
    b(f"  v_mul_u32_u24 v3, 80, v8")
    b(f"  v_lshl_add_u32 v3, v9, 4, v3")
    b(f"  s_mul_i32 s{S_T+1}, s{S_W}, {L3_RS}")
    b(f"  s_add_u32 s{S_T+1}, s{S_T+1}, {L3_LN}")
    b(f"  v_add_u32 v3, s{S_T+1}, v3")
    for z in range(2):
        b(f"  ds_write_b128 v3, {vr(LP+4*z,4)} offset:{z*16*80}")
    b(f"  s_waitcnt lgkmcnt(0)")
    b(f"  s_barrier")
    b(f"  v_bfe_u32 v10, v7, 2, 2")
    b(f"  v_mul_u32_u24 v10, {L3_RS}, v10")
    b(f"  v_lshrrev_b32 v11, 5, v7")
    b(f"  v_mul_u32_u24 v12, 80, v11")
    b(f"  v_add_u32 v10, v10, v12")
    b(f"  v_and_b32 v12, 1, v7")
    b(f"  v_lshl_add_u32 v10, v12, 5, v10")
    b(f"  v_bfe_u32 v12, v7, 4, 1")
    b(f"  v_lshl_add_u32 v10, v12, 4, v10")
    b(f"  v_bfe_u32 v12, v7, 1, 1")
    b(f"  v_lshl_add_u32 v10, v12, 3, v10")
    b(f"  s_mul_i32 s{S_T+1}, s{S_W}, {4*80}")
    b(f"  s_add_u32 s{S_T+1}, s{S_T+1}, {L3_LN}")
    b(f"  v_add_u32 v10, s{S_T+1}, v10")
    for ps in range(2):
        b(f"  ds_read_b64_tr_b16 {vr(32+4*ps,2)}, v10 offset:{ps*160}")
        b(f"  ds_read_b64_tr_b16 {vr(34+4*ps,2)}, v10 offset:{ps*160 + 4*L3_RS}")
    b(f"  v_lshlrev_b32 v11, 17, v11")
    b(f"  v_and_b32 v12, 31, v7")
    b(f"  v_lshl_add_u32 v11, v12, 4, v11")
    b(f"  s_lshl_b32 s{S_T+1}, s{S_W}, 19")
    b(f"  s_lshl_b32 s{S_T+2}, s2, 9")
    b(f"  s_add_u32 s{S_T+1}, s{S_T+1}, s{S_T+2}")
    b(f"  s_add_u32 s{S_T+2}, s{S_T+1}, {2*131072}")
    b(f"  s_waitcnt lgkmcnt(2)")
    b(f"  buffer_store_dwordx4 v[32:35], v11, s[{SRD_D}:{SRD_D+3}], s{S_T+1} offen{SF}")
    b(f"  s_waitcnt lgkmcnt(0)")
    b(f"  buffer_store_dwordx4 v[36:39], v11, s[{SRD_D}:{SRD_D+3}], s{S_T+2} offen{SF}")
    stamp(b, "p3 stores issued")
    b(f"  s_and_b32 s{S_T+8}, s2, 15")
    arrive(b, 2, S_T + 8, label="x3")
    srd(b, SRD_T, P_W1, W1B)
    b(f"  s_cmp_lt_u32 s{S_W}, 4")
    b(f"  s_cbranch_scc1 p3_nodma")
    b(f"  s_cmp_eq_u32 s62, 0")
    b(f"  s_cbranch_scc1 p3_nodma")
    for n in range(2): loader_issue(b, V_LO, W1F())
    b.label("p3_nodma")

def gemm_core(b, c, pre, after_setup, after_prologue=None):
    NB, NS = c.NB, c.NS
    acc = lambda nb: V_ACC + nb * 16
    VT = V_ACC + NB * 16
    VPR = VT + 32
    c.VT, c.VPR = VT, VPR
    c.vend = VPR + 4 * PR
    tf = lambda q: VT + (q % 8) * 4
    pr = lambda j: VPR + (j % PR) * 4
    FPI = 64
    KPI = FPI // NB
    def tread(q):
        ql = q % FPI
        lslot, within = ql // 16, ql % 16
        ks, nb = within // NB, within % NB
        off = lslot * STAGE + ks * 16 * c.rowb
        b(f"  ds_read_b64_tr_b16 {vr(tf(q),2)}, v{V_T+nb} offset:{off}")
        b(f"  ds_read_b64_tr_b16 {vr(tf(q)+2,2)}, v{V_T+nb} offset:{off+4*c.rowb}")
    def pload(j):
        b(f"  buffer_load_dwordx4 {vr(pr(j),4)}, v{V_P}, s[{SRD_P}:{SRD_P+3}], s{S_POFF} offen offset:{(j%4)*1024}{LF}")
        if j % 4 == 3: b(f"  s_add_u32 s{S_POFF}, s{S_POFF}, 4096")
    def mfma(q):
        nb = q % NB; j = q // NB; a = acc(nb)
        if "m16fake" in OPT:
            o = 8 * (j % 2)
            b(f"  v_mfma_f32_16x16x32_bf16 {vr(a+o,4)}, {vr(tf(q),4)}, {vr(pr(j),4)}, {vr(a+o,4)}")
            b(f"  v_mfma_f32_16x16x32_bf16 {vr(a+o+4,4)}, {vr(pr(j),4)}, {vr(tf(q),4)}, {vr(a+o+4,4)}")
            return
        if c.name == "g1":
            b(f"  v_mfma_f32_32x32x16_bf16 {vr(a,16)}, {vr(tf(q),4)}, {vr(pr(j),4)}, {vr(a,16)}")
        else:
            b(f"  v_mfma_f32_32x32x16_bf16 {vr(a,16)}, {vr(pr(j),4)}, {vr(tf(q),4)}, {vr(a,16)}")
    b(f"  s_mov_b32 s{S_POFF}, 0")
    b(f"  s_mov_b32 s{S_DELTA}, {4*STAGE}")
    b(f"  s_mov_b32 s{S_IT}, {NS//4 - 1}")
    after_setup()
    for j in range(PR - 1): pload(j)
    if after_prologue: after_prologue()
    b("  s_barrier")
    for q in range(DQ): tread(q)
    def body(last):
        for q in range(FPI):
            j = q // NB
            qn = q + DQ
            do_read = not (last and qn >= FPI)
            do_pload = False
            if q % NB == 0:
                rem = KPI - 1 - j
                if (not last) or (j + PR - 1 < KPI):
                    b(f"  s_waitcnt vmcnt({PR-2})")
                    do_pload = True
                else:
                    b(f"  s_waitcnt vmcnt({min(PR-2, rem)})")
            if do_read and qn % 16 == 0:
                b("  s_barrier")
            if do_read and qn == FPI:
                for i in range(NB): b(f"  v_add_u32 v{V_T+i}, s{S_DELTA}, v{V_T+i}")
                b(f"  s_sub_u32 s{S_DELTA}, 0, s{S_DELTA}")
            if q % 2 == 0:
                left = min(DQ - 2, FPI - 2 - q) if last else DQ - 2
                b(f"  s_waitcnt lgkmcnt({2*left})")
            mfma(q)
            if do_pload: pload(j + PR - 1)
            if do_read: tread(qn)
    b.label(f"{pre}_loop")
    body(False)
    b(f"  s_sub_u32 s{S_IT}, s{S_IT}, 1")
    b(f"  s_cmp_lg_u32 s{S_IT}, 0")
    b(f"  s_cbranch_scc1 {pre}_loop")
    body(True)

def idle_w1(b):
    srd(b, SRD_PF, P_W1, W1B)
    b(f"  s_and_b32 s51, s50, 7")
    b(f"  s_mul_i32 s51, s51, {256*7168}")
    b(f"  s_lshr_b32 s52, s50, 3")
    b(f"  s_mul_i32 s52, s52, {4*7168}")
    b(f"  s_add_u32 s51, s51, s52")
    b(f"  s_add_u32 s51, s51, {128*7168}")
    b(f"  s_mov_b32 s52, 7")
    b.label("pf_w1b")
    for i in range(4): b(f"  buffer_load_dwordx4 {vr(V_DUMMY,4)}, v29, s[{SRD_PF}:{SRD_PF+3}], s51 offen offset:{1024*i}")
    b(f"  s_add_u32 s51, s51, 4096")
    b(f"  s_waitcnt vmcnt(4)")
    b(f"  s_sub_u32 s52, s52, 1")
    b(f"  s_cmp_lg_u32 s52, 0")
    b(f"  s_cbranch_scc1 pf_w1b")

def idle_w2(b):
    srd(b, SRD_PF, P_W2, W1B)
    b(f"  s_mul_i32 s51, s50, {W1B // 256}")
    b(f"  s_mov_b32 s52, 14")
    b.label("pf_w2")
    for i in range(4): b(f"  buffer_load_dwordx4 {vr(V_DUMMY,4)}, v29, s[{SRD_PF}:{SRD_PF+3}], s51 offen offset:{1024*i}")
    b(f"  s_add_u32 s51, s51, 4096")
    b(f"  s_waitcnt vmcnt({0 if 'idlepace' in OPT else 4})")
    b(f"  s_sub_u32 s52, s52, 1")
    b(f"  s_cmp_lg_u32 s52, 0")
    b(f"  s_cbranch_scc1 pf_w2")
    b(f"  s_waitcnt vmcnt(0)")

def g1(b):
    c = g1_cfg()
    b(f"  s_cmp_eq_u32 s62, 0")
    b(f"  s_cbranch_scc1 g1_inactive")
    srd(b, SRD_P, P_WS, 4 << 20, WS_LN2)
    srd(b, SRD_T, P_W1, W1B)
    srd(b, SRD_O, P_WS, U_BYTES, WS_U)
    srd(b, SRD_X, P_B1, 3584 * 2)
    b(f"  s_cmp_ge_u32 s{S_W}, 4")
    b(f"  s_cbranch_scc1 g1_loader")
    lane_geom(b)
    b(f"  s_lshl_b32 s{S_TMP}, s61, 2")
    b(f"  s_add_u32 s{S_TMP}, s{S_TMP}, s{S_W}            ; dblk")
    b(f"  s_lshl_b32 s{S_TMP+2}, s{S_TMP}, 17")
    b(f"  v_lshlrev_b32 v10, 4, v7")
    b(f"  v_add_u32 v{V_P}, s{S_TMP+2}, v10")
    b(f"  s_lshl_b32 s{S_TMP+1}, s60, 8       ; f0*2")
    b(f"  v_lshlrev_b32 v11, 3, v9")
    b(f"  v_add_u32 v11, s{S_TMP+1}, v11")
    BV = 192
    for fb in range(4):
        for i in range(4):
            b(f"  buffer_load_dwordx2 {vr(BV+2*(4*fb+i),2)}, v11, s[{SRD_X}:{SRD_X+3}], 0 offen offset:{64*fb+16*i}")
    b(f"  v_lshl_add_u32 v20, v9, 3, v18")
    b(f"  v_lshlrev_b32 v20, 8, v20")
    b(f"  v_lshl_add_u32 v20, v18, 6, v20")
    b(f"  v_lshl_add_u32 v20, v19, 5, v20")
    b(f"  v_lshl_add_u32 v{V_T}, v22, 3, v20")
    for fb in range(1, 4):
        b(f"  v_xor_b32 v{V_T+fb}, {64*fb}, v{V_T}")
    b(f"  s_mul_i32 s{S_TMP+2}, s{S_TMP}, 229376")
    b(f"  s_lshl_b32 s{S_TMP+1}, s60, 13")
    b(f"  s_add_u32 s{S_TMP+1}, s{S_TMP+1}, s{S_TMP+2}")
    b(f"  v_add_u32 v28, s{S_TMP+1}, v10")
    b(f"  s_waitcnt vmcnt(0)")
    for fb in range(4):
        for i in range(4):
            bv = BV + 2 * (4 * fb + i); a = V_ACC + fb * 16 + 4 * i
            b(f"  v_lshlrev_b32 v{a}, 16, v{bv}")
            b(f"  v_and_b32 v{a+1}, 0xffff0000, v{bv}")
            b(f"  v_lshlrev_b32 v{a+2}, 16, v{bv+1}")
            b(f"  v_and_b32 v{a+3}, 0xffff0000, v{bv+1}")
    def w3():
        wait(b, 2, 16, "x3c")
        stamp(b, "x3 released")
        stamp(b, "c:g1 start")
    gemm_core(b, c, "g1", w3)
    stamp(b, "c:g1 end")
    stamp(b, "g1 main done")
    K1 = -2.0 * 0.7978845608028654 * 1.4426950408889634
    K2 = K1 * 0.044715
    T = c.VPR
    b(f"  v_mov_b32 v{T}, {hex(f2u(K1))}")
    b(f"  v_mov_b32 v{T+1}, {hex(f2u(K1))}")
    b(f"  v_mov_b32 v{T+2}, {hex(f2u(K2))}")
    b(f"  v_mov_b32 v{T+3}, {hex(f2u(K2))}")
    b(f"  s_nop 7")
    W = T + 8
    for fb in range(4):
        a = V_ACC + fb * 16; t = W; o = W + 16 + 8 * (fb % 2)
        for h in range(0, 16, 2): b(f"  v_pk_mul_f32 {vr(t+h,2)}, {vr(a+h,2)}, {vr(a+h,2)}")
        for h in range(0, 16, 2): b(f"  v_pk_fma_f32 {vr(t+h,2)}, {vr(t+h,2)}, {vr(T+2,2)}, {vr(T,2)}")
        for h in range(0, 16, 2): b(f"  v_pk_mul_f32 {vr(t+h,2)}, {vr(t+h,2)}, {vr(a+h,2)}")
        for r in range(16): b(f"  v_exp_f32 v{t+r}, v{t+r}")
        for h in range(0, 16, 2): b(f"  v_pk_add_f32 {vr(t+h,2)}, {vr(t+h,2)}, 1.0 op_sel_hi:[1,0]")
        for r in range(16): b(f"  v_rcp_f32 v{t+r}, v{t+r}")
        for h in range(0, 16, 2): b(f"  v_pk_mul_f32 {vr(t+h,2)}, {vr(a+h,2)}, {vr(t+h,2)}")
        for i in range(4):
            b(f"  v_cvt_pk_bf16_f32 v{o+2*i}, v{t+4*i}, v{t+4*i+1}")
            b(f"  v_cvt_pk_bf16_f32 v{o+2*i+1}, v{t+4*i+2}, v{t+4*i+3}")
        for ip in range(2):
            oo = o + 4 * ip
            b(f"  s_mov_b32 s{S_TMP+1}, {(2*fb+ip)*1024}")
            b(f"  s_nop 0")
            b(f"  v_permlane32_swap_b32 v{oo}, v{oo+2}")
            b(f"  v_permlane32_swap_b32 v{oo+1}, v{oo+3}")
            b(f"  buffer_store_dwordx4 {vr(oo,4)}, v28, s[{SRD_O}:{SRD_O+3}], s{S_TMP+1} offen{SF}")
    stamp(b, "g1 stores issued")
    b(f"  s_waitcnt vmcnt(0)")
    b(f"  s_branch g1_join")
    b.label("g1_loader")
    b(f"  s_sub_u32 s50, s{S_W}, 4")
    b(f"  s_lshl_b32 s49, s50, 10")
    b(f"  s_add_u32 s{S_N+1}, s49, {R*STAGE}")
    b(f"  s_barrier                      ; matches the barrier inside wait(x3)")
    for n in range(R - 4): loader_issue(b, V_LO, W1F())
    loader_loop(b, c.NS, "g1", W1F())
    stamp(b, "g1 main done")
    g2_prologue_loader(b)
    stamp(b, "g1 stores issued")
    b.label("g1_join")
    if SK():
        b(f"  s_cmp_ge_u32 s60, 14")
        b(f"  s_cselect_b32 s18, 1, 0")
        b(f"  s_lshl_b32 s10, s61, 1")
        b(f"  s_add_u32 s18, s18, s10")
        arrive(b, 3, 18, label="x4", drained=True)
    else:
        arrive(b, 3, 61, label="x4", drained=True)
    b(f"  s_branch g2_start")
    b.label("g1_inactive")
    if "nopf" not in OPT:
        b(f"  s_sub_u32 s50, s2, 224")
        b(f"  s_lshl_b32 s50, s50, 3")
        b(f"  s_add_u32 s50, s50, s{S_W}")
        b(f"  v_lshlrev_b32 v29, 4, v7")
        if "noidle" not in OPT: idle_w2(b)
    b(f"  s_cmp_lt_u32 s{S_W}, 4")
    b(f"  s_cbranch_scc1 g2_start_inactive")
    g2_prologue_loader(b)
    b.label("g2_start_inactive")
    return c

def g2_prologue_loader(b):
    g2_ids(b)
    srd(b, SRD_T, P_W2, W1B)
    g2_loader_addr(b)
    loader_init(b, (64 if SK() else 128) * 4096)
    for n in range(2): loader_issue(b, V_LO, W2F())

def g2_sk(b):
    c = g1_cfg(); c.name = "g2"; c.NS = 28
    b.label("g2_start")
    g2_ids(b)
    srd(b, SRD_P, P_WS, U_BYTES, WS_U)
    srd(b, SRD_O, P_OUT, 4 << 20)
    srd(b, SRD_X, P_B2, 2048 * 2)
    srd(b, SRD_Y, P_WS, 4 << 20, WS_H)
    b(f"  s_cmp_ge_u32 s{S_W}, 4")
    b(f"  s_cbranch_scc1 g2_loader")
    lane_geom(b)
    b(f"  s_lshl_b32 s{S_TMP}, s{S_TILE_A}, 2")
    b(f"  s_add_u32 s{S_TMP}, s{S_TMP}, s{S_W}        ; dblk")
    b(f"  s_mul_i32 s{S_TMP+2}, s{S_TMP}, 229376")
    b(f"  s_mul_i32 s{S_TMP+3}, s19, {112*1024}       ; k half")
    b(f"  s_add_u32 s{S_TMP+2}, s{S_TMP+2}, s{S_TMP+3}")
    b(f"  v_lshlrev_b32 v10, 4, v7")
    b(f"  v_add_u32 v{V_P}, s{S_TMP+2}, v10")
    b(f"  s_lshl_b32 s{S_TMP+1}, s{S_TILE_B}, 7")
    b(f"  s_lshl_b32 s{S_TMP+3}, s19, 6")
    b(f"  s_add_u32 s{S_TMP+1}, s{S_TMP+1}, s{S_TMP+3}")
    b(f"  v_add_u32 v11, s{S_TMP+1}, v8              ; s0 + s'")
    b(f"  v_lshlrev_b32 v16, 1, v11")
    for sb in range(2):
        b(f"  buffer_load_ushort v{12+sb}, v16, s[{SRD_X}:{SRD_X+3}], 0 offen offset:{64*sb}")
    b(f"  v_lshlrev_b32 v17, 11, v11")
    b(f"  v_lshl_add_u32 v17, v9, 5, v17")
    b(f"  s_lshl_b32 s{S_TMP+2}, s{S_TMP}, 6")
    b(f"  v_add_u32 v28, s{S_TMP+2}, v17")
    HV = 192
    b(f"  v_lshl_add_u32 v20, v9, 3, v18")
    b(f"  v_lshlrev_b32 v20, 8, v20")
    b(f"  v_lshl_add_u32 v20, v18, 6, v20")
    b(f"  v_lshl_add_u32 v20, v19, 5, v20")
    b(f"  v_lshl_add_u32 v{V_T}, v22, 3, v20")
    for fb in range(1, 4):
        b(f"  v_xor_b32 v{V_T+fb}, {64*fb}, v{V_T}")
    b(f"  s_lshl_b32 s{S_TMP+1}, s{S_W}, 12")
    b(f"  s_lshl_b32 s{S_TMP+2}, s2, 14")
    b(f"  s_add_u32 s{S_TMP+2}, s{S_TMP+2}, s{S_TMP+1}")
    b(f"  v_add_u32 v29, s{S_TMP+2}, v10")
    b(f"  s_xor_b32 s{S_TMP+2}, s2, 1")
    b(f"  s_lshl_b32 s{S_TMP+2}, s{S_TMP+2}, 14")
    b(f"  s_add_u32 s{S_TMP+2}, s{S_TMP+2}, s{S_TMP+1}")
    b(f"  v_add_u32 v30, s{S_TMP+2}, v10")
    for i in range(64): b(f"  v_mov_b32 v{V_ACC+i}, 0")
    def w4():
        b(f"  s_lshl_b32 s18, s{S_TILE_A}, 1")
        b(f"  s_add_u32 s18, s18, s19")
        wait(b, 3, 14, "x4c", single_sreg=18)
        stamp(b, "x4 released")
        stamp(b, "c:g2 start")
    def hloads():
        for sb in range(2):
            b(f"  s_mov_b32 s{S_TMP+1}, {sb*65536}")
            b(f"  buffer_load_dwordx4 {vr(HV+8*sb,4)}, v28, s[{SRD_Y}:{SRD_Y+3}], s{S_TMP+1} offen{LF}")
            b(f"  buffer_load_dwordx4 {vr(HV+8*sb+4,4)}, v28, s[{SRD_Y}:{SRD_Y+3}], s{S_TMP+1} offen offset:16{LF}")
    gemm_core(b, c, "g2", w4, hloads)
    stamp(b, "c:g2 end")
    stamp(b, "g2 main done")
    srd(b, SRD_X, P_WS, 4 << 20, WS_XCH)
    T = c.VT
    b(f"  s_cmp_eq_u32 s19, 0")
    b(f"  s_cbranch_scc1 g2_send23")
    def pack_send(first):
        for blk in range(2):
            a = V_ACC + (first + blk) * 16
            for i in range(8):
                b(f"  v_cvt_pk_bf16_f32 v{T+8*blk+i}, v{a+2*i}, v{a+2*i+1}")
            for i in range(8):
                b(f"  v_min_u32 v{T+8*blk+i}, 0xfffffffe, v{T+8*blk+i}")
            for p in range(2):
                b(f"  buffer_store_dwordx4 {vr(T+8*blk+4*p,4)}, v30, s[{SRD_X}:{SRD_X+3}], 0 offen offset:{(2*blk+p)*1024}{SF}")
    b(f"  s_nop 7")
    pack_send(0)
    for i in range(32): b(f"  v_mov_b32 v{V_ACC+i}, v{V_ACC+32+i}")
    b(f"  s_branch g2_sent")
    b.label("g2_send23")
    b(f"  s_nop 7")
    pack_send(2)
    b.label("g2_sent")
    RX = c.VPR
    b(f"  s_mov_b32 s11, 200000")
    b.label("g2x_poll")
    for k in range(4):
        b(f"  buffer_load_dwordx4 {vr(RX+4*k,4)}, v29, s[{SRD_X}:{SRD_X+3}], 0 offen offset:{k*1024} sc1")
    b(f"  s_waitcnt vmcnt(0)")
    sentinel_check(b, RX, "g2x", n=16)
    stamp(b, "g2 x landed")
    b(f"  s_mov_b32 s{S_TMP}, 0xffff0000")
    for blk in range(2):
        for i in range(8):
            a = V_ACC + blk * 16 + 2 * i; r = RX + 8 * blk + i
            b(f"  v_lshlrev_b32 v16, 16, v{r}")
            b(f"  v_and_b32 v17, s{S_TMP}, v{r}")
            b(f"  v_add_f32 v{a}, v{a}, v16")
            b(f"  v_add_f32 v{a+1}, v{a+1}, v17")
    for sb in range(2):
        b(f"  v_lshlrev_b32 v{12+sb}, 16, v{12+sb}")
    for sb in range(2):
        for half in range(2):
            o = T + 4 * ((sb * 2 + half) % 2)
            for dd in range(4):
                a = V_ACC + sb * 16 + half * 8 + 2 * dd
                hv = HV + 8 * sb + 4 * half + dd
                t0 = T + 8 + 4 * dd
                b(f"  v_lshlrev_b32 v{t0}, 16, v{hv}")
                b(f"  v_and_b32 v{t0+1}, s{S_TMP}, v{hv}")
                b(f"  v_pk_add_f32 {vr(t0,2)}, {vr(t0,2)}, {vr(a,2)}")
                b(f"  v_add_f32 v{t0}, v{t0}, v{12+sb}")
                b(f"  v_add_f32 v{t0+1}, v{t0+1}, v{12+sb}")
                b(f"  v_cvt_pk_bf16_f32 v{o+dd}, v{t0}, v{t0+1}")
            b(f"  s_mov_b32 s{S_TMP+1}, {sb*65536}")
            b(f"  buffer_store_dwordx4 {vr(o,4)}, v28, s[{SRD_O}:{SRD_O+3}], s{S_TMP+1} offen offset:{16*half}")
    stamp(b, "g2 stores issued")
    b(f"  s_branch g2_done")
    b.label("g2_loader")
    b(f"  s_barrier                      ; matches the barrier inside wait(x4)")
    for n in range(R - 4): loader_issue(b, V_LO, W2F())
    loader_loop(b, c.NS, "g2", W2F())
    b.label("g2_done")

def g2(b):
    if SK(): return g2_sk(b)
    c = g2_cfg()
    b.label("g2_start")
    g2_ids(b)
    srd(b, SRD_P, P_WS, U_BYTES, WS_U)
    srd(b, SRD_O, P_OUT, 4 << 20)
    srd(b, SRD_X, P_B2, 2048 * 2)
    srd(b, SRD_Y, P_WS, 4 << 20, WS_H)
    b(f"  s_cmp_ge_u32 s{S_W}, 4")
    b(f"  s_cbranch_scc1 g2_loader")
    lane_geom(b)
    b(f"  s_lshl_b32 s{S_TMP}, s{S_TILE_A}, 2")
    b(f"  s_add_u32 s{S_TMP}, s{S_TMP}, s{S_W}        ; dblk")
    b(f"  s_mul_i32 s{S_TMP+2}, s{S_TMP}, 229376")
    b(f"  v_lshlrev_b32 v10, 4, v7")
    b(f"  v_add_u32 v{V_P}, s{S_TMP+2}, v10")
    b(f"  s_lshl_b32 s{S_TMP+1}, s{S_TILE_B}, 6       ; s0")
    b(f"  v_add_u32 v11, s{S_TMP+1}, v8              ; s0 + s'")
    b(f"  v_lshlrev_b32 v16, 1, v11")
    for sb in range(2):
        b(f"  buffer_load_ushort v{12+sb}, v16, s[{SRD_X}:{SRD_X+3}], 0 offen offset:{64*sb}")
    b(f"  v_lshlrev_b32 v17, 11, v11")
    b(f"  v_lshl_add_u32 v17, v9, 5, v17")
    b(f"  s_lshl_b32 s{S_TMP+2}, s{S_TMP}, 6")
    b(f"  v_add_u32 v28, s{S_TMP+2}, v17")
    HV = 160
    b(f"  v_lshl_add_u32 v20, v9, 3, v18            ; row")
    b(f"  v_bfe_u32 v21, v18, 1, 1")
    b(f"  v_lshlrev_b32 v20, 7, v20")
    b(f"  v_lshl_add_u32 v20, v21, 6, v20")
    b(f"  v_lshl_add_u32 v20, v19, 5, v20")
    b(f"  v_lshl_add_u32 v{V_T}, v22, 3, v20")
    b(f"  v_xor_b32 v{V_T+1}, 64, v{V_T}")
    for i in range(32): b(f"  v_mov_b32 v{V_ACC+i}, 0")
    def w4():
        wait(b, 3, 28, "x4c", single_sreg=S_TILE_A)
        stamp(b, "x4 released")
        stamp(b, "c:g2 start")
    def hloads():
        for sb in range(2):
            b(f"  s_mov_b32 s{S_TMP+1}, {sb*65536}")
            b(f"  buffer_load_dwordx4 {vr(HV+8*sb,4)}, v28, s[{SRD_Y}:{SRD_Y+3}], s{S_TMP+1} offen{LF}")
            b(f"  buffer_load_dwordx4 {vr(HV+8*sb+4,4)}, v28, s[{SRD_Y}:{SRD_Y+3}], s{S_TMP+1} offen offset:16{LF}")
    gemm_core(b, c, "g2", w4, hloads)
    stamp(b, "c:g2 end")
    stamp(b, "g2 main done")
    T = c.VT
    b(f"  s_mov_b32 s{S_TMP}, 0xffff0000")
    for sb in range(2):
        b(f"  v_lshlrev_b32 v{12+sb}, 16, v{12+sb}")
    b(f"  s_nop 9")
    for sb in range(2):
        for half in range(2):
            o = T + 4 * ((sb * 2 + half) % 2)
            for dd in range(4):
                a = V_ACC + sb * 16 + half * 8 + 2 * dd
                hv = HV + 8 * sb + 4 * half + dd
                t0 = T + 8 + 4 * dd
                b(f"  v_cvt_pk_bf16_f32 v{t0}, v{a}, v{a+1}")
                b(f"  v_and_b32 v{t0+1}, s{S_TMP}, v{t0}")
                b(f"  v_lshlrev_b32 v{t0}, 16, v{t0}")
                b(f"  v_add_f32 v{t0}, v{t0}, v{12+sb}")
                b(f"  v_add_f32 v{t0+1}, v{t0+1}, v{12+sb}")
                b(f"  v_cvt_pk_bf16_f32 v{t0}, v{t0}, v{t0+1}")
                b(f"  v_and_b32 v{t0+1}, s{S_TMP}, v{t0}")
                b(f"  v_lshlrev_b32 v{t0}, 16, v{t0}")
                b(f"  v_lshlrev_b32 v{t0+2}, 16, v{hv}")
                b(f"  v_and_b32 v{t0+3}, s{S_TMP}, v{hv}")
                b(f"  v_add_f32 v{t0}, v{t0}, v{t0+2}")
                b(f"  v_add_f32 v{t0+1}, v{t0+1}, v{t0+3}")
                b(f"  v_cvt_pk_bf16_f32 v{o+dd}, v{t0}, v{t0+1}")
            b(f"  s_mov_b32 s{S_TMP+1}, {sb*65536}")
            b(f"  buffer_store_dwordx4 {vr(o,4)}, v28, s[{SRD_O}:{SRD_O+3}], s{S_TMP+1} offen offset:{16*half}")
    stamp(b, "g2 stores issued")
    b(f"  s_branch g2_done")
    b.label("g2_loader")
    b(f"  s_barrier                      ; matches the barrier inside wait(x4)")
    for n in range(R - 4): loader_issue(b, V_LO, W2F())
    loader_loop(b, c.NS, "g2", W2F())
    b.label("g2_done")

def build():
    NAME = "sequential_preLN__spectral_gfnet__mixer_token_mlp__prompt"
    hdr = open(f"cdna_kernels/{NAME}.s.ref").read().split("; Override launch")[0]
    K = NAME + "_kernel"
    b = B()
    b(hdr.rstrip("\n"))
    b(f"; @launch grid=(256,1,1) block=(512,1,1) lds={LDS_TOTAL}")
    b('.amdgcn_target "amdgcn-amd-amdhsa--gfx950"\n.text')
    b(f".globl {K}\n.p2align 8\n.type {K},@function\n{K}:")
    b(f"  s_cmp_ge_u32 s2, 256\n  s_cbranch_scc1 k_exit")
    if "stamp" in OPT: b("  v_mov_b32 v231, 0")
    stamp(b, "entry")
    b(f"  s_load_dwordx4 s[{P_X}:{P_X+3}], s[0:1], 0        ; x, w_r")
    b(f"  s_load_dwordx2 s[{P_WI}:{P_WI+1}], s[0:1], 16")
    b(f"  s_load_dwordx2 s[{P_W1}:{P_W1+1}], s[0:1], 32")
    b(f"  s_load_dwordx4 s[{P_B1}:{P_B1+3}], s[0:1], 40     ; b1, w2")
    b(f"  s_load_dwordx4 s[{P_B2}:{P_B2+3}], s[0:1], 56     ; b2, out")
    b(f"  s_load_dwordx4 s[{P_DBG}:{P_DBG+3}], s[0:1], 72")
    b(f"  v_lshrrev_b32 v6, 6, v0")
    b(f"  v_and_b32 v7, 63, v0        ; lane")
    b(f"  v_readfirstlane_b32 s{S_W}, v6")
    b(f"  v_and_b32 v8, 15, v7          ; c")
    b(f"  v_lshrrev_b32 v9, 4, v7       ; g")
    b(f"  s_waitcnt lgkmcnt(0)")
    srd(b, SRD_CNT, P_WS, 65536, WS_CNT)
    p1(b)
    p2_setup(b)
    wait(b, 0, 16, "x1c")
    stamp(b, "x1 released")
    p2_main(b)
    p3_setup(b)
    if SENT(): b("  s_barrier")
    else: wait(b, 1, 16, "x2c")
    stamp(b, "x2 released")
    p3_main(b)
    g1(b)
    g2(b)
    b(f"  s_waitcnt vmcnt(0)")
    stamp(b, "end")
    stamp_flush(b)
    b("k_exit:\n  s_endpgm")
    b(kd(K, 240, sgpr=102))
    return b.text()

if __name__ == "__main__":
    out = sys.argv[1]
    OPT.update(sys.argv[2:])
    for o in sys.argv[2:]:
        if o.startswith("pfn="): PFN[:] = [int(c) for c in o[4:].split(",")]
    gemm.OPT.update(sys.argv[2:])
    t = build()
    open(out, "w").write(t)
    rep = check_text(t)
    print("\n".join(rep) if rep else "no hazards found", "| stamps:", nstamp[0])
```

```python
import sys
from asmlib import *
import gemm, fft
from gemm import (srd, f2u, WS_X1, WS_X2, WS_H, WS_LN2, WS_U, U_BYTES, S_W, R, STAGE, PR, DQ,
                  V_P, V_T, V_ACC, S_POFF, S_IT, S_DELTA, SRD_P, SRD_T, SRD_O, SRD_X, SRD_Y, S_TILE_A, S_TILE_B, S_TMP,
                  g1_cfg, g2_cfg, lane_geom)
from fft import sincos, wave_reduce, ln_finish, layernorm16, cmul_pk, gmat, MF32, MF16

OPT = set()
N7 = [0]
PFN = [0, 4, 0, 4]
WS_CNT = 30 << 20
WS_STAMP = 31 << 20
WS_XCH = 24 << 20
W1B = 2048 * 3584 * 2
WB = 2048 * 1026

P_X, P_WR, P_WI, P_W1, P_B1, P_W2, P_B2, P_OUT, P_DBG, P_WS = 64, 66, 68, 70, 72, 74, 76, 78, 80, 82
SRD_CNT = 12
S_T = 46
SRD_A, SRD_B, SRD_C, SRD_D = 24, 28, 32, 36
SRD_PF = 56
S_STAMP = 84
SF = " sc1"
LF = ""

L1_M1, L1_M2, L1_TW, L1_EX = 0, 4096, 8192, 16384
L2_F = 32768; L2_X = L2_F + 2048; L2_W = L2_X + 16 * 1040
L3_M3 = 98304; L3_M4 = L3_M3 + 4096; L3_TW = L3_M3 + 8192; L3_EX = L3_M3 + 16384
L3_LN = L3_EX + 16384; L3_RS = 2624
LDS_TOTAL = L3_LN + 8 * L3_RS
assert LDS_TOTAL <= 163840

STAMPS = ["entry", "p1 x landed", "p1 stores issued", "p1 arrived", "x1 released", "p2 x landed", "p2 stores issued",
          "x2 released", "p3 x2 landed", "p3 stores issued", "x3 released", "g1 main done", "g1 stores issued", "x4 released",
          "g2 main done", "g2 stores issued", "end", "x1 drained", "x2 drained", "x3 drained", "x4 drained", "p1 tables done", "p1 ln done", "p1 fft done", "p3 ifft done", "p3 ln done", "c:g1 start", "c:g1 end", "c:g2 start", "c:g2 end", "g2 x landed"]
nstamp = [len(STAMPS)]
SENT = lambda: "bar" not in OPT
SK = lambda: "nosk" not in OPT
W1F = lambda: " nt" if "ntw1" in OPT else ""
W2F = lambda: " nt" if "ntw2" in OPT else ""
XF = lambda: " nt" if "ntx" in OPT else ""
def stamp(b, name):
    if "stamp" not in OPT: return
    i = STAMPS.index(name)
    op = "s_memtime" if name.startswith("c:") else "s_memrealtime"
    b(f"  {op} s[{S_STAMP}:{S_STAMP+1}]   ; stamp {i}: {name}")
    b(f"  s_waitcnt lgkmcnt(0)")
    b(f"  v_writelane_b32 v231, s{S_STAMP}, {i}")

def stamp_flush(b):
    if "stamp" not in OPT: return
    if "dbgmax" in OPT:
        SEL = [1, 23, 2, 17, 3, 4, 5, 6, 18, 7, 8, 9, 19, 10]
        srd(b, 24, P_DBG, 256)
        b(f"  v_readlane_b32 s46, v231, 0")
        b(f"  s_sub_u32 s47, 0, s46")
        b(f"  v_mov_b32 v3, 0")
        b(f"  v_writelane_b32 v3, s47, 0")
        b(f"  v_writelane_b32 v3, s46, 15")
        for i, st in enumerate(SEL):
            b(f"  v_readlane_b32 s46, v231, {st}")
            b(f"  s_nop 3")
            b(f"  v_writelane_b32 v3, s46, {i+1}")
        b(f"  v_lshlrev_b32 v2, 2, v7")
        b(f"  s_mov_b64 s[48:49], exec")
        b(f"  s_mov_b64 exec, 0xffff")
        b(f"  buffer_atomic_umax v3, v2, s[24:27], 0 offen sc1")
        b(f"  s_mov_b64 exec, s[48:49]")
        return
    if "dbgtime" in OPT:
        b(f"  s_cmp_lg_u32 s2, 100")
        b(f"  s_cbranch_scc1 dbg_skip")
        b(f"  s_cmp_lg_u32 s{S_W}, 0")
        b(f"  s_cbranch_scc1 dbg_skip")
        srd(b, 24, P_DBG, 256)
        b(f"  v_readlane_b32 s46, v231, 0")
        b(f"  s_nop 1")
        b(f"  v_subrev_u32 v3, s46, v231")
        b(f"  v_lshlrev_b32 v2, 2, v7")
        b(f"  v_subrev_u32 v2, 4, v2")
        b(f"  s_mov_b64 s[48:49], exec")
        b(f"  s_mov_b64 exec, 0x1fffe")
        b(f"  buffer_store_dword v3, v2, s[24:27], 0 offen")
        b(f"  s_mov_b64 exec, s[48:49]")
        b.label("dbg_skip")
        return
    srd(b, 24, P_WS, 1 << 20, WS_STAMP)
    b(f"  s_lshl_b32 s46, s2, 3")
    b(f"  s_add_u32 s46, s46, s{S_W}")
    b(f"  s_lshl_b32 s46, s46, 7            ; (wg*8+wave)*128")
    b(f"  v_lshlrev_b32 v2, 2, v7")
    b(f"  s_mov_b64 s[48:49], exec")
    b(f"  s_mov_b64 exec, 0xffffffff")
    b(f"  buffer_store_dword v231, v2, s[24:27], s46 offen")
    b(f"  s_mov_b64 exec, s[48:49]")

def arrive(b, bar, shard_sreg, first=False, label="", drained=False):
    if not drained: b(f"  s_waitcnt vmcnt(0)")
    stamp(b, f"x{bar+1} drained")
    b(f"  s_barrier")
    b(f"  s_cmp_lg_u32 s{S_W}, 0")
    b(f"  s_cbranch_scc1 {label}_arr_skip")
    if first:
        b(f"  s_mov_b32 s11, 100000")
        b.label(f"{label}_rdy")
        b(f"  v_cmp_ne_u32 vcc, 0, v27")
        b(f"  s_nop 1")
        b(f"  s_cmp_eq_u64 vcc, exec")
        b(f"  s_cbranch_scc1 {label}_rdy_ok")
        b(f"  buffer_load_dword v27, v26, s[{SRD_PF}:{SRD_PF+3}], 0 offen sc1")
        b(f"  s_waitcnt vmcnt(0)")
        b(f"  s_sub_u32 s11, s11, 1")
        b(f"  s_cmp_lg_u32 s11, 0")
        b(f"  s_cbranch_scc1 {label}_rdy")
        b.label(f"{label}_rdy_ok")
    b(f"  s_lshl_b32 s10, s{shard_sreg}, 8")
    b(f"  s_add_u32 s10, s10, {bar*4096}")
    b(f"  v_mov_b32 v228, s10")
    b(f"  v_mov_b32 v229, 1")
    b(f"  s_mov_b64 s[16:17], exec")
    b(f"  s_mov_b64 exec, 1")
    b(f"  buffer_atomic_add v229, v228, s[{SRD_CNT}:{SRD_CNT+3}], 0 offen sc1")
    b(f"  s_mov_b64 exec, s[16:17]")
    b.label(f"{label}_arr_skip")

def wait(b, bar, target, label, single_sreg=None):
    b(f"  s_cmp_lg_u32 s{S_W}, 0")
    b(f"  s_cbranch_scc1 {label}_w_skip")
    if single_sreg is None:
        b(f"  v_and_b32 v228, 15, v7")
        b(f"  v_lshlrev_b32 v228, 8, v228")
        b(f"  v_add_u32 v228, {bar*4096}, v228")
    else:
        b(f"  s_lshl_b32 s10, s{single_sreg}, 8")
        b(f"  s_add_u32 s10, s10, {bar*4096}")
        b(f"  v_mov_b32 v228, s10")
    b(f"  s_mov_b32 s11, 200000")
    b.label(f"{label}_poll")
    b(f"  buffer_load_dword v229, v228, s[{SRD_CNT}:{SRD_CNT+3}], 0 offen sc1")
    b(f"  s_waitcnt vmcnt(0)")
    b(f"  v_cmp_le_u32 vcc, {target}, v229")
    b(f"  s_nop 1")
    b(f"  s_cmp_eq_u64 vcc, exec")
    b(f"  s_cbranch_scc1 {label}_w_skip")
    b(f"  s_sub_u32 s11, s11, 1")
    b(f"  s_cmp_lg_u32 s11, 0")
    b(f"  s_cbranch_scc1 {label}_poll")
    b.label(f"{label}_w_skip")
    b(f"  s_barrier")

def prefetch(b, ptr_pair, nbytes, start, length, who_scale, who_sreg, vaddr, vdst, stmp, paced=False):
    chunk = -(-length // who_scale)
    n_per_wave = -(-chunk // (512 * 128))
    stride = -(-chunk // (512 * n_per_wave))
    stride = (stride + 3) // 4 * 4
    per_instr = 64 * stride
    srd(b, SRD_PF, ptr_pair, nbytes)
    b(f"  s_mul_i32 s{stmp}, s{who_sreg}, {chunk}")
    b(f"  s_mul_i32 s{stmp+1}, s{S_W}, {n_per_wave*per_instr}")
    b(f"  s_add_u32 s{stmp}, s{stmp}, s{stmp+1}")
    if start: b(f"  s_add_u32 s{stmp}, s{stmp}, {start}")
    b(f"  v_mul_u32_u24 v{vaddr}, {stride}, v7")
    for i in range(n_per_wave):
        b(f"  buffer_load_dword v{vdst}, v{vaddr}, s[{SRD_PF}:{SRD_PF+3}], s{stmp} offen")
        if i + 1 < n_per_wave: b(f"  s_add_u32 s{stmp}, s{stmp}, {per_instr}")
        if paced: b(f"  s_waitcnt vmcnt(0)")
    return n_per_wave

V_DUMMY = 232
def pf_wide(b, ptr_pair, nbytes, s_base, n, wave_lo, wave_hi, label):
    b(f"  s_cmp_lt_u32 s{S_W}, {wave_lo}")
    b(f"  s_cbranch_scc1 {label}")
    if wave_hi < 8:
        b(f"  s_cmp_ge_u32 s{S_W}, {wave_hi}")
        b(f"  s_cbranch_scc1 {label}")
    srd(b, SRD_PF, ptr_pair, nbytes)
    b(f"  s_sub_u32 s{S_T+9}, s{S_W}, {wave_lo}")
    b(f"  s_mul_i32 s{S_T+9}, s{S_T+9}, {n*1024}")
    b(f"  s_add_u32 s{S_T+9}, s{S_T+9}, s{s_base}")
    b(f"  v_lshlrev_b32 v29, 4, v7")
    for i in range(n):
        if i and i % 4 == 0: b(f"  s_add_u32 s{S_T+9}, s{S_T+9}, 4096")
        b(f"  buffer_load_dwordx4 {vr(V_DUMMY,4)}, v29, s[{SRD_PF}:{SRD_PF+3}], s{S_T+9} offen offset:{(i%4)*1024}")
    b.label(label)

def w1_share_base(b, sreg, part):
    b(f"  s_mul_i32 s{sreg}, s2, {W1B // 256}")
    if part: b(f"  s_add_u32 s{sreg}, s{sreg}, {part}")

def w1_first_half_base(b, sreg, part):
    b(f"  s_and_b32 s{sreg}, s2, 7")
    b(f"  s_mul_i32 s{sreg}, s{sreg}, {256*7168}")
    b(f"  s_lshr_b32 s{S_T+9}, s2, 3")
    b(f"  s_mul_i32 s{S_T+9}, s{S_T+9}, {4*7168}")
    b(f"  s_add_u32 s{sreg}, s{sreg}, s{S_T+9}")
    if part: b(f"  s_add_u32 s{sreg}, s{sreg}, {part}")

def p1_tables(b):
    M1, M2, TW = L1_M1, L1_M2, L1_TW
    b(f"  v_and_b32 v10, 255, v0            ; e")
    b(f"  v_lshrrev_b32 v11, 8, v0          ; u")
    b(f"  v_bfe_u32 v12, v10, 2, 4          ; lane&15")
    b(f"  v_lshl_add_u32 v12, v11, 4, v12   ; k1")
    b(f"  v_lshrrev_b32 v13, 6, v10         ; g")
    b(f"  v_and_b32 v14, 3, v10")
    b(f"  v_lshlrev_b32 v13, 3, v13")
    b(f"  v_lshl_add_u32 v13, v14, 1, v13   ; a0 = 8g + 2i")
    b(f"  v_mul_u32_u24 v15, v13, v12       ; a0*k1")
    b(f"  v_add_u32 v16, v15, v12           ; (a0+1)*k1")
    sincos(b, 17, 18, 15, 5, 21)
    sincos(b, 19, 20, 16, 5, 21)
    b(f"  v_lshlrev_b32 v22, 2, v10")
    b(f"  v_lshl_add_u32 v22, v11, 11, v22  ; u*2048 + e*4")
    b(f"  v_cvt_pk_bf16_f32 v23, v17, v19")
    b(f"  v_cvt_pk_bf16_f32 v24, -v18, -v20")
    b(f"  ds_write_b32 v22, v23 offset:{M1}")
    b(f"  ds_write_b32 v22, v24 offset:{M1+1024}")
    sincos(b, 17, 18, 15, 10, 21)
    sincos(b, 19, 20, 16, 10, 21)
    b(f"  ds_write_b32 v22, v17 offset:{TW}")
    b(f"  ds_write_b32 v22, v18 offset:{TW+1024}")
    b(f"  ds_write_b32 v22, v19 offset:{TW+4096}")
    b(f"  ds_write_b32 v22, v20 offset:{TW+4096+1024}")
    b(f"  v_bfe_u32 v12, v10, 2, 4          ; k2")
    b(f"  v_mul_u32_u24 v15, v13, v12")
    b(f"  v_add_u32 v16, v15, v12")
    sincos(b, 17, 18, 15, 5, 21)
    sincos(b, 19, 20, 16, 5, 21)
    b(f"  v_lshlrev_b32 v22, 2, v10")
    b(f"  v_cvt_pk_bf16_f32 v23, v17, v19")
    b(f"  v_cvt_pk_bf16_f32 v24, v18, v20")
    b(f"  v_cvt_pk_bf16_f32 v25, -v18, -v20")
    b(f"  ds_write_b32 v22, v23 offset:{M2}")
    b(f"  ds_write_b32 v22, v24 offset:{M2+1024}")
    b(f"  ds_write_b32 v22, v25 offset:{M2+2048}")

def ln_fast(b, X, T, S0, alt):
    b(f"  v_readlane_b32 s{S0}, v{X}, 0              ; pivot")
    b(f"  s_nop 1")
    for i in range(0, 16, 2):
        b(f"  v_pk_add_f32 {vr(X+i,2)}, {vr(X+i,2)}, s[{S0}:{S0+1}] op_sel_hi:[1,0] neg_lo:[0,1] neg_hi:[0,1]")
    b(f"  v_pk_add_f32 {vr(T,2)}, {vr(X,2)}, {vr(X+2,2)}")
    b(f"  v_pk_add_f32 {vr(T+2,2)}, {vr(X+8,2)}, {vr(X+10,2)}")
    b(f"  v_pk_mul_f32 {vr(T+4,2)}, {vr(X,2)}, {vr(X,2)}")
    b(f"  v_pk_add_f32 {vr(T,2)}, {vr(T,2)}, {vr(X+4,2)}")
    b(f"  v_pk_add_f32 {vr(T+2,2)}, {vr(T+2,2)}, {vr(X+12,2)}")
    b(f"  v_pk_fma_f32 {vr(T+4,2)}, {vr(X+2,2)}, {vr(X+2,2)}, {vr(T+4,2)}")
    b(f"  v_pk_add_f32 {vr(T,2)}, {vr(T,2)}, {vr(X+6,2)}")
    b(f"  v_pk_add_f32 {vr(T+2,2)}, {vr(T+2,2)}, {vr(X+14,2)}")
    for i in range(4, 16, 2):
        b(f"  v_pk_fma_f32 {vr(T+4,2)}, {vr(X+i,2)}, {vr(X+i,2)}, {vr(T+4,2)}")
    b(f"  v_add_f32 v{T}, v{T}, v{T+1}")
    b(f"  v_add_f32 v{T+2}, v{T+2}, v{T+3}")
    if not alt: b(f"  v_add_f32 v{T}, v{T}, v{T+2}")
    b(f"  v_add_f32 v{T+4}, v{T+4}, v{T+5}           ; squares")
    if alt:
        wave_reduce(b, [T, T+2, T+4])
        b(f"  v_sub_f32 v{T+1}, v{T}, v{T+2}             ; E - O")
        b(f"  v_add_f32 v{T}, v{T}, v{T+2}")
        b(f"  s_nop 0")
        b(f"  v_readlane_b32 s{S0+2}, v{T}, 63")
        b(f"  v_readlane_b32 s{S0+3}, v{T+4}, 63")
        b(f"  v_readlane_b32 s{S0+4}, v{T+1}, 63")
    else:
        wave_reduce(b, [T, T+4])
        b(f"  s_nop 0")
        b(f"  v_readlane_b32 s{S0+2}, v{T}, 63")
        b(f"  v_readlane_b32 s{S0+3}, v{T+4}, 63")
    b(f"  s_nop 0")
    b(f"  v_mov_b32 v{T}, {hex(f2u(1.0/1024))}")
    b(f"  v_mul_f32 v{T+1}, s{S0+2}, v{T}")
    b(f"  v_mul_f32 v{T+2}, s{S0+3}, v{T}")
    b(f"  v_fma_f32 v{T+2}, -v{T+1}, v{T+1}, v{T+2}  ; variance")
    b(f"  v_max_f32 v{T+2}, 0, v{T+2}")
    b(f"  v_add_f32 v{T+2}, {hex(f2u(1e-5))}, v{T+2}")
    b(f"  v_rsq_f32 v{T+4}, v{T+2}")
    b(f"  s_nop 0")
    b(f"  v_mul_f32 v{T+8}, -v{T+1}, v{T+4}          ; -mean*rstd")
    if alt: b(f"  v_mul_f32 v{T+6}, s{S0+4}, v{T+4}")
    for i in range(0, 16, 2):
        b(f"  v_pk_fma_f32 {vr(X+i,2)}, {vr(X+i,2)}, {vr(T+4,2)}, {vr(T+8,2)} op_sel_hi:[1,0,0]")

def x1_store_addr(b):
    b(f"  v_lshlrev_b32 v5, 15, v9")
    b(f"  v_lshl_add_u32 v5, v8, 2, v5")
    b(f"  s_and_b32 s{S_T+6}, s2, 15")
    b(f"  s_lshl_b32 s{S_T+6}, s{S_T+6}, 4")
    b(f"  s_lshr_b32 s{S_T+7}, s2, 4")
    b(f"  s_add_u32 s{S_T+6}, s{S_T+6}, s{S_T+7}")
    b(f"  s_lshl_b32 s{S_T+6}, s{S_T+6}, 6       ; pos*64")
    b(f"  s_lshl_b32 s{S_T+7}, s{S_W}, 19        ; 4w*131072")
    b(f"  s_add_u32 s44, s{S_T+6}, s{S_T+7}")

def w_early(b):
    srd(b, SRD_C, P_WR, WB)
    srd(b, SRD_D, P_WI, WB)
    b(f"  s_and_b32 s{S_T+2}, s2, 7              ; j1")
    b(f"  v_and_b32 v215, 1, v0                ; half")
    b(f"  v_bfe_u32 v11, v0, 5, 4              ; c")
    b(f"  v_bfe_u32 v12, v0, 1, 4              ; e")
    b(f"  v_lshl_add_u32 v13, v12, 4, v11      ; j2")
    b(f"  v_lshlrev_b32 v13, 3, v13")
    b(f"  v_add_u32 v13, s{S_T+2}, v13         ; j")
    b(f"  v_mul_u32_u24 v214, 1026, v13")
    b(f"  v_lshl_add_u32 v14, v215, 4, v214")
    b(f"  s_lshr_b32 s{S_T+3}, s2, 3           ; kb")
    b(f"  s_lshl_b32 s{S_T+3}, s{S_T+3}, 5")
    b(f"  buffer_load_dwordx4 {vr(WE,4)}, v14, s[{SRD_C}:{SRD_C+3}], s{S_T+3} offen{XF()}")
    b(f"  buffer_load_dwordx4 {vr(WE+4,4)}, v14, s[{SRD_D}:{SRD_D+3}], s{S_T+3} offen{XF()}")

def p1(b):
    srd(b, SRD_A, P_X, 4 << 20)
    srd(b, SRD_B, P_WS, 4 << 20, WS_X1)
    b(f"  s_lshl_b32 s{S_T}, s{S_W}, 8")
    b(f"  s_add_u32 s{S_T}, s{S_T}, s2          ; s")
    b(f"  s_lshl_b32 s{S_T+1}, s{S_T}, 11")
    b(f"  v_lshlrev_b32 v1, 9, v9")
    b(f"  v_lshl_add_u32 v1, v8, 2, v1")
    XD = 32
    b(f"  s_cmp_ge_u32 s2, 16")
    b(f"  s_cbranch_scc1 p1_noreset")
    b(f"  s_cmp_lg_u32 s{S_W}, 0")
    b(f"  s_cbranch_scc1 p1_noreset")
    b(f"  s_lshl_b32 s{S_T+2}, s2, 8")
    b(f"  v_lshlrev_b32 v2, 12, v7")
    b(f"  v_add_u32 v2, s{S_T+2}, v2")
    b(f"  v_mov_b32 v3, 0")
    b(f"  s_mov_b64 s[48:49], exec")
    b(f"  s_mov_b64 exec, 15")
    b(f"  buffer_store_dword v3, v2, s[{SRD_CNT}:{SRD_CNT+3}], 0 offen sc1")
    b(f"  s_mov_b64 exec, s[48:49]")
    b.label("p1_noreset")
    for i in range(8):
        b(f"  buffer_load_dword v{XD+i}, v1, s[{SRD_A}:{SRD_A+3}], s{S_T+1} offen offset:{64*i}{XF()}")
    NCLR = 0
    NWE = 0
    x1_store_addr(b)
    if SENT():
        b(f"  v_mov_b32 v60, -1")
        b(f"  v_mov_b32 v61, -1")
        b(f"  v_mov_b32 v62, -1")
        b(f"  v_mov_b32 v63, -1")
        b(f"  v_bfe_u32 v2, v7, 2, 3              ; j1")
        b(f"  v_lshrrev_b32 v3, 5, v7             ; i (0,1)")
        b(f"  v_lshlrev_b32 v2, 14, v2")
        b(f"  v_lshl_add_u32 v2, v3, 17, v2")
        b(f"  v_and_b32 v3, 3, v7")
        b(f"  v_lshl_add_u32 v2, v3, 4, v2")
        b(f"  buffer_store_dwordx4 v[60:63], v2, s[{SRD_B}:{SRD_B+3}], s44 offen{SF}")
        b(f"  s_add_u32 s{S_T+7}, s44, {2*131072}")
        b(f"  buffer_store_dwordx4 v[60:63], v2, s[{SRD_B}:{SRD_B+3}], s{S_T+7} offen{SF}")
        NCLR = 2
    if "tlbw" in OPT:
        b(f"  s_cmp_lg_u32 s{S_W}, 7")
        b(f"  s_cbranch_scc1 p1_notlb")
        sh = 20 if "tlb1m" in OPT else (19 if "tlb512k" in OPT else 21)
        b(f"  v_lshlrev_b32 v2, {sh}, v7")
        lst = [(P_WS, 32 << 20), (P_W1, W1B), (P_W2, W1B), (P_WR, WB), (P_WI, WB), (P_OUT, 4 << 20), (P_B1, 7168), (P_B2, 4096)]
        for ptr, size in lst:
            srd(b, SRD_PF, ptr, size)
            b(f"  s_mov_b64 s[16:17], exec")
            n = min(64, -(-size // (1 << sh)))
            b(f"  s_mov_b64 exec, {hex((1 << n) - 1)}")
            b(f"  buffer_load_dword v230, v2, s[{SRD_PF}:{SRD_PF+3}], 0 offen")
            b(f"  s_mov_b64 exec, s[16:17]")
        if "pf7" in OPT:
            n7 = 0
            if "wpf" in OPT:
                b(f"  s_mul_i32 s{S_T+8}, s2, 8208")
                b(f"  v_lshlrev_b32 v29, 4, v7")
                for ptr in (P_WR, P_WI):
                    srd(b, SRD_PF, ptr, WB)
                    b(f"  s_mov_b32 s{S_T+9}, s{S_T+8}")
                    for i in range(9):
                        if i and i % 4 == 0: b(f"  s_add_u32 s{S_T+9}, s{S_T+9}, 4096")
                        b(f"  buffer_load_dwordx4 {vr(V_DUMMY,4)}, v29, s[{SRD_PF}:{SRD_PF+3}], s{S_T+9} offen offset:{(i%4)*1024}")
                        n7 += 1
            if PFN[0]:
                w1_share_base(b, S_T + 9, 0)
                b(f"  v_lshlrev_b32 v29, 4, v7")
                srd(b, SRD_PF, P_W1, W1B)
                for i in range(4 * PFN[0]):
                    if i and i % 4 == 0: b(f"  s_add_u32 s{S_T+9}, s{S_T+9}, 4096")
                    b(f"  buffer_load_dwordx4 {vr(V_DUMMY,4)}, v29, s[{SRD_PF}:{SRD_PF+3}], s{S_T+9} offen offset:{(i%4)*1024}")
                    n7 += 1
            N7[0] = n7
        b.label("p1_notlb")
    if "wearly" in OPT:
        w_early(b); NCLR += 2
    npf = 0
    p1_tables(b)
    GM = 30
    gmat(b, GM, 2, False, 10)
    srd(b, SRD_PF, P_DBG, 256)
    b(f"  s_and_b32 s{S_T+8}, s2, 15")
    b(f"  s_lshl_b32 s{S_T+9}, s{S_T+8}, 2")
    b(f"  s_add_u32 s{S_T+9}, s{S_T+9}, 64")
    b(f"  v_mov_b32 v25, s{S_T+9}")
    b(f"  v_lshlrev_b32 v26, 2, v8")
    b(f"  v_add_u32 v26, 64, v26")
    b(f"  s_cmp_ge_u32 s2, 16")
    b(f"  s_cbranch_scc1 p1_noflag")
    b(f"  s_cmp_lg_u32 s{S_W}, 0")
    b(f"  s_cbranch_scc1 p1_noflag")
    b(f"  s_waitcnt vmcnt({8} + 0)".replace(" + 0", "") if NCLR == 0 else f"  s_waitcnt vmcnt({8 + NCLR})")
    b(f"  v_mov_b32 v3, 1")
    b(f"  s_mov_b64 s[48:49], exec")
    b(f"  s_mov_b64 exec, 1")
    b(f"  buffer_store_dword v3, v25, s[{SRD_PF}:{SRD_PF+3}], 0 offen sc1")
    b(f"  s_mov_b64 exec, s[48:49]")
    b.label("p1_noflag")
    b(f"  s_waitcnt lgkmcnt(0)")
    stamp(b, "p1 tables done")
    b(f"  s_barrier")
    npf = 0
    if "nopf" not in OPT:
        b(f"  s_mul_i32 s{S_T+8}, s2, 8208")
        if "ntx" not in OPT and "wpf" in OPT and "pf7" not in OPT:
            pf_wide(b, P_WR, WB, S_T + 8, 3, 0, 3, "pf_p1a")
            pf_wide(b, P_WI, WB, S_T + 8, 3, 0, 3, "pf_p1b")
        if "ntw1" not in OPT and PFN[0] and "pf7" not in OPT:
            w1_share_base(b, S_T + 8, 0)
            pf_wide(b, P_W1, W1B, S_T + 8, PFN[0], 4, 8, "pf_p1c")
    M1, M2, TW = 96, 112, 128
    b(f"  v_lshlrev_b32 v2, 4, v7")
    for i in range(4): b(f"  ds_read_b128 {vr(M1+4*i,4)}, v2 offset:{L1_M1+1024*i}")
    for i in range(3): b(f"  ds_read_b128 {vr(M2+4*i,4)}, v2 offset:{L1_M2+1024*i}")
    for i in range(8): b(f"  ds_read_b128 {vr(TW+4*i,4)}, v2 offset:{L1_TW+1024*i}")
    X = 40
    nW = 0 if ("nopf" in OPT or "ntx" in OPT or "wpf" not in OPT or "pf7" in OPT) else 6
    n1 = 0 if ("nopf" in OPT or "ntw1" in OPT or "pf7" in OPT) else PFN[0]
    b(f"  s_cmp_eq_u32 s{S_W}, 3")
    b(f"  s_cbranch_scc1 p1_xw0")
    b(f"  s_cmp_ge_u32 s{S_W}, 4")
    b(f"  s_cbranch_scc1 p1_xw4")
    b(f"  s_waitcnt vmcnt({NCLR + nW})")
    b(f"  s_branch p1_xwd")
    b.label("p1_xw4")
    if "tlbw" in OPT:
        b(f"  s_cmp_lg_u32 s{S_W}, 7")
        b(f"  s_cbranch_scc1 p1_xw5")
        b(f"  s_waitcnt vmcnt({min(63, NCLR + n1 + 8 + N7[0])})")
        b(f"  s_branch p1_xwd")
        b.label("p1_xw5")
    b(f"  s_waitcnt vmcnt({NCLR + n1})")
    b(f"  s_branch p1_xwd")
    b.label("p1_xw0")
    b(f"  s_waitcnt vmcnt({NCLR})")
    b.label("p1_xwd")
    stamp(b, "p1 x landed")
    if "wearly" in OPT:
        b(f"  s_cmp_ge_u32 s2, 8")
        b(f"  s_cbranch_scc1 p1_nonyq")
        b(f"  buffer_load_ushort v212, v214, s[{SRD_C}:{SRD_C+3}], 0 offen offset:1024")
        b(f"  buffer_load_ushort v213, v214, s[{SRD_D}:{SRD_D+3}], 0 offen offset:1024")
        b.label("p1_nonyq")
    srd(b, SRD_PF, P_DBG, 256)
    for i in range(8):
        b(f"  v_lshlrev_b32 v{X+i}, 16, v{XD+i}")
        b(f"  v_and_b32 v{X+8+i}, 0xffff0000, v{XD+i}")
    T = 56
    ln_fast(b, X, T, S_T + 2, True)
    stamp(b, "p1 ln done")
    if SENT():
        b(f"  buffer_load_dword v27, v26, s[{SRD_PF}:{SRD_PF+3}], 0 offen sc1")
        b(f"  s_and_b32 s{S_T+8}, s2, 15")
        arrive(b, 0, S_T + 8, first=True, label="x1")
        stamp(b, "p1 arrived")
        srd(b, SRD_C, P_WS, 4 << 20, WS_X2)
        for i in range(4): b(f"  v_mov_b32 v{200+i}, -1")
        b(f"  v_lshlrev_b32 v2, 4, v0")
        b(f"  s_lshl_b32 s{S_T+7}, s2, 14")
        b(f"  buffer_store_dwordx4 v[200:203], v2, s[{SRD_C}:{SRD_C+3}], s{S_T+7} offen{SF}")
        b(f"  s_add_u32 s{S_T+7}, s{S_T+7}, 8192")
        b(f"  buffer_store_dwordx4 v[200:203], v2, s[{SRD_C}:{SRD_C+3}], s{S_T+7} offen{SF}")
    A = 64
    for be in range(2):
        for i in range(4):
            b(f"  v_cvt_pk_bf16_f32 v{A+4*be+i}, v{X+8*be+2*i}, v{X+8*be+2*i+1}")
    b(f"  s_waitcnt lgkmcnt(0)")
    b(f"  v_readlane_b32 s{S_T+5}, v{T+6}, 0")
    Y = 160
    for be in range(2):
        for u in range(2):
            for c in range(2):
                d = Y + ((be * 2 + u) * 2 + c) * 4
                b(f"  {MF32} {vr(d,4)}, {vr(A+4*be,4)}, {vr(M1+4*(2*u+c),4)}, 0")
    b(f"  s_nop 4")
    Bp = 72; W = 32; O = 40
    for u in range(2):
        for be in range(2):
            y = Y + ((be * 2 + u) * 2) * 4
            tw = TW + (be * 4 + u * 2) * 4
            cmul_pk(b, O + 8 * be, O + 8 * be + 4, y, y + 4, tw, tw + 4, W, False)
        for r in range(4):
            b(f"  v_cvt_pk_bf16_f32 v{Bp+8*u+r}, v{O+r}, v{O+8+r}")
            b(f"  v_cvt_pk_bf16_f32 v{Bp+8*u+4+r}, v{O+4+r}, v{O+12+r}")
    XO = 160
    b(f"  s_nop 1")
    for u in range(2):
        re, im = XO + 8 * u, XO + 8 * u + 4
        b(f"  {MF32} {vr(re,4)}, {vr(M2,4)}, {vr(Bp+8*u,4)}, 0")
        b(f"  {MF32} {vr(im,4)}, {vr(M2,4)}, {vr(Bp+8*u+4,4)}, 0")
        b(f"  {MF32} {vr(re,4)}, {vr(M2+4,4)}, {vr(Bp+8*u+4,4)}, {vr(re,4)}")
        b(f"  {MF32} {vr(im,4)}, {vr(M2+8,4)}, {vr(Bp+8*u,4)}, {vr(im,4)}")
    b(f"  s_and_b32 s{S_T+6}, s{S_W}, 1")
    b(f"  s_lshl_b32 s{S_T+6}, s{S_T+6}, 8")
    b(f"  s_lshr_b32 s{S_T+7}, s{S_W}, 1")
    b(f"  s_lshl_b32 s{S_T+7}, s{S_T+7}, 6")
    b(f"  s_add_u32 s{S_T+6}, s{S_T+6}, s{S_T+7}")
    b(f"  v_lshlrev_b32 v3, 12, v9")
    b(f"  v_lshl_add_u32 v3, v8, 2, v3")
    b(f"  v_add_u32 v3, s{S_T+6}, v3")
    b(f"  s_nop 2")
    b(f"  v_writelane_b32 v{XO}, s{S_T+5}, 0")
    b(f"  v_writelane_b32 v{XO+4}, 0, 0")
    PK = 32
    for u in range(2):
        for r in range(4):
            b(f"  v_cvt_pk_bf16_f32 v{PK+4*u+r}, v{XO+8*u+r}, v{XO+8*u+4+r}")
    for u in range(2):
        for r in range(4):
            b(f"  ds_write_b32 v3, v{PK+4*u+r} offset:{L1_EX + u*512 + r*1024}")
    if SENT(): b(f"  s_waitcnt lgkmcnt(0) vmcnt(0)")
    else:
        b(f"  buffer_load_dword v27, v26, s[{SRD_PF}:{SRD_PF+3}], 0 offen sc1")
        b(f"  s_waitcnt lgkmcnt(0)")
    stamp(b, "p1 fft done")
    b(f"  s_barrier")
    b(f"  v_lshlrev_b32 v4, 6, v9")
    b(f"  v_lshl_add_u32 v4, v8, 2, v4")
    b(f"  s_lshl_b32 s{S_T+6}, s{S_W}, 11")
    b(f"  s_add_u32 s{S_T+6}, s{S_T+6}, {L1_EX}")
    b(f"  v_add_u32 v4, s{S_T+6}, v4")
    Bd = 40
    for i in range(4):
        b(f"  ds_read2st64_b32 {vr(Bd+2*i,2)}, v4 offset0:{2*i} offset1:{2*i+1}")
    D = 48
    for i in range(4):
        b(f"  s_waitcnt lgkmcnt({3-i})")
        b(f"  {MF16} {vr(D+4*i,4)}, {vr(GM,2)}, {vr(Bd+2*i,2)}, 0")
    b(f"  s_nop 4")
    for i in range(4):
        b(f"  v_cvt_pk_bf16_f32 v{64+2*i}, v{D+4*i}, v{D+4*i+1}")
        b(f"  v_cvt_pk_bf16_f32 v{65+2*i}, v{D+4*i+2}, v{D+4*i+3}")
        b(f"  v_min_u32 v{64+2*i}, 0xfffffffe, v{64+2*i}")
        b(f"  v_min_u32 v{65+2*i}, 0xfffffffe, v{65+2*i}")
        for e in range(2):
            b(f"  s_add_u32 s{S_T+7}, s44, {i*131072 + e*16384}")
            b(f"  buffer_store_dword v{64+2*i+e}, v5, s[{SRD_B}:{SRD_B+3}], s{S_T+7} offen{SF}")
    stamp(b, "p1 stores issued")
    if not SENT():
        b(f"  s_and_b32 s{S_T+8}, s2, 15")
        arrive(b, 0, S_T + 8, first=True, label="x1")
        stamp(b, "p1 arrived")

XL2, WL2 = 32, 40
WE = 204
TC2, TS2 = 64, 68
def p2_setup(b):
    srd(b, SRD_A, P_WS, 4 << 20, WS_X1)
    srd(b, SRD_B, P_WS, 4 << 20, WS_X2)
    srd(b, SRD_C, P_WR, WB)
    srd(b, SRD_D, P_WI, WB)
    b(f"  s_and_b32 s{S_T}, s2, 7              ; j1")
    b(f"  s_lshr_b32 s{S_T+1}, s2, 3           ; kb")
    b(f"  v_and_b32 v10, 1, v0                 ; half")
    b(f"  v_bfe_u32 v11, v0, 5, 4              ; c")
    b(f"  v_bfe_u32 v12, v0, 1, 4              ; e")
    b(f"  v_lshl_add_u32 v13, v12, 4, v11      ; j2")
    b(f"  v_lshlrev_b32 v13, 3, v13")
    b(f"  v_add_u32 v13, s{S_T}, v13           ; j")
    b(f"  v_mul_u32_u24 v13, 1026, v13")
    b(f"  v_lshlrev_b32 v14, 4, v10")
    b(f"  v_add_u32 v14, v13, v14")
    b(f"  s_lshl_b32 s{S_T+3}, s{S_T+1}, 5")
    if "wearly" in OPT:
        b(f"  s_cmp_lg_u32 s{S_T+1}, 0")
        b(f"  s_cbranch_scc1 p2_nonyq")
        b(f"  s_waitcnt vmcnt(0)")
        b(f"  v_cmp_eq_u32 vcc, 0, v215")
        b(f"  v_and_b32 v50, 0xffff0000, v{WE}")
        b(f"  v_or_b32 v50, v50, v212")
        b(f"  v_cndmask_b32 v{WE}, v{WE}, v50, vcc")
        b(f"  v_and_b32 v50, 0xffff0000, v{WE+4}")
        b(f"  v_or_b32 v50, v50, v213")
        b(f"  v_cndmask_b32 v{WE+4}, v{WE+4}, v50, vcc")
        b.label("p2_nonyq")
    elif "wlate" in OPT:
        b(f"  v_mov_b32 v24, v14")
        b(f"  v_mov_b32 v25, v13")
        b(f"  v_mov_b32 v26, v10                   ; half")
        b(f"  s_mov_b32 s45, s{S_T+3}              ; kb*32")
    else:
        WL = WL2
        b(f"  v_mov_b32 v24, v14")
        b(f"  v_mov_b32 v25, v13")
        b(f"  v_mov_b32 v26, v10                   ; half")
        b(f"  s_mov_b32 s45, s{S_T+3}              ; kb*32")
        WL = WL2
        b(f"  buffer_load_dwordx4 {vr(WL,4)}, v24, s[{SRD_C}:{SRD_C+3}], s45 offen{XF()}")
        b(f"  buffer_load_dwordx4 {vr(WL+4,4)}, v24, s[{SRD_D}:{SRD_D+3}], s45 offen{XF()}")
        b(f"  s_cmp_lg_u32 s{S_T+1}, 0")
        b(f"  s_cbranch_scc1 p2_nonyq")
        b(f"  buffer_load_ushort v48, v25, s[{SRD_C}:{SRD_C+3}], 0 offen offset:1024")
        b(f"  buffer_load_ushort v49, v25, s[{SRD_D}:{SRD_D+3}], 0 offen offset:1024")
        b(f"  s_waitcnt vmcnt(0)")
        b(f"  v_cmp_eq_u32 vcc, 0, v26")
        b(f"  v_and_b32 v50, 0xffff0000, v{WL}")
        b(f"  v_or_b32 v50, v50, v48")
        b(f"  v_cndmask_b32 v{WL}, v{WL}, v50, vcc")
        b(f"  v_and_b32 v50, 0xffff0000, v{WL+4}")
        b(f"  v_or_b32 v50, v50, v49")
        b(f"  v_cndmask_b32 v{WL+4}, v{WL+4}, v50, vcc")
        b.label("p2_nonyq")
    npf = 0
    b(f"  v_and_b32 v15, 255, v0")
    b(f"  v_bfe_u32 v16, v15, 2, 4             ; x")
    b(f"  v_lshrrev_b32 v17, 6, v15            ; g")
    b(f"  v_and_b32 v18, 3, v15")
    b(f"  v_lshl_add_u32 v17, v17, 2, v18      ; 4g+i")
    b(f"  v_mul_u32_u24 v17, v17, v16")
    sincos(b, 18, 19, 17, 4, 20)
    b(f"  v_cmp_gt_u32 vcc, 256, v0            ; matrix 0 ?")
    b(f"  v_xor_b32 v20, 0x80000000, v19       ; -sin")
    b(f"  s_nop 0")
    b(f"  v_cndmask_b32 v21, v20, v18, vcc")
    b(f"  v_cndmask_b32 v22, v18, v19, vcc")
    b(f"  v_cvt_pk_bf16_f32 v21, v21, v22")
    b(f"  v_lshlrev_b32 v22, 2, v0")
    b(f"  ds_write_b32 v22, v21 offset:{L2_F}")
    b(f"  v_lshlrev_b32 v16, 2, v9")
    for r in range(4):
        b(f"  v_add_u32 v17, {r}, v16")
        b(f"  v_mul_u32_u24 v17, v17, v8")
        sincos(b, TC2 + r, TS2 + r, 17, 8, 20)
    b(f"  v_and_b32 v16, 3, v0                 ; i")
    b(f"  v_mul_u32_u24 v16, {4*1040}, v16")
    b(f"  v_lshrrev_b32 v17, 6, v0             ; b (0..7)")
    b(f"  v_lshl_add_u32 v16, v17, 6, v16")
    b(f"  v_bfe_u32 v17, v0, 2, 2              ; a&3")
    b(f"  v_lshl_add_u32 v16, v17, 2, v16")
    b(f"  v_bfe_u32 v17, v0, 4, 2              ; a>>2")
    b(f"  v_lshl_add_u32 v21, v17, 4, v16      ; first")
    b(f"  v_xor_b32 v17, 2, v17")
    b(f"  v_lshl_add_u32 v22, v17, 4, v16")
    b(f"  v_add_u32 v22, 512, v22              ; second (b+8)")
    b(f"  v_mul_u32_u24 v16, {4*1040}, v10")
    b(f"  v_lshl_add_u32 v16, v11, 6, v16")
    b(f"  v_and_b32 v17, 3, v12")
    b(f"  v_lshl_add_u32 v16, v17, 2, v16")
    b(f"  v_lshrrev_b32 v17, 2, v12")
    b(f"  v_lshrrev_b32 v18, 3, v11            ; c>>3")
    b(f"  v_lshlrev_b32 v18, 1, v18")
    b(f"  v_xor_b32 v17, v17, v18")
    b(f"  v_lshl_add_u32 v23, v17, 4, v16")
    b(f"  v_lshrrev_b32 v16, 3, v8")
    b(f"  v_lshlrev_b32 v16, 1, v16")
    b(f"  v_xor_b32 v16, v16, v9")
    b(f"  v_lshlrev_b32 v16, 4, v16")
    b(f"  v_lshl_add_u32 v16, v8, 6, v16")
    b(f"  s_mul_i32 s{S_T+4}, s{S_W}, {2*1040}")
    b(f"  s_mul_i32 s{S_T+5}, s{S_W}, 1040")
    b(f"  v_add_u32 v5, s{S_T+4}, v16")
    b(f"  v_add_u32 v6, s{S_T+5}, v16")
    b(f"  v_lshlrev_b32 v1, 4, v0")
    b(f"  s_lshl_b32 s{S_T+2}, s2, 14")
    b(f"  s_add_u32 s{S_T+3}, s{S_T+2}, 8192")
    b(f"  s_waitcnt lgkmcnt(0)")

def sentinel_check(b, R0, pre, n=8):
    b(f"  v_max3_u32 v16, v{R0}, v{R0+1}, v{R0+2}")
    b(f"  v_max3_u32 v17, v{R0+3}, v{R0+4}, v{R0+5}")
    b(f"  v_max3_u32 v16, v16, v{R0+6}, v{R0+7}")
    for i in range(8, n, 2): b(f"  v_max3_u32 v17, v17, v{R0+i}, v{R0+i+1}")
    b(f"  v_max_u32 v16, v16, v17")
    b(f"  v_cmp_eq_u32 vcc, -1, v16")
    b(f"  s_sub_u32 s11, s11, 1")
    b(f"  s_cmp_eq_u32 s11, 0")
    b(f"  s_cbranch_scc1 {pre}_got")
    b(f"  s_cmp_lg_u64 vcc, 0")
    b(f"  s_cbranch_scc1 {pre}_poll")
    b.label(f"{pre}_got")

def p2_main(b):
    XL = XL2; TC, TS = TC2, TS2
    if SENT():
        b(f"  s_mov_b32 s11, 200000")
        b.label("p2_poll")
    b(f"  buffer_load_dwordx4 {vr(XL,4)}, v1, s[{SRD_A}:{SRD_A+3}], s{S_T+2} offen sc1")
    b(f"  buffer_load_dwordx4 {vr(XL+4,4)}, v1, s[{SRD_A}:{SRD_A+3}], s{S_T+3} offen sc1")
    if "wlate" in OPT:
        assert not SENT()
        WL = WL2
        b(f"  buffer_load_dwordx4 {vr(WL,4)}, v24, s[{SRD_C}:{SRD_C+3}], s45 offen{XF()}")
        b(f"  buffer_load_dwordx4 {vr(WL+4,4)}, v24, s[{SRD_D}:{SRD_D+3}], s45 offen{XF()}")
        b(f"  s_cmp_lg_u32 s{S_T+1}, 0")
        b(f"  s_cbranch_scc1 p2_nonyq")
        b(f"  buffer_load_ushort v56, v25, s[{SRD_C}:{SRD_C+3}], 0 offen offset:1024")
        b(f"  buffer_load_ushort v57, v25, s[{SRD_D}:{SRD_D+3}], 0 offen offset:1024")
        b(f"  s_waitcnt vmcnt(0)")
        b(f"  v_cmp_eq_u32 vcc, 0, v26")
        b(f"  v_and_b32 v58, 0xffff0000, v{WL}")
        b(f"  v_or_b32 v58, v58, v56")
        b(f"  v_cndmask_b32 v{WL}, v{WL}, v58, vcc")
        b(f"  v_and_b32 v58, 0xffff0000, v{WL+4}")
        b(f"  v_or_b32 v58, v58, v57")
        b(f"  v_cndmask_b32 v{WL+4}, v{WL+4}, v58, vcc")
        b.label("p2_nonyq")
        b(f"  s_waitcnt vmcnt(2)")
    else:
        b(f"  s_waitcnt vmcnt(0)")
    if SENT(): sentinel_check(b, XL, "p2")
    WL = WE if "wearly" in OPT else WL2
    b(f"  v_lshlrev_b32 v17, 4, v7")
    FR, FI = 72, 76
    AX = 48; WR, WI = 152, 156
    b(f"  ds_read_b128 {vr(FR,4)}, v17 offset:{L2_F}")
    b(f"  ds_read_b128 {vr(FI,4)}, v17 offset:{L2_F+1024}")
    Dq = [80, 88]; Oq = [96, 104]; Tq = [112, 120]; Pq = [128, 132]; Wq = [136, 144]
    stamp(b, "p2 x landed")
    for j in range(4):
        b(f"  ds_write_b32 v21, v{XL+j} offset:{L2_X + j*1040}")
        b(f"  ds_write_b32 v22, v{XL+4+j} offset:{L2_X + j*1040}")
    if "wlate" in OPT: b(f"  s_waitcnt vmcnt(0)")
    for j in range(4):
        b(f"  ds_write_b32 v23, v{WL+j} offset:{L2_W + j*1040}")
        b(f"  ds_write_b32 v23, v{WL+4+j} offset:{L2_W + 8*1040 + j*1040}")
    if "nopf" not in OPT and "ntw1" not in OPT and PFN[1]:
        w1_share_base(b, S_T + 8, PFN[0] * 4096)
        pf_wide(b, P_W1, W1B, S_T + 8, PFN[1], 4, 8, "pf_p2a")
    b(f"  s_waitcnt lgkmcnt(0)")
    b(f"  s_barrier")
    b(f"  ds_read_b128 {vr(AX,4)}, v5 offset:{L2_X}")
    b(f"  ds_read_b128 {vr(AX+4,4)}, v5 offset:{L2_X+1040}")
    b(f"  ds_read_b128 {vr(WR,4)}, v6 offset:{L2_W}")
    b(f"  ds_read_b128 {vr(WI,4)}, v6 offset:{L2_W+8*1040}")
    def stage(form, src):
        for k in range(2):
            d = Dq[k]
            if form == 'A':
                b(f"  {MF32} {vr(d,4)}, {vr(src[k],4)}, {vr(FR,4)}, 0")
                b(f"  {MF32} {vr(d+4,4)}, {vr(src[k],4)}, {vr(FI,4)}, 0")
            else:
                b(f"  {MF32} {vr(d,4)}, {vr(FR,4)}, {vr(src[k],4)}, 0")
                b(f"  {MF32} {vr(d+4,4)}, {vr(FI,4)}, {vr(src[k],4)}, 0")
    def twiddle_pack():
        for k in range(2):
            cmul_pk(b, Oq[k], Oq[k] + 4, Dq[k], Dq[k] + 4, TC, TS, Tq[k], False)
        for k in range(2):
            for r in range(4):
                b(f"  v_cvt_pk_bf16_f32 v{Pq[k]+r}, v{Oq[k]+r}, v{Oq[k]+4+r}")
        b(f"  s_nop 1")
    b(f"  s_waitcnt lgkmcnt(2)")
    stage('A', [AX, AX + 4])
    b(f"  s_waitcnt lgkmcnt(0)")
    for r in range(4):
        b(f"  v_lshlrev_b32 v{Wq[0]+r}, 16, v{WR+r}")
        b(f"  v_lshlrev_b32 v{Wq[0]+4+r}, 16, v{WI+r}")
        b(f"  v_and_b32 v{Wq[1]+r}, 0xffff0000, v{WR+r}")
        b(f"  v_and_b32 v{Wq[1]+4+r}, 0xffff0000, v{WI+r}")
    twiddle_pack()
    stage('B', Pq)
    b(f"  s_nop 5")
    for k in range(2):
        cmul_pk(b, Oq[k], Oq[k] + 4, Dq[k], Dq[k] + 4, Wq[k], Wq[k] + 4, Tq[k], True)
    for k in range(2):
        for r in range(4):
            b(f"  v_cvt_pk_bf16_f32 v{Pq[k]+r}, v{Oq[k]+r}, -v{Oq[k]+4+r}")
    b(f"  s_nop 1")
    stage('A', Pq)
    b(f"  s_nop 5")
    twiddle_pack()
    stage('B', Pq)
    b(f"  s_nop 5")
    for k in range(2):
        for r in range(4):
            b(f"  v_cvt_pk_bf16_f32 v{Pq[k]+r}, v{Dq[k]+r}, -v{Dq[k]+4+r}")
    b(f"  ds_write_b128 v5, {vr(Pq[0],4)} offset:{L2_X}")
    b(f"  ds_write_b128 v5, {vr(Pq[1],4)} offset:{L2_X+1040}")
    b(f"  s_waitcnt lgkmcnt(0)")
    b(f"  s_barrier")
    for j in range(4):
        b(f"  ds_read_b32 v{XL+j}, v21 offset:{L2_X + j*1040}")
        b(f"  ds_read_b32 v{XL+4+j}, v22 offset:{L2_X + j*1040}")
    b(f"  v_bfe_u32 v16, v0, 2, 4              ; a")
    b(f"  v_lshrrev_b32 v17, 6, v0             ; b")
    b(f"  v_lshl_add_u32 v16, v16, 4, v17      ; s1")
    b(f"  v_lshlrev_b32 v16, 14, v16")
    b(f"  v_and_b32 v17, 3, v0")
    b(f"  v_lshl_add_u32 v16, v17, 4, v16")
    b(f"  s_lshl_b32 s{S_T+4}, s{S_T}, 11")
    b(f"  s_lshl_b32 s{S_T+5}, s{S_T+1}, 6")
    b(f"  s_add_u32 s{S_T+4}, s{S_T+4}, s{S_T+5}")
    b(f"  s_add_u32 s{S_T+5}, s{S_T+4}, {8*16384}")
    b(f"  s_waitcnt lgkmcnt(0)")
    for j in range(8): b(f"  v_min_u32 v{XL+j}, 0xfffffffe, v{XL+j}")
    b(f"  buffer_store_dwordx4 {vr(XL,4)}, v16, s[{SRD_B}:{SRD_B+3}], s{S_T+4} offen{SF}")
    b(f"  buffer_store_dwordx4 {vr(XL+4,4)}, v16, s[{SRD_B}:{SRD_B+3}], s{S_T+5} offen{SF}")
    stamp(b, "p2 stores issued")
    if not SENT():
        b(f"  s_and_b32 s{S_T+8}, s2, 15")
        arrive(b, 1, S_T + 8, label="x2")

V_LO = 224
S_G1A = 60
def g1_ids(b):
    b(f"  s_lshr_b32 s{S_T}, s2, 3                 ; i")
    b(f"  s_cmp_lt_u32 s{S_T}, 28")
    b(f"  s_cselect_b32 s62, 1, 0")
    b(f"  s_mul_i32 s{S_T+1}, s{S_T}, 37")
    b(f"  s_lshr_b32 s{S_T+1}, s{S_T+1}, 8         ; i/7")
    b(f"  s_mul_i32 s{S_T+2}, s{S_T+1}, 7")
    b(f"  s_sub_u32 s{S_T+2}, s{S_T}, s{S_T+2}     ; i%7")
    b(f"  s_and_b32 s{S_T+3}, s2, 7")
    b(f"  s_lshr_b32 s{S_T+4}, s{S_T+3}, 1")
    b(f"  s_mul_i32 s{S_T+4}, s{S_T+4}, 7")
    b(f"  s_add_u32 s60, s{S_T+4}, s{S_T+2}        ; ft")
    b(f"  s_and_b32 s{S_T+3}, s{S_T+3}, 1")
    b(f"  s_lshl_b32 s{S_T+3}, s{S_T+3}, 2")
    b(f"  s_add_u32 s61, s{S_T+3}, s{S_T+1}        ; dt")

S_SOFF, S_M0, S_N = 4, 5, 6
def loader_issue(b, voff, fl=""):
    for i in range(4):
        b(f"  s_add_u32 m0, s{S_M0}, {4096*i}")
        b(f"  s_nop 0")
        b(f"  buffer_load_dwordx4 v{voff+i}, s[{SRD_T}:{SRD_T+3}], s{S_SOFF} offen{fl} lds")
    b(f"  s_add_u32 s{S_SOFF}, s{S_SOFF}, s9")
    b(f"  s_add_u32 s{S_M0}, s{S_M0}, {STAGE}")
    b(f"  s_cmp_ge_u32 s{S_M0}, s{S_N+1}")
    b(f"  s_cselect_b32 s{S_N+2}, {R*STAGE}, 0")
    b(f"  s_sub_u32 s{S_M0}, s{S_M0}, s{S_N+2}")

def loader_init(b, step_bytes):
    b(f"  s_sub_u32 s50, s{S_W}, 4")
    b(f"  s_lshl_b32 s{S_M0}, s50, 10")
    b(f"  s_add_u32 s{S_N+1}, s{S_M0}, {R*STAGE}")
    b(f"  s_mov_b32 s{S_SOFF}, 0")
    b(f"  s_mov_b32 s9, {step_bytes}")

def g1_loader_addr(b):
    b(f"  s_sub_u32 s50, s{S_W}, 4      ; w'")
    for i in range(4):
        b(f"  s_lshl_b32 s49, s50, 2")
        b(f"  s_add_u32 s49, s49, {16*i}")
        b(f"  v_lshrrev_b32 v14, 4, v7")
        b(f"  v_add_u32 v14, s49, v14                 ; row 0..63")
        b(f"  v_and_b32 v15, 3, v14")
        b(f"  v_lshlrev_b32 v15, 2, v15")
        b(f"  v_and_b32 v16, 15, v7")
        b(f"  v_xor_b32 v16, v16, v15                 ; q")
        b(f"  v_lshrrev_b32 v17, 3, v14")
        b(f"  v_and_b32 v18, 7, v14")
        b(f"  v_lshl_add_u32 v17, v18, 8, v17         ; s")
        b(f"  v_mul_u32_u24 v17, 7168, v17")
        b(f"  v_lshl_add_u32 v17, v16, 4, v17")
        b(f"  s_lshl_b32 s49, s60, 8")
        b(f"  v_add_u32 v{V_LO+i}, s49, v17")

def g2_ids(b):
    if SK():
        b(f"  s_lshr_b32 s{S_T+1}, s2, 3")
        b(f"  s_lshr_b32 s{S_TILE_A}, s{S_T+1}, 2          ; dt")
        b(f"  s_lshr_b32 s{S_T}, s2, 1")
        b(f"  s_and_b32 s{S_T}, s{S_T}, 3")
        b(f"  s_lshl_b32 s{S_T}, s{S_T}, 2")
        b(f"  s_and_b32 s{S_T+1}, s{S_T+1}, 3")
        b(f"  s_add_u32 s{S_TILE_B}, s{S_T}, s{S_T+1}      ; st2")
        b(f"  s_and_b32 s19, s2, 1                       ; kh")
        return
    b(f"  s_and_b32 s{S_T}, s2, 1")
    b(f"  s_lshl_b32 s{S_T}, s{S_T}, 2")
    b(f"  s_lshr_b32 s{S_T+1}, s2, 3")
    b(f"  s_and_b32 s{S_T+2}, s{S_T+1}, 3")
    b(f"  s_add_u32 s{S_TILE_A}, s{S_T}, s{S_T+2}     ; dt")
    b(f"  s_lshr_b32 s{S_T}, s2, 1")
    b(f"  s_and_b32 s{S_T}, s{S_T}, 3")
    b(f"  s_lshl_b32 s{S_T}, s{S_T}, 3")
    b(f"  s_lshr_b32 s{S_T+1}, s{S_T+1}, 2")
    b(f"  s_add_u32 s{S_TILE_B}, s{S_T}, s{S_T+1}     ; st")

def g2_loader_addr(b):
    if SK():
        b(f"  s_sub_u32 s50, s{S_W}, 4")
        for i in range(4):
            b(f"  s_lshl_b32 s49, s50, 2")
            b(f"  s_add_u32 s49, s49, {16*i}")
            b(f"  v_lshrrev_b32 v14, 4, v7")
            b(f"  v_add_u32 v14, s49, v14                 ; row 0..63")
            b(f"  v_and_b32 v15, 3, v14")
            b(f"  v_lshlrev_b32 v15, 2, v15")
            b(f"  v_and_b32 v16, 15, v7")
            b(f"  v_xor_b32 v16, v16, v15                 ; q")
            b(f"  v_lshlrev_b32 v14, 12, v14              ; row*4096")
            b(f"  v_lshl_add_u32 v14, v16, 4, v14")
            b(f"  s_lshl_b32 s49, s{S_TILE_B}, 8          ; s0*2")
            b(f"  s_mul_i32 s48, s19, {1792*4096}         ; k half")
            b(f"  s_add_u32 s49, s49, s48")
            b(f"  v_add_u32 v{V_LO+i}, s49, v14")
        return
    b(f"  s_sub_u32 s50, s{S_W}, 4")
    for i in range(4):
        b(f"  s_lshl_b32 s49, s50, 3")
        b(f"  s_add_u32 s49, s49, {32*i}")
        b(f"  v_lshrrev_b32 v14, 3, v7")
        b(f"  v_add_u32 v14, s49, v14                 ; row")
        b(f"  v_bfe_u32 v15, v14, 1, 1")
        b(f"  v_lshlrev_b32 v15, 2, v15")
        b(f"  v_and_b32 v16, 7, v7")
        b(f"  v_xor_b32 v16, v16, v15                 ; q")
        b(f"  v_lshlrev_b32 v14, 12, v14              ; row*4096")
        b(f"  v_lshl_add_u32 v14, v16, 4, v14")
        b(f"  s_lshl_b32 s49, s{S_TILE_B}, 7          ; s0*2")
        b(f"  v_add_u32 v{V_LO+i}, s49, v14")

def loader_loop(b, NS, pre, fl=""):
    nmain = NS - (R - 2)
    b(f"  s_mov_b32 s{S_N}, {nmain}")
    b.label(f"{pre}_lloop")
    b(f"  s_waitcnt vmcnt({(R-3)*4})")
    b("  s_barrier")
    loader_issue(b, V_LO, fl)
    b(f"  s_sub_u32 s{S_N}, s{S_N}, 1")
    b(f"  s_cmp_lg_u32 s{S_N}, 0")
    b(f"  s_cbranch_scc1 {pre}_lloop")
    for i in range(R - 2):
        b(f"  s_waitcnt vmcnt({(R-3-i)*4})")
        b("  s_barrier")

BD3 = 32; XR3 = 192; GM3 = 30
def p3_tables(b):
    b(f"  v_and_b32 v10, 255, v0            ; e")
    b(f"  v_lshrrev_b32 v11, 8, v0")
    b(f"  v_bfe_u32 v12, v10, 2, 4          ; n = lane&15")
    b(f"  v_lshrrev_b32 v13, 6, v10         ; g")
    b(f"  v_and_b32 v14, 3, v10             ; r")
    b(f"  v_lshl_add_u32 v13, v13, 2, v14   ; 4g + r")
    b(f"  v_lshrrev_b32 v15, 2, v12")
    b(f"  v_lshlrev_b32 v15, 3, v15")
    b(f"  v_and_b32 v16, 3, v12")
    b(f"  v_add_u32 v15, v15, v16           ; b(n,0)")
    b(f"  v_lshl_add_u32 v16, v11, 2, v15   ; b(n, sel)")
    b(f"  v_mul_u32_u24 v17, v16, v13")
    sincos(b, 18, 19, 17, 5, 20)
    b(f"  v_lshlrev_b32 v22, 2, v10")
    b(f"  v_lshl_add_u32 v22, v11, 11, v22  ; sel*2048 + e*4")
    b(f"  v_add_u32 v22, {L3_M3}, v22")
    b(f"  v_cvt_pk_bf16_f32 v23, v18, -v19")
    b(f"  v_cvt_pk_bf16_f32 v24, v19, v18")
    b(f"  ds_write_b32 v22, v23")
    b(f"  ds_write_b32 v22, v24 offset:1024")
    b(f"  v_lshl_add_u32 v17, v11, 4, v13   ; k1")
    for z in range(2):
        b(f"  v_add_u32 v21, {16*z}, v12")
        b(f"  v_mul_u32_u24 v21, v21, v17")
        sincos(b, 18, 19, 21, 5, 20)
        b(f"  v_add_f32 v18, v18, v18")
        b(f"  v_mul_f32 v19, -2.0, v19")
        b(f"  v_cvt_pk_bf16_f32 v23, v18, v19")
        b(f"  ds_write_b32 v22, v23 offset:{4096+1024*z}")
    b(f"  v_lshlrev_b32 v23, 2, v10")
    b(f"  v_lshl_add_u32 v23, v11, 12, v23   ; u*4096 + e*4")
    b(f"  v_add_u32 v23, {L3_TW}, v23")
    for v in range(2):
        b(f"  v_add_u32 v21, {4*v}, v15")
        b(f"  v_mul_u32_u24 v21, v21, v17")
        sincos(b, 18, 19, 21, 10, 20)
        b(f"  ds_write_b32 v23, v18 offset:{2048*v}")
        b(f"  ds_write_b32 v23, v19 offset:{2048*v+1024}")

def p3_setup(b):
    srd(b, SRD_A, P_WS, 4 << 20, WS_X2)
    srd(b, SRD_B, P_X, 4 << 20)
    srd(b, SRD_C, P_WS, 4 << 20, WS_H)
    srd(b, SRD_D, P_WS, 4 << 20, WS_LN2)
    b(f"  s_lshl_b32 s{S_T+3}, s{S_W}, 8")
    b(f"  s_add_u32 s{S_T+3}, s{S_T+3}, s2")
    b(f"  s_lshl_b32 s{S_T+3}, s{S_T+3}, 11       ; s*2048")
    b(f"  v_lshlrev_b32 v4, 6, v8")
    b(f"  v_lshl_add_u32 v4, v9, 4, v4")
    for z in range(2):
        b(f"  buffer_load_dwordx4 {vr(XR3+4*z,4)}, v4, s[{SRD_B}:{SRD_B+3}], s{S_T+3} offen offset:{1024*z}")
    b(f"  s_mov_b32 s63, s{S_T+3}")
    if SK():
        srd(b, SRD_PF, P_WS, 4 << 20, WS_XCH)
        for i in range(4): b(f"  v_mov_b32 v{200+i}, -1")
        b(f"  v_lshlrev_b32 v2, 4, v0")
        b(f"  s_lshl_b32 s{S_T+8}, s2, 14")
        b(f"  buffer_store_dwordx4 v[200:203], v2, s[{SRD_PF}:{SRD_PF+3}], s{S_T+8} offen{SF}")
        b(f"  s_add_u32 s{S_T+8}, s{S_T+8}, 8192")
        b(f"  buffer_store_dwordx4 v[200:203], v2, s[{SRD_PF}:{SRD_PF+3}], s{S_T+8} offen{SF}")
    if "nopf" not in OPT and "ntw1" not in OPT:
        if PFN[2]:
            w1_share_base(b, S_T + 8, (PFN[0] + PFN[1]) * 4096)
            pf_wide(b, P_W1, W1B, S_T + 8, PFN[2], 4, 8, "pf_p3a")
    g1_ids(b)
    g1_loader_addr(b)
    loader_init(b, 8 * 7168)
    p3_tables(b)
    gmat(b, GM3, 2, True, 10)
    b(f"  v_lshlrev_b32 v1, 12, v9")
    b(f"  v_lshl_add_u32 v1, v8, 2, v1")
    b(f"  s_lshl_b32 s{S_T}, s2, 14")
    b(f"  s_and_b32 s{S_T+1}, s{S_W}, 1")
    b(f"  s_lshl_b32 s{S_T+1}, s{S_T+1}, 6")
    b(f"  s_lshr_b32 s{S_T+2}, s{S_W}, 1")
    b(f"  s_lshl_b32 s{S_T+2}, s{S_T+2}, 9")
    b(f"  s_add_u32 s{S_T}, s{S_T}, s{S_T+1}")
    b(f"  s_add_u32 s44, s{S_T}, s{S_T+2}          ; X2 soffset")
    b(f"  s_lshl_b32 s{S_T+1}, s{S_T+1}, 4        ; u*1024")
    b(f"  s_lshr_b32 s{S_T+2}, s{S_T+2}, 1        ; q4*256")
    b(f"  s_add_u32 s45, s{S_T+1}, s{S_T+2}")
    b(f"  s_waitcnt lgkmcnt(0)")

def p3_main(b):
    Bd, XR, GM = BD3, XR3, GM3
    D = 40
    b(f"  v_lshlrev_b32 v3, 12, v9")
    b(f"  v_lshl_add_u32 v3, v8, 4, v3")
    b(f"  v_add_u32 v3, s45, v3")
    b(f"  v_add_u32 v3, {L3_EX}, v3")
    M3, M4, TW = 96, 112, 128
    b(f"  v_lshlrev_b32 v6, 4, v7")
    b(f"  v_add_u32 v6, {L3_M3}, v6")
    for i in range(4): b(f"  ds_read_b128 {vr(M3+4*i,4)}, v6 offset:{1024*i}")
    for i in range(4): b(f"  ds_read_b128 {vr(M4+4*i,4)}, v6 offset:{4096+1024*i}")
    b(f"  s_waitcnt lgkmcnt(0)")
    for i in range(8): b(f"  ds_read_b128 {vr(TW+4*i,4)}, v6 offset:{8192+1024*i}")
    if SENT():
        b(f"  s_mov_b32 s11, 200000")
        b.label("p3_poll")
    for i in range(4):
        for e in range(2):
            b(f"  buffer_load_dword v{Bd+2*i+e}, v1, s[{SRD_A}:{SRD_A+3}], s44 offen offset:{e*2048+i*128} sc1")
    b(f"  s_waitcnt vmcnt(0)")
    if SENT(): sentinel_check(b, Bd, "p3")
    stamp(b, "p3 x2 landed")
    if "nopf" not in OPT and "ntw1" not in OPT and PFN[3]:
        w1_share_base(b, S_T + 8, (PFN[0] + PFN[1] + PFN[2]) * 4096)
        pf_wide(b, P_W1, W1B, S_T + 8, PFN[3], 4, 8, "pf_p3b")
    for i in range(4):
        b(f"  {MF16} {vr(D+4*i,4)}, {vr(GM,2)}, {vr(Bd+2*i,2)}, 0")
    b(f"  s_nop 4")
    PK = 56
    for e in range(2):
        for i in range(4):
            b(f"  v_cvt_pk_bf16_f32 v{PK+4*e+i}, v{D+4*i+2*e}, v{D+4*i+2*e+1}")
    b(f"  ds_write_b128 v3, {vr(PK,4)}")
    b(f"  ds_write_b128 v3, {vr(PK+4,4)} offset:2048")
    b(f"  s_waitcnt lgkmcnt(0)")
    b(f"  s_barrier")
    b(f"  v_lshlrev_b32 v5, 8, v9")
    b(f"  v_lshl_add_u32 v5, v8, 4, v5")
    b(f"  s_lshl_b32 s{S_T+1}, s{S_W}, 11")
    b(f"  s_add_u32 s{S_T+1}, s{S_T+1}, {L3_EX}")
    b(f"  v_add_u32 v5, s{S_T+1}, v5")
    AU = 32
    b(f"  ds_read_b128 {vr(AU,4)}, v5")
    b(f"  ds_read_b128 {vr(AU+4,4)}, v5 offset:1024")
    b(f"  s_waitcnt lgkmcnt(0)")
    b(f"  v_readlane_b32 s{S_T+4}, v{AU}, 0")
    b(f"  v_writelane_b32 v{AU}, 0, 0")
    b(f"  s_nop 1")
    b(f"  s_lshl_b32 s{S_T+4}, s{S_T+4}, 16")
    TT = 160
    for u in range(2):
        for v in range(2):
            for c in range(2):
                d = TT + ((u * 2 + v) * 2 + c) * 4
                b(f"  {MF32} {vr(d,4)}, {vr(AU+4*u,4)}, {vr(M3+4*(2*v+c),4)}, 0")
    CI = 60
    b(f"  v_mov_b32 v{CI}, s{S_T+4}")
    b(f"  v_xor_b32 v{CI+1}, 0x80000000, v{CI}")
    b(f"  v_mov_b32 v{CI+2}, v{CI}")
    b(f"  v_mov_b32 v{CI+3}, v{CI+1}")
    b(f"  s_nop 1")
    A2 = 64; O = 40; W = 80
    for u in range(2):
        for v in range(2):
            t = TT + ((u * 2 + v) * 2) * 4
            tw = TW + ((u * 2 + v) * 2) * 4
            cmul_pk(b, O, O + 4, t, t + 4, tw, tw + 4, W, True)
            for r in range(4):
                b(f"  v_cvt_pk_bf16_f32 v{A2+(u*2+v)*4+r}, v{O+r}, v{O+4+r}")
    Y = 160
    b(f"  s_nop 1")
    for z in range(2):
        for v in range(2):
            d = Y + (z * 2 + v) * 4
            b(f"  {MF32} {vr(d,4)}, {vr(A2+(0*2+v)*4,4)}, {vr(M4+(0*2+z)*4,4)}, {vr(CI,4)}")
    for z in range(2):
        for v in range(2):
            d = Y + (z * 2 + v) * 4
            b(f"  {MF32} {vr(d,4)}, {vr(A2+(1*2+v)*4,4)}, {vr(M4+(1*2+z)*4,4)}, {vr(d,4)}")
    b(f"  s_nop 7")
    X = 40; HP = 32
    stamp(b, "p3 ifft done")
    for z in range(2):
        for dd in range(4):
            y0 = Y + z * 8 + 2 * dd
            xd = XR + 4 * z + dd
            t = 64 + 2 * (dd % 4)
            b(f"  v_lshlrev_b32 v{t}, 16, v{xd}")
            b(f"  v_and_b32 v{t+1}, 0xffff0000, v{xd}")
            b(f"  v_pk_add_f32 {vr(t,2)}, {vr(t,2)}, {vr(y0,2)}")
            b(f"  v_cvt_pk_bf16_f32 v{HP+4*z+dd}, v{t}, v{t+1}")
    for z in range(2):
        b(f"  buffer_store_dwordx4 {vr(HP+4*z,4)}, v4, s[{SRD_C}:{SRD_C+3}], s63 offen offset:{1024*z}{SF}")
    for i in range(8):
        b(f"  v_lshlrev_b32 v{X+2*i}, 16, v{HP+i}")
        b(f"  v_and_b32 v{X+2*i+1}, 0xffff0000, v{HP+i}")
    ln_fast(b, X, 64, S_T + 4, False)
    LP = 72
    stamp(b, "p3 ln done")
    for i in range(8):
        b(f"  v_cvt_pk_bf16_f32 v{LP+i}, v{X+2*i}, v{X+2*i+1}")
    b(f"  v_mul_u32_u24 v3, 80, v8")
    b(f"  v_lshl_add_u32 v3, v9, 4, v3")
    b(f"  s_mul_i32 s{S_T+1}, s{S_W}, {L3_RS}")
    b(f"  s_add_u32 s{S_T+1}, s{S_T+1}, {L3_LN}")
    b(f"  v_add_u32 v3, s{S_T+1}, v3")
    for z in range(2):
        b(f"  ds_write_b128 v3, {vr(LP+4*z,4)} offset:{z*16*80}")
    b(f"  s_waitcnt lgkmcnt(0)")
    b(f"  s_barrier")
    b(f"  v_bfe_u32 v10, v7, 2, 2")
    b(f"  v_mul_u32_u24 v10, {L3_RS}, v10")
    b(f"  v_lshrrev_b32 v11, 5, v7")
    b(f"  v_mul_u32_u24 v12, 80, v11")
    b(f"  v_add_u32 v10, v10, v12")
    b(f"  v_and_b32 v12, 1, v7")
    b(f"  v_lshl_add_u32 v10, v12, 5, v10")
    b(f"  v_bfe_u32 v12, v7, 4, 1")
    b(f"  v_lshl_add_u32 v10, v12, 4, v10")
    b(f"  v_bfe_u32 v12, v7, 1, 1")
    b(f"  v_lshl_add_u32 v10, v12, 3, v10")
    b(f"  s_mul_i32 s{S_T+1}, s{S_W}, {4*80}")
    b(f"  s_add_u32 s{S_T+1}, s{S_T+1}, {L3_LN}")
    b(f"  v_add_u32 v10, s{S_T+1}, v10")
    for ps in range(2):
        b(f"  ds_read_b64_tr_b16 {vr(32+4*ps,2)}, v10 offset:{ps*160}")
        b(f"  ds_read_b64_tr_b16 {vr(34+4*ps,2)}, v10 offset:{ps*160 + 4*L3_RS}")
    b(f"  v_lshlrev_b32 v11, 17, v11")
    b(f"  v_and_b32 v12, 31, v7")
    b(f"  v_lshl_add_u32 v11, v12, 4, v11")
    b(f"  s_lshl_b32 s{S_T+1}, s{S_W}, 19")
    b(f"  s_lshl_b32 s{S_T+2}, s2, 9")
    b(f"  s_add_u32 s{S_T+1}, s{S_T+1}, s{S_T+2}")
    b(f"  s_add_u32 s{S_T+2}, s{S_T+1}, {2*131072}")
    b(f"  s_waitcnt lgkmcnt(2)")
    b(f"  buffer_store_dwordx4 v[32:35], v11, s[{SRD_D}:{SRD_D+3}], s{S_T+1} offen{SF}")
    b(f"  s_waitcnt lgkmcnt(0)")
    b(f"  buffer_store_dwordx4 v[36:39], v11, s[{SRD_D}:{SRD_D+3}], s{S_T+2} offen{SF}")
    stamp(b, "p3 stores issued")
    b(f"  s_and_b32 s{S_T+8}, s2, 15")
    arrive(b, 2, S_T + 8, label="x3")
    srd(b, SRD_T, P_W1, W1B)
    b(f"  s_cmp_lt_u32 s{S_W}, 4")
    b(f"  s_cbranch_scc1 p3_nodma")
    b(f"  s_cmp_eq_u32 s62, 0")
    b(f"  s_cbranch_scc1 p3_nodma")
    for n in range(2): loader_issue(b, V_LO, W1F())
    b.label("p3_nodma")

def gemm_core(b, c, pre, after_setup, after_prologue=None):
    NB, NS = c.NB, c.NS
    acc = lambda nb: V_ACC + nb * 16
    VT = V_ACC + NB * 16
    VPR = VT + 32
    c.VT, c.VPR = VT, VPR
    c.vend = VPR + 4 * PR
    tf = lambda q: VT + (q % 8) * 4
    pr = lambda j: VPR + (j % PR) * 4
    FPI = 64
    KPI = FPI // NB
    def tread(q):
        ql = q % FPI
        lslot, within = ql // 16, ql % 16
        ks, nb = within // NB, within % NB
        off = lslot * STAGE + ks * 16 * c.rowb
        b(f"  ds_read_b64_tr_b16 {vr(tf(q),2)}, v{V_T+nb} offset:{off}")
        b(f"  ds_read_b64_tr_b16 {vr(tf(q)+2,2)}, v{V_T+nb} offset:{off+4*c.rowb}")
    def pload(j):
        b(f"  buffer_load_dwordx4 {vr(pr(j),4)}, v{V_P}, s[{SRD_P}:{SRD_P+3}], s{S_POFF} offen offset:{(j%4)*1024}{LF}")
        if j % 4 == 3: b(f"  s_add_u32 s{S_POFF}, s{S_POFF}, 4096")
    def mfma(q):
        nb = q % NB; j = q // NB; a = acc(nb)
        if "m16fake" in OPT:
            o = 8 * (j % 2)
            b(f"  v_mfma_f32_16x16x32_bf16 {vr(a+o,4)}, {vr(tf(q),4)}, {vr(pr(j),4)}, {vr(a+o,4)}")
            b(f"  v_mfma_f32_16x16x32_bf16 {vr(a+o+4,4)}, {vr(pr(j),4)}, {vr(tf(q),4)}, {vr(a+o+4,4)}")
            return
        if c.name == "g1":
            b(f"  v_mfma_f32_32x32x16_bf16 {vr(a,16)}, {vr(tf(q),4)}, {vr(pr(j),4)}, {vr(a,16)}")
        else:
            b(f"  v_mfma_f32_32x32x16_bf16 {vr(a,16)}, {vr(pr(j),4)}, {vr(tf(q),4)}, {vr(a,16)}")
    b(f"  s_mov_b32 s{S_POFF}, 0")
    b(f"  s_mov_b32 s{S_DELTA}, {4*STAGE}")
    b(f"  s_mov_b32 s{S_IT}, {NS//4 - 1}")
    after_setup()
    for j in range(PR - 1): pload(j)
    if after_prologue: after_prologue()
    b("  s_barrier")
    for q in range(DQ): tread(q)
    def body(last):
        for q in range(FPI):
            j = q // NB
            qn = q + DQ
            do_read = not (last and qn >= FPI)
            do_pload = False
            if q % NB == 0:
                rem = KPI - 1 - j
                if (not last) or (j + PR - 1 < KPI):
                    b(f"  s_waitcnt vmcnt({PR-2})")
                    do_pload = True
                else:
                    b(f"  s_waitcnt vmcnt({min(PR-2, rem)})")
            if do_read and qn % 16 == 0:
                b("  s_barrier")
            if do_read and qn == FPI:
                for i in range(NB): b(f"  v_add_u32 v{V_T+i}, s{S_DELTA}, v{V_T+i}")
                b(f"  s_sub_u32 s{S_DELTA}, 0, s{S_DELTA}")
            if q % 2 == 0:
                left = min(DQ - 2, FPI - 2 - q) if last else DQ - 2
                b(f"  s_waitcnt lgkmcnt({2*left})")
            mfma(q)
            if do_pload: pload(j + PR - 1)
            if do_read: tread(qn)
    b.label(f"{pre}_loop")
    body(False)
    b(f"  s_sub_u32 s{S_IT}, s{S_IT}, 1")
    b(f"  s_cmp_lg_u32 s{S_IT}, 0")
    b(f"  s_cbranch_scc1 {pre}_loop")
    body(True)

def idle_w1(b):
    srd(b, SRD_PF, P_W1, W1B)
    b(f"  s_and_b32 s51, s50, 7")
    b(f"  s_mul_i32 s51, s51, {256*7168}")
    b(f"  s_lshr_b32 s52, s50, 3")
    b(f"  s_mul_i32 s52, s52, {4*7168}")
    b(f"  s_add_u32 s51, s51, s52")
    b(f"  s_add_u32 s51, s51, {128*7168}")
    b(f"  s_mov_b32 s52, 7")
    b.label("pf_w1b")
    for i in range(4): b(f"  buffer_load_dwordx4 {vr(V_DUMMY,4)}, v29, s[{SRD_PF}:{SRD_PF+3}], s51 offen offset:{1024*i}")
    b(f"  s_add_u32 s51, s51, 4096")
    b(f"  s_waitcnt vmcnt(4)")
    b(f"  s_sub_u32 s52, s52, 1")
    b(f"  s_cmp_lg_u32 s52, 0")
    b(f"  s_cbranch_scc1 pf_w1b")

def idle_w2(b):
    srd(b, SRD_PF, P_W2, W1B)
    b(f"  s_mul_i32 s51, s50, {W1B // 256}")
    b(f"  s_mov_b32 s52, 14")
    b.label("pf_w2")
    for i in range(4): b(f"  buffer_load_dwordx4 {vr(V_DUMMY,4)}, v29, s[{SRD_PF}:{SRD_PF+3}], s51 offen offset:{1024*i}")
    b(f"  s_add_u32 s51, s51, 4096")
    b(f"  s_waitcnt vmcnt({0 if 'idlepace' in OPT else 4})")
    b(f"  s_sub_u32 s52, s52, 1")
    b(f"  s_cmp_lg_u32 s52, 0")
    b(f"  s_cbranch_scc1 pf_w2")
    b(f"  s_waitcnt vmcnt(0)")

def g1(b):
    c = g1_cfg()
    b(f"  s_cmp_eq_u32 s62, 0")
    b(f"  s_cbranch_scc1 g1_inactive")
    srd(b, SRD_P, P_WS, 4 << 20, WS_LN2)
    srd(b, SRD_T, P_W1, W1B)
    srd(b, SRD_O, P_WS, U_BYTES, WS_U)
    srd(b, SRD_X, P_B1, 3584 * 2)
    b(f"  s_cmp_ge_u32 s{S_W}, 4")
    b(f"  s_cbranch_scc1 g1_loader")
    lane_geom(b)
    b(f"  s_lshl_b32 s{S_TMP}, s61, 2")
    b(f"  s_add_u32 s{S_TMP}, s{S_TMP}, s{S_W}            ; dblk")
    b(f"  s_lshl_b32 s{S_TMP+2}, s{S_TMP}, 17")
    b(f"  v_lshlrev_b32 v10, 4, v7")
    b(f"  v_add_u32 v{V_P}, s{S_TMP+2}, v10")
    b(f"  s_lshl_b32 s{S_TMP+1}, s60, 8       ; f0*2")
    b(f"  v_lshlrev_b32 v11, 3, v9")
    b(f"  v_add_u32 v11, s{S_TMP+1}, v11")
    BV = 192
    for fb in range(4):
        for i in range(4):
            b(f"  buffer_load_dwordx2 {vr(BV+2*(4*fb+i),2)}, v11, s[{SRD_X}:{SRD_X+3}], 0 offen offset:{64*fb+16*i}")
    b(f"  v_lshl_add_u32 v20, v9, 3, v18")
    b(f"  v_lshlrev_b32 v20, 8, v20")
    b(f"  v_lshl_add_u32 v20, v18, 6, v20")
    b(f"  v_lshl_add_u32 v20, v19, 5, v20")
    b(f"  v_lshl_add_u32 v{V_T}, v22, 3, v20")
    for fb in range(1, 4):
        b(f"  v_xor_b32 v{V_T+fb}, {64*fb}, v{V_T}")
    b(f"  s_mul_i32 s{S_TMP+2}, s{S_TMP}, 229376")
    b(f"  s_lshl_b32 s{S_TMP+1}, s60, 13")
    b(f"  s_add_u32 s{S_TMP+1}, s{S_TMP+1}, s{S_TMP+2}")
    b(f"  v_add_u32 v28, s{S_TMP+1}, v10")
    b(f"  s_waitcnt vmcnt(0)")
    for fb in range(4):
        for i in range(4):
            bv = BV + 2 * (4 * fb + i); a = V_ACC + fb * 16 + 4 * i
            b(f"  v_lshlrev_b32 v{a}, 16, v{bv}")
            b(f"  v_and_b32 v{a+1}, 0xffff0000, v{bv}")
            b(f"  v_lshlrev_b32 v{a+2}, 16, v{bv+1}")
            b(f"  v_and_b32 v{a+3}, 0xffff0000, v{bv+1}")
    def w3():
        wait(b, 2, 16, "x3c")
        stamp(b, "x3 released")
        stamp(b, "c:g1 start")
    gemm_core(b, c, "g1", w3)
    stamp(b, "c:g1 end")
    stamp(b, "g1 main done")
    K1 = -2.0 * 0.7978845608028654 * 1.4426950408889634
    K2 = K1 * 0.044715
    T = c.VPR
    b(f"  v_mov_b32 v{T}, {hex(f2u(K1))}")
    b(f"  v_mov_b32 v{T+1}, {hex(f2u(K1))}")
    b(f"  v_mov_b32 v{T+2}, {hex(f2u(K2))}")
    b(f"  v_mov_b32 v{T+3}, {hex(f2u(K2))}")
    b(f"  s_nop 7")
    W = T + 8
    for fb in range(4):
        a = V_ACC + fb * 16; t = W; o = W + 16 + 8 * (fb % 2)
        for h in range(0, 16, 2): b(f"  v_pk_mul_f32 {vr(t+h,2)}, {vr(a+h,2)}, {vr(a+h,2)}")
        for h in range(0, 16, 2): b(f"  v_pk_fma_f32 {vr(t+h,2)}, {vr(t+h,2)}, {vr(T+2,2)}, {vr(T,2)}")
        for h in range(0, 16, 2): b(f"  v_pk_mul_f32 {vr(t+h,2)}, {vr(t+h,2)}, {vr(a+h,2)}")
        for r in range(16): b(f"  v_exp_f32 v{t+r}, v{t+r}")
        for h in range(0, 16, 2): b(f"  v_pk_add_f32 {vr(t+h,2)}, {vr(t+h,2)}, 1.0 op_sel_hi:[1,0]")
        for r in range(16): b(f"  v_rcp_f32 v{t+r}, v{t+r}")
        for h in range(0, 16, 2): b(f"  v_pk_mul_f32 {vr(t+h,2)}, {vr(a+h,2)}, {vr(t+h,2)}")
        for i in range(4):
            b(f"  v_cvt_pk_bf16_f32 v{o+2*i}, v{t+4*i}, v{t+4*i+1}")
            b(f"  v_cvt_pk_bf16_f32 v{o+2*i+1}, v{t+4*i+2}, v{t+4*i+3}")
        for ip in range(2):
            oo = o + 4 * ip
            b(f"  s_mov_b32 s{S_TMP+1}, {(2*fb+ip)*1024}")
            b(f"  s_nop 0")
            b(f"  v_permlane32_swap_b32 v{oo}, v{oo+2}")
            b(f"  v_permlane32_swap_b32 v{oo+1}, v{oo+3}")
            b(f"  buffer_store_dwordx4 {vr(oo,4)}, v28, s[{SRD_O}:{SRD_O+3}], s{S_TMP+1} offen{SF}")
    stamp(b, "g1 stores issued")
    b(f"  s_waitcnt vmcnt(0)")
    b(f"  s_branch g1_join")
    b.label("g1_loader")
    b(f"  s_sub_u32 s50, s{S_W}, 4")
    b(f"  s_lshl_b32 s49, s50, 10")
    b(f"  s_add_u32 s{S_N+1}, s49, {R*STAGE}")
    b(f"  s_barrier                      ; matches the barrier inside wait(x3)")
    for n in range(R - 4): loader_issue(b, V_LO, W1F())
    loader_loop(b, c.NS, "g1", W1F())
    stamp(b, "g1 main done")
    g2_prologue_loader(b)
    stamp(b, "g1 stores issued")
    b.label("g1_join")
    if SK():
        b(f"  s_cmp_ge_u32 s60, 14")
        b(f"  s_cselect_b32 s18, 1, 0")
        b(f"  s_lshl_b32 s10, s61, 1")
        b(f"  s_add_u32 s18, s18, s10")
        arrive(b, 3, 18, label="x4", drained=True)
    else:
        arrive(b, 3, 61, label="x4", drained=True)
    b(f"  s_branch g2_start")
    b.label("g1_inactive")
    if "nopf" not in OPT:
        b(f"  s_sub_u32 s50, s2, 224")
        b(f"  s_lshl_b32 s50, s50, 3")
        b(f"  s_add_u32 s50, s50, s{S_W}")
        b(f"  v_lshlrev_b32 v29, 4, v7")
        if "noidle" not in OPT: idle_w2(b)
    b(f"  s_cmp_lt_u32 s{S_W}, 4")
    b(f"  s_cbranch_scc1 g2_start_inactive")
    g2_prologue_loader(b)
    b.label("g2_start_inactive")
    return c

def g2_prologue_loader(b):
    g2_ids(b)
    srd(b, SRD_T, P_W2, W1B)
    g2_loader_addr(b)
    loader_init(b, (64 if SK() else 128) * 4096)
    for n in range(2): loader_issue(b, V_LO, W2F())

def g2_sk(b):
    c = g1_cfg(); c.name = "g2"; c.NS = 28
    b.label("g2_start")
    g2_ids(b)
    srd(b, SRD_P, P_WS, U_BYTES, WS_U)
    srd(b, SRD_O, P_OUT, 4 << 20)
    srd(b, SRD_X, P_B2, 2048 * 2)
    srd(b, SRD_Y, P_WS, 4 << 20, WS_H)
    b(f"  s_cmp_ge_u32 s{S_W}, 4")
    b(f"  s_cbranch_scc1 g2_loader")
    lane_geom(b)
    b(f"  s_lshl_b32 s{S_TMP}, s{S_TILE_A}, 2")
    b(f"  s_add_u32 s{S_TMP}, s{S_TMP}, s{S_W}        ; dblk")
    b(f"  s_mul_i32 s{S_TMP+2}, s{S_TMP}, 229376")
    b(f"  s_mul_i32 s{S_TMP+3}, s19, {112*1024}       ; k half")
    b(f"  s_add_u32 s{S_TMP+2}, s{S_TMP+2}, s{S_TMP+3}")
    b(f"  v_lshlrev_b32 v10, 4, v7")
    b(f"  v_add_u32 v{V_P}, s{S_TMP+2}, v10")
    b(f"  s_lshl_b32 s{S_TMP+1}, s{S_TILE_B}, 7")
    b(f"  s_lshl_b32 s{S_TMP+3}, s19, 6")
    b(f"  s_add_u32 s{S_TMP+1}, s{S_TMP+1}, s{S_TMP+3}")
    b(f"  v_add_u32 v11, s{S_TMP+1}, v8              ; s0 + s'")
    b(f"  v_lshlrev_b32 v16, 1, v11")
    for sb in range(2):
        b(f"  buffer_load_ushort v{12+sb}, v16, s[{SRD_X}:{SRD_X+3}], 0 offen offset:{64*sb}")
    b(f"  v_lshlrev_b32 v17, 11, v11")
    b(f"  v_lshl_add_u32 v17, v9, 5, v17")
    b(f"  s_lshl_b32 s{S_TMP+2}, s{S_TMP}, 6")
    b(f"  v_add_u32 v28, s{S_TMP+2}, v17")
    HV = 192
    b(f"  v_lshl_add_u32 v20, v9, 3, v18")
    b(f"  v_lshlrev_b32 v20, 8, v20")
    b(f"  v_lshl_add_u32 v20, v18, 6, v20")
    b(f"  v_lshl_add_u32 v20, v19, 5, v20")
    b(f"  v_lshl_add_u32 v{V_T}, v22, 3, v20")
    for fb in range(1, 4):
        b(f"  v_xor_b32 v{V_T+fb}, {64*fb}, v{V_T}")
    b(f"  s_lshl_b32 s{S_TMP+1}, s{S_W}, 12")
    b(f"  s_lshl_b32 s{S_TMP+2}, s2, 14")
    b(f"  s_add_u32 s{S_TMP+2}, s{S_TMP+2}, s{S_TMP+1}")
    b(f"  v_add_u32 v29, s{S_TMP+2}, v10")
    b(f"  s_xor_b32 s{S_TMP+2}, s2, 1")
    b(f"  s_lshl_b32 s{S_TMP+2}, s{S_TMP+2}, 14")
    b(f"  s_add_u32 s{S_TMP+2}, s{S_TMP+2}, s{S_TMP+1}")
    b(f"  v_add_u32 v30, s{S_TMP+2}, v10")
    for i in range(64): b(f"  v_mov_b32 v{V_ACC+i}, 0")
    def w4():
        b(f"  s_lshl_b32 s18, s{S_TILE_A}, 1")
        b(f"  s_add_u32 s18, s18, s19")
        wait(b, 3, 14, "x4c", single_sreg=18)
        stamp(b, "x4 released")
        stamp(b, "c:g2 start")
    def hloads():
        for sb in range(2):
            b(f"  s_mov_b32 s{S_TMP+1}, {sb*65536}")
            b(f"  buffer_load_dwordx4 {vr(HV+8*sb,4)}, v28, s[{SRD_Y}:{SRD_Y+3}], s{S_TMP+1} offen{LF}")
            b(f"  buffer_load_dwordx4 {vr(HV+8*sb+4,4)}, v28, s[{SRD_Y}:{SRD_Y+3}], s{S_TMP+1} offen offset:16{LF}")
    gemm_core(b, c, "g2", w4, hloads)
    stamp(b, "c:g2 end")
    stamp(b, "g2 main done")
    srd(b, SRD_X, P_WS, 4 << 20, WS_XCH)
    T = c.VT
    b(f"  s_cmp_eq_u32 s19, 0")
    b(f"  s_cbranch_scc1 g2_send23")
    def pack_send(first):
        for blk in range(2):
            a = V_ACC + (first + blk) * 16
            for i in range(8):
                b(f"  v_cvt_pk_bf16_f32 v{T+8*blk+i}, v{a+2*i}, v{a+2*i+1}")
            for i in range(8):
                b(f"  v_min_u32 v{T+8*blk+i}, 0xfffffffe, v{T+8*blk+i}")
            for p in range(2):
                b(f"  buffer_store_dwordx4 {vr(T+8*blk+4*p,4)}, v30, s[{SRD_X}:{SRD_X+3}], 0 offen offset:{(2*blk+p)*1024}{SF}")
    b(f"  s_nop 7")
    pack_send(0)
    for i in range(32): b(f"  v_mov_b32 v{V_ACC+i}, v{V_ACC+32+i}")
    b(f"  s_branch g2_sent")
    b.label("g2_send23")
    b(f"  s_nop 7")
    pack_send(2)
    b.label("g2_sent")
    RX = c.VPR
    b(f"  s_mov_b32 s11, 200000")
    b.label("g2x_poll")
    for k in range(4):
        b(f"  buffer_load_dwordx4 {vr(RX+4*k,4)}, v29, s[{SRD_X}:{SRD_X+3}], 0 offen offset:{k*1024} sc1")
    b(f"  s_waitcnt vmcnt(0)")
    sentinel_check(b, RX, "g2x", n=16)
    stamp(b, "g2 x landed")
    b(f"  s_mov_b32 s{S_TMP}, 0xffff0000")
    for blk in range(2):
        for i in range(8):
            a = V_ACC + blk * 16 + 2 * i; r = RX + 8 * blk + i
            b(f"  v_lshlrev_b32 v16, 16, v{r}")
            b(f"  v_and_b32 v17, s{S_TMP}, v{r}")
            b(f"  v_add_f32 v{a}, v{a}, v16")
            b(f"  v_add_f32 v{a+1}, v{a+1}, v17")
    for sb in range(2):
        b(f"  v_lshlrev_b32 v{12+sb}, 16, v{12+sb}")
    for sb in range(2):
        for half in range(2):
            o = T + 4 * ((sb * 2 + half) % 2)
            for dd in range(4):
                a = V_ACC + sb * 16 + half * 8 + 2 * dd
                hv = HV + 8 * sb + 4 * half + dd
                t0 = T + 8 + 4 * dd
                b(f"  v_lshlrev_b32 v{t0}, 16, v{hv}")
                b(f"  v_and_b32 v{t0+1}, s{S_TMP}, v{hv}")
                b(f"  v_pk_add_f32 {vr(t0,2)}, {vr(t0,2)}, {vr(a,2)}")
                b(f"  v_add_f32 v{t0}, v{t0}, v{12+sb}")
                b(f"  v_add_f32 v{t0+1}, v{t0+1}, v{12+sb}")
                b(f"  v_cvt_pk_bf16_f32 v{o+dd}, v{t0}, v{t0+1}")
            b(f"  s_mov_b32 s{S_TMP+1}, {sb*65536}")
            b(f"  buffer_store_dwordx4 {vr(o,4)}, v28, s[{SRD_O}:{SRD_O+3}], s{S_TMP+1} offen offset:{16*half}")
    stamp(b, "g2 stores issued")
    b(f"  s_branch g2_done")
    b.label("g2_loader")
    b(f"  s_barrier                      ; matches the barrier inside wait(x4)")
    for n in range(R - 4): loader_issue(b, V_LO, W2F())
    loader_loop(b, c.NS, "g2", W2F())
    b.label("g2_done")

def g2(b):
    if SK(): return g2_sk(b)
    c = g2_cfg()
    b.label("g2_start")
    g2_ids(b)
    srd(b, SRD_P, P_WS, U_BYTES, WS_U)
    srd(b, SRD_O, P_OUT, 4 << 20)
    srd(b, SRD_X, P_B2, 2048 * 2)
    srd(b, SRD_Y, P_WS, 4 << 20, WS_H)
    b(f"  s_cmp_ge_u32 s{S_W}, 4")
    b(f"  s_cbranch_scc1 g2_loader")
    lane_geom(b)
    b(f"  s_lshl_b32 s{S_TMP}, s{S_TILE_A}, 2")
    b(f"  s_add_u32 s{S_TMP}, s{S_TMP}, s{S_W}        ; dblk")
    b(f"  s_mul_i32 s{S_TMP+2}, s{S_TMP}, 229376")
    b(f"  v_lshlrev_b32 v10, 4, v7")
    b(f"  v_add_u32 v{V_P}, s{S_TMP+2}, v10")
    b(f"  s_lshl_b32 s{S_TMP+1}, s{S_TILE_B}, 6       ; s0")
    b(f"  v_add_u32 v11, s{S_TMP+1}, v8              ; s0 + s'")
    b(f"  v_lshlrev_b32 v16, 1, v11")
    for sb in range(2):
        b(f"  buffer_load_ushort v{12+sb}, v16, s[{SRD_X}:{SRD_X+3}], 0 offen offset:{64*sb}")
    b(f"  v_lshlrev_b32 v17, 11, v11")
    b(f"  v_lshl_add_u32 v17, v9, 5, v17")
    b(f"  s_lshl_b32 s{S_TMP+2}, s{S_TMP}, 6")
    b(f"  v_add_u32 v28, s{S_TMP+2}, v17")
    HV = 160
    b(f"  v_lshl_add_u32 v20, v9, 3, v18            ; row")
    b(f"  v_bfe_u32 v21, v18, 1, 1")
    b(f"  v_lshlrev_b32 v20, 7, v20")
    b(f"  v_lshl_add_u32 v20, v21, 6, v20")
    b(f"  v_lshl_add_u32 v20, v19, 5, v20")
    b(f"  v_lshl_add_u32 v{V_T}, v22, 3, v20")
    b(f"  v_xor_b32 v{V_T+1}, 64, v{V_T}")
    for i in range(32): b(f"  v_mov_b32 v{V_ACC+i}, 0")
    def w4():
        wait(b, 3, 28, "x4c", single_sreg=S_TILE_A)
        stamp(b, "x4 released")
        stamp(b, "c:g2 start")
    def hloads():
        for sb in range(2):
            b(f"  s_mov_b32 s{S_TMP+1}, {sb*65536}")
            b(f"  buffer_load_dwordx4 {vr(HV+8*sb,4)}, v28, s[{SRD_Y}:{SRD_Y+3}], s{S_TMP+1} offen{LF}")
            b(f"  buffer_load_dwordx4 {vr(HV+8*sb+4,4)}, v28, s[{SRD_Y}:{SRD_Y+3}], s{S_TMP+1} offen offset:16{LF}")
    gemm_core(b, c, "g2", w4, hloads)
    stamp(b, "c:g2 end")
    stamp(b, "g2 main done")
    T = c.VT
    b(f"  s_mov_b32 s{S_TMP}, 0xffff0000")
    for sb in range(2):
        b(f"  v_lshlrev_b32 v{12+sb}, 16, v{12+sb}")
    b(f"  s_nop 9")
    for sb in range(2):
        for half in range(2):
            o = T + 4 * ((sb * 2 + half) % 2)
            for dd in range(4):
                a = V_ACC + sb * 16 + half * 8 + 2 * dd
                hv = HV + 8 * sb + 4 * half + dd
                t0 = T + 8 + 4 * dd
                b(f"  v_cvt_pk_bf16_f32 v{t0}, v{a}, v{a+1}")
                b(f"  v_and_b32 v{t0+1}, s{S_TMP}, v{t0}")
                b(f"  v_lshlrev_b32 v{t0}, 16, v{t0}")
                b(f"  v_add_f32 v{t0}, v{t0}, v{12+sb}")
                b(f"  v_add_f32 v{t0+1}, v{t0+1}, v{12+sb}")
                b(f"  v_cvt_pk_bf16_f32 v{t0}, v{t0}, v{t0+1}")
                b(f"  v_and_b32 v{t0+1}, s{S_TMP}, v{t0}")
                b(f"  v_lshlrev_b32 v{t0}, 16, v{t0}")
                b(f"  v_lshlrev_b32 v{t0+2}, 16, v{hv}")
                b(f"  v_and_b32 v{t0+3}, s{S_TMP}, v{hv}")
                b(f"  v_add_f32 v{t0}, v{t0}, v{t0+2}")
                b(f"  v_add_f32 v{t0+1}, v{t0+1}, v{t0+3}")
                b(f"  v_cvt_pk_bf16_f32 v{o+dd}, v{t0}, v{t0+1}")
            b(f"  s_mov_b32 s{S_TMP+1}, {sb*65536}")
            b(f"  buffer_store_dwordx4 {vr(o,4)}, v28, s[{SRD_O}:{SRD_O+3}], s{S_TMP+1} offen offset:{16*half}")
    stamp(b, "g2 stores issued")
    b(f"  s_branch g2_done")
    b.label("g2_loader")
    b(f"  s_barrier                      ; matches the barrier inside wait(x4)")
    for n in range(R - 4): loader_issue(b, V_LO, W2F())
    loader_loop(b, c.NS, "g2", W2F())
    b.label("g2_done")

def build():
    NAME = "sequential_preLN__spectral_gfnet__mixer_token_mlp__prompt"
    hdr = open(f"cdna_kernels/{NAME}.s.ref").read().split("; Override launch")[0]
    K = NAME + "_kernel"
    b = B()
    b(hdr.rstrip("\n"))
    b(f"; @launch grid=(256,1,1) block=(512,1,1) lds={LDS_TOTAL}")
    b('.amdgcn_target "amdgcn-amd-amdhsa--gfx950"\n.text')
    b(f".globl {K}\n.p2align 8\n.type {K},@function\n{K}:")
    b(f"  s_cmp_ge_u32 s2, 256\n  s_cbranch_scc1 k_exit")
    if "stamp" in OPT: b("  v_mov_b32 v231, 0")
    stamp(b, "entry")
    b(f"  s_load_dwordx4 s[{P_X}:{P_X+3}], s[0:1], 0        ; x, w_r")
    b(f"  s_load_dwordx2 s[{P_WI}:{P_WI+1}], s[0:1], 16")
    b(f"  s_load_dwordx2 s[{P_W1}:{P_W1+1}], s[0:1], 32")
    b(f"  s_load_dwordx4 s[{P_B1}:{P_B1+3}], s[0:1], 40     ; b1, w2")
    b(f"  s_load_dwordx4 s[{P_B2}:{P_B2+3}], s[0:1], 56     ; b2, out")
    b(f"  s_load_dwordx4 s[{P_DBG}:{P_DBG+3}], s[0:1], 72")
    b(f"  v_lshrrev_b32 v6, 6, v0")
    b(f"  v_and_b32 v7, 63, v0        ; lane")
    b(f"  v_readfirstlane_b32 s{S_W}, v6")
    b(f"  v_and_b32 v8, 15, v7          ; c")
    b(f"  v_lshrrev_b32 v9, 4, v7       ; g")
    b(f"  s_waitcnt lgkmcnt(0)")
    srd(b, SRD_CNT, P_WS, 65536, WS_CNT)
    p1(b)
    p2_setup(b)
    wait(b, 0, 16, "x1c")
    stamp(b, "x1 released")
    p2_main(b)
    p3_setup(b)
    if SENT(): b("  s_barrier")
    else: wait(b, 1, 16, "x2c")
    stamp(b, "x2 released")
    p3_main(b)
    g1(b)
    g2(b)
    b(f"  s_waitcnt vmcnt(0)")
    stamp(b, "end")
    stamp_flush(b)
    b("k_exit:\n  s_endpgm")
    b(kd(K, 240, sgpr=102))
    return b.text()

if __name__ == "__main__":
    out = sys.argv[1]
    OPT.update(sys.argv[2:])
    for o in sys.argv[2:]:
        if o.startswith("pfn="): PFN[:] = [int(c) for c in o[4:].split(",")]
    gemm.OPT.update(sys.argv[2:])
    t = build()
    open(out, "w").write(t)
    rep = check_text(t)
    print("\n".join(rep) if rep else "no hazards found", "| stamps:", nstamp[0])
```

```python
import sys
from asmlib import *
import gemm, fft
from gemm import (srd, f2u, WS_X1, WS_X2, WS_H, WS_LN2, WS_U, U_BYTES, S_W, R, STAGE, PR, DQ,
                  V_P, V_T, V_ACC, S_POFF, S_IT, S_DELTA, SRD_P, SRD_T, SRD_O, SRD_X, SRD_Y, S_TILE_A, S_TILE_B, S_TMP,
                  g1_cfg, g2_cfg, lane_geom)
from fft import sincos, wave_reduce, ln_finish, layernorm16, cmul_pk, gmat, MF32, MF16

OPT = set()
N7 = [0]
PFN = [0, 4, 0, 4]
WS_CNT = 30 << 20
WS_STAMP = 31 << 20
WS_XCH = 24 << 20
W1B = 2048 * 3584 * 2
WB = 2048 * 1026

P_X, P_WR, P_WI, P_W1, P_B1, P_W2, P_B2, P_OUT, P_DBG, P_WS = 64, 66, 68, 70, 72, 74, 76, 78, 80, 82
SRD_CNT = 12
S_T = 46
SRD_A, SRD_B, SRD_C, SRD_D = 24, 28, 32, 36
SRD_PF = 56
S_STAMP = 84
SF = " sc1"
LF = ""

L1_M1, L1_M2, L1_TW, L1_EX = 0, 4096, 8192, 16384
L2_F = 32768; L2_X = L2_F + 2048; L2_W = L2_X + 16 * 1040
L3_M3 = 98304; L3_M4 = L3_M3 + 4096; L3_TW = L3_M3 + 8192; L3_EX = L3_M3 + 16384
L3_LN = L3_EX + 16384; L3_RS = 2624
LDS_TOTAL = L3_LN + 8 * L3_RS
assert LDS_TOTAL <= 163840

STAMPS = ["entry", "p1 x landed", "p1 stores issued", "p1 arrived", "x1 released", "p2 x landed", "p2 stores issued",
          "x2 released", "p3 x2 landed", "p3 stores issued", "x3 released", "g1 main done", "g1 stores issued", "x4 released",
          "g2 main done", "g2 stores issued", "end", "x1 drained", "x2 drained", "x3 drained", "x4 drained", "p1 tables done", "p1 ln done", "p1 fft done", "p3 ifft done", "p3 ln done", "c:g1 start", "c:g1 end", "c:g2 start", "c:g2 end", "g2 x landed"]
nstamp = [len(STAMPS)]
SENT = lambda: "bar" not in OPT
SK = lambda: "nosk" not in OPT
W1F = lambda: " nt" if "ntw1" in OPT else ""
W2F = lambda: " nt" if "ntw2" in OPT else ""
XF = lambda: " nt" if ("ntx" in OPT or "ntx1" in OPT) else ""
WF = lambda: " nt" if ("ntx" in OPT or "ntw" in OPT) else ""
L_XS = 69632
def stamp(b, name):
    if "stamp" not in OPT: return
    i = STAMPS.index(name)
    op = "s_memtime" if name.startswith("c:") else "s_memrealtime"
    b(f"  {op} s[{S_STAMP}:{S_STAMP+1}]   ; stamp {i}: {name}")
    b(f"  s_waitcnt lgkmcnt(0)")
    b(f"  v_writelane_b32 v231, s{S_STAMP}, {i}")

def stamp_flush(b):
    if "stamp" not in OPT: return
    if "dbgmax" in OPT:
        SEL = [1, 23, 2, 17, 3, 4, 5, 6, 18, 7, 8, 9, 19, 10]
        srd(b, 24, P_DBG, 256)
        b(f"  v_readlane_b32 s46, v231, 0")
        b(f"  s_sub_u32 s47, 0, s46")
        b(f"  v_mov_b32 v3, 0")
        b(f"  v_writelane_b32 v3, s47, 0")
        b(f"  v_writelane_b32 v3, s46, 15")
        for i, st in enumerate(SEL):
            b(f"  v_readlane_b32 s46, v231, {st}")
            b(f"  s_nop 3")
            b(f"  v_writelane_b32 v3, s46, {i+1}")
        b(f"  v_lshlrev_b32 v2, 2, v7")
        b(f"  s_mov_b64 s[48:49], exec")
        b(f"  s_mov_b64 exec, 0xffff")
        b(f"  buffer_atomic_umax v3, v2, s[24:27], 0 offen sc1")
        b(f"  s_mov_b64 exec, s[48:49]")
        return
    if "dbgtime" in OPT:
        b(f"  s_cmp_lg_u32 s2, 100")
        b(f"  s_cbranch_scc1 dbg_skip")
        b(f"  s_cmp_lg_u32 s{S_W}, 0")
        b(f"  s_cbranch_scc1 dbg_skip")
        srd(b, 24, P_DBG, 256)
        b(f"  v_readlane_b32 s46, v231, 0")
        b(f"  s_nop 1")
        b(f"  v_subrev_u32 v3, s46, v231")
        b(f"  v_lshlrev_b32 v2, 2, v7")
        b(f"  v_subrev_u32 v2, 4, v2")
        b(f"  s_mov_b64 s[48:49], exec")
        b(f"  s_mov_b64 exec, 0x1fffe")
        b(f"  buffer_store_dword v3, v2, s[24:27], 0 offen")
        b(f"  s_mov_b64 exec, s[48:49]")
        b.label("dbg_skip")
        return
    srd(b, 24, P_WS, 1 << 20, WS_STAMP)
    b(f"  s_lshl_b32 s46, s2, 3")
    b(f"  s_add_u32 s46, s46, s{S_W}")
    b(f"  s_lshl_b32 s46, s46, 7            ; (wg*8+wave)*128")
    b(f"  v_lshlrev_b32 v2, 2, v7")
    b(f"  s_mov_b64 s[48:49], exec")
    b(f"  s_mov_b64 exec, 0xffffffff")
    b(f"  buffer_store_dword v231, v2, s[24:27], s46 offen")
    b(f"  s_mov_b64 exec, s[48:49]")

def arrive(b, bar, shard_sreg, first=False, label="", drained=False):
    if not drained: b(f"  s_waitcnt vmcnt(0)")
    stamp(b, f"x{bar+1} drained")
    b(f"  s_barrier")
    b(f"  s_cmp_lg_u32 s{S_W}, 0")
    b(f"  s_cbranch_scc1 {label}_arr_skip")
    if first:
        b(f"  s_mov_b32 s11, 100000")
        b.label(f"{label}_rdy")
        b(f"  v_cmp_ne_u32 vcc, 0, v27")
        b(f"  s_nop 1")
        b(f"  s_cmp_eq_u64 vcc, exec")
        b(f"  s_cbranch_scc1 {label}_rdy_ok")
        b(f"  buffer_load_dword v27, v26, s[{SRD_PF}:{SRD_PF+3}], 0 offen sc1")
        b(f"  s_waitcnt vmcnt(0)")
        b(f"  s_sub_u32 s11, s11, 1")
        b(f"  s_cmp_lg_u32 s11, 0")
        b(f"  s_cbranch_scc1 {label}_rdy")
        b.label(f"{label}_rdy_ok")
    b(f"  s_lshl_b32 s10, s{shard_sreg}, 8")
    b(f"  s_add_u32 s10, s10, {bar*4096}")
    b(f"  v_mov_b32 v228, s10")
    b(f"  v_mov_b32 v229, 1")
    b(f"  s_mov_b64 s[16:17], exec")
    b(f"  s_mov_b64 exec, 1")
    b(f"  buffer_atomic_add v229, v228, s[{SRD_CNT}:{SRD_CNT+3}], 0 offen sc1")
    b(f"  s_mov_b64 exec, s[16:17]")
    b.label(f"{label}_arr_skip")

def wait(b, bar, target, label, single_sreg=None):
    b(f"  s_cmp_lg_u32 s{S_W}, 0")
    b(f"  s_cbranch_scc1 {label}_w_skip")
    if single_sreg is None:
        b(f"  v_and_b32 v228, 15, v7")
        b(f"  v_lshlrev_b32 v228, 8, v228")
        b(f"  v_add_u32 v228, {bar*4096}, v228")
    else:
        b(f"  s_lshl_b32 s10, s{single_sreg}, 8")
        b(f"  s_add_u32 s10, s10, {bar*4096}")
        b(f"  v_mov_b32 v228, s10")
    b(f"  s_mov_b32 s11, 200000")
    b.label(f"{label}_poll")
    b(f"  buffer_load_dword v229, v228, s[{SRD_CNT}:{SRD_CNT+3}], 0 offen sc1")
    b(f"  s_waitcnt vmcnt(0)")
    b(f"  v_cmp_le_u32 vcc, {target}, v229")
    b(f"  s_nop 1")
    b(f"  s_cmp_eq_u64 vcc, exec")
    b(f"  s_cbranch_scc1 {label}_w_skip")
    b(f"  s_sub_u32 s11, s11, 1")
    b(f"  s_cmp_lg_u32 s11, 0")
    b(f"  s_cbranch_scc1 {label}_poll")
    b.label(f"{label}_w_skip")
    b(f"  s_barrier")

def prefetch(b, ptr_pair, nbytes, start, length, who_scale, who_sreg, vaddr, vdst, stmp, paced=False):
    chunk = -(-length // who_scale)
    n_per_wave = -(-chunk // (512 * 128))
    stride = -(-chunk // (512 * n_per_wave))
    stride = (stride + 3) // 4 * 4
    per_instr = 64 * stride
    srd(b, SRD_PF, ptr_pair, nbytes)
    b(f"  s_mul_i32 s{stmp}, s{who_sreg}, {chunk}")
    b(f"  s_mul_i32 s{stmp+1}, s{S_W}, {n_per_wave*per_instr}")
    b(f"  s_add_u32 s{stmp}, s{stmp}, s{stmp+1}")
    if start: b(f"  s_add_u32 s{stmp}, s{stmp}, {start}")
    b(f"  v_mul_u32_u24 v{vaddr}, {stride}, v7")
    for i in range(n_per_wave):
        b(f"  buffer_load_dword v{vdst}, v{vaddr}, s[{SRD_PF}:{SRD_PF+3}], s{stmp} offen")
        if i + 1 < n_per_wave: b(f"  s_add_u32 s{stmp}, s{stmp}, {per_instr}")
        if paced: b(f"  s_waitcnt vmcnt(0)")
    return n_per_wave

V_DUMMY = 232
def pf_wide(b, ptr_pair, nbytes, s_base, n, wave_lo, wave_hi, label):
    b(f"  s_cmp_lt_u32 s{S_W}, {wave_lo}")
    b(f"  s_cbranch_scc1 {label}")
    if wave_hi < 8:
        b(f"  s_cmp_ge_u32 s{S_W}, {wave_hi}")
        b(f"  s_cbranch_scc1 {label}")
    srd(b, SRD_PF, ptr_pair, nbytes)
    b(f"  s_sub_u32 s{S_T+9}, s{S_W}, {wave_lo}")
    b(f"  s_mul_i32 s{S_T+9}, s{S_T+9}, {n*1024}")
    b(f"  s_add_u32 s{S_T+9}, s{S_T+9}, s{s_base}")
    b(f"  v_lshlrev_b32 v29, 4, v7")
    for i in range(n):
        if i and i % 4 == 0: b(f"  s_add_u32 s{S_T+9}, s{S_T+9}, 4096")
        b(f"  buffer_load_dwordx4 {vr(V_DUMMY,4)}, v29, s[{SRD_PF}:{SRD_PF+3}], s{S_T+9} offen offset:{(i%4)*1024}")
    b.label(label)

def w1_share_base(b, sreg, part):
    b(f"  s_mul_i32 s{sreg}, s2, {W1B // 256}")
    if part: b(f"  s_add_u32 s{sreg}, s{sreg}, {part}")

def w1_first_half_base(b, sreg, part):
    b(f"  s_and_b32 s{sreg}, s2, 7")
    b(f"  s_mul_i32 s{sreg}, s{sreg}, {256*7168}")
    b(f"  s_lshr_b32 s{S_T+9}, s2, 3")
    b(f"  s_mul_i32 s{S_T+9}, s{S_T+9}, {4*7168}")
    b(f"  s_add_u32 s{sreg}, s{sreg}, s{S_T+9}")
    if part: b(f"  s_add_u32 s{sreg}, s{sreg}, {part}")

def p1_tables(b):
    M1, M2, TW = L1_M1, L1_M2, L1_TW
    b(f"  v_and_b32 v10, 255, v0            ; e")
    b(f"  v_lshrrev_b32 v11, 8, v0          ; u")
    b(f"  v_bfe_u32 v12, v10, 2, 4          ; lane&15")
    b(f"  v_lshl_add_u32 v12, v11, 4, v12   ; k1")
    b(f"  v_lshrrev_b32 v13, 6, v10         ; g")
    b(f"  v_and_b32 v14, 3, v10")
    b(f"  v_lshlrev_b32 v13, 3, v13")
    b(f"  v_lshl_add_u32 v13, v14, 1, v13   ; a0 = 8g + 2i")
    b(f"  v_mul_u32_u24 v15, v13, v12       ; a0*k1")
    b(f"  v_add_u32 v16, v15, v12           ; (a0+1)*k1")
    sincos(b, 17, 18, 15, 5, 21)
    sincos(b, 19, 20, 16, 5, 21)
    b(f"  v_lshlrev_b32 v22, 2, v10")
    b(f"  v_lshl_add_u32 v22, v11, 11, v22  ; u*2048 + e*4")
    b(f"  v_cvt_pk_bf16_f32 v23, v17, v19")
    b(f"  v_cvt_pk_bf16_f32 v24, -v18, -v20")
    b(f"  ds_write_b32 v22, v23 offset:{M1}")
    b(f"  ds_write_b32 v22, v24 offset:{M1+1024}")
    sincos(b, 17, 18, 15, 10, 21)
    sincos(b, 19, 20, 16, 10, 21)
    b(f"  ds_write_b32 v22, v17 offset:{TW}")
    b(f"  ds_write_b32 v22, v18 offset:{TW+1024}")
    b(f"  ds_write_b32 v22, v19 offset:{TW+4096}")
    b(f"  ds_write_b32 v22, v20 offset:{TW+4096+1024}")
    b(f"  v_bfe_u32 v12, v10, 2, 4          ; k2")
    b(f"  v_mul_u32_u24 v15, v13, v12")
    b(f"  v_add_u32 v16, v15, v12")
    sincos(b, 17, 18, 15, 5, 21)
    sincos(b, 19, 20, 16, 5, 21)
    b(f"  v_lshlrev_b32 v22, 2, v10")
    b(f"  v_cvt_pk_bf16_f32 v23, v17, v19")
    b(f"  v_cvt_pk_bf16_f32 v24, v18, v20")
    b(f"  v_cvt_pk_bf16_f32 v25, -v18, -v20")
    b(f"  ds_write_b32 v22, v23 offset:{M2}")
    b(f"  ds_write_b32 v22, v24 offset:{M2+1024}")
    b(f"  ds_write_b32 v22, v25 offset:{M2+2048}")

def ln_fast(b, X, T, S0, alt):
    b(f"  v_readlane_b32 s{S0}, v{X}, 0              ; pivot")
    b(f"  s_nop 1")
    for i in range(0, 16, 2):
        b(f"  v_pk_add_f32 {vr(X+i,2)}, {vr(X+i,2)}, s[{S0}:{S0+1}] op_sel_hi:[1,0] neg_lo:[0,1] neg_hi:[0,1]")
    b(f"  v_pk_add_f32 {vr(T,2)}, {vr(X,2)}, {vr(X+2,2)}")
    b(f"  v_pk_add_f32 {vr(T+2,2)}, {vr(X+8,2)}, {vr(X+10,2)}")
    b(f"  v_pk_mul_f32 {vr(T+4,2)}, {vr(X,2)}, {vr(X,2)}")
    b(f"  v_pk_add_f32 {vr(T,2)}, {vr(T,2)}, {vr(X+4,2)}")
    b(f"  v_pk_add_f32 {vr(T+2,2)}, {vr(T+2,2)}, {vr(X+12,2)}")
    b(f"  v_pk_fma_f32 {vr(T+4,2)}, {vr(X+2,2)}, {vr(X+2,2)}, {vr(T+4,2)}")
    b(f"  v_pk_add_f32 {vr(T,2)}, {vr(T,2)}, {vr(X+6,2)}")
    b(f"  v_pk_add_f32 {vr(T+2,2)}, {vr(T+2,2)}, {vr(X+14,2)}")
    for i in range(4, 16, 2):
        b(f"  v_pk_fma_f32 {vr(T+4,2)}, {vr(X+i,2)}, {vr(X+i,2)}, {vr(T+4,2)}")
    b(f"  v_add_f32 v{T}, v{T}, v{T+1}")
    b(f"  v_add_f32 v{T+2}, v{T+2}, v{T+3}")
    if not alt: b(f"  v_add_f32 v{T}, v{T}, v{T+2}")
    b(f"  v_add_f32 v{T+4}, v{T+4}, v{T+5}           ; squares")
    if alt:
        wave_reduce(b, [T, T+2, T+4])
        b(f"  v_sub_f32 v{T+1}, v{T}, v{T+2}             ; E - O")
        b(f"  v_add_f32 v{T}, v{T}, v{T+2}")
        b(f"  s_nop 0")
        b(f"  v_readlane_b32 s{S0+2}, v{T}, 63")
        b(f"  v_readlane_b32 s{S0+3}, v{T+4}, 63")
        b(f"  v_readlane_b32 s{S0+4}, v{T+1}, 63")
    else:
        wave_reduce(b, [T, T+4])
        b(f"  s_nop 0")
        b(f"  v_readlane_b32 s{S0+2}, v{T}, 63")
        b(f"  v_readlane_b32 s{S0+3}, v{T+4}, 63")
    b(f"  s_nop 0")
    b(f"  v_mov_b32 v{T}, {hex(f2u(1.0/1024))}")
    b(f"  v_mul_f32 v{T+1}, s{S0+2}, v{T}")
    b(f"  v_mul_f32 v{T+2}, s{S0+3}, v{T}")
    b(f"  v_fma_f32 v{T+2}, -v{T+1}, v{T+1}, v{T+2}  ; variance")
    b(f"  v_max_f32 v{T+2}, 0, v{T+2}")
    b(f"  v_add_f32 v{T+2}, {hex(f2u(1e-5))}, v{T+2}")
    b(f"  v_rsq_f32 v{T+4}, v{T+2}")
    b(f"  s_nop 0")
    b(f"  v_mul_f32 v{T+8}, -v{T+1}, v{T+4}          ; -mean*rstd")
    if alt: b(f"  v_mul_f32 v{T+6}, s{S0+4}, v{T+4}")
    for i in range(0, 16, 2):
        b(f"  v_pk_fma_f32 {vr(X+i,2)}, {vr(X+i,2)}, {vr(T+4,2)}, {vr(T+8,2)} op_sel_hi:[1,0,0]")

def x1_store_addr(b):
    b(f"  v_lshlrev_b32 v5, 15, v9")
    b(f"  v_lshl_add_u32 v5, v8, 2, v5")
    b(f"  s_and_b32 s{S_T+6}, s2, 15")
    b(f"  s_lshl_b32 s{S_T+6}, s{S_T+6}, 4")
    b(f"  s_lshr_b32 s{S_T+7}, s2, 4")
    b(f"  s_add_u32 s{S_T+6}, s{S_T+6}, s{S_T+7}")
    b(f"  s_lshl_b32 s{S_T+6}, s{S_T+6}, 6       ; pos*64")
    b(f"  s_lshl_b32 s{S_T+7}, s{S_W}, 19        ; 4w*131072")
    b(f"  s_add_u32 s44, s{S_T+6}, s{S_T+7}")

def w_early(b):
    srd(b, SRD_C, P_WR, WB)
    srd(b, SRD_D, P_WI, WB)
    b(f"  s_and_b32 s{S_T+2}, s2, 7              ; j1")
    b(f"  v_and_b32 v215, 1, v0                ; half")
    b(f"  v_bfe_u32 v11, v0, 5, 4              ; c")
    b(f"  v_bfe_u32 v12, v0, 1, 4              ; e")
    b(f"  v_lshl_add_u32 v13, v12, 4, v11      ; j2")
    b(f"  v_lshlrev_b32 v13, 3, v13")
    b(f"  v_add_u32 v13, s{S_T+2}, v13         ; j")
    b(f"  v_mul_u32_u24 v214, 1026, v13")
    b(f"  v_lshl_add_u32 v14, v215, 4, v214")
    b(f"  s_lshr_b32 s{S_T+3}, s2, 3           ; kb")
    b(f"  s_lshl_b32 s{S_T+3}, s{S_T+3}, 5")
    b(f"  buffer_load_dwordx4 {vr(WE,4)}, v14, s[{SRD_C}:{SRD_C+3}], s{S_T+3} offen{WF()}")
    b(f"  buffer_load_dwordx4 {vr(WE+4,4)}, v14, s[{SRD_D}:{SRD_D+3}], s{S_T+3} offen{WF()}")

def p1(b):
    srd(b, SRD_A, P_X, 4 << 20)
    srd(b, SRD_B, P_WS, 4 << 20, WS_X1)
    b(f"  s_lshl_b32 s{S_T}, s{S_W}, 8")
    b(f"  s_add_u32 s{S_T}, s{S_T}, s2          ; s")
    b(f"  s_lshl_b32 s{S_T+1}, s{S_T}, 11")
    b(f"  v_lshlrev_b32 v1, 9, v9")
    b(f"  v_lshl_add_u32 v1, v8, 2, v1")
    XD = 32
    b(f"  s_cmp_ge_u32 s2, 16")
    b(f"  s_cbranch_scc1 p1_noreset")
    b(f"  s_cmp_lg_u32 s{S_W}, 0")
    b(f"  s_cbranch_scc1 p1_noreset")
    b(f"  s_lshl_b32 s{S_T+2}, s2, 8")
    b(f"  v_lshlrev_b32 v2, 12, v7")
    b(f"  v_add_u32 v2, s{S_T+2}, v2")
    b(f"  v_mov_b32 v3, 0")
    b(f"  s_mov_b64 s[48:49], exec")
    b(f"  s_mov_b64 exec, 15")
    b(f"  buffer_store_dword v3, v2, s[{SRD_CNT}:{SRD_CNT+3}], 0 offen sc1")
    b(f"  s_mov_b64 exec, s[48:49]")
    b.label("p1_noreset")
    for i in range(8):
        b(f"  buffer_load_dword v{XD+i}, v1, s[{SRD_A}:{SRD_A+3}], s{S_T+1} offen offset:{64*i}{XF()}")
    NCLR = 0
    NWE = 0
    x1_store_addr(b)
    if SENT():
        b(f"  v_mov_b32 v60, -1")
        b(f"  v_mov_b32 v61, -1")
        b(f"  v_mov_b32 v62, -1")
        b(f"  v_mov_b32 v63, -1")
        b(f"  v_bfe_u32 v2, v7, 2, 3              ; j1")
        b(f"  v_lshrrev_b32 v3, 5, v7             ; i (0,1)")
        b(f"  v_lshlrev_b32 v2, 14, v2")
        b(f"  v_lshl_add_u32 v2, v3, 17, v2")
        b(f"  v_and_b32 v3, 3, v7")
        b(f"  v_lshl_add_u32 v2, v3, 4, v2")
        b(f"  buffer_store_dwordx4 v[60:63], v2, s[{SRD_B}:{SRD_B+3}], s44 offen{SF}")
        b(f"  s_add_u32 s{S_T+7}, s44, {2*131072}")
        b(f"  buffer_store_dwordx4 v[60:63], v2, s[{SRD_B}:{SRD_B+3}], s{S_T+7} offen{SF}")
        NCLR = 2
    if "tlbw" in OPT:
        b(f"  s_cmp_lg_u32 s{S_W}, 7")
        b(f"  s_cbranch_scc1 p1_notlb")
        sh = 20 if "tlb1m" in OPT else (19 if "tlb512k" in OPT else 21)
        b(f"  v_lshlrev_b32 v2, {sh}, v7")
        lst = [(P_WS, 32 << 20), (P_W1, W1B), (P_W2, W1B), (P_WR, WB), (P_WI, WB), (P_OUT, 4 << 20), (P_B1, 7168), (P_B2, 4096)]
        for ptr, size in lst:
            srd(b, SRD_PF, ptr, size)
            b(f"  s_mov_b64 s[16:17], exec")
            n = min(64, -(-size // (1 << sh)))
            b(f"  s_mov_b64 exec, {hex((1 << n) - 1)}")
            b(f"  buffer_load_dword v230, v2, s[{SRD_PF}:{SRD_PF+3}], 0 offen")
            b(f"  s_mov_b64 exec, s[16:17]")
        if "pf7" in OPT:
            n7 = 0
            if "wpf" in OPT:
                b(f"  s_mul_i32 s{S_T+8}, s2, 8208")
                b(f"  v_lshlrev_b32 v29, 4, v7")
                for ptr in (P_WR, P_WI):
                    srd(b, SRD_PF, ptr, WB)
                    b(f"  s_mov_b32 s{S_T+9}, s{S_T+8}")
                    for i in range(9):
                        if i and i % 4 == 0: b(f"  s_add_u32 s{S_T+9}, s{S_T+9}, 4096")
                        b(f"  buffer_load_dwordx4 {vr(V_DUMMY,4)}, v29, s[{SRD_PF}:{SRD_PF+3}], s{S_T+9} offen offset:{(i%4)*1024}")
                        n7 += 1
            if PFN[0]:
                w1_share_base(b, S_T + 9, 0)
                b(f"  v_lshlrev_b32 v29, 4, v7")
                srd(b, SRD_PF, P_W1, W1B)
                for i in range(4 * PFN[0]):
                    if i and i % 4 == 0: b(f"  s_add_u32 s{S_T+9}, s{S_T+9}, 4096")
                    b(f"  buffer_load_dwordx4 {vr(V_DUMMY,4)}, v29, s[{SRD_PF}:{SRD_PF+3}], s{S_T+9} offen offset:{(i%4)*1024}")
                    n7 += 1
            N7[0] = n7
        b.label("p1_notlb")
    if "wearly" in OPT:
        w_early(b); NCLR += 2
    npf = 0
    p1_tables(b)
    GM = 30
    gmat(b, GM, 2, False, 10)
    srd(b, SRD_PF, P_DBG, 256)
    b(f"  s_and_b32 s{S_T+8}, s2, 15")
    b(f"  s_lshl_b32 s{S_T+9}, s{S_T+8}, 2")
    b(f"  s_add_u32 s{S_T+9}, s{S_T+9}, 64")
    b(f"  v_mov_b32 v25, s{S_T+9}")
    b(f"  v_lshlrev_b32 v26, 2, v8")
    b(f"  v_add_u32 v26, 64, v26")
    b(f"  s_cmp_ge_u32 s2, 16")
    b(f"  s_cbranch_scc1 p1_noflag")
    b(f"  s_cmp_lg_u32 s{S_W}, 0")
    b(f"  s_cbranch_scc1 p1_noflag")
    b(f"  s_waitcnt vmcnt({8} + 0)".replace(" + 0", "") if NCLR == 0 else f"  s_waitcnt vmcnt({8 + NCLR})")
    b(f"  v_mov_b32 v3, 1")
    b(f"  s_mov_b64 s[48:49], exec")
    b(f"  s_mov_b64 exec, 1")
    b(f"  buffer_store_dword v3, v25, s[{SRD_PF}:{SRD_PF+3}], 0 offen sc1")
    b(f"  s_mov_b64 exec, s[48:49]")
    b.label("p1_noflag")
    b(f"  s_waitcnt lgkmcnt(0)")
    stamp(b, "p1 tables done")
    b(f"  s_barrier")
    npf = 0
    if "nopf" not in OPT:
        b(f"  s_mul_i32 s{S_T+8}, s2, 8208")
        if "ntx" not in OPT and "wpf" in OPT and "pf7" not in OPT:
            pf_wide(b, P_WR, WB, S_T + 8, 3, 0, 3, "pf_p1a")
            pf_wide(b, P_WI, WB, S_T + 8, 3, 0, 3, "pf_p1b")
        if "ntw1" not in OPT and PFN[0] and "pf7" not in OPT:
            w1_share_base(b, S_T + 8, 0)
            pf_wide(b, P_W1, W1B, S_T + 8, PFN[0], 4, 8, "pf_p1c")
    M1, M2, TW = 96, 112, 128
    b(f"  v_lshlrev_b32 v2, 4, v7")
    for i in range(4): b(f"  ds_read_b128 {vr(M1+4*i,4)}, v2 offset:{L1_M1+1024*i}")
    for i in range(3): b(f"  ds_read_b128 {vr(M2+4*i,4)}, v2 offset:{L1_M2+1024*i}")
    for i in range(8): b(f"  ds_read_b128 {vr(TW+4*i,4)}, v2 offset:{L1_TW+1024*i}")
    X = 40
    nW = 0 if ("nopf" in OPT or "ntx" in OPT or "wpf" not in OPT or "pf7" in OPT) else 6
    n1 = 0 if ("nopf" in OPT or "ntw1" in OPT or "pf7" in OPT) else PFN[0]
    b(f"  s_cmp_eq_u32 s{S_W}, 3")
    b(f"  s_cbranch_scc1 p1_xw0")
    b(f"  s_cmp_ge_u32 s{S_W}, 4")
    b(f"  s_cbranch_scc1 p1_xw4")
    b(f"  s_waitcnt vmcnt({NCLR + nW})")
    b(f"  s_branch p1_xwd")
    b.label("p1_xw4")
    if "tlbw" in OPT:
        b(f"  s_cmp_lg_u32 s{S_W}, 7")
        b(f"  s_cbranch_scc1 p1_xw5")
        b(f"  s_waitcnt vmcnt({min(63, NCLR + n1 + 8 + N7[0])})")
        b(f"  s_branch p1_xwd")
        b.label("p1_xw5")
    b(f"  s_waitcnt vmcnt({NCLR + n1})")
    b(f"  s_branch p1_xwd")
    b.label("p1_xw0")
    b(f"  s_waitcnt vmcnt({NCLR})")
    b.label("p1_xwd")
    stamp(b, "p1 x landed")
    if "wearly" in OPT:
        b(f"  s_cmp_ge_u32 s2, 8")
        b(f"  s_cbranch_scc1 p1_nonyq")
        b(f"  buffer_load_ushort v212, v214, s[{SRD_C}:{SRD_C+3}], 0 offen offset:1024")
        b(f"  buffer_load_ushort v213, v214, s[{SRD_D}:{SRD_D+3}], 0 offen offset:1024")
        b.label("p1_nonyq")
    srd(b, SRD_PF, P_DBG, 256)
    if "stash" in OPT:
        b(f"  s_lshl_b32 s{S_T+9}, s{S_W}, 11")
        b(f"  s_add_u32 s{S_T+9}, s{S_T+9}, {L_XS}")
        b(f"  v_add_u32 v4, s{S_T+9}, v1           ; t*2048 + g*512 + c*4")
        for i in range(8): b(f"  ds_write_b32 v4, v{XD+i} offset:{64*i}")
    for i in range(8):
        b(f"  v_lshlrev_b32 v{X+i}, 16, v{XD+i}")
        b(f"  v_and_b32 v{X+8+i}, 0xffff0000, v{XD+i}")
    T = 56
    ln_fast(b, X, T, S_T + 2, True)
    stamp(b, "p1 ln done")
    if SENT():
        b(f"  buffer_load_dword v27, v26, s[{SRD_PF}:{SRD_PF+3}], 0 offen sc1")
        b(f"  s_and_b32 s{S_T+8}, s2, 15")
        arrive(b, 0, S_T + 8, first=True, label="x1")
        stamp(b, "p1 arrived")
        srd(b, SRD_C, P_WS, 4 << 20, WS_X2)
        for i in range(4): b(f"  v_mov_b32 v{200+i}, -1")
        b(f"  v_lshlrev_b32 v2, 4, v0")
        b(f"  s_lshl_b32 s{S_T+7}, s2, 14")
        b(f"  buffer_store_dwordx4 v[200:203], v2, s[{SRD_C}:{SRD_C+3}], s{S_T+7} offen{SF}")
        b(f"  s_add_u32 s{S_T+7}, s{S_T+7}, 8192")
        b(f"  buffer_store_dwordx4 v[200:203], v2, s[{SRD_C}:{SRD_C+3}], s{S_T+7} offen{SF}")
    A = 64
    for be in range(2):
        for i in range(4):
            b(f"  v_cvt_pk_bf16_f32 v{A+4*be+i}, v{X+8*be+2*i}, v{X+8*be+2*i+1}")
    b(f"  s_waitcnt lgkmcnt(0)")
    b(f"  v_readlane_b32 s{S_T+5}, v{T+6}, 0")
    Y = 160
    for be in range(2):
        for u in range(2):
            for c in range(2):
                d = Y + ((be * 2 + u) * 2 + c) * 4
                b(f"  {MF32} {vr(d,4)}, {vr(A+4*be,4)}, {vr(M1+4*(2*u+c),4)}, 0")
    b(f"  s_nop 4")
    Bp = 72; W = 32; O = 40
    for u in range(2):
        for be in range(2):
            y = Y + ((be * 2 + u) * 2) * 4
            tw = TW + (be * 4 + u * 2) * 4
            cmul_pk(b, O + 8 * be, O + 8 * be + 4, y, y + 4, tw, tw + 4, W, False)
        for r in range(4):
            b(f"  v_cvt_pk_bf16_f32 v{Bp+8*u+r}, v{O+r}, v{O+8+r}")
            b(f"  v_cvt_pk_bf16_f32 v{Bp+8*u+4+r}, v{O+4+r}, v{O+12+r}")
    XO = 160
    b(f"  s_nop 1")
    for u in range(2):
        re, im = XO + 8 * u, XO + 8 * u + 4
        b(f"  {MF32} {vr(re,4)}, {vr(M2,4)}, {vr(Bp+8*u,4)}, 0")
        b(f"  {MF32} {vr(im,4)}, {vr(M2,4)}, {vr(Bp+8*u+4,4)}, 0")
        b(f"  {MF32} {vr(re,4)}, {vr(M2+4,4)}, {vr(Bp+8*u+4,4)}, {vr(re,4)}")
        b(f"  {MF32} {vr(im,4)}, {vr(M2+8,4)}, {vr(Bp+8*u,4)}, {vr(im,4)}")
    b(f"  s_and_b32 s{S_T+6}, s{S_W}, 1")
    b(f"  s_lshl_b32 s{S_T+6}, s{S_T+6}, 8")
    b(f"  s_lshr_b32 s{S_T+7}, s{S_W}, 1")
    b(f"  s_lshl_b32 s{S_T+7}, s{S_T+7}, 6")
    b(f"  s_add_u32 s{S_T+6}, s{S_T+6}, s{S_T+7}")
    b(f"  v_lshlrev_b32 v3, 12, v9")
    b(f"  v_lshl_add_u32 v3, v8, 2, v3")
    b(f"  v_add_u32 v3, s{S_T+6}, v3")
    b(f"  s_nop 2")
    b(f"  v_writelane_b32 v{XO}, s{S_T+5}, 0")
    b(f"  v_writelane_b32 v{XO+4}, 0, 0")
    PK = 32
    for u in range(2):
        for r in range(4):
            b(f"  v_cvt_pk_bf16_f32 v{PK+4*u+r}, v{XO+8*u+r}, v{XO+8*u+4+r}")
    for u in range(2):
        for r in range(4):
            b(f"  ds_write_b32 v3, v{PK+4*u+r} offset:{L1_EX + u*512 + r*1024}")
    if SENT(): b(f"  s_waitcnt lgkmcnt(0) vmcnt(0)")
    else:
        b(f"  buffer_load_dword v27, v26, s[{SRD_PF}:{SRD_PF+3}], 0 offen sc1")
        b(f"  s_waitcnt lgkmcnt(0)")
    stamp(b, "p1 fft done")
    b(f"  s_barrier")
    b(f"  v_lshlrev_b32 v4, 6, v9")
    b(f"  v_lshl_add_u32 v4, v8, 2, v4")
    b(f"  s_lshl_b32 s{S_T+6}, s{S_W}, 11")
    b(f"  s_add_u32 s{S_T+6}, s{S_T+6}, {L1_EX}")
    b(f"  v_add_u32 v4, s{S_T+6}, v4")
    Bd = 40
    for i in range(4):
        b(f"  ds_read2st64_b32 {vr(Bd+2*i,2)}, v4 offset0:{2*i} offset1:{2*i+1}")
    D = 48
    for i in range(4):
        b(f"  s_waitcnt lgkmcnt({3-i})")
        b(f"  {MF16} {vr(D+4*i,4)}, {vr(GM,2)}, {vr(Bd+2*i,2)}, 0")
    b(f"  s_nop 4")
    for i in range(4):
        b(f"  v_cvt_pk_bf16_f32 v{64+2*i}, v{D+4*i}, v{D+4*i+1}")
        b(f"  v_cvt_pk_bf16_f32 v{65+2*i}, v{D+4*i+2}, v{D+4*i+3}")
        b(f"  v_min_u32 v{64+2*i}, 0xfffffffe, v{64+2*i}")
        b(f"  v_min_u32 v{65+2*i}, 0xfffffffe, v{65+2*i}")
        for e in range(2):
            b(f"  s_add_u32 s{S_T+7}, s44, {i*131072 + e*16384}")
            b(f"  buffer_store_dword v{64+2*i+e}, v5, s[{SRD_B}:{SRD_B+3}], s{S_T+7} offen{SF}")
    stamp(b, "p1 stores issued")
    if not SENT():
        b(f"  s_and_b32 s{S_T+8}, s2, 15")
        arrive(b, 0, S_T + 8, first=True, label="x1")
        stamp(b, "p1 arrived")

XL2, WL2 = 32, 40
WE = 204
TC2, TS2 = 64, 68
def p2_setup(b):
    srd(b, SRD_A, P_WS, 4 << 20, WS_X1)
    srd(b, SRD_B, P_WS, 4 << 20, WS_X2)
    srd(b, SRD_C, P_WR, WB)
    srd(b, SRD_D, P_WI, WB)
    b(f"  s_and_b32 s{S_T}, s2, 7              ; j1")
    b(f"  s_lshr_b32 s{S_T+1}, s2, 3           ; kb")
    b(f"  v_and_b32 v10, 1, v0                 ; half")
    b(f"  v_bfe_u32 v11, v0, 5, 4              ; c")
    b(f"  v_bfe_u32 v12, v0, 1, 4              ; e")
    b(f"  v_lshl_add_u32 v13, v12, 4, v11      ; j2")
    b(f"  v_lshlrev_b32 v13, 3, v13")
    b(f"  v_add_u32 v13, s{S_T}, v13           ; j")
    b(f"  v_mul_u32_u24 v13, 1026, v13")
    b(f"  v_lshlrev_b32 v14, 4, v10")
    b(f"  v_add_u32 v14, v13, v14")
    b(f"  s_lshl_b32 s{S_T+3}, s{S_T+1}, 5")
    if "wearly" in OPT:
        b(f"  s_cmp_lg_u32 s{S_T+1}, 0")
        b(f"  s_cbranch_scc1 p2_nonyq")
        b(f"  s_waitcnt vmcnt(0)")
        b(f"  v_cmp_eq_u32 vcc, 0, v215")
        b(f"  v_and_b32 v50, 0xffff0000, v{WE}")
        b(f"  v_or_b32 v50, v50, v212")
        b(f"  v_cndmask_b32 v{WE}, v{WE}, v50, vcc")
        b(f"  v_and_b32 v50, 0xffff0000, v{WE+4}")
        b(f"  v_or_b32 v50, v50, v213")
        b(f"  v_cndmask_b32 v{WE+4}, v{WE+4}, v50, vcc")
        b.label("p2_nonyq")
    elif "wlate" in OPT:
        b(f"  v_mov_b32 v24, v14")
        b(f"  v_mov_b32 v25, v13")
        b(f"  v_mov_b32 v26, v10                   ; half")
        b(f"  s_mov_b32 s45, s{S_T+3}              ; kb*32")
    else:
        WL = WL2
        b(f"  v_mov_b32 v24, v14")
        b(f"  v_mov_b32 v25, v13")
        b(f"  v_mov_b32 v26, v10                   ; half")
        b(f"  s_mov_b32 s45, s{S_T+3}              ; kb*32")
        WL = WL2
        b(f"  buffer_load_dwordx4 {vr(WL,4)}, v24, s[{SRD_C}:{SRD_C+3}], s45 offen{WF()}")
        b(f"  buffer_load_dwordx4 {vr(WL+4,4)}, v24, s[{SRD_D}:{SRD_D+3}], s45 offen{WF()}")
        b(f"  s_cmp_lg_u32 s{S_T+1}, 0")
        b(f"  s_cbranch_scc1 p2_nonyq")
        b(f"  buffer_load_ushort v48, v25, s[{SRD_C}:{SRD_C+3}], 0 offen offset:1024")
        b(f"  buffer_load_ushort v49, v25, s[{SRD_D}:{SRD_D+3}], 0 offen offset:1024")
        b(f"  s_waitcnt vmcnt(0)")
        b(f"  v_cmp_eq_u32 vcc, 0, v26")
        b(f"  v_and_b32 v50, 0xffff0000, v{WL}")
        b(f"  v_or_b32 v50, v50, v48")
        b(f"  v_cndmask_b32 v{WL}, v{WL}, v50, vcc")
        b(f"  v_and_b32 v50, 0xffff0000, v{WL+4}")
        b(f"  v_or_b32 v50, v50, v49")
        b(f"  v_cndmask_b32 v{WL+4}, v{WL+4}, v50, vcc")
        b.label("p2_nonyq")
    npf = 0
    b(f"  v_and_b32 v15, 255, v0")
    b(f"  v_bfe_u32 v16, v15, 2, 4             ; x")
    b(f"  v_lshrrev_b32 v17, 6, v15            ; g")
    b(f"  v_and_b32 v18, 3, v15")
    b(f"  v_lshl_add_u32 v17, v17, 2, v18      ; 4g+i")
    b(f"  v_mul_u32_u24 v17, v17, v16")
    sincos(b, 18, 19, 17, 4, 20)
    b(f"  v_cmp_gt_u32 vcc, 256, v0            ; matrix 0 ?")
    b(f"  v_xor_b32 v20, 0x80000000, v19       ; -sin")
    b(f"  s_nop 0")
    b(f"  v_cndmask_b32 v21, v20, v18, vcc")
    b(f"  v_cndmask_b32 v22, v18, v19, vcc")
    b(f"  v_cvt_pk_bf16_f32 v21, v21, v22")
    b(f"  v_lshlrev_b32 v22, 2, v0")
    b(f"  ds_write_b32 v22, v21 offset:{L2_F}")
    b(f"  v_lshlrev_b32 v16, 2, v9")
    for r in range(4):
        b(f"  v_add_u32 v17, {r}, v16")
        b(f"  v_mul_u32_u24 v17, v17, v8")
        sincos(b, TC2 + r, TS2 + r, 17, 8, 20)
    b(f"  v_and_b32 v16, 3, v0                 ; i")
    b(f"  v_mul_u32_u24 v16, {4*1040}, v16")
    b(f"  v_lshrrev_b32 v17, 6, v0             ; b (0..7)")
    b(f"  v_lshl_add_u32 v16, v17, 6, v16")
    b(f"  v_bfe_u32 v17, v0, 2, 2              ; a&3")
    b(f"  v_lshl_add_u32 v16, v17, 2, v16")
    b(f"  v_bfe_u32 v17, v0, 4, 2              ; a>>2")
    b(f"  v_lshl_add_u32 v21, v17, 4, v16      ; first")
    b(f"  v_xor_b32 v17, 2, v17")
    b(f"  v_lshl_add_u32 v22, v17, 4, v16")
    b(f"  v_add_u32 v22, 512, v22              ; second (b+8)")
    b(f"  v_mul_u32_u24 v16, {4*1040}, v10")
    b(f"  v_lshl_add_u32 v16, v11, 6, v16")
    b(f"  v_and_b32 v17, 3, v12")
    b(f"  v_lshl_add_u32 v16, v17, 2, v16")
    b(f"  v_lshrrev_b32 v17, 2, v12")
    b(f"  v_lshrrev_b32 v18, 3, v11            ; c>>3")
    b(f"  v_lshlrev_b32 v18, 1, v18")
    b(f"  v_xor_b32 v17, v17, v18")
    b(f"  v_lshl_add_u32 v23, v17, 4, v16")
    b(f"  v_lshrrev_b32 v16, 3, v8")
    b(f"  v_lshlrev_b32 v16, 1, v16")
    b(f"  v_xor_b32 v16, v16, v9")
    b(f"  v_lshlrev_b32 v16, 4, v16")
    b(f"  v_lshl_add_u32 v16, v8, 6, v16")
    b(f"  s_mul_i32 s{S_T+4}, s{S_W}, {2*1040}")
    b(f"  s_mul_i32 s{S_T+5}, s{S_W}, 1040")
    b(f"  v_add_u32 v5, s{S_T+4}, v16")
    b(f"  v_add_u32 v6, s{S_T+5}, v16")
    b(f"  v_lshlrev_b32 v1, 4, v0")
    b(f"  s_lshl_b32 s{S_T+2}, s2, 14")
    b(f"  s_add_u32 s{S_T+3}, s{S_T+2}, 8192")
    b(f"  s_waitcnt lgkmcnt(0)")

def sentinel_check(b, R0, pre, n=8):
    b(f"  v_max3_u32 v16, v{R0}, v{R0+1}, v{R0+2}")
    b(f"  v_max3_u32 v17, v{R0+3}, v{R0+4}, v{R0+5}")
    b(f"  v_max3_u32 v16, v16, v{R0+6}, v{R0+7}")
    for i in range(8, n, 2): b(f"  v_max3_u32 v17, v17, v{R0+i}, v{R0+i+1}")
    b(f"  v_max_u32 v16, v16, v17")
    b(f"  v_cmp_eq_u32 vcc, -1, v16")
    b(f"  s_sub_u32 s11, s11, 1")
    b(f"  s_cmp_eq_u32 s11, 0")
    b(f"  s_cbranch_scc1 {pre}_got")
    b(f"  s_cmp_lg_u64 vcc, 0")
    b(f"  s_cbranch_scc1 {pre}_poll")
    b.label(f"{pre}_got")

def p2_main(b):
    XL = XL2; TC, TS = TC2, TS2
    if SENT():
        b(f"  s_mov_b32 s11, 200000")
        b.label("p2_poll")
    b(f"  buffer_load_dwordx4 {vr(XL,4)}, v1, s[{SRD_A}:{SRD_A+3}], s{S_T+2} offen sc1")
    b(f"  buffer_load_dwordx4 {vr(XL+4,4)}, v1, s[{SRD_A}:{SRD_A+3}], s{S_T+3} offen sc1")
    if "wlate" in OPT:
        assert not SENT()
        WL = WL2
        b(f"  buffer_load_dwordx4 {vr(WL,4)}, v24, s[{SRD_C}:{SRD_C+3}], s45 offen{WF()}")
        b(f"  buffer_load_dwordx4 {vr(WL+4,4)}, v24, s[{SRD_D}:{SRD_D+3}], s45 offen{WF()}")
        b(f"  s_cmp_lg_u32 s{S_T+1}, 0")
        b(f"  s_cbranch_scc1 p2_nonyq")
        b(f"  buffer_load_ushort v56, v25, s[{SRD_C}:{SRD_C+3}], 0 offen offset:1024")
        b(f"  buffer_load_ushort v57, v25, s[{SRD_D}:{SRD_D+3}], 0 offen offset:1024")
        b(f"  s_waitcnt vmcnt(0)")
        b(f"  v_cmp_eq_u32 vcc, 0, v26")
        b(f"  v_and_b32 v58, 0xffff0000, v{WL}")
        b(f"  v_or_b32 v58, v58, v56")
        b(f"  v_cndmask_b32 v{WL}, v{WL}, v58, vcc")
        b(f"  v_and_b32 v58, 0xffff0000, v{WL+4}")
        b(f"  v_or_b32 v58, v58, v57")
        b(f"  v_cndmask_b32 v{WL+4}, v{WL+4}, v58, vcc")
        b.label("p2_nonyq")
        b(f"  s_waitcnt vmcnt(2)")
    else:
        b(f"  s_waitcnt vmcnt(0)")
    if SENT(): sentinel_check(b, XL, "p2")
    WL = WE if "wearly" in OPT else WL2
    b(f"  v_lshlrev_b32 v17, 4, v7")
    FR, FI = 72, 76
    AX = 48; WR, WI = 152, 156
    b(f"  ds_read_b128 {vr(FR,4)}, v17 offset:{L2_F}")
    b(f"  ds_read_b128 {vr(FI,4)}, v17 offset:{L2_F+1024}")
    Dq = [80, 88]; Oq = [96, 104]; Tq = [112, 120]; Pq = [128, 132]; Wq = [136, 144]
    stamp(b, "p2 x landed")
    for j in range(4):
        b(f"  ds_write_b32 v21, v{XL+j} offset:{L2_X + j*1040}")
        b(f"  ds_write_b32 v22, v{XL+4+j} offset:{L2_X + j*1040}")
    if "wlate" in OPT: b(f"  s_waitcnt vmcnt(0)")
    for j in range(4):
        b(f"  ds_write_b32 v23, v{WL+j} offset:{L2_W + j*1040}")
        b(f"  ds_write_b32 v23, v{WL+4+j} offset:{L2_W + 8*1040 + j*1040}")
    if "nopf" not in OPT and "ntw1" not in OPT and PFN[1]:
        w1_share_base(b, S_T + 8, PFN[0] * 4096)
        pf_wide(b, P_W1, W1B, S_T + 8, PFN[1], 4, 8, "pf_p2a")
    b(f"  s_waitcnt lgkmcnt(0)")
    b(f"  s_barrier")
    b(f"  ds_read_b128 {vr(AX,4)}, v5 offset:{L2_X}")
    b(f"  ds_read_b128 {vr(AX+4,4)}, v5 offset:{L2_X+1040}")
    b(f"  ds_read_b128 {vr(WR,4)}, v6 offset:{L2_W}")
    b(f"  ds_read_b128 {vr(WI,4)}, v6 offset:{L2_W+8*1040}")
    def stage(form, src):
        for k in range(2):
            d = Dq[k]
            if form == 'A':
                b(f"  {MF32} {vr(d,4)}, {vr(src[k],4)}, {vr(FR,4)}, 0")
                b(f"  {MF32} {vr(d+4,4)}, {vr(src[k],4)}, {vr(FI,4)}, 0")
            else:
                b(f"  {MF32} {vr(d,4)}, {vr(FR,4)}, {vr(src[k],4)}, 0")
                b(f"  {MF32} {vr(d+4,4)}, {vr(FI,4)}, {vr(src[k],4)}, 0")
    def twiddle_pack():
        for k in range(2):
            cmul_pk(b, Oq[k], Oq[k] + 4, Dq[k], Dq[k] + 4, TC, TS, Tq[k], False)
        for k in range(2):
            for r in range(4):
                b(f"  v_cvt_pk_bf16_f32 v{Pq[k]+r}, v{Oq[k]+r}, v{Oq[k]+4+r}")
        b(f"  s_nop 1")
    b(f"  s_waitcnt lgkmcnt(2)")
    stage('A', [AX, AX + 4])
    b(f"  s_waitcnt lgkmcnt(0)")
    for r in range(4):
        b(f"  v_lshlrev_b32 v{Wq[0]+r}, 16, v{WR+r}")
        b(f"  v_lshlrev_b32 v{Wq[0]+4+r}, 16, v{WI+r}")
        b(f"  v_and_b32 v{Wq[1]+r}, 0xffff0000, v{WR+r}")
        b(f"  v_and_b32 v{Wq[1]+4+r}, 0xffff0000, v{WI+r}")
    twiddle_pack()
    stage('B', Pq)
    b(f"  s_nop 5")
    for k in range(2):
        cmul_pk(b, Oq[k], Oq[k] + 4, Dq[k], Dq[k] + 4, Wq[k], Wq[k] + 4, Tq[k], True)
    for k in range(2):
        for r in range(4):
            b(f"  v_cvt_pk_bf16_f32 v{Pq[k]+r}, v{Oq[k]+r}, -v{Oq[k]+4+r}")
    b(f"  s_nop 1")
    stage('A', Pq)
    b(f"  s_nop 5")
    twiddle_pack()
    stage('B', Pq)
    b(f"  s_nop 5")
    for k in range(2):
        for r in range(4):
            b(f"  v_cvt_pk_bf16_f32 v{Pq[k]+r}, v{Dq[k]+r}, -v{Dq[k]+4+r}")
    b(f"  ds_write_b128 v5, {vr(Pq[0],4)} offset:{L2_X}")
    b(f"  ds_write_b128 v5, {vr(Pq[1],4)} offset:{L2_X+1040}")
    b(f"  s_waitcnt lgkmcnt(0)")
    b(f"  s_barrier")
    for j in range(4):
        b(f"  ds_read_b32 v{XL+j}, v21 offset:{L2_X + j*1040}")
        b(f"  ds_read_b32 v{XL+4+j}, v22 offset:{L2_X + j*1040}")
    b(f"  v_bfe_u32 v16, v0, 2, 4              ; a")
    b(f"  v_lshrrev_b32 v17, 6, v0             ; b")
    b(f"  v_lshl_add_u32 v16, v16, 4, v17      ; s1")
    b(f"  v_lshlrev_b32 v16, 14, v16")
    b(f"  v_and_b32 v17, 3, v0")
    b(f"  v_lshl_add_u32 v16, v17, 4, v16")
    b(f"  s_lshl_b32 s{S_T+4}, s{S_T}, 11")
    b(f"  s_lshl_b32 s{S_T+5}, s{S_T+1}, 6")
    b(f"  s_add_u32 s{S_T+4}, s{S_T+4}, s{S_T+5}")
    b(f"  s_add_u32 s{S_T+5}, s{S_T+4}, {8*16384}")
    b(f"  s_waitcnt lgkmcnt(0)")
    for j in range(8): b(f"  v_min_u32 v{XL+j}, 0xfffffffe, v{XL+j}")
    b(f"  buffer_store_dwordx4 {vr(XL,4)}, v16, s[{SRD_B}:{SRD_B+3}], s{S_T+4} offen{SF}")
    b(f"  buffer_store_dwordx4 {vr(XL+4,4)}, v16, s[{SRD_B}:{SRD_B+3}], s{S_T+5} offen{SF}")
    stamp(b, "p2 stores issued")
    if not SENT():
        b(f"  s_and_b32 s{S_T+8}, s2, 15")
        arrive(b, 1, S_T + 8, label="x2")

V_LO = 224
S_G1A = 60
def g1_ids(b):
    b(f"  s_lshr_b32 s{S_T}, s2, 3                 ; i")
    b(f"  s_cmp_lt_u32 s{S_T}, 28")
    b(f"  s_cselect_b32 s62, 1, 0")
    b(f"  s_mul_i32 s{S_T+1}, s{S_T}, 37")
    b(f"  s_lshr_b32 s{S_T+1}, s{S_T+1}, 8         ; i/7")
    b(f"  s_mul_i32 s{S_T+2}, s{S_T+1}, 7")
    b(f"  s_sub_u32 s{S_T+2}, s{S_T}, s{S_T+2}     ; i%7")
    b(f"  s_and_b32 s{S_T+3}, s2, 7")
    b(f"  s_lshr_b32 s{S_T+4}, s{S_T+3}, 1")
    b(f"  s_mul_i32 s{S_T+4}, s{S_T+4}, 7")
    b(f"  s_add_u32 s60, s{S_T+4}, s{S_T+2}        ; ft")
    b(f"  s_and_b32 s{S_T+3}, s{S_T+3}, 1")
    b(f"  s_lshl_b32 s{S_T+3}, s{S_T+3}, 2")
    b(f"  s_add_u32 s61, s{S_T+3}, s{S_T+1}        ; dt")

S_SOFF, S_M0, S_N = 4, 5, 6
def loader_issue(b, voff, fl=""):
    for i in range(4):
        b(f"  s_add_u32 m0, s{S_M0}, {4096*i}")
        b(f"  s_nop 0")
        b(f"  buffer_load_dwordx4 v{voff+i}, s[{SRD_T}:{SRD_T+3}], s{S_SOFF} offen{fl} lds")
    b(f"  s_add_u32 s{S_SOFF}, s{S_SOFF}, s9")
    b(f"  s_add_u32 s{S_M0}, s{S_M0}, {STAGE}")
    b(f"  s_cmp_ge_u32 s{S_M0}, s{S_N+1}")
    b(f"  s_cselect_b32 s{S_N+2}, {R*STAGE}, 0")
    b(f"  s_sub_u32 s{S_M0}, s{S_M0}, s{S_N+2}")

def loader_init(b, step_bytes):
    b(f"  s_sub_u32 s50, s{S_W}, 4")
    b(f"  s_lshl_b32 s{S_M0}, s50, 10")
    b(f"  s_add_u32 s{S_N+1}, s{S_M0}, {R*STAGE}")
    b(f"  s_mov_b32 s{S_SOFF}, 0")
    b(f"  s_mov_b32 s9, {step_bytes}")

def g1_loader_addr(b):
    b(f"  s_sub_u32 s50, s{S_W}, 4      ; w'")
    for i in range(4):
        b(f"  s_lshl_b32 s49, s50, 2")
        b(f"  s_add_u32 s49, s49, {16*i}")
        b(f"  v_lshrrev_b32 v14, 4, v7")
        b(f"  v_add_u32 v14, s49, v14                 ; row 0..63")
        b(f"  v_and_b32 v15, 3, v14")
        b(f"  v_lshlrev_b32 v15, 2, v15")
        b(f"  v_and_b32 v16, 15, v7")
        b(f"  v_xor_b32 v16, v16, v15                 ; q")
        b(f"  v_lshrrev_b32 v17, 3, v14")
        b(f"  v_and_b32 v18, 7, v14")
        b(f"  v_lshl_add_u32 v17, v18, 8, v17         ; s")
        b(f"  v_mul_u32_u24 v17, 7168, v17")
        b(f"  v_lshl_add_u32 v17, v16, 4, v17")
        b(f"  s_lshl_b32 s49, s60, 8")
        b(f"  v_add_u32 v{V_LO+i}, s49, v17")

def g2_ids(b):
    if SK():
        b(f"  s_lshr_b32 s{S_T+1}, s2, 3")
        b(f"  s_lshr_b32 s{S_TILE_A}, s{S_T+1}, 2          ; dt")
        b(f"  s_lshr_b32 s{S_T}, s2, 1")
        b(f"  s_and_b32 s{S_T}, s{S_T}, 3")
        b(f"  s_lshl_b32 s{S_T}, s{S_T}, 2")
        b(f"  s_and_b32 s{S_T+1}, s{S_T+1}, 3")
        b(f"  s_add_u32 s{S_TILE_B}, s{S_T}, s{S_T+1}      ; st2")
        b(f"  s_and_b32 s19, s2, 1                       ; kh")
        return
    b(f"  s_and_b32 s{S_T}, s2, 1")
    b(f"  s_lshl_b32 s{S_T}, s{S_T}, 2")
    b(f"  s_lshr_b32 s{S_T+1}, s2, 3")
    b(f"  s_and_b32 s{S_T+2}, s{S_T+1}, 3")
    b(f"  s_add_u32 s{S_TILE_A}, s{S_T}, s{S_T+2}     ; dt")
    b(f"  s_lshr_b32 s{S_T}, s2, 1")
    b(f"  s_and_b32 s{S_T}, s{S_T}, 3")
    b(f"  s_lshl_b32 s{S_T}, s{S_T}, 3")
    b(f"  s_lshr_b32 s{S_T+1}, s{S_T+1}, 2")
    b(f"  s_add_u32 s{S_TILE_B}, s{S_T}, s{S_T+1}     ; st")

def g2_loader_addr(b):
    if SK():
        b(f"  s_sub_u32 s50, s{S_W}, 4")
        for i in range(4):
            b(f"  s_lshl_b32 s49, s50, 2")
            b(f"  s_add_u32 s49, s49, {16*i}")
            b(f"  v_lshrrev_b32 v14, 4, v7")
            b(f"  v_add_u32 v14, s49, v14                 ; row 0..63")
            b(f"  v_and_b32 v15, 3, v14")
            b(f"  v_lshlrev_b32 v15, 2, v15")
            b(f"  v_and_b32 v16, 15, v7")
            b(f"  v_xor_b32 v16, v16, v15                 ; q")
            b(f"  v_lshlrev_b32 v14, 12, v14              ; row*4096")
            b(f"  v_lshl_add_u32 v14, v16, 4, v14")
            b(f"  s_lshl_b32 s49, s{S_TILE_B}, 8          ; s0*2")
            b(f"  s_mul_i32 s48, s19, {1792*4096}         ; k half")
            b(f"  s_add_u32 s49, s49, s48")
            b(f"  v_add_u32 v{V_LO+i}, s49, v14")
        return
    b(f"  s_sub_u32 s50, s{S_W}, 4")
    for i in range(4):
        b(f"  s_lshl_b32 s49, s50, 3")
        b(f"  s_add_u32 s49, s49, {32*i}")
        b(f"  v_lshrrev_b32 v14, 3, v7")
        b(f"  v_add_u32 v14, s49, v14                 ; row")
        b(f"  v_bfe_u32 v15, v14, 1, 1")
        b(f"  v_lshlrev_b32 v15, 2, v15")
        b(f"  v_and_b32 v16, 7, v7")
        b(f"  v_xor_b32 v16, v16, v15                 ; q")
        b(f"  v_lshlrev_b32 v14, 12, v14              ; row*4096")
        b(f"  v_lshl_add_u32 v14, v16, 4, v14")
        b(f"  s_lshl_b32 s49, s{S_TILE_B}, 7          ; s0*2")
        b(f"  v_add_u32 v{V_LO+i}, s49, v14")

def loader_loop(b, NS, pre, fl=""):
    nmain = NS - (R - 2)
    b(f"  s_mov_b32 s{S_N}, {nmain}")
    b.label(f"{pre}_lloop")
    b(f"  s_waitcnt vmcnt({(R-3)*4})")
    b("  s_barrier")
    loader_issue(b, V_LO, fl)
    b(f"  s_sub_u32 s{S_N}, s{S_N}, 1")
    b(f"  s_cmp_lg_u32 s{S_N}, 0")
    b(f"  s_cbranch_scc1 {pre}_lloop")
    for i in range(R - 2):
        b(f"  s_waitcnt vmcnt({(R-3-i)*4})")
        b("  s_barrier")

BD3 = 32; XR3 = 192; GM3 = 30
def p3_tables(b):
    b(f"  v_and_b32 v10, 255, v0            ; e")
    b(f"  v_lshrrev_b32 v11, 8, v0")
    b(f"  v_bfe_u32 v12, v10, 2, 4          ; n = lane&15")
    b(f"  v_lshrrev_b32 v13, 6, v10         ; g")
    b(f"  v_and_b32 v14, 3, v10             ; r")
    b(f"  v_lshl_add_u32 v13, v13, 2, v14   ; 4g + r")
    b(f"  v_lshrrev_b32 v15, 2, v12")
    b(f"  v_lshlrev_b32 v15, 3, v15")
    b(f"  v_and_b32 v16, 3, v12")
    b(f"  v_add_u32 v15, v15, v16           ; b(n,0)")
    b(f"  v_lshl_add_u32 v16, v11, 2, v15   ; b(n, sel)")
    b(f"  v_mul_u32_u24 v17, v16, v13")
    sincos(b, 18, 19, 17, 5, 20)
    b(f"  v_lshlrev_b32 v22, 2, v10")
    b(f"  v_lshl_add_u32 v22, v11, 11, v22  ; sel*2048 + e*4")
    b(f"  v_add_u32 v22, {L3_M3}, v22")
    b(f"  v_cvt_pk_bf16_f32 v23, v18, -v19")
    b(f"  v_cvt_pk_bf16_f32 v24, v19, v18")
    b(f"  ds_write_b32 v22, v23")
    b(f"  ds_write_b32 v22, v24 offset:1024")
    b(f"  v_lshl_add_u32 v17, v11, 4, v13   ; k1")
    for z in range(2):
        b(f"  v_add_u32 v21, {16*z}, v12")
        b(f"  v_mul_u32_u24 v21, v21, v17")
        sincos(b, 18, 19, 21, 5, 20)
        b(f"  v_add_f32 v18, v18, v18")
        b(f"  v_mul_f32 v19, -2.0, v19")
        b(f"  v_cvt_pk_bf16_f32 v23, v18, v19")
        b(f"  ds_write_b32 v22, v23 offset:{4096+1024*z}")
    b(f"  v_lshlrev_b32 v23, 2, v10")
    b(f"  v_lshl_add_u32 v23, v11, 12, v23   ; u*4096 + e*4")
    b(f"  v_add_u32 v23, {L3_TW}, v23")
    for v in range(2):
        b(f"  v_add_u32 v21, {4*v}, v15")
        b(f"  v_mul_u32_u24 v21, v21, v17")
        sincos(b, 18, 19, 21, 10, 20)
        b(f"  ds_write_b32 v23, v18 offset:{2048*v}")
        b(f"  ds_write_b32 v23, v19 offset:{2048*v+1024}")

def p3_setup(b):
    srd(b, SRD_A, P_WS, 4 << 20, WS_X2)
    srd(b, SRD_B, P_X, 4 << 20)
    srd(b, SRD_C, P_WS, 4 << 20, WS_H)
    srd(b, SRD_D, P_WS, 4 << 20, WS_LN2)
    b(f"  s_lshl_b32 s{S_T+3}, s{S_W}, 8")
    b(f"  s_add_u32 s{S_T+3}, s{S_T+3}, s2")
    b(f"  s_lshl_b32 s{S_T+3}, s{S_T+3}, 11       ; s*2048")
    b(f"  v_lshlrev_b32 v4, 6, v8")
    b(f"  v_lshl_add_u32 v4, v9, 4, v4")
    if "stash" in OPT:
        b(f"  s_lshl_b32 s{S_T+9}, s{S_W}, 11")
        b(f"  s_add_u32 s{S_T+9}, s{S_T+9}, {L_XS}")
        b(f"  v_add_u32 v2, s{S_T+9}, v4")
        for z in range(2): b(f"  ds_read_b128 {vr(XR3+4*z,4)}, v2 offset:{1024*z}")
    else:
      for z in range(2):
        b(f"  buffer_load_dwordx4 {vr(XR3+4*z,4)}, v4, s[{SRD_B}:{SRD_B+3}], s{S_T+3} offen offset:{1024*z}")
    b(f"  s_mov_b32 s63, s{S_T+3}")
    if SK():
        srd(b, SRD_PF, P_WS, 4 << 20, WS_XCH)
        for i in range(4): b(f"  v_mov_b32 v{200+i}, -1")
        b(f"  v_lshlrev_b32 v2, 4, v0")
        b(f"  s_lshl_b32 s{S_T+8}, s2, 14")
        b(f"  buffer_store_dwordx4 v[200:203], v2, s[{SRD_PF}:{SRD_PF+3}], s{S_T+8} offen{SF}")
        b(f"  s_add_u32 s{S_T+8}, s{S_T+8}, 8192")
        b(f"  buffer_store_dwordx4 v[200:203], v2, s[{SRD_PF}:{SRD_PF+3}], s{S_T+8} offen{SF}")
    if "nopf" not in OPT and "ntw1" not in OPT:
        if PFN[2]:
            w1_share_base(b, S_T + 8, (PFN[0] + PFN[1]) * 4096)
            pf_wide(b, P_W1, W1B, S_T + 8, PFN[2], 4, 8, "pf_p3a")
    g1_ids(b)
    g1_loader_addr(b)
    loader_init(b, 8 * 7168)
    p3_tables(b)
    gmat(b, GM3, 2, True, 10)
    b(f"  v_lshlrev_b32 v1, 12, v9")
    b(f"  v_lshl_add_u32 v1, v8, 2, v1")
    b(f"  s_lshl_b32 s{S_T}, s2, 14")
    b(f"  s_and_b32 s{S_T+1}, s{S_W}, 1")
    b(f"  s_lshl_b32 s{S_T+1}, s{S_T+1}, 6")
    b(f"  s_lshr_b32 s{S_T+2}, s{S_W}, 1")
    b(f"  s_lshl_b32 s{S_T+2}, s{S_T+2}, 9")
    b(f"  s_add_u32 s{S_T}, s{S_T}, s{S_T+1}")
    b(f"  s_add_u32 s44, s{S_T}, s{S_T+2}          ; X2 soffset")
    b(f"  s_lshl_b32 s{S_T+1}, s{S_T+1}, 4        ; u*1024")
    b(f"  s_lshr_b32 s{S_T+2}, s{S_T+2}, 1        ; q4*256")
    b(f"  s_add_u32 s45, s{S_T+1}, s{S_T+2}")
    b(f"  s_waitcnt lgkmcnt(0)")

def p3_main(b):
    Bd, XR, GM = BD3, XR3, GM3
    D = 40
    b(f"  v_lshlrev_b32 v3, 12, v9")
    b(f"  v_lshl_add_u32 v3, v8, 4, v3")
    b(f"  v_add_u32 v3, s45, v3")
    b(f"  v_add_u32 v3, {L3_EX}, v3")
    M3, M4, TW = 96, 112, 128
    b(f"  v_lshlrev_b32 v6, 4, v7")
    b(f"  v_add_u32 v6, {L3_M3}, v6")
    for i in range(4): b(f"  ds_read_b128 {vr(M3+4*i,4)}, v6 offset:{1024*i}")
    for i in range(4): b(f"  ds_read_b128 {vr(M4+4*i,4)}, v6 offset:{4096+1024*i}")
    b(f"  s_waitcnt lgkmcnt(0)")
    for i in range(8): b(f"  ds_read_b128 {vr(TW+4*i,4)}, v6 offset:{8192+1024*i}")
    if SENT():
        b(f"  s_mov_b32 s11, 200000")
        b.label("p3_poll")
    for i in range(4):
        for e in range(2):
            b(f"  buffer_load_dword v{Bd+2*i+e}, v1, s[{SRD_A}:{SRD_A+3}], s44 offen offset:{e*2048+i*128} sc1")
    b(f"  s_waitcnt vmcnt(0)")
    if SENT(): sentinel_check(b, Bd, "p3")
    stamp(b, "p3 x2 landed")
    if "nopf" not in OPT and "ntw1" not in OPT and PFN[3]:
        w1_share_base(b, S_T + 8, (PFN[0] + PFN[1] + PFN[2]) * 4096)
        pf_wide(b, P_W1, W1B, S_T + 8, PFN[3], 4, 8, "pf_p3b")
    for i in range(4):
        b(f"  {MF16} {vr(D+4*i,4)}, {vr(GM,2)}, {vr(Bd+2*i,2)}, 0")
    b(f"  s_nop 4")
    PK = 56
    for e in range(2):
        for i in range(4):
            b(f"  v_cvt_pk_bf16_f32 v{PK+4*e+i}, v{D+4*i+2*e}, v{D+4*i+2*e+1}")
    b(f"  ds_write_b128 v3, {vr(PK,4)}")
    b(f"  ds_write_b128 v3, {vr(PK+4,4)} offset:2048")
    b(f"  s_waitcnt lgkmcnt(0)")
    b(f"  s_barrier")
    b(f"  v_lshlrev_b32 v5, 8, v9")
    b(f"  v_lshl_add_u32 v5, v8, 4, v5")
    b(f"  s_lshl_b32 s{S_T+1}, s{S_W}, 11")
    b(f"  s_add_u32 s{S_T+1}, s{S_T+1}, {L3_EX}")
    b(f"  v_add_u32 v5, s{S_T+1}, v5")
    AU = 32
    b(f"  ds_read_b128 {vr(AU,4)}, v5")
    b(f"  ds_read_b128 {vr(AU+4,4)}, v5 offset:1024")
    b(f"  s_waitcnt lgkmcnt(0)")
    b(f"  v_readlane_b32 s{S_T+4}, v{AU}, 0")
    b(f"  v_writelane_b32 v{AU}, 0, 0")
    b(f"  s_nop 1")
    b(f"  s_lshl_b32 s{S_T+4}, s{S_T+4}, 16")
    TT = 160
    for u in range(2):
        for v in range(2):
            for c in range(2):
                d = TT + ((u * 2 + v) * 2 + c) * 4
                b(f"  {MF32} {vr(d,4)}, {vr(AU+4*u,4)}, {vr(M3+4*(2*v+c),4)}, 0")
    CI = 60
    b(f"  v_mov_b32 v{CI}, s{S_T+4}")
    b(f"  v_xor_b32 v{CI+1}, 0x80000000, v{CI}")
    b(f"  v_mov_b32 v{CI+2}, v{CI}")
    b(f"  v_mov_b32 v{CI+3}, v{CI+1}")
    b(f"  s_nop 1")
    A2 = 64; O = 40; W = 80
    for u in range(2):
        for v in range(2):
            t = TT + ((u * 2 + v) * 2) * 4
            tw = TW + ((u * 2 + v) * 2) * 4
            cmul_pk(b, O, O + 4, t, t + 4, tw, tw + 4, W, True)
            for r in range(4):
                b(f"  v_cvt_pk_bf16_f32 v{A2+(u*2+v)*4+r}, v{O+r}, v{O+4+r}")
    Y = 160
    b(f"  s_nop 1")
    for z in range(2):
        for v in range(2):
            d = Y + (z * 2 + v) * 4
            b(f"  {MF32} {vr(d,4)}, {vr(A2+(0*2+v)*4,4)}, {vr(M4+(0*2+z)*4,4)}, {vr(CI,4)}")
    for z in range(2):
        for v in range(2):
            d = Y + (z * 2 + v) * 4
            b(f"  {MF32} {vr(d,4)}, {vr(A2+(1*2+v)*4,4)}, {vr(M4+(1*2+z)*4,4)}, {vr(d,4)}")
    b(f"  s_nop 7")
    X = 40; HP = 32
    stamp(b, "p3 ifft done")
    for z in range(2):
        for dd in range(4):
            y0 = Y + z * 8 + 2 * dd
            xd = XR + 4 * z + dd
            t = 64 + 2 * (dd % 4)
            b(f"  v_lshlrev_b32 v{t}, 16, v{xd}")
            b(f"  v_and_b32 v{t+1}, 0xffff0000, v{xd}")
            b(f"  v_pk_add_f32 {vr(t,2)}, {vr(t,2)}, {vr(y0,2)}")
            b(f"  v_cvt_pk_bf16_f32 v{HP+4*z+dd}, v{t}, v{t+1}")
    for z in range(2):
        b(f"  buffer_store_dwordx4 {vr(HP+4*z,4)}, v4, s[{SRD_C}:{SRD_C+3}], s63 offen offset:{1024*z}{SF}")
    for i in range(8):
        b(f"  v_lshlrev_b32 v{X+2*i}, 16, v{HP+i}")
        b(f"  v_and_b32 v{X+2*i+1}, 0xffff0000, v{HP+i}")
    ln_fast(b, X, 64, S_T + 4, False)
    LP = 72
    stamp(b, "p3 ln done")
    for i in range(8):
        b(f"  v_cvt_pk_bf16_f32 v{LP+i}, v{X+2*i}, v{X+2*i+1}")
    b(f"  v_mul_u32_u24 v3, 80, v8")
    b(f"  v_lshl_add_u32 v3, v9, 4, v3")
    b(f"  s_mul_i32 s{S_T+1}, s{S_W}, {L3_RS}")
    b(f"  s_add_u32 s{S_T+1}, s{S_T+1}, {L3_LN}")
    b(f"  v_add_u32 v3, s{S_T+1}, v3")
    for z in range(2):
        b(f"  ds_write_b128 v3, {vr(LP+4*z,4)} offset:{z*16*80}")
    b(f"  s_waitcnt lgkmcnt(0)")
    b(f"  s_barrier")
    b(f"  v_bfe_u32 v10, v7, 2, 2")
    b(f"  v_mul_u32_u24 v10, {L3_RS}, v10")
    b(f"  v_lshrrev_b32 v11, 5, v7")
    b(f"  v_mul_u32_u24 v12, 80, v11")
    b(f"  v_add_u32 v10, v10, v12")
    b(f"  v_and_b32 v12, 1, v7")
    b(f"  v_lshl_add_u32 v10, v12, 5, v10")
    b(f"  v_bfe_u32 v12, v7, 4, 1")
    b(f"  v_lshl_add_u32 v10, v12, 4, v10")
    b(f"  v_bfe_u32 v12, v7, 1, 1")
    b(f"  v_lshl_add_u32 v10, v12, 3, v10")
    b(f"  s_mul_i32 s{S_T+1}, s{S_W}, {4*80}")
    b(f"  s_add_u32 s{S_T+1}, s{S_T+1}, {L3_LN}")
    b(f"  v_add_u32 v10, s{S_T+1}, v10")
    for ps in range(2):
        b(f"  ds_read_b64_tr_b16 {vr(32+4*ps,2)}, v10 offset:{ps*160}")
        b(f"  ds_read_b64_tr_b16 {vr(34+4*ps,2)}, v10 offset:{ps*160 + 4*L3_RS}")
    b(f"  v_lshlrev_b32 v11, 17, v11")
    b(f"  v_and_b32 v12, 31, v7")
    b(f"  v_lshl_add_u32 v11, v12, 4, v11")
    b(f"  s_lshl_b32 s{S_T+1}, s{S_W}, 19")
    b(f"  s_lshl_b32 s{S_T+2}, s2, 9")
    b(f"  s_add_u32 s{S_T+1}, s{S_T+1}, s{S_T+2}")
    b(f"  s_add_u32 s{S_T+2}, s{S_T+1}, {2*131072}")
    b(f"  s_waitcnt lgkmcnt(2)")
    b(f"  buffer_store_dwordx4 v[32:35], v11, s[{SRD_D}:{SRD_D+3}], s{S_T+1} offen{SF}")
    b(f"  s_waitcnt lgkmcnt(0)")
    b(f"  buffer_store_dwordx4 v[36:39], v11, s[{SRD_D}:{SRD_D+3}], s{S_T+2} offen{SF}")
    stamp(b, "p3 stores issued")
    b(f"  s_and_b32 s{S_T+8}, s2, 15")
    arrive(b, 2, S_T + 8, label="x3")
    srd(b, SRD_T, P_W1, W1B)
    b(f"  s_cmp_lt_u32 s{S_W}, 4")
    b(f"  s_cbranch_scc1 p3_nodma")
    b(f"  s_cmp_eq_u32 s62, 0")
    b(f"  s_cbranch_scc1 p3_nodma")
    for n in range(2): loader_issue(b, V_LO, W1F())
    b.label("p3_nodma")

def gemm_core(b, c, pre, after_setup, after_prologue=None):
    NB, NS = c.NB, c.NS
    acc = lambda nb: V_ACC + nb * 16
    VT = V_ACC + NB * 16
    VPR = VT + 32
    c.VT, c.VPR = VT, VPR
    c.vend = VPR + 4 * PR
    tf = lambda q: VT + (q % 8) * 4
    pr = lambda j: VPR + (j % PR) * 4
    FPI = 64
    KPI = FPI // NB
    def tread(q):
        ql = q % FPI
        lslot, within = ql // 16, ql % 16
        ks, nb = within // NB, within % NB
        off = lslot * STAGE + ks * 16 * c.rowb
        b(f"  ds_read_b64_tr_b16 {vr(tf(q),2)}, v{V_T+nb} offset:{off}")
        b(f"  ds_read_b64_tr_b16 {vr(tf(q)+2,2)}, v{V_T+nb} offset:{off+4*c.rowb}")
    def pload(j):
        b(f"  buffer_load_dwordx4 {vr(pr(j),4)}, v{V_P}, s[{SRD_P}:{SRD_P+3}], s{S_POFF} offen offset:{(j%4)*1024}{LF}")
        if j % 4 == 3: b(f"  s_add_u32 s{S_POFF}, s{S_POFF}, 4096")
    def mfma(q):
        nb = q % NB; j = q // NB; a = acc(nb)
        if "m16fake" in OPT:
            o = 8 * (j % 2)
            b(f"  v_mfma_f32_16x16x32_bf16 {vr(a+o,4)}, {vr(tf(q),4)}, {vr(pr(j),4)}, {vr(a+o,4)}")
            b(f"  v_mfma_f32_16x16x32_bf16 {vr(a+o+4,4)}, {vr(pr(j),4)}, {vr(tf(q),4)}, {vr(a+o+4,4)}")
            return
        if c.name == "g1":
            b(f"  v_mfma_f32_32x32x16_bf16 {vr(a,16)}, {vr(tf(q),4)}, {vr(pr(j),4)}, {vr(a,16)}")
        else:
            b(f"  v_mfma_f32_32x32x16_bf16 {vr(a,16)}, {vr(pr(j),4)}, {vr(tf(q),4)}, {vr(a,16)}")
    b(f"  s_mov_b32 s{S_POFF}, 0")
    b(f"  s_mov_b32 s{S_DELTA}, {4*STAGE}")
    b(f"  s_mov_b32 s{S_IT}, {NS//4 - 1}")
    after_setup()
    for j in range(PR - 1): pload(j)
    if after_prologue: after_prologue()
    b("  s_barrier")
    for q in range(DQ): tread(q)
    def body(last):
        for q in range(FPI):
            j = q // NB
            qn = q + DQ
            do_read = not (last and qn >= FPI)
            do_pload = False
            if q % NB == 0:
                rem = KPI - 1 - j
                if (not last) or (j + PR - 1 < KPI):
                    b(f"  s_waitcnt vmcnt({PR-2})")
                    do_pload = True
                else:
                    b(f"  s_waitcnt vmcnt({min(PR-2, rem)})")
            if do_read and qn % 16 == 0:
                b("  s_barrier")
            if do_read and qn == FPI:
                for i in range(NB): b(f"  v_add_u32 v{V_T+i}, s{S_DELTA}, v{V_T+i}")
                b(f"  s_sub_u32 s{S_DELTA}, 0, s{S_DELTA}")
            if q % 2 == 0:
                left = min(DQ - 2, FPI - 2 - q) if last else DQ - 2
                b(f"  s_waitcnt lgkmcnt({2*left})")
            mfma(q)
            if do_pload: pload(j + PR - 1)
            if do_read: tread(qn)
    b.label(f"{pre}_loop")
    body(False)
    b(f"  s_sub_u32 s{S_IT}, s{S_IT}, 1")
    b(f"  s_cmp_lg_u32 s{S_IT}, 0")
    b(f"  s_cbranch_scc1 {pre}_loop")
    body(True)

def idle_w1(b):
    srd(b, SRD_PF, P_W1, W1B)
    b(f"  s_and_b32 s51, s50, 7")
    b(f"  s_mul_i32 s51, s51, {256*7168}")
    b(f"  s_lshr_b32 s52, s50, 3")
    b(f"  s_mul_i32 s52, s52, {4*7168}")
    b(f"  s_add_u32 s51, s51, s52")
    b(f"  s_add_u32 s51, s51, {128*7168}")
    b(f"  s_mov_b32 s52, 7")
    b.label("pf_w1b")
    for i in range(4): b(f"  buffer_load_dwordx4 {vr(V_DUMMY,4)}, v29, s[{SRD_PF}:{SRD_PF+3}], s51 offen offset:{1024*i}")
    b(f"  s_add_u32 s51, s51, 4096")
    b(f"  s_waitcnt vmcnt(4)")
    b(f"  s_sub_u32 s52, s52, 1")
    b(f"  s_cmp_lg_u32 s52, 0")
    b(f"  s_cbranch_scc1 pf_w1b")

def idle_w2(b):
    srd(b, SRD_PF, P_W2, W1B)
    b(f"  s_mul_i32 s51, s50, {W1B // 256}")
    b(f"  s_mov_b32 s52, 14")
    b.label("pf_w2")
    for i in range(4): b(f"  buffer_load_dwordx4 {vr(V_DUMMY,4)}, v29, s[{SRD_PF}:{SRD_PF+3}], s51 offen offset:{1024*i}")
    b(f"  s_add_u32 s51, s51, 4096")
    b(f"  s_waitcnt vmcnt({0 if 'idlepace' in OPT else 4})")
    b(f"  s_sub_u32 s52, s52, 1")
    b(f"  s_cmp_lg_u32 s52, 0")
    b(f"  s_cbranch_scc1 pf_w2")
    b(f"  s_waitcnt vmcnt(0)")

def g1(b):
    c = g1_cfg()
    b(f"  s_cmp_eq_u32 s62, 0")
    b(f"  s_cbranch_scc1 g1_inactive")
    srd(b, SRD_P, P_WS, 4 << 20, WS_LN2)
    srd(b, SRD_T, P_W1, W1B)
    srd(b, SRD_O, P_WS, U_BYTES, WS_U)
    srd(b, SRD_X, P_B1, 3584 * 2)
    b(f"  s_cmp_ge_u32 s{S_W}, 4")
    b(f"  s_cbranch_scc1 g1_loader")
    lane_geom(b)
    b(f"  s_lshl_b32 s{S_TMP}, s61, 2")
    b(f"  s_add_u32 s{S_TMP}, s{S_TMP}, s{S_W}            ; dblk")
    b(f"  s_lshl_b32 s{S_TMP+2}, s{S_TMP}, 17")
    b(f"  v_lshlrev_b32 v10, 4, v7")
    b(f"  v_add_u32 v{V_P}, s{S_TMP+2}, v10")
    b(f"  s_lshl_b32 s{S_TMP+1}, s60, 8       ; f0*2")
    b(f"  v_lshlrev_b32 v11, 3, v9")
    b(f"  v_add_u32 v11, s{S_TMP+1}, v11")
    BV = 192
    for fb in range(4):
        for i in range(4):
            b(f"  buffer_load_dwordx2 {vr(BV+2*(4*fb+i),2)}, v11, s[{SRD_X}:{SRD_X+3}], 0 offen offset:{64*fb+16*i}")
    b(f"  v_lshl_add_u32 v20, v9, 3, v18")
    b(f"  v_lshlrev_b32 v20, 8, v20")
    b(f"  v_lshl_add_u32 v20, v18, 6, v20")
    b(f"  v_lshl_add_u32 v20, v19, 5, v20")
    b(f"  v_lshl_add_u32 v{V_T}, v22, 3, v20")
    for fb in range(1, 4):
        b(f"  v_xor_b32 v{V_T+fb}, {64*fb}, v{V_T}")
    b(f"  s_mul_i32 s{S_TMP+2}, s{S_TMP}, 229376")
    b(f"  s_lshl_b32 s{S_TMP+1}, s60, 13")
    b(f"  s_add_u32 s{S_TMP+1}, s{S_TMP+1}, s{S_TMP+2}")
    b(f"  v_add_u32 v28, s{S_TMP+1}, v10")
    b(f"  s_waitcnt vmcnt(0)")
    for fb in range(4):
        for i in range(4):
            bv = BV + 2 * (4 * fb + i); a = V_ACC + fb * 16 + 4 * i
            b(f"  v_lshlrev_b32 v{a}, 16, v{bv}")
            b(f"  v_and_b32 v{a+1}, 0xffff0000, v{bv}")
            b(f"  v_lshlrev_b32 v{a+2}, 16, v{bv+1}")
            b(f"  v_and_b32 v{a+3}, 0xffff0000, v{bv+1}")
    def w3():
        wait(b, 2, 16, "x3c")
        stamp(b, "x3 released")
        stamp(b, "c:g1 start")
    gemm_core(b, c, "g1", w3)
    stamp(b, "c:g1 end")
    stamp(b, "g1 main done")
    K1 = -2.0 * 0.7978845608028654 * 1.4426950408889634
    K2 = K1 * 0.044715
    T = c.VPR
    b(f"  v_mov_b32 v{T}, {hex(f2u(K1))}")
    b(f"  v_mov_b32 v{T+1}, {hex(f2u(K1))}")
    b(f"  v_mov_b32 v{T+2}, {hex(f2u(K2))}")
    b(f"  v_mov_b32 v{T+3}, {hex(f2u(K2))}")
    b(f"  s_nop 7")
    W = T + 8
    for fb in range(4):
        a = V_ACC + fb * 16; t = W; o = W + 16 + 8 * (fb % 2)
        for h in range(0, 16, 2): b(f"  v_pk_mul_f32 {vr(t+h,2)}, {vr(a+h,2)}, {vr(a+h,2)}")
        for h in range(0, 16, 2): b(f"  v_pk_fma_f32 {vr(t+h,2)}, {vr(t+h,2)}, {vr(T+2,2)}, {vr(T,2)}")
        for h in range(0, 16, 2): b(f"  v_pk_mul_f32 {vr(t+h,2)}, {vr(t+h,2)}, {vr(a+h,2)}")
        for r in range(16): b(f"  v_exp_f32 v{t+r}, v{t+r}")
        for h in range(0, 16, 2): b(f"  v_pk_add_f32 {vr(t+h,2)}, {vr(t+h,2)}, 1.0 op_sel_hi:[1,0]")
        for r in range(16): b(f"  v_rcp_f32 v{t+r}, v{t+r}")
        for h in range(0, 16, 2): b(f"  v_pk_mul_f32 {vr(t+h,2)}, {vr(a+h,2)}, {vr(t+h,2)}")
        for i in range(4):
            b(f"  v_cvt_pk_bf16_f32 v{o+2*i}, v{t+4*i}, v{t+4*i+1}")
            b(f"  v_cvt_pk_bf16_f32 v{o+2*i+1}, v{t+4*i+2}, v{t+4*i+3}")
        for ip in range(2):
            oo = o + 4 * ip
            b(f"  s_mov_b32 s{S_TMP+1}, {(2*fb+ip)*1024}")
            b(f"  s_nop 0")
            b(f"  v_permlane32_swap_b32 v{oo}, v{oo+2}")
            b(f"  v_permlane32_swap_b32 v{oo+1}, v{oo+3}")
            b(f"  buffer_store_dwordx4 {vr(oo,4)}, v28, s[{SRD_O}:{SRD_O+3}], s{S_TMP+1} offen{SF}")
    stamp(b, "g1 stores issued")
    b(f"  s_waitcnt vmcnt(0)")
    b(f"  s_branch g1_join")
    b.label("g1_loader")
    b(f"  s_sub_u32 s50, s{S_W}, 4")
    b(f"  s_lshl_b32 s49, s50, 10")
    b(f"  s_add_u32 s{S_N+1}, s49, {R*STAGE}")
    b(f"  s_barrier                      ; matches the barrier inside wait(x3)")
    for n in range(R - 4): loader_issue(b, V_LO, W1F())
    loader_loop(b, c.NS, "g1", W1F())
    stamp(b, "g1 main done")
    g2_prologue_loader(b)
    stamp(b, "g1 stores issued")
    b.label("g1_join")
    if SK():
        b(f"  s_cmp_ge_u32 s60, 14")
        b(f"  s_cselect_b32 s18, 1, 0")
        b(f"  s_lshl_b32 s10, s61, 1")
        b(f"  s_add_u32 s18, s18, s10")
        arrive(b, 3, 18, label="x4", drained=True)
    else:
        arrive(b, 3, 61, label="x4", drained=True)
    b(f"  s_branch g2_start")
    b.label("g1_inactive")
    if "nopf" not in OPT:
        b(f"  s_sub_u32 s50, s2, 224")
        b(f"  s_lshl_b32 s50, s50, 3")
        b(f"  s_add_u32 s50, s50, s{S_W}")
        b(f"  v_lshlrev_b32 v29, 4, v7")
        if "noidle" not in OPT: idle_w2(b)
    b(f"  s_cmp_lt_u32 s{S_W}, 4")
    b(f"  s_cbranch_scc1 g2_start_inactive")
    g2_prologue_loader(b)
    b.label("g2_start_inactive")
    return c

def g2_prologue_loader(b):
    g2_ids(b)
    srd(b, SRD_T, P_W2, W1B)
    g2_loader_addr(b)
    loader_init(b, (64 if SK() else 128) * 4096)
    for n in range(2): loader_issue(b, V_LO, W2F())

def g2_sk(b):
    c = g1_cfg(); c.name = "g2"; c.NS = 28
    b.label("g2_start")
    g2_ids(b)
    srd(b, SRD_P, P_WS, U_BYTES, WS_U)
    srd(b, SRD_O, P_OUT, 4 << 20)
    srd(b, SRD_X, P_B2, 2048 * 2)
    srd(b, SRD_Y, P_WS, 4 << 20, WS_H)
    b(f"  s_cmp_ge_u32 s{S_W}, 4")
    b(f"  s_cbranch_scc1 g2_loader")
    lane_geom(b)
    b(f"  s_lshl_b32 s{S_TMP}, s{S_TILE_A}, 2")
    b(f"  s_add_u32 s{S_TMP}, s{S_TMP}, s{S_W}        ; dblk")
    b(f"  s_mul_i32 s{S_TMP+2}, s{S_TMP}, 229376")
    b(f"  s_mul_i32 s{S_TMP+3}, s19, {112*1024}       ; k half")
    b(f"  s_add_u32 s{S_TMP+2}, s{S_TMP+2}, s{S_TMP+3}")
    b(f"  v_lshlrev_b32 v10, 4, v7")
    b(f"  v_add_u32 v{V_P}, s{S_TMP+2}, v10")
    b(f"  s_lshl_b32 s{S_TMP+1}, s{S_TILE_B}, 7")
    b(f"  s_lshl_b32 s{S_TMP+3}, s19, 6")
    b(f"  s_add_u32 s{S_TMP+1}, s{S_TMP+1}, s{S_TMP+3}")
    b(f"  v_add_u32 v11, s{S_TMP+1}, v8              ; s0 + s'")
    b(f"  v_lshlrev_b32 v16, 1, v11")
    for sb in range(2):
        b(f"  buffer_load_ushort v{12+sb}, v16, s[{SRD_X}:{SRD_X+3}], 0 offen offset:{64*sb}")
    b(f"  v_lshlrev_b32 v17, 11, v11")
    b(f"  v_lshl_add_u32 v17, v9, 5, v17")
    b(f"  s_lshl_b32 s{S_TMP+2}, s{S_TMP}, 6")
    b(f"  v_add_u32 v28, s{S_TMP+2}, v17")
    HV = 192
    b(f"  v_lshl_add_u32 v20, v9, 3, v18")
    b(f"  v_lshlrev_b32 v20, 8, v20")
    b(f"  v_lshl_add_u32 v20, v18, 6, v20")
    b(f"  v_lshl_add_u32 v20, v19, 5, v20")
    b(f"  v_lshl_add_u32 v{V_T}, v22, 3, v20")
    for fb in range(1, 4):
        b(f"  v_xor_b32 v{V_T+fb}, {64*fb}, v{V_T}")
    b(f"  s_lshl_b32 s{S_TMP+1}, s{S_W}, 12")
    b(f"  s_lshl_b32 s{S_TMP+2}, s2, 14")
    b(f"  s_add_u32 s{S_TMP+2}, s{S_TMP+2}, s{S_TMP+1}")
    b(f"  v_add_u32 v29, s{S_TMP+2}, v10")
    b(f"  s_xor_b32 s{S_TMP+2}, s2, 1")
    b(f"  s_lshl_b32 s{S_TMP+2}, s{S_TMP+2}, 14")
    b(f"  s_add_u32 s{S_TMP+2}, s{S_TMP+2}, s{S_TMP+1}")
    b(f"  v_add_u32 v30, s{S_TMP+2}, v10")
    for i in range(64): b(f"  v_mov_b32 v{V_ACC+i}, 0")
    def w4():
        b(f"  s_lshl_b32 s18, s{S_TILE_A}, 1")
        b(f"  s_add_u32 s18, s18, s19")
        wait(b, 3, 14, "x4c", single_sreg=18)
        stamp(b, "x4 released")
        stamp(b, "c:g2 start")
    def hloads():
        for sb in range(2):
            b(f"  s_mov_b32 s{S_TMP+1}, {sb*65536}")
            b(f"  buffer_load_dwordx4 {vr(HV+8*sb,4)}, v28, s[{SRD_Y}:{SRD_Y+3}], s{S_TMP+1} offen{LF}")
            b(f"  buffer_load_dwordx4 {vr(HV+8*sb+4,4)}, v28, s[{SRD_Y}:{SRD_Y+3}], s{S_TMP+1} offen offset:16{LF}")
    gemm_core(b, c, "g2", w4, hloads)
    stamp(b, "c:g2 end")
    stamp(b, "g2 main done")
    srd(b, SRD_X, P_WS, 4 << 20, WS_XCH)
    T = c.VT
    b(f"  s_cmp_eq_u32 s19, 0")
    b(f"  s_cbranch_scc1 g2_send23")
    def pack_send(first):
        for blk in range(2):
            a = V_ACC + (first + blk) * 16
            for i in range(8):
                b(f"  v_cvt_pk_bf16_f32 v{T+8*blk+i}, v{a+2*i}, v{a+2*i+1}")
            for i in range(8):
                b(f"  v_min_u32 v{T+8*blk+i}, 0xfffffffe, v{T+8*blk+i}")
            for p in range(2):
                b(f"  buffer_store_dwordx4 {vr(T+8*blk+4*p,4)}, v30, s[{SRD_X}:{SRD_X+3}], 0 offen offset:{(2*blk+p)*1024}{SF}")
    b(f"  s_nop 7")
    pack_send(0)
    for i in range(32): b(f"  v_mov_b32 v{V_ACC+i}, v{V_ACC+32+i}")
    b(f"  s_branch g2_sent")
    b.label("g2_send23")
    b(f"  s_nop 7")
    pack_send(2)
    b.label("g2_sent")
    RX = c.VPR
    b(f"  s_mov_b32 s11, 200000")
    b.label("g2x_poll")
    for k in range(4):
        b(f"  buffer_load_dwordx4 {vr(RX+4*k,4)}, v29, s[{SRD_X}:{SRD_X+3}], 0 offen offset:{k*1024} sc1")
    b(f"  s_waitcnt vmcnt(0)")
    sentinel_check(b, RX, "g2x", n=16)
    stamp(b, "g2 x landed")
    b(f"  s_mov_b32 s{S_TMP}, 0xffff0000")
    for blk in range(2):
        for i in range(8):
            a = V_ACC + blk * 16 + 2 * i; r = RX + 8 * blk + i
            b(f"  v_lshlrev_b32 v16, 16, v{r}")
            b(f"  v_and_b32 v17, s{S_TMP}, v{r}")
            b(f"  v_add_f32 v{a}, v{a}, v16")
            b(f"  v_add_f32 v{a+1}, v{a+1}, v17")
    for sb in range(2):
        b(f"  v_lshlrev_b32 v{12+sb}, 16, v{12+sb}")
    for sb in range(2):
        for half in range(2):
            o = T + 4 * ((sb * 2 + half) % 2)
            for dd in range(4):
                a = V_ACC + sb * 16 + half * 8 + 2 * dd
                hv = HV + 8 * sb + 4 * half + dd
                t0 = T + 8 + 4 * dd
                b(f"  v_lshlrev_b32 v{t0}, 16, v{hv}")
                b(f"  v_and_b32 v{t0+1}, s{S_TMP}, v{hv}")
                b(f"  v_pk_add_f32 {vr(t0,2)}, {vr(t0,2)}, {vr(a,2)}")
                b(f"  v_add_f32 v{t0}, v{t0}, v{12+sb}")
                b(f"  v_add_f32 v{t0+1}, v{t0+1}, v{12+sb}")
                b(f"  v_cvt_pk_bf16_f32 v{o+dd}, v{t0}, v{t0+1}")
            b(f"  s_mov_b32 s{S_TMP+1}, {sb*65536}")
            b(f"  buffer_store_dwordx4 {vr(o,4)}, v28, s[{SRD_O}:{SRD_O+3}], s{S_TMP+1} offen offset:{16*half}")
    stamp(b, "g2 stores issued")
    b(f"  s_branch g2_done")
    b.label("g2_loader")
    b(f"  s_barrier                      ; matches the barrier inside wait(x4)")
    for n in range(R - 4): loader_issue(b, V_LO, W2F())
    loader_loop(b, c.NS, "g2", W2F())
    b.label("g2_done")

def g2(b):
    if SK(): return g2_sk(b)
    c = g2_cfg()
    b.label("g2_start")
    g2_ids(b)
    srd(b, SRD_P, P_WS, U_BYTES, WS_U)
    srd(b, SRD_O, P_OUT, 4 << 20)
    srd(b, SRD_X, P_B2, 2048 * 2)
    srd(b, SRD_Y, P_WS, 4 << 20, WS_H)
    b(f"  s_cmp_ge_u32 s{S_W}, 4")
    b(f"  s_cbranch_scc1 g2_loader")
    lane_geom(b)
    b(f"  s_lshl_b32 s{S_TMP}, s{S_TILE_A}, 2")
    b(f"  s_add_u32 s{S_TMP}, s{S_TMP}, s{S_W}        ; dblk")
    b(f"  s_mul_i32 s{S_TMP+2}, s{S_TMP}, 229376")
    b(f"  v_lshlrev_b32 v10, 4, v7")
    b(f"  v_add_u32 v{V_P}, s{S_TMP+2}, v10")
    b(f"  s_lshl_b32 s{S_TMP+1}, s{S_TILE_B}, 6       ; s0")
    b(f"  v_add_u32 v11, s{S_TMP+1}, v8              ; s0 + s'")
    b(f"  v_lshlrev_b32 v16, 1, v11")
    for sb in range(2):
        b(f"  buffer_load_ushort v{12+sb}, v16, s[{SRD_X}:{SRD_X+3}], 0 offen offset:{64*sb}")
    b(f"  v_lshlrev_b32 v17, 11, v11")
    b(f"  v_lshl_add_u32 v17, v9, 5, v17")
    b(f"  s_lshl_b32 s{S_TMP+2}, s{S_TMP}, 6")
    b(f"  v_add_u32 v28, s{S_TMP+2}, v17")
    HV = 160
    b(f"  v_lshl_add_u32 v20, v9, 3, v18            ; row")
    b(f"  v_bfe_u32 v21, v18, 1, 1")
    b(f"  v_lshlrev_b32 v20, 7, v20")
    b(f"  v_lshl_add_u32 v20, v21, 6, v20")
    b(f"  v_lshl_add_u32 v20, v19, 5, v20")
    b(f"  v_lshl_add_u32 v{V_T}, v22, 3, v20")
    b(f"  v_xor_b32 v{V_T+1}, 64, v{V_T}")
    for i in range(32): b(f"  v_mov_b32 v{V_ACC+i}, 0")
    def w4():
        wait(b, 3, 28, "x4c", single_sreg=S_TILE_A)
        stamp(b, "x4 released")
        stamp(b, "c:g2 start")
    def hloads():
        for sb in range(2):
            b(f"  s_mov_b32 s{S_TMP+1}, {sb*65536}")
            b(f"  buffer_load_dwordx4 {vr(HV+8*sb,4)}, v28, s[{SRD_Y}:{SRD_Y+3}], s{S_TMP+1} offen{LF}")
            b(f"  buffer_load_dwordx4 {vr(HV+8*sb+4,4)}, v28, s[{SRD_Y}:{SRD_Y+3}], s{S_TMP+1} offen offset:16{LF}")
    gemm_core(b, c, "g2", w4, hloads)
    stamp(b, "c:g2 end")
    stamp(b, "g2 main done")
    T = c.VT
    b(f"  s_mov_b32 s{S_TMP}, 0xffff0000")
    for sb in range(2):
        b(f"  v_lshlrev_b32 v{12+sb}, 16, v{12+sb}")
    b(f"  s_nop 9")
    for sb in range(2):
        for half in range(2):
            o = T + 4 * ((sb * 2 + half) % 2)
            for dd in range(4):
                a = V_ACC + sb * 16 + half * 8 + 2 * dd
                hv = HV + 8 * sb + 4 * half + dd
                t0 = T + 8 + 4 * dd
                b(f"  v_cvt_pk_bf16_f32 v{t0}, v{a}, v{a+1}")
                b(f"  v_and_b32 v{t0+1}, s{S_TMP}, v{t0}")
                b(f"  v_lshlrev_b32 v{t0}, 16, v{t0}")
                b(f"  v_add_f32 v{t0}, v{t0}, v{12+sb}")
                b(f"  v_add_f32 v{t0+1}, v{t0+1}, v{12+sb}")
                b(f"  v_cvt_pk_bf16_f32 v{t0}, v{t0}, v{t0+1}")
                b(f"  v_and_b32 v{t0+1}, s{S_TMP}, v{t0}")
                b(f"  v_lshlrev_b32 v{t0}, 16, v{t0}")
                b(f"  v_lshlrev_b32 v{t0+2}, 16, v{hv}")
                b(f"  v_and_b32 v{t0+3}, s{S_TMP}, v{hv}")
                b(f"  v_add_f32 v{t0}, v{t0}, v{t0+2}")
                b(f"  v_add_f32 v{t0+1}, v{t0+1}, v{t0+3}")
                b(f"  v_cvt_pk_bf16_f32 v{o+dd}, v{t0}, v{t0+1}")
            b(f"  s_mov_b32 s{S_TMP+1}, {sb*65536}")
            b(f"  buffer_store_dwordx4 {vr(o,4)}, v28, s[{SRD_O}:{SRD_O+3}], s{S_TMP+1} offen offset:{16*half}")
    stamp(b, "g2 stores issued")
    b(f"  s_branch g2_done")
    b.label("g2_loader")
    b(f"  s_barrier                      ; matches the barrier inside wait(x4)")
    for n in range(R - 4): loader_issue(b, V_LO, W2F())
    loader_loop(b, c.NS, "g2", W2F())
    b.label("g2_done")

def build():
    NAME = "sequential_preLN__spectral_gfnet__mixer_token_mlp__prompt"
    hdr = open(f"cdna_kernels/{NAME}.s.ref").read().split("; Override launch")[0]
    K = NAME + "_kernel"
    b = B()
    b(hdr.rstrip("\n"))
    b(f"; @launch grid=(256,1,1) block=(512,1,1) lds={LDS_TOTAL}")
    b('.amdgcn_target "amdgcn-amd-amdhsa--gfx950"\n.text')
    b(f".globl {K}\n.p2align 8\n.type {K},@function\n{K}:")
    b(f"  s_cmp_ge_u32 s2, 256\n  s_cbranch_scc1 k_exit")
    if "stamp" in OPT: b("  v_mov_b32 v231, 0")
    stamp(b, "entry")
    b(f"  s_load_dwordx4 s[{P_X}:{P_X+3}], s[0:1], 0        ; x, w_r")
    b(f"  s_load_dwordx2 s[{P_WI}:{P_WI+1}], s[0:1], 16")
    b(f"  s_load_dwordx2 s[{P_W1}:{P_W1+1}], s[0:1], 32")
    b(f"  s_load_dwordx4 s[{P_B1}:{P_B1+3}], s[0:1], 40     ; b1, w2")
    b(f"  s_load_dwordx4 s[{P_B2}:{P_B2+3}], s[0:1], 56     ; b2, out")
    b(f"  s_load_dwordx4 s[{P_DBG}:{P_DBG+3}], s[0:1], 72")
    b(f"  v_lshrrev_b32 v6, 6, v0")
    b(f"  v_and_b32 v7, 63, v0        ; lane")
    b(f"  v_readfirstlane_b32 s{S_W}, v6")
    b(f"  v_and_b32 v8, 15, v7          ; c")
    b(f"  v_lshrrev_b32 v9, 4, v7       ; g")
    b(f"  s_waitcnt lgkmcnt(0)")
    srd(b, SRD_CNT, P_WS, 65536, WS_CNT)
    p1(b)
    p2_setup(b)
    wait(b, 0, 16, "x1c")
    stamp(b, "x1 released")
    p2_main(b)
    p3_setup(b)
    if SENT(): b("  s_barrier")
    else: wait(b, 1, 16, "x2c")
    stamp(b, "x2 released")
    p3_main(b)
    g1(b)
    g2(b)
    b(f"  s_waitcnt vmcnt(0)")
    stamp(b, "end")
    stamp_flush(b)
    b("k_exit:\n  s_endpgm")
    b(kd(K, 240, sgpr=102))
    return b.text()

if __name__ == "__main__":
    out = sys.argv[1]
    OPT.update(sys.argv[2:])
    for o in sys.argv[2:]:
        if o.startswith("pfn="): PFN[:] = [int(c) for c in o[4:].split(",")]
    gemm.OPT.update(sys.argv[2:])
    t = build()
    open(out, "w").write(t)
    rep = check_text(t)
    print("\n".join(rep) if rep else "no hazards found", "| stamps:", nstamp[0])
```

```python
import sys
from asmlib import *
import gemm, fft
from gemm import (srd, f2u, WS_X1, WS_X2, WS_H, WS_LN2, WS_U, U_BYTES, S_W, R, STAGE, PR, DQ,
                  V_P, V_T, V_ACC, S_POFF, S_IT, S_DELTA, SRD_P, SRD_T, SRD_O, SRD_X, SRD_Y, S_TILE_A, S_TILE_B, S_TMP,
                  g1_cfg, g2_cfg, lane_geom)
from fft import sincos, wave_reduce, ln_finish, layernorm16, cmul_pk, gmat, MF32, MF16

OPT = set()
N7 = [0]
WPN = [0]
PFN = [0, 4, 0, 4]
WS_CNT = 30 << 20
WS_STAMP = 31 << 20
WS_WP = 32 << 20
WS_XCH = 24 << 20
W1B = 2048 * 3584 * 2
WB = 2048 * 1026

P_X, P_WR, P_WI, P_W1, P_B1, P_W2, P_B2, P_OUT, P_DBG, P_WS = 64, 66, 68, 70, 72, 74, 76, 78, 80, 82
SRD_CNT = 12
S_T = 46
SRD_A, SRD_B, SRD_C, SRD_D = 24, 28, 32, 36
SRD_PF = 56
S_STAMP = 84
SF = " sc1"
LF = ""

L1_M1, L1_M2, L1_TW, L1_EX = 0, 4096, 8192, 16384
L2_F = 32768; L2_X = L2_F + 2048; L2_W = L2_X + 16 * 1040
L3_M3 = 98304; L3_M4 = L3_M3 + 4096; L3_TW = L3_M3 + 8192; L3_EX = L3_M3 + 16384
L3_LN = L3_EX + 16384; L3_RS = 2624
LDS_TOTAL = L3_LN + 8 * L3_RS
assert LDS_TOTAL <= 163840

STAMPS = ["entry", "p1 x landed", "p1 stores issued", "p1 arrived", "x1 released", "p2 x landed", "p2 stores issued",
          "x2 released", "p3 x2 landed", "p3 stores issued", "x3 released", "g1 main done", "g1 stores issued", "x4 released",
          "g2 main done", "g2 stores issued", "end", "x1 drained", "x2 drained", "x3 drained", "x4 drained", "p1 tables done", "p1 ln done", "p1 fft done", "p3 ifft done", "p3 ln done", "c:g1 start", "c:g1 end", "c:g2 start", "c:g2 end", "g2 x landed", "p2 w landed"]
nstamp = [len(STAMPS)]
SENT = lambda: "bar" not in OPT
SK = lambda: "nosk" not in OPT
W1F = lambda: " nt" if "ntw1" in OPT else ""
W2F = lambda: " nt" if "ntw2" in OPT else ""
XF = lambda: " nt" if ("ntx" in OPT or "ntx1" in OPT) else ""
OF = lambda: " sc1" if "outsc1" in OPT else (" nt" if "outnt" in OPT else "")
WF = lambda: " nt" if ("ntx" in OPT or "ntw" in OPT) else ""
L_XS = 69632
def stamp(b, name):
    if "stamp" not in OPT: return
    i = STAMPS.index(name)
    op = "s_memtime" if name.startswith("c:") else "s_memrealtime"
    b(f"  {op} s[{S_STAMP}:{S_STAMP+1}]   ; stamp {i}: {name}")
    b(f"  s_waitcnt lgkmcnt(0)")
    b(f"  v_writelane_b32 v231, s{S_STAMP}, {i}")

def stamp_flush(b):
    if "stamp" not in OPT: return
    if "dbgmax" in OPT:
        SEL = [1, 23, 2, 17, 3, 4, 5, 6, 18, 7, 8, 9, 19, 10]
        srd(b, 24, P_DBG, 256)
        b(f"  v_readlane_b32 s46, v231, 0")
        b(f"  s_sub_u32 s47, 0, s46")
        b(f"  v_mov_b32 v3, 0")
        b(f"  v_writelane_b32 v3, s47, 0")
        b(f"  v_writelane_b32 v3, s46, 15")
        for i, st in enumerate(SEL):
            b(f"  v_readlane_b32 s46, v231, {st}")
            b(f"  s_nop 3")
            b(f"  v_writelane_b32 v3, s46, {i+1}")
        b(f"  v_lshlrev_b32 v2, 2, v7")
        b(f"  s_mov_b64 s[48:49], exec")
        b(f"  s_mov_b64 exec, 0xffff")
        b(f"  buffer_atomic_umax v3, v2, s[24:27], 0 offen sc1")
        b(f"  s_mov_b64 exec, s[48:49]")
        return
    if "dbgtime" in OPT:
        b(f"  s_cmp_lg_u32 s2, 100")
        b(f"  s_cbranch_scc1 dbg_skip")
        b(f"  s_cmp_lg_u32 s{S_W}, 0")
        b(f"  s_cbranch_scc1 dbg_skip")
        srd(b, 24, P_DBG, 256)
        b(f"  v_readlane_b32 s46, v231, 0")
        b(f"  s_nop 1")
        b(f"  v_subrev_u32 v3, s46, v231")
        b(f"  v_lshlrev_b32 v2, 2, v7")
        b(f"  v_subrev_u32 v2, 4, v2")
        b(f"  s_mov_b64 s[48:49], exec")
        b(f"  s_mov_b64 exec, 0x1fffe")
        b(f"  buffer_store_dword v3, v2, s[24:27], 0 offen")
        b(f"  s_mov_b64 exec, s[48:49]")
        b.label("dbg_skip")
        return
    srd(b, 24, P_WS, 1 << 20, WS_STAMP)
    b(f"  s_lshl_b32 s46, s2, 3")
    b(f"  s_add_u32 s46, s46, s{S_W}")
    b(f"  s_lshl_b32 s46, s46, 7            ; (wg*8+wave)*128")
    b(f"  v_lshlrev_b32 v2, 2, v7")
    b(f"  s_mov_b64 s[48:49], exec")
    b(f"  s_mov_b64 exec, 0xffffffff")
    b(f"  buffer_store_dword v231, v2, s[24:27], s46 offen")
    b(f"  s_mov_b64 exec, s[48:49]")

def arrive(b, bar, shard_sreg, first=False, label="", drained=False):
    if not drained: b(f"  s_waitcnt vmcnt(0)")
    stamp(b, f"x{bar+1} drained")
    b(f"  s_barrier")
    b(f"  s_cmp_lg_u32 s{S_W}, 0")
    b(f"  s_cbranch_scc1 {label}_arr_skip")
    if first:
        b(f"  s_mov_b32 s11, 100000")
        b.label(f"{label}_rdy")
        b(f"  v_cmp_ne_u32 vcc, 0, v27")
        b(f"  s_nop 1")
        b(f"  s_cmp_eq_u64 vcc, exec")
        b(f"  s_cbranch_scc1 {label}_rdy_ok")
        b(f"  buffer_load_dword v27, v26, s[{SRD_PF}:{SRD_PF+3}], 0 offen sc1")
        b(f"  s_waitcnt vmcnt(0)")
        b(f"  s_sub_u32 s11, s11, 1")
        b(f"  s_cmp_lg_u32 s11, 0")
        b(f"  s_cbranch_scc1 {label}_rdy")
        b.label(f"{label}_rdy_ok")
    b(f"  s_lshl_b32 s10, s{shard_sreg}, 8")
    b(f"  s_add_u32 s10, s10, {bar*4096}")
    b(f"  v_mov_b32 v228, s10")
    b(f"  v_mov_b32 v229, 1")
    b(f"  s_mov_b64 s[16:17], exec")
    b(f"  s_mov_b64 exec, 1")
    b(f"  buffer_atomic_add v229, v228, s[{SRD_CNT}:{SRD_CNT+3}], 0 offen sc1")
    b(f"  s_mov_b64 exec, s[16:17]")
    b.label(f"{label}_arr_skip")

def wait(b, bar, target, label, single_sreg=None):
    b(f"  s_cmp_lg_u32 s{S_W}, 0")
    b(f"  s_cbranch_scc1 {label}_w_skip")
    if single_sreg is None:
        b(f"  v_and_b32 v228, 15, v7")
        b(f"  v_lshlrev_b32 v228, 8, v228")
        b(f"  v_add_u32 v228, {bar*4096}, v228")
    else:
        b(f"  s_lshl_b32 s10, s{single_sreg}, 8")
        b(f"  s_add_u32 s10, s10, {bar*4096}")
        b(f"  v_mov_b32 v228, s10")
    b(f"  s_mov_b32 s11, 200000")
    b.label(f"{label}_poll")
    b(f"  buffer_load_dword v229, v228, s[{SRD_CNT}:{SRD_CNT+3}], 0 offen sc1")
    b(f"  s_waitcnt vmcnt(0)")
    b(f"  v_cmp_le_u32 vcc, {target}, v229")
    b(f"  s_nop 1")
    b(f"  s_cmp_eq_u64 vcc, exec")
    b(f"  s_cbranch_scc1 {label}_w_skip")
    b(f"  s_sub_u32 s11, s11, 1")
    b(f"  s_cmp_lg_u32 s11, 0")
    b(f"  s_cbranch_scc1 {label}_poll")
    b.label(f"{label}_w_skip")
    b(f"  s_barrier")

def prefetch(b, ptr_pair, nbytes, start, length, who_scale, who_sreg, vaddr, vdst, stmp, paced=False):
    chunk = -(-length // who_scale)
    n_per_wave = -(-chunk // (512 * 128))
    stride = -(-chunk // (512 * n_per_wave))
    stride = (stride + 3) // 4 * 4
    per_instr = 64 * stride
    srd(b, SRD_PF, ptr_pair, nbytes)
    b(f"  s_mul_i32 s{stmp}, s{who_sreg}, {chunk}")
    b(f"  s_mul_i32 s{stmp+1}, s{S_W}, {n_per_wave*per_instr}")
    b(f"  s_add_u32 s{stmp}, s{stmp}, s{stmp+1}")
    if start: b(f"  s_add_u32 s{stmp}, s{stmp}, {start}")
    b(f"  v_mul_u32_u24 v{vaddr}, {stride}, v7")
    for i in range(n_per_wave):
        b(f"  buffer_load_dword v{vdst}, v{vaddr}, s[{SRD_PF}:{SRD_PF+3}], s{stmp} offen")
        if i + 1 < n_per_wave: b(f"  s_add_u32 s{stmp}, s{stmp}, {per_instr}")
        if paced: b(f"  s_waitcnt vmcnt(0)")
    return n_per_wave

V_DUMMY = 232
def pf_wide(b, ptr_pair, nbytes, s_base, n, wave_lo, wave_hi, label):
    b(f"  s_cmp_lt_u32 s{S_W}, {wave_lo}")
    b(f"  s_cbranch_scc1 {label}")
    if wave_hi < 8:
        b(f"  s_cmp_ge_u32 s{S_W}, {wave_hi}")
        b(f"  s_cbranch_scc1 {label}")
    srd(b, SRD_PF, ptr_pair, nbytes)
    b(f"  s_sub_u32 s{S_T+9}, s{S_W}, {wave_lo}")
    b(f"  s_mul_i32 s{S_T+9}, s{S_T+9}, {n*1024}")
    b(f"  s_add_u32 s{S_T+9}, s{S_T+9}, s{s_base}")
    b(f"  v_lshlrev_b32 v29, 4, v7")
    for i in range(n):
        if i and i % 4 == 0: b(f"  s_add_u32 s{S_T+9}, s{S_T+9}, 4096")
        b(f"  buffer_load_dwordx4 {vr(V_DUMMY,4)}, v29, s[{SRD_PF}:{SRD_PF+3}], s{S_T+9} offen offset:{(i%4)*1024}")
    b.label(label)

def w1_share_base(b, sreg, part):
    b(f"  s_mul_i32 s{sreg}, s2, {W1B // 256}")
    if part: b(f"  s_add_u32 s{sreg}, s{sreg}, {part}")

def w1_first_half_base(b, sreg, part):
    b(f"  s_and_b32 s{sreg}, s2, 7")
    b(f"  s_mul_i32 s{sreg}, s{sreg}, {256*7168}")
    b(f"  s_lshr_b32 s{S_T+9}, s2, 3")
    b(f"  s_mul_i32 s{S_T+9}, s{S_T+9}, {4*7168}")
    b(f"  s_add_u32 s{sreg}, s{sreg}, s{S_T+9}")
    if part: b(f"  s_add_u32 s{sreg}, s{sreg}, {part}")

def p1_tables(b):
    M1, M2, TW = L1_M1, L1_M2, L1_TW
    b(f"  v_and_b32 v10, 255, v0            ; e")
    b(f"  v_lshrrev_b32 v11, 8, v0          ; u")
    b(f"  v_bfe_u32 v12, v10, 2, 4          ; lane&15")
    b(f"  v_lshl_add_u32 v12, v11, 4, v12   ; k1")
    b(f"  v_lshrrev_b32 v13, 6, v10         ; g")
    b(f"  v_and_b32 v14, 3, v10")
    b(f"  v_lshlrev_b32 v13, 3, v13")
    b(f"  v_lshl_add_u32 v13, v14, 1, v13   ; a0 = 8g + 2i")
    b(f"  v_mul_u32_u24 v15, v13, v12       ; a0*k1")
    b(f"  v_add_u32 v16, v15, v12           ; (a0+1)*k1")
    sincos(b, 17, 18, 15, 5, 21)
    sincos(b, 19, 20, 16, 5, 21)
    b(f"  v_lshlrev_b32 v22, 2, v10")
    b(f"  v_lshl_add_u32 v22, v11, 11, v22  ; u*2048 + e*4")
    b(f"  v_cvt_pk_bf16_f32 v23, v17, v19")
    b(f"  v_cvt_pk_bf16_f32 v24, -v18, -v20")
    b(f"  ds_write_b32 v22, v23 offset:{M1}")
    b(f"  ds_write_b32 v22, v24 offset:{M1+1024}")
    sincos(b, 17, 18, 15, 10, 21)
    sincos(b, 19, 20, 16, 10, 21)
    b(f"  ds_write_b32 v22, v17 offset:{TW}")
    b(f"  ds_write_b32 v22, v18 offset:{TW+1024}")
    b(f"  ds_write_b32 v22, v19 offset:{TW+4096}")
    b(f"  ds_write_b32 v22, v20 offset:{TW+4096+1024}")
    b(f"  v_bfe_u32 v12, v10, 2, 4          ; k2")
    b(f"  v_mul_u32_u24 v15, v13, v12")
    b(f"  v_add_u32 v16, v15, v12")
    sincos(b, 17, 18, 15, 5, 21)
    sincos(b, 19, 20, 16, 5, 21)
    b(f"  v_lshlrev_b32 v22, 2, v10")
    b(f"  v_cvt_pk_bf16_f32 v23, v17, v19")
    b(f"  v_cvt_pk_bf16_f32 v24, v18, v20")
    b(f"  v_cvt_pk_bf16_f32 v25, -v18, -v20")
    b(f"  ds_write_b32 v22, v23 offset:{M2}")
    b(f"  ds_write_b32 v22, v24 offset:{M2+1024}")
    b(f"  ds_write_b32 v22, v25 offset:{M2+2048}")

def ln_fast(b, X, T, S0, alt):
    b(f"  v_readlane_b32 s{S0}, v{X}, 0              ; pivot")
    b(f"  s_nop 1")
    for i in range(0, 16, 2):
        b(f"  v_pk_add_f32 {vr(X+i,2)}, {vr(X+i,2)}, s[{S0}:{S0+1}] op_sel_hi:[1,0] neg_lo:[0,1] neg_hi:[0,1]")
    b(f"  v_pk_add_f32 {vr(T,2)}, {vr(X,2)}, {vr(X+2,2)}")
    b(f"  v_pk_add_f32 {vr(T+2,2)}, {vr(X+8,2)}, {vr(X+10,2)}")
    b(f"  v_pk_mul_f32 {vr(T+4,2)}, {vr(X,2)}, {vr(X,2)}")
    b(f"  v_pk_add_f32 {vr(T,2)}, {vr(T,2)}, {vr(X+4,2)}")
    b(f"  v_pk_add_f32 {vr(T+2,2)}, {vr(T+2,2)}, {vr(X+12,2)}")
    b(f"  v_pk_fma_f32 {vr(T+4,2)}, {vr(X+2,2)}, {vr(X+2,2)}, {vr(T+4,2)}")
    b(f"  v_pk_add_f32 {vr(T,2)}, {vr(T,2)}, {vr(X+6,2)}")
    b(f"  v_pk_add_f32 {vr(T+2,2)}, {vr(T+2,2)}, {vr(X+14,2)}")
    for i in range(4, 16, 2):
        b(f"  v_pk_fma_f32 {vr(T+4,2)}, {vr(X+i,2)}, {vr(X+i,2)}, {vr(T+4,2)}")
    b(f"  v_add_f32 v{T}, v{T}, v{T+1}")
    b(f"  v_add_f32 v{T+2}, v{T+2}, v{T+3}")
    if not alt: b(f"  v_add_f32 v{T}, v{T}, v{T+2}")
    b(f"  v_add_f32 v{T+4}, v{T+4}, v{T+5}           ; squares")
    if alt:
        wave_reduce(b, [T, T+2, T+4])
        b(f"  v_sub_f32 v{T+1}, v{T}, v{T+2}             ; E - O")
        b(f"  v_add_f32 v{T}, v{T}, v{T+2}")
        b(f"  s_nop 0")
        b(f"  v_readlane_b32 s{S0+2}, v{T}, 63")
        b(f"  v_readlane_b32 s{S0+3}, v{T+4}, 63")
        b(f"  v_readlane_b32 s{S0+4}, v{T+1}, 63")
    else:
        wave_reduce(b, [T, T+4])
        b(f"  s_nop 0")
        b(f"  v_readlane_b32 s{S0+2}, v{T}, 63")
        b(f"  v_readlane_b32 s{S0+3}, v{T+4}, 63")
    b(f"  s_nop 0")
    b(f"  v_mov_b32 v{T}, {hex(f2u(1.0/1024))}")
    b(f"  v_mul_f32 v{T+1}, s{S0+2}, v{T}")
    b(f"  v_mul_f32 v{T+2}, s{S0+3}, v{T}")
    b(f"  v_fma_f32 v{T+2}, -v{T+1}, v{T+1}, v{T+2}  ; variance")
    b(f"  v_max_f32 v{T+2}, 0, v{T+2}")
    b(f"  v_add_f32 v{T+2}, {hex(f2u(1e-5))}, v{T+2}")
    b(f"  v_rsq_f32 v{T+4}, v{T+2}")
    b(f"  s_nop 0")
    b(f"  v_mul_f32 v{T+8}, -v{T+1}, v{T+4}          ; -mean*rstd")
    if alt: b(f"  v_mul_f32 v{T+6}, s{S0+4}, v{T+4}")
    for i in range(0, 16, 2):
        b(f"  v_pk_fma_f32 {vr(X+i,2)}, {vr(X+i,2)}, {vr(T+4,2)}, {vr(T+8,2)} op_sel_hi:[1,0,0]")

def x1_store_addr(b):
    b(f"  v_lshlrev_b32 v5, 15, v9")
    b(f"  v_lshl_add_u32 v5, v8, 2, v5")
    b(f"  s_and_b32 s{S_T+6}, s2, 15")
    b(f"  s_lshl_b32 s{S_T+6}, s{S_T+6}, 4")
    b(f"  s_lshr_b32 s{S_T+7}, s2, 4")
    b(f"  s_add_u32 s{S_T+6}, s{S_T+6}, s{S_T+7}")
    b(f"  s_lshl_b32 s{S_T+6}, s{S_T+6}, 6       ; pos*64")
    b(f"  s_lshl_b32 s{S_T+7}, s{S_W}, 19        ; 4w*131072")
    b(f"  s_add_u32 s44, s{S_T+6}, s{S_T+7}")

def w_early(b):
    srd(b, SRD_C, P_WR, WB)
    srd(b, SRD_D, P_WI, WB)
    b(f"  s_and_b32 s{S_T+2}, s2, 7              ; j1")
    b(f"  v_and_b32 v215, 1, v0                ; half")
    b(f"  v_bfe_u32 v11, v0, 5, 4              ; c")
    b(f"  v_bfe_u32 v12, v0, 1, 4              ; e")
    b(f"  v_lshl_add_u32 v13, v12, 4, v11      ; j2")
    b(f"  v_lshlrev_b32 v13, 3, v13")
    b(f"  v_add_u32 v13, s{S_T+2}, v13         ; j")
    b(f"  v_mul_u32_u24 v214, 1026, v13")
    b(f"  v_lshl_add_u32 v14, v215, 4, v214")
    b(f"  s_lshr_b32 s{S_T+3}, s2, 3           ; kb")
    b(f"  s_lshl_b32 s{S_T+3}, s{S_T+3}, 5")
    b(f"  buffer_load_dwordx4 {vr(WE,4)}, v14, s[{SRD_C}:{SRD_C+3}], s{S_T+3} offen{WF()}")
    b(f"  buffer_load_dwordx4 {vr(WE+4,4)}, v14, s[{SRD_D}:{SRD_D+3}], s{S_T+3} offen{WF()}")

def p1(b):
    srd(b, SRD_A, P_X, 4 << 20)
    srd(b, SRD_B, P_WS, 4 << 20, WS_X1)
    b(f"  s_lshl_b32 s{S_T}, s{S_W}, 8")
    b(f"  s_add_u32 s{S_T}, s{S_T}, s2          ; s")
    b(f"  s_lshl_b32 s{S_T+1}, s{S_T}, 11")
    b(f"  v_lshlrev_b32 v1, 9, v9")
    b(f"  v_lshl_add_u32 v1, v8, 2, v1")
    XD = 32
    b(f"  s_cmp_ge_u32 s2, 16")
    b(f"  s_cbranch_scc1 p1_noreset")
    b(f"  s_cmp_lg_u32 s{S_W}, 0")
    b(f"  s_cbranch_scc1 p1_noreset")
    b(f"  s_lshl_b32 s{S_T+2}, s2, 8")
    b(f"  v_lshlrev_b32 v2, 12, v7")
    b(f"  v_add_u32 v2, s{S_T+2}, v2")
    b(f"  v_mov_b32 v3, 0")
    b(f"  s_mov_b64 s[48:49], exec")
    b(f"  s_mov_b64 exec, 15")
    b(f"  buffer_store_dword v3, v2, s[{SRD_CNT}:{SRD_CNT+3}], 0 offen sc1")
    b(f"  s_mov_b64 exec, s[48:49]")
    b.label("p1_noreset")
    for i in range(8):
        b(f"  buffer_load_dword v{XD+i}, v1, s[{SRD_A}:{SRD_A+3}], s{S_T+1} offen offset:{64*i}{XF()}")
    NCLR = 0
    NWE = 0
    x1_store_addr(b)
    if SENT():
        b(f"  v_mov_b32 v60, -1")
        b(f"  v_mov_b32 v61, -1")
        b(f"  v_mov_b32 v62, -1")
        b(f"  v_mov_b32 v63, -1")
        b(f"  v_bfe_u32 v2, v7, 2, 3              ; j1")
        b(f"  v_lshrrev_b32 v3, 5, v7             ; i (0,1)")
        b(f"  v_lshlrev_b32 v2, 14, v2")
        b(f"  v_lshl_add_u32 v2, v3, 17, v2")
        b(f"  v_and_b32 v3, 3, v7")
        b(f"  v_lshl_add_u32 v2, v3, 4, v2")
        b(f"  buffer_store_dwordx4 v[60:63], v2, s[{SRD_B}:{SRD_B+3}], s44 offen{SF}")
        b(f"  s_add_u32 s{S_T+7}, s44, {2*131072}")
        b(f"  buffer_store_dwordx4 v[60:63], v2, s[{SRD_B}:{SRD_B+3}], s{S_T+7} offen{SF}")
        NCLR = 2
    if "tlbw" in OPT:
        b(f"  s_cmp_lg_u32 s{S_W}, 7")
        b(f"  s_cbranch_scc1 p1_notlb")
        sh = 20 if "tlb1m" in OPT else (19 if "tlb512k" in OPT else 21)
        b(f"  v_lshlrev_b32 v2, {sh}, v7")
        lst = [(P_WS, 36 << 20), (P_W1, W1B), (P_W2, W1B), (P_WR, WB), (P_WI, WB), (P_OUT, 4 << 20), (P_B1, 7168), (P_B2, 4096)]
        for ptr, size in lst:
            srd(b, SRD_PF, ptr, size)
            b(f"  s_mov_b64 s[16:17], exec")
            n = min(64, -(-size // (1 << sh)))
            b(f"  s_mov_b64 exec, {hex((1 << n) - 1)}")
            b(f"  buffer_load_dword v230, v2, s[{SRD_PF}:{SRD_PF+3}], 0 offen")
            b(f"  s_mov_b64 exec, s[16:17]")
        if "pf7" in OPT:
            n7 = 0
            if "wpf" in OPT:
                b(f"  s_mul_i32 s{S_T+8}, s2, 8208")
                b(f"  v_lshlrev_b32 v29, 4, v7")
                for ptr in (P_WR, P_WI):
                    srd(b, SRD_PF, ptr, WB)
                    b(f"  s_mov_b32 s{S_T+9}, s{S_T+8}")
                    for i in range(9):
                        if i and i % 4 == 0: b(f"  s_add_u32 s{S_T+9}, s{S_T+9}, 4096")
                        b(f"  buffer_load_dwordx4 {vr(V_DUMMY,4)}, v29, s[{SRD_PF}:{SRD_PF+3}], s{S_T+9} offen offset:{(i%4)*1024}")
                        n7 += 1
            if PFN[0]:
                w1_share_base(b, S_T + 9, 0)
                b(f"  v_lshlrev_b32 v29, 4, v7")
                srd(b, SRD_PF, P_W1, W1B)
                for i in range(4 * PFN[0]):
                    if i and i % 4 == 0: b(f"  s_add_u32 s{S_T+9}, s{S_T+9}, 4096")
                    b(f"  buffer_load_dwordx4 {vr(V_DUMMY,4)}, v29, s[{SRD_PF}:{SRD_PF+3}], s{S_T+9} offen offset:{(i%4)*1024}")
                    n7 += 1
            N7[0] = n7
        b.label("p1_notlb")
    if "wpack" in OPT:
        srd(b, SRD_C, P_WR, WB)
        srd(b, SRD_D, P_WI, WB)
        b(f"  s_lshl_b32 s{S_T+2}, s2, 3")
        b(f"  s_add_u32 s{S_T+2}, s{S_T+2}, s{S_W}")
        b(f"  s_mul_i32 s45, s{S_T+2}, 1026")
        b(f"  v_lshlrev_b32 v14, 4, v7")
        b(f"  buffer_load_dwordx4 {vr(WE,4)}, v14, s[{SRD_C}:{SRD_C+3}], s45 offen")
        b(f"  buffer_load_dwordx4 {vr(WE+4,4)}, v14, s[{SRD_D}:{SRD_D+3}], s45 offen")
        b(f"  v_mov_b32 v15, 1024")
        b(f"  buffer_load_ushort v212, v15, s[{SRD_C}:{SRD_C+3}], s45 offen")
        b(f"  buffer_load_ushort v213, v15, s[{SRD_D}:{SRD_D+3}], s45 offen")
        NCLR += 4
    if "wearly" in OPT:
        w_early(b); NCLR += 2
    npf = 0
    p1_tables(b)
    GM = 30
    gmat(b, GM, 2, False, 10)
    srd(b, SRD_PF, P_DBG, 256)
    b(f"  s_and_b32 s{S_T+8}, s2, 15")
    b(f"  s_lshl_b32 s{S_T+9}, s{S_T+8}, 2")
    b(f"  s_add_u32 s{S_T+9}, s{S_T+9}, 64")
    b(f"  v_mov_b32 v25, s{S_T+9}")
    b(f"  v_lshlrev_b32 v26, 2, v8")
    b(f"  v_add_u32 v26, 64, v26")
    b(f"  s_cmp_ge_u32 s2, 16")
    b(f"  s_cbranch_scc1 p1_noflag")
    b(f"  s_cmp_lg_u32 s{S_W}, 0")
    b(f"  s_cbranch_scc1 p1_noflag")
    b(f"  s_waitcnt vmcnt({8} + 0)".replace(" + 0", "") if NCLR == 0 else f"  s_waitcnt vmcnt({8 + NCLR})")
    b(f"  v_mov_b32 v3, 1")
    b(f"  s_mov_b64 s[48:49], exec")
    b(f"  s_mov_b64 exec, 1")
    b(f"  buffer_store_dword v3, v25, s[{SRD_PF}:{SRD_PF+3}], 0 offen sc1")
    b(f"  s_mov_b64 exec, s[48:49]")
    b.label("p1_noflag")
    b(f"  s_waitcnt lgkmcnt(0)")
    stamp(b, "p1 tables done")
    b(f"  s_barrier")
    npf = 0
    if "nopf" not in OPT:
        b(f"  s_mul_i32 s{S_T+8}, s2, 8208")
        if "ntx" not in OPT and "wpf" in OPT and "pf7" not in OPT:
            pf_wide(b, P_WR, WB, S_T + 8, 3, 0, 3, "pf_p1a")
            pf_wide(b, P_WI, WB, S_T + 8, 3, 0, 3, "pf_p1b")
        if "ntw1" not in OPT and PFN[0] and "pf7" not in OPT:
            w1_share_base(b, S_T + 8, 0)
            pf_wide(b, P_W1, W1B, S_T + 8, PFN[0], 4, 8, "pf_p1c")
    M1, M2, TW = 96, 112, 128
    b(f"  v_lshlrev_b32 v2, 4, v7")
    for i in range(4): b(f"  ds_read_b128 {vr(M1+4*i,4)}, v2 offset:{L1_M1+1024*i}")
    for i in range(3): b(f"  ds_read_b128 {vr(M2+4*i,4)}, v2 offset:{L1_M2+1024*i}")
    for i in range(8): b(f"  ds_read_b128 {vr(TW+4*i,4)}, v2 offset:{L1_TW+1024*i}")
    X = 40
    nW = 0 if ("nopf" in OPT or "ntx" in OPT or "wpf" not in OPT or "pf7" in OPT) else 6
    n1 = 0 if ("nopf" in OPT or "ntw1" in OPT or "pf7" in OPT) else PFN[0]
    b(f"  s_cmp_eq_u32 s{S_W}, 3")
    b(f"  s_cbranch_scc1 p1_xw0")
    b(f"  s_cmp_ge_u32 s{S_W}, 4")
    b(f"  s_cbranch_scc1 p1_xw4")
    b(f"  s_waitcnt vmcnt({NCLR + nW})")
    b(f"  s_branch p1_xwd")
    b.label("p1_xw4")
    if "tlbw" in OPT:
        b(f"  s_cmp_lg_u32 s{S_W}, 7")
        b(f"  s_cbranch_scc1 p1_xw5")
        b(f"  s_waitcnt vmcnt({min(63, NCLR + n1 + 8 + N7[0])})")
        b(f"  s_branch p1_xwd")
        b.label("p1_xw5")
    b(f"  s_waitcnt vmcnt({NCLR + n1})")
    b(f"  s_branch p1_xwd")
    b.label("p1_xw0")
    b(f"  s_waitcnt vmcnt({NCLR})")
    b.label("p1_xwd")
    stamp(b, "p1 x landed")
    if "wmid" in OPT:
        w_early(b)
        b(f"  s_cmp_ge_u32 s2, 8")
        b(f"  s_cbranch_scc1 p1_nonyq")
        b(f"  buffer_load_ushort v212, v214, s[{SRD_C}:{SRD_C+3}], 0 offen offset:1024")
        b(f"  buffer_load_ushort v213, v214, s[{SRD_D}:{SRD_D+3}], 0 offen offset:1024")
        b.label("p1_nonyq")
    if "wearly" in OPT:
        b(f"  s_cmp_ge_u32 s2, 8")
        b(f"  s_cbranch_scc1 p1_nonyq")
        b(f"  buffer_load_ushort v212, v214, s[{SRD_C}:{SRD_C+3}], 0 offen offset:1024")
        b(f"  buffer_load_ushort v213, v214, s[{SRD_D}:{SRD_D+3}], 0 offen offset:1024")
        b.label("p1_nonyq")
    srd(b, SRD_PF, P_DBG, 256)
    if "stash" in OPT:
        b(f"  s_lshl_b32 s{S_T+9}, s{S_W}, 11")
        b(f"  s_add_u32 s{S_T+9}, s{S_T+9}, {L_XS}")
        b(f"  v_add_u32 v4, s{S_T+9}, v1           ; t*2048 + g*512 + c*4")
        for i in range(8): b(f"  ds_write_b32 v4, v{XD+i} offset:{64*i}")
    for i in range(8):
        b(f"  v_lshlrev_b32 v{X+i}, 16, v{XD+i}")
        b(f"  v_and_b32 v{X+8+i}, 0xffff0000, v{XD+i}")
    T = 56
    ln_fast(b, X, T, S_T + 2, True)
    stamp(b, "p1 ln done")
    if SENT():
        b(f"  buffer_load_dword v27, v26, s[{SRD_PF}:{SRD_PF+3}], 0 offen sc1")
        b(f"  s_and_b32 s{S_T+8}, s2, 15")
        arrive(b, 0, S_T + 8, first=True, label="x1")
        stamp(b, "p1 arrived")
        srd(b, SRD_C, P_WS, 4 << 20, WS_X2)
        for i in range(4): b(f"  v_mov_b32 v{200+i}, -1")
        b(f"  v_lshlrev_b32 v2, 4, v0")
        b(f"  s_lshl_b32 s{S_T+7}, s2, 14")
        b(f"  buffer_store_dwordx4 v[200:203], v2, s[{SRD_C}:{SRD_C+3}], s{S_T+7} offen{SF}")
        b(f"  s_add_u32 s{S_T+7}, s{S_T+7}, 8192")
        b(f"  buffer_store_dwordx4 v[200:203], v2, s[{SRD_C}:{SRD_C+3}], s{S_T+7} offen{SF}")
    A = 64
    for be in range(2):
        for i in range(4):
            b(f"  v_cvt_pk_bf16_f32 v{A+4*be+i}, v{X+8*be+2*i}, v{X+8*be+2*i+1}")
    b(f"  s_waitcnt lgkmcnt(0)")
    b(f"  v_readlane_b32 s{S_T+5}, v{T+6}, 0")
    Y = 160
    for be in range(2):
        for u in range(2):
            for c in range(2):
                d = Y + ((be * 2 + u) * 2 + c) * 4
                b(f"  {MF32} {vr(d,4)}, {vr(A+4*be,4)}, {vr(M1+4*(2*u+c),4)}, 0")
    b(f"  s_nop 4")
    Bp = 72; W = 32; O = 40
    for u in range(2):
        for be in range(2):
            y = Y + ((be * 2 + u) * 2) * 4
            tw = TW + (be * 4 + u * 2) * 4
            cmul_pk(b, O + 8 * be, O + 8 * be + 4, y, y + 4, tw, tw + 4, W, False)
        for r in range(4):
            b(f"  v_cvt_pk_bf16_f32 v{Bp+8*u+r}, v{O+r}, v{O+8+r}")
            b(f"  v_cvt_pk_bf16_f32 v{Bp+8*u+4+r}, v{O+4+r}, v{O+12+r}")
    XO = 160
    b(f"  s_nop 1")
    for u in range(2):
        re, im = XO + 8 * u, XO + 8 * u + 4
        b(f"  {MF32} {vr(re,4)}, {vr(M2,4)}, {vr(Bp+8*u,4)}, 0")
        b(f"  {MF32} {vr(im,4)}, {vr(M2,4)}, {vr(Bp+8*u+4,4)}, 0")
        b(f"  {MF32} {vr(re,4)}, {vr(M2+4,4)}, {vr(Bp+8*u+4,4)}, {vr(re,4)}")
        b(f"  {MF32} {vr(im,4)}, {vr(M2+8,4)}, {vr(Bp+8*u,4)}, {vr(im,4)}")
    b(f"  s_and_b32 s{S_T+6}, s{S_W}, 1")
    b(f"  s_lshl_b32 s{S_T+6}, s{S_T+6}, 8")
    b(f"  s_lshr_b32 s{S_T+7}, s{S_W}, 1")
    b(f"  s_lshl_b32 s{S_T+7}, s{S_T+7}, 6")
    b(f"  s_add_u32 s{S_T+6}, s{S_T+6}, s{S_T+7}")
    b(f"  v_lshlrev_b32 v3, 12, v9")
    b(f"  v_lshl_add_u32 v3, v8, 2, v3")
    b(f"  v_add_u32 v3, s{S_T+6}, v3")
    b(f"  s_nop 2")
    b(f"  v_writelane_b32 v{XO}, s{S_T+5}, 0")
    b(f"  v_writelane_b32 v{XO+4}, 0, 0")
    PK = 32
    for u in range(2):
        for r in range(4):
            b(f"  v_cvt_pk_bf16_f32 v{PK+4*u+r}, v{XO+8*u+r}, v{XO+8*u+4+r}")
    for u in range(2):
        for r in range(4):
            b(f"  ds_write_b32 v3, v{PK+4*u+r} offset:{L1_EX + u*512 + r*1024}")
    if "wpack" in OPT:
        assert not SENT()
        srd(b, SRD_C, P_WS, 4 << 20, WS_WP)
        b(f"  v_lshrrev_b32 v14, 1, v7              ; kb")
        b(f"  v_lshlrev_b32 v14, 17, v14")
        b(f"  v_and_b32 v15, 1, v7")
        b(f"  v_lshl_add_u32 v14, v15, 4, v14")
        b(f"  s_and_b32 s{S_T+6}, s2, 15")
        b(f"  s_lshl_b32 s{S_T+6}, s{S_T+6}, 9       ; (p&15)<<5 * 16")
        b(f"  s_lshr_b32 s{S_T+7}, s2, 4")
        b(f"  s_lshl_b32 s{S_T+7}, s{S_T+7}, 5       ; (p>>4)<<1 * 16")
        b(f"  s_add_u32 s{S_T+6}, s{S_T+6}, s{S_T+7}")
        b(f"  s_lshl_b32 s{S_T+7}, s{S_W}, 14")
        b(f"  s_add_u32 s{S_T+6}, s{S_T+6}, s{S_T+7}")
        b(f"  s_add_u32 s{S_T+7}, s{S_T+6}, 8192")
        npf0 = 0 if ("nopf" in OPT or "pf7" in OPT) else PFN[0]
        b(f"  s_cmp_ge_u32 s{S_W}, 4")
        b(f"  s_cbranch_scc1 p1_wp4")
        b(f"  s_waitcnt vmcnt(0)")
        b(f"  s_branch p1_wpd")
        b.label("p1_wp4")
        b(f"  s_waitcnt vmcnt({npf0})")
        b.label("p1_wpd")
        b(f"  v_cmp_eq_u32 vcc, 0, v7")
        b(f"  v_and_b32 v15, 0xffff0000, v{WE}")
        b(f"  v_or_b32 v15, v15, v212")
        b(f"  v_cndmask_b32 v{WE}, v{WE}, v15, vcc")
        b(f"  v_and_b32 v15, 0xffff0000, v{WE+4}")
        b(f"  v_or_b32 v15, v15, v213")
        b(f"  v_cndmask_b32 v{WE+4}, v{WE+4}, v15, vcc")
        b(f"  buffer_store_dwordx4 {vr(WE,4)}, v14, s[{SRD_C}:{SRD_C+3}], s{S_T+6} offen{SF}")
        b(f"  buffer_store_dwordx4 {vr(WE+4,4)}, v14, s[{SRD_C}:{SRD_C+3}], s{S_T+7} offen{SF}")
    if SENT(): b(f"  s_waitcnt lgkmcnt(0) vmcnt(0)")
    else:
        b(f"  buffer_load_dword v27, v26, s[{SRD_PF}:{SRD_PF+3}], 0 offen sc1")
        b(f"  s_waitcnt lgkmcnt(0)")
    stamp(b, "p1 fft done")
    b(f"  s_barrier")
    b(f"  v_lshlrev_b32 v4, 6, v9")
    b(f"  v_lshl_add_u32 v4, v8, 2, v4")
    b(f"  s_lshl_b32 s{S_T+6}, s{S_W}, 11")
    b(f"  s_add_u32 s{S_T+6}, s{S_T+6}, {L1_EX}")
    b(f"  v_add_u32 v4, s{S_T+6}, v4")
    Bd = 40
    for i in range(4):
        b(f"  ds_read2st64_b32 {vr(Bd+2*i,2)}, v4 offset0:{2*i} offset1:{2*i+1}")
    D = 48
    for i in range(4):
        b(f"  s_waitcnt lgkmcnt({3-i})")
        b(f"  {MF16} {vr(D+4*i,4)}, {vr(GM,2)}, {vr(Bd+2*i,2)}, 0")
    b(f"  s_nop 4")
    for i in range(4):
        b(f"  v_cvt_pk_bf16_f32 v{64+2*i}, v{D+4*i}, v{D+4*i+1}")
        b(f"  v_cvt_pk_bf16_f32 v{65+2*i}, v{D+4*i+2}, v{D+4*i+3}")
        if SENT():
            b(f"  v_min_u32 v{64+2*i}, 0xfffffffe, v{64+2*i}")
            b(f"  v_min_u32 v{65+2*i}, 0xfffffffe, v{65+2*i}")
        for e in range(2):
            b(f"  s_add_u32 s{S_T+7}, s44, {i*131072 + e*16384}")
            b(f"  buffer_store_dword v{64+2*i+e}, v5, s[{SRD_B}:{SRD_B+3}], s{S_T+7} offen{SF}")
    stamp(b, "p1 stores issued")
    if not SENT():
        b(f"  s_and_b32 s{S_T+8}, s2, 15")
        arrive(b, 0, S_T + 8, first=True, label="x1")
        stamp(b, "p1 arrived")

XL2, WL2 = 32, 40
WE = 204
TC2, TS2 = 64, 68
def p2_setup(b):
    srd(b, SRD_A, P_WS, 4 << 20, WS_X1)
    srd(b, SRD_B, P_WS, 4 << 20, WS_X2)
    srd(b, SRD_C, P_WR, WB)
    srd(b, SRD_D, P_WI, WB)
    b(f"  s_and_b32 s{S_T}, s2, 7              ; j1")
    b(f"  s_lshr_b32 s{S_T+1}, s2, 3           ; kb")
    b(f"  v_and_b32 v10, 1, v0                 ; half")
    b(f"  v_bfe_u32 v11, v0, 5, 4              ; c")
    b(f"  v_bfe_u32 v12, v0, 1, 4              ; e")
    b(f"  v_lshl_add_u32 v13, v12, 4, v11      ; j2")
    b(f"  v_lshlrev_b32 v13, 3, v13")
    b(f"  v_add_u32 v13, s{S_T}, v13           ; j")
    b(f"  v_mul_u32_u24 v13, 1026, v13")
    b(f"  v_lshlrev_b32 v14, 4, v10")
    b(f"  v_add_u32 v14, v13, v14")
    b(f"  s_lshl_b32 s{S_T+3}, s{S_T+1}, 5")
    if "wearly" in OPT or "wmid" in OPT:
        b(f"  s_cmp_lg_u32 s{S_T+1}, 0")
        b(f"  s_cbranch_scc1 p2_nonyq")
        b(f"  s_waitcnt vmcnt(0)")
        b(f"  v_cmp_eq_u32 vcc, 0, v215")
        b(f"  v_and_b32 v50, 0xffff0000, v{WE}")
        b(f"  v_or_b32 v50, v50, v212")
        b(f"  v_cndmask_b32 v{WE}, v{WE}, v50, vcc")
        b(f"  v_and_b32 v50, 0xffff0000, v{WE+4}")
        b(f"  v_or_b32 v50, v50, v213")
        b(f"  v_cndmask_b32 v{WE+4}, v{WE+4}, v50, vcc")
        b.label("p2_nonyq")
    elif "wpack" in OPT:
        srd(b, SRD_C, P_WS, 4 << 20, WS_WP)
    elif "wlate" in OPT:
        b(f"  v_mov_b32 v24, v14")
        b(f"  v_mov_b32 v25, v13")
        b(f"  v_mov_b32 v26, v10                   ; half")
        b(f"  s_mov_b32 s45, s{S_T+3}              ; kb*32")
    else:
        WL = WL2
        b(f"  v_mov_b32 v24, v14")
        b(f"  v_mov_b32 v25, v13")
        b(f"  v_mov_b32 v26, v10                   ; half")
        b(f"  s_mov_b32 s45, s{S_T+3}              ; kb*32")
        WL = WL2
        b(f"  buffer_load_dwordx4 {vr(WL,4)}, v24, s[{SRD_C}:{SRD_C+3}], s45 offen{WF()}")
        b(f"  buffer_load_dwordx4 {vr(WL+4,4)}, v24, s[{SRD_D}:{SRD_D+3}], s45 offen{WF()}")
        b(f"  s_cmp_lg_u32 s{S_T+1}, 0")
        b(f"  s_cbranch_scc1 p2_nonyq")
        b(f"  buffer_load_ushort v48, v25, s[{SRD_C}:{SRD_C+3}], 0 offen offset:1024")
        b(f"  buffer_load_ushort v49, v25, s[{SRD_D}:{SRD_D+3}], 0 offen offset:1024")
        b(f"  s_waitcnt vmcnt(0)")
        b(f"  v_cmp_eq_u32 vcc, 0, v26")
        b(f"  v_and_b32 v50, 0xffff0000, v{WL}")
        b(f"  v_or_b32 v50, v50, v48")
        b(f"  v_cndmask_b32 v{WL}, v{WL}, v50, vcc")
        b(f"  v_and_b32 v50, 0xffff0000, v{WL+4}")
        b(f"  v_or_b32 v50, v50, v49")
        b(f"  v_cndmask_b32 v{WL+4}, v{WL+4}, v50, vcc")
        b.label("p2_nonyq")
        if "wdiag" in OPT:
            b(f"  s_waitcnt vmcnt(0)")
            stamp(b, "p2 w landed")
    npf = 0
    b(f"  v_and_b32 v15, 255, v0")
    b(f"  v_bfe_u32 v16, v15, 2, 4             ; x")
    b(f"  v_lshrrev_b32 v17, 6, v15            ; g")
    b(f"  v_and_b32 v18, 3, v15")
    b(f"  v_lshl_add_u32 v17, v17, 2, v18      ; 4g+i")
    b(f"  v_mul_u32_u24 v17, v17, v16")
    sincos(b, 18, 19, 17, 4, 20)
    b(f"  v_cmp_gt_u32 vcc, 256, v0            ; matrix 0 ?")
    b(f"  v_xor_b32 v20, 0x80000000, v19       ; -sin")
    b(f"  s_nop 0")
    b(f"  v_cndmask_b32 v21, v20, v18, vcc")
    b(f"  v_cndmask_b32 v22, v18, v19, vcc")
    b(f"  v_cvt_pk_bf16_f32 v21, v21, v22")
    b(f"  v_lshlrev_b32 v22, 2, v0")
    b(f"  ds_write_b32 v22, v21 offset:{L2_F}")
    b(f"  v_lshlrev_b32 v16, 2, v9")
    for r in range(4):
        b(f"  v_add_u32 v17, {r}, v16")
        b(f"  v_mul_u32_u24 v17, v17, v8")
        sincos(b, TC2 + r, TS2 + r, 17, 8, 20)
    b(f"  v_and_b32 v16, 3, v0                 ; i")
    b(f"  v_mul_u32_u24 v16, {4*1040}, v16")
    b(f"  v_lshrrev_b32 v17, 6, v0             ; b (0..7)")
    b(f"  v_lshl_add_u32 v16, v17, 6, v16")
    b(f"  v_bfe_u32 v17, v0, 2, 2              ; a&3")
    b(f"  v_lshl_add_u32 v16, v17, 2, v16")
    b(f"  v_bfe_u32 v17, v0, 4, 2              ; a>>2")
    b(f"  v_lshl_add_u32 v21, v17, 4, v16      ; first")
    b(f"  v_xor_b32 v17, 2, v17")
    b(f"  v_lshl_add_u32 v22, v17, 4, v16")
    b(f"  v_add_u32 v22, 512, v22              ; second (b+8)")
    b(f"  v_mul_u32_u24 v16, {4*1040}, v10")
    b(f"  v_lshl_add_u32 v16, v11, 6, v16")
    b(f"  v_and_b32 v17, 3, v12")
    b(f"  v_lshl_add_u32 v16, v17, 2, v16")
    b(f"  v_lshrrev_b32 v17, 2, v12")
    b(f"  v_lshrrev_b32 v18, 3, v11            ; c>>3")
    b(f"  v_lshlrev_b32 v18, 1, v18")
    b(f"  v_xor_b32 v17, v17, v18")
    b(f"  v_lshl_add_u32 v23, v17, 4, v16")
    b(f"  v_lshrrev_b32 v16, 3, v8")
    b(f"  v_lshlrev_b32 v16, 1, v16")
    b(f"  v_xor_b32 v16, v16, v9")
    b(f"  v_lshlrev_b32 v16, 4, v16")
    b(f"  v_lshl_add_u32 v16, v8, 6, v16")
    b(f"  s_mul_i32 s{S_T+4}, s{S_W}, {2*1040}")
    b(f"  s_mul_i32 s{S_T+5}, s{S_W}, 1040")
    b(f"  v_add_u32 v5, s{S_T+4}, v16")
    b(f"  v_add_u32 v6, s{S_T+5}, v16")
    b(f"  v_lshlrev_b32 v1, 4, v0")
    b(f"  s_lshl_b32 s{S_T+2}, s2, 14")
    b(f"  s_add_u32 s{S_T+3}, s{S_T+2}, 8192")
    b(f"  s_waitcnt lgkmcnt(0)")

def sentinel_check(b, R0, pre, n=8):
    b(f"  v_max3_u32 v16, v{R0}, v{R0+1}, v{R0+2}")
    b(f"  v_max3_u32 v17, v{R0+3}, v{R0+4}, v{R0+5}")
    b(f"  v_max3_u32 v16, v16, v{R0+6}, v{R0+7}")
    for i in range(8, n, 2): b(f"  v_max3_u32 v17, v17, v{R0+i}, v{R0+i+1}")
    b(f"  v_max_u32 v16, v16, v17")
    b(f"  v_cmp_eq_u32 vcc, -1, v16")
    b(f"  s_sub_u32 s11, s11, 1")
    b(f"  s_cmp_eq_u32 s11, 0")
    b(f"  s_cbranch_scc1 {pre}_got")
    b(f"  s_cmp_lg_u64 vcc, 0")
    b(f"  s_cbranch_scc1 {pre}_poll")
    b.label(f"{pre}_got")

def p2_main(b):
    XL = XL2; TC, TS = TC2, TS2
    if SENT():
        b(f"  s_mov_b32 s11, 200000")
        b.label("p2_poll")
    b(f"  buffer_load_dwordx4 {vr(XL,4)}, v1, s[{SRD_A}:{SRD_A+3}], s{S_T+2} offen sc1")
    b(f"  buffer_load_dwordx4 {vr(XL+4,4)}, v1, s[{SRD_A}:{SRD_A+3}], s{S_T+3} offen sc1")
    if "wpack" in OPT:
        WL = WL2
        b(f"  buffer_load_dwordx4 {vr(WL,4)}, v1, s[{SRD_C}:{SRD_C+3}], s{S_T+2} offen sc1")
        b(f"  buffer_load_dwordx4 {vr(WL+4,4)}, v1, s[{SRD_C}:{SRD_C+3}], s{S_T+3} offen sc1")
        b(f"  s_waitcnt vmcnt(2)")
    elif "wlate" in OPT:
        assert not SENT()
        WL = WL2
        b(f"  buffer_load_dwordx4 {vr(WL,4)}, v24, s[{SRD_C}:{SRD_C+3}], s45 offen{WF()}")
        b(f"  buffer_load_dwordx4 {vr(WL+4,4)}, v24, s[{SRD_D}:{SRD_D+3}], s45 offen{WF()}")
        b(f"  s_cmp_lg_u32 s{S_T+1}, 0")
        b(f"  s_cbranch_scc1 p2_nonyq")
        b(f"  buffer_load_ushort v56, v25, s[{SRD_C}:{SRD_C+3}], 0 offen offset:1024")
        b(f"  buffer_load_ushort v57, v25, s[{SRD_D}:{SRD_D+3}], 0 offen offset:1024")
        b(f"  s_waitcnt vmcnt(0)")
        b(f"  v_cmp_eq_u32 vcc, 0, v26")
        b(f"  v_and_b32 v58, 0xffff0000, v{WL}")
        b(f"  v_or_b32 v58, v58, v56")
        b(f"  v_cndmask_b32 v{WL}, v{WL}, v58, vcc")
        b(f"  v_and_b32 v58, 0xffff0000, v{WL+4}")
        b(f"  v_or_b32 v58, v58, v57")
        b(f"  v_cndmask_b32 v{WL+4}, v{WL+4}, v58, vcc")
        b.label("p2_nonyq")
        b(f"  s_waitcnt vmcnt(2)")
    else:
        b(f"  s_waitcnt vmcnt(0)")
    if SENT(): sentinel_check(b, XL, "p2")
    WL = WE if ("wearly" in OPT or "wmid" in OPT) else WL2
    b(f"  v_lshlrev_b32 v17, 4, v7")
    FR, FI = 72, 76
    AX = 48; WR, WI = 152, 156
    b(f"  ds_read_b128 {vr(FR,4)}, v17 offset:{L2_F}")
    b(f"  ds_read_b128 {vr(FI,4)}, v17 offset:{L2_F+1024}")
    Dq = [80, 88]; Oq = [96, 104]; Tq = [112, 120]; Pq = [128, 132]; Wq = [136, 144]
    stamp(b, "p2 x landed")
    for j in range(4):
        b(f"  ds_write_b32 v21, v{XL+j} offset:{L2_X + j*1040}")
        b(f"  ds_write_b32 v22, v{XL+4+j} offset:{L2_X + j*1040}")
    if "wlate" in OPT or "wpack" in OPT: b(f"  s_waitcnt vmcnt(0)")
    for j in range(4):
        b(f"  ds_write_b32 v23, v{WL+j} offset:{L2_W + j*1040}")
        b(f"  ds_write_b32 v23, v{WL+4+j} offset:{L2_W + 8*1040 + j*1040}")
    if "nopf" not in OPT and "ntw1" not in OPT and PFN[1]:
        w1_share_base(b, S_T + 8, PFN[0] * 4096)
        pf_wide(b, P_W1, W1B, S_T + 8, PFN[1], 4, 8, "pf_p2a")
    b(f"  s_waitcnt lgkmcnt(0)")
    b(f"  s_barrier")
    b(f"  ds_read_b128 {vr(AX,4)}, v5 offset:{L2_X}")
    b(f"  ds_read_b128 {vr(AX+4,4)}, v5 offset:{L2_X+1040}")
    b(f"  ds_read_b128 {vr(WR,4)}, v6 offset:{L2_W}")
    b(f"  ds_read_b128 {vr(WI,4)}, v6 offset:{L2_W+8*1040}")
    def stage(form, src):
        for k in range(2):
            d = Dq[k]
            if form == 'A':
                b(f"  {MF32} {vr(d,4)}, {vr(src[k],4)}, {vr(FR,4)}, 0")
                b(f"  {MF32} {vr(d+4,4)}, {vr(src[k],4)}, {vr(FI,4)}, 0")
            else:
                b(f"  {MF32} {vr(d,4)}, {vr(FR,4)}, {vr(src[k],4)}, 0")
                b(f"  {MF32} {vr(d+4,4)}, {vr(FI,4)}, {vr(src[k],4)}, 0")
    def twiddle_pack():
        for k in range(2):
            cmul_pk(b, Oq[k], Oq[k] + 4, Dq[k], Dq[k] + 4, TC, TS, Tq[k], False)
        for k in range(2):
            for r in range(4):
                b(f"  v_cvt_pk_bf16_f32 v{Pq[k]+r}, v{Oq[k]+r}, v{Oq[k]+4+r}")
        b(f"  s_nop 1")
    b(f"  s_waitcnt lgkmcnt(2)")
    stage('A', [AX, AX + 4])
    b(f"  s_waitcnt lgkmcnt(0)")
    for r in range(4):
        b(f"  v_lshlrev_b32 v{Wq[0]+r}, 16, v{WR+r}")
        b(f"  v_lshlrev_b32 v{Wq[0]+4+r}, 16, v{WI+r}")
        b(f"  v_and_b32 v{Wq[1]+r}, 0xffff0000, v{WR+r}")
        b(f"  v_and_b32 v{Wq[1]+4+r}, 0xffff0000, v{WI+r}")
    twiddle_pack()
    stage('B', Pq)
    b(f"  s_nop 5")
    for k in range(2):
        cmul_pk(b, Oq[k], Oq[k] + 4, Dq[k], Dq[k] + 4, Wq[k], Wq[k] + 4, Tq[k], True)
    for k in range(2):
        for r in range(4):
            b(f"  v_cvt_pk_bf16_f32 v{Pq[k]+r}, v{Oq[k]+r}, -v{Oq[k]+4+r}")
    b(f"  s_nop 1")
    stage('A', Pq)
    b(f"  s_nop 5")
    twiddle_pack()
    stage('B', Pq)
    b(f"  s_nop 5")
    for k in range(2):
        for r in range(4):
            b(f"  v_cvt_pk_bf16_f32 v{Pq[k]+r}, v{Dq[k]+r}, -v{Dq[k]+4+r}")
    b(f"  ds_write_b128 v5, {vr(Pq[0],4)} offset:{L2_X}")
    b(f"  ds_write_b128 v5, {vr(Pq[1],4)} offset:{L2_X+1040}")
    b(f"  s_waitcnt lgkmcnt(0)")
    b(f"  s_barrier")
    for j in range(4):
        b(f"  ds_read_b32 v{XL+j}, v21 offset:{L2_X + j*1040}")
        b(f"  ds_read_b32 v{XL+4+j}, v22 offset:{L2_X + j*1040}")
    b(f"  v_bfe_u32 v16, v0, 2, 4              ; a")
    b(f"  v_lshrrev_b32 v17, 6, v0             ; b")
    b(f"  v_lshl_add_u32 v16, v16, 4, v17      ; s1")
    b(f"  v_lshlrev_b32 v16, 14, v16")
    b(f"  v_and_b32 v17, 3, v0")
    b(f"  v_lshl_add_u32 v16, v17, 4, v16")
    b(f"  s_lshl_b32 s{S_T+4}, s{S_T}, 11")
    b(f"  s_lshl_b32 s{S_T+5}, s{S_T+1}, 6")
    b(f"  s_add_u32 s{S_T+4}, s{S_T+4}, s{S_T+5}")
    b(f"  s_add_u32 s{S_T+5}, s{S_T+4}, {8*16384}")
    b(f"  s_waitcnt lgkmcnt(0)")
    if SENT():
        for j in range(8): b(f"  v_min_u32 v{XL+j}, 0xfffffffe, v{XL+j}")
    b(f"  buffer_store_dwordx4 {vr(XL,4)}, v16, s[{SRD_B}:{SRD_B+3}], s{S_T+4} offen{SF}")
    b(f"  buffer_store_dwordx4 {vr(XL+4,4)}, v16, s[{SRD_B}:{SRD_B+3}], s{S_T+5} offen{SF}")
    stamp(b, "p2 stores issued")
    if not SENT():
        b(f"  s_and_b32 s{S_T+8}, s2, 15")
        arrive(b, 1, S_T + 8, label="x2")

V_LO = 224
S_G1A = 60
def g1_ids(b):
    b(f"  s_lshr_b32 s{S_T}, s2, 3                 ; i")
    b(f"  s_cmp_lt_u32 s{S_T}, 28")
    b(f"  s_cselect_b32 s62, 1, 0")
    b(f"  s_mul_i32 s{S_T+1}, s{S_T}, 37")
    b(f"  s_lshr_b32 s{S_T+1}, s{S_T+1}, 8         ; i/7")
    b(f"  s_mul_i32 s{S_T+2}, s{S_T+1}, 7")
    b(f"  s_sub_u32 s{S_T+2}, s{S_T}, s{S_T+2}     ; i%7")
    b(f"  s_and_b32 s{S_T+3}, s2, 7")
    b(f"  s_lshr_b32 s{S_T+4}, s{S_T+3}, 1")
    b(f"  s_mul_i32 s{S_T+4}, s{S_T+4}, 7")
    b(f"  s_add_u32 s60, s{S_T+4}, s{S_T+2}        ; ft")
    b(f"  s_and_b32 s{S_T+3}, s{S_T+3}, 1")
    b(f"  s_lshl_b32 s{S_T+3}, s{S_T+3}, 2")
    b(f"  s_add_u32 s61, s{S_T+3}, s{S_T+1}        ; dt")

S_SOFF, S_M0, S_N = 4, 5, 6
def loader_issue(b, voff, fl=""):
    for i in range(4):
        b(f"  s_add_u32 m0, s{S_M0}, {4096*i}")
        b(f"  s_nop 0")
        b(f"  buffer_load_dwordx4 v{voff+i}, s[{SRD_T}:{SRD_T+3}], s{S_SOFF} offen{fl} lds")
    b(f"  s_add_u32 s{S_SOFF}, s{S_SOFF}, s9")
    b(f"  s_add_u32 s{S_M0}, s{S_M0}, {STAGE}")
    b(f"  s_cmp_ge_u32 s{S_M0}, s{S_N+1}")
    b(f"  s_cselect_b32 s{S_N+2}, {R*STAGE}, 0")
    b(f"  s_sub_u32 s{S_M0}, s{S_M0}, s{S_N+2}")

def loader_init(b, step_bytes):
    b(f"  s_sub_u32 s50, s{S_W}, 4")
    b(f"  s_lshl_b32 s{S_M0}, s50, 10")
    b(f"  s_add_u32 s{S_N+1}, s{S_M0}, {R*STAGE}")
    b(f"  s_mov_b32 s{S_SOFF}, 0")
    b(f"  s_mov_b32 s9, {step_bytes}")

def g1_loader_addr(b):
    b(f"  s_sub_u32 s50, s{S_W}, 4      ; w'")
    for i in range(4):
        b(f"  s_lshl_b32 s49, s50, 2")
        b(f"  s_add_u32 s49, s49, {16*i}")
        b(f"  v_lshrrev_b32 v14, 4, v7")
        b(f"  v_add_u32 v14, s49, v14                 ; row 0..63")
        b(f"  v_and_b32 v15, 3, v14")
        b(f"  v_lshlrev_b32 v15, 2, v15")
        b(f"  v_and_b32 v16, 15, v7")
        b(f"  v_xor_b32 v16, v16, v15                 ; q")
        b(f"  v_lshrrev_b32 v17, 3, v14")
        b(f"  v_and_b32 v18, 7, v14")
        b(f"  v_lshl_add_u32 v17, v18, 8, v17         ; s")
        b(f"  v_mul_u32_u24 v17, 7168, v17")
        b(f"  v_lshl_add_u32 v17, v16, 4, v17")
        b(f"  s_lshl_b32 s49, s60, 8")
        b(f"  v_add_u32 v{V_LO+i}, s49, v17")

def g2_ids(b):
    if SK():
        b(f"  s_lshr_b32 s{S_T+1}, s2, 3")
        b(f"  s_lshr_b32 s{S_TILE_A}, s{S_T+1}, 2          ; dt")
        b(f"  s_lshr_b32 s{S_T}, s2, 1")
        b(f"  s_and_b32 s{S_T}, s{S_T}, 3")
        b(f"  s_lshl_b32 s{S_T}, s{S_T}, 2")
        b(f"  s_and_b32 s{S_T+1}, s{S_T+1}, 3")
        b(f"  s_add_u32 s{S_TILE_B}, s{S_T}, s{S_T+1}      ; st2")
        b(f"  s_and_b32 s19, s2, 1                       ; kh")
        return
    b(f"  s_and_b32 s{S_T}, s2, 1")
    b(f"  s_lshl_b32 s{S_T}, s{S_T}, 2")
    b(f"  s_lshr_b32 s{S_T+1}, s2, 3")
    b(f"  s_and_b32 s{S_T+2}, s{S_T+1}, 3")
    b(f"  s_add_u32 s{S_TILE_A}, s{S_T}, s{S_T+2}     ; dt")
    b(f"  s_lshr_b32 s{S_T}, s2, 1")
    b(f"  s_and_b32 s{S_T}, s{S_T}, 3")
    b(f"  s_lshl_b32 s{S_T}, s{S_T}, 3")
    b(f"  s_lshr_b32 s{S_T+1}, s{S_T+1}, 2")
    b(f"  s_add_u32 s{S_TILE_B}, s{S_T}, s{S_T+1}     ; st")

def g2_loader_addr(b):
    if SK():
        b(f"  s_sub_u32 s50, s{S_W}, 4")
        for i in range(4):
            b(f"  s_lshl_b32 s49, s50, 2")
            b(f"  s_add_u32 s49, s49, {16*i}")
            b(f"  v_lshrrev_b32 v14, 4, v7")
            b(f"  v_add_u32 v14, s49, v14                 ; row 0..63")
            b(f"  v_and_b32 v15, 3, v14")
            b(f"  v_lshlrev_b32 v15, 2, v15")
            b(f"  v_and_b32 v16, 15, v7")
            b(f"  v_xor_b32 v16, v16, v15                 ; q")
            b(f"  v_lshlrev_b32 v14, 12, v14              ; row*4096")
            b(f"  v_lshl_add_u32 v14, v16, 4, v14")
            b(f"  s_lshl_b32 s49, s{S_TILE_B}, 8          ; s0*2")
            b(f"  s_mul_i32 s48, s19, {1792*4096}         ; k half")
            b(f"  s_add_u32 s49, s49, s48")
            b(f"  v_add_u32 v{V_LO+i}, s49, v14")
        return
    b(f"  s_sub_u32 s50, s{S_W}, 4")
    for i in range(4):
        b(f"  s_lshl_b32 s49, s50, 3")
        b(f"  s_add_u32 s49, s49, {32*i}")
        b(f"  v_lshrrev_b32 v14, 3, v7")
        b(f"  v_add_u32 v14, s49, v14                 ; row")
        b(f"  v_bfe_u32 v15, v14, 1, 1")
        b(f"  v_lshlrev_b32 v15, 2, v15")
        b(f"  v_and_b32 v16, 7, v7")
        b(f"  v_xor_b32 v16, v16, v15                 ; q")
        b(f"  v_lshlrev_b32 v14, 12, v14              ; row*4096")
        b(f"  v_lshl_add_u32 v14, v16, 4, v14")
        b(f"  s_lshl_b32 s49, s{S_TILE_B}, 7          ; s0*2")
        b(f"  v_add_u32 v{V_LO+i}, s49, v14")

def loader_loop(b, NS, pre, fl=""):
    if "priol" in OPT: b("  s_setprio 2")
    if "oldstart" in OPT:
        for n in range(R - 4): loader_issue(b, V_LO, fl)
        nmain = NS - (R - 2)
    else:
        b(f"  s_waitcnt vmcnt(4)")
        b("  s_barrier                      ; B_0")
        for n in range(R - 3): loader_issue(b, V_LO, fl)
        nmain = NS - (R - 2) - 1
    b(f"  s_mov_b32 s{S_N}, {nmain}")
    b.label(f"{pre}_lloop")
    b(f"  s_waitcnt vmcnt({(R-3)*4})")
    b("  s_barrier")
    loader_issue(b, V_LO, fl)
    b(f"  s_sub_u32 s{S_N}, s{S_N}, 1")
    b(f"  s_cmp_lg_u32 s{S_N}, 0")
    b(f"  s_cbranch_scc1 {pre}_lloop")
    for i in range(R - 2):
        b(f"  s_waitcnt vmcnt({(R-3-i)*4})")
        b("  s_barrier")

BD3 = 32; XR3 = 192; GM3 = 30
def p3_tables(b):
    b(f"  v_and_b32 v10, 255, v0            ; e")
    b(f"  v_lshrrev_b32 v11, 8, v0")
    b(f"  v_bfe_u32 v12, v10, 2, 4          ; n = lane&15")
    b(f"  v_lshrrev_b32 v13, 6, v10         ; g")
    b(f"  v_and_b32 v14, 3, v10             ; r")
    b(f"  v_lshl_add_u32 v13, v13, 2, v14   ; 4g + r")
    b(f"  v_lshrrev_b32 v15, 2, v12")
    b(f"  v_lshlrev_b32 v15, 3, v15")
    b(f"  v_and_b32 v16, 3, v12")
    b(f"  v_add_u32 v15, v15, v16           ; b(n,0)")
    b(f"  v_lshl_add_u32 v16, v11, 2, v15   ; b(n, sel)")
    b(f"  v_mul_u32_u24 v17, v16, v13")
    sincos(b, 18, 19, 17, 5, 20)
    b(f"  v_lshlrev_b32 v22, 2, v10")
    b(f"  v_lshl_add_u32 v22, v11, 11, v22  ; sel*2048 + e*4")
    b(f"  v_add_u32 v22, {L3_M3}, v22")
    b(f"  v_cvt_pk_bf16_f32 v23, v18, -v19")
    b(f"  v_cvt_pk_bf16_f32 v24, v19, v18")
    b(f"  ds_write_b32 v22, v23")
    b(f"  ds_write_b32 v22, v24 offset:1024")
    b(f"  v_lshl_add_u32 v17, v11, 4, v13   ; k1")
    for z in range(2):
        b(f"  v_add_u32 v21, {16*z}, v12")
        b(f"  v_mul_u32_u24 v21, v21, v17")
        sincos(b, 18, 19, 21, 5, 20)
        b(f"  v_add_f32 v18, v18, v18")
        b(f"  v_mul_f32 v19, -2.0, v19")
        b(f"  v_cvt_pk_bf16_f32 v23, v18, v19")
        b(f"  ds_write_b32 v22, v23 offset:{4096+1024*z}")
    b(f"  v_lshlrev_b32 v23, 2, v10")
    b(f"  v_lshl_add_u32 v23, v11, 12, v23   ; u*4096 + e*4")
    b(f"  v_add_u32 v23, {L3_TW}, v23")
    for v in range(2):
        b(f"  v_add_u32 v21, {4*v}, v15")
        b(f"  v_mul_u32_u24 v21, v21, v17")
        sincos(b, 18, 19, 21, 10, 20)
        b(f"  ds_write_b32 v23, v18 offset:{2048*v}")
        b(f"  ds_write_b32 v23, v19 offset:{2048*v+1024}")

def p3_setup(b):
    srd(b, SRD_A, P_WS, 4 << 20, WS_X2)
    srd(b, SRD_B, P_X, 4 << 20)
    srd(b, SRD_C, P_WS, 4 << 20, WS_H)
    srd(b, SRD_D, P_WS, 4 << 20, WS_LN2)
    b(f"  s_lshl_b32 s{S_T+3}, s{S_W}, 8")
    b(f"  s_add_u32 s{S_T+3}, s{S_T+3}, s2")
    b(f"  s_lshl_b32 s{S_T+3}, s{S_T+3}, 11       ; s*2048")
    b(f"  v_lshlrev_b32 v4, 6, v8")
    b(f"  v_lshl_add_u32 v4, v9, 4, v4")
    if "stash" in OPT:
        b(f"  s_lshl_b32 s{S_T+9}, s{S_W}, 11")
        b(f"  s_add_u32 s{S_T+9}, s{S_T+9}, {L_XS}")
        b(f"  v_add_u32 v2, s{S_T+9}, v4")
        for z in range(2): b(f"  ds_read_b128 {vr(XR3+4*z,4)}, v2 offset:{1024*z}")
    else:
      for z in range(2):
        b(f"  buffer_load_dwordx4 {vr(XR3+4*z,4)}, v4, s[{SRD_B}:{SRD_B+3}], s{S_T+3} offen offset:{1024*z}")
    b(f"  s_mov_b32 s63, s{S_T+3}")
    if SK():
        srd(b, SRD_PF, P_WS, 4 << 20, WS_XCH)
        for i in range(4): b(f"  v_mov_b32 v{200+i}, -1")
        b(f"  v_lshlrev_b32 v2, 4, v0")
        b(f"  s_lshl_b32 s{S_T+8}, s2, 14")
        b(f"  buffer_store_dwordx4 v[200:203], v2, s[{SRD_PF}:{SRD_PF+3}], s{S_T+8} offen{SF}")
        b(f"  s_add_u32 s{S_T+8}, s{S_T+8}, 8192")
        b(f"  buffer_store_dwordx4 v[200:203], v2, s[{SRD_PF}:{SRD_PF+3}], s{S_T+8} offen{SF}")
    if "nopf" not in OPT and "ntw1" not in OPT:
        if PFN[2]:
            w1_share_base(b, S_T + 8, (PFN[0] + PFN[1]) * 4096)
            pf_wide(b, P_W1, W1B, S_T + 8, PFN[2], 4, 8, "pf_p3a")
    g1_ids(b)
    g1_loader_addr(b)
    loader_init(b, 8 * 7168)
    p3_tables(b)
    gmat(b, GM3, 2, True, 10)
    b(f"  v_lshlrev_b32 v1, 12, v9")
    b(f"  v_lshl_add_u32 v1, v8, 2, v1")
    b(f"  s_lshl_b32 s{S_T}, s2, 14")
    b(f"  s_and_b32 s{S_T+1}, s{S_W}, 1")
    b(f"  s_lshl_b32 s{S_T+1}, s{S_T+1}, 6")
    b(f"  s_lshr_b32 s{S_T+2}, s{S_W}, 1")
    b(f"  s_lshl_b32 s{S_T+2}, s{S_T+2}, 9")
    b(f"  s_add_u32 s{S_T}, s{S_T}, s{S_T+1}")
    b(f"  s_add_u32 s44, s{S_T}, s{S_T+2}          ; X2 soffset")
    b(f"  s_lshl_b32 s{S_T+1}, s{S_T+1}, 4        ; u*1024")
    b(f"  s_lshr_b32 s{S_T+2}, s{S_T+2}, 1        ; q4*256")
    b(f"  s_add_u32 s45, s{S_T+1}, s{S_T+2}")
    b(f"  s_waitcnt lgkmcnt(0)")

def p3_main(b):
    Bd, XR, GM = BD3, XR3, GM3
    D = 40
    b(f"  v_lshlrev_b32 v3, 12, v9")
    b(f"  v_lshl_add_u32 v3, v8, 4, v3")
    b(f"  v_add_u32 v3, s45, v3")
    b(f"  v_add_u32 v3, {L3_EX}, v3")
    M3, M4, TW = 96, 112, 128
    b(f"  v_lshlrev_b32 v6, 4, v7")
    b(f"  v_add_u32 v6, {L3_M3}, v6")
    for i in range(4): b(f"  ds_read_b128 {vr(M3+4*i,4)}, v6 offset:{1024*i}")
    for i in range(4): b(f"  ds_read_b128 {vr(M4+4*i,4)}, v6 offset:{4096+1024*i}")
    b(f"  s_waitcnt lgkmcnt(0)")
    for i in range(8): b(f"  ds_read_b128 {vr(TW+4*i,4)}, v6 offset:{8192+1024*i}")
    if SENT():
        b(f"  s_mov_b32 s11, 200000")
        b.label("p3_poll")
    for i in range(4):
        for e in range(2):
            b(f"  buffer_load_dword v{Bd+2*i+e}, v1, s[{SRD_A}:{SRD_A+3}], s44 offen offset:{e*2048+i*128} sc1")
    b(f"  s_waitcnt vmcnt(0)")
    if SENT(): sentinel_check(b, Bd, "p3")
    stamp(b, "p3 x2 landed")
    if "nopf" not in OPT and "ntw1" not in OPT and PFN[3]:
        w1_share_base(b, S_T + 8, (PFN[0] + PFN[1] + PFN[2]) * 4096)
        pf_wide(b, P_W1, W1B, S_T + 8, PFN[3], 4, 8, "pf_p3b")
    for i in range(4):
        b(f"  {MF16} {vr(D+4*i,4)}, {vr(GM,2)}, {vr(Bd+2*i,2)}, 0")
    b(f"  s_nop 4")
    PK = 56
    for e in range(2):
        for i in range(4):
            b(f"  v_cvt_pk_bf16_f32 v{PK+4*e+i}, v{D+4*i+2*e}, v{D+4*i+2*e+1}")
    b(f"  ds_write_b128 v3, {vr(PK,4)}")
    b(f"  ds_write_b128 v3, {vr(PK+4,4)} offset:2048")
    b(f"  s_waitcnt lgkmcnt(0)")
    b(f"  s_barrier")
    b(f"  v_lshlrev_b32 v5, 8, v9")
    b(f"  v_lshl_add_u32 v5, v8, 4, v5")
    b(f"  s_lshl_b32 s{S_T+1}, s{S_W}, 11")
    b(f"  s_add_u32 s{S_T+1}, s{S_T+1}, {L3_EX}")
    b(f"  v_add_u32 v5, s{S_T+1}, v5")
    AU = 32
    b(f"  ds_read_b128 {vr(AU,4)}, v5")
    b(f"  ds_read_b128 {vr(AU+4,4)}, v5 offset:1024")
    b(f"  s_waitcnt lgkmcnt(0)")
    b(f"  v_readlane_b32 s{S_T+4}, v{AU}, 0")
    b(f"  v_writelane_b32 v{AU}, 0, 0")
    b(f"  s_nop 1")
    b(f"  s_lshl_b32 s{S_T+4}, s{S_T+4}, 16")
    TT = 160
    for u in range(2):
        for v in range(2):
            for c in range(2):
                d = TT + ((u * 2 + v) * 2 + c) * 4
                b(f"  {MF32} {vr(d,4)}, {vr(AU+4*u,4)}, {vr(M3+4*(2*v+c),4)}, 0")
    CI = 60
    b(f"  v_mov_b32 v{CI}, s{S_T+4}")
    b(f"  v_xor_b32 v{CI+1}, 0x80000000, v{CI}")
    b(f"  v_mov_b32 v{CI+2}, v{CI}")
    b(f"  v_mov_b32 v{CI+3}, v{CI+1}")
    b(f"  s_nop 1")
    A2 = 64; O = 40; W = 80
    for u in range(2):
        for v in range(2):
            t = TT + ((u * 2 + v) * 2) * 4
            tw = TW + ((u * 2 + v) * 2) * 4
            cmul_pk(b, O, O + 4, t, t + 4, tw, tw + 4, W, True)
            for r in range(4):
                b(f"  v_cvt_pk_bf16_f32 v{A2+(u*2+v)*4+r}, v{O+r}, v{O+4+r}")
    Y = 160
    b(f"  s_nop 1")
    for z in range(2):
        for v in range(2):
            d = Y + (z * 2 + v) * 4
            b(f"  {MF32} {vr(d,4)}, {vr(A2+(0*2+v)*4,4)}, {vr(M4+(0*2+z)*4,4)}, {vr(CI,4)}")
    for z in range(2):
        for v in range(2):
            d = Y + (z * 2 + v) * 4
            b(f"  {MF32} {vr(d,4)}, {vr(A2+(1*2+v)*4,4)}, {vr(M4+(1*2+z)*4,4)}, {vr(d,4)}")
    b(f"  s_nop 7")
    X = 40; HP = 32
    stamp(b, "p3 ifft done")
    for z in range(2):
        for dd in range(4):
            y0 = Y + z * 8 + 2 * dd
            xd = XR + 4 * z + dd
            t = 64 + 2 * (dd % 4)
            b(f"  v_lshlrev_b32 v{t}, 16, v{xd}")
            b(f"  v_and_b32 v{t+1}, 0xffff0000, v{xd}")
            b(f"  v_pk_add_f32 {vr(t,2)}, {vr(t,2)}, {vr(y0,2)}")
            b(f"  v_cvt_pk_bf16_f32 v{HP+4*z+dd}, v{t}, v{t+1}")
    for z in range(2):
        b(f"  buffer_store_dwordx4 {vr(HP+4*z,4)}, v4, s[{SRD_C}:{SRD_C+3}], s63 offen offset:{1024*z}{SF}")
    for i in range(8):
        b(f"  v_lshlrev_b32 v{X+2*i}, 16, v{HP+i}")
        b(f"  v_and_b32 v{X+2*i+1}, 0xffff0000, v{HP+i}")
    ln_fast(b, X, 64, S_T + 4, False)
    LP = 72
    stamp(b, "p3 ln done")
    for i in range(8):
        b(f"  v_cvt_pk_bf16_f32 v{LP+i}, v{X+2*i}, v{X+2*i+1}")
    b(f"  v_mul_u32_u24 v3, 80, v8")
    b(f"  v_lshl_add_u32 v3, v9, 4, v3")
    b(f"  s_mul_i32 s{S_T+1}, s{S_W}, {L3_RS}")
    b(f"  s_add_u32 s{S_T+1}, s{S_T+1}, {L3_LN}")
    b(f"  v_add_u32 v3, s{S_T+1}, v3")
    for z in range(2):
        b(f"  ds_write_b128 v3, {vr(LP+4*z,4)} offset:{z*16*80}")
    b(f"  s_waitcnt lgkmcnt(0)")
    b(f"  s_barrier")
    b(f"  v_bfe_u32 v10, v7, 2, 2")
    b(f"  v_mul_u32_u24 v10, {L3_RS}, v10")
    b(f"  v_lshrrev_b32 v11, 5, v7")
    b(f"  v_mul_u32_u24 v12, 80, v11")
    b(f"  v_add_u32 v10, v10, v12")
    b(f"  v_and_b32 v12, 1, v7")
    b(f"  v_lshl_add_u32 v10, v12, 5, v10")
    b(f"  v_bfe_u32 v12, v7, 4, 1")
    b(f"  v_lshl_add_u32 v10, v12, 4, v10")
    b(f"  v_bfe_u32 v12, v7, 1, 1")
    b(f"  v_lshl_add_u32 v10, v12, 3, v10")
    b(f"  s_mul_i32 s{S_T+1}, s{S_W}, {4*80}")
    b(f"  s_add_u32 s{S_T+1}, s{S_T+1}, {L3_LN}")
    b(f"  v_add_u32 v10, s{S_T+1}, v10")
    for ps in range(2):
        b(f"  ds_read_b64_tr_b16 {vr(32+4*ps,2)}, v10 offset:{ps*160}")
        b(f"  ds_read_b64_tr_b16 {vr(34+4*ps,2)}, v10 offset:{ps*160 + 4*L3_RS}")
    b(f"  v_lshlrev_b32 v11, 17, v11")
    b(f"  v_and_b32 v12, 31, v7")
    b(f"  v_lshl_add_u32 v11, v12, 4, v11")
    b(f"  s_lshl_b32 s{S_T+1}, s{S_W}, 19")
    b(f"  s_lshl_b32 s{S_T+2}, s2, 9")
    b(f"  s_add_u32 s{S_T+1}, s{S_T+1}, s{S_T+2}")
    b(f"  s_add_u32 s{S_T+2}, s{S_T+1}, {2*131072}")
    b(f"  s_waitcnt lgkmcnt(2)")
    b(f"  buffer_store_dwordx4 v[32:35], v11, s[{SRD_D}:{SRD_D+3}], s{S_T+1} offen{SF}")
    b(f"  s_waitcnt lgkmcnt(0)")
    b(f"  buffer_store_dwordx4 v[36:39], v11, s[{SRD_D}:{SRD_D+3}], s{S_T+2} offen{SF}")
    stamp(b, "p3 stores issued")
    b(f"  s_and_b32 s{S_T+8}, s2, 15")
    arrive(b, 2, S_T + 8, label="x3")
    srd(b, SRD_T, P_W1, W1B)
    b(f"  s_cmp_lt_u32 s{S_W}, 4")
    b(f"  s_cbranch_scc1 p3_nodma")
    b(f"  s_cmp_eq_u32 s62, 0")
    b(f"  s_cbranch_scc1 p3_nodma")
    for n in range(2): loader_issue(b, V_LO, W1F())
    b.label("p3_nodma")

def gemm_core(b, c, pre, after_setup, after_prologue=None, posts=None):
    NB, NS = c.NB, c.NS
    acc = lambda nb: V_ACC + nb * 16
    VT = V_ACC + NB * 16
    VPR = VT + 32
    c.VT, c.VPR = VT, VPR
    c.vend = VPR + 4 * PR
    tf = lambda q: VT + (q % 8) * 4
    pr = lambda j: VPR + (j % PR) * 4
    FPI = 64
    KPI = FPI // NB
    def tread(q):
        ql = q % FPI
        lslot, within = ql // 16, ql % 16
        ks, nb = within // NB, within % NB
        off = lslot * STAGE + ks * 16 * c.rowb
        b(f"  ds_read_b64_tr_b16 {vr(tf(q),2)}, v{V_T+nb} offset:{off}")
        b(f"  ds_read_b64_tr_b16 {vr(tf(q)+2,2)}, v{V_T+nb} offset:{off+4*c.rowb}")
    def pload(j):
        b(f"  buffer_load_dwordx4 {vr(pr(j),4)}, v{V_P}, s[{SRD_P}:{SRD_P+3}], s{S_POFF} offen offset:{(j%4)*1024}{LF}")
        if j % 4 == 3: b(f"  s_add_u32 s{S_POFF}, s{S_POFF}, 4096")
    def mfma(q):
        nb = q % NB; j = q // NB; a = acc(nb)
        if "m16fake" in OPT:
            o = 8 * (j % 2)
            b(f"  v_mfma_f32_16x16x32_bf16 {vr(a+o,4)}, {vr(tf(q),4)}, {vr(pr(j),4)}, {vr(a+o,4)}")
            b(f"  v_mfma_f32_16x16x32_bf16 {vr(a+o+4,4)}, {vr(pr(j),4)}, {vr(tf(q),4)}, {vr(a+o+4,4)}")
            return
        if c.name == "g1":
            b(f"  v_mfma_f32_32x32x16_bf16 {vr(a,16)}, {vr(tf(q),4)}, {vr(pr(j),4)}, {vr(a,16)}")
        else:
            b(f"  v_mfma_f32_32x32x16_bf16 {vr(a,16)}, {vr(pr(j),4)}, {vr(tf(q),4)}, {vr(a,16)}")
    if "prioc" in OPT: b("  s_setprio 2")
    b(f"  s_mov_b32 s{S_POFF}, 0")
    b(f"  s_mov_b32 s{S_DELTA}, {4*STAGE}")
    b(f"  s_mov_b32 s{S_IT}, {NS//4 - 1}")
    after_setup()
    for j in range(PR - 1): pload(j)
    if after_prologue: after_prologue()
    b("  s_barrier")
    for q in range(DQ): tread(q)
    def body(last):
        for q in range(FPI):
            j = q // NB
            qn = q + DQ
            do_read = not (last and qn >= FPI)
            do_pload = False
            if q % NB == 0:
                rem = KPI - 1 - j
                if (not last) or (j + PR - 1 < KPI):
                    b(f"  s_waitcnt vmcnt({PR-2})")
                    do_pload = True
                else:
                    b(f"  s_waitcnt vmcnt({min(PR-2, rem)})")
            if do_read and qn % 16 == 0:
                b("  s_barrier")
            if do_read and qn == FPI:
                for i in range(NB): b(f"  v_add_u32 v{V_T+i}, s{S_DELTA}, v{V_T+i}")
                b(f"  s_sub_u32 s{S_DELTA}, 0, s{S_DELTA}")
            if q % 2 == 0:
                left = min(DQ - 2, FPI - 2 - q) if last else DQ - 2
                b(f"  s_waitcnt lgkmcnt({2*left})")
            mfma(q)
            if do_pload: pload(j + PR - 1)
            if do_read: tread(qn)
    b.label(f"{pre}_loop")
    body(False)
    b(f"  s_sub_u32 s{S_IT}, s{S_IT}, 1")
    b(f"  s_cmp_lg_u32 s{S_IT}, 0")
    b(f"  s_cbranch_scc1 {pre}_loop")
    if posts is None:
        body(True)
        return
    F = [(q // NB, q % NB) for q in range(16)] + [(4 + r % 12, r // 12) for r in range(48)]
    def tread_f(q):
        j, nb = F[q]
        off = (j // 4) * STAGE + (j % 4) * 16 * c.rowb
        b(f"  ds_read_b64_tr_b16 {vr(tf(q),2)}, v{V_T+nb} offset:{off}")
        b(f"  ds_read_b64_tr_b16 {vr(tf(q)+2,2)}, v{V_T+nb} offset:{off+4*c.rowb}")
    for q in range(FPI):
        j, nb = F[q]
        qn = q + DQ
        first_use = (q < 16 and nb == 0) or (16 <= q < 28)
        if q == 0: b(f"  s_waitcnt vmcnt({PR-2})")
        elif first_use: b(f"  s_waitcnt vmcnt({min(PR-2, KPI - 1 - j)})")
        if q == 9: b("  s_barrier"); b("  s_barrier")
        if q == 13: b("  s_barrier")
        if q % 2 == 0:
            left = min(DQ - 2, FPI - 2 - q)
            b(f"  s_waitcnt lgkmcnt({2*left})")
        a = acc(nb)
        if c.name == "g1":
            b(f"  v_mfma_f32_32x32x16_bf16 {vr(a,16)}, {vr(tf(q),4)}, {vr(pr(j),4)}, {vr(a,16)}")
        else:
            b(f"  v_mfma_f32_32x32x16_bf16 {vr(a,16)}, {vr(pr(j),4)}, {vr(tf(q),4)}, {vr(a,16)}")
        if q == 0: pload(PR - 1)
        if qn < FPI: tread_f(qn)
        if q >= 28:
            blk, r = (q - 16) // 12 - 1, (q - 16) % 12
            fill = posts.get(blk, [])
            if fill and r >= 3:
                n = len(fill); per = -(-n // 9)
                for line in fill[(r - 3) * per:(r - 2) * per]: b(line)

def idle_w1(b):
    srd(b, SRD_PF, P_W1, W1B)
    b(f"  s_and_b32 s51, s50, 7")
    b(f"  s_mul_i32 s51, s51, {256*7168}")
    b(f"  s_lshr_b32 s52, s50, 3")
    b(f"  s_mul_i32 s52, s52, {4*7168}")
    b(f"  s_add_u32 s51, s51, s52")
    b(f"  s_add_u32 s51, s51, {128*7168}")
    b(f"  s_mov_b32 s52, 7")
    b.label("pf_w1b")
    for i in range(4): b(f"  buffer_load_dwordx4 {vr(V_DUMMY,4)}, v29, s[{SRD_PF}:{SRD_PF+3}], s51 offen offset:{1024*i}")
    b(f"  s_add_u32 s51, s51, 4096")
    b(f"  s_waitcnt vmcnt(4)")
    b(f"  s_sub_u32 s52, s52, 1")
    b(f"  s_cmp_lg_u32 s52, 0")
    b(f"  s_cbranch_scc1 pf_w1b")

def idle_w2(b):
    if "idlesc" in OPT:
        srd(b, SRD_PF, P_W2, W1B)
        b(f"  s_mul_i32 s51, s50, {W1B // 256}")
        b(f"  v_lshlrev_b32 v29, 7, v7")
        for i in range(7):
            b(f"  buffer_load_dword v230, v29, s[{SRD_PF}:{SRD_PF+3}], s51 offen")
            b(f"  s_add_u32 s51, s51, 8192")
            if i >= 1: b(f"  s_waitcnt vmcnt(1)")
        b(f"  s_waitcnt vmcnt(0)")
        return
    srd(b, SRD_PF, P_W2, W1B)
    b(f"  s_mul_i32 s51, s50, {W1B // 256}")
    b(f"  s_mov_b32 s52, 14")
    b.label("pf_w2")
    for i in range(4): b(f"  buffer_load_dwordx4 {vr(V_DUMMY,4)}, v29, s[{SRD_PF}:{SRD_PF+3}], s51 offen offset:{1024*i}")
    b(f"  s_add_u32 s51, s51, 4096")
    b(f"  s_waitcnt vmcnt({0 if 'idlepace' in OPT else 4})")
    b(f"  s_sub_u32 s52, s52, 1")
    b(f"  s_cmp_lg_u32 s52, 0")
    b(f"  s_cbranch_scc1 pf_w2")
    b(f"  s_waitcnt vmcnt(0)")

def g1_gelu(b, c, blocks, accof, vaddr):
    K1 = -2.0 * 0.7978845608028654 * 1.4426950408889634
    K2 = K1 * 0.044715
    T = c.VPR
    b(f"  v_mov_b32 v{T}, {hex(f2u(K1))}")
    b(f"  v_mov_b32 v{T+1}, {hex(f2u(K1))}")
    b(f"  v_mov_b32 v{T+2}, {hex(f2u(K2))}")
    b(f"  v_mov_b32 v{T+3}, {hex(f2u(K2))}")
    b(f"  s_nop 7")
    W = T + 8
    for fb in blocks:
        a = accof(fb); t = W; o = W + 16 + 8 * (fb % 2)
        for h in range(0, 16, 2): b(f"  v_pk_mul_f32 {vr(t+h,2)}, {vr(a+h,2)}, {vr(a+h,2)}")
        for h in range(0, 16, 2): b(f"  v_pk_fma_f32 {vr(t+h,2)}, {vr(t+h,2)}, {vr(T+2,2)}, {vr(T,2)}")
        for h in range(0, 16, 2): b(f"  v_pk_mul_f32 {vr(t+h,2)}, {vr(t+h,2)}, {vr(a+h,2)}")
        for r in range(16): b(f"  v_exp_f32 v{t+r}, v{t+r}")
        for h in range(0, 16, 2): b(f"  v_pk_add_f32 {vr(t+h,2)}, {vr(t+h,2)}, 1.0 op_sel_hi:[1,0]")
        for r in range(16): b(f"  v_rcp_f32 v{t+r}, v{t+r}")
        for h in range(0, 16, 2): b(f"  v_pk_mul_f32 {vr(t+h,2)}, {vr(a+h,2)}, {vr(t+h,2)}")
        for i in range(4):
            b(f"  v_cvt_pk_bf16_f32 v{o+2*i}, v{t+4*i}, v{t+4*i+1}")
            b(f"  v_cvt_pk_bf16_f32 v{o+2*i+1}, v{t+4*i+2}, v{t+4*i+3}")
        for ip in range(2):
            oo = o + 4 * ip
            b(f"  s_mov_b32 s{S_TMP+1}, {(2*fb+ip)*1024}")
            b(f"  s_nop 0")
            b(f"  v_permlane32_swap_b32 v{oo}, v{oo+2}")
            b(f"  v_permlane32_swap_b32 v{oo+1}, v{oo+3}")
            b(f"  buffer_store_dwordx4 {vr(oo,4)}, v{vaddr}, s[{SRD_O}:{SRD_O+3}], s{S_TMP+1} offen{SF}")

def gelu_lines(fb, a, CT, t, o, vaddr):
    L = []
    for h in range(0, 16, 2): L.append(f"  v_pk_mul_f32 {vr(t+h,2)}, {vr(a+h,2)}, {vr(a+h,2)}")
    for h in range(0, 16, 2): L.append(f"  v_pk_fma_f32 {vr(t+h,2)}, {vr(t+h,2)}, {vr(CT+2,2)}, {vr(CT,2)}")
    for h in range(0, 16, 2): L.append(f"  v_pk_mul_f32 {vr(t+h,2)}, {vr(t+h,2)}, {vr(a+h,2)}")
    for r in range(16): L.append(f"  v_exp_f32 v{t+r}, v{t+r}")
    for h in range(0, 16, 2): L.append(f"  v_pk_add_f32 {vr(t+h,2)}, {vr(t+h,2)}, 1.0 op_sel_hi:[1,0]")
    for r in range(16): L.append(f"  v_rcp_f32 v{t+r}, v{t+r}")
    for h in range(0, 16, 2): L.append(f"  v_pk_mul_f32 {vr(t+h,2)}, {vr(a+h,2)}, {vr(t+h,2)}")
    for i in range(4):
        L.append(f"  v_cvt_pk_bf16_f32 v{o+2*i}, v{t+4*i}, v{t+4*i+1}")
        L.append(f"  v_cvt_pk_bf16_f32 v{o+2*i+1}, v{t+4*i+2}, v{t+4*i+3}")
    for ip in range(2):
        oo = o + 4 * ip
        L.append(f"  s_mov_b32 s{S_TMP+1}, {(2*fb+ip)*1024}")
        L.append(f"  s_nop 1")
        L.append(f"  v_permlane32_swap_b32 v{oo}, v{oo+2}")
        L.append(f"  v_permlane32_swap_b32 v{oo+1}, v{oo+3}")
        L.append(f"  buffer_store_dwordx4 {vr(oo,4)}, v{vaddr}, s[{SRD_O}:{SRD_O+3}], s{S_TMP+1} offen{SF}")
    return L

def g1(b):
    c = g1_cfg()
    b(f"  s_cmp_eq_u32 s62, 0")
    b(f"  s_cbranch_scc1 g1_inactive")
    srd(b, SRD_P, P_WS, 4 << 20, WS_LN2)
    srd(b, SRD_T, P_W1, W1B)
    srd(b, SRD_O, P_WS, U_BYTES, WS_U)
    srd(b, SRD_X, P_B1, 3584 * 2)
    b(f"  s_cmp_ge_u32 s{S_W}, 4")
    b(f"  s_cbranch_scc1 g1_loader")
    lane_geom(b)
    b(f"  s_lshl_b32 s{S_TMP}, s61, 2")
    b(f"  s_add_u32 s{S_TMP}, s{S_TMP}, s{S_W}            ; dblk")
    b(f"  s_lshl_b32 s{S_TMP+2}, s{S_TMP}, 17")
    b(f"  v_lshlrev_b32 v10, 4, v7")
    b(f"  v_add_u32 v{V_P}, s{S_TMP+2}, v10")
    b(f"  s_lshl_b32 s{S_TMP+1}, s60, 8       ; f0*2")
    b(f"  v_lshlrev_b32 v11, 3, v9")
    b(f"  v_add_u32 v11, s{S_TMP+1}, v11")
    BV = 192
    for fb in range(4):
        for i in range(4):
            b(f"  buffer_load_dwordx2 {vr(BV+2*(4*fb+i),2)}, v11, s[{SRD_X}:{SRD_X+3}], 0 offen offset:{64*fb+16*i}")
    b(f"  v_lshl_add_u32 v20, v9, 3, v18")
    b(f"  v_lshlrev_b32 v20, 8, v20")
    b(f"  v_lshl_add_u32 v20, v18, 6, v20")
    b(f"  v_lshl_add_u32 v20, v19, 5, v20")
    b(f"  v_lshl_add_u32 v{V_T}, v22, 3, v20")
    for fb in range(1, 4):
        b(f"  v_xor_b32 v{V_T+fb}, {64*fb}, v{V_T}")
    b(f"  s_mul_i32 s{S_TMP+2}, s{S_TMP}, 229376")
    b(f"  s_lshl_b32 s{S_TMP+1}, s60, 13")
    b(f"  s_add_u32 s{S_TMP+1}, s{S_TMP+1}, s{S_TMP+2}")
    b(f"  v_add_u32 v28, s{S_TMP+1}, v10")
    b(f"  s_waitcnt vmcnt(0)")
    for fb in range(4):
        for i in range(4):
            bv = BV + 2 * (4 * fb + i); a = V_ACC + fb * 16 + 4 * i
            b(f"  v_lshlrev_b32 v{a}, 16, v{bv}")
            b(f"  v_and_b32 v{a+1}, 0xffff0000, v{bv}")
            b(f"  v_lshlrev_b32 v{a+2}, 16, v{bv+1}")
            b(f"  v_and_b32 v{a+3}, 0xffff0000, v{bv+1}")
    def w3():
        wait(b, 2, 16, "x3c")
        stamp(b, "x3 released")
        stamp(b, "c:g1 start")
    SKEW = "skew" in OPT
    if SKEW:
        K1 = -2.0 * 0.7978845608028654 * 1.4426950408889634
        K2 = K1 * 0.044715
        CT, GT, GO = 192, 196, 212
        for i, kv in enumerate((K1, K1, K2, K2)): b(f"  v_mov_b32 v{CT+i}, {hex(f2u(kv))}")
        posts = {fb: gelu_lines(fb, V_ACC + 16 * fb, CT, GT, GO, 28) for fb in range(3)}
        gemm_core(b, c, "g1", w3, None, posts)
    else:
        gemm_core(b, c, "g1", w3)
    stamp(b, "c:g1 end")
    stamp(b, "g1 main done")
    E8 = "epi8" in OPT
    XO = 4 * STAGE
    if E8:
        b(f"  s_lshl_b32 s{S_TMP+1}, s{S_W}, 13")
        b(f"  s_add_u32 s{S_TMP+1}, s{S_TMP+1}, {XO}")
        b(f"  v_add_u32 v12, s{S_TMP+1}, v10")
        b(f"  s_nop 9")
        for k in range(8): b(f"  ds_write_b128 v12, {vr(V_ACC+32+4*k,4)} offset:{1024*k}")
        b(f"  s_waitcnt lgkmcnt(0)")
        b(f"  s_barrier")
    if SKEW:
        b(f"  s_nop 9")
        for line in gelu_lines(3, V_ACC + 48, CT, GT, GO, 28): b(line)
    else:
        g1_gelu(b, c, range(2) if E8 else range(4), lambda fb: V_ACC + fb * 16, 28)
    stamp(b, "g1 stores issued")
    b(f"  s_waitcnt vmcnt(0)")
    b(f"  s_branch g1_join")
    b.label("g1_loader")
    b(f"  s_sub_u32 s50, s{S_W}, 4")
    b(f"  s_lshl_b32 s49, s50, 10")
    b(f"  s_add_u32 s{S_N+1}, s49, {R*STAGE}")
    b(f"  s_barrier                      ; matches the barrier inside wait(x3)")
    loader_loop(b, c.NS, "g1", W1F())
    stamp(b, "g1 main done")
    g2_prologue_loader(b)
    if "epi8" in OPT:
        b(f"  s_sub_u32 s{S_TMP}, s{S_W}, 4")
        b(f"  s_lshl_b32 s{S_TMP+1}, s{S_TMP}, 13")
        b(f"  s_add_u32 s{S_TMP+1}, s{S_TMP+1}, {4*STAGE}")
        b(f"  v_lshlrev_b32 v10, 4, v7")
        b(f"  v_add_u32 v12, s{S_TMP+1}, v10")
        b(f"  s_lshl_b32 s{S_TMP+1}, s61, 2")
        b(f"  s_add_u32 s{S_TMP}, s{S_TMP}, s{S_TMP+1}      ; dblk")
        b(f"  s_mul_i32 s{S_TMP+2}, s{S_TMP}, 229376")
        b(f"  s_lshl_b32 s{S_TMP+1}, s60, 13")
        b(f"  s_add_u32 s{S_TMP+1}, s{S_TMP+1}, s{S_TMP+2}")
        b(f"  v_add_u32 v28, s{S_TMP+1}, v10")
        b(f"  s_barrier")
        for k in range(8): b(f"  ds_read_b128 {vr(V_ACC+4*k,4)}, v12 offset:{1024*k}")
        b(f"  s_waitcnt lgkmcnt(0)")
        g1_gelu(b, c, range(2, 4), lambda fb: V_ACC + (fb - 2) * 16, 28)
        b(f"  s_waitcnt vmcnt(0)")
    stamp(b, "g1 stores issued")
    b.label("g1_join")
    if SK():
        b(f"  s_cmp_ge_u32 s60, 14")
        b(f"  s_cselect_b32 s18, 1, 0")
        b(f"  s_lshl_b32 s10, s61, 1")
        b(f"  s_add_u32 s18, s18, s10")
        arrive(b, 3, 18, label="x4", drained=True)
    else:
        arrive(b, 3, 61, label="x4", drained=True)
    b(f"  s_branch g2_start")
    b.label("g1_inactive")
    if "nopf" not in OPT:
        b(f"  s_sub_u32 s50, s2, 224")
        b(f"  s_lshl_b32 s50, s50, 3")
        b(f"  s_add_u32 s50, s50, s{S_W}")
        b(f"  v_lshlrev_b32 v29, 4, v7")
        if "noidle" not in OPT: idle_w2(b)
    b(f"  s_cmp_lt_u32 s{S_W}, 4")
    b(f"  s_cbranch_scc1 g2_start_inactive")
    g2_prologue_loader(b)
    b.label("g2_start_inactive")
    return c

def g2_prologue_loader(b):
    g2_ids(b)
    srd(b, SRD_T, P_W2, W1B)
    g2_loader_addr(b)
    loader_init(b, (64 if SK() else 128) * 4096)
    for n in range(2): loader_issue(b, V_LO, W2F())

def g2_sk(b):
    c = g1_cfg(); c.name = "g2"; c.NS = 28
    b.label("g2_start")
    g2_ids(b)
    srd(b, SRD_P, P_WS, U_BYTES, WS_U)
    srd(b, SRD_O, P_OUT, 4 << 20)
    srd(b, SRD_X, P_B2, 2048 * 2)
    srd(b, SRD_Y, P_WS, 4 << 20, WS_H)
    b(f"  s_cmp_ge_u32 s{S_W}, 4")
    b(f"  s_cbranch_scc1 g2_loader")
    lane_geom(b)
    b(f"  s_lshl_b32 s{S_TMP}, s{S_TILE_A}, 2")
    b(f"  s_add_u32 s{S_TMP}, s{S_TMP}, s{S_W}        ; dblk")
    b(f"  s_mul_i32 s{S_TMP+2}, s{S_TMP}, 229376")
    b(f"  s_mul_i32 s{S_TMP+3}, s19, {112*1024}       ; k half")
    b(f"  s_add_u32 s{S_TMP+2}, s{S_TMP+2}, s{S_TMP+3}")
    b(f"  v_lshlrev_b32 v10, 4, v7")
    b(f"  v_add_u32 v{V_P}, s{S_TMP+2}, v10")
    b(f"  s_lshl_b32 s{S_TMP+1}, s{S_TILE_B}, 7")
    b(f"  s_lshl_b32 s{S_TMP+3}, s19, 6")
    b(f"  s_add_u32 s{S_TMP+1}, s{S_TMP+1}, s{S_TMP+3}")
    b(f"  v_add_u32 v11, s{S_TMP+1}, v8              ; s0 + s'")
    b(f"  v_lshlrev_b32 v16, 1, v11")
    for sb in range(2):
        b(f"  buffer_load_ushort v{12+sb}, v16, s[{SRD_X}:{SRD_X+3}], 0 offen offset:{64*sb}")
    b(f"  v_lshlrev_b32 v17, 11, v11")
    b(f"  v_lshl_add_u32 v17, v9, 5, v17")
    b(f"  s_lshl_b32 s{S_TMP+2}, s{S_TMP}, 6")
    b(f"  v_add_u32 v28, s{S_TMP+2}, v17")
    HV = 192
    b(f"  v_lshl_add_u32 v20, v9, 3, v18")
    b(f"  v_lshlrev_b32 v20, 8, v20")
    b(f"  v_lshl_add_u32 v20, v18, 6, v20")
    b(f"  v_lshl_add_u32 v20, v19, 5, v20")
    b(f"  v_lshl_add_u32 v{V_T}, v22, 3, v20")
    b(f"  s_cmp_eq_u32 s19, 0")
    b(f"  s_cselect_b32 s{S_TMP+3}, 128, 0")
    b(f"  v_xor_b32 v{V_T}, s{S_TMP+3}, v{V_T}")
    for fb in range(1, 4):
        b(f"  v_xor_b32 v{V_T+fb}, {64*fb}, v{V_T}")
    b(f"  s_lshl_b32 s{S_TMP+1}, s{S_W}, 12")
    b(f"  s_lshl_b32 s{S_TMP+2}, s2, 14")
    b(f"  s_add_u32 s{S_TMP+2}, s{S_TMP+2}, s{S_TMP+1}")
    b(f"  v_add_u32 v29, s{S_TMP+2}, v10")
    b(f"  s_xor_b32 s{S_TMP+2}, s2, 1")
    b(f"  s_lshl_b32 s{S_TMP+2}, s{S_TMP+2}, 14")
    b(f"  s_add_u32 s{S_TMP+2}, s{S_TMP+2}, s{S_TMP+1}")
    b(f"  v_add_u32 v30, s{S_TMP+2}, v10")
    for i in range(64): b(f"  v_mov_b32 v{V_ACC+i}, 0")
    def w4():
        b(f"  s_lshl_b32 s18, s{S_TILE_A}, 1")
        b(f"  s_add_u32 s18, s18, s19")
        wait(b, 3, 14, "x4c", single_sreg=18)
        stamp(b, "x4 released")
        stamp(b, "c:g2 start")
    def hloads():
        for sb in range(2):
            b(f"  s_mov_b32 s{S_TMP+1}, {sb*65536}")
            b(f"  buffer_load_dwordx4 {vr(HV+8*sb,4)}, v28, s[{SRD_Y}:{SRD_Y+3}], s{S_TMP+1} offen{LF}")
            b(f"  buffer_load_dwordx4 {vr(HV+8*sb+4,4)}, v28, s[{SRD_Y}:{SRD_Y+3}], s{S_TMP+1} offen offset:16{LF}")
    srd_later = True
    def send_lines(k):
        T0 = 208 + 8 * k; a = V_ACC + 16 * k
        L = [f"  v_cvt_pk_bf16_f32 v{T0+i}, v{a+2*i}, v{a+2*i+1}" for i in range(8)]
        L += [f"  v_min_u32 v{T0+i}, 0xfffffffe, v{T0+i}" for i in range(8)]
        L += [f"  buffer_store_dwordx4 {vr(T0+4*p,4)}, v30, s[{SRD_X}:{SRD_X+3}], 0 offen offset:{(2*k+p)*1024}{SF}" for p in range(2)]
        return L
    def hloads2():
        hloads()
    if "skew" in OPT:
        def w4x():
            w4()
        def hl():
            hloads()
        b(f"  s_waitcnt vmcnt(0)")
        srd(b, SRD_X, P_WS, 4 << 20, WS_XCH)
        gemm_core(b, c, "g2", w4, hloads, {0: send_lines(0), 1: send_lines(1)})
    else:
        gemm_core(b, c, "g2", w4, hloads)
    stamp(b, "c:g2 end")
    stamp(b, "g2 main done")
    T = c.VT
    if "skew" not in OPT:
        srd(b, SRD_X, P_WS, 4 << 20, WS_XCH)
        b(f"  s_nop 9")
        for k in range(2):
            for line in send_lines(k): b(line)
    KEEP = V_ACC + 32
    RX = c.VPR
    b(f"  s_mov_b32 s11, 200000")
    b.label("g2x_poll")
    for k in range(4):
        b(f"  buffer_load_dwordx4 {vr(RX+4*k,4)}, v29, s[{SRD_X}:{SRD_X+3}], 0 offen offset:{k*1024} sc1")
    b(f"  s_waitcnt vmcnt(0)")
    sentinel_check(b, RX, "g2x", n=16)
    stamp(b, "g2 x landed")
    b(f"  s_mov_b32 s{S_TMP}, 0xffff0000")
    for blk in range(2):
        for i in range(8):
            a = KEEP + blk * 16 + 2 * i; r = RX + 8 * blk + i
            b(f"  v_lshlrev_b32 v16, 16, v{r}")
            b(f"  v_and_b32 v17, s{S_TMP}, v{r}")
            b(f"  v_add_f32 v{a}, v{a}, v16")
            b(f"  v_add_f32 v{a+1}, v{a+1}, v17")
    for sb in range(2):
        b(f"  v_lshlrev_b32 v{12+sb}, 16, v{12+sb}")
    for sb in range(2):
        for half in range(2):
            o = T + 4 * ((sb * 2 + half) % 2)
            for dd in range(4):
                a = KEEP + sb * 16 + half * 8 + 2 * dd
                hv = HV + 8 * sb + 4 * half + dd
                t0 = T + 8 + 4 * dd
                b(f"  v_lshlrev_b32 v{t0}, 16, v{hv}")
                b(f"  v_and_b32 v{t0+1}, s{S_TMP}, v{hv}")
                b(f"  v_pk_add_f32 {vr(t0,2)}, {vr(t0,2)}, {vr(a,2)}")
                b(f"  v_add_f32 v{t0}, v{t0}, v{12+sb}")
                b(f"  v_add_f32 v{t0+1}, v{t0+1}, v{12+sb}")
                b(f"  v_cvt_pk_bf16_f32 v{o+dd}, v{t0}, v{t0+1}")
            b(f"  s_mov_b32 s{S_TMP+1}, {sb*65536}")
            b(f"  buffer_store_dwordx4 {vr(o,4)}, v28, s[{SRD_O}:{SRD_O+3}], s{S_TMP+1} offen offset:{16*half}{OF()}")
    stamp(b, "g2 stores issued")
    b(f"  s_branch g2_done")
    b.label("g2_loader")
    b(f"  s_barrier                      ; matches the barrier inside wait(x4)")
    loader_loop(b, c.NS, "g2", W2F())
    b.label("g2_done")

def g2(b):
    if SK(): return g2_sk(b)
    c = g2_cfg()
    b.label("g2_start")
    g2_ids(b)
    srd(b, SRD_P, P_WS, U_BYTES, WS_U)
    srd(b, SRD_O, P_OUT, 4 << 20)
    srd(b, SRD_X, P_B2, 2048 * 2)
    srd(b, SRD_Y, P_WS, 4 << 20, WS_H)
    b(f"  s_cmp_ge_u32 s{S_W}, 4")
    b(f"  s_cbranch_scc1 g2_loader")
    lane_geom(b)
    b(f"  s_lshl_b32 s{S_TMP}, s{S_TILE_A}, 2")
    b(f"  s_add_u32 s{S_TMP}, s{S_TMP}, s{S_W}        ; dblk")
    b(f"  s_mul_i32 s{S_TMP+2}, s{S_TMP}, 229376")
    b(f"  v_lshlrev_b32 v10, 4, v7")
    b(f"  v_add_u32 v{V_P}, s{S_TMP+2}, v10")
    b(f"  s_lshl_b32 s{S_TMP+1}, s{S_TILE_B}, 6       ; s0")
    b(f"  v_add_u32 v11, s{S_TMP+1}, v8              ; s0 + s'")
    b(f"  v_lshlrev_b32 v16, 1, v11")
    for sb in range(2):
        b(f"  buffer_load_ushort v{12+sb}, v16, s[{SRD_X}:{SRD_X+3}], 0 offen offset:{64*sb}")
    b(f"  v_lshlrev_b32 v17, 11, v11")
    b(f"  v_lshl_add_u32 v17, v9, 5, v17")
    b(f"  s_lshl_b32 s{S_TMP+2}, s{S_TMP}, 6")
    b(f"  v_add_u32 v28, s{S_TMP+2}, v17")
    HV = 160
    b(f"  v_lshl_add_u32 v20, v9, 3, v18            ; row")
    b(f"  v_bfe_u32 v21, v18, 1, 1")
    b(f"  v_lshlrev_b32 v20, 7, v20")
    b(f"  v_lshl_add_u32 v20, v21, 6, v20")
    b(f"  v_lshl_add_u32 v20, v19, 5, v20")
    b(f"  v_lshl_add_u32 v{V_T}, v22, 3, v20")
    b(f"  v_xor_b32 v{V_T+1}, 64, v{V_T}")
    for i in range(32): b(f"  v_mov_b32 v{V_ACC+i}, 0")
    def w4():
        wait(b, 3, 28, "x4c", single_sreg=S_TILE_A)
        stamp(b, "x4 released")
        stamp(b, "c:g2 start")
    def hloads():
        for sb in range(2):
            b(f"  s_mov_b32 s{S_TMP+1}, {sb*65536}")
            b(f"  buffer_load_dwordx4 {vr(HV+8*sb,4)}, v28, s[{SRD_Y}:{SRD_Y+3}], s{S_TMP+1} offen{LF}")
            b(f"  buffer_load_dwordx4 {vr(HV+8*sb+4,4)}, v28, s[{SRD_Y}:{SRD_Y+3}], s{S_TMP+1} offen offset:16{LF}")
    gemm_core(b, c, "g2", w4, hloads)
    stamp(b, "c:g2 end")
    stamp(b, "g2 main done")
    T = c.VT
    b(f"  s_mov_b32 s{S_TMP}, 0xffff0000")
    for sb in range(2):
        b(f"  v_lshlrev_b32 v{12+sb}, 16, v{12+sb}")
    b(f"  s_nop 9")
    for sb in range(2):
        for half in range(2):
            o = T + 4 * ((sb * 2 + half) % 2)
            for dd in range(4):
                a = V_ACC + sb * 16 + half * 8 + 2 * dd
                hv = HV + 8 * sb + 4 * half + dd
                t0 = T + 8 + 4 * dd
                b(f"  v_cvt_pk_bf16_f32 v{t0}, v{a}, v{a+1}")
                b(f"  v_and_b32 v{t0+1}, s{S_TMP}, v{t0}")
                b(f"  v_lshlrev_b32 v{t0}, 16, v{t0}")
                b(f"  v_add_f32 v{t0}, v{t0}, v{12+sb}")
                b(f"  v_add_f32 v{t0+1}, v{t0+1}, v{12+sb}")
                b(f"  v_cvt_pk_bf16_f32 v{t0}, v{t0}, v{t0+1}")
                b(f"  v_and_b32 v{t0+1}, s{S_TMP}, v{t0}")
                b(f"  v_lshlrev_b32 v{t0}, 16, v{t0}")
                b(f"  v_lshlrev_b32 v{t0+2}, 16, v{hv}")
                b(f"  v_and_b32 v{t0+3}, s{S_TMP}, v{hv}")
                b(f"  v_add_f32 v{t0}, v{t0}, v{t0+2}")
                b(f"  v_add_f32 v{t0+1}, v{t0+1}, v{t0+3}")
                b(f"  v_cvt_pk_bf16_f32 v{o+dd}, v{t0}, v{t0+1}")
            b(f"  s_mov_b32 s{S_TMP+1}, {sb*65536}")
            b(f"  buffer_store_dwordx4 {vr(o,4)}, v28, s[{SRD_O}:{SRD_O+3}], s{S_TMP+1} offen offset:{16*half}")
    stamp(b, "g2 stores issued")
    b(f"  s_branch g2_done")
    b.label("g2_loader")
    b(f"  s_barrier                      ; matches the barrier inside wait(x4)")
    loader_loop(b, c.NS, "g2", W2F())
    b.label("g2_done")

def build():
    NAME = "sequential_preLN__spectral_gfnet__mixer_token_mlp__prompt"
    hdr = open(f"cdna_kernels/{NAME}.s.ref").read().split("; Override launch")[0]
    K = NAME + "_kernel"
    b = B()
    b(hdr.rstrip("\n"))
    b(f"; @launch grid=(256,1,1) block=(512,1,1) lds={LDS_TOTAL}")
    b('.amdgcn_target "amdgcn-amd-amdhsa--gfx950"\n.text')
    b(f".globl {K}\n.p2align 8\n.type {K},@function\n{K}:")
    b(f"  s_cmp_ge_u32 s2, 256\n  s_cbranch_scc1 k_exit")
    if "stamp" in OPT: b("  v_mov_b32 v231, 0")
    stamp(b, "entry")
    b(f"  s_load_dwordx4 s[{P_X}:{P_X+3}], s[0:1], 0        ; x, w_r")
    b(f"  s_load_dwordx2 s[{P_WI}:{P_WI+1}], s[0:1], 16")
    b(f"  s_load_dwordx2 s[{P_W1}:{P_W1+1}], s[0:1], 32")
    b(f"  s_load_dwordx4 s[{P_B1}:{P_B1+3}], s[0:1], 40     ; b1, w2")
    b(f"  s_load_dwordx4 s[{P_B2}:{P_B2+3}], s[0:1], 56     ; b2, out")
    b(f"  s_load_dwordx4 s[{P_DBG}:{P_DBG+3}], s[0:1], 72")
    b(f"  v_lshrrev_b32 v6, 6, v0")
    b(f"  v_and_b32 v7, 63, v0        ; lane")
    b(f"  v_readfirstlane_b32 s{S_W}, v6")
    b(f"  v_and_b32 v8, 15, v7          ; c")
    b(f"  v_lshrrev_b32 v9, 4, v7       ; g")
    b(f"  s_waitcnt lgkmcnt(0)")
    srd(b, SRD_CNT, P_WS, 65536, WS_CNT)
    p1(b)
    p2_setup(b)
    wait(b, 0, 16, "x1c")
    stamp(b, "x1 released")
    p2_main(b)
    p3_setup(b)
    if SENT(): b("  s_barrier")
    else: wait(b, 1, 16, "x2c")
    stamp(b, "x2 released")
    p3_main(b)
    g1(b)
    g2(b)
    b(f"  s_waitcnt vmcnt(0)")
    stamp(b, "end")
    stamp_flush(b)
    b("k_exit:\n  s_endpgm")
    b(kd(K, 240, sgpr=102))
    return b.text()

if __name__ == "__main__":
    out = sys.argv[1]
    OPT.update(sys.argv[2:])
    for o in sys.argv[2:]:
        if o.startswith("pfn="): PFN[:] = [int(c) for c in o[4:].split(",")]
    gemm.OPT.update(sys.argv[2:])
    t = build()
    open(out, "w").write(t)
    rep = check_text(t)
    print("\n".join(rep) if rep else "no hazards found", "| stamps:", nstamp[0])
```

```python
import sys
from asmlib import *
import gemm, fft
from gemm import (srd, f2u, WS_X1, WS_X2, WS_H, WS_LN2, WS_U, U_BYTES, S_W, R, STAGE, PR, DQ,
                  V_P, V_T, V_ACC, S_POFF, S_IT, S_DELTA, SRD_P, SRD_T, SRD_O, SRD_X, SRD_Y, S_TILE_A, S_TILE_B, S_TMP,
                  g1_cfg, g2_cfg, lane_geom)
from fft import sincos, wave_reduce, ln_finish, layernorm16, cmul_pk, gmat, MF32, MF16

OPT = set()
N7 = [0]
WPN = [0]
PFN = [0, 4, 0, 4]
WS_CNT = 30 << 20
WS_STAMP = 31 << 20
WS_WP = 32 << 20
WS_XCH = 24 << 20
W1B = 2048 * 3584 * 2
WB = 2048 * 1026

P_X, P_WR, P_WI, P_W1, P_B1, P_W2, P_B2, P_OUT, P_DBG, P_WS = 64, 66, 68, 70, 72, 74, 76, 78, 80, 82
SRD_CNT = 12
S_T = 46
SRD_A, SRD_B, SRD_C, SRD_D = 24, 28, 32, 36
SRD_PF = 56
S_STAMP = 84
SF = " sc1"
LF = ""

L1_M1, L1_M2, L1_TW, L1_EX = 0, 4096, 8192, 16384
L2_F = 32768; L2_X = L2_F + 2048; L2_W = L2_X + 16 * 1040
L3_M3 = 98304; L3_M4 = L3_M3 + 4096; L3_TW = L3_M3 + 8192; L3_EX = L3_M3 + 16384
L3_LN = L3_EX + 16384; L3_RS = 2624
LDS_TOTAL = L3_LN + 8 * L3_RS
assert LDS_TOTAL <= 163840

STAMPS = ["entry", "p1 x landed", "p1 stores issued", "p1 arrived", "x1 released", "p2 x landed", "p2 stores issued",
          "x2 released", "p3 x2 landed", "p3 stores issued", "x3 released", "g1 main done", "g1 stores issued", "x4 released",
          "g2 main done", "g2 stores issued", "end", "x1 drained", "x2 drained", "x3 drained", "x4 drained", "p1 tables done", "p1 ln done", "p1 fft done", "p3 ifft done", "p3 ln done", "c:g1 start", "c:g1 end", "c:g2 start", "c:g2 end", "g2 x landed", "p2 w landed"]
nstamp = [len(STAMPS)]
SENT = lambda: "bar" not in OPT
SK = lambda: "nosk" not in OPT
W1F = lambda: " nt" if "ntw1" in OPT else ""
W2F = lambda: " nt" if "ntw2" in OPT else ""
XF = lambda: " nt" if ("ntx" in OPT or "ntx1" in OPT) else ""
OF = lambda: " sc1" if "outsc1" in OPT else (" nt" if "outnt" in OPT else "")
WF = lambda: " nt" if ("ntx" in OPT or "ntw" in OPT) else ""
L_XS = 69632
def stamp(b, name):
    if "stamp" not in OPT: return
    i = STAMPS.index(name)
    op = "s_memtime" if name.startswith("c:") else "s_memrealtime"
    b(f"  {op} s[{S_STAMP}:{S_STAMP+1}]   ; stamp {i}: {name}")
    b(f"  s_waitcnt lgkmcnt(0)")
    b(f"  v_writelane_b32 v231, s{S_STAMP}, {i}")

def stamp_flush(b):
    if "stamp" not in OPT: return
    if "dbgmax" in OPT:
        SEL = [1, 23, 2, 17, 3, 4, 5, 6, 18, 7, 8, 9, 19, 10]
        srd(b, 24, P_DBG, 256)
        b(f"  v_readlane_b32 s46, v231, 0")
        b(f"  s_sub_u32 s47, 0, s46")
        b(f"  v_mov_b32 v3, 0")
        b(f"  v_writelane_b32 v3, s47, 0")
        b(f"  v_writelane_b32 v3, s46, 15")
        for i, st in enumerate(SEL):
            b(f"  v_readlane_b32 s46, v231, {st}")
            b(f"  s_nop 3")
            b(f"  v_writelane_b32 v3, s46, {i+1}")
        b(f"  v_lshlrev_b32 v2, 2, v7")
        b(f"  s_mov_b64 s[48:49], exec")
        b(f"  s_mov_b64 exec, 0xffff")
        b(f"  buffer_atomic_umax v3, v2, s[24:27], 0 offen sc1")
        b(f"  s_mov_b64 exec, s[48:49]")
        return
    if "dbgtime" in OPT:
        b(f"  s_cmp_lg_u32 s2, 100")
        b(f"  s_cbranch_scc1 dbg_skip")
        b(f"  s_cmp_lg_u32 s{S_W}, 0")
        b(f"  s_cbranch_scc1 dbg_skip")
        srd(b, 24, P_DBG, 256)
        b(f"  v_readlane_b32 s46, v231, 0")
        b(f"  s_nop 1")
        b(f"  v_subrev_u32 v3, s46, v231")
        b(f"  v_lshlrev_b32 v2, 2, v7")
        b(f"  v_subrev_u32 v2, 4, v2")
        b(f"  s_mov_b64 s[48:49], exec")
        b(f"  s_mov_b64 exec, 0x1fffe")
        b(f"  buffer_store_dword v3, v2, s[24:27], 0 offen")
        b(f"  s_mov_b64 exec, s[48:49]")
        b.label("dbg_skip")
        return
    srd(b, 24, P_WS, 1 << 20, WS_STAMP)
    b(f"  s_lshl_b32 s46, s2, 3")
    b(f"  s_add_u32 s46, s46, s{S_W}")
    b(f"  s_lshl_b32 s46, s46, 7            ; (wg*8+wave)*128")
    b(f"  v_lshlrev_b32 v2, 2, v7")
    b(f"  s_mov_b64 s[48:49], exec")
    b(f"  s_mov_b64 exec, 0xffffffff")
    b(f"  buffer_store_dword v231, v2, s[24:27], s46 offen")
    b(f"  s_mov_b64 exec, s[48:49]")

def arrive(b, bar, shard_sreg, first=False, label="", drained=False):
    if not drained: b(f"  s_waitcnt vmcnt(0)")
    stamp(b, f"x{bar+1} drained")
    b(f"  s_barrier")
    b(f"  s_cmp_lg_u32 s{S_W}, 0")
    b(f"  s_cbranch_scc1 {label}_arr_skip")
    if first:
        b(f"  s_mov_b32 s11, 100000")
        b.label(f"{label}_rdy")
        b(f"  v_cmp_ne_u32 vcc, 0, v27")
        b(f"  s_nop 1")
        b(f"  s_cmp_eq_u64 vcc, exec")
        b(f"  s_cbranch_scc1 {label}_rdy_ok")
        b(f"  buffer_load_dword v27, v26, s[{SRD_PF}:{SRD_PF+3}], 0 offen sc1")
        b(f"  s_waitcnt vmcnt(0)")
        b(f"  s_sub_u32 s11, s11, 1")
        b(f"  s_cmp_lg_u32 s11, 0")
        b(f"  s_cbranch_scc1 {label}_rdy")
        b.label(f"{label}_rdy_ok")
    b(f"  s_lshl_b32 s10, s{shard_sreg}, 8")
    b(f"  s_add_u32 s10, s10, {bar*4096}")
    b(f"  v_mov_b32 v228, s10")
    b(f"  v_mov_b32 v229, 1")
    b(f"  s_mov_b64 s[16:17], exec")
    b(f"  s_mov_b64 exec, 1")
    b(f"  buffer_atomic_add v229, v228, s[{SRD_CNT}:{SRD_CNT+3}], 0 offen sc1")
    b(f"  s_mov_b64 exec, s[16:17]")
    b.label(f"{label}_arr_skip")

def wait(b, bar, target, label, single_sreg=None):
    b(f"  s_cmp_lg_u32 s{S_W}, 0")
    b(f"  s_cbranch_scc1 {label}_w_skip")
    if single_sreg is None:
        b(f"  v_and_b32 v228, 15, v7")
        b(f"  v_lshlrev_b32 v228, 8, v228")
        b(f"  v_add_u32 v228, {bar*4096}, v228")
    else:
        b(f"  s_lshl_b32 s10, s{single_sreg}, 8")
        b(f"  s_add_u32 s10, s10, {bar*4096}")
        b(f"  v_mov_b32 v228, s10")
    b(f"  s_mov_b32 s11, 200000")
    b.label(f"{label}_poll")
    b(f"  buffer_load_dword v229, v228, s[{SRD_CNT}:{SRD_CNT+3}], 0 offen sc1")
    b(f"  s_waitcnt vmcnt(0)")
    b(f"  v_cmp_le_u32 vcc, {target}, v229")
    b(f"  s_nop 1")
    b(f"  s_cmp_eq_u64 vcc, exec")
    b(f"  s_cbranch_scc1 {label}_w_skip")
    b(f"  s_sub_u32 s11, s11, 1")
    b(f"  s_cmp_lg_u32 s11, 0")
    b(f"  s_cbranch_scc1 {label}_poll")
    b.label(f"{label}_w_skip")
    b(f"  s_barrier")

def prefetch(b, ptr_pair, nbytes, start, length, who_scale, who_sreg, vaddr, vdst, stmp, paced=False):
    chunk = -(-length // who_scale)
    n_per_wave = -(-chunk // (512 * 128))
    stride = -(-chunk // (512 * n_per_wave))
    stride = (stride + 3) // 4 * 4
    per_instr = 64 * stride
    srd(b, SRD_PF, ptr_pair, nbytes)
    b(f"  s_mul_i32 s{stmp}, s{who_sreg}, {chunk}")
    b(f"  s_mul_i32 s{stmp+1}, s{S_W}, {n_per_wave*per_instr}")
    b(f"  s_add_u32 s{stmp}, s{stmp}, s{stmp+1}")
    if start: b(f"  s_add_u32 s{stmp}, s{stmp}, {start}")
    b(f"  v_mul_u32_u24 v{vaddr}, {stride}, v7")
    for i in range(n_per_wave):
        b(f"  buffer_load_dword v{vdst}, v{vaddr}, s[{SRD_PF}:{SRD_PF+3}], s{stmp} offen")
        if i + 1 < n_per_wave: b(f"  s_add_u32 s{stmp}, s{stmp}, {per_instr}")
        if paced: b(f"  s_waitcnt vmcnt(0)")
    return n_per_wave

V_DUMMY = 232
def pf_wide(b, ptr_pair, nbytes, s_base, n, wave_lo, wave_hi, label):
    b(f"  s_cmp_lt_u32 s{S_W}, {wave_lo}")
    b(f"  s_cbranch_scc1 {label}")
    if wave_hi < 8:
        b(f"  s_cmp_ge_u32 s{S_W}, {wave_hi}")
        b(f"  s_cbranch_scc1 {label}")
    srd(b, SRD_PF, ptr_pair, nbytes)
    b(f"  s_sub_u32 s{S_T+9}, s{S_W}, {wave_lo}")
    b(f"  s_mul_i32 s{S_T+9}, s{S_T+9}, {n*1024}")
    b(f"  s_add_u32 s{S_T+9}, s{S_T+9}, s{s_base}")
    b(f"  v_lshlrev_b32 v29, 4, v7")
    for i in range(n):
        if i and i % 4 == 0: b(f"  s_add_u32 s{S_T+9}, s{S_T+9}, 4096")
        b(f"  buffer_load_dwordx4 {vr(V_DUMMY,4)}, v29, s[{SRD_PF}:{SRD_PF+3}], s{S_T+9} offen offset:{(i%4)*1024}")
    b.label(label)

def w1_share_base(b, sreg, part):
    b(f"  s_mul_i32 s{sreg}, s2, {W1B // 256}")
    if part: b(f"  s_add_u32 s{sreg}, s{sreg}, {part}")

def w1_first_half_base(b, sreg, part):
    b(f"  s_and_b32 s{sreg}, s2, 7")
    b(f"  s_mul_i32 s{sreg}, s{sreg}, {256*7168}")
    b(f"  s_lshr_b32 s{S_T+9}, s2, 3")
    b(f"  s_mul_i32 s{S_T+9}, s{S_T+9}, {4*7168}")
    b(f"  s_add_u32 s{sreg}, s{sreg}, s{S_T+9}")
    if part: b(f"  s_add_u32 s{sreg}, s{sreg}, {part}")

def p1_tables(b):
    M1, M2, TW = L1_M1, L1_M2, L1_TW
    b(f"  v_and_b32 v10, 255, v0            ; e")
    b(f"  v_lshrrev_b32 v11, 8, v0          ; u")
    b(f"  v_bfe_u32 v12, v10, 2, 4          ; lane&15")
    b(f"  v_lshl_add_u32 v12, v11, 4, v12   ; k1")
    b(f"  v_lshrrev_b32 v13, 6, v10         ; g")
    b(f"  v_and_b32 v14, 3, v10")
    b(f"  v_lshlrev_b32 v13, 3, v13")
    b(f"  v_lshl_add_u32 v13, v14, 1, v13   ; a0 = 8g + 2i")
    b(f"  v_mul_u32_u24 v15, v13, v12       ; a0*k1")
    b(f"  v_add_u32 v16, v15, v12           ; (a0+1)*k1")
    sincos(b, 17, 18, 15, 5, 21)
    sincos(b, 19, 20, 16, 5, 21)
    b(f"  v_lshlrev_b32 v22, 2, v10")
    b(f"  v_lshl_add_u32 v22, v11, 11, v22  ; u*2048 + e*4")
    b(f"  v_cvt_pk_bf16_f32 v23, v17, v19")
    b(f"  v_cvt_pk_bf16_f32 v24, -v18, -v20")
    b(f"  ds_write_b32 v22, v23 offset:{M1}")
    b(f"  ds_write_b32 v22, v24 offset:{M1+1024}")
    sincos(b, 17, 18, 15, 10, 21)
    sincos(b, 19, 20, 16, 10, 21)
    b(f"  ds_write_b32 v22, v17 offset:{TW}")
    b(f"  ds_write_b32 v22, v18 offset:{TW+1024}")
    b(f"  ds_write_b32 v22, v19 offset:{TW+4096}")
    b(f"  ds_write_b32 v22, v20 offset:{TW+4096+1024}")
    b(f"  v_bfe_u32 v12, v10, 2, 4          ; k2")
    b(f"  v_mul_u32_u24 v15, v13, v12")
    b(f"  v_add_u32 v16, v15, v12")
    sincos(b, 17, 18, 15, 5, 21)
    sincos(b, 19, 20, 16, 5, 21)
    b(f"  v_lshlrev_b32 v22, 2, v10")
    b(f"  v_cvt_pk_bf16_f32 v23, v17, v19")
    b(f"  v_cvt_pk_bf16_f32 v24, v18, v20")
    b(f"  v_cvt_pk_bf16_f32 v25, -v18, -v20")
    b(f"  ds_write_b32 v22, v23 offset:{M2}")
    b(f"  ds_write_b32 v22, v24 offset:{M2+1024}")
    b(f"  ds_write_b32 v22, v25 offset:{M2+2048}")

def ln_fast(b, X, T, S0, alt):
    b(f"  v_readlane_b32 s{S0}, v{X}, 0              ; pivot")
    b(f"  s_nop 1")
    for i in range(0, 16, 2):
        b(f"  v_pk_add_f32 {vr(X+i,2)}, {vr(X+i,2)}, s[{S0}:{S0+1}] op_sel_hi:[1,0] neg_lo:[0,1] neg_hi:[0,1]")
    b(f"  v_pk_add_f32 {vr(T,2)}, {vr(X,2)}, {vr(X+2,2)}")
    b(f"  v_pk_add_f32 {vr(T+2,2)}, {vr(X+8,2)}, {vr(X+10,2)}")
    b(f"  v_pk_mul_f32 {vr(T+4,2)}, {vr(X,2)}, {vr(X,2)}")
    b(f"  v_pk_add_f32 {vr(T,2)}, {vr(T,2)}, {vr(X+4,2)}")
    b(f"  v_pk_add_f32 {vr(T+2,2)}, {vr(T+2,2)}, {vr(X+12,2)}")
    b(f"  v_pk_fma_f32 {vr(T+4,2)}, {vr(X+2,2)}, {vr(X+2,2)}, {vr(T+4,2)}")
    b(f"  v_pk_add_f32 {vr(T,2)}, {vr(T,2)}, {vr(X+6,2)}")
    b(f"  v_pk_add_f32 {vr(T+2,2)}, {vr(T+2,2)}, {vr(X+14,2)}")
    for i in range(4, 16, 2):
        b(f"  v_pk_fma_f32 {vr(T+4,2)}, {vr(X+i,2)}, {vr(X+i,2)}, {vr(T+4,2)}")
    b(f"  v_add_f32 v{T}, v{T}, v{T+1}")
    b(f"  v_add_f32 v{T+2}, v{T+2}, v{T+3}")
    if not alt: b(f"  v_add_f32 v{T}, v{T}, v{T+2}")
    b(f"  v_add_f32 v{T+4}, v{T+4}, v{T+5}           ; squares")
    if alt:
        wave_reduce(b, [T, T+2, T+4])
        b(f"  v_sub_f32 v{T+1}, v{T}, v{T+2}             ; E - O")
        b(f"  v_add_f32 v{T}, v{T}, v{T+2}")
        b(f"  s_nop 0")
        b(f"  v_readlane_b32 s{S0+2}, v{T}, 63")
        b(f"  v_readlane_b32 s{S0+3}, v{T+4}, 63")
        b(f"  v_readlane_b32 s{S0+4}, v{T+1}, 63")
    else:
        wave_reduce(b, [T, T+4])
        b(f"  s_nop 0")
        b(f"  v_readlane_b32 s{S0+2}, v{T}, 63")
        b(f"  v_readlane_b32 s{S0+3}, v{T+4}, 63")
    b(f"  s_nop 0")
    b(f"  v_mov_b32 v{T}, {hex(f2u(1.0/1024))}")
    b(f"  v_mul_f32 v{T+1}, s{S0+2}, v{T}")
    b(f"  v_mul_f32 v{T+2}, s{S0+3}, v{T}")
    b(f"  v_fma_f32 v{T+2}, -v{T+1}, v{T+1}, v{T+2}  ; variance")
    b(f"  v_max_f32 v{T+2}, 0, v{T+2}")
    b(f"  v_add_f32 v{T+2}, {hex(f2u(1e-5))}, v{T+2}")
    b(f"  v_rsq_f32 v{T+4}, v{T+2}")
    b(f"  s_nop 0")
    b(f"  v_mul_f32 v{T+8}, -v{T+1}, v{T+4}          ; -mean*rstd")
    if alt: b(f"  v_mul_f32 v{T+6}, s{S0+4}, v{T+4}")
    for i in range(0, 16, 2):
        b(f"  v_pk_fma_f32 {vr(X+i,2)}, {vr(X+i,2)}, {vr(T+4,2)}, {vr(T+8,2)} op_sel_hi:[1,0,0]")

def x1_store_addr(b):
    b(f"  v_lshlrev_b32 v5, 15, v9")
    b(f"  v_lshl_add_u32 v5, v8, 2, v5")
    b(f"  s_and_b32 s{S_T+6}, s2, 15")
    b(f"  s_lshl_b32 s{S_T+6}, s{S_T+6}, 4")
    b(f"  s_lshr_b32 s{S_T+7}, s2, 4")
    b(f"  s_add_u32 s{S_T+6}, s{S_T+6}, s{S_T+7}")
    b(f"  s_lshl_b32 s{S_T+6}, s{S_T+6}, 6       ; pos*64")
    b(f"  s_lshl_b32 s{S_T+7}, s{S_W}, 19        ; 4w*131072")
    b(f"  s_add_u32 s44, s{S_T+6}, s{S_T+7}")

def w_early(b):
    srd(b, SRD_C, P_WR, WB)
    srd(b, SRD_D, P_WI, WB)
    b(f"  s_and_b32 s{S_T+2}, s2, 7              ; j1")
    b(f"  v_and_b32 v215, 1, v0                ; half")
    b(f"  v_bfe_u32 v11, v0, 5, 4              ; c")
    b(f"  v_bfe_u32 v12, v0, 1, 4              ; e")
    b(f"  v_lshl_add_u32 v13, v12, 4, v11      ; j2")
    b(f"  v_lshlrev_b32 v13, 3, v13")
    b(f"  v_add_u32 v13, s{S_T+2}, v13         ; j")
    b(f"  v_mul_u32_u24 v214, 1026, v13")
    b(f"  v_lshl_add_u32 v14, v215, 4, v214")
    b(f"  s_lshr_b32 s{S_T+3}, s2, 3           ; kb")
    b(f"  s_lshl_b32 s{S_T+3}, s{S_T+3}, 5")
    b(f"  buffer_load_dwordx4 {vr(WE,4)}, v14, s[{SRD_C}:{SRD_C+3}], s{S_T+3} offen{WF()}")
    b(f"  buffer_load_dwordx4 {vr(WE+4,4)}, v14, s[{SRD_D}:{SRD_D+3}], s{S_T+3} offen{WF()}")

def p1(b):
    srd(b, SRD_A, P_X, 4 << 20)
    srd(b, SRD_B, P_WS, 4 << 20, WS_X1)
    b(f"  s_lshl_b32 s{S_T}, s{S_W}, 8")
    b(f"  s_add_u32 s{S_T}, s{S_T}, s2          ; s")
    b(f"  s_lshl_b32 s{S_T+1}, s{S_T}, 11")
    b(f"  v_lshlrev_b32 v1, 9, v9")
    b(f"  v_lshl_add_u32 v1, v8, 2, v1")
    XD = 32
    b(f"  s_cmp_ge_u32 s2, 16")
    b(f"  s_cbranch_scc1 p1_noreset")
    b(f"  s_cmp_lg_u32 s{S_W}, 0")
    b(f"  s_cbranch_scc1 p1_noreset")
    b(f"  s_lshl_b32 s{S_T+2}, s2, 8")
    b(f"  v_lshlrev_b32 v2, 12, v7")
    b(f"  v_add_u32 v2, s{S_T+2}, v2")
    b(f"  v_mov_b32 v3, 0")
    b(f"  s_mov_b64 s[48:49], exec")
    b(f"  s_mov_b64 exec, 15")
    b(f"  buffer_store_dword v3, v2, s[{SRD_CNT}:{SRD_CNT+3}], 0 offen sc1")
    b(f"  s_mov_b64 exec, s[48:49]")
    b.label("p1_noreset")
    for i in range(8):
        b(f"  buffer_load_dword v{XD+i}, v1, s[{SRD_A}:{SRD_A+3}], s{S_T+1} offen offset:{64*i}{XF()}")
    NCLR = 0
    NWE = 0
    x1_store_addr(b)
    if SENT():
        b(f"  v_mov_b32 v60, -1")
        b(f"  v_mov_b32 v61, -1")
        b(f"  v_mov_b32 v62, -1")
        b(f"  v_mov_b32 v63, -1")
        b(f"  v_bfe_u32 v2, v7, 2, 3              ; j1")
        b(f"  v_lshrrev_b32 v3, 5, v7             ; i (0,1)")
        b(f"  v_lshlrev_b32 v2, 14, v2")
        b(f"  v_lshl_add_u32 v2, v3, 17, v2")
        b(f"  v_and_b32 v3, 3, v7")
        b(f"  v_lshl_add_u32 v2, v3, 4, v2")
        b(f"  buffer_store_dwordx4 v[60:63], v2, s[{SRD_B}:{SRD_B+3}], s44 offen{SF}")
        b(f"  s_add_u32 s{S_T+7}, s44, {2*131072}")
        b(f"  buffer_store_dwordx4 v[60:63], v2, s[{SRD_B}:{SRD_B+3}], s{S_T+7} offen{SF}")
        NCLR = 2
    if "tlbw" in OPT:
        b(f"  s_cmp_lg_u32 s{S_W}, 7")
        b(f"  s_cbranch_scc1 p1_notlb")
        sh = 20 if "tlb1m" in OPT else (19 if "tlb512k" in OPT else 21)
        b(f"  v_lshlrev_b32 v2, {sh}, v7")
        lst = [(P_WS, 36 << 20), (P_W1, W1B), (P_W2, W1B), (P_WR, WB), (P_WI, WB), (P_OUT, 4 << 20), (P_B1, 7168), (P_B2, 4096)]
        for ptr, size in lst:
            srd(b, SRD_PF, ptr, size)
            b(f"  s_mov_b64 s[16:17], exec")
            n = min(64, -(-size // (1 << sh)))
            b(f"  s_mov_b64 exec, {hex((1 << n) - 1)}")
            b(f"  buffer_load_dword v230, v2, s[{SRD_PF}:{SRD_PF+3}], 0 offen")
            b(f"  s_mov_b64 exec, s[16:17]")
        if "codepf" in OPT:
            b(f"  s_cmp_ge_u32 s2, 16")
            b(f"  s_cbranch_scc1 p1_nocode")
            b(f"  s_getpc_b64 s[{S_T+8}:{S_T+9}]")
            b.label("p1_pc")
            b(f"  v_lshlrev_b32 v29, 7, v7")
            b(f"  s_mov_b32 s{S_T+7}, k_exit - p1_pc")
            for i in range(5):
                b(f"  v_min_u32 v28, s{S_T+7}, v29")
                b(f"  global_load_dword v230, v28, s[{S_T+8}:{S_T+9}]")
                b(f"  v_add_u32 v29, 8192, v29")
            b.label("p1_nocode")
        if "pf7" in OPT:
            n7 = 0
            if "wpf" in OPT:
                b(f"  s_mul_i32 s{S_T+8}, s2, 8208")
                b(f"  v_lshlrev_b32 v29, 4, v7")
                for ptr in (P_WR, P_WI):
                    srd(b, SRD_PF, ptr, WB)
                    b(f"  s_mov_b32 s{S_T+9}, s{S_T+8}")
                    for i in range(9):
                        if i and i % 4 == 0: b(f"  s_add_u32 s{S_T+9}, s{S_T+9}, 4096")
                        b(f"  buffer_load_dwordx4 {vr(V_DUMMY,4)}, v29, s[{SRD_PF}:{SRD_PF+3}], s{S_T+9} offen offset:{(i%4)*1024}")
                        n7 += 1
            if PFN[0]:
                w1_share_base(b, S_T + 9, 0)
                b(f"  v_lshlrev_b32 v29, 4, v7")
                srd(b, SRD_PF, P_W1, W1B)
                for i in range(4 * PFN[0]):
                    if i and i % 4 == 0: b(f"  s_add_u32 s{S_T+9}, s{S_T+9}, 4096")
                    b(f"  buffer_load_dwordx4 {vr(V_DUMMY,4)}, v29, s[{SRD_PF}:{SRD_PF+3}], s{S_T+9} offen offset:{(i%4)*1024}")
                    n7 += 1
            N7[0] = n7
        b.label("p1_notlb")
    if "wpack" in OPT:
        srd(b, SRD_C, P_WR, WB)
        srd(b, SRD_D, P_WI, WB)
        b(f"  s_lshl_b32 s{S_T+2}, s2, 3")
        b(f"  s_add_u32 s{S_T+2}, s{S_T+2}, s{S_W}")
        b(f"  s_mul_i32 s45, s{S_T+2}, 1026")
        b(f"  v_lshlrev_b32 v14, 4, v7")
        b(f"  buffer_load_dwordx4 {vr(WE,4)}, v14, s[{SRD_C}:{SRD_C+3}], s45 offen")
        b(f"  buffer_load_dwordx4 {vr(WE+4,4)}, v14, s[{SRD_D}:{SRD_D+3}], s45 offen")
        b(f"  v_mov_b32 v15, 1024")
        b(f"  buffer_load_ushort v212, v15, s[{SRD_C}:{SRD_C+3}], s45 offen")
        b(f"  buffer_load_ushort v213, v15, s[{SRD_D}:{SRD_D+3}], s45 offen")
        NCLR += 4
    if "wearly" in OPT:
        w_early(b); NCLR += 2
    npf = 0
    p1_tables(b)
    GM = 30
    gmat(b, GM, 2, False, 10)
    srd(b, SRD_PF, P_DBG, 256)
    b(f"  s_and_b32 s{S_T+8}, s2, 15")
    b(f"  s_lshl_b32 s{S_T+9}, s{S_T+8}, 2")
    b(f"  s_add_u32 s{S_T+9}, s{S_T+9}, 64")
    b(f"  v_mov_b32 v25, s{S_T+9}")
    b(f"  v_lshlrev_b32 v26, 2, v8")
    b(f"  v_add_u32 v26, 64, v26")
    b(f"  s_cmp_ge_u32 s2, 16")
    b(f"  s_cbranch_scc1 p1_noflag")
    b(f"  s_cmp_lg_u32 s{S_W}, 0")
    b(f"  s_cbranch_scc1 p1_noflag")
    b(f"  s_waitcnt vmcnt({8} + 0)".replace(" + 0", "") if NCLR == 0 else f"  s_waitcnt vmcnt({8 + NCLR})")
    b(f"  v_mov_b32 v3, 1")
    b(f"  s_mov_b64 s[48:49], exec")
    b(f"  s_mov_b64 exec, 1")
    b(f"  buffer_store_dword v3, v25, s[{SRD_PF}:{SRD_PF+3}], 0 offen sc1")
    b(f"  s_mov_b64 exec, s[48:49]")
    b.label("p1_noflag")
    b(f"  s_waitcnt lgkmcnt(0)")
    stamp(b, "p1 tables done")
    b(f"  s_barrier")
    npf = 0
    if "nopf" not in OPT:
        b(f"  s_mul_i32 s{S_T+8}, s2, 8208")
        if "ntx" not in OPT and "wpf" in OPT and "pf7" not in OPT:
            pf_wide(b, P_WR, WB, S_T + 8, 3, 0, 3, "pf_p1a")
            pf_wide(b, P_WI, WB, S_T + 8, 3, 0, 3, "pf_p1b")
        if "ntw1" not in OPT and PFN[0] and "pf7" not in OPT:
            w1_share_base(b, S_T + 8, 0)
            pf_wide(b, P_W1, W1B, S_T + 8, PFN[0], 4, 8, "pf_p1c")
    M1, M2, TW = 96, 112, 128
    b(f"  v_lshlrev_b32 v2, 4, v7")
    for i in range(4): b(f"  ds_read_b128 {vr(M1+4*i,4)}, v2 offset:{L1_M1+1024*i}")
    for i in range(3): b(f"  ds_read_b128 {vr(M2+4*i,4)}, v2 offset:{L1_M2+1024*i}")
    for i in range(8): b(f"  ds_read_b128 {vr(TW+4*i,4)}, v2 offset:{L1_TW+1024*i}")
    X = 40
    nW = 0 if ("nopf" in OPT or "ntx" in OPT or "wpf" not in OPT or "pf7" in OPT) else 6
    n1 = 0 if ("nopf" in OPT or "ntw1" in OPT or "pf7" in OPT) else PFN[0]
    b(f"  s_cmp_eq_u32 s{S_W}, 3")
    b(f"  s_cbranch_scc1 p1_xw0")
    b(f"  s_cmp_ge_u32 s{S_W}, 4")
    b(f"  s_cbranch_scc1 p1_xw4")
    b(f"  s_waitcnt vmcnt({NCLR + nW})")
    b(f"  s_branch p1_xwd")
    b.label("p1_xw4")
    if "tlbw" in OPT:
        b(f"  s_cmp_lg_u32 s{S_W}, 7")
        b(f"  s_cbranch_scc1 p1_xw5")
        b(f"  s_waitcnt vmcnt({min(63, NCLR + n1 + 8 + N7[0])})")
        b(f"  s_branch p1_xwd")
        b.label("p1_xw5")
    b(f"  s_waitcnt vmcnt({NCLR + n1})")
    b(f"  s_branch p1_xwd")
    b.label("p1_xw0")
    b(f"  s_waitcnt vmcnt({NCLR})")
    b.label("p1_xwd")
    stamp(b, "p1 x landed")
    if "wmid" in OPT:
        w_early(b)
        b(f"  s_cmp_ge_u32 s2, 8")
        b(f"  s_cbranch_scc1 p1_nonyq")
        b(f"  buffer_load_ushort v212, v214, s[{SRD_C}:{SRD_C+3}], 0 offen offset:1024")
        b(f"  buffer_load_ushort v213, v214, s[{SRD_D}:{SRD_D+3}], 0 offen offset:1024")
        b.label("p1_nonyq")
    if "wearly" in OPT:
        b(f"  s_cmp_ge_u32 s2, 8")
        b(f"  s_cbranch_scc1 p1_nonyq")
        b(f"  buffer_load_ushort v212, v214, s[{SRD_C}:{SRD_C+3}], 0 offen offset:1024")
        b(f"  buffer_load_ushort v213, v214, s[{SRD_D}:{SRD_D+3}], 0 offen offset:1024")
        b.label("p1_nonyq")
    srd(b, SRD_PF, P_DBG, 256)
    if "stash" in OPT:
        b(f"  s_lshl_b32 s{S_T+9}, s{S_W}, 11")
        b(f"  s_add_u32 s{S_T+9}, s{S_T+9}, {L_XS}")
        b(f"  v_add_u32 v4, s{S_T+9}, v1           ; t*2048 + g*512 + c*4")
        for i in range(8): b(f"  ds_write_b32 v4, v{XD+i} offset:{64*i}")
    for i in range(8):
        b(f"  v_lshlrev_b32 v{X+i}, 16, v{XD+i}")
        b(f"  v_and_b32 v{X+8+i}, 0xffff0000, v{XD+i}")
    T = 56
    ln_fast(b, X, T, S_T + 2, True)
    stamp(b, "p1 ln done")
    if SENT():
        b(f"  buffer_load_dword v27, v26, s[{SRD_PF}:{SRD_PF+3}], 0 offen sc1")
        b(f"  s_and_b32 s{S_T+8}, s2, 15")
        arrive(b, 0, S_T + 8, first=True, label="x1")
        stamp(b, "p1 arrived")
        srd(b, SRD_C, P_WS, 4 << 20, WS_X2)
        for i in range(4): b(f"  v_mov_b32 v{200+i}, -1")
        b(f"  v_lshlrev_b32 v2, 4, v0")
        b(f"  s_lshl_b32 s{S_T+7}, s2, 14")
        b(f"  buffer_store_dwordx4 v[200:203], v2, s[{SRD_C}:{SRD_C+3}], s{S_T+7} offen{SF}")
        b(f"  s_add_u32 s{S_T+7}, s{S_T+7}, 8192")
        b(f"  buffer_store_dwordx4 v[200:203], v2, s[{SRD_C}:{SRD_C+3}], s{S_T+7} offen{SF}")
    A = 64
    for be in range(2):
        for i in range(4):
            b(f"  v_cvt_pk_bf16_f32 v{A+4*be+i}, v{X+8*be+2*i}, v{X+8*be+2*i+1}")
    b(f"  s_waitcnt lgkmcnt(0)")
    b(f"  v_readlane_b32 s{S_T+5}, v{T+6}, 0")
    Y = 160
    for be in range(2):
        for u in range(2):
            for c in range(2):
                d = Y + ((be * 2 + u) * 2 + c) * 4
                b(f"  {MF32} {vr(d,4)}, {vr(A+4*be,4)}, {vr(M1+4*(2*u+c),4)}, 0")
    b(f"  s_nop 4")
    Bp = 72; W = 32; O = 40
    for u in range(2):
        for be in range(2):
            y = Y + ((be * 2 + u) * 2) * 4
            tw = TW + (be * 4 + u * 2) * 4
            cmul_pk(b, O + 8 * be, O + 8 * be + 4, y, y + 4, tw, tw + 4, W, False)
        for r in range(4):
            b(f"  v_cvt_pk_bf16_f32 v{Bp+8*u+r}, v{O+r}, v{O+8+r}")
            b(f"  v_cvt_pk_bf16_f32 v{Bp+8*u+4+r}, v{O+4+r}, v{O+12+r}")
    XO = 160
    b(f"  s_nop 1")
    for u in range(2):
        re, im = XO + 8 * u, XO + 8 * u + 4
        b(f"  {MF32} {vr(re,4)}, {vr(M2,4)}, {vr(Bp+8*u,4)}, 0")
        b(f"  {MF32} {vr(im,4)}, {vr(M2,4)}, {vr(Bp+8*u+4,4)}, 0")
        b(f"  {MF32} {vr(re,4)}, {vr(M2+4,4)}, {vr(Bp+8*u+4,4)}, {vr(re,4)}")
        b(f"  {MF32} {vr(im,4)}, {vr(M2+8,4)}, {vr(Bp+8*u,4)}, {vr(im,4)}")
    b(f"  s_and_b32 s{S_T+6}, s{S_W}, 1")
    b(f"  s_lshl_b32 s{S_T+6}, s{S_T+6}, 8")
    b(f"  s_lshr_b32 s{S_T+7}, s{S_W}, 1")
    b(f"  s_lshl_b32 s{S_T+7}, s{S_T+7}, 6")
    b(f"  s_add_u32 s{S_T+6}, s{S_T+6}, s{S_T+7}")
    b(f"  v_lshlrev_b32 v3, 12, v9")
    b(f"  v_lshl_add_u32 v3, v8, 2, v3")
    b(f"  v_add_u32 v3, s{S_T+6}, v3")
    b(f"  s_nop 2")
    b(f"  v_writelane_b32 v{XO}, s{S_T+5}, 0")
    b(f"  v_writelane_b32 v{XO+4}, 0, 0")
    PK = 32
    for u in range(2):
        for r in range(4):
            b(f"  v_cvt_pk_bf16_f32 v{PK+4*u+r}, v{XO+8*u+r}, v{XO+8*u+4+r}")
    for u in range(2):
        for r in range(4):
            b(f"  ds_write_b32 v3, v{PK+4*u+r} offset:{L1_EX + u*512 + r*1024}")
    if "wpack" in OPT:
        assert not SENT()
        srd(b, SRD_C, P_WS, 4 << 20, WS_WP)
        b(f"  v_lshrrev_b32 v14, 1, v7              ; kb")
        b(f"  v_lshlrev_b32 v14, 17, v14")
        b(f"  v_and_b32 v15, 1, v7")
        b(f"  v_lshl_add_u32 v14, v15, 4, v14")
        b(f"  s_and_b32 s{S_T+6}, s2, 15")
        b(f"  s_lshl_b32 s{S_T+6}, s{S_T+6}, 9       ; (p&15)<<5 * 16")
        b(f"  s_lshr_b32 s{S_T+7}, s2, 4")
        b(f"  s_lshl_b32 s{S_T+7}, s{S_T+7}, 5       ; (p>>4)<<1 * 16")
        b(f"  s_add_u32 s{S_T+6}, s{S_T+6}, s{S_T+7}")
        b(f"  s_lshl_b32 s{S_T+7}, s{S_W}, 14")
        b(f"  s_add_u32 s{S_T+6}, s{S_T+6}, s{S_T+7}")
        b(f"  s_add_u32 s{S_T+7}, s{S_T+6}, 8192")
        npf0 = 0 if ("nopf" in OPT or "pf7" in OPT) else PFN[0]
        b(f"  s_cmp_ge_u32 s{S_W}, 4")
        b(f"  s_cbranch_scc1 p1_wp4")
        b(f"  s_waitcnt vmcnt(0)")
        b(f"  s_branch p1_wpd")
        b.label("p1_wp4")
        b(f"  s_waitcnt vmcnt({npf0})")
        b.label("p1_wpd")
        b(f"  v_cmp_eq_u32 vcc, 0, v7")
        b(f"  v_and_b32 v15, 0xffff0000, v{WE}")
        b(f"  v_or_b32 v15, v15, v212")
        b(f"  v_cndmask_b32 v{WE}, v{WE}, v15, vcc")
        b(f"  v_and_b32 v15, 0xffff0000, v{WE+4}")
        b(f"  v_or_b32 v15, v15, v213")
        b(f"  v_cndmask_b32 v{WE+4}, v{WE+4}, v15, vcc")
        b(f"  buffer_store_dwordx4 {vr(WE,4)}, v14, s[{SRD_C}:{SRD_C+3}], s{S_T+6} offen{SF}")
        b(f"  buffer_store_dwordx4 {vr(WE+4,4)}, v14, s[{SRD_C}:{SRD_C+3}], s{S_T+7} offen{SF}")
    if SENT(): b(f"  s_waitcnt lgkmcnt(0) vmcnt(0)")
    else:
        b(f"  buffer_load_dword v27, v26, s[{SRD_PF}:{SRD_PF+3}], 0 offen sc1")
        b(f"  s_waitcnt lgkmcnt(0)")
    stamp(b, "p1 fft done")
    b(f"  s_barrier")
    b(f"  v_lshlrev_b32 v4, 6, v9")
    b(f"  v_lshl_add_u32 v4, v8, 2, v4")
    b(f"  s_lshl_b32 s{S_T+6}, s{S_W}, 11")
    b(f"  s_add_u32 s{S_T+6}, s{S_T+6}, {L1_EX}")
    b(f"  v_add_u32 v4, s{S_T+6}, v4")
    Bd = 40
    for i in range(4):
        b(f"  ds_read2st64_b32 {vr(Bd+2*i,2)}, v4 offset0:{2*i} offset1:{2*i+1}")
    D = 48
    for i in range(4):
        b(f"  s_waitcnt lgkmcnt({3-i})")
        b(f"  {MF16} {vr(D+4*i,4)}, {vr(GM,2)}, {vr(Bd+2*i,2)}, 0")
    b(f"  s_nop 4")
    for i in range(4):
        b(f"  v_cvt_pk_bf16_f32 v{64+2*i}, v{D+4*i}, v{D+4*i+1}")
        b(f"  v_cvt_pk_bf16_f32 v{65+2*i}, v{D+4*i+2}, v{D+4*i+3}")
        if SENT():
            b(f"  v_min_u32 v{64+2*i}, 0xfffffffe, v{64+2*i}")
            b(f"  v_min_u32 v{65+2*i}, 0xfffffffe, v{65+2*i}")
        for e in range(2):
            b(f"  s_add_u32 s{S_T+7}, s44, {i*131072 + e*16384}")
            b(f"  buffer_store_dword v{64+2*i+e}, v5, s[{SRD_B}:{SRD_B+3}], s{S_T+7} offen{SF}")
    stamp(b, "p1 stores issued")
    if not SENT():
        b(f"  s_and_b32 s{S_T+8}, s2, 15")
        arrive(b, 0, S_T + 8, first=True, label="x1")
        stamp(b, "p1 arrived")

XL2, WL2 = 32, 40
WE = 204
TC2, TS2 = 64, 68
def p2_setup(b):
    srd(b, SRD_A, P_WS, 4 << 20, WS_X1)
    srd(b, SRD_B, P_WS, 4 << 20, WS_X2)
    srd(b, SRD_C, P_WR, WB)
    srd(b, SRD_D, P_WI, WB)
    b(f"  s_and_b32 s{S_T}, s2, 7              ; j1")
    b(f"  s_lshr_b32 s{S_T+1}, s2, 3           ; kb")
    b(f"  v_and_b32 v10, 1, v0                 ; half")
    b(f"  v_bfe_u32 v11, v0, 5, 4              ; c")
    b(f"  v_bfe_u32 v12, v0, 1, 4              ; e")
    b(f"  v_lshl_add_u32 v13, v12, 4, v11      ; j2")
    b(f"  v_lshlrev_b32 v13, 3, v13")
    b(f"  v_add_u32 v13, s{S_T}, v13           ; j")
    b(f"  v_mul_u32_u24 v13, 1026, v13")
    b(f"  v_lshlrev_b32 v14, 4, v10")
    b(f"  v_add_u32 v14, v13, v14")
    b(f"  s_lshl_b32 s{S_T+3}, s{S_T+1}, 5")
    if "wearly" in OPT or "wmid" in OPT:
        b(f"  s_cmp_lg_u32 s{S_T+1}, 0")
        b(f"  s_cbranch_scc1 p2_nonyq")
        b(f"  s_waitcnt vmcnt(0)")
        b(f"  v_cmp_eq_u32 vcc, 0, v215")
        b(f"  v_and_b32 v50, 0xffff0000, v{WE}")
        b(f"  v_or_b32 v50, v50, v212")
        b(f"  v_cndmask_b32 v{WE}, v{WE}, v50, vcc")
        b(f"  v_and_b32 v50, 0xffff0000, v{WE+4}")
        b(f"  v_or_b32 v50, v50, v213")
        b(f"  v_cndmask_b32 v{WE+4}, v{WE+4}, v50, vcc")
        b.label("p2_nonyq")
    elif "wpack" in OPT:
        srd(b, SRD_C, P_WS, 4 << 20, WS_WP)
    elif "wlate" in OPT:
        b(f"  v_mov_b32 v24, v14")
        b(f"  v_mov_b32 v25, v13")
        b(f"  v_mov_b32 v26, v10                   ; half")
        b(f"  s_mov_b32 s45, s{S_T+3}              ; kb*32")
    else:
        WL = WL2
        b(f"  v_mov_b32 v24, v14")
        b(f"  v_mov_b32 v25, v13")
        b(f"  v_mov_b32 v26, v10                   ; half")
        b(f"  s_mov_b32 s45, s{S_T+3}              ; kb*32")
        WL = WL2
        b(f"  buffer_load_dwordx4 {vr(WL,4)}, v24, s[{SRD_C}:{SRD_C+3}], s45 offen{WF()}")
        b(f"  buffer_load_dwordx4 {vr(WL+4,4)}, v24, s[{SRD_D}:{SRD_D+3}], s45 offen{WF()}")
        b(f"  s_cmp_lg_u32 s{S_T+1}, 0")
        b(f"  s_cbranch_scc1 p2_nonyq")
        b(f"  buffer_load_ushort v48, v25, s[{SRD_C}:{SRD_C+3}], 0 offen offset:1024")
        b(f"  buffer_load_ushort v49, v25, s[{SRD_D}:{SRD_D+3}], 0 offen offset:1024")
        b(f"  s_waitcnt vmcnt(0)")
        b(f"  v_cmp_eq_u32 vcc, 0, v26")
        b(f"  v_and_b32 v50, 0xffff0000, v{WL}")
        b(f"  v_or_b32 v50, v50, v48")
        b(f"  v_cndmask_b32 v{WL}, v{WL}, v50, vcc")
        b(f"  v_and_b32 v50, 0xffff0000, v{WL+4}")
        b(f"  v_or_b32 v50, v50, v49")
        b(f"  v_cndmask_b32 v{WL+4}, v{WL+4}, v50, vcc")
        b.label("p2_nonyq")
        if "wdiag" in OPT:
            b(f"  s_waitcnt vmcnt(0)")
            stamp(b, "p2 w landed")
    npf = 0
    b(f"  v_and_b32 v15, 255, v0")
    b(f"  v_bfe_u32 v16, v15, 2, 4             ; x")
    b(f"  v_lshrrev_b32 v17, 6, v15            ; g")
    b(f"  v_and_b32 v18, 3, v15")
    b(f"  v_lshl_add_u32 v17, v17, 2, v18      ; 4g+i")
    b(f"  v_mul_u32_u24 v17, v17, v16")
    sincos(b, 18, 19, 17, 4, 20)
    b(f"  v_cmp_gt_u32 vcc, 256, v0            ; matrix 0 ?")
    b(f"  v_xor_b32 v20, 0x80000000, v19       ; -sin")
    b(f"  s_nop 0")
    b(f"  v_cndmask_b32 v21, v20, v18, vcc")
    b(f"  v_cndmask_b32 v22, v18, v19, vcc")
    b(f"  v_cvt_pk_bf16_f32 v21, v21, v22")
    b(f"  v_lshlrev_b32 v22, 2, v0")
    b(f"  ds_write_b32 v22, v21 offset:{L2_F}")
    b(f"  v_lshlrev_b32 v16, 2, v9")
    for r in range(4):
        b(f"  v_add_u32 v17, {r}, v16")
        b(f"  v_mul_u32_u24 v17, v17, v8")
        sincos(b, TC2 + r, TS2 + r, 17, 8, 20)
    b(f"  v_and_b32 v16, 3, v0                 ; i")
    b(f"  v_mul_u32_u24 v16, {4*1040}, v16")
    b(f"  v_lshrrev_b32 v17, 6, v0             ; b (0..7)")
    b(f"  v_lshl_add_u32 v16, v17, 6, v16")
    b(f"  v_bfe_u32 v17, v0, 2, 2              ; a&3")
    b(f"  v_lshl_add_u32 v16, v17, 2, v16")
    b(f"  v_bfe_u32 v17, v0, 4, 2              ; a>>2")
    b(f"  v_lshl_add_u32 v21, v17, 4, v16      ; first")
    b(f"  v_xor_b32 v17, 2, v17")
    b(f"  v_lshl_add_u32 v22, v17, 4, v16")
    b(f"  v_add_u32 v22, 512, v22              ; second (b+8)")
    b(f"  v_mul_u32_u24 v16, {4*1040}, v10")
    b(f"  v_lshl_add_u32 v16, v11, 6, v16")
    b(f"  v_and_b32 v17, 3, v12")
    b(f"  v_lshl_add_u32 v16, v17, 2, v16")
    b(f"  v_lshrrev_b32 v17, 2, v12")
    b(f"  v_lshrrev_b32 v18, 3, v11            ; c>>3")
    b(f"  v_lshlrev_b32 v18, 1, v18")
    b(f"  v_xor_b32 v17, v17, v18")
    b(f"  v_lshl_add_u32 v23, v17, 4, v16")
    b(f"  v_lshrrev_b32 v16, 3, v8")
    b(f"  v_lshlrev_b32 v16, 1, v16")
    b(f"  v_xor_b32 v16, v16, v9")
    b(f"  v_lshlrev_b32 v16, 4, v16")
    b(f"  v_lshl_add_u32 v16, v8, 6, v16")
    b(f"  s_mul_i32 s{S_T+4}, s{S_W}, {2*1040}")
    b(f"  s_mul_i32 s{S_T+5}, s{S_W}, 1040")
    b(f"  v_add_u32 v5, s{S_T+4}, v16")
    b(f"  v_add_u32 v6, s{S_T+5}, v16")
    b(f"  v_lshlrev_b32 v1, 4, v0")
    b(f"  s_lshl_b32 s{S_T+2}, s2, 14")
    b(f"  s_add_u32 s{S_T+3}, s{S_T+2}, 8192")
    b(f"  s_waitcnt lgkmcnt(0)")

def sentinel_check(b, R0, pre, n=8):
    b(f"  v_max3_u32 v16, v{R0}, v{R0+1}, v{R0+2}")
    b(f"  v_max3_u32 v17, v{R0+3}, v{R0+4}, v{R0+5}")
    b(f"  v_max3_u32 v16, v16, v{R0+6}, v{R0+7}")
    for i in range(8, n, 2): b(f"  v_max3_u32 v17, v17, v{R0+i}, v{R0+i+1}")
    b(f"  v_max_u32 v16, v16, v17")
    b(f"  v_cmp_eq_u32 vcc, -1, v16")
    b(f"  s_sub_u32 s11, s11, 1")
    b(f"  s_cmp_eq_u32 s11, 0")
    b(f"  s_cbranch_scc1 {pre}_got")
    b(f"  s_cmp_lg_u64 vcc, 0")
    b(f"  s_cbranch_scc1 {pre}_poll")
    b.label(f"{pre}_got")

def p2_main(b):
    XL = XL2; TC, TS = TC2, TS2
    if SENT():
        b(f"  s_mov_b32 s11, 200000")
        b.label("p2_poll")
    b(f"  buffer_load_dwordx4 {vr(XL,4)}, v1, s[{SRD_A}:{SRD_A+3}], s{S_T+2} offen sc1")
    b(f"  buffer_load_dwordx4 {vr(XL+4,4)}, v1, s[{SRD_A}:{SRD_A+3}], s{S_T+3} offen sc1")
    if "wpack" in OPT:
        WL = WL2
        b(f"  buffer_load_dwordx4 {vr(WL,4)}, v1, s[{SRD_C}:{SRD_C+3}], s{S_T+2} offen sc1")
        b(f"  buffer_load_dwordx4 {vr(WL+4,4)}, v1, s[{SRD_C}:{SRD_C+3}], s{S_T+3} offen sc1")
        b(f"  s_waitcnt vmcnt(2)")
    elif "wlate" in OPT:
        assert not SENT()
        WL = WL2
        b(f"  buffer_load_dwordx4 {vr(WL,4)}, v24, s[{SRD_C}:{SRD_C+3}], s45 offen{WF()}")
        b(f"  buffer_load_dwordx4 {vr(WL+4,4)}, v24, s[{SRD_D}:{SRD_D+3}], s45 offen{WF()}")
        b(f"  s_cmp_lg_u32 s{S_T+1}, 0")
        b(f"  s_cbranch_scc1 p2_nonyq")
        b(f"  buffer_load_ushort v56, v25, s[{SRD_C}:{SRD_C+3}], 0 offen offset:1024")
        b(f"  buffer_load_ushort v57, v25, s[{SRD_D}:{SRD_D+3}], 0 offen offset:1024")
        b(f"  s_waitcnt vmcnt(0)")
        b(f"  v_cmp_eq_u32 vcc, 0, v26")
        b(f"  v_and_b32 v58, 0xffff0000, v{WL}")
        b(f"  v_or_b32 v58, v58, v56")
        b(f"  v_cndmask_b32 v{WL}, v{WL}, v58, vcc")
        b(f"  v_and_b32 v58, 0xffff0000, v{WL+4}")
        b(f"  v_or_b32 v58, v58, v57")
        b(f"  v_cndmask_b32 v{WL+4}, v{WL+4}, v58, vcc")
        b.label("p2_nonyq")
        b(f"  s_waitcnt vmcnt(2)")
    else:
        b(f"  s_waitcnt vmcnt(0)")
    if SENT(): sentinel_check(b, XL, "p2")
    WL = WE if ("wearly" in OPT or "wmid" in OPT) else WL2
    b(f"  v_lshlrev_b32 v17, 4, v7")
    FR, FI = 72, 76
    AX = 48; WR, WI = 152, 156
    b(f"  ds_read_b128 {vr(FR,4)}, v17 offset:{L2_F}")
    b(f"  ds_read_b128 {vr(FI,4)}, v17 offset:{L2_F+1024}")
    Dq = [80, 88]; Oq = [96, 104]; Tq = [112, 120]; Pq = [128, 132]; Wq = [136, 144]
    stamp(b, "p2 x landed")
    for j in range(4):
        b(f"  ds_write_b32 v21, v{XL+j} offset:{L2_X + j*1040}")
        b(f"  ds_write_b32 v22, v{XL+4+j} offset:{L2_X + j*1040}")
    if "wlate" in OPT or "wpack" in OPT: b(f"  s_waitcnt vmcnt(0)")
    for j in range(4):
        b(f"  ds_write_b32 v23, v{WL+j} offset:{L2_W + j*1040}")
        b(f"  ds_write_b32 v23, v{WL+4+j} offset:{L2_W + 8*1040 + j*1040}")
    if "nopf" not in OPT and "ntw1" not in OPT and PFN[1]:
        w1_share_base(b, S_T + 8, PFN[0] * 4096)
        pf_wide(b, P_W1, W1B, S_T + 8, PFN[1], 4, 8, "pf_p2a")
    b(f"  s_waitcnt lgkmcnt(0)")
    b(f"  s_barrier")
    b(f"  ds_read_b128 {vr(AX,4)}, v5 offset:{L2_X}")
    b(f"  ds_read_b128 {vr(AX+4,4)}, v5 offset:{L2_X+1040}")
    b(f"  ds_read_b128 {vr(WR,4)}, v6 offset:{L2_W}")
    b(f"  ds_read_b128 {vr(WI,4)}, v6 offset:{L2_W+8*1040}")
    def stage(form, src):
        for k in range(2):
            d = Dq[k]
            if form == 'A':
                b(f"  {MF32} {vr(d,4)}, {vr(src[k],4)}, {vr(FR,4)}, 0")
                b(f"  {MF32} {vr(d+4,4)}, {vr(src[k],4)}, {vr(FI,4)}, 0")
            else:
                b(f"  {MF32} {vr(d,4)}, {vr(FR,4)}, {vr(src[k],4)}, 0")
                b(f"  {MF32} {vr(d+4,4)}, {vr(FI,4)}, {vr(src[k],4)}, 0")
    def twiddle_pack():
        for k in range(2):
            cmul_pk(b, Oq[k], Oq[k] + 4, Dq[k], Dq[k] + 4, TC, TS, Tq[k], False)
        for k in range(2):
            for r in range(4):
                b(f"  v_cvt_pk_bf16_f32 v{Pq[k]+r}, v{Oq[k]+r}, v{Oq[k]+4+r}")
        b(f"  s_nop 1")
    b(f"  s_waitcnt lgkmcnt(2)")
    stage('A', [AX, AX + 4])
    b(f"  s_waitcnt lgkmcnt(0)")
    for r in range(4):
        b(f"  v_lshlrev_b32 v{Wq[0]+r}, 16, v{WR+r}")
        b(f"  v_lshlrev_b32 v{Wq[0]+4+r}, 16, v{WI+r}")
        b(f"  v_and_b32 v{Wq[1]+r}, 0xffff0000, v{WR+r}")
        b(f"  v_and_b32 v{Wq[1]+4+r}, 0xffff0000, v{WI+r}")
    twiddle_pack()
    stage('B', Pq)
    b(f"  s_nop 5")
    for k in range(2):
        cmul_pk(b, Oq[k], Oq[k] + 4, Dq[k], Dq[k] + 4, Wq[k], Wq[k] + 4, Tq[k], True)
    for k in range(2):
        for r in range(4):
            b(f"  v_cvt_pk_bf16_f32 v{Pq[k]+r}, v{Oq[k]+r}, -v{Oq[k]+4+r}")
    b(f"  s_nop 1")
    stage('A', Pq)
    b(f"  s_nop 5")
    twiddle_pack()
    stage('B', Pq)
    b(f"  s_nop 5")
    for k in range(2):
        for r in range(4):
            b(f"  v_cvt_pk_bf16_f32 v{Pq[k]+r}, v{Dq[k]+r}, -v{Dq[k]+4+r}")
    b(f"  ds_write_b128 v5, {vr(Pq[0],4)} offset:{L2_X}")
    b(f"  ds_write_b128 v5, {vr(Pq[1],4)} offset:{L2_X+1040}")
    b(f"  s_waitcnt lgkmcnt(0)")
    b(f"  s_barrier")
    for j in range(4):
        b(f"  ds_read_b32 v{XL+j}, v21 offset:{L2_X + j*1040}")
        b(f"  ds_read_b32 v{XL+4+j}, v22 offset:{L2_X + j*1040}")
    b(f"  v_bfe_u32 v16, v0, 2, 4              ; a")
    b(f"  v_lshrrev_b32 v17, 6, v0             ; b")
    b(f"  v_lshl_add_u32 v16, v16, 4, v17      ; s1")
    b(f"  v_lshlrev_b32 v16, 14, v16")
    b(f"  v_and_b32 v17, 3, v0")
    b(f"  v_lshl_add_u32 v16, v17, 4, v16")
    b(f"  s_lshl_b32 s{S_T+4}, s{S_T}, 11")
    b(f"  s_lshl_b32 s{S_T+5}, s{S_T+1}, 6")
    b(f"  s_add_u32 s{S_T+4}, s{S_T+4}, s{S_T+5}")
    b(f"  s_add_u32 s{S_T+5}, s{S_T+4}, {8*16384}")
    b(f"  s_waitcnt lgkmcnt(0)")
    if SENT():
        for j in range(8): b(f"  v_min_u32 v{XL+j}, 0xfffffffe, v{XL+j}")
    b(f"  buffer_store_dwordx4 {vr(XL,4)}, v16, s[{SRD_B}:{SRD_B+3}], s{S_T+4} offen{SF}")
    b(f"  buffer_store_dwordx4 {vr(XL+4,4)}, v16, s[{SRD_B}:{SRD_B+3}], s{S_T+5} offen{SF}")
    stamp(b, "p2 stores issued")
    if not SENT():
        b(f"  s_and_b32 s{S_T+8}, s2, 15")
        arrive(b, 1, S_T + 8, label="x2")

V_LO = 224
S_G1A = 60
def g1_ids(b):
    b(f"  s_lshr_b32 s{S_T}, s2, 3                 ; i")
    b(f"  s_cmp_lt_u32 s{S_T}, 28")
    b(f"  s_cselect_b32 s62, 1, 0")
    b(f"  s_mul_i32 s{S_T+1}, s{S_T}, 37")
    b(f"  s_lshr_b32 s{S_T+1}, s{S_T+1}, 8         ; i/7")
    b(f"  s_mul_i32 s{S_T+2}, s{S_T+1}, 7")
    b(f"  s_sub_u32 s{S_T+2}, s{S_T}, s{S_T+2}     ; i%7")
    b(f"  s_and_b32 s{S_T+3}, s2, 7")
    b(f"  s_lshr_b32 s{S_T+4}, s{S_T+3}, 1")
    b(f"  s_mul_i32 s{S_T+4}, s{S_T+4}, 7")
    b(f"  s_add_u32 s60, s{S_T+4}, s{S_T+2}        ; ft")
    b(f"  s_and_b32 s{S_T+3}, s{S_T+3}, 1")
    b(f"  s_lshl_b32 s{S_T+3}, s{S_T+3}, 2")
    b(f"  s_add_u32 s61, s{S_T+3}, s{S_T+1}        ; dt")

S_SOFF, S_M0, S_N = 4, 5, 6
def loader_issue(b, voff, fl=""):
    for i in range(4):
        b(f"  s_add_u32 m0, s{S_M0}, {4096*i}")
        b(f"  s_nop 0")
        b(f"  buffer_load_dwordx4 v{voff+i}, s[{SRD_T}:{SRD_T+3}], s{S_SOFF} offen{fl} lds")
    b(f"  s_add_u32 s{S_SOFF}, s{S_SOFF}, s9")
    b(f"  s_add_u32 s{S_M0}, s{S_M0}, {STAGE}")
    b(f"  s_cmp_ge_u32 s{S_M0}, s{S_N+1}")
    b(f"  s_cselect_b32 s{S_N+2}, {R*STAGE}, 0")
    b(f"  s_sub_u32 s{S_M0}, s{S_M0}, s{S_N+2}")

def loader_init(b, step_bytes):
    b(f"  s_sub_u32 s50, s{S_W}, 4")
    b(f"  s_lshl_b32 s{S_M0}, s50, 10")
    b(f"  s_add_u32 s{S_N+1}, s{S_M0}, {R*STAGE}")
    b(f"  s_mov_b32 s{S_SOFF}, 0")
    b(f"  s_mov_b32 s9, {step_bytes}")

def g1_loader_addr(b):
    b(f"  s_sub_u32 s50, s{S_W}, 4      ; w'")
    for i in range(4):
        b(f"  s_lshl_b32 s49, s50, 2")
        b(f"  s_add_u32 s49, s49, {16*i}")
        b(f"  v_lshrrev_b32 v14, 4, v7")
        b(f"  v_add_u32 v14, s49, v14                 ; row 0..63")
        b(f"  v_and_b32 v15, 3, v14")
        b(f"  v_lshlrev_b32 v15, 2, v15")
        b(f"  v_and_b32 v16, 15, v7")
        b(f"  v_xor_b32 v16, v16, v15                 ; q")
        b(f"  v_lshrrev_b32 v17, 3, v14")
        b(f"  v_and_b32 v18, 7, v14")
        b(f"  v_lshl_add_u32 v17, v18, 8, v17         ; s")
        b(f"  v_mul_u32_u24 v17, 7168, v17")
        b(f"  v_lshl_add_u32 v17, v16, 4, v17")
        b(f"  s_lshl_b32 s49, s60, 8")
        b(f"  v_add_u32 v{V_LO+i}, s49, v17")

def g2_ids(b):
    if SK():
        b(f"  s_lshr_b32 s{S_T+1}, s2, 3")
        b(f"  s_lshr_b32 s{S_TILE_A}, s{S_T+1}, 2          ; dt")
        b(f"  s_lshr_b32 s{S_T}, s2, 1")
        b(f"  s_and_b32 s{S_T}, s{S_T}, 3")
        b(f"  s_lshl_b32 s{S_T}, s{S_T}, 2")
        b(f"  s_and_b32 s{S_T+1}, s{S_T+1}, 3")
        b(f"  s_add_u32 s{S_TILE_B}, s{S_T}, s{S_T+1}      ; st2")
        b(f"  s_and_b32 s19, s2, 1                       ; kh")
        return
    b(f"  s_and_b32 s{S_T}, s2, 1")
    b(f"  s_lshl_b32 s{S_T}, s{S_T}, 2")
    b(f"  s_lshr_b32 s{S_T+1}, s2, 3")
    b(f"  s_and_b32 s{S_T+2}, s{S_T+1}, 3")
    b(f"  s_add_u32 s{S_TILE_A}, s{S_T}, s{S_T+2}     ; dt")
    b(f"  s_lshr_b32 s{S_T}, s2, 1")
    b(f"  s_and_b32 s{S_T}, s{S_T}, 3")
    b(f"  s_lshl_b32 s{S_T}, s{S_T}, 3")
    b(f"  s_lshr_b32 s{S_T+1}, s{S_T+1}, 2")
    b(f"  s_add_u32 s{S_TILE_B}, s{S_T}, s{S_T+1}     ; st")

def g2_loader_addr(b):
    if SK():
        b(f"  s_sub_u32 s50, s{S_W}, 4")
        for i in range(4):
            b(f"  s_lshl_b32 s49, s50, 2")
            b(f"  s_add_u32 s49, s49, {16*i}")
            b(f"  v_lshrrev_b32 v14, 4, v7")
            b(f"  v_add_u32 v14, s49, v14                 ; row 0..63")
            b(f"  v_and_b32 v15, 3, v14")
            b(f"  v_lshlrev_b32 v15, 2, v15")
            b(f"  v_and_b32 v16, 15, v7")
            b(f"  v_xor_b32 v16, v16, v15                 ; q")
            b(f"  v_lshlrev_b32 v14, 12, v14              ; row*4096")
            b(f"  v_lshl_add_u32 v14, v16, 4, v14")
            b(f"  s_lshl_b32 s49, s{S_TILE_B}, 8          ; s0*2")
            b(f"  s_mul_i32 s48, s19, {1792*4096}         ; k half")
            b(f"  s_add_u32 s49, s49, s48")
            b(f"  v_add_u32 v{V_LO+i}, s49, v14")
        return
    b(f"  s_sub_u32 s50, s{S_W}, 4")
    for i in range(4):
        b(f"  s_lshl_b32 s49, s50, 3")
        b(f"  s_add_u32 s49, s49, {32*i}")
        b(f"  v_lshrrev_b32 v14, 3, v7")
        b(f"  v_add_u32 v14, s49, v14                 ; row")
        b(f"  v_bfe_u32 v15, v14, 1, 1")
        b(f"  v_lshlrev_b32 v15, 2, v15")
        b(f"  v_and_b32 v16, 7, v7")
        b(f"  v_xor_b32 v16, v16, v15                 ; q")
        b(f"  v_lshlrev_b32 v14, 12, v14              ; row*4096")
        b(f"  v_lshl_add_u32 v14, v16, 4, v14")
        b(f"  s_lshl_b32 s49, s{S_TILE_B}, 7          ; s0*2")
        b(f"  v_add_u32 v{V_LO+i}, s49, v14")

def loader_loop(b, NS, pre, fl=""):
    if "priol" in OPT: b("  s_setprio 2")
    if "oldstart" in OPT:
        for n in range(R - 4): loader_issue(b, V_LO, fl)
        nmain = NS - (R - 2)
    else:
        b(f"  s_waitcnt vmcnt(4)")
        b("  s_barrier                      ; B_0")
        for n in range(R - 3): loader_issue(b, V_LO, fl)
        nmain = NS - (R - 2) - 1
    b(f"  s_mov_b32 s{S_N}, {nmain}")
    b.label(f"{pre}_lloop")
    b(f"  s_waitcnt vmcnt({(R-3)*4})")
    b("  s_barrier")
    loader_issue(b, V_LO, fl)
    b(f"  s_sub_u32 s{S_N}, s{S_N}, 1")
    b(f"  s_cmp_lg_u32 s{S_N}, 0")
    b(f"  s_cbranch_scc1 {pre}_lloop")
    for i in range(R - 2):
        b(f"  s_waitcnt vmcnt({(R-3-i)*4})")
        b("  s_barrier")

BD3 = 32; XR3 = 192; GM3 = 30
def p3_tables(b):
    b(f"  v_and_b32 v10, 255, v0            ; e")
    b(f"  v_lshrrev_b32 v11, 8, v0")
    b(f"  v_bfe_u32 v12, v10, 2, 4          ; n = lane&15")
    b(f"  v_lshrrev_b32 v13, 6, v10         ; g")
    b(f"  v_and_b32 v14, 3, v10             ; r")
    b(f"  v_lshl_add_u32 v13, v13, 2, v14   ; 4g + r")
    b(f"  v_lshrrev_b32 v15, 2, v12")
    b(f"  v_lshlrev_b32 v15, 3, v15")
    b(f"  v_and_b32 v16, 3, v12")
    b(f"  v_add_u32 v15, v15, v16           ; b(n,0)")
    b(f"  v_lshl_add_u32 v16, v11, 2, v15   ; b(n, sel)")
    b(f"  v_mul_u32_u24 v17, v16, v13")
    sincos(b, 18, 19, 17, 5, 20)
    b(f"  v_lshlrev_b32 v22, 2, v10")
    b(f"  v_lshl_add_u32 v22, v11, 11, v22  ; sel*2048 + e*4")
    b(f"  v_add_u32 v22, {L3_M3}, v22")
    b(f"  v_cvt_pk_bf16_f32 v23, v18, -v19")
    b(f"  v_cvt_pk_bf16_f32 v24, v19, v18")
    b(f"  ds_write_b32 v22, v23")
    b(f"  ds_write_b32 v22, v24 offset:1024")
    b(f"  v_lshl_add_u32 v17, v11, 4, v13   ; k1")
    for z in range(2):
        b(f"  v_add_u32 v21, {16*z}, v12")
        b(f"  v_mul_u32_u24 v21, v21, v17")
        sincos(b, 18, 19, 21, 5, 20)
        b(f"  v_add_f32 v18, v18, v18")
        b(f"  v_mul_f32 v19, -2.0, v19")
        b(f"  v_cvt_pk_bf16_f32 v23, v18, v19")
        b(f"  ds_write_b32 v22, v23 offset:{4096+1024*z}")
    b(f"  v_lshlrev_b32 v23, 2, v10")
    b(f"  v_lshl_add_u32 v23, v11, 12, v23   ; u*4096 + e*4")
    b(f"  v_add_u32 v23, {L3_TW}, v23")
    for v in range(2):
        b(f"  v_add_u32 v21, {4*v}, v15")
        b(f"  v_mul_u32_u24 v21, v21, v17")
        sincos(b, 18, 19, 21, 10, 20)
        b(f"  ds_write_b32 v23, v18 offset:{2048*v}")
        b(f"  ds_write_b32 v23, v19 offset:{2048*v+1024}")

def p3_setup(b):
    srd(b, SRD_A, P_WS, 4 << 20, WS_X2)
    srd(b, SRD_B, P_X, 4 << 20)
    srd(b, SRD_C, P_WS, 4 << 20, WS_H)
    srd(b, SRD_D, P_WS, 4 << 20, WS_LN2)
    b(f"  s_lshl_b32 s{S_T+3}, s{S_W}, 8")
    b(f"  s_add_u32 s{S_T+3}, s{S_T+3}, s2")
    b(f"  s_lshl_b32 s{S_T+3}, s{S_T+3}, 11       ; s*2048")
    b(f"  v_lshlrev_b32 v4, 6, v8")
    b(f"  v_lshl_add_u32 v4, v9, 4, v4")
    if "stash" in OPT:
        b(f"  s_lshl_b32 s{S_T+9}, s{S_W}, 11")
        b(f"  s_add_u32 s{S_T+9}, s{S_T+9}, {L_XS}")
        b(f"  v_add_u32 v2, s{S_T+9}, v4")
        for z in range(2): b(f"  ds_read_b128 {vr(XR3+4*z,4)}, v2 offset:{1024*z}")
    else:
      for z in range(2):
        b(f"  buffer_load_dwordx4 {vr(XR3+4*z,4)}, v4, s[{SRD_B}:{SRD_B+3}], s{S_T+3} offen offset:{1024*z}")
    b(f"  s_mov_b32 s63, s{S_T+3}")
    if SK():
        srd(b, SRD_PF, P_WS, 4 << 20, WS_XCH)
        for i in range(4): b(f"  v_mov_b32 v{200+i}, -1")
        b(f"  v_lshlrev_b32 v2, 4, v0")
        b(f"  s_lshl_b32 s{S_T+8}, s2, 14")
        b(f"  buffer_store_dwordx4 v[200:203], v2, s[{SRD_PF}:{SRD_PF+3}], s{S_T+8} offen{SF}")
        b(f"  s_add_u32 s{S_T+8}, s{S_T+8}, 8192")
        b(f"  buffer_store_dwordx4 v[200:203], v2, s[{SRD_PF}:{SRD_PF+3}], s{S_T+8} offen{SF}")
    if "nopf" not in OPT and "ntw1" not in OPT:
        if PFN[2]:
            w1_share_base(b, S_T + 8, (PFN[0] + PFN[1]) * 4096)
            pf_wide(b, P_W1, W1B, S_T + 8, PFN[2], 4, 8, "pf_p3a")
    g1_ids(b)
    g1_loader_addr(b)
    loader_init(b, 8 * 7168)
    p3_tables(b)
    gmat(b, GM3, 2, True, 10)
    b(f"  v_lshlrev_b32 v1, 12, v9")
    b(f"  v_lshl_add_u32 v1, v8, 2, v1")
    b(f"  s_lshl_b32 s{S_T}, s2, 14")
    b(f"  s_and_b32 s{S_T+1}, s{S_W}, 1")
    b(f"  s_lshl_b32 s{S_T+1}, s{S_T+1}, 6")
    b(f"  s_lshr_b32 s{S_T+2}, s{S_W}, 1")
    b(f"  s_lshl_b32 s{S_T+2}, s{S_T+2}, 9")
    b(f"  s_add_u32 s{S_T}, s{S_T}, s{S_T+1}")
    b(f"  s_add_u32 s44, s{S_T}, s{S_T+2}          ; X2 soffset")
    b(f"  s_lshl_b32 s{S_T+1}, s{S_T+1}, 4        ; u*1024")
    b(f"  s_lshr_b32 s{S_T+2}, s{S_T+2}, 1        ; q4*256")
    b(f"  s_add_u32 s45, s{S_T+1}, s{S_T+2}")
    b(f"  s_waitcnt lgkmcnt(0)")

def p3_main(b):
    Bd, XR, GM = BD3, XR3, GM3
    D = 40
    b(f"  v_lshlrev_b32 v3, 12, v9")
    b(f"  v_lshl_add_u32 v3, v8, 4, v3")
    b(f"  v_add_u32 v3, s45, v3")
    b(f"  v_add_u32 v3, {L3_EX}, v3")
    M3, M4, TW = 96, 112, 128
    b(f"  v_lshlrev_b32 v6, 4, v7")
    b(f"  v_add_u32 v6, {L3_M3}, v6")
    for i in range(4): b(f"  ds_read_b128 {vr(M3+4*i,4)}, v6 offset:{1024*i}")
    for i in range(4): b(f"  ds_read_b128 {vr(M4+4*i,4)}, v6 offset:{4096+1024*i}")
    b(f"  s_waitcnt lgkmcnt(0)")
    for i in range(8): b(f"  ds_read_b128 {vr(TW+4*i,4)}, v6 offset:{8192+1024*i}")
    if SENT():
        b(f"  s_mov_b32 s11, 200000")
        b.label("p3_poll")
    for i in range(4):
        for e in range(2):
            b(f"  buffer_load_dword v{Bd+2*i+e}, v1, s[{SRD_A}:{SRD_A+3}], s44 offen offset:{e*2048+i*128} sc1")
    b(f"  s_waitcnt vmcnt(0)")
    if SENT(): sentinel_check(b, Bd, "p3")
    stamp(b, "p3 x2 landed")
    if "nopf" not in OPT and "ntw1" not in OPT and PFN[3]:
        w1_share_base(b, S_T + 8, (PFN[0] + PFN[1] + PFN[2]) * 4096)
        pf_wide(b, P_W1, W1B, S_T + 8, PFN[3], 4, 8, "pf_p3b")
    for i in range(4):
        b(f"  {MF16} {vr(D+4*i,4)}, {vr(GM,2)}, {vr(Bd+2*i,2)}, 0")
    b(f"  s_nop 4")
    PK = 56
    for e in range(2):
        for i in range(4):
            b(f"  v_cvt_pk_bf16_f32 v{PK+4*e+i}, v{D+4*i+2*e}, v{D+4*i+2*e+1}")
    b(f"  ds_write_b128 v3, {vr(PK,4)}")
    b(f"  ds_write_b128 v3, {vr(PK+4,4)} offset:2048")
    b(f"  s_waitcnt lgkmcnt(0)")
    b(f"  s_barrier")
    b(f"  v_lshlrev_b32 v5, 8, v9")
    b(f"  v_lshl_add_u32 v5, v8, 4, v5")
    b(f"  s_lshl_b32 s{S_T+1}, s{S_W}, 11")
    b(f"  s_add_u32 s{S_T+1}, s{S_T+1}, {L3_EX}")
    b(f"  v_add_u32 v5, s{S_T+1}, v5")
    AU = 32
    b(f"  ds_read_b128 {vr(AU,4)}, v5")
    b(f"  ds_read_b128 {vr(AU+4,4)}, v5 offset:1024")
    b(f"  s_waitcnt lgkmcnt(0)")
    b(f"  v_readlane_b32 s{S_T+4}, v{AU}, 0")
    b(f"  v_writelane_b32 v{AU}, 0, 0")
    b(f"  s_nop 1")
    b(f"  s_lshl_b32 s{S_T+4}, s{S_T+4}, 16")
    TT = 160
    for u in range(2):
        for v in range(2):
            for c in range(2):
                d = TT + ((u * 2 + v) * 2 + c) * 4
                b(f"  {MF32} {vr(d,4)}, {vr(AU+4*u,4)}, {vr(M3+4*(2*v+c),4)}, 0")
    CI = 60
    b(f"  v_mov_b32 v{CI}, s{S_T+4}")
    b(f"  v_xor_b32 v{CI+1}, 0x80000000, v{CI}")
    b(f"  v_mov_b32 v{CI+2}, v{CI}")
    b(f"  v_mov_b32 v{CI+3}, v{CI+1}")
    b(f"  s_nop 1")
    A2 = 64; O = 40; W = 80
    for u in range(2):
        for v in range(2):
            t = TT + ((u * 2 + v) * 2) * 4
            tw = TW + ((u * 2 + v) * 2) * 4
            cmul_pk(b, O, O + 4, t, t + 4, tw, tw + 4, W, True)
            for r in range(4):
                b(f"  v_cvt_pk_bf16_f32 v{A2+(u*2+v)*4+r}, v{O+r}, v{O+4+r}")
    Y = 160
    b(f"  s_nop 1")
    for z in range(2):
        for v in range(2):
            d = Y + (z * 2 + v) * 4
            b(f"  {MF32} {vr(d,4)}, {vr(A2+(0*2+v)*4,4)}, {vr(M4+(0*2+z)*4,4)}, {vr(CI,4)}")
    for z in range(2):
        for v in range(2):
            d = Y + (z * 2 + v) * 4
            b(f"  {MF32} {vr(d,4)}, {vr(A2+(1*2+v)*4,4)}, {vr(M4+(1*2+z)*4,4)}, {vr(d,4)}")
    b(f"  s_nop 7")
    X = 40; HP = 32
    stamp(b, "p3 ifft done")
    for z in range(2):
        for dd in range(4):
            y0 = Y + z * 8 + 2 * dd
            xd = XR + 4 * z + dd
            t = 64 + 2 * (dd % 4)
            b(f"  v_lshlrev_b32 v{t}, 16, v{xd}")
            b(f"  v_and_b32 v{t+1}, 0xffff0000, v{xd}")
            b(f"  v_pk_add_f32 {vr(t,2)}, {vr(t,2)}, {vr(y0,2)}")
            b(f"  v_cvt_pk_bf16_f32 v{HP+4*z+dd}, v{t}, v{t+1}")
    for z in range(2):
        b(f"  buffer_store_dwordx4 {vr(HP+4*z,4)}, v4, s[{SRD_C}:{SRD_C+3}], s63 offen offset:{1024*z}{SF}")
    for i in range(8):
        b(f"  v_lshlrev_b32 v{X+2*i}, 16, v{HP+i}")
        b(f"  v_and_b32 v{X+2*i+1}, 0xffff0000, v{HP+i}")
    ln_fast(b, X, 64, S_T + 4, False)
    LP = 72
    stamp(b, "p3 ln done")
    for i in range(8):
        b(f"  v_cvt_pk_bf16_f32 v{LP+i}, v{X+2*i}, v{X+2*i+1}")
    b(f"  v_mul_u32_u24 v3, 80, v8")
    b(f"  v_lshl_add_u32 v3, v9, 4, v3")
    b(f"  s_mul_i32 s{S_T+1}, s{S_W}, {L3_RS}")
    b(f"  s_add_u32 s{S_T+1}, s{S_T+1}, {L3_LN}")
    b(f"  v_add_u32 v3, s{S_T+1}, v3")
    for z in range(2):
        b(f"  ds_write_b128 v3, {vr(LP+4*z,4)} offset:{z*16*80}")
    b(f"  s_waitcnt lgkmcnt(0)")
    b(f"  s_barrier")
    b(f"  v_bfe_u32 v10, v7, 2, 2")
    b(f"  v_mul_u32_u24 v10, {L3_RS}, v10")
    b(f"  v_lshrrev_b32 v11, 5, v7")
    b(f"  v_mul_u32_u24 v12, 80, v11")
    b(f"  v_add_u32 v10, v10, v12")
    b(f"  v_and_b32 v12, 1, v7")
    b(f"  v_lshl_add_u32 v10, v12, 5, v10")
    b(f"  v_bfe_u32 v12, v7, 4, 1")
    b(f"  v_lshl_add_u32 v10, v12, 4, v10")
    b(f"  v_bfe_u32 v12, v7, 1, 1")
    b(f"  v_lshl_add_u32 v10, v12, 3, v10")
    b(f"  s_mul_i32 s{S_T+1}, s{S_W}, {4*80}")
    b(f"  s_add_u32 s{S_T+1}, s{S_T+1}, {L3_LN}")
    b(f"  v_add_u32 v10, s{S_T+1}, v10")
    for ps in range(2):
        b(f"  ds_read_b64_tr_b16 {vr(32+4*ps,2)}, v10 offset:{ps*160}")
        b(f"  ds_read_b64_tr_b16 {vr(34+4*ps,2)}, v10 offset:{ps*160 + 4*L3_RS}")
    b(f"  v_lshlrev_b32 v11, 17, v11")
    b(f"  v_and_b32 v12, 31, v7")
    b(f"  v_lshl_add_u32 v11, v12, 4, v11")
    b(f"  s_lshl_b32 s{S_T+1}, s{S_W}, 19")
    b(f"  s_lshl_b32 s{S_T+2}, s2, 9")
    b(f"  s_add_u32 s{S_T+1}, s{S_T+1}, s{S_T+2}")
    b(f"  s_add_u32 s{S_T+2}, s{S_T+1}, {2*131072}")
    b(f"  s_waitcnt lgkmcnt(2)")
    b(f"  buffer_store_dwordx4 v[32:35], v11, s[{SRD_D}:{SRD_D+3}], s{S_T+1} offen{SF}")
    b(f"  s_waitcnt lgkmcnt(0)")
    b(f"  buffer_store_dwordx4 v[36:39], v11, s[{SRD_D}:{SRD_D+3}], s{S_T+2} offen{SF}")
    stamp(b, "p3 stores issued")
    b(f"  s_and_b32 s{S_T+8}, s2, 15")
    arrive(b, 2, S_T + 8, label="x3")
    srd(b, SRD_T, P_W1, W1B)
    b(f"  s_cmp_lt_u32 s{S_W}, 4")
    b(f"  s_cbranch_scc1 p3_nodma")
    b(f"  s_cmp_eq_u32 s62, 0")
    b(f"  s_cbranch_scc1 p3_nodma")
    for n in range(2): loader_issue(b, V_LO, W1F())
    b.label("p3_nodma")

def gemm_core(b, c, pre, after_setup, after_prologue=None, posts=None):
    NB, NS = c.NB, c.NS
    acc = lambda nb: V_ACC + nb * 16
    VT = V_ACC + NB * 16
    VPR = VT + 32
    c.VT, c.VPR = VT, VPR
    c.vend = VPR + 4 * PR
    tf = lambda q: VT + (q % 8) * 4
    pr = lambda j: VPR + (j % PR) * 4
    FPI = 64
    KPI = FPI // NB
    def tread(q):
        ql = q % FPI
        lslot, within = ql // 16, ql % 16
        ks, nb = within // NB, within % NB
        off = lslot * STAGE + ks * 16 * c.rowb
        b(f"  ds_read_b64_tr_b16 {vr(tf(q),2)}, v{V_T+nb} offset:{off}")
        b(f"  ds_read_b64_tr_b16 {vr(tf(q)+2,2)}, v{V_T+nb} offset:{off+4*c.rowb}")
    def pload(j):
        b(f"  buffer_load_dwordx4 {vr(pr(j),4)}, v{V_P}, s[{SRD_P}:{SRD_P+3}], s{S_POFF} offen offset:{(j%4)*1024}{LF}")
        if j % 4 == 3: b(f"  s_add_u32 s{S_POFF}, s{S_POFF}, 4096")
    def mfma(q):
        nb = q % NB; j = q // NB; a = acc(nb)
        if "m16fake" in OPT:
            o = 8 * (j % 2)
            b(f"  v_mfma_f32_16x16x32_bf16 {vr(a+o,4)}, {vr(tf(q),4)}, {vr(pr(j),4)}, {vr(a+o,4)}")
            b(f"  v_mfma_f32_16x16x32_bf16 {vr(a+o+4,4)}, {vr(pr(j),4)}, {vr(tf(q),4)}, {vr(a+o+4,4)}")
            return
        if c.name == "g1":
            b(f"  v_mfma_f32_32x32x16_bf16 {vr(a,16)}, {vr(tf(q),4)}, {vr(pr(j),4)}, {vr(a,16)}")
        else:
            b(f"  v_mfma_f32_32x32x16_bf16 {vr(a,16)}, {vr(pr(j),4)}, {vr(tf(q),4)}, {vr(a,16)}")
    if "prioc" in OPT: b("  s_setprio 2")
    b(f"  s_mov_b32 s{S_POFF}, 0")
    b(f"  s_mov_b32 s{S_DELTA}, {4*STAGE}")
    b(f"  s_mov_b32 s{S_IT}, {NS//4 - 1}")
    after_setup()
    for j in range(PR - 1): pload(j)
    if after_prologue: after_prologue()
    b("  s_barrier")
    for q in range(DQ): tread(q)
    def body(last):
        for q in range(FPI):
            j = q // NB
            qn = q + DQ
            do_read = not (last and qn >= FPI)
            do_pload = False
            if q % NB == 0:
                rem = KPI - 1 - j
                if (not last) or (j + PR - 1 < KPI):
                    b(f"  s_waitcnt vmcnt({PR-2})")
                    do_pload = True
                else:
                    b(f"  s_waitcnt vmcnt({min(PR-2, rem)})")
            if do_read and qn % 16 == 0:
                b("  s_barrier")
            if do_read and qn == FPI:
                for i in range(NB): b(f"  v_add_u32 v{V_T+i}, s{S_DELTA}, v{V_T+i}")
                b(f"  s_sub_u32 s{S_DELTA}, 0, s{S_DELTA}")
            if q % 2 == 0:
                left = min(DQ - 2, FPI - 2 - q) if last else DQ - 2
                b(f"  s_waitcnt lgkmcnt({2*left})")
            mfma(q)
            if do_pload: pload(j + PR - 1)
            if do_read: tread(qn)
    b.label(f"{pre}_loop")
    body(False)
    b(f"  s_sub_u32 s{S_IT}, s{S_IT}, 1")
    b(f"  s_cmp_lg_u32 s{S_IT}, 0")
    b(f"  s_cbranch_scc1 {pre}_loop")
    if posts is None:
        body(True)
        return
    F = [(q // NB, q % NB) for q in range(16)] + [(4 + r % 12, r // 12) for r in range(48)]
    def tread_f(q):
        j, nb = F[q]
        off = (j // 4) * STAGE + (j % 4) * 16 * c.rowb
        b(f"  ds_read_b64_tr_b16 {vr(tf(q),2)}, v{V_T+nb} offset:{off}")
        b(f"  ds_read_b64_tr_b16 {vr(tf(q)+2,2)}, v{V_T+nb} offset:{off+4*c.rowb}")
    for q in range(FPI):
        j, nb = F[q]
        qn = q + DQ
        first_use = (q < 16 and nb == 0) or (16 <= q < 28)
        if q == 0: b(f"  s_waitcnt vmcnt({PR-2})")
        elif first_use: b(f"  s_waitcnt vmcnt({min(PR-2, KPI - 1 - j)})")
        if q == 9: b("  s_barrier"); b("  s_barrier")
        if q == 13: b("  s_barrier")
        if q % 2 == 0:
            left = min(DQ - 2, FPI - 2 - q)
            b(f"  s_waitcnt lgkmcnt({2*left})")
        a = acc(nb)
        if c.name == "g1":
            b(f"  v_mfma_f32_32x32x16_bf16 {vr(a,16)}, {vr(tf(q),4)}, {vr(pr(j),4)}, {vr(a,16)}")
        else:
            b(f"  v_mfma_f32_32x32x16_bf16 {vr(a,16)}, {vr(pr(j),4)}, {vr(tf(q),4)}, {vr(a,16)}")
        if q == 0: pload(PR - 1)
        if qn < FPI: tread_f(qn)
        if q >= 28:
            blk, r = (q - 16) // 12 - 1, (q - 16) % 12
            fill = posts.get(blk, [])
            if fill and r >= 3:
                n = len(fill); per = -(-n // 9)
                for line in fill[(r - 3) * per:(r - 2) * per]: b(line)

def idle_w1(b):
    srd(b, SRD_PF, P_W1, W1B)
    b(f"  s_and_b32 s51, s50, 7")
    b(f"  s_mul_i32 s51, s51, {256*7168}")
    b(f"  s_lshr_b32 s52, s50, 3")
    b(f"  s_mul_i32 s52, s52, {4*7168}")
    b(f"  s_add_u32 s51, s51, s52")
    b(f"  s_add_u32 s51, s51, {128*7168}")
    b(f"  s_mov_b32 s52, 7")
    b.label("pf_w1b")
    for i in range(4): b(f"  buffer_load_dwordx4 {vr(V_DUMMY,4)}, v29, s[{SRD_PF}:{SRD_PF+3}], s51 offen offset:{1024*i}")
    b(f"  s_add_u32 s51, s51, 4096")
    b(f"  s_waitcnt vmcnt(4)")
    b(f"  s_sub_u32 s52, s52, 1")
    b(f"  s_cmp_lg_u32 s52, 0")
    b(f"  s_cbranch_scc1 pf_w1b")

def idle_w2(b):
    if "idlesc" in OPT:
        srd(b, SRD_PF, P_W2, W1B)
        b(f"  s_mul_i32 s51, s50, {W1B // 256}")
        b(f"  v_lshlrev_b32 v29, 7, v7")
        for i in range(7):
            b(f"  buffer_load_dword v230, v29, s[{SRD_PF}:{SRD_PF+3}], s51 offen")
            b(f"  s_add_u32 s51, s51, 8192")
            if i >= 1: b(f"  s_waitcnt vmcnt(1)")
        b(f"  s_waitcnt vmcnt(0)")
        return
    srd(b, SRD_PF, P_W2, W1B)
    b(f"  s_mul_i32 s51, s50, {W1B // 256}")
    b(f"  s_mov_b32 s52, 14")
    b.label("pf_w2")
    for i in range(4): b(f"  buffer_load_dwordx4 {vr(V_DUMMY,4)}, v29, s[{SRD_PF}:{SRD_PF+3}], s51 offen offset:{1024*i}")
    b(f"  s_add_u32 s51, s51, 4096")
    b(f"  s_waitcnt vmcnt({0 if 'idlepace' in OPT else 4})")
    b(f"  s_sub_u32 s52, s52, 1")
    b(f"  s_cmp_lg_u32 s52, 0")
    b(f"  s_cbranch_scc1 pf_w2")
    b(f"  s_waitcnt vmcnt(0)")

def g1_gelu(b, c, blocks, accof, vaddr):
    K1 = -2.0 * 0.7978845608028654 * 1.4426950408889634
    K2 = K1 * 0.044715
    T = c.VPR
    b(f"  v_mov_b32 v{T}, {hex(f2u(K1))}")
    b(f"  v_mov_b32 v{T+1}, {hex(f2u(K1))}")
    b(f"  v_mov_b32 v{T+2}, {hex(f2u(K2))}")
    b(f"  v_mov_b32 v{T+3}, {hex(f2u(K2))}")
    b(f"  s_nop 7")
    W = T + 8
    for fb in blocks:
        a = accof(fb); t = W; o = W + 16 + 8 * (fb % 2)
        for h in range(0, 16, 2): b(f"  v_pk_mul_f32 {vr(t+h,2)}, {vr(a+h,2)}, {vr(a+h,2)}")
        for h in range(0, 16, 2): b(f"  v_pk_fma_f32 {vr(t+h,2)}, {vr(t+h,2)}, {vr(T+2,2)}, {vr(T,2)}")
        for h in range(0, 16, 2): b(f"  v_pk_mul_f32 {vr(t+h,2)}, {vr(t+h,2)}, {vr(a+h,2)}")
        for r in range(16): b(f"  v_exp_f32 v{t+r}, v{t+r}")
        for h in range(0, 16, 2): b(f"  v_pk_add_f32 {vr(t+h,2)}, {vr(t+h,2)}, 1.0 op_sel_hi:[1,0]")
        for r in range(16): b(f"  v_rcp_f32 v{t+r}, v{t+r}")
        for h in range(0, 16, 2): b(f"  v_pk_mul_f32 {vr(t+h,2)}, {vr(a+h,2)}, {vr(t+h,2)}")
        for i in range(4):
            b(f"  v_cvt_pk_bf16_f32 v{o+2*i}, v{t+4*i}, v{t+4*i+1}")
            b(f"  v_cvt_pk_bf16_f32 v{o+2*i+1}, v{t+4*i+2}, v{t+4*i+3}")
        for ip in range(2):
            oo = o + 4 * ip
            b(f"  s_mov_b32 s{S_TMP+1}, {(2*fb+ip)*1024}")
            b(f"  s_nop 0")
            b(f"  v_permlane32_swap_b32 v{oo}, v{oo+2}")
            b(f"  v_permlane32_swap_b32 v{oo+1}, v{oo+3}")
            b(f"  buffer_store_dwordx4 {vr(oo,4)}, v{vaddr}, s[{SRD_O}:{SRD_O+3}], s{S_TMP+1} offen{SF}")

def gelu_lines(fb, a, CT, t, o, vaddr):
    L = []
    for h in range(0, 16, 2): L.append(f"  v_pk_mul_f32 {vr(t+h,2)}, {vr(a+h,2)}, {vr(a+h,2)}")
    for h in range(0, 16, 2): L.append(f"  v_pk_fma_f32 {vr(t+h,2)}, {vr(t+h,2)}, {vr(CT+2,2)}, {vr(CT,2)}")
    for h in range(0, 16, 2): L.append(f"  v_pk_mul_f32 {vr(t+h,2)}, {vr(t+h,2)}, {vr(a+h,2)}")
    for r in range(16): L.append(f"  v_exp_f32 v{t+r}, v{t+r}")
    for h in range(0, 16, 2): L.append(f"  v_pk_add_f32 {vr(t+h,2)}, {vr(t+h,2)}, 1.0 op_sel_hi:[1,0]")
    for r in range(16): L.append(f"  v_rcp_f32 v{t+r}, v{t+r}")
    for h in range(0, 16, 2): L.append(f"  v_pk_mul_f32 {vr(t+h,2)}, {vr(a+h,2)}, {vr(t+h,2)}")
    for i in range(4):
        L.append(f"  v_cvt_pk_bf16_f32 v{o+2*i}, v{t+4*i}, v{t+4*i+1}")
        L.append(f"  v_cvt_pk_bf16_f32 v{o+2*i+1}, v{t+4*i+2}, v{t+4*i+3}")
    for ip in range(2):
        oo = o + 4 * ip
        L.append(f"  s_mov_b32 s{S_TMP+1}, {(2*fb+ip)*1024}")
        L.append(f"  s_nop 1")
        L.append(f"  v_permlane32_swap_b32 v{oo}, v{oo+2}")
        L.append(f"  v_permlane32_swap_b32 v{oo+1}, v{oo+3}")
        L.append(f"  buffer_store_dwordx4 {vr(oo,4)}, v{vaddr}, s[{SRD_O}:{SRD_O+3}], s{S_TMP+1} offen{SF}")
    return L

def g1(b):
    c = g1_cfg()
    b(f"  s_cmp_eq_u32 s62, 0")
    b(f"  s_cbranch_scc1 g1_inactive")
    srd(b, SRD_P, P_WS, 4 << 20, WS_LN2)
    srd(b, SRD_T, P_W1, W1B)
    srd(b, SRD_O, P_WS, U_BYTES, WS_U)
    srd(b, SRD_X, P_B1, 3584 * 2)
    b(f"  s_cmp_ge_u32 s{S_W}, 4")
    b(f"  s_cbranch_scc1 g1_loader")
    lane_geom(b)
    b(f"  s_lshl_b32 s{S_TMP}, s61, 2")
    b(f"  s_add_u32 s{S_TMP}, s{S_TMP}, s{S_W}            ; dblk")
    b(f"  s_lshl_b32 s{S_TMP+2}, s{S_TMP}, 17")
    b(f"  v_lshlrev_b32 v10, 4, v7")
    b(f"  v_add_u32 v{V_P}, s{S_TMP+2}, v10")
    b(f"  s_lshl_b32 s{S_TMP+1}, s60, 8       ; f0*2")
    b(f"  v_lshlrev_b32 v11, 3, v9")
    b(f"  v_add_u32 v11, s{S_TMP+1}, v11")
    BV = 192
    for fb in range(4):
        for i in range(4):
            b(f"  buffer_load_dwordx2 {vr(BV+2*(4*fb+i),2)}, v11, s[{SRD_X}:{SRD_X+3}], 0 offen offset:{64*fb+16*i}")
    b(f"  v_lshl_add_u32 v20, v9, 3, v18")
    b(f"  v_lshlrev_b32 v20, 8, v20")
    b(f"  v_lshl_add_u32 v20, v18, 6, v20")
    b(f"  v_lshl_add_u32 v20, v19, 5, v20")
    b(f"  v_lshl_add_u32 v{V_T}, v22, 3, v20")
    for fb in range(1, 4):
        b(f"  v_xor_b32 v{V_T+fb}, {64*fb}, v{V_T}")
    b(f"  s_mul_i32 s{S_TMP+2}, s{S_TMP}, 229376")
    b(f"  s_lshl_b32 s{S_TMP+1}, s60, 13")
    b(f"  s_add_u32 s{S_TMP+1}, s{S_TMP+1}, s{S_TMP+2}")
    b(f"  v_add_u32 v28, s{S_TMP+1}, v10")
    b(f"  s_waitcnt vmcnt(0)")
    for fb in range(4):
        for i in range(4):
            bv = BV + 2 * (4 * fb + i); a = V_ACC + fb * 16 + 4 * i
            b(f"  v_lshlrev_b32 v{a}, 16, v{bv}")
            b(f"  v_and_b32 v{a+1}, 0xffff0000, v{bv}")
            b(f"  v_lshlrev_b32 v{a+2}, 16, v{bv+1}")
            b(f"  v_and_b32 v{a+3}, 0xffff0000, v{bv+1}")
    def w3():
        wait(b, 2, 16, "x3c")
        stamp(b, "x3 released")
        stamp(b, "c:g1 start")
    SKEW = "skew" in OPT
    if SKEW:
        K1 = -2.0 * 0.7978845608028654 * 1.4426950408889634
        K2 = K1 * 0.044715
        CT, GT, GO = 192, 196, 212
        for i, kv in enumerate((K1, K1, K2, K2)): b(f"  v_mov_b32 v{CT+i}, {hex(f2u(kv))}")
        posts = {fb: gelu_lines(fb, V_ACC + 16 * fb, CT, GT, GO, 28) for fb in range(3)}
        gemm_core(b, c, "g1", w3, None, posts)
    else:
        gemm_core(b, c, "g1", w3)
    stamp(b, "c:g1 end")
    stamp(b, "g1 main done")
    E8 = "epi8" in OPT
    XO = 4 * STAGE
    if E8:
        b(f"  s_lshl_b32 s{S_TMP+1}, s{S_W}, 13")
        b(f"  s_add_u32 s{S_TMP+1}, s{S_TMP+1}, {XO}")
        b(f"  v_add_u32 v12, s{S_TMP+1}, v10")
        b(f"  s_nop 9")
        for k in range(8): b(f"  ds_write_b128 v12, {vr(V_ACC+32+4*k,4)} offset:{1024*k}")
        b(f"  s_waitcnt lgkmcnt(0)")
        b(f"  s_barrier")
    if SKEW:
        b(f"  s_nop 9")
        for line in gelu_lines(3, V_ACC + 48, CT, GT, GO, 28): b(line)
    else:
        g1_gelu(b, c, range(2) if E8 else range(4), lambda fb: V_ACC + fb * 16, 28)
    stamp(b, "g1 stores issued")
    b(f"  s_waitcnt vmcnt(0)")
    b(f"  s_branch g1_join")
    b.label("g1_loader")
    b(f"  s_sub_u32 s50, s{S_W}, 4")
    b(f"  s_lshl_b32 s49, s50, 10")
    b(f"  s_add_u32 s{S_N+1}, s49, {R*STAGE}")
    b(f"  s_barrier                      ; matches the barrier inside wait(x3)")
    loader_loop(b, c.NS, "g1", W1F())
    stamp(b, "g1 main done")
    g2_prologue_loader(b)
    if "epi8" in OPT:
        b(f"  s_sub_u32 s{S_TMP}, s{S_W}, 4")
        b(f"  s_lshl_b32 s{S_TMP+1}, s{S_TMP}, 13")
        b(f"  s_add_u32 s{S_TMP+1}, s{S_TMP+1}, {4*STAGE}")
        b(f"  v_lshlrev_b32 v10, 4, v7")
        b(f"  v_add_u32 v12, s{S_TMP+1}, v10")
        b(f"  s_lshl_b32 s{S_TMP+1}, s61, 2")
        b(f"  s_add_u32 s{S_TMP}, s{S_TMP}, s{S_TMP+1}      ; dblk")
        b(f"  s_mul_i32 s{S_TMP+2}, s{S_TMP}, 229376")
        b(f"  s_lshl_b32 s{S_TMP+1}, s60, 13")
        b(f"  s_add_u32 s{S_TMP+1}, s{S_TMP+1}, s{S_TMP+2}")
        b(f"  v_add_u32 v28, s{S_TMP+1}, v10")
        b(f"  s_barrier")
        for k in range(8): b(f"  ds_read_b128 {vr(V_ACC+4*k,4)}, v12 offset:{1024*k}")
        b(f"  s_waitcnt lgkmcnt(0)")
        g1_gelu(b, c, range(2, 4), lambda fb: V_ACC + (fb - 2) * 16, 28)
        b(f"  s_waitcnt vmcnt(0)")
    stamp(b, "g1 stores issued")
    b.label("g1_join")
    if SK():
        b(f"  s_cmp_ge_u32 s60, 14")
        b(f"  s_cselect_b32 s18, 1, 0")
        b(f"  s_lshl_b32 s10, s61, 1")
        b(f"  s_add_u32 s18, s18, s10")
        arrive(b, 3, 18, label="x4", drained=True)
    else:
        arrive(b, 3, 61, label="x4", drained=True)
    b(f"  s_branch g2_start")
    b.label("g1_inactive")
    if "nopf" not in OPT:
        b(f"  s_sub_u32 s50, s2, 224")
        b(f"  s_lshl_b32 s50, s50, 3")
        b(f"  s_add_u32 s50, s50, s{S_W}")
        b(f"  v_lshlrev_b32 v29, 4, v7")
        if "noidle" not in OPT: idle_w2(b)
    b(f"  s_cmp_lt_u32 s{S_W}, 4")
    b(f"  s_cbranch_scc1 g2_start_inactive")
    g2_prologue_loader(b)
    b.label("g2_start_inactive")
    return c

def g2_prologue_loader(b):
    g2_ids(b)
    srd(b, SRD_T, P_W2, W1B)
    g2_loader_addr(b)
    loader_init(b, (64 if SK() else 128) * 4096)
    for n in range(2): loader_issue(b, V_LO, W2F())

def g2_sk(b):
    c = g1_cfg(); c.name = "g2"; c.NS = 28
    b.label("g2_start")
    g2_ids(b)
    srd(b, SRD_P, P_WS, U_BYTES, WS_U)
    srd(b, SRD_O, P_OUT, 4 << 20)
    srd(b, SRD_X, P_B2, 2048 * 2)
    srd(b, SRD_Y, P_WS, 4 << 20, WS_H)
    b(f"  s_cmp_ge_u32 s{S_W}, 4")
    b(f"  s_cbranch_scc1 g2_loader")
    lane_geom(b)
    b(f"  s_lshl_b32 s{S_TMP}, s{S_TILE_A}, 2")
    b(f"  s_add_u32 s{S_TMP}, s{S_TMP}, s{S_W}        ; dblk")
    b(f"  s_mul_i32 s{S_TMP+2}, s{S_TMP}, 229376")
    b(f"  s_mul_i32 s{S_TMP+3}, s19, {112*1024}       ; k half")
    b(f"  s_add_u32 s{S_TMP+2}, s{S_TMP+2}, s{S_TMP+3}")
    b(f"  v_lshlrev_b32 v10, 4, v7")
    b(f"  v_add_u32 v{V_P}, s{S_TMP+2}, v10")
    b(f"  s_lshl_b32 s{S_TMP+1}, s{S_TILE_B}, 7")
    b(f"  s_lshl_b32 s{S_TMP+3}, s19, 6")
    b(f"  s_add_u32 s{S_TMP+1}, s{S_TMP+1}, s{S_TMP+3}")
    b(f"  v_add_u32 v11, s{S_TMP+1}, v8              ; s0 + s'")
    b(f"  v_lshlrev_b32 v16, 1, v11")
    for sb in range(2):
        b(f"  buffer_load_ushort v{12+sb}, v16, s[{SRD_X}:{SRD_X+3}], 0 offen offset:{64*sb}")
    b(f"  v_lshlrev_b32 v17, 11, v11")
    b(f"  v_lshl_add_u32 v17, v9, 5, v17")
    b(f"  s_lshl_b32 s{S_TMP+2}, s{S_TMP}, 6")
    b(f"  v_add_u32 v28, s{S_TMP+2}, v17")
    HV = 192
    b(f"  v_lshl_add_u32 v20, v9, 3, v18")
    b(f"  v_lshlrev_b32 v20, 8, v20")
    b(f"  v_lshl_add_u32 v20, v18, 6, v20")
    b(f"  v_lshl_add_u32 v20, v19, 5, v20")
    b(f"  v_lshl_add_u32 v{V_T}, v22, 3, v20")
    b(f"  s_cmp_eq_u32 s19, 0")
    b(f"  s_cselect_b32 s{S_TMP+3}, 128, 0")
    b(f"  v_xor_b32 v{V_T}, s{S_TMP+3}, v{V_T}")
    for fb in range(1, 4):
        b(f"  v_xor_b32 v{V_T+fb}, {64*fb}, v{V_T}")
    b(f"  s_lshl_b32 s{S_TMP+1}, s{S_W}, 12")
    b(f"  s_lshl_b32 s{S_TMP+2}, s2, 14")
    b(f"  s_add_u32 s{S_TMP+2}, s{S_TMP+2}, s{S_TMP+1}")
    b(f"  v_add_u32 v29, s{S_TMP+2}, v10")
    b(f"  s_xor_b32 s{S_TMP+2}, s2, 1")
    b(f"  s_lshl_b32 s{S_TMP+2}, s{S_TMP+2}, 14")
    b(f"  s_add_u32 s{S_TMP+2}, s{S_TMP+2}, s{S_TMP+1}")
    b(f"  v_add_u32 v30, s{S_TMP+2}, v10")
    for i in range(64): b(f"  v_mov_b32 v{V_ACC+i}, 0")
    def w4():
        b(f"  s_lshl_b32 s18, s{S_TILE_A}, 1")
        b(f"  s_add_u32 s18, s18, s19")
        wait(b, 3, 14, "x4c", single_sreg=18)
        stamp(b, "x4 released")
        stamp(b, "c:g2 start")
    def hloads():
        for sb in range(2):
            b(f"  s_mov_b32 s{S_TMP+1}, {sb*65536}")
            b(f"  buffer_load_dwordx4 {vr(HV+8*sb,4)}, v28, s[{SRD_Y}:{SRD_Y+3}], s{S_TMP+1} offen{LF}")
            b(f"  buffer_load_dwordx4 {vr(HV+8*sb+4,4)}, v28, s[{SRD_Y}:{SRD_Y+3}], s{S_TMP+1} offen offset:16{LF}")
    srd_later = True
    def send_lines(k):
        T0 = 208 + 8 * k; a = V_ACC + 16 * k
        L = [f"  v_cvt_pk_bf16_f32 v{T0+i}, v{a+2*i}, v{a+2*i+1}" for i in range(8)]
        L += [f"  v_min_u32 v{T0+i}, 0xfffffffe, v{T0+i}" for i in range(8)]
        L += [f"  buffer_store_dwordx4 {vr(T0+4*p,4)}, v30, s[{SRD_X}:{SRD_X+3}], 0 offen offset:{(2*k+p)*1024}{SF}" for p in range(2)]
        return L
    def hloads2():
        hloads()
    if "skew" in OPT:
        def w4x():
            w4()
        def hl():
            hloads()
        b(f"  s_waitcnt vmcnt(0)")
        srd(b, SRD_X, P_WS, 4 << 20, WS_XCH)
        gemm_core(b, c, "g2", w4, hloads, {0: send_lines(0), 1: send_lines(1)})
    else:
        gemm_core(b, c, "g2", w4, hloads)
    stamp(b, "c:g2 end")
    stamp(b, "g2 main done")
    T = c.VT
    if "skew" not in OPT:
        srd(b, SRD_X, P_WS, 4 << 20, WS_XCH)
        b(f"  s_nop 9")
        for k in range(2):
            for line in send_lines(k): b(line)
    KEEP = V_ACC + 32
    RX = c.VPR
    b(f"  s_mov_b32 s11, 200000")
    b.label("g2x_poll")
    for k in range(4):
        b(f"  buffer_load_dwordx4 {vr(RX+4*k,4)}, v29, s[{SRD_X}:{SRD_X+3}], 0 offen offset:{k*1024} sc1")
    b(f"  s_waitcnt vmcnt(0)")
    sentinel_check(b, RX, "g2x", n=16)
    stamp(b, "g2 x landed")
    b(f"  s_mov_b32 s{S_TMP}, 0xffff0000")
    for blk in range(2):
        for i in range(8):
            a = KEEP + blk * 16 + 2 * i; r = RX + 8 * blk + i
            b(f"  v_lshlrev_b32 v16, 16, v{r}")
            b(f"  v_and_b32 v17, s{S_TMP}, v{r}")
            b(f"  v_add_f32 v{a}, v{a}, v16")
            b(f"  v_add_f32 v{a+1}, v{a+1}, v17")
    for sb in range(2):
        b(f"  v_lshlrev_b32 v{12+sb}, 16, v{12+sb}")
    for sb in range(2):
        for half in range(2):
            o = T + 4 * ((sb * 2 + half) % 2)
            for dd in range(4):
                a = KEEP + sb * 16 + half * 8 + 2 * dd
                hv = HV + 8 * sb + 4 * half + dd
                t0 = T + 8 + 4 * dd
                b(f"  v_lshlrev_b32 v{t0}, 16, v{hv}")
                b(f"  v_and_b32 v{t0+1}, s{S_TMP}, v{hv}")
                b(f"  v_pk_add_f32 {vr(t0,2)}, {vr(t0,2)}, {vr(a,2)}")
                b(f"  v_add_f32 v{t0}, v{t0}, v{12+sb}")
                b(f"  v_add_f32 v{t0+1}, v{t0+1}, v{12+sb}")
                b(f"  v_cvt_pk_bf16_f32 v{o+dd}, v{t0}, v{t0+1}")
            b(f"  s_mov_b32 s{S_TMP+1}, {sb*65536}")
            b(f"  buffer_store_dwordx4 {vr(o,4)}, v28, s[{SRD_O}:{SRD_O+3}], s{S_TMP+1} offen offset:{16*half}{OF()}")
    stamp(b, "g2 stores issued")
    b(f"  s_branch g2_done")
    b.label("g2_loader")
    b(f"  s_barrier                      ; matches the barrier inside wait(x4)")
    loader_loop(b, c.NS, "g2", W2F())
    b.label("g2_done")

def g2(b):
    if SK(): return g2_sk(b)
    c = g2_cfg()
    b.label("g2_start")
    g2_ids(b)
    srd(b, SRD_P, P_WS, U_BYTES, WS_U)
    srd(b, SRD_O, P_OUT, 4 << 20)
    srd(b, SRD_X, P_B2, 2048 * 2)
    srd(b, SRD_Y, P_WS, 4 << 20, WS_H)
    b(f"  s_cmp_ge_u32 s{S_W}, 4")
    b(f"  s_cbranch_scc1 g2_loader")
    lane_geom(b)
    b(f"  s_lshl_b32 s{S_TMP}, s{S_TILE_A}, 2")
    b(f"  s_add_u32 s{S_TMP}, s{S_TMP}, s{S_W}        ; dblk")
    b(f"  s_mul_i32 s{S_TMP+2}, s{S_TMP}, 229376")
    b(f"  v_lshlrev_b32 v10, 4, v7")
    b(f"  v_add_u32 v{V_P}, s{S_TMP+2}, v10")
    b(f"  s_lshl_b32 s{S_TMP+1}, s{S_TILE_B}, 6       ; s0")
    b(f"  v_add_u32 v11, s{S_TMP+1}, v8              ; s0 + s'")
    b(f"  v_lshlrev_b32 v16, 1, v11")
    for sb in range(2):
        b(f"  buffer_load_ushort v{12+sb}, v16, s[{SRD_X}:{SRD_X+3}], 0 offen offset:{64*sb}")
    b(f"  v_lshlrev_b32 v17, 11, v11")
    b(f"  v_lshl_add_u32 v17, v9, 5, v17")
    b(f"  s_lshl_b32 s{S_TMP+2}, s{S_TMP}, 6")
    b(f"  v_add_u32 v28, s{S_TMP+2}, v17")
    HV = 160
    b(f"  v_lshl_add_u32 v20, v9, 3, v18            ; row")
    b(f"  v_bfe_u32 v21, v18, 1, 1")
    b(f"  v_lshlrev_b32 v20, 7, v20")
    b(f"  v_lshl_add_u32 v20, v21, 6, v20")
    b(f"  v_lshl_add_u32 v20, v19, 5, v20")
    b(f"  v_lshl_add_u32 v{V_T}, v22, 3, v20")
    b(f"  v_xor_b32 v{V_T+1}, 64, v{V_T}")
    for i in range(32): b(f"  v_mov_b32 v{V_ACC+i}, 0")
    def w4():
        wait(b, 3, 28, "x4c", single_sreg=S_TILE_A)
        stamp(b, "x4 released")
        stamp(b, "c:g2 start")
    def hloads():
        for sb in range(2):
            b(f"  s_mov_b32 s{S_TMP+1}, {sb*65536}")
            b(f"  buffer_load_dwordx4 {vr(HV+8*sb,4)}, v28, s[{SRD_Y}:{SRD_Y+3}], s{S_TMP+1} offen{LF}")
            b(f"  buffer_load_dwordx4 {vr(HV+8*sb+4,4)}, v28, s[{SRD_Y}:{SRD_Y+3}], s{S_TMP+1} offen offset:16{LF}")
    gemm_core(b, c, "g2", w4, hloads)
    stamp(b, "c:g2 end")
    stamp(b, "g2 main done")
    T = c.VT
    b(f"  s_mov_b32 s{S_TMP}, 0xffff0000")
    for sb in range(2):
        b(f"  v_lshlrev_b32 v{12+sb}, 16, v{12+sb}")
    b(f"  s_nop 9")
    for sb in range(2):
        for half in range(2):
            o = T + 4 * ((sb * 2 + half) % 2)
            for dd in range(4):
                a = V_ACC + sb * 16 + half * 8 + 2 * dd
                hv = HV + 8 * sb + 4 * half + dd
                t0 = T + 8 + 4 * dd
                b(f"  v_cvt_pk_bf16_f32 v{t0}, v{a}, v{a+1}")
                b(f"  v_and_b32 v{t0+1}, s{S_TMP}, v{t0}")
                b(f"  v_lshlrev_b32 v{t0}, 16, v{t0}")
                b(f"  v_add_f32 v{t0}, v{t0}, v{12+sb}")
                b(f"  v_add_f32 v{t0+1}, v{t0+1}, v{12+sb}")
                b(f"  v_cvt_pk_bf16_f32 v{t0}, v{t0}, v{t0+1}")
                b(f"  v_and_b32 v{t0+1}, s{S_TMP}, v{t0}")
                b(f"  v_lshlrev_b32 v{t0}, 16, v{t0}")
                b(f"  v_lshlrev_b32 v{t0+2}, 16, v{hv}")
                b(f"  v_and_b32 v{t0+3}, s{S_TMP}, v{hv}")
                b(f"  v_add_f32 v{t0}, v{t0}, v{t0+2}")
                b(f"  v_add_f32 v{t0+1}, v{t0+1}, v{t0+3}")
                b(f"  v_cvt_pk_bf16_f32 v{o+dd}, v{t0}, v{t0+1}")
            b(f"  s_mov_b32 s{S_TMP+1}, {sb*65536}")
            b(f"  buffer_store_dwordx4 {vr(o,4)}, v28, s[{SRD_O}:{SRD_O+3}], s{S_TMP+1} offen offset:{16*half}")
    stamp(b, "g2 stores issued")
    b(f"  s_branch g2_done")
    b.label("g2_loader")
    b(f"  s_barrier                      ; matches the barrier inside wait(x4)")
    loader_loop(b, c.NS, "g2", W2F())
    b.label("g2_done")

def build():
    NAME = "sequential_preLN__spectral_gfnet__mixer_token_mlp__prompt"
    hdr = open(f"cdna_kernels/{NAME}.s.ref").read().split("; Override launch")[0]
    K = NAME + "_kernel"
    b = B()
    b(hdr.rstrip("\n"))
    b(f"; @launch grid=(256,1,1) block=(512,1,1) lds={LDS_TOTAL}")
    b('.amdgcn_target "amdgcn-amd-amdhsa--gfx950"\n.text')
    b(f".globl {K}\n.p2align 8\n.type {K},@function\n{K}:")
    b(f"  s_cmp_ge_u32 s2, 256\n  s_cbranch_scc1 k_exit")
    if "stamp" in OPT: b("  v_mov_b32 v231, 0")
    stamp(b, "entry")
    b(f"  s_load_dwordx4 s[{P_X}:{P_X+3}], s[0:1], 0        ; x, w_r")
    b(f"  s_load_dwordx2 s[{P_WI}:{P_WI+1}], s[0:1], 16")
    b(f"  s_load_dwordx2 s[{P_W1}:{P_W1+1}], s[0:1], 32")
    b(f"  s_load_dwordx4 s[{P_B1}:{P_B1+3}], s[0:1], 40     ; b1, w2")
    b(f"  s_load_dwordx4 s[{P_B2}:{P_B2+3}], s[0:1], 56     ; b2, out")
    b(f"  s_load_dwordx4 s[{P_DBG}:{P_DBG+3}], s[0:1], 72")
    b(f"  v_lshrrev_b32 v6, 6, v0")
    b(f"  v_and_b32 v7, 63, v0        ; lane")
    b(f"  v_readfirstlane_b32 s{S_W}, v6")
    b(f"  v_and_b32 v8, 15, v7          ; c")
    b(f"  v_lshrrev_b32 v9, 4, v7       ; g")
    b(f"  s_waitcnt lgkmcnt(0)")
    srd(b, SRD_CNT, P_WS, 65536, WS_CNT)
    p1(b)
    p2_setup(b)
    wait(b, 0, 16, "x1c")
    stamp(b, "x1 released")
    p2_main(b)
    p3_setup(b)
    if SENT(): b("  s_barrier")
    else: wait(b, 1, 16, "x2c")
    stamp(b, "x2 released")
    p3_main(b)
    g1(b)
    g2(b)
    b(f"  s_waitcnt vmcnt(0)")
    stamp(b, "end")
    stamp_flush(b)
    b("k_exit:\n  s_endpgm")
    b(kd(K, 240, sgpr=102))
    return b.text()

if __name__ == "__main__":
    out = sys.argv[1]
    OPT.update(sys.argv[2:])
    for o in sys.argv[2:]:
        if o.startswith("pfn="): PFN[:] = [int(c) for c in o[4:].split(",")]
    gemm.OPT.update(sys.argv[2:])
    t = build()
    open(out, "w").write(t)
    rep = check_text(t)
    print("\n".join(rep) if rep else "no hazards found", "| stamps:", nstamp[0])
```

```python
import sys
from asmlib import *
import gemm, fft
from gemm import (srd, f2u, WS_X1, WS_X2, WS_H, WS_LN2, WS_U, U_BYTES, S_W, R, STAGE, PR, DQ,
                  V_P, V_T, V_ACC, S_POFF, S_IT, S_DELTA, SRD_P, SRD_T, SRD_O, SRD_X, SRD_Y, S_TILE_A, S_TILE_B, S_TMP,
                  g1_cfg, g2_cfg, lane_geom)
from fft import sincos, wave_reduce, ln_finish, layernorm16, cmul_pk, gmat, MF32, MF16

OPT = set()
N7 = [0]
WPN = [0]
PFN = [0, 4, 0, 4]
WS_CNT = 30 << 20
WS_STAMP = 31 << 20
WS_WP = 32 << 20
WS_XCH = 24 << 20
W1B = 2048 * 3584 * 2
WB = 2048 * 1026

P_X, P_WR, P_WI, P_W1, P_B1, P_W2, P_B2, P_OUT, P_DBG, P_WS = 64, 66, 68, 70, 72, 74, 76, 78, 80, 82
SRD_CNT = 12
S_T = 46
SRD_A, SRD_B, SRD_C, SRD_D = 24, 28, 32, 36
SRD_PF = 56
S_STAMP = 84
SF = " sc1"
LF = ""

L1_M1, L1_M2, L1_TW, L1_EX = 0, 4096, 8192, 16384
L2_F = 32768; L2_X = L2_F + 2048; L2_W = L2_X + 16 * 1040
L3_M3 = 98304; L3_M4 = L3_M3 + 4096; L3_TW = L3_M3 + 8192; L3_EX = L3_M3 + 16384
L3_LN = L3_EX + 16384; L3_RS = 2624
LDS_TOTAL = L3_LN + 8 * L3_RS
assert LDS_TOTAL <= 163840

STAMPS = ["entry", "p1 x landed", "p1 stores issued", "p1 arrived", "x1 released", "p2 x landed", "p2 stores issued",
          "x2 released", "p3 x2 landed", "p3 stores issued", "x3 released", "g1 main done", "g1 stores issued", "x4 released",
          "g2 main done", "g2 stores issued", "end", "x1 drained", "x2 drained", "x3 drained", "x4 drained", "p1 tables done", "p1 ln done", "p1 fft done", "p3 ifft done", "p3 ln done", "c:g1 start", "c:g1 end", "c:g2 start", "c:g2 end", "g2 x landed", "p2 w landed"]
nstamp = [len(STAMPS)]
SENT = lambda: "bar" not in OPT
SK = lambda: "nosk" not in OPT
W1F = lambda: " nt" if "ntw1" in OPT else ""
W2F = lambda: " nt" if "ntw2" in OPT else ""
XF = lambda: " nt" if ("ntx" in OPT or "ntx1" in OPT) else ""
OF = lambda: " sc1" if "outsc1" in OPT else (" nt" if "outnt" in OPT else "")
WF = lambda: " nt" if ("ntx" in OPT or "ntw" in OPT) else ""
L_XS = 69632
def stamp(b, name):
    if "stamp" not in OPT: return
    i = STAMPS.index(name)
    op = "s_memtime" if name.startswith("c:") else "s_memrealtime"
    b(f"  {op} s[{S_STAMP}:{S_STAMP+1}]   ; stamp {i}: {name}")
    b(f"  s_waitcnt lgkmcnt(0)")
    b(f"  v_writelane_b32 v231, s{S_STAMP}, {i}")

def stamp_flush(b):
    if "stamp" not in OPT: return
    if "dbgmax" in OPT:
        SEL = [1, 23, 2, 17, 3, 4, 5, 6, 18, 7, 8, 9, 19, 10]
        srd(b, 24, P_DBG, 256)
        b(f"  v_readlane_b32 s46, v231, 0")
        b(f"  s_sub_u32 s47, 0, s46")
        b(f"  v_mov_b32 v3, 0")
        b(f"  v_writelane_b32 v3, s47, 0")
        b(f"  v_writelane_b32 v3, s46, 15")
        for i, st in enumerate(SEL):
            b(f"  v_readlane_b32 s46, v231, {st}")
            b(f"  s_nop 3")
            b(f"  v_writelane_b32 v3, s46, {i+1}")
        b(f"  v_lshlrev_b32 v2, 2, v7")
        b(f"  s_mov_b64 s[48:49], exec")
        b(f"  s_mov_b64 exec, 0xffff")
        b(f"  buffer_atomic_umax v3, v2, s[24:27], 0 offen sc1")
        b(f"  s_mov_b64 exec, s[48:49]")
        return
    if "dbgtime" in OPT:
        b(f"  s_cmp_lg_u32 s2, 100")
        b(f"  s_cbranch_scc1 dbg_skip")
        b(f"  s_cmp_lg_u32 s{S_W}, 0")
        b(f"  s_cbranch_scc1 dbg_skip")
        srd(b, 24, P_DBG, 256)
        b(f"  v_readlane_b32 s46, v231, 0")
        b(f"  s_nop 1")
        b(f"  v_subrev_u32 v3, s46, v231")
        b(f"  v_lshlrev_b32 v2, 2, v7")
        b(f"  v_subrev_u32 v2, 4, v2")
        b(f"  s_mov_b64 s[48:49], exec")
        b(f"  s_mov_b64 exec, 0x1fffe")
        b(f"  buffer_store_dword v3, v2, s[24:27], 0 offen")
        b(f"  s_mov_b64 exec, s[48:49]")
        b.label("dbg_skip")
        return
    srd(b, 24, P_WS, 1 << 20, WS_STAMP)
    b(f"  s_lshl_b32 s46, s2, 3")
    b(f"  s_add_u32 s46, s46, s{S_W}")
    b(f"  s_lshl_b32 s46, s46, 7            ; (wg*8+wave)*128")
    b(f"  v_lshlrev_b32 v2, 2, v7")
    b(f"  s_mov_b64 s[48:49], exec")
    b(f"  s_mov_b64 exec, 0xffffffff")
    b(f"  buffer_store_dword v231, v2, s[24:27], s46 offen")
    b(f"  s_mov_b64 exec, s[48:49]")

def arrive(b, bar, shard_sreg, first=False, label="", drained=False):
    if not drained: b(f"  s_waitcnt vmcnt(0)")
    stamp(b, f"x{bar+1} drained")
    b(f"  s_barrier")
    b(f"  s_cmp_lg_u32 s{S_W}, 0")
    b(f"  s_cbranch_scc1 {label}_arr_skip")
    if first:
        b(f"  s_mov_b32 s11, 100000")
        b.label(f"{label}_rdy")
        b(f"  v_cmp_ne_u32 vcc, 0, v27")
        b(f"  s_nop 1")
        b(f"  s_cmp_eq_u64 vcc, exec")
        b(f"  s_cbranch_scc1 {label}_rdy_ok")
        b(f"  buffer_load_dword v27, v26, s[{SRD_PF}:{SRD_PF+3}], 0 offen sc1")
        b(f"  s_waitcnt vmcnt(0)")
        b(f"  s_sub_u32 s11, s11, 1")
        b(f"  s_cmp_lg_u32 s11, 0")
        b(f"  s_cbranch_scc1 {label}_rdy")
        b.label(f"{label}_rdy_ok")
    b(f"  s_lshl_b32 s10, s{shard_sreg}, 8")
    b(f"  s_add_u32 s10, s10, {bar*4096}")
    b(f"  v_mov_b32 v228, s10")
    b(f"  v_mov_b32 v229, 1")
    b(f"  s_mov_b64 s[16:17], exec")
    b(f"  s_mov_b64 exec, 1")
    b(f"  buffer_atomic_add v229, v228, s[{SRD_CNT}:{SRD_CNT+3}], 0 offen sc1")
    b(f"  s_mov_b64 exec, s[16:17]")
    b.label(f"{label}_arr_skip")

def wait(b, bar, target, label, single_sreg=None):
    b(f"  s_cmp_lg_u32 s{S_W}, 0")
    b(f"  s_cbranch_scc1 {label}_w_skip")
    if single_sreg is None:
        b(f"  v_and_b32 v228, 15, v7")
        b(f"  v_lshlrev_b32 v228, 8, v228")
        b(f"  v_add_u32 v228, {bar*4096}, v228")
    else:
        b(f"  s_lshl_b32 s10, s{single_sreg}, 8")
        b(f"  s_add_u32 s10, s10, {bar*4096}")
        b(f"  v_mov_b32 v228, s10")
    b(f"  s_mov_b32 s11, 200000")
    if "pp" in OPT:
        b(f"  buffer_load_dword v229, v228, s[{SRD_CNT}:{SRD_CNT+3}], 0 offen sc1")
        b(f"  s_nop 15")
        b(f"  s_nop 15")
        b(f"  buffer_load_dword v226, v228, s[{SRD_CNT}:{SRD_CNT+3}], 0 offen sc1")
        b.label(f"{label}_poll")
        for r in (229, 226):
            b(f"  s_waitcnt vmcnt(1)")
            b(f"  v_cmp_le_u32 vcc, {target}, v{r}")
            b(f"  s_nop 1")
            b(f"  s_cmp_eq_u64 vcc, exec")
            b(f"  s_cbranch_scc1 {label}_w_skip")
            b(f"  buffer_load_dword v{r}, v228, s[{SRD_CNT}:{SRD_CNT+3}], 0 offen sc1")
        b(f"  s_sub_u32 s11, s11, 1")
        b(f"  s_cmp_lg_u32 s11, 0")
        b(f"  s_cbranch_scc1 {label}_poll")
    else:
        b.label(f"{label}_poll")
        b(f"  buffer_load_dword v229, v228, s[{SRD_CNT}:{SRD_CNT+3}], 0 offen sc1")
        b(f"  s_waitcnt vmcnt(0)")
        b(f"  v_cmp_le_u32 vcc, {target}, v229")
        b(f"  s_nop 1")
        b(f"  s_cmp_eq_u64 vcc, exec")
        b(f"  s_cbranch_scc1 {label}_w_skip")
        b(f"  s_sub_u32 s11, s11, 1")
        b(f"  s_cmp_lg_u32 s11, 0")
        b(f"  s_cbranch_scc1 {label}_poll")
    b.label(f"{label}_w_skip")
    b(f"  s_barrier")

def prefetch(b, ptr_pair, nbytes, start, length, who_scale, who_sreg, vaddr, vdst, stmp, paced=False):
    chunk = -(-length // who_scale)
    n_per_wave = -(-chunk // (512 * 128))
    stride = -(-chunk // (512 * n_per_wave))
    stride = (stride + 3) // 4 * 4
    per_instr = 64 * stride
    srd(b, SRD_PF, ptr_pair, nbytes)
    b(f"  s_mul_i32 s{stmp}, s{who_sreg}, {chunk}")
    b(f"  s_mul_i32 s{stmp+1}, s{S_W}, {n_per_wave*per_instr}")
    b(f"  s_add_u32 s{stmp}, s{stmp}, s{stmp+1}")
    if start: b(f"  s_add_u32 s{stmp}, s{stmp}, {start}")
    b(f"  v_mul_u32_u24 v{vaddr}, {stride}, v7")
    for i in range(n_per_wave):
        b(f"  buffer_load_dword v{vdst}, v{vaddr}, s[{SRD_PF}:{SRD_PF+3}], s{stmp} offen")
        if i + 1 < n_per_wave: b(f"  s_add_u32 s{stmp}, s{stmp}, {per_instr}")
        if paced: b(f"  s_waitcnt vmcnt(0)")
    return n_per_wave

V_DUMMY = 232
def pf_wide(b, ptr_pair, nbytes, s_base, n, wave_lo, wave_hi, label):
    b(f"  s_cmp_lt_u32 s{S_W}, {wave_lo}")
    b(f"  s_cbranch_scc1 {label}")
    if wave_hi < 8:
        b(f"  s_cmp_ge_u32 s{S_W}, {wave_hi}")
        b(f"  s_cbranch_scc1 {label}")
    srd(b, SRD_PF, ptr_pair, nbytes)
    b(f"  s_sub_u32 s{S_T+9}, s{S_W}, {wave_lo}")
    b(f"  s_mul_i32 s{S_T+9}, s{S_T+9}, {n*1024}")
    b(f"  s_add_u32 s{S_T+9}, s{S_T+9}, s{s_base}")
    b(f"  v_lshlrev_b32 v29, 4, v7")
    for i in range(n):
        if i and i % 4 == 0: b(f"  s_add_u32 s{S_T+9}, s{S_T+9}, 4096")
        b(f"  buffer_load_dwordx4 {vr(V_DUMMY,4)}, v29, s[{SRD_PF}:{SRD_PF+3}], s{S_T+9} offen offset:{(i%4)*1024}")
    b.label(label)

def w1_share_base(b, sreg, part):
    b(f"  s_mul_i32 s{sreg}, s2, {W1B // 256}")
    if part: b(f"  s_add_u32 s{sreg}, s{sreg}, {part}")

def w1_first_half_base(b, sreg, part):
    b(f"  s_and_b32 s{sreg}, s2, 7")
    b(f"  s_mul_i32 s{sreg}, s{sreg}, {256*7168}")
    b(f"  s_lshr_b32 s{S_T+9}, s2, 3")
    b(f"  s_mul_i32 s{S_T+9}, s{S_T+9}, {4*7168}")
    b(f"  s_add_u32 s{sreg}, s{sreg}, s{S_T+9}")
    if part: b(f"  s_add_u32 s{sreg}, s{sreg}, {part}")

def p1_tables(b):
    M1, M2, TW = L1_M1, L1_M2, L1_TW
    b(f"  v_and_b32 v10, 255, v0            ; e")
    b(f"  v_lshrrev_b32 v11, 8, v0          ; u")
    b(f"  v_bfe_u32 v12, v10, 2, 4          ; lane&15")
    b(f"  v_lshl_add_u32 v12, v11, 4, v12   ; k1")
    b(f"  v_lshrrev_b32 v13, 6, v10         ; g")
    b(f"  v_and_b32 v14, 3, v10")
    b(f"  v_lshlrev_b32 v13, 3, v13")
    b(f"  v_lshl_add_u32 v13, v14, 1, v13   ; a0 = 8g + 2i")
    b(f"  v_mul_u32_u24 v15, v13, v12       ; a0*k1")
    b(f"  v_add_u32 v16, v15, v12           ; (a0+1)*k1")
    sincos(b, 17, 18, 15, 5, 21)
    sincos(b, 19, 20, 16, 5, 21)
    b(f"  v_lshlrev_b32 v22, 2, v10")
    b(f"  v_lshl_add_u32 v22, v11, 11, v22  ; u*2048 + e*4")
    b(f"  v_cvt_pk_bf16_f32 v23, v17, v19")
    b(f"  v_cvt_pk_bf16_f32 v24, -v18, -v20")
    b(f"  ds_write_b32 v22, v23 offset:{M1}")
    b(f"  ds_write_b32 v22, v24 offset:{M1+1024}")
    sincos(b, 17, 18, 15, 10, 21)
    sincos(b, 19, 20, 16, 10, 21)
    b(f"  ds_write_b32 v22, v17 offset:{TW}")
    b(f"  ds_write_b32 v22, v18 offset:{TW+1024}")
    b(f"  ds_write_b32 v22, v19 offset:{TW+4096}")
    b(f"  ds_write_b32 v22, v20 offset:{TW+4096+1024}")
    b(f"  v_bfe_u32 v12, v10, 2, 4          ; k2")
    b(f"  v_mul_u32_u24 v15, v13, v12")
    b(f"  v_add_u32 v16, v15, v12")
    sincos(b, 17, 18, 15, 5, 21)
    sincos(b, 19, 20, 16, 5, 21)
    b(f"  v_lshlrev_b32 v22, 2, v10")
    b(f"  v_cvt_pk_bf16_f32 v23, v17, v19")
    b(f"  v_cvt_pk_bf16_f32 v24, v18, v20")
    b(f"  v_cvt_pk_bf16_f32 v25, -v18, -v20")
    b(f"  ds_write_b32 v22, v23 offset:{M2}")
    b(f"  ds_write_b32 v22, v24 offset:{M2+1024}")
    b(f"  ds_write_b32 v22, v25 offset:{M2+2048}")

def ln_fast(b, X, T, S0, alt):
    b(f"  v_readlane_b32 s{S0}, v{X}, 0              ; pivot")
    b(f"  s_nop 1")
    for i in range(0, 16, 2):
        b(f"  v_pk_add_f32 {vr(X+i,2)}, {vr(X+i,2)}, s[{S0}:{S0+1}] op_sel_hi:[1,0] neg_lo:[0,1] neg_hi:[0,1]")
    b(f"  v_pk_add_f32 {vr(T,2)}, {vr(X,2)}, {vr(X+2,2)}")
    b(f"  v_pk_add_f32 {vr(T+2,2)}, {vr(X+8,2)}, {vr(X+10,2)}")
    b(f"  v_pk_mul_f32 {vr(T+4,2)}, {vr(X,2)}, {vr(X,2)}")
    b(f"  v_pk_add_f32 {vr(T,2)}, {vr(T,2)}, {vr(X+4,2)}")
    b(f"  v_pk_add_f32 {vr(T+2,2)}, {vr(T+2,2)}, {vr(X+12,2)}")
    b(f"  v_pk_fma_f32 {vr(T+4,2)}, {vr(X+2,2)}, {vr(X+2,2)}, {vr(T+4,2)}")
    b(f"  v_pk_add_f32 {vr(T,2)}, {vr(T,2)}, {vr(X+6,2)}")
    b(f"  v_pk_add_f32 {vr(T+2,2)}, {vr(T+2,2)}, {vr(X+14,2)}")
    for i in range(4, 16, 2):
        b(f"  v_pk_fma_f32 {vr(T+4,2)}, {vr(X+i,2)}, {vr(X+i,2)}, {vr(T+4,2)}")
    b(f"  v_add_f32 v{T}, v{T}, v{T+1}")
    b(f"  v_add_f32 v{T+2}, v{T+2}, v{T+3}")
    if not alt: b(f"  v_add_f32 v{T}, v{T}, v{T+2}")
    b(f"  v_add_f32 v{T+4}, v{T+4}, v{T+5}           ; squares")
    if alt:
        wave_reduce(b, [T, T+2, T+4])
        b(f"  v_sub_f32 v{T+1}, v{T}, v{T+2}             ; E - O")
        b(f"  v_add_f32 v{T}, v{T}, v{T+2}")
        b(f"  s_nop 0")
        b(f"  v_readlane_b32 s{S0+2}, v{T}, 63")
        b(f"  v_readlane_b32 s{S0+3}, v{T+4}, 63")
        b(f"  v_readlane_b32 s{S0+4}, v{T+1}, 63")
    else:
        wave_reduce(b, [T, T+4])
        b(f"  s_nop 0")
        b(f"  v_readlane_b32 s{S0+2}, v{T}, 63")
        b(f"  v_readlane_b32 s{S0+3}, v{T+4}, 63")
    b(f"  s_nop 0")
    b(f"  v_mov_b32 v{T}, {hex(f2u(1.0/1024))}")
    b(f"  v_mul_f32 v{T+1}, s{S0+2}, v{T}")
    b(f"  v_mul_f32 v{T+2}, s{S0+3}, v{T}")
    b(f"  v_fma_f32 v{T+2}, -v{T+1}, v{T+1}, v{T+2}  ; variance")
    b(f"  v_max_f32 v{T+2}, 0, v{T+2}")
    b(f"  v_add_f32 v{T+2}, {hex(f2u(1e-5))}, v{T+2}")
    b(f"  v_rsq_f32 v{T+4}, v{T+2}")
    b(f"  s_nop 0")
    b(f"  v_mul_f32 v{T+8}, -v{T+1}, v{T+4}          ; -mean*rstd")
    if alt: b(f"  v_mul_f32 v{T+6}, s{S0+4}, v{T+4}")
    for i in range(0, 16, 2):
        b(f"  v_pk_fma_f32 {vr(X+i,2)}, {vr(X+i,2)}, {vr(T+4,2)}, {vr(T+8,2)} op_sel_hi:[1,0,0]")

def x1_store_addr(b):
    b(f"  v_lshlrev_b32 v5, 15, v9")
    b(f"  v_lshl_add_u32 v5, v8, 2, v5")
    b(f"  s_and_b32 s{S_T+6}, s2, 15")
    b(f"  s_lshl_b32 s{S_T+6}, s{S_T+6}, 4")
    b(f"  s_lshr_b32 s{S_T+7}, s2, 4")
    b(f"  s_add_u32 s{S_T+6}, s{S_T+6}, s{S_T+7}")
    b(f"  s_lshl_b32 s{S_T+6}, s{S_T+6}, 6       ; pos*64")
    b(f"  s_lshl_b32 s{S_T+7}, s{S_W}, 19        ; 4w*131072")
    b(f"  s_add_u32 s44, s{S_T+6}, s{S_T+7}")

def w_early(b):
    srd(b, SRD_C, P_WR, WB)
    srd(b, SRD_D, P_WI, WB)
    b(f"  s_and_b32 s{S_T+2}, s2, 7              ; j1")
    b(f"  v_and_b32 v215, 1, v0                ; half")
    b(f"  v_bfe_u32 v11, v0, 5, 4              ; c")
    b(f"  v_bfe_u32 v12, v0, 1, 4              ; e")
    b(f"  v_lshl_add_u32 v13, v12, 4, v11      ; j2")
    b(f"  v_lshlrev_b32 v13, 3, v13")
    b(f"  v_add_u32 v13, s{S_T+2}, v13         ; j")
    b(f"  v_mul_u32_u24 v214, 1026, v13")
    b(f"  v_lshl_add_u32 v14, v215, 4, v214")
    b(f"  s_lshr_b32 s{S_T+3}, s2, 3           ; kb")
    b(f"  s_lshl_b32 s{S_T+3}, s{S_T+3}, 5")
    b(f"  buffer_load_dwordx4 {vr(WE,4)}, v14, s[{SRD_C}:{SRD_C+3}], s{S_T+3} offen{WF()}")
    b(f"  buffer_load_dwordx4 {vr(WE+4,4)}, v14, s[{SRD_D}:{SRD_D+3}], s{S_T+3} offen{WF()}")

def p1(b):
    srd(b, SRD_A, P_X, 4 << 20)
    srd(b, SRD_B, P_WS, 4 << 20, WS_X1)
    b(f"  s_lshl_b32 s{S_T}, s{S_W}, 8")
    b(f"  s_add_u32 s{S_T}, s{S_T}, s2          ; s")
    b(f"  s_lshl_b32 s{S_T+1}, s{S_T}, 11")
    b(f"  v_lshlrev_b32 v1, 9, v9")
    b(f"  v_lshl_add_u32 v1, v8, 2, v1")
    XD = 32
    b(f"  s_cmp_ge_u32 s2, 16")
    b(f"  s_cbranch_scc1 p1_noreset")
    b(f"  s_cmp_lg_u32 s{S_W}, 0")
    b(f"  s_cbranch_scc1 p1_noreset")
    b(f"  s_lshl_b32 s{S_T+2}, s2, 8")
    b(f"  v_lshlrev_b32 v2, 12, v7")
    b(f"  v_add_u32 v2, s{S_T+2}, v2")
    b(f"  v_mov_b32 v3, 0")
    b(f"  s_mov_b64 s[48:49], exec")
    b(f"  s_mov_b64 exec, 15")
    b(f"  buffer_store_dword v3, v2, s[{SRD_CNT}:{SRD_CNT+3}], 0 offen sc1")
    b(f"  s_mov_b64 exec, s[48:49]")
    b.label("p1_noreset")
    for i in range(8):
        b(f"  buffer_load_dword v{XD+i}, v1, s[{SRD_A}:{SRD_A+3}], s{S_T+1} offen offset:{64*i}{XF()}")
    NCLR = 0
    NWE = 0
    x1_store_addr(b)
    if SENT():
        b(f"  v_mov_b32 v60, -1")
        b(f"  v_mov_b32 v61, -1")
        b(f"  v_mov_b32 v62, -1")
        b(f"  v_mov_b32 v63, -1")
        b(f"  v_bfe_u32 v2, v7, 2, 3              ; j1")
        b(f"  v_lshrrev_b32 v3, 5, v7             ; i (0,1)")
        b(f"  v_lshlrev_b32 v2, 14, v2")
        b(f"  v_lshl_add_u32 v2, v3, 17, v2")
        b(f"  v_and_b32 v3, 3, v7")
        b(f"  v_lshl_add_u32 v2, v3, 4, v2")
        b(f"  buffer_store_dwordx4 v[60:63], v2, s[{SRD_B}:{SRD_B+3}], s44 offen{SF}")
        b(f"  s_add_u32 s{S_T+7}, s44, {2*131072}")
        b(f"  buffer_store_dwordx4 v[60:63], v2, s[{SRD_B}:{SRD_B+3}], s{S_T+7} offen{SF}")
        NCLR = 2
    if "tlbw" in OPT:
        b(f"  s_cmp_lg_u32 s{S_W}, 7")
        b(f"  s_cbranch_scc1 p1_notlb")
        sh = 20 if "tlb1m" in OPT else (19 if "tlb512k" in OPT else 21)
        b(f"  v_lshlrev_b32 v2, {sh}, v7")
        lst = [(P_WS, 36 << 20), (P_W1, W1B), (P_W2, W1B), (P_WR, WB), (P_WI, WB), (P_OUT, 4 << 20), (P_B1, 7168), (P_B2, 4096)]
        for ptr, size in lst:
            srd(b, SRD_PF, ptr, size)
            b(f"  s_mov_b64 s[16:17], exec")
            n = min(64, -(-size // (1 << sh)))
            b(f"  s_mov_b64 exec, {hex((1 << n) - 1)}")
            b(f"  buffer_load_dword v230, v2, s[{SRD_PF}:{SRD_PF+3}], 0 offen sc1")
            b(f"  s_mov_b64 exec, s[16:17]")
        if "codepf" in OPT:
            b(f"  s_cmp_ge_u32 s2, 16")
            b(f"  s_cbranch_scc1 p1_nocode")
            b(f"  s_getpc_b64 s[{S_T+8}:{S_T+9}]")
            b.label("p1_pc")
            b(f"  v_lshlrev_b32 v29, 7, v7")
            b(f"  s_mov_b32 s{S_T+7}, k_exit - p1_pc")
            for i in range(5):
                b(f"  v_min_u32 v28, s{S_T+7}, v29")
                b(f"  global_load_dword v230, v28, s[{S_T+8}:{S_T+9}]")
                b(f"  v_add_u32 v29, 8192, v29")
            b.label("p1_nocode")
        if "pf7" in OPT:
            n7 = 0
            if "wpf" in OPT:
                b(f"  s_mul_i32 s{S_T+8}, s2, 8208")
                b(f"  v_lshlrev_b32 v29, 4, v7")
                for ptr in (P_WR, P_WI):
                    srd(b, SRD_PF, ptr, WB)
                    b(f"  s_mov_b32 s{S_T+9}, s{S_T+8}")
                    for i in range(9):
                        if i and i % 4 == 0: b(f"  s_add_u32 s{S_T+9}, s{S_T+9}, 4096")
                        b(f"  buffer_load_dwordx4 {vr(V_DUMMY,4)}, v29, s[{SRD_PF}:{SRD_PF+3}], s{S_T+9} offen offset:{(i%4)*1024}")
                        n7 += 1
            if PFN[0]:
                w1_share_base(b, S_T + 9, 0)
                b(f"  v_lshlrev_b32 v29, 4, v7")
                srd(b, SRD_PF, P_W1, W1B)
                for i in range(4 * PFN[0]):
                    if i and i % 4 == 0: b(f"  s_add_u32 s{S_T+9}, s{S_T+9}, 4096")
                    b(f"  buffer_load_dwordx4 {vr(V_DUMMY,4)}, v29, s[{SRD_PF}:{SRD_PF+3}], s{S_T+9} offen offset:{(i%4)*1024}")
                    n7 += 1
            N7[0] = n7
        b.label("p1_notlb")
    if "wpack" in OPT:
        srd(b, SRD_C, P_WR, WB)
        srd(b, SRD_D, P_WI, WB)
        b(f"  s_lshl_b32 s{S_T+2}, s2, 3")
        b(f"  s_add_u32 s{S_T+2}, s{S_T+2}, s{S_W}")
        b(f"  s_mul_i32 s45, s{S_T+2}, 1026")
        b(f"  v_lshlrev_b32 v14, 4, v7")
        b(f"  buffer_load_dwordx4 {vr(WE,4)}, v14, s[{SRD_C}:{SRD_C+3}], s45 offen")
        b(f"  buffer_load_dwordx4 {vr(WE+4,4)}, v14, s[{SRD_D}:{SRD_D+3}], s45 offen")
        b(f"  v_mov_b32 v15, 1024")
        b(f"  buffer_load_ushort v212, v15, s[{SRD_C}:{SRD_C+3}], s45 offen")
        b(f"  buffer_load_ushort v213, v15, s[{SRD_D}:{SRD_D+3}], s45 offen")
        NCLR += 4
    if "wearly" in OPT:
        w_early(b); NCLR += 2
    npf = 0
    p1_tables(b)
    GM = 30
    gmat(b, GM, 2, False, 10)
    srd(b, SRD_PF, P_DBG, 256)
    b(f"  s_and_b32 s{S_T+8}, s2, 15")
    b(f"  s_lshl_b32 s{S_T+9}, s{S_T+8}, 2")
    b(f"  s_add_u32 s{S_T+9}, s{S_T+9}, 64")
    b(f"  v_mov_b32 v25, s{S_T+9}")
    b(f"  v_lshlrev_b32 v26, 2, v8")
    b(f"  v_add_u32 v26, 64, v26")
    b(f"  s_cmp_ge_u32 s2, 16")
    b(f"  s_cbranch_scc1 p1_noflag")
    b(f"  s_cmp_lg_u32 s{S_W}, 0")
    b(f"  s_cbranch_scc1 p1_noflag")
    b(f"  s_waitcnt vmcnt({8} + 0)".replace(" + 0", "") if NCLR == 0 else f"  s_waitcnt vmcnt({8 + NCLR})")
    b(f"  v_mov_b32 v3, 1")
    b(f"  s_mov_b64 s[48:49], exec")
    b(f"  s_mov_b64 exec, 1")
    b(f"  buffer_store_dword v3, v25, s[{SRD_PF}:{SRD_PF+3}], 0 offen sc1")
    b(f"  s_mov_b64 exec, s[48:49]")
    b.label("p1_noflag")
    b(f"  s_waitcnt lgkmcnt(0)")
    stamp(b, "p1 tables done")
    b(f"  s_barrier")
    npf = 0
    if "nopf" not in OPT:
        b(f"  s_mul_i32 s{S_T+8}, s2, 8208")
        if "ntx" not in OPT and "wpf" in OPT and "pf7" not in OPT:
            pf_wide(b, P_WR, WB, S_T + 8, 3, 0, 3, "pf_p1a")
            pf_wide(b, P_WI, WB, S_T + 8, 3, 0, 3, "pf_p1b")
        if "ntw1" not in OPT and PFN[0] and "pf7" not in OPT:
            w1_share_base(b, S_T + 8, 0)
            pf_wide(b, P_W1, W1B, S_T + 8, PFN[0], 4, 8, "pf_p1c")
    M1, M2, TW = 96, 112, 128
    b(f"  v_lshlrev_b32 v2, 4, v7")
    for i in range(4): b(f"  ds_read_b128 {vr(M1+4*i,4)}, v2 offset:{L1_M1+1024*i}")
    for i in range(3): b(f"  ds_read_b128 {vr(M2+4*i,4)}, v2 offset:{L1_M2+1024*i}")
    for i in range(8): b(f"  ds_read_b128 {vr(TW+4*i,4)}, v2 offset:{L1_TW+1024*i}")
    X = 40
    nW = 0 if ("nopf" in OPT or "ntx" in OPT or "wpf" not in OPT or "pf7" in OPT) else 6
    n1 = 0 if ("nopf" in OPT or "ntw1" in OPT or "pf7" in OPT) else PFN[0]
    b(f"  s_cmp_eq_u32 s{S_W}, 3")
    b(f"  s_cbranch_scc1 p1_xw0")
    b(f"  s_cmp_ge_u32 s{S_W}, 4")
    b(f"  s_cbranch_scc1 p1_xw4")
    b(f"  s_waitcnt vmcnt({NCLR + nW})")
    b(f"  s_branch p1_xwd")
    b.label("p1_xw4")
    if "tlbw" in OPT:
        b(f"  s_cmp_lg_u32 s{S_W}, 7")
        b(f"  s_cbranch_scc1 p1_xw5")
        b(f"  s_waitcnt vmcnt({min(63, NCLR + n1 + 8 + N7[0])})")
        b(f"  s_branch p1_xwd")
        b.label("p1_xw5")
    b(f"  s_waitcnt vmcnt({NCLR + n1})")
    b(f"  s_branch p1_xwd")
    b.label("p1_xw0")
    b(f"  s_waitcnt vmcnt({NCLR})")
    b.label("p1_xwd")
    stamp(b, "p1 x landed")
    if "wmid" in OPT:
        w_early(b)
        b(f"  s_cmp_ge_u32 s2, 8")
        b(f"  s_cbranch_scc1 p1_nonyq")
        b(f"  buffer_load_ushort v212, v214, s[{SRD_C}:{SRD_C+3}], 0 offen offset:1024")
        b(f"  buffer_load_ushort v213, v214, s[{SRD_D}:{SRD_D+3}], 0 offen offset:1024")
        b.label("p1_nonyq")
    if "wearly" in OPT:
        b(f"  s_cmp_ge_u32 s2, 8")
        b(f"  s_cbranch_scc1 p1_nonyq")
        b(f"  buffer_load_ushort v212, v214, s[{SRD_C}:{SRD_C+3}], 0 offen offset:1024")
        b(f"  buffer_load_ushort v213, v214, s[{SRD_D}:{SRD_D+3}], 0 offen offset:1024")
        b.label("p1_nonyq")
    srd(b, SRD_PF, P_DBG, 256)
    if "stash" in OPT:
        b(f"  s_lshl_b32 s{S_T+9}, s{S_W}, 11")
        b(f"  s_add_u32 s{S_T+9}, s{S_T+9}, {L_XS}")
        b(f"  v_add_u32 v4, s{S_T+9}, v1           ; t*2048 + g*512 + c*4")
        for i in range(8): b(f"  ds_write_b32 v4, v{XD+i} offset:{64*i}")
    for i in range(8):
        b(f"  v_lshlrev_b32 v{X+i}, 16, v{XD+i}")
        b(f"  v_and_b32 v{X+8+i}, 0xffff0000, v{XD+i}")
    T = 56
    ln_fast(b, X, T, S_T + 2, True)
    stamp(b, "p1 ln done")
    if SENT():
        b(f"  buffer_load_dword v27, v26, s[{SRD_PF}:{SRD_PF+3}], 0 offen sc1")
        b(f"  s_and_b32 s{S_T+8}, s2, 15")
        arrive(b, 0, S_T + 8, first=True, label="x1")
        stamp(b, "p1 arrived")
        srd(b, SRD_C, P_WS, 4 << 20, WS_X2)
        for i in range(4): b(f"  v_mov_b32 v{200+i}, -1")
        b(f"  v_lshlrev_b32 v2, 4, v0")
        b(f"  s_lshl_b32 s{S_T+7}, s2, 14")
        b(f"  buffer_store_dwordx4 v[200:203], v2, s[{SRD_C}:{SRD_C+3}], s{S_T+7} offen{SF}")
        b(f"  s_add_u32 s{S_T+7}, s{S_T+7}, 8192")
        b(f"  buffer_store_dwordx4 v[200:203], v2, s[{SRD_C}:{SRD_C+3}], s{S_T+7} offen{SF}")
    A = 64
    for be in range(2):
        for i in range(4):
            b(f"  v_cvt_pk_bf16_f32 v{A+4*be+i}, v{X+8*be+2*i}, v{X+8*be+2*i+1}")
    b(f"  s_waitcnt lgkmcnt(0)")
    b(f"  v_readlane_b32 s{S_T+5}, v{T+6}, 0")
    Y = 160
    for be in range(2):
        for u in range(2):
            for c in range(2):
                d = Y + ((be * 2 + u) * 2 + c) * 4
                b(f"  {MF32} {vr(d,4)}, {vr(A+4*be,4)}, {vr(M1+4*(2*u+c),4)}, 0")
    b(f"  s_nop 4")
    Bp = 72; W = 32; O = 40
    for u in range(2):
        for be in range(2):
            y = Y + ((be * 2 + u) * 2) * 4
            tw = TW + (be * 4 + u * 2) * 4
            cmul_pk(b, O + 8 * be, O + 8 * be + 4, y, y + 4, tw, tw + 4, W, False)
        for r in range(4):
            b(f"  v_cvt_pk_bf16_f32 v{Bp+8*u+r}, v{O+r}, v{O+8+r}")
            b(f"  v_cvt_pk_bf16_f32 v{Bp+8*u+4+r}, v{O+4+r}, v{O+12+r}")
    XO = 160
    b(f"  s_nop 1")
    for u in range(2):
        re, im = XO + 8 * u, XO + 8 * u + 4
        b(f"  {MF32} {vr(re,4)}, {vr(M2,4)}, {vr(Bp+8*u,4)}, 0")
        b(f"  {MF32} {vr(im,4)}, {vr(M2,4)}, {vr(Bp+8*u+4,4)}, 0")
        b(f"  {MF32} {vr(re,4)}, {vr(M2+4,4)}, {vr(Bp+8*u+4,4)}, {vr(re,4)}")
        b(f"  {MF32} {vr(im,4)}, {vr(M2+8,4)}, {vr(Bp+8*u,4)}, {vr(im,4)}")
    b(f"  s_and_b32 s{S_T+6}, s{S_W}, 1")
    b(f"  s_lshl_b32 s{S_T+6}, s{S_T+6}, 8")
    b(f"  s_lshr_b32 s{S_T+7}, s{S_W}, 1")
    b(f"  s_lshl_b32 s{S_T+7}, s{S_T+7}, 6")
    b(f"  s_add_u32 s{S_T+6}, s{S_T+6}, s{S_T+7}")
    b(f"  v_lshlrev_b32 v3, 12, v9")
    b(f"  v_lshl_add_u32 v3, v8, 2, v3")
    b(f"  v_add_u32 v3, s{S_T+6}, v3")
    b(f"  s_nop 2")
    b(f"  v_writelane_b32 v{XO}, s{S_T+5}, 0")
    b(f"  v_writelane_b32 v{XO+4}, 0, 0")
    PK = 32
    for u in range(2):
        for r in range(4):
            b(f"  v_cvt_pk_bf16_f32 v{PK+4*u+r}, v{XO+8*u+r}, v{XO+8*u+4+r}")
    for u in range(2):
        for r in range(4):
            b(f"  ds_write_b32 v3, v{PK+4*u+r} offset:{L1_EX + u*512 + r*1024}")
    if "wpack" in OPT:
        assert not SENT()
        srd(b, SRD_C, P_WS, 4 << 20, WS_WP)
        b(f"  v_lshrrev_b32 v14, 1, v7              ; kb")
        b(f"  v_lshlrev_b32 v14, 17, v14")
        b(f"  v_and_b32 v15, 1, v7")
        b(f"  v_lshl_add_u32 v14, v15, 4, v14")
        b(f"  s_and_b32 s{S_T+6}, s2, 15")
        b(f"  s_lshl_b32 s{S_T+6}, s{S_T+6}, 9       ; (p&15)<<5 * 16")
        b(f"  s_lshr_b32 s{S_T+7}, s2, 4")
        b(f"  s_lshl_b32 s{S_T+7}, s{S_T+7}, 5       ; (p>>4)<<1 * 16")
        b(f"  s_add_u32 s{S_T+6}, s{S_T+6}, s{S_T+7}")
        b(f"  s_lshl_b32 s{S_T+7}, s{S_W}, 14")
        b(f"  s_add_u32 s{S_T+6}, s{S_T+6}, s{S_T+7}")
        b(f"  s_add_u32 s{S_T+7}, s{S_T+6}, 8192")
        npf0 = 0 if ("nopf" in OPT or "pf7" in OPT) else PFN[0]
        b(f"  s_cmp_ge_u32 s{S_W}, 4")
        b(f"  s_cbranch_scc1 p1_wp4")
        b(f"  s_waitcnt vmcnt(0)")
        b(f"  s_branch p1_wpd")
        b.label("p1_wp4")
        b(f"  s_waitcnt vmcnt({npf0})")
        b.label("p1_wpd")
        b(f"  v_cmp_eq_u32 vcc, 0, v7")
        b(f"  v_and_b32 v15, 0xffff0000, v{WE}")
        b(f"  v_or_b32 v15, v15, v212")
        b(f"  v_cndmask_b32 v{WE}, v{WE}, v15, vcc")
        b(f"  v_and_b32 v15, 0xffff0000, v{WE+4}")
        b(f"  v_or_b32 v15, v15, v213")
        b(f"  v_cndmask_b32 v{WE+4}, v{WE+4}, v15, vcc")
        b(f"  buffer_store_dwordx4 {vr(WE,4)}, v14, s[{SRD_C}:{SRD_C+3}], s{S_T+6} offen{SF}")
        b(f"  buffer_store_dwordx4 {vr(WE+4,4)}, v14, s[{SRD_C}:{SRD_C+3}], s{S_T+7} offen{SF}")
    if SENT(): b(f"  s_waitcnt lgkmcnt(0) vmcnt(0)")
    else:
        b(f"  buffer_load_dword v27, v26, s[{SRD_PF}:{SRD_PF+3}], 0 offen sc1")
        b(f"  s_waitcnt lgkmcnt(0)")
    stamp(b, "p1 fft done")
    b(f"  s_barrier")
    b(f"  v_lshlrev_b32 v4, 6, v9")
    b(f"  v_lshl_add_u32 v4, v8, 2, v4")
    b(f"  s_lshl_b32 s{S_T+6}, s{S_W}, 11")
    b(f"  s_add_u32 s{S_T+6}, s{S_T+6}, {L1_EX}")
    b(f"  v_add_u32 v4, s{S_T+6}, v4")
    Bd = 40
    for i in range(4):
        b(f"  ds_read2st64_b32 {vr(Bd+2*i,2)}, v4 offset0:{2*i} offset1:{2*i+1}")
    D = 48
    for i in range(4):
        b(f"  s_waitcnt lgkmcnt({3-i})")
        b(f"  {MF16} {vr(D+4*i,4)}, {vr(GM,2)}, {vr(Bd+2*i,2)}, 0")
    b(f"  s_nop 4")
    for i in range(4):
        b(f"  v_cvt_pk_bf16_f32 v{64+2*i}, v{D+4*i}, v{D+4*i+1}")
        b(f"  v_cvt_pk_bf16_f32 v{65+2*i}, v{D+4*i+2}, v{D+4*i+3}")
        if SENT():
            b(f"  v_min_u32 v{64+2*i}, 0xfffffffe, v{64+2*i}")
            b(f"  v_min_u32 v{65+2*i}, 0xfffffffe, v{65+2*i}")
        for e in range(2):
            b(f"  s_add_u32 s{S_T+7}, s44, {i*131072 + e*16384}")
            b(f"  buffer_store_dword v{64+2*i+e}, v5, s[{SRD_B}:{SRD_B+3}], s{S_T+7} offen{SF}")
    stamp(b, "p1 stores issued")
    if not SENT():
        b(f"  s_and_b32 s{S_T+8}, s2, 15")
        arrive(b, 0, S_T + 8, first=True, label="x1")
        stamp(b, "p1 arrived")

XL2, WL2 = 32, 40
WE = 204
TC2, TS2 = 64, 68
def p2_setup(b):
    srd(b, SRD_A, P_WS, 4 << 20, WS_X1)
    srd(b, SRD_B, P_WS, 4 << 20, WS_X2)
    srd(b, SRD_C, P_WR, WB)
    srd(b, SRD_D, P_WI, WB)
    b(f"  s_and_b32 s{S_T}, s2, 7              ; j1")
    b(f"  s_lshr_b32 s{S_T+1}, s2, 3           ; kb")
    b(f"  v_and_b32 v10, 1, v0                 ; half")
    b(f"  v_bfe_u32 v11, v0, 5, 4              ; c")
    b(f"  v_bfe_u32 v12, v0, 1, 4              ; e")
    b(f"  v_lshl_add_u32 v13, v12, 4, v11      ; j2")
    b(f"  v_lshlrev_b32 v13, 3, v13")
    b(f"  v_add_u32 v13, s{S_T}, v13           ; j")
    b(f"  v_mul_u32_u24 v13, 1026, v13")
    b(f"  v_lshlrev_b32 v14, 4, v10")
    b(f"  v_add_u32 v14, v13, v14")
    b(f"  s_lshl_b32 s{S_T+3}, s{S_T+1}, 5")
    if "wearly" in OPT or "wmid" in OPT:
        b(f"  s_cmp_lg_u32 s{S_T+1}, 0")
        b(f"  s_cbranch_scc1 p2_nonyq")
        b(f"  s_waitcnt vmcnt(0)")
        b(f"  v_cmp_eq_u32 vcc, 0, v215")
        b(f"  v_and_b32 v50, 0xffff0000, v{WE}")
        b(f"  v_or_b32 v50, v50, v212")
        b(f"  v_cndmask_b32 v{WE}, v{WE}, v50, vcc")
        b(f"  v_and_b32 v50, 0xffff0000, v{WE+4}")
        b(f"  v_or_b32 v50, v50, v213")
        b(f"  v_cndmask_b32 v{WE+4}, v{WE+4}, v50, vcc")
        b.label("p2_nonyq")
    elif "wpack" in OPT:
        srd(b, SRD_C, P_WS, 4 << 20, WS_WP)
    elif "wlate" in OPT:
        b(f"  v_mov_b32 v24, v14")
        b(f"  v_mov_b32 v25, v13")
        b(f"  v_mov_b32 v26, v10                   ; half")
        b(f"  s_mov_b32 s45, s{S_T+3}              ; kb*32")
    else:
        WL = WL2
        b(f"  v_mov_b32 v24, v14")
        b(f"  v_mov_b32 v25, v13")
        b(f"  v_mov_b32 v26, v10                   ; half")
        b(f"  s_mov_b32 s45, s{S_T+3}              ; kb*32")
        WL = WL2
        b(f"  buffer_load_dwordx4 {vr(WL,4)}, v24, s[{SRD_C}:{SRD_C+3}], s45 offen{WF()}")
        b(f"  buffer_load_dwordx4 {vr(WL+4,4)}, v24, s[{SRD_D}:{SRD_D+3}], s45 offen{WF()}")
        b(f"  s_cmp_lg_u32 s{S_T+1}, 0")
        b(f"  s_cbranch_scc1 p2_nonyq")
        b(f"  buffer_load_ushort v48, v25, s[{SRD_C}:{SRD_C+3}], 0 offen offset:1024")
        b(f"  buffer_load_ushort v49, v25, s[{SRD_D}:{SRD_D+3}], 0 offen offset:1024")
        b(f"  s_waitcnt vmcnt(0)")
        b(f"  v_cmp_eq_u32 vcc, 0, v26")
        b(f"  v_and_b32 v50, 0xffff0000, v{WL}")
        b(f"  v_or_b32 v50, v50, v48")
        b(f"  v_cndmask_b32 v{WL}, v{WL}, v50, vcc")
        b(f"  v_and_b32 v50, 0xffff0000, v{WL+4}")
        b(f"  v_or_b32 v50, v50, v49")
        b(f"  v_cndmask_b32 v{WL+4}, v{WL+4}, v50, vcc")
        b.label("p2_nonyq")
        if "wdiag" in OPT:
            b(f"  s_waitcnt vmcnt(0)")
            stamp(b, "p2 w landed")
    npf = 0
    b(f"  v_and_b32 v15, 255, v0")
    b(f"  v_bfe_u32 v16, v15, 2, 4             ; x")
    b(f"  v_lshrrev_b32 v17, 6, v15            ; g")
    b(f"  v_and_b32 v18, 3, v15")
    b(f"  v_lshl_add_u32 v17, v17, 2, v18      ; 4g+i")
    b(f"  v_mul_u32_u24 v17, v17, v16")
    sincos(b, 18, 19, 17, 4, 20)
    b(f"  v_cmp_gt_u32 vcc, 256, v0            ; matrix 0 ?")
    b(f"  v_xor_b32 v20, 0x80000000, v19       ; -sin")
    b(f"  s_nop 0")
    b(f"  v_cndmask_b32 v21, v20, v18, vcc")
    b(f"  v_cndmask_b32 v22, v18, v19, vcc")
    b(f"  v_cvt_pk_bf16_f32 v21, v21, v22")
    b(f"  v_lshlrev_b32 v22, 2, v0")
    b(f"  ds_write_b32 v22, v21 offset:{L2_F}")
    b(f"  v_lshlrev_b32 v16, 2, v9")
    for r in range(4):
        b(f"  v_add_u32 v17, {r}, v16")
        b(f"  v_mul_u32_u24 v17, v17, v8")
        sincos(b, TC2 + r, TS2 + r, 17, 8, 20)
    b(f"  v_and_b32 v16, 3, v0                 ; i")
    b(f"  v_mul_u32_u24 v16, {4*1040}, v16")
    b(f"  v_lshrrev_b32 v17, 6, v0             ; b (0..7)")
    b(f"  v_lshl_add_u32 v16, v17, 6, v16")
    b(f"  v_bfe_u32 v17, v0, 2, 2              ; a&3")
    b(f"  v_lshl_add_u32 v16, v17, 2, v16")
    b(f"  v_bfe_u32 v17, v0, 4, 2              ; a>>2")
    b(f"  v_lshl_add_u32 v21, v17, 4, v16      ; first")
    b(f"  v_xor_b32 v17, 2, v17")
    b(f"  v_lshl_add_u32 v22, v17, 4, v16")
    b(f"  v_add_u32 v22, 512, v22              ; second (b+8)")
    b(f"  v_mul_u32_u24 v16, {4*1040}, v10")
    b(f"  v_lshl_add_u32 v16, v11, 6, v16")
    b(f"  v_and_b32 v17, 3, v12")
    b(f"  v_lshl_add_u32 v16, v17, 2, v16")
    b(f"  v_lshrrev_b32 v17, 2, v12")
    b(f"  v_lshrrev_b32 v18, 3, v11            ; c>>3")
    b(f"  v_lshlrev_b32 v18, 1, v18")
    b(f"  v_xor_b32 v17, v17, v18")
    b(f"  v_lshl_add_u32 v23, v17, 4, v16")
    b(f"  v_lshrrev_b32 v16, 3, v8")
    b(f"  v_lshlrev_b32 v16, 1, v16")
    b(f"  v_xor_b32 v16, v16, v9")
    b(f"  v_lshlrev_b32 v16, 4, v16")
    b(f"  v_lshl_add_u32 v16, v8, 6, v16")
    b(f"  s_mul_i32 s{S_T+4}, s{S_W}, {2*1040}")
    b(f"  s_mul_i32 s{S_T+5}, s{S_W}, 1040")
    b(f"  v_add_u32 v5, s{S_T+4}, v16")
    b(f"  v_add_u32 v6, s{S_T+5}, v16")
    b(f"  v_lshlrev_b32 v1, 4, v0")
    b(f"  s_lshl_b32 s{S_T+2}, s2, 14")
    b(f"  s_add_u32 s{S_T+3}, s{S_T+2}, 8192")
    b(f"  s_waitcnt lgkmcnt(0)")

def sentinel_check(b, R0, pre, n=8):
    b(f"  v_max3_u32 v16, v{R0}, v{R0+1}, v{R0+2}")
    b(f"  v_max3_u32 v17, v{R0+3}, v{R0+4}, v{R0+5}")
    b(f"  v_max3_u32 v16, v16, v{R0+6}, v{R0+7}")
    for i in range(8, n, 2): b(f"  v_max3_u32 v17, v17, v{R0+i}, v{R0+i+1}")
    b(f"  v_max_u32 v16, v16, v17")
    b(f"  v_cmp_eq_u32 vcc, -1, v16")
    b(f"  s_sub_u32 s11, s11, 1")
    b(f"  s_cmp_eq_u32 s11, 0")
    b(f"  s_cbranch_scc1 {pre}_got")
    b(f"  s_cmp_lg_u64 vcc, 0")
    b(f"  s_cbranch_scc1 {pre}_poll")
    b.label(f"{pre}_got")

def p2_main(b):
    XL = XL2; TC, TS = TC2, TS2
    if SENT():
        b(f"  s_mov_b32 s11, 200000")
        b.label("p2_poll")
    b(f"  buffer_load_dwordx4 {vr(XL,4)}, v1, s[{SRD_A}:{SRD_A+3}], s{S_T+2} offen sc1")
    b(f"  buffer_load_dwordx4 {vr(XL+4,4)}, v1, s[{SRD_A}:{SRD_A+3}], s{S_T+3} offen sc1")
    if "wpack" in OPT:
        WL = WL2
        b(f"  buffer_load_dwordx4 {vr(WL,4)}, v1, s[{SRD_C}:{SRD_C+3}], s{S_T+2} offen sc1")
        b(f"  buffer_load_dwordx4 {vr(WL+4,4)}, v1, s[{SRD_C}:{SRD_C+3}], s{S_T+3} offen sc1")
        b(f"  s_waitcnt vmcnt(2)")
    elif "wlate" in OPT:
        assert not SENT()
        WL = WL2
        b(f"  buffer_load_dwordx4 {vr(WL,4)}, v24, s[{SRD_C}:{SRD_C+3}], s45 offen{WF()}")
        b(f"  buffer_load_dwordx4 {vr(WL+4,4)}, v24, s[{SRD_D}:{SRD_D+3}], s45 offen{WF()}")
        b(f"  s_cmp_lg_u32 s{S_T+1}, 0")
        b(f"  s_cbranch_scc1 p2_nonyq")
        b(f"  buffer_load_ushort v56, v25, s[{SRD_C}:{SRD_C+3}], 0 offen offset:1024")
        b(f"  buffer_load_ushort v57, v25, s[{SRD_D}:{SRD_D+3}], 0 offen offset:1024")
        b(f"  s_waitcnt vmcnt(0)")
        b(f"  v_cmp_eq_u32 vcc, 0, v26")
        b(f"  v_and_b32 v58, 0xffff0000, v{WL}")
        b(f"  v_or_b32 v58, v58, v56")
        b(f"  v_cndmask_b32 v{WL}, v{WL}, v58, vcc")
        b(f"  v_and_b32 v58, 0xffff0000, v{WL+4}")
        b(f"  v_or_b32 v58, v58, v57")
        b(f"  v_cndmask_b32 v{WL+4}, v{WL+4}, v58, vcc")
        b.label("p2_nonyq")
        b(f"  s_waitcnt vmcnt(2)")
    else:
        b(f"  s_waitcnt vmcnt(0)")
    if SENT(): sentinel_check(b, XL, "p2")
    WL = WE if ("wearly" in OPT or "wmid" in OPT) else WL2
    b(f"  v_lshlrev_b32 v17, 4, v7")
    FR, FI = 72, 76
    AX = 48; WR, WI = 152, 156
    b(f"  ds_read_b128 {vr(FR,4)}, v17 offset:{L2_F}")
    b(f"  ds_read_b128 {vr(FI,4)}, v17 offset:{L2_F+1024}")
    Dq = [80, 88]; Oq = [96, 104]; Tq = [112, 120]; Pq = [128, 132]; Wq = [136, 144]
    stamp(b, "p2 x landed")
    for j in range(4):
        b(f"  ds_write_b32 v21, v{XL+j} offset:{L2_X + j*1040}")
        b(f"  ds_write_b32 v22, v{XL+4+j} offset:{L2_X + j*1040}")
    if "wlate" in OPT or "wpack" in OPT: b(f"  s_waitcnt vmcnt(0)")
    for j in range(4):
        b(f"  ds_write_b32 v23, v{WL+j} offset:{L2_W + j*1040}")
        b(f"  ds_write_b32 v23, v{WL+4+j} offset:{L2_W + 8*1040 + j*1040}")
    if "nopf" not in OPT and "ntw1" not in OPT and PFN[1]:
        w1_share_base(b, S_T + 8, PFN[0] * 4096)
        pf_wide(b, P_W1, W1B, S_T + 8, PFN[1], 4, 8, "pf_p2a")
    b(f"  s_waitcnt lgkmcnt(0)")
    b(f"  s_barrier")
    b(f"  ds_read_b128 {vr(AX,4)}, v5 offset:{L2_X}")
    b(f"  ds_read_b128 {vr(AX+4,4)}, v5 offset:{L2_X+1040}")
    b(f"  ds_read_b128 {vr(WR,4)}, v6 offset:{L2_W}")
    b(f"  ds_read_b128 {vr(WI,4)}, v6 offset:{L2_W+8*1040}")
    def stage(form, src):
        for k in range(2):
            d = Dq[k]
            if form == 'A':
                b(f"  {MF32} {vr(d,4)}, {vr(src[k],4)}, {vr(FR,4)}, 0")
                b(f"  {MF32} {vr(d+4,4)}, {vr(src[k],4)}, {vr(FI,4)}, 0")
            else:
                b(f"  {MF32} {vr(d,4)}, {vr(FR,4)}, {vr(src[k],4)}, 0")
                b(f"  {MF32} {vr(d+4,4)}, {vr(FI,4)}, {vr(src[k],4)}, 0")
    def twiddle_pack():
        for k in range(2):
            cmul_pk(b, Oq[k], Oq[k] + 4, Dq[k], Dq[k] + 4, TC, TS, Tq[k], False)
        for k in range(2):
            for r in range(4):
                b(f"  v_cvt_pk_bf16_f32 v{Pq[k]+r}, v{Oq[k]+r}, v{Oq[k]+4+r}")
        b(f"  s_nop 1")
    b(f"  s_waitcnt lgkmcnt(2)")
    stage('A', [AX, AX + 4])
    b(f"  s_waitcnt lgkmcnt(0)")
    for r in range(4):
        b(f"  v_lshlrev_b32 v{Wq[0]+r}, 16, v{WR+r}")
        b(f"  v_lshlrev_b32 v{Wq[0]+4+r}, 16, v{WI+r}")
        b(f"  v_and_b32 v{Wq[1]+r}, 0xffff0000, v{WR+r}")
        b(f"  v_and_b32 v{Wq[1]+4+r}, 0xffff0000, v{WI+r}")
    twiddle_pack()
    stage('B', Pq)
    b(f"  s_nop 5")
    for k in range(2):
        cmul_pk(b, Oq[k], Oq[k] + 4, Dq[k], Dq[k] + 4, Wq[k], Wq[k] + 4, Tq[k], True)
    for k in range(2):
        for r in range(4):
            b(f"  v_cvt_pk_bf16_f32 v{Pq[k]+r}, v{Oq[k]+r}, -v{Oq[k]+4+r}")
    b(f"  s_nop 1")
    stage('A', Pq)
    b(f"  s_nop 5")
    twiddle_pack()
    stage('B', Pq)
    b(f"  s_nop 5")
    for k in range(2):
        for r in range(4):
            b(f"  v_cvt_pk_bf16_f32 v{Pq[k]+r}, v{Dq[k]+r}, -v{Dq[k]+4+r}")
    b(f"  ds_write_b128 v5, {vr(Pq[0],4)} offset:{L2_X}")
    b(f"  ds_write_b128 v5, {vr(Pq[1],4)} offset:{L2_X+1040}")
    b(f"  s_waitcnt lgkmcnt(0)")
    b(f"  s_barrier")
    for j in range(4):
        b(f"  ds_read_b32 v{XL+j}, v21 offset:{L2_X + j*1040}")
        b(f"  ds_read_b32 v{XL+4+j}, v22 offset:{L2_X + j*1040}")
    b(f"  v_bfe_u32 v16, v0, 2, 4              ; a")
    b(f"  v_lshrrev_b32 v17, 6, v0             ; b")
    b(f"  v_lshl_add_u32 v16, v16, 4, v17      ; s1")
    b(f"  v_lshlrev_b32 v16, 14, v16")
    b(f"  v_and_b32 v17, 3, v0")
    b(f"  v_lshl_add_u32 v16, v17, 4, v16")
    b(f"  s_lshl_b32 s{S_T+4}, s{S_T}, 11")
    b(f"  s_lshl_b32 s{S_T+5}, s{S_T+1}, 6")
    b(f"  s_add_u32 s{S_T+4}, s{S_T+4}, s{S_T+5}")
    b(f"  s_add_u32 s{S_T+5}, s{S_T+4}, {8*16384}")
    b(f"  s_waitcnt lgkmcnt(0)")
    if SENT():
        for j in range(8): b(f"  v_min_u32 v{XL+j}, 0xfffffffe, v{XL+j}")
    b(f"  buffer_store_dwordx4 {vr(XL,4)}, v16, s[{SRD_B}:{SRD_B+3}], s{S_T+4} offen{SF}")
    b(f"  buffer_store_dwordx4 {vr(XL+4,4)}, v16, s[{SRD_B}:{SRD_B+3}], s{S_T+5} offen{SF}")
    stamp(b, "p2 stores issued")
    if not SENT():
        b(f"  s_and_b32 s{S_T+8}, s2, 15")
        arrive(b, 1, S_T + 8, label="x2")

V_LO = 224
S_G1A = 60
def g1_ids(b):
    b(f"  s_lshr_b32 s{S_T}, s2, 3                 ; i")
    b(f"  s_cmp_lt_u32 s{S_T}, 28")
    b(f"  s_cselect_b32 s62, 1, 0")
    b(f"  s_mul_i32 s{S_T+1}, s{S_T}, 37")
    b(f"  s_lshr_b32 s{S_T+1}, s{S_T+1}, 8         ; i/7")
    b(f"  s_mul_i32 s{S_T+2}, s{S_T+1}, 7")
    b(f"  s_sub_u32 s{S_T+2}, s{S_T}, s{S_T+2}     ; i%7")
    b(f"  s_and_b32 s{S_T+3}, s2, 7")
    b(f"  s_lshr_b32 s{S_T+4}, s{S_T+3}, 1")
    b(f"  s_mul_i32 s{S_T+4}, s{S_T+4}, 7")
    b(f"  s_add_u32 s60, s{S_T+4}, s{S_T+2}        ; ft")
    b(f"  s_and_b32 s{S_T+3}, s{S_T+3}, 1")
    b(f"  s_lshl_b32 s{S_T+3}, s{S_T+3}, 2")
    b(f"  s_add_u32 s61, s{S_T+3}, s{S_T+1}        ; dt")

S_SOFF, S_M0, S_N = 4, 5, 6
def loader_issue(b, voff, fl=""):
    for i in range(4):
        b(f"  s_add_u32 m0, s{S_M0}, {4096*i}")
        b(f"  s_nop 0")
        b(f"  buffer_load_dwordx4 v{voff+i}, s[{SRD_T}:{SRD_T+3}], s{S_SOFF} offen{fl} lds")
    b(f"  s_add_u32 s{S_SOFF}, s{S_SOFF}, s9")
    b(f"  s_add_u32 s{S_M0}, s{S_M0}, {STAGE}")
    b(f"  s_cmp_ge_u32 s{S_M0}, s{S_N+1}")
    b(f"  s_cselect_b32 s{S_N+2}, {R*STAGE}, 0")
    b(f"  s_sub_u32 s{S_M0}, s{S_M0}, s{S_N+2}")

def loader_init(b, step_bytes):
    b(f"  s_sub_u32 s50, s{S_W}, 4")
    b(f"  s_lshl_b32 s{S_M0}, s50, 10")
    b(f"  s_add_u32 s{S_N+1}, s{S_M0}, {R*STAGE}")
    b(f"  s_mov_b32 s{S_SOFF}, 0")
    b(f"  s_mov_b32 s9, {step_bytes}")

def g1_loader_addr(b):
    b(f"  s_sub_u32 s50, s{S_W}, 4      ; w'")
    for i in range(4):
        b(f"  s_lshl_b32 s49, s50, 2")
        b(f"  s_add_u32 s49, s49, {16*i}")
        b(f"  v_lshrrev_b32 v14, 4, v7")
        b(f"  v_add_u32 v14, s49, v14                 ; row 0..63")
        b(f"  v_and_b32 v15, 3, v14")
        b(f"  v_lshlrev_b32 v15, 2, v15")
        b(f"  v_and_b32 v16, 15, v7")
        b(f"  v_xor_b32 v16, v16, v15                 ; q")
        b(f"  v_lshrrev_b32 v17, 3, v14")
        b(f"  v_and_b32 v18, 7, v14")
        b(f"  v_lshl_add_u32 v17, v18, 8, v17         ; s")
        b(f"  v_mul_u32_u24 v17, 7168, v17")
        b(f"  v_lshl_add_u32 v17, v16, 4, v17")
        b(f"  s_lshl_b32 s49, s60, 8")
        b(f"  v_add_u32 v{V_LO+i}, s49, v17")

def g2_ids(b):
    if SK():
        b(f"  s_lshr_b32 s{S_T+1}, s2, 3")
        b(f"  s_lshr_b32 s{S_TILE_A}, s{S_T+1}, 2          ; dt")
        b(f"  s_lshr_b32 s{S_T}, s2, 1")
        b(f"  s_and_b32 s{S_T}, s{S_T}, 3")
        b(f"  s_lshl_b32 s{S_T}, s{S_T}, 2")
        b(f"  s_and_b32 s{S_T+1}, s{S_T+1}, 3")
        b(f"  s_add_u32 s{S_TILE_B}, s{S_T}, s{S_T+1}      ; st2")
        b(f"  s_and_b32 s19, s2, 1                       ; kh")
        return
    b(f"  s_and_b32 s{S_T}, s2, 1")
    b(f"  s_lshl_b32 s{S_T}, s{S_T}, 2")
    b(f"  s_lshr_b32 s{S_T+1}, s2, 3")
    b(f"  s_and_b32 s{S_T+2}, s{S_T+1}, 3")
    b(f"  s_add_u32 s{S_TILE_A}, s{S_T}, s{S_T+2}     ; dt")
    b(f"  s_lshr_b32 s{S_T}, s2, 1")
    b(f"  s_and_b32 s{S_T}, s{S_T}, 3")
    b(f"  s_lshl_b32 s{S_T}, s{S_T}, 3")
    b(f"  s_lshr_b32 s{S_T+1}, s{S_T+1}, 2")
    b(f"  s_add_u32 s{S_TILE_B}, s{S_T}, s{S_T+1}     ; st")

def g2_loader_addr(b):
    if SK():
        b(f"  s_sub_u32 s50, s{S_W}, 4")
        for i in range(4):
            b(f"  s_lshl_b32 s49, s50, 2")
            b(f"  s_add_u32 s49, s49, {16*i}")
            b(f"  v_lshrrev_b32 v14, 4, v7")
            b(f"  v_add_u32 v14, s49, v14                 ; row 0..63")
            b(f"  v_and_b32 v15, 3, v14")
            b(f"  v_lshlrev_b32 v15, 2, v15")
            b(f"  v_and_b32 v16, 15, v7")
            b(f"  v_xor_b32 v16, v16, v15                 ; q")
            b(f"  v_lshlrev_b32 v14, 12, v14              ; row*4096")
            b(f"  v_lshl_add_u32 v14, v16, 4, v14")
            b(f"  s_lshl_b32 s49, s{S_TILE_B}, 8          ; s0*2")
            b(f"  s_mul_i32 s48, s19, {1792*4096}         ; k half")
            b(f"  s_add_u32 s49, s49, s48")
            b(f"  v_add_u32 v{V_LO+i}, s49, v14")
        return
    b(f"  s_sub_u32 s50, s{S_W}, 4")
    for i in range(4):
        b(f"  s_lshl_b32 s49, s50, 3")
        b(f"  s_add_u32 s49, s49, {32*i}")
        b(f"  v_lshrrev_b32 v14, 3, v7")
        b(f"  v_add_u32 v14, s49, v14                 ; row")
        b(f"  v_bfe_u32 v15, v14, 1, 1")
        b(f"  v_lshlrev_b32 v15, 2, v15")
        b(f"  v_and_b32 v16, 7, v7")
        b(f"  v_xor_b32 v16, v16, v15                 ; q")
        b(f"  v_lshlrev_b32 v14, 12, v14              ; row*4096")
        b(f"  v_lshl_add_u32 v14, v16, 4, v14")
        b(f"  s_lshl_b32 s49, s{S_TILE_B}, 7          ; s0*2")
        b(f"  v_add_u32 v{V_LO+i}, s49, v14")

def loader_loop(b, NS, pre, fl=""):
    if "priol" in OPT: b("  s_setprio 2")
    if "oldstart" in OPT:
        for n in range(R - 4): loader_issue(b, V_LO, fl)
        nmain = NS - (R - 2)
    else:
        b(f"  s_waitcnt vmcnt(4)")
        b("  s_barrier                      ; B_0")
        for n in range(R - 3): loader_issue(b, V_LO, fl)
        nmain = NS - (R - 2) - 1
    b(f"  s_mov_b32 s{S_N}, {nmain}")
    b.label(f"{pre}_lloop")
    b(f"  s_waitcnt vmcnt({(R-3)*4})")
    b("  s_barrier")
    loader_issue(b, V_LO, fl)
    b(f"  s_sub_u32 s{S_N}, s{S_N}, 1")
    b(f"  s_cmp_lg_u32 s{S_N}, 0")
    b(f"  s_cbranch_scc1 {pre}_lloop")
    for i in range(R - 2):
        b(f"  s_waitcnt vmcnt({(R-3-i)*4})")
        b("  s_barrier")

BD3 = 32; XR3 = 192; GM3 = 30
def p3_tables(b):
    b(f"  v_and_b32 v10, 255, v0            ; e")
    b(f"  v_lshrrev_b32 v11, 8, v0")
    b(f"  v_bfe_u32 v12, v10, 2, 4          ; n = lane&15")
    b(f"  v_lshrrev_b32 v13, 6, v10         ; g")
    b(f"  v_and_b32 v14, 3, v10             ; r")
    b(f"  v_lshl_add_u32 v13, v13, 2, v14   ; 4g + r")
    b(f"  v_lshrrev_b32 v15, 2, v12")
    b(f"  v_lshlrev_b32 v15, 3, v15")
    b(f"  v_and_b32 v16, 3, v12")
    b(f"  v_add_u32 v15, v15, v16           ; b(n,0)")
    b(f"  v_lshl_add_u32 v16, v11, 2, v15   ; b(n, sel)")
    b(f"  v_mul_u32_u24 v17, v16, v13")
    sincos(b, 18, 19, 17, 5, 20)
    b(f"  v_lshlrev_b32 v22, 2, v10")
    b(f"  v_lshl_add_u32 v22, v11, 11, v22  ; sel*2048 + e*4")
    b(f"  v_add_u32 v22, {L3_M3}, v22")
    b(f"  v_cvt_pk_bf16_f32 v23, v18, -v19")
    b(f"  v_cvt_pk_bf16_f32 v24, v19, v18")
    b(f"  ds_write_b32 v22, v23")
    b(f"  ds_write_b32 v22, v24 offset:1024")
    b(f"  v_lshl_add_u32 v17, v11, 4, v13   ; k1")
    for z in range(2):
        b(f"  v_add_u32 v21, {16*z}, v12")
        b(f"  v_mul_u32_u24 v21, v21, v17")
        sincos(b, 18, 19, 21, 5, 20)
        b(f"  v_add_f32 v18, v18, v18")
        b(f"  v_mul_f32 v19, -2.0, v19")
        b(f"  v_cvt_pk_bf16_f32 v23, v18, v19")
        b(f"  ds_write_b32 v22, v23 offset:{4096+1024*z}")
    b(f"  v_lshlrev_b32 v23, 2, v10")
    b(f"  v_lshl_add_u32 v23, v11, 12, v23   ; u*4096 + e*4")
    b(f"  v_add_u32 v23, {L3_TW}, v23")
    for v in range(2):
        b(f"  v_add_u32 v21, {4*v}, v15")
        b(f"  v_mul_u32_u24 v21, v21, v17")
        sincos(b, 18, 19, 21, 10, 20)
        b(f"  ds_write_b32 v23, v18 offset:{2048*v}")
        b(f"  ds_write_b32 v23, v19 offset:{2048*v+1024}")

def p3_setup(b):
    srd(b, SRD_A, P_WS, 4 << 20, WS_X2)
    srd(b, SRD_B, P_X, 4 << 20)
    srd(b, SRD_C, P_WS, 4 << 20, WS_H)
    srd(b, SRD_D, P_WS, 4 << 20, WS_LN2)
    b(f"  s_lshl_b32 s{S_T+3}, s{S_W}, 8")
    b(f"  s_add_u32 s{S_T+3}, s{S_T+3}, s2")
    b(f"  s_lshl_b32 s{S_T+3}, s{S_T+3}, 11       ; s*2048")
    b(f"  v_lshlrev_b32 v4, 6, v8")
    b(f"  v_lshl_add_u32 v4, v9, 4, v4")
    if "stash" in OPT:
        b(f"  s_lshl_b32 s{S_T+9}, s{S_W}, 11")
        b(f"  s_add_u32 s{S_T+9}, s{S_T+9}, {L_XS}")
        b(f"  v_add_u32 v2, s{S_T+9}, v4")
        for z in range(2): b(f"  ds_read_b128 {vr(XR3+4*z,4)}, v2 offset:{1024*z}")
    else:
      for z in range(2):
        b(f"  buffer_load_dwordx4 {vr(XR3+4*z,4)}, v4, s[{SRD_B}:{SRD_B+3}], s{S_T+3} offen offset:{1024*z}")
    b(f"  s_mov_b32 s63, s{S_T+3}")
    if SK():
        srd(b, SRD_PF, P_WS, 4 << 20, WS_XCH)
        for i in range(4): b(f"  v_mov_b32 v{200+i}, -1")
        b(f"  v_lshlrev_b32 v2, 4, v0")
        b(f"  s_lshl_b32 s{S_T+8}, s2, 14")
        b(f"  buffer_store_dwordx4 v[200:203], v2, s[{SRD_PF}:{SRD_PF+3}], s{S_T+8} offen{SF}")
        b(f"  s_add_u32 s{S_T+8}, s{S_T+8}, 8192")
        b(f"  buffer_store_dwordx4 v[200:203], v2, s[{SRD_PF}:{SRD_PF+3}], s{S_T+8} offen{SF}")
    if "nopf" not in OPT and "ntw1" not in OPT:
        if PFN[2]:
            w1_share_base(b, S_T + 8, (PFN[0] + PFN[1]) * 4096)
            pf_wide(b, P_W1, W1B, S_T + 8, PFN[2], 4, 8, "pf_p3a")
    g1_ids(b)
    g1_loader_addr(b)
    loader_init(b, 8 * 7168)
    p3_tables(b)
    gmat(b, GM3, 2, True, 10)
    b(f"  v_lshlrev_b32 v1, 12, v9")
    b(f"  v_lshl_add_u32 v1, v8, 2, v1")
    b(f"  s_lshl_b32 s{S_T}, s2, 14")
    b(f"  s_and_b32 s{S_T+1}, s{S_W}, 1")
    b(f"  s_lshl_b32 s{S_T+1}, s{S_T+1}, 6")
    b(f"  s_lshr_b32 s{S_T+2}, s{S_W}, 1")
    b(f"  s_lshl_b32 s{S_T+2}, s{S_T+2}, 9")
    b(f"  s_add_u32 s{S_T}, s{S_T}, s{S_T+1}")
    b(f"  s_add_u32 s44, s{S_T}, s{S_T+2}          ; X2 soffset")
    b(f"  s_lshl_b32 s{S_T+1}, s{S_T+1}, 4        ; u*1024")
    b(f"  s_lshr_b32 s{S_T+2}, s{S_T+2}, 1        ; q4*256")
    b(f"  s_add_u32 s45, s{S_T+1}, s{S_T+2}")
    b(f"  s_waitcnt lgkmcnt(0)")

def p3_main(b):
    Bd, XR, GM = BD3, XR3, GM3
    D = 40
    b(f"  v_lshlrev_b32 v3, 12, v9")
    b(f"  v_lshl_add_u32 v3, v8, 4, v3")
    b(f"  v_add_u32 v3, s45, v3")
    b(f"  v_add_u32 v3, {L3_EX}, v3")
    M3, M4, TW = 96, 112, 128
    b(f"  v_lshlrev_b32 v6, 4, v7")
    b(f"  v_add_u32 v6, {L3_M3}, v6")
    for i in range(4): b(f"  ds_read_b128 {vr(M3+4*i,4)}, v6 offset:{1024*i}")
    for i in range(4): b(f"  ds_read_b128 {vr(M4+4*i,4)}, v6 offset:{4096+1024*i}")
    b(f"  s_waitcnt lgkmcnt(0)")
    for i in range(8): b(f"  ds_read_b128 {vr(TW+4*i,4)}, v6 offset:{8192+1024*i}")
    if SENT():
        b(f"  s_mov_b32 s11, 200000")
        b.label("p3_poll")
    for i in range(4):
        for e in range(2):
            b(f"  buffer_load_dword v{Bd+2*i+e}, v1, s[{SRD_A}:{SRD_A+3}], s44 offen offset:{e*2048+i*128} sc1")
    b(f"  s_waitcnt vmcnt(0)")
    if SENT(): sentinel_check(b, Bd, "p3")
    stamp(b, "p3 x2 landed")
    if "nopf" not in OPT and "ntw1" not in OPT and PFN[3]:
        w1_share_base(b, S_T + 8, (PFN[0] + PFN[1] + PFN[2]) * 4096)
        pf_wide(b, P_W1, W1B, S_T + 8, PFN[3], 4, 8, "pf_p3b")
    for i in range(4):
        b(f"  {MF16} {vr(D+4*i,4)}, {vr(GM,2)}, {vr(Bd+2*i,2)}, 0")
    b(f"  s_nop 4")
    PK = 56
    for e in range(2):
        for i in range(4):
            b(f"  v_cvt_pk_bf16_f32 v{PK+4*e+i}, v{D+4*i+2*e}, v{D+4*i+2*e+1}")
    b(f"  ds_write_b128 v3, {vr(PK,4)}")
    b(f"  ds_write_b128 v3, {vr(PK+4,4)} offset:2048")
    b(f"  s_waitcnt lgkmcnt(0)")
    b(f"  s_barrier")
    b(f"  v_lshlrev_b32 v5, 8, v9")
    b(f"  v_lshl_add_u32 v5, v8, 4, v5")
    b(f"  s_lshl_b32 s{S_T+1}, s{S_W}, 11")
    b(f"  s_add_u32 s{S_T+1}, s{S_T+1}, {L3_EX}")
    b(f"  v_add_u32 v5, s{S_T+1}, v5")
    AU = 32
    b(f"  ds_read_b128 {vr(AU,4)}, v5")
    b(f"  ds_read_b128 {vr(AU+4,4)}, v5 offset:1024")
    b(f"  s_waitcnt lgkmcnt(0)")
    b(f"  v_readlane_b32 s{S_T+4}, v{AU}, 0")
    b(f"  v_writelane_b32 v{AU}, 0, 0")
    b(f"  s_nop 1")
    b(f"  s_lshl_b32 s{S_T+4}, s{S_T+4}, 16")
    TT = 160
    for u in range(2):
        for v in range(2):
            for c in range(2):
                d = TT + ((u * 2 + v) * 2 + c) * 4
                b(f"  {MF32} {vr(d,4)}, {vr(AU+4*u,4)}, {vr(M3+4*(2*v+c),4)}, 0")
    CI = 60
    b(f"  v_mov_b32 v{CI}, s{S_T+4}")
    b(f"  v_xor_b32 v{CI+1}, 0x80000000, v{CI}")
    b(f"  v_mov_b32 v{CI+2}, v{CI}")
    b(f"  v_mov_b32 v{CI+3}, v{CI+1}")
    b(f"  s_nop 1")
    A2 = 64; O = 40; W = 80
    for u in range(2):
        for v in range(2):
            t = TT + ((u * 2 + v) * 2) * 4
            tw = TW + ((u * 2 + v) * 2) * 4
            cmul_pk(b, O, O + 4, t, t + 4, tw, tw + 4, W, True)
            for r in range(4):
                b(f"  v_cvt_pk_bf16_f32 v{A2+(u*2+v)*4+r}, v{O+r}, v{O+4+r}")
    Y = 160
    b(f"  s_nop 1")
    for z in range(2):
        for v in range(2):
            d = Y + (z * 2 + v) * 4
            b(f"  {MF32} {vr(d,4)}, {vr(A2+(0*2+v)*4,4)}, {vr(M4+(0*2+z)*4,4)}, {vr(CI,4)}")
    for z in range(2):
        for v in range(2):
            d = Y + (z * 2 + v) * 4
            b(f"  {MF32} {vr(d,4)}, {vr(A2+(1*2+v)*4,4)}, {vr(M4+(1*2+z)*4,4)}, {vr(d,4)}")
    b(f"  s_nop 7")
    X = 40; HP = 32
    stamp(b, "p3 ifft done")
    for z in range(2):
        for dd in range(4):
            y0 = Y + z * 8 + 2 * dd
            xd = XR + 4 * z + dd
            t = 64 + 2 * (dd % 4)
            b(f"  v_lshlrev_b32 v{t}, 16, v{xd}")
            b(f"  v_and_b32 v{t+1}, 0xffff0000, v{xd}")
            b(f"  v_pk_add_f32 {vr(t,2)}, {vr(t,2)}, {vr(y0,2)}")
            b(f"  v_cvt_pk_bf16_f32 v{HP+4*z+dd}, v{t}, v{t+1}")
    for z in range(2):
        b(f"  buffer_store_dwordx4 {vr(HP+4*z,4)}, v4, s[{SRD_C}:{SRD_C+3}], s63 offen offset:{1024*z}{SF}")
    for i in range(8):
        b(f"  v_lshlrev_b32 v{X+2*i}, 16, v{HP+i}")
        b(f"  v_and_b32 v{X+2*i+1}, 0xffff0000, v{HP+i}")
    ln_fast(b, X, 64, S_T + 4, False)
    LP = 72
    stamp(b, "p3 ln done")
    for i in range(8):
        b(f"  v_cvt_pk_bf16_f32 v{LP+i}, v{X+2*i}, v{X+2*i+1}")
    b(f"  v_mul_u32_u24 v3, 80, v8")
    b(f"  v_lshl_add_u32 v3, v9, 4, v3")
    b(f"  s_mul_i32 s{S_T+1}, s{S_W}, {L3_RS}")
    b(f"  s_add_u32 s{S_T+1}, s{S_T+1}, {L3_LN}")
    b(f"  v_add_u32 v3, s{S_T+1}, v3")
    for z in range(2):
        b(f"  ds_write_b128 v3, {vr(LP+4*z,4)} offset:{z*16*80}")
    b(f"  s_waitcnt lgkmcnt(0)")
    b(f"  s_barrier")
    b(f"  v_bfe_u32 v10, v7, 2, 2")
    b(f"  v_mul_u32_u24 v10, {L3_RS}, v10")
    b(f"  v_lshrrev_b32 v11, 5, v7")
    b(f"  v_mul_u32_u24 v12, 80, v11")
    b(f"  v_add_u32 v10, v10, v12")
    b(f"  v_and_b32 v12, 1, v7")
    b(f"  v_lshl_add_u32 v10, v12, 5, v10")
    b(f"  v_bfe_u32 v12, v7, 4, 1")
    b(f"  v_lshl_add_u32 v10, v12, 4, v10")
    b(f"  v_bfe_u32 v12, v7, 1, 1")
    b(f"  v_lshl_add_u32 v10, v12, 3, v10")
    b(f"  s_mul_i32 s{S_T+1}, s{S_W}, {4*80}")
    b(f"  s_add_u32 s{S_T+1}, s{S_T+1}, {L3_LN}")
    b(f"  v_add_u32 v10, s{S_T+1}, v10")
    for ps in range(2):
        b(f"  ds_read_b64_tr_b16 {vr(32+4*ps,2)}, v10 offset:{ps*160}")
        b(f"  ds_read_b64_tr_b16 {vr(34+4*ps,2)}, v10 offset:{ps*160 + 4*L3_RS}")
    b(f"  v_lshlrev_b32 v11, 17, v11")
    b(f"  v_and_b32 v12, 31, v7")
    b(f"  v_lshl_add_u32 v11, v12, 4, v11")
    b(f"  s_lshl_b32 s{S_T+1}, s{S_W}, 19")
    b(f"  s_lshl_b32 s{S_T+2}, s2, 9")
    b(f"  s_add_u32 s{S_T+1}, s{S_T+1}, s{S_T+2}")
    b(f"  s_add_u32 s{S_T+2}, s{S_T+1}, {2*131072}")
    b(f"  s_waitcnt lgkmcnt(2)")
    b(f"  buffer_store_dwordx4 v[32:35], v11, s[{SRD_D}:{SRD_D+3}], s{S_T+1} offen{SF}")
    b(f"  s_waitcnt lgkmcnt(0)")
    b(f"  buffer_store_dwordx4 v[36:39], v11, s[{SRD_D}:{SRD_D+3}], s{S_T+2} offen{SF}")
    stamp(b, "p3 stores issued")
    b(f"  s_and_b32 s{S_T+8}, s2, 15")
    arrive(b, 2, S_T + 8, label="x3")
    srd(b, SRD_T, P_W1, W1B)
    b(f"  s_cmp_lt_u32 s{S_W}, 4")
    b(f"  s_cbranch_scc1 p3_nodma")
    b(f"  s_cmp_eq_u32 s62, 0")
    b(f"  s_cbranch_scc1 p3_nodma")
    for n in range(2): loader_issue(b, V_LO, W1F())
    b.label("p3_nodma")

def gemm_core(b, c, pre, after_setup, after_prologue=None, posts=None):
    NB, NS = c.NB, c.NS
    acc = lambda nb: V_ACC + nb * 16
    VT = V_ACC + NB * 16
    VPR = VT + 32
    c.VT, c.VPR = VT, VPR
    c.vend = VPR + 4 * PR
    tf = lambda q: VT + (q % 8) * 4
    pr = lambda j: VPR + (j % PR) * 4
    FPI = 64
    KPI = FPI // NB
    def tread(q):
        ql = q % FPI
        lslot, within = ql // 16, ql % 16
        ks, nb = within // NB, within % NB
        off = lslot * STAGE + ks * 16 * c.rowb
        b(f"  ds_read_b64_tr_b16 {vr(tf(q),2)}, v{V_T+nb} offset:{off}")
        b(f"  ds_read_b64_tr_b16 {vr(tf(q)+2,2)}, v{V_T+nb} offset:{off+4*c.rowb}")
    def pload(j):
        b(f"  buffer_load_dwordx4 {vr(pr(j),4)}, v{V_P}, s[{SRD_P}:{SRD_P+3}], s{S_POFF} offen offset:{(j%4)*1024}{LF}")
        if j % 4 == 3: b(f"  s_add_u32 s{S_POFF}, s{S_POFF}, 4096")
    def mfma(q):
        nb = q % NB; j = q // NB; a = acc(nb)
        if "m16fake" in OPT:
            o = 8 * (j % 2)
            b(f"  v_mfma_f32_16x16x32_bf16 {vr(a+o,4)}, {vr(tf(q),4)}, {vr(pr(j),4)}, {vr(a+o,4)}")
            b(f"  v_mfma_f32_16x16x32_bf16 {vr(a+o+4,4)}, {vr(pr(j),4)}, {vr(tf(q),4)}, {vr(a+o+4,4)}")
            return
        if c.name == "g1":
            b(f"  v_mfma_f32_32x32x16_bf16 {vr(a,16)}, {vr(tf(q),4)}, {vr(pr(j),4)}, {vr(a,16)}")
        else:
            b(f"  v_mfma_f32_32x32x16_bf16 {vr(a,16)}, {vr(pr(j),4)}, {vr(tf(q),4)}, {vr(a,16)}")
    if "prioc" in OPT: b("  s_setprio 2")
    b(f"  s_mov_b32 s{S_POFF}, 0")
    b(f"  s_mov_b32 s{S_DELTA}, {4*STAGE}")
    b(f"  s_mov_b32 s{S_IT}, {NS//4 - 1}")
    after_setup()
    for j in range(PR - 1): pload(j)
    if after_prologue: after_prologue()
    b("  s_barrier")
    for q in range(DQ): tread(q)
    def body(last):
        for q in range(FPI):
            j = q // NB
            qn = q + DQ
            do_read = not (last and qn >= FPI)
            do_pload = False
            if q % NB == 0:
                rem = KPI - 1 - j
                if (not last) or (j + PR - 1 < KPI):
                    b(f"  s_waitcnt vmcnt({PR-2})")
                    do_pload = True
                else:
                    b(f"  s_waitcnt vmcnt({min(PR-2, rem)})")
            if do_read and qn % 16 == 0:
                b("  s_barrier")
            if do_read and qn == FPI:
                for i in range(NB): b(f"  v_add_u32 v{V_T+i}, s{S_DELTA}, v{V_T+i}")
                b(f"  s_sub_u32 s{S_DELTA}, 0, s{S_DELTA}")
            if q % 2 == 0:
                left = min(DQ - 2, FPI - 2 - q) if last else DQ - 2
                b(f"  s_waitcnt lgkmcnt({2*left})")
            mfma(q)
            if do_pload: pload(j + PR - 1)
            if do_read: tread(qn)
    b.label(f"{pre}_loop")
    body(False)
    b(f"  s_sub_u32 s{S_IT}, s{S_IT}, 1")
    b(f"  s_cmp_lg_u32 s{S_IT}, 0")
    b(f"  s_cbranch_scc1 {pre}_loop")
    if posts is None:
        body(True)
        return
    F = [(q // NB, q % NB) for q in range(16)] + [(4 + r % 12, r // 12) for r in range(48)]
    def tread_f(q):
        j, nb = F[q]
        off = (j // 4) * STAGE + (j % 4) * 16 * c.rowb
        b(f"  ds_read_b64_tr_b16 {vr(tf(q),2)}, v{V_T+nb} offset:{off}")
        b(f"  ds_read_b64_tr_b16 {vr(tf(q)+2,2)}, v{V_T+nb} offset:{off+4*c.rowb}")
    for q in range(FPI):
        j, nb = F[q]
        qn = q + DQ
        first_use = (q < 16 and nb == 0) or (16 <= q < 28)
        if q == 0: b(f"  s_waitcnt vmcnt({PR-2})")
        elif first_use: b(f"  s_waitcnt vmcnt({min(PR-2, KPI - 1 - j)})")
        if q == 9: b("  s_barrier"); b("  s_barrier")
        if q == 13: b("  s_barrier")
        if q % 2 == 0:
            left = min(DQ - 2, FPI - 2 - q)
            b(f"  s_waitcnt lgkmcnt({2*left})")
        a = acc(nb)
        if c.name == "g1":
            b(f"  v_mfma_f32_32x32x16_bf16 {vr(a,16)}, {vr(tf(q),4)}, {vr(pr(j),4)}, {vr(a,16)}")
        else:
            b(f"  v_mfma_f32_32x32x16_bf16 {vr(a,16)}, {vr(pr(j),4)}, {vr(tf(q),4)}, {vr(a,16)}")
        if q == 0: pload(PR - 1)
        if qn < FPI: tread_f(qn)
        if q >= 28:
            blk, r = (q - 16) // 12 - 1, (q - 16) % 12
            fill = posts.get(blk, [])
            if fill and r >= 3:
                n = len(fill); per = -(-n // 9)
                for line in fill[(r - 3) * per:(r - 2) * per]: b(line)

def idle_w1(b):
    srd(b, SRD_PF, P_W1, W1B)
    b(f"  s_and_b32 s51, s50, 7")
    b(f"  s_mul_i32 s51, s51, {256*7168}")
    b(f"  s_lshr_b32 s52, s50, 3")
    b(f"  s_mul_i32 s52, s52, {4*7168}")
    b(f"  s_add_u32 s51, s51, s52")
    b(f"  s_add_u32 s51, s51, {128*7168}")
    b(f"  s_mov_b32 s52, 7")
    b.label("pf_w1b")
    for i in range(4): b(f"  buffer_load_dwordx4 {vr(V_DUMMY,4)}, v29, s[{SRD_PF}:{SRD_PF+3}], s51 offen offset:{1024*i}")
    b(f"  s_add_u32 s51, s51, 4096")
    b(f"  s_waitcnt vmcnt(4)")
    b(f"  s_sub_u32 s52, s52, 1")
    b(f"  s_cmp_lg_u32 s52, 0")
    b(f"  s_cbranch_scc1 pf_w1b")

def idle_w2(b):
    if "idlesc" in OPT:
        srd(b, SRD_PF, P_W2, W1B)
        b(f"  s_mul_i32 s51, s50, {W1B // 256}")
        b(f"  v_lshlrev_b32 v29, 7, v7")
        for i in range(7):
            b(f"  buffer_load_dword v230, v29, s[{SRD_PF}:{SRD_PF+3}], s51 offen")
            b(f"  s_add_u32 s51, s51, 8192")
            if i >= 1: b(f"  s_waitcnt vmcnt(1)")
        b(f"  s_waitcnt vmcnt(0)")
        return
    srd(b, SRD_PF, P_W2, W1B)
    b(f"  s_mul_i32 s51, s50, {W1B // 256}")
    b(f"  s_mov_b32 s52, 14")
    b.label("pf_w2")
    for i in range(4): b(f"  buffer_load_dwordx4 {vr(V_DUMMY,4)}, v29, s[{SRD_PF}:{SRD_PF+3}], s51 offen offset:{1024*i}")
    b(f"  s_add_u32 s51, s51, 4096")
    b(f"  s_waitcnt vmcnt({0 if 'idlepace' in OPT else 4})")
    b(f"  s_sub_u32 s52, s52, 1")
    b(f"  s_cmp_lg_u32 s52, 0")
    b(f"  s_cbranch_scc1 pf_w2")
    b(f"  s_waitcnt vmcnt(0)")

def g1_gelu(b, c, blocks, accof, vaddr):
    K1 = -2.0 * 0.7978845608028654 * 1.4426950408889634
    K2 = K1 * 0.044715
    T = c.VPR
    b(f"  v_mov_b32 v{T}, {hex(f2u(K1))}")
    b(f"  v_mov_b32 v{T+1}, {hex(f2u(K1))}")
    b(f"  v_mov_b32 v{T+2}, {hex(f2u(K2))}")
    b(f"  v_mov_b32 v{T+3}, {hex(f2u(K2))}")
    b(f"  s_nop 7")
    W = T + 8
    for fb in blocks:
        a = accof(fb); t = W; o = W + 16 + 8 * (fb % 2)
        for h in range(0, 16, 2): b(f"  v_pk_mul_f32 {vr(t+h,2)}, {vr(a+h,2)}, {vr(a+h,2)}")
        for h in range(0, 16, 2): b(f"  v_pk_fma_f32 {vr(t+h,2)}, {vr(t+h,2)}, {vr(T+2,2)}, {vr(T,2)}")
        for h in range(0, 16, 2): b(f"  v_pk_mul_f32 {vr(t+h,2)}, {vr(t+h,2)}, {vr(a+h,2)}")
        for r in range(16): b(f"  v_exp_f32 v{t+r}, v{t+r}")
        for h in range(0, 16, 2): b(f"  v_pk_add_f32 {vr(t+h,2)}, {vr(t+h,2)}, 1.0 op_sel_hi:[1,0]")
        for r in range(16): b(f"  v_rcp_f32 v{t+r}, v{t+r}")
        for h in range(0, 16, 2): b(f"  v_pk_mul_f32 {vr(t+h,2)}, {vr(a+h,2)}, {vr(t+h,2)}")
        for i in range(4):
            b(f"  v_cvt_pk_bf16_f32 v{o+2*i}, v{t+4*i}, v{t+4*i+1}")
            b(f"  v_cvt_pk_bf16_f32 v{o+2*i+1}, v{t+4*i+2}, v{t+4*i+3}")
        for ip in range(2):
            oo = o + 4 * ip
            b(f"  s_mov_b32 s{S_TMP+1}, {(2*fb+ip)*1024}")
            b(f"  s_nop 0")
            b(f"  v_permlane32_swap_b32 v{oo}, v{oo+2}")
            b(f"  v_permlane32_swap_b32 v{oo+1}, v{oo+3}")
            b(f"  buffer_store_dwordx4 {vr(oo,4)}, v{vaddr}, s[{SRD_O}:{SRD_O+3}], s{S_TMP+1} offen{SF}")

def gelu_lines(fb, a, CT, t, o, vaddr):
    L = []
    for h in range(0, 16, 2): L.append(f"  v_pk_mul_f32 {vr(t+h,2)}, {vr(a+h,2)}, {vr(a+h,2)}")
    for h in range(0, 16, 2): L.append(f"  v_pk_fma_f32 {vr(t+h,2)}, {vr(t+h,2)}, {vr(CT+2,2)}, {vr(CT,2)}")
    for h in range(0, 16, 2): L.append(f"  v_pk_mul_f32 {vr(t+h,2)}, {vr(t+h,2)}, {vr(a+h,2)}")
    for r in range(16): L.append(f"  v_exp_f32 v{t+r}, v{t+r}")
    for h in range(0, 16, 2): L.append(f"  v_pk_add_f32 {vr(t+h,2)}, {vr(t+h,2)}, 1.0 op_sel_hi:[1,0]")
    for r in range(16): L.append(f"  v_rcp_f32 v{t+r}, v{t+r}")
    for h in range(0, 16, 2): L.append(f"  v_pk_mul_f32 {vr(t+h,2)}, {vr(a+h,2)}, {vr(t+h,2)}")
    for i in range(4):
        L.append(f"  v_cvt_pk_bf16_f32 v{o+2*i}, v{t+4*i}, v{t+4*i+1}")
        L.append(f"  v_cvt_pk_bf16_f32 v{o+2*i+1}, v{t+4*i+2}, v{t+4*i+3}")
    for ip in range(2):
        oo = o + 4 * ip
        L.append(f"  s_mov_b32 s{S_TMP+1}, {(2*fb+ip)*1024}")
        L.append(f"  s_nop 1")
        L.append(f"  v_permlane32_swap_b32 v{oo}, v{oo+2}")
        L.append(f"  v_permlane32_swap_b32 v{oo+1}, v{oo+3}")
        L.append(f"  buffer_store_dwordx4 {vr(oo,4)}, v{vaddr}, s[{SRD_O}:{SRD_O+3}], s{S_TMP+1} offen{SF}")
    return L

def g1(b):
    c = g1_cfg()
    b(f"  s_cmp_eq_u32 s62, 0")
    b(f"  s_cbranch_scc1 g1_inactive")
    srd(b, SRD_P, P_WS, 4 << 20, WS_LN2)
    srd(b, SRD_T, P_W1, W1B)
    srd(b, SRD_O, P_WS, U_BYTES, WS_U)
    srd(b, SRD_X, P_B1, 3584 * 2)
    b(f"  s_cmp_ge_u32 s{S_W}, 4")
    b(f"  s_cbranch_scc1 g1_loader")
    lane_geom(b)
    b(f"  s_lshl_b32 s{S_TMP}, s61, 2")
    b(f"  s_add_u32 s{S_TMP}, s{S_TMP}, s{S_W}            ; dblk")
    b(f"  s_lshl_b32 s{S_TMP+2}, s{S_TMP}, 17")
    b(f"  v_lshlrev_b32 v10, 4, v7")
    b(f"  v_add_u32 v{V_P}, s{S_TMP+2}, v10")
    b(f"  s_lshl_b32 s{S_TMP+1}, s60, 8       ; f0*2")
    b(f"  v_lshlrev_b32 v11, 3, v9")
    b(f"  v_add_u32 v11, s{S_TMP+1}, v11")
    BV = 192
    for fb in range(4):
        for i in range(4):
            b(f"  buffer_load_dwordx2 {vr(BV+2*(4*fb+i),2)}, v11, s[{SRD_X}:{SRD_X+3}], 0 offen offset:{64*fb+16*i}")
    b(f"  v_lshl_add_u32 v20, v9, 3, v18")
    b(f"  v_lshlrev_b32 v20, 8, v20")
    b(f"  v_lshl_add_u32 v20, v18, 6, v20")
    b(f"  v_lshl_add_u32 v20, v19, 5, v20")
    b(f"  v_lshl_add_u32 v{V_T}, v22, 3, v20")
    for fb in range(1, 4):
        b(f"  v_xor_b32 v{V_T+fb}, {64*fb}, v{V_T}")
    b(f"  s_mul_i32 s{S_TMP+2}, s{S_TMP}, 229376")
    b(f"  s_lshl_b32 s{S_TMP+1}, s60, 13")
    b(f"  s_add_u32 s{S_TMP+1}, s{S_TMP+1}, s{S_TMP+2}")
    b(f"  v_add_u32 v28, s{S_TMP+1}, v10")
    b(f"  s_waitcnt vmcnt(0)")
    for fb in range(4):
        for i in range(4):
            bv = BV + 2 * (4 * fb + i); a = V_ACC + fb * 16 + 4 * i
            b(f"  v_lshlrev_b32 v{a}, 16, v{bv}")
            b(f"  v_and_b32 v{a+1}, 0xffff0000, v{bv}")
            b(f"  v_lshlrev_b32 v{a+2}, 16, v{bv+1}")
            b(f"  v_and_b32 v{a+3}, 0xffff0000, v{bv+1}")
    def w3():
        wait(b, 2, 16, "x3c")
        stamp(b, "x3 released")
        stamp(b, "c:g1 start")
    SKEW = "skew" in OPT
    if SKEW:
        K1 = -2.0 * 0.7978845608028654 * 1.4426950408889634
        K2 = K1 * 0.044715
        CT, GT, GO = 192, 196, 212
        for i, kv in enumerate((K1, K1, K2, K2)): b(f"  v_mov_b32 v{CT+i}, {hex(f2u(kv))}")
        posts = {fb: gelu_lines(fb, V_ACC + 16 * fb, CT, GT, GO, 28) for fb in range(3)}
        gemm_core(b, c, "g1", w3, None, posts)
    else:
        gemm_core(b, c, "g1", w3)
    stamp(b, "c:g1 end")
    stamp(b, "g1 main done")
    E8 = "epi8" in OPT
    XO = 4 * STAGE
    if E8:
        b(f"  s_lshl_b32 s{S_TMP+1}, s{S_W}, 13")
        b(f"  s_add_u32 s{S_TMP+1}, s{S_TMP+1}, {XO}")
        b(f"  v_add_u32 v12, s{S_TMP+1}, v10")
        b(f"  s_nop 9")
        for k in range(8): b(f"  ds_write_b128 v12, {vr(V_ACC+32+4*k,4)} offset:{1024*k}")
        b(f"  s_waitcnt lgkmcnt(0)")
        b(f"  s_barrier")
    if SKEW:
        b(f"  s_nop 9")
        for line in gelu_lines(3, V_ACC + 48, CT, GT, GO, 28): b(line)
    else:
        g1_gelu(b, c, range(2) if E8 else range(4), lambda fb: V_ACC + fb * 16, 28)
    stamp(b, "g1 stores issued")
    b(f"  s_waitcnt vmcnt(0)")
    b(f"  s_branch g1_join")
    b.label("g1_loader")
    b(f"  s_sub_u32 s50, s{S_W}, 4")
    b(f"  s_lshl_b32 s49, s50, 10")
    b(f"  s_add_u32 s{S_N+1}, s49, {R*STAGE}")
    b(f"  s_barrier                      ; matches the barrier inside wait(x3)")
    loader_loop(b, c.NS, "g1", W1F())
    stamp(b, "g1 main done")
    g2_prologue_loader(b)
    if "epi8" in OPT:
        b(f"  s_sub_u32 s{S_TMP}, s{S_W}, 4")
        b(f"  s_lshl_b32 s{S_TMP+1}, s{S_TMP}, 13")
        b(f"  s_add_u32 s{S_TMP+1}, s{S_TMP+1}, {4*STAGE}")
        b(f"  v_lshlrev_b32 v10, 4, v7")
        b(f"  v_add_u32 v12, s{S_TMP+1}, v10")
        b(f"  s_lshl_b32 s{S_TMP+1}, s61, 2")
        b(f"  s_add_u32 s{S_TMP}, s{S_TMP}, s{S_TMP+1}      ; dblk")
        b(f"  s_mul_i32 s{S_TMP+2}, s{S_TMP}, 229376")
        b(f"  s_lshl_b32 s{S_TMP+1}, s60, 13")
        b(f"  s_add_u32 s{S_TMP+1}, s{S_TMP+1}, s{S_TMP+2}")
        b(f"  v_add_u32 v28, s{S_TMP+1}, v10")
        b(f"  s_barrier")
        for k in range(8): b(f"  ds_read_b128 {vr(V_ACC+4*k,4)}, v12 offset:{1024*k}")
        b(f"  s_waitcnt lgkmcnt(0)")
        g1_gelu(b, c, range(2, 4), lambda fb: V_ACC + (fb - 2) * 16, 28)
        b(f"  s_waitcnt vmcnt(0)")
    stamp(b, "g1 stores issued")
    b.label("g1_join")
    if SK():
        b(f"  s_cmp_ge_u32 s60, 14")
        b(f"  s_cselect_b32 s18, 1, 0")
        b(f"  s_lshl_b32 s10, s61, 1")
        b(f"  s_add_u32 s18, s18, s10")
        arrive(b, 3, 18, label="x4", drained=True)
    else:
        arrive(b, 3, 61, label="x4", drained=True)
    b(f"  s_branch g2_start")
    b.label("g1_inactive")
    if "nopf" not in OPT:
        b(f"  s_sub_u32 s50, s2, 224")
        b(f"  s_lshl_b32 s50, s50, 3")
        b(f"  s_add_u32 s50, s50, s{S_W}")
        b(f"  v_lshlrev_b32 v29, 4, v7")
        if "noidle" not in OPT: idle_w2(b)
    b(f"  s_cmp_lt_u32 s{S_W}, 4")
    b(f"  s_cbranch_scc1 g2_start_inactive")
    g2_prologue_loader(b)
    b.label("g2_start_inactive")
    return c

def g2_prologue_loader(b):
    g2_ids(b)
    srd(b, SRD_T, P_W2, W1B)
    g2_loader_addr(b)
    loader_init(b, (64 if SK() else 128) * 4096)
    for n in range(2): loader_issue(b, V_LO, W2F())

def g2_sk(b):
    c = g1_cfg(); c.name = "g2"; c.NS = 28
    b.label("g2_start")
    g2_ids(b)
    srd(b, SRD_P, P_WS, U_BYTES, WS_U)
    srd(b, SRD_O, P_OUT, 4 << 20)
    srd(b, SRD_X, P_B2, 2048 * 2)
    srd(b, SRD_Y, P_WS, 4 << 20, WS_H)
    b(f"  s_cmp_ge_u32 s{S_W}, 4")
    b(f"  s_cbranch_scc1 g2_loader")
    lane_geom(b)
    b(f"  s_lshl_b32 s{S_TMP}, s{S_TILE_A}, 2")
    b(f"  s_add_u32 s{S_TMP}, s{S_TMP}, s{S_W}        ; dblk")
    b(f"  s_mul_i32 s{S_TMP+2}, s{S_TMP}, 229376")
    b(f"  s_mul_i32 s{S_TMP+3}, s19, {112*1024}       ; k half")
    b(f"  s_add_u32 s{S_TMP+2}, s{S_TMP+2}, s{S_TMP+3}")
    b(f"  v_lshlrev_b32 v10, 4, v7")
    b(f"  v_add_u32 v{V_P}, s{S_TMP+2}, v10")
    b(f"  s_lshl_b32 s{S_TMP+1}, s{S_TILE_B}, 7")
    b(f"  s_lshl_b32 s{S_TMP+3}, s19, 6")
    b(f"  s_add_u32 s{S_TMP+1}, s{S_TMP+1}, s{S_TMP+3}")
    b(f"  v_add_u32 v11, s{S_TMP+1}, v8              ; s0 + s'")
    b(f"  v_lshlrev_b32 v16, 1, v11")
    for sb in range(2):
        b(f"  buffer_load_ushort v{12+sb}, v16, s[{SRD_X}:{SRD_X+3}], 0 offen offset:{64*sb}")
    b(f"  v_lshlrev_b32 v17, 11, v11")
    b(f"  v_lshl_add_u32 v17, v9, 5, v17")
    b(f"  s_lshl_b32 s{S_TMP+2}, s{S_TMP}, 6")
    b(f"  v_add_u32 v28, s{S_TMP+2}, v17")
    HV = 192
    b(f"  v_lshl_add_u32 v20, v9, 3, v18")
    b(f"  v_lshlrev_b32 v20, 8, v20")
    b(f"  v_lshl_add_u32 v20, v18, 6, v20")
    b(f"  v_lshl_add_u32 v20, v19, 5, v20")
    b(f"  v_lshl_add_u32 v{V_T}, v22, 3, v20")
    b(f"  s_cmp_eq_u32 s19, 0")
    b(f"  s_cselect_b32 s{S_TMP+3}, 128, 0")
    b(f"  v_xor_b32 v{V_T}, s{S_TMP+3}, v{V_T}")
    for fb in range(1, 4):
        b(f"  v_xor_b32 v{V_T+fb}, {64*fb}, v{V_T}")
    b(f"  s_lshl_b32 s{S_TMP+1}, s{S_W}, 12")
    b(f"  s_lshl_b32 s{S_TMP+2}, s2, 14")
    b(f"  s_add_u32 s{S_TMP+2}, s{S_TMP+2}, s{S_TMP+1}")
    b(f"  v_add_u32 v29, s{S_TMP+2}, v10")
    b(f"  s_xor_b32 s{S_TMP+2}, s2, 1")
    b(f"  s_lshl_b32 s{S_TMP+2}, s{S_TMP+2}, 14")
    b(f"  s_add_u32 s{S_TMP+2}, s{S_TMP+2}, s{S_TMP+1}")
    b(f"  v_add_u32 v30, s{S_TMP+2}, v10")
    for i in range(64): b(f"  v_mov_b32 v{V_ACC+i}, 0")
    def w4():
        b(f"  s_lshl_b32 s18, s{S_TILE_A}, 1")
        b(f"  s_add_u32 s18, s18, s19")
        wait(b, 3, 14, "x4c", single_sreg=18)
        stamp(b, "x4 released")
        stamp(b, "c:g2 start")
    def hloads():
        for sb in range(2):
            b(f"  s_mov_b32 s{S_TMP+1}, {sb*65536}")
            b(f"  buffer_load_dwordx4 {vr(HV+8*sb,4)}, v28, s[{SRD_Y}:{SRD_Y+3}], s{S_TMP+1} offen{LF}")
            b(f"  buffer_load_dwordx4 {vr(HV+8*sb+4,4)}, v28, s[{SRD_Y}:{SRD_Y+3}], s{S_TMP+1} offen offset:16{LF}")
    srd_later = True
    def send_lines(k):
        T0 = 208 + 8 * k; a = V_ACC + 16 * k
        L = [f"  v_cvt_pk_bf16_f32 v{T0+i}, v{a+2*i}, v{a+2*i+1}" for i in range(8)]
        L += [f"  v_min_u32 v{T0+i}, 0xfffffffe, v{T0+i}" for i in range(8)]
        L += [f"  buffer_store_dwordx4 {vr(T0+4*p,4)}, v30, s[{SRD_X}:{SRD_X+3}], 0 offen offset:{(2*k+p)*1024}{SF}" for p in range(2)]
        return L
    def hloads2():
        hloads()
    if "skew" in OPT:
        def w4x():
            w4()
        def hl():
            hloads()
        b(f"  s_waitcnt vmcnt(0)")
        srd(b, SRD_X, P_WS, 4 << 20, WS_XCH)
        gemm_core(b, c, "g2", w4, hloads, {0: send_lines(0), 1: send_lines(1)})
    else:
        gemm_core(b, c, "g2", w4, hloads)
    stamp(b, "c:g2 end")
    stamp(b, "g2 main done")
    T = c.VT
    if "skew" not in OPT:
        srd(b, SRD_X, P_WS, 4 << 20, WS_XCH)
        b(f"  s_nop 9")
        for k in range(2):
            for line in send_lines(k): b(line)
    KEEP = V_ACC + 32
    RX = c.VPR
    b(f"  s_mov_b32 s11, 200000")
    b.label("g2x_poll")
    for k in range(4):
        b(f"  buffer_load_dwordx4 {vr(RX+4*k,4)}, v29, s[{SRD_X}:{SRD_X+3}], 0 offen offset:{k*1024} sc1")
    b(f"  s_waitcnt vmcnt(0)")
    sentinel_check(b, RX, "g2x", n=16)
    stamp(b, "g2 x landed")
    b(f"  s_mov_b32 s{S_TMP}, 0xffff0000")
    for blk in range(2):
        for i in range(8):
            a = KEEP + blk * 16 + 2 * i; r = RX + 8 * blk + i
            b(f"  v_lshlrev_b32 v16, 16, v{r}")
            b(f"  v_and_b32 v17, s{S_TMP}, v{r}")
            b(f"  v_add_f32 v{a}, v{a}, v16")
            b(f"  v_add_f32 v{a+1}, v{a+1}, v17")
    for sb in range(2):
        b(f"  v_lshlrev_b32 v{12+sb}, 16, v{12+sb}")
    for sb in range(2):
        for half in range(2):
            o = T + 4 * ((sb * 2 + half) % 2)
            for dd in range(4):
                a = KEEP + sb * 16 + half * 8 + 2 * dd
                hv = HV + 8 * sb + 4 * half + dd
                t0 = T + 8 + 4 * dd
                b(f"  v_lshlrev_b32 v{t0}, 16, v{hv}")
                b(f"  v_and_b32 v{t0+1}, s{S_TMP}, v{hv}")
                b(f"  v_pk_add_f32 {vr(t0,2)}, {vr(t0,2)}, {vr(a,2)}")
                b(f"  v_add_f32 v{t0}, v{t0}, v{12+sb}")
                b(f"  v_add_f32 v{t0+1}, v{t0+1}, v{12+sb}")
                b(f"  v_cvt_pk_bf16_f32 v{o+dd}, v{t0}, v{t0+1}")
            b(f"  s_mov_b32 s{S_TMP+1}, {sb*65536}")
            if "noout" not in OPT: b(f"  buffer_store_dwordx4 {vr(o,4)}, v28, s[{SRD_O}:{SRD_O+3}], s{S_TMP+1} offen offset:{16*half}{OF()}")
    stamp(b, "g2 stores issued")
    b(f"  s_branch g2_done")
    b.label("g2_loader")
    b(f"  s_barrier                      ; matches the barrier inside wait(x4)")
    loader_loop(b, c.NS, "g2", W2F())
    b.label("g2_done")

def g2(b):
    if SK(): return g2_sk(b)
    c = g2_cfg()
    b.label("g2_start")
    g2_ids(b)
    srd(b, SRD_P, P_WS, U_BYTES, WS_U)
    srd(b, SRD_O, P_OUT, 4 << 20)
    srd(b, SRD_X, P_B2, 2048 * 2)
    srd(b, SRD_Y, P_WS, 4 << 20, WS_H)
    b(f"  s_cmp_ge_u32 s{S_W}, 4")
    b(f"  s_cbranch_scc1 g2_loader")
    lane_geom(b)
    b(f"  s_lshl_b32 s{S_TMP}, s{S_TILE_A}, 2")
    b(f"  s_add_u32 s{S_TMP}, s{S_TMP}, s{S_W}        ; dblk")
    b(f"  s_mul_i32 s{S_TMP+2}, s{S_TMP}, 229376")
    b(f"  v_lshlrev_b32 v10, 4, v7")
    b(f"  v_add_u32 v{V_P}, s{S_TMP+2}, v10")
    b(f"  s_lshl_b32 s{S_TMP+1}, s{S_TILE_B}, 6       ; s0")
    b(f"  v_add_u32 v11, s{S_TMP+1}, v8              ; s0 + s'")
    b(f"  v_lshlrev_b32 v16, 1, v11")
    for sb in range(2):
        b(f"  buffer_load_ushort v{12+sb}, v16, s[{SRD_X}:{SRD_X+3}], 0 offen offset:{64*sb}")
    b(f"  v_lshlrev_b32 v17, 11, v11")
    b(f"  v_lshl_add_u32 v17, v9, 5, v17")
    b(f"  s_lshl_b32 s{S_TMP+2}, s{S_TMP}, 6")
    b(f"  v_add_u32 v28, s{S_TMP+2}, v17")
    HV = 160
    b(f"  v_lshl_add_u32 v20, v9, 3, v18            ; row")
    b(f"  v_bfe_u32 v21, v18, 1, 1")
    b(f"  v_lshlrev_b32 v20, 7, v20")
    b(f"  v_lshl_add_u32 v20, v21, 6, v20")
    b(f"  v_lshl_add_u32 v20, v19, 5, v20")
    b(f"  v_lshl_add_u32 v{V_T}, v22, 3, v20")
    b(f"  v_xor_b32 v{V_T+1}, 64, v{V_T}")
    for i in range(32): b(f"  v_mov_b32 v{V_ACC+i}, 0")
    def w4():
        wait(b, 3, 28, "x4c", single_sreg=S_TILE_A)
        stamp(b, "x4 released")
        stamp(b, "c:g2 start")
    def hloads():
        for sb in range(2):
            b(f"  s_mov_b32 s{S_TMP+1}, {sb*65536}")
            b(f"  buffer_load_dwordx4 {vr(HV+8*sb,4)}, v28, s[{SRD_Y}:{SRD_Y+3}], s{S_TMP+1} offen{LF}")
            b(f"  buffer_load_dwordx4 {vr(HV+8*sb+4,4)}, v28, s[{SRD_Y}:{SRD_Y+3}], s{S_TMP+1} offen offset:16{LF}")
    gemm_core(b, c, "g2", w4, hloads)
    stamp(b, "c:g2 end")
    stamp(b, "g2 main done")
    T = c.VT
    b(f"  s_mov_b32 s{S_TMP}, 0xffff0000")
    for sb in range(2):
        b(f"  v_lshlrev_b32 v{12+sb}, 16, v{12+sb}")
    b(f"  s_nop 9")
    for sb in range(2):
        for half in range(2):
            o = T + 4 * ((sb * 2 + half) % 2)
            for dd in range(4):
                a = V_ACC + sb * 16 + half * 8 + 2 * dd
                hv = HV + 8 * sb + 4 * half + dd
                t0 = T + 8 + 4 * dd
                b(f"  v_cvt_pk_bf16_f32 v{t0}, v{a}, v{a+1}")
                b(f"  v_and_b32 v{t0+1}, s{S_TMP}, v{t0}")
                b(f"  v_lshlrev_b32 v{t0}, 16, v{t0}")
                b(f"  v_add_f32 v{t0}, v{t0}, v{12+sb}")
                b(f"  v_add_f32 v{t0+1}, v{t0+1}, v{12+sb}")
                b(f"  v_cvt_pk_bf16_f32 v{t0}, v{t0}, v{t0+1}")
                b(f"  v_and_b32 v{t0+1}, s{S_TMP}, v{t0}")
                b(f"  v_lshlrev_b32 v{t0}, 16, v{t0}")
                b(f"  v_lshlrev_b32 v{t0+2}, 16, v{hv}")
                b(f"  v_and_b32 v{t0+3}, s{S_TMP}, v{hv}")
                b(f"  v_add_f32 v{t0}, v{t0}, v{t0+2}")
                b(f"  v_add_f32 v{t0+1}, v{t0+1}, v{t0+3}")
                b(f"  v_cvt_pk_bf16_f32 v{o+dd}, v{t0}, v{t0+1}")
            b(f"  s_mov_b32 s{S_TMP+1}, {sb*65536}")
            b(f"  buffer_store_dwordx4 {vr(o,4)}, v28, s[{SRD_O}:{SRD_O+3}], s{S_TMP+1} offen offset:{16*half}")
    stamp(b, "g2 stores issued")
    b(f"  s_branch g2_done")
    b.label("g2_loader")
    b(f"  s_barrier                      ; matches the barrier inside wait(x4)")
    loader_loop(b, c.NS, "g2", W2F())
    b.label("g2_done")

def build():
    NAME = "sequential_preLN__spectral_gfnet__mixer_token_mlp__prompt"
    hdr = open(f"cdna_kernels/{NAME}.s.ref").read().split("; Override launch")[0]
    K = NAME + "_kernel"
    b = B()
    b(hdr.rstrip("\n"))
    b(f"; @launch grid=(256,1,1) block=(512,1,1) lds={LDS_TOTAL}")
    b('.amdgcn_target "amdgcn-amd-amdhsa--gfx950"\n.text')
    b(f".globl {K}\n.p2align 8\n.type {K},@function\n{K}:")
    b(f"  s_cmp_ge_u32 s2, 256\n  s_cbranch_scc1 k_exit")
    if "stamp" in OPT: b("  v_mov_b32 v231, 0")
    stamp(b, "entry")
    b(f"  s_load_dwordx4 s[{P_X}:{P_X+3}], s[0:1], 0        ; x, w_r")
    b(f"  s_load_dwordx2 s[{P_WI}:{P_WI+1}], s[0:1], 16")
    b(f"  s_load_dwordx2 s[{P_W1}:{P_W1+1}], s[0:1], 32")
    b(f"  s_load_dwordx4 s[{P_B1}:{P_B1+3}], s[0:1], 40     ; b1, w2")
    b(f"  s_load_dwordx4 s[{P_B2}:{P_B2+3}], s[0:1], 56     ; b2, out")
    b(f"  s_load_dwordx4 s[{P_DBG}:{P_DBG+3}], s[0:1], 72")
    b(f"  v_lshrrev_b32 v6, 6, v0")
    b(f"  v_and_b32 v7, 63, v0        ; lane")
    b(f"  v_readfirstlane_b32 s{S_W}, v6")
    b(f"  v_and_b32 v8, 15, v7          ; c")
    b(f"  v_lshrrev_b32 v9, 4, v7       ; g")
    b(f"  s_waitcnt lgkmcnt(0)")
    srd(b, SRD_CNT, P_WS, 65536, WS_CNT)
    p1(b)
    p2_setup(b)
    wait(b, 0, 16, "x1c")
    stamp(b, "x1 released")
    p2_main(b)
    p3_setup(b)
    if SENT(): b("  s_barrier")
    else: wait(b, 1, 16, "x2c")
    stamp(b, "x2 released")
    p3_main(b)
    g1(b)
    g2(b)
    b(f"  s_waitcnt vmcnt(0)")
    stamp(b, "end")
    stamp_flush(b)
    b("k_exit:\n  s_endpgm")
    b(kd(K, 240, sgpr=102))
    return b.text()

if __name__ == "__main__":
    out = sys.argv[1]
    OPT.update(sys.argv[2:])
    if "lfplain" not in OPT: LF = " sc1"
    for o in sys.argv[2:]:
        if o.startswith("pfn="): PFN[:] = [int(c) for c in o[4:].split(",")]
    gemm.OPT.update(sys.argv[2:])
    t = build()
    open(out, "w").write(t)
    rep = check_text(t)
    print("\n".join(rep) if rep else "no hazards found", "| stamps:", nstamp[0])
```

```python
import sys
from asmlib import *
import gemm, fft
from gemm import (srd, f2u, WS_X1, WS_X2, WS_H, WS_LN2, WS_U, U_BYTES, S_W, R, STAGE, PR, DQ,
                  V_P, V_T, V_ACC, S_POFF, S_IT, S_DELTA, SRD_P, SRD_T, SRD_O, SRD_X, SRD_Y, S_TILE_A, S_TILE_B, S_TMP,
                  g1_cfg, g2_cfg, lane_geom)
from fft import sincos, wave_reduce, ln_finish, layernorm16, cmul_pk, gmat, MF32, MF16

OPT = set()
N7 = [0]
WPN = [0]
PFN = [0, 4, 0, 4]
WS_CNT = 30 << 20
WS_STAMP = 31 << 20
WS_WP = 32 << 20
WS_XCH = 24 << 20
W1B = 2048 * 3584 * 2
WB = 2048 * 1026

P_X, P_WR, P_WI, P_W1, P_B1, P_W2, P_B2, P_OUT, P_DBG, P_WS = 64, 66, 68, 70, 72, 74, 76, 78, 80, 82
SRD_CNT = 12
S_T = 46
SRD_A, SRD_B, SRD_C, SRD_D = 24, 28, 32, 36
SRD_PF = 56
S_STAMP = 84
SF = " sc1"
LF = ""

L1_M1, L1_M2, L1_TW, L1_EX = 0, 4096, 8192, 16384
L2_F = 32768; L2_X = L2_F + 2048; L2_W = L2_X + 16 * 1040
L3_M3 = 98304; L3_M4 = L3_M3 + 4096; L3_TW = L3_M3 + 8192; L3_EX = L3_M3 + 16384
L3_LN = L3_EX + 16384; L3_RS = 2624
LDS_TOTAL = L3_LN + 8 * L3_RS
assert LDS_TOTAL <= 163840

STAMPS = ["entry", "p1 x landed", "p1 stores issued", "p1 arrived", "x1 released", "p2 x landed", "p2 stores issued",
          "x2 released", "p3 x2 landed", "p3 stores issued", "x3 released", "g1 main done", "g1 stores issued", "x4 released",
          "g2 main done", "g2 stores issued", "end", "x1 drained", "x2 drained", "x3 drained", "x4 drained", "p1 tables done", "p1 ln done", "p1 fft done", "p3 ifft done", "p3 ln done", "c:g1 start", "c:g1 end", "c:g2 start", "c:g2 end", "g2 x landed", "p2 w landed"]
nstamp = [len(STAMPS)]
SENT = lambda: "bar" not in OPT
SENT2 = lambda: "bar" not in OPT or "sent2" in OPT
SK = lambda: "nosk" not in OPT
W1F = lambda: " nt" if "ntw1" in OPT else ""
W2F = lambda: " nt" if "ntw2" in OPT else ""
XF = lambda: " nt" if ("ntx" in OPT or "ntx1" in OPT) else ""
OF = lambda: " sc1" if "outsc1" in OPT else (" nt" if "outnt" in OPT else "")
WF = lambda: " nt" if ("ntx" in OPT or "ntw" in OPT) else ""
L_XS = 69632
def stamp(b, name):
    if "stamp" not in OPT: return
    i = STAMPS.index(name)
    op = "s_memtime" if name.startswith("c:") else "s_memrealtime"
    b(f"  {op} s[{S_STAMP}:{S_STAMP+1}]   ; stamp {i}: {name}")
    b(f"  s_waitcnt lgkmcnt(0)")
    b(f"  v_writelane_b32 v231, s{S_STAMP}, {i}")

def stamp_flush(b):
    if "stamp" not in OPT: return
    if "dbgmax" in OPT:
        SEL = [1, 23, 2, 17, 3, 4, 5, 6, 18, 7, 8, 9, 19, 10]
        srd(b, 24, P_DBG, 256)
        b(f"  v_readlane_b32 s46, v231, 0")
        b(f"  s_sub_u32 s47, 0, s46")
        b(f"  v_mov_b32 v3, 0")
        b(f"  v_writelane_b32 v3, s47, 0")
        b(f"  v_writelane_b32 v3, s46, 15")
        for i, st in enumerate(SEL):
            b(f"  v_readlane_b32 s46, v231, {st}")
            b(f"  s_nop 3")
            b(f"  v_writelane_b32 v3, s46, {i+1}")
        b(f"  v_lshlrev_b32 v2, 2, v7")
        b(f"  s_mov_b64 s[48:49], exec")
        b(f"  s_mov_b64 exec, 0xffff")
        b(f"  buffer_atomic_umax v3, v2, s[24:27], 0 offen sc1")
        b(f"  s_mov_b64 exec, s[48:49]")
        return
    if "dbgtime" in OPT:
        b(f"  s_cmp_lg_u32 s2, 100")
        b(f"  s_cbranch_scc1 dbg_skip")
        b(f"  s_cmp_lg_u32 s{S_W}, 0")
        b(f"  s_cbranch_scc1 dbg_skip")
        srd(b, 24, P_DBG, 256)
        b(f"  v_readlane_b32 s46, v231, 0")
        b(f"  s_nop 1")
        b(f"  v_subrev_u32 v3, s46, v231")
        b(f"  v_lshlrev_b32 v2, 2, v7")
        b(f"  v_subrev_u32 v2, 4, v2")
        b(f"  s_mov_b64 s[48:49], exec")
        b(f"  s_mov_b64 exec, 0x1fffe")
        b(f"  buffer_store_dword v3, v2, s[24:27], 0 offen")
        b(f"  s_mov_b64 exec, s[48:49]")
        b.label("dbg_skip")
        return
    srd(b, 24, P_WS, 1 << 20, WS_STAMP)
    b(f"  s_lshl_b32 s46, s2, 3")
    b(f"  s_add_u32 s46, s46, s{S_W}")
    b(f"  s_lshl_b32 s46, s46, 7            ; (wg*8+wave)*128")
    b(f"  v_lshlrev_b32 v2, 2, v7")
    b(f"  s_mov_b64 s[48:49], exec")
    b(f"  s_mov_b64 exec, 0xffffffff")
    b(f"  buffer_store_dword v231, v2, s[24:27], s46 offen")
    b(f"  s_mov_b64 exec, s[48:49]")

def arrive(b, bar, shard_sreg, first=False, label="", drained=False):
    if not drained: b(f"  s_waitcnt vmcnt(0)")
    stamp(b, f"x{bar+1} drained")
    b(f"  s_barrier")
    b(f"  s_cmp_lg_u32 s{S_W}, 0")
    b(f"  s_cbranch_scc1 {label}_arr_skip")
    if first:
        b(f"  s_mov_b32 s11, 100000")
        b.label(f"{label}_rdy")
        b(f"  v_cmp_ne_u32 vcc, 0, v27")
        b(f"  s_nop 1")
        b(f"  s_cmp_eq_u64 vcc, exec")
        b(f"  s_cbranch_scc1 {label}_rdy_ok")
        b(f"  buffer_load_dword v27, v26, s[{SRD_PF}:{SRD_PF+3}], 0 offen sc1")
        b(f"  s_waitcnt vmcnt(0)")
        b(f"  s_sub_u32 s11, s11, 1")
        b(f"  s_cmp_lg_u32 s11, 0")
        b(f"  s_cbranch_scc1 {label}_rdy")
        b.label(f"{label}_rdy_ok")
    b(f"  s_lshl_b32 s10, s{shard_sreg}, 8")
    b(f"  s_add_u32 s10, s10, {bar*4096}")
    b(f"  v_mov_b32 v228, s10")
    b(f"  v_mov_b32 v229, 1")
    b(f"  s_mov_b64 s[16:17], exec")
    b(f"  s_mov_b64 exec, 1")
    b(f"  buffer_atomic_add v229, v228, s[{SRD_CNT}:{SRD_CNT+3}], 0 offen sc1")
    b(f"  s_mov_b64 exec, s[16:17]")
    b.label(f"{label}_arr_skip")

def wait(b, bar, target, label, single_sreg=None):
    b(f"  s_cmp_lg_u32 s{S_W}, 0")
    b(f"  s_cbranch_scc1 {label}_w_skip")
    if single_sreg is None:
        b(f"  v_and_b32 v228, 15, v7")
        b(f"  v_lshlrev_b32 v228, 8, v228")
        b(f"  v_add_u32 v228, {bar*4096}, v228")
    else:
        b(f"  s_lshl_b32 s10, s{single_sreg}, 8")
        b(f"  s_add_u32 s10, s10, {bar*4096}")
        b(f"  v_mov_b32 v228, s10")
    b(f"  s_mov_b32 s11, 200000")
    if "pp" in OPT:
        b(f"  buffer_load_dword v229, v228, s[{SRD_CNT}:{SRD_CNT+3}], 0 offen sc1")
        b(f"  s_nop 15")
        b(f"  s_nop 15")
        b(f"  buffer_load_dword v226, v228, s[{SRD_CNT}:{SRD_CNT+3}], 0 offen sc1")
        b.label(f"{label}_poll")
        for r in (229, 226):
            b(f"  s_waitcnt vmcnt(1)")
            b(f"  v_cmp_le_u32 vcc, {target}, v{r}")
            b(f"  s_nop 1")
            b(f"  s_cmp_eq_u64 vcc, exec")
            b(f"  s_cbranch_scc1 {label}_w_skip")
            b(f"  buffer_load_dword v{r}, v228, s[{SRD_CNT}:{SRD_CNT+3}], 0 offen sc1")
        b(f"  s_sub_u32 s11, s11, 1")
        b(f"  s_cmp_lg_u32 s11, 0")
        b(f"  s_cbranch_scc1 {label}_poll")
    else:
        b.label(f"{label}_poll")
        b(f"  buffer_load_dword v229, v228, s[{SRD_CNT}:{SRD_CNT+3}], 0 offen sc1")
        b(f"  s_waitcnt vmcnt(0)")
        b(f"  v_cmp_le_u32 vcc, {target}, v229")
        b(f"  s_nop 1")
        b(f"  s_cmp_eq_u64 vcc, exec")
        b(f"  s_cbranch_scc1 {label}_w_skip")
        b(f"  s_sub_u32 s11, s11, 1")
        b(f"  s_cmp_lg_u32 s11, 0")
        b(f"  s_cbranch_scc1 {label}_poll")
    b.label(f"{label}_w_skip")
    b(f"  s_barrier")

def prefetch(b, ptr_pair, nbytes, start, length, who_scale, who_sreg, vaddr, vdst, stmp, paced=False):
    chunk = -(-length // who_scale)
    n_per_wave = -(-chunk // (512 * 128))
    stride = -(-chunk // (512 * n_per_wave))
    stride = (stride + 3) // 4 * 4
    per_instr = 64 * stride
    srd(b, SRD_PF, ptr_pair, nbytes)
    b(f"  s_mul_i32 s{stmp}, s{who_sreg}, {chunk}")
    b(f"  s_mul_i32 s{stmp+1}, s{S_W}, {n_per_wave*per_instr}")
    b(f"  s_add_u32 s{stmp}, s{stmp}, s{stmp+1}")
    if start: b(f"  s_add_u32 s{stmp}, s{stmp}, {start}")
    b(f"  v_mul_u32_u24 v{vaddr}, {stride}, v7")
    for i in range(n_per_wave):
        b(f"  buffer_load_dword v{vdst}, v{vaddr}, s[{SRD_PF}:{SRD_PF+3}], s{stmp} offen")
        if i + 1 < n_per_wave: b(f"  s_add_u32 s{stmp}, s{stmp}, {per_instr}")
        if paced: b(f"  s_waitcnt vmcnt(0)")
    return n_per_wave

V_DUMMY = 232
def pf_wide(b, ptr_pair, nbytes, s_base, n, wave_lo, wave_hi, label):
    b(f"  s_cmp_lt_u32 s{S_W}, {wave_lo}")
    b(f"  s_cbranch_scc1 {label}")
    if wave_hi < 8:
        b(f"  s_cmp_ge_u32 s{S_W}, {wave_hi}")
        b(f"  s_cbranch_scc1 {label}")
    srd(b, SRD_PF, ptr_pair, nbytes)
    b(f"  s_sub_u32 s{S_T+9}, s{S_W}, {wave_lo}")
    b(f"  s_mul_i32 s{S_T+9}, s{S_T+9}, {n*1024}")
    b(f"  s_add_u32 s{S_T+9}, s{S_T+9}, s{s_base}")
    b(f"  v_lshlrev_b32 v29, 4, v7")
    for i in range(n):
        if i and i % 4 == 0: b(f"  s_add_u32 s{S_T+9}, s{S_T+9}, 4096")
        b(f"  buffer_load_dwordx4 {vr(V_DUMMY,4)}, v29, s[{SRD_PF}:{SRD_PF+3}], s{S_T+9} offen offset:{(i%4)*1024}")
    b.label(label)

def w1_share_base(b, sreg, part):
    b(f"  s_mul_i32 s{sreg}, s2, {W1B // 256}")
    if part: b(f"  s_add_u32 s{sreg}, s{sreg}, {part}")

def w1_first_half_base(b, sreg, part):
    b(f"  s_and_b32 s{sreg}, s2, 7")
    b(f"  s_mul_i32 s{sreg}, s{sreg}, {256*7168}")
    b(f"  s_lshr_b32 s{S_T+9}, s2, 3")
    b(f"  s_mul_i32 s{S_T+9}, s{S_T+9}, {4*7168}")
    b(f"  s_add_u32 s{sreg}, s{sreg}, s{S_T+9}")
    if part: b(f"  s_add_u32 s{sreg}, s{sreg}, {part}")

def p1_tables(b):
    M1, M2, TW = L1_M1, L1_M2, L1_TW
    b(f"  v_and_b32 v10, 255, v0            ; e")
    b(f"  v_lshrrev_b32 v11, 8, v0          ; u")
    b(f"  v_bfe_u32 v12, v10, 2, 4          ; lane&15")
    b(f"  v_lshl_add_u32 v12, v11, 4, v12   ; k1")
    b(f"  v_lshrrev_b32 v13, 6, v10         ; g")
    b(f"  v_and_b32 v14, 3, v10")
    b(f"  v_lshlrev_b32 v13, 3, v13")
    b(f"  v_lshl_add_u32 v13, v14, 1, v13   ; a0 = 8g + 2i")
    b(f"  v_mul_u32_u24 v15, v13, v12       ; a0*k1")
    b(f"  v_add_u32 v16, v15, v12           ; (a0+1)*k1")
    sincos(b, 17, 18, 15, 5, 21)
    sincos(b, 19, 20, 16, 5, 21)
    b(f"  v_lshlrev_b32 v22, 2, v10")
    b(f"  v_lshl_add_u32 v22, v11, 11, v22  ; u*2048 + e*4")
    b(f"  v_cvt_pk_bf16_f32 v23, v17, v19")
    b(f"  v_cvt_pk_bf16_f32 v24, -v18, -v20")
    b(f"  ds_write_b32 v22, v23 offset:{M1}")
    b(f"  ds_write_b32 v22, v24 offset:{M1+1024}")
    sincos(b, 17, 18, 15, 10, 21)
    sincos(b, 19, 20, 16, 10, 21)
    b(f"  ds_write_b32 v22, v17 offset:{TW}")
    b(f"  ds_write_b32 v22, v18 offset:{TW+1024}")
    b(f"  ds_write_b32 v22, v19 offset:{TW+4096}")
    b(f"  ds_write_b32 v22, v20 offset:{TW+4096+1024}")
    b(f"  v_bfe_u32 v12, v10, 2, 4          ; k2")
    b(f"  v_mul_u32_u24 v15, v13, v12")
    b(f"  v_add_u32 v16, v15, v12")
    sincos(b, 17, 18, 15, 5, 21)
    sincos(b, 19, 20, 16, 5, 21)
    b(f"  v_lshlrev_b32 v22, 2, v10")
    b(f"  v_cvt_pk_bf16_f32 v23, v17, v19")
    b(f"  v_cvt_pk_bf16_f32 v24, v18, v20")
    b(f"  v_cvt_pk_bf16_f32 v25, -v18, -v20")
    b(f"  ds_write_b32 v22, v23 offset:{M2}")
    b(f"  ds_write_b32 v22, v24 offset:{M2+1024}")
    b(f"  ds_write_b32 v22, v25 offset:{M2+2048}")

def ln_fast(b, X, T, S0, alt):
    b(f"  v_readlane_b32 s{S0}, v{X}, 0              ; pivot")
    b(f"  s_nop 1")
    for i in range(0, 16, 2):
        b(f"  v_pk_add_f32 {vr(X+i,2)}, {vr(X+i,2)}, s[{S0}:{S0+1}] op_sel_hi:[1,0] neg_lo:[0,1] neg_hi:[0,1]")
    b(f"  v_pk_add_f32 {vr(T,2)}, {vr(X,2)}, {vr(X+2,2)}")
    b(f"  v_pk_add_f32 {vr(T+2,2)}, {vr(X+8,2)}, {vr(X+10,2)}")
    b(f"  v_pk_mul_f32 {vr(T+4,2)}, {vr(X,2)}, {vr(X,2)}")
    b(f"  v_pk_add_f32 {vr(T,2)}, {vr(T,2)}, {vr(X+4,2)}")
    b(f"  v_pk_add_f32 {vr(T+2,2)}, {vr(T+2,2)}, {vr(X+12,2)}")
    b(f"  v_pk_fma_f32 {vr(T+4,2)}, {vr(X+2,2)}, {vr(X+2,2)}, {vr(T+4,2)}")
    b(f"  v_pk_add_f32 {vr(T,2)}, {vr(T,2)}, {vr(X+6,2)}")
    b(f"  v_pk_add_f32 {vr(T+2,2)}, {vr(T+2,2)}, {vr(X+14,2)}")
    for i in range(4, 16, 2):
        b(f"  v_pk_fma_f32 {vr(T+4,2)}, {vr(X+i,2)}, {vr(X+i,2)}, {vr(T+4,2)}")
    b(f"  v_add_f32 v{T}, v{T}, v{T+1}")
    b(f"  v_add_f32 v{T+2}, v{T+2}, v{T+3}")
    if not alt: b(f"  v_add_f32 v{T}, v{T}, v{T+2}")
    b(f"  v_add_f32 v{T+4}, v{T+4}, v{T+5}           ; squares")
    if alt:
        wave_reduce(b, [T, T+2, T+4])
        b(f"  v_sub_f32 v{T+1}, v{T}, v{T+2}             ; E - O")
        b(f"  v_add_f32 v{T}, v{T}, v{T+2}")
        b(f"  s_nop 0")
        b(f"  v_readlane_b32 s{S0+2}, v{T}, 63")
        b(f"  v_readlane_b32 s{S0+3}, v{T+4}, 63")
        b(f"  v_readlane_b32 s{S0+4}, v{T+1}, 63")
    else:
        wave_reduce(b, [T, T+4])
        b(f"  s_nop 0")
        b(f"  v_readlane_b32 s{S0+2}, v{T}, 63")
        b(f"  v_readlane_b32 s{S0+3}, v{T+4}, 63")
    b(f"  s_nop 0")
    b(f"  v_mov_b32 v{T}, {hex(f2u(1.0/1024))}")
    b(f"  v_mul_f32 v{T+1}, s{S0+2}, v{T}")
    b(f"  v_mul_f32 v{T+2}, s{S0+3}, v{T}")
    b(f"  v_fma_f32 v{T+2}, -v{T+1}, v{T+1}, v{T+2}  ; variance")
    b(f"  v_max_f32 v{T+2}, 0, v{T+2}")
    b(f"  v_add_f32 v{T+2}, {hex(f2u(1e-5))}, v{T+2}")
    b(f"  v_rsq_f32 v{T+4}, v{T+2}")
    b(f"  s_nop 0")
    b(f"  v_mul_f32 v{T+8}, -v{T+1}, v{T+4}          ; -mean*rstd")
    if alt: b(f"  v_mul_f32 v{T+6}, s{S0+4}, v{T+4}")
    for i in range(0, 16, 2):
        b(f"  v_pk_fma_f32 {vr(X+i,2)}, {vr(X+i,2)}, {vr(T+4,2)}, {vr(T+8,2)} op_sel_hi:[1,0,0]")

def x1_store_addr(b):
    b(f"  v_lshlrev_b32 v5, 15, v9")
    b(f"  v_lshl_add_u32 v5, v8, 2, v5")
    b(f"  s_and_b32 s{S_T+6}, s2, 15")
    b(f"  s_lshl_b32 s{S_T+6}, s{S_T+6}, 4")
    b(f"  s_lshr_b32 s{S_T+7}, s2, 4")
    b(f"  s_add_u32 s{S_T+6}, s{S_T+6}, s{S_T+7}")
    b(f"  s_lshl_b32 s{S_T+6}, s{S_T+6}, 6       ; pos*64")
    b(f"  s_lshl_b32 s{S_T+7}, s{S_W}, 19        ; 4w*131072")
    b(f"  s_add_u32 s44, s{S_T+6}, s{S_T+7}")

def w_early(b):
    srd(b, SRD_C, P_WR, WB)
    srd(b, SRD_D, P_WI, WB)
    b(f"  s_and_b32 s{S_T+2}, s2, 7              ; j1")
    b(f"  v_and_b32 v215, 1, v0                ; half")
    b(f"  v_bfe_u32 v11, v0, 5, 4              ; c")
    b(f"  v_bfe_u32 v12, v0, 1, 4              ; e")
    b(f"  v_lshl_add_u32 v13, v12, 4, v11      ; j2")
    b(f"  v_lshlrev_b32 v13, 3, v13")
    b(f"  v_add_u32 v13, s{S_T+2}, v13         ; j")
    b(f"  v_mul_u32_u24 v214, 1026, v13")
    b(f"  v_lshl_add_u32 v14, v215, 4, v214")
    b(f"  s_lshr_b32 s{S_T+3}, s2, 3           ; kb")
    b(f"  s_lshl_b32 s{S_T+3}, s{S_T+3}, 5")
    b(f"  buffer_load_dwordx4 {vr(WE,4)}, v14, s[{SRD_C}:{SRD_C+3}], s{S_T+3} offen{WF()}")
    b(f"  buffer_load_dwordx4 {vr(WE+4,4)}, v14, s[{SRD_D}:{SRD_D+3}], s{S_T+3} offen{WF()}")

def p1(b):
    srd(b, SRD_A, P_X, 4 << 20)
    srd(b, SRD_B, P_WS, 4 << 20, WS_X1)
    b(f"  s_lshl_b32 s{S_T}, s{S_W}, 8")
    b(f"  s_add_u32 s{S_T}, s{S_T}, s2          ; s")
    b(f"  s_lshl_b32 s{S_T+1}, s{S_T}, 11")
    b(f"  v_lshlrev_b32 v1, 9, v9")
    b(f"  v_lshl_add_u32 v1, v8, 2, v1")
    XD = 32
    b(f"  s_cmp_ge_u32 s2, 16")
    b(f"  s_cbranch_scc1 p1_noreset")
    b(f"  s_cmp_lg_u32 s{S_W}, 0")
    b(f"  s_cbranch_scc1 p1_noreset")
    b(f"  s_lshl_b32 s{S_T+2}, s2, 8")
    b(f"  v_lshlrev_b32 v2, 12, v7")
    b(f"  v_add_u32 v2, s{S_T+2}, v2")
    b(f"  v_mov_b32 v3, 0")
    b(f"  s_mov_b64 s[48:49], exec")
    b(f"  s_mov_b64 exec, 15")
    b(f"  buffer_store_dword v3, v2, s[{SRD_CNT}:{SRD_CNT+3}], 0 offen sc1")
    b(f"  s_mov_b64 exec, s[48:49]")
    b.label("p1_noreset")
    for i in range(8):
        b(f"  buffer_load_dword v{XD+i}, v1, s[{SRD_A}:{SRD_A+3}], s{S_T+1} offen offset:{64*i}{XF()}")
    NCLR = 0
    NWE = 0
    x1_store_addr(b)
    if SENT():
        b(f"  v_mov_b32 v60, -1")
        b(f"  v_mov_b32 v61, -1")
        b(f"  v_mov_b32 v62, -1")
        b(f"  v_mov_b32 v63, -1")
        b(f"  v_bfe_u32 v2, v7, 2, 3              ; j1")
        b(f"  v_lshrrev_b32 v3, 5, v7             ; i (0,1)")
        b(f"  v_lshlrev_b32 v2, 14, v2")
        b(f"  v_lshl_add_u32 v2, v3, 17, v2")
        b(f"  v_and_b32 v3, 3, v7")
        b(f"  v_lshl_add_u32 v2, v3, 4, v2")
        b(f"  buffer_store_dwordx4 v[60:63], v2, s[{SRD_B}:{SRD_B+3}], s44 offen{SF}")
        b(f"  s_add_u32 s{S_T+7}, s44, {2*131072}")
        b(f"  buffer_store_dwordx4 v[60:63], v2, s[{SRD_B}:{SRD_B+3}], s{S_T+7} offen{SF}")
        NCLR = 2
    if "tlbw" in OPT:
        b(f"  s_cmp_lg_u32 s{S_W}, 7")
        b(f"  s_cbranch_scc1 p1_notlb")
        sh = 20 if "tlb1m" in OPT else (19 if "tlb512k" in OPT else 21)
        b(f"  v_lshlrev_b32 v2, {sh}, v7")
        lst = [(P_WS, 36 << 20), (P_W1, W1B), (P_W2, W1B), (P_WR, WB), (P_WI, WB), (P_OUT, 4 << 20), (P_B1, 7168), (P_B2, 4096)]
        for ptr, size in lst:
            srd(b, SRD_PF, ptr, size)
            b(f"  s_mov_b64 s[16:17], exec")
            n = min(64, -(-size // (1 << sh)))
            b(f"  s_mov_b64 exec, {hex((1 << n) - 1)}")
            b(f"  buffer_load_dword v230, v2, s[{SRD_PF}:{SRD_PF+3}], 0 offen sc1")
            b(f"  s_mov_b64 exec, s[16:17]")
        if "codepf" in OPT:
            b(f"  s_cmp_ge_u32 s2, 16")
            b(f"  s_cbranch_scc1 p1_nocode")
            b(f"  s_getpc_b64 s[{S_T+8}:{S_T+9}]")
            b.label("p1_pc")
            b(f"  v_lshlrev_b32 v29, 7, v7")
            b(f"  s_mov_b32 s{S_T+7}, k_exit - p1_pc")
            for i in range(5):
                b(f"  v_min_u32 v28, s{S_T+7}, v29")
                b(f"  global_load_dword v230, v28, s[{S_T+8}:{S_T+9}]")
                b(f"  v_add_u32 v29, 8192, v29")
            b.label("p1_nocode")
        if "pf7" in OPT:
            n7 = 0
            if "wpf" in OPT:
                b(f"  s_mul_i32 s{S_T+8}, s2, 8208")
                b(f"  v_lshlrev_b32 v29, 4, v7")
                for ptr in (P_WR, P_WI):
                    srd(b, SRD_PF, ptr, WB)
                    b(f"  s_mov_b32 s{S_T+9}, s{S_T+8}")
                    for i in range(9):
                        if i and i % 4 == 0: b(f"  s_add_u32 s{S_T+9}, s{S_T+9}, 4096")
                        b(f"  buffer_load_dwordx4 {vr(V_DUMMY,4)}, v29, s[{SRD_PF}:{SRD_PF+3}], s{S_T+9} offen offset:{(i%4)*1024}")
                        n7 += 1
            if PFN[0]:
                w1_share_base(b, S_T + 9, 0)
                b(f"  v_lshlrev_b32 v29, 4, v7")
                srd(b, SRD_PF, P_W1, W1B)
                for i in range(4 * PFN[0]):
                    if i and i % 4 == 0: b(f"  s_add_u32 s{S_T+9}, s{S_T+9}, 4096")
                    b(f"  buffer_load_dwordx4 {vr(V_DUMMY,4)}, v29, s[{SRD_PF}:{SRD_PF+3}], s{S_T+9} offen offset:{(i%4)*1024}")
                    n7 += 1
            N7[0] = n7
        b.label("p1_notlb")
    if "wpack" in OPT:
        srd(b, SRD_C, P_WR, WB)
        srd(b, SRD_D, P_WI, WB)
        b(f"  s_lshl_b32 s{S_T+2}, s2, 3")
        b(f"  s_add_u32 s{S_T+2}, s{S_T+2}, s{S_W}")
        b(f"  s_mul_i32 s45, s{S_T+2}, 1026")
        b(f"  v_lshlrev_b32 v14, 4, v7")
        b(f"  buffer_load_dwordx4 {vr(WE,4)}, v14, s[{SRD_C}:{SRD_C+3}], s45 offen")
        b(f"  buffer_load_dwordx4 {vr(WE+4,4)}, v14, s[{SRD_D}:{SRD_D+3}], s45 offen")
        b(f"  v_mov_b32 v15, 1024")
        b(f"  buffer_load_ushort v212, v15, s[{SRD_C}:{SRD_C+3}], s45 offen")
        b(f"  buffer_load_ushort v213, v15, s[{SRD_D}:{SRD_D+3}], s45 offen")
        NCLR += 4
    if "wearly" in OPT:
        w_early(b); NCLR += 2
    npf = 0
    p1_tables(b)
    GM = 30
    gmat(b, GM, 2, False, 10)
    srd(b, SRD_PF, P_DBG, 256)
    b(f"  s_and_b32 s{S_T+8}, s2, 15")
    b(f"  s_lshl_b32 s{S_T+9}, s{S_T+8}, 2")
    b(f"  s_add_u32 s{S_T+9}, s{S_T+9}, 64")
    b(f"  v_mov_b32 v25, s{S_T+9}")
    b(f"  v_lshlrev_b32 v26, 2, v8")
    b(f"  v_add_u32 v26, 64, v26")
    b(f"  s_cmp_ge_u32 s2, 16")
    b(f"  s_cbranch_scc1 p1_noflag")
    b(f"  s_cmp_lg_u32 s{S_W}, 0")
    b(f"  s_cbranch_scc1 p1_noflag")
    b(f"  s_waitcnt vmcnt({8} + 0)".replace(" + 0", "") if NCLR == 0 else f"  s_waitcnt vmcnt({8 + NCLR})")
    b(f"  v_mov_b32 v3, 1")
    b(f"  s_mov_b64 s[48:49], exec")
    b(f"  s_mov_b64 exec, 1")
    b(f"  buffer_store_dword v3, v25, s[{SRD_PF}:{SRD_PF+3}], 0 offen sc1")
    b(f"  s_mov_b64 exec, s[48:49]")
    b.label("p1_noflag")
    b(f"  s_waitcnt lgkmcnt(0)")
    stamp(b, "p1 tables done")
    b(f"  s_barrier")
    NX2 = 0
    if "sent2" in OPT:
        srd(b, SRD_C, P_WS, 4 << 20, WS_X2)
        for i in range(4): b(f"  v_mov_b32 v{200+i}, -1")
        b(f"  v_lshlrev_b32 v3, 4, v0")
        b(f"  s_lshl_b32 s{S_T+7}, s2, 14")
        b(f"  buffer_store_dwordx4 v[200:203], v3, s[{SRD_C}:{SRD_C+3}], s{S_T+7} offen{SF}")
        b(f"  s_add_u32 s{S_T+7}, s{S_T+7}, 8192")
        b(f"  buffer_store_dwordx4 v[200:203], v3, s[{SRD_C}:{SRD_C+3}], s{S_T+7} offen{SF}")
        NX2 = 2
    npf = 0
    if "nopf" not in OPT:
        b(f"  s_mul_i32 s{S_T+8}, s2, 8208")
        if "ntx" not in OPT and "wpf" in OPT and "pf7" not in OPT:
            pf_wide(b, P_WR, WB, S_T + 8, 3, 0, 3, "pf_p1a")
            pf_wide(b, P_WI, WB, S_T + 8, 3, 0, 3, "pf_p1b")
        if "ntw1" not in OPT and PFN[0] and "pf7" not in OPT:
            w1_share_base(b, S_T + 8, 0)
            pf_wide(b, P_W1, W1B, S_T + 8, PFN[0], 4, 8, "pf_p1c")
    M1, M2, TW = 96, 112, 128
    b(f"  v_lshlrev_b32 v2, 4, v7")
    for i in range(4): b(f"  ds_read_b128 {vr(M1+4*i,4)}, v2 offset:{L1_M1+1024*i}")
    for i in range(3): b(f"  ds_read_b128 {vr(M2+4*i,4)}, v2 offset:{L1_M2+1024*i}")
    for i in range(8): b(f"  ds_read_b128 {vr(TW+4*i,4)}, v2 offset:{L1_TW+1024*i}")
    X = 40
    NCLR += NX2
    nW = 0 if ("nopf" in OPT or "ntx" in OPT or "wpf" not in OPT or "pf7" in OPT) else 6
    n1 = 0 if ("nopf" in OPT or "ntw1" in OPT or "pf7" in OPT) else PFN[0]
    b(f"  s_cmp_eq_u32 s{S_W}, 3")
    b(f"  s_cbranch_scc1 p1_xw0")
    b(f"  s_cmp_ge_u32 s{S_W}, 4")
    b(f"  s_cbranch_scc1 p1_xw4")
    b(f"  s_waitcnt vmcnt({NCLR + nW})")
    b(f"  s_branch p1_xwd")
    b.label("p1_xw4")
    if "tlbw" in OPT:
        b(f"  s_cmp_lg_u32 s{S_W}, 7")
        b(f"  s_cbranch_scc1 p1_xw5")
        b(f"  s_waitcnt vmcnt({min(63, NCLR + n1 + 8 + N7[0])})")
        b(f"  s_branch p1_xwd")
        b.label("p1_xw5")
    b(f"  s_waitcnt vmcnt({NCLR + n1})")
    b(f"  s_branch p1_xwd")
    b.label("p1_xw0")
    b(f"  s_waitcnt vmcnt({NCLR})")
    b.label("p1_xwd")
    stamp(b, "p1 x landed")
    if "wmid" in OPT:
        w_early(b)
        b(f"  s_cmp_ge_u32 s2, 8")
        b(f"  s_cbranch_scc1 p1_nonyq")
        b(f"  buffer_load_ushort v212, v214, s[{SRD_C}:{SRD_C+3}], 0 offen offset:1024")
        b(f"  buffer_load_ushort v213, v214, s[{SRD_D}:{SRD_D+3}], 0 offen offset:1024")
        b.label("p1_nonyq")
    if "wearly" in OPT:
        b(f"  s_cmp_ge_u32 s2, 8")
        b(f"  s_cbranch_scc1 p1_nonyq")
        b(f"  buffer_load_ushort v212, v214, s[{SRD_C}:{SRD_C+3}], 0 offen offset:1024")
        b(f"  buffer_load_ushort v213, v214, s[{SRD_D}:{SRD_D+3}], 0 offen offset:1024")
        b.label("p1_nonyq")
    srd(b, SRD_PF, P_DBG, 256)
    if "stash" in OPT:
        b(f"  s_lshl_b32 s{S_T+9}, s{S_W}, 11")
        b(f"  s_add_u32 s{S_T+9}, s{S_T+9}, {L_XS}")
        b(f"  v_add_u32 v4, s{S_T+9}, v1           ; t*2048 + g*512 + c*4")
        for i in range(8): b(f"  ds_write_b32 v4, v{XD+i} offset:{64*i}")
    for i in range(8):
        b(f"  v_lshlrev_b32 v{X+i}, 16, v{XD+i}")
        b(f"  v_and_b32 v{X+8+i}, 0xffff0000, v{XD+i}")
    T = 56
    ln_fast(b, X, T, S_T + 2, True)
    stamp(b, "p1 ln done")
    if SENT():
        b(f"  buffer_load_dword v27, v26, s[{SRD_PF}:{SRD_PF+3}], 0 offen sc1")
        b(f"  s_and_b32 s{S_T+8}, s2, 15")
        arrive(b, 0, S_T + 8, first=True, label="x1")
        stamp(b, "p1 arrived")
        srd(b, SRD_C, P_WS, 4 << 20, WS_X2)
        for i in range(4): b(f"  v_mov_b32 v{200+i}, -1")
        b(f"  v_lshlrev_b32 v2, 4, v0")
        b(f"  s_lshl_b32 s{S_T+7}, s2, 14")
        b(f"  buffer_store_dwordx4 v[200:203], v2, s[{SRD_C}:{SRD_C+3}], s{S_T+7} offen{SF}")
        b(f"  s_add_u32 s{S_T+7}, s{S_T+7}, 8192")
        b(f"  buffer_store_dwordx4 v[200:203], v2, s[{SRD_C}:{SRD_C+3}], s{S_T+7} offen{SF}")
    A = 64
    for be in range(2):
        for i in range(4):
            b(f"  v_cvt_pk_bf16_f32 v{A+4*be+i}, v{X+8*be+2*i}, v{X+8*be+2*i+1}")
    b(f"  s_waitcnt lgkmcnt(0)")
    b(f"  v_readlane_b32 s{S_T+5}, v{T+6}, 0")
    Y = 160
    for be in range(2):
        for u in range(2):
            for c in range(2):
                d = Y + ((be * 2 + u) * 2 + c) * 4
                b(f"  {MF32} {vr(d,4)}, {vr(A+4*be,4)}, {vr(M1+4*(2*u+c),4)}, 0")
    b(f"  s_nop 4")
    Bp = 72; W = 32; O = 40
    for u in range(2):
        for be in range(2):
            y = Y + ((be * 2 + u) * 2) * 4
            tw = TW + (be * 4 + u * 2) * 4
            cmul_pk(b, O + 8 * be, O + 8 * be + 4, y, y + 4, tw, tw + 4, W, False)
        for r in range(4):
            b(f"  v_cvt_pk_bf16_f32 v{Bp+8*u+r}, v{O+r}, v{O+8+r}")
            b(f"  v_cvt_pk_bf16_f32 v{Bp+8*u+4+r}, v{O+4+r}, v{O+12+r}")
    XO = 160
    b(f"  s_nop 1")
    for u in range(2):
        re, im = XO + 8 * u, XO + 8 * u + 4
        b(f"  {MF32} {vr(re,4)}, {vr(M2,4)}, {vr(Bp+8*u,4)}, 0")
        b(f"  {MF32} {vr(im,4)}, {vr(M2,4)}, {vr(Bp+8*u+4,4)}, 0")
        b(f"  {MF32} {vr(re,4)}, {vr(M2+4,4)}, {vr(Bp+8*u+4,4)}, {vr(re,4)}")
        b(f"  {MF32} {vr(im,4)}, {vr(M2+8,4)}, {vr(Bp+8*u,4)}, {vr(im,4)}")
    b(f"  s_and_b32 s{S_T+6}, s{S_W}, 1")
    b(f"  s_lshl_b32 s{S_T+6}, s{S_T+6}, 8")
    b(f"  s_lshr_b32 s{S_T+7}, s{S_W}, 1")
    b(f"  s_lshl_b32 s{S_T+7}, s{S_T+7}, 6")
    b(f"  s_add_u32 s{S_T+6}, s{S_T+6}, s{S_T+7}")
    b(f"  v_lshlrev_b32 v3, 12, v9")
    b(f"  v_lshl_add_u32 v3, v8, 2, v3")
    b(f"  v_add_u32 v3, s{S_T+6}, v3")
    b(f"  s_nop 2")
    b(f"  v_writelane_b32 v{XO}, s{S_T+5}, 0")
    b(f"  v_writelane_b32 v{XO+4}, 0, 0")
    PK = 32
    for u in range(2):
        for r in range(4):
            b(f"  v_cvt_pk_bf16_f32 v{PK+4*u+r}, v{XO+8*u+r}, v{XO+8*u+4+r}")
    for u in range(2):
        for r in range(4):
            b(f"  ds_write_b32 v3, v{PK+4*u+r} offset:{L1_EX + u*512 + r*1024}")
    if "wpack" in OPT:
        assert not SENT()
        srd(b, SRD_C, P_WS, 4 << 20, WS_WP)
        b(f"  v_lshrrev_b32 v14, 1, v7              ; kb")
        b(f"  v_lshlrev_b32 v14, 17, v14")
        b(f"  v_and_b32 v15, 1, v7")
        b(f"  v_lshl_add_u32 v14, v15, 4, v14")
        b(f"  s_and_b32 s{S_T+6}, s2, 15")
        b(f"  s_lshl_b32 s{S_T+6}, s{S_T+6}, 9       ; (p&15)<<5 * 16")
        b(f"  s_lshr_b32 s{S_T+7}, s2, 4")
        b(f"  s_lshl_b32 s{S_T+7}, s{S_T+7}, 5       ; (p>>4)<<1 * 16")
        b(f"  s_add_u32 s{S_T+6}, s{S_T+6}, s{S_T+7}")
        b(f"  s_lshl_b32 s{S_T+7}, s{S_W}, 14")
        b(f"  s_add_u32 s{S_T+6}, s{S_T+6}, s{S_T+7}")
        b(f"  s_add_u32 s{S_T+7}, s{S_T+6}, 8192")
        npf0 = 0 if ("nopf" in OPT or "pf7" in OPT) else PFN[0]
        b(f"  s_cmp_ge_u32 s{S_W}, 4")
        b(f"  s_cbranch_scc1 p1_wp4")
        b(f"  s_waitcnt vmcnt(0)")
        b(f"  s_branch p1_wpd")
        b.label("p1_wp4")
        b(f"  s_waitcnt vmcnt({npf0})")
        b.label("p1_wpd")
        b(f"  v_cmp_eq_u32 vcc, 0, v7")
        b(f"  v_and_b32 v15, 0xffff0000, v{WE}")
        b(f"  v_or_b32 v15, v15, v212")
        b(f"  v_cndmask_b32 v{WE}, v{WE}, v15, vcc")
        b(f"  v_and_b32 v15, 0xffff0000, v{WE+4}")
        b(f"  v_or_b32 v15, v15, v213")
        b(f"  v_cndmask_b32 v{WE+4}, v{WE+4}, v15, vcc")
        b(f"  buffer_store_dwordx4 {vr(WE,4)}, v14, s[{SRD_C}:{SRD_C+3}], s{S_T+6} offen{SF}")
        b(f"  buffer_store_dwordx4 {vr(WE+4,4)}, v14, s[{SRD_C}:{SRD_C+3}], s{S_T+7} offen{SF}")
    if SENT(): b(f"  s_waitcnt lgkmcnt(0) vmcnt(0)")
    else:
        b(f"  buffer_load_dword v27, v26, s[{SRD_PF}:{SRD_PF+3}], 0 offen sc1")
        b(f"  s_waitcnt lgkmcnt(0)")
    stamp(b, "p1 fft done")
    b(f"  s_barrier")
    b(f"  v_lshlrev_b32 v4, 6, v9")
    b(f"  v_lshl_add_u32 v4, v8, 2, v4")
    b(f"  s_lshl_b32 s{S_T+6}, s{S_W}, 11")
    b(f"  s_add_u32 s{S_T+6}, s{S_T+6}, {L1_EX}")
    b(f"  v_add_u32 v4, s{S_T+6}, v4")
    Bd = 40
    for i in range(4):
        b(f"  ds_read2st64_b32 {vr(Bd+2*i,2)}, v4 offset0:{2*i} offset1:{2*i+1}")
    D = 48
    for i in range(4):
        b(f"  s_waitcnt lgkmcnt({3-i})")
        b(f"  {MF16} {vr(D+4*i,4)}, {vr(GM,2)}, {vr(Bd+2*i,2)}, 0")
    b(f"  s_nop 4")
    for i in range(4):
        b(f"  v_cvt_pk_bf16_f32 v{64+2*i}, v{D+4*i}, v{D+4*i+1}")
        b(f"  v_cvt_pk_bf16_f32 v{65+2*i}, v{D+4*i+2}, v{D+4*i+3}")
        if SENT():
            b(f"  v_min_u32 v{64+2*i}, 0xfffffffe, v{64+2*i}")
            b(f"  v_min_u32 v{65+2*i}, 0xfffffffe, v{65+2*i}")
        for e in range(2):
            b(f"  s_add_u32 s{S_T+7}, s44, {i*131072 + e*16384}")
            b(f"  buffer_store_dword v{64+2*i+e}, v5, s[{SRD_B}:{SRD_B+3}], s{S_T+7} offen{SF}")
    stamp(b, "p1 stores issued")
    if not SENT():
        b(f"  s_and_b32 s{S_T+8}, s2, 15")
        arrive(b, 0, S_T + 8, first=True, label="x1")
        stamp(b, "p1 arrived")

XL2, WL2 = 32, 40
WE = 204
TC2, TS2 = 64, 68
def p2_setup(b):
    srd(b, SRD_A, P_WS, 4 << 20, WS_X1)
    srd(b, SRD_B, P_WS, 4 << 20, WS_X2)
    srd(b, SRD_C, P_WR, WB)
    srd(b, SRD_D, P_WI, WB)
    b(f"  s_and_b32 s{S_T}, s2, 7              ; j1")
    b(f"  s_lshr_b32 s{S_T+1}, s2, 3           ; kb")
    b(f"  v_and_b32 v10, 1, v0                 ; half")
    b(f"  v_bfe_u32 v11, v0, 5, 4              ; c")
    b(f"  v_bfe_u32 v12, v0, 1, 4              ; e")
    b(f"  v_lshl_add_u32 v13, v12, 4, v11      ; j2")
    b(f"  v_lshlrev_b32 v13, 3, v13")
    b(f"  v_add_u32 v13, s{S_T}, v13           ; j")
    b(f"  v_mul_u32_u24 v13, 1026, v13")
    b(f"  v_lshlrev_b32 v14, 4, v10")
    b(f"  v_add_u32 v14, v13, v14")
    b(f"  s_lshl_b32 s{S_T+3}, s{S_T+1}, 5")
    if "wearly" in OPT or "wmid" in OPT:
        b(f"  s_cmp_lg_u32 s{S_T+1}, 0")
        b(f"  s_cbranch_scc1 p2_nonyq")
        b(f"  s_waitcnt vmcnt(0)")
        b(f"  v_cmp_eq_u32 vcc, 0, v215")
        b(f"  v_and_b32 v50, 0xffff0000, v{WE}")
        b(f"  v_or_b32 v50, v50, v212")
        b(f"  v_cndmask_b32 v{WE}, v{WE}, v50, vcc")
        b(f"  v_and_b32 v50, 0xffff0000, v{WE+4}")
        b(f"  v_or_b32 v50, v50, v213")
        b(f"  v_cndmask_b32 v{WE+4}, v{WE+4}, v50, vcc")
        b.label("p2_nonyq")
    elif "wpack" in OPT:
        srd(b, SRD_C, P_WS, 4 << 20, WS_WP)
    elif "wlate" in OPT:
        b(f"  v_mov_b32 v24, v14")
        b(f"  v_mov_b32 v25, v13")
        b(f"  v_mov_b32 v26, v10                   ; half")
        b(f"  s_mov_b32 s45, s{S_T+3}              ; kb*32")
    else:
        WL = WL2
        b(f"  v_mov_b32 v24, v14")
        b(f"  v_mov_b32 v25, v13")
        b(f"  v_mov_b32 v26, v10                   ; half")
        b(f"  s_mov_b32 s45, s{S_T+3}              ; kb*32")
        WL = WL2
        b(f"  buffer_load_dwordx4 {vr(WL,4)}, v24, s[{SRD_C}:{SRD_C+3}], s45 offen{WF()}")
        b(f"  buffer_load_dwordx4 {vr(WL+4,4)}, v24, s[{SRD_D}:{SRD_D+3}], s45 offen{WF()}")
        b(f"  s_cmp_lg_u32 s{S_T+1}, 0")
        b(f"  s_cbranch_scc1 p2_nonyq")
        b(f"  buffer_load_ushort v48, v25, s[{SRD_C}:{SRD_C+3}], 0 offen offset:1024")
        b(f"  buffer_load_ushort v49, v25, s[{SRD_D}:{SRD_D+3}], 0 offen offset:1024")
        b(f"  s_waitcnt vmcnt(0)")
        b(f"  v_cmp_eq_u32 vcc, 0, v26")
        b(f"  v_and_b32 v50, 0xffff0000, v{WL}")
        b(f"  v_or_b32 v50, v50, v48")
        b(f"  v_cndmask_b32 v{WL}, v{WL}, v50, vcc")
        b(f"  v_and_b32 v50, 0xffff0000, v{WL+4}")
        b(f"  v_or_b32 v50, v50, v49")
        b(f"  v_cndmask_b32 v{WL+4}, v{WL+4}, v50, vcc")
        b.label("p2_nonyq")
        if "wdiag" in OPT:
            b(f"  s_waitcnt vmcnt(0)")
            stamp(b, "p2 w landed")
    npf = 0
    b(f"  v_and_b32 v15, 255, v0")
    b(f"  v_bfe_u32 v16, v15, 2, 4             ; x")
    b(f"  v_lshrrev_b32 v17, 6, v15            ; g")
    b(f"  v_and_b32 v18, 3, v15")
    b(f"  v_lshl_add_u32 v17, v17, 2, v18      ; 4g+i")
    b(f"  v_mul_u32_u24 v17, v17, v16")
    sincos(b, 18, 19, 17, 4, 20)
    b(f"  v_cmp_gt_u32 vcc, 256, v0            ; matrix 0 ?")
    b(f"  v_xor_b32 v20, 0x80000000, v19       ; -sin")
    b(f"  s_nop 0")
    b(f"  v_cndmask_b32 v21, v20, v18, vcc")
    b(f"  v_cndmask_b32 v22, v18, v19, vcc")
    b(f"  v_cvt_pk_bf16_f32 v21, v21, v22")
    b(f"  v_lshlrev_b32 v22, 2, v0")
    b(f"  ds_write_b32 v22, v21 offset:{L2_F}")
    b(f"  v_lshlrev_b32 v16, 2, v9")
    for r in range(4):
        b(f"  v_add_u32 v17, {r}, v16")
        b(f"  v_mul_u32_u24 v17, v17, v8")
        sincos(b, TC2 + r, TS2 + r, 17, 8, 20)
    b(f"  v_and_b32 v16, 3, v0                 ; i")
    b(f"  v_mul_u32_u24 v16, {4*1040}, v16")
    b(f"  v_lshrrev_b32 v17, 6, v0             ; b (0..7)")
    b(f"  v_lshl_add_u32 v16, v17, 6, v16")
    b(f"  v_bfe_u32 v17, v0, 2, 2              ; a&3")
    b(f"  v_lshl_add_u32 v16, v17, 2, v16")
    b(f"  v_bfe_u32 v17, v0, 4, 2              ; a>>2")
    b(f"  v_lshl_add_u32 v21, v17, 4, v16      ; first")
    b(f"  v_xor_b32 v17, 2, v17")
    b(f"  v_lshl_add_u32 v22, v17, 4, v16")
    b(f"  v_add_u32 v22, 512, v22              ; second (b+8)")
    b(f"  v_mul_u32_u24 v16, {4*1040}, v10")
    b(f"  v_lshl_add_u32 v16, v11, 6, v16")
    b(f"  v_and_b32 v17, 3, v12")
    b(f"  v_lshl_add_u32 v16, v17, 2, v16")
    b(f"  v_lshrrev_b32 v17, 2, v12")
    b(f"  v_lshrrev_b32 v18, 3, v11            ; c>>3")
    b(f"  v_lshlrev_b32 v18, 1, v18")
    b(f"  v_xor_b32 v17, v17, v18")
    b(f"  v_lshl_add_u32 v23, v17, 4, v16")
    b(f"  v_lshrrev_b32 v16, 3, v8")
    b(f"  v_lshlrev_b32 v16, 1, v16")
    b(f"  v_xor_b32 v16, v16, v9")
    b(f"  v_lshlrev_b32 v16, 4, v16")
    b(f"  v_lshl_add_u32 v16, v8, 6, v16")
    b(f"  s_mul_i32 s{S_T+4}, s{S_W}, {2*1040}")
    b(f"  s_mul_i32 s{S_T+5}, s{S_W}, 1040")
    b(f"  v_add_u32 v5, s{S_T+4}, v16")
    b(f"  v_add_u32 v6, s{S_T+5}, v16")
    b(f"  v_lshlrev_b32 v1, 4, v0")
    b(f"  s_lshl_b32 s{S_T+2}, s2, 14")
    b(f"  s_add_u32 s{S_T+3}, s{S_T+2}, 8192")
    b(f"  s_waitcnt lgkmcnt(0)")

def sentinel_check(b, R0, pre, n=8):
    b(f"  v_max3_u32 v16, v{R0}, v{R0+1}, v{R0+2}")
    b(f"  v_max3_u32 v17, v{R0+3}, v{R0+4}, v{R0+5}")
    b(f"  v_max3_u32 v16, v16, v{R0+6}, v{R0+7}")
    for i in range(8, n, 2): b(f"  v_max3_u32 v17, v17, v{R0+i}, v{R0+i+1}")
    b(f"  v_max_u32 v16, v16, v17")
    b(f"  v_cmp_eq_u32 vcc, -1, v16")
    b(f"  s_sub_u32 s11, s11, 1")
    b(f"  s_cmp_eq_u32 s11, 0")
    b(f"  s_cbranch_scc1 {pre}_got")
    b(f"  s_cmp_lg_u64 vcc, 0")
    b(f"  s_cbranch_scc1 {pre}_poll")
    b.label(f"{pre}_got")

def p2_main(b):
    XL = XL2; TC, TS = TC2, TS2
    if SENT():
        b(f"  s_mov_b32 s11, 200000")
        b.label("p2_poll")
    b(f"  buffer_load_dwordx4 {vr(XL,4)}, v1, s[{SRD_A}:{SRD_A+3}], s{S_T+2} offen sc1")
    b(f"  buffer_load_dwordx4 {vr(XL+4,4)}, v1, s[{SRD_A}:{SRD_A+3}], s{S_T+3} offen sc1")
    if "wpack" in OPT:
        WL = WL2
        b(f"  buffer_load_dwordx4 {vr(WL,4)}, v1, s[{SRD_C}:{SRD_C+3}], s{S_T+2} offen sc1")
        b(f"  buffer_load_dwordx4 {vr(WL+4,4)}, v1, s[{SRD_C}:{SRD_C+3}], s{S_T+3} offen sc1")
        b(f"  s_waitcnt vmcnt(2)")
    elif "wlate" in OPT:
        assert not SENT()
        WL = WL2
        b(f"  buffer_load_dwordx4 {vr(WL,4)}, v24, s[{SRD_C}:{SRD_C+3}], s45 offen{WF()}")
        b(f"  buffer_load_dwordx4 {vr(WL+4,4)}, v24, s[{SRD_D}:{SRD_D+3}], s45 offen{WF()}")
        b(f"  s_cmp_lg_u32 s{S_T+1}, 0")
        b(f"  s_cbranch_scc1 p2_nonyq")
        b(f"  buffer_load_ushort v56, v25, s[{SRD_C}:{SRD_C+3}], 0 offen offset:1024")
        b(f"  buffer_load_ushort v57, v25, s[{SRD_D}:{SRD_D+3}], 0 offen offset:1024")
        b(f"  s_waitcnt vmcnt(0)")
        b(f"  v_cmp_eq_u32 vcc, 0, v26")
        b(f"  v_and_b32 v58, 0xffff0000, v{WL}")
        b(f"  v_or_b32 v58, v58, v56")
        b(f"  v_cndmask_b32 v{WL}, v{WL}, v58, vcc")
        b(f"  v_and_b32 v58, 0xffff0000, v{WL+4}")
        b(f"  v_or_b32 v58, v58, v57")
        b(f"  v_cndmask_b32 v{WL+4}, v{WL+4}, v58, vcc")
        b.label("p2_nonyq")
        b(f"  s_waitcnt vmcnt(2)")
    else:
        b(f"  s_waitcnt vmcnt(0)")
    if SENT(): sentinel_check(b, XL, "p2")
    WL = WE if ("wearly" in OPT or "wmid" in OPT) else WL2
    b(f"  v_lshlrev_b32 v17, 4, v7")
    FR, FI = 72, 76
    AX = 48; WR, WI = 152, 156
    b(f"  ds_read_b128 {vr(FR,4)}, v17 offset:{L2_F}")
    b(f"  ds_read_b128 {vr(FI,4)}, v17 offset:{L2_F+1024}")
    Dq = [80, 88]; Oq = [96, 104]; Tq = [112, 120]; Pq = [128, 132]; Wq = [136, 144]
    stamp(b, "p2 x landed")
    for j in range(4):
        b(f"  ds_write_b32 v21, v{XL+j} offset:{L2_X + j*1040}")
        b(f"  ds_write_b32 v22, v{XL+4+j} offset:{L2_X + j*1040}")
    if "wlate" in OPT or "wpack" in OPT: b(f"  s_waitcnt vmcnt(0)")
    for j in range(4):
        b(f"  ds_write_b32 v23, v{WL+j} offset:{L2_W + j*1040}")
        b(f"  ds_write_b32 v23, v{WL+4+j} offset:{L2_W + 8*1040 + j*1040}")
    if "nopf" not in OPT and "ntw1" not in OPT and PFN[1]:
        w1_share_base(b, S_T + 8, PFN[0] * 4096)
        pf_wide(b, P_W1, W1B, S_T + 8, PFN[1], 4, 8, "pf_p2a")
    b(f"  s_waitcnt lgkmcnt(0)")
    b(f"  s_barrier")
    b(f"  ds_read_b128 {vr(AX,4)}, v5 offset:{L2_X}")
    b(f"  ds_read_b128 {vr(AX+4,4)}, v5 offset:{L2_X+1040}")
    b(f"  ds_read_b128 {vr(WR,4)}, v6 offset:{L2_W}")
    b(f"  ds_read_b128 {vr(WI,4)}, v6 offset:{L2_W+8*1040}")
    def stage(form, src):
        for k in range(2):
            d = Dq[k]
            if form == 'A':
                b(f"  {MF32} {vr(d,4)}, {vr(src[k],4)}, {vr(FR,4)}, 0")
                b(f"  {MF32} {vr(d+4,4)}, {vr(src[k],4)}, {vr(FI,4)}, 0")
            else:
                b(f"  {MF32} {vr(d,4)}, {vr(FR,4)}, {vr(src[k],4)}, 0")
                b(f"  {MF32} {vr(d+4,4)}, {vr(FI,4)}, {vr(src[k],4)}, 0")
    def twiddle_pack():
        for k in range(2):
            cmul_pk(b, Oq[k], Oq[k] + 4, Dq[k], Dq[k] + 4, TC, TS, Tq[k], False)
        for k in range(2):
            for r in range(4):
                b(f"  v_cvt_pk_bf16_f32 v{Pq[k]+r}, v{Oq[k]+r}, v{Oq[k]+4+r}")
        b(f"  s_nop 1")
    b(f"  s_waitcnt lgkmcnt(2)")
    stage('A', [AX, AX + 4])
    b(f"  s_waitcnt lgkmcnt(0)")
    for r in range(4):
        b(f"  v_lshlrev_b32 v{Wq[0]+r}, 16, v{WR+r}")
        b(f"  v_lshlrev_b32 v{Wq[0]+4+r}, 16, v{WI+r}")
        b(f"  v_and_b32 v{Wq[1]+r}, 0xffff0000, v{WR+r}")
        b(f"  v_and_b32 v{Wq[1]+4+r}, 0xffff0000, v{WI+r}")
    twiddle_pack()
    stage('B', Pq)
    b(f"  s_nop 5")
    for k in range(2):
        cmul_pk(b, Oq[k], Oq[k] + 4, Dq[k], Dq[k] + 4, Wq[k], Wq[k] + 4, Tq[k], True)
    for k in range(2):
        for r in range(4):
            b(f"  v_cvt_pk_bf16_f32 v{Pq[k]+r}, v{Oq[k]+r}, -v{Oq[k]+4+r}")
    b(f"  s_nop 1")
    stage('A', Pq)
    b(f"  s_nop 5")
    twiddle_pack()
    stage('B', Pq)
    b(f"  s_nop 5")
    for k in range(2):
        for r in range(4):
            b(f"  v_cvt_pk_bf16_f32 v{Pq[k]+r}, v{Dq[k]+r}, -v{Dq[k]+4+r}")
    b(f"  ds_write_b128 v5, {vr(Pq[0],4)} offset:{L2_X}")
    b(f"  ds_write_b128 v5, {vr(Pq[1],4)} offset:{L2_X+1040}")
    b(f"  s_waitcnt lgkmcnt(0)")
    b(f"  s_barrier")
    for j in range(4):
        b(f"  ds_read_b32 v{XL+j}, v21 offset:{L2_X + j*1040}")
        b(f"  ds_read_b32 v{XL+4+j}, v22 offset:{L2_X + j*1040}")
    b(f"  v_bfe_u32 v16, v0, 2, 4              ; a")
    b(f"  v_lshrrev_b32 v17, 6, v0             ; b")
    b(f"  v_lshl_add_u32 v16, v16, 4, v17      ; s1")
    b(f"  v_lshlrev_b32 v16, 14, v16")
    b(f"  v_and_b32 v17, 3, v0")
    b(f"  v_lshl_add_u32 v16, v17, 4, v16")
    b(f"  s_lshl_b32 s{S_T+4}, s{S_T}, 11")
    b(f"  s_lshl_b32 s{S_T+5}, s{S_T+1}, 6")
    b(f"  s_add_u32 s{S_T+4}, s{S_T+4}, s{S_T+5}")
    b(f"  s_add_u32 s{S_T+5}, s{S_T+4}, {8*16384}")
    b(f"  s_waitcnt lgkmcnt(0)")
    if SENT2():
        for j in range(8): b(f"  v_min_u32 v{XL+j}, 0xfffffffe, v{XL+j}")
    b(f"  buffer_store_dwordx4 {vr(XL,4)}, v16, s[{SRD_B}:{SRD_B+3}], s{S_T+4} offen{SF}")
    b(f"  buffer_store_dwordx4 {vr(XL+4,4)}, v16, s[{SRD_B}:{SRD_B+3}], s{S_T+5} offen{SF}")
    stamp(b, "p2 stores issued")
    if not SENT2():
        b(f"  s_and_b32 s{S_T+8}, s2, 15")
        arrive(b, 1, S_T + 8, label="x2")

V_LO = 224
S_G1A = 60
def g1_ids(b):
    b(f"  s_lshr_b32 s{S_T}, s2, 3                 ; i")
    b(f"  s_cmp_lt_u32 s{S_T}, 28")
    b(f"  s_cselect_b32 s62, 1, 0")
    b(f"  s_mul_i32 s{S_T+1}, s{S_T}, 37")
    b(f"  s_lshr_b32 s{S_T+1}, s{S_T+1}, 8         ; i/7")
    b(f"  s_mul_i32 s{S_T+2}, s{S_T+1}, 7")
    b(f"  s_sub_u32 s{S_T+2}, s{S_T}, s{S_T+2}     ; i%7")
    b(f"  s_and_b32 s{S_T+3}, s2, 7")
    b(f"  s_lshr_b32 s{S_T+4}, s{S_T+3}, 1")
    b(f"  s_mul_i32 s{S_T+4}, s{S_T+4}, 7")
    b(f"  s_add_u32 s60, s{S_T+4}, s{S_T+2}        ; ft")
    b(f"  s_and_b32 s{S_T+3}, s{S_T+3}, 1")
    b(f"  s_lshl_b32 s{S_T+3}, s{S_T+3}, 2")
    b(f"  s_add_u32 s61, s{S_T+3}, s{S_T+1}        ; dt")

S_SOFF, S_M0, S_N = 4, 5, 6
def loader_issue(b, voff, fl=""):
    for i in range(4):
        b(f"  s_add_u32 m0, s{S_M0}, {4096*i}")
        b(f"  s_nop 0")
        b(f"  buffer_load_dwordx4 v{voff+i}, s[{SRD_T}:{SRD_T+3}], s{S_SOFF} offen{fl} lds")
    b(f"  s_add_u32 s{S_SOFF}, s{S_SOFF}, s9")
    b(f"  s_add_u32 s{S_M0}, s{S_M0}, {STAGE}")
    b(f"  s_cmp_ge_u32 s{S_M0}, s{S_N+1}")
    b(f"  s_cselect_b32 s{S_N+2}, {R*STAGE}, 0")
    b(f"  s_sub_u32 s{S_M0}, s{S_M0}, s{S_N+2}")

def loader_init(b, step_bytes):
    b(f"  s_sub_u32 s50, s{S_W}, 4")
    b(f"  s_lshl_b32 s{S_M0}, s50, 10")
    b(f"  s_add_u32 s{S_N+1}, s{S_M0}, {R*STAGE}")
    b(f"  s_mov_b32 s{S_SOFF}, 0")
    b(f"  s_mov_b32 s9, {step_bytes}")

def g1_loader_addr(b):
    b(f"  s_sub_u32 s50, s{S_W}, 4      ; w'")
    for i in range(4):
        b(f"  s_lshl_b32 s49, s50, 2")
        b(f"  s_add_u32 s49, s49, {16*i}")
        b(f"  v_lshrrev_b32 v14, 4, v7")
        b(f"  v_add_u32 v14, s49, v14                 ; row 0..63")
        b(f"  v_and_b32 v15, 3, v14")
        b(f"  v_lshlrev_b32 v15, 2, v15")
        b(f"  v_and_b32 v16, 15, v7")
        b(f"  v_xor_b32 v16, v16, v15                 ; q")
        b(f"  v_lshrrev_b32 v17, 3, v14")
        b(f"  v_and_b32 v18, 7, v14")
        b(f"  v_lshl_add_u32 v17, v18, 8, v17         ; s")
        b(f"  v_mul_u32_u24 v17, 7168, v17")
        b(f"  v_lshl_add_u32 v17, v16, 4, v17")
        b(f"  s_lshl_b32 s49, s60, 8")
        b(f"  v_add_u32 v{V_LO+i}, s49, v17")

def g2_ids(b):
    if SK():
        b(f"  s_lshr_b32 s{S_T+1}, s2, 3")
        b(f"  s_lshr_b32 s{S_TILE_A}, s{S_T+1}, 2          ; dt")
        b(f"  s_lshr_b32 s{S_T}, s2, 1")
        b(f"  s_and_b32 s{S_T}, s{S_T}, 3")
        b(f"  s_lshl_b32 s{S_T}, s{S_T}, 2")
        b(f"  s_and_b32 s{S_T+1}, s{S_T+1}, 3")
        b(f"  s_add_u32 s{S_TILE_B}, s{S_T}, s{S_T+1}      ; st2")
        b(f"  s_and_b32 s19, s2, 1                       ; kh")
        return
    b(f"  s_and_b32 s{S_T}, s2, 1")
    b(f"  s_lshl_b32 s{S_T}, s{S_T}, 2")
    b(f"  s_lshr_b32 s{S_T+1}, s2, 3")
    b(f"  s_and_b32 s{S_T+2}, s{S_T+1}, 3")
    b(f"  s_add_u32 s{S_TILE_A}, s{S_T}, s{S_T+2}     ; dt")
    b(f"  s_lshr_b32 s{S_T}, s2, 1")
    b(f"  s_and_b32 s{S_T}, s{S_T}, 3")
    b(f"  s_lshl_b32 s{S_T}, s{S_T}, 3")
    b(f"  s_lshr_b32 s{S_T+1}, s{S_T+1}, 2")
    b(f"  s_add_u32 s{S_TILE_B}, s{S_T}, s{S_T+1}     ; st")

def g2_loader_addr(b):
    if SK():
        b(f"  s_sub_u32 s50, s{S_W}, 4")
        for i in range(4):
            b(f"  s_lshl_b32 s49, s50, 2")
            b(f"  s_add_u32 s49, s49, {16*i}")
            b(f"  v_lshrrev_b32 v14, 4, v7")
            b(f"  v_add_u32 v14, s49, v14                 ; row 0..63")
            b(f"  v_and_b32 v15, 3, v14")
            b(f"  v_lshlrev_b32 v15, 2, v15")
            b(f"  v_and_b32 v16, 15, v7")
            b(f"  v_xor_b32 v16, v16, v15                 ; q")
            b(f"  v_lshlrev_b32 v14, 12, v14              ; row*4096")
            b(f"  v_lshl_add_u32 v14, v16, 4, v14")
            b(f"  s_lshl_b32 s49, s{S_TILE_B}, 8          ; s0*2")
            b(f"  s_mul_i32 s48, s19, {1792*4096}         ; k half")
            b(f"  s_add_u32 s49, s49, s48")
            b(f"  v_add_u32 v{V_LO+i}, s49, v14")
        return
    b(f"  s_sub_u32 s50, s{S_W}, 4")
    for i in range(4):
        b(f"  s_lshl_b32 s49, s50, 3")
        b(f"  s_add_u32 s49, s49, {32*i}")
        b(f"  v_lshrrev_b32 v14, 3, v7")
        b(f"  v_add_u32 v14, s49, v14                 ; row")
        b(f"  v_bfe_u32 v15, v14, 1, 1")
        b(f"  v_lshlrev_b32 v15, 2, v15")
        b(f"  v_and_b32 v16, 7, v7")
        b(f"  v_xor_b32 v16, v16, v15                 ; q")
        b(f"  v_lshlrev_b32 v14, 12, v14              ; row*4096")
        b(f"  v_lshl_add_u32 v14, v16, 4, v14")
        b(f"  s_lshl_b32 s49, s{S_TILE_B}, 7          ; s0*2")
        b(f"  v_add_u32 v{V_LO+i}, s49, v14")

def loader_loop(b, NS, pre, fl=""):
    if "priol" in OPT: b("  s_setprio 2")
    if "oldstart" in OPT:
        for n in range(R - 4): loader_issue(b, V_LO, fl)
        nmain = NS - (R - 2)
    else:
        b(f"  s_waitcnt vmcnt(4)")
        b("  s_barrier                      ; B_0")
        for n in range(R - 3): loader_issue(b, V_LO, fl)
        nmain = NS - (R - 2) - 1
    b(f"  s_mov_b32 s{S_N}, {nmain}")
    b.label(f"{pre}_lloop")
    b(f"  s_waitcnt vmcnt({(R-3)*4})")
    b("  s_barrier")
    loader_issue(b, V_LO, fl)
    b(f"  s_sub_u32 s{S_N}, s{S_N}, 1")
    b(f"  s_cmp_lg_u32 s{S_N}, 0")
    b(f"  s_cbranch_scc1 {pre}_lloop")
    for i in range(R - 2):
        b(f"  s_waitcnt vmcnt({(R-3-i)*4})")
        b("  s_barrier")

BD3 = 32; XR3 = 192; GM3 = 30
def p3_tables(b):
    b(f"  v_and_b32 v10, 255, v0            ; e")
    b(f"  v_lshrrev_b32 v11, 8, v0")
    b(f"  v_bfe_u32 v12, v10, 2, 4          ; n = lane&15")
    b(f"  v_lshrrev_b32 v13, 6, v10         ; g")
    b(f"  v_and_b32 v14, 3, v10             ; r")
    b(f"  v_lshl_add_u32 v13, v13, 2, v14   ; 4g + r")
    b(f"  v_lshrrev_b32 v15, 2, v12")
    b(f"  v_lshlrev_b32 v15, 3, v15")
    b(f"  v_and_b32 v16, 3, v12")
    b(f"  v_add_u32 v15, v15, v16           ; b(n,0)")
    b(f"  v_lshl_add_u32 v16, v11, 2, v15   ; b(n, sel)")
    b(f"  v_mul_u32_u24 v17, v16, v13")
    sincos(b, 18, 19, 17, 5, 20)
    b(f"  v_lshlrev_b32 v22, 2, v10")
    b(f"  v_lshl_add_u32 v22, v11, 11, v22  ; sel*2048 + e*4")
    b(f"  v_add_u32 v22, {L3_M3}, v22")
    b(f"  v_cvt_pk_bf16_f32 v23, v18, -v19")
    b(f"  v_cvt_pk_bf16_f32 v24, v19, v18")
    b(f"  ds_write_b32 v22, v23")
    b(f"  ds_write_b32 v22, v24 offset:1024")
    b(f"  v_lshl_add_u32 v17, v11, 4, v13   ; k1")
    for z in range(2):
        b(f"  v_add_u32 v21, {16*z}, v12")
        b(f"  v_mul_u32_u24 v21, v21, v17")
        sincos(b, 18, 19, 21, 5, 20)
        b(f"  v_add_f32 v18, v18, v18")
        b(f"  v_mul_f32 v19, -2.0, v19")
        b(f"  v_cvt_pk_bf16_f32 v23, v18, v19")
        b(f"  ds_write_b32 v22, v23 offset:{4096+1024*z}")
    b(f"  v_lshlrev_b32 v23, 2, v10")
    b(f"  v_lshl_add_u32 v23, v11, 12, v23   ; u*4096 + e*4")
    b(f"  v_add_u32 v23, {L3_TW}, v23")
    for v in range(2):
        b(f"  v_add_u32 v21, {4*v}, v15")
        b(f"  v_mul_u32_u24 v21, v21, v17")
        sincos(b, 18, 19, 21, 10, 20)
        b(f"  ds_write_b32 v23, v18 offset:{2048*v}")
        b(f"  ds_write_b32 v23, v19 offset:{2048*v+1024}")

def p3_setup(b):
    srd(b, SRD_A, P_WS, 4 << 20, WS_X2)
    srd(b, SRD_B, P_X, 4 << 20)
    srd(b, SRD_C, P_WS, 4 << 20, WS_H)
    srd(b, SRD_D, P_WS, 4 << 20, WS_LN2)
    b(f"  s_lshl_b32 s{S_T+3}, s{S_W}, 8")
    b(f"  s_add_u32 s{S_T+3}, s{S_T+3}, s2")
    b(f"  s_lshl_b32 s{S_T+3}, s{S_T+3}, 11       ; s*2048")
    b(f"  v_lshlrev_b32 v4, 6, v8")
    b(f"  v_lshl_add_u32 v4, v9, 4, v4")
    if "stash" in OPT:
        b(f"  s_lshl_b32 s{S_T+9}, s{S_W}, 11")
        b(f"  s_add_u32 s{S_T+9}, s{S_T+9}, {L_XS}")
        b(f"  v_add_u32 v2, s{S_T+9}, v4")
        for z in range(2): b(f"  ds_read_b128 {vr(XR3+4*z,4)}, v2 offset:{1024*z}")
    else:
      for z in range(2):
        b(f"  buffer_load_dwordx4 {vr(XR3+4*z,4)}, v4, s[{SRD_B}:{SRD_B+3}], s{S_T+3} offen offset:{1024*z}")
    b(f"  s_mov_b32 s63, s{S_T+3}")
    if SK():
        srd(b, SRD_PF, P_WS, 4 << 20, WS_XCH)
        for i in range(4): b(f"  v_mov_b32 v{200+i}, -1")
        b(f"  v_lshlrev_b32 v2, 4, v0")
        b(f"  s_lshl_b32 s{S_T+8}, s2, 14")
        b(f"  buffer_store_dwordx4 v[200:203], v2, s[{SRD_PF}:{SRD_PF+3}], s{S_T+8} offen{SF}")
        b(f"  s_add_u32 s{S_T+8}, s{S_T+8}, 8192")
        b(f"  buffer_store_dwordx4 v[200:203], v2, s[{SRD_PF}:{SRD_PF+3}], s{S_T+8} offen{SF}")
    if "nopf" not in OPT and "ntw1" not in OPT:
        if PFN[2]:
            w1_share_base(b, S_T + 8, (PFN[0] + PFN[1]) * 4096)
            pf_wide(b, P_W1, W1B, S_T + 8, PFN[2], 4, 8, "pf_p3a")
    g1_ids(b)
    g1_loader_addr(b)
    loader_init(b, 8 * 7168)
    p3_tables(b)
    gmat(b, GM3, 2, True, 10)
    b(f"  v_lshlrev_b32 v1, 12, v9")
    b(f"  v_lshl_add_u32 v1, v8, 2, v1")
    b(f"  s_lshl_b32 s{S_T}, s2, 14")
    b(f"  s_and_b32 s{S_T+1}, s{S_W}, 1")
    b(f"  s_lshl_b32 s{S_T+1}, s{S_T+1}, 6")
    b(f"  s_lshr_b32 s{S_T+2}, s{S_W}, 1")
    b(f"  s_lshl_b32 s{S_T+2}, s{S_T+2}, 9")
    b(f"  s_add_u32 s{S_T}, s{S_T}, s{S_T+1}")
    b(f"  s_add_u32 s44, s{S_T}, s{S_T+2}          ; X2 soffset")
    b(f"  s_lshl_b32 s{S_T+1}, s{S_T+1}, 4        ; u*1024")
    b(f"  s_lshr_b32 s{S_T+2}, s{S_T+2}, 1        ; q4*256")
    b(f"  s_add_u32 s45, s{S_T+1}, s{S_T+2}")
    b(f"  s_waitcnt lgkmcnt(0)")

def p3_main(b):
    Bd, XR, GM = BD3, XR3, GM3
    D = 40
    b(f"  v_lshlrev_b32 v3, 12, v9")
    b(f"  v_lshl_add_u32 v3, v8, 4, v3")
    b(f"  v_add_u32 v3, s45, v3")
    b(f"  v_add_u32 v3, {L3_EX}, v3")
    M3, M4, TW = 96, 112, 128
    b(f"  v_lshlrev_b32 v6, 4, v7")
    b(f"  v_add_u32 v6, {L3_M3}, v6")
    for i in range(4): b(f"  ds_read_b128 {vr(M3+4*i,4)}, v6 offset:{1024*i}")
    for i in range(4): b(f"  ds_read_b128 {vr(M4+4*i,4)}, v6 offset:{4096+1024*i}")
    b(f"  s_waitcnt lgkmcnt(0)")
    for i in range(8): b(f"  ds_read_b128 {vr(TW+4*i,4)}, v6 offset:{8192+1024*i}")
    if SENT2():
        b(f"  s_mov_b32 s11, 200000")
        b.label("p3_poll")
    for i in range(4):
        for e in range(2):
            b(f"  buffer_load_dword v{Bd+2*i+e}, v1, s[{SRD_A}:{SRD_A+3}], s44 offen offset:{e*2048+i*128} sc1")
    b(f"  s_waitcnt vmcnt(0)")
    if SENT2(): sentinel_check(b, Bd, "p3")
    stamp(b, "p3 x2 landed")
    if "nopf" not in OPT and "ntw1" not in OPT and PFN[3]:
        w1_share_base(b, S_T + 8, (PFN[0] + PFN[1] + PFN[2]) * 4096)
        pf_wide(b, P_W1, W1B, S_T + 8, PFN[3], 4, 8, "pf_p3b")
    for i in range(4):
        b(f"  {MF16} {vr(D+4*i,4)}, {vr(GM,2)}, {vr(Bd+2*i,2)}, 0")
    b(f"  s_nop 4")
    PK = 56
    for e in range(2):
        for i in range(4):
            b(f"  v_cvt_pk_bf16_f32 v{PK+4*e+i}, v{D+4*i+2*e}, v{D+4*i+2*e+1}")
    b(f"  ds_write_b128 v3, {vr(PK,4)}")
    b(f"  ds_write_b128 v3, {vr(PK+4,4)} offset:2048")
    b(f"  s_waitcnt lgkmcnt(0)")
    b(f"  s_barrier")
    b(f"  v_lshlrev_b32 v5, 8, v9")
    b(f"  v_lshl_add_u32 v5, v8, 4, v5")
    b(f"  s_lshl_b32 s{S_T+1}, s{S_W}, 11")
    b(f"  s_add_u32 s{S_T+1}, s{S_T+1}, {L3_EX}")
    b(f"  v_add_u32 v5, s{S_T+1}, v5")
    AU = 32
    b(f"  ds_read_b128 {vr(AU,4)}, v5")
    b(f"  ds_read_b128 {vr(AU+4,4)}, v5 offset:1024")
    b(f"  s_waitcnt lgkmcnt(0)")
    b(f"  v_readlane_b32 s{S_T+4}, v{AU}, 0")
    b(f"  v_writelane_b32 v{AU}, 0, 0")
    b(f"  s_nop 1")
    b(f"  s_lshl_b32 s{S_T+4}, s{S_T+4}, 16")
    TT = 160
    for u in range(2):
        for v in range(2):
            for c in range(2):
                d = TT + ((u * 2 + v) * 2 + c) * 4
                b(f"  {MF32} {vr(d,4)}, {vr(AU+4*u,4)}, {vr(M3+4*(2*v+c),4)}, 0")
    CI = 60
    b(f"  v_mov_b32 v{CI}, s{S_T+4}")
    b(f"  v_xor_b32 v{CI+1}, 0x80000000, v{CI}")
    b(f"  v_mov_b32 v{CI+2}, v{CI}")
    b(f"  v_mov_b32 v{CI+3}, v{CI+1}")
    b(f"  s_nop 1")
    A2 = 64; O = 40; W = 80
    for u in range(2):
        for v in range(2):
            t = TT + ((u * 2 + v) * 2) * 4
            tw = TW + ((u * 2 + v) * 2) * 4
            cmul_pk(b, O, O + 4, t, t + 4, tw, tw + 4, W, True)
            for r in range(4):
                b(f"  v_cvt_pk_bf16_f32 v{A2+(u*2+v)*4+r}, v{O+r}, v{O+4+r}")
    Y = 160
    b(f"  s_nop 1")
    for z in range(2):
        for v in range(2):
            d = Y + (z * 2 + v) * 4
            b(f"  {MF32} {vr(d,4)}, {vr(A2+(0*2+v)*4,4)}, {vr(M4+(0*2+z)*4,4)}, {vr(CI,4)}")
    for z in range(2):
        for v in range(2):
            d = Y + (z * 2 + v) * 4
            b(f"  {MF32} {vr(d,4)}, {vr(A2+(1*2+v)*4,4)}, {vr(M4+(1*2+z)*4,4)}, {vr(d,4)}")
    b(f"  s_nop 7")
    X = 40; HP = 32
    stamp(b, "p3 ifft done")
    for z in range(2):
        for dd in range(4):
            y0 = Y + z * 8 + 2 * dd
            xd = XR + 4 * z + dd
            t = 64 + 2 * (dd % 4)
            b(f"  v_lshlrev_b32 v{t}, 16, v{xd}")
            b(f"  v_and_b32 v{t+1}, 0xffff0000, v{xd}")
            b(f"  v_pk_add_f32 {vr(t,2)}, {vr(t,2)}, {vr(y0,2)}")
            b(f"  v_cvt_pk_bf16_f32 v{HP+4*z+dd}, v{t}, v{t+1}")
    for z in range(2):
        b(f"  buffer_store_dwordx4 {vr(HP+4*z,4)}, v4, s[{SRD_C}:{SRD_C+3}], s63 offen offset:{1024*z}{SF}")
    for i in range(8):
        b(f"  v_lshlrev_b32 v{X+2*i}, 16, v{HP+i}")
        b(f"  v_and_b32 v{X+2*i+1}, 0xffff0000, v{HP+i}")
    ln_fast(b, X, 64, S_T + 4, False)
    LP = 72
    stamp(b, "p3 ln done")
    for i in range(8):
        b(f"  v_cvt_pk_bf16_f32 v{LP+i}, v{X+2*i}, v{X+2*i+1}")
    b(f"  v_mul_u32_u24 v3, 80, v8")
    b(f"  v_lshl_add_u32 v3, v9, 4, v3")
    b(f"  s_mul_i32 s{S_T+1}, s{S_W}, {L3_RS}")
    b(f"  s_add_u32 s{S_T+1}, s{S_T+1}, {L3_LN}")
    b(f"  v_add_u32 v3, s{S_T+1}, v3")
    for z in range(2):
        b(f"  ds_write_b128 v3, {vr(LP+4*z,4)} offset:{z*16*80}")
    b(f"  s_waitcnt lgkmcnt(0)")
    b(f"  s_barrier")
    b(f"  v_bfe_u32 v10, v7, 2, 2")
    b(f"  v_mul_u32_u24 v10, {L3_RS}, v10")
    b(f"  v_lshrrev_b32 v11, 5, v7")
    b(f"  v_mul_u32_u24 v12, 80, v11")
    b(f"  v_add_u32 v10, v10, v12")
    b(f"  v_and_b32 v12, 1, v7")
    b(f"  v_lshl_add_u32 v10, v12, 5, v10")
    b(f"  v_bfe_u32 v12, v7, 4, 1")
    b(f"  v_lshl_add_u32 v10, v12, 4, v10")
    b(f"  v_bfe_u32 v12, v7, 1, 1")
    b(f"  v_lshl_add_u32 v10, v12, 3, v10")
    b(f"  s_mul_i32 s{S_T+1}, s{S_W}, {4*80}")
    b(f"  s_add_u32 s{S_T+1}, s{S_T+1}, {L3_LN}")
    b(f"  v_add_u32 v10, s{S_T+1}, v10")
    for ps in range(2):
        b(f"  ds_read_b64_tr_b16 {vr(32+4*ps,2)}, v10 offset:{ps*160}")
        b(f"  ds_read_b64_tr_b16 {vr(34+4*ps,2)}, v10 offset:{ps*160 + 4*L3_RS}")
    b(f"  v_lshlrev_b32 v11, 17, v11")
    b(f"  v_and_b32 v12, 31, v7")
    b(f"  v_lshl_add_u32 v11, v12, 4, v11")
    b(f"  s_lshl_b32 s{S_T+1}, s{S_W}, 19")
    b(f"  s_lshl_b32 s{S_T+2}, s2, 9")
    b(f"  s_add_u32 s{S_T+1}, s{S_T+1}, s{S_T+2}")
    b(f"  s_add_u32 s{S_T+2}, s{S_T+1}, {2*131072}")
    b(f"  s_waitcnt lgkmcnt(2)")
    b(f"  buffer_store_dwordx4 v[32:35], v11, s[{SRD_D}:{SRD_D+3}], s{S_T+1} offen{SF}")
    b(f"  s_waitcnt lgkmcnt(0)")
    b(f"  buffer_store_dwordx4 v[36:39], v11, s[{SRD_D}:{SRD_D+3}], s{S_T+2} offen{SF}")
    stamp(b, "p3 stores issued")
    b(f"  s_and_b32 s{S_T+8}, s2, 15")
    arrive(b, 2, S_T + 8, label="x3")
    srd(b, SRD_T, P_W1, W1B)
    b(f"  s_cmp_lt_u32 s{S_W}, 4")
    b(f"  s_cbranch_scc1 p3_nodma")
    b(f"  s_cmp_eq_u32 s62, 0")
    b(f"  s_cbranch_scc1 p3_nodma")
    for n in range(2): loader_issue(b, V_LO, W1F())
    b.label("p3_nodma")

def gemm_core(b, c, pre, after_setup, after_prologue=None, posts=None):
    NB, NS = c.NB, c.NS
    acc = lambda nb: V_ACC + nb * 16
    VT = V_ACC + NB * 16
    VPR = VT + 32
    c.VT, c.VPR = VT, VPR
    c.vend = VPR + 4 * PR
    tf = lambda q: VT + (q % 8) * 4
    pr = lambda j: VPR + (j % PR) * 4
    FPI = 64
    KPI = FPI // NB
    def tread(q):
        ql = q % FPI
        lslot, within = ql // 16, ql % 16
        ks, nb = within // NB, within % NB
        off = lslot * STAGE + ks * 16 * c.rowb
        b(f"  ds_read_b64_tr_b16 {vr(tf(q),2)}, v{V_T+nb} offset:{off}")
        b(f"  ds_read_b64_tr_b16 {vr(tf(q)+2,2)}, v{V_T+nb} offset:{off+4*c.rowb}")
    def pload(j):
        b(f"  buffer_load_dwordx4 {vr(pr(j),4)}, v{V_P}, s[{SRD_P}:{SRD_P+3}], s{S_POFF} offen offset:{(j%4)*1024}{LF}")
        if j % 4 == 3: b(f"  s_add_u32 s{S_POFF}, s{S_POFF}, 4096")
    def mfma(q):
        nb = q % NB; j = q // NB; a = acc(nb)
        if "m16fake" in OPT:
            o = 8 * (j % 2)
            b(f"  v_mfma_f32_16x16x32_bf16 {vr(a+o,4)}, {vr(tf(q),4)}, {vr(pr(j),4)}, {vr(a+o,4)}")
            b(f"  v_mfma_f32_16x16x32_bf16 {vr(a+o+4,4)}, {vr(pr(j),4)}, {vr(tf(q),4)}, {vr(a+o+4,4)}")
            return
        if c.name == "g1":
            b(f"  v_mfma_f32_32x32x16_bf16 {vr(a,16)}, {vr(tf(q),4)}, {vr(pr(j),4)}, {vr(a,16)}")
        else:
            b(f"  v_mfma_f32_32x32x16_bf16 {vr(a,16)}, {vr(pr(j),4)}, {vr(tf(q),4)}, {vr(a,16)}")
    if "prioc" in OPT: b("  s_setprio 2")
    b(f"  s_mov_b32 s{S_POFF}, 0")
    b(f"  s_mov_b32 s{S_DELTA}, {4*STAGE}")
    b(f"  s_mov_b32 s{S_IT}, {NS//4 - 1}")
    after_setup()
    for j in range(PR - 1): pload(j)
    if after_prologue: after_prologue()
    b("  s_barrier")
    for q in range(DQ): tread(q)
    def body(last):
        for q in range(FPI):
            j = q // NB
            qn = q + DQ
            do_read = not (last and qn >= FPI)
            do_pload = False
            if q % NB == 0:
                rem = KPI - 1 - j
                if (not last) or (j + PR - 1 < KPI):
                    b(f"  s_waitcnt vmcnt({PR-2})")
                    do_pload = True
                else:
                    b(f"  s_waitcnt vmcnt({min(PR-2, rem)})")
            if do_read and qn % 16 == 0:
                b("  s_barrier")
            if do_read and qn == FPI:
                for i in range(NB): b(f"  v_add_u32 v{V_T+i}, s{S_DELTA}, v{V_T+i}")
                b(f"  s_sub_u32 s{S_DELTA}, 0, s{S_DELTA}")
            if q % 2 == 0:
                left = min(DQ - 2, FPI - 2 - q) if last else DQ - 2
                b(f"  s_waitcnt lgkmcnt({2*left})")
            mfma(q)
            if do_pload: pload(j + PR - 1)
            if do_read: tread(qn)
    b.label(f"{pre}_loop")
    body(False)
    b(f"  s_sub_u32 s{S_IT}, s{S_IT}, 1")
    b(f"  s_cmp_lg_u32 s{S_IT}, 0")
    b(f"  s_cbranch_scc1 {pre}_loop")
    if posts is None:
        body(True)
        return
    F = [(q // NB, q % NB) for q in range(16)] + [(4 + r % 12, r // 12) for r in range(48)]
    def tread_f(q):
        j, nb = F[q]
        off = (j // 4) * STAGE + (j % 4) * 16 * c.rowb
        b(f"  ds_read_b64_tr_b16 {vr(tf(q),2)}, v{V_T+nb} offset:{off}")
        b(f"  ds_read_b64_tr_b16 {vr(tf(q)+2,2)}, v{V_T+nb} offset:{off+4*c.rowb}")
    for q in range(FPI):
        j, nb = F[q]
        qn = q + DQ
        first_use = (q < 16 and nb == 0) or (16 <= q < 28)
        if q == 0: b(f"  s_waitcnt vmcnt({PR-2})")
        elif first_use: b(f"  s_waitcnt vmcnt({min(PR-2, KPI - 1 - j)})")
        if q == 9: b("  s_barrier"); b("  s_barrier")
        if q == 13: b("  s_barrier")
        if q % 2 == 0:
            left = min(DQ - 2, FPI - 2 - q)
            b(f"  s_waitcnt lgkmcnt({2*left})")
        a = acc(nb)
        if c.name == "g1":
            b(f"  v_mfma_f32_32x32x16_bf16 {vr(a,16)}, {vr(tf(q),4)}, {vr(pr(j),4)}, {vr(a,16)}")
        else:
            b(f"  v_mfma_f32_32x32x16_bf16 {vr(a,16)}, {vr(pr(j),4)}, {vr(tf(q),4)}, {vr(a,16)}")
        if q == 0: pload(PR - 1)
        if qn < FPI: tread_f(qn)
        if q >= 28:
            blk, r = (q - 16) // 12 - 1, (q - 16) % 12
            fill = posts.get(blk, [])
            if fill and r >= 3:
                n = len(fill); per = -(-n // 9)
                for line in fill[(r - 3) * per:(r - 2) * per]: b(line)

def idle_w1(b):
    srd(b, SRD_PF, P_W1, W1B)
    b(f"  s_and_b32 s51, s50, 7")
    b(f"  s_mul_i32 s51, s51, {256*7168}")
    b(f"  s_lshr_b32 s52, s50, 3")
    b(f"  s_mul_i32 s52, s52, {4*7168}")
    b(f"  s_add_u32 s51, s51, s52")
    b(f"  s_add_u32 s51, s51, {128*7168}")
    b(f"  s_mov_b32 s52, 7")
    b.label("pf_w1b")
    for i in range(4): b(f"  buffer_load_dwordx4 {vr(V_DUMMY,4)}, v29, s[{SRD_PF}:{SRD_PF+3}], s51 offen offset:{1024*i}")
    b(f"  s_add_u32 s51, s51, 4096")
    b(f"  s_waitcnt vmcnt(4)")
    b(f"  s_sub_u32 s52, s52, 1")
    b(f"  s_cmp_lg_u32 s52, 0")
    b(f"  s_cbranch_scc1 pf_w1b")

def idle_w2(b):
    if "idlesc" in OPT:
        srd(b, SRD_PF, P_W2, W1B)
        b(f"  s_mul_i32 s51, s50, {W1B // 256}")
        b(f"  v_lshlrev_b32 v29, 7, v7")
        for i in range(7):
            b(f"  buffer_load_dword v230, v29, s[{SRD_PF}:{SRD_PF+3}], s51 offen")
            b(f"  s_add_u32 s51, s51, 8192")
            if i >= 1: b(f"  s_waitcnt vmcnt(1)")
        b(f"  s_waitcnt vmcnt(0)")
        return
    srd(b, SRD_PF, P_W2, W1B)
    b(f"  s_mul_i32 s51, s50, {W1B // 256}")
    b(f"  s_mov_b32 s52, 14")
    b.label("pf_w2")
    for i in range(4): b(f"  buffer_load_dwordx4 {vr(V_DUMMY,4)}, v29, s[{SRD_PF}:{SRD_PF+3}], s51 offen offset:{1024*i}")
    b(f"  s_add_u32 s51, s51, 4096")
    b(f"  s_waitcnt vmcnt({0 if 'idlepace' in OPT else 4})")
    b(f"  s_sub_u32 s52, s52, 1")
    b(f"  s_cmp_lg_u32 s52, 0")
    b(f"  s_cbranch_scc1 pf_w2")
    b(f"  s_waitcnt vmcnt(0)")

def g1_gelu(b, c, blocks, accof, vaddr):
    K1 = -2.0 * 0.7978845608028654 * 1.4426950408889634
    K2 = K1 * 0.044715
    T = c.VPR
    b(f"  v_mov_b32 v{T}, {hex(f2u(K1))}")
    b(f"  v_mov_b32 v{T+1}, {hex(f2u(K1))}")
    b(f"  v_mov_b32 v{T+2}, {hex(f2u(K2))}")
    b(f"  v_mov_b32 v{T+3}, {hex(f2u(K2))}")
    b(f"  s_nop 7")
    W = T + 8
    for fb in blocks:
        a = accof(fb); t = W; o = W + 16 + 8 * (fb % 2)
        for h in range(0, 16, 2): b(f"  v_pk_mul_f32 {vr(t+h,2)}, {vr(a+h,2)}, {vr(a+h,2)}")
        for h in range(0, 16, 2): b(f"  v_pk_fma_f32 {vr(t+h,2)}, {vr(t+h,2)}, {vr(T+2,2)}, {vr(T,2)}")
        for h in range(0, 16, 2): b(f"  v_pk_mul_f32 {vr(t+h,2)}, {vr(t+h,2)}, {vr(a+h,2)}")
        for r in range(16): b(f"  v_exp_f32 v{t+r}, v{t+r}")
        for h in range(0, 16, 2): b(f"  v_pk_add_f32 {vr(t+h,2)}, {vr(t+h,2)}, 1.0 op_sel_hi:[1,0]")
        for r in range(16): b(f"  v_rcp_f32 v{t+r}, v{t+r}")
        for h in range(0, 16, 2): b(f"  v_pk_mul_f32 {vr(t+h,2)}, {vr(a+h,2)}, {vr(t+h,2)}")
        for i in range(4):
            b(f"  v_cvt_pk_bf16_f32 v{o+2*i}, v{t+4*i}, v{t+4*i+1}")
            b(f"  v_cvt_pk_bf16_f32 v{o+2*i+1}, v{t+4*i+2}, v{t+4*i+3}")
        for ip in range(2):
            oo = o + 4 * ip
            b(f"  s_mov_b32 s{S_TMP+1}, {(2*fb+ip)*1024}")
            b(f"  s_nop 0")
            b(f"  v_permlane32_swap_b32 v{oo}, v{oo+2}")
            b(f"  v_permlane32_swap_b32 v{oo+1}, v{oo+3}")
            b(f"  buffer_store_dwordx4 {vr(oo,4)}, v{vaddr}, s[{SRD_O}:{SRD_O+3}], s{S_TMP+1} offen{SF}")

def gelu_lines(fb, a, CT, t, o, vaddr):
    L = []
    for h in range(0, 16, 2): L.append(f"  v_pk_mul_f32 {vr(t+h,2)}, {vr(a+h,2)}, {vr(a+h,2)}")
    for h in range(0, 16, 2): L.append(f"  v_pk_fma_f32 {vr(t+h,2)}, {vr(t+h,2)}, {vr(CT+2,2)}, {vr(CT,2)}")
    for h in range(0, 16, 2): L.append(f"  v_pk_mul_f32 {vr(t+h,2)}, {vr(t+h,2)}, {vr(a+h,2)}")
    for r in range(16): L.append(f"  v_exp_f32 v{t+r}, v{t+r}")
    for h in range(0, 16, 2): L.append(f"  v_pk_add_f32 {vr(t+h,2)}, {vr(t+h,2)}, 1.0 op_sel_hi:[1,0]")
    for r in range(16): L.append(f"  v_rcp_f32 v{t+r}, v{t+r}")
    for h in range(0, 16, 2): L.append(f"  v_pk_mul_f32 {vr(t+h,2)}, {vr(a+h,2)}, {vr(t+h,2)}")
    for i in range(4):
        L.append(f"  v_cvt_pk_bf16_f32 v{o+2*i}, v{t+4*i}, v{t+4*i+1}")
        L.append(f"  v_cvt_pk_bf16_f32 v{o+2*i+1}, v{t+4*i+2}, v{t+4*i+3}")
    for ip in range(2):
        oo = o + 4 * ip
        L.append(f"  s_mov_b32 s{S_TMP+1}, {(2*fb+ip)*1024}")
        L.append(f"  s_nop 1")
        L.append(f"  v_permlane32_swap_b32 v{oo}, v{oo+2}")
        L.append(f"  v_permlane32_swap_b32 v{oo+1}, v{oo+3}")
        L.append(f"  buffer_store_dwordx4 {vr(oo,4)}, v{vaddr}, s[{SRD_O}:{SRD_O+3}], s{S_TMP+1} offen{SF}")
    return L

def g1(b):
    c = g1_cfg()
    b(f"  s_cmp_eq_u32 s62, 0")
    b(f"  s_cbranch_scc1 g1_inactive")
    srd(b, SRD_P, P_WS, 4 << 20, WS_LN2)
    srd(b, SRD_T, P_W1, W1B)
    srd(b, SRD_O, P_WS, U_BYTES, WS_U)
    srd(b, SRD_X, P_B1, 3584 * 2)
    b(f"  s_cmp_ge_u32 s{S_W}, 4")
    b(f"  s_cbranch_scc1 g1_loader")
    lane_geom(b)
    b(f"  s_lshl_b32 s{S_TMP}, s61, 2")
    b(f"  s_add_u32 s{S_TMP}, s{S_TMP}, s{S_W}            ; dblk")
    b(f"  s_lshl_b32 s{S_TMP+2}, s{S_TMP}, 17")
    b(f"  v_lshlrev_b32 v10, 4, v7")
    b(f"  v_add_u32 v{V_P}, s{S_TMP+2}, v10")
    b(f"  s_lshl_b32 s{S_TMP+1}, s60, 8       ; f0*2")
    b(f"  v_lshlrev_b32 v11, 3, v9")
    b(f"  v_add_u32 v11, s{S_TMP+1}, v11")
    BV = 192
    for fb in range(4):
        for i in range(4):
            b(f"  buffer_load_dwordx2 {vr(BV+2*(4*fb+i),2)}, v11, s[{SRD_X}:{SRD_X+3}], 0 offen offset:{64*fb+16*i}")
    b(f"  v_lshl_add_u32 v20, v9, 3, v18")
    b(f"  v_lshlrev_b32 v20, 8, v20")
    b(f"  v_lshl_add_u32 v20, v18, 6, v20")
    b(f"  v_lshl_add_u32 v20, v19, 5, v20")
    b(f"  v_lshl_add_u32 v{V_T}, v22, 3, v20")
    for fb in range(1, 4):
        b(f"  v_xor_b32 v{V_T+fb}, {64*fb}, v{V_T}")
    b(f"  s_mul_i32 s{S_TMP+2}, s{S_TMP}, 229376")
    b(f"  s_lshl_b32 s{S_TMP+1}, s60, 13")
    b(f"  s_add_u32 s{S_TMP+1}, s{S_TMP+1}, s{S_TMP+2}")
    b(f"  v_add_u32 v28, s{S_TMP+1}, v10")
    b(f"  s_waitcnt vmcnt(0)")
    for fb in range(4):
        for i in range(4):
            bv = BV + 2 * (4 * fb + i); a = V_ACC + fb * 16 + 4 * i
            b(f"  v_lshlrev_b32 v{a}, 16, v{bv}")
            b(f"  v_and_b32 v{a+1}, 0xffff0000, v{bv}")
            b(f"  v_lshlrev_b32 v{a+2}, 16, v{bv+1}")
            b(f"  v_and_b32 v{a+3}, 0xffff0000, v{bv+1}")
    def w3():
        wait(b, 2, 16, "x3c")
        stamp(b, "x3 released")
        stamp(b, "c:g1 start")
    SKEW = "skew" in OPT
    if SKEW:
        K1 = -2.0 * 0.7978845608028654 * 1.4426950408889634
        K2 = K1 * 0.044715
        CT, GT, GO = 192, 196, 212
        for i, kv in enumerate((K1, K1, K2, K2)): b(f"  v_mov_b32 v{CT+i}, {hex(f2u(kv))}")
        posts = {fb: gelu_lines(fb, V_ACC + 16 * fb, CT, GT, GO, 28) for fb in range(3)}
        gemm_core(b, c, "g1", w3, None, posts)
    else:
        gemm_core(b, c, "g1", w3)
    stamp(b, "c:g1 end")
    stamp(b, "g1 main done")
    E8 = "epi8" in OPT
    XO = 4 * STAGE
    if E8:
        b(f"  s_lshl_b32 s{S_TMP+1}, s{S_W}, 13")
        b(f"  s_add_u32 s{S_TMP+1}, s{S_TMP+1}, {XO}")
        b(f"  v_add_u32 v12, s{S_TMP+1}, v10")
        b(f"  s_nop 9")
        for k in range(8): b(f"  ds_write_b128 v12, {vr(V_ACC+32+4*k,4)} offset:{1024*k}")
        b(f"  s_waitcnt lgkmcnt(0)")
        b(f"  s_barrier")
    if SKEW:
        b(f"  s_nop 9")
        for line in gelu_lines(3, V_ACC + 48, CT, GT, GO, 28): b(line)
    else:
        g1_gelu(b, c, range(2) if E8 else range(4), lambda fb: V_ACC + fb * 16, 28)
    stamp(b, "g1 stores issued")
    b(f"  s_waitcnt vmcnt(0)")
    b(f"  s_branch g1_join")
    b.label("g1_loader")
    b(f"  s_sub_u32 s50, s{S_W}, 4")
    b(f"  s_lshl_b32 s49, s50, 10")
    b(f"  s_add_u32 s{S_N+1}, s49, {R*STAGE}")
    b(f"  s_barrier                      ; matches the barrier inside wait(x3)")
    loader_loop(b, c.NS, "g1", W1F())
    stamp(b, "g1 main done")
    g2_prologue_loader(b)
    if "epi8" in OPT:
        b(f"  s_sub_u32 s{S_TMP}, s{S_W}, 4")
        b(f"  s_lshl_b32 s{S_TMP+1}, s{S_TMP}, 13")
        b(f"  s_add_u32 s{S_TMP+1}, s{S_TMP+1}, {4*STAGE}")
        b(f"  v_lshlrev_b32 v10, 4, v7")
        b(f"  v_add_u32 v12, s{S_TMP+1}, v10")
        b(f"  s_lshl_b32 s{S_TMP+1}, s61, 2")
        b(f"  s_add_u32 s{S_TMP}, s{S_TMP}, s{S_TMP+1}      ; dblk")
        b(f"  s_mul_i32 s{S_TMP+2}, s{S_TMP}, 229376")
        b(f"  s_lshl_b32 s{S_TMP+1}, s60, 13")
        b(f"  s_add_u32 s{S_TMP+1}, s{S_TMP+1}, s{S_TMP+2}")
        b(f"  v_add_u32 v28, s{S_TMP+1}, v10")
        b(f"  s_barrier")
        for k in range(8): b(f"  ds_read_b128 {vr(V_ACC+4*k,4)}, v12 offset:{1024*k}")
        b(f"  s_waitcnt lgkmcnt(0)")
        g1_gelu(b, c, range(2, 4), lambda fb: V_ACC + (fb - 2) * 16, 28)
        b(f"  s_waitcnt vmcnt(0)")
    stamp(b, "g1 stores issued")
    b.label("g1_join")
    if SK():
        b(f"  s_cmp_ge_u32 s60, 14")
        b(f"  s_cselect_b32 s18, 1, 0")
        b(f"  s_lshl_b32 s10, s61, 1")
        b(f"  s_add_u32 s18, s18, s10")
        arrive(b, 3, 18, label="x4", drained=True)
    else:
        arrive(b, 3, 61, label="x4", drained=True)
    b(f"  s_branch g2_start")
    b.label("g1_inactive")
    if "nopf" not in OPT:
        b(f"  s_sub_u32 s50, s2, 224")
        b(f"  s_lshl_b32 s50, s50, 3")
        b(f"  s_add_u32 s50, s50, s{S_W}")
        b(f"  v_lshlrev_b32 v29, 4, v7")
        if "noidle" not in OPT: idle_w2(b)
    b(f"  s_cmp_lt_u32 s{S_W}, 4")
    b(f"  s_cbranch_scc1 g2_start_inactive")
    g2_prologue_loader(b)
    b.label("g2_start_inactive")
    return c

def g2_prologue_loader(b):
    g2_ids(b)
    srd(b, SRD_T, P_W2, W1B)
    g2_loader_addr(b)
    loader_init(b, (64 if SK() else 128) * 4096)
    for n in range(2): loader_issue(b, V_LO, W2F())

def g2_sk(b):
    c = g1_cfg(); c.name = "g2"; c.NS = 28
    b.label("g2_start")
    g2_ids(b)
    srd(b, SRD_P, P_WS, U_BYTES, WS_U)
    srd(b, SRD_O, P_OUT, 4 << 20)
    srd(b, SRD_X, P_B2, 2048 * 2)
    srd(b, SRD_Y, P_WS, 4 << 20, WS_H)
    b(f"  s_cmp_ge_u32 s{S_W}, 4")
    b(f"  s_cbranch_scc1 g2_loader")
    lane_geom(b)
    b(f"  s_lshl_b32 s{S_TMP}, s{S_TILE_A}, 2")
    b(f"  s_add_u32 s{S_TMP}, s{S_TMP}, s{S_W}        ; dblk")
    b(f"  s_mul_i32 s{S_TMP+2}, s{S_TMP}, 229376")
    b(f"  s_mul_i32 s{S_TMP+3}, s19, {112*1024}       ; k half")
    b(f"  s_add_u32 s{S_TMP+2}, s{S_TMP+2}, s{S_TMP+3}")
    b(f"  v_lshlrev_b32 v10, 4, v7")
    b(f"  v_add_u32 v{V_P}, s{S_TMP+2}, v10")
    b(f"  s_lshl_b32 s{S_TMP+1}, s{S_TILE_B}, 7")
    b(f"  s_lshl_b32 s{S_TMP+3}, s19, 6")
    b(f"  s_add_u32 s{S_TMP+1}, s{S_TMP+1}, s{S_TMP+3}")
    b(f"  v_add_u32 v11, s{S_TMP+1}, v8              ; s0 + s'")
    b(f"  v_lshlrev_b32 v16, 1, v11")
    for sb in range(2):
        b(f"  buffer_load_ushort v{12+sb}, v16, s[{SRD_X}:{SRD_X+3}], 0 offen offset:{64*sb}")
    b(f"  v_lshlrev_b32 v17, 11, v11")
    b(f"  v_lshl_add_u32 v17, v9, 5, v17")
    b(f"  s_lshl_b32 s{S_TMP+2}, s{S_TMP}, 6")
    b(f"  v_add_u32 v28, s{S_TMP+2}, v17")
    HV = 192
    b(f"  v_lshl_add_u32 v20, v9, 3, v18")
    b(f"  v_lshlrev_b32 v20, 8, v20")
    b(f"  v_lshl_add_u32 v20, v18, 6, v20")
    b(f"  v_lshl_add_u32 v20, v19, 5, v20")
    b(f"  v_lshl_add_u32 v{V_T}, v22, 3, v20")
    b(f"  s_cmp_eq_u32 s19, 0")
    b(f"  s_cselect_b32 s{S_TMP+3}, 128, 0")
    b(f"  v_xor_b32 v{V_T}, s{S_TMP+3}, v{V_T}")
    for fb in range(1, 4):
        b(f"  v_xor_b32 v{V_T+fb}, {64*fb}, v{V_T}")
    b(f"  s_lshl_b32 s{S_TMP+1}, s{S_W}, 12")
    b(f"  s_lshl_b32 s{S_TMP+2}, s2, 14")
    b(f"  s_add_u32 s{S_TMP+2}, s{S_TMP+2}, s{S_TMP+1}")
    b(f"  v_add_u32 v29, s{S_TMP+2}, v10")
    b(f"  s_xor_b32 s{S_TMP+2}, s2, 1")
    b(f"  s_lshl_b32 s{S_TMP+2}, s{S_TMP+2}, 14")
    b(f"  s_add_u32 s{S_TMP+2}, s{S_TMP+2}, s{S_TMP+1}")
    b(f"  v_add_u32 v30, s{S_TMP+2}, v10")
    for i in range(64): b(f"  v_mov_b32 v{V_ACC+i}, 0")
    def w4():
        b(f"  s_lshl_b32 s18, s{S_TILE_A}, 1")
        b(f"  s_add_u32 s18, s18, s19")
        wait(b, 3, 14, "x4c", single_sreg=18)
        stamp(b, "x4 released")
        stamp(b, "c:g2 start")
    def hloads():
        for sb in range(2):
            b(f"  s_mov_b32 s{S_TMP+1}, {sb*65536}")
            b(f"  buffer_load_dwordx4 {vr(HV+8*sb,4)}, v28, s[{SRD_Y}:{SRD_Y+3}], s{S_TMP+1} offen{LF}")
            b(f"  buffer_load_dwordx4 {vr(HV+8*sb+4,4)}, v28, s[{SRD_Y}:{SRD_Y+3}], s{S_TMP+1} offen offset:16{LF}")
    srd_later = True
    def send_lines(k):
        T0 = 208 + 8 * k; a = V_ACC + 16 * k
        L = [f"  v_cvt_pk_bf16_f32 v{T0+i}, v{a+2*i}, v{a+2*i+1}" for i in range(8)]
        L += [f"  v_min_u32 v{T0+i}, 0xfffffffe, v{T0+i}" for i in range(8)]
        L += [f"  buffer_store_dwordx4 {vr(T0+4*p,4)}, v30, s[{SRD_X}:{SRD_X+3}], 0 offen offset:{(2*k+p)*1024}{SF}" for p in range(2)]
        return L
    def hloads2():
        hloads()
    if "skew" in OPT:
        def w4x():
            w4()
        def hl():
            hloads()
        b(f"  s_waitcnt vmcnt(0)")
        srd(b, SRD_X, P_WS, 4 << 20, WS_XCH)
        gemm_core(b, c, "g2", w4, hloads, {0: send_lines(0), 1: send_lines(1)})
    else:
        gemm_core(b, c, "g2", w4, hloads)
    stamp(b, "c:g2 end")
    stamp(b, "g2 main done")
    T = c.VT
    if "skew" not in OPT:
        srd(b, SRD_X, P_WS, 4 << 20, WS_XCH)
        b(f"  s_nop 9")
        for k in range(2):
            for line in send_lines(k): b(line)
    KEEP = V_ACC + 32
    RX = c.VPR
    b(f"  s_mov_b32 s11, 200000")
    b.label("g2x_poll")
    for k in range(4):
        b(f"  buffer_load_dwordx4 {vr(RX+4*k,4)}, v29, s[{SRD_X}:{SRD_X+3}], 0 offen offset:{k*1024} sc1")
    b(f"  s_waitcnt vmcnt(0)")
    sentinel_check(b, RX, "g2x", n=16)
    stamp(b, "g2 x landed")
    b(f"  s_mov_b32 s{S_TMP}, 0xffff0000")
    for blk in range(2):
        for i in range(8):
            a = KEEP + blk * 16 + 2 * i; r = RX + 8 * blk + i
            b(f"  v_lshlrev_b32 v16, 16, v{r}")
            b(f"  v_and_b32 v17, s{S_TMP}, v{r}")
            b(f"  v_add_f32 v{a}, v{a}, v16")
            b(f"  v_add_f32 v{a+1}, v{a+1}, v17")
    for sb in range(2):
        b(f"  v_lshlrev_b32 v{12+sb}, 16, v{12+sb}")
    OL = "outlds" in OPT
    if OL:
        OS = 4 * STAGE
        b(f"  v_mul_u32_u24 v14, 272, v8           ; s' * 272")
        b(f"  v_lshl_add_u32 v14, v9, 5, v14       ; + h*32")
        b(f"  s_lshl_b32 s{S_TMP+1}, s{S_W}, 6")
        b(f"  s_add_u32 s{S_TMP+1}, s{S_TMP+1}, {OS}")
        b(f"  v_add_u32 v14, s{S_TMP+1}, v14")
    for sb in range(2):
        for half in range(2):
            o = T + 4 * ((sb * 2 + half) % 2) if not OL else T + 16 + 4 * (sb * 2 + half)
            for dd in range(4):
                a = KEEP + sb * 16 + half * 8 + 2 * dd
                hv = HV + 8 * sb + 4 * half + dd
                t0 = T + 8 + 2 * dd if OL else T + 8 + 4 * dd
                b(f"  v_lshlrev_b32 v{t0}, 16, v{hv}")
                b(f"  v_and_b32 v{t0+1}, s{S_TMP}, v{hv}")
                b(f"  v_pk_add_f32 {vr(t0,2)}, {vr(t0,2)}, {vr(a,2)}")
                b(f"  v_add_f32 v{t0}, v{t0}, v{12+sb}")
                b(f"  v_add_f32 v{t0+1}, v{t0+1}, v{12+sb}")
                b(f"  v_cvt_pk_bf16_f32 v{o+dd}, v{t0}, v{t0+1}")
            if OL:
                b(f"  ds_write_b128 v14, {vr(o,4)} offset:{sb*32*272 + 16*half}")
            else:
                b(f"  s_mov_b32 s{S_TMP+1}, {sb*65536}")
                if "noout" not in OPT: b(f"  buffer_store_dwordx4 {vr(o,4)}, v28, s[{SRD_O}:{SRD_O+3}], s{S_TMP+1} offen offset:{16*half}{OF()}")
    if OL:
        b(f"  v_lshrrev_b32 v15, 4, v7")
        b(f"  s_lshl_b32 s{S_TMP+1}, s{S_W}, 4")
        b(f"  v_add_u32 v15, s{S_TMP+1}, v15          ; row (i = 0)")
        b(f"  v_and_b32 v16, 15, v7")
        b(f"  v_mul_u32_u24 v14, 272, v15")
        b(f"  v_lshl_add_u32 v14, v16, 4, v14")
        b(f"  v_add_u32 v14, {OS}, v14")
        b(f"  s_lshl_b32 s{S_TMP+1}, s{S_TILE_B}, 7")
        b(f"  s_lshl_b32 s{S_TMP+2}, s19, 6")
        b(f"  s_add_u32 s{S_TMP+1}, s{S_TMP+1}, s{S_TMP+2}")
        b(f"  v_add_u32 v15, s{S_TMP+1}, v15")
        b(f"  v_lshlrev_b32 v15, 11, v15")
        b(f"  v_lshl_add_u32 v15, v16, 4, v15")
        b(f"  s_lshl_b32 s{S_TMP+1}, s{S_TILE_A}, 8")
        b(f"  v_add_u32 v15, s{S_TMP+1}, v15")
        b(f"  s_waitcnt lgkmcnt(0)")
        b(f"  s_barrier")
        for i in range(4): b(f"  ds_read_b128 {vr(T+4*i,4)}, v14 offset:{i*4*272}")
        for i in range(4):
            b(f"  s_waitcnt lgkmcnt({3-i})")
            b(f"  s_mov_b32 s{S_TMP+1}, {i*4*2048}")
            b(f"  buffer_store_dwordx4 {vr(T+4*i,4)}, v15, s[{SRD_O}:{SRD_O+3}], s{S_TMP+1} offen{OF()}")
    stamp(b, "g2 stores issued")
    b(f"  s_branch g2_done")
    b.label("g2_loader")
    b(f"  s_barrier                      ; matches the barrier inside wait(x4)")
    loader_loop(b, c.NS, "g2", W2F())
    b.label("g2_done")

def g2(b):
    if SK(): return g2_sk(b)
    c = g2_cfg()
    b.label("g2_start")
    g2_ids(b)
    srd(b, SRD_P, P_WS, U_BYTES, WS_U)
    srd(b, SRD_O, P_OUT, 4 << 20)
    srd(b, SRD_X, P_B2, 2048 * 2)
    srd(b, SRD_Y, P_WS, 4 << 20, WS_H)
    b(f"  s_cmp_ge_u32 s{S_W}, 4")
    b(f"  s_cbranch_scc1 g2_loader")
    lane_geom(b)
    b(f"  s_lshl_b32 s{S_TMP}, s{S_TILE_A}, 2")
    b(f"  s_add_u32 s{S_TMP}, s{S_TMP}, s{S_W}        ; dblk")
    b(f"  s_mul_i32 s{S_TMP+2}, s{S_TMP}, 229376")
    b(f"  v_lshlrev_b32 v10, 4, v7")
    b(f"  v_add_u32 v{V_P}, s{S_TMP+2}, v10")
    b(f"  s_lshl_b32 s{S_TMP+1}, s{S_TILE_B}, 6       ; s0")
    b(f"  v_add_u32 v11, s{S_TMP+1}, v8              ; s0 + s'")
    b(f"  v_lshlrev_b32 v16, 1, v11")
    for sb in range(2):
        b(f"  buffer_load_ushort v{12+sb}, v16, s[{SRD_X}:{SRD_X+3}], 0 offen offset:{64*sb}")
    b(f"  v_lshlrev_b32 v17, 11, v11")
    b(f"  v_lshl_add_u32 v17, v9, 5, v17")
    b(f"  s_lshl_b32 s{S_TMP+2}, s{S_TMP}, 6")
    b(f"  v_add_u32 v28, s{S_TMP+2}, v17")
    HV = 160
    b(f"  v_lshl_add_u32 v20, v9, 3, v18            ; row")
    b(f"  v_bfe_u32 v21, v18, 1, 1")
    b(f"  v_lshlrev_b32 v20, 7, v20")
    b(f"  v_lshl_add_u32 v20, v21, 6, v20")
    b(f"  v_lshl_add_u32 v20, v19, 5, v20")
    b(f"  v_lshl_add_u32 v{V_T}, v22, 3, v20")
    b(f"  v_xor_b32 v{V_T+1}, 64, v{V_T}")
    for i in range(32): b(f"  v_mov_b32 v{V_ACC+i}, 0")
    def w4():
        wait(b, 3, 28, "x4c", single_sreg=S_TILE_A)
        stamp(b, "x4 released")
        stamp(b, "c:g2 start")
    def hloads():
        for sb in range(2):
            b(f"  s_mov_b32 s{S_TMP+1}, {sb*65536}")
            b(f"  buffer_load_dwordx4 {vr(HV+8*sb,4)}, v28, s[{SRD_Y}:{SRD_Y+3}], s{S_TMP+1} offen{LF}")
            b(f"  buffer_load_dwordx4 {vr(HV+8*sb+4,4)}, v28, s[{SRD_Y}:{SRD_Y+3}], s{S_TMP+1} offen offset:16{LF}")
    gemm_core(b, c, "g2", w4, hloads)
    stamp(b, "c:g2 end")
    stamp(b, "g2 main done")
    T = c.VT
    b(f"  s_mov_b32 s{S_TMP}, 0xffff0000")
    for sb in range(2):
        b(f"  v_lshlrev_b32 v{12+sb}, 16, v{12+sb}")
    b(f"  s_nop 9")
    for sb in range(2):
        for half in range(2):
            o = T + 4 * ((sb * 2 + half) % 2)
            for dd in range(4):
                a = V_ACC + sb * 16 + half * 8 + 2 * dd
                hv = HV + 8 * sb + 4 * half + dd
                t0 = T + 8 + 4 * dd
                b(f"  v_cvt_pk_bf16_f32 v{t0}, v{a}, v{a+1}")
                b(f"  v_and_b32 v{t0+1}, s{S_TMP}, v{t0}")
                b(f"  v_lshlrev_b32 v{t0}, 16, v{t0}")
                b(f"  v_add_f32 v{t0}, v{t0}, v{12+sb}")
                b(f"  v_add_f32 v{t0+1}, v{t0+1}, v{12+sb}")
                b(f"  v_cvt_pk_bf16_f32 v{t0}, v{t0}, v{t0+1}")
                b(f"  v_and_b32 v{t0+1}, s{S_TMP}, v{t0}")
                b(f"  v_lshlrev_b32 v{t0}, 16, v{t0}")
                b(f"  v_lshlrev_b32 v{t0+2}, 16, v{hv}")
                b(f"  v_and_b32 v{t0+3}, s{S_TMP}, v{hv}")
                b(f"  v_add_f32 v{t0}, v{t0}, v{t0+2}")
                b(f"  v_add_f32 v{t0+1}, v{t0+1}, v{t0+3}")
                b(f"  v_cvt_pk_bf16_f32 v{o+dd}, v{t0}, v{t0+1}")
            b(f"  s_mov_b32 s{S_TMP+1}, {sb*65536}")
            b(f"  buffer_store_dwordx4 {vr(o,4)}, v28, s[{SRD_O}:{SRD_O+3}], s{S_TMP+1} offen offset:{16*half}")
    stamp(b, "g2 stores issued")
    b(f"  s_branch g2_done")
    b.label("g2_loader")
    b(f"  s_barrier                      ; matches the barrier inside wait(x4)")
    loader_loop(b, c.NS, "g2", W2F())
    b.label("g2_done")

def build():
    NAME = "sequential_preLN__spectral_gfnet__mixer_token_mlp__prompt"
    hdr = open(f"cdna_kernels/{NAME}.s.ref").read().split("; Override launch")[0]
    K = NAME + "_kernel"
    b = B()
    b(hdr.rstrip("\n"))
    b(f"; @launch grid=(256,1,1) block=(512,1,1) lds={LDS_TOTAL}")
    b('.amdgcn_target "amdgcn-amd-amdhsa--gfx950"\n.text')
    b(f".globl {K}\n.p2align 8\n.type {K},@function\n{K}:")
    b(f"  s_cmp_ge_u32 s2, 256\n  s_cbranch_scc1 k_exit")
    if "stamp" in OPT: b("  v_mov_b32 v231, 0")
    stamp(b, "entry")
    b(f"  s_load_dwordx4 s[{P_X}:{P_X+3}], s[0:1], 0        ; x, w_r")
    b(f"  s_load_dwordx2 s[{P_WI}:{P_WI+1}], s[0:1], 16")
    b(f"  s_load_dwordx2 s[{P_W1}:{P_W1+1}], s[0:1], 32")
    b(f"  s_load_dwordx4 s[{P_B1}:{P_B1+3}], s[0:1], 40     ; b1, w2")
    b(f"  s_load_dwordx4 s[{P_B2}:{P_B2+3}], s[0:1], 56     ; b2, out")
    b(f"  s_load_dwordx4 s[{P_DBG}:{P_DBG+3}], s[0:1], 72")
    b(f"  v_lshrrev_b32 v6, 6, v0")
    b(f"  v_and_b32 v7, 63, v0        ; lane")
    b(f"  v_readfirstlane_b32 s{S_W}, v6")
    b(f"  v_and_b32 v8, 15, v7          ; c")
    b(f"  v_lshrrev_b32 v9, 4, v7       ; g")
    b(f"  s_waitcnt lgkmcnt(0)")
    srd(b, SRD_CNT, P_WS, 65536, WS_CNT)
    p1(b)
    p2_setup(b)
    wait(b, 0, 16, "x1c")
    stamp(b, "x1 released")
    p2_main(b)
    p3_setup(b)
    if SENT2(): b("  s_barrier")
    else: wait(b, 1, 16, "x2c")
    stamp(b, "x2 released")
    p3_main(b)
    g1(b)
    g2(b)
    b(f"  s_waitcnt vmcnt(0)")
    stamp(b, "end")
    stamp_flush(b)
    b("k_exit:\n  s_endpgm")
    b(kd(K, 240, sgpr=102))
    return b.text()

if __name__ == "__main__":
    out = sys.argv[1]
    OPT.update(sys.argv[2:])
    if "lfplain" not in OPT: LF = " sc1"
    for o in sys.argv[2:]:
        if o.startswith("pfn="): PFN[:] = [int(c) for c in o[4:].split(",")]
    gemm.OPT.update(sys.argv[2:])
    t = build()
    open(out, "w").write(t)
    rep = check_text(t)
    print("\n".join(rep) if rep else "no hazards found", "| stamps:", nstamp[0])
```

```python
import sys
from asmlib import *
import gemm, fft
from gemm import (srd, f2u, WS_X1, WS_X2, WS_H, WS_LN2, WS_U, U_BYTES, S_W, R, STAGE, PR, DQ,
                  V_P, V_T, V_ACC, S_POFF, S_IT, S_DELTA, SRD_P, SRD_T, SRD_O, SRD_X, SRD_Y, S_TILE_A, S_TILE_B, S_TMP,
                  g1_cfg, g2_cfg, lane_geom)
from fft import sincos, wave_reduce, ln_finish, layernorm16, cmul_pk, gmat, MF32, MF16

OPT = set()
N7 = [0]
WPN = [0]
PFN = [0, 4, 0, 4]
WS_CNT = 30 << 20
WS_STAMP = 31 << 20
WS_WP = 32 << 20
WS_XCH = 24 << 20
W1B = 2048 * 3584 * 2
WB = 2048 * 1026

P_X, P_WR, P_WI, P_W1, P_B1, P_W2, P_B2, P_OUT, P_DBG, P_WS = 64, 66, 68, 70, 72, 74, 76, 78, 80, 82
SRD_CNT = 12
S_T = 46
SRD_A, SRD_B, SRD_C, SRD_D = 24, 28, 32, 36
SRD_PF = 56
S_STAMP = 84
SF = " sc1"
LF = ""

L1_M1, L1_M2, L1_TW, L1_EX = 0, 4096, 8192, 16384
L2_F = 32768; L2_X = L2_F + 2048; L2_W = L2_X + 16 * 1040
L3_M3 = 98304; L3_M4 = L3_M3 + 4096; L3_TW = L3_M3 + 8192; L3_EX = L3_M3 + 16384
L3_LN = L3_EX + 16384; L3_RS = 2624
LDS_TOTAL = L3_LN + 8 * L3_RS
assert LDS_TOTAL <= 163840

STAMPS = ["entry", "p1 x landed", "p1 stores issued", "p1 arrived", "x1 released", "p2 x landed", "p2 stores issued",
          "x2 released", "p3 x2 landed", "p3 stores issued", "x3 released", "g1 main done", "g1 stores issued", "x4 released",
          "g2 main done", "g2 stores issued", "end", "x1 drained", "x2 drained", "x3 drained", "x4 drained", "p1 tables done", "p1 ln done", "p1 fft done", "p3 ifft done", "p3 ln done", "c:g1 start", "c:g1 end", "c:g2 start", "c:g2 end", "g2 x landed", "p2 w landed"]
nstamp = [len(STAMPS)]
SENT = lambda: "bar" not in OPT
SENT2 = lambda: "bar" not in OPT or "sent2" in OPT
SK = lambda: "nosk" not in OPT
W1F = lambda: " nt" if "ntw1" in OPT else ""
W2F = lambda: " nt" if "ntw2" in OPT else ""
XF = lambda: " nt" if ("ntx" in OPT or "ntx1" in OPT) else ""
OF = lambda: " sc1" if "outsc1" in OPT else (" nt" if "outnt" in OPT else "")
WF = lambda: " nt" if ("ntx" in OPT or "ntw" in OPT) else ""
L_XS = 69632
def stamp(b, name):
    if "stamp" not in OPT: return
    i = STAMPS.index(name)
    op = "s_memtime" if name.startswith("c:") else "s_memrealtime"
    b(f"  {op} s[{S_STAMP}:{S_STAMP+1}]   ; stamp {i}: {name}")
    b(f"  s_waitcnt lgkmcnt(0)")
    b(f"  v_writelane_b32 v231, s{S_STAMP}, {i}")

def stamp_flush(b):
    if "stamp" not in OPT: return
    if "dbgmax" in OPT:
        SEL = [1, 23, 2, 17, 3, 4, 5, 6, 18, 7, 8, 9, 19, 10]
        srd(b, 24, P_DBG, 256)
        b(f"  v_readlane_b32 s46, v231, 0")
        b(f"  s_sub_u32 s47, 0, s46")
        b(f"  v_mov_b32 v3, 0")
        b(f"  v_writelane_b32 v3, s47, 0")
        b(f"  v_writelane_b32 v3, s46, 15")
        for i, st in enumerate(SEL):
            b(f"  v_readlane_b32 s46, v231, {st}")
            b(f"  s_nop 3")
            b(f"  v_writelane_b32 v3, s46, {i+1}")
        b(f"  v_lshlrev_b32 v2, 2, v7")
        b(f"  s_mov_b64 s[48:49], exec")
        b(f"  s_mov_b64 exec, 0xffff")
        b(f"  buffer_atomic_umax v3, v2, s[24:27], 0 offen sc1")
        b(f"  s_mov_b64 exec, s[48:49]")
        return
    if "dbgtime" in OPT:
        b(f"  s_cmp_lg_u32 s2, 100")
        b(f"  s_cbranch_scc1 dbg_skip")
        b(f"  s_cmp_lg_u32 s{S_W}, 0")
        b(f"  s_cbranch_scc1 dbg_skip")
        srd(b, 24, P_DBG, 256)
        b(f"  v_readlane_b32 s46, v231, 0")
        b(f"  s_nop 1")
        b(f"  v_subrev_u32 v3, s46, v231")
        b(f"  v_lshlrev_b32 v2, 2, v7")
        b(f"  v_subrev_u32 v2, 4, v2")
        b(f"  s_mov_b64 s[48:49], exec")
        b(f"  s_mov_b64 exec, 0x1fffe")
        b(f"  buffer_store_dword v3, v2, s[24:27], 0 offen")
        b(f"  s_mov_b64 exec, s[48:49]")
        b.label("dbg_skip")
        return
    srd(b, 24, P_WS, 1 << 20, WS_STAMP)
    b(f"  s_lshl_b32 s46, s2, 3")
    b(f"  s_add_u32 s46, s46, s{S_W}")
    b(f"  s_lshl_b32 s46, s46, 7            ; (wg*8+wave)*128")
    b(f"  v_lshlrev_b32 v2, 2, v7")
    b(f"  s_mov_b64 s[48:49], exec")
    b(f"  s_mov_b64 exec, 0xffffffff")
    b(f"  buffer_store_dword v231, v2, s[24:27], s46 offen")
    b(f"  s_mov_b64 exec, s[48:49]")

def arrive(b, bar, shard_sreg, first=False, label="", drained=False):
    if not drained: b(f"  s_waitcnt vmcnt(0)")
    stamp(b, f"x{bar+1} drained")
    b(f"  s_barrier")
    b(f"  s_cmp_lg_u32 s{S_W}, 0")
    b(f"  s_cbranch_scc1 {label}_arr_skip")
    if first:
        b(f"  s_mov_b32 s11, 100000")
        b.label(f"{label}_rdy")
        b(f"  v_cmp_ne_u32 vcc, 0, v27")
        b(f"  s_nop 1")
        b(f"  s_cmp_eq_u64 vcc, exec")
        b(f"  s_cbranch_scc1 {label}_rdy_ok")
        b(f"  buffer_load_dword v27, v26, s[{SRD_PF}:{SRD_PF+3}], 0 offen sc1")
        b(f"  s_waitcnt vmcnt(0)")
        b(f"  s_sub_u32 s11, s11, 1")
        b(f"  s_cmp_lg_u32 s11, 0")
        b(f"  s_cbranch_scc1 {label}_rdy")
        b.label(f"{label}_rdy_ok")
    b(f"  s_lshl_b32 s10, s{shard_sreg}, 8")
    b(f"  s_add_u32 s10, s10, {bar*4096}")
    b(f"  v_mov_b32 v228, s10")
    b(f"  v_mov_b32 v229, 1")
    b(f"  s_mov_b64 s[16:17], exec")
    b(f"  s_mov_b64 exec, 1")
    b(f"  buffer_atomic_add v229, v228, s[{SRD_CNT}:{SRD_CNT+3}], 0 offen sc1")
    b(f"  s_mov_b64 exec, s[16:17]")
    b.label(f"{label}_arr_skip")

def wait(b, bar, target, label, single_sreg=None):
    b(f"  s_cmp_lg_u32 s{S_W}, 0")
    b(f"  s_cbranch_scc1 {label}_w_skip")
    if single_sreg is None:
        b(f"  v_and_b32 v228, 15, v7")
        b(f"  v_lshlrev_b32 v228, 8, v228")
        b(f"  v_add_u32 v228, {bar*4096}, v228")
    else:
        b(f"  s_lshl_b32 s10, s{single_sreg}, 8")
        b(f"  s_add_u32 s10, s10, {bar*4096}")
        b(f"  v_mov_b32 v228, s10")
    b(f"  s_mov_b32 s11, 200000")
    if "pp" in OPT:
        b(f"  buffer_load_dword v229, v228, s[{SRD_CNT}:{SRD_CNT+3}], 0 offen sc1")
        b(f"  s_nop 15")
        b(f"  s_nop 15")
        b(f"  buffer_load_dword v226, v228, s[{SRD_CNT}:{SRD_CNT+3}], 0 offen sc1")
        b.label(f"{label}_poll")
        for r in (229, 226):
            b(f"  s_waitcnt vmcnt(1)")
            b(f"  v_cmp_le_u32 vcc, {target}, v{r}")
            b(f"  s_nop 1")
            b(f"  s_cmp_eq_u64 vcc, exec")
            b(f"  s_cbranch_scc1 {label}_w_skip")
            b(f"  buffer_load_dword v{r}, v228, s[{SRD_CNT}:{SRD_CNT+3}], 0 offen sc1")
        b(f"  s_sub_u32 s11, s11, 1")
        b(f"  s_cmp_lg_u32 s11, 0")
        b(f"  s_cbranch_scc1 {label}_poll")
    else:
        b.label(f"{label}_poll")
        b(f"  buffer_load_dword v229, v228, s[{SRD_CNT}:{SRD_CNT+3}], 0 offen sc1")
        b(f"  s_waitcnt vmcnt(0)")
        b(f"  v_cmp_le_u32 vcc, {target}, v229")
        b(f"  s_nop 1")
        b(f"  s_cmp_eq_u64 vcc, exec")
        b(f"  s_cbranch_scc1 {label}_w_skip")
        b(f"  s_sub_u32 s11, s11, 1")
        b(f"  s_cmp_lg_u32 s11, 0")
        b(f"  s_cbranch_scc1 {label}_poll")
    b.label(f"{label}_w_skip")
    b(f"  s_barrier")

def prefetch(b, ptr_pair, nbytes, start, length, who_scale, who_sreg, vaddr, vdst, stmp, paced=False):
    chunk = -(-length // who_scale)
    n_per_wave = -(-chunk // (512 * 128))
    stride = -(-chunk // (512 * n_per_wave))
    stride = (stride + 3) // 4 * 4
    per_instr = 64 * stride
    srd(b, SRD_PF, ptr_pair, nbytes)
    b(f"  s_mul_i32 s{stmp}, s{who_sreg}, {chunk}")
    b(f"  s_mul_i32 s{stmp+1}, s{S_W}, {n_per_wave*per_instr}")
    b(f"  s_add_u32 s{stmp}, s{stmp}, s{stmp+1}")
    if start: b(f"  s_add_u32 s{stmp}, s{stmp}, {start}")
    b(f"  v_mul_u32_u24 v{vaddr}, {stride}, v7")
    for i in range(n_per_wave):
        b(f"  buffer_load_dword v{vdst}, v{vaddr}, s[{SRD_PF}:{SRD_PF+3}], s{stmp} offen")
        if i + 1 < n_per_wave: b(f"  s_add_u32 s{stmp}, s{stmp}, {per_instr}")
        if paced: b(f"  s_waitcnt vmcnt(0)")
    return n_per_wave

V_DUMMY = 232
def pf_wide(b, ptr_pair, nbytes, s_base, n, wave_lo, wave_hi, label):
    b(f"  s_cmp_lt_u32 s{S_W}, {wave_lo}")
    b(f"  s_cbranch_scc1 {label}")
    if wave_hi < 8:
        b(f"  s_cmp_ge_u32 s{S_W}, {wave_hi}")
        b(f"  s_cbranch_scc1 {label}")
    srd(b, SRD_PF, ptr_pair, nbytes)
    b(f"  s_sub_u32 s{S_T+9}, s{S_W}, {wave_lo}")
    b(f"  s_mul_i32 s{S_T+9}, s{S_T+9}, {n*1024}")
    b(f"  s_add_u32 s{S_T+9}, s{S_T+9}, s{s_base}")
    b(f"  v_lshlrev_b32 v29, 4, v7")
    for i in range(n):
        if i and i % 4 == 0: b(f"  s_add_u32 s{S_T+9}, s{S_T+9}, 4096")
        b(f"  buffer_load_dwordx4 {vr(V_DUMMY,4)}, v29, s[{SRD_PF}:{SRD_PF+3}], s{S_T+9} offen offset:{(i%4)*1024}")
    b.label(label)

def w1_share_base(b, sreg, part):
    b(f"  s_mul_i32 s{sreg}, s2, {W1B // 256}")
    if part: b(f"  s_add_u32 s{sreg}, s{sreg}, {part}")

def w1_first_half_base(b, sreg, part):
    b(f"  s_and_b32 s{sreg}, s2, 7")
    b(f"  s_mul_i32 s{sreg}, s{sreg}, {256*7168}")
    b(f"  s_lshr_b32 s{S_T+9}, s2, 3")
    b(f"  s_mul_i32 s{S_T+9}, s{S_T+9}, {4*7168}")
    b(f"  s_add_u32 s{sreg}, s{sreg}, s{S_T+9}")
    if part: b(f"  s_add_u32 s{sreg}, s{sreg}, {part}")

def p1_tables(b):
    M1, M2, TW = L1_M1, L1_M2, L1_TW
    b(f"  v_and_b32 v10, 255, v0            ; e")
    b(f"  v_lshrrev_b32 v11, 8, v0          ; u")
    b(f"  v_bfe_u32 v12, v10, 2, 4          ; lane&15")
    b(f"  v_lshl_add_u32 v12, v11, 4, v12   ; k1")
    b(f"  v_lshrrev_b32 v13, 6, v10         ; g")
    b(f"  v_and_b32 v14, 3, v10")
    b(f"  v_lshlrev_b32 v13, 3, v13")
    b(f"  v_lshl_add_u32 v13, v14, 1, v13   ; a0 = 8g + 2i")
    b(f"  v_mul_u32_u24 v15, v13, v12       ; a0*k1")
    b(f"  v_add_u32 v16, v15, v12           ; (a0+1)*k1")
    sincos(b, 17, 18, 15, 5, 21)
    sincos(b, 19, 20, 16, 5, 21)
    b(f"  v_lshlrev_b32 v22, 2, v10")
    b(f"  v_lshl_add_u32 v22, v11, 11, v22  ; u*2048 + e*4")
    b(f"  v_cvt_pk_bf16_f32 v23, v17, v19")
    b(f"  v_cvt_pk_bf16_f32 v24, -v18, -v20")
    b(f"  ds_write_b32 v22, v23 offset:{M1}")
    b(f"  ds_write_b32 v22, v24 offset:{M1+1024}")
    sincos(b, 17, 18, 15, 10, 21)
    sincos(b, 19, 20, 16, 10, 21)
    b(f"  ds_write_b32 v22, v17 offset:{TW}")
    b(f"  ds_write_b32 v22, v18 offset:{TW+1024}")
    b(f"  ds_write_b32 v22, v19 offset:{TW+4096}")
    b(f"  ds_write_b32 v22, v20 offset:{TW+4096+1024}")
    b(f"  v_bfe_u32 v12, v10, 2, 4          ; k2")
    b(f"  v_mul_u32_u24 v15, v13, v12")
    b(f"  v_add_u32 v16, v15, v12")
    sincos(b, 17, 18, 15, 5, 21)
    sincos(b, 19, 20, 16, 5, 21)
    b(f"  v_lshlrev_b32 v22, 2, v10")
    b(f"  v_cvt_pk_bf16_f32 v23, v17, v19")
    b(f"  v_cvt_pk_bf16_f32 v24, v18, v20")
    b(f"  v_cvt_pk_bf16_f32 v25, -v18, -v20")
    b(f"  ds_write_b32 v22, v23 offset:{M2}")
    b(f"  ds_write_b32 v22, v24 offset:{M2+1024}")
    b(f"  ds_write_b32 v22, v25 offset:{M2+2048}")

def ln_fast(b, X, T, S0, alt):
    b(f"  v_readlane_b32 s{S0}, v{X}, 0              ; pivot")
    b(f"  s_nop 1")
    for i in range(0, 16, 2):
        b(f"  v_pk_add_f32 {vr(X+i,2)}, {vr(X+i,2)}, s[{S0}:{S0+1}] op_sel_hi:[1,0] neg_lo:[0,1] neg_hi:[0,1]")
    b(f"  v_pk_add_f32 {vr(T,2)}, {vr(X,2)}, {vr(X+2,2)}")
    b(f"  v_pk_add_f32 {vr(T+2,2)}, {vr(X+8,2)}, {vr(X+10,2)}")
    b(f"  v_pk_mul_f32 {vr(T+4,2)}, {vr(X,2)}, {vr(X,2)}")
    b(f"  v_pk_add_f32 {vr(T,2)}, {vr(T,2)}, {vr(X+4,2)}")
    b(f"  v_pk_add_f32 {vr(T+2,2)}, {vr(T+2,2)}, {vr(X+12,2)}")
    b(f"  v_pk_fma_f32 {vr(T+4,2)}, {vr(X+2,2)}, {vr(X+2,2)}, {vr(T+4,2)}")
    b(f"  v_pk_add_f32 {vr(T,2)}, {vr(T,2)}, {vr(X+6,2)}")
    b(f"  v_pk_add_f32 {vr(T+2,2)}, {vr(T+2,2)}, {vr(X+14,2)}")
    for i in range(4, 16, 2):
        b(f"  v_pk_fma_f32 {vr(T+4,2)}, {vr(X+i,2)}, {vr(X+i,2)}, {vr(T+4,2)}")
    b(f"  v_add_f32 v{T}, v{T}, v{T+1}")
    b(f"  v_add_f32 v{T+2}, v{T+2}, v{T+3}")
    if not alt: b(f"  v_add_f32 v{T}, v{T}, v{T+2}")
    b(f"  v_add_f32 v{T+4}, v{T+4}, v{T+5}           ; squares")
    if alt:
        wave_reduce(b, [T, T+2, T+4])
        b(f"  v_sub_f32 v{T+1}, v{T}, v{T+2}             ; E - O")
        b(f"  v_add_f32 v{T}, v{T}, v{T+2}")
        b(f"  s_nop 0")
        b(f"  v_readlane_b32 s{S0+2}, v{T}, 63")
        b(f"  v_readlane_b32 s{S0+3}, v{T+4}, 63")
        b(f"  v_readlane_b32 s{S0+4}, v{T+1}, 63")
    else:
        wave_reduce(b, [T, T+4])
        b(f"  s_nop 0")
        b(f"  v_readlane_b32 s{S0+2}, v{T}, 63")
        b(f"  v_readlane_b32 s{S0+3}, v{T+4}, 63")
    b(f"  s_nop 0")
    b(f"  v_mov_b32 v{T}, {hex(f2u(1.0/1024))}")
    b(f"  v_mul_f32 v{T+1}, s{S0+2}, v{T}            ; mean of the shifted values")
    b(f"  v_mul_f32 v{T+2}, s{S0+3}, v{T}            ; mean of their squares")
    b(f"  v_fma_f32 v{T+2}, -v{T+1}, v{T+1}, v{T+2}  ; variance")
    b(f"  v_max_f32 v{T+2}, 0, v{T+2}")
    b(f"  v_add_f32 v{T+2}, {hex(f2u(1e-5))}, v{T+2}")
    b(f"  v_rsq_f32 v{T+4}, v{T+2}")
    b(f"  s_nop 0")
    b(f"  v_mul_f32 v{T+8}, -v{T+1}, v{T+4}          ; -mean*rstd")
    if alt: b(f"  v_mul_f32 v{T+6}, s{S0+4}, v{T+4}")
    for i in range(0, 16, 2):
        b(f"  v_pk_fma_f32 {vr(X+i,2)}, {vr(X+i,2)}, {vr(T+4,2)}, {vr(T+8,2)} op_sel_hi:[1,0,0]")

def x1_store_addr(b):
    b(f"  v_lshlrev_b32 v5, 15, v9")
    b(f"  v_lshl_add_u32 v5, v8, 2, v5")
    b(f"  s_and_b32 s{S_T+6}, s2, 15")
    b(f"  s_lshl_b32 s{S_T+6}, s{S_T+6}, 4")
    b(f"  s_lshr_b32 s{S_T+7}, s2, 4")
    b(f"  s_add_u32 s{S_T+6}, s{S_T+6}, s{S_T+7}")
    b(f"  s_lshl_b32 s{S_T+6}, s{S_T+6}, 6       ; pos*64")
    b(f"  s_lshl_b32 s{S_T+7}, s{S_W}, 19        ; 4w*131072")
    b(f"  s_add_u32 s44, s{S_T+6}, s{S_T+7}")

def w_early(b):
    srd(b, SRD_C, P_WR, WB)
    srd(b, SRD_D, P_WI, WB)
    b(f"  s_and_b32 s{S_T+2}, s2, 7              ; j1")
    b(f"  v_and_b32 v215, 1, v0                ; half")
    b(f"  v_bfe_u32 v11, v0, 5, 4              ; c")
    b(f"  v_bfe_u32 v12, v0, 1, 4              ; e")
    b(f"  v_lshl_add_u32 v13, v12, 4, v11      ; j2")
    b(f"  v_lshlrev_b32 v13, 3, v13")
    b(f"  v_add_u32 v13, s{S_T+2}, v13         ; j")
    b(f"  v_mul_u32_u24 v214, 1026, v13")
    b(f"  v_lshl_add_u32 v14, v215, 4, v214")
    b(f"  s_lshr_b32 s{S_T+3}, s2, 3           ; kb")
    b(f"  s_lshl_b32 s{S_T+3}, s{S_T+3}, 5")
    b(f"  buffer_load_dwordx4 {vr(WE,4)}, v14, s[{SRD_C}:{SRD_C+3}], s{S_T+3} offen{WF()}")
    b(f"  buffer_load_dwordx4 {vr(WE+4,4)}, v14, s[{SRD_D}:{SRD_D+3}], s{S_T+3} offen{WF()}")

def p1(b):
    srd(b, SRD_A, P_X, 4 << 20)
    srd(b, SRD_B, P_WS, 4 << 20, WS_X1)
    b(f"  s_lshl_b32 s{S_T}, s{S_W}, 8")
    b(f"  s_add_u32 s{S_T}, s{S_T}, s2          ; s")
    b(f"  s_lshl_b32 s{S_T+1}, s{S_T}, 11")
    b(f"  v_lshlrev_b32 v1, 9, v9")
    b(f"  v_lshl_add_u32 v1, v8, 2, v1")
    XD = 32
    b(f"  s_cmp_ge_u32 s2, 16")
    b(f"  s_cbranch_scc1 p1_noreset")
    b(f"  s_cmp_lg_u32 s{S_W}, 0")
    b(f"  s_cbranch_scc1 p1_noreset")
    b(f"  s_lshl_b32 s{S_T+2}, s2, 8")
    b(f"  v_lshlrev_b32 v2, 12, v7")
    b(f"  v_add_u32 v2, s{S_T+2}, v2")
    b(f"  v_mov_b32 v3, 0")
    b(f"  s_mov_b64 s[48:49], exec")
    b(f"  s_mov_b64 exec, 15")
    b(f"  buffer_store_dword v3, v2, s[{SRD_CNT}:{SRD_CNT+3}], 0 offen sc1")
    b(f"  s_mov_b64 exec, s[48:49]")
    b.label("p1_noreset")
    for i in range(8):
        b(f"  buffer_load_dword v{XD+i}, v1, s[{SRD_A}:{SRD_A+3}], s{S_T+1} offen offset:{64*i}{XF()}")
    NCLR = 0
    NWE = 0
    x1_store_addr(b)
    if SENT():
        b(f"  v_mov_b32 v60, -1")
        b(f"  v_mov_b32 v61, -1")
        b(f"  v_mov_b32 v62, -1")
        b(f"  v_mov_b32 v63, -1")
        b(f"  v_bfe_u32 v2, v7, 2, 3              ; j1")
        b(f"  v_lshrrev_b32 v3, 5, v7             ; i (0,1)")
        b(f"  v_lshlrev_b32 v2, 14, v2")
        b(f"  v_lshl_add_u32 v2, v3, 17, v2")
        b(f"  v_and_b32 v3, 3, v7")
        b(f"  v_lshl_add_u32 v2, v3, 4, v2")
        b(f"  buffer_store_dwordx4 v[60:63], v2, s[{SRD_B}:{SRD_B+3}], s44 offen{SF}")
        b(f"  s_add_u32 s{S_T+7}, s44, {2*131072}")
        b(f"  buffer_store_dwordx4 v[60:63], v2, s[{SRD_B}:{SRD_B+3}], s{S_T+7} offen{SF}")
        NCLR = 2
    if "tlbw" in OPT:
        b(f"  s_cmp_lg_u32 s{S_W}, 7")
        b(f"  s_cbranch_scc1 p1_notlb")
        sh = 20 if "tlb1m" in OPT else (19 if "tlb512k" in OPT else 21)
        b(f"  v_lshlrev_b32 v2, {sh}, v7")
        lst = [(P_WS, 36 << 20), (P_W1, W1B), (P_W2, W1B), (P_WR, WB), (P_WI, WB), (P_OUT, 4 << 20), (P_B1, 7168), (P_B2, 4096)]
        for ptr, size in lst:
            srd(b, SRD_PF, ptr, size)
            b(f"  s_mov_b64 s[16:17], exec")
            n = min(64, -(-size // (1 << sh)))
            b(f"  s_mov_b64 exec, {hex((1 << n) - 1)}")
            b(f"  buffer_load_dword v230, v2, s[{SRD_PF}:{SRD_PF+3}], 0 offen sc1")
            b(f"  s_mov_b64 exec, s[16:17]")
        if "codepf" in OPT:
            b(f"  s_cmp_ge_u32 s2, 16")
            b(f"  s_cbranch_scc1 p1_nocode")
            b(f"  s_getpc_b64 s[{S_T+8}:{S_T+9}]")
            b.label("p1_pc")
            b(f"  v_lshlrev_b32 v29, 7, v7")
            b(f"  s_mov_b32 s{S_T+7}, k_exit - p1_pc")
            for i in range(5):
                b(f"  v_min_u32 v28, s{S_T+7}, v29")
                b(f"  global_load_dword v230, v28, s[{S_T+8}:{S_T+9}]")
                b(f"  v_add_u32 v29, 8192, v29")
            b.label("p1_nocode")
        if "pf7" in OPT:
            n7 = 0
            if "wpf" in OPT:
                b(f"  s_mul_i32 s{S_T+8}, s2, 8208")
                b(f"  v_lshlrev_b32 v29, 4, v7")
                for ptr in (P_WR, P_WI):
                    srd(b, SRD_PF, ptr, WB)
                    b(f"  s_mov_b32 s{S_T+9}, s{S_T+8}")
                    for i in range(9):
                        if i and i % 4 == 0: b(f"  s_add_u32 s{S_T+9}, s{S_T+9}, 4096")
                        b(f"  buffer_load_dwordx4 {vr(V_DUMMY,4)}, v29, s[{SRD_PF}:{SRD_PF+3}], s{S_T+9} offen offset:{(i%4)*1024}")
                        n7 += 1
            if PFN[0]:
                w1_share_base(b, S_T + 9, 0)
                b(f"  v_lshlrev_b32 v29, 4, v7")
                srd(b, SRD_PF, P_W1, W1B)
                for i in range(4 * PFN[0]):
                    if i and i % 4 == 0: b(f"  s_add_u32 s{S_T+9}, s{S_T+9}, 4096")
                    b(f"  buffer_load_dwordx4 {vr(V_DUMMY,4)}, v29, s[{SRD_PF}:{SRD_PF+3}], s{S_T+9} offen offset:{(i%4)*1024}")
                    n7 += 1
            N7[0] = n7
        b.label("p1_notlb")
    if "wpack" in OPT:
        srd(b, SRD_C, P_WR, WB)
        srd(b, SRD_D, P_WI, WB)
        b(f"  s_lshl_b32 s{S_T+2}, s2, 3")
        b(f"  s_add_u32 s{S_T+2}, s{S_T+2}, s{S_W}")
        b(f"  s_mul_i32 s45, s{S_T+2}, 1026")
        b(f"  v_lshlrev_b32 v14, 4, v7")
        b(f"  buffer_load_dwordx4 {vr(WE,4)}, v14, s[{SRD_C}:{SRD_C+3}], s45 offen")
        b(f"  buffer_load_dwordx4 {vr(WE+4,4)}, v14, s[{SRD_D}:{SRD_D+3}], s45 offen")
        b(f"  v_mov_b32 v15, 1024")
        b(f"  buffer_load_ushort v212, v15, s[{SRD_C}:{SRD_C+3}], s45 offen")
        b(f"  buffer_load_ushort v213, v15, s[{SRD_D}:{SRD_D+3}], s45 offen")
        NCLR += 4
    if "wearly" in OPT:
        w_early(b); NCLR += 2
    npf = 0
    p1_tables(b)
    GM = 30
    gmat(b, GM, 2, False, 10)
    srd(b, SRD_PF, P_DBG, 256)
    b(f"  s_and_b32 s{S_T+8}, s2, 15")
    b(f"  s_lshl_b32 s{S_T+9}, s{S_T+8}, 2")
    b(f"  s_add_u32 s{S_T+9}, s{S_T+9}, 64")
    b(f"  v_mov_b32 v25, s{S_T+9}")
    b(f"  v_lshlrev_b32 v26, 2, v8")
    b(f"  v_add_u32 v26, 64, v26")
    b(f"  s_cmp_ge_u32 s2, 16")
    b(f"  s_cbranch_scc1 p1_noflag")
    b(f"  s_cmp_lg_u32 s{S_W}, 0")
    b(f"  s_cbranch_scc1 p1_noflag")
    b(f"  s_waitcnt vmcnt({8} + 0)".replace(" + 0", "") if NCLR == 0 else f"  s_waitcnt vmcnt({8 + NCLR})")
    b(f"  v_mov_b32 v3, 1")
    b(f"  s_mov_b64 s[48:49], exec")
    b(f"  s_mov_b64 exec, 1")
    b(f"  buffer_store_dword v3, v25, s[{SRD_PF}:{SRD_PF+3}], 0 offen sc1")
    b(f"  s_mov_b64 exec, s[48:49]")
    b.label("p1_noflag")
    b(f"  s_waitcnt lgkmcnt(0)")
    stamp(b, "p1 tables done")
    b(f"  s_barrier")
    NX2 = 0
    if "sent2" in OPT:
        srd(b, SRD_C, P_WS, 4 << 20, WS_X2)
        for i in range(4): b(f"  v_mov_b32 v{200+i}, -1")
        b(f"  v_lshlrev_b32 v3, 4, v0")
        b(f"  s_lshl_b32 s{S_T+7}, s2, 14")
        b(f"  buffer_store_dwordx4 v[200:203], v3, s[{SRD_C}:{SRD_C+3}], s{S_T+7} offen{SF}")
        b(f"  s_add_u32 s{S_T+7}, s{S_T+7}, 8192")
        b(f"  buffer_store_dwordx4 v[200:203], v3, s[{SRD_C}:{SRD_C+3}], s{S_T+7} offen{SF}")
        NX2 = 2
    npf = 0
    if "nopf" not in OPT:
        b(f"  s_mul_i32 s{S_T+8}, s2, 8208")
        if "ntx" not in OPT and "wpf" in OPT and "pf7" not in OPT:
            pf_wide(b, P_WR, WB, S_T + 8, 3, 0, 3, "pf_p1a")
            pf_wide(b, P_WI, WB, S_T + 8, 3, 0, 3, "pf_p1b")
        if "ntw1" not in OPT and PFN[0] and "pf7" not in OPT:
            w1_share_base(b, S_T + 8, 0)
            pf_wide(b, P_W1, W1B, S_T + 8, PFN[0], 4, 8, "pf_p1c")
    M1, M2, TW = 96, 112, 128
    b(f"  v_lshlrev_b32 v2, 4, v7")
    for i in range(4): b(f"  ds_read_b128 {vr(M1+4*i,4)}, v2 offset:{L1_M1+1024*i}")
    for i in range(3): b(f"  ds_read_b128 {vr(M2+4*i,4)}, v2 offset:{L1_M2+1024*i}")
    for i in range(8): b(f"  ds_read_b128 {vr(TW+4*i,4)}, v2 offset:{L1_TW+1024*i}")
    X = 40
    NCLR += NX2
    nW = 0 if ("nopf" in OPT or "ntx" in OPT or "wpf" not in OPT or "pf7" in OPT) else 6
    n1 = 0 if ("nopf" in OPT or "ntw1" in OPT or "pf7" in OPT) else PFN[0]
    b(f"  s_cmp_eq_u32 s{S_W}, 3")
    b(f"  s_cbranch_scc1 p1_xw0")
    b(f"  s_cmp_ge_u32 s{S_W}, 4")
    b(f"  s_cbranch_scc1 p1_xw4")
    b(f"  s_waitcnt vmcnt({NCLR + nW})")
    b(f"  s_branch p1_xwd")
    b.label("p1_xw4")
    if "tlbw" in OPT:
        b(f"  s_cmp_lg_u32 s{S_W}, 7")
        b(f"  s_cbranch_scc1 p1_xw5")
        b(f"  s_waitcnt vmcnt({min(63, NCLR + n1 + 8 + N7[0])})")
        b(f"  s_branch p1_xwd")
        b.label("p1_xw5")
    b(f"  s_waitcnt vmcnt({NCLR + n1})")
    b(f"  s_branch p1_xwd")
    b.label("p1_xw0")
    b(f"  s_waitcnt vmcnt({NCLR})")
    b.label("p1_xwd")
    stamp(b, "p1 x landed")
    if "wmid" in OPT:
        w_early(b)
        b(f"  s_cmp_ge_u32 s2, 8")
        b(f"  s_cbranch_scc1 p1_nonyq")
        b(f"  buffer_load_ushort v212, v214, s[{SRD_C}:{SRD_C+3}], 0 offen offset:1024")
        b(f"  buffer_load_ushort v213, v214, s[{SRD_D}:{SRD_D+3}], 0 offen offset:1024")
        b.label("p1_nonyq")
    if "wearly" in OPT:
        b(f"  s_cmp_ge_u32 s2, 8")
        b(f"  s_cbranch_scc1 p1_nonyq")
        b(f"  buffer_load_ushort v212, v214, s[{SRD_C}:{SRD_C+3}], 0 offen offset:1024")
        b(f"  buffer_load_ushort v213, v214, s[{SRD_D}:{SRD_D+3}], 0 offen offset:1024")
        b.label("p1_nonyq")
    srd(b, SRD_PF, P_DBG, 256)
    if "stash" in OPT:
        b(f"  s_lshl_b32 s{S_T+9}, s{S_W}, 11")
        b(f"  s_add_u32 s{S_T+9}, s{S_T+9}, {L_XS}")
        b(f"  v_add_u32 v4, s{S_T+9}, v1           ; t*2048 + g*512 + c*4")
        for i in range(8): b(f"  ds_write_b32 v4, v{XD+i} offset:{64*i}")
    for i in range(8):
        b(f"  v_lshlrev_b32 v{X+i}, 16, v{XD+i}")
        b(f"  v_and_b32 v{X+8+i}, 0xffff0000, v{XD+i}")
    T = 56
    ln_fast(b, X, T, S_T + 2, True)
    stamp(b, "p1 ln done")
    if SENT():
        b(f"  buffer_load_dword v27, v26, s[{SRD_PF}:{SRD_PF+3}], 0 offen sc1")
        b(f"  s_and_b32 s{S_T+8}, s2, 15")
        arrive(b, 0, S_T + 8, first=True, label="x1")
        stamp(b, "p1 arrived")
        srd(b, SRD_C, P_WS, 4 << 20, WS_X2)
        for i in range(4): b(f"  v_mov_b32 v{200+i}, -1")
        b(f"  v_lshlrev_b32 v2, 4, v0")
        b(f"  s_lshl_b32 s{S_T+7}, s2, 14")
        b(f"  buffer_store_dwordx4 v[200:203], v2, s[{SRD_C}:{SRD_C+3}], s{S_T+7} offen{SF}")
        b(f"  s_add_u32 s{S_T+7}, s{S_T+7}, 8192")
        b(f"  buffer_store_dwordx4 v[200:203], v2, s[{SRD_C}:{SRD_C+3}], s{S_T+7} offen{SF}")
    A = 64
    for be in range(2):
        for i in range(4):
            b(f"  v_cvt_pk_bf16_f32 v{A+4*be+i}, v{X+8*be+2*i}, v{X+8*be+2*i+1}")
    b(f"  s_waitcnt lgkmcnt(0)")
    b(f"  v_readlane_b32 s{S_T+5}, v{T+6}, 0")
    Y = 160
    for be in range(2):
        for u in range(2):
            for c in range(2):
                d = Y + ((be * 2 + u) * 2 + c) * 4
                b(f"  {MF32} {vr(d,4)}, {vr(A+4*be,4)}, {vr(M1+4*(2*u+c),4)}, 0")
    b(f"  s_nop 4")
    Bp = 72; W = 32; O = 40
    for u in range(2):
        for be in range(2):
            y = Y + ((be * 2 + u) * 2) * 4
            tw = TW + (be * 4 + u * 2) * 4
            cmul_pk(b, O + 8 * be, O + 8 * be + 4, y, y + 4, tw, tw + 4, W, False)
        for r in range(4):
            b(f"  v_cvt_pk_bf16_f32 v{Bp+8*u+r}, v{O+r}, v{O+8+r}")
            b(f"  v_cvt_pk_bf16_f32 v{Bp+8*u+4+r}, v{O+4+r}, v{O+12+r}")
    XO = 160
    b(f"  s_nop 1")
    for u in range(2):
        re, im = XO + 8 * u, XO + 8 * u + 4
        b(f"  {MF32} {vr(re,4)}, {vr(M2,4)}, {vr(Bp+8*u,4)}, 0")
        b(f"  {MF32} {vr(im,4)}, {vr(M2,4)}, {vr(Bp+8*u+4,4)}, 0")
        b(f"  {MF32} {vr(re,4)}, {vr(M2+4,4)}, {vr(Bp+8*u+4,4)}, {vr(re,4)}")
        b(f"  {MF32} {vr(im,4)}, {vr(M2+8,4)}, {vr(Bp+8*u,4)}, {vr(im,4)}")
    b(f"  s_and_b32 s{S_T+6}, s{S_W}, 1")
    b(f"  s_lshl_b32 s{S_T+6}, s{S_T+6}, 8")
    b(f"  s_lshr_b32 s{S_T+7}, s{S_W}, 1")
    b(f"  s_lshl_b32 s{S_T+7}, s{S_T+7}, 6")
    b(f"  s_add_u32 s{S_T+6}, s{S_T+6}, s{S_T+7}")
    b(f"  v_lshlrev_b32 v3, 12, v9")
    b(f"  v_lshl_add_u32 v3, v8, 2, v3")
    b(f"  v_add_u32 v3, s{S_T+6}, v3")
    b(f"  s_nop 2")
    b(f"  v_writelane_b32 v{XO}, s{S_T+5}, 0")
    b(f"  v_writelane_b32 v{XO+4}, 0, 0")
    PK = 32
    for u in range(2):
        for r in range(4):
            b(f"  v_cvt_pk_bf16_f32 v{PK+4*u+r}, v{XO+8*u+r}, v{XO+8*u+4+r}")
    for u in range(2):
        for r in range(4):
            b(f"  ds_write_b32 v3, v{PK+4*u+r} offset:{L1_EX + u*512 + r*1024}")
    if "wpack" in OPT:
        assert not SENT()
        srd(b, SRD_C, P_WS, 4 << 20, WS_WP)
        b(f"  v_lshrrev_b32 v14, 1, v7              ; kb")
        b(f"  v_lshlrev_b32 v14, 17, v14")
        b(f"  v_and_b32 v15, 1, v7")
        b(f"  v_lshl_add_u32 v14, v15, 4, v14")
        b(f"  s_and_b32 s{S_T+6}, s2, 15")
        b(f"  s_lshl_b32 s{S_T+6}, s{S_T+6}, 9       ; (p&15)<<5 * 16")
        b(f"  s_lshr_b32 s{S_T+7}, s2, 4")
        b(f"  s_lshl_b32 s{S_T+7}, s{S_T+7}, 5       ; (p>>4)<<1 * 16")
        b(f"  s_add_u32 s{S_T+6}, s{S_T+6}, s{S_T+7}")
        b(f"  s_lshl_b32 s{S_T+7}, s{S_W}, 14")
        b(f"  s_add_u32 s{S_T+6}, s{S_T+6}, s{S_T+7}")
        b(f"  s_add_u32 s{S_T+7}, s{S_T+6}, 8192")
        npf0 = 0 if ("nopf" in OPT or "pf7" in OPT) else PFN[0]
        b(f"  s_cmp_ge_u32 s{S_W}, 4")
        b(f"  s_cbranch_scc1 p1_wp4")
        b(f"  s_waitcnt vmcnt(0)")
        b(f"  s_branch p1_wpd")
        b.label("p1_wp4")
        b(f"  s_waitcnt vmcnt({npf0})")
        b.label("p1_wpd")
        b(f"  v_cmp_eq_u32 vcc, 0, v7")
        b(f"  v_and_b32 v15, 0xffff0000, v{WE}")
        b(f"  v_or_b32 v15, v15, v212")
        b(f"  v_cndmask_b32 v{WE}, v{WE}, v15, vcc")
        b(f"  v_and_b32 v15, 0xffff0000, v{WE+4}")
        b(f"  v_or_b32 v15, v15, v213")
        b(f"  v_cndmask_b32 v{WE+4}, v{WE+4}, v15, vcc")
        b(f"  buffer_store_dwordx4 {vr(WE,4)}, v14, s[{SRD_C}:{SRD_C+3}], s{S_T+6} offen{SF}")
        b(f"  buffer_store_dwordx4 {vr(WE+4,4)}, v14, s[{SRD_C}:{SRD_C+3}], s{S_T+7} offen{SF}")
    if SENT(): b(f"  s_waitcnt lgkmcnt(0) vmcnt(0)")
    else:
        b(f"  buffer_load_dword v27, v26, s[{SRD_PF}:{SRD_PF+3}], 0 offen sc1")
        b(f"  s_waitcnt lgkmcnt(0)")
    stamp(b, "p1 fft done")
    b(f"  s_barrier")
    b(f"  v_lshlrev_b32 v4, 6, v9")
    b(f"  v_lshl_add_u32 v4, v8, 2, v4")
    b(f"  s_lshl_b32 s{S_T+6}, s{S_W}, 11")
    b(f"  s_add_u32 s{S_T+6}, s{S_T+6}, {L1_EX}")
    b(f"  v_add_u32 v4, s{S_T+6}, v4")
    Bd = 40
    for i in range(4):
        b(f"  ds_read2st64_b32 {vr(Bd+2*i,2)}, v4 offset0:{2*i} offset1:{2*i+1}")
    D = 48
    for i in range(4):
        b(f"  s_waitcnt lgkmcnt({3-i})")
        b(f"  {MF16} {vr(D+4*i,4)}, {vr(GM,2)}, {vr(Bd+2*i,2)}, 0")
    b(f"  s_nop 4")
    for i in range(4):
        b(f"  v_cvt_pk_bf16_f32 v{64+2*i}, v{D+4*i}, v{D+4*i+1}")
        b(f"  v_cvt_pk_bf16_f32 v{65+2*i}, v{D+4*i+2}, v{D+4*i+3}")
        if SENT():
            b(f"  v_min_u32 v{64+2*i}, 0xfffffffe, v{64+2*i}")
            b(f"  v_min_u32 v{65+2*i}, 0xfffffffe, v{65+2*i}")
        for e in range(2):
            b(f"  s_add_u32 s{S_T+7}, s44, {i*131072 + e*16384}")
            b(f"  buffer_store_dword v{64+2*i+e}, v5, s[{SRD_B}:{SRD_B+3}], s{S_T+7} offen{SF}")
    stamp(b, "p1 stores issued")
    if not SENT():
        b(f"  s_and_b32 s{S_T+8}, s2, 15")
        arrive(b, 0, S_T + 8, first=True, label="x1")
        stamp(b, "p1 arrived")

XL2, WL2 = 32, 40
WE = 204
TC2, TS2 = 64, 68
def p2_setup(b):
    srd(b, SRD_A, P_WS, 4 << 20, WS_X1)
    srd(b, SRD_B, P_WS, 4 << 20, WS_X2)
    srd(b, SRD_C, P_WR, WB)
    srd(b, SRD_D, P_WI, WB)
    b(f"  s_and_b32 s{S_T}, s2, 7              ; j1")
    b(f"  s_lshr_b32 s{S_T+1}, s2, 3           ; kb")
    b(f"  v_and_b32 v10, 1, v0                 ; half")
    b(f"  v_bfe_u32 v11, v0, 5, 4              ; c")
    b(f"  v_bfe_u32 v12, v0, 1, 4              ; e")
    b(f"  v_lshl_add_u32 v13, v12, 4, v11      ; j2")
    b(f"  v_lshlrev_b32 v13, 3, v13")
    b(f"  v_add_u32 v13, s{S_T}, v13           ; j")
    b(f"  v_mul_u32_u24 v13, 1026, v13")
    b(f"  v_lshlrev_b32 v14, 4, v10")
    b(f"  v_add_u32 v14, v13, v14")
    b(f"  s_lshl_b32 s{S_T+3}, s{S_T+1}, 5")
    if "wearly" in OPT or "wmid" in OPT:
        b(f"  s_cmp_lg_u32 s{S_T+1}, 0")
        b(f"  s_cbranch_scc1 p2_nonyq")
        b(f"  s_waitcnt vmcnt(0)")
        b(f"  v_cmp_eq_u32 vcc, 0, v215")
        b(f"  v_and_b32 v50, 0xffff0000, v{WE}")
        b(f"  v_or_b32 v50, v50, v212")
        b(f"  v_cndmask_b32 v{WE}, v{WE}, v50, vcc")
        b(f"  v_and_b32 v50, 0xffff0000, v{WE+4}")
        b(f"  v_or_b32 v50, v50, v213")
        b(f"  v_cndmask_b32 v{WE+4}, v{WE+4}, v50, vcc")
        b.label("p2_nonyq")
    elif "wpack" in OPT:
        srd(b, SRD_C, P_WS, 4 << 20, WS_WP)
    elif "wlate" in OPT:
        b(f"  v_mov_b32 v24, v14")
        b(f"  v_mov_b32 v25, v13")
        b(f"  v_mov_b32 v26, v10                   ; half")
        b(f"  s_mov_b32 s45, s{S_T+3}              ; kb*32")
    else:
        WL = WL2
        b(f"  v_mov_b32 v24, v14")
        b(f"  v_mov_b32 v25, v13")
        b(f"  v_mov_b32 v26, v10                   ; half")
        b(f"  s_mov_b32 s45, s{S_T+3}              ; kb*32")
        WL = WL2
        b(f"  buffer_load_dwordx4 {vr(WL,4)}, v24, s[{SRD_C}:{SRD_C+3}], s45 offen{WF()}")
        b(f"  buffer_load_dwordx4 {vr(WL+4,4)}, v24, s[{SRD_D}:{SRD_D+3}], s45 offen{WF()}")
        b(f"  s_cmp_lg_u32 s{S_T+1}, 0")
        b(f"  s_cbranch_scc1 p2_nonyq")
        b(f"  buffer_load_ushort v48, v25, s[{SRD_C}:{SRD_C+3}], 0 offen offset:1024")
        b(f"  buffer_load_ushort v49, v25, s[{SRD_D}:{SRD_D+3}], 0 offen offset:1024")
        b(f"  s_waitcnt vmcnt(0)")
        b(f"  v_cmp_eq_u32 vcc, 0, v26")
        b(f"  v_and_b32 v50, 0xffff0000, v{WL}")
        b(f"  v_or_b32 v50, v50, v48")
        b(f"  v_cndmask_b32 v{WL}, v{WL}, v50, vcc")
        b(f"  v_and_b32 v50, 0xffff0000, v{WL+4}")
        b(f"  v_or_b32 v50, v50, v49")
        b(f"  v_cndmask_b32 v{WL+4}, v{WL+4}, v50, vcc")
        b.label("p2_nonyq")
        if "wdiag" in OPT:
            b(f"  s_waitcnt vmcnt(0)")
            stamp(b, "p2 w landed")
    if "es" in OPT:
        b(f"  s_cmp_ge_u32 s{S_W}, 2")
        b(f"  s_cbranch_scc1 p2_noclr")
        srd(b, SRD_PF, P_WS, 4 << 20, WS_LN2)
        for i in range(4): b(f"  v_mov_b32 v{200+i}, -1")
        b(f"  s_lshr_b32 s{S_T+8}, s2, 3")
        b(f"  s_lshl_b32 s{S_T+8}, s{S_T+8}, 17")
        b(f"  s_and_b32 s{S_T+9}, s2, 7")
        b(f"  s_lshl_b32 s{S_T+9}, s{S_T+9}, 11")
        b(f"  s_add_u32 s{S_T+8}, s{S_T+8}, s{S_T+9}")
        b(f"  v_lshlrev_b32 v2, 4, v0")
        b(f"  buffer_store_dwordx4 v[200:203], v2, s[{SRD_PF}:{SRD_PF+3}], s{S_T+8} offen{SF}")
        b.label("p2_noclr")
    npf = 0
    b(f"  v_and_b32 v15, 255, v0")
    b(f"  v_bfe_u32 v16, v15, 2, 4             ; x")
    b(f"  v_lshrrev_b32 v17, 6, v15            ; g")
    b(f"  v_and_b32 v18, 3, v15")
    b(f"  v_lshl_add_u32 v17, v17, 2, v18      ; 4g+i")
    b(f"  v_mul_u32_u24 v17, v17, v16")
    sincos(b, 18, 19, 17, 4, 20)
    b(f"  v_cmp_gt_u32 vcc, 256, v0            ; matrix 0 ?")
    b(f"  v_xor_b32 v20, 0x80000000, v19       ; -sin")
    b(f"  s_nop 0")
    b(f"  v_cndmask_b32 v21, v20, v18, vcc")
    b(f"  v_cndmask_b32 v22, v18, v19, vcc")
    b(f"  v_cvt_pk_bf16_f32 v21, v21, v22")
    b(f"  v_lshlrev_b32 v22, 2, v0")
    b(f"  ds_write_b32 v22, v21 offset:{L2_F}")
    b(f"  v_lshlrev_b32 v16, 2, v9")
    for r in range(4):
        b(f"  v_add_u32 v17, {r}, v16")
        b(f"  v_mul_u32_u24 v17, v17, v8")
        sincos(b, TC2 + r, TS2 + r, 17, 8, 20)
    b(f"  v_and_b32 v16, 3, v0                 ; i")
    b(f"  v_mul_u32_u24 v16, {4*1040}, v16")
    b(f"  v_lshrrev_b32 v17, 6, v0             ; b (0..7)")
    b(f"  v_lshl_add_u32 v16, v17, 6, v16")
    b(f"  v_bfe_u32 v17, v0, 2, 2              ; a&3")
    b(f"  v_lshl_add_u32 v16, v17, 2, v16")
    b(f"  v_bfe_u32 v17, v0, 4, 2              ; a>>2")
    b(f"  v_lshl_add_u32 v21, v17, 4, v16      ; first")
    b(f"  v_xor_b32 v17, 2, v17")
    b(f"  v_lshl_add_u32 v22, v17, 4, v16")
    b(f"  v_add_u32 v22, 512, v22              ; second (b+8)")
    b(f"  v_mul_u32_u24 v16, {4*1040}, v10")
    b(f"  v_lshl_add_u32 v16, v11, 6, v16")
    b(f"  v_and_b32 v17, 3, v12")
    b(f"  v_lshl_add_u32 v16, v17, 2, v16")
    b(f"  v_lshrrev_b32 v17, 2, v12")
    b(f"  v_lshrrev_b32 v18, 3, v11            ; c>>3")
    b(f"  v_lshlrev_b32 v18, 1, v18")
    b(f"  v_xor_b32 v17, v17, v18")
    b(f"  v_lshl_add_u32 v23, v17, 4, v16")
    b(f"  v_lshrrev_b32 v16, 3, v8")
    b(f"  v_lshlrev_b32 v16, 1, v16")
    b(f"  v_xor_b32 v16, v16, v9")
    b(f"  v_lshlrev_b32 v16, 4, v16")
    b(f"  v_lshl_add_u32 v16, v8, 6, v16")
    b(f"  s_mul_i32 s{S_T+4}, s{S_W}, {2*1040}")
    b(f"  s_mul_i32 s{S_T+5}, s{S_W}, 1040")
    b(f"  v_add_u32 v5, s{S_T+4}, v16")
    b(f"  v_add_u32 v6, s{S_T+5}, v16")
    b(f"  v_lshlrev_b32 v1, 4, v0")
    b(f"  s_lshl_b32 s{S_T+2}, s2, 14")
    b(f"  s_add_u32 s{S_T+3}, s{S_T+2}, 8192")
    b(f"  s_waitcnt lgkmcnt(0)")

def sentinel_check(b, R0, pre, n=8):
    b(f"  v_max3_u32 v16, v{R0}, v{R0+1}, v{R0+2}")
    b(f"  v_max3_u32 v17, v{R0+3}, v{R0+4}, v{R0+5}")
    b(f"  v_max3_u32 v16, v16, v{R0+6}, v{R0+7}")
    for i in range(8, n, 2): b(f"  v_max3_u32 v17, v17, v{R0+i}, v{R0+i+1}")
    b(f"  v_max_u32 v16, v16, v17")
    b(f"  v_cmp_eq_u32 vcc, -1, v16")
    b(f"  s_sub_u32 s11, s11, 1")
    b(f"  s_cmp_eq_u32 s11, 0")
    b(f"  s_cbranch_scc1 {pre}_got")
    b(f"  s_cmp_lg_u64 vcc, 0")
    b(f"  s_cbranch_scc1 {pre}_poll")
    b.label(f"{pre}_got")

def p2_main(b):
    XL = XL2; TC, TS = TC2, TS2
    if SENT():
        b(f"  s_mov_b32 s11, 200000")
        b.label("p2_poll")
    b(f"  buffer_load_dwordx4 {vr(XL,4)}, v1, s[{SRD_A}:{SRD_A+3}], s{S_T+2} offen sc1")
    b(f"  buffer_load_dwordx4 {vr(XL+4,4)}, v1, s[{SRD_A}:{SRD_A+3}], s{S_T+3} offen sc1")
    if "wpack" in OPT:
        WL = WL2
        b(f"  buffer_load_dwordx4 {vr(WL,4)}, v1, s[{SRD_C}:{SRD_C+3}], s{S_T+2} offen sc1")
        b(f"  buffer_load_dwordx4 {vr(WL+4,4)}, v1, s[{SRD_C}:{SRD_C+3}], s{S_T+3} offen sc1")
        b(f"  s_waitcnt vmcnt(2)")
    elif "wlate" in OPT:
        assert not SENT()
        WL = WL2
        b(f"  buffer_load_dwordx4 {vr(WL,4)}, v24, s[{SRD_C}:{SRD_C+3}], s45 offen{WF()}")
        b(f"  buffer_load_dwordx4 {vr(WL+4,4)}, v24, s[{SRD_D}:{SRD_D+3}], s45 offen{WF()}")
        b(f"  s_cmp_lg_u32 s{S_T+1}, 0")
        b(f"  s_cbranch_scc1 p2_nonyq")
        b(f"  buffer_load_ushort v56, v25, s[{SRD_C}:{SRD_C+3}], 0 offen offset:1024")
        b(f"  buffer_load_ushort v57, v25, s[{SRD_D}:{SRD_D+3}], 0 offen offset:1024")
        b(f"  s_waitcnt vmcnt(0)")
        b(f"  v_cmp_eq_u32 vcc, 0, v26")
        b(f"  v_and_b32 v58, 0xffff0000, v{WL}")
        b(f"  v_or_b32 v58, v58, v56")
        b(f"  v_cndmask_b32 v{WL}, v{WL}, v58, vcc")
        b(f"  v_and_b32 v58, 0xffff0000, v{WL+4}")
        b(f"  v_or_b32 v58, v58, v57")
        b(f"  v_cndmask_b32 v{WL+4}, v{WL+4}, v58, vcc")
        b.label("p2_nonyq")
        b(f"  s_waitcnt vmcnt(2)")
    else:
        b(f"  s_waitcnt vmcnt(0)")
    if SENT(): sentinel_check(b, XL, "p2")
    WL = WE if ("wearly" in OPT or "wmid" in OPT) else WL2
    b(f"  v_lshlrev_b32 v17, 4, v7")
    FR, FI = 72, 76
    AX = 48; WR, WI = 152, 156
    b(f"  ds_read_b128 {vr(FR,4)}, v17 offset:{L2_F}")
    b(f"  ds_read_b128 {vr(FI,4)}, v17 offset:{L2_F+1024}")
    Dq = [80, 88]; Oq = [96, 104]; Tq = [112, 120]; Pq = [128, 132]; Wq = [136, 144]
    stamp(b, "p2 x landed")
    for j in range(4):
        b(f"  ds_write_b32 v21, v{XL+j} offset:{L2_X + j*1040}")
        b(f"  ds_write_b32 v22, v{XL+4+j} offset:{L2_X + j*1040}")
    if "wlate" in OPT or "wpack" in OPT: b(f"  s_waitcnt vmcnt(0)")
    for j in range(4):
        b(f"  ds_write_b32 v23, v{WL+j} offset:{L2_W + j*1040}")
        b(f"  ds_write_b32 v23, v{WL+4+j} offset:{L2_W + 8*1040 + j*1040}")
    if "nopf" not in OPT and "ntw1" not in OPT and PFN[1]:
        w1_share_base(b, S_T + 8, PFN[0] * 4096)
        pf_wide(b, P_W1, W1B, S_T + 8, PFN[1], 4, 8, "pf_p2a")
    b(f"  s_waitcnt lgkmcnt(0)")
    b(f"  s_barrier")
    b(f"  ds_read_b128 {vr(AX,4)}, v5 offset:{L2_X}")
    b(f"  ds_read_b128 {vr(AX+4,4)}, v5 offset:{L2_X+1040}")
    b(f"  ds_read_b128 {vr(WR,4)}, v6 offset:{L2_W}")
    b(f"  ds_read_b128 {vr(WI,4)}, v6 offset:{L2_W+8*1040}")
    def stage(form, src):
        for k in range(2):
            d = Dq[k]
            if form == 'A':
                b(f"  {MF32} {vr(d,4)}, {vr(src[k],4)}, {vr(FR,4)}, 0")
                b(f"  {MF32} {vr(d+4,4)}, {vr(src[k],4)}, {vr(FI,4)}, 0")
            else:
                b(f"  {MF32} {vr(d,4)}, {vr(FR,4)}, {vr(src[k],4)}, 0")
                b(f"  {MF32} {vr(d+4,4)}, {vr(FI,4)}, {vr(src[k],4)}, 0")
    def twiddle_pack():
        for k in range(2):
            cmul_pk(b, Oq[k], Oq[k] + 4, Dq[k], Dq[k] + 4, TC, TS, Tq[k], False)
        for k in range(2):
            for r in range(4):
                b(f"  v_cvt_pk_bf16_f32 v{Pq[k]+r}, v{Oq[k]+r}, v{Oq[k]+4+r}")
        b(f"  s_nop 1")
    b(f"  s_waitcnt lgkmcnt(2)")
    stage('A', [AX, AX + 4])
    b(f"  s_waitcnt lgkmcnt(0)")
    for r in range(4):
        b(f"  v_lshlrev_b32 v{Wq[0]+r}, 16, v{WR+r}")
        b(f"  v_lshlrev_b32 v{Wq[0]+4+r}, 16, v{WI+r}")
        b(f"  v_and_b32 v{Wq[1]+r}, 0xffff0000, v{WR+r}")
        b(f"  v_and_b32 v{Wq[1]+4+r}, 0xffff0000, v{WI+r}")
    twiddle_pack()
    stage('B', Pq)
    b(f"  s_nop 5")
    for k in range(2):
        cmul_pk(b, Oq[k], Oq[k] + 4, Dq[k], Dq[k] + 4, Wq[k], Wq[k] + 4, Tq[k], True)
    for k in range(2):
        for r in range(4):
            b(f"  v_cvt_pk_bf16_f32 v{Pq[k]+r}, v{Oq[k]+r}, -v{Oq[k]+4+r}")
    b(f"  s_nop 1")
    stage('A', Pq)
    b(f"  s_nop 5")
    twiddle_pack()
    stage('B', Pq)
    b(f"  s_nop 5")
    for k in range(2):
        for r in range(4):
            b(f"  v_cvt_pk_bf16_f32 v{Pq[k]+r}, v{Dq[k]+r}, -v{Dq[k]+4+r}")
    b(f"  ds_write_b128 v5, {vr(Pq[0],4)} offset:{L2_X}")
    b(f"  ds_write_b128 v5, {vr(Pq[1],4)} offset:{L2_X+1040}")
    b(f"  s_waitcnt lgkmcnt(0)")
    b(f"  s_barrier")
    for j in range(4):
        b(f"  ds_read_b32 v{XL+j}, v21 offset:{L2_X + j*1040}")
        b(f"  ds_read_b32 v{XL+4+j}, v22 offset:{L2_X + j*1040}")
    b(f"  v_bfe_u32 v16, v0, 2, 4              ; a")
    b(f"  v_lshrrev_b32 v17, 6, v0             ; b")
    b(f"  v_lshl_add_u32 v16, v16, 4, v17      ; s1")
    b(f"  v_lshlrev_b32 v16, 14, v16")
    b(f"  v_and_b32 v17, 3, v0")
    b(f"  v_lshl_add_u32 v16, v17, 4, v16")
    b(f"  s_lshl_b32 s{S_T+4}, s{S_T}, 11")
    b(f"  s_lshl_b32 s{S_T+5}, s{S_T+1}, 6")
    b(f"  s_add_u32 s{S_T+4}, s{S_T+4}, s{S_T+5}")
    b(f"  s_add_u32 s{S_T+5}, s{S_T+4}, {8*16384}")
    b(f"  s_waitcnt lgkmcnt(0)")
    if SENT2():
        for j in range(8): b(f"  v_min_u32 v{XL+j}, 0xfffffffe, v{XL+j}")
    b(f"  buffer_store_dwordx4 {vr(XL,4)}, v16, s[{SRD_B}:{SRD_B+3}], s{S_T+4} offen{SF}")
    b(f"  buffer_store_dwordx4 {vr(XL+4,4)}, v16, s[{SRD_B}:{SRD_B+3}], s{S_T+5} offen{SF}")
    stamp(b, "p2 stores issued")
    if not SENT2():
        b(f"  s_and_b32 s{S_T+8}, s2, 15")
        arrive(b, 1, S_T + 8, label="x2")

V_LO = 224
S_G1A = 60
def g1_ids(b):
    b(f"  s_lshr_b32 s{S_T}, s2, 3                 ; i")
    b(f"  s_cmp_lt_u32 s{S_T}, 28")
    b(f"  s_cselect_b32 s62, 1, 0")
    b(f"  s_mul_i32 s{S_T+1}, s{S_T}, 37")
    b(f"  s_lshr_b32 s{S_T+1}, s{S_T+1}, 8         ; i/7")
    b(f"  s_mul_i32 s{S_T+2}, s{S_T+1}, 7")
    b(f"  s_sub_u32 s{S_T+2}, s{S_T}, s{S_T+2}     ; i%7")
    b(f"  s_and_b32 s{S_T+3}, s2, 7")
    b(f"  s_lshr_b32 s{S_T+4}, s{S_T+3}, 1")
    b(f"  s_mul_i32 s{S_T+4}, s{S_T+4}, 7")
    b(f"  s_add_u32 s60, s{S_T+4}, s{S_T+2}        ; ft")
    b(f"  s_and_b32 s{S_T+3}, s{S_T+3}, 1")
    b(f"  s_lshl_b32 s{S_T+3}, s{S_T+3}, 2")
    b(f"  s_add_u32 s61, s{S_T+3}, s{S_T+1}        ; dt")

S_SOFF, S_M0, S_N = 4, 5, 6
def loader_issue(b, voff, fl=""):
    for i in range(4):
        b(f"  s_add_u32 m0, s{S_M0}, {4096*i}")
        b(f"  s_nop 0")
        b(f"  buffer_load_dwordx4 v{voff+i}, s[{SRD_T}:{SRD_T+3}], s{S_SOFF} offen{fl} lds")
    b(f"  s_add_u32 s{S_SOFF}, s{S_SOFF}, s9")
    b(f"  s_add_u32 s{S_M0}, s{S_M0}, {STAGE}")
    b(f"  s_cmp_ge_u32 s{S_M0}, s{S_N+1}")
    b(f"  s_cselect_b32 s{S_N+2}, {R*STAGE}, 0")
    b(f"  s_sub_u32 s{S_M0}, s{S_M0}, s{S_N+2}")

def loader_init(b, step_bytes):
    b(f"  s_sub_u32 s50, s{S_W}, 4")
    b(f"  s_lshl_b32 s{S_M0}, s50, 10")
    b(f"  s_add_u32 s{S_N+1}, s{S_M0}, {R*STAGE}")
    b(f"  s_mov_b32 s{S_SOFF}, 0")
    b(f"  s_mov_b32 s9, {step_bytes}")

def g1_loader_addr(b):
    b(f"  s_sub_u32 s50, s{S_W}, 4      ; w'")
    for i in range(4):
        b(f"  s_lshl_b32 s49, s50, 2")
        b(f"  s_add_u32 s49, s49, {16*i}")
        b(f"  v_lshrrev_b32 v14, 4, v7")
        b(f"  v_add_u32 v14, s49, v14                 ; row 0..63")
        b(f"  v_and_b32 v15, 3, v14")
        b(f"  v_lshlrev_b32 v15, 2, v15")
        b(f"  v_and_b32 v16, 15, v7")
        b(f"  v_xor_b32 v16, v16, v15                 ; q")
        b(f"  v_lshrrev_b32 v17, 3, v14")
        b(f"  v_and_b32 v18, 7, v14")
        b(f"  v_lshl_add_u32 v17, v18, 8, v17         ; s")
        b(f"  v_mul_u32_u24 v17, 7168, v17")
        b(f"  v_lshl_add_u32 v17, v16, 4, v17")
        b(f"  s_lshl_b32 s49, s60, 8")
        b(f"  v_add_u32 v{V_LO+i}, s49, v17")

def g2_ids(b):
    if SK():
        b(f"  s_lshr_b32 s{S_T+1}, s2, 3")
        b(f"  s_lshr_b32 s{S_TILE_A}, s{S_T+1}, 2          ; dt")
        b(f"  s_lshr_b32 s{S_T}, s2, 1")
        b(f"  s_and_b32 s{S_T}, s{S_T}, 3")
        b(f"  s_lshl_b32 s{S_T}, s{S_T}, 2")
        b(f"  s_and_b32 s{S_T+1}, s{S_T+1}, 3")
        b(f"  s_add_u32 s{S_TILE_B}, s{S_T}, s{S_T+1}      ; st2")
        b(f"  s_and_b32 s19, s2, 1                       ; kh")
        return
    b(f"  s_and_b32 s{S_T}, s2, 1")
    b(f"  s_lshl_b32 s{S_T}, s{S_T}, 2")
    b(f"  s_lshr_b32 s{S_T+1}, s2, 3")
    b(f"  s_and_b32 s{S_T+2}, s{S_T+1}, 3")
    b(f"  s_add_u32 s{S_TILE_A}, s{S_T}, s{S_T+2}     ; dt")
    b(f"  s_lshr_b32 s{S_T}, s2, 1")
    b(f"  s_and_b32 s{S_T}, s{S_T}, 3")
    b(f"  s_lshl_b32 s{S_T}, s{S_T}, 3")
    b(f"  s_lshr_b32 s{S_T+1}, s{S_T+1}, 2")
    b(f"  s_add_u32 s{S_TILE_B}, s{S_T}, s{S_T+1}     ; st")

def g2_loader_addr(b):
    if SK():
        b(f"  s_sub_u32 s50, s{S_W}, 4")
        for i in range(4):
            b(f"  s_lshl_b32 s49, s50, 2")
            b(f"  s_add_u32 s49, s49, {16*i}")
            b(f"  v_lshrrev_b32 v14, 4, v7")
            b(f"  v_add_u32 v14, s49, v14                 ; row 0..63")
            b(f"  v_and_b32 v15, 3, v14")
            b(f"  v_lshlrev_b32 v15, 2, v15")
            b(f"  v_and_b32 v16, 15, v7")
            b(f"  v_xor_b32 v16, v16, v15                 ; q")
            b(f"  v_lshlrev_b32 v14, 12, v14              ; row*4096")
            b(f"  v_lshl_add_u32 v14, v16, 4, v14")
            b(f"  s_lshl_b32 s49, s{S_TILE_B}, 8          ; s0*2")
            b(f"  s_mul_i32 s48, s19, {1792*4096}         ; k half")
            b(f"  s_add_u32 s49, s49, s48")
            b(f"  v_add_u32 v{V_LO+i}, s49, v14")
        return
    b(f"  s_sub_u32 s50, s{S_W}, 4")
    for i in range(4):
        b(f"  s_lshl_b32 s49, s50, 3")
        b(f"  s_add_u32 s49, s49, {32*i}")
        b(f"  v_lshrrev_b32 v14, 3, v7")
        b(f"  v_add_u32 v14, s49, v14                 ; row")
        b(f"  v_bfe_u32 v15, v14, 1, 1")
        b(f"  v_lshlrev_b32 v15, 2, v15")
        b(f"  v_and_b32 v16, 7, v7")
        b(f"  v_xor_b32 v16, v16, v15                 ; q")
        b(f"  v_lshlrev_b32 v14, 12, v14              ; row*4096")
        b(f"  v_lshl_add_u32 v14, v16, 4, v14")
        b(f"  s_lshl_b32 s49, s{S_TILE_B}, 7          ; s0*2")
        b(f"  v_add_u32 v{V_LO+i}, s49, v14")

def loader_loop(b, NS, pre, fl=""):
    if "priol" in OPT: b("  s_setprio 2")
    if "oldstart" in OPT:
        for n in range(R - 4): loader_issue(b, V_LO, fl)
        nmain = NS - (R - 2)
    else:
        b(f"  s_waitcnt vmcnt(4)")
        b("  s_barrier                      ; B_0")
        for n in range(R - 3): loader_issue(b, V_LO, fl)
        nmain = NS - (R - 2) - 1
    b(f"  s_mov_b32 s{S_N}, {nmain}")
    b.label(f"{pre}_lloop")
    b(f"  s_waitcnt vmcnt({(R-3)*4})")
    b("  s_barrier")
    loader_issue(b, V_LO, fl)
    b(f"  s_sub_u32 s{S_N}, s{S_N}, 1")
    b(f"  s_cmp_lg_u32 s{S_N}, 0")
    b(f"  s_cbranch_scc1 {pre}_lloop")
    for i in range(R - 2):
        b(f"  s_waitcnt vmcnt({(R-3-i)*4})")
        b("  s_barrier")

BD3 = 32; XR3 = 192; GM3 = 30
def p3_tables(b):
    b(f"  v_and_b32 v10, 255, v0            ; e")
    b(f"  v_lshrrev_b32 v11, 8, v0")
    b(f"  v_bfe_u32 v12, v10, 2, 4          ; n = lane&15")
    b(f"  v_lshrrev_b32 v13, 6, v10         ; g")
    b(f"  v_and_b32 v14, 3, v10             ; r")
    b(f"  v_lshl_add_u32 v13, v13, 2, v14   ; 4g + r")
    b(f"  v_lshrrev_b32 v15, 2, v12")
    b(f"  v_lshlrev_b32 v15, 3, v15")
    b(f"  v_and_b32 v16, 3, v12")
    b(f"  v_add_u32 v15, v15, v16           ; b(n,0)")
    b(f"  v_lshl_add_u32 v16, v11, 2, v15   ; b(n, sel)")
    b(f"  v_mul_u32_u24 v17, v16, v13")
    sincos(b, 18, 19, 17, 5, 20)
    b(f"  v_lshlrev_b32 v22, 2, v10")
    b(f"  v_lshl_add_u32 v22, v11, 11, v22  ; sel*2048 + e*4")
    b(f"  v_add_u32 v22, {L3_M3}, v22")
    b(f"  v_cvt_pk_bf16_f32 v23, v18, -v19")
    b(f"  v_cvt_pk_bf16_f32 v24, v19, v18")
    b(f"  ds_write_b32 v22, v23")
    b(f"  ds_write_b32 v22, v24 offset:1024")
    b(f"  v_lshl_add_u32 v17, v11, 4, v13   ; k1")
    for z in range(2):
        b(f"  v_add_u32 v21, {16*z}, v12")
        b(f"  v_mul_u32_u24 v21, v21, v17")
        sincos(b, 18, 19, 21, 5, 20)
        b(f"  v_add_f32 v18, v18, v18")
        b(f"  v_mul_f32 v19, -2.0, v19")
        b(f"  v_cvt_pk_bf16_f32 v23, v18, v19")
        b(f"  ds_write_b32 v22, v23 offset:{4096+1024*z}")
    b(f"  v_lshlrev_b32 v23, 2, v10")
    b(f"  v_lshl_add_u32 v23, v11, 12, v23   ; u*4096 + e*4")
    b(f"  v_add_u32 v23, {L3_TW}, v23")
    for v in range(2):
        b(f"  v_add_u32 v21, {4*v}, v15")
        b(f"  v_mul_u32_u24 v21, v21, v17")
        sincos(b, 18, 19, 21, 10, 20)
        b(f"  ds_write_b32 v23, v18 offset:{2048*v}")
        b(f"  ds_write_b32 v23, v19 offset:{2048*v+1024}")

def p3_setup(b):
    srd(b, SRD_A, P_WS, 4 << 20, WS_X2)
    srd(b, SRD_B, P_X, 4 << 20)
    srd(b, SRD_C, P_WS, 4 << 20, WS_H)
    srd(b, SRD_D, P_WS, 4 << 20, WS_LN2)
    b(f"  s_lshl_b32 s{S_T+3}, s{S_W}, 8")
    b(f"  s_add_u32 s{S_T+3}, s{S_T+3}, s2")
    b(f"  s_lshl_b32 s{S_T+3}, s{S_T+3}, 11       ; s*2048")
    b(f"  v_lshlrev_b32 v4, 6, v8")
    b(f"  v_lshl_add_u32 v4, v9, 4, v4")
    if "stash" in OPT:
        b(f"  s_lshl_b32 s{S_T+9}, s{S_W}, 11")
        b(f"  s_add_u32 s{S_T+9}, s{S_T+9}, {L_XS}")
        b(f"  v_add_u32 v2, s{S_T+9}, v4")
        for z in range(2): b(f"  ds_read_b128 {vr(XR3+4*z,4)}, v2 offset:{1024*z}")
    else:
      for z in range(2):
        b(f"  buffer_load_dwordx4 {vr(XR3+4*z,4)}, v4, s[{SRD_B}:{SRD_B+3}], s{S_T+3} offen offset:{1024*z}")
    b(f"  s_mov_b32 s63, s{S_T+3}")
    if SK():
        srd(b, SRD_PF, P_WS, 4 << 20, WS_XCH)
        for i in range(4): b(f"  v_mov_b32 v{200+i}, -1")
        b(f"  v_lshlrev_b32 v2, 4, v0")
        b(f"  s_lshl_b32 s{S_T+8}, s2, 14")
        b(f"  buffer_store_dwordx4 v[200:203], v2, s[{SRD_PF}:{SRD_PF+3}], s{S_T+8} offen{SF}")
        b(f"  s_add_u32 s{S_T+8}, s{S_T+8}, 8192")
        b(f"  buffer_store_dwordx4 v[200:203], v2, s[{SRD_PF}:{SRD_PF+3}], s{S_T+8} offen{SF}")
    if "es" in OPT:
        b(f"  s_cmp_ge_u32 s{S_W}, 4")
        b(f"  s_cbranch_scc1 p3_noclr")
        srd(b, SRD_PF, P_WS, U_BYTES, WS_U)
        b(f"  s_lshr_b32 s{S_T+8}, s2, 3            ; dblk")
        b(f"  s_mul_i32 s{S_T+8}, s{S_T+8}, 229376")
        b(f"  s_lshr_b32 s{S_T+9}, s2, 2")
        b(f"  s_and_b32 s{S_T+9}, s{S_T+9}, 1       ; k half")
        b(f"  s_mul_i32 s{S_T+9}, s{S_T+9}, {112*1024}")
        b(f"  s_add_u32 s{S_T+8}, s{S_T+8}, s{S_T+9}")
        b(f"  s_and_b32 s{S_T+9}, s2, 3")
        b(f"  s_lshl_b32 s{S_T+9}, s{S_T+9}, 12")
        b(f"  s_add_u32 s{S_T+8}, s{S_T+8}, s{S_T+9}")
        b(f"  buffer_store_dwordx4 v[200:203], v2, s[{SRD_PF}:{SRD_PF+3}], s{S_T+8} offen{SF}")
        b.label("p3_noclr")
    if "nopf" not in OPT and "ntw1" not in OPT:
        if PFN[2]:
            w1_share_base(b, S_T + 8, (PFN[0] + PFN[1]) * 4096)
            pf_wide(b, P_W1, W1B, S_T + 8, PFN[2], 4, 8, "pf_p3a")
    g1_ids(b)
    g1_loader_addr(b)
    loader_init(b, 8 * 7168)
    p3_tables(b)
    gmat(b, GM3, 2, True, 10)
    b(f"  v_lshlrev_b32 v1, 12, v9")
    b(f"  v_lshl_add_u32 v1, v8, 2, v1")
    b(f"  s_lshl_b32 s{S_T}, s2, 14")
    b(f"  s_and_b32 s{S_T+1}, s{S_W}, 1")
    b(f"  s_lshl_b32 s{S_T+1}, s{S_T+1}, 6")
    b(f"  s_lshr_b32 s{S_T+2}, s{S_W}, 1")
    b(f"  s_lshl_b32 s{S_T+2}, s{S_T+2}, 9")
    b(f"  s_add_u32 s{S_T}, s{S_T}, s{S_T+1}")
    b(f"  s_add_u32 s44, s{S_T}, s{S_T+2}          ; X2 soffset")
    b(f"  s_lshl_b32 s{S_T+1}, s{S_T+1}, 4        ; u*1024")
    b(f"  s_lshr_b32 s{S_T+2}, s{S_T+2}, 1        ; q4*256")
    b(f"  s_add_u32 s45, s{S_T+1}, s{S_T+2}")
    b(f"  s_waitcnt lgkmcnt(0)")

def p3_main(b):
    Bd, XR, GM = BD3, XR3, GM3
    D = 40
    b(f"  v_lshlrev_b32 v3, 12, v9")
    b(f"  v_lshl_add_u32 v3, v8, 4, v3")
    b(f"  v_add_u32 v3, s45, v3")
    b(f"  v_add_u32 v3, {L3_EX}, v3")
    M3, M4, TW = 96, 112, 128
    b(f"  v_lshlrev_b32 v6, 4, v7")
    b(f"  v_add_u32 v6, {L3_M3}, v6")
    for i in range(4): b(f"  ds_read_b128 {vr(M3+4*i,4)}, v6 offset:{1024*i}")
    for i in range(4): b(f"  ds_read_b128 {vr(M4+4*i,4)}, v6 offset:{4096+1024*i}")
    b(f"  s_waitcnt lgkmcnt(0)")
    for i in range(8): b(f"  ds_read_b128 {vr(TW+4*i,4)}, v6 offset:{8192+1024*i}")
    if SENT2():
        b(f"  s_mov_b32 s11, 200000")
        b.label("p3_poll")
    for i in range(4):
        for e in range(2):
            b(f"  buffer_load_dword v{Bd+2*i+e}, v1, s[{SRD_A}:{SRD_A+3}], s44 offen offset:{e*2048+i*128} sc1")
    b(f"  s_waitcnt vmcnt(0)")
    if SENT2(): sentinel_check(b, Bd, "p3")
    stamp(b, "p3 x2 landed")
    if "nopf" not in OPT and "ntw1" not in OPT and PFN[3]:
        w1_share_base(b, S_T + 8, (PFN[0] + PFN[1] + PFN[2]) * 4096)
        pf_wide(b, P_W1, W1B, S_T + 8, PFN[3], 4, 8, "pf_p3b")
    for i in range(4):
        b(f"  {MF16} {vr(D+4*i,4)}, {vr(GM,2)}, {vr(Bd+2*i,2)}, 0")
    b(f"  s_nop 4")
    PK = 56
    for e in range(2):
        for i in range(4):
            b(f"  v_cvt_pk_bf16_f32 v{PK+4*e+i}, v{D+4*i+2*e}, v{D+4*i+2*e+1}")
    b(f"  ds_write_b128 v3, {vr(PK,4)}")
    b(f"  ds_write_b128 v3, {vr(PK+4,4)} offset:2048")
    b(f"  s_waitcnt lgkmcnt(0)")
    b(f"  s_barrier")
    b(f"  v_lshlrev_b32 v5, 8, v9")
    b(f"  v_lshl_add_u32 v5, v8, 4, v5")
    b(f"  s_lshl_b32 s{S_T+1}, s{S_W}, 11")
    b(f"  s_add_u32 s{S_T+1}, s{S_T+1}, {L3_EX}")
    b(f"  v_add_u32 v5, s{S_T+1}, v5")
    AU = 32
    b(f"  ds_read_b128 {vr(AU,4)}, v5")
    b(f"  ds_read_b128 {vr(AU+4,4)}, v5 offset:1024")
    b(f"  s_waitcnt lgkmcnt(0)")
    b(f"  v_readlane_b32 s{S_T+4}, v{AU}, 0")
    b(f"  v_writelane_b32 v{AU}, 0, 0")
    b(f"  s_nop 1")
    b(f"  s_lshl_b32 s{S_T+4}, s{S_T+4}, 16")
    TT = 160
    for u in range(2):
        for v in range(2):
            for c in range(2):
                d = TT + ((u * 2 + v) * 2 + c) * 4
                b(f"  {MF32} {vr(d,4)}, {vr(AU+4*u,4)}, {vr(M3+4*(2*v+c),4)}, 0")
    CI = 60
    b(f"  v_mov_b32 v{CI}, s{S_T+4}")
    b(f"  v_xor_b32 v{CI+1}, 0x80000000, v{CI}")
    b(f"  v_mov_b32 v{CI+2}, v{CI}")
    b(f"  v_mov_b32 v{CI+3}, v{CI+1}")
    b(f"  s_nop 1")
    A2 = 64; O = 40; W = 80
    for u in range(2):
        for v in range(2):
            t = TT + ((u * 2 + v) * 2) * 4
            tw = TW + ((u * 2 + v) * 2) * 4
            cmul_pk(b, O, O + 4, t, t + 4, tw, tw + 4, W, True)
            for r in range(4):
                b(f"  v_cvt_pk_bf16_f32 v{A2+(u*2+v)*4+r}, v{O+r}, v{O+4+r}")
    Y = 160
    b(f"  s_nop 1")
    for z in range(2):
        for v in range(2):
            d = Y + (z * 2 + v) * 4
            b(f"  {MF32} {vr(d,4)}, {vr(A2+(0*2+v)*4,4)}, {vr(M4+(0*2+z)*4,4)}, {vr(CI,4)}")
    for z in range(2):
        for v in range(2):
            d = Y + (z * 2 + v) * 4
            b(f"  {MF32} {vr(d,4)}, {vr(A2+(1*2+v)*4,4)}, {vr(M4+(1*2+z)*4,4)}, {vr(d,4)}")
    b(f"  s_nop 7")
    X = 40; HP = 32
    stamp(b, "p3 ifft done")
    for z in range(2):
        for dd in range(4):
            y0 = Y + z * 8 + 2 * dd
            xd = XR + 4 * z + dd
            t = 64 + 2 * (dd % 4)
            b(f"  v_lshlrev_b32 v{t}, 16, v{xd}")
            b(f"  v_and_b32 v{t+1}, 0xffff0000, v{xd}")
            b(f"  v_pk_add_f32 {vr(t,2)}, {vr(t,2)}, {vr(y0,2)}")
            b(f"  v_cvt_pk_bf16_f32 v{HP+4*z+dd}, v{t}, v{t+1}")
    for z in range(2):
        b(f"  buffer_store_dwordx4 {vr(HP+4*z,4)}, v4, s[{SRD_C}:{SRD_C+3}], s63 offen offset:{1024*z}{SF}")
    for i in range(8):
        b(f"  v_lshlrev_b32 v{X+2*i}, 16, v{HP+i}")
        b(f"  v_and_b32 v{X+2*i+1}, 0xffff0000, v{HP+i}")
    ln_fast(b, X, 64, S_T + 4, False)
    LP = 72
    stamp(b, "p3 ln done")
    for i in range(8):
        b(f"  v_cvt_pk_bf16_f32 v{LP+i}, v{X+2*i}, v{X+2*i+1}")
    b(f"  v_mul_u32_u24 v3, 80, v8")
    b(f"  v_lshl_add_u32 v3, v9, 4, v3")
    b(f"  s_mul_i32 s{S_T+1}, s{S_W}, {L3_RS}")
    b(f"  s_add_u32 s{S_T+1}, s{S_T+1}, {L3_LN}")
    b(f"  v_add_u32 v3, s{S_T+1}, v3")
    for z in range(2):
        b(f"  ds_write_b128 v3, {vr(LP+4*z,4)} offset:{z*16*80}")
    b(f"  s_waitcnt lgkmcnt(0)")
    b(f"  s_barrier")
    b(f"  v_bfe_u32 v10, v7, 2, 2")
    b(f"  v_mul_u32_u24 v10, {L3_RS}, v10")
    b(f"  v_lshrrev_b32 v11, 5, v7")
    b(f"  v_mul_u32_u24 v12, 80, v11")
    b(f"  v_add_u32 v10, v10, v12")
    b(f"  v_and_b32 v12, 1, v7")
    b(f"  v_lshl_add_u32 v10, v12, 5, v10")
    b(f"  v_bfe_u32 v12, v7, 4, 1")
    b(f"  v_lshl_add_u32 v10, v12, 4, v10")
    b(f"  v_bfe_u32 v12, v7, 1, 1")
    b(f"  v_lshl_add_u32 v10, v12, 3, v10")
    b(f"  s_mul_i32 s{S_T+1}, s{S_W}, {4*80}")
    b(f"  s_add_u32 s{S_T+1}, s{S_T+1}, {L3_LN}")
    b(f"  v_add_u32 v10, s{S_T+1}, v10")
    for ps in range(2):
        b(f"  ds_read_b64_tr_b16 {vr(32+4*ps,2)}, v10 offset:{ps*160}")
        b(f"  ds_read_b64_tr_b16 {vr(34+4*ps,2)}, v10 offset:{ps*160 + 4*L3_RS}")
    b(f"  v_lshlrev_b32 v11, 17, v11")
    b(f"  v_and_b32 v12, 31, v7")
    b(f"  v_lshl_add_u32 v11, v12, 4, v11")
    b(f"  s_lshl_b32 s{S_T+1}, s{S_W}, 19")
    b(f"  s_lshl_b32 s{S_T+2}, s2, 9")
    b(f"  s_add_u32 s{S_T+1}, s{S_T+1}, s{S_T+2}")
    b(f"  s_add_u32 s{S_T+2}, s{S_T+1}, {2*131072}")
    b(f"  s_waitcnt lgkmcnt(2)")
    if "es" in OPT:
        for i in range(4): b(f"  v_min_u32 v{32+i}, 0xfffffffe, v{32+i}")
    b(f"  buffer_store_dwordx4 v[32:35], v11, s[{SRD_D}:{SRD_D+3}], s{S_T+1} offen{SF}")
    b(f"  s_waitcnt lgkmcnt(0)")
    if "es" in OPT:
        for i in range(4): b(f"  v_min_u32 v{36+i}, 0xfffffffe, v{36+i}")
    b(f"  buffer_store_dwordx4 v[36:39], v11, s[{SRD_D}:{SRD_D+3}], s{S_T+2} offen{SF}")
    stamp(b, "p3 stores issued")
    b(f"  s_and_b32 s{S_T+8}, s2, 15")
    arrive(b, 2, S_T + 8, label="x3")
    srd(b, SRD_T, P_W1, W1B)
    b(f"  s_cmp_lt_u32 s{S_W}, 4")
    b(f"  s_cbranch_scc1 p3_nodma")
    b(f"  s_cmp_eq_u32 s62, 0")
    b(f"  s_cbranch_scc1 p3_nodma")
    for n in range(2): loader_issue(b, V_LO, W1F())
    b.label("p3_nodma")

def gemm_core(b, c, pre, after_setup, after_prologue=None, posts=None):
    NB, NS = c.NB, c.NS
    acc = lambda nb: V_ACC + nb * 16
    VT = V_ACC + NB * 16
    VPR = VT + 32
    c.VT, c.VPR = VT, VPR
    c.vend = VPR + 4 * PR
    tf = lambda q: VT + (q % 8) * 4
    pr = lambda j: VPR + (j % PR) * 4
    FPI = 64
    KPI = FPI // NB
    def tread(q):
        ql = q % FPI
        lslot, within = ql // 16, ql % 16
        ks, nb = within // NB, within % NB
        off = lslot * STAGE + ks * 16 * c.rowb
        b(f"  ds_read_b64_tr_b16 {vr(tf(q),2)}, v{V_T+nb} offset:{off}")
        b(f"  ds_read_b64_tr_b16 {vr(tf(q)+2,2)}, v{V_T+nb} offset:{off+4*c.rowb}")
    def pload(j):
        b(f"  buffer_load_dwordx4 {vr(pr(j),4)}, v{V_P}, s[{SRD_P}:{SRD_P+3}], s{S_POFF} offen offset:{(j%4)*1024}{LF}")
        if j % 4 == 3: b(f"  s_add_u32 s{S_POFF}, s{S_POFF}, 4096")
    def mfma(q):
        nb = q % NB; j = q // NB; a = acc(nb)
        if "m16fake" in OPT:
            o = 8 * (j % 2)
            b(f"  v_mfma_f32_16x16x32_bf16 {vr(a+o,4)}, {vr(tf(q),4)}, {vr(pr(j),4)}, {vr(a+o,4)}")
            b(f"  v_mfma_f32_16x16x32_bf16 {vr(a+o+4,4)}, {vr(pr(j),4)}, {vr(tf(q),4)}, {vr(a+o+4,4)}")
            return
        if c.name == "g1":
            b(f"  v_mfma_f32_32x32x16_bf16 {vr(a,16)}, {vr(tf(q),4)}, {vr(pr(j),4)}, {vr(a,16)}")
        else:
            b(f"  v_mfma_f32_32x32x16_bf16 {vr(a,16)}, {vr(pr(j),4)}, {vr(tf(q),4)}, {vr(a,16)}")
    if "prioc" in OPT: b("  s_setprio 2")
    b(f"  s_mov_b32 s{S_POFF}, 0")
    S_EOFF = 18
    if "es" in OPT: b(f"  s_mov_b32 s{S_EOFF}, {3*4096}")
    b(f"  s_mov_b32 s{S_DELTA}, {4*STAGE}")
    b(f"  s_mov_b32 s{S_IT}, {NS//4 - 1}")
    if "es" in OPT:
        b(f"  s_mov_b32 s11, 200000")
        b.label(f"{pre}e0_poll")
        b(f"  buffer_load_dwordx4 {vr(pr(14),4)}, v{V_P}, s[{SRD_P}:{SRD_P+3}], s{S_EOFF} offen offset:2048 sc1")
        b(f"  s_waitcnt vmcnt(0)")
        b(f"  v_max3_u32 v16, v{pr(14)}, v{pr(14)+1}, v{pr(14)+2}")
        b(f"  v_max_u32 v16, v16, v{pr(14)+3}")
        b(f"  v_cmp_eq_u32 vcc, -1, v16")
        b(f"  s_sub_u32 s11, s11, 1")
        b(f"  s_cmp_eq_u32 s11, 0")
        b(f"  s_cbranch_scc1 {pre}e0_got")
        b(f"  s_cmp_lg_u64 vcc, 0")
        b(f"  s_cbranch_scc1 {pre}e0_poll")
        b.label(f"{pre}e0_got")
        b(f"  s_mov_b32 s11, 200000")
        b.label(f"{pre}e_poll")
        for j in range(PR - 2):
            if j % 4 == 0: b(f"  s_mov_b32 s{S_POFF}, {(j//4)*4096}")
            b(f"  buffer_load_dwordx4 {vr(pr(j),4)}, v{V_P}, s[{SRD_P}:{SRD_P+3}], s{S_POFF} offen offset:{(j%4)*1024} sc1")
        b(f"  s_waitcnt vmcnt(0)")
        sentinel_check(b, VPR, f"{pre}e", n=4 * (PR - 2))
        b(f"  s_mov_b32 s{S_POFF}, {3*4096}")
        after_setup()
    else:
        after_setup()
        for j in range(PR - 1): pload(j)
    if after_prologue: after_prologue()
    b("  s_barrier")
    for q in range(DQ): tread(q)
    def body(last):
        for q in range(FPI):
            j = q // NB
            qn = q + DQ
            do_read = not (last and qn >= FPI)
            do_pload = False
            if q % NB == 0:
                rem = KPI - 1 - j
                if (not last) or (j + PR - 1 < KPI):
                    b(f"  s_waitcnt vmcnt({PR-2})")
                    do_pload = True
                else:
                    b(f"  s_waitcnt vmcnt({min(PR-2, rem)})")
            if do_read and qn % 16 == 0:
                b("  s_barrier")
            if do_read and qn == FPI:
                for i in range(NB): b(f"  v_add_u32 v{V_T+i}, s{S_DELTA}, v{V_T+i}")
                b(f"  s_sub_u32 s{S_DELTA}, 0, s{S_DELTA}")
            if q % 2 == 0:
                left = min(DQ - 2, FPI - 2 - q) if last else DQ - 2
                b(f"  s_waitcnt lgkmcnt({2*left})")
            mfma(q)
            if do_pload: pload(j + PR - 1)
            if do_read: tread(qn)
    b.label(f"{pre}_loop")
    body(False)
    b(f"  s_sub_u32 s{S_IT}, s{S_IT}, 1")
    b(f"  s_cmp_lg_u32 s{S_IT}, 0")
    b(f"  s_cbranch_scc1 {pre}_loop")
    if posts is None:
        body(True)
        return
    F = [(q // NB, q % NB) for q in range(16)] + [(4 + r % 12, r // 12) for r in range(48)]
    def tread_f(q):
        j, nb = F[q]
        off = (j // 4) * STAGE + (j % 4) * 16 * c.rowb
        b(f"  ds_read_b64_tr_b16 {vr(tf(q),2)}, v{V_T+nb} offset:{off}")
        b(f"  ds_read_b64_tr_b16 {vr(tf(q)+2,2)}, v{V_T+nb} offset:{off+4*c.rowb}")
    for q in range(FPI):
        j, nb = F[q]
        qn = q + DQ
        first_use = (q < 16 and nb == 0) or (16 <= q < 28)
        if q == 0: b(f"  s_waitcnt vmcnt({PR-2})")
        elif first_use: b(f"  s_waitcnt vmcnt({min(PR-2, KPI - 1 - j)})")
        if q == 9: b("  s_barrier"); b("  s_barrier")
        if q == 13: b("  s_barrier")
        if q % 2 == 0:
            left = min(DQ - 2, FPI - 2 - q)
            b(f"  s_waitcnt lgkmcnt({2*left})")
        a = acc(nb)
        if c.name == "g1":
            b(f"  v_mfma_f32_32x32x16_bf16 {vr(a,16)}, {vr(tf(q),4)}, {vr(pr(j),4)}, {vr(a,16)}")
        else:
            b(f"  v_mfma_f32_32x32x16_bf16 {vr(a,16)}, {vr(pr(j),4)}, {vr(tf(q),4)}, {vr(a,16)}")
        if q == 0: pload(PR - 1)
        if qn < FPI: tread_f(qn)
        if q >= 28:
            blk, r = (q - 16) // 12 - 1, (q - 16) % 12
            fill = posts.get(blk, [])
            if fill and r >= 3:
                n = len(fill); per = -(-n // 9)
                for line in fill[(r - 3) * per:(r - 2) * per]: b(line)

def idle_w1(b):
    srd(b, SRD_PF, P_W1, W1B)
    b(f"  s_and_b32 s51, s50, 7")
    b(f"  s_mul_i32 s51, s51, {256*7168}")
    b(f"  s_lshr_b32 s52, s50, 3")
    b(f"  s_mul_i32 s52, s52, {4*7168}")
    b(f"  s_add_u32 s51, s51, s52")
    b(f"  s_add_u32 s51, s51, {128*7168}")
    b(f"  s_mov_b32 s52, 7")
    b.label("pf_w1b")
    for i in range(4): b(f"  buffer_load_dwordx4 {vr(V_DUMMY,4)}, v29, s[{SRD_PF}:{SRD_PF+3}], s51 offen offset:{1024*i}")
    b(f"  s_add_u32 s51, s51, 4096")
    b(f"  s_waitcnt vmcnt(4)")
    b(f"  s_sub_u32 s52, s52, 1")
    b(f"  s_cmp_lg_u32 s52, 0")
    b(f"  s_cbranch_scc1 pf_w1b")

def idle_w2(b):
    if "idlesc" in OPT:
        srd(b, SRD_PF, P_W2, W1B)
        b(f"  s_mul_i32 s51, s50, {W1B // 256}")
        b(f"  v_lshlrev_b32 v29, 7, v7")
        for i in range(7):
            b(f"  buffer_load_dword v230, v29, s[{SRD_PF}:{SRD_PF+3}], s51 offen")
            b(f"  s_add_u32 s51, s51, 8192")
            if i >= 1: b(f"  s_waitcnt vmcnt(1)")
        b(f"  s_waitcnt vmcnt(0)")
        return
    srd(b, SRD_PF, P_W2, W1B)
    b(f"  s_mul_i32 s51, s50, {W1B // 256}")
    b(f"  s_mov_b32 s52, 14")
    b.label("pf_w2")
    for i in range(4): b(f"  buffer_load_dwordx4 {vr(V_DUMMY,4)}, v29, s[{SRD_PF}:{SRD_PF+3}], s51 offen offset:{1024*i}")
    b(f"  s_add_u32 s51, s51, 4096")
    b(f"  s_waitcnt vmcnt({0 if 'idlepace' in OPT else 4})")
    b(f"  s_sub_u32 s52, s52, 1")
    b(f"  s_cmp_lg_u32 s52, 0")
    b(f"  s_cbranch_scc1 pf_w2")
    b(f"  s_waitcnt vmcnt(0)")

def g1_gelu(b, c, blocks, accof, vaddr):
    K1 = -2.0 * 0.7978845608028654 * 1.4426950408889634
    K2 = K1 * 0.044715
    T = c.VPR
    b(f"  v_mov_b32 v{T}, {hex(f2u(K1))}")
    b(f"  v_mov_b32 v{T+1}, {hex(f2u(K1))}")
    b(f"  v_mov_b32 v{T+2}, {hex(f2u(K2))}")
    b(f"  v_mov_b32 v{T+3}, {hex(f2u(K2))}")
    b(f"  s_nop 7")
    W = T + 8
    for fb in blocks:
        a = accof(fb); t = W; o = W + 16 + 8 * (fb % 2)
        for h in range(0, 16, 2): b(f"  v_pk_mul_f32 {vr(t+h,2)}, {vr(a+h,2)}, {vr(a+h,2)}")
        for h in range(0, 16, 2): b(f"  v_pk_fma_f32 {vr(t+h,2)}, {vr(t+h,2)}, {vr(T+2,2)}, {vr(T,2)}")
        for h in range(0, 16, 2): b(f"  v_pk_mul_f32 {vr(t+h,2)}, {vr(t+h,2)}, {vr(a+h,2)}")
        for r in range(16): b(f"  v_exp_f32 v{t+r}, v{t+r}")
        for h in range(0, 16, 2): b(f"  v_pk_add_f32 {vr(t+h,2)}, {vr(t+h,2)}, 1.0 op_sel_hi:[1,0]")
        for r in range(16): b(f"  v_rcp_f32 v{t+r}, v{t+r}")
        for h in range(0, 16, 2): b(f"  v_pk_mul_f32 {vr(t+h,2)}, {vr(a+h,2)}, {vr(t+h,2)}")
        for i in range(4):
            b(f"  v_cvt_pk_bf16_f32 v{o+2*i}, v{t+4*i}, v{t+4*i+1}")
            b(f"  v_cvt_pk_bf16_f32 v{o+2*i+1}, v{t+4*i+2}, v{t+4*i+3}")
        for ip in range(2):
            oo = o + 4 * ip
            b(f"  s_mov_b32 s{S_TMP+1}, {(2*fb+ip)*1024}")
            b(f"  s_nop 0")
            b(f"  v_permlane32_swap_b32 v{oo}, v{oo+2}")
            b(f"  v_permlane32_swap_b32 v{oo+1}, v{oo+3}")
            b(f"  buffer_store_dwordx4 {vr(oo,4)}, v{vaddr}, s[{SRD_O}:{SRD_O+3}], s{S_TMP+1} offen{SF}")

def gelu_lines(fb, a, CT, t, o, vaddr):
    L = []
    for h in range(0, 16, 2): L.append(f"  v_pk_mul_f32 {vr(t+h,2)}, {vr(a+h,2)}, {vr(a+h,2)}")
    for h in range(0, 16, 2): L.append(f"  v_pk_fma_f32 {vr(t+h,2)}, {vr(t+h,2)}, {vr(CT+2,2)}, {vr(CT,2)}")
    for h in range(0, 16, 2): L.append(f"  v_pk_mul_f32 {vr(t+h,2)}, {vr(t+h,2)}, {vr(a+h,2)}")
    for r in range(16): L.append(f"  v_exp_f32 v{t+r}, v{t+r}")
    for h in range(0, 16, 2): L.append(f"  v_pk_add_f32 {vr(t+h,2)}, {vr(t+h,2)}, 1.0 op_sel_hi:[1,0]")
    for r in range(16): L.append(f"  v_rcp_f32 v{t+r}, v{t+r}")
    for h in range(0, 16, 2): L.append(f"  v_pk_mul_f32 {vr(t+h,2)}, {vr(a+h,2)}, {vr(t+h,2)}")
    for i in range(4):
        L.append(f"  v_cvt_pk_bf16_f32 v{o+2*i}, v{t+4*i}, v{t+4*i+1}")
        L.append(f"  v_cvt_pk_bf16_f32 v{o+2*i+1}, v{t+4*i+2}, v{t+4*i+3}")
    if "es" in OPT:
        for i in range(8): L.append(f"  v_min_u32 v{o+i}, 0xfffffffe, v{o+i}")
    for ip in range(2):
        oo = o + 4 * ip
        L.append(f"  s_mov_b32 s{S_TMP+1}, {(2*fb+ip)*1024}")
        L.append(f"  s_nop 1")
        L.append(f"  v_permlane32_swap_b32 v{oo}, v{oo+2}")
        L.append(f"  v_permlane32_swap_b32 v{oo+1}, v{oo+3}")
        L.append(f"  buffer_store_dwordx4 {vr(oo,4)}, v{vaddr}, s[{SRD_O}:{SRD_O+3}], s{S_TMP+1} offen{SF}")
    return L

def g1(b):
    c = g1_cfg()
    b(f"  s_cmp_eq_u32 s62, 0")
    b(f"  s_cbranch_scc1 g1_inactive")
    srd(b, SRD_P, P_WS, 4 << 20, WS_LN2)
    srd(b, SRD_T, P_W1, W1B)
    srd(b, SRD_O, P_WS, U_BYTES, WS_U)
    srd(b, SRD_X, P_B1, 3584 * 2)
    b(f"  s_cmp_ge_u32 s{S_W}, 4")
    b(f"  s_cbranch_scc1 g1_loader")
    lane_geom(b)
    b(f"  s_lshl_b32 s{S_TMP}, s61, 2")
    b(f"  s_add_u32 s{S_TMP}, s{S_TMP}, s{S_W}            ; dblk")
    b(f"  s_lshl_b32 s{S_TMP+2}, s{S_TMP}, 17")
    b(f"  v_lshlrev_b32 v10, 4, v7")
    b(f"  v_add_u32 v{V_P}, s{S_TMP+2}, v10")
    b(f"  s_lshl_b32 s{S_TMP+1}, s60, 8       ; f0*2")
    b(f"  v_lshlrev_b32 v11, 3, v9")
    b(f"  v_add_u32 v11, s{S_TMP+1}, v11")
    BV = 192
    for fb in range(4):
        for i in range(4):
            b(f"  buffer_load_dwordx2 {vr(BV+2*(4*fb+i),2)}, v11, s[{SRD_X}:{SRD_X+3}], 0 offen offset:{64*fb+16*i}")
    b(f"  v_lshl_add_u32 v20, v9, 3, v18")
    b(f"  v_lshlrev_b32 v20, 8, v20")
    b(f"  v_lshl_add_u32 v20, v18, 6, v20")
    b(f"  v_lshl_add_u32 v20, v19, 5, v20")
    b(f"  v_lshl_add_u32 v{V_T}, v22, 3, v20")
    for fb in range(1, 4):
        b(f"  v_xor_b32 v{V_T+fb}, {64*fb}, v{V_T}")
    b(f"  s_mul_i32 s{S_TMP+2}, s{S_TMP}, 229376")
    b(f"  s_lshl_b32 s{S_TMP+1}, s60, 13")
    b(f"  s_add_u32 s{S_TMP+1}, s{S_TMP+1}, s{S_TMP+2}")
    b(f"  v_add_u32 v28, s{S_TMP+1}, v10")
    b(f"  s_waitcnt vmcnt(0)")
    for fb in range(4):
        for i in range(4):
            bv = BV + 2 * (4 * fb + i); a = V_ACC + fb * 16 + 4 * i
            b(f"  v_lshlrev_b32 v{a}, 16, v{bv}")
            b(f"  v_and_b32 v{a+1}, 0xffff0000, v{bv}")
            b(f"  v_lshlrev_b32 v{a+2}, 16, v{bv+1}")
            b(f"  v_and_b32 v{a+3}, 0xffff0000, v{bv+1}")
    def w3():
        wait(b, 2, 16, "x3c")
        stamp(b, "x3 released")
        stamp(b, "c:g1 start")
    SKEW = "skew" in OPT
    if SKEW:
        K1 = -2.0 * 0.7978845608028654 * 1.4426950408889634
        K2 = K1 * 0.044715
        CT, GT, GO = 192, 196, 212
        for i, kv in enumerate((K1, K1, K2, K2)): b(f"  v_mov_b32 v{CT+i}, {hex(f2u(kv))}")
        posts = {fb: gelu_lines(fb, V_ACC + 16 * fb, CT, GT, GO, 28) for fb in range(3)}
        gemm_core(b, c, "g1", w3, None, posts)
    else:
        gemm_core(b, c, "g1", w3)
    stamp(b, "c:g1 end")
    stamp(b, "g1 main done")
    E8 = "epi8" in OPT
    XO = 4 * STAGE
    if E8:
        b(f"  s_lshl_b32 s{S_TMP+1}, s{S_W}, 13")
        b(f"  s_add_u32 s{S_TMP+1}, s{S_TMP+1}, {XO}")
        b(f"  v_add_u32 v12, s{S_TMP+1}, v10")
        b(f"  s_nop 9")
        for k in range(8): b(f"  ds_write_b128 v12, {vr(V_ACC+32+4*k,4)} offset:{1024*k}")
        b(f"  s_waitcnt lgkmcnt(0)")
        b(f"  s_barrier")
    if SKEW:
        b(f"  s_nop 9")
        for line in gelu_lines(3, V_ACC + 48, CT, GT, GO, 28): b(line)
    else:
        g1_gelu(b, c, range(2) if E8 else range(4), lambda fb: V_ACC + fb * 16, 28)
    stamp(b, "g1 stores issued")
    b(f"  s_waitcnt vmcnt(0)")
    b(f"  s_branch g1_join")
    b.label("g1_loader")
    b(f"  s_sub_u32 s50, s{S_W}, 4")
    b(f"  s_lshl_b32 s49, s50, 10")
    b(f"  s_add_u32 s{S_N+1}, s49, {R*STAGE}")
    b(f"  s_barrier                      ; matches the barrier inside wait(x3)")
    loader_loop(b, c.NS, "g1", W1F())
    stamp(b, "g1 main done")
    g2_prologue_loader(b)
    if "epi8" in OPT:
        b(f"  s_sub_u32 s{S_TMP}, s{S_W}, 4")
        b(f"  s_lshl_b32 s{S_TMP+1}, s{S_TMP}, 13")
        b(f"  s_add_u32 s{S_TMP+1}, s{S_TMP+1}, {4*STAGE}")
        b(f"  v_lshlrev_b32 v10, 4, v7")
        b(f"  v_add_u32 v12, s{S_TMP+1}, v10")
        b(f"  s_lshl_b32 s{S_TMP+1}, s61, 2")
        b(f"  s_add_u32 s{S_TMP}, s{S_TMP}, s{S_TMP+1}      ; dblk")
        b(f"  s_mul_i32 s{S_TMP+2}, s{S_TMP}, 229376")
        b(f"  s_lshl_b32 s{S_TMP+1}, s60, 13")
        b(f"  s_add_u32 s{S_TMP+1}, s{S_TMP+1}, s{S_TMP+2}")
        b(f"  v_add_u32 v28, s{S_TMP+1}, v10")
        b(f"  s_barrier")
        for k in range(8): b(f"  ds_read_b128 {vr(V_ACC+4*k,4)}, v12 offset:{1024*k}")
        b(f"  s_waitcnt lgkmcnt(0)")
        g1_gelu(b, c, range(2, 4), lambda fb: V_ACC + (fb - 2) * 16, 28)
        b(f"  s_waitcnt vmcnt(0)")
    stamp(b, "g1 stores issued")
    b.label("g1_join")
    if SK():
        b(f"  s_cmp_ge_u32 s60, 14")
        b(f"  s_cselect_b32 s18, 1, 0")
        b(f"  s_lshl_b32 s10, s61, 1")
        b(f"  s_add_u32 s18, s18, s10")
        arrive(b, 3, 18, label="x4", drained=True)
    else:
        arrive(b, 3, 61, label="x4", drained=True)
    b(f"  s_branch g2_start")
    b.label("g1_inactive")
    if "nopf" not in OPT:
        b(f"  s_sub_u32 s50, s2, 224")
        b(f"  s_lshl_b32 s50, s50, 3")
        b(f"  s_add_u32 s50, s50, s{S_W}")
        b(f"  v_lshlrev_b32 v29, 4, v7")
        if "noidle" not in OPT: idle_w2(b)
    if "es" in OPT: wait(b, 2, 16, "x3i")
    b(f"  s_cmp_lt_u32 s{S_W}, 4")
    b(f"  s_cbranch_scc1 g2_start_inactive")
    g2_prologue_loader(b)
    b.label("g2_start_inactive")
    return c

def g2_prologue_loader(b):
    g2_ids(b)
    srd(b, SRD_T, P_W2, W1B)
    g2_loader_addr(b)
    loader_init(b, (64 if SK() else 128) * 4096)
    for n in range(2): loader_issue(b, V_LO, W2F())

def g2_sk(b):
    c = g1_cfg(); c.name = "g2"; c.NS = 28
    b.label("g2_start")
    g2_ids(b)
    srd(b, SRD_P, P_WS, U_BYTES, WS_U)
    srd(b, SRD_O, P_OUT, 4 << 20)
    srd(b, SRD_X, P_B2, 2048 * 2)
    srd(b, SRD_Y, P_WS, 4 << 20, WS_H)
    b(f"  s_cmp_ge_u32 s{S_W}, 4")
    b(f"  s_cbranch_scc1 g2_loader")
    lane_geom(b)
    b(f"  s_lshl_b32 s{S_TMP}, s{S_TILE_A}, 2")
    b(f"  s_add_u32 s{S_TMP}, s{S_TMP}, s{S_W}        ; dblk")
    b(f"  s_mul_i32 s{S_TMP+2}, s{S_TMP}, 229376")
    b(f"  s_mul_i32 s{S_TMP+3}, s19, {112*1024}       ; k half")
    b(f"  s_add_u32 s{S_TMP+2}, s{S_TMP+2}, s{S_TMP+3}")
    b(f"  v_lshlrev_b32 v10, 4, v7")
    b(f"  v_add_u32 v{V_P}, s{S_TMP+2}, v10")
    b(f"  s_lshl_b32 s{S_TMP+1}, s{S_TILE_B}, 7")
    b(f"  s_lshl_b32 s{S_TMP+3}, s19, 6")
    b(f"  s_add_u32 s{S_TMP+1}, s{S_TMP+1}, s{S_TMP+3}")
    b(f"  v_add_u32 v11, s{S_TMP+1}, v8              ; s0 + s'")
    b(f"  v_lshlrev_b32 v16, 1, v11")
    for sb in range(2):
        b(f"  buffer_load_ushort v{12+sb}, v16, s[{SRD_X}:{SRD_X+3}], 0 offen offset:{64*sb}")
    b(f"  v_lshlrev_b32 v17, 11, v11")
    b(f"  v_lshl_add_u32 v17, v9, 5, v17")
    b(f"  s_lshl_b32 s{S_TMP+2}, s{S_TMP}, 6")
    b(f"  v_add_u32 v28, s{S_TMP+2}, v17")
    HV = 192
    b(f"  v_lshl_add_u32 v20, v9, 3, v18")
    b(f"  v_lshlrev_b32 v20, 8, v20")
    b(f"  v_lshl_add_u32 v20, v18, 6, v20")
    b(f"  v_lshl_add_u32 v20, v19, 5, v20")
    b(f"  v_lshl_add_u32 v{V_T}, v22, 3, v20")
    b(f"  s_cmp_eq_u32 s19, 0")
    b(f"  s_cselect_b32 s{S_TMP+3}, 128, 0")
    b(f"  v_xor_b32 v{V_T}, s{S_TMP+3}, v{V_T}")
    for fb in range(1, 4):
        b(f"  v_xor_b32 v{V_T+fb}, {64*fb}, v{V_T}")
    b(f"  s_lshl_b32 s{S_TMP+1}, s{S_W}, 12")
    b(f"  s_lshl_b32 s{S_TMP+2}, s2, 14")
    b(f"  s_add_u32 s{S_TMP+2}, s{S_TMP+2}, s{S_TMP+1}")
    b(f"  v_add_u32 v29, s{S_TMP+2}, v10")
    b(f"  s_xor_b32 s{S_TMP+2}, s2, 1")
    b(f"  s_lshl_b32 s{S_TMP+2}, s{S_TMP+2}, 14")
    b(f"  s_add_u32 s{S_TMP+2}, s{S_TMP+2}, s{S_TMP+1}")
    b(f"  v_add_u32 v30, s{S_TMP+2}, v10")
    for i in range(64): b(f"  v_mov_b32 v{V_ACC+i}, 0")
    def w4():
        b(f"  s_lshl_b32 s18, s{S_TILE_A}, 1")
        b(f"  s_add_u32 s18, s18, s19")
        wait(b, 3, 14, "x4c", single_sreg=18)
        stamp(b, "x4 released")
        stamp(b, "c:g2 start")
    def hloads():
        for sb in range(2):
            b(f"  s_mov_b32 s{S_TMP+1}, {sb*65536}")
            b(f"  buffer_load_dwordx4 {vr(HV+8*sb,4)}, v28, s[{SRD_Y}:{SRD_Y+3}], s{S_TMP+1} offen{LF}")
            b(f"  buffer_load_dwordx4 {vr(HV+8*sb+4,4)}, v28, s[{SRD_Y}:{SRD_Y+3}], s{S_TMP+1} offen offset:16{LF}")
    srd_later = True
    def send_lines(k):
        T0 = 208 + 8 * k; a = V_ACC + 16 * k
        L = [f"  v_cvt_pk_bf16_f32 v{T0+i}, v{a+2*i}, v{a+2*i+1}" for i in range(8)]
        L += [f"  v_min_u32 v{T0+i}, 0xfffffffe, v{T0+i}" for i in range(8)]
        L += [f"  buffer_store_dwordx4 {vr(T0+4*p,4)}, v30, s[{SRD_X}:{SRD_X+3}], 0 offen offset:{(2*k+p)*1024}{SF}" for p in range(2)]
        return L
    def hloads2():
        hloads()
    if "skew" in OPT:
        def w4x():
            w4()
        def hl():
            hloads()
        b(f"  s_waitcnt vmcnt(0)")
        srd(b, SRD_X, P_WS, 4 << 20, WS_XCH)
        gemm_core(b, c, "g2", w4, hloads, {0: send_lines(0), 1: send_lines(1)})
    else:
        gemm_core(b, c, "g2", w4, hloads)
    stamp(b, "c:g2 end")
    stamp(b, "g2 main done")
    T = c.VT
    if "skew" not in OPT:
        srd(b, SRD_X, P_WS, 4 << 20, WS_XCH)
        b(f"  s_nop 9")
        for k in range(2):
            for line in send_lines(k): b(line)
    KEEP = V_ACC + 32
    RX = c.VPR
    b(f"  s_mov_b32 s11, 200000")
    b.label("g2x_poll")
    for k in range(4):
        b(f"  buffer_load_dwordx4 {vr(RX+4*k,4)}, v29, s[{SRD_X}:{SRD_X+3}], 0 offen offset:{k*1024} sc1")
    b(f"  s_waitcnt vmcnt(0)")
    sentinel_check(b, RX, "g2x", n=16)
    stamp(b, "g2 x landed")
    b(f"  s_mov_b32 s{S_TMP}, 0xffff0000")
    for blk in range(2):
        for i in range(8):
            a = KEEP + blk * 16 + 2 * i; r = RX + 8 * blk + i
            b(f"  v_lshlrev_b32 v16, 16, v{r}")
            b(f"  v_and_b32 v17, s{S_TMP}, v{r}")
            b(f"  v_add_f32 v{a}, v{a}, v16")
            b(f"  v_add_f32 v{a+1}, v{a+1}, v17")
    for sb in range(2):
        b(f"  v_lshlrev_b32 v{12+sb}, 16, v{12+sb}")
    OL = "outlds" in OPT
    if OL:
        OS = 4 * STAGE
        b(f"  v_mul_u32_u24 v14, 272, v8           ; s' * 272")
        b(f"  v_lshl_add_u32 v14, v9, 5, v14       ; + h*32")
        b(f"  s_lshl_b32 s{S_TMP+1}, s{S_W}, 6")
        b(f"  s_add_u32 s{S_TMP+1}, s{S_TMP+1}, {OS}")
        b(f"  v_add_u32 v14, s{S_TMP+1}, v14")
    for sb in range(2):
        for half in range(2):
            o = T + 4 * ((sb * 2 + half) % 2) if not OL else T + 16 + 4 * (sb * 2 + half)
            for dd in range(4):
                a = KEEP + sb * 16 + half * 8 + 2 * dd
                hv = HV + 8 * sb + 4 * half + dd
                t0 = T + 8 + 2 * dd if OL else T + 8 + 4 * dd
                b(f"  v_lshlrev_b32 v{t0}, 16, v{hv}")
                b(f"  v_and_b32 v{t0+1}, s{S_TMP}, v{hv}")
                b(f"  v_pk_add_f32 {vr(t0,2)}, {vr(t0,2)}, {vr(a,2)}")
                b(f"  v_add_f32 v{t0}, v{t0}, v{12+sb}")
                b(f"  v_add_f32 v{t0+1}, v{t0+1}, v{12+sb}")
                b(f"  v_cvt_pk_bf16_f32 v{o+dd}, v{t0}, v{t0+1}")
            if OL:
                b(f"  ds_write_b128 v14, {vr(o,4)} offset:{sb*32*272 + 16*half}")
            else:
                b(f"  s_mov_b32 s{S_TMP+1}, {sb*65536}")
                if "noout" not in OPT: b(f"  buffer_store_dwordx4 {vr(o,4)}, v28, s[{SRD_O}:{SRD_O+3}], s{S_TMP+1} offen offset:{16*half}{OF()}")
    if OL:
        b(f"  v_lshrrev_b32 v15, 4, v7")
        b(f"  s_lshl_b32 s{S_TMP+1}, s{S_W}, 4")
        b(f"  v_add_u32 v15, s{S_TMP+1}, v15          ; row (i = 0)")
        b(f"  v_and_b32 v16, 15, v7")
        b(f"  v_mul_u32_u24 v14, 272, v15")
        b(f"  v_lshl_add_u32 v14, v16, 4, v14")
        b(f"  v_add_u32 v14, {OS}, v14")
        b(f"  s_lshl_b32 s{S_TMP+1}, s{S_TILE_B}, 7")
        b(f"  s_lshl_b32 s{S_TMP+2}, s19, 6")
        b(f"  s_add_u32 s{S_TMP+1}, s{S_TMP+1}, s{S_TMP+2}")
        b(f"  v_add_u32 v15, s{S_TMP+1}, v15")
        b(f"  v_lshlrev_b32 v15, 11, v15")
        b(f"  v_lshl_add_u32 v15, v16, 4, v15")
        b(f"  s_lshl_b32 s{S_TMP+1}, s{S_TILE_A}, 8")
        b(f"  v_add_u32 v15, s{S_TMP+1}, v15")
        b(f"  s_waitcnt lgkmcnt(0)")
        b(f"  s_barrier")
        for i in range(4): b(f"  ds_read_b128 {vr(T+4*i,4)}, v14 offset:{i*4*272}")
        for i in range(4):
            b(f"  s_waitcnt lgkmcnt({3-i})")
            b(f"  s_mov_b32 s{S_TMP+1}, {i*4*2048}")
            b(f"  buffer_store_dwordx4 {vr(T+4*i,4)}, v15, s[{SRD_O}:{SRD_O+3}], s{S_TMP+1} offen{OF()}")
    stamp(b, "g2 stores issued")
    b(f"  s_branch g2_done")
    b.label("g2_loader")
    b(f"  s_barrier                      ; matches the barrier inside wait(x4)")
    loader_loop(b, c.NS, "g2", W2F())
    b.label("g2_done")

def g2(b):
    if SK(): return g2_sk(b)
    c = g2_cfg()
    b.label("g2_start")
    g2_ids(b)
    srd(b, SRD_P, P_WS, U_BYTES, WS_U)
    srd(b, SRD_O, P_OUT, 4 << 20)
    srd(b, SRD_X, P_B2, 2048 * 2)
    srd(b, SRD_Y, P_WS, 4 << 20, WS_H)
    b(f"  s_cmp_ge_u32 s{S_W}, 4")
    b(f"  s_cbranch_scc1 g2_loader")
    lane_geom(b)
    b(f"  s_lshl_b32 s{S_TMP}, s{S_TILE_A}, 2")
    b(f"  s_add_u32 s{S_TMP}, s{S_TMP}, s{S_W}        ; dblk")
    b(f"  s_mul_i32 s{S_TMP+2}, s{S_TMP}, 229376")
    b(f"  v_lshlrev_b32 v10, 4, v7")
    b(f"  v_add_u32 v{V_P}, s{S_TMP+2}, v10")
    b(f"  s_lshl_b32 s{S_TMP+1}, s{S_TILE_B}, 6       ; s0")
    b(f"  v_add_u32 v11, s{S_TMP+1}, v8              ; s0 + s'")
    b(f"  v_lshlrev_b32 v16, 1, v11")
    for sb in range(2):
        b(f"  buffer_load_ushort v{12+sb}, v16, s[{SRD_X}:{SRD_X+3}], 0 offen offset:{64*sb}")
    b(f"  v_lshlrev_b32 v17, 11, v11")
    b(f"  v_lshl_add_u32 v17, v9, 5, v17")
    b(f"  s_lshl_b32 s{S_TMP+2}, s{S_TMP}, 6")
    b(f"  v_add_u32 v28, s{S_TMP+2}, v17")
    HV = 160
    b(f"  v_lshl_add_u32 v20, v9, 3, v18            ; row")
    b(f"  v_bfe_u32 v21, v18, 1, 1")
    b(f"  v_lshlrev_b32 v20, 7, v20")
    b(f"  v_lshl_add_u32 v20, v21, 6, v20")
    b(f"  v_lshl_add_u32 v20, v19, 5, v20")
    b(f"  v_lshl_add_u32 v{V_T}, v22, 3, v20")
    b(f"  v_xor_b32 v{V_T+1}, 64, v{V_T}")
    for i in range(32): b(f"  v_mov_b32 v{V_ACC+i}, 0")
    def w4():
        wait(b, 3, 28, "x4c", single_sreg=S_TILE_A)
        stamp(b, "x4 released")
        stamp(b, "c:g2 start")
    def hloads():
        for sb in range(2):
            b(f"  s_mov_b32 s{S_TMP+1}, {sb*65536}")
            b(f"  buffer_load_dwordx4 {vr(HV+8*sb,4)}, v28, s[{SRD_Y}:{SRD_Y+3}], s{S_TMP+1} offen{LF}")
            b(f"  buffer_load_dwordx4 {vr(HV+8*sb+4,4)}, v28, s[{SRD_Y}:{SRD_Y+3}], s{S_TMP+1} offen offset:16{LF}")
    gemm_core(b, c, "g2", w4, hloads)
    stamp(b, "c:g2 end")
    stamp(b, "g2 main done")
    T = c.VT
    b(f"  s_mov_b32 s{S_TMP}, 0xffff0000")
    for sb in range(2):
        b(f"  v_lshlrev_b32 v{12+sb}, 16, v{12+sb}")
    b(f"  s_nop 9")
    for sb in range(2):
        for half in range(2):
            o = T + 4 * ((sb * 2 + half) % 2)
            for dd in range(4):
                a = V_ACC + sb * 16 + half * 8 + 2 * dd
                hv = HV + 8 * sb + 4 * half + dd
                t0 = T + 8 + 4 * dd
                b(f"  v_cvt_pk_bf16_f32 v{t0}, v{a}, v{a+1}")
                b(f"  v_and_b32 v{t0+1}, s{S_TMP}, v{t0}")
                b(f"  v_lshlrev_b32 v{t0}, 16, v{t0}")
                b(f"  v_add_f32 v{t0}, v{t0}, v{12+sb}")
                b(f"  v_add_f32 v{t0+1}, v{t0+1}, v{12+sb}")
                b(f"  v_cvt_pk_bf16_f32 v{t0}, v{t0}, v{t0+1}")
                b(f"  v_and_b32 v{t0+1}, s{S_TMP}, v{t0}")
                b(f"  v_lshlrev_b32 v{t0}, 16, v{t0}")
                b(f"  v_lshlrev_b32 v{t0+2}, 16, v{hv}")
                b(f"  v_and_b32 v{t0+3}, s{S_TMP}, v{hv}")
                b(f"  v_add_f32 v{t0}, v{t0}, v{t0+2}")
                b(f"  v_add_f32 v{t0+1}, v{t0+1}, v{t0+3}")
                b(f"  v_cvt_pk_bf16_f32 v{o+dd}, v{t0}, v{t0+1}")
            b(f"  s_mov_b32 s{S_TMP+1}, {sb*65536}")
            b(f"  buffer_store_dwordx4 {vr(o,4)}, v28, s[{SRD_O}:{SRD_O+3}], s{S_TMP+1} offen offset:{16*half}")
    stamp(b, "g2 stores issued")
    b(f"  s_branch g2_done")
    b.label("g2_loader")
    b(f"  s_barrier                      ; matches the barrier inside wait(x4)")
    loader_loop(b, c.NS, "g2", W2F())
    b.label("g2_done")

def build():
    NAME = "sequential_preLN__spectral_gfnet__mixer_token_mlp__prompt"
    hdr = open(f"cdna_kernels/{NAME}.s.ref").read().split("; Override launch")[0]
    K = NAME + "_kernel"
    b = B()
    b(hdr.rstrip("\n"))
    b(f"; @launch grid=(256,1,1) block=(512,1,1) lds={LDS_TOTAL}")
    b('.amdgcn_target "amdgcn-amd-amdhsa--gfx950"\n.text')
    b(f".globl {K}\n.p2align 8\n.type {K},@function\n{K}:")
    b(f"  s_cmp_ge_u32 s2, 256\n  s_cbranch_scc1 k_exit")
    if "stamp" in OPT: b("  v_mov_b32 v231, 0")
    stamp(b, "entry")
    b(f"  s_load_dwordx4 s[{P_X}:{P_X+3}], s[0:1], 0        ; x, w_r")
    b(f"  s_load_dwordx2 s[{P_WI}:{P_WI+1}], s[0:1], 16")
    b(f"  s_load_dwordx2 s[{P_W1}:{P_W1+1}], s[0:1], 32")
    b(f"  s_load_dwordx4 s[{P_B1}:{P_B1+3}], s[0:1], 40     ; b1, w2")
    b(f"  s_load_dwordx4 s[{P_B2}:{P_B2+3}], s[0:1], 56     ; b2, out")
    b(f"  s_load_dwordx4 s[{P_DBG}:{P_DBG+3}], s[0:1], 72")
    b(f"  v_lshrrev_b32 v6, 6, v0")
    b(f"  v_and_b32 v7, 63, v0        ; lane")
    b(f"  v_readfirstlane_b32 s{S_W}, v6")
    b(f"  v_and_b32 v8, 15, v7          ; c")
    b(f"  v_lshrrev_b32 v9, 4, v7       ; g")
    b(f"  s_waitcnt lgkmcnt(0)")
    srd(b, SRD_CNT, P_WS, 65536, WS_CNT)
    p1(b)
    p2_setup(b)
    wait(b, 0, 16, "x1c")
    stamp(b, "x1 released")
    p2_main(b)
    p3_setup(b)
    if SENT2(): b("  s_barrier")
    else: wait(b, 1, 16, "x2c")
    stamp(b, "x2 released")
    p3_main(b)
    g1(b)
    g2(b)
    b(f"  s_waitcnt vmcnt(0)")
    stamp(b, "end")
    stamp_flush(b)
    b("k_exit:\n  s_endpgm")
    b(kd(K, 240, sgpr=102))
    return b.text()

if __name__ == "__main__":
    out = sys.argv[1]
    OPT.update(sys.argv[2:])
    if "lfplain" not in OPT: LF = " sc1"
    for o in sys.argv[2:]:
        if o.startswith("pfn="): PFN[:] = [int(c) for c in o[4:].split(",")]
    gemm.OPT.update(sys.argv[2:])
    t = build()
    open(out, "w").write(t)
    rep = check_text(t)
    print("\n".join(rep) if rep else "no hazards found", "| stamps:", nstamp[0])
```

```python
import sys
from asmlib import *
import gemm, fft
from gemm import (srd, f2u, WS_X1, WS_X2, WS_H, WS_LN2, WS_U, U_BYTES, S_W, R, STAGE, PR, DQ,
                  V_P, V_T, V_ACC, S_POFF, S_IT, S_DELTA, SRD_P, SRD_T, SRD_O, SRD_X, SRD_Y, S_TILE_A, S_TILE_B, S_TMP,
                  g1_cfg, g2_cfg, lane_geom)
from fft import sincos, wave_reduce, ln_finish, layernorm16, cmul_pk, gmat, MF32, MF16

OPT = set()
N7 = [0]
WPN = [0]
PFN = [0, 4, 0, 4]
WS_CNT = 30 << 20
WS_STAMP = 31 << 20
WS_WP = 32 << 20
WS_XCH = 24 << 20
W1B = 2048 * 3584 * 2
WB = 2048 * 1026

P_X, P_WR, P_WI, P_W1, P_B1, P_W2, P_B2, P_OUT, P_DBG, P_WS = 64, 66, 68, 70, 72, 74, 76, 78, 80, 82
SRD_CNT = 12
S_T = 46
SRD_A, SRD_B, SRD_C, SRD_D = 24, 28, 32, 36
SRD_PF = 56
S_STAMP = 84
SF = " sc1"
LF = ""

L1_M1, L1_M2, L1_TW, L1_EX = 0, 4096, 8192, 16384
L2_F = 32768; L2_X = L2_F + 2048; L2_W = L2_X + 16 * 1040
L3_M3 = 98304; L3_M4 = L3_M3 + 4096; L3_TW = L3_M3 + 8192; L3_EX = L3_M3 + 16384
L3_LN = L3_EX + 16384; L3_RS = 2624
LDS_TOTAL = L3_LN + 8 * L3_RS
assert LDS_TOTAL <= 163840

STAMPS = ["entry", "p1 x landed", "p1 stores issued", "p1 arrived", "x1 released", "p2 x landed", "p2 stores issued",
          "x2 released", "p3 x2 landed", "p3 stores issued", "x3 released", "g1 main done", "g1 stores issued", "x4 released",
          "g2 main done", "g2 stores issued", "end", "x1 drained", "x2 drained", "x3 drained", "x4 drained", "p1 tables done", "p1 ln done", "p1 fft done", "p3 ifft done", "p3 ln done", "c:g1 start", "c:g1 end", "c:g2 start", "c:g2 end", "g2 x landed", "p2 w landed"]
nstamp = [len(STAMPS)]
SENT = lambda: "bar" not in OPT
SENT2 = lambda: "bar" not in OPT or "sent2" in OPT
SK = lambda: "nosk" not in OPT
W1F = lambda: " nt" if "ntw1" in OPT else ""
W2F = lambda: " nt" if "ntw2" in OPT else ""
XF = lambda: " nt" if ("ntx" in OPT or "ntx1" in OPT) else ""
OF = lambda: " sc1" if "outsc1" in OPT else (" nt" if "outnt" in OPT else "")
WF = lambda: " nt" if ("ntx" in OPT or "ntw" in OPT) else ""
L_XS = 69632
def stamp(b, name):
    if "stamp" not in OPT: return
    i = STAMPS.index(name)
    op = "s_memtime" if name.startswith("c:") else "s_memrealtime"
    b(f"  {op} s[{S_STAMP}:{S_STAMP+1}]   ; stamp {i}: {name}")
    b(f"  s_waitcnt lgkmcnt(0)")
    b(f"  v_writelane_b32 v231, s{S_STAMP}, {i}")

def stamp_flush(b):
    if "stamp" not in OPT: return
    if "dbgmax" in OPT:
        SEL = [1, 23, 2, 17, 3, 4, 5, 6, 18, 7, 8, 9, 19, 10]
        srd(b, 24, P_DBG, 256)
        b(f"  v_readlane_b32 s46, v231, 0")
        b(f"  s_sub_u32 s47, 0, s46")
        b(f"  v_mov_b32 v3, 0")
        b(f"  v_writelane_b32 v3, s47, 0")
        b(f"  v_writelane_b32 v3, s46, 15")
        for i, st in enumerate(SEL):
            b(f"  v_readlane_b32 s46, v231, {st}")
            b(f"  s_nop 3")
            b(f"  v_writelane_b32 v3, s46, {i+1}")
        b(f"  v_lshlrev_b32 v2, 2, v7")
        b(f"  s_mov_b64 s[48:49], exec")
        b(f"  s_mov_b64 exec, 0xffff")
        b(f"  buffer_atomic_umax v3, v2, s[24:27], 0 offen sc1")
        b(f"  s_mov_b64 exec, s[48:49]")
        return
    if "dbgtime" in OPT:
        b(f"  s_cmp_lg_u32 s2, 100")
        b(f"  s_cbranch_scc1 dbg_skip")
        b(f"  s_cmp_lg_u32 s{S_W}, 0")
        b(f"  s_cbranch_scc1 dbg_skip")
        srd(b, 24, P_DBG, 256)
        b(f"  v_readlane_b32 s46, v231, 0")
        b(f"  s_nop 1")
        b(f"  v_subrev_u32 v3, s46, v231")
        b(f"  v_lshlrev_b32 v2, 2, v7")
        b(f"  v_subrev_u32 v2, 4, v2")
        b(f"  s_mov_b64 s[48:49], exec")
        b(f"  s_mov_b64 exec, 0x1fffe")
        b(f"  buffer_store_dword v3, v2, s[24:27], 0 offen")
        b(f"  s_mov_b64 exec, s[48:49]")
        b.label("dbg_skip")
        return
    srd(b, 24, P_WS, 1 << 20, WS_STAMP)
    b(f"  s_lshl_b32 s46, s2, 3")
    b(f"  s_add_u32 s46, s46, s{S_W}")
    b(f"  s_lshl_b32 s46, s46, 7            ; (wg*8+wave)*128")
    b(f"  v_lshlrev_b32 v2, 2, v7")
    b(f"  s_mov_b64 s[48:49], exec")
    b(f"  s_mov_b64 exec, 0xffffffff")
    b(f"  buffer_store_dword v231, v2, s[24:27], s46 offen")
    b(f"  s_mov_b64 exec, s[48:49]")

def arrive(b, bar, shard_sreg, first=False, label="", drained=False):
    if not drained: b(f"  s_waitcnt vmcnt(0)")
    stamp(b, f"x{bar+1} drained")
    b(f"  s_barrier")
    b(f"  s_cmp_lg_u32 s{S_W}, 0")
    b(f"  s_cbranch_scc1 {label}_arr_skip")
    if first:
        b(f"  s_mov_b32 s11, 100000")
        b.label(f"{label}_rdy")
        b(f"  v_cmp_ne_u32 vcc, 0, v27")
        b(f"  s_nop 1")
        b(f"  s_cmp_eq_u64 vcc, exec")
        b(f"  s_cbranch_scc1 {label}_rdy_ok")
        b(f"  buffer_load_dword v27, v26, s[{SRD_PF}:{SRD_PF+3}], 0 offen sc1")
        b(f"  s_waitcnt vmcnt(0)")
        b(f"  s_sub_u32 s11, s11, 1")
        b(f"  s_cmp_lg_u32 s11, 0")
        b(f"  s_cbranch_scc1 {label}_rdy")
        b.label(f"{label}_rdy_ok")
    b(f"  s_lshl_b32 s10, s{shard_sreg}, 8")
    b(f"  s_add_u32 s10, s10, {bar*4096}")
    b(f"  v_mov_b32 v228, s10")
    b(f"  v_mov_b32 v229, 1")
    b(f"  s_mov_b64 s[16:17], exec")
    b(f"  s_mov_b64 exec, 1")
    b(f"  buffer_atomic_add v229, v228, s[{SRD_CNT}:{SRD_CNT+3}], 0 offen sc1")
    b(f"  s_mov_b64 exec, s[16:17]")
    b.label(f"{label}_arr_skip")

def wait(b, bar, target, label, single_sreg=None):
    b(f"  s_cmp_lg_u32 s{S_W}, 0")
    b(f"  s_cbranch_scc1 {label}_w_skip")
    if single_sreg is None:
        b(f"  v_and_b32 v228, 15, v7")
        b(f"  v_lshlrev_b32 v228, 8, v228")
        b(f"  v_add_u32 v228, {bar*4096}, v228")
    else:
        b(f"  s_lshl_b32 s10, s{single_sreg}, 8")
        b(f"  s_add_u32 s10, s10, {bar*4096}")
        b(f"  v_mov_b32 v228, s10")
    b(f"  s_mov_b32 s11, 200000")
    if "pp" in OPT:
        b(f"  buffer_load_dword v229, v228, s[{SRD_CNT}:{SRD_CNT+3}], 0 offen sc1")
        b(f"  s_nop 15")
        b(f"  s_nop 15")
        b(f"  buffer_load_dword v226, v228, s[{SRD_CNT}:{SRD_CNT+3}], 0 offen sc1")
        b.label(f"{label}_poll")
        for r in (229, 226):
            b(f"  s_waitcnt vmcnt(1)")
            b(f"  v_cmp_le_u32 vcc, {target}, v{r}")
            b(f"  s_nop 1")
            b(f"  s_cmp_eq_u64 vcc, exec")
            b(f"  s_cbranch_scc1 {label}_w_skip")
            b(f"  buffer_load_dword v{r}, v228, s[{SRD_CNT}:{SRD_CNT+3}], 0 offen sc1")
        b(f"  s_sub_u32 s11, s11, 1")
        b(f"  s_cmp_lg_u32 s11, 0")
        b(f"  s_cbranch_scc1 {label}_poll")
    else:
        b.label(f"{label}_poll")
        b(f"  buffer_load_dword v229, v228, s[{SRD_CNT}:{SRD_CNT+3}], 0 offen sc1")
        b(f"  s_waitcnt vmcnt(0)")
        b(f"  v_cmp_le_u32 vcc, {target}, v229")
        b(f"  s_nop 1")
        b(f"  s_cmp_eq_u64 vcc, exec")
        b(f"  s_cbranch_scc1 {label}_w_skip")
        b(f"  s_sub_u32 s11, s11, 1")
        b(f"  s_cmp_lg_u32 s11, 0")
        b(f"  s_cbranch_scc1 {label}_poll")
    b.label(f"{label}_w_skip")
    b(f"  s_barrier")

def prefetch(b, ptr_pair, nbytes, start, length, who_scale, who_sreg, vaddr, vdst, stmp, paced=False):
    chunk = -(-length // who_scale)
    n_per_wave = -(-chunk // (512 * 128))
    stride = -(-chunk // (512 * n_per_wave))
    stride = (stride + 3) // 4 * 4
    per_instr = 64 * stride
    srd(b, SRD_PF, ptr_pair, nbytes)
    b(f"  s_mul_i32 s{stmp}, s{who_sreg}, {chunk}")
    b(f"  s_mul_i32 s{stmp+1}, s{S_W}, {n_per_wave*per_instr}")
    b(f"  s_add_u32 s{stmp}, s{stmp}, s{stmp+1}")
    if start: b(f"  s_add_u32 s{stmp}, s{stmp}, {start}")
    b(f"  v_mul_u32_u24 v{vaddr}, {stride}, v7")
    for i in range(n_per_wave):
        b(f"  buffer_load_dword v{vdst}, v{vaddr}, s[{SRD_PF}:{SRD_PF+3}], s{stmp} offen")
        if i + 1 < n_per_wave: b(f"  s_add_u32 s{stmp}, s{stmp}, {per_instr}")
        if paced: b(f"  s_waitcnt vmcnt(0)")
    return n_per_wave

V_DUMMY = 232
def pf_wide(b, ptr_pair, nbytes, s_base, n, wave_lo, wave_hi, label):
    b(f"  s_cmp_lt_u32 s{S_W}, {wave_lo}")
    b(f"  s_cbranch_scc1 {label}")
    if wave_hi < 8:
        b(f"  s_cmp_ge_u32 s{S_W}, {wave_hi}")
        b(f"  s_cbranch_scc1 {label}")
    srd(b, SRD_PF, ptr_pair, nbytes)
    b(f"  s_sub_u32 s{S_T+9}, s{S_W}, {wave_lo}")
    b(f"  s_mul_i32 s{S_T+9}, s{S_T+9}, {n*1024}")
    b(f"  s_add_u32 s{S_T+9}, s{S_T+9}, s{s_base}")
    b(f"  v_lshlrev_b32 v29, 4, v7")
    for i in range(n):
        if i and i % 4 == 0: b(f"  s_add_u32 s{S_T+9}, s{S_T+9}, 4096")
        b(f"  buffer_load_dwordx4 {vr(V_DUMMY,4)}, v29, s[{SRD_PF}:{SRD_PF+3}], s{S_T+9} offen offset:{(i%4)*1024}")
    b.label(label)

def w1_share_base(b, sreg, part):
    b(f"  s_mul_i32 s{sreg}, s2, {W1B // 256}")
    if part: b(f"  s_add_u32 s{sreg}, s{sreg}, {part}")

def w1_first_half_base(b, sreg, part):
    b(f"  s_and_b32 s{sreg}, s2, 7")
    b(f"  s_mul_i32 s{sreg}, s{sreg}, {256*7168}")
    b(f"  s_lshr_b32 s{S_T+9}, s2, 3")
    b(f"  s_mul_i32 s{S_T+9}, s{S_T+9}, {4*7168}")
    b(f"  s_add_u32 s{sreg}, s{sreg}, s{S_T+9}")
    if part: b(f"  s_add_u32 s{sreg}, s{sreg}, {part}")

def p1_tables(b):
    M1, M2, TW = L1_M1, L1_M2, L1_TW
    b(f"  v_and_b32 v10, 255, v0            ; e")
    b(f"  v_lshrrev_b32 v11, 8, v0          ; u")
    b(f"  v_bfe_u32 v12, v10, 2, 4          ; lane&15")
    b(f"  v_lshl_add_u32 v12, v11, 4, v12   ; k1")
    b(f"  v_lshrrev_b32 v13, 6, v10         ; g")
    b(f"  v_and_b32 v14, 3, v10")
    b(f"  v_lshlrev_b32 v13, 3, v13")
    b(f"  v_lshl_add_u32 v13, v14, 1, v13   ; a0 = 8g + 2i")
    b(f"  v_mul_u32_u24 v15, v13, v12       ; a0*k1")
    b(f"  v_add_u32 v16, v15, v12           ; (a0+1)*k1")
    sincos(b, 17, 18, 15, 5, 21)
    sincos(b, 19, 20, 16, 5, 21)
    b(f"  v_lshlrev_b32 v22, 2, v10")
    b(f"  v_lshl_add_u32 v22, v11, 11, v22  ; u*2048 + e*4")
    b(f"  v_cvt_pk_bf16_f32 v23, v17, v19")
    b(f"  v_cvt_pk_bf16_f32 v24, -v18, -v20")
    b(f"  ds_write_b32 v22, v23 offset:{M1}")
    b(f"  ds_write_b32 v22, v24 offset:{M1+1024}")
    sincos(b, 17, 18, 15, 10, 21)
    sincos(b, 19, 20, 16, 10, 21)
    b(f"  ds_write_b32 v22, v17 offset:{TW}")
    b(f"  ds_write_b32 v22, v18 offset:{TW+1024}")
    b(f"  ds_write_b32 v22, v19 offset:{TW+4096}")
    b(f"  ds_write_b32 v22, v20 offset:{TW+4096+1024}")
    b(f"  v_bfe_u32 v12, v10, 2, 4          ; k2")
    b(f"  v_mul_u32_u24 v15, v13, v12")
    b(f"  v_add_u32 v16, v15, v12")
    sincos(b, 17, 18, 15, 5, 21)
    sincos(b, 19, 20, 16, 5, 21)
    b(f"  v_lshlrev_b32 v22, 2, v10")
    b(f"  v_cvt_pk_bf16_f32 v23, v17, v19")
    b(f"  v_cvt_pk_bf16_f32 v24, v18, v20")
    b(f"  v_cvt_pk_bf16_f32 v25, -v18, -v20")
    b(f"  ds_write_b32 v22, v23 offset:{M2}")
    b(f"  ds_write_b32 v22, v24 offset:{M2+1024}")
    b(f"  ds_write_b32 v22, v25 offset:{M2+2048}")

def ln_fast(b, X, T, S0, alt):
    b(f"  v_readlane_b32 s{S0}, v{X}, 0              ; pivot")
    b(f"  s_nop 1")
    for i in range(0, 16, 2):
        b(f"  v_pk_add_f32 {vr(X+i,2)}, {vr(X+i,2)}, s[{S0}:{S0+1}] op_sel_hi:[1,0] neg_lo:[0,1] neg_hi:[0,1]")
    b(f"  v_pk_add_f32 {vr(T,2)}, {vr(X,2)}, {vr(X+2,2)}")
    b(f"  v_pk_add_f32 {vr(T+2,2)}, {vr(X+8,2)}, {vr(X+10,2)}")
    b(f"  v_pk_mul_f32 {vr(T+4,2)}, {vr(X,2)}, {vr(X,2)}")
    b(f"  v_pk_add_f32 {vr(T,2)}, {vr(T,2)}, {vr(X+4,2)}")
    b(f"  v_pk_add_f32 {vr(T+2,2)}, {vr(T+2,2)}, {vr(X+12,2)}")
    b(f"  v_pk_fma_f32 {vr(T+4,2)}, {vr(X+2,2)}, {vr(X+2,2)}, {vr(T+4,2)}")
    b(f"  v_pk_add_f32 {vr(T,2)}, {vr(T,2)}, {vr(X+6,2)}")
    b(f"  v_pk_add_f32 {vr(T+2,2)}, {vr(T+2,2)}, {vr(X+14,2)}")
    for i in range(4, 16, 2):
        b(f"  v_pk_fma_f32 {vr(T+4,2)}, {vr(X+i,2)}, {vr(X+i,2)}, {vr(T+4,2)}")
    b(f"  v_add_f32 v{T}, v{T}, v{T+1}")
    b(f"  v_add_f32 v{T+2}, v{T+2}, v{T+3}")
    if not alt: b(f"  v_add_f32 v{T}, v{T}, v{T+2}")
    b(f"  v_add_f32 v{T+4}, v{T+4}, v{T+5}           ; squares")
    if alt:
        wave_reduce(b, [T, T+2, T+4])
        b(f"  v_sub_f32 v{T+1}, v{T}, v{T+2}             ; E - O")
        b(f"  v_add_f32 v{T}, v{T}, v{T+2}")
        b(f"  s_nop 0")
        b(f"  v_readlane_b32 s{S0+2}, v{T}, 63")
        b(f"  v_readlane_b32 s{S0+3}, v{T+4}, 63")
        b(f"  v_readlane_b32 s{S0+4}, v{T+1}, 63")
    else:
        wave_reduce(b, [T, T+4])
        b(f"  s_nop 0")
        b(f"  v_readlane_b32 s{S0+2}, v{T}, 63")
        b(f"  v_readlane_b32 s{S0+3}, v{T+4}, 63")
    b(f"  s_nop 0")
    b(f"  v_mov_b32 v{T}, {hex(f2u(1.0/1024))}")
    b(f"  v_mul_f32 v{T+1}, s{S0+2}, v{T}            ; mean of the shifted values")
    b(f"  v_mul_f32 v{T+2}, s{S0+3}, v{T}            ; mean of their squares")
    b(f"  v_fma_f32 v{T+2}, -v{T+1}, v{T+1}, v{T+2}  ; variance")
    b(f"  v_max_f32 v{T+2}, 0, v{T+2}")
    b(f"  v_add_f32 v{T+2}, {hex(f2u(1e-5))}, v{T+2}")
    b(f"  v_rsq_f32 v{T+4}, v{T+2}")
    b(f"  s_nop 0")
    b(f"  v_mul_f32 v{T+8}, -v{T+1}, v{T+4}          ; -mean*rstd")
    if alt: b(f"  v_mul_f32 v{T+6}, s{S0+4}, v{T+4}")
    for i in range(0, 16, 2):
        b(f"  v_pk_fma_f32 {vr(X+i,2)}, {vr(X+i,2)}, {vr(T+4,2)}, {vr(T+8,2)} op_sel_hi:[1,0,0]")

def x1_store_addr(b):
    b(f"  v_lshlrev_b32 v5, 15, v9")
    b(f"  v_lshl_add_u32 v5, v8, 2, v5")
    b(f"  s_and_b32 s{S_T+6}, s2, 15")
    b(f"  s_lshl_b32 s{S_T+6}, s{S_T+6}, 4")
    b(f"  s_lshr_b32 s{S_T+7}, s2, 4")
    b(f"  s_add_u32 s{S_T+6}, s{S_T+6}, s{S_T+7}")
    b(f"  s_lshl_b32 s{S_T+6}, s{S_T+6}, 6       ; pos*64")
    b(f"  s_lshl_b32 s{S_T+7}, s{S_W}, 19        ; 4w*131072")
    b(f"  s_add_u32 s44, s{S_T+6}, s{S_T+7}")

def w_early(b):
    srd(b, SRD_C, P_WR, WB)
    srd(b, SRD_D, P_WI, WB)
    b(f"  s_and_b32 s{S_T+2}, s2, 7              ; j1")
    b(f"  v_and_b32 v215, 1, v0                ; half")
    b(f"  v_bfe_u32 v11, v0, 5, 4              ; c")
    b(f"  v_bfe_u32 v12, v0, 1, 4              ; e")
    b(f"  v_lshl_add_u32 v13, v12, 4, v11      ; j2")
    b(f"  v_lshlrev_b32 v13, 3, v13")
    b(f"  v_add_u32 v13, s{S_T+2}, v13         ; j")
    b(f"  v_mul_u32_u24 v214, 1026, v13")
    b(f"  v_lshl_add_u32 v14, v215, 4, v214")
    b(f"  s_lshr_b32 s{S_T+3}, s2, 3           ; kb")
    b(f"  s_lshl_b32 s{S_T+3}, s{S_T+3}, 5")
    b(f"  buffer_load_dwordx4 {vr(WE,4)}, v14, s[{SRD_C}:{SRD_C+3}], s{S_T+3} offen{WF()}")
    b(f"  buffer_load_dwordx4 {vr(WE+4,4)}, v14, s[{SRD_D}:{SRD_D+3}], s{S_T+3} offen{WF()}")

def p1(b):
    srd(b, SRD_A, P_X, 4 << 20)
    srd(b, SRD_B, P_WS, 4 << 20, WS_X1)
    b(f"  s_lshl_b32 s{S_T}, s{S_W}, 8")
    b(f"  s_add_u32 s{S_T}, s{S_T}, s2          ; s")
    b(f"  s_lshl_b32 s{S_T+1}, s{S_T}, 11")
    b(f"  v_lshlrev_b32 v1, 9, v9")
    b(f"  v_lshl_add_u32 v1, v8, 2, v1")
    XD = 32
    b(f"  s_cmp_ge_u32 s2, 16")
    b(f"  s_cbranch_scc1 p1_noreset")
    b(f"  s_cmp_lg_u32 s{S_W}, 0")
    b(f"  s_cbranch_scc1 p1_noreset")
    b(f"  s_lshl_b32 s{S_T+2}, s2, 8")
    b(f"  v_lshlrev_b32 v2, 12, v7")
    b(f"  v_add_u32 v2, s{S_T+2}, v2")
    b(f"  v_mov_b32 v3, 0")
    b(f"  s_mov_b64 s[48:49], exec")
    b(f"  s_mov_b64 exec, 15")
    b(f"  buffer_store_dword v3, v2, s[{SRD_CNT}:{SRD_CNT+3}], 0 offen sc1")
    b(f"  s_mov_b64 exec, s[48:49]")
    b.label("p1_noreset")
    for i in range(8):
        b(f"  buffer_load_dword v{XD+i}, v1, s[{SRD_A}:{SRD_A+3}], s{S_T+1} offen offset:{64*i}{XF()}")
    NCLR = 0
    NWE = 0
    x1_store_addr(b)
    if SENT():
        b(f"  v_mov_b32 v60, -1")
        b(f"  v_mov_b32 v61, -1")
        b(f"  v_mov_b32 v62, -1")
        b(f"  v_mov_b32 v63, -1")
        b(f"  v_bfe_u32 v2, v7, 2, 3              ; j1")
        b(f"  v_lshrrev_b32 v3, 5, v7             ; i (0,1)")
        b(f"  v_lshlrev_b32 v2, 14, v2")
        b(f"  v_lshl_add_u32 v2, v3, 17, v2")
        b(f"  v_and_b32 v3, 3, v7")
        b(f"  v_lshl_add_u32 v2, v3, 4, v2")
        b(f"  buffer_store_dwordx4 v[60:63], v2, s[{SRD_B}:{SRD_B+3}], s44 offen{SF}")
        b(f"  s_add_u32 s{S_T+7}, s44, {2*131072}")
        b(f"  buffer_store_dwordx4 v[60:63], v2, s[{SRD_B}:{SRD_B+3}], s{S_T+7} offen{SF}")
        NCLR = 2
    if "tlbw" in OPT:
        b(f"  s_cmp_lg_u32 s{S_W}, 7")
        b(f"  s_cbranch_scc1 p1_notlb")
        sh = 20 if "tlb1m" in OPT else (19 if "tlb512k" in OPT else 21)
        b(f"  v_lshlrev_b32 v2, {sh}, v7")
        lst = [(P_WS, 36 << 20), (P_W1, W1B), (P_W2, W1B), (P_WR, WB), (P_WI, WB), (P_OUT, 4 << 20), (P_B1, 7168), (P_B2, 4096)]
        for ptr, size in lst:
            srd(b, SRD_PF, ptr, size)
            b(f"  s_mov_b64 s[16:17], exec")
            n = min(64, -(-size // (1 << sh)))
            b(f"  s_mov_b64 exec, {hex((1 << n) - 1)}")
            b(f"  buffer_load_dword v230, v2, s[{SRD_PF}:{SRD_PF+3}], 0 offen sc1")
            b(f"  s_mov_b64 exec, s[16:17]")
        if "codepf" in OPT:
            b(f"  s_cmp_ge_u32 s2, 16")
            b(f"  s_cbranch_scc1 p1_nocode")
            b(f"  s_getpc_b64 s[{S_T+8}:{S_T+9}]")
            b.label("p1_pc")
            b(f"  v_lshlrev_b32 v29, 7, v7")
            b(f"  s_mov_b32 s{S_T+7}, k_exit - p1_pc")
            for i in range(5):
                b(f"  v_min_u32 v28, s{S_T+7}, v29")
                b(f"  global_load_dword v230, v28, s[{S_T+8}:{S_T+9}]")
                b(f"  v_add_u32 v29, 8192, v29")
            b.label("p1_nocode")
        if "pf7" in OPT:
            n7 = 0
            if "wpf" in OPT:
                b(f"  s_mul_i32 s{S_T+8}, s2, 8208")
                b(f"  v_lshlrev_b32 v29, 4, v7")
                for ptr in (P_WR, P_WI):
                    srd(b, SRD_PF, ptr, WB)
                    b(f"  s_mov_b32 s{S_T+9}, s{S_T+8}")
                    for i in range(9):
                        if i and i % 4 == 0: b(f"  s_add_u32 s{S_T+9}, s{S_T+9}, 4096")
                        b(f"  buffer_load_dwordx4 {vr(V_DUMMY,4)}, v29, s[{SRD_PF}:{SRD_PF+3}], s{S_T+9} offen offset:{(i%4)*1024}")
                        n7 += 1
            if PFN[0]:
                w1_share_base(b, S_T + 9, 0)
                b(f"  v_lshlrev_b32 v29, 4, v7")
                srd(b, SRD_PF, P_W1, W1B)
                for i in range(4 * PFN[0]):
                    if i and i % 4 == 0: b(f"  s_add_u32 s{S_T+9}, s{S_T+9}, 4096")
                    b(f"  buffer_load_dwordx4 {vr(V_DUMMY,4)}, v29, s[{SRD_PF}:{SRD_PF+3}], s{S_T+9} offen offset:{(i%4)*1024}")
                    n7 += 1
            N7[0] = n7
        b.label("p1_notlb")
    if "wpack" in OPT:
        srd(b, SRD_C, P_WR, WB)
        srd(b, SRD_D, P_WI, WB)
        b(f"  s_lshl_b32 s{S_T+2}, s2, 3")
        b(f"  s_add_u32 s{S_T+2}, s{S_T+2}, s{S_W}")
        b(f"  s_mul_i32 s45, s{S_T+2}, 1026")
        b(f"  v_lshlrev_b32 v14, 4, v7")
        b(f"  buffer_load_dwordx4 {vr(WE,4)}, v14, s[{SRD_C}:{SRD_C+3}], s45 offen")
        b(f"  buffer_load_dwordx4 {vr(WE+4,4)}, v14, s[{SRD_D}:{SRD_D+3}], s45 offen")
        b(f"  v_mov_b32 v15, 1024")
        b(f"  buffer_load_ushort v212, v15, s[{SRD_C}:{SRD_C+3}], s45 offen")
        b(f"  buffer_load_ushort v213, v15, s[{SRD_D}:{SRD_D+3}], s45 offen")
        NCLR += 4
    if "wearly" in OPT:
        w_early(b); NCLR += 2
    npf = 0
    if "burn" in OPT:
        for i in range(4): b(f"  v_mov_b32 v{180+i}, 0x3f9d3f8a")
        for i in range(4): b(f"  v_mov_b32 v{184+i}, 0x3e5abf31")
        b(f"  s_nop 1")
        for i in range(24): b(f"  v_mfma_f32_32x32x16_bf16 v[{(i%2)*16+144}:{(i%2)*16+159}], v[180:183], v[184:187], v[{(i%2)*16+144}:{(i%2)*16+159}]")
    p1_tables(b)
    GM = 30
    gmat(b, GM, 2, False, 10)
    srd(b, SRD_PF, P_DBG, 256)
    b(f"  s_and_b32 s{S_T+8}, s2, 15")
    b(f"  s_lshl_b32 s{S_T+9}, s{S_T+8}, 2")
    b(f"  s_add_u32 s{S_T+9}, s{S_T+9}, 64")
    b(f"  v_mov_b32 v25, s{S_T+9}")
    b(f"  v_lshlrev_b32 v26, 2, v8")
    b(f"  v_add_u32 v26, 64, v26")
    b(f"  s_cmp_ge_u32 s2, 16")
    b(f"  s_cbranch_scc1 p1_noflag")
    b(f"  s_cmp_lg_u32 s{S_W}, 0")
    b(f"  s_cbranch_scc1 p1_noflag")
    b(f"  s_waitcnt vmcnt({8} + 0)".replace(" + 0", "") if NCLR == 0 else f"  s_waitcnt vmcnt({8 + NCLR})")
    b(f"  v_mov_b32 v3, 1")
    b(f"  s_mov_b64 s[48:49], exec")
    b(f"  s_mov_b64 exec, 1")
    b(f"  buffer_store_dword v3, v25, s[{SRD_PF}:{SRD_PF+3}], 0 offen sc1")
    b(f"  s_mov_b64 exec, s[48:49]")
    b.label("p1_noflag")
    b(f"  s_waitcnt lgkmcnt(0)")
    stamp(b, "p1 tables done")
    b(f"  s_barrier")
    NX2 = 0
    if "sent2" in OPT:
        srd(b, SRD_C, P_WS, 4 << 20, WS_X2)
        for i in range(4): b(f"  v_mov_b32 v{200+i}, -1")
        b(f"  v_lshlrev_b32 v3, 4, v0")
        b(f"  s_lshl_b32 s{S_T+7}, s2, 14")
        b(f"  buffer_store_dwordx4 v[200:203], v3, s[{SRD_C}:{SRD_C+3}], s{S_T+7} offen{SF}")
        b(f"  s_add_u32 s{S_T+7}, s{S_T+7}, 8192")
        b(f"  buffer_store_dwordx4 v[200:203], v3, s[{SRD_C}:{SRD_C+3}], s{S_T+7} offen{SF}")
        NX2 = 2
    npf = 0
    if "nopf" not in OPT:
        b(f"  s_mul_i32 s{S_T+8}, s2, 8208")
        if "ntx" not in OPT and "wpf" in OPT and "pf7" not in OPT:
            pf_wide(b, P_WR, WB, S_T + 8, 3, 0, 3, "pf_p1a")
            pf_wide(b, P_WI, WB, S_T + 8, 3, 0, 3, "pf_p1b")
        if "ntw1" not in OPT and PFN[0] and "pf7" not in OPT:
            w1_share_base(b, S_T + 8, 0)
            pf_wide(b, P_W1, W1B, S_T + 8, PFN[0], 4, 8, "pf_p1c")
    M1, M2, TW = 96, 112, 128
    b(f"  v_lshlrev_b32 v2, 4, v7")
    for i in range(4): b(f"  ds_read_b128 {vr(M1+4*i,4)}, v2 offset:{L1_M1+1024*i}")
    for i in range(3): b(f"  ds_read_b128 {vr(M2+4*i,4)}, v2 offset:{L1_M2+1024*i}")
    for i in range(8): b(f"  ds_read_b128 {vr(TW+4*i,4)}, v2 offset:{L1_TW+1024*i}")
    X = 40
    NCLR += NX2
    nW = 0 if ("nopf" in OPT or "ntx" in OPT or "wpf" not in OPT or "pf7" in OPT) else 6
    n1 = 0 if ("nopf" in OPT or "ntw1" in OPT or "pf7" in OPT) else PFN[0]
    b(f"  s_cmp_eq_u32 s{S_W}, 3")
    b(f"  s_cbranch_scc1 p1_xw0")
    b(f"  s_cmp_ge_u32 s{S_W}, 4")
    b(f"  s_cbranch_scc1 p1_xw4")
    b(f"  s_waitcnt vmcnt({NCLR + nW})")
    b(f"  s_branch p1_xwd")
    b.label("p1_xw4")
    if "tlbw" in OPT:
        b(f"  s_cmp_lg_u32 s{S_W}, 7")
        b(f"  s_cbranch_scc1 p1_xw5")
        b(f"  s_waitcnt vmcnt({min(63, NCLR + n1 + 8 + N7[0])})")
        b(f"  s_branch p1_xwd")
        b.label("p1_xw5")
    b(f"  s_waitcnt vmcnt({NCLR + n1})")
    b(f"  s_branch p1_xwd")
    b.label("p1_xw0")
    b(f"  s_waitcnt vmcnt({NCLR})")
    b.label("p1_xwd")
    stamp(b, "p1 x landed")
    if "wmid" in OPT:
        w_early(b)
        b(f"  s_cmp_ge_u32 s2, 8")
        b(f"  s_cbranch_scc1 p1_nonyq")
        b(f"  buffer_load_ushort v212, v214, s[{SRD_C}:{SRD_C+3}], 0 offen offset:1024")
        b(f"  buffer_load_ushort v213, v214, s[{SRD_D}:{SRD_D+3}], 0 offen offset:1024")
        b.label("p1_nonyq")
    if "wearly" in OPT:
        b(f"  s_cmp_ge_u32 s2, 8")
        b(f"  s_cbranch_scc1 p1_nonyq")
        b(f"  buffer_load_ushort v212, v214, s[{SRD_C}:{SRD_C+3}], 0 offen offset:1024")
        b(f"  buffer_load_ushort v213, v214, s[{SRD_D}:{SRD_D+3}], 0 offen offset:1024")
        b.label("p1_nonyq")
    srd(b, SRD_PF, P_DBG, 256)
    if "stash" in OPT:
        b(f"  s_lshl_b32 s{S_T+9}, s{S_W}, 11")
        b(f"  s_add_u32 s{S_T+9}, s{S_T+9}, {L_XS}")
        b(f"  v_add_u32 v4, s{S_T+9}, v1           ; t*2048 + g*512 + c*4")
        for i in range(8): b(f"  ds_write_b32 v4, v{XD+i} offset:{64*i}")
    for i in range(8):
        b(f"  v_lshlrev_b32 v{X+i}, 16, v{XD+i}")
        b(f"  v_and_b32 v{X+8+i}, 0xffff0000, v{XD+i}")
    T = 56
    ln_fast(b, X, T, S_T + 2, True)
    stamp(b, "p1 ln done")
    if SENT():
        b(f"  buffer_load_dword v27, v26, s[{SRD_PF}:{SRD_PF+3}], 0 offen sc1")
        b(f"  s_and_b32 s{S_T+8}, s2, 15")
        arrive(b, 0, S_T + 8, first=True, label="x1")
        stamp(b, "p1 arrived")
        srd(b, SRD_C, P_WS, 4 << 20, WS_X2)
        for i in range(4): b(f"  v_mov_b32 v{200+i}, -1")
        b(f"  v_lshlrev_b32 v2, 4, v0")
        b(f"  s_lshl_b32 s{S_T+7}, s2, 14")
        b(f"  buffer_store_dwordx4 v[200:203], v2, s[{SRD_C}:{SRD_C+3}], s{S_T+7} offen{SF}")
        b(f"  s_add_u32 s{S_T+7}, s{S_T+7}, 8192")
        b(f"  buffer_store_dwordx4 v[200:203], v2, s[{SRD_C}:{SRD_C+3}], s{S_T+7} offen{SF}")
    A = 64
    for be in range(2):
        for i in range(4):
            b(f"  v_cvt_pk_bf16_f32 v{A+4*be+i}, v{X+8*be+2*i}, v{X+8*be+2*i+1}")
    b(f"  s_waitcnt lgkmcnt(0)")
    b(f"  v_readlane_b32 s{S_T+5}, v{T+6}, 0")
    Y = 160
    for be in range(2):
        for u in range(2):
            for c in range(2):
                d = Y + ((be * 2 + u) * 2 + c) * 4
                b(f"  {MF32} {vr(d,4)}, {vr(A+4*be,4)}, {vr(M1+4*(2*u+c),4)}, 0")
    b(f"  s_nop 4")
    Bp = 72; W = 32; O = 40
    for u in range(2):
        for be in range(2):
            y = Y + ((be * 2 + u) * 2) * 4
            tw = TW + (be * 4 + u * 2) * 4
            cmul_pk(b, O + 8 * be, O + 8 * be + 4, y, y + 4, tw, tw + 4, W, False)
        for r in range(4):
            b(f"  v_cvt_pk_bf16_f32 v{Bp+8*u+r}, v{O+r}, v{O+8+r}")
            b(f"  v_cvt_pk_bf16_f32 v{Bp+8*u+4+r}, v{O+4+r}, v{O+12+r}")
    XO = 160
    b(f"  s_nop 1")
    for u in range(2):
        re, im = XO + 8 * u, XO + 8 * u + 4
        b(f"  {MF32} {vr(re,4)}, {vr(M2,4)}, {vr(Bp+8*u,4)}, 0")
        b(f"  {MF32} {vr(im,4)}, {vr(M2,4)}, {vr(Bp+8*u+4,4)}, 0")
        b(f"  {MF32} {vr(re,4)}, {vr(M2+4,4)}, {vr(Bp+8*u+4,4)}, {vr(re,4)}")
        b(f"  {MF32} {vr(im,4)}, {vr(M2+8,4)}, {vr(Bp+8*u,4)}, {vr(im,4)}")
    b(f"  s_and_b32 s{S_T+6}, s{S_W}, 1")
    b(f"  s_lshl_b32 s{S_T+6}, s{S_T+6}, 8")
    b(f"  s_lshr_b32 s{S_T+7}, s{S_W}, 1")
    b(f"  s_lshl_b32 s{S_T+7}, s{S_T+7}, 6")
    b(f"  s_add_u32 s{S_T+6}, s{S_T+6}, s{S_T+7}")
    b(f"  v_lshlrev_b32 v3, 12, v9")
    b(f"  v_lshl_add_u32 v3, v8, 2, v3")
    b(f"  v_add_u32 v3, s{S_T+6}, v3")
    b(f"  s_nop 2")
    b(f"  v_writelane_b32 v{XO}, s{S_T+5}, 0")
    b(f"  v_writelane_b32 v{XO+4}, 0, 0")
    PK = 32
    for u in range(2):
        for r in range(4):
            b(f"  v_cvt_pk_bf16_f32 v{PK+4*u+r}, v{XO+8*u+r}, v{XO+8*u+4+r}")
    for u in range(2):
        for r in range(4):
            b(f"  ds_write_b32 v3, v{PK+4*u+r} offset:{L1_EX + u*512 + r*1024}")
    if "wpack" in OPT:
        assert not SENT()
        srd(b, SRD_C, P_WS, 4 << 20, WS_WP)
        b(f"  v_lshrrev_b32 v14, 1, v7              ; kb")
        b(f"  v_lshlrev_b32 v14, 17, v14")
        b(f"  v_and_b32 v15, 1, v7")
        b(f"  v_lshl_add_u32 v14, v15, 4, v14")
        b(f"  s_and_b32 s{S_T+6}, s2, 15")
        b(f"  s_lshl_b32 s{S_T+6}, s{S_T+6}, 9       ; (p&15)<<5 * 16")
        b(f"  s_lshr_b32 s{S_T+7}, s2, 4")
        b(f"  s_lshl_b32 s{S_T+7}, s{S_T+7}, 5       ; (p>>4)<<1 * 16")
        b(f"  s_add_u32 s{S_T+6}, s{S_T+6}, s{S_T+7}")
        b(f"  s_lshl_b32 s{S_T+7}, s{S_W}, 14")
        b(f"  s_add_u32 s{S_T+6}, s{S_T+6}, s{S_T+7}")
        b(f"  s_add_u32 s{S_T+7}, s{S_T+6}, 8192")
        npf0 = 0 if ("nopf" in OPT or "pf7" in OPT) else PFN[0]
        b(f"  s_cmp_ge_u32 s{S_W}, 4")
        b(f"  s_cbranch_scc1 p1_wp4")
        b(f"  s_waitcnt vmcnt(0)")
        b(f"  s_branch p1_wpd")
        b.label("p1_wp4")
        b(f"  s_waitcnt vmcnt({npf0})")
        b.label("p1_wpd")
        b(f"  v_cmp_eq_u32 vcc, 0, v7")
        b(f"  v_and_b32 v15, 0xffff0000, v{WE}")
        b(f"  v_or_b32 v15, v15, v212")
        b(f"  v_cndmask_b32 v{WE}, v{WE}, v15, vcc")
        b(f"  v_and_b32 v15, 0xffff0000, v{WE+4}")
        b(f"  v_or_b32 v15, v15, v213")
        b(f"  v_cndmask_b32 v{WE+4}, v{WE+4}, v15, vcc")
        b(f"  buffer_store_dwordx4 {vr(WE,4)}, v14, s[{SRD_C}:{SRD_C+3}], s{S_T+6} offen{SF}")
        b(f"  buffer_store_dwordx4 {vr(WE+4,4)}, v14, s[{SRD_C}:{SRD_C+3}], s{S_T+7} offen{SF}")
    if SENT(): b(f"  s_waitcnt lgkmcnt(0) vmcnt(0)")
    else:
        b(f"  buffer_load_dword v27, v26, s[{SRD_PF}:{SRD_PF+3}], 0 offen sc1")
        b(f"  s_waitcnt lgkmcnt(0)")
    stamp(b, "p1 fft done")
    b(f"  s_barrier")
    b(f"  v_lshlrev_b32 v4, 6, v9")
    b(f"  v_lshl_add_u32 v4, v8, 2, v4")
    b(f"  s_lshl_b32 s{S_T+6}, s{S_W}, 11")
    b(f"  s_add_u32 s{S_T+6}, s{S_T+6}, {L1_EX}")
    b(f"  v_add_u32 v4, s{S_T+6}, v4")
    Bd = 40
    for i in range(4):
        b(f"  ds_read2st64_b32 {vr(Bd+2*i,2)}, v4 offset0:{2*i} offset1:{2*i+1}")
    D = 48
    for i in range(4):
        b(f"  s_waitcnt lgkmcnt({3-i})")
        b(f"  {MF16} {vr(D+4*i,4)}, {vr(GM,2)}, {vr(Bd+2*i,2)}, 0")
    b(f"  s_nop 4")
    for i in range(4):
        b(f"  v_cvt_pk_bf16_f32 v{64+2*i}, v{D+4*i}, v{D+4*i+1}")
        b(f"  v_cvt_pk_bf16_f32 v{65+2*i}, v{D+4*i+2}, v{D+4*i+3}")
        if SENT():
            b(f"  v_min_u32 v{64+2*i}, 0xfffffffe, v{64+2*i}")
            b(f"  v_min_u32 v{65+2*i}, 0xfffffffe, v{65+2*i}")
        for e in range(2):
            b(f"  s_add_u32 s{S_T+7}, s44, {i*131072 + e*16384}")
            b(f"  buffer_store_dword v{64+2*i+e}, v5, s[{SRD_B}:{SRD_B+3}], s{S_T+7} offen{SF}")
    stamp(b, "p1 stores issued")
    if not SENT():
        b(f"  s_and_b32 s{S_T+8}, s2, 15")
        arrive(b, 0, S_T + 8, first=True, label="x1")
        stamp(b, "p1 arrived")

XL2, WL2 = 32, 40
WE = 204
TC2, TS2 = 64, 68
def p2_setup(b):
    srd(b, SRD_A, P_WS, 4 << 20, WS_X1)
    srd(b, SRD_B, P_WS, 4 << 20, WS_X2)
    srd(b, SRD_C, P_WR, WB)
    srd(b, SRD_D, P_WI, WB)
    b(f"  s_and_b32 s{S_T}, s2, 7              ; j1")
    b(f"  s_lshr_b32 s{S_T+1}, s2, 3           ; kb")
    b(f"  v_and_b32 v10, 1, v0                 ; half")
    b(f"  v_bfe_u32 v11, v0, 5, 4              ; c")
    b(f"  v_bfe_u32 v12, v0, 1, 4              ; e")
    b(f"  v_lshl_add_u32 v13, v12, 4, v11      ; j2")
    b(f"  v_lshlrev_b32 v13, 3, v13")
    b(f"  v_add_u32 v13, s{S_T}, v13           ; j")
    b(f"  v_mul_u32_u24 v13, 1026, v13")
    b(f"  v_lshlrev_b32 v14, 4, v10")
    b(f"  v_add_u32 v14, v13, v14")
    b(f"  s_lshl_b32 s{S_T+3}, s{S_T+1}, 5")
    if "wearly" in OPT or "wmid" in OPT:
        b(f"  s_cmp_lg_u32 s{S_T+1}, 0")
        b(f"  s_cbranch_scc1 p2_nonyq")
        b(f"  s_waitcnt vmcnt(0)")
        b(f"  v_cmp_eq_u32 vcc, 0, v215")
        b(f"  v_and_b32 v50, 0xffff0000, v{WE}")
        b(f"  v_or_b32 v50, v50, v212")
        b(f"  v_cndmask_b32 v{WE}, v{WE}, v50, vcc")
        b(f"  v_and_b32 v50, 0xffff0000, v{WE+4}")
        b(f"  v_or_b32 v50, v50, v213")
        b(f"  v_cndmask_b32 v{WE+4}, v{WE+4}, v50, vcc")
        b.label("p2_nonyq")
    elif "wpack" in OPT:
        srd(b, SRD_C, P_WS, 4 << 20, WS_WP)
    elif "wlate" in OPT:
        b(f"  v_mov_b32 v24, v14")
        b(f"  v_mov_b32 v25, v13")
        b(f"  v_mov_b32 v26, v10                   ; half")
        b(f"  s_mov_b32 s45, s{S_T+3}              ; kb*32")
    else:
        WL = WL2
        b(f"  v_mov_b32 v24, v14")
        b(f"  v_mov_b32 v25, v13")
        b(f"  v_mov_b32 v26, v10                   ; half")
        b(f"  s_mov_b32 s45, s{S_T+3}              ; kb*32")
        WL = WL2
        b(f"  buffer_load_dwordx4 {vr(WL,4)}, v24, s[{SRD_C}:{SRD_C+3}], s45 offen{WF()}")
        b(f"  buffer_load_dwordx4 {vr(WL+4,4)}, v24, s[{SRD_D}:{SRD_D+3}], s45 offen{WF()}")
        b(f"  s_cmp_lg_u32 s{S_T+1}, 0")
        b(f"  s_cbranch_scc1 p2_nonyq")
        b(f"  buffer_load_ushort v48, v25, s[{SRD_C}:{SRD_C+3}], 0 offen offset:1024")
        b(f"  buffer_load_ushort v49, v25, s[{SRD_D}:{SRD_D+3}], 0 offen offset:1024")
        b(f"  s_waitcnt vmcnt(0)")
        b(f"  v_cmp_eq_u32 vcc, 0, v26")
        b(f"  v_and_b32 v50, 0xffff0000, v{WL}")
        b(f"  v_or_b32 v50, v50, v48")
        b(f"  v_cndmask_b32 v{WL}, v{WL}, v50, vcc")
        b(f"  v_and_b32 v50, 0xffff0000, v{WL+4}")
        b(f"  v_or_b32 v50, v50, v49")
        b(f"  v_cndmask_b32 v{WL+4}, v{WL+4}, v50, vcc")
        b.label("p2_nonyq")
        if "wdiag" in OPT:
            b(f"  s_waitcnt vmcnt(0)")
            stamp(b, "p2 w landed")
    if "es" in OPT:
        b(f"  s_cmp_ge_u32 s{S_W}, 2")
        b(f"  s_cbranch_scc1 p2_noclr")
        srd(b, SRD_PF, P_WS, 4 << 20, WS_LN2)
        for i in range(4): b(f"  v_mov_b32 v{200+i}, -1")
        b(f"  s_lshr_b32 s{S_T+8}, s2, 3")
        b(f"  s_lshl_b32 s{S_T+8}, s{S_T+8}, 17")
        b(f"  s_and_b32 s{S_T+9}, s2, 7")
        b(f"  s_lshl_b32 s{S_T+9}, s{S_T+9}, 11")
        b(f"  s_add_u32 s{S_T+8}, s{S_T+8}, s{S_T+9}")
        b(f"  v_lshlrev_b32 v2, 4, v0")
        b(f"  buffer_store_dwordx4 v[200:203], v2, s[{SRD_PF}:{SRD_PF+3}], s{S_T+8} offen{SF}")
        b.label("p2_noclr")
    npf = 0
    b(f"  v_and_b32 v15, 255, v0")
    b(f"  v_bfe_u32 v16, v15, 2, 4             ; x")
    b(f"  v_lshrrev_b32 v17, 6, v15            ; g")
    b(f"  v_and_b32 v18, 3, v15")
    b(f"  v_lshl_add_u32 v17, v17, 2, v18      ; 4g+i")
    b(f"  v_mul_u32_u24 v17, v17, v16")
    sincos(b, 18, 19, 17, 4, 20)
    b(f"  v_cmp_gt_u32 vcc, 256, v0            ; matrix 0 ?")
    b(f"  v_xor_b32 v20, 0x80000000, v19       ; -sin")
    b(f"  s_nop 0")
    b(f"  v_cndmask_b32 v21, v20, v18, vcc")
    b(f"  v_cndmask_b32 v22, v18, v19, vcc")
    b(f"  v_cvt_pk_bf16_f32 v21, v21, v22")
    b(f"  v_lshlrev_b32 v22, 2, v0")
    b(f"  ds_write_b32 v22, v21 offset:{L2_F}")
    b(f"  v_lshlrev_b32 v16, 2, v9")
    for r in range(4):
        b(f"  v_add_u32 v17, {r}, v16")
        b(f"  v_mul_u32_u24 v17, v17, v8")
        sincos(b, TC2 + r, TS2 + r, 17, 8, 20)
    b(f"  v_and_b32 v16, 3, v0                 ; i")
    b(f"  v_mul_u32_u24 v16, {4*1040}, v16")
    b(f"  v_lshrrev_b32 v17, 6, v0             ; b (0..7)")
    b(f"  v_lshl_add_u32 v16, v17, 6, v16")
    b(f"  v_bfe_u32 v17, v0, 2, 2              ; a&3")
    b(f"  v_lshl_add_u32 v16, v17, 2, v16")
    b(f"  v_bfe_u32 v17, v0, 4, 2              ; a>>2")
    b(f"  v_lshl_add_u32 v21, v17, 4, v16      ; first")
    b(f"  v_xor_b32 v17, 2, v17")
    b(f"  v_lshl_add_u32 v22, v17, 4, v16")
    b(f"  v_add_u32 v22, 512, v22              ; second (b+8)")
    b(f"  v_mul_u32_u24 v16, {4*1040}, v10")
    b(f"  v_lshl_add_u32 v16, v11, 6, v16")
    b(f"  v_and_b32 v17, 3, v12")
    b(f"  v_lshl_add_u32 v16, v17, 2, v16")
    b(f"  v_lshrrev_b32 v17, 2, v12")
    b(f"  v_lshrrev_b32 v18, 3, v11            ; c>>3")
    b(f"  v_lshlrev_b32 v18, 1, v18")
    b(f"  v_xor_b32 v17, v17, v18")
    b(f"  v_lshl_add_u32 v23, v17, 4, v16")
    b(f"  v_lshrrev_b32 v16, 3, v8")
    b(f"  v_lshlrev_b32 v16, 1, v16")
    b(f"  v_xor_b32 v16, v16, v9")
    b(f"  v_lshlrev_b32 v16, 4, v16")
    b(f"  v_lshl_add_u32 v16, v8, 6, v16")
    b(f"  s_mul_i32 s{S_T+4}, s{S_W}, {2*1040}")
    b(f"  s_mul_i32 s{S_T+5}, s{S_W}, 1040")
    b(f"  v_add_u32 v5, s{S_T+4}, v16")
    b(f"  v_add_u32 v6, s{S_T+5}, v16")
    b(f"  v_lshlrev_b32 v1, 4, v0")
    b(f"  s_lshl_b32 s{S_T+2}, s2, 14")
    b(f"  s_add_u32 s{S_T+3}, s{S_T+2}, 8192")
    b(f"  s_waitcnt lgkmcnt(0)")

def sentinel_check(b, R0, pre, n=8):
    b(f"  v_max3_u32 v16, v{R0}, v{R0+1}, v{R0+2}")
    b(f"  v_max3_u32 v17, v{R0+3}, v{R0+4}, v{R0+5}")
    b(f"  v_max3_u32 v16, v16, v{R0+6}, v{R0+7}")
    for i in range(8, n, 2): b(f"  v_max3_u32 v17, v17, v{R0+i}, v{R0+i+1}")
    b(f"  v_max_u32 v16, v16, v17")
    b(f"  v_cmp_eq_u32 vcc, -1, v16")
    b(f"  s_sub_u32 s11, s11, 1")
    b(f"  s_cmp_eq_u32 s11, 0")
    b(f"  s_cbranch_scc1 {pre}_got")
    b(f"  s_cmp_lg_u64 vcc, 0")
    b(f"  s_cbranch_scc1 {pre}_poll")
    b.label(f"{pre}_got")

def p2_main(b):
    XL = XL2; TC, TS = TC2, TS2
    if SENT():
        b(f"  s_mov_b32 s11, 200000")
        b.label("p2_poll")
    b(f"  buffer_load_dwordx4 {vr(XL,4)}, v1, s[{SRD_A}:{SRD_A+3}], s{S_T+2} offen sc1")
    b(f"  buffer_load_dwordx4 {vr(XL+4,4)}, v1, s[{SRD_A}:{SRD_A+3}], s{S_T+3} offen sc1")
    if "wpack" in OPT:
        WL = WL2
        b(f"  buffer_load_dwordx4 {vr(WL,4)}, v1, s[{SRD_C}:{SRD_C+3}], s{S_T+2} offen sc1")
        b(f"  buffer_load_dwordx4 {vr(WL+4,4)}, v1, s[{SRD_C}:{SRD_C+3}], s{S_T+3} offen sc1")
        b(f"  s_waitcnt vmcnt(2)")
    elif "wlate" in OPT:
        assert not SENT()
        WL = WL2
        b(f"  buffer_load_dwordx4 {vr(WL,4)}, v24, s[{SRD_C}:{SRD_C+3}], s45 offen{WF()}")
        b(f"  buffer_load_dwordx4 {vr(WL+4,4)}, v24, s[{SRD_D}:{SRD_D+3}], s45 offen{WF()}")
        b(f"  s_cmp_lg_u32 s{S_T+1}, 0")
        b(f"  s_cbranch_scc1 p2_nonyq")
        b(f"  buffer_load_ushort v56, v25, s[{SRD_C}:{SRD_C+3}], 0 offen offset:1024")
        b(f"  buffer_load_ushort v57, v25, s[{SRD_D}:{SRD_D+3}], 0 offen offset:1024")
        b(f"  s_waitcnt vmcnt(0)")
        b(f"  v_cmp_eq_u32 vcc, 0, v26")
        b(f"  v_and_b32 v58, 0xffff0000, v{WL}")
        b(f"  v_or_b32 v58, v58, v56")
        b(f"  v_cndmask_b32 v{WL}, v{WL}, v58, vcc")
        b(f"  v_and_b32 v58, 0xffff0000, v{WL+4}")
        b(f"  v_or_b32 v58, v58, v57")
        b(f"  v_cndmask_b32 v{WL+4}, v{WL+4}, v58, vcc")
        b.label("p2_nonyq")
        b(f"  s_waitcnt vmcnt(2)")
    else:
        b(f"  s_waitcnt vmcnt(0)")
    if SENT(): sentinel_check(b, XL, "p2")
    WL = WE if ("wearly" in OPT or "wmid" in OPT) else WL2
    b(f"  v_lshlrev_b32 v17, 4, v7")
    FR, FI = 72, 76
    AX = 48; WR, WI = 152, 156
    b(f"  ds_read_b128 {vr(FR,4)}, v17 offset:{L2_F}")
    b(f"  ds_read_b128 {vr(FI,4)}, v17 offset:{L2_F+1024}")
    Dq = [80, 88]; Oq = [96, 104]; Tq = [112, 120]; Pq = [128, 132]; Wq = [136, 144]
    stamp(b, "p2 x landed")
    for j in range(4):
        b(f"  ds_write_b32 v21, v{XL+j} offset:{L2_X + j*1040}")
        b(f"  ds_write_b32 v22, v{XL+4+j} offset:{L2_X + j*1040}")
    if "wlate" in OPT or "wpack" in OPT: b(f"  s_waitcnt vmcnt(0)")
    for j in range(4):
        b(f"  ds_write_b32 v23, v{WL+j} offset:{L2_W + j*1040}")
        b(f"  ds_write_b32 v23, v{WL+4+j} offset:{L2_W + 8*1040 + j*1040}")
    if "nopf" not in OPT and "ntw1" not in OPT and PFN[1]:
        w1_share_base(b, S_T + 8, PFN[0] * 4096)
        pf_wide(b, P_W1, W1B, S_T + 8, PFN[1], 4, 8, "pf_p2a")
    b(f"  s_waitcnt lgkmcnt(0)")
    b(f"  s_barrier")
    b(f"  ds_read_b128 {vr(AX,4)}, v5 offset:{L2_X}")
    b(f"  ds_read_b128 {vr(AX+4,4)}, v5 offset:{L2_X+1040}")
    b(f"  ds_read_b128 {vr(WR,4)}, v6 offset:{L2_W}")
    b(f"  ds_read_b128 {vr(WI,4)}, v6 offset:{L2_W+8*1040}")
    def stage(form, src):
        for k in range(2):
            d = Dq[k]
            if form == 'A':
                b(f"  {MF32} {vr(d,4)}, {vr(src[k],4)}, {vr(FR,4)}, 0")
                b(f"  {MF32} {vr(d+4,4)}, {vr(src[k],4)}, {vr(FI,4)}, 0")
            else:
                b(f"  {MF32} {vr(d,4)}, {vr(FR,4)}, {vr(src[k],4)}, 0")
                b(f"  {MF32} {vr(d+4,4)}, {vr(FI,4)}, {vr(src[k],4)}, 0")
    def twiddle_pack():
        for k in range(2):
            cmul_pk(b, Oq[k], Oq[k] + 4, Dq[k], Dq[k] + 4, TC, TS, Tq[k], False)
        for k in range(2):
            for r in range(4):
                b(f"  v_cvt_pk_bf16_f32 v{Pq[k]+r}, v{Oq[k]+r}, v{Oq[k]+4+r}")
        b(f"  s_nop 1")
    b(f"  s_waitcnt lgkmcnt(2)")
    stage('A', [AX, AX + 4])
    b(f"  s_waitcnt lgkmcnt(0)")
    for r in range(4):
        b(f"  v_lshlrev_b32 v{Wq[0]+r}, 16, v{WR+r}")
        b(f"  v_lshlrev_b32 v{Wq[0]+4+r}, 16, v{WI+r}")
        b(f"  v_and_b32 v{Wq[1]+r}, 0xffff0000, v{WR+r}")
        b(f"  v_and_b32 v{Wq[1]+4+r}, 0xffff0000, v{WI+r}")
    twiddle_pack()
    stage('B', Pq)
    b(f"  s_nop 5")
    for k in range(2):
        cmul_pk(b, Oq[k], Oq[k] + 4, Dq[k], Dq[k] + 4, Wq[k], Wq[k] + 4, Tq[k], True)
    for k in range(2):
        for r in range(4):
            b(f"  v_cvt_pk_bf16_f32 v{Pq[k]+r}, v{Oq[k]+r}, -v{Oq[k]+4+r}")
    b(f"  s_nop 1")
    stage('A', Pq)
    b(f"  s_nop 5")
    twiddle_pack()
    stage('B', Pq)
    b(f"  s_nop 5")
    for k in range(2):
        for r in range(4):
            b(f"  v_cvt_pk_bf16_f32 v{Pq[k]+r}, v{Dq[k]+r}, -v{Dq[k]+4+r}")
    b(f"  ds_write_b128 v5, {vr(Pq[0],4)} offset:{L2_X}")
    b(f"  ds_write_b128 v5, {vr(Pq[1],4)} offset:{L2_X+1040}")
    b(f"  s_waitcnt lgkmcnt(0)")
    b(f"  s_barrier")
    for j in range(4):
        b(f"  ds_read_b32 v{XL+j}, v21 offset:{L2_X + j*1040}")
        b(f"  ds_read_b32 v{XL+4+j}, v22 offset:{L2_X + j*1040}")
    b(f"  v_bfe_u32 v16, v0, 2, 4              ; a")
    b(f"  v_lshrrev_b32 v17, 6, v0             ; b")
    b(f"  v_lshl_add_u32 v16, v16, 4, v17      ; s1")
    b(f"  v_lshlrev_b32 v16, 14, v16")
    b(f"  v_and_b32 v17, 3, v0")
    b(f"  v_lshl_add_u32 v16, v17, 4, v16")
    b(f"  s_lshl_b32 s{S_T+4}, s{S_T}, 11")
    b(f"  s_lshl_b32 s{S_T+5}, s{S_T+1}, 6")
    b(f"  s_add_u32 s{S_T+4}, s{S_T+4}, s{S_T+5}")
    b(f"  s_add_u32 s{S_T+5}, s{S_T+4}, {8*16384}")
    b(f"  s_waitcnt lgkmcnt(0)")
    if SENT2():
        for j in range(8): b(f"  v_min_u32 v{XL+j}, 0xfffffffe, v{XL+j}")
    b(f"  buffer_store_dwordx4 {vr(XL,4)}, v16, s[{SRD_B}:{SRD_B+3}], s{S_T+4} offen{SF}")
    b(f"  buffer_store_dwordx4 {vr(XL+4,4)}, v16, s[{SRD_B}:{SRD_B+3}], s{S_T+5} offen{SF}")
    stamp(b, "p2 stores issued")
    if not SENT2():
        b(f"  s_and_b32 s{S_T+8}, s2, 15")
        arrive(b, 1, S_T + 8, label="x2")

V_LO = 224
S_G1A = 60
def g1_ids(b):
    b(f"  s_lshr_b32 s{S_T}, s2, 3                 ; i")
    b(f"  s_cmp_lt_u32 s{S_T}, 28")
    b(f"  s_cselect_b32 s62, 1, 0")
    b(f"  s_mul_i32 s{S_T+1}, s{S_T}, 37")
    b(f"  s_lshr_b32 s{S_T+1}, s{S_T+1}, 8         ; i/7")
    b(f"  s_mul_i32 s{S_T+2}, s{S_T+1}, 7")
    b(f"  s_sub_u32 s{S_T+2}, s{S_T}, s{S_T+2}     ; i%7")
    b(f"  s_and_b32 s{S_T+3}, s2, 7")
    b(f"  s_lshr_b32 s{S_T+4}, s{S_T+3}, 1")
    b(f"  s_mul_i32 s{S_T+4}, s{S_T+4}, 7")
    b(f"  s_add_u32 s60, s{S_T+4}, s{S_T+2}        ; ft")
    b(f"  s_and_b32 s{S_T+3}, s{S_T+3}, 1")
    b(f"  s_lshl_b32 s{S_T+3}, s{S_T+3}, 2")
    b(f"  s_add_u32 s61, s{S_T+3}, s{S_T+1}        ; dt")

S_SOFF, S_M0, S_N = 4, 5, 6
def loader_issue(b, voff, fl=""):
    for i in range(4):
        b(f"  s_add_u32 m0, s{S_M0}, {4096*i}")
        b(f"  s_nop 0")
        b(f"  buffer_load_dwordx4 v{voff+i}, s[{SRD_T}:{SRD_T+3}], s{S_SOFF} offen{fl} lds")
    b(f"  s_add_u32 s{S_SOFF}, s{S_SOFF}, s9")
    b(f"  s_add_u32 s{S_M0}, s{S_M0}, {STAGE}")
    b(f"  s_cmp_ge_u32 s{S_M0}, s{S_N+1}")
    b(f"  s_cselect_b32 s{S_N+2}, {R*STAGE}, 0")
    b(f"  s_sub_u32 s{S_M0}, s{S_M0}, s{S_N+2}")

def loader_init(b, step_bytes):
    b(f"  s_sub_u32 s50, s{S_W}, 4")
    b(f"  s_lshl_b32 s{S_M0}, s50, 10")
    b(f"  s_add_u32 s{S_N+1}, s{S_M0}, {R*STAGE}")
    b(f"  s_mov_b32 s{S_SOFF}, 0")
    b(f"  s_mov_b32 s9, {step_bytes}")

def g1_loader_addr(b):
    b(f"  s_sub_u32 s50, s{S_W}, 4      ; w'")
    for i in range(4):
        b(f"  s_lshl_b32 s49, s50, 2")
        b(f"  s_add_u32 s49, s49, {16*i}")
        b(f"  v_lshrrev_b32 v14, 4, v7")
        b(f"  v_add_u32 v14, s49, v14                 ; row 0..63")
        b(f"  v_and_b32 v15, 3, v14")
        b(f"  v_lshlrev_b32 v15, 2, v15")
        b(f"  v_and_b32 v16, 15, v7")
        b(f"  v_xor_b32 v16, v16, v15                 ; q")
        b(f"  v_lshrrev_b32 v17, 3, v14")
        b(f"  v_and_b32 v18, 7, v14")
        b(f"  v_lshl_add_u32 v17, v18, 8, v17         ; s")
        b(f"  v_mul_u32_u24 v17, 7168, v17")
        b(f"  v_lshl_add_u32 v17, v16, 4, v17")
        b(f"  s_lshl_b32 s49, s60, 8")
        b(f"  v_add_u32 v{V_LO+i}, s49, v17")

def g2_ids(b):
    if SK():
        b(f"  s_lshr_b32 s{S_T+1}, s2, 3")
        b(f"  s_lshr_b32 s{S_TILE_A}, s{S_T+1}, 2          ; dt")
        b(f"  s_lshr_b32 s{S_T}, s2, 1")
        b(f"  s_and_b32 s{S_T}, s{S_T}, 3")
        b(f"  s_lshl_b32 s{S_T}, s{S_T}, 2")
        b(f"  s_and_b32 s{S_T+1}, s{S_T+1}, 3")
        b(f"  s_add_u32 s{S_TILE_B}, s{S_T}, s{S_T+1}      ; st2")
        b(f"  s_and_b32 s19, s2, 1                       ; kh")
        return
    b(f"  s_and_b32 s{S_T}, s2, 1")
    b(f"  s_lshl_b32 s{S_T}, s{S_T}, 2")
    b(f"  s_lshr_b32 s{S_T+1}, s2, 3")
    b(f"  s_and_b32 s{S_T+2}, s{S_T+1}, 3")
    b(f"  s_add_u32 s{S_TILE_A}, s{S_T}, s{S_T+2}     ; dt")
    b(f"  s_lshr_b32 s{S_T}, s2, 1")
    b(f"  s_and_b32 s{S_T}, s{S_T}, 3")
    b(f"  s_lshl_b32 s{S_T}, s{S_T}, 3")
    b(f"  s_lshr_b32 s{S_T+1}, s{S_T+1}, 2")
    b(f"  s_add_u32 s{S_TILE_B}, s{S_T}, s{S_T+1}     ; st")

def g2_loader_addr(b):
    if SK():
        b(f"  s_sub_u32 s50, s{S_W}, 4")
        for i in range(4):
            b(f"  s_lshl_b32 s49, s50, 2")
            b(f"  s_add_u32 s49, s49, {16*i}")
            b(f"  v_lshrrev_b32 v14, 4, v7")
            b(f"  v_add_u32 v14, s49, v14                 ; row 0..63")
            b(f"  v_and_b32 v15, 3, v14")
            b(f"  v_lshlrev_b32 v15, 2, v15")
            b(f"  v_and_b32 v16, 15, v7")
            b(f"  v_xor_b32 v16, v16, v15                 ; q")
            b(f"  v_lshlrev_b32 v14, 12, v14              ; row*4096")
            b(f"  v_lshl_add_u32 v14, v16, 4, v14")
            b(f"  s_lshl_b32 s49, s{S_TILE_B}, 8          ; s0*2")
            b(f"  s_mul_i32 s48, s19, {1792*4096}         ; k half")
            b(f"  s_add_u32 s49, s49, s48")
            b(f"  v_add_u32 v{V_LO+i}, s49, v14")
        return
    b(f"  s_sub_u32 s50, s{S_W}, 4")
    for i in range(4):
        b(f"  s_lshl_b32 s49, s50, 3")
        b(f"  s_add_u32 s49, s49, {32*i}")
        b(f"  v_lshrrev_b32 v14, 3, v7")
        b(f"  v_add_u32 v14, s49, v14                 ; row")
        b(f"  v_bfe_u32 v15, v14, 1, 1")
        b(f"  v_lshlrev_b32 v15, 2, v15")
        b(f"  v_and_b32 v16, 7, v7")
        b(f"  v_xor_b32 v16, v16, v15                 ; q")
        b(f"  v_lshlrev_b32 v14, 12, v14              ; row*4096")
        b(f"  v_lshl_add_u32 v14, v16, 4, v14")
        b(f"  s_lshl_b32 s49, s{S_TILE_B}, 7          ; s0*2")
        b(f"  v_add_u32 v{V_LO+i}, s49, v14")

def loader_loop(b, NS, pre, fl=""):
    if "priol" in OPT: b("  s_setprio 2")
    if "oldstart" in OPT:
        for n in range(R - 4): loader_issue(b, V_LO, fl)
        nmain = NS - (R - 2)
    else:
        b(f"  s_waitcnt vmcnt(4)")
        b("  s_barrier                      ; B_0")
        for n in range(R - 3): loader_issue(b, V_LO, fl)
        nmain = NS - (R - 2) - 1
    b(f"  s_mov_b32 s{S_N}, {nmain}")
    b.label(f"{pre}_lloop")
    b(f"  s_waitcnt vmcnt({(R-3)*4})")
    b("  s_barrier")
    loader_issue(b, V_LO, fl)
    b(f"  s_sub_u32 s{S_N}, s{S_N}, 1")
    b(f"  s_cmp_lg_u32 s{S_N}, 0")
    b(f"  s_cbranch_scc1 {pre}_lloop")
    for i in range(R - 2):
        b(f"  s_waitcnt vmcnt({(R-3-i)*4})")
        b("  s_barrier")

BD3 = 32; XR3 = 192; GM3 = 30
def p3_tables(b):
    b(f"  v_and_b32 v10, 255, v0            ; e")
    b(f"  v_lshrrev_b32 v11, 8, v0")
    b(f"  v_bfe_u32 v12, v10, 2, 4          ; n = lane&15")
    b(f"  v_lshrrev_b32 v13, 6, v10         ; g")
    b(f"  v_and_b32 v14, 3, v10             ; r")
    b(f"  v_lshl_add_u32 v13, v13, 2, v14   ; 4g + r")
    b(f"  v_lshrrev_b32 v15, 2, v12")
    b(f"  v_lshlrev_b32 v15, 3, v15")
    b(f"  v_and_b32 v16, 3, v12")
    b(f"  v_add_u32 v15, v15, v16           ; b(n,0)")
    b(f"  v_lshl_add_u32 v16, v11, 2, v15   ; b(n, sel)")
    b(f"  v_mul_u32_u24 v17, v16, v13")
    sincos(b, 18, 19, 17, 5, 20)
    b(f"  v_lshlrev_b32 v22, 2, v10")
    b(f"  v_lshl_add_u32 v22, v11, 11, v22  ; sel*2048 + e*4")
    b(f"  v_add_u32 v22, {L3_M3}, v22")
    b(f"  v_cvt_pk_bf16_f32 v23, v18, -v19")
    b(f"  v_cvt_pk_bf16_f32 v24, v19, v18")
    b(f"  ds_write_b32 v22, v23")
    b(f"  ds_write_b32 v22, v24 offset:1024")
    b(f"  v_lshl_add_u32 v17, v11, 4, v13   ; k1")
    for z in range(2):
        b(f"  v_add_u32 v21, {16*z}, v12")
        b(f"  v_mul_u32_u24 v21, v21, v17")
        sincos(b, 18, 19, 21, 5, 20)
        b(f"  v_add_f32 v18, v18, v18")
        b(f"  v_mul_f32 v19, -2.0, v19")
        b(f"  v_cvt_pk_bf16_f32 v23, v18, v19")
        b(f"  ds_write_b32 v22, v23 offset:{4096+1024*z}")
    b(f"  v_lshlrev_b32 v23, 2, v10")
    b(f"  v_lshl_add_u32 v23, v11, 12, v23   ; u*4096 + e*4")
    b(f"  v_add_u32 v23, {L3_TW}, v23")
    for v in range(2):
        b(f"  v_add_u32 v21, {4*v}, v15")
        b(f"  v_mul_u32_u24 v21, v21, v17")
        sincos(b, 18, 19, 21, 10, 20)
        b(f"  ds_write_b32 v23, v18 offset:{2048*v}")
        b(f"  ds_write_b32 v23, v19 offset:{2048*v+1024}")

def p3_setup(b):
    srd(b, SRD_A, P_WS, 4 << 20, WS_X2)
    srd(b, SRD_B, P_X, 4 << 20)
    srd(b, SRD_C, P_WS, 4 << 20, WS_H)
    srd(b, SRD_D, P_WS, 4 << 20, WS_LN2)
    b(f"  s_lshl_b32 s{S_T+3}, s{S_W}, 8")
    b(f"  s_add_u32 s{S_T+3}, s{S_T+3}, s2")
    b(f"  s_lshl_b32 s{S_T+3}, s{S_T+3}, 11       ; s*2048")
    b(f"  v_lshlrev_b32 v4, 6, v8")
    b(f"  v_lshl_add_u32 v4, v9, 4, v4")
    if "stash" in OPT:
        b(f"  s_lshl_b32 s{S_T+9}, s{S_W}, 11")
        b(f"  s_add_u32 s{S_T+9}, s{S_T+9}, {L_XS}")
        b(f"  v_add_u32 v2, s{S_T+9}, v4")
        for z in range(2): b(f"  ds_read_b128 {vr(XR3+4*z,4)}, v2 offset:{1024*z}")
    else:
      for z in range(2):
        b(f"  buffer_load_dwordx4 {vr(XR3+4*z,4)}, v4, s[{SRD_B}:{SRD_B+3}], s{S_T+3} offen offset:{1024*z}")
    b(f"  s_mov_b32 s63, s{S_T+3}")
    if SK():
        srd(b, SRD_PF, P_WS, 4 << 20, WS_XCH)
        for i in range(4): b(f"  v_mov_b32 v{200+i}, -1")
        b(f"  v_lshlrev_b32 v2, 4, v0")
        b(f"  s_lshl_b32 s{S_T+8}, s2, 14")
        b(f"  buffer_store_dwordx4 v[200:203], v2, s[{SRD_PF}:{SRD_PF+3}], s{S_T+8} offen{SF}")
        b(f"  s_add_u32 s{S_T+8}, s{S_T+8}, 8192")
        b(f"  buffer_store_dwordx4 v[200:203], v2, s[{SRD_PF}:{SRD_PF+3}], s{S_T+8} offen{SF}")
    if "es" in OPT:
        b(f"  s_cmp_ge_u32 s{S_W}, 4")
        b(f"  s_cbranch_scc1 p3_noclr")
        srd(b, SRD_PF, P_WS, U_BYTES, WS_U)
        b(f"  s_lshr_b32 s{S_T+8}, s2, 3            ; dblk")
        b(f"  s_mul_i32 s{S_T+8}, s{S_T+8}, 229376")
        b(f"  s_lshr_b32 s{S_T+9}, s2, 2")
        b(f"  s_and_b32 s{S_T+9}, s{S_T+9}, 1       ; k half")
        b(f"  s_mul_i32 s{S_T+9}, s{S_T+9}, {112*1024}")
        b(f"  s_add_u32 s{S_T+8}, s{S_T+8}, s{S_T+9}")
        b(f"  s_and_b32 s{S_T+9}, s2, 3")
        b(f"  s_lshl_b32 s{S_T+9}, s{S_T+9}, 12")
        b(f"  s_add_u32 s{S_T+8}, s{S_T+8}, s{S_T+9}")
        b(f"  buffer_store_dwordx4 v[200:203], v2, s[{SRD_PF}:{SRD_PF+3}], s{S_T+8} offen{SF}")
        b.label("p3_noclr")
    if "nopf" not in OPT and "ntw1" not in OPT:
        if PFN[2]:
            w1_share_base(b, S_T + 8, (PFN[0] + PFN[1]) * 4096)
            pf_wide(b, P_W1, W1B, S_T + 8, PFN[2], 4, 8, "pf_p3a")
    g1_ids(b)
    g1_loader_addr(b)
    loader_init(b, 8 * 7168)
    p3_tables(b)
    gmat(b, GM3, 2, True, 10)
    b(f"  v_lshlrev_b32 v1, 12, v9")
    b(f"  v_lshl_add_u32 v1, v8, 2, v1")
    b(f"  s_lshl_b32 s{S_T}, s2, 14")
    b(f"  s_and_b32 s{S_T+1}, s{S_W}, 1")
    b(f"  s_lshl_b32 s{S_T+1}, s{S_T+1}, 6")
    b(f"  s_lshr_b32 s{S_T+2}, s{S_W}, 1")
    b(f"  s_lshl_b32 s{S_T+2}, s{S_T+2}, 9")
    b(f"  s_add_u32 s{S_T}, s{S_T}, s{S_T+1}")
    b(f"  s_add_u32 s44, s{S_T}, s{S_T+2}          ; X2 soffset")
    b(f"  s_lshl_b32 s{S_T+1}, s{S_T+1}, 4        ; u*1024")
    b(f"  s_lshr_b32 s{S_T+2}, s{S_T+2}, 1        ; q4*256")
    b(f"  s_add_u32 s45, s{S_T+1}, s{S_T+2}")
    b(f"  s_waitcnt lgkmcnt(0)")

def p3_main(b):
    Bd, XR, GM = BD3, XR3, GM3
    D = 40
    b(f"  v_lshlrev_b32 v3, 12, v9")
    b(f"  v_lshl_add_u32 v3, v8, 4, v3")
    b(f"  v_add_u32 v3, s45, v3")
    b(f"  v_add_u32 v3, {L3_EX}, v3")
    M3, M4, TW = 96, 112, 128
    b(f"  v_lshlrev_b32 v6, 4, v7")
    b(f"  v_add_u32 v6, {L3_M3}, v6")
    for i in range(4): b(f"  ds_read_b128 {vr(M3+4*i,4)}, v6 offset:{1024*i}")
    for i in range(4): b(f"  ds_read_b128 {vr(M4+4*i,4)}, v6 offset:{4096+1024*i}")
    b(f"  s_waitcnt lgkmcnt(0)")
    for i in range(8): b(f"  ds_read_b128 {vr(TW+4*i,4)}, v6 offset:{8192+1024*i}")
    if SENT2():
        b(f"  s_mov_b32 s11, 200000")
        b.label("p3_poll")
    for i in range(4):
        for e in range(2):
            b(f"  buffer_load_dword v{Bd+2*i+e}, v1, s[{SRD_A}:{SRD_A+3}], s44 offen offset:{e*2048+i*128} sc1")
    b(f"  s_waitcnt vmcnt(0)")
    if SENT2(): sentinel_check(b, Bd, "p3")
    stamp(b, "p3 x2 landed")
    if "nopf" not in OPT and "ntw1" not in OPT and PFN[3]:
        w1_share_base(b, S_T + 8, (PFN[0] + PFN[1] + PFN[2]) * 4096)
        pf_wide(b, P_W1, W1B, S_T + 8, PFN[3], 4, 8, "pf_p3b")
    for i in range(4):
        b(f"  {MF16} {vr(D+4*i,4)}, {vr(GM,2)}, {vr(Bd+2*i,2)}, 0")
    b(f"  s_nop 4")
    PK = 56
    for e in range(2):
        for i in range(4):
            b(f"  v_cvt_pk_bf16_f32 v{PK+4*e+i}, v{D+4*i+2*e}, v{D+4*i+2*e+1}")
    b(f"  ds_write_b128 v3, {vr(PK,4)}")
    b(f"  ds_write_b128 v3, {vr(PK+4,4)} offset:2048")
    b(f"  s_waitcnt lgkmcnt(0)")
    b(f"  s_barrier")
    b(f"  v_lshlrev_b32 v5, 8, v9")
    b(f"  v_lshl_add_u32 v5, v8, 4, v5")
    b(f"  s_lshl_b32 s{S_T+1}, s{S_W}, 11")
    b(f"  s_add_u32 s{S_T+1}, s{S_T+1}, {L3_EX}")
    b(f"  v_add_u32 v5, s{S_T+1}, v5")
    AU = 32
    b(f"  ds_read_b128 {vr(AU,4)}, v5")
    b(f"  ds_read_b128 {vr(AU+4,4)}, v5 offset:1024")
    b(f"  s_waitcnt lgkmcnt(0)")
    b(f"  v_readlane_b32 s{S_T+4}, v{AU}, 0")
    b(f"  v_writelane_b32 v{AU}, 0, 0")
    b(f"  s_nop 1")
    b(f"  s_lshl_b32 s{S_T+4}, s{S_T+4}, 16")
    TT = 160
    for u in range(2):
        for v in range(2):
            for c in range(2):
                d = TT + ((u * 2 + v) * 2 + c) * 4
                b(f"  {MF32} {vr(d,4)}, {vr(AU+4*u,4)}, {vr(M3+4*(2*v+c),4)}, 0")
    CI = 60
    b(f"  v_mov_b32 v{CI}, s{S_T+4}")
    b(f"  v_xor_b32 v{CI+1}, 0x80000000, v{CI}")
    b(f"  v_mov_b32 v{CI+2}, v{CI}")
    b(f"  v_mov_b32 v{CI+3}, v{CI+1}")
    b(f"  s_nop 1")
    A2 = 64; O = 40; W = 80
    for u in range(2):
        for v in range(2):
            t = TT + ((u * 2 + v) * 2) * 4
            tw = TW + ((u * 2 + v) * 2) * 4
            cmul_pk(b, O, O + 4, t, t + 4, tw, tw + 4, W, True)
            for r in range(4):
                b(f"  v_cvt_pk_bf16_f32 v{A2+(u*2+v)*4+r}, v{O+r}, v{O+4+r}")
    Y = 160
    b(f"  s_nop 1")
    for z in range(2):
        for v in range(2):
            d = Y + (z * 2 + v) * 4
            b(f"  {MF32} {vr(d,4)}, {vr(A2+(0*2+v)*4,4)}, {vr(M4+(0*2+z)*4,4)}, {vr(CI,4)}")
    for z in range(2):
        for v in range(2):
            d = Y + (z * 2 + v) * 4
            b(f"  {MF32} {vr(d,4)}, {vr(A2+(1*2+v)*4,4)}, {vr(M4+(1*2+z)*4,4)}, {vr(d,4)}")
    b(f"  s_nop 7")
    X = 40; HP = 32
    stamp(b, "p3 ifft done")
    for z in range(2):
        for dd in range(4):
            y0 = Y + z * 8 + 2 * dd
            xd = XR + 4 * z + dd
            t = 64 + 2 * (dd % 4)
            b(f"  v_lshlrev_b32 v{t}, 16, v{xd}")
            b(f"  v_and_b32 v{t+1}, 0xffff0000, v{xd}")
            b(f"  v_pk_add_f32 {vr(t,2)}, {vr(t,2)}, {vr(y0,2)}")
            b(f"  v_cvt_pk_bf16_f32 v{HP+4*z+dd}, v{t}, v{t+1}")
    for z in range(2):
        b(f"  buffer_store_dwordx4 {vr(HP+4*z,4)}, v4, s[{SRD_C}:{SRD_C+3}], s63 offen offset:{1024*z}{SF}")
    for i in range(8):
        b(f"  v_lshlrev_b32 v{X+2*i}, 16, v{HP+i}")
        b(f"  v_and_b32 v{X+2*i+1}, 0xffff0000, v{HP+i}")
    ln_fast(b, X, 64, S_T + 4, False)
    LP = 72
    stamp(b, "p3 ln done")
    for i in range(8):
        b(f"  v_cvt_pk_bf16_f32 v{LP+i}, v{X+2*i}, v{X+2*i+1}")
    b(f"  v_mul_u32_u24 v3, 80, v8")
    b(f"  v_lshl_add_u32 v3, v9, 4, v3")
    b(f"  s_mul_i32 s{S_T+1}, s{S_W}, {L3_RS}")
    b(f"  s_add_u32 s{S_T+1}, s{S_T+1}, {L3_LN}")
    b(f"  v_add_u32 v3, s{S_T+1}, v3")
    for z in range(2):
        b(f"  ds_write_b128 v3, {vr(LP+4*z,4)} offset:{z*16*80}")
    b(f"  s_waitcnt lgkmcnt(0)")
    b(f"  s_barrier")
    b(f"  v_bfe_u32 v10, v7, 2, 2")
    b(f"  v_mul_u32_u24 v10, {L3_RS}, v10")
    b(f"  v_lshrrev_b32 v11, 5, v7")
    b(f"  v_mul_u32_u24 v12, 80, v11")
    b(f"  v_add_u32 v10, v10, v12")
    b(f"  v_and_b32 v12, 1, v7")
    b(f"  v_lshl_add_u32 v10, v12, 5, v10")
    b(f"  v_bfe_u32 v12, v7, 4, 1")
    b(f"  v_lshl_add_u32 v10, v12, 4, v10")
    b(f"  v_bfe_u32 v12, v7, 1, 1")
    b(f"  v_lshl_add_u32 v10, v12, 3, v10")
    b(f"  s_mul_i32 s{S_T+1}, s{S_W}, {4*80}")
    b(f"  s_add_u32 s{S_T+1}, s{S_T+1}, {L3_LN}")
    b(f"  v_add_u32 v10, s{S_T+1}, v10")
    for ps in range(2):
        b(f"  ds_read_b64_tr_b16 {vr(32+4*ps,2)}, v10 offset:{ps*160}")
        b(f"  ds_read_b64_tr_b16 {vr(34+4*ps,2)}, v10 offset:{ps*160 + 4*L3_RS}")
    b(f"  v_lshlrev_b32 v11, 17, v11")
    b(f"  v_and_b32 v12, 31, v7")
    b(f"  v_lshl_add_u32 v11, v12, 4, v11")
    b(f"  s_lshl_b32 s{S_T+1}, s{S_W}, 19")
    b(f"  s_lshl_b32 s{S_T+2}, s2, 9")
    b(f"  s_add_u32 s{S_T+1}, s{S_T+1}, s{S_T+2}")
    b(f"  s_add_u32 s{S_T+2}, s{S_T+1}, {2*131072}")
    b(f"  s_waitcnt lgkmcnt(2)")
    if "es" in OPT:
        for i in range(4): b(f"  v_min_u32 v{32+i}, 0xfffffffe, v{32+i}")
    b(f"  buffer_store_dwordx4 v[32:35], v11, s[{SRD_D}:{SRD_D+3}], s{S_T+1} offen{SF}")
    b(f"  s_waitcnt lgkmcnt(0)")
    if "es" in OPT:
        for i in range(4): b(f"  v_min_u32 v{36+i}, 0xfffffffe, v{36+i}")
    b(f"  buffer_store_dwordx4 v[36:39], v11, s[{SRD_D}:{SRD_D+3}], s{S_T+2} offen{SF}")
    stamp(b, "p3 stores issued")
    b(f"  s_and_b32 s{S_T+8}, s2, 15")
    arrive(b, 2, S_T + 8, label="x3")
    srd(b, SRD_T, P_W1, W1B)
    b(f"  s_cmp_lt_u32 s{S_W}, 4")
    b(f"  s_cbranch_scc1 p3_nodma")
    b(f"  s_cmp_eq_u32 s62, 0")
    b(f"  s_cbranch_scc1 p3_nodma")
    for n in range(2): loader_issue(b, V_LO, W1F())
    b.label("p3_nodma")

def gemm_core(b, c, pre, after_setup, after_prologue=None, posts=None):
    NB, NS = c.NB, c.NS
    acc = lambda nb: V_ACC + nb * 16
    VT = V_ACC + NB * 16
    VPR = VT + 32
    c.VT, c.VPR = VT, VPR
    c.vend = VPR + 4 * PR
    tf = lambda q: VT + (q % 8) * 4
    pr = lambda j: VPR + (j % PR) * 4
    FPI = 64
    KPI = FPI // NB
    def tread(q):
        ql = q % FPI
        lslot, within = ql // 16, ql % 16
        ks, nb = within // NB, within % NB
        off = lslot * STAGE + ks * 16 * c.rowb
        b(f"  ds_read_b64_tr_b16 {vr(tf(q),2)}, v{V_T+nb} offset:{off}")
        b(f"  ds_read_b64_tr_b16 {vr(tf(q)+2,2)}, v{V_T+nb} offset:{off+4*c.rowb}")
    def pload(j):
        b(f"  buffer_load_dwordx4 {vr(pr(j),4)}, v{V_P}, s[{SRD_P}:{SRD_P+3}], s{S_POFF} offen offset:{(j%4)*1024}{LF}")
        if j % 4 == 3: b(f"  s_add_u32 s{S_POFF}, s{S_POFF}, 4096")
    def mfma(q):
        nb = q % NB; j = q // NB; a = acc(nb)
        if "m16fake" in OPT:
            o = 8 * (j % 2)
            b(f"  v_mfma_f32_16x16x32_bf16 {vr(a+o,4)}, {vr(tf(q),4)}, {vr(pr(j),4)}, {vr(a+o,4)}")
            b(f"  v_mfma_f32_16x16x32_bf16 {vr(a+o+4,4)}, {vr(pr(j),4)}, {vr(tf(q),4)}, {vr(a+o+4,4)}")
            return
        if c.name == "g1":
            b(f"  v_mfma_f32_32x32x16_bf16 {vr(a,16)}, {vr(tf(q),4)}, {vr(pr(j),4)}, {vr(a,16)}")
        else:
            b(f"  v_mfma_f32_32x32x16_bf16 {vr(a,16)}, {vr(pr(j),4)}, {vr(tf(q),4)}, {vr(a,16)}")
    if "prioc" in OPT: b("  s_setprio 2")
    b(f"  s_mov_b32 s{S_POFF}, 0")
    S_EOFF = 18
    if "es" in OPT: b(f"  s_mov_b32 s{S_EOFF}, {3*4096}")
    b(f"  s_mov_b32 s{S_DELTA}, {4*STAGE}")
    b(f"  s_mov_b32 s{S_IT}, {NS//4 - 1}")
    if "es" in OPT:
        b(f"  s_mov_b32 s11, 200000")
        b.label(f"{pre}e0_poll")
        b(f"  buffer_load_dwordx4 {vr(pr(14),4)}, v{V_P}, s[{SRD_P}:{SRD_P+3}], s{S_EOFF} offen offset:2048 sc1")
        b(f"  s_waitcnt vmcnt(0)")
        b(f"  v_max3_u32 v16, v{pr(14)}, v{pr(14)+1}, v{pr(14)+2}")
        b(f"  v_max_u32 v16, v16, v{pr(14)+3}")
        b(f"  v_cmp_eq_u32 vcc, -1, v16")
        b(f"  s_sub_u32 s11, s11, 1")
        b(f"  s_cmp_eq_u32 s11, 0")
        b(f"  s_cbranch_scc1 {pre}e0_got")
        b(f"  s_cmp_lg_u64 vcc, 0")
        b(f"  s_cbranch_scc1 {pre}e0_poll")
        b.label(f"{pre}e0_got")
        b(f"  s_mov_b32 s11, 200000")
        b.label(f"{pre}e_poll")
        for j in range(PR - 2):
            if j % 4 == 0: b(f"  s_mov_b32 s{S_POFF}, {(j//4)*4096}")
            b(f"  buffer_load_dwordx4 {vr(pr(j),4)}, v{V_P}, s[{SRD_P}:{SRD_P+3}], s{S_POFF} offen offset:{(j%4)*1024} sc1")
        b(f"  s_waitcnt vmcnt(0)")
        sentinel_check(b, VPR, f"{pre}e", n=4 * (PR - 2))
        b(f"  s_mov_b32 s{S_POFF}, {3*4096}")
        after_setup()
    else:
        after_setup()
        for j in range(PR - 1): pload(j)
    if after_prologue: after_prologue()
    b("  s_barrier")
    for q in range(DQ): tread(q)
    def body(last):
        for q in range(FPI):
            j = q // NB
            qn = q + DQ
            do_read = not (last and qn >= FPI)
            do_pload = False
            if q % NB == 0:
                rem = KPI - 1 - j
                if (not last) or (j + PR - 1 < KPI):
                    b(f"  s_waitcnt vmcnt({PR-2})")
                    do_pload = True
                else:
                    b(f"  s_waitcnt vmcnt({min(PR-2, rem)})")
            if do_read and qn % 16 == 0:
                b("  s_barrier")
            if do_read and qn == FPI:
                for i in range(NB): b(f"  v_add_u32 v{V_T+i}, s{S_DELTA}, v{V_T+i}")
                b(f"  s_sub_u32 s{S_DELTA}, 0, s{S_DELTA}")
            if q % 2 == 0:
                left = min(DQ - 2, FPI - 2 - q) if last else DQ - 2
                b(f"  s_waitcnt lgkmcnt({2*left})")
            mfma(q)
            if do_pload: pload(j + PR - 1)
            if do_read: tread(qn)
    b.label(f"{pre}_loop")
    body(False)
    b(f"  s_sub_u32 s{S_IT}, s{S_IT}, 1")
    b(f"  s_cmp_lg_u32 s{S_IT}, 0")
    b(f"  s_cbranch_scc1 {pre}_loop")
    if posts is None:
        body(True)
        return
    F = [(q // NB, q % NB) for q in range(16)] + [(4 + r % 12, r // 12) for r in range(48)]
    def tread_f(q):
        j, nb = F[q]
        off = (j // 4) * STAGE + (j % 4) * 16 * c.rowb
        b(f"  ds_read_b64_tr_b16 {vr(tf(q),2)}, v{V_T+nb} offset:{off}")
        b(f"  ds_read_b64_tr_b16 {vr(tf(q)+2,2)}, v{V_T+nb} offset:{off+4*c.rowb}")
    for q in range(FPI):
        j, nb = F[q]
        qn = q + DQ
        first_use = (q < 16 and nb == 0) or (16 <= q < 28)
        if q == 0: b(f"  s_waitcnt vmcnt({PR-2})")
        elif first_use: b(f"  s_waitcnt vmcnt({min(PR-2, KPI - 1 - j)})")
        if q == 9: b("  s_barrier"); b("  s_barrier")
        if q == 13: b("  s_barrier")
        if q % 2 == 0:
            left = min(DQ - 2, FPI - 2 - q)
            b(f"  s_waitcnt lgkmcnt({2*left})")
        a = acc(nb)
        if c.name == "g1":
            b(f"  v_mfma_f32_32x32x16_bf16 {vr(a,16)}, {vr(tf(q),4)}, {vr(pr(j),4)}, {vr(a,16)}")
        else:
            b(f"  v_mfma_f32_32x32x16_bf16 {vr(a,16)}, {vr(pr(j),4)}, {vr(tf(q),4)}, {vr(a,16)}")
        if q == 0: pload(PR - 1)
        if qn < FPI: tread_f(qn)
        if q >= 28:
            blk, r = (q - 16) // 12 - 1, (q - 16) % 12
            fill = posts.get(blk, [])
            if fill and r >= 3:
                n = len(fill); per = -(-n // 9)
                for line in fill[(r - 3) * per:(r - 2) * per]: b(line)

def idle_w1(b):
    srd(b, SRD_PF, P_W1, W1B)
    b(f"  s_and_b32 s51, s50, 7")
    b(f"  s_mul_i32 s51, s51, {256*7168}")
    b(f"  s_lshr_b32 s52, s50, 3")
    b(f"  s_mul_i32 s52, s52, {4*7168}")
    b(f"  s_add_u32 s51, s51, s52")
    b(f"  s_add_u32 s51, s51, {128*7168}")
    b(f"  s_mov_b32 s52, 7")
    b.label("pf_w1b")
    for i in range(4): b(f"  buffer_load_dwordx4 {vr(V_DUMMY,4)}, v29, s[{SRD_PF}:{SRD_PF+3}], s51 offen offset:{1024*i}")
    b(f"  s_add_u32 s51, s51, 4096")
    b(f"  s_waitcnt vmcnt(4)")
    b(f"  s_sub_u32 s52, s52, 1")
    b(f"  s_cmp_lg_u32 s52, 0")
    b(f"  s_cbranch_scc1 pf_w1b")

def idle_w2(b):
    if "idlesc" in OPT:
        srd(b, SRD_PF, P_W2, W1B)
        b(f"  s_mul_i32 s51, s50, {W1B // 256}")
        b(f"  v_lshlrev_b32 v29, 7, v7")
        for i in range(7):
            b(f"  buffer_load_dword v230, v29, s[{SRD_PF}:{SRD_PF+3}], s51 offen")
            b(f"  s_add_u32 s51, s51, 8192")
            if i >= 1: b(f"  s_waitcnt vmcnt(1)")
        b(f"  s_waitcnt vmcnt(0)")
        return
    srd(b, SRD_PF, P_W2, W1B)
    b(f"  s_mul_i32 s51, s50, {W1B // 256}")
    b(f"  s_mov_b32 s52, 14")
    b.label("pf_w2")
    for i in range(4): b(f"  buffer_load_dwordx4 {vr(V_DUMMY,4)}, v29, s[{SRD_PF}:{SRD_PF+3}], s51 offen offset:{1024*i}")
    b(f"  s_add_u32 s51, s51, 4096")
    b(f"  s_waitcnt vmcnt({0 if 'idlepace' in OPT else 4})")
    b(f"  s_sub_u32 s52, s52, 1")
    b(f"  s_cmp_lg_u32 s52, 0")
    b(f"  s_cbranch_scc1 pf_w2")
    b(f"  s_waitcnt vmcnt(0)")

def g1_gelu(b, c, blocks, accof, vaddr):
    K1 = -2.0 * 0.7978845608028654 * 1.4426950408889634
    K2 = K1 * 0.044715
    T = c.VPR
    b(f"  v_mov_b32 v{T}, {hex(f2u(K1))}")
    b(f"  v_mov_b32 v{T+1}, {hex(f2u(K1))}")
    b(f"  v_mov_b32 v{T+2}, {hex(f2u(K2))}")
    b(f"  v_mov_b32 v{T+3}, {hex(f2u(K2))}")
    b(f"  s_nop 7")
    W = T + 8
    for fb in blocks:
        a = accof(fb); t = W; o = W + 16 + 8 * (fb % 2)
        for h in range(0, 16, 2): b(f"  v_pk_mul_f32 {vr(t+h,2)}, {vr(a+h,2)}, {vr(a+h,2)}")
        for h in range(0, 16, 2): b(f"  v_pk_fma_f32 {vr(t+h,2)}, {vr(t+h,2)}, {vr(T+2,2)}, {vr(T,2)}")
        for h in range(0, 16, 2): b(f"  v_pk_mul_f32 {vr(t+h,2)}, {vr(t+h,2)}, {vr(a+h,2)}")
        for r in range(16): b(f"  v_exp_f32 v{t+r}, v{t+r}")
        for h in range(0, 16, 2): b(f"  v_pk_add_f32 {vr(t+h,2)}, {vr(t+h,2)}, 1.0 op_sel_hi:[1,0]")
        for r in range(16): b(f"  v_rcp_f32 v{t+r}, v{t+r}")
        for h in range(0, 16, 2): b(f"  v_pk_mul_f32 {vr(t+h,2)}, {vr(a+h,2)}, {vr(t+h,2)}")
        for i in range(4):
            b(f"  v_cvt_pk_bf16_f32 v{o+2*i}, v{t+4*i}, v{t+4*i+1}")
            b(f"  v_cvt_pk_bf16_f32 v{o+2*i+1}, v{t+4*i+2}, v{t+4*i+3}")
        for ip in range(2):
            oo = o + 4 * ip
            b(f"  s_mov_b32 s{S_TMP+1}, {(2*fb+ip)*1024}")
            b(f"  s_nop 0")
            b(f"  v_permlane32_swap_b32 v{oo}, v{oo+2}")
            b(f"  v_permlane32_swap_b32 v{oo+1}, v{oo+3}")
            b(f"  buffer_store_dwordx4 {vr(oo,4)}, v{vaddr}, s[{SRD_O}:{SRD_O+3}], s{S_TMP+1} offen{SF}")

def gelu_lines(fb, a, CT, t, o, vaddr):
    L = []
    for h in range(0, 16, 2): L.append(f"  v_pk_mul_f32 {vr(t+h,2)}, {vr(a+h,2)}, {vr(a+h,2)}")
    for h in range(0, 16, 2): L.append(f"  v_pk_fma_f32 {vr(t+h,2)}, {vr(t+h,2)}, {vr(CT+2,2)}, {vr(CT,2)}")
    for h in range(0, 16, 2): L.append(f"  v_pk_mul_f32 {vr(t+h,2)}, {vr(t+h,2)}, {vr(a+h,2)}")
    for r in range(16): L.append(f"  v_exp_f32 v{t+r}, v{t+r}")
    for h in range(0, 16, 2): L.append(f"  v_pk_add_f32 {vr(t+h,2)}, {vr(t+h,2)}, 1.0 op_sel_hi:[1,0]")
    for r in range(16): L.append(f"  v_rcp_f32 v{t+r}, v{t+r}")
    for h in range(0, 16, 2): L.append(f"  v_pk_mul_f32 {vr(t+h,2)}, {vr(a+h,2)}, {vr(t+h,2)}")
    for i in range(4):
        L.append(f"  v_cvt_pk_bf16_f32 v{o+2*i}, v{t+4*i}, v{t+4*i+1}")
        L.append(f"  v_cvt_pk_bf16_f32 v{o+2*i+1}, v{t+4*i+2}, v{t+4*i+3}")
    if "es" in OPT:
        for i in range(8): L.append(f"  v_min_u32 v{o+i}, 0xfffffffe, v{o+i}")
    for ip in range(2):
        oo = o + 4 * ip
        L.append(f"  s_mov_b32 s{S_TMP+1}, {(2*fb+ip)*1024}")
        L.append(f"  s_nop 1")
        L.append(f"  v_permlane32_swap_b32 v{oo}, v{oo+2}")
        L.append(f"  v_permlane32_swap_b32 v{oo+1}, v{oo+3}")
        L.append(f"  buffer_store_dwordx4 {vr(oo,4)}, v{vaddr}, s[{SRD_O}:{SRD_O+3}], s{S_TMP+1} offen{SF}")
    return L

def g1(b):
    c = g1_cfg()
    b(f"  s_cmp_eq_u32 s62, 0")
    b(f"  s_cbranch_scc1 g1_inactive")
    srd(b, SRD_P, P_WS, 4 << 20, WS_LN2)
    srd(b, SRD_T, P_W1, W1B)
    srd(b, SRD_O, P_WS, U_BYTES, WS_U)
    srd(b, SRD_X, P_B1, 3584 * 2)
    b(f"  s_cmp_ge_u32 s{S_W}, 4")
    b(f"  s_cbranch_scc1 g1_loader")
    lane_geom(b)
    b(f"  s_lshl_b32 s{S_TMP}, s61, 2")
    b(f"  s_add_u32 s{S_TMP}, s{S_TMP}, s{S_W}            ; dblk")
    b(f"  s_lshl_b32 s{S_TMP+2}, s{S_TMP}, 17")
    b(f"  v_lshlrev_b32 v10, 4, v7")
    b(f"  v_add_u32 v{V_P}, s{S_TMP+2}, v10")
    b(f"  s_lshl_b32 s{S_TMP+1}, s60, 8       ; f0*2")
    b(f"  v_lshlrev_b32 v11, 3, v9")
    b(f"  v_add_u32 v11, s{S_TMP+1}, v11")
    BV = 192
    for fb in range(4):
        for i in range(4):
            b(f"  buffer_load_dwordx2 {vr(BV+2*(4*fb+i),2)}, v11, s[{SRD_X}:{SRD_X+3}], 0 offen offset:{64*fb+16*i}")
    b(f"  v_lshl_add_u32 v20, v9, 3, v18")
    b(f"  v_lshlrev_b32 v20, 8, v20")
    b(f"  v_lshl_add_u32 v20, v18, 6, v20")
    b(f"  v_lshl_add_u32 v20, v19, 5, v20")
    b(f"  v_lshl_add_u32 v{V_T}, v22, 3, v20")
    for fb in range(1, 4):
        b(f"  v_xor_b32 v{V_T+fb}, {64*fb}, v{V_T}")
    b(f"  s_mul_i32 s{S_TMP+2}, s{S_TMP}, 229376")
    b(f"  s_lshl_b32 s{S_TMP+1}, s60, 13")
    b(f"  s_add_u32 s{S_TMP+1}, s{S_TMP+1}, s{S_TMP+2}")
    b(f"  v_add_u32 v28, s{S_TMP+1}, v10")
    b(f"  s_waitcnt vmcnt(0)")
    for fb in range(4):
        for i in range(4):
            bv = BV + 2 * (4 * fb + i); a = V_ACC + fb * 16 + 4 * i
            b(f"  v_lshlrev_b32 v{a}, 16, v{bv}")
            b(f"  v_and_b32 v{a+1}, 0xffff0000, v{bv}")
            b(f"  v_lshlrev_b32 v{a+2}, 16, v{bv+1}")
            b(f"  v_and_b32 v{a+3}, 0xffff0000, v{bv+1}")
    def w3():
        wait(b, 2, 16, "x3c")
        stamp(b, "x3 released")
        stamp(b, "c:g1 start")
    SKEW = "skew" in OPT
    if SKEW:
        K1 = -2.0 * 0.7978845608028654 * 1.4426950408889634
        K2 = K1 * 0.044715
        CT, GT, GO = 192, 196, 212
        for i, kv in enumerate((K1, K1, K2, K2)): b(f"  v_mov_b32 v{CT+i}, {hex(f2u(kv))}")
        posts = {fb: gelu_lines(fb, V_ACC + 16 * fb, CT, GT, GO, 28) for fb in range(3)}
        gemm_core(b, c, "g1", w3, None, posts)
    else:
        gemm_core(b, c, "g1", w3)
    stamp(b, "c:g1 end")
    stamp(b, "g1 main done")
    E8 = "epi8" in OPT
    XO = 4 * STAGE
    if E8:
        b(f"  s_lshl_b32 s{S_TMP+1}, s{S_W}, 13")
        b(f"  s_add_u32 s{S_TMP+1}, s{S_TMP+1}, {XO}")
        b(f"  v_add_u32 v12, s{S_TMP+1}, v10")
        b(f"  s_nop 9")
        for k in range(8): b(f"  ds_write_b128 v12, {vr(V_ACC+32+4*k,4)} offset:{1024*k}")
        b(f"  s_waitcnt lgkmcnt(0)")
        b(f"  s_barrier")
    if SKEW:
        b(f"  s_nop 9")
        for line in gelu_lines(3, V_ACC + 48, CT, GT, GO, 28): b(line)
    else:
        g1_gelu(b, c, range(2) if E8 else range(4), lambda fb: V_ACC + fb * 16, 28)
    stamp(b, "g1 stores issued")
    b(f"  s_waitcnt vmcnt(0)")
    b(f"  s_branch g1_join")
    b.label("g1_loader")
    b(f"  s_sub_u32 s50, s{S_W}, 4")
    b(f"  s_lshl_b32 s49, s50, 10")
    b(f"  s_add_u32 s{S_N+1}, s49, {R*STAGE}")
    b(f"  s_barrier                      ; matches the barrier inside wait(x3)")
    loader_loop(b, c.NS, "g1", W1F())
    stamp(b, "g1 main done")
    g2_prologue_loader(b)
    if "epi8" in OPT:
        b(f"  s_sub_u32 s{S_TMP}, s{S_W}, 4")
        b(f"  s_lshl_b32 s{S_TMP+1}, s{S_TMP}, 13")
        b(f"  s_add_u32 s{S_TMP+1}, s{S_TMP+1}, {4*STAGE}")
        b(f"  v_lshlrev_b32 v10, 4, v7")
        b(f"  v_add_u32 v12, s{S_TMP+1}, v10")
        b(f"  s_lshl_b32 s{S_TMP+1}, s61, 2")
        b(f"  s_add_u32 s{S_TMP}, s{S_TMP}, s{S_TMP+1}      ; dblk")
        b(f"  s_mul_i32 s{S_TMP+2}, s{S_TMP}, 229376")
        b(f"  s_lshl_b32 s{S_TMP+1}, s60, 13")
        b(f"  s_add_u32 s{S_TMP+1}, s{S_TMP+1}, s{S_TMP+2}")
        b(f"  v_add_u32 v28, s{S_TMP+1}, v10")
        b(f"  s_barrier")
        for k in range(8): b(f"  ds_read_b128 {vr(V_ACC+4*k,4)}, v12 offset:{1024*k}")
        b(f"  s_waitcnt lgkmcnt(0)")
        g1_gelu(b, c, range(2, 4), lambda fb: V_ACC + (fb - 2) * 16, 28)
        b(f"  s_waitcnt vmcnt(0)")
    stamp(b, "g1 stores issued")
    b.label("g1_join")
    if SK():
        b(f"  s_cmp_ge_u32 s60, 14")
        b(f"  s_cselect_b32 s18, 1, 0")
        b(f"  s_lshl_b32 s10, s61, 1")
        b(f"  s_add_u32 s18, s18, s10")
        arrive(b, 3, 18, label="x4", drained=True)
    else:
        arrive(b, 3, 61, label="x4", drained=True)
    b(f"  s_branch g2_start")
    b.label("g1_inactive")
    if "nopf" not in OPT:
        b(f"  s_sub_u32 s50, s2, 224")
        b(f"  s_lshl_b32 s50, s50, 3")
        b(f"  s_add_u32 s50, s50, s{S_W}")
        b(f"  v_lshlrev_b32 v29, 4, v7")
        if "noidle" not in OPT: idle_w2(b)
    if "es" in OPT: wait(b, 2, 16, "x3i")
    b(f"  s_cmp_lt_u32 s{S_W}, 4")
    b(f"  s_cbranch_scc1 g2_start_inactive")
    g2_prologue_loader(b)
    b.label("g2_start_inactive")
    return c

def g2_prologue_loader(b):
    g2_ids(b)
    srd(b, SRD_T, P_W2, W1B)
    g2_loader_addr(b)
    loader_init(b, (64 if SK() else 128) * 4096)
    for n in range(2): loader_issue(b, V_LO, W2F())

def g2_sk(b):
    c = g1_cfg(); c.name = "g2"; c.NS = 28
    b.label("g2_start")
    g2_ids(b)
    srd(b, SRD_P, P_WS, U_BYTES, WS_U)
    srd(b, SRD_O, P_OUT, 4 << 20)
    srd(b, SRD_X, P_B2, 2048 * 2)
    srd(b, SRD_Y, P_WS, 4 << 20, WS_H)
    b(f"  s_cmp_ge_u32 s{S_W}, 4")
    b(f"  s_cbranch_scc1 g2_loader")
    lane_geom(b)
    b(f"  s_lshl_b32 s{S_TMP}, s{S_TILE_A}, 2")
    b(f"  s_add_u32 s{S_TMP}, s{S_TMP}, s{S_W}        ; dblk")
    b(f"  s_mul_i32 s{S_TMP+2}, s{S_TMP}, 229376")
    b(f"  s_mul_i32 s{S_TMP+3}, s19, {112*1024}       ; k half")
    b(f"  s_add_u32 s{S_TMP+2}, s{S_TMP+2}, s{S_TMP+3}")
    b(f"  v_lshlrev_b32 v10, 4, v7")
    b(f"  v_add_u32 v{V_P}, s{S_TMP+2}, v10")
    b(f"  s_lshl_b32 s{S_TMP+1}, s{S_TILE_B}, 7")
    b(f"  s_lshl_b32 s{S_TMP+3}, s19, 6")
    b(f"  s_add_u32 s{S_TMP+1}, s{S_TMP+1}, s{S_TMP+3}")
    b(f"  v_add_u32 v11, s{S_TMP+1}, v8              ; s0 + s'")
    b(f"  v_lshlrev_b32 v16, 1, v11")
    for sb in range(2):
        b(f"  buffer_load_ushort v{12+sb}, v16, s[{SRD_X}:{SRD_X+3}], 0 offen offset:{64*sb}")
    b(f"  v_lshlrev_b32 v17, 11, v11")
    b(f"  v_lshl_add_u32 v17, v9, 5, v17")
    b(f"  s_lshl_b32 s{S_TMP+2}, s{S_TMP}, 6")
    b(f"  v_add_u32 v28, s{S_TMP+2}, v17")
    HV = 192
    b(f"  v_lshl_add_u32 v20, v9, 3, v18")
    b(f"  v_lshlrev_b32 v20, 8, v20")
    b(f"  v_lshl_add_u32 v20, v18, 6, v20")
    b(f"  v_lshl_add_u32 v20, v19, 5, v20")
    b(f"  v_lshl_add_u32 v{V_T}, v22, 3, v20")
    b(f"  s_cmp_eq_u32 s19, 0")
    b(f"  s_cselect_b32 s{S_TMP+3}, 128, 0")
    b(f"  v_xor_b32 v{V_T}, s{S_TMP+3}, v{V_T}")
    for fb in range(1, 4):
        b(f"  v_xor_b32 v{V_T+fb}, {64*fb}, v{V_T}")
    b(f"  s_lshl_b32 s{S_TMP+1}, s{S_W}, 12")
    b(f"  s_lshl_b32 s{S_TMP+2}, s2, 14")
    b(f"  s_add_u32 s{S_TMP+2}, s{S_TMP+2}, s{S_TMP+1}")
    b(f"  v_add_u32 v29, s{S_TMP+2}, v10")
    b(f"  s_xor_b32 s{S_TMP+2}, s2, 1")
    b(f"  s_lshl_b32 s{S_TMP+2}, s{S_TMP+2}, 14")
    b(f"  s_add_u32 s{S_TMP+2}, s{S_TMP+2}, s{S_TMP+1}")
    b(f"  v_add_u32 v30, s{S_TMP+2}, v10")
    for i in range(64): b(f"  v_mov_b32 v{V_ACC+i}, 0")
    def w4():
        b(f"  s_lshl_b32 s18, s{S_TILE_A}, 1")
        b(f"  s_add_u32 s18, s18, s19")
        wait(b, 3, 14, "x4c", single_sreg=18)
        stamp(b, "x4 released")
        stamp(b, "c:g2 start")
    def hloads():
        for sb in range(2):
            b(f"  s_mov_b32 s{S_TMP+1}, {sb*65536}")
            b(f"  buffer_load_dwordx4 {vr(HV+8*sb,4)}, v28, s[{SRD_Y}:{SRD_Y+3}], s{S_TMP+1} offen{LF}")
            b(f"  buffer_load_dwordx4 {vr(HV+8*sb+4,4)}, v28, s[{SRD_Y}:{SRD_Y+3}], s{S_TMP+1} offen offset:16{LF}")
    srd_later = True
    def send_lines(k):
        T0 = 208 + 8 * k; a = V_ACC + 16 * k
        L = [f"  v_cvt_pk_bf16_f32 v{T0+i}, v{a+2*i}, v{a+2*i+1}" for i in range(8)]
        L += [f"  v_min_u32 v{T0+i}, 0xfffffffe, v{T0+i}" for i in range(8)]
        L += [f"  buffer_store_dwordx4 {vr(T0+4*p,4)}, v30, s[{SRD_X}:{SRD_X+3}], 0 offen offset:{(2*k+p)*1024}{SF}" for p in range(2)]
        return L
    def hloads2():
        hloads()
    if "skew" in OPT:
        def w4x():
            w4()
        def hl():
            hloads()
        b(f"  s_waitcnt vmcnt(0)")
        srd(b, SRD_X, P_WS, 4 << 20, WS_XCH)
        gemm_core(b, c, "g2", w4, hloads, {0: send_lines(0), 1: send_lines(1)})
    else:
        gemm_core(b, c, "g2", w4, hloads)
    stamp(b, "c:g2 end")
    stamp(b, "g2 main done")
    T = c.VT
    if "skew" not in OPT:
        srd(b, SRD_X, P_WS, 4 << 20, WS_XCH)
        b(f"  s_nop 9")
        for k in range(2):
            for line in send_lines(k): b(line)
    KEEP = V_ACC + 32
    RX = c.VPR
    b(f"  s_mov_b32 s11, 200000")
    b.label("g2x_poll")
    for k in range(4):
        b(f"  buffer_load_dwordx4 {vr(RX+4*k,4)}, v29, s[{SRD_X}:{SRD_X+3}], 0 offen offset:{k*1024} sc1")
    b(f"  s_waitcnt vmcnt(0)")
    sentinel_check(b, RX, "g2x", n=16)
    stamp(b, "g2 x landed")
    b(f"  s_mov_b32 s{S_TMP}, 0xffff0000")
    for blk in range(2):
        for i in range(8):
            a = KEEP + blk * 16 + 2 * i; r = RX + 8 * blk + i
            b(f"  v_lshlrev_b32 v16, 16, v{r}")
            b(f"  v_and_b32 v17, s{S_TMP}, v{r}")
            b(f"  v_add_f32 v{a}, v{a}, v16")
            b(f"  v_add_f32 v{a+1}, v{a+1}, v17")
    for sb in range(2):
        b(f"  v_lshlrev_b32 v{12+sb}, 16, v{12+sb}")
    OL = "outlds" in OPT
    if OL:
        OS = 4 * STAGE
        b(f"  v_mul_u32_u24 v14, 272, v8           ; s' * 272")
        b(f"  v_lshl_add_u32 v14, v9, 5, v14       ; + h*32")
        b(f"  s_lshl_b32 s{S_TMP+1}, s{S_W}, 6")
        b(f"  s_add_u32 s{S_TMP+1}, s{S_TMP+1}, {OS}")
        b(f"  v_add_u32 v14, s{S_TMP+1}, v14")
    for sb in range(2):
        for half in range(2):
            o = T + 4 * ((sb * 2 + half) % 2) if not OL else T + 16 + 4 * (sb * 2 + half)
            for dd in range(4):
                a = KEEP + sb * 16 + half * 8 + 2 * dd
                hv = HV + 8 * sb + 4 * half + dd
                t0 = T + 8 + 2 * dd if OL else T + 8 + 4 * dd
                b(f"  v_lshlrev_b32 v{t0}, 16, v{hv}")
                b(f"  v_and_b32 v{t0+1}, s{S_TMP}, v{hv}")
                b(f"  v_pk_add_f32 {vr(t0,2)}, {vr(t0,2)}, {vr(a,2)}")
                b(f"  v_add_f32 v{t0}, v{t0}, v{12+sb}")
                b(f"  v_add_f32 v{t0+1}, v{t0+1}, v{12+sb}")
                b(f"  v_cvt_pk_bf16_f32 v{o+dd}, v{t0}, v{t0+1}")
            if OL:
                b(f"  ds_write_b128 v14, {vr(o,4)} offset:{sb*32*272 + 16*half}")
            else:
                b(f"  s_mov_b32 s{S_TMP+1}, {sb*65536}")
                if "noout" not in OPT: b(f"  buffer_store_dwordx4 {vr(o,4)}, v28, s[{SRD_O}:{SRD_O+3}], s{S_TMP+1} offen offset:{16*half}{OF()}")
    if OL:
        b(f"  v_lshrrev_b32 v15, 4, v7")
        b(f"  s_lshl_b32 s{S_TMP+1}, s{S_W}, 4")
        b(f"  v_add_u32 v15, s{S_TMP+1}, v15          ; row (i = 0)")
        b(f"  v_and_b32 v16, 15, v7")
        b(f"  v_mul_u32_u24 v14, 272, v15")
        b(f"  v_lshl_add_u32 v14, v16, 4, v14")
        b(f"  v_add_u32 v14, {OS}, v14")
        b(f"  s_lshl_b32 s{S_TMP+1}, s{S_TILE_B}, 7")
        b(f"  s_lshl_b32 s{S_TMP+2}, s19, 6")
        b(f"  s_add_u32 s{S_TMP+1}, s{S_TMP+1}, s{S_TMP+2}")
        b(f"  v_add_u32 v15, s{S_TMP+1}, v15")
        b(f"  v_lshlrev_b32 v15, 11, v15")
        b(f"  v_lshl_add_u32 v15, v16, 4, v15")
        b(f"  s_lshl_b32 s{S_TMP+1}, s{S_TILE_A}, 8")
        b(f"  v_add_u32 v15, s{S_TMP+1}, v15")
        b(f"  s_waitcnt lgkmcnt(0)")
        b(f"  s_barrier")
        for i in range(4): b(f"  ds_read_b128 {vr(T+4*i,4)}, v14 offset:{i*4*272}")
        for i in range(4):
            b(f"  s_waitcnt lgkmcnt({3-i})")
            b(f"  s_mov_b32 s{S_TMP+1}, {i*4*2048}")
            b(f"  buffer_store_dwordx4 {vr(T+4*i,4)}, v15, s[{SRD_O}:{SRD_O+3}], s{S_TMP+1} offen{OF()}")
    stamp(b, "g2 stores issued")
    b(f"  s_branch g2_done")
    b.label("g2_loader")
    b(f"  s_barrier                      ; matches the barrier inside wait(x4)")
    loader_loop(b, c.NS, "g2", W2F())
    b.label("g2_done")

def g2(b):
    if SK(): return g2_sk(b)
    c = g2_cfg()
    b.label("g2_start")
    g2_ids(b)
    srd(b, SRD_P, P_WS, U_BYTES, WS_U)
    srd(b, SRD_O, P_OUT, 4 << 20)
    srd(b, SRD_X, P_B2, 2048 * 2)
    srd(b, SRD_Y, P_WS, 4 << 20, WS_H)
    b(f"  s_cmp_ge_u32 s{S_W}, 4")
    b(f"  s_cbranch_scc1 g2_loader")
    lane_geom(b)
    b(f"  s_lshl_b32 s{S_TMP}, s{S_TILE_A}, 2")
    b(f"  s_add_u32 s{S_TMP}, s{S_TMP}, s{S_W}        ; dblk")
    b(f"  s_mul_i32 s{S_TMP+2}, s{S_TMP}, 229376")
    b(f"  v_lshlrev_b32 v10, 4, v7")
    b(f"  v_add_u32 v{V_P}, s{S_TMP+2}, v10")
    b(f"  s_lshl_b32 s{S_TMP+1}, s{S_TILE_B}, 6       ; s0")
    b(f"  v_add_u32 v11, s{S_TMP+1}, v8              ; s0 + s'")
    b(f"  v_lshlrev_b32 v16, 1, v11")
    for sb in range(2):
        b(f"  buffer_load_ushort v{12+sb}, v16, s[{SRD_X}:{SRD_X+3}], 0 offen offset:{64*sb}")
    b(f"  v_lshlrev_b32 v17, 11, v11")
    b(f"  v_lshl_add_u32 v17, v9, 5, v17")
    b(f"  s_lshl_b32 s{S_TMP+2}, s{S_TMP}, 6")
    b(f"  v_add_u32 v28, s{S_TMP+2}, v17")
    HV = 160
    b(f"  v_lshl_add_u32 v20, v9, 3, v18            ; row")
    b(f"  v_bfe_u32 v21, v18, 1, 1")
    b(f"  v_lshlrev_b32 v20, 7, v20")
    b(f"  v_lshl_add_u32 v20, v21, 6, v20")
    b(f"  v_lshl_add_u32 v20, v19, 5, v20")
    b(f"  v_lshl_add_u32 v{V_T}, v22, 3, v20")
    b(f"  v_xor_b32 v{V_T+1}, 64, v{V_T}")
    for i in range(32): b(f"  v_mov_b32 v{V_ACC+i}, 0")
    def w4():
        wait(b, 3, 28, "x4c", single_sreg=S_TILE_A)
        stamp(b, "x4 released")
        stamp(b, "c:g2 start")
    def hloads():
        for sb in range(2):
            b(f"  s_mov_b32 s{S_TMP+1}, {sb*65536}")
            b(f"  buffer_load_dwordx4 {vr(HV+8*sb,4)}, v28, s[{SRD_Y}:{SRD_Y+3}], s{S_TMP+1} offen{LF}")
            b(f"  buffer_load_dwordx4 {vr(HV+8*sb+4,4)}, v28, s[{SRD_Y}:{SRD_Y+3}], s{S_TMP+1} offen offset:16{LF}")
    gemm_core(b, c, "g2", w4, hloads)
    stamp(b, "c:g2 end")
    stamp(b, "g2 main done")
    T = c.VT
    b(f"  s_mov_b32 s{S_TMP}, 0xffff0000")
    for sb in range(2):
        b(f"  v_lshlrev_b32 v{12+sb}, 16, v{12+sb}")
    b(f"  s_nop 9")
    for sb in range(2):
        for half in range(2):
            o = T + 4 * ((sb * 2 + half) % 2)
            for dd in range(4):
                a = V_ACC + sb * 16 + half * 8 + 2 * dd
                hv = HV + 8 * sb + 4 * half + dd
                t0 = T + 8 + 4 * dd
                b(f"  v_cvt_pk_bf16_f32 v{t0}, v{a}, v{a+1}")
                b(f"  v_and_b32 v{t0+1}, s{S_TMP}, v{t0}")
                b(f"  v_lshlrev_b32 v{t0}, 16, v{t0}")
                b(f"  v_add_f32 v{t0}, v{t0}, v{12+sb}")
                b(f"  v_add_f32 v{t0+1}, v{t0+1}, v{12+sb}")
                b(f"  v_cvt_pk_bf16_f32 v{t0}, v{t0}, v{t0+1}")
                b(f"  v_and_b32 v{t0+1}, s{S_TMP}, v{t0}")
                b(f"  v_lshlrev_b32 v{t0}, 16, v{t0}")
                b(f"  v_lshlrev_b32 v{t0+2}, 16, v{hv}")
                b(f"  v_and_b32 v{t0+3}, s{S_TMP}, v{hv}")
                b(f"  v_add_f32 v{t0}, v{t0}, v{t0+2}")
                b(f"  v_add_f32 v{t0+1}, v{t0+1}, v{t0+3}")
                b(f"  v_cvt_pk_bf16_f32 v{o+dd}, v{t0}, v{t0+1}")
            b(f"  s_mov_b32 s{S_TMP+1}, {sb*65536}")
            b(f"  buffer_store_dwordx4 {vr(o,4)}, v28, s[{SRD_O}:{SRD_O+3}], s{S_TMP+1} offen offset:{16*half}")
    stamp(b, "g2 stores issued")
    b(f"  s_branch g2_done")
    b.label("g2_loader")
    b(f"  s_barrier                      ; matches the barrier inside wait(x4)")
    loader_loop(b, c.NS, "g2", W2F())
    b.label("g2_done")

def build():
    NAME = "sequential_preLN__spectral_gfnet__mixer_token_mlp__prompt"
    hdr = open(f"cdna_kernels/{NAME}.s.ref").read().split("; Override launch")[0]
    K = NAME + "_kernel"
    b = B()
    b(hdr.rstrip("\n"))
    b(f"; @launch grid=(256,1,1) block=(512,1,1) lds={LDS_TOTAL}")
    b('.amdgcn_target "amdgcn-amd-amdhsa--gfx950"\n.text')
    b(f".globl {K}\n.p2align 8\n.type {K},@function\n{K}:")
    b(f"  s_cmp_ge_u32 s2, 256\n  s_cbranch_scc1 k_exit")
    if "stamp" in OPT: b("  v_mov_b32 v231, 0")
    stamp(b, "entry")
    b(f"  s_load_dwordx4 s[{P_X}:{P_X+3}], s[0:1], 0        ; x, w_r")
    b(f"  s_load_dwordx2 s[{P_WI}:{P_WI+1}], s[0:1], 16")
    b(f"  s_load_dwordx2 s[{P_W1}:{P_W1+1}], s[0:1], 32")
    b(f"  s_load_dwordx4 s[{P_B1}:{P_B1+3}], s[0:1], 40     ; b1, w2")
    b(f"  s_load_dwordx4 s[{P_B2}:{P_B2+3}], s[0:1], 56     ; b2, out")
    b(f"  s_load_dwordx4 s[{P_DBG}:{P_DBG+3}], s[0:1], 72")
    b(f"  v_lshrrev_b32 v6, 6, v0")
    b(f"  v_and_b32 v7, 63, v0        ; lane")
    b(f"  v_readfirstlane_b32 s{S_W}, v6")
    b(f"  v_and_b32 v8, 15, v7          ; c")
    b(f"  v_lshrrev_b32 v9, 4, v7       ; g")
    b(f"  s_waitcnt lgkmcnt(0)")
    srd(b, SRD_CNT, P_WS, 65536, WS_CNT)
    p1(b)
    p2_setup(b)
    wait(b, 0, 16, "x1c")
    stamp(b, "x1 released")
    p2_main(b)
    p3_setup(b)
    if SENT2(): b("  s_barrier")
    else: wait(b, 1, 16, "x2c")
    stamp(b, "x2 released")
    p3_main(b)
    g1(b)
    g2(b)
    b(f"  s_waitcnt vmcnt(0)")
    stamp(b, "end")
    stamp_flush(b)
    b("k_exit:\n  s_endpgm")
    b(kd(K, 240, sgpr=102))
    return b.text()

if __name__ == "__main__":
    out = sys.argv[1]
    OPT.update(sys.argv[2:])
    if "lfplain" not in OPT: LF = " sc1"
    for o in sys.argv[2:]:
        if o.startswith("pfn="): PFN[:] = [int(c) for c in o[4:].split(",")]
    gemm.OPT.update(sys.argv[2:])
    t = build()
    open(out, "w").write(t)
    rep = check_text(t)
    print("\n".join(rep) if rep else "no hazards found", "| stamps:", nstamp[0])
```

```python
import sys
from asmlib import *
import gemm, fft
from gemm import (srd, f2u, WS_X1, WS_X2, WS_H, WS_LN2, WS_U, U_BYTES, S_W, R, STAGE, PR, DQ,
                  V_P, V_T, V_ACC, S_POFF, S_IT, S_DELTA, SRD_P, SRD_T, SRD_O, SRD_X, SRD_Y, S_TILE_A, S_TILE_B, S_TMP,
                  g1_cfg, g2_cfg, lane_geom)
from fft import sincos, wave_reduce, ln_finish, layernorm16, cmul_pk, gmat, MF32, MF16

OPT = set()
N7 = [0]
IDLE_ROUNDS = [7]
WPN = [0]
PFN = [0, 4, 0, 4]
WS_CNT = 30 << 20
WS_STAMP = 31 << 20
WS_WP = 32 << 20
WS_XCH = 24 << 20
W1B = 2048 * 3584 * 2
WB = 2048 * 1026

P_X, P_WR, P_WI, P_W1, P_B1, P_W2, P_B2, P_OUT, P_DBG, P_WS = 64, 66, 68, 70, 72, 74, 76, 78, 80, 82
SRD_CNT = 12
S_T = 46
SRD_A, SRD_B, SRD_C, SRD_D = 24, 28, 32, 36
SRD_PF = 56
S_STAMP = 84
SF = " sc1"
LF = ""

L1_M1, L1_M2, L1_TW, L1_EX = 0, 4096, 8192, 16384
L2_F = 32768; L2_X = L2_F + 2048; L2_W = L2_X + 16 * 1040
L3_M3 = 98304; L3_M4 = L3_M3 + 4096; L3_TW = L3_M3 + 8192; L3_EX = L3_M3 + 16384
L3_LN = L3_EX + 16384; L3_RS = 2624
LDS_TOTAL = L3_LN + 8 * L3_RS
assert LDS_TOTAL <= 163840

STAMPS = ["entry", "p1 x landed", "p1 stores issued", "p1 arrived", "x1 released", "p2 x landed", "p2 stores issued",
          "x2 released", "p3 x2 landed", "p3 stores issued", "x3 released", "g1 main done", "g1 stores issued", "x4 released",
          "g2 main done", "g2 stores issued", "end", "x1 drained", "x2 drained", "x3 drained", "x4 drained", "p1 tables done", "p1 ln done", "p1 fft done", "p3 ifft done", "p3 ln done", "c:g1 start", "c:g1 end", "c:g2 start", "c:g2 end", "g2 x landed", "p2 w landed"]
nstamp = [len(STAMPS)]
SENT = lambda: "bar" not in OPT
SENT2 = lambda: "bar" not in OPT or "sent2" in OPT
SK = lambda: "nosk" not in OPT
W1F = lambda: " nt" if "ntw1" in OPT else ""
W2F = lambda: " nt" if "ntw2" in OPT else ""
XF = lambda: " nt" if ("ntx" in OPT or "ntx1" in OPT) else ""
OF = lambda: " sc1" if "outsc1" in OPT else (" nt" if "outnt" in OPT else "")
WF = lambda: " nt" if ("ntx" in OPT or "ntw" in OPT) else ""
L_XS = 69632
def stamp(b, name):
    if "stamp" not in OPT: return
    i = STAMPS.index(name)
    op = "s_memtime" if name.startswith("c:") else "s_memrealtime"
    b(f"  {op} s[{S_STAMP}:{S_STAMP+1}]   ; stamp {i}: {name}")
    b(f"  s_waitcnt lgkmcnt(0)")
    b(f"  v_writelane_b32 v231, s{S_STAMP}, {i}")

def stamp_flush(b):
    if "stamp" not in OPT: return
    if "dbgmax" in OPT:
        SEL = [1, 23, 2, 17, 3, 4, 5, 6, 18, 7, 8, 9, 19, 10]
        srd(b, 24, P_DBG, 256)
        b(f"  v_readlane_b32 s46, v231, 0")
        b(f"  s_sub_u32 s47, 0, s46")
        b(f"  v_mov_b32 v3, 0")
        b(f"  v_writelane_b32 v3, s47, 0")
        b(f"  v_writelane_b32 v3, s46, 15")
        for i, st in enumerate(SEL):
            b(f"  v_readlane_b32 s46, v231, {st}")
            b(f"  s_nop 3")
            b(f"  v_writelane_b32 v3, s46, {i+1}")
        b(f"  v_lshlrev_b32 v2, 2, v7")
        b(f"  s_mov_b64 s[48:49], exec")
        b(f"  s_mov_b64 exec, 0xffff")
        b(f"  buffer_atomic_umax v3, v2, s[24:27], 0 offen sc1")
        b(f"  s_mov_b64 exec, s[48:49]")
        return
    if "dbgtime" in OPT:
        b(f"  s_cmp_lg_u32 s2, 100")
        b(f"  s_cbranch_scc1 dbg_skip")
        b(f"  s_cmp_lg_u32 s{S_W}, 0")
        b(f"  s_cbranch_scc1 dbg_skip")
        srd(b, 24, P_DBG, 256)
        b(f"  v_readlane_b32 s46, v231, 0")
        b(f"  s_nop 1")
        b(f"  v_subrev_u32 v3, s46, v231")
        b(f"  v_lshlrev_b32 v2, 2, v7")
        b(f"  v_subrev_u32 v2, 4, v2")
        b(f"  s_mov_b64 s[48:49], exec")
        b(f"  s_mov_b64 exec, 0x1fffe")
        b(f"  buffer_store_dword v3, v2, s[24:27], 0 offen")
        b(f"  s_mov_b64 exec, s[48:49]")
        b.label("dbg_skip")
        return
    srd(b, 24, P_WS, 1 << 20, WS_STAMP)
    b(f"  s_lshl_b32 s46, s2, 3")
    b(f"  s_add_u32 s46, s46, s{S_W}")
    b(f"  s_lshl_b32 s46, s46, 7            ; (wg*8+wave)*128")
    b(f"  v_lshlrev_b32 v2, 2, v7")
    b(f"  s_mov_b64 s[48:49], exec")
    b(f"  s_mov_b64 exec, 0xffffffff")
    b(f"  buffer_store_dword v231, v2, s[24:27], s46 offen")
    b(f"  s_mov_b64 exec, s[48:49]")

def arrive(b, bar, shard_sreg, first=False, label="", drained=False):
    if not drained: b(f"  s_waitcnt vmcnt(0)")
    stamp(b, f"x{bar+1} drained")
    b(f"  s_barrier")
    b(f"  s_cmp_lg_u32 s{S_W}, 0")
    b(f"  s_cbranch_scc1 {label}_arr_skip")
    if first:
        b(f"  s_mov_b32 s11, 100000")
        b.label(f"{label}_rdy")
        b(f"  v_cmp_ne_u32 vcc, 0, v27")
        b(f"  s_nop 1")
        b(f"  s_cmp_eq_u64 vcc, exec")
        b(f"  s_cbranch_scc1 {label}_rdy_ok")
        b(f"  buffer_load_dword v27, v26, s[{SRD_PF}:{SRD_PF+3}], 0 offen sc1")
        b(f"  s_waitcnt vmcnt(0)")
        b(f"  s_sub_u32 s11, s11, 1")
        b(f"  s_cmp_lg_u32 s11, 0")
        b(f"  s_cbranch_scc1 {label}_rdy")
        b.label(f"{label}_rdy_ok")
    b(f"  s_lshl_b32 s10, s{shard_sreg}, 8")
    b(f"  s_add_u32 s10, s10, {bar*4096}")
    b(f"  v_mov_b32 v228, s10")
    b(f"  v_mov_b32 v229, 1")
    b(f"  s_mov_b64 s[16:17], exec")
    b(f"  s_mov_b64 exec, 1")
    b(f"  buffer_atomic_add v229, v228, s[{SRD_CNT}:{SRD_CNT+3}], 0 offen sc1")
    b(f"  s_mov_b64 exec, s[16:17]")
    b.label(f"{label}_arr_skip")

def wait(b, bar, target, label, single_sreg=None):
    b(f"  s_cmp_lg_u32 s{S_W}, 0")
    b(f"  s_cbranch_scc1 {label}_w_skip")
    if single_sreg is None:
        b(f"  v_and_b32 v228, 15, v7")
        b(f"  v_lshlrev_b32 v228, 8, v228")
        b(f"  v_add_u32 v228, {bar*4096}, v228")
    else:
        b(f"  s_lshl_b32 s10, s{single_sreg}, 8")
        b(f"  s_add_u32 s10, s10, {bar*4096}")
        b(f"  v_mov_b32 v228, s10")
    b(f"  s_mov_b32 s11, 200000")
    if "pp" in OPT:
        b(f"  buffer_load_dword v229, v228, s[{SRD_CNT}:{SRD_CNT+3}], 0 offen sc1")
        b(f"  s_nop 15")
        b(f"  s_nop 15")
        b(f"  buffer_load_dword v226, v228, s[{SRD_CNT}:{SRD_CNT+3}], 0 offen sc1")
        b.label(f"{label}_poll")
        for r in (229, 226):
            b(f"  s_waitcnt vmcnt(1)")
            b(f"  v_cmp_le_u32 vcc, {target}, v{r}")
            b(f"  s_nop 1")
            b(f"  s_cmp_eq_u64 vcc, exec")
            b(f"  s_cbranch_scc1 {label}_w_skip")
            b(f"  buffer_load_dword v{r}, v228, s[{SRD_CNT}:{SRD_CNT+3}], 0 offen sc1")
        b(f"  s_sub_u32 s11, s11, 1")
        b(f"  s_cmp_lg_u32 s11, 0")
        b(f"  s_cbranch_scc1 {label}_poll")
    else:
        b.label(f"{label}_poll")
        b(f"  buffer_load_dword v229, v228, s[{SRD_CNT}:{SRD_CNT+3}], 0 offen sc1")
        b(f"  s_waitcnt vmcnt(0)")
        b(f"  v_cmp_le_u32 vcc, {target}, v229")
        b(f"  s_nop 1")
        b(f"  s_cmp_eq_u64 vcc, exec")
        b(f"  s_cbranch_scc1 {label}_w_skip")
        b(f"  s_sub_u32 s11, s11, 1")
        b(f"  s_cmp_lg_u32 s11, 0")
        b(f"  s_cbranch_scc1 {label}_poll")
    b.label(f"{label}_w_skip")
    b(f"  s_barrier")

def prefetch(b, ptr_pair, nbytes, start, length, who_scale, who_sreg, vaddr, vdst, stmp, paced=False):
    chunk = -(-length // who_scale)
    n_per_wave = -(-chunk // (512 * 128))
    stride = -(-chunk // (512 * n_per_wave))
    stride = (stride + 3) // 4 * 4
    per_instr = 64 * stride
    srd(b, SRD_PF, ptr_pair, nbytes)
    b(f"  s_mul_i32 s{stmp}, s{who_sreg}, {chunk}")
    b(f"  s_mul_i32 s{stmp+1}, s{S_W}, {n_per_wave*per_instr}")
    b(f"  s_add_u32 s{stmp}, s{stmp}, s{stmp+1}")
    if start: b(f"  s_add_u32 s{stmp}, s{stmp}, {start}")
    b(f"  v_mul_u32_u24 v{vaddr}, {stride}, v7")
    for i in range(n_per_wave):
        b(f"  buffer_load_dword v{vdst}, v{vaddr}, s[{SRD_PF}:{SRD_PF+3}], s{stmp} offen")
        if i + 1 < n_per_wave: b(f"  s_add_u32 s{stmp}, s{stmp}, {per_instr}")
        if paced: b(f"  s_waitcnt vmcnt(0)")
    return n_per_wave

V_DUMMY = 232
def pf_wide(b, ptr_pair, nbytes, s_base, n, wave_lo, wave_hi, label):
    b(f"  s_cmp_lt_u32 s{S_W}, {wave_lo}")
    b(f"  s_cbranch_scc1 {label}")
    if wave_hi < 8:
        b(f"  s_cmp_ge_u32 s{S_W}, {wave_hi}")
        b(f"  s_cbranch_scc1 {label}")
    srd(b, SRD_PF, ptr_pair, nbytes)
    b(f"  s_sub_u32 s{S_T+9}, s{S_W}, {wave_lo}")
    b(f"  s_mul_i32 s{S_T+9}, s{S_T+9}, {n*1024}")
    b(f"  s_add_u32 s{S_T+9}, s{S_T+9}, s{s_base}")
    b(f"  v_lshlrev_b32 v29, 4, v7")
    for i in range(n):
        if i and i % 4 == 0: b(f"  s_add_u32 s{S_T+9}, s{S_T+9}, 4096")
        b(f"  buffer_load_dwordx4 {vr(V_DUMMY,4)}, v29, s[{SRD_PF}:{SRD_PF+3}], s{S_T+9} offen offset:{(i%4)*1024}")
    b.label(label)

def w1_share_base(b, sreg, part):
    b(f"  s_mul_i32 s{sreg}, s2, {W1B // 256}")
    if part: b(f"  s_add_u32 s{sreg}, s{sreg}, {part}")

def w1_first_half_base(b, sreg, part):
    b(f"  s_and_b32 s{sreg}, s2, 7")
    b(f"  s_mul_i32 s{sreg}, s{sreg}, {256*7168}")
    b(f"  s_lshr_b32 s{S_T+9}, s2, 3")
    b(f"  s_mul_i32 s{S_T+9}, s{S_T+9}, {4*7168}")
    b(f"  s_add_u32 s{sreg}, s{sreg}, s{S_T+9}")
    if part: b(f"  s_add_u32 s{sreg}, s{sreg}, {part}")

def p1_tables(b):
    M1, M2, TW = L1_M1, L1_M2, L1_TW
    b(f"  v_and_b32 v10, 255, v0            ; e")
    b(f"  v_lshrrev_b32 v11, 8, v0          ; u")
    b(f"  v_bfe_u32 v12, v10, 2, 4          ; lane&15")
    b(f"  v_lshl_add_u32 v12, v11, 4, v12   ; k1")
    b(f"  v_lshrrev_b32 v13, 6, v10         ; g")
    b(f"  v_and_b32 v14, 3, v10")
    b(f"  v_lshlrev_b32 v13, 3, v13")
    b(f"  v_lshl_add_u32 v13, v14, 1, v13   ; a0 = 8g + 2i")
    b(f"  v_mul_u32_u24 v15, v13, v12       ; a0*k1")
    b(f"  v_add_u32 v16, v15, v12           ; (a0+1)*k1")
    sincos(b, 17, 18, 15, 5, 21)
    sincos(b, 19, 20, 16, 5, 21)
    b(f"  v_lshlrev_b32 v22, 2, v10")
    b(f"  v_lshl_add_u32 v22, v11, 11, v22  ; u*2048 + e*4")
    b(f"  v_cvt_pk_bf16_f32 v23, v17, v19")
    b(f"  v_cvt_pk_bf16_f32 v24, -v18, -v20")
    b(f"  ds_write_b32 v22, v23 offset:{M1}")
    b(f"  ds_write_b32 v22, v24 offset:{M1+1024}")
    sincos(b, 17, 18, 15, 10, 21)
    sincos(b, 19, 20, 16, 10, 21)
    b(f"  ds_write_b32 v22, v17 offset:{TW}")
    b(f"  ds_write_b32 v22, v18 offset:{TW+1024}")
    b(f"  ds_write_b32 v22, v19 offset:{TW+4096}")
    b(f"  ds_write_b32 v22, v20 offset:{TW+4096+1024}")
    b(f"  v_bfe_u32 v12, v10, 2, 4          ; k2")
    b(f"  v_mul_u32_u24 v15, v13, v12")
    b(f"  v_add_u32 v16, v15, v12")
    sincos(b, 17, 18, 15, 5, 21)
    sincos(b, 19, 20, 16, 5, 21)
    b(f"  v_lshlrev_b32 v22, 2, v10")
    b(f"  v_cvt_pk_bf16_f32 v23, v17, v19")
    b(f"  v_cvt_pk_bf16_f32 v24, v18, v20")
    b(f"  v_cvt_pk_bf16_f32 v25, -v18, -v20")
    b(f"  ds_write_b32 v22, v23 offset:{M2}")
    b(f"  ds_write_b32 v22, v24 offset:{M2+1024}")
    b(f"  ds_write_b32 v22, v25 offset:{M2+2048}")

def ln_fast(b, X, T, S0, alt):
    b(f"  v_readlane_b32 s{S0}, v{X}, 0              ; pivot")
    b(f"  s_nop 1")
    for i in range(0, 16, 2):
        b(f"  v_pk_add_f32 {vr(X+i,2)}, {vr(X+i,2)}, s[{S0}:{S0+1}] op_sel_hi:[1,0] neg_lo:[0,1] neg_hi:[0,1]")
    b(f"  v_pk_add_f32 {vr(T,2)}, {vr(X,2)}, {vr(X+2,2)}")
    b(f"  v_pk_add_f32 {vr(T+2,2)}, {vr(X+8,2)}, {vr(X+10,2)}")
    b(f"  v_pk_mul_f32 {vr(T+4,2)}, {vr(X,2)}, {vr(X,2)}")
    b(f"  v_pk_add_f32 {vr(T,2)}, {vr(T,2)}, {vr(X+4,2)}")
    b(f"  v_pk_add_f32 {vr(T+2,2)}, {vr(T+2,2)}, {vr(X+12,2)}")
    b(f"  v_pk_fma_f32 {vr(T+4,2)}, {vr(X+2,2)}, {vr(X+2,2)}, {vr(T+4,2)}")
    b(f"  v_pk_add_f32 {vr(T,2)}, {vr(T,2)}, {vr(X+6,2)}")
    b(f"  v_pk_add_f32 {vr(T+2,2)}, {vr(T+2,2)}, {vr(X+14,2)}")
    for i in range(4, 16, 2):
        b(f"  v_pk_fma_f32 {vr(T+4,2)}, {vr(X+i,2)}, {vr(X+i,2)}, {vr(T+4,2)}")
    b(f"  v_add_f32 v{T}, v{T}, v{T+1}")
    b(f"  v_add_f32 v{T+2}, v{T+2}, v{T+3}")
    if not alt: b(f"  v_add_f32 v{T}, v{T}, v{T+2}")
    b(f"  v_add_f32 v{T+4}, v{T+4}, v{T+5}           ; squares")
    if alt:
        wave_reduce(b, [T, T+2, T+4])
        b(f"  v_sub_f32 v{T+1}, v{T}, v{T+2}             ; E - O")
        b(f"  v_add_f32 v{T}, v{T}, v{T+2}")
        b(f"  s_nop 0")
        b(f"  v_readlane_b32 s{S0+2}, v{T}, 63")
        b(f"  v_readlane_b32 s{S0+3}, v{T+4}, 63")
        b(f"  v_readlane_b32 s{S0+4}, v{T+1}, 63")
    else:
        wave_reduce(b, [T, T+4])
        b(f"  s_nop 0")
        b(f"  v_readlane_b32 s{S0+2}, v{T}, 63")
        b(f"  v_readlane_b32 s{S0+3}, v{T+4}, 63")
    b(f"  s_nop 0")
    b(f"  v_mov_b32 v{T}, {hex(f2u(1.0/1024))}")
    b(f"  v_mul_f32 v{T+1}, s{S0+2}, v{T}            ; mean of the shifted values")
    b(f"  v_mul_f32 v{T+2}, s{S0+3}, v{T}            ; mean of their squares")
    b(f"  v_fma_f32 v{T+2}, -v{T+1}, v{T+1}, v{T+2}  ; variance")
    b(f"  v_max_f32 v{T+2}, 0, v{T+2}")
    b(f"  v_add_f32 v{T+2}, {hex(f2u(1e-5))}, v{T+2}")
    b(f"  v_rsq_f32 v{T+4}, v{T+2}")
    b(f"  s_nop 0")
    b(f"  v_mul_f32 v{T+8}, -v{T+1}, v{T+4}          ; -mean*rstd")
    if alt: b(f"  v_mul_f32 v{T+6}, s{S0+4}, v{T+4}")
    for i in range(0, 16, 2):
        b(f"  v_pk_fma_f32 {vr(X+i,2)}, {vr(X+i,2)}, {vr(T+4,2)}, {vr(T+8,2)} op_sel_hi:[1,0,0]")

def x1_store_addr(b):
    b(f"  v_lshlrev_b32 v5, 15, v9")
    b(f"  v_lshl_add_u32 v5, v8, 2, v5")
    b(f"  s_and_b32 s{S_T+6}, s2, 15")
    b(f"  s_lshl_b32 s{S_T+6}, s{S_T+6}, 4")
    b(f"  s_lshr_b32 s{S_T+7}, s2, 4")
    b(f"  s_add_u32 s{S_T+6}, s{S_T+6}, s{S_T+7}")
    b(f"  s_lshl_b32 s{S_T+6}, s{S_T+6}, 6       ; pos*64")
    b(f"  s_lshl_b32 s{S_T+7}, s{S_W}, 19        ; 4w*131072")
    b(f"  s_add_u32 s44, s{S_T+6}, s{S_T+7}")

def w_early(b):
    srd(b, SRD_C, P_WR, WB)
    srd(b, SRD_D, P_WI, WB)
    b(f"  s_and_b32 s{S_T+2}, s2, 7              ; j1")
    b(f"  v_and_b32 v215, 1, v0                ; half")
    b(f"  v_bfe_u32 v11, v0, 5, 4              ; c")
    b(f"  v_bfe_u32 v12, v0, 1, 4              ; e")
    b(f"  v_lshl_add_u32 v13, v12, 4, v11      ; j2")
    b(f"  v_lshlrev_b32 v13, 3, v13")
    b(f"  v_add_u32 v13, s{S_T+2}, v13         ; j")
    b(f"  v_mul_u32_u24 v214, 1026, v13")
    b(f"  v_lshl_add_u32 v14, v215, 4, v214")
    b(f"  s_lshr_b32 s{S_T+3}, s2, 3           ; kb")
    b(f"  s_lshl_b32 s{S_T+3}, s{S_T+3}, 5")
    b(f"  buffer_load_dwordx4 {vr(WE,4)}, v14, s[{SRD_C}:{SRD_C+3}], s{S_T+3} offen{WF()}")
    b(f"  buffer_load_dwordx4 {vr(WE+4,4)}, v14, s[{SRD_D}:{SRD_D+3}], s{S_T+3} offen{WF()}")

def p1(b):
    srd(b, SRD_A, P_X, 4 << 20)
    srd(b, SRD_B, P_WS, 4 << 20, WS_X1)
    b(f"  s_lshl_b32 s{S_T}, s{S_W}, 8")
    b(f"  s_add_u32 s{S_T}, s{S_T}, s2          ; s")
    b(f"  s_lshl_b32 s{S_T+1}, s{S_T}, 11")
    b(f"  v_lshlrev_b32 v1, 9, v9")
    b(f"  v_lshl_add_u32 v1, v8, 2, v1")
    XD = 32
    b(f"  s_cmp_ge_u32 s2, 16")
    b(f"  s_cbranch_scc1 p1_noreset")
    b(f"  s_cmp_lg_u32 s{S_W}, 0")
    b(f"  s_cbranch_scc1 p1_noreset")
    b(f"  s_lshl_b32 s{S_T+2}, s2, 8")
    b(f"  v_lshlrev_b32 v2, 12, v7")
    b(f"  v_add_u32 v2, s{S_T+2}, v2")
    b(f"  v_mov_b32 v3, 0")
    b(f"  s_mov_b64 s[48:49], exec")
    b(f"  s_mov_b64 exec, 15")
    b(f"  buffer_store_dword v3, v2, s[{SRD_CNT}:{SRD_CNT+3}], 0 offen sc1")
    b(f"  s_mov_b64 exec, s[48:49]")
    b.label("p1_noreset")
    for i in range(8):
        b(f"  buffer_load_dword v{XD+i}, v1, s[{SRD_A}:{SRD_A+3}], s{S_T+1} offen offset:{64*i}{XF()}")
    NCLR = 0
    NWE = 0
    x1_store_addr(b)
    if SENT():
        b(f"  v_mov_b32 v60, -1")
        b(f"  v_mov_b32 v61, -1")
        b(f"  v_mov_b32 v62, -1")
        b(f"  v_mov_b32 v63, -1")
        b(f"  v_bfe_u32 v2, v7, 2, 3              ; j1")
        b(f"  v_lshrrev_b32 v3, 5, v7             ; i (0,1)")
        b(f"  v_lshlrev_b32 v2, 14, v2")
        b(f"  v_lshl_add_u32 v2, v3, 17, v2")
        b(f"  v_and_b32 v3, 3, v7")
        b(f"  v_lshl_add_u32 v2, v3, 4, v2")
        b(f"  buffer_store_dwordx4 v[60:63], v2, s[{SRD_B}:{SRD_B+3}], s44 offen{SF}")
        b(f"  s_add_u32 s{S_T+7}, s44, {2*131072}")
        b(f"  buffer_store_dwordx4 v[60:63], v2, s[{SRD_B}:{SRD_B+3}], s{S_T+7} offen{SF}")
        NCLR = 2
    if "tlbw" in OPT:
        b(f"  s_cmp_lg_u32 s{S_W}, 7")
        b(f"  s_cbranch_scc1 p1_notlb")
        sh = 20 if "tlb1m" in OPT else (19 if "tlb512k" in OPT else 21)
        b(f"  v_lshlrev_b32 v2, {sh}, v7")
        lst = [(P_WS, 36 << 20), (P_W1, W1B), (P_W2, W1B), (P_WR, WB), (P_WI, WB), (P_OUT, 4 << 20), (P_B1, 7168), (P_B2, 4096)]
        for ptr, size in lst:
            srd(b, SRD_PF, ptr, size)
            b(f"  s_mov_b64 s[16:17], exec")
            n = min(64, -(-size // (1 << sh)))
            b(f"  s_mov_b64 exec, {hex((1 << n) - 1)}")
            b(f"  buffer_load_dword v230, v2, s[{SRD_PF}:{SRD_PF+3}], 0 offen sc1")
            b(f"  s_mov_b64 exec, s[16:17]")
        if "codepf" in OPT:
            b(f"  s_cmp_ge_u32 s2, 16")
            b(f"  s_cbranch_scc1 p1_nocode")
            b(f"  s_getpc_b64 s[{S_T+8}:{S_T+9}]")
            b.label("p1_pc")
            b(f"  v_lshlrev_b32 v29, 7, v7")
            b(f"  s_mov_b32 s{S_T+7}, k_exit - p1_pc")
            for i in range(5):
                b(f"  v_min_u32 v28, s{S_T+7}, v29")
                b(f"  global_load_dword v230, v28, s[{S_T+8}:{S_T+9}]")
                b(f"  v_add_u32 v29, 8192, v29")
            b.label("p1_nocode")
        if "pf7" in OPT:
            n7 = 0
            if "wpf" in OPT:
                b(f"  s_mul_i32 s{S_T+8}, s2, 8208")
                b(f"  v_lshlrev_b32 v29, 4, v7")
                for ptr in (P_WR, P_WI):
                    srd(b, SRD_PF, ptr, WB)
                    b(f"  s_mov_b32 s{S_T+9}, s{S_T+8}")
                    for i in range(9):
                        if i and i % 4 == 0: b(f"  s_add_u32 s{S_T+9}, s{S_T+9}, 4096")
                        b(f"  buffer_load_dwordx4 {vr(V_DUMMY,4)}, v29, s[{SRD_PF}:{SRD_PF+3}], s{S_T+9} offen offset:{(i%4)*1024}")
                        n7 += 1
            if PFN[0]:
                w1_share_base(b, S_T + 9, 0)
                b(f"  v_lshlrev_b32 v29, 4, v7")
                srd(b, SRD_PF, P_W1, W1B)
                for i in range(4 * PFN[0]):
                    if i and i % 4 == 0: b(f"  s_add_u32 s{S_T+9}, s{S_T+9}, 4096")
                    b(f"  buffer_load_dwordx4 {vr(V_DUMMY,4)}, v29, s[{SRD_PF}:{SRD_PF+3}], s{S_T+9} offen offset:{(i%4)*1024}")
                    n7 += 1
            N7[0] = n7
        b.label("p1_notlb")
    if "wpack" in OPT:
        srd(b, SRD_C, P_WR, WB)
        srd(b, SRD_D, P_WI, WB)
        b(f"  s_lshl_b32 s{S_T+2}, s2, 3")
        b(f"  s_add_u32 s{S_T+2}, s{S_T+2}, s{S_W}")
        b(f"  s_mul_i32 s45, s{S_T+2}, 1026")
        b(f"  v_lshlrev_b32 v14, 4, v7")
        b(f"  buffer_load_dwordx4 {vr(WE,4)}, v14, s[{SRD_C}:{SRD_C+3}], s45 offen")
        b(f"  buffer_load_dwordx4 {vr(WE+4,4)}, v14, s[{SRD_D}:{SRD_D+3}], s45 offen")
        b(f"  v_mov_b32 v15, 1024")
        b(f"  buffer_load_ushort v212, v15, s[{SRD_C}:{SRD_C+3}], s45 offen")
        b(f"  buffer_load_ushort v213, v15, s[{SRD_D}:{SRD_D+3}], s45 offen")
        NCLR += 4
    if "wearly" in OPT:
        w_early(b); NCLR += 2
    npf = 0
    if "burn" in OPT:
        for i in range(4): b(f"  v_mov_b32 v{180+i}, 0x3f9d3f8a")
        for i in range(4): b(f"  v_mov_b32 v{184+i}, 0x3e5abf31")
        b(f"  s_nop 1")
        for i in range(24): b(f"  v_mfma_f32_32x32x16_bf16 v[{(i%2)*16+144}:{(i%2)*16+159}], v[180:183], v[184:187], v[{(i%2)*16+144}:{(i%2)*16+159}]")
    p1_tables(b)
    GM = 30
    gmat(b, GM, 2, False, 10)
    srd(b, SRD_PF, P_DBG, 256)
    b(f"  s_and_b32 s{S_T+8}, s2, 15")
    b(f"  s_lshl_b32 s{S_T+9}, s{S_T+8}, 2")
    b(f"  s_add_u32 s{S_T+9}, s{S_T+9}, 64")
    b(f"  v_mov_b32 v25, s{S_T+9}")
    b(f"  v_lshlrev_b32 v26, 2, v8")
    b(f"  v_add_u32 v26, 64, v26")
    b(f"  s_cmp_ge_u32 s2, 16")
    b(f"  s_cbranch_scc1 p1_noflag")
    b(f"  s_cmp_lg_u32 s{S_W}, 0")
    b(f"  s_cbranch_scc1 p1_noflag")
    b(f"  s_waitcnt vmcnt({8} + 0)".replace(" + 0", "") if NCLR == 0 else f"  s_waitcnt vmcnt({8 + NCLR})")
    b(f"  v_mov_b32 v3, 1")
    b(f"  s_mov_b64 s[48:49], exec")
    b(f"  s_mov_b64 exec, 1")
    b(f"  buffer_store_dword v3, v25, s[{SRD_PF}:{SRD_PF+3}], 0 offen sc1")
    b(f"  s_mov_b64 exec, s[48:49]")
    b.label("p1_noflag")
    b(f"  s_waitcnt lgkmcnt(0)")
    stamp(b, "p1 tables done")
    b(f"  s_barrier")
    NX2 = 0
    if "sent2" in OPT:
        srd(b, SRD_C, P_WS, 4 << 20, WS_X2)
        for i in range(4): b(f"  v_mov_b32 v{200+i}, -1")
        b(f"  v_lshlrev_b32 v3, 4, v0")
        b(f"  s_lshl_b32 s{S_T+7}, s2, 14")
        b(f"  buffer_store_dwordx4 v[200:203], v3, s[{SRD_C}:{SRD_C+3}], s{S_T+7} offen{SF}")
        b(f"  s_add_u32 s{S_T+7}, s{S_T+7}, 8192")
        b(f"  buffer_store_dwordx4 v[200:203], v3, s[{SRD_C}:{SRD_C+3}], s{S_T+7} offen{SF}")
        NX2 = 2
    npf = 0
    if "nopf" not in OPT:
        b(f"  s_mul_i32 s{S_T+8}, s2, 8208")
        if "ntx" not in OPT and "wpf" in OPT and "pf7" not in OPT:
            pf_wide(b, P_WR, WB, S_T + 8, 3, 0, 3, "pf_p1a")
            pf_wide(b, P_WI, WB, S_T + 8, 3, 0, 3, "pf_p1b")
        if "ntw1" not in OPT and PFN[0] and "pf7" not in OPT:
            w1_share_base(b, S_T + 8, 0)
            pf_wide(b, P_W1, W1B, S_T + 8, PFN[0], 4, 8, "pf_p1c")
    M1, M2, TW = 96, 112, 128
    b(f"  v_lshlrev_b32 v2, 4, v7")
    for i in range(4): b(f"  ds_read_b128 {vr(M1+4*i,4)}, v2 offset:{L1_M1+1024*i}")
    for i in range(3): b(f"  ds_read_b128 {vr(M2+4*i,4)}, v2 offset:{L1_M2+1024*i}")
    for i in range(8): b(f"  ds_read_b128 {vr(TW+4*i,4)}, v2 offset:{L1_TW+1024*i}")
    X = 40
    NCLR += NX2
    nW = 0 if ("nopf" in OPT or "ntx" in OPT or "wpf" not in OPT or "pf7" in OPT) else 6
    n1 = 0 if ("nopf" in OPT or "ntw1" in OPT or "pf7" in OPT) else PFN[0]
    b(f"  s_cmp_eq_u32 s{S_W}, 3")
    b(f"  s_cbranch_scc1 p1_xw0")
    b(f"  s_cmp_ge_u32 s{S_W}, 4")
    b(f"  s_cbranch_scc1 p1_xw4")
    b(f"  s_waitcnt vmcnt({NCLR + nW})")
    b(f"  s_branch p1_xwd")
    b.label("p1_xw4")
    if "tlbw" in OPT:
        b(f"  s_cmp_lg_u32 s{S_W}, 7")
        b(f"  s_cbranch_scc1 p1_xw5")
        b(f"  s_waitcnt vmcnt({min(63, NCLR + n1 + 8 + N7[0])})")
        b(f"  s_branch p1_xwd")
        b.label("p1_xw5")
    b(f"  s_waitcnt vmcnt({NCLR + n1})")
    b(f"  s_branch p1_xwd")
    b.label("p1_xw0")
    b(f"  s_waitcnt vmcnt({NCLR})")
    b.label("p1_xwd")
    stamp(b, "p1 x landed")
    if "wmid" in OPT:
        w_early(b)
        b(f"  s_cmp_ge_u32 s2, 8")
        b(f"  s_cbranch_scc1 p1_nonyq")
        b(f"  buffer_load_ushort v212, v214, s[{SRD_C}:{SRD_C+3}], 0 offen offset:1024")
        b(f"  buffer_load_ushort v213, v214, s[{SRD_D}:{SRD_D+3}], 0 offen offset:1024")
        b.label("p1_nonyq")
    if "wearly" in OPT:
        b(f"  s_cmp_ge_u32 s2, 8")
        b(f"  s_cbranch_scc1 p1_nonyq")
        b(f"  buffer_load_ushort v212, v214, s[{SRD_C}:{SRD_C+3}], 0 offen offset:1024")
        b(f"  buffer_load_ushort v213, v214, s[{SRD_D}:{SRD_D+3}], 0 offen offset:1024")
        b.label("p1_nonyq")
    srd(b, SRD_PF, P_DBG, 256)
    if "stash" in OPT:
        b(f"  s_lshl_b32 s{S_T+9}, s{S_W}, 11")
        b(f"  s_add_u32 s{S_T+9}, s{S_T+9}, {L_XS}")
        b(f"  v_add_u32 v4, s{S_T+9}, v1           ; t*2048 + g*512 + c*4")
        for i in range(8): b(f"  ds_write_b32 v4, v{XD+i} offset:{64*i}")
    for i in range(8):
        b(f"  v_lshlrev_b32 v{X+i}, 16, v{XD+i}")
        b(f"  v_and_b32 v{X+8+i}, 0xffff0000, v{XD+i}")
    T = 56
    ln_fast(b, X, T, S_T + 2, True)
    stamp(b, "p1 ln done")
    if SENT():
        b(f"  buffer_load_dword v27, v26, s[{SRD_PF}:{SRD_PF+3}], 0 offen sc1")
        b(f"  s_and_b32 s{S_T+8}, s2, 15")
        arrive(b, 0, S_T + 8, first=True, label="x1")
        stamp(b, "p1 arrived")
        srd(b, SRD_C, P_WS, 4 << 20, WS_X2)
        for i in range(4): b(f"  v_mov_b32 v{200+i}, -1")
        b(f"  v_lshlrev_b32 v2, 4, v0")
        b(f"  s_lshl_b32 s{S_T+7}, s2, 14")
        b(f"  buffer_store_dwordx4 v[200:203], v2, s[{SRD_C}:{SRD_C+3}], s{S_T+7} offen{SF}")
        b(f"  s_add_u32 s{S_T+7}, s{S_T+7}, 8192")
        b(f"  buffer_store_dwordx4 v[200:203], v2, s[{SRD_C}:{SRD_C+3}], s{S_T+7} offen{SF}")
    A = 64
    for be in range(2):
        for i in range(4):
            b(f"  v_cvt_pk_bf16_f32 v{A+4*be+i}, v{X+8*be+2*i}, v{X+8*be+2*i+1}")
    b(f"  s_waitcnt lgkmcnt(0)")
    b(f"  v_readlane_b32 s{S_T+5}, v{T+6}, 0")
    Y = 160
    for be in range(2):
        for u in range(2):
            for c in range(2):
                d = Y + ((be * 2 + u) * 2 + c) * 4
                b(f"  {MF32} {vr(d,4)}, {vr(A+4*be,4)}, {vr(M1+4*(2*u+c),4)}, 0")
    b(f"  s_nop 4")
    Bp = 72; W = 32; O = 40
    for u in range(2):
        for be in range(2):
            y = Y + ((be * 2 + u) * 2) * 4
            tw = TW + (be * 4 + u * 2) * 4
            cmul_pk(b, O + 8 * be, O + 8 * be + 4, y, y + 4, tw, tw + 4, W, False)
        for r in range(4):
            b(f"  v_cvt_pk_bf16_f32 v{Bp+8*u+r}, v{O+r}, v{O+8+r}")
            b(f"  v_cvt_pk_bf16_f32 v{Bp+8*u+4+r}, v{O+4+r}, v{O+12+r}")
    XO = 160
    b(f"  s_nop 1")
    for u in range(2):
        re, im = XO + 8 * u, XO + 8 * u + 4
        b(f"  {MF32} {vr(re,4)}, {vr(M2,4)}, {vr(Bp+8*u,4)}, 0")
        b(f"  {MF32} {vr(im,4)}, {vr(M2,4)}, {vr(Bp+8*u+4,4)}, 0")
        b(f"  {MF32} {vr(re,4)}, {vr(M2+4,4)}, {vr(Bp+8*u+4,4)}, {vr(re,4)}")
        b(f"  {MF32} {vr(im,4)}, {vr(M2+8,4)}, {vr(Bp+8*u,4)}, {vr(im,4)}")
    b(f"  s_and_b32 s{S_T+6}, s{S_W}, 1")
    b(f"  s_lshl_b32 s{S_T+6}, s{S_T+6}, 8")
    b(f"  s_lshr_b32 s{S_T+7}, s{S_W}, 1")
    b(f"  s_lshl_b32 s{S_T+7}, s{S_T+7}, 6")
    b(f"  s_add_u32 s{S_T+6}, s{S_T+6}, s{S_T+7}")
    b(f"  v_lshlrev_b32 v3, 12, v9")
    b(f"  v_lshl_add_u32 v3, v8, 2, v3")
    b(f"  v_add_u32 v3, s{S_T+6}, v3")
    b(f"  s_nop 2")
    b(f"  v_writelane_b32 v{XO}, s{S_T+5}, 0")
    b(f"  v_writelane_b32 v{XO+4}, 0, 0")
    PK = 32
    for u in range(2):
        for r in range(4):
            b(f"  v_cvt_pk_bf16_f32 v{PK+4*u+r}, v{XO+8*u+r}, v{XO+8*u+4+r}")
    for u in range(2):
        for r in range(4):
            b(f"  ds_write_b32 v3, v{PK+4*u+r} offset:{L1_EX + u*512 + r*1024}")
    if "wpack" in OPT:
        assert not SENT()
        srd(b, SRD_C, P_WS, 4 << 20, WS_WP)
        b(f"  v_lshrrev_b32 v14, 1, v7              ; kb")
        b(f"  v_lshlrev_b32 v14, 17, v14")
        b(f"  v_and_b32 v15, 1, v7")
        b(f"  v_lshl_add_u32 v14, v15, 4, v14")
        b(f"  s_and_b32 s{S_T+6}, s2, 15")
        b(f"  s_lshl_b32 s{S_T+6}, s{S_T+6}, 9       ; (p&15)<<5 * 16")
        b(f"  s_lshr_b32 s{S_T+7}, s2, 4")
        b(f"  s_lshl_b32 s{S_T+7}, s{S_T+7}, 5       ; (p>>4)<<1 * 16")
        b(f"  s_add_u32 s{S_T+6}, s{S_T+6}, s{S_T+7}")
        b(f"  s_lshl_b32 s{S_T+7}, s{S_W}, 14")
        b(f"  s_add_u32 s{S_T+6}, s{S_T+6}, s{S_T+7}")
        b(f"  s_add_u32 s{S_T+7}, s{S_T+6}, 8192")
        npf0 = 0 if ("nopf" in OPT or "pf7" in OPT) else PFN[0]
        b(f"  s_cmp_ge_u32 s{S_W}, 4")
        b(f"  s_cbranch_scc1 p1_wp4")
        b(f"  s_waitcnt vmcnt(0)")
        b(f"  s_branch p1_wpd")
        b.label("p1_wp4")
        b(f"  s_waitcnt vmcnt({npf0})")
        b.label("p1_wpd")
        b(f"  v_cmp_eq_u32 vcc, 0, v7")
        b(f"  v_and_b32 v15, 0xffff0000, v{WE}")
        b(f"  v_or_b32 v15, v15, v212")
        b(f"  v_cndmask_b32 v{WE}, v{WE}, v15, vcc")
        b(f"  v_and_b32 v15, 0xffff0000, v{WE+4}")
        b(f"  v_or_b32 v15, v15, v213")
        b(f"  v_cndmask_b32 v{WE+4}, v{WE+4}, v15, vcc")
        b(f"  buffer_store_dwordx4 {vr(WE,4)}, v14, s[{SRD_C}:{SRD_C+3}], s{S_T+6} offen{SF}")
        b(f"  buffer_store_dwordx4 {vr(WE+4,4)}, v14, s[{SRD_C}:{SRD_C+3}], s{S_T+7} offen{SF}")
    if SENT(): b(f"  s_waitcnt lgkmcnt(0) vmcnt(0)")
    else:
        b(f"  buffer_load_dword v27, v26, s[{SRD_PF}:{SRD_PF+3}], 0 offen sc1")
        b(f"  s_waitcnt lgkmcnt(0)")
    stamp(b, "p1 fft done")
    b(f"  s_barrier")
    b(f"  v_lshlrev_b32 v4, 6, v9")
    b(f"  v_lshl_add_u32 v4, v8, 2, v4")
    b(f"  s_lshl_b32 s{S_T+6}, s{S_W}, 11")
    b(f"  s_add_u32 s{S_T+6}, s{S_T+6}, {L1_EX}")
    b(f"  v_add_u32 v4, s{S_T+6}, v4")
    Bd = 40
    for i in range(4):
        b(f"  ds_read2st64_b32 {vr(Bd+2*i,2)}, v4 offset0:{2*i} offset1:{2*i+1}")
    D = 48
    for i in range(4):
        b(f"  s_waitcnt lgkmcnt({3-i})")
        b(f"  {MF16} {vr(D+4*i,4)}, {vr(GM,2)}, {vr(Bd+2*i,2)}, 0")
    b(f"  s_nop 4")
    for i in range(4):
        b(f"  v_cvt_pk_bf16_f32 v{64+2*i}, v{D+4*i}, v{D+4*i+1}")
        b(f"  v_cvt_pk_bf16_f32 v{65+2*i}, v{D+4*i+2}, v{D+4*i+3}")
        if SENT():
            b(f"  v_min_u32 v{64+2*i}, 0xfffffffe, v{64+2*i}")
            b(f"  v_min_u32 v{65+2*i}, 0xfffffffe, v{65+2*i}")
        for e in range(2):
            b(f"  s_add_u32 s{S_T+7}, s44, {i*131072 + e*16384}")
            b(f"  buffer_store_dword v{64+2*i+e}, v5, s[{SRD_B}:{SRD_B+3}], s{S_T+7} offen{SF}")
    stamp(b, "p1 stores issued")
    if not SENT():
        b(f"  s_and_b32 s{S_T+8}, s2, 15")
        arrive(b, 0, S_T + 8, first=True, label="x1")
        stamp(b, "p1 arrived")

XL2, WL2 = 32, 40
WE = 204
TC2, TS2 = 64, 68
def p2_setup(b):
    srd(b, SRD_A, P_WS, 4 << 20, WS_X1)
    srd(b, SRD_B, P_WS, 4 << 20, WS_X2)
    srd(b, SRD_C, P_WR, WB)
    srd(b, SRD_D, P_WI, WB)
    b(f"  s_and_b32 s{S_T}, s2, 7              ; j1")
    b(f"  s_lshr_b32 s{S_T+1}, s2, 3           ; kb")
    b(f"  v_and_b32 v10, 1, v0                 ; half")
    b(f"  v_bfe_u32 v11, v0, 5, 4              ; c")
    b(f"  v_bfe_u32 v12, v0, 1, 4              ; e")
    b(f"  v_lshl_add_u32 v13, v12, 4, v11      ; j2")
    b(f"  v_lshlrev_b32 v13, 3, v13")
    b(f"  v_add_u32 v13, s{S_T}, v13           ; j")
    b(f"  v_mul_u32_u24 v13, 1026, v13")
    b(f"  v_lshlrev_b32 v14, 4, v10")
    b(f"  v_add_u32 v14, v13, v14")
    b(f"  s_lshl_b32 s{S_T+3}, s{S_T+1}, 5")
    if "wearly" in OPT or "wmid" in OPT:
        b(f"  s_cmp_lg_u32 s{S_T+1}, 0")
        b(f"  s_cbranch_scc1 p2_nonyq")
        b(f"  s_waitcnt vmcnt(0)")
        b(f"  v_cmp_eq_u32 vcc, 0, v215")
        b(f"  v_and_b32 v50, 0xffff0000, v{WE}")
        b(f"  v_or_b32 v50, v50, v212")
        b(f"  v_cndmask_b32 v{WE}, v{WE}, v50, vcc")
        b(f"  v_and_b32 v50, 0xffff0000, v{WE+4}")
        b(f"  v_or_b32 v50, v50, v213")
        b(f"  v_cndmask_b32 v{WE+4}, v{WE+4}, v50, vcc")
        b.label("p2_nonyq")
    elif "wpack" in OPT:
        srd(b, SRD_C, P_WS, 4 << 20, WS_WP)
    elif "wlate" in OPT:
        b(f"  v_mov_b32 v24, v14")
        b(f"  v_mov_b32 v25, v13")
        b(f"  v_mov_b32 v26, v10                   ; half")
        b(f"  s_mov_b32 s45, s{S_T+3}              ; kb*32")
    else:
        WL = WL2
        b(f"  v_mov_b32 v24, v14")
        b(f"  v_mov_b32 v25, v13")
        b(f"  v_mov_b32 v26, v10                   ; half")
        b(f"  s_mov_b32 s45, s{S_T+3}              ; kb*32")
        WL = WL2
        b(f"  buffer_load_dwordx4 {vr(WL,4)}, v24, s[{SRD_C}:{SRD_C+3}], s45 offen{WF()}")
        b(f"  buffer_load_dwordx4 {vr(WL+4,4)}, v24, s[{SRD_D}:{SRD_D+3}], s45 offen{WF()}")
        b(f"  s_cmp_lg_u32 s{S_T+1}, 0")
        b(f"  s_cbranch_scc1 p2_nonyq")
        b(f"  buffer_load_ushort v48, v25, s[{SRD_C}:{SRD_C+3}], 0 offen offset:1024")
        b(f"  buffer_load_ushort v49, v25, s[{SRD_D}:{SRD_D+3}], 0 offen offset:1024")
        b(f"  s_waitcnt vmcnt(0)")
        b(f"  v_cmp_eq_u32 vcc, 0, v26")
        b(f"  v_and_b32 v50, 0xffff0000, v{WL}")
        b(f"  v_or_b32 v50, v50, v48")
        b(f"  v_cndmask_b32 v{WL}, v{WL}, v50, vcc")
        b(f"  v_and_b32 v50, 0xffff0000, v{WL+4}")
        b(f"  v_or_b32 v50, v50, v49")
        b(f"  v_cndmask_b32 v{WL+4}, v{WL+4}, v50, vcc")
        b.label("p2_nonyq")
        if "wdiag" in OPT:
            b(f"  s_waitcnt vmcnt(0)")
            stamp(b, "p2 w landed")
    if "es" in OPT:
        b(f"  s_cmp_ge_u32 s{S_W}, 2")
        b(f"  s_cbranch_scc1 p2_noclr")
        srd(b, SRD_PF, P_WS, 4 << 20, WS_LN2)
        for i in range(4): b(f"  v_mov_b32 v{200+i}, -1")
        b(f"  s_lshr_b32 s{S_T+8}, s2, 3")
        b(f"  s_lshl_b32 s{S_T+8}, s{S_T+8}, 17")
        b(f"  s_and_b32 s{S_T+9}, s2, 7")
        b(f"  s_lshl_b32 s{S_T+9}, s{S_T+9}, 11")
        b(f"  s_add_u32 s{S_T+8}, s{S_T+8}, s{S_T+9}")
        b(f"  v_lshlrev_b32 v2, 4, v0")
        b(f"  buffer_store_dwordx4 v[200:203], v2, s[{SRD_PF}:{SRD_PF+3}], s{S_T+8} offen{SF}")
        b.label("p2_noclr")
    npf = 0
    b(f"  v_and_b32 v15, 255, v0")
    b(f"  v_bfe_u32 v16, v15, 2, 4             ; x")
    b(f"  v_lshrrev_b32 v17, 6, v15            ; g")
    b(f"  v_and_b32 v18, 3, v15")
    b(f"  v_lshl_add_u32 v17, v17, 2, v18      ; 4g+i")
    b(f"  v_mul_u32_u24 v17, v17, v16")
    sincos(b, 18, 19, 17, 4, 20)
    b(f"  v_cmp_gt_u32 vcc, 256, v0            ; matrix 0 ?")
    b(f"  v_xor_b32 v20, 0x80000000, v19       ; -sin")
    b(f"  s_nop 0")
    b(f"  v_cndmask_b32 v21, v20, v18, vcc")
    b(f"  v_cndmask_b32 v22, v18, v19, vcc")
    b(f"  v_cvt_pk_bf16_f32 v21, v21, v22")
    b(f"  v_lshlrev_b32 v22, 2, v0")
    b(f"  ds_write_b32 v22, v21 offset:{L2_F}")
    b(f"  v_lshlrev_b32 v16, 2, v9")
    for r in range(4):
        b(f"  v_add_u32 v17, {r}, v16")
        b(f"  v_mul_u32_u24 v17, v17, v8")
        sincos(b, TC2 + r, TS2 + r, 17, 8, 20)
    b(f"  v_and_b32 v16, 3, v0                 ; i")
    b(f"  v_mul_u32_u24 v16, {4*1040}, v16")
    b(f"  v_lshrrev_b32 v17, 6, v0             ; b (0..7)")
    b(f"  v_lshl_add_u32 v16, v17, 6, v16")
    b(f"  v_bfe_u32 v17, v0, 2, 2              ; a&3")
    b(f"  v_lshl_add_u32 v16, v17, 2, v16")
    b(f"  v_bfe_u32 v17, v0, 4, 2              ; a>>2")
    b(f"  v_lshl_add_u32 v21, v17, 4, v16      ; first")
    b(f"  v_xor_b32 v17, 2, v17")
    b(f"  v_lshl_add_u32 v22, v17, 4, v16")
    b(f"  v_add_u32 v22, 512, v22              ; second (b+8)")
    b(f"  v_mul_u32_u24 v16, {4*1040}, v10")
    b(f"  v_lshl_add_u32 v16, v11, 6, v16")
    b(f"  v_and_b32 v17, 3, v12")
    b(f"  v_lshl_add_u32 v16, v17, 2, v16")
    b(f"  v_lshrrev_b32 v17, 2, v12")
    b(f"  v_lshrrev_b32 v18, 3, v11            ; c>>3")
    b(f"  v_lshlrev_b32 v18, 1, v18")
    b(f"  v_xor_b32 v17, v17, v18")
    b(f"  v_lshl_add_u32 v23, v17, 4, v16")
    b(f"  v_lshrrev_b32 v16, 3, v8")
    b(f"  v_lshlrev_b32 v16, 1, v16")
    b(f"  v_xor_b32 v16, v16, v9")
    b(f"  v_lshlrev_b32 v16, 4, v16")
    b(f"  v_lshl_add_u32 v16, v8, 6, v16")
    b(f"  s_mul_i32 s{S_T+4}, s{S_W}, {2*1040}")
    b(f"  s_mul_i32 s{S_T+5}, s{S_W}, 1040")
    b(f"  v_add_u32 v5, s{S_T+4}, v16")
    b(f"  v_add_u32 v6, s{S_T+5}, v16")
    b(f"  v_lshlrev_b32 v1, 4, v0")
    b(f"  s_lshl_b32 s{S_T+2}, s2, 14")
    b(f"  s_add_u32 s{S_T+3}, s{S_T+2}, 8192")
    b(f"  s_waitcnt lgkmcnt(0)")

def sentinel_check(b, R0, pre, n=8):
    b(f"  v_max3_u32 v16, v{R0}, v{R0+1}, v{R0+2}")
    b(f"  v_max3_u32 v17, v{R0+3}, v{R0+4}, v{R0+5}")
    b(f"  v_max3_u32 v16, v16, v{R0+6}, v{R0+7}")
    for i in range(8, n, 2): b(f"  v_max3_u32 v17, v17, v{R0+i}, v{R0+i+1}")
    b(f"  v_max_u32 v16, v16, v17")
    b(f"  v_cmp_eq_u32 vcc, -1, v16")
    b(f"  s_sub_u32 s11, s11, 1")
    b(f"  s_cmp_eq_u32 s11, 0")
    b(f"  s_cbranch_scc1 {pre}_got")
    b(f"  s_cmp_lg_u64 vcc, 0")
    b(f"  s_cbranch_scc1 {pre}_poll")
    b.label(f"{pre}_got")

def p2_main(b):
    XL = XL2; TC, TS = TC2, TS2
    if SENT():
        b(f"  s_mov_b32 s11, 200000")
        b.label("p2_poll")
    b(f"  buffer_load_dwordx4 {vr(XL,4)}, v1, s[{SRD_A}:{SRD_A+3}], s{S_T+2} offen sc1")
    b(f"  buffer_load_dwordx4 {vr(XL+4,4)}, v1, s[{SRD_A}:{SRD_A+3}], s{S_T+3} offen sc1")
    if "wpack" in OPT:
        WL = WL2
        b(f"  buffer_load_dwordx4 {vr(WL,4)}, v1, s[{SRD_C}:{SRD_C+3}], s{S_T+2} offen sc1")
        b(f"  buffer_load_dwordx4 {vr(WL+4,4)}, v1, s[{SRD_C}:{SRD_C+3}], s{S_T+3} offen sc1")
        b(f"  s_waitcnt vmcnt(2)")
    elif "wlate" in OPT:
        assert not SENT()
        WL = WL2
        b(f"  buffer_load_dwordx4 {vr(WL,4)}, v24, s[{SRD_C}:{SRD_C+3}], s45 offen{WF()}")
        b(f"  buffer_load_dwordx4 {vr(WL+4,4)}, v24, s[{SRD_D}:{SRD_D+3}], s45 offen{WF()}")
        b(f"  s_cmp_lg_u32 s{S_T+1}, 0")
        b(f"  s_cbranch_scc1 p2_nonyq")
        b(f"  buffer_load_ushort v56, v25, s[{SRD_C}:{SRD_C+3}], 0 offen offset:1024")
        b(f"  buffer_load_ushort v57, v25, s[{SRD_D}:{SRD_D+3}], 0 offen offset:1024")
        b(f"  s_waitcnt vmcnt(0)")
        b(f"  v_cmp_eq_u32 vcc, 0, v26")
        b(f"  v_and_b32 v58, 0xffff0000, v{WL}")
        b(f"  v_or_b32 v58, v58, v56")
        b(f"  v_cndmask_b32 v{WL}, v{WL}, v58, vcc")
        b(f"  v_and_b32 v58, 0xffff0000, v{WL+4}")
        b(f"  v_or_b32 v58, v58, v57")
        b(f"  v_cndmask_b32 v{WL+4}, v{WL+4}, v58, vcc")
        b.label("p2_nonyq")
        b(f"  s_waitcnt vmcnt(2)")
    else:
        b(f"  s_waitcnt vmcnt(0)")
    if SENT(): sentinel_check(b, XL, "p2")
    WL = WE if ("wearly" in OPT or "wmid" in OPT) else WL2
    b(f"  v_lshlrev_b32 v17, 4, v7")
    FR, FI = 72, 76
    AX = 48; WR, WI = 152, 156
    b(f"  ds_read_b128 {vr(FR,4)}, v17 offset:{L2_F}")
    b(f"  ds_read_b128 {vr(FI,4)}, v17 offset:{L2_F+1024}")
    Dq = [80, 88]; Oq = [96, 104]; Tq = [112, 120]; Pq = [128, 132]; Wq = [136, 144]
    stamp(b, "p2 x landed")
    for j in range(4):
        b(f"  ds_write_b32 v21, v{XL+j} offset:{L2_X + j*1040}")
        b(f"  ds_write_b32 v22, v{XL+4+j} offset:{L2_X + j*1040}")
    if "wlate" in OPT or "wpack" in OPT: b(f"  s_waitcnt vmcnt(0)")
    for j in range(4):
        b(f"  ds_write_b32 v23, v{WL+j} offset:{L2_W + j*1040}")
        b(f"  ds_write_b32 v23, v{WL+4+j} offset:{L2_W + 8*1040 + j*1040}")
    if "nopf" not in OPT and "ntw1" not in OPT and PFN[1]:
        w1_share_base(b, S_T + 8, PFN[0] * 4096)
        pf_wide(b, P_W1, W1B, S_T + 8, PFN[1], 4, 8, "pf_p2a")
    b(f"  s_waitcnt lgkmcnt(0)")
    b(f"  s_barrier")
    b(f"  ds_read_b128 {vr(AX,4)}, v5 offset:{L2_X}")
    b(f"  ds_read_b128 {vr(AX+4,4)}, v5 offset:{L2_X+1040}")
    b(f"  ds_read_b128 {vr(WR,4)}, v6 offset:{L2_W}")
    b(f"  ds_read_b128 {vr(WI,4)}, v6 offset:{L2_W+8*1040}")
    def stage(form, src):
        for k in range(2):
            d = Dq[k]
            if form == 'A':
                b(f"  {MF32} {vr(d,4)}, {vr(src[k],4)}, {vr(FR,4)}, 0")
                b(f"  {MF32} {vr(d+4,4)}, {vr(src[k],4)}, {vr(FI,4)}, 0")
            else:
                b(f"  {MF32} {vr(d,4)}, {vr(FR,4)}, {vr(src[k],4)}, 0")
                b(f"  {MF32} {vr(d+4,4)}, {vr(FI,4)}, {vr(src[k],4)}, 0")
    def twiddle_pack():
        for k in range(2):
            cmul_pk(b, Oq[k], Oq[k] + 4, Dq[k], Dq[k] + 4, TC, TS, Tq[k], False)
        for k in range(2):
            for r in range(4):
                b(f"  v_cvt_pk_bf16_f32 v{Pq[k]+r}, v{Oq[k]+r}, v{Oq[k]+4+r}")
        b(f"  s_nop 1")
    b(f"  s_waitcnt lgkmcnt(2)")
    stage('A', [AX, AX + 4])
    b(f"  s_waitcnt lgkmcnt(0)")
    for r in range(4):
        b(f"  v_lshlrev_b32 v{Wq[0]+r}, 16, v{WR+r}")
        b(f"  v_lshlrev_b32 v{Wq[0]+4+r}, 16, v{WI+r}")
        b(f"  v_and_b32 v{Wq[1]+r}, 0xffff0000, v{WR+r}")
        b(f"  v_and_b32 v{Wq[1]+4+r}, 0xffff0000, v{WI+r}")
    twiddle_pack()
    stage('B', Pq)
    b(f"  s_nop 5")
    for k in range(2):
        cmul_pk(b, Oq[k], Oq[k] + 4, Dq[k], Dq[k] + 4, Wq[k], Wq[k] + 4, Tq[k], True)
    for k in range(2):
        for r in range(4):
            b(f"  v_cvt_pk_bf16_f32 v{Pq[k]+r}, v{Oq[k]+r}, -v{Oq[k]+4+r}")
    b(f"  s_nop 1")
    stage('A', Pq)
    b(f"  s_nop 5")
    twiddle_pack()
    stage('B', Pq)
    b(f"  s_nop 5")
    for k in range(2):
        for r in range(4):
            b(f"  v_cvt_pk_bf16_f32 v{Pq[k]+r}, v{Dq[k]+r}, -v{Dq[k]+4+r}")
    b(f"  ds_write_b128 v5, {vr(Pq[0],4)} offset:{L2_X}")
    b(f"  ds_write_b128 v5, {vr(Pq[1],4)} offset:{L2_X+1040}")
    b(f"  s_waitcnt lgkmcnt(0)")
    b(f"  s_barrier")
    for j in range(4):
        b(f"  ds_read_b32 v{XL+j}, v21 offset:{L2_X + j*1040}")
        b(f"  ds_read_b32 v{XL+4+j}, v22 offset:{L2_X + j*1040}")
    b(f"  v_bfe_u32 v16, v0, 2, 4              ; a")
    b(f"  v_lshrrev_b32 v17, 6, v0             ; b")
    b(f"  v_lshl_add_u32 v16, v16, 4, v17      ; s1")
    b(f"  v_lshlrev_b32 v16, 14, v16")
    b(f"  v_and_b32 v17, 3, v0")
    b(f"  v_lshl_add_u32 v16, v17, 4, v16")
    b(f"  s_lshl_b32 s{S_T+4}, s{S_T}, 11")
    b(f"  s_lshl_b32 s{S_T+5}, s{S_T+1}, 6")
    b(f"  s_add_u32 s{S_T+4}, s{S_T+4}, s{S_T+5}")
    b(f"  s_add_u32 s{S_T+5}, s{S_T+4}, {8*16384}")
    b(f"  s_waitcnt lgkmcnt(0)")
    if SENT2():
        for j in range(8): b(f"  v_min_u32 v{XL+j}, 0xfffffffe, v{XL+j}")
    b(f"  buffer_store_dwordx4 {vr(XL,4)}, v16, s[{SRD_B}:{SRD_B+3}], s{S_T+4} offen{SF}")
    b(f"  buffer_store_dwordx4 {vr(XL+4,4)}, v16, s[{SRD_B}:{SRD_B+3}], s{S_T+5} offen{SF}")
    stamp(b, "p2 stores issued")
    if not SENT2():
        b(f"  s_and_b32 s{S_T+8}, s2, 15")
        arrive(b, 1, S_T + 8, label="x2")

V_LO = 224
S_G1A = 60
def g1_ids(b):
    b(f"  s_lshr_b32 s{S_T}, s2, 3                 ; i")
    b(f"  s_cmp_lt_u32 s{S_T}, 28")
    b(f"  s_cselect_b32 s62, 1, 0")
    b(f"  s_mul_i32 s{S_T+1}, s{S_T}, 37")
    b(f"  s_lshr_b32 s{S_T+1}, s{S_T+1}, 8         ; i/7")
    b(f"  s_mul_i32 s{S_T+2}, s{S_T+1}, 7")
    b(f"  s_sub_u32 s{S_T+2}, s{S_T}, s{S_T+2}     ; i%7")
    b(f"  s_and_b32 s{S_T+3}, s2, 7")
    b(f"  s_lshr_b32 s{S_T+4}, s{S_T+3}, 1")
    b(f"  s_mul_i32 s{S_T+4}, s{S_T+4}, 7")
    b(f"  s_add_u32 s60, s{S_T+4}, s{S_T+2}        ; ft")
    b(f"  s_and_b32 s{S_T+3}, s{S_T+3}, 1")
    b(f"  s_lshl_b32 s{S_T+3}, s{S_T+3}, 2")
    b(f"  s_add_u32 s61, s{S_T+3}, s{S_T+1}        ; dt")

S_SOFF, S_M0, S_N = 4, 5, 6
def loader_issue(b, voff, fl=""):
    for i in range(4):
        b(f"  s_add_u32 m0, s{S_M0}, {4096*i}")
        b(f"  s_nop 0")
        b(f"  buffer_load_dwordx4 v{voff+i}, s[{SRD_T}:{SRD_T+3}], s{S_SOFF} offen{fl} lds")
    b(f"  s_add_u32 s{S_SOFF}, s{S_SOFF}, s9")
    b(f"  s_add_u32 s{S_M0}, s{S_M0}, {STAGE}")
    b(f"  s_cmp_ge_u32 s{S_M0}, s{S_N+1}")
    b(f"  s_cselect_b32 s{S_N+2}, {R*STAGE}, 0")
    b(f"  s_sub_u32 s{S_M0}, s{S_M0}, s{S_N+2}")

def loader_init(b, step_bytes):
    b(f"  s_sub_u32 s50, s{S_W}, 4")
    b(f"  s_lshl_b32 s{S_M0}, s50, 10")
    b(f"  s_add_u32 s{S_N+1}, s{S_M0}, {R*STAGE}")
    b(f"  s_mov_b32 s{S_SOFF}, 0")
    b(f"  s_mov_b32 s9, {step_bytes}")

def g1_loader_addr(b):
    b(f"  s_sub_u32 s50, s{S_W}, 4      ; w'")
    for i in range(4):
        b(f"  s_lshl_b32 s49, s50, 2")
        b(f"  s_add_u32 s49, s49, {16*i}")
        b(f"  v_lshrrev_b32 v14, 4, v7")
        b(f"  v_add_u32 v14, s49, v14                 ; row 0..63")
        b(f"  v_and_b32 v15, 3, v14")
        b(f"  v_lshlrev_b32 v15, 2, v15")
        b(f"  v_and_b32 v16, 15, v7")
        b(f"  v_xor_b32 v16, v16, v15                 ; q")
        b(f"  v_lshrrev_b32 v17, 3, v14")
        b(f"  v_and_b32 v18, 7, v14")
        b(f"  v_lshl_add_u32 v17, v18, 8, v17         ; s")
        b(f"  v_mul_u32_u24 v17, 7168, v17")
        b(f"  v_lshl_add_u32 v17, v16, 4, v17")
        b(f"  s_lshl_b32 s49, s60, 8")
        b(f"  v_add_u32 v{V_LO+i}, s49, v17")

def g2_ids(b):
    if SK():
        b(f"  s_lshr_b32 s{S_T+1}, s2, 3")
        b(f"  s_lshr_b32 s{S_TILE_A}, s{S_T+1}, 2          ; dt")
        b(f"  s_lshr_b32 s{S_T}, s2, 1")
        b(f"  s_and_b32 s{S_T}, s{S_T}, 3")
        b(f"  s_lshl_b32 s{S_T}, s{S_T}, 2")
        b(f"  s_and_b32 s{S_T+1}, s{S_T+1}, 3")
        b(f"  s_add_u32 s{S_TILE_B}, s{S_T}, s{S_T+1}      ; st2")
        b(f"  s_and_b32 s19, s2, 1                       ; kh")
        return
    b(f"  s_and_b32 s{S_T}, s2, 1")
    b(f"  s_lshl_b32 s{S_T}, s{S_T}, 2")
    b(f"  s_lshr_b32 s{S_T+1}, s2, 3")
    b(f"  s_and_b32 s{S_T+2}, s{S_T+1}, 3")
    b(f"  s_add_u32 s{S_TILE_A}, s{S_T}, s{S_T+2}     ; dt")
    b(f"  s_lshr_b32 s{S_T}, s2, 1")
    b(f"  s_and_b32 s{S_T}, s{S_T}, 3")
    b(f"  s_lshl_b32 s{S_T}, s{S_T}, 3")
    b(f"  s_lshr_b32 s{S_T+1}, s{S_T+1}, 2")
    b(f"  s_add_u32 s{S_TILE_B}, s{S_T}, s{S_T+1}     ; st")

def g2_loader_addr(b):
    if SK():
        b(f"  s_sub_u32 s50, s{S_W}, 4")
        for i in range(4):
            b(f"  s_lshl_b32 s49, s50, 2")
            b(f"  s_add_u32 s49, s49, {16*i}")
            b(f"  v_lshrrev_b32 v14, 4, v7")
            b(f"  v_add_u32 v14, s49, v14                 ; row 0..63")
            b(f"  v_and_b32 v15, 3, v14")
            b(f"  v_lshlrev_b32 v15, 2, v15")
            b(f"  v_and_b32 v16, 15, v7")
            b(f"  v_xor_b32 v16, v16, v15                 ; q")
            b(f"  v_lshlrev_b32 v14, 12, v14              ; row*4096")
            b(f"  v_lshl_add_u32 v14, v16, 4, v14")
            b(f"  s_lshl_b32 s49, s{S_TILE_B}, 8          ; s0*2")
            b(f"  s_mul_i32 s48, s19, {1792*4096}         ; k half")
            b(f"  s_add_u32 s49, s49, s48")
            b(f"  v_add_u32 v{V_LO+i}, s49, v14")
        return
    b(f"  s_sub_u32 s50, s{S_W}, 4")
    for i in range(4):
        b(f"  s_lshl_b32 s49, s50, 3")
        b(f"  s_add_u32 s49, s49, {32*i}")
        b(f"  v_lshrrev_b32 v14, 3, v7")
        b(f"  v_add_u32 v14, s49, v14                 ; row")
        b(f"  v_bfe_u32 v15, v14, 1, 1")
        b(f"  v_lshlrev_b32 v15, 2, v15")
        b(f"  v_and_b32 v16, 7, v7")
        b(f"  v_xor_b32 v16, v16, v15                 ; q")
        b(f"  v_lshlrev_b32 v14, 12, v14              ; row*4096")
        b(f"  v_lshl_add_u32 v14, v16, 4, v14")
        b(f"  s_lshl_b32 s49, s{S_TILE_B}, 7          ; s0*2")
        b(f"  v_add_u32 v{V_LO+i}, s49, v14")

def loader_loop(b, NS, pre, fl=""):
    if "priol" in OPT: b("  s_setprio 2")
    if "oldstart" in OPT:
        for n in range(R - 4): loader_issue(b, V_LO, fl)
        nmain = NS - (R - 2)
    else:
        b(f"  s_waitcnt vmcnt(4)")
        b("  s_barrier                      ; B_0")
        for n in range(R - 3): loader_issue(b, V_LO, fl)
        nmain = NS - (R - 2) - 1
    b(f"  s_mov_b32 s{S_N}, {nmain}")
    b.label(f"{pre}_lloop")
    b(f"  s_waitcnt vmcnt({(R-3)*4})")
    b("  s_barrier")
    loader_issue(b, V_LO, fl)
    b(f"  s_sub_u32 s{S_N}, s{S_N}, 1")
    b(f"  s_cmp_lg_u32 s{S_N}, 0")
    b(f"  s_cbranch_scc1 {pre}_lloop")
    for i in range(R - 2):
        b(f"  s_waitcnt vmcnt({(R-3-i)*4})")
        b("  s_barrier")

BD3 = 32; XR3 = 192; GM3 = 30
def p3_tables(b):
    b(f"  v_and_b32 v10, 255, v0            ; e")
    b(f"  v_lshrrev_b32 v11, 8, v0")
    b(f"  v_bfe_u32 v12, v10, 2, 4          ; n = lane&15")
    b(f"  v_lshrrev_b32 v13, 6, v10         ; g")
    b(f"  v_and_b32 v14, 3, v10             ; r")
    b(f"  v_lshl_add_u32 v13, v13, 2, v14   ; 4g + r")
    b(f"  v_lshrrev_b32 v15, 2, v12")
    b(f"  v_lshlrev_b32 v15, 3, v15")
    b(f"  v_and_b32 v16, 3, v12")
    b(f"  v_add_u32 v15, v15, v16           ; b(n,0)")
    b(f"  v_lshl_add_u32 v16, v11, 2, v15   ; b(n, sel)")
    b(f"  v_mul_u32_u24 v17, v16, v13")
    sincos(b, 18, 19, 17, 5, 20)
    b(f"  v_lshlrev_b32 v22, 2, v10")
    b(f"  v_lshl_add_u32 v22, v11, 11, v22  ; sel*2048 + e*4")
    b(f"  v_add_u32 v22, {L3_M3}, v22")
    b(f"  v_cvt_pk_bf16_f32 v23, v18, -v19")
    b(f"  v_cvt_pk_bf16_f32 v24, v19, v18")
    b(f"  ds_write_b32 v22, v23")
    b(f"  ds_write_b32 v22, v24 offset:1024")
    b(f"  v_lshl_add_u32 v17, v11, 4, v13   ; k1")
    for z in range(2):
        b(f"  v_add_u32 v21, {16*z}, v12")
        b(f"  v_mul_u32_u24 v21, v21, v17")
        sincos(b, 18, 19, 21, 5, 20)
        b(f"  v_add_f32 v18, v18, v18")
        b(f"  v_mul_f32 v19, -2.0, v19")
        b(f"  v_cvt_pk_bf16_f32 v23, v18, v19")
        b(f"  ds_write_b32 v22, v23 offset:{4096+1024*z}")
    b(f"  v_lshlrev_b32 v23, 2, v10")
    b(f"  v_lshl_add_u32 v23, v11, 12, v23   ; u*4096 + e*4")
    b(f"  v_add_u32 v23, {L3_TW}, v23")
    for v in range(2):
        b(f"  v_add_u32 v21, {4*v}, v15")
        b(f"  v_mul_u32_u24 v21, v21, v17")
        sincos(b, 18, 19, 21, 10, 20)
        b(f"  ds_write_b32 v23, v18 offset:{2048*v}")
        b(f"  ds_write_b32 v23, v19 offset:{2048*v+1024}")

def p3_setup(b):
    srd(b, SRD_A, P_WS, 4 << 20, WS_X2)
    srd(b, SRD_B, P_X, 4 << 20)
    srd(b, SRD_C, P_WS, 4 << 20, WS_H)
    srd(b, SRD_D, P_WS, 4 << 20, WS_LN2)
    b(f"  s_lshl_b32 s{S_T+3}, s{S_W}, 8")
    b(f"  s_add_u32 s{S_T+3}, s{S_T+3}, s2")
    b(f"  s_lshl_b32 s{S_T+3}, s{S_T+3}, 11       ; s*2048")
    b(f"  v_lshlrev_b32 v4, 6, v8")
    b(f"  v_lshl_add_u32 v4, v9, 4, v4")
    if "stash" in OPT:
        b(f"  s_lshl_b32 s{S_T+9}, s{S_W}, 11")
        b(f"  s_add_u32 s{S_T+9}, s{S_T+9}, {L_XS}")
        b(f"  v_add_u32 v2, s{S_T+9}, v4")
        for z in range(2): b(f"  ds_read_b128 {vr(XR3+4*z,4)}, v2 offset:{1024*z}")
    else:
      for z in range(2):
        b(f"  buffer_load_dwordx4 {vr(XR3+4*z,4)}, v4, s[{SRD_B}:{SRD_B+3}], s{S_T+3} offen offset:{1024*z}")
    b(f"  s_mov_b32 s63, s{S_T+3}")
    if SK():
        srd(b, SRD_PF, P_WS, 4 << 20, WS_XCH)
        for i in range(4): b(f"  v_mov_b32 v{200+i}, -1")
        b(f"  v_lshlrev_b32 v2, 4, v0")
        b(f"  s_lshl_b32 s{S_T+8}, s2, 14")
        b(f"  buffer_store_dwordx4 v[200:203], v2, s[{SRD_PF}:{SRD_PF+3}], s{S_T+8} offen{SF}")
        b(f"  s_add_u32 s{S_T+8}, s{S_T+8}, 8192")
        b(f"  buffer_store_dwordx4 v[200:203], v2, s[{SRD_PF}:{SRD_PF+3}], s{S_T+8} offen{SF}")
    if "es" in OPT:
        b(f"  s_cmp_ge_u32 s{S_W}, 4")
        b(f"  s_cbranch_scc1 p3_noclr")
        srd(b, SRD_PF, P_WS, U_BYTES, WS_U)
        b(f"  s_lshr_b32 s{S_T+8}, s2, 3            ; dblk")
        b(f"  s_mul_i32 s{S_T+8}, s{S_T+8}, 229376")
        b(f"  s_lshr_b32 s{S_T+9}, s2, 2")
        b(f"  s_and_b32 s{S_T+9}, s{S_T+9}, 1       ; k half")
        b(f"  s_mul_i32 s{S_T+9}, s{S_T+9}, {112*1024}")
        b(f"  s_add_u32 s{S_T+8}, s{S_T+8}, s{S_T+9}")
        b(f"  s_and_b32 s{S_T+9}, s2, 3")
        b(f"  s_lshl_b32 s{S_T+9}, s{S_T+9}, 12")
        b(f"  s_add_u32 s{S_T+8}, s{S_T+8}, s{S_T+9}")
        b(f"  buffer_store_dwordx4 v[200:203], v2, s[{SRD_PF}:{SRD_PF+3}], s{S_T+8} offen{SF}")
        b.label("p3_noclr")
    if "nopf" not in OPT and "ntw1" not in OPT:
        if PFN[2]:
            w1_share_base(b, S_T + 8, (PFN[0] + PFN[1]) * 4096)
            pf_wide(b, P_W1, W1B, S_T + 8, PFN[2], 4, 8, "pf_p3a")
    g1_ids(b)
    g1_loader_addr(b)
    loader_init(b, 8 * 7168)
    p3_tables(b)
    gmat(b, GM3, 2, True, 10)
    b(f"  v_lshlrev_b32 v1, 12, v9")
    b(f"  v_lshl_add_u32 v1, v8, 2, v1")
    b(f"  s_lshl_b32 s{S_T}, s2, 14")
    b(f"  s_and_b32 s{S_T+1}, s{S_W}, 1")
    b(f"  s_lshl_b32 s{S_T+1}, s{S_T+1}, 6")
    b(f"  s_lshr_b32 s{S_T+2}, s{S_W}, 1")
    b(f"  s_lshl_b32 s{S_T+2}, s{S_T+2}, 9")
    b(f"  s_add_u32 s{S_T}, s{S_T}, s{S_T+1}")
    b(f"  s_add_u32 s44, s{S_T}, s{S_T+2}          ; X2 soffset")
    b(f"  s_lshl_b32 s{S_T+1}, s{S_T+1}, 4        ; u*1024")
    b(f"  s_lshr_b32 s{S_T+2}, s{S_T+2}, 1        ; q4*256")
    b(f"  s_add_u32 s45, s{S_T+1}, s{S_T+2}")
    b(f"  s_waitcnt lgkmcnt(0)")

def p3_main(b):
    Bd, XR, GM = BD3, XR3, GM3
    D = 40
    b(f"  v_lshlrev_b32 v3, 12, v9")
    b(f"  v_lshl_add_u32 v3, v8, 4, v3")
    b(f"  v_add_u32 v3, s45, v3")
    b(f"  v_add_u32 v3, {L3_EX}, v3")
    M3, M4, TW = 96, 112, 128
    b(f"  v_lshlrev_b32 v6, 4, v7")
    b(f"  v_add_u32 v6, {L3_M3}, v6")
    for i in range(4): b(f"  ds_read_b128 {vr(M3+4*i,4)}, v6 offset:{1024*i}")
    for i in range(4): b(f"  ds_read_b128 {vr(M4+4*i,4)}, v6 offset:{4096+1024*i}")
    b(f"  s_waitcnt lgkmcnt(0)")
    for i in range(8): b(f"  ds_read_b128 {vr(TW+4*i,4)}, v6 offset:{8192+1024*i}")
    if SENT2():
        b(f"  s_mov_b32 s11, 200000")
        b.label("p3_poll")
    for i in range(4):
        for e in range(2):
            b(f"  buffer_load_dword v{Bd+2*i+e}, v1, s[{SRD_A}:{SRD_A+3}], s44 offen offset:{e*2048+i*128} sc1")
    b(f"  s_waitcnt vmcnt(0)")
    if SENT2(): sentinel_check(b, Bd, "p3")
    stamp(b, "p3 x2 landed")
    if "nopf" not in OPT and "ntw1" not in OPT and PFN[3]:
        w1_share_base(b, S_T + 8, (PFN[0] + PFN[1] + PFN[2]) * 4096)
        pf_wide(b, P_W1, W1B, S_T + 8, PFN[3], 4, 8, "pf_p3b")
    for i in range(4):
        b(f"  {MF16} {vr(D+4*i,4)}, {vr(GM,2)}, {vr(Bd+2*i,2)}, 0")
    b(f"  s_nop 4")
    PK = 56
    for e in range(2):
        for i in range(4):
            b(f"  v_cvt_pk_bf16_f32 v{PK+4*e+i}, v{D+4*i+2*e}, v{D+4*i+2*e+1}")
    b(f"  ds_write_b128 v3, {vr(PK,4)}")
    b(f"  ds_write_b128 v3, {vr(PK+4,4)} offset:2048")
    b(f"  s_waitcnt lgkmcnt(0)")
    b(f"  s_barrier")
    b(f"  v_lshlrev_b32 v5, 8, v9")
    b(f"  v_lshl_add_u32 v5, v8, 4, v5")
    b(f"  s_lshl_b32 s{S_T+1}, s{S_W}, 11")
    b(f"  s_add_u32 s{S_T+1}, s{S_T+1}, {L3_EX}")
    b(f"  v_add_u32 v5, s{S_T+1}, v5")
    AU = 32
    b(f"  ds_read_b128 {vr(AU,4)}, v5")
    b(f"  ds_read_b128 {vr(AU+4,4)}, v5 offset:1024")
    b(f"  s_waitcnt lgkmcnt(0)")
    b(f"  v_readlane_b32 s{S_T+4}, v{AU}, 0")
    b(f"  v_writelane_b32 v{AU}, 0, 0")
    b(f"  s_nop 1")
    b(f"  s_lshl_b32 s{S_T+4}, s{S_T+4}, 16")
    TT = 160
    for u in range(2):
        for v in range(2):
            for c in range(2):
                d = TT + ((u * 2 + v) * 2 + c) * 4
                b(f"  {MF32} {vr(d,4)}, {vr(AU+4*u,4)}, {vr(M3+4*(2*v+c),4)}, 0")
    CI = 60
    b(f"  v_mov_b32 v{CI}, s{S_T+4}")
    b(f"  v_xor_b32 v{CI+1}, 0x80000000, v{CI}")
    b(f"  v_mov_b32 v{CI+2}, v{CI}")
    b(f"  v_mov_b32 v{CI+3}, v{CI+1}")
    b(f"  s_nop 1")
    A2 = 64; O = 40; W = 80
    for u in range(2):
        for v in range(2):
            t = TT + ((u * 2 + v) * 2) * 4
            tw = TW + ((u * 2 + v) * 2) * 4
            cmul_pk(b, O, O + 4, t, t + 4, tw, tw + 4, W, True)
            for r in range(4):
                b(f"  v_cvt_pk_bf16_f32 v{A2+(u*2+v)*4+r}, v{O+r}, v{O+4+r}")
    Y = 160
    b(f"  s_nop 1")
    for z in range(2):
        for v in range(2):
            d = Y + (z * 2 + v) * 4
            b(f"  {MF32} {vr(d,4)}, {vr(A2+(0*2+v)*4,4)}, {vr(M4+(0*2+z)*4,4)}, {vr(CI,4)}")
    for z in range(2):
        for v in range(2):
            d = Y + (z * 2 + v) * 4
            b(f"  {MF32} {vr(d,4)}, {vr(A2+(1*2+v)*4,4)}, {vr(M4+(1*2+z)*4,4)}, {vr(d,4)}")
    b(f"  s_nop 7")
    X = 40; HP = 32
    stamp(b, "p3 ifft done")
    for z in range(2):
        for dd in range(4):
            y0 = Y + z * 8 + 2 * dd
            xd = XR + 4 * z + dd
            t = 64 + 2 * (dd % 4)
            b(f"  v_lshlrev_b32 v{t}, 16, v{xd}")
            b(f"  v_and_b32 v{t+1}, 0xffff0000, v{xd}")
            b(f"  v_pk_add_f32 {vr(t,2)}, {vr(t,2)}, {vr(y0,2)}")
            b(f"  v_cvt_pk_bf16_f32 v{HP+4*z+dd}, v{t}, v{t+1}")
    for z in range(2):
        b(f"  buffer_store_dwordx4 {vr(HP+4*z,4)}, v4, s[{SRD_C}:{SRD_C+3}], s63 offen offset:{1024*z}{SF}")
    for i in range(8):
        b(f"  v_lshlrev_b32 v{X+2*i}, 16, v{HP+i}")
        b(f"  v_and_b32 v{X+2*i+1}, 0xffff0000, v{HP+i}")
    ln_fast(b, X, 64, S_T + 4, False)
    LP = 72
    stamp(b, "p3 ln done")
    for i in range(8):
        b(f"  v_cvt_pk_bf16_f32 v{LP+i}, v{X+2*i}, v{X+2*i+1}")
    b(f"  v_mul_u32_u24 v3, 80, v8")
    b(f"  v_lshl_add_u32 v3, v9, 4, v3")
    b(f"  s_mul_i32 s{S_T+1}, s{S_W}, {L3_RS}")
    b(f"  s_add_u32 s{S_T+1}, s{S_T+1}, {L3_LN}")
    b(f"  v_add_u32 v3, s{S_T+1}, v3")
    for z in range(2):
        b(f"  ds_write_b128 v3, {vr(LP+4*z,4)} offset:{z*16*80}")
    b(f"  s_waitcnt lgkmcnt(0)")
    b(f"  s_barrier")
    b(f"  v_bfe_u32 v10, v7, 2, 2")
    b(f"  v_mul_u32_u24 v10, {L3_RS}, v10")
    b(f"  v_lshrrev_b32 v11, 5, v7")
    b(f"  v_mul_u32_u24 v12, 80, v11")
    b(f"  v_add_u32 v10, v10, v12")
    b(f"  v_and_b32 v12, 1, v7")
    b(f"  v_lshl_add_u32 v10, v12, 5, v10")
    b(f"  v_bfe_u32 v12, v7, 4, 1")
    b(f"  v_lshl_add_u32 v10, v12, 4, v10")
    b(f"  v_bfe_u32 v12, v7, 1, 1")
    b(f"  v_lshl_add_u32 v10, v12, 3, v10")
    b(f"  s_mul_i32 s{S_T+1}, s{S_W}, {4*80}")
    b(f"  s_add_u32 s{S_T+1}, s{S_T+1}, {L3_LN}")
    b(f"  v_add_u32 v10, s{S_T+1}, v10")
    for ps in range(2):
        b(f"  ds_read_b64_tr_b16 {vr(32+4*ps,2)}, v10 offset:{ps*160}")
        b(f"  ds_read_b64_tr_b16 {vr(34+4*ps,2)}, v10 offset:{ps*160 + 4*L3_RS}")
    b(f"  v_lshlrev_b32 v11, 17, v11")
    b(f"  v_and_b32 v12, 31, v7")
    b(f"  v_lshl_add_u32 v11, v12, 4, v11")
    b(f"  s_lshl_b32 s{S_T+1}, s{S_W}, 19")
    b(f"  s_lshl_b32 s{S_T+2}, s2, 9")
    b(f"  s_add_u32 s{S_T+1}, s{S_T+1}, s{S_T+2}")
    b(f"  s_add_u32 s{S_T+2}, s{S_T+1}, {2*131072}")
    b(f"  s_waitcnt lgkmcnt(2)")
    if "es" in OPT:
        for i in range(4): b(f"  v_min_u32 v{32+i}, 0xfffffffe, v{32+i}")
    b(f"  buffer_store_dwordx4 v[32:35], v11, s[{SRD_D}:{SRD_D+3}], s{S_T+1} offen{SF}")
    b(f"  s_waitcnt lgkmcnt(0)")
    if "es" in OPT:
        for i in range(4): b(f"  v_min_u32 v{36+i}, 0xfffffffe, v{36+i}")
    b(f"  buffer_store_dwordx4 v[36:39], v11, s[{SRD_D}:{SRD_D+3}], s{S_T+2} offen{SF}")
    stamp(b, "p3 stores issued")
    b(f"  s_and_b32 s{S_T+8}, s2, 15")
    arrive(b, 2, S_T + 8, label="x3")
    srd(b, SRD_T, P_W1, W1B)
    b(f"  s_cmp_lt_u32 s{S_W}, 4")
    b(f"  s_cbranch_scc1 p3_nodma")
    b(f"  s_cmp_eq_u32 s62, 0")
    b(f"  s_cbranch_scc1 p3_nodma")
    for n in range(2): loader_issue(b, V_LO, W1F())
    b.label("p3_nodma")

def gemm_core(b, c, pre, after_setup, after_prologue=None, posts=None):
    NB, NS = c.NB, c.NS
    acc = lambda nb: V_ACC + nb * 16
    VT = V_ACC + NB * 16
    VPR = VT + 32
    c.VT, c.VPR = VT, VPR
    c.vend = VPR + 4 * PR
    tf = lambda q: VT + (q % 8) * 4
    pr = lambda j: VPR + (j % PR) * 4
    FPI = 64
    KPI = FPI // NB
    def tread(q):
        ql = q % FPI
        lslot, within = ql // 16, ql % 16
        ks, nb = within // NB, within % NB
        off = lslot * STAGE + ks * 16 * c.rowb
        b(f"  ds_read_b64_tr_b16 {vr(tf(q),2)}, v{V_T+nb} offset:{off}")
        b(f"  ds_read_b64_tr_b16 {vr(tf(q)+2,2)}, v{V_T+nb} offset:{off+4*c.rowb}")
    def pload(j):
        b(f"  buffer_load_dwordx4 {vr(pr(j),4)}, v{V_P}, s[{SRD_P}:{SRD_P+3}], s{S_POFF} offen offset:{(j%4)*1024}{LF}")
        if j % 4 == 3: b(f"  s_add_u32 s{S_POFF}, s{S_POFF}, 4096")
    def mfma(q):
        nb = q % NB; j = q // NB; a = acc(nb)
        if "m16fake" in OPT:
            o = 8 * (j % 2)
            b(f"  v_mfma_f32_16x16x32_bf16 {vr(a+o,4)}, {vr(tf(q),4)}, {vr(pr(j),4)}, {vr(a+o,4)}")
            b(f"  v_mfma_f32_16x16x32_bf16 {vr(a+o+4,4)}, {vr(pr(j),4)}, {vr(tf(q),4)}, {vr(a+o+4,4)}")
            return
        if c.name == "g1":
            b(f"  v_mfma_f32_32x32x16_bf16 {vr(a,16)}, {vr(tf(q),4)}, {vr(pr(j),4)}, {vr(a,16)}")
        else:
            b(f"  v_mfma_f32_32x32x16_bf16 {vr(a,16)}, {vr(pr(j),4)}, {vr(tf(q),4)}, {vr(a,16)}")
    if "prioc" in OPT: b("  s_setprio 2")
    b(f"  s_mov_b32 s{S_POFF}, 0")
    S_EOFF = 18
    if "es" in OPT: b(f"  s_mov_b32 s{S_EOFF}, {3*4096}")
    b(f"  s_mov_b32 s{S_DELTA}, {4*STAGE}")
    b(f"  s_mov_b32 s{S_IT}, {NS//4 - 1}")
    if "es" in OPT:
        b(f"  s_mov_b32 s11, 200000")
        b.label(f"{pre}e0_poll")
        b(f"  buffer_load_dwordx4 {vr(pr(14),4)}, v{V_P}, s[{SRD_P}:{SRD_P+3}], s{S_EOFF} offen offset:2048 sc1")
        b(f"  s_waitcnt vmcnt(0)")
        b(f"  v_max3_u32 v16, v{pr(14)}, v{pr(14)+1}, v{pr(14)+2}")
        b(f"  v_max_u32 v16, v16, v{pr(14)+3}")
        b(f"  v_cmp_eq_u32 vcc, -1, v16")
        b(f"  s_sub_u32 s11, s11, 1")
        b(f"  s_cmp_eq_u32 s11, 0")
        b(f"  s_cbranch_scc1 {pre}e0_got")
        b(f"  s_cmp_lg_u64 vcc, 0")
        b(f"  s_cbranch_scc1 {pre}e0_poll")
        b.label(f"{pre}e0_got")
        b(f"  s_mov_b32 s11, 200000")
        b.label(f"{pre}e_poll")
        for j in range(PR - 2):
            if j % 4 == 0: b(f"  s_mov_b32 s{S_POFF}, {(j//4)*4096}")
            b(f"  buffer_load_dwordx4 {vr(pr(j),4)}, v{V_P}, s[{SRD_P}:{SRD_P+3}], s{S_POFF} offen offset:{(j%4)*1024} sc1")
        b(f"  s_waitcnt vmcnt(0)")
        sentinel_check(b, VPR, f"{pre}e", n=4 * (PR - 2))
        b(f"  s_mov_b32 s{S_POFF}, {3*4096}")
        after_setup()
    else:
        after_setup()
        for j in range(PR - 1): pload(j)
    if after_prologue: after_prologue()
    b("  s_barrier")
    for q in range(DQ): tread(q)
    def body(last):
        for q in range(FPI):
            j = q // NB
            qn = q + DQ
            do_read = not (last and qn >= FPI)
            do_pload = False
            if q % NB == 0:
                rem = KPI - 1 - j
                if (not last) or (j + PR - 1 < KPI):
                    b(f"  s_waitcnt vmcnt({PR-2})")
                    do_pload = True
                else:
                    b(f"  s_waitcnt vmcnt({min(PR-2, rem)})")
            if do_read and qn % 16 == 0:
                b("  s_barrier")
            if do_read and qn == FPI:
                for i in range(NB): b(f"  v_add_u32 v{V_T+i}, s{S_DELTA}, v{V_T+i}")
                b(f"  s_sub_u32 s{S_DELTA}, 0, s{S_DELTA}")
            if q % 2 == 0:
                left = min(DQ - 2, FPI - 2 - q) if last else DQ - 2
                b(f"  s_waitcnt lgkmcnt({2*left})")
            mfma(q)
            if do_pload: pload(j + PR - 1)
            if do_read: tread(qn)
    b.label(f"{pre}_loop")
    body(False)
    b(f"  s_sub_u32 s{S_IT}, s{S_IT}, 1")
    b(f"  s_cmp_lg_u32 s{S_IT}, 0")
    b(f"  s_cbranch_scc1 {pre}_loop")
    if posts is None:
        body(True)
        return
    F = [(q // NB, q % NB) for q in range(16)] + [(4 + r % 12, r // 12) for r in range(48)]
    def tread_f(q):
        j, nb = F[q]
        off = (j // 4) * STAGE + (j % 4) * 16 * c.rowb
        b(f"  ds_read_b64_tr_b16 {vr(tf(q),2)}, v{V_T+nb} offset:{off}")
        b(f"  ds_read_b64_tr_b16 {vr(tf(q)+2,2)}, v{V_T+nb} offset:{off+4*c.rowb}")
    for q in range(FPI):
        j, nb = F[q]
        qn = q + DQ
        first_use = (q < 16 and nb == 0) or (16 <= q < 28)
        if q == 0: b(f"  s_waitcnt vmcnt({PR-2})")
        elif first_use: b(f"  s_waitcnt vmcnt({min(PR-2, KPI - 1 - j)})")
        if q == 9: b("  s_barrier"); b("  s_barrier")
        if q == 13: b("  s_barrier")
        if q % 2 == 0:
            left = min(DQ - 2, FPI - 2 - q)
            b(f"  s_waitcnt lgkmcnt({2*left})")
        a = acc(nb)
        if c.name == "g1":
            b(f"  v_mfma_f32_32x32x16_bf16 {vr(a,16)}, {vr(tf(q),4)}, {vr(pr(j),4)}, {vr(a,16)}")
        else:
            b(f"  v_mfma_f32_32x32x16_bf16 {vr(a,16)}, {vr(pr(j),4)}, {vr(tf(q),4)}, {vr(a,16)}")
        if q == 0: pload(PR - 1)
        if qn < FPI: tread_f(qn)
        if q >= 28:
            blk, r = (q - 16) // 12 - 1, (q - 16) % 12
            fill = posts.get(blk, [])
            if fill and r >= 3:
                n = len(fill); per = -(-n // 9)
                for line in fill[(r - 3) * per:(r - 2) * per]: b(line)

def idle_w1(b):
    srd(b, SRD_PF, P_W1, W1B)
    b(f"  s_and_b32 s51, s50, 7")
    b(f"  s_mul_i32 s51, s51, {256*7168}")
    b(f"  s_lshr_b32 s52, s50, 3")
    b(f"  s_mul_i32 s52, s52, {4*7168}")
    b(f"  s_add_u32 s51, s51, s52")
    b(f"  s_add_u32 s51, s51, {128*7168}")
    b(f"  s_mov_b32 s52, 7")
    b.label("pf_w1b")
    for i in range(4): b(f"  buffer_load_dwordx4 {vr(V_DUMMY,4)}, v29, s[{SRD_PF}:{SRD_PF+3}], s51 offen offset:{1024*i}")
    b(f"  s_add_u32 s51, s51, 4096")
    b(f"  s_waitcnt vmcnt(4)")
    b(f"  s_sub_u32 s52, s52, 1")
    b(f"  s_cmp_lg_u32 s52, 0")
    b(f"  s_cbranch_scc1 pf_w1b")

def idle_w2(b):
    srd(b, SRD_PF, P_W2, W1B)
    if "idleko" in OPT and "idlesc" in OPT:
        b(f"  v_lshlrev_b32 v29, 7, v7")
        for m in range(IDLE_ROUNDS[0]):
            b(f"  s_add_u32 s51, s50, {256*m}")
            b(f"  s_lshr_b32 s52, s51, 5              ; chunk")
            b(f"  s_and_b32 s51, s51, 31")
            b(f"  s_lshl_b32 s51, s51, 13")
            b(f"  s_and_b32 s53, s52, 1")
            b(f"  s_mul_i32 s53, s53, {1792*4096}")
            b(f"  s_lshr_b32 s52, s52, 1")
            b(f"  s_lshl_b32 s52, s52, 18")
            b(f"  s_add_u32 s51, s51, s52")
            b(f"  s_add_u32 s51, s51, s53")
            b(f"  buffer_load_dword v230, v29, s[{SRD_PF}:{SRD_PF+3}], s51 offen")
            if m >= 1: b(f"  s_waitcnt vmcnt(1)")
        b(f"  s_waitcnt vmcnt(0)")
        return
    if "idleko" in OPT:
        b(f"  v_lshlrev_b32 v29, 4, v7")
        b(f"  s_lshl_b32 s51, s50, 10")
        b(f"  s_add_u32 s53, s51, {1792*4096}")
        b(f"  s_mov_b32 s52, 14")
        b.label("pf_w2")
        for i in range(2):
            b(f"  buffer_load_dwordx4 {vr(V_DUMMY,4)}, v29, s[{SRD_PF}:{SRD_PF+3}], s51 offen")
            b(f"  buffer_load_dwordx4 {vr(V_DUMMY,4)}, v29, s[{SRD_PF}:{SRD_PF+3}], s53 offen")
            b(f"  s_add_u32 s51, s51, {64*4096}")
            b(f"  s_add_u32 s53, s53, {64*4096}")
        b(f"  s_waitcnt vmcnt(4)")
        b(f"  s_sub_u32 s52, s52, 1")
        b(f"  s_cmp_lg_u32 s52, 0")
        b(f"  s_cbranch_scc1 pf_w2")
        b(f"  s_waitcnt vmcnt(0)")
        return
    if "idlesc" in OPT:
        b(f"  s_mul_i32 s51, s50, {W1B // 256}")
        b(f"  v_lshlrev_b32 v29, 7, v7")
        for i in range(7):
            b(f"  buffer_load_dword v230, v29, s[{SRD_PF}:{SRD_PF+3}], s51 offen")
            b(f"  s_add_u32 s51, s51, 8192")
            if i >= 1: b(f"  s_waitcnt vmcnt(1)")
        b(f"  s_waitcnt vmcnt(0)")
        return
    b(f"  s_mul_i32 s51, s50, {W1B // 256}")
    b(f"  s_mov_b32 s52, 14")
    b.label("pf_w2")
    for i in range(4): b(f"  buffer_load_dwordx4 {vr(V_DUMMY,4)}, v29, s[{SRD_PF}:{SRD_PF+3}], s51 offen offset:{1024*i}")
    b(f"  s_add_u32 s51, s51, 4096")
    b(f"  s_waitcnt vmcnt({0 if 'idlepace' in OPT else 4})")
    b(f"  s_sub_u32 s52, s52, 1")
    b(f"  s_cmp_lg_u32 s52, 0")
    b(f"  s_cbranch_scc1 pf_w2")
    b(f"  s_waitcnt vmcnt(0)")

def g1_gelu(b, c, blocks, accof, vaddr):
    K1 = -2.0 * 0.7978845608028654 * 1.4426950408889634
    K2 = K1 * 0.044715
    T = c.VPR
    b(f"  v_mov_b32 v{T}, {hex(f2u(K1))}")
    b(f"  v_mov_b32 v{T+1}, {hex(f2u(K1))}")
    b(f"  v_mov_b32 v{T+2}, {hex(f2u(K2))}")
    b(f"  v_mov_b32 v{T+3}, {hex(f2u(K2))}")
    b(f"  s_nop 7")
    W = T + 8
    for fb in blocks:
        a = accof(fb); t = W; o = W + 16 + 8 * (fb % 2)
        for h in range(0, 16, 2): b(f"  v_pk_mul_f32 {vr(t+h,2)}, {vr(a+h,2)}, {vr(a+h,2)}")
        for h in range(0, 16, 2): b(f"  v_pk_fma_f32 {vr(t+h,2)}, {vr(t+h,2)}, {vr(T+2,2)}, {vr(T,2)}")
        for h in range(0, 16, 2): b(f"  v_pk_mul_f32 {vr(t+h,2)}, {vr(t+h,2)}, {vr(a+h,2)}")
        for r in range(16): b(f"  v_exp_f32 v{t+r}, v{t+r}")
        for h in range(0, 16, 2): b(f"  v_pk_add_f32 {vr(t+h,2)}, {vr(t+h,2)}, 1.0 op_sel_hi:[1,0]")
        for r in range(16): b(f"  v_rcp_f32 v{t+r}, v{t+r}")
        for h in range(0, 16, 2): b(f"  v_pk_mul_f32 {vr(t+h,2)}, {vr(a+h,2)}, {vr(t+h,2)}")
        for i in range(4):
            b(f"  v_cvt_pk_bf16_f32 v{o+2*i}, v{t+4*i}, v{t+4*i+1}")
            b(f"  v_cvt_pk_bf16_f32 v{o+2*i+1}, v{t+4*i+2}, v{t+4*i+3}")
        for ip in range(2):
            oo = o + 4 * ip
            b(f"  s_mov_b32 s{S_TMP+1}, {(2*fb+ip)*1024}")
            b(f"  s_nop 0")
            b(f"  v_permlane32_swap_b32 v{oo}, v{oo+2}")
            b(f"  v_permlane32_swap_b32 v{oo+1}, v{oo+3}")
            b(f"  buffer_store_dwordx4 {vr(oo,4)}, v{vaddr}, s[{SRD_O}:{SRD_O+3}], s{S_TMP+1} offen{SF}")

def gelu_lines(fb, a, CT, t, o, vaddr):
    L = []
    for h in range(0, 16, 2): L.append(f"  v_pk_mul_f32 {vr(t+h,2)}, {vr(a+h,2)}, {vr(a+h,2)}")
    for h in range(0, 16, 2): L.append(f"  v_pk_fma_f32 {vr(t+h,2)}, {vr(t+h,2)}, {vr(CT+2,2)}, {vr(CT,2)}")
    for h in range(0, 16, 2): L.append(f"  v_pk_mul_f32 {vr(t+h,2)}, {vr(t+h,2)}, {vr(a+h,2)}")
    for r in range(16): L.append(f"  v_exp_f32 v{t+r}, v{t+r}")
    for h in range(0, 16, 2): L.append(f"  v_pk_add_f32 {vr(t+h,2)}, {vr(t+h,2)}, 1.0 op_sel_hi:[1,0]")
    for r in range(16): L.append(f"  v_rcp_f32 v{t+r}, v{t+r}")
    for h in range(0, 16, 2): L.append(f"  v_pk_mul_f32 {vr(t+h,2)}, {vr(a+h,2)}, {vr(t+h,2)}")
    for i in range(4):
        L.append(f"  v_cvt_pk_bf16_f32 v{o+2*i}, v{t+4*i}, v{t+4*i+1}")
        L.append(f"  v_cvt_pk_bf16_f32 v{o+2*i+1}, v{t+4*i+2}, v{t+4*i+3}")
    if "es" in OPT:
        for i in range(8): L.append(f"  v_min_u32 v{o+i}, 0xfffffffe, v{o+i}")
    for ip in range(2):
        oo = o + 4 * ip
        L.append(f"  s_mov_b32 s{S_TMP+1}, {(2*fb+ip)*1024}")
        L.append(f"  s_nop 1")
        L.append(f"  v_permlane32_swap_b32 v{oo}, v{oo+2}")
        L.append(f"  v_permlane32_swap_b32 v{oo+1}, v{oo+3}")
        L.append(f"  buffer_store_dwordx4 {vr(oo,4)}, v{vaddr}, s[{SRD_O}:{SRD_O+3}], s{S_TMP+1} offen{SF}")
    return L

def g1(b):
    c = g1_cfg()
    b(f"  s_cmp_eq_u32 s62, 0")
    b(f"  s_cbranch_scc1 g1_inactive")
    srd(b, SRD_P, P_WS, 4 << 20, WS_LN2)
    srd(b, SRD_T, P_W1, W1B)
    srd(b, SRD_O, P_WS, U_BYTES, WS_U)
    srd(b, SRD_X, P_B1, 3584 * 2)
    b(f"  s_cmp_ge_u32 s{S_W}, 4")
    b(f"  s_cbranch_scc1 g1_loader")
    lane_geom(b)
    b(f"  s_lshl_b32 s{S_TMP}, s61, 2")
    b(f"  s_add_u32 s{S_TMP}, s{S_TMP}, s{S_W}            ; dblk")
    b(f"  s_lshl_b32 s{S_TMP+2}, s{S_TMP}, 17")
    b(f"  v_lshlrev_b32 v10, 4, v7")
    b(f"  v_add_u32 v{V_P}, s{S_TMP+2}, v10")
    b(f"  s_lshl_b32 s{S_TMP+1}, s60, 8       ; f0*2")
    b(f"  v_lshlrev_b32 v11, 3, v9")
    b(f"  v_add_u32 v11, s{S_TMP+1}, v11")
    BV = 192
    for fb in range(4):
        for i in range(4):
            b(f"  buffer_load_dwordx2 {vr(BV+2*(4*fb+i),2)}, v11, s[{SRD_X}:{SRD_X+3}], 0 offen offset:{64*fb+16*i}")
    b(f"  v_lshl_add_u32 v20, v9, 3, v18")
    b(f"  v_lshlrev_b32 v20, 8, v20")
    b(f"  v_lshl_add_u32 v20, v18, 6, v20")
    b(f"  v_lshl_add_u32 v20, v19, 5, v20")
    b(f"  v_lshl_add_u32 v{V_T}, v22, 3, v20")
    for fb in range(1, 4):
        b(f"  v_xor_b32 v{V_T+fb}, {64*fb}, v{V_T}")
    b(f"  s_mul_i32 s{S_TMP+2}, s{S_TMP}, 229376")
    b(f"  s_lshl_b32 s{S_TMP+1}, s60, 13")
    b(f"  s_add_u32 s{S_TMP+1}, s{S_TMP+1}, s{S_TMP+2}")
    b(f"  v_add_u32 v28, s{S_TMP+1}, v10")
    b(f"  s_waitcnt vmcnt(0)")
    for fb in range(4):
        for i in range(4):
            bv = BV + 2 * (4 * fb + i); a = V_ACC + fb * 16 + 4 * i
            b(f"  v_lshlrev_b32 v{a}, 16, v{bv}")
            b(f"  v_and_b32 v{a+1}, 0xffff0000, v{bv}")
            b(f"  v_lshlrev_b32 v{a+2}, 16, v{bv+1}")
            b(f"  v_and_b32 v{a+3}, 0xffff0000, v{bv+1}")
    def w3():
        wait(b, 2, 16, "x3c")
        stamp(b, "x3 released")
        stamp(b, "c:g1 start")
    SKEW = "skew" in OPT
    if SKEW:
        K1 = -2.0 * 0.7978845608028654 * 1.4426950408889634
        K2 = K1 * 0.044715
        CT, GT, GO = 192, 196, 212
        for i, kv in enumerate((K1, K1, K2, K2)): b(f"  v_mov_b32 v{CT+i}, {hex(f2u(kv))}")
        posts = {fb: gelu_lines(fb, V_ACC + 16 * fb, CT, GT, GO, 28) for fb in range(3)}
        gemm_core(b, c, "g1", w3, None, posts)
    else:
        gemm_core(b, c, "g1", w3)
    stamp(b, "c:g1 end")
    stamp(b, "g1 main done")
    E8 = "epi8" in OPT
    XO = 4 * STAGE
    if E8:
        b(f"  s_lshl_b32 s{S_TMP+1}, s{S_W}, 13")
        b(f"  s_add_u32 s{S_TMP+1}, s{S_TMP+1}, {XO}")
        b(f"  v_add_u32 v12, s{S_TMP+1}, v10")
        b(f"  s_nop 9")
        for k in range(8): b(f"  ds_write_b128 v12, {vr(V_ACC+32+4*k,4)} offset:{1024*k}")
        b(f"  s_waitcnt lgkmcnt(0)")
        b(f"  s_barrier")
    if SKEW:
        b(f"  s_nop 9")
        for line in gelu_lines(3, V_ACC + 48, CT, GT, GO, 28): b(line)
    else:
        g1_gelu(b, c, range(2) if E8 else range(4), lambda fb: V_ACC + fb * 16, 28)
    stamp(b, "g1 stores issued")
    b(f"  s_waitcnt vmcnt(0)")
    b(f"  s_branch g1_join")
    b.label("g1_loader")
    b(f"  s_sub_u32 s50, s{S_W}, 4")
    b(f"  s_lshl_b32 s49, s50, 10")
    b(f"  s_add_u32 s{S_N+1}, s49, {R*STAGE}")
    b(f"  s_barrier                      ; matches the barrier inside wait(x3)")
    loader_loop(b, c.NS, "g1", W1F())
    stamp(b, "g1 main done")
    g2_prologue_loader(b)
    if "epi8" in OPT:
        b(f"  s_sub_u32 s{S_TMP}, s{S_W}, 4")
        b(f"  s_lshl_b32 s{S_TMP+1}, s{S_TMP}, 13")
        b(f"  s_add_u32 s{S_TMP+1}, s{S_TMP+1}, {4*STAGE}")
        b(f"  v_lshlrev_b32 v10, 4, v7")
        b(f"  v_add_u32 v12, s{S_TMP+1}, v10")
        b(f"  s_lshl_b32 s{S_TMP+1}, s61, 2")
        b(f"  s_add_u32 s{S_TMP}, s{S_TMP}, s{S_TMP+1}      ; dblk")
        b(f"  s_mul_i32 s{S_TMP+2}, s{S_TMP}, 229376")
        b(f"  s_lshl_b32 s{S_TMP+1}, s60, 13")
        b(f"  s_add_u32 s{S_TMP+1}, s{S_TMP+1}, s{S_TMP+2}")
        b(f"  v_add_u32 v28, s{S_TMP+1}, v10")
        b(f"  s_barrier")
        for k in range(8): b(f"  ds_read_b128 {vr(V_ACC+4*k,4)}, v12 offset:{1024*k}")
        b(f"  s_waitcnt lgkmcnt(0)")
        g1_gelu(b, c, range(2, 4), lambda fb: V_ACC + (fb - 2) * 16, 28)
        b(f"  s_waitcnt vmcnt(0)")
    stamp(b, "g1 stores issued")
    b.label("g1_join")
    if SK():
        b(f"  s_cmp_ge_u32 s60, 14")
        b(f"  s_cselect_b32 s18, 1, 0")
        b(f"  s_lshl_b32 s10, s61, 1")
        b(f"  s_add_u32 s18, s18, s10")
        arrive(b, 3, 18, label="x4", drained=True)
    else:
        arrive(b, 3, 61, label="x4", drained=True)
    b(f"  s_branch g2_start")
    b.label("g1_inactive")
    if "nopf" not in OPT:
        b(f"  s_sub_u32 s50, s2, 224")
        b(f"  s_lshl_b32 s50, s50, 3")
        b(f"  s_add_u32 s50, s50, s{S_W}")
        b(f"  v_lshlrev_b32 v29, 4, v7")
        if "noidle" not in OPT: idle_w2(b)
    if "es" in OPT: wait(b, 2, 16, "x3i")
    b(f"  s_cmp_lt_u32 s{S_W}, 4")
    b(f"  s_cbranch_scc1 g2_start_inactive")
    g2_prologue_loader(b)
    b.label("g2_start_inactive")
    return c

def g2_prologue_loader(b):
    g2_ids(b)
    srd(b, SRD_T, P_W2, W1B)
    g2_loader_addr(b)
    loader_init(b, (64 if SK() else 128) * 4096)
    for n in range(2): loader_issue(b, V_LO, W2F())

def g2_sk(b):
    c = g1_cfg(); c.name = "g2"; c.NS = 28
    b.label("g2_start")
    g2_ids(b)
    srd(b, SRD_P, P_WS, U_BYTES, WS_U)
    srd(b, SRD_O, P_OUT, 4 << 20)
    srd(b, SRD_X, P_B2, 2048 * 2)
    srd(b, SRD_Y, P_WS, 4 << 20, WS_H)
    b(f"  s_cmp_ge_u32 s{S_W}, 4")
    b(f"  s_cbranch_scc1 g2_loader")
    lane_geom(b)
    b(f"  s_lshl_b32 s{S_TMP}, s{S_TILE_A}, 2")
    b(f"  s_add_u32 s{S_TMP}, s{S_TMP}, s{S_W}        ; dblk")
    b(f"  s_mul_i32 s{S_TMP+2}, s{S_TMP}, 229376")
    b(f"  s_mul_i32 s{S_TMP+3}, s19, {112*1024}       ; k half")
    b(f"  s_add_u32 s{S_TMP+2}, s{S_TMP+2}, s{S_TMP+3}")
    b(f"  v_lshlrev_b32 v10, 4, v7")
    b(f"  v_add_u32 v{V_P}, s{S_TMP+2}, v10")
    b(f"  s_lshl_b32 s{S_TMP+1}, s{S_TILE_B}, 7")
    b(f"  s_lshl_b32 s{S_TMP+3}, s19, 6")
    b(f"  s_add_u32 s{S_TMP+1}, s{S_TMP+1}, s{S_TMP+3}")
    b(f"  v_add_u32 v11, s{S_TMP+1}, v8              ; s0 + s'")
    b(f"  v_lshlrev_b32 v16, 1, v11")
    for sb in range(2):
        b(f"  buffer_load_ushort v{12+sb}, v16, s[{SRD_X}:{SRD_X+3}], 0 offen offset:{64*sb}")
    b(f"  v_lshlrev_b32 v17, 11, v11")
    b(f"  v_lshl_add_u32 v17, v9, 5, v17")
    b(f"  s_lshl_b32 s{S_TMP+2}, s{S_TMP}, 6")
    b(f"  v_add_u32 v28, s{S_TMP+2}, v17")
    HV = 192
    b(f"  v_lshl_add_u32 v20, v9, 3, v18")
    b(f"  v_lshlrev_b32 v20, 8, v20")
    b(f"  v_lshl_add_u32 v20, v18, 6, v20")
    b(f"  v_lshl_add_u32 v20, v19, 5, v20")
    b(f"  v_lshl_add_u32 v{V_T}, v22, 3, v20")
    b(f"  s_cmp_eq_u32 s19, 0")
    b(f"  s_cselect_b32 s{S_TMP+3}, 128, 0")
    b(f"  v_xor_b32 v{V_T}, s{S_TMP+3}, v{V_T}")
    for fb in range(1, 4):
        b(f"  v_xor_b32 v{V_T+fb}, {64*fb}, v{V_T}")
    b(f"  s_lshl_b32 s{S_TMP+1}, s{S_W}, 12")
    b(f"  s_lshl_b32 s{S_TMP+2}, s2, 14")
    b(f"  s_add_u32 s{S_TMP+2}, s{S_TMP+2}, s{S_TMP+1}")
    b(f"  v_add_u32 v29, s{S_TMP+2}, v10")
    b(f"  s_xor_b32 s{S_TMP+2}, s2, 1")
    b(f"  s_lshl_b32 s{S_TMP+2}, s{S_TMP+2}, 14")
    b(f"  s_add_u32 s{S_TMP+2}, s{S_TMP+2}, s{S_TMP+1}")
    b(f"  v_add_u32 v30, s{S_TMP+2}, v10")
    for i in range(64): b(f"  v_mov_b32 v{V_ACC+i}, 0")
    def w4():
        b(f"  s_lshl_b32 s18, s{S_TILE_A}, 1")
        b(f"  s_add_u32 s18, s18, s19")
        wait(b, 3, 14, "x4c", single_sreg=18)
        stamp(b, "x4 released")
        stamp(b, "c:g2 start")
    def hloads():
        for sb in range(2):
            b(f"  s_mov_b32 s{S_TMP+1}, {sb*65536}")
            b(f"  buffer_load_dwordx4 {vr(HV+8*sb,4)}, v28, s[{SRD_Y}:{SRD_Y+3}], s{S_TMP+1} offen{LF}")
            b(f"  buffer_load_dwordx4 {vr(HV+8*sb+4,4)}, v28, s[{SRD_Y}:{SRD_Y+3}], s{S_TMP+1} offen offset:16{LF}")
    srd_later = True
    def send_lines(k):
        T0 = 208 + 8 * k; a = V_ACC + 16 * k
        L = [f"  v_cvt_pk_bf16_f32 v{T0+i}, v{a+2*i}, v{a+2*i+1}" for i in range(8)]
        L += [f"  v_min_u32 v{T0+i}, 0xfffffffe, v{T0+i}" for i in range(8)]
        L += [f"  buffer_store_dwordx4 {vr(T0+4*p,4)}, v30, s[{SRD_X}:{SRD_X+3}], 0 offen offset:{(2*k+p)*1024}{SF}" for p in range(2)]
        return L
    def hloads2():
        hloads()
    if "skew" in OPT:
        def w4x():
            w4()
        def hl():
            hloads()
        b(f"  s_waitcnt vmcnt(0)")
        srd(b, SRD_X, P_WS, 4 << 20, WS_XCH)
        gemm_core(b, c, "g2", w4, hloads, {0: send_lines(0), 1: send_lines(1)})
    else:
        gemm_core(b, c, "g2", w4, hloads)
    stamp(b, "c:g2 end")
    stamp(b, "g2 main done")
    T = c.VT
    if "skew" not in OPT:
        srd(b, SRD_X, P_WS, 4 << 20, WS_XCH)
        b(f"  s_nop 9")
        for k in range(2):
            for line in send_lines(k): b(line)
    KEEP = V_ACC + 32
    RX = c.VPR
    b(f"  s_mov_b32 s11, 200000")
    b.label("g2x_poll")
    for k in range(4):
        b(f"  buffer_load_dwordx4 {vr(RX+4*k,4)}, v29, s[{SRD_X}:{SRD_X+3}], 0 offen offset:{k*1024} sc1")
    b(f"  s_waitcnt vmcnt(0)")
    sentinel_check(b, RX, "g2x", n=16)
    stamp(b, "g2 x landed")
    b(f"  s_mov_b32 s{S_TMP}, 0xffff0000")
    for blk in range(2):
        for i in range(8):
            a = KEEP + blk * 16 + 2 * i; r = RX + 8 * blk + i
            b(f"  v_lshlrev_b32 v16, 16, v{r}")
            b(f"  v_and_b32 v17, s{S_TMP}, v{r}")
            b(f"  v_add_f32 v{a}, v{a}, v16")
            b(f"  v_add_f32 v{a+1}, v{a+1}, v17")
    for sb in range(2):
        b(f"  v_lshlrev_b32 v{12+sb}, 16, v{12+sb}")
    OL = "outlds" in OPT
    if OL:
        OS = 4 * STAGE
        b(f"  v_mul_u32_u24 v14, 272, v8           ; s' * 272")
        b(f"  v_lshl_add_u32 v14, v9, 5, v14       ; + h*32")
        b(f"  s_lshl_b32 s{S_TMP+1}, s{S_W}, 6")
        b(f"  s_add_u32 s{S_TMP+1}, s{S_TMP+1}, {OS}")
        b(f"  v_add_u32 v14, s{S_TMP+1}, v14")
    for sb in range(2):
        for half in range(2):
            o = T + 4 * ((sb * 2 + half) % 2) if not OL else T + 16 + 4 * (sb * 2 + half)
            for dd in range(4):
                a = KEEP + sb * 16 + half * 8 + 2 * dd
                hv = HV + 8 * sb + 4 * half + dd
                t0 = T + 8 + 2 * dd if OL else T + 8 + 4 * dd
                b(f"  v_lshlrev_b32 v{t0}, 16, v{hv}")
                b(f"  v_and_b32 v{t0+1}, s{S_TMP}, v{hv}")
                b(f"  v_pk_add_f32 {vr(t0,2)}, {vr(t0,2)}, {vr(a,2)}")
                b(f"  v_add_f32 v{t0}, v{t0}, v{12+sb}")
                b(f"  v_add_f32 v{t0+1}, v{t0+1}, v{12+sb}")
                b(f"  v_cvt_pk_bf16_f32 v{o+dd}, v{t0}, v{t0+1}")
            if OL:
                b(f"  ds_write_b128 v14, {vr(o,4)} offset:{sb*32*272 + 16*half}")
            else:
                b(f"  s_mov_b32 s{S_TMP+1}, {sb*65536}")
                if "noout" not in OPT: b(f"  buffer_store_dwordx4 {vr(o,4)}, v28, s[{SRD_O}:{SRD_O+3}], s{S_TMP+1} offen offset:{16*half}{OF()}")
    if OL:
        b(f"  v_lshrrev_b32 v15, 4, v7")
        b(f"  s_lshl_b32 s{S_TMP+1}, s{S_W}, 4")
        b(f"  v_add_u32 v15, s{S_TMP+1}, v15          ; row (i = 0)")
        b(f"  v_and_b32 v16, 15, v7")
        b(f"  v_mul_u32_u24 v14, 272, v15")
        b(f"  v_lshl_add_u32 v14, v16, 4, v14")
        b(f"  v_add_u32 v14, {OS}, v14")
        b(f"  s_lshl_b32 s{S_TMP+1}, s{S_TILE_B}, 7")
        b(f"  s_lshl_b32 s{S_TMP+2}, s19, 6")
        b(f"  s_add_u32 s{S_TMP+1}, s{S_TMP+1}, s{S_TMP+2}")
        b(f"  v_add_u32 v15, s{S_TMP+1}, v15")
        b(f"  v_lshlrev_b32 v15, 11, v15")
        b(f"  v_lshl_add_u32 v15, v16, 4, v15")
        b(f"  s_lshl_b32 s{S_TMP+1}, s{S_TILE_A}, 8")
        b(f"  v_add_u32 v15, s{S_TMP+1}, v15")
        b(f"  s_waitcnt lgkmcnt(0)")
        b(f"  s_barrier")
        for i in range(4): b(f"  ds_read_b128 {vr(T+4*i,4)}, v14 offset:{i*4*272}")
        for i in range(4):
            b(f"  s_waitcnt lgkmcnt({3-i})")
            b(f"  s_mov_b32 s{S_TMP+1}, {i*4*2048}")
            b(f"  buffer_store_dwordx4 {vr(T+4*i,4)}, v15, s[{SRD_O}:{SRD_O+3}], s{S_TMP+1} offen{OF()}")
    stamp(b, "g2 stores issued")
    b(f"  s_branch g2_done")
    b.label("g2_loader")
    b(f"  s_barrier                      ; matches the barrier inside wait(x4)")
    loader_loop(b, c.NS, "g2", W2F())
    b.label("g2_done")

def g2(b):
    if SK(): return g2_sk(b)
    c = g2_cfg()
    b.label("g2_start")
    g2_ids(b)
    srd(b, SRD_P, P_WS, U_BYTES, WS_U)
    srd(b, SRD_O, P_OUT, 4 << 20)
    srd(b, SRD_X, P_B2, 2048 * 2)
    srd(b, SRD_Y, P_WS, 4 << 20, WS_H)
    b(f"  s_cmp_ge_u32 s{S_W}, 4")
    b(f"  s_cbranch_scc1 g2_loader")
    lane_geom(b)
    b(f"  s_lshl_b32 s{S_TMP}, s{S_TILE_A}, 2")
    b(f"  s_add_u32 s{S_TMP}, s{S_TMP}, s{S_W}        ; dblk")
    b(f"  s_mul_i32 s{S_TMP+2}, s{S_TMP}, 229376")
    b(f"  v_lshlrev_b32 v10, 4, v7")
    b(f"  v_add_u32 v{V_P}, s{S_TMP+2}, v10")
    b(f"  s_lshl_b32 s{S_TMP+1}, s{S_TILE_B}, 6       ; s0")
    b(f"  v_add_u32 v11, s{S_TMP+1}, v8              ; s0 + s'")
    b(f"  v_lshlrev_b32 v16, 1, v11")
    for sb in range(2):
        b(f"  buffer_load_ushort v{12+sb}, v16, s[{SRD_X}:{SRD_X+3}], 0 offen offset:{64*sb}")
    b(f"  v_lshlrev_b32 v17, 11, v11")
    b(f"  v_lshl_add_u32 v17, v9, 5, v17")
    b(f"  s_lshl_b32 s{S_TMP+2}, s{S_TMP}, 6")
    b(f"  v_add_u32 v28, s{S_TMP+2}, v17")
    HV = 160
    b(f"  v_lshl_add_u32 v20, v9, 3, v18            ; row")
    b(f"  v_bfe_u32 v21, v18, 1, 1")
    b(f"  v_lshlrev_b32 v20, 7, v20")
    b(f"  v_lshl_add_u32 v20, v21, 6, v20")
    b(f"  v_lshl_add_u32 v20, v19, 5, v20")
    b(f"  v_lshl_add_u32 v{V_T}, v22, 3, v20")
    b(f"  v_xor_b32 v{V_T+1}, 64, v{V_T}")
    for i in range(32): b(f"  v_mov_b32 v{V_ACC+i}, 0")
    def w4():
        wait(b, 3, 28, "x4c", single_sreg=S_TILE_A)
        stamp(b, "x4 released")
        stamp(b, "c:g2 start")
    def hloads():
        for sb in range(2):
            b(f"  s_mov_b32 s{S_TMP+1}, {sb*65536}")
            b(f"  buffer_load_dwordx4 {vr(HV+8*sb,4)}, v28, s[{SRD_Y}:{SRD_Y+3}], s{S_TMP+1} offen{LF}")
            b(f"  buffer_load_dwordx4 {vr(HV+8*sb+4,4)}, v28, s[{SRD_Y}:{SRD_Y+3}], s{S_TMP+1} offen offset:16{LF}")
    gemm_core(b, c, "g2", w4, hloads)
    stamp(b, "c:g2 end")
    stamp(b, "g2 main done")
    T = c.VT
    b(f"  s_mov_b32 s{S_TMP}, 0xffff0000")
    for sb in range(2):
        b(f"  v_lshlrev_b32 v{12+sb}, 16, v{12+sb}")
    b(f"  s_nop 9")
    for sb in range(2):
        for half in range(2):
            o = T + 4 * ((sb * 2 + half) % 2)
            for dd in range(4):
                a = V_ACC + sb * 16 + half * 8 + 2 * dd
                hv = HV + 8 * sb + 4 * half + dd
                t0 = T + 8 + 4 * dd
                b(f"  v_cvt_pk_bf16_f32 v{t0}, v{a}, v{a+1}")
                b(f"  v_and_b32 v{t0+1}, s{S_TMP}, v{t0}")
                b(f"  v_lshlrev_b32 v{t0}, 16, v{t0}")
                b(f"  v_add_f32 v{t0}, v{t0}, v{12+sb}")
                b(f"  v_add_f32 v{t0+1}, v{t0+1}, v{12+sb}")
                b(f"  v_cvt_pk_bf16_f32 v{t0}, v{t0}, v{t0+1}")
                b(f"  v_and_b32 v{t0+1}, s{S_TMP}, v{t0}")
                b(f"  v_lshlrev_b32 v{t0}, 16, v{t0}")
                b(f"  v_lshlrev_b32 v{t0+2}, 16, v{hv}")
                b(f"  v_and_b32 v{t0+3}, s{S_TMP}, v{hv}")
                b(f"  v_add_f32 v{t0}, v{t0}, v{t0+2}")
                b(f"  v_add_f32 v{t0+1}, v{t0+1}, v{t0+3}")
                b(f"  v_cvt_pk_bf16_f32 v{o+dd}, v{t0}, v{t0+1}")
            b(f"  s_mov_b32 s{S_TMP+1}, {sb*65536}")
            b(f"  buffer_store_dwordx4 {vr(o,4)}, v28, s[{SRD_O}:{SRD_O+3}], s{S_TMP+1} offen offset:{16*half}")
    stamp(b, "g2 stores issued")
    b(f"  s_branch g2_done")
    b.label("g2_loader")
    b(f"  s_barrier                      ; matches the barrier inside wait(x4)")
    loader_loop(b, c.NS, "g2", W2F())
    b.label("g2_done")

def build():
    NAME = "sequential_preLN__spectral_gfnet__mixer_token_mlp__prompt"
    hdr = open(f"cdna_kernels/{NAME}.s.ref").read().split("; Override launch")[0]
    K = NAME + "_kernel"
    b = B()
    b(hdr.rstrip("\n"))
    b(f"; @launch grid=(256,1,1) block=(512,1,1) lds={LDS_TOTAL}")
    b('.amdgcn_target "amdgcn-amd-amdhsa--gfx950"\n.text')
    b(f".globl {K}\n.p2align 8\n.type {K},@function\n{K}:")
    b(f"  s_cmp_ge_u32 s2, 256\n  s_cbranch_scc1 k_exit")
    if "stamp" in OPT: b("  v_mov_b32 v231, 0")
    stamp(b, "entry")
    b(f"  s_load_dwordx4 s[{P_X}:{P_X+3}], s[0:1], 0        ; x, w_r")
    b(f"  s_load_dwordx2 s[{P_WI}:{P_WI+1}], s[0:1], 16")
    b(f"  s_load_dwordx2 s[{P_W1}:{P_W1+1}], s[0:1], 32")
    b(f"  s_load_dwordx4 s[{P_B1}:{P_B1+3}], s[0:1], 40     ; b1, w2")
    b(f"  s_load_dwordx4 s[{P_B2}:{P_B2+3}], s[0:1], 56     ; b2, out")
    b(f"  s_load_dwordx4 s[{P_DBG}:{P_DBG+3}], s[0:1], 72")
    b(f"  v_lshrrev_b32 v6, 6, v0")
    b(f"  v_and_b32 v7, 63, v0        ; lane")
    b(f"  v_readfirstlane_b32 s{S_W}, v6")
    b(f"  v_and_b32 v8, 15, v7          ; c")
    b(f"  v_lshrrev_b32 v9, 4, v7       ; g")
    b(f"  s_waitcnt lgkmcnt(0)")
    srd(b, SRD_CNT, P_WS, 65536, WS_CNT)
    p1(b)
    p2_setup(b)
    wait(b, 0, 16, "x1c")
    stamp(b, "x1 released")
    p2_main(b)
    p3_setup(b)
    if SENT2(): b("  s_barrier")
    else: wait(b, 1, 16, "x2c")
    stamp(b, "x2 released")
    p3_main(b)
    g1(b)
    g2(b)
    b(f"  s_waitcnt vmcnt(0)")
    stamp(b, "end")
    stamp_flush(b)
    b("k_exit:\n  s_endpgm")
    b(kd(K, 240, sgpr=102))
    return b.text()

if __name__ == "__main__":
    out = sys.argv[1]
    OPT.update(sys.argv[2:])
    if "lfplain" not in OPT: LF = " sc1"
    for o in sys.argv[2:]:
        if o.startswith("ir="): IDLE_ROUNDS[0] = int(o[3:])
        if o.startswith("pfn="): PFN[:] = [int(c) for c in o[4:].split(",")]
    gemm.OPT.update(sys.argv[2:])
    t = build()
    open(out, "w").write(t)
    rep = check_text(t)
    print("\n".join(rep) if rep else "no hazards found", "| stamps:", nstamp[0])
```

```python
import sys
from asmlib import *
import gemm, fft
from gemm import (srd, f2u, WS_X1, WS_X2, WS_H, WS_LN2, WS_U, U_BYTES, S_W, R, STAGE, PR, DQ,
                  V_P, V_T, V_ACC, S_POFF, S_IT, S_DELTA, SRD_P, SRD_T, SRD_O, SRD_X, SRD_Y, S_TILE_A, S_TILE_B, S_TMP,
                  g1_cfg, g2_cfg, lane_geom)
from fft import sincos, wave_reduce, ln_finish, layernorm16, cmul_pk, gmat, MF32, MF16

OPT = set()
N7 = [0]
IDLE_ROUNDS = [7]
WPN = [0]
PFN = [0, 4, 0, 4]
WS_CNT = 30 << 20
WS_STAMP = 31 << 20
WS_WP = 32 << 20
WS_XCH = 24 << 20
W1B = 2048 * 3584 * 2
WB = 2048 * 1026

P_X, P_WR, P_WI, P_W1, P_B1, P_W2, P_B2, P_OUT, P_DBG, P_WS = 64, 66, 68, 70, 72, 74, 76, 78, 80, 82
SRD_CNT = 12
S_T = 46
SRD_A, SRD_B, SRD_C, SRD_D = 24, 28, 32, 36
SRD_PF = 56
S_STAMP = 84
SF = " sc1"
LF = ""

L1_M1, L1_M2, L1_TW, L1_EX = 0, 4096, 8192, 16384
L2_F = 32768; L2_X = L2_F + 2048; L2_W = L2_X + 16 * 1040
L3_M3 = 98304; L3_M4 = L3_M3 + 4096; L3_TW = L3_M3 + 8192; L3_EX = L3_M3 + 16384
L3_LN = L3_EX + 16384; L3_RS = 2624
LDS_TOTAL = L3_LN + 8 * L3_RS
assert LDS_TOTAL <= 163840

STAMPS = ["entry", "p1 x landed", "p1 stores issued", "p1 arrived", "x1 released", "p2 x landed", "p2 stores issued",
          "x2 released", "p3 x2 landed", "p3 stores issued", "x3 released", "g1 main done", "g1 stores issued", "x4 released",
          "g2 main done", "g2 stores issued", "end", "x1 drained", "x2 drained", "x3 drained", "x4 drained", "p1 tables done", "p1 ln done", "p1 fft done", "p3 ifft done", "p3 ln done", "c:g1 start", "c:g1 end", "c:g2 start", "c:g2 end", "g2 x landed", "p2 w landed"]
nstamp = [len(STAMPS)]
SENT = lambda: "bar" not in OPT
SENT2 = lambda: "bar" not in OPT or "sent2" in OPT
SK = lambda: "nosk" not in OPT
W1F = lambda: " nt" if "ntw1" in OPT else ""
W2F = lambda: " nt" if "ntw2" in OPT else ""
XF = lambda: " nt" if ("ntx" in OPT or "ntx1" in OPT) else ""
OF = lambda: " sc1" if "outsc1" in OPT else (" nt" if "outnt" in OPT else "")
WF = lambda: " nt" if ("ntx" in OPT or "ntw" in OPT) else ""
L_XS = 69632
def stamp(b, name):
    if "stamp" not in OPT: return
    i = STAMPS.index(name)
    op = "s_memtime" if name.startswith("c:") else "s_memrealtime"
    b(f"  {op} s[{S_STAMP}:{S_STAMP+1}]   ; stamp {i}: {name}")
    b(f"  s_waitcnt lgkmcnt(0)")
    b(f"  v_writelane_b32 v231, s{S_STAMP}, {i}")

def stamp_flush(b):
    if "stamp" not in OPT: return
    if "dbgmax" in OPT:
        SEL = [1, 23, 2, 17, 3, 4, 5, 6, 18, 7, 8, 9, 19, 10]
        srd(b, 24, P_DBG, 256)
        b(f"  v_readlane_b32 s46, v231, 0")
        b(f"  s_sub_u32 s47, 0, s46")
        b(f"  v_mov_b32 v3, 0")
        b(f"  v_writelane_b32 v3, s47, 0")
        b(f"  v_writelane_b32 v3, s46, 15")
        for i, st in enumerate(SEL):
            b(f"  v_readlane_b32 s46, v231, {st}")
            b(f"  s_nop 3")
            b(f"  v_writelane_b32 v3, s46, {i+1}")
        b(f"  v_lshlrev_b32 v2, 2, v7")
        b(f"  s_mov_b64 s[48:49], exec")
        b(f"  s_mov_b64 exec, 0xffff")
        b(f"  buffer_atomic_umax v3, v2, s[24:27], 0 offen sc1")
        b(f"  s_mov_b64 exec, s[48:49]")
        return
    if "dbgtime" in OPT:
        b(f"  s_cmp_lg_u32 s2, 100")
        b(f"  s_cbranch_scc1 dbg_skip")
        b(f"  s_cmp_lg_u32 s{S_W}, 0")
        b(f"  s_cbranch_scc1 dbg_skip")
        srd(b, 24, P_DBG, 256)
        b(f"  v_readlane_b32 s46, v231, 0")
        b(f"  s_nop 1")
        b(f"  v_subrev_u32 v3, s46, v231")
        b(f"  v_lshlrev_b32 v2, 2, v7")
        b(f"  v_subrev_u32 v2, 4, v2")
        b(f"  s_mov_b64 s[48:49], exec")
        b(f"  s_mov_b64 exec, 0x1fffe")
        b(f"  buffer_store_dword v3, v2, s[24:27], 0 offen")
        b(f"  s_mov_b64 exec, s[48:49]")
        b.label("dbg_skip")
        return
    srd(b, 24, P_WS, 1 << 20, WS_STAMP)
    b(f"  s_lshl_b32 s46, s2, 3")
    b(f"  s_add_u32 s46, s46, s{S_W}")
    b(f"  s_lshl_b32 s46, s46, 7            ; (wg*8+wave)*128")
    b(f"  v_lshlrev_b32 v2, 2, v7")
    b(f"  s_mov_b64 s[48:49], exec")
    b(f"  s_mov_b64 exec, 0xffffffff")
    b(f"  buffer_store_dword v231, v2, s[24:27], s46 offen")
    b(f"  s_mov_b64 exec, s[48:49]")

def arrive(b, bar, shard_sreg, first=False, label="", drained=False):
    if not drained: b(f"  s_waitcnt vmcnt(0)")
    stamp(b, f"x{bar+1} drained")
    b(f"  s_barrier")
    b(f"  s_cmp_lg_u32 s{S_W}, 0")
    b(f"  s_cbranch_scc1 {label}_arr_skip")
    if first:
        b(f"  s_mov_b32 s11, 100000")
        b.label(f"{label}_rdy")
        b(f"  v_cmp_ne_u32 vcc, 0, v27")
        b(f"  s_nop 1")
        b(f"  s_cmp_eq_u64 vcc, exec")
        b(f"  s_cbranch_scc1 {label}_rdy_ok")
        b(f"  buffer_load_dword v27, v26, s[{SRD_PF}:{SRD_PF+3}], 0 offen sc1")
        b(f"  s_waitcnt vmcnt(0)")
        b(f"  s_sub_u32 s11, s11, 1")
        b(f"  s_cmp_lg_u32 s11, 0")
        b(f"  s_cbranch_scc1 {label}_rdy")
        b.label(f"{label}_rdy_ok")
    b(f"  s_lshl_b32 s10, s{shard_sreg}, 8")
    b(f"  s_add_u32 s10, s10, {bar*4096}")
    b(f"  v_mov_b32 v228, s10")
    b(f"  v_mov_b32 v229, 1")
    b(f"  s_mov_b64 s[16:17], exec")
    b(f"  s_mov_b64 exec, 1")
    b(f"  buffer_atomic_add v229, v228, s[{SRD_CNT}:{SRD_CNT+3}], 0 offen sc1")
    b(f"  s_mov_b64 exec, s[16:17]")
    b.label(f"{label}_arr_skip")

def wait(b, bar, target, label, single_sreg=None):
    b(f"  s_cmp_lg_u32 s{S_W}, 0")
    b(f"  s_cbranch_scc1 {label}_w_skip")
    if single_sreg is None:
        b(f"  v_and_b32 v228, 15, v7")
        b(f"  v_lshlrev_b32 v228, 8, v228")
        b(f"  v_add_u32 v228, {bar*4096}, v228")
    else:
        b(f"  s_lshl_b32 s10, s{single_sreg}, 8")
        b(f"  s_add_u32 s10, s10, {bar*4096}")
        b(f"  v_mov_b32 v228, s10")
    b(f"  s_mov_b32 s11, 200000")
    if "pp" in OPT:
        b(f"  buffer_load_dword v229, v228, s[{SRD_CNT}:{SRD_CNT+3}], 0 offen sc1")
        b(f"  s_nop 15")
        b(f"  s_nop 15")
        b(f"  buffer_load_dword v226, v228, s[{SRD_CNT}:{SRD_CNT+3}], 0 offen sc1")
        b.label(f"{label}_poll")
        for r in (229, 226):
            b(f"  s_waitcnt vmcnt(1)")
            b(f"  v_cmp_le_u32 vcc, {target}, v{r}")
            b(f"  s_nop 1")
            b(f"  s_cmp_eq_u64 vcc, exec")
            b(f"  s_cbranch_scc1 {label}_w_skip")
            b(f"  buffer_load_dword v{r}, v228, s[{SRD_CNT}:{SRD_CNT+3}], 0 offen sc1")
        b(f"  s_sub_u32 s11, s11, 1")
        b(f"  s_cmp_lg_u32 s11, 0")
        b(f"  s_cbranch_scc1 {label}_poll")
    else:
        b.label(f"{label}_poll")
        b(f"  buffer_load_dword v229, v228, s[{SRD_CNT}:{SRD_CNT+3}], 0 offen sc1")
        b(f"  s_waitcnt vmcnt(0)")
        b(f"  v_cmp_le_u32 vcc, {target}, v229")
        b(f"  s_nop 1")
        b(f"  s_cmp_eq_u64 vcc, exec")
        b(f"  s_cbranch_scc1 {label}_w_skip")
        b(f"  s_sub_u32 s11, s11, 1")
        b(f"  s_cmp_lg_u32 s11, 0")
        b(f"  s_cbranch_scc1 {label}_poll")
    b.label(f"{label}_w_skip")
    b(f"  s_barrier")

def prefetch(b, ptr_pair, nbytes, start, length, who_scale, who_sreg, vaddr, vdst, stmp, paced=False):
    chunk = -(-length // who_scale)
    n_per_wave = -(-chunk // (512 * 128))
    stride = -(-chunk // (512 * n_per_wave))
    stride = (stride + 3) // 4 * 4
    per_instr = 64 * stride
    srd(b, SRD_PF, ptr_pair, nbytes)
    b(f"  s_mul_i32 s{stmp}, s{who_sreg}, {chunk}")
    b(f"  s_mul_i32 s{stmp+1}, s{S_W}, {n_per_wave*per_instr}")
    b(f"  s_add_u32 s{stmp}, s{stmp}, s{stmp+1}")
    if start: b(f"  s_add_u32 s{stmp}, s{stmp}, {start}")
    b(f"  v_mul_u32_u24 v{vaddr}, {stride}, v7")
    for i in range(n_per_wave):
        b(f"  buffer_load_dword v{vdst}, v{vaddr}, s[{SRD_PF}:{SRD_PF+3}], s{stmp} offen")
        if i + 1 < n_per_wave: b(f"  s_add_u32 s{stmp}, s{stmp}, {per_instr}")
        if paced: b(f"  s_waitcnt vmcnt(0)")
    return n_per_wave

V_DUMMY = 232
def pf_wide(b, ptr_pair, nbytes, s_base, n, wave_lo, wave_hi, label):
    b(f"  s_cmp_lt_u32 s{S_W}, {wave_lo}")
    b(f"  s_cbranch_scc1 {label}")
    if wave_hi < 8:
        b(f"  s_cmp_ge_u32 s{S_W}, {wave_hi}")
        b(f"  s_cbranch_scc1 {label}")
    srd(b, SRD_PF, ptr_pair, nbytes)
    b(f"  s_sub_u32 s{S_T+9}, s{S_W}, {wave_lo}")
    b(f"  s_mul_i32 s{S_T+9}, s{S_T+9}, {n*1024}")
    b(f"  s_add_u32 s{S_T+9}, s{S_T+9}, s{s_base}")
    b(f"  v_lshlrev_b32 v29, 4, v7")
    for i in range(n):
        if i and i % 4 == 0: b(f"  s_add_u32 s{S_T+9}, s{S_T+9}, 4096")
        b(f"  buffer_load_dwordx4 {vr(V_DUMMY,4)}, v29, s[{SRD_PF}:{SRD_PF+3}], s{S_T+9} offen offset:{(i%4)*1024}")
    b.label(label)

def w1_share_base(b, sreg, part):
    b(f"  s_mul_i32 s{sreg}, s2, {W1B // 256}")
    if part: b(f"  s_add_u32 s{sreg}, s{sreg}, {part}")

def w1_first_half_base(b, sreg, part):
    b(f"  s_and_b32 s{sreg}, s2, 7")
    b(f"  s_mul_i32 s{sreg}, s{sreg}, {256*7168}")
    b(f"  s_lshr_b32 s{S_T+9}, s2, 3")
    b(f"  s_mul_i32 s{S_T+9}, s{S_T+9}, {4*7168}")
    b(f"  s_add_u32 s{sreg}, s{sreg}, s{S_T+9}")
    if part: b(f"  s_add_u32 s{sreg}, s{sreg}, {part}")

def p1_tables(b):
    M1, M2, TW = L1_M1, L1_M2, L1_TW
    b(f"  v_and_b32 v10, 255, v0            ; e")
    b(f"  v_lshrrev_b32 v11, 8, v0          ; u")
    b(f"  v_bfe_u32 v12, v10, 2, 4          ; lane&15")
    b(f"  v_lshl_add_u32 v12, v11, 4, v12   ; k1")
    b(f"  v_lshrrev_b32 v13, 6, v10         ; g")
    b(f"  v_and_b32 v14, 3, v10")
    b(f"  v_lshlrev_b32 v13, 3, v13")
    b(f"  v_lshl_add_u32 v13, v14, 1, v13   ; a0 = 8g + 2i")
    b(f"  v_mul_u32_u24 v15, v13, v12       ; a0*k1")
    b(f"  v_add_u32 v16, v15, v12           ; (a0+1)*k1")
    sincos(b, 17, 18, 15, 5, 21)
    sincos(b, 19, 20, 16, 5, 21)
    b(f"  v_lshlrev_b32 v22, 2, v10")
    b(f"  v_lshl_add_u32 v22, v11, 11, v22  ; u*2048 + e*4")
    b(f"  v_cvt_pk_bf16_f32 v23, v17, v19")
    b(f"  v_cvt_pk_bf16_f32 v24, -v18, -v20")
    b(f"  ds_write_b32 v22, v23 offset:{M1}")
    b(f"  ds_write_b32 v22, v24 offset:{M1+1024}")
    sincos(b, 17, 18, 15, 10, 21)
    sincos(b, 19, 20, 16, 10, 21)
    b(f"  ds_write_b32 v22, v17 offset:{TW}")
    b(f"  ds_write_b32 v22, v18 offset:{TW+1024}")
    b(f"  ds_write_b32 v22, v19 offset:{TW+4096}")
    b(f"  ds_write_b32 v22, v20 offset:{TW+4096+1024}")
    b(f"  v_bfe_u32 v12, v10, 2, 4          ; k2")
    b(f"  v_mul_u32_u24 v15, v13, v12")
    b(f"  v_add_u32 v16, v15, v12")
    sincos(b, 17, 18, 15, 5, 21)
    sincos(b, 19, 20, 16, 5, 21)
    b(f"  v_lshlrev_b32 v22, 2, v10")
    b(f"  v_cvt_pk_bf16_f32 v23, v17, v19")
    b(f"  v_cvt_pk_bf16_f32 v24, v18, v20")
    b(f"  v_cvt_pk_bf16_f32 v25, -v18, -v20")
    b(f"  ds_write_b32 v22, v23 offset:{M2}")
    b(f"  ds_write_b32 v22, v24 offset:{M2+1024}")
    b(f"  ds_write_b32 v22, v25 offset:{M2+2048}")

def ln_fast(b, X, T, S0, alt):
    b(f"  v_readlane_b32 s{S0}, v{X}, 0              ; pivot")
    b(f"  s_nop 1")
    for i in range(0, 16, 2):
        b(f"  v_pk_add_f32 {vr(X+i,2)}, {vr(X+i,2)}, s[{S0}:{S0+1}] op_sel_hi:[1,0] neg_lo:[0,1] neg_hi:[0,1]")
    b(f"  v_pk_add_f32 {vr(T,2)}, {vr(X,2)}, {vr(X+2,2)}")
    b(f"  v_pk_add_f32 {vr(T+2,2)}, {vr(X+8,2)}, {vr(X+10,2)}")
    b(f"  v_pk_mul_f32 {vr(T+4,2)}, {vr(X,2)}, {vr(X,2)}")
    b(f"  v_pk_add_f32 {vr(T,2)}, {vr(T,2)}, {vr(X+4,2)}")
    b(f"  v_pk_add_f32 {vr(T+2,2)}, {vr(T+2,2)}, {vr(X+12,2)}")
    b(f"  v_pk_fma_f32 {vr(T+4,2)}, {vr(X+2,2)}, {vr(X+2,2)}, {vr(T+4,2)}")
    b(f"  v_pk_add_f32 {vr(T,2)}, {vr(T,2)}, {vr(X+6,2)}")
    b(f"  v_pk_add_f32 {vr(T+2,2)}, {vr(T+2,2)}, {vr(X+14,2)}")
    for i in range(4, 16, 2):
        b(f"  v_pk_fma_f32 {vr(T+4,2)}, {vr(X+i,2)}, {vr(X+i,2)}, {vr(T+4,2)}")
    b(f"  v_add_f32 v{T}, v{T}, v{T+1}")
    b(f"  v_add_f32 v{T+2}, v{T+2}, v{T+3}")
    if not alt: b(f"  v_add_f32 v{T}, v{T}, v{T+2}")
    b(f"  v_add_f32 v{T+4}, v{T+4}, v{T+5}           ; squares")
    if alt:
        wave_reduce(b, [T, T+2, T+4])
        b(f"  v_sub_f32 v{T+1}, v{T}, v{T+2}             ; E - O")
        b(f"  v_add_f32 v{T}, v{T}, v{T+2}")
        b(f"  s_nop 0")
        b(f"  v_readlane_b32 s{S0+2}, v{T}, 63")
        b(f"  v_readlane_b32 s{S0+3}, v{T+4}, 63")
        b(f"  v_readlane_b32 s{S0+4}, v{T+1}, 63")
    else:
        wave_reduce(b, [T, T+4])
        b(f"  s_nop 0")
        b(f"  v_readlane_b32 s{S0+2}, v{T}, 63")
        b(f"  v_readlane_b32 s{S0+3}, v{T+4}, 63")
    b(f"  s_nop 0")
    b(f"  v_mov_b32 v{T}, {hex(f2u(1.0/1024))}")
    b(f"  v_mul_f32 v{T+1}, s{S0+2}, v{T}            ; mean of the shifted values")
    b(f"  v_mul_f32 v{T+2}, s{S0+3}, v{T}            ; mean of their squares")
    b(f"  v_fma_f32 v{T+2}, -v{T+1}, v{T+1}, v{T+2}  ; variance")
    b(f"  v_max_f32 v{T+2}, 0, v{T+2}")
    b(f"  v_add_f32 v{T+2}, {hex(f2u(1e-5))}, v{T+2}")
    b(f"  v_rsq_f32 v{T+4}, v{T+2}")
    b(f"  s_nop 0")
    b(f"  v_mul_f32 v{T+8}, -v{T+1}, v{T+4}          ; -mean*rstd")
    if alt: b(f"  v_mul_f32 v{T+6}, s{S0+4}, v{T+4}")
    for i in range(0, 16, 2):
        b(f"  v_pk_fma_f32 {vr(X+i,2)}, {vr(X+i,2)}, {vr(T+4,2)}, {vr(T+8,2)} op_sel_hi:[1,0,0]")

def x1_store_addr(b):
    b(f"  v_lshlrev_b32 v5, 15, v9")
    b(f"  v_lshl_add_u32 v5, v8, 2, v5")
    b(f"  s_and_b32 s{S_T+6}, s2, 15")
    b(f"  s_lshl_b32 s{S_T+6}, s{S_T+6}, 4")
    b(f"  s_lshr_b32 s{S_T+7}, s2, 4")
    b(f"  s_add_u32 s{S_T+6}, s{S_T+6}, s{S_T+7}")
    b(f"  s_lshl_b32 s{S_T+6}, s{S_T+6}, 6       ; pos*64")
    b(f"  s_lshl_b32 s{S_T+7}, s{S_W}, 19        ; 4w*131072")
    b(f"  s_add_u32 s44, s{S_T+6}, s{S_T+7}")

def w_early(b):
    srd(b, SRD_C, P_WR, WB)
    srd(b, SRD_D, P_WI, WB)
    b(f"  s_and_b32 s{S_T+2}, s2, 7              ; j1")
    b(f"  v_and_b32 v215, 1, v0                ; half")
    b(f"  v_bfe_u32 v11, v0, 5, 4              ; c")
    b(f"  v_bfe_u32 v12, v0, 1, 4              ; e")
    b(f"  v_lshl_add_u32 v13, v12, 4, v11      ; j2")
    b(f"  v_lshlrev_b32 v13, 3, v13")
    b(f"  v_add_u32 v13, s{S_T+2}, v13         ; j")
    b(f"  v_mul_u32_u24 v214, 1026, v13")
    b(f"  v_lshl_add_u32 v14, v215, 4, v214")
    b(f"  s_lshr_b32 s{S_T+3}, s2, 3           ; kb")
    b(f"  s_lshl_b32 s{S_T+3}, s{S_T+3}, 5")
    b(f"  buffer_load_dwordx4 {vr(WE,4)}, v14, s[{SRD_C}:{SRD_C+3}], s{S_T+3} offen{WF()}")
    b(f"  buffer_load_dwordx4 {vr(WE+4,4)}, v14, s[{SRD_D}:{SRD_D+3}], s{S_T+3} offen{WF()}")

def p1(b):
    srd(b, SRD_A, P_X, 4 << 20)
    srd(b, SRD_B, P_WS, 4 << 20, WS_X1)
    b(f"  s_lshl_b32 s{S_T}, s{S_W}, 8")
    b(f"  s_add_u32 s{S_T}, s{S_T}, s2          ; s")
    b(f"  s_lshl_b32 s{S_T+1}, s{S_T}, 11")
    b(f"  v_lshlrev_b32 v1, 9, v9")
    b(f"  v_lshl_add_u32 v1, v8, 2, v1")
    XD = 32
    b(f"  s_cmp_ge_u32 s2, 16")
    b(f"  s_cbranch_scc1 p1_noreset")
    b(f"  s_cmp_lg_u32 s{S_W}, 0")
    b(f"  s_cbranch_scc1 p1_noreset")
    b(f"  s_lshl_b32 s{S_T+2}, s2, 8")
    b(f"  v_lshlrev_b32 v2, 12, v7")
    b(f"  v_add_u32 v2, s{S_T+2}, v2")
    b(f"  v_mov_b32 v3, 0")
    b(f"  s_mov_b64 s[48:49], exec")
    b(f"  s_mov_b64 exec, 15")
    b(f"  buffer_store_dword v3, v2, s[{SRD_CNT}:{SRD_CNT+3}], 0 offen sc1")
    b(f"  s_mov_b64 exec, s[48:49]")
    b.label("p1_noreset")
    for i in range(8):
        b(f"  buffer_load_dword v{XD+i}, v1, s[{SRD_A}:{SRD_A+3}], s{S_T+1} offen offset:{64*i}{XF()}")
    NCLR = 0
    NWE = 0
    x1_store_addr(b)
    if SENT():
        b(f"  v_mov_b32 v60, -1")
        b(f"  v_mov_b32 v61, -1")
        b(f"  v_mov_b32 v62, -1")
        b(f"  v_mov_b32 v63, -1")
        b(f"  v_bfe_u32 v2, v7, 2, 3              ; j1")
        b(f"  v_lshrrev_b32 v3, 5, v7             ; i (0,1)")
        b(f"  v_lshlrev_b32 v2, 14, v2")
        b(f"  v_lshl_add_u32 v2, v3, 17, v2")
        b(f"  v_and_b32 v3, 3, v7")
        b(f"  v_lshl_add_u32 v2, v3, 4, v2")
        b(f"  buffer_store_dwordx4 v[60:63], v2, s[{SRD_B}:{SRD_B+3}], s44 offen{SF}")
        b(f"  s_add_u32 s{S_T+7}, s44, {2*131072}")
        b(f"  buffer_store_dwordx4 v[60:63], v2, s[{SRD_B}:{SRD_B+3}], s{S_T+7} offen{SF}")
        NCLR = 2
    if "tlbw" in OPT:
        b(f"  s_cmp_lg_u32 s{S_W}, 7")
        b(f"  s_cbranch_scc1 p1_notlb")
        sh = 20 if "tlb1m" in OPT else (19 if "tlb512k" in OPT else 21)
        b(f"  v_lshlrev_b32 v2, {sh}, v7")
        lst = [(P_WS, 36 << 20), (P_W1, W1B), (P_W2, W1B), (P_WR, WB), (P_WI, WB), (P_OUT, 4 << 20), (P_B1, 7168), (P_B2, 4096)]
        for ptr, size in lst:
            srd(b, SRD_PF, ptr, size)
            b(f"  s_mov_b64 s[16:17], exec")
            n = min(64, -(-size // (1 << sh)))
            b(f"  s_mov_b64 exec, {hex((1 << n) - 1)}")
            b(f"  buffer_load_dword v230, v2, s[{SRD_PF}:{SRD_PF+3}], 0 offen sc1")
            b(f"  s_mov_b64 exec, s[16:17]")
        if "codepf" in OPT:
            b(f"  s_cmp_ge_u32 s2, 16")
            b(f"  s_cbranch_scc1 p1_nocode")
            b(f"  s_getpc_b64 s[{S_T+8}:{S_T+9}]")
            b.label("p1_pc")
            b(f"  v_lshlrev_b32 v29, 7, v7")
            b(f"  s_mov_b32 s{S_T+7}, k_exit - p1_pc")
            for i in range(5):
                b(f"  v_min_u32 v28, s{S_T+7}, v29")
                b(f"  global_load_dword v230, v28, s[{S_T+8}:{S_T+9}]")
                b(f"  v_add_u32 v29, 8192, v29")
            b.label("p1_nocode")
        if "pf7" in OPT:
            n7 = 0
            if "wpf" in OPT:
                b(f"  s_mul_i32 s{S_T+8}, s2, 8208")
                b(f"  v_lshlrev_b32 v29, 4, v7")
                for ptr in (P_WR, P_WI):
                    srd(b, SRD_PF, ptr, WB)
                    b(f"  s_mov_b32 s{S_T+9}, s{S_T+8}")
                    for i in range(9):
                        if i and i % 4 == 0: b(f"  s_add_u32 s{S_T+9}, s{S_T+9}, 4096")
                        b(f"  buffer_load_dwordx4 {vr(V_DUMMY,4)}, v29, s[{SRD_PF}:{SRD_PF+3}], s{S_T+9} offen offset:{(i%4)*1024}")
                        n7 += 1
            if PFN[0]:
                w1_share_base(b, S_T + 9, 0)
                b(f"  v_lshlrev_b32 v29, 4, v7")
                srd(b, SRD_PF, P_W1, W1B)
                for i in range(4 * PFN[0]):
                    if i and i % 4 == 0: b(f"  s_add_u32 s{S_T+9}, s{S_T+9}, 4096")
                    b(f"  buffer_load_dwordx4 {vr(V_DUMMY,4)}, v29, s[{SRD_PF}:{SRD_PF+3}], s{S_T+9} offen offset:{(i%4)*1024}")
                    n7 += 1
            N7[0] = n7
        b.label("p1_notlb")
    if "wpack" in OPT:
        srd(b, SRD_C, P_WR, WB)
        srd(b, SRD_D, P_WI, WB)
        b(f"  s_lshl_b32 s{S_T+2}, s2, 3")
        b(f"  s_add_u32 s{S_T+2}, s{S_T+2}, s{S_W}")
        b(f"  s_mul_i32 s45, s{S_T+2}, 1026")
        b(f"  v_lshlrev_b32 v14, 4, v7")
        b(f"  buffer_load_dwordx4 {vr(WE,4)}, v14, s[{SRD_C}:{SRD_C+3}], s45 offen")
        b(f"  buffer_load_dwordx4 {vr(WE+4,4)}, v14, s[{SRD_D}:{SRD_D+3}], s45 offen")
        b(f"  v_mov_b32 v15, 1024")
        b(f"  buffer_load_ushort v212, v15, s[{SRD_C}:{SRD_C+3}], s45 offen")
        b(f"  buffer_load_ushort v213, v15, s[{SRD_D}:{SRD_D+3}], s45 offen")
        NCLR += 4
    if "wearly" in OPT:
        w_early(b); NCLR += 2
    npf = 0
    if "burn" in OPT:
        for i in range(4): b(f"  v_mov_b32 v{180+i}, 0x3f9d3f8a")
        for i in range(4): b(f"  v_mov_b32 v{184+i}, 0x3e5abf31")
        b(f"  s_nop 1")
        for i in range(24): b(f"  v_mfma_f32_32x32x16_bf16 v[{(i%2)*16+144}:{(i%2)*16+159}], v[180:183], v[184:187], v[{(i%2)*16+144}:{(i%2)*16+159}]")
    p1_tables(b)
    GM = 30
    gmat(b, GM, 2, False, 10)
    srd(b, SRD_PF, P_DBG, 256)
    b(f"  s_and_b32 s{S_T+8}, s2, 15")
    b(f"  s_lshl_b32 s{S_T+9}, s{S_T+8}, 2")
    b(f"  s_add_u32 s{S_T+9}, s{S_T+9}, 64")
    b(f"  v_mov_b32 v25, s{S_T+9}")
    b(f"  v_lshlrev_b32 v26, 2, v8")
    b(f"  v_add_u32 v26, 64, v26")
    b(f"  s_cmp_ge_u32 s2, 16")
    b(f"  s_cbranch_scc1 p1_noflag")
    b(f"  s_cmp_lg_u32 s{S_W}, 0")
    b(f"  s_cbranch_scc1 p1_noflag")
    b(f"  s_waitcnt vmcnt({8} + 0)".replace(" + 0", "") if NCLR == 0 else f"  s_waitcnt vmcnt({8 + NCLR})")
    b(f"  v_mov_b32 v3, 1")
    b(f"  s_mov_b64 s[48:49], exec")
    b(f"  s_mov_b64 exec, 1")
    b(f"  buffer_store_dword v3, v25, s[{SRD_PF}:{SRD_PF+3}], 0 offen sc1")
    b(f"  s_mov_b64 exec, s[48:49]")
    b.label("p1_noflag")
    b(f"  s_waitcnt lgkmcnt(0)")
    stamp(b, "p1 tables done")
    b(f"  s_barrier")
    NX2 = 0
    if "sent2" in OPT:
        srd(b, SRD_C, P_WS, 4 << 20, WS_X2)
        for i in range(4): b(f"  v_mov_b32 v{200+i}, -1")
        b(f"  v_lshlrev_b32 v3, 4, v0")
        b(f"  s_lshl_b32 s{S_T+7}, s2, 14")
        b(f"  buffer_store_dwordx4 v[200:203], v3, s[{SRD_C}:{SRD_C+3}], s{S_T+7} offen{SF}")
        b(f"  s_add_u32 s{S_T+7}, s{S_T+7}, 8192")
        b(f"  buffer_store_dwordx4 v[200:203], v3, s[{SRD_C}:{SRD_C+3}], s{S_T+7} offen{SF}")
        NX2 = 2
    npf = 0
    if "nopf" not in OPT:
        b(f"  s_mul_i32 s{S_T+8}, s2, 8208")
        if "ntx" not in OPT and "wpf" in OPT and "pf7" not in OPT:
            pf_wide(b, P_WR, WB, S_T + 8, 3, 0, 3, "pf_p1a")
            pf_wide(b, P_WI, WB, S_T + 8, 3, 0, 3, "pf_p1b")
        if "ntw1" not in OPT and PFN[0] and "pf7" not in OPT:
            w1_share_base(b, S_T + 8, 0)
            pf_wide(b, P_W1, W1B, S_T + 8, PFN[0], 4, 8, "pf_p1c")
    M1, M2, TW = 96, 112, 128
    b(f"  v_lshlrev_b32 v2, 4, v7")
    for i in range(4): b(f"  ds_read_b128 {vr(M1+4*i,4)}, v2 offset:{L1_M1+1024*i}")
    for i in range(3): b(f"  ds_read_b128 {vr(M2+4*i,4)}, v2 offset:{L1_M2+1024*i}")
    for i in range(8): b(f"  ds_read_b128 {vr(TW+4*i,4)}, v2 offset:{L1_TW+1024*i}")
    X = 40
    NCLR += NX2
    nW = 0 if ("nopf" in OPT or "ntx" in OPT or "wpf" not in OPT or "pf7" in OPT) else 6
    n1 = 0 if ("nopf" in OPT or "ntw1" in OPT or "pf7" in OPT) else PFN[0]
    b(f"  s_cmp_eq_u32 s{S_W}, 3")
    b(f"  s_cbranch_scc1 p1_xw0")
    b(f"  s_cmp_ge_u32 s{S_W}, 4")
    b(f"  s_cbranch_scc1 p1_xw4")
    b(f"  s_waitcnt vmcnt({NCLR + nW})")
    b(f"  s_branch p1_xwd")
    b.label("p1_xw4")
    if "tlbw" in OPT:
        b(f"  s_cmp_lg_u32 s{S_W}, 7")
        b(f"  s_cbranch_scc1 p1_xw5")
        b(f"  s_waitcnt vmcnt({min(63, NCLR + n1 + 8 + N7[0])})")
        b(f"  s_branch p1_xwd")
        b.label("p1_xw5")
    b(f"  s_waitcnt vmcnt({NCLR + n1})")
    b(f"  s_branch p1_xwd")
    b.label("p1_xw0")
    b(f"  s_waitcnt vmcnt({NCLR})")
    b.label("p1_xwd")
    stamp(b, "p1 x landed")
    if "wmid" in OPT:
        w_early(b)
        b(f"  s_cmp_ge_u32 s2, 8")
        b(f"  s_cbranch_scc1 p1_nonyq")
        b(f"  buffer_load_ushort v212, v214, s[{SRD_C}:{SRD_C+3}], 0 offen offset:1024")
        b(f"  buffer_load_ushort v213, v214, s[{SRD_D}:{SRD_D+3}], 0 offen offset:1024")
        b.label("p1_nonyq")
    if "wearly" in OPT:
        b(f"  s_cmp_ge_u32 s2, 8")
        b(f"  s_cbranch_scc1 p1_nonyq")
        b(f"  buffer_load_ushort v212, v214, s[{SRD_C}:{SRD_C+3}], 0 offen offset:1024")
        b(f"  buffer_load_ushort v213, v214, s[{SRD_D}:{SRD_D+3}], 0 offen offset:1024")
        b.label("p1_nonyq")
    srd(b, SRD_PF, P_DBG, 256)
    if "stash" in OPT:
        b(f"  s_lshl_b32 s{S_T+9}, s{S_W}, 11")
        b(f"  s_add_u32 s{S_T+9}, s{S_T+9}, {L_XS}")
        b(f"  v_add_u32 v4, s{S_T+9}, v1           ; t*2048 + g*512 + c*4")
        for i in range(8): b(f"  ds_write_b32 v4, v{XD+i} offset:{64*i}")
    for i in range(8):
        b(f"  v_lshlrev_b32 v{X+i}, 16, v{XD+i}")
        b(f"  v_and_b32 v{X+8+i}, 0xffff0000, v{XD+i}")
    T = 56
    ln_fast(b, X, T, S_T + 2, True)
    stamp(b, "p1 ln done")
    if SENT():
        b(f"  buffer_load_dword v27, v26, s[{SRD_PF}:{SRD_PF+3}], 0 offen sc1")
        b(f"  s_and_b32 s{S_T+8}, s2, 15")
        arrive(b, 0, S_T + 8, first=True, label="x1")
        stamp(b, "p1 arrived")
        srd(b, SRD_C, P_WS, 4 << 20, WS_X2)
        for i in range(4): b(f"  v_mov_b32 v{200+i}, -1")
        b(f"  v_lshlrev_b32 v2, 4, v0")
        b(f"  s_lshl_b32 s{S_T+7}, s2, 14")
        b(f"  buffer_store_dwordx4 v[200:203], v2, s[{SRD_C}:{SRD_C+3}], s{S_T+7} offen{SF}")
        b(f"  s_add_u32 s{S_T+7}, s{S_T+7}, 8192")
        b(f"  buffer_store_dwordx4 v[200:203], v2, s[{SRD_C}:{SRD_C+3}], s{S_T+7} offen{SF}")
    A = 64
    for be in range(2):
        for i in range(4):
            b(f"  v_cvt_pk_bf16_f32 v{A+4*be+i}, v{X+8*be+2*i}, v{X+8*be+2*i+1}")
    b(f"  s_waitcnt lgkmcnt(0)")
    b(f"  v_readlane_b32 s{S_T+5}, v{T+6}, 0")
    Y = 160
    for be in range(2):
        for u in range(2):
            for c in range(2):
                d = Y + ((be * 2 + u) * 2 + c) * 4
                b(f"  {MF32} {vr(d,4)}, {vr(A+4*be,4)}, {vr(M1+4*(2*u+c),4)}, 0")
    b(f"  s_nop 4")
    Bp = 72; W = 32; O = 40
    for u in range(2):
        for be in range(2):
            y = Y + ((be * 2 + u) * 2) * 4
            tw = TW + (be * 4 + u * 2) * 4
            cmul_pk(b, O + 8 * be, O + 8 * be + 4, y, y + 4, tw, tw + 4, W, False)
        for r in range(4):
            b(f"  v_cvt_pk_bf16_f32 v{Bp+8*u+r}, v{O+r}, v{O+8+r}")
            b(f"  v_cvt_pk_bf16_f32 v{Bp+8*u+4+r}, v{O+4+r}, v{O+12+r}")
    XO = 160
    b(f"  s_nop 1")
    for u in range(2):
        re, im = XO + 8 * u, XO + 8 * u + 4
        b(f"  {MF32} {vr(re,4)}, {vr(M2,4)}, {vr(Bp+8*u,4)}, 0")
        b(f"  {MF32} {vr(im,4)}, {vr(M2,4)}, {vr(Bp+8*u+4,4)}, 0")
        b(f"  {MF32} {vr(re,4)}, {vr(M2+4,4)}, {vr(Bp+8*u+4,4)}, {vr(re,4)}")
        b(f"  {MF32} {vr(im,4)}, {vr(M2+8,4)}, {vr(Bp+8*u,4)}, {vr(im,4)}")
    b(f"  s_and_b32 s{S_T+6}, s{S_W}, 1")
    b(f"  s_lshl_b32 s{S_T+6}, s{S_T+6}, 8")
    b(f"  s_lshr_b32 s{S_T+7}, s{S_W}, 1")
    b(f"  s_lshl_b32 s{S_T+7}, s{S_T+7}, 6")
    b(f"  s_add_u32 s{S_T+6}, s{S_T+6}, s{S_T+7}")
    b(f"  v_lshlrev_b32 v3, 12, v9")
    b(f"  v_lshl_add_u32 v3, v8, 2, v3")
    b(f"  v_add_u32 v3, s{S_T+6}, v3")
    b(f"  s_nop 2")
    b(f"  v_writelane_b32 v{XO}, s{S_T+5}, 0")
    b(f"  v_writelane_b32 v{XO+4}, 0, 0")
    PK = 32
    for u in range(2):
        for r in range(4):
            b(f"  v_cvt_pk_bf16_f32 v{PK+4*u+r}, v{XO+8*u+r}, v{XO+8*u+4+r}")
    for u in range(2):
        for r in range(4):
            b(f"  ds_write_b32 v3, v{PK+4*u+r} offset:{L1_EX + u*512 + r*1024}")
    if "wpack" in OPT:
        assert not SENT()
        srd(b, SRD_C, P_WS, 4 << 20, WS_WP)
        b(f"  v_lshrrev_b32 v14, 1, v7              ; kb")
        b(f"  v_lshlrev_b32 v14, 17, v14")
        b(f"  v_and_b32 v15, 1, v7")
        b(f"  v_lshl_add_u32 v14, v15, 4, v14")
        b(f"  s_and_b32 s{S_T+6}, s2, 15")
        b(f"  s_lshl_b32 s{S_T+6}, s{S_T+6}, 9       ; (p&15)<<5 * 16")
        b(f"  s_lshr_b32 s{S_T+7}, s2, 4")
        b(f"  s_lshl_b32 s{S_T+7}, s{S_T+7}, 5       ; (p>>4)<<1 * 16")
        b(f"  s_add_u32 s{S_T+6}, s{S_T+6}, s{S_T+7}")
        b(f"  s_lshl_b32 s{S_T+7}, s{S_W}, 14")
        b(f"  s_add_u32 s{S_T+6}, s{S_T+6}, s{S_T+7}")
        b(f"  s_add_u32 s{S_T+7}, s{S_T+6}, 8192")
        npf0 = 0 if ("nopf" in OPT or "pf7" in OPT) else PFN[0]
        b(f"  s_cmp_ge_u32 s{S_W}, 4")
        b(f"  s_cbranch_scc1 p1_wp4")
        b(f"  s_waitcnt vmcnt(0)")
        b(f"  s_branch p1_wpd")
        b.label("p1_wp4")
        b(f"  s_waitcnt vmcnt({npf0})")
        b.label("p1_wpd")
        b(f"  v_cmp_eq_u32 vcc, 0, v7")
        b(f"  v_and_b32 v15, 0xffff0000, v{WE}")
        b(f"  v_or_b32 v15, v15, v212")
        b(f"  v_cndmask_b32 v{WE}, v{WE}, v15, vcc")
        b(f"  v_and_b32 v15, 0xffff0000, v{WE+4}")
        b(f"  v_or_b32 v15, v15, v213")
        b(f"  v_cndmask_b32 v{WE+4}, v{WE+4}, v15, vcc")
        b(f"  buffer_store_dwordx4 {vr(WE,4)}, v14, s[{SRD_C}:{SRD_C+3}], s{S_T+6} offen{SF}")
        b(f"  buffer_store_dwordx4 {vr(WE+4,4)}, v14, s[{SRD_C}:{SRD_C+3}], s{S_T+7} offen{SF}")
    if SENT(): b(f"  s_waitcnt lgkmcnt(0) vmcnt(0)")
    else:
        b(f"  buffer_load_dword v27, v26, s[{SRD_PF}:{SRD_PF+3}], 0 offen sc1")
        b(f"  s_waitcnt lgkmcnt(0)")
    stamp(b, "p1 fft done")
    b(f"  s_barrier")
    b(f"  v_lshlrev_b32 v4, 6, v9")
    b(f"  v_lshl_add_u32 v4, v8, 2, v4")
    b(f"  s_lshl_b32 s{S_T+6}, s{S_W}, 11")
    b(f"  s_add_u32 s{S_T+6}, s{S_T+6}, {L1_EX}")
    b(f"  v_add_u32 v4, s{S_T+6}, v4")
    Bd = 40
    for i in range(4):
        b(f"  ds_read2st64_b32 {vr(Bd+2*i,2)}, v4 offset0:{2*i} offset1:{2*i+1}")
    D = 48
    for i in range(4):
        b(f"  s_waitcnt lgkmcnt({3-i})")
        b(f"  {MF16} {vr(D+4*i,4)}, {vr(GM,2)}, {vr(Bd+2*i,2)}, 0")
    b(f"  s_nop 4")
    for i in range(4):
        b(f"  v_cvt_pk_bf16_f32 v{64+2*i}, v{D+4*i}, v{D+4*i+1}")
        b(f"  v_cvt_pk_bf16_f32 v{65+2*i}, v{D+4*i+2}, v{D+4*i+3}")
        if SENT():
            b(f"  v_min_u32 v{64+2*i}, 0xfffffffe, v{64+2*i}")
            b(f"  v_min_u32 v{65+2*i}, 0xfffffffe, v{65+2*i}")
        for e in range(2):
            b(f"  s_add_u32 s{S_T+7}, s44, {i*131072 + e*16384}")
            b(f"  buffer_store_dword v{64+2*i+e}, v5, s[{SRD_B}:{SRD_B+3}], s{S_T+7} offen{SF}")
    stamp(b, "p1 stores issued")
    if not SENT():
        b(f"  s_and_b32 s{S_T+8}, s2, 15")
        arrive(b, 0, S_T + 8, first=True, label="x1")
        stamp(b, "p1 arrived")

XL2, WL2 = 32, 40
WE = 204
TC2, TS2 = 64, 68
def p2_setup(b):
    srd(b, SRD_A, P_WS, 4 << 20, WS_X1)
    srd(b, SRD_B, P_WS, 4 << 20, WS_X2)
    srd(b, SRD_C, P_WR, WB)
    srd(b, SRD_D, P_WI, WB)
    b(f"  s_and_b32 s{S_T}, s2, 7              ; j1")
    b(f"  s_lshr_b32 s{S_T+1}, s2, 3           ; kb")
    b(f"  v_and_b32 v10, 1, v0                 ; half")
    b(f"  v_bfe_u32 v11, v0, 5, 4              ; c")
    b(f"  v_bfe_u32 v12, v0, 1, 4              ; e")
    b(f"  v_lshl_add_u32 v13, v12, 4, v11      ; j2")
    b(f"  v_lshlrev_b32 v13, 3, v13")
    b(f"  v_add_u32 v13, s{S_T}, v13           ; j")
    b(f"  v_mul_u32_u24 v13, 1026, v13")
    b(f"  v_lshlrev_b32 v14, 4, v10")
    b(f"  v_add_u32 v14, v13, v14")
    b(f"  s_lshl_b32 s{S_T+3}, s{S_T+1}, 5")
    if "wearly" in OPT or "wmid" in OPT:
        b(f"  s_cmp_lg_u32 s{S_T+1}, 0")
        b(f"  s_cbranch_scc1 p2_nonyq")
        b(f"  s_waitcnt vmcnt(0)")
        b(f"  v_cmp_eq_u32 vcc, 0, v215")
        b(f"  v_and_b32 v50, 0xffff0000, v{WE}")
        b(f"  v_or_b32 v50, v50, v212")
        b(f"  v_cndmask_b32 v{WE}, v{WE}, v50, vcc")
        b(f"  v_and_b32 v50, 0xffff0000, v{WE+4}")
        b(f"  v_or_b32 v50, v50, v213")
        b(f"  v_cndmask_b32 v{WE+4}, v{WE+4}, v50, vcc")
        b.label("p2_nonyq")
    elif "wpack" in OPT:
        srd(b, SRD_C, P_WS, 4 << 20, WS_WP)
    elif "wlate" in OPT:
        b(f"  v_mov_b32 v24, v14")
        b(f"  v_mov_b32 v25, v13")
        b(f"  v_mov_b32 v26, v10                   ; half")
        b(f"  s_mov_b32 s45, s{S_T+3}              ; kb*32")
    else:
        WL = WL2
        b(f"  v_mov_b32 v24, v14")
        b(f"  v_mov_b32 v25, v13")
        b(f"  v_mov_b32 v26, v10                   ; half")
        b(f"  s_mov_b32 s45, s{S_T+3}              ; kb*32")
        WL = WL2
        b(f"  buffer_load_dwordx4 {vr(WL,4)}, v24, s[{SRD_C}:{SRD_C+3}], s45 offen{WF()}")
        b(f"  buffer_load_dwordx4 {vr(WL+4,4)}, v24, s[{SRD_D}:{SRD_D+3}], s45 offen{WF()}")
        b(f"  s_cmp_lg_u32 s{S_T+1}, 0")
        b(f"  s_cbranch_scc1 p2_nonyq")
        b(f"  buffer_load_ushort v48, v25, s[{SRD_C}:{SRD_C+3}], 0 offen offset:1024")
        b(f"  buffer_load_ushort v49, v25, s[{SRD_D}:{SRD_D+3}], 0 offen offset:1024")
        b(f"  s_waitcnt vmcnt(0)")
        b(f"  v_cmp_eq_u32 vcc, 0, v26")
        b(f"  v_and_b32 v50, 0xffff0000, v{WL}")
        b(f"  v_or_b32 v50, v50, v48")
        b(f"  v_cndmask_b32 v{WL}, v{WL}, v50, vcc")
        b(f"  v_and_b32 v50, 0xffff0000, v{WL+4}")
        b(f"  v_or_b32 v50, v50, v49")
        b(f"  v_cndmask_b32 v{WL+4}, v{WL+4}, v50, vcc")
        b.label("p2_nonyq")
        if "wdiag" in OPT:
            b(f"  s_waitcnt vmcnt(0)")
            stamp(b, "p2 w landed")
    if "es" in OPT:
        b(f"  s_cmp_ge_u32 s{S_W}, 2")
        b(f"  s_cbranch_scc1 p2_noclr")
        srd(b, SRD_PF, P_WS, 4 << 20, WS_LN2)
        for i in range(4): b(f"  v_mov_b32 v{200+i}, -1")
        b(f"  s_lshr_b32 s{S_T+8}, s2, 3")
        b(f"  s_lshl_b32 s{S_T+8}, s{S_T+8}, 17")
        b(f"  s_and_b32 s{S_T+9}, s2, 7")
        b(f"  s_lshl_b32 s{S_T+9}, s{S_T+9}, 11")
        b(f"  s_add_u32 s{S_T+8}, s{S_T+8}, s{S_T+9}")
        b(f"  v_lshlrev_b32 v2, 4, v0")
        b(f"  buffer_store_dwordx4 v[200:203], v2, s[{SRD_PF}:{SRD_PF+3}], s{S_T+8} offen{SF}")
        b.label("p2_noclr")
    npf = 0
    b(f"  v_and_b32 v15, 255, v0")
    b(f"  v_bfe_u32 v16, v15, 2, 4             ; x")
    b(f"  v_lshrrev_b32 v17, 6, v15            ; g")
    b(f"  v_and_b32 v18, 3, v15")
    b(f"  v_lshl_add_u32 v17, v17, 2, v18      ; 4g+i")
    b(f"  v_mul_u32_u24 v17, v17, v16")
    sincos(b, 18, 19, 17, 4, 20)
    b(f"  v_cmp_gt_u32 vcc, 256, v0            ; matrix 0 ?")
    b(f"  v_xor_b32 v20, 0x80000000, v19       ; -sin")
    b(f"  s_nop 0")
    b(f"  v_cndmask_b32 v21, v20, v18, vcc")
    b(f"  v_cndmask_b32 v22, v18, v19, vcc")
    b(f"  v_cvt_pk_bf16_f32 v21, v21, v22")
    b(f"  v_lshlrev_b32 v22, 2, v0")
    b(f"  ds_write_b32 v22, v21 offset:{L2_F}")
    b(f"  v_lshlrev_b32 v16, 2, v9")
    for r in range(4):
        b(f"  v_add_u32 v17, {r}, v16")
        b(f"  v_mul_u32_u24 v17, v17, v8")
        sincos(b, TC2 + r, TS2 + r, 17, 8, 20)
    b(f"  v_and_b32 v16, 3, v0                 ; i")
    b(f"  v_mul_u32_u24 v16, {4*1040}, v16")
    b(f"  v_lshrrev_b32 v17, 6, v0             ; b (0..7)")
    b(f"  v_lshl_add_u32 v16, v17, 6, v16")
    b(f"  v_bfe_u32 v17, v0, 2, 2              ; a&3")
    b(f"  v_lshl_add_u32 v16, v17, 2, v16")
    b(f"  v_bfe_u32 v17, v0, 4, 2              ; a>>2")
    b(f"  v_lshl_add_u32 v21, v17, 4, v16      ; first")
    b(f"  v_xor_b32 v17, 2, v17")
    b(f"  v_lshl_add_u32 v22, v17, 4, v16")
    b(f"  v_add_u32 v22, 512, v22              ; second (b+8)")
    b(f"  v_mul_u32_u24 v16, {4*1040}, v10")
    b(f"  v_lshl_add_u32 v16, v11, 6, v16")
    b(f"  v_and_b32 v17, 3, v12")
    b(f"  v_lshl_add_u32 v16, v17, 2, v16")
    b(f"  v_lshrrev_b32 v17, 2, v12")
    b(f"  v_lshrrev_b32 v18, 3, v11            ; c>>3")
    b(f"  v_lshlrev_b32 v18, 1, v18")
    b(f"  v_xor_b32 v17, v17, v18")
    b(f"  v_lshl_add_u32 v23, v17, 4, v16")
    b(f"  v_lshrrev_b32 v16, 3, v8")
    b(f"  v_lshlrev_b32 v16, 1, v16")
    b(f"  v_xor_b32 v16, v16, v9")
    b(f"  v_lshlrev_b32 v16, 4, v16")
    b(f"  v_lshl_add_u32 v16, v8, 6, v16")
    b(f"  s_mul_i32 s{S_T+4}, s{S_W}, {2*1040}")
    b(f"  s_mul_i32 s{S_T+5}, s{S_W}, 1040")
    b(f"  v_add_u32 v5, s{S_T+4}, v16")
    b(f"  v_add_u32 v6, s{S_T+5}, v16")
    b(f"  v_lshlrev_b32 v1, 4, v0")
    b(f"  s_lshl_b32 s{S_T+2}, s2, 14")
    b(f"  s_add_u32 s{S_T+3}, s{S_T+2}, 8192")
    b(f"  s_waitcnt lgkmcnt(0)")

def sentinel_check(b, R0, pre, n=8):
    b(f"  v_max3_u32 v16, v{R0}, v{R0+1}, v{R0+2}")
    b(f"  v_max3_u32 v17, v{R0+3}, v{R0+4}, v{R0+5}")
    b(f"  v_max3_u32 v16, v16, v{R0+6}, v{R0+7}")
    for i in range(8, n, 2): b(f"  v_max3_u32 v17, v17, v{R0+i}, v{R0+i+1}")
    b(f"  v_max_u32 v16, v16, v17")
    b(f"  v_cmp_eq_u32 vcc, -1, v16")
    b(f"  s_sub_u32 s11, s11, 1")
    b(f"  s_cmp_eq_u32 s11, 0")
    b(f"  s_cbranch_scc1 {pre}_got")
    b(f"  s_cmp_lg_u64 vcc, 0")
    b(f"  s_cbranch_scc1 {pre}_poll")
    b.label(f"{pre}_got")

def p2_main(b):
    XL = XL2; TC, TS = TC2, TS2
    if SENT():
        b(f"  s_mov_b32 s11, 200000")
        b.label("p2_poll")
    b(f"  buffer_load_dwordx4 {vr(XL,4)}, v1, s[{SRD_A}:{SRD_A+3}], s{S_T+2} offen sc1")
    b(f"  buffer_load_dwordx4 {vr(XL+4,4)}, v1, s[{SRD_A}:{SRD_A+3}], s{S_T+3} offen sc1")
    if "wpack" in OPT:
        WL = WL2
        b(f"  buffer_load_dwordx4 {vr(WL,4)}, v1, s[{SRD_C}:{SRD_C+3}], s{S_T+2} offen sc1")
        b(f"  buffer_load_dwordx4 {vr(WL+4,4)}, v1, s[{SRD_C}:{SRD_C+3}], s{S_T+3} offen sc1")
        b(f"  s_waitcnt vmcnt(2)")
    elif "wlate" in OPT:
        assert not SENT()
        WL = WL2
        b(f"  buffer_load_dwordx4 {vr(WL,4)}, v24, s[{SRD_C}:{SRD_C+3}], s45 offen{WF()}")
        b(f"  buffer_load_dwordx4 {vr(WL+4,4)}, v24, s[{SRD_D}:{SRD_D+3}], s45 offen{WF()}")
        b(f"  s_cmp_lg_u32 s{S_T+1}, 0")
        b(f"  s_cbranch_scc1 p2_nonyq")
        b(f"  buffer_load_ushort v56, v25, s[{SRD_C}:{SRD_C+3}], 0 offen offset:1024")
        b(f"  buffer_load_ushort v57, v25, s[{SRD_D}:{SRD_D+3}], 0 offen offset:1024")
        b(f"  s_waitcnt vmcnt(0)")
        b(f"  v_cmp_eq_u32 vcc, 0, v26")
        b(f"  v_and_b32 v58, 0xffff0000, v{WL}")
        b(f"  v_or_b32 v58, v58, v56")
        b(f"  v_cndmask_b32 v{WL}, v{WL}, v58, vcc")
        b(f"  v_and_b32 v58, 0xffff0000, v{WL+4}")
        b(f"  v_or_b32 v58, v58, v57")
        b(f"  v_cndmask_b32 v{WL+4}, v{WL+4}, v58, vcc")
        b.label("p2_nonyq")
        b(f"  s_waitcnt vmcnt(2)")
    else:
        b(f"  s_waitcnt vmcnt(0)")
    if SENT(): sentinel_check(b, XL, "p2")
    WL = WE if ("wearly" in OPT or "wmid" in OPT) else WL2
    b(f"  v_lshlrev_b32 v17, 4, v7")
    FR, FI = 72, 76
    AX = 48; WR, WI = 152, 156
    b(f"  ds_read_b128 {vr(FR,4)}, v17 offset:{L2_F}")
    b(f"  ds_read_b128 {vr(FI,4)}, v17 offset:{L2_F+1024}")
    Dq = [80, 88]; Oq = [96, 104]; Tq = [112, 120]; Pq = [128, 132]; Wq = [136, 144]
    stamp(b, "p2 x landed")
    for j in range(4):
        b(f"  ds_write_b32 v21, v{XL+j} offset:{L2_X + j*1040}")
        b(f"  ds_write_b32 v22, v{XL+4+j} offset:{L2_X + j*1040}")
    if "wlate" in OPT or "wpack" in OPT: b(f"  s_waitcnt vmcnt(0)")
    for j in range(4):
        b(f"  ds_write_b32 v23, v{WL+j} offset:{L2_W + j*1040}")
        b(f"  ds_write_b32 v23, v{WL+4+j} offset:{L2_W + 8*1040 + j*1040}")
    if "nopf" not in OPT and "ntw1" not in OPT and PFN[1]:
        w1_share_base(b, S_T + 8, PFN[0] * 4096)
        pf_wide(b, P_W1, W1B, S_T + 8, PFN[1], 4, 8, "pf_p2a")
    b(f"  s_waitcnt lgkmcnt(0)")
    b(f"  s_barrier")
    b(f"  ds_read_b128 {vr(AX,4)}, v5 offset:{L2_X}")
    b(f"  ds_read_b128 {vr(AX+4,4)}, v5 offset:{L2_X+1040}")
    b(f"  ds_read_b128 {vr(WR,4)}, v6 offset:{L2_W}")
    b(f"  ds_read_b128 {vr(WI,4)}, v6 offset:{L2_W+8*1040}")
    def stage(form, src):
        for k in range(2):
            d = Dq[k]
            if form == 'A':
                b(f"  {MF32} {vr(d,4)}, {vr(src[k],4)}, {vr(FR,4)}, 0")
                b(f"  {MF32} {vr(d+4,4)}, {vr(src[k],4)}, {vr(FI,4)}, 0")
            else:
                b(f"  {MF32} {vr(d,4)}, {vr(FR,4)}, {vr(src[k],4)}, 0")
                b(f"  {MF32} {vr(d+4,4)}, {vr(FI,4)}, {vr(src[k],4)}, 0")
    def twiddle_pack():
        for k in range(2):
            cmul_pk(b, Oq[k], Oq[k] + 4, Dq[k], Dq[k] + 4, TC, TS, Tq[k], False)
        for k in range(2):
            for r in range(4):
                b(f"  v_cvt_pk_bf16_f32 v{Pq[k]+r}, v{Oq[k]+r}, v{Oq[k]+4+r}")
        b(f"  s_nop 1")
    b(f"  s_waitcnt lgkmcnt(2)")
    stage('A', [AX, AX + 4])
    b(f"  s_waitcnt lgkmcnt(0)")
    for r in range(4):
        b(f"  v_lshlrev_b32 v{Wq[0]+r}, 16, v{WR+r}")
        b(f"  v_lshlrev_b32 v{Wq[0]+4+r}, 16, v{WI+r}")
        b(f"  v_and_b32 v{Wq[1]+r}, 0xffff0000, v{WR+r}")
        b(f"  v_and_b32 v{Wq[1]+4+r}, 0xffff0000, v{WI+r}")
    twiddle_pack()
    stage('B', Pq)
    b(f"  s_nop 5")
    for k in range(2):
        cmul_pk(b, Oq[k], Oq[k] + 4, Dq[k], Dq[k] + 4, Wq[k], Wq[k] + 4, Tq[k], True)
    for k in range(2):
        for r in range(4):
            b(f"  v_cvt_pk_bf16_f32 v{Pq[k]+r}, v{Oq[k]+r}, -v{Oq[k]+4+r}")
    b(f"  s_nop 1")
    stage('A', Pq)
    b(f"  s_nop 5")
    twiddle_pack()
    stage('B', Pq)
    b(f"  s_nop 5")
    for k in range(2):
        for r in range(4):
            b(f"  v_cvt_pk_bf16_f32 v{Pq[k]+r}, v{Dq[k]+r}, -v{Dq[k]+4+r}")
    b(f"  ds_write_b128 v5, {vr(Pq[0],4)} offset:{L2_X}")
    b(f"  ds_write_b128 v5, {vr(Pq[1],4)} offset:{L2_X+1040}")
    b(f"  s_waitcnt lgkmcnt(0)")
    b(f"  s_barrier")
    for j in range(4):
        b(f"  ds_read_b32 v{XL+j}, v21 offset:{L2_X + j*1040}")
        b(f"  ds_read_b32 v{XL+4+j}, v22 offset:{L2_X + j*1040}")
    b(f"  v_bfe_u32 v16, v0, 2, 4              ; a")
    b(f"  v_lshrrev_b32 v17, 6, v0             ; b")
    b(f"  v_lshl_add_u32 v16, v16, 4, v17      ; s1")
    b(f"  v_lshlrev_b32 v16, 14, v16")
    b(f"  v_and_b32 v17, 3, v0")
    b(f"  v_lshl_add_u32 v16, v17, 4, v16")
    b(f"  s_lshl_b32 s{S_T+4}, s{S_T}, 11")
    b(f"  s_lshl_b32 s{S_T+5}, s{S_T+1}, 6")
    b(f"  s_add_u32 s{S_T+4}, s{S_T+4}, s{S_T+5}")
    b(f"  s_add_u32 s{S_T+5}, s{S_T+4}, {8*16384}")
    b(f"  s_waitcnt lgkmcnt(0)")
    if SENT2():
        for j in range(8): b(f"  v_min_u32 v{XL+j}, 0xfffffffe, v{XL+j}")
    b(f"  buffer_store_dwordx4 {vr(XL,4)}, v16, s[{SRD_B}:{SRD_B+3}], s{S_T+4} offen{SF}")
    b(f"  buffer_store_dwordx4 {vr(XL+4,4)}, v16, s[{SRD_B}:{SRD_B+3}], s{S_T+5} offen{SF}")
    stamp(b, "p2 stores issued")
    if not SENT2():
        b(f"  s_and_b32 s{S_T+8}, s2, 15")
        arrive(b, 1, S_T + 8, label="x2")

V_LO = 224
S_G1A = 60
def g1_ids(b):
    b(f"  s_lshr_b32 s{S_T}, s2, 3                 ; i")
    b(f"  s_cmp_lt_u32 s{S_T}, 28")
    b(f"  s_cselect_b32 s62, 1, 0")
    b(f"  s_mul_i32 s{S_T+1}, s{S_T}, 37")
    b(f"  s_lshr_b32 s{S_T+1}, s{S_T+1}, 8         ; i/7")
    b(f"  s_mul_i32 s{S_T+2}, s{S_T+1}, 7")
    b(f"  s_sub_u32 s{S_T+2}, s{S_T}, s{S_T+2}     ; i%7")
    b(f"  s_and_b32 s{S_T+3}, s2, 7")
    b(f"  s_lshr_b32 s{S_T+4}, s{S_T+3}, 1")
    b(f"  s_mul_i32 s{S_T+4}, s{S_T+4}, 7")
    b(f"  s_add_u32 s60, s{S_T+4}, s{S_T+2}        ; ft")
    b(f"  s_and_b32 s{S_T+3}, s{S_T+3}, 1")
    b(f"  s_lshl_b32 s{S_T+3}, s{S_T+3}, 2")
    b(f"  s_add_u32 s61, s{S_T+3}, s{S_T+1}        ; dt")

S_SOFF, S_M0, S_N = 4, 5, 6
def loader_issue(b, voff, fl=""):
    for i in range(4):
        b(f"  s_add_u32 m0, s{S_M0}, {4096*i}")
        b(f"  s_nop 0")
        b(f"  buffer_load_dwordx4 v{voff+i}, s[{SRD_T}:{SRD_T+3}], s{S_SOFF} offen{fl} lds")
    b(f"  s_add_u32 s{S_SOFF}, s{S_SOFF}, s9")
    b(f"  s_add_u32 s{S_M0}, s{S_M0}, {STAGE}")
    b(f"  s_cmp_ge_u32 s{S_M0}, s{S_N+1}")
    b(f"  s_cselect_b32 s{S_N+2}, {R*STAGE}, 0")
    b(f"  s_sub_u32 s{S_M0}, s{S_M0}, s{S_N+2}")

def loader_init(b, step_bytes):
    b(f"  s_sub_u32 s50, s{S_W}, 4")
    b(f"  s_lshl_b32 s{S_M0}, s50, 10")
    b(f"  s_add_u32 s{S_N+1}, s{S_M0}, {R*STAGE}")
    b(f"  s_mov_b32 s{S_SOFF}, 0")
    b(f"  s_mov_b32 s9, {step_bytes}")

def g1_loader_addr(b):
    b(f"  s_sub_u32 s50, s{S_W}, 4      ; w'")
    for i in range(4):
        b(f"  s_lshl_b32 s49, s50, 2")
        b(f"  s_add_u32 s49, s49, {16*i}")
        b(f"  v_lshrrev_b32 v14, 4, v7")
        b(f"  v_add_u32 v14, s49, v14                 ; row 0..63")
        b(f"  v_and_b32 v15, 3, v14")
        b(f"  v_lshlrev_b32 v15, 2, v15")
        b(f"  v_and_b32 v16, 15, v7")
        b(f"  v_xor_b32 v16, v16, v15                 ; q")
        b(f"  v_lshrrev_b32 v17, 3, v14")
        b(f"  v_and_b32 v18, 7, v14")
        b(f"  v_lshl_add_u32 v17, v18, 8, v17         ; s")
        b(f"  v_mul_u32_u24 v17, 7168, v17")
        b(f"  v_lshl_add_u32 v17, v16, 4, v17")
        b(f"  s_lshl_b32 s49, s60, 8")
        b(f"  v_add_u32 v{V_LO+i}, s49, v17")

def g2_ids(b):
    if SK():
        b(f"  s_lshr_b32 s{S_T+1}, s2, 3")
        b(f"  s_lshr_b32 s{S_TILE_A}, s{S_T+1}, 2          ; dt")
        b(f"  s_lshr_b32 s{S_T}, s2, 1")
        b(f"  s_and_b32 s{S_T}, s{S_T}, 3")
        b(f"  s_lshl_b32 s{S_T}, s{S_T}, 2")
        b(f"  s_and_b32 s{S_T+1}, s{S_T+1}, 3")
        b(f"  s_add_u32 s{S_TILE_B}, s{S_T}, s{S_T+1}      ; st2")
        b(f"  s_and_b32 s19, s2, 1                       ; kh")
        return
    b(f"  s_and_b32 s{S_T}, s2, 1")
    b(f"  s_lshl_b32 s{S_T}, s{S_T}, 2")
    b(f"  s_lshr_b32 s{S_T+1}, s2, 3")
    b(f"  s_and_b32 s{S_T+2}, s{S_T+1}, 3")
    b(f"  s_add_u32 s{S_TILE_A}, s{S_T}, s{S_T+2}     ; dt")
    b(f"  s_lshr_b32 s{S_T}, s2, 1")
    b(f"  s_and_b32 s{S_T}, s{S_T}, 3")
    b(f"  s_lshl_b32 s{S_T}, s{S_T}, 3")
    b(f"  s_lshr_b32 s{S_T+1}, s{S_T+1}, 2")
    b(f"  s_add_u32 s{S_TILE_B}, s{S_T}, s{S_T+1}     ; st")

def g2_loader_addr(b):
    if SK():
        b(f"  s_sub_u32 s50, s{S_W}, 4")
        for i in range(4):
            b(f"  s_lshl_b32 s49, s50, 2")
            b(f"  s_add_u32 s49, s49, {16*i}")
            b(f"  v_lshrrev_b32 v14, 4, v7")
            b(f"  v_add_u32 v14, s49, v14                 ; row 0..63")
            b(f"  v_and_b32 v15, 3, v14")
            b(f"  v_lshlrev_b32 v15, 2, v15")
            b(f"  v_and_b32 v16, 15, v7")
            b(f"  v_xor_b32 v16, v16, v15                 ; q")
            b(f"  v_lshlrev_b32 v14, 12, v14              ; row*4096")
            b(f"  v_lshl_add_u32 v14, v16, 4, v14")
            b(f"  s_lshl_b32 s49, s{S_TILE_B}, 8          ; s0*2")
            b(f"  s_mul_i32 s48, s19, {1792*4096}         ; k half")
            b(f"  s_add_u32 s49, s49, s48")
            b(f"  v_add_u32 v{V_LO+i}, s49, v14")
        return
    b(f"  s_sub_u32 s50, s{S_W}, 4")
    for i in range(4):
        b(f"  s_lshl_b32 s49, s50, 3")
        b(f"  s_add_u32 s49, s49, {32*i}")
        b(f"  v_lshrrev_b32 v14, 3, v7")
        b(f"  v_add_u32 v14, s49, v14                 ; row")
        b(f"  v_bfe_u32 v15, v14, 1, 1")
        b(f"  v_lshlrev_b32 v15, 2, v15")
        b(f"  v_and_b32 v16, 7, v7")
        b(f"  v_xor_b32 v16, v16, v15                 ; q")
        b(f"  v_lshlrev_b32 v14, 12, v14              ; row*4096")
        b(f"  v_lshl_add_u32 v14, v16, 4, v14")
        b(f"  s_lshl_b32 s49, s{S_TILE_B}, 7          ; s0*2")
        b(f"  v_add_u32 v{V_LO+i}, s49, v14")

def loader_loop(b, NS, pre, fl=""):
    if "priol" in OPT: b("  s_setprio 2")
    if "oldstart" in OPT:
        for n in range(R - 4): loader_issue(b, V_LO, fl)
        nmain = NS - (R - 2)
    else:
        b(f"  s_waitcnt vmcnt(4)")
        b("  s_barrier                      ; B_0")
        for n in range(R - 3): loader_issue(b, V_LO, fl)
        nmain = NS - (R - 2) - 1
    b(f"  s_mov_b32 s{S_N}, {nmain}")
    b.label(f"{pre}_lloop")
    b(f"  s_waitcnt vmcnt({(R-3)*4})")
    b("  s_barrier")
    loader_issue(b, V_LO, fl)
    b(f"  s_sub_u32 s{S_N}, s{S_N}, 1")
    b(f"  s_cmp_lg_u32 s{S_N}, 0")
    b(f"  s_cbranch_scc1 {pre}_lloop")
    for i in range(R - 2):
        b(f"  s_waitcnt vmcnt({(R-3-i)*4})")
        b("  s_barrier")

BD3 = 32; XR3 = 192; GM3 = 30
def p3_tables(b):
    b(f"  v_and_b32 v10, 255, v0            ; e")
    b(f"  v_lshrrev_b32 v11, 8, v0")
    b(f"  v_bfe_u32 v12, v10, 2, 4          ; n = lane&15")
    b(f"  v_lshrrev_b32 v13, 6, v10         ; g")
    b(f"  v_and_b32 v14, 3, v10             ; r")
    b(f"  v_lshl_add_u32 v13, v13, 2, v14   ; 4g + r")
    b(f"  v_lshrrev_b32 v15, 2, v12")
    b(f"  v_lshlrev_b32 v15, 3, v15")
    b(f"  v_and_b32 v16, 3, v12")
    b(f"  v_add_u32 v15, v15, v16           ; b(n,0)")
    b(f"  v_lshl_add_u32 v16, v11, 2, v15   ; b(n, sel)")
    b(f"  v_mul_u32_u24 v17, v16, v13")
    sincos(b, 18, 19, 17, 5, 20)
    b(f"  v_lshlrev_b32 v22, 2, v10")
    b(f"  v_lshl_add_u32 v22, v11, 11, v22  ; sel*2048 + e*4")
    b(f"  v_add_u32 v22, {L3_M3}, v22")
    b(f"  v_cvt_pk_bf16_f32 v23, v18, -v19")
    b(f"  v_cvt_pk_bf16_f32 v24, v19, v18")
    b(f"  ds_write_b32 v22, v23")
    b(f"  ds_write_b32 v22, v24 offset:1024")
    b(f"  v_lshl_add_u32 v17, v11, 4, v13   ; k1")
    for z in range(2):
        b(f"  v_add_u32 v21, {16*z}, v12")
        b(f"  v_mul_u32_u24 v21, v21, v17")
        sincos(b, 18, 19, 21, 5, 20)
        b(f"  v_add_f32 v18, v18, v18")
        b(f"  v_mul_f32 v19, -2.0, v19")
        b(f"  v_cvt_pk_bf16_f32 v23, v18, v19")
        b(f"  ds_write_b32 v22, v23 offset:{4096+1024*z}")
    b(f"  v_lshlrev_b32 v23, 2, v10")
    b(f"  v_lshl_add_u32 v23, v11, 12, v23   ; u*4096 + e*4")
    b(f"  v_add_u32 v23, {L3_TW}, v23")
    for v in range(2):
        b(f"  v_add_u32 v21, {4*v}, v15")
        b(f"  v_mul_u32_u24 v21, v21, v17")
        sincos(b, 18, 19, 21, 10, 20)
        b(f"  ds_write_b32 v23, v18 offset:{2048*v}")
        b(f"  ds_write_b32 v23, v19 offset:{2048*v+1024}")

def p3_setup(b):
    srd(b, SRD_A, P_WS, 4 << 20, WS_X2)
    srd(b, SRD_B, P_X, 4 << 20)
    srd(b, SRD_C, P_WS, 4 << 20, WS_H)
    srd(b, SRD_D, P_WS, 4 << 20, WS_LN2)
    b(f"  s_lshl_b32 s{S_T+3}, s{S_W}, 8")
    b(f"  s_add_u32 s{S_T+3}, s{S_T+3}, s2")
    b(f"  s_lshl_b32 s{S_T+3}, s{S_T+3}, 11       ; s*2048")
    b(f"  v_lshlrev_b32 v4, 6, v8")
    b(f"  v_lshl_add_u32 v4, v9, 4, v4")
    if "stash" in OPT:
        b(f"  s_lshl_b32 s{S_T+9}, s{S_W}, 11")
        b(f"  s_add_u32 s{S_T+9}, s{S_T+9}, {L_XS}")
        b(f"  v_add_u32 v2, s{S_T+9}, v4")
        for z in range(2): b(f"  ds_read_b128 {vr(XR3+4*z,4)}, v2 offset:{1024*z}")
    else:
      for z in range(2):
        b(f"  buffer_load_dwordx4 {vr(XR3+4*z,4)}, v4, s[{SRD_B}:{SRD_B+3}], s{S_T+3} offen offset:{1024*z}")
    b(f"  s_mov_b32 s63, s{S_T+3}")
    if SK():
        srd(b, SRD_PF, P_WS, 4 << 20, WS_XCH)
        for i in range(4): b(f"  v_mov_b32 v{200+i}, -1")
        b(f"  v_lshlrev_b32 v2, 4, v0")
        b(f"  s_lshl_b32 s{S_T+8}, s2, 14")
        b(f"  buffer_store_dwordx4 v[200:203], v2, s[{SRD_PF}:{SRD_PF+3}], s{S_T+8} offen{SF}")
        b(f"  s_add_u32 s{S_T+8}, s{S_T+8}, 8192")
        b(f"  buffer_store_dwordx4 v[200:203], v2, s[{SRD_PF}:{SRD_PF+3}], s{S_T+8} offen{SF}")
    if "es" in OPT:
        b(f"  s_cmp_ge_u32 s{S_W}, 4")
        b(f"  s_cbranch_scc1 p3_noclr")
        srd(b, SRD_PF, P_WS, U_BYTES, WS_U)
        b(f"  s_lshr_b32 s{S_T+8}, s2, 3            ; dblk")
        b(f"  s_mul_i32 s{S_T+8}, s{S_T+8}, 229376")
        b(f"  s_lshr_b32 s{S_T+9}, s2, 2")
        b(f"  s_and_b32 s{S_T+9}, s{S_T+9}, 1       ; k half")
        b(f"  s_mul_i32 s{S_T+9}, s{S_T+9}, {112*1024}")
        b(f"  s_add_u32 s{S_T+8}, s{S_T+8}, s{S_T+9}")
        b(f"  s_and_b32 s{S_T+9}, s2, 3")
        b(f"  s_lshl_b32 s{S_T+9}, s{S_T+9}, 12")
        b(f"  s_add_u32 s{S_T+8}, s{S_T+8}, s{S_T+9}")
        b(f"  buffer_store_dwordx4 v[200:203], v2, s[{SRD_PF}:{SRD_PF+3}], s{S_T+8} offen{SF}")
        b.label("p3_noclr")
    if "nopf" not in OPT and "ntw1" not in OPT:
        if PFN[2]:
            w1_share_base(b, S_T + 8, (PFN[0] + PFN[1]) * 4096)
            pf_wide(b, P_W1, W1B, S_T + 8, PFN[2], 4, 8, "pf_p3a")
    g1_ids(b)
    g1_loader_addr(b)
    loader_init(b, 8 * 7168)
    p3_tables(b)
    gmat(b, GM3, 2, True, 10)
    b(f"  v_lshlrev_b32 v1, 12, v9")
    b(f"  v_lshl_add_u32 v1, v8, 2, v1")
    b(f"  s_lshl_b32 s{S_T}, s2, 14")
    b(f"  s_and_b32 s{S_T+1}, s{S_W}, 1")
    b(f"  s_lshl_b32 s{S_T+1}, s{S_T+1}, 6")
    b(f"  s_lshr_b32 s{S_T+2}, s{S_W}, 1")
    b(f"  s_lshl_b32 s{S_T+2}, s{S_T+2}, 9")
    b(f"  s_add_u32 s{S_T}, s{S_T}, s{S_T+1}")
    b(f"  s_add_u32 s44, s{S_T}, s{S_T+2}          ; X2 soffset")
    b(f"  s_lshl_b32 s{S_T+1}, s{S_T+1}, 4        ; u*1024")
    b(f"  s_lshr_b32 s{S_T+2}, s{S_T+2}, 1        ; q4*256")
    b(f"  s_add_u32 s45, s{S_T+1}, s{S_T+2}")
    b(f"  s_waitcnt lgkmcnt(0)")

def p3_main(b):
    Bd, XR, GM = BD3, XR3, GM3
    D = 40
    b(f"  v_lshlrev_b32 v3, 12, v9")
    b(f"  v_lshl_add_u32 v3, v8, 4, v3")
    b(f"  v_add_u32 v3, s45, v3")
    b(f"  v_add_u32 v3, {L3_EX}, v3")
    M3, M4, TW = 96, 112, 128
    b(f"  v_lshlrev_b32 v6, 4, v7")
    b(f"  v_add_u32 v6, {L3_M3}, v6")
    for i in range(4): b(f"  ds_read_b128 {vr(M3+4*i,4)}, v6 offset:{1024*i}")
    for i in range(4): b(f"  ds_read_b128 {vr(M4+4*i,4)}, v6 offset:{4096+1024*i}")
    b(f"  s_waitcnt lgkmcnt(0)")
    for i in range(8): b(f"  ds_read_b128 {vr(TW+4*i,4)}, v6 offset:{8192+1024*i}")
    if SENT2():
        b(f"  s_mov_b32 s11, 200000")
        b.label("p3_poll")
    for i in range(4):
        for e in range(2):
            b(f"  buffer_load_dword v{Bd+2*i+e}, v1, s[{SRD_A}:{SRD_A+3}], s44 offen offset:{e*2048+i*128} sc1")
    b(f"  s_waitcnt vmcnt(0)")
    if SENT2(): sentinel_check(b, Bd, "p3")
    stamp(b, "p3 x2 landed")
    if "nopf" not in OPT and "ntw1" not in OPT and PFN[3]:
        w1_share_base(b, S_T + 8, (PFN[0] + PFN[1] + PFN[2]) * 4096)
        pf_wide(b, P_W1, W1B, S_T + 8, PFN[3], 4, 8, "pf_p3b")
    for i in range(4):
        b(f"  {MF16} {vr(D+4*i,4)}, {vr(GM,2)}, {vr(Bd+2*i,2)}, 0")
    b(f"  s_nop 4")
    PK = 56
    for e in range(2):
        for i in range(4):
            b(f"  v_cvt_pk_bf16_f32 v{PK+4*e+i}, v{D+4*i+2*e}, v{D+4*i+2*e+1}")
    b(f"  ds_write_b128 v3, {vr(PK,4)}")
    b(f"  ds_write_b128 v3, {vr(PK+4,4)} offset:2048")
    b(f"  s_waitcnt lgkmcnt(0)")
    b(f"  s_barrier")
    b(f"  v_lshlrev_b32 v5, 8, v9")
    b(f"  v_lshl_add_u32 v5, v8, 4, v5")
    b(f"  s_lshl_b32 s{S_T+1}, s{S_W}, 11")
    b(f"  s_add_u32 s{S_T+1}, s{S_T+1}, {L3_EX}")
    b(f"  v_add_u32 v5, s{S_T+1}, v5")
    AU = 32
    b(f"  ds_read_b128 {vr(AU,4)}, v5")
    b(f"  ds_read_b128 {vr(AU+4,4)}, v5 offset:1024")
    b(f"  s_waitcnt lgkmcnt(0)")
    b(f"  v_readlane_b32 s{S_T+4}, v{AU}, 0")
    b(f"  v_writelane_b32 v{AU}, 0, 0")
    b(f"  s_nop 1")
    b(f"  s_lshl_b32 s{S_T+4}, s{S_T+4}, 16")
    TT = 160
    for u in range(2):
        for v in range(2):
            for c in range(2):
                d = TT + ((u * 2 + v) * 2 + c) * 4
                b(f"  {MF32} {vr(d,4)}, {vr(AU+4*u,4)}, {vr(M3+4*(2*v+c),4)}, 0")
    CI = 60
    b(f"  v_mov_b32 v{CI}, s{S_T+4}")
    b(f"  v_xor_b32 v{CI+1}, 0x80000000, v{CI}")
    b(f"  v_mov_b32 v{CI+2}, v{CI}")
    b(f"  v_mov_b32 v{CI+3}, v{CI+1}")
    b(f"  s_nop 1")
    A2 = 64; O = 40; W = 80
    for u in range(2):
        for v in range(2):
            t = TT + ((u * 2 + v) * 2) * 4
            tw = TW + ((u * 2 + v) * 2) * 4
            cmul_pk(b, O, O + 4, t, t + 4, tw, tw + 4, W, True)
            for r in range(4):
                b(f"  v_cvt_pk_bf16_f32 v{A2+(u*2+v)*4+r}, v{O+r}, v{O+4+r}")
    Y = 160
    b(f"  s_nop 1")
    for z in range(2):
        for v in range(2):
            d = Y + (z * 2 + v) * 4
            b(f"  {MF32} {vr(d,4)}, {vr(A2+(0*2+v)*4,4)}, {vr(M4+(0*2+z)*4,4)}, {vr(CI,4)}")
    for z in range(2):
        for v in range(2):
            d = Y + (z * 2 + v) * 4
            b(f"  {MF32} {vr(d,4)}, {vr(A2+(1*2+v)*4,4)}, {vr(M4+(1*2+z)*4,4)}, {vr(d,4)}")
    b(f"  s_nop 7")
    X = 40; HP = 32
    stamp(b, "p3 ifft done")
    for z in range(2):
        for dd in range(4):
            y0 = Y + z * 8 + 2 * dd
            xd = XR + 4 * z + dd
            t = 64 + 2 * (dd % 4)
            b(f"  v_lshlrev_b32 v{t}, 16, v{xd}")
            b(f"  v_and_b32 v{t+1}, 0xffff0000, v{xd}")
            b(f"  v_pk_add_f32 {vr(t,2)}, {vr(t,2)}, {vr(y0,2)}")
            b(f"  v_cvt_pk_bf16_f32 v{HP+4*z+dd}, v{t}, v{t+1}")
    for z in range(2):
        b(f"  buffer_store_dwordx4 {vr(HP+4*z,4)}, v4, s[{SRD_C}:{SRD_C+3}], s63 offen offset:{1024*z}{SF}")
    for i in range(8):
        b(f"  v_lshlrev_b32 v{X+2*i}, 16, v{HP+i}")
        b(f"  v_and_b32 v{X+2*i+1}, 0xffff0000, v{HP+i}")
    ln_fast(b, X, 64, S_T + 4, False)
    LP = 72
    stamp(b, "p3 ln done")
    for i in range(8):
        b(f"  v_cvt_pk_bf16_f32 v{LP+i}, v{X+2*i}, v{X+2*i+1}")
    b(f"  v_mul_u32_u24 v3, 80, v8")
    b(f"  v_lshl_add_u32 v3, v9, 4, v3")
    b(f"  s_mul_i32 s{S_T+1}, s{S_W}, {L3_RS}")
    b(f"  s_add_u32 s{S_T+1}, s{S_T+1}, {L3_LN}")
    b(f"  v_add_u32 v3, s{S_T+1}, v3")
    for z in range(2):
        b(f"  ds_write_b128 v3, {vr(LP+4*z,4)} offset:{z*16*80}")
    b(f"  s_waitcnt lgkmcnt(0)")
    b(f"  s_barrier")
    b(f"  v_bfe_u32 v10, v7, 2, 2")
    b(f"  v_mul_u32_u24 v10, {L3_RS}, v10")
    b(f"  v_lshrrev_b32 v11, 5, v7")
    b(f"  v_mul_u32_u24 v12, 80, v11")
    b(f"  v_add_u32 v10, v10, v12")
    b(f"  v_and_b32 v12, 1, v7")
    b(f"  v_lshl_add_u32 v10, v12, 5, v10")
    b(f"  v_bfe_u32 v12, v7, 4, 1")
    b(f"  v_lshl_add_u32 v10, v12, 4, v10")
    b(f"  v_bfe_u32 v12, v7, 1, 1")
    b(f"  v_lshl_add_u32 v10, v12, 3, v10")
    b(f"  s_mul_i32 s{S_T+1}, s{S_W}, {4*80}")
    b(f"  s_add_u32 s{S_T+1}, s{S_T+1}, {L3_LN}")
    b(f"  v_add_u32 v10, s{S_T+1}, v10")
    for ps in range(2):
        b(f"  ds_read_b64_tr_b16 {vr(32+4*ps,2)}, v10 offset:{ps*160}")
        b(f"  ds_read_b64_tr_b16 {vr(34+4*ps,2)}, v10 offset:{ps*160 + 4*L3_RS}")
    b(f"  v_lshlrev_b32 v11, 17, v11")
    b(f"  v_and_b32 v12, 31, v7")
    b(f"  v_lshl_add_u32 v11, v12, 4, v11")
    b(f"  s_lshl_b32 s{S_T+1}, s{S_W}, 19")
    b(f"  s_lshl_b32 s{S_T+2}, s2, 9")
    b(f"  s_add_u32 s{S_T+1}, s{S_T+1}, s{S_T+2}")
    b(f"  s_add_u32 s{S_T+2}, s{S_T+1}, {2*131072}")
    b(f"  s_waitcnt lgkmcnt(2)")
    if "es" in OPT:
        for i in range(4): b(f"  v_min_u32 v{32+i}, 0xfffffffe, v{32+i}")
    b(f"  buffer_store_dwordx4 v[32:35], v11, s[{SRD_D}:{SRD_D+3}], s{S_T+1} offen{SF}")
    b(f"  s_waitcnt lgkmcnt(0)")
    if "es" in OPT:
        for i in range(4): b(f"  v_min_u32 v{36+i}, 0xfffffffe, v{36+i}")
    b(f"  buffer_store_dwordx4 v[36:39], v11, s[{SRD_D}:{SRD_D+3}], s{S_T+2} offen{SF}")
    stamp(b, "p3 stores issued")
    b(f"  s_and_b32 s{S_T+8}, s2, 15")
    arrive(b, 2, S_T + 8, label="x3")
    srd(b, SRD_T, P_W1, W1B)
    b(f"  s_cmp_lt_u32 s{S_W}, 4")
    b(f"  s_cbranch_scc1 p3_nodma")
    b(f"  s_cmp_eq_u32 s62, 0")
    b(f"  s_cbranch_scc1 p3_nodma")
    for n in range(2): loader_issue(b, V_LO, W1F())
    b.label("p3_nodma")

def gemm_core(b, c, pre, after_setup, after_prologue=None, posts=None):
    NB, NS = c.NB, c.NS
    acc = lambda nb: V_ACC + nb * 16
    VT = V_ACC + NB * 16
    VPR = VT + 32
    c.VT, c.VPR = VT, VPR
    c.vend = VPR + 4 * PR
    tf = lambda q: VT + (q % 8) * 4
    pr = lambda j: VPR + (j % PR) * 4
    FPI = 64
    KPI = FPI // NB
    def tread(q):
        ql = q % FPI
        lslot, within = ql // 16, ql % 16
        ks, nb = within // NB, within % NB
        off = lslot * STAGE + ks * 16 * c.rowb
        b(f"  ds_read_b64_tr_b16 {vr(tf(q),2)}, v{V_T+nb} offset:{off}")
        b(f"  ds_read_b64_tr_b16 {vr(tf(q)+2,2)}, v{V_T+nb} offset:{off+4*c.rowb}")
    def pload(j):
        b(f"  buffer_load_dwordx4 {vr(pr(j),4)}, v{V_P}, s[{SRD_P}:{SRD_P+3}], s{S_POFF} offen offset:{(j%4)*1024}{LF}")
        if j % 4 == 3: b(f"  s_add_u32 s{S_POFF}, s{S_POFF}, 4096")
    def mfma(q):
        nb = q % NB; j = q // NB; a = acc(nb)
        if "m16fake" in OPT:
            o = 8 * (j % 2)
            b(f"  v_mfma_f32_16x16x32_bf16 {vr(a+o,4)}, {vr(tf(q),4)}, {vr(pr(j),4)}, {vr(a+o,4)}")
            b(f"  v_mfma_f32_16x16x32_bf16 {vr(a+o+4,4)}, {vr(pr(j),4)}, {vr(tf(q),4)}, {vr(a+o+4,4)}")
            return
        if c.name == "g1":
            b(f"  v_mfma_f32_32x32x16_bf16 {vr(a,16)}, {vr(tf(q),4)}, {vr(pr(j),4)}, {vr(a,16)}")
        else:
            b(f"  v_mfma_f32_32x32x16_bf16 {vr(a,16)}, {vr(pr(j),4)}, {vr(tf(q),4)}, {vr(a,16)}")
    if "prioc" in OPT: b("  s_setprio 2")
    b(f"  s_mov_b32 s{S_POFF}, 0")
    S_EOFF = 18
    if "es" in OPT: b(f"  s_mov_b32 s{S_EOFF}, {3*4096}")
    b(f"  s_mov_b32 s{S_DELTA}, {4*STAGE}")
    b(f"  s_mov_b32 s{S_IT}, {NS//4 - 1}")
    if "es" in OPT:
        b(f"  s_mov_b32 s11, 200000")
        b.label(f"{pre}e0_poll")
        b(f"  buffer_load_dwordx4 {vr(pr(14),4)}, v{V_P}, s[{SRD_P}:{SRD_P+3}], s{S_EOFF} offen offset:2048 sc1")
        b(f"  s_waitcnt vmcnt(0)")
        b(f"  v_max3_u32 v16, v{pr(14)}, v{pr(14)+1}, v{pr(14)+2}")
        b(f"  v_max_u32 v16, v16, v{pr(14)+3}")
        b(f"  v_cmp_eq_u32 vcc, -1, v16")
        b(f"  s_sub_u32 s11, s11, 1")
        b(f"  s_cmp_eq_u32 s11, 0")
        b(f"  s_cbranch_scc1 {pre}e0_got")
        b(f"  s_cmp_lg_u64 vcc, 0")
        b(f"  s_cbranch_scc1 {pre}e0_poll")
        b.label(f"{pre}e0_got")
        b(f"  s_mov_b32 s11, 200000")
        b.label(f"{pre}e_poll")
        for j in range(PR - 2):
            if j % 4 == 0: b(f"  s_mov_b32 s{S_POFF}, {(j//4)*4096}")
            b(f"  buffer_load_dwordx4 {vr(pr(j),4)}, v{V_P}, s[{SRD_P}:{SRD_P+3}], s{S_POFF} offen offset:{(j%4)*1024} sc1")
        b(f"  s_waitcnt vmcnt(0)")
        sentinel_check(b, VPR, f"{pre}e", n=4 * (PR - 2))
        b(f"  s_mov_b32 s{S_POFF}, {3*4096}")
        after_setup()
    else:
        after_setup()
        for j in range(PR - 1): pload(j)
    if after_prologue: after_prologue()
    b("  s_barrier")
    for q in range(DQ): tread(q)
    def body(last):
        for q in range(FPI):
            j = q // NB
            qn = q + DQ
            do_read = not (last and qn >= FPI)
            do_pload = False
            if q % NB == 0:
                rem = KPI - 1 - j
                if (not last) or (j + PR - 1 < KPI):
                    b(f"  s_waitcnt vmcnt({PR-2})")
                    do_pload = True
                else:
                    b(f"  s_waitcnt vmcnt({min(PR-2, rem)})")
            if do_read and qn % 16 == 0:
                b("  s_barrier")
            if do_read and qn == FPI:
                for i in range(NB): b(f"  v_add_u32 v{V_T+i}, s{S_DELTA}, v{V_T+i}")
                b(f"  s_sub_u32 s{S_DELTA}, 0, s{S_DELTA}")
            if q % 2 == 0:
                left = min(DQ - 2, FPI - 2 - q) if last else DQ - 2
                b(f"  s_waitcnt lgkmcnt({2*left})")
            mfma(q)
            if do_pload: pload(j + PR - 1)
            if do_read: tread(qn)
    b.label(f"{pre}_loop")
    body(False)
    b(f"  s_sub_u32 s{S_IT}, s{S_IT}, 1")
    b(f"  s_cmp_lg_u32 s{S_IT}, 0")
    b(f"  s_cbranch_scc1 {pre}_loop")
    if posts is None:
        body(True)
        return
    F = [(q // NB, q % NB) for q in range(16)] + [(4 + r % 12, r // 12) for r in range(48)]
    def tread_f(q):
        j, nb = F[q]
        off = (j // 4) * STAGE + (j % 4) * 16 * c.rowb
        b(f"  ds_read_b64_tr_b16 {vr(tf(q),2)}, v{V_T+nb} offset:{off}")
        b(f"  ds_read_b64_tr_b16 {vr(tf(q)+2,2)}, v{V_T+nb} offset:{off+4*c.rowb}")
    for q in range(FPI):
        j, nb = F[q]
        qn = q + DQ
        first_use = (q < 16 and nb == 0) or (16 <= q < 28)
        if q == 0: b(f"  s_waitcnt vmcnt({PR-2})")
        elif first_use: b(f"  s_waitcnt vmcnt({min(PR-2, KPI - 1 - j)})")
        if q == 9: b("  s_barrier"); b("  s_barrier")
        if q == 13: b("  s_barrier")
        if q % 2 == 0:
            left = min(DQ - 2, FPI - 2 - q)
            b(f"  s_waitcnt lgkmcnt({2*left})")
        a = acc(nb)
        if c.name == "g1":
            b(f"  v_mfma_f32_32x32x16_bf16 {vr(a,16)}, {vr(tf(q),4)}, {vr(pr(j),4)}, {vr(a,16)}")
        else:
            b(f"  v_mfma_f32_32x32x16_bf16 {vr(a,16)}, {vr(pr(j),4)}, {vr(tf(q),4)}, {vr(a,16)}")
        if q == 0: pload(PR - 1)
        if qn < FPI: tread_f(qn)
        if q >= 28:
            blk, r = (q - 16) // 12 - 1, (q - 16) % 12
            fill = posts.get(blk, [])
            if fill and r >= 3:
                n = len(fill); per = -(-n // 9)
                for line in fill[(r - 3) * per:(r - 2) * per]: b(line)

def idle_w1(b):
    srd(b, SRD_PF, P_W1, W1B)
    b(f"  s_and_b32 s51, s50, 7")
    b(f"  s_mul_i32 s51, s51, {256*7168}")
    b(f"  s_lshr_b32 s52, s50, 3")
    b(f"  s_mul_i32 s52, s52, {4*7168}")
    b(f"  s_add_u32 s51, s51, s52")
    b(f"  s_add_u32 s51, s51, {128*7168}")
    b(f"  s_mov_b32 s52, 7")
    b.label("pf_w1b")
    for i in range(4): b(f"  buffer_load_dwordx4 {vr(V_DUMMY,4)}, v29, s[{SRD_PF}:{SRD_PF+3}], s51 offen offset:{1024*i}")
    b(f"  s_add_u32 s51, s51, 4096")
    b(f"  s_waitcnt vmcnt(4)")
    b(f"  s_sub_u32 s52, s52, 1")
    b(f"  s_cmp_lg_u32 s52, 0")
    b(f"  s_cbranch_scc1 pf_w1b")

def idle_w2(b):
    srd(b, SRD_PF, P_W2, W1B)
    if "idleko" in OPT and "idlesc" in OPT:
        b(f"  v_lshlrev_b32 v29, 7, v7")
        for m in range(IDLE_ROUNDS[0]):
            b(f"  s_add_u32 s51, s50, {256*m}")
            b(f"  s_lshr_b32 s52, s51, 5              ; chunk")
            b(f"  s_and_b32 s51, s51, 31")
            b(f"  s_lshl_b32 s51, s51, 13")
            b(f"  s_and_b32 s53, s52, 1")
            b(f"  s_mul_i32 s53, s53, {1792*4096}")
            b(f"  s_lshr_b32 s52, s52, 1")
            b(f"  s_lshl_b32 s52, s52, 18")
            b(f"  s_add_u32 s51, s51, s52")
            b(f"  s_add_u32 s51, s51, s53")
            b(f"  buffer_load_dword v230, v29, s[{SRD_PF}:{SRD_PF+3}], s51 offen")
            if m >= 1: b(f"  s_waitcnt vmcnt(1)")
        b(f"  s_waitcnt vmcnt(0)")
        return
    if "idleko" in OPT:
        b(f"  v_lshlrev_b32 v29, 4, v7")
        b(f"  s_lshl_b32 s51, s50, 10")
        b(f"  s_add_u32 s53, s51, {1792*4096}")
        b(f"  s_mov_b32 s52, 14")
        b.label("pf_w2")
        for i in range(2):
            b(f"  buffer_load_dwordx4 {vr(V_DUMMY,4)}, v29, s[{SRD_PF}:{SRD_PF+3}], s51 offen")
            b(f"  buffer_load_dwordx4 {vr(V_DUMMY,4)}, v29, s[{SRD_PF}:{SRD_PF+3}], s53 offen")
            b(f"  s_add_u32 s51, s51, {64*4096}")
            b(f"  s_add_u32 s53, s53, {64*4096}")
        b(f"  s_waitcnt vmcnt(4)")
        b(f"  s_sub_u32 s52, s52, 1")
        b(f"  s_cmp_lg_u32 s52, 0")
        b(f"  s_cbranch_scc1 pf_w2")
        b(f"  s_waitcnt vmcnt(0)")
        return
    if "idlesc" in OPT:
        b(f"  s_mul_i32 s51, s50, {W1B // 256}")
        b(f"  v_lshlrev_b32 v29, 7, v7")
        for i in range(7):
            b(f"  buffer_load_dword v230, v29, s[{SRD_PF}:{SRD_PF+3}], s51 offen")
            b(f"  s_add_u32 s51, s51, 8192")
            if i >= 1: b(f"  s_waitcnt vmcnt(1)")
        b(f"  s_waitcnt vmcnt(0)")
        return
    b(f"  s_mul_i32 s51, s50, {W1B // 256}")
    b(f"  s_mov_b32 s52, 14")
    b.label("pf_w2")
    for i in range(4): b(f"  buffer_load_dwordx4 {vr(V_DUMMY,4)}, v29, s[{SRD_PF}:{SRD_PF+3}], s51 offen offset:{1024*i}")
    b(f"  s_add_u32 s51, s51, 4096")
    b(f"  s_waitcnt vmcnt({0 if 'idlepace' in OPT else 4})")
    b(f"  s_sub_u32 s52, s52, 1")
    b(f"  s_cmp_lg_u32 s52, 0")
    b(f"  s_cbranch_scc1 pf_w2")
    b(f"  s_waitcnt vmcnt(0)")

def g1_gelu(b, c, blocks, accof, vaddr):
    K1 = -2.0 * 0.7978845608028654 * 1.4426950408889634
    K2 = K1 * 0.044715
    T = c.VPR
    b(f"  v_mov_b32 v{T}, {hex(f2u(K1))}")
    b(f"  v_mov_b32 v{T+1}, {hex(f2u(K1))}")
    b(f"  v_mov_b32 v{T+2}, {hex(f2u(K2))}")
    b(f"  v_mov_b32 v{T+3}, {hex(f2u(K2))}")
    b(f"  s_nop 7")
    W = T + 8
    for fb in blocks:
        a = accof(fb); t = W; o = W + 16 + 8 * (fb % 2)
        for h in range(0, 16, 2): b(f"  v_pk_mul_f32 {vr(t+h,2)}, {vr(a+h,2)}, {vr(a+h,2)}")
        for h in range(0, 16, 2): b(f"  v_pk_fma_f32 {vr(t+h,2)}, {vr(t+h,2)}, {vr(T+2,2)}, {vr(T,2)}")
        for h in range(0, 16, 2): b(f"  v_pk_mul_f32 {vr(t+h,2)}, {vr(t+h,2)}, {vr(a+h,2)}")
        for r in range(16): b(f"  v_exp_f32 v{t+r}, v{t+r}")
        for h in range(0, 16, 2): b(f"  v_pk_add_f32 {vr(t+h,2)}, {vr(t+h,2)}, 1.0 op_sel_hi:[1,0]")
        for r in range(16): b(f"  v_rcp_f32 v{t+r}, v{t+r}")
        for h in range(0, 16, 2): b(f"  v_pk_mul_f32 {vr(t+h,2)}, {vr(a+h,2)}, {vr(t+h,2)}")
        for i in range(4):
            b(f"  v_cvt_pk_bf16_f32 v{o+2*i}, v{t+4*i}, v{t+4*i+1}")
            b(f"  v_cvt_pk_bf16_f32 v{o+2*i+1}, v{t+4*i+2}, v{t+4*i+3}")
        for ip in range(2):
            oo = o + 4 * ip
            b(f"  s_mov_b32 s{S_TMP+1}, {(2*fb+ip)*1024}")
            b(f"  s_nop 0")
            b(f"  v_permlane32_swap_b32 v{oo}, v{oo+2}")
            b(f"  v_permlane32_swap_b32 v{oo+1}, v{oo+3}")
            b(f"  buffer_store_dwordx4 {vr(oo,4)}, v{vaddr}, s[{SRD_O}:{SRD_O+3}], s{S_TMP+1} offen{SF}")

def gelu_lines(fb, a, CT, t, o, vaddr):
    L = []
    for h in range(0, 16, 2): L.append(f"  v_pk_mul_f32 {vr(t+h,2)}, {vr(a+h,2)}, {vr(a+h,2)}")
    for h in range(0, 16, 2): L.append(f"  v_pk_fma_f32 {vr(t+h,2)}, {vr(t+h,2)}, {vr(CT+2,2)}, {vr(CT,2)}")
    for h in range(0, 16, 2): L.append(f"  v_pk_mul_f32 {vr(t+h,2)}, {vr(t+h,2)}, {vr(a+h,2)}")
    for r in range(16): L.append(f"  v_exp_f32 v{t+r}, v{t+r}")
    for h in range(0, 16, 2): L.append(f"  v_pk_add_f32 {vr(t+h,2)}, {vr(t+h,2)}, 1.0 op_sel_hi:[1,0]")
    for r in range(16): L.append(f"  v_rcp_f32 v{t+r}, v{t+r}")
    for h in range(0, 16, 2): L.append(f"  v_pk_mul_f32 {vr(t+h,2)}, {vr(a+h,2)}, {vr(t+h,2)}")
    for i in range(4):
        L.append(f"  v_cvt_pk_bf16_f32 v{o+2*i}, v{t+4*i}, v{t+4*i+1}")
        L.append(f"  v_cvt_pk_bf16_f32 v{o+2*i+1}, v{t+4*i+2}, v{t+4*i+3}")
    if "es" in OPT:
        for i in range(8): L.append(f"  v_min_u32 v{o+i}, 0xfffffffe, v{o+i}")
    for ip in range(2):
        oo = o + 4 * ip
        L.append(f"  s_mov_b32 s{S_TMP+1}, {(2*fb+ip)*1024}")
        L.append(f"  s_nop 1")
        L.append(f"  v_permlane32_swap_b32 v{oo}, v{oo+2}")
        L.append(f"  v_permlane32_swap_b32 v{oo+1}, v{oo+3}")
        L.append(f"  buffer_store_dwordx4 {vr(oo,4)}, v{vaddr}, s[{SRD_O}:{SRD_O+3}], s{S_TMP+1} offen{SF}")
    return L

def g1(b):
    c = g1_cfg()
    b(f"  s_cmp_eq_u32 s62, 0")
    b(f"  s_cbranch_scc1 g1_inactive")
    srd(b, SRD_P, P_WS, 4 << 20, WS_LN2)
    srd(b, SRD_T, P_W1, W1B)
    srd(b, SRD_O, P_WS, U_BYTES, WS_U)
    srd(b, SRD_X, P_B1, 3584 * 2)
    b(f"  s_cmp_ge_u32 s{S_W}, 4")
    b(f"  s_cbranch_scc1 g1_loader")
    lane_geom(b)
    b(f"  s_lshl_b32 s{S_TMP}, s61, 2")
    b(f"  s_add_u32 s{S_TMP}, s{S_TMP}, s{S_W}            ; dblk")
    b(f"  s_lshl_b32 s{S_TMP+2}, s{S_TMP}, 17")
    b(f"  v_lshlrev_b32 v10, 4, v7")
    b(f"  v_add_u32 v{V_P}, s{S_TMP+2}, v10")
    b(f"  s_lshl_b32 s{S_TMP+1}, s60, 8       ; f0*2")
    b(f"  v_lshlrev_b32 v11, 3, v9")
    b(f"  v_add_u32 v11, s{S_TMP+1}, v11")
    BV = 192
    for fb in range(4):
        for i in range(4):
            b(f"  buffer_load_dwordx2 {vr(BV+2*(4*fb+i),2)}, v11, s[{SRD_X}:{SRD_X+3}], 0 offen offset:{64*fb+16*i}")
    b(f"  v_lshl_add_u32 v20, v9, 3, v18")
    b(f"  v_lshlrev_b32 v20, 8, v20")
    b(f"  v_lshl_add_u32 v20, v18, 6, v20")
    b(f"  v_lshl_add_u32 v20, v19, 5, v20")
    b(f"  v_lshl_add_u32 v{V_T}, v22, 3, v20")
    for fb in range(1, 4):
        b(f"  v_xor_b32 v{V_T+fb}, {64*fb}, v{V_T}")
    b(f"  s_mul_i32 s{S_TMP+2}, s{S_TMP}, 229376")
    b(f"  s_lshl_b32 s{S_TMP+1}, s60, 13")
    b(f"  s_add_u32 s{S_TMP+1}, s{S_TMP+1}, s{S_TMP+2}")
    b(f"  v_add_u32 v28, s{S_TMP+1}, v10")
    b(f"  s_waitcnt vmcnt(0)")
    for fb in range(4):
        for i in range(4):
            bv = BV + 2 * (4 * fb + i); a = V_ACC + fb * 16 + 4 * i
            b(f"  v_lshlrev_b32 v{a}, 16, v{bv}")
            b(f"  v_and_b32 v{a+1}, 0xffff0000, v{bv}")
            b(f"  v_lshlrev_b32 v{a+2}, 16, v{bv+1}")
            b(f"  v_and_b32 v{a+3}, 0xffff0000, v{bv+1}")
    def w3():
        wait(b, 2, 16, "x3c")
        stamp(b, "x3 released")
        stamp(b, "c:g1 start")
    SKEW = "skew" in OPT
    if SKEW:
        K1 = -2.0 * 0.7978845608028654 * 1.4426950408889634
        K2 = K1 * 0.044715
        CT, GT, GO = 192, 196, 212
        for i, kv in enumerate((K1, K1, K2, K2)): b(f"  v_mov_b32 v{CT+i}, {hex(f2u(kv))}")
        posts = {fb: gelu_lines(fb, V_ACC + 16 * fb, CT, GT, GO, 28) for fb in range(3)}
        gemm_core(b, c, "g1", w3, None, posts)
    else:
        gemm_core(b, c, "g1", w3)
    stamp(b, "c:g1 end")
    stamp(b, "g1 main done")
    E8 = "epi8" in OPT
    XO = 4 * STAGE
    if E8:
        b(f"  s_lshl_b32 s{S_TMP+1}, s{S_W}, 13")
        b(f"  s_add_u32 s{S_TMP+1}, s{S_TMP+1}, {XO}")
        b(f"  v_add_u32 v12, s{S_TMP+1}, v10")
        b(f"  s_nop 9")
        for k in range(8): b(f"  ds_write_b128 v12, {vr(V_ACC+32+4*k,4)} offset:{1024*k}")
        b(f"  s_waitcnt lgkmcnt(0)")
        b(f"  s_barrier")
    if SKEW:
        b(f"  s_nop 9")
        for line in gelu_lines(3, V_ACC + 48, CT, GT, GO, 28): b(line)
    else:
        g1_gelu(b, c, range(2) if E8 else range(4), lambda fb: V_ACC + fb * 16, 28)
    stamp(b, "g1 stores issued")
    b(f"  s_waitcnt vmcnt(0)")
    b(f"  s_branch g1_join")
    b.label("g1_loader")
    b(f"  s_sub_u32 s50, s{S_W}, 4")
    b(f"  s_lshl_b32 s49, s50, 10")
    b(f"  s_add_u32 s{S_N+1}, s49, {R*STAGE}")
    b(f"  s_barrier                      ; matches the barrier inside wait(x3)")
    loader_loop(b, c.NS, "g1", W1F())
    stamp(b, "g1 main done")
    g2_prologue_loader(b)
    if "epi8" in OPT:
        b(f"  s_sub_u32 s{S_TMP}, s{S_W}, 4")
        b(f"  s_lshl_b32 s{S_TMP+1}, s{S_TMP}, 13")
        b(f"  s_add_u32 s{S_TMP+1}, s{S_TMP+1}, {4*STAGE}")
        b(f"  v_lshlrev_b32 v10, 4, v7")
        b(f"  v_add_u32 v12, s{S_TMP+1}, v10")
        b(f"  s_lshl_b32 s{S_TMP+1}, s61, 2")
        b(f"  s_add_u32 s{S_TMP}, s{S_TMP}, s{S_TMP+1}      ; dblk")
        b(f"  s_mul_i32 s{S_TMP+2}, s{S_TMP}, 229376")
        b(f"  s_lshl_b32 s{S_TMP+1}, s60, 13")
        b(f"  s_add_u32 s{S_TMP+1}, s{S_TMP+1}, s{S_TMP+2}")
        b(f"  v_add_u32 v28, s{S_TMP+1}, v10")
        b(f"  s_barrier")
        for k in range(8): b(f"  ds_read_b128 {vr(V_ACC+4*k,4)}, v12 offset:{1024*k}")
        b(f"  s_waitcnt lgkmcnt(0)")
        g1_gelu(b, c, range(2, 4), lambda fb: V_ACC + (fb - 2) * 16, 28)
        b(f"  s_waitcnt vmcnt(0)")
    stamp(b, "g1 stores issued")
    b.label("g1_join")
    if SK():
        b(f"  s_cmp_ge_u32 s60, 14")
        b(f"  s_cselect_b32 s18, 1, 0")
        b(f"  s_lshl_b32 s10, s61, 1")
        b(f"  s_add_u32 s18, s18, s10")
        arrive(b, 3, 18, label="x4", drained=True)
    else:
        arrive(b, 3, 61, label="x4", drained=True)
    b(f"  s_branch g2_start")
    b.label("g1_inactive")
    if "nopf" not in OPT:
        b(f"  s_sub_u32 s50, s2, 224")
        b(f"  s_lshl_b32 s50, s50, 3")
        b(f"  s_add_u32 s50, s50, s{S_W}")
        b(f"  v_lshlrev_b32 v29, 4, v7")
        if "noidle" not in OPT: idle_w2(b)
    if "es" in OPT: wait(b, 2, 16, "x3i")
    b(f"  s_cmp_lt_u32 s{S_W}, 4")
    b(f"  s_cbranch_scc1 g2_start_inactive")
    g2_prologue_loader(b)
    b.label("g2_start_inactive")
    return c

def g2_prologue_loader(b):
    g2_ids(b)
    srd(b, SRD_T, P_W2, W1B)
    g2_loader_addr(b)
    loader_init(b, (64 if SK() else 128) * 4096)
    for n in range(2): loader_issue(b, V_LO, W2F())

def g2_sk(b):
    c = g1_cfg(); c.name = "g2"; c.NS = 28
    b.label("g2_start")
    g2_ids(b)
    srd(b, SRD_P, P_WS, U_BYTES, WS_U)
    srd(b, SRD_O, P_OUT, 4 << 20)
    srd(b, SRD_X, P_B2, 2048 * 2)
    srd(b, SRD_Y, P_WS, 4 << 20, WS_H)
    b(f"  s_cmp_ge_u32 s{S_W}, 4")
    b(f"  s_cbranch_scc1 g2_loader")
    lane_geom(b)
    b(f"  s_lshl_b32 s{S_TMP}, s{S_TILE_A}, 2")
    b(f"  s_add_u32 s{S_TMP}, s{S_TMP}, s{S_W}        ; dblk")
    b(f"  s_mul_i32 s{S_TMP+2}, s{S_TMP}, 229376")
    b(f"  s_mul_i32 s{S_TMP+3}, s19, {112*1024}       ; k half")
    b(f"  s_add_u32 s{S_TMP+2}, s{S_TMP+2}, s{S_TMP+3}")
    b(f"  v_lshlrev_b32 v10, 4, v7")
    b(f"  v_add_u32 v{V_P}, s{S_TMP+2}, v10")
    b(f"  s_lshl_b32 s{S_TMP+1}, s{S_TILE_B}, 7")
    b(f"  s_lshl_b32 s{S_TMP+3}, s19, 6")
    b(f"  s_add_u32 s{S_TMP+1}, s{S_TMP+1}, s{S_TMP+3}")
    b(f"  v_add_u32 v11, s{S_TMP+1}, v8              ; s0 + s'")
    b(f"  v_lshlrev_b32 v16, 1, v11")
    for sb in range(2):
        b(f"  buffer_load_ushort v{12+sb}, v16, s[{SRD_X}:{SRD_X+3}], 0 offen offset:{64*sb}")
    b(f"  v_lshlrev_b32 v17, 11, v11")
    b(f"  v_lshl_add_u32 v17, v9, 5, v17")
    b(f"  s_lshl_b32 s{S_TMP+2}, s{S_TMP}, 6")
    b(f"  v_add_u32 v28, s{S_TMP+2}, v17")
    HV = 192
    b(f"  v_lshl_add_u32 v20, v9, 3, v18")
    b(f"  v_lshlrev_b32 v20, 8, v20")
    b(f"  v_lshl_add_u32 v20, v18, 6, v20")
    b(f"  v_lshl_add_u32 v20, v19, 5, v20")
    b(f"  v_lshl_add_u32 v{V_T}, v22, 3, v20")
    b(f"  s_cmp_eq_u32 s19, 0")
    b(f"  s_cselect_b32 s{S_TMP+3}, 128, 0")
    b(f"  v_xor_b32 v{V_T}, s{S_TMP+3}, v{V_T}")
    for fb in range(1, 4):
        b(f"  v_xor_b32 v{V_T+fb}, {64*fb}, v{V_T}")
    b(f"  s_lshl_b32 s{S_TMP+1}, s{S_W}, 12")
    b(f"  s_lshl_b32 s{S_TMP+2}, s2, 14")
    b(f"  s_add_u32 s{S_TMP+2}, s{S_TMP+2}, s{S_TMP+1}")
    b(f"  v_add_u32 v29, s{S_TMP+2}, v10")
    b(f"  s_xor_b32 s{S_TMP+2}, s2, 1")
    b(f"  s_lshl_b32 s{S_TMP+2}, s{S_TMP+2}, 14")
    b(f"  s_add_u32 s{S_TMP+2}, s{S_TMP+2}, s{S_TMP+1}")
    b(f"  v_add_u32 v30, s{S_TMP+2}, v10")
    for i in range(64): b(f"  v_mov_b32 v{V_ACC+i}, 0")
    def w4():
        b(f"  s_lshl_b32 s18, s{S_TILE_A}, 1")
        b(f"  s_add_u32 s18, s18, s19")
        wait(b, 3, 14, "x4c", single_sreg=18)
        stamp(b, "x4 released")
        stamp(b, "c:g2 start")
    def hloads():
        for sb in range(2):
            b(f"  s_mov_b32 s{S_TMP+1}, {sb*65536}")
            b(f"  buffer_load_dwordx4 {vr(HV+8*sb,4)}, v28, s[{SRD_Y}:{SRD_Y+3}], s{S_TMP+1} offen{LF}")
            b(f"  buffer_load_dwordx4 {vr(HV+8*sb+4,4)}, v28, s[{SRD_Y}:{SRD_Y+3}], s{S_TMP+1} offen offset:16{LF}")
    srd_later = True
    def send_lines(k):
        T0 = 208 + 8 * k; a = V_ACC + 16 * k
        L = [f"  v_cvt_pk_bf16_f32 v{T0+i}, v{a+2*i}, v{a+2*i+1}" for i in range(8)]
        L += [f"  v_min_u32 v{T0+i}, 0xfffffffe, v{T0+i}" for i in range(8)]
        L += [f"  buffer_store_dwordx4 {vr(T0+4*p,4)}, v30, s[{SRD_X}:{SRD_X+3}], 0 offen offset:{(2*k+p)*1024}{SF}" for p in range(2)]
        return L
    def hloads2():
        hloads()
    if "skew" in OPT:
        def w4x():
            w4()
        def hl():
            hloads()
        b(f"  s_waitcnt vmcnt(0)")
        srd(b, SRD_X, P_WS, 4 << 20, WS_XCH)
        gemm_core(b, c, "g2", w4, hloads, {0: send_lines(0), 1: send_lines(1)})
    else:
        gemm_core(b, c, "g2", w4, hloads)
    stamp(b, "c:g2 end")
    stamp(b, "g2 main done")
    T = c.VT
    if "skew" not in OPT:
        srd(b, SRD_X, P_WS, 4 << 20, WS_XCH)
        b(f"  s_nop 9")
        for k in range(2):
            for line in send_lines(k): b(line)
    KEEP = V_ACC + 32
    RX = c.VPR
    b(f"  s_mov_b32 s11, 200000")
    b.label("g2x_poll")
    for k in range(4):
        b(f"  buffer_load_dwordx4 {vr(RX+4*k,4)}, v29, s[{SRD_X}:{SRD_X+3}], 0 offen offset:{k*1024} sc1")
    b(f"  s_waitcnt vmcnt(0)")
    sentinel_check(b, RX, "g2x", n=16)
    stamp(b, "g2 x landed")
    b(f"  s_mov_b32 s{S_TMP}, 0xffff0000")
    for blk in range(2):
        for i in range(8):
            a = KEEP + blk * 16 + 2 * i; r = RX + 8 * blk + i
            b(f"  v_lshlrev_b32 v16, 16, v{r}")
            b(f"  v_and_b32 v17, s{S_TMP}, v{r}")
            b(f"  v_add_f32 v{a}, v{a}, v16")
            b(f"  v_add_f32 v{a+1}, v{a+1}, v17")
    for sb in range(2):
        b(f"  v_lshlrev_b32 v{12+sb}, 16, v{12+sb}")
    OL = "outlds" in OPT
    if OL:
        OS = 4 * STAGE
        b(f"  v_mul_u32_u24 v14, 272, v8           ; s' * 272")
        b(f"  v_lshl_add_u32 v14, v9, 5, v14       ; + h*32")
        b(f"  s_lshl_b32 s{S_TMP+1}, s{S_W}, 6")
        b(f"  s_add_u32 s{S_TMP+1}, s{S_TMP+1}, {OS}")
        b(f"  v_add_u32 v14, s{S_TMP+1}, v14")
    for sb in range(2):
        for half in range(2):
            o = T + 4 * ((sb * 2 + half) % 2) if not OL else T + 16 + 4 * (sb * 2 + half)
            for dd in range(4):
                a = KEEP + sb * 16 + half * 8 + 2 * dd
                hv = HV + 8 * sb + 4 * half + dd
                t0 = T + 8 + 2 * dd if OL else T + 8 + 4 * dd
                b(f"  v_lshlrev_b32 v{t0}, 16, v{hv}")
                b(f"  v_and_b32 v{t0+1}, s{S_TMP}, v{hv}")
                b(f"  v_pk_add_f32 {vr(t0,2)}, {vr(t0,2)}, {vr(a,2)}")
                b(f"  v_add_f32 v{t0}, v{t0}, v{12+sb}")
                b(f"  v_add_f32 v{t0+1}, v{t0+1}, v{12+sb}")
                b(f"  v_cvt_pk_bf16_f32 v{o+dd}, v{t0}, v{t0+1}")
            if OL:
                b(f"  ds_write_b128 v14, {vr(o,4)} offset:{sb*32*272 + 16*half}")
            else:
                b(f"  s_mov_b32 s{S_TMP+1}, {sb*65536}")
                if "noout" not in OPT: b(f"  buffer_store_dwordx4 {vr(o,4)}, v28, s[{SRD_O}:{SRD_O+3}], s{S_TMP+1} offen offset:{16*half}{OF()}")
    if OL:
        b(f"  v_lshrrev_b32 v15, 4, v7")
        b(f"  s_lshl_b32 s{S_TMP+1}, s{S_W}, 4")
        b(f"  v_add_u32 v15, s{S_TMP+1}, v15          ; row (i = 0)")
        b(f"  v_and_b32 v16, 15, v7")
        b(f"  v_mul_u32_u24 v14, 272, v15")
        b(f"  v_lshl_add_u32 v14, v16, 4, v14")
        b(f"  v_add_u32 v14, {OS}, v14")
        b(f"  s_lshl_b32 s{S_TMP+1}, s{S_TILE_B}, 7")
        b(f"  s_lshl_b32 s{S_TMP+2}, s19, 6")
        b(f"  s_add_u32 s{S_TMP+1}, s{S_TMP+1}, s{S_TMP+2}")
        b(f"  v_add_u32 v15, s{S_TMP+1}, v15")
        b(f"  v_lshlrev_b32 v15, 11, v15")
        b(f"  v_lshl_add_u32 v15, v16, 4, v15")
        b(f"  s_lshl_b32 s{S_TMP+1}, s{S_TILE_A}, 8")
        b(f"  v_add_u32 v15, s{S_TMP+1}, v15")
        b(f"  s_waitcnt lgkmcnt(0)")
        b(f"  s_barrier")
        for i in range(4): b(f"  ds_read_b128 {vr(T+4*i,4)}, v14 offset:{i*4*272}")
        for i in range(4):
            b(f"  s_waitcnt lgkmcnt({3-i})")
            b(f"  s_mov_b32 s{S_TMP+1}, {i*4*2048}")
            b(f"  buffer_store_dwordx4 {vr(T+4*i,4)}, v15, s[{SRD_O}:{SRD_O+3}], s{S_TMP+1} offen{OF()}")
    stamp(b, "g2 stores issued")
    b(f"  s_branch g2_done")
    b.label("g2_loader")
    b(f"  s_barrier                      ; matches the barrier inside wait(x4)")
    loader_loop(b, c.NS, "g2", W2F())
    b.label("g2_done")

def g2(b):
    if SK(): return g2_sk(b)
    c = g2_cfg()
    b.label("g2_start")
    g2_ids(b)
    srd(b, SRD_P, P_WS, U_BYTES, WS_U)
    srd(b, SRD_O, P_OUT, 4 << 20)
    srd(b, SRD_X, P_B2, 2048 * 2)
    srd(b, SRD_Y, P_WS, 4 << 20, WS_H)
    b(f"  s_cmp_ge_u32 s{S_W}, 4")
    b(f"  s_cbranch_scc1 g2_loader")
    lane_geom(b)
    b(f"  s_lshl_b32 s{S_TMP}, s{S_TILE_A}, 2")
    b(f"  s_add_u32 s{S_TMP}, s{S_TMP}, s{S_W}        ; dblk")
    b(f"  s_mul_i32 s{S_TMP+2}, s{S_TMP}, 229376")
    b(f"  v_lshlrev_b32 v10, 4, v7")
    b(f"  v_add_u32 v{V_P}, s{S_TMP+2}, v10")
    b(f"  s_lshl_b32 s{S_TMP+1}, s{S_TILE_B}, 6       ; s0")
    b(f"  v_add_u32 v11, s{S_TMP+1}, v8              ; s0 + s'")
    b(f"  v_lshlrev_b32 v16, 1, v11")
    for sb in range(2):
        b(f"  buffer_load_ushort v{12+sb}, v16, s[{SRD_X}:{SRD_X+3}], 0 offen offset:{64*sb}")
    b(f"  v_lshlrev_b32 v17, 11, v11")
    b(f"  v_lshl_add_u32 v17, v9, 5, v17")
    b(f"  s_lshl_b32 s{S_TMP+2}, s{S_TMP}, 6")
    b(f"  v_add_u32 v28, s{S_TMP+2}, v17")
    HV = 160
    b(f"  v_lshl_add_u32 v20, v9, 3, v18            ; row")
    b(f"  v_bfe_u32 v21, v18, 1, 1")
    b(f"  v_lshlrev_b32 v20, 7, v20")
    b(f"  v_lshl_add_u32 v20, v21, 6, v20")
    b(f"  v_lshl_add_u32 v20, v19, 5, v20")
    b(f"  v_lshl_add_u32 v{V_T}, v22, 3, v20")
    b(f"  v_xor_b32 v{V_T+1}, 64, v{V_T}")
    for i in range(32): b(f"  v_mov_b32 v{V_ACC+i}, 0")
    def w4():
        wait(b, 3, 28, "x4c", single_sreg=S_TILE_A)
        stamp(b, "x4 released")
        stamp(b, "c:g2 start")
    def hloads():
        for sb in range(2):
            b(f"  s_mov_b32 s{S_TMP+1}, {sb*65536}")
            b(f"  buffer_load_dwordx4 {vr(HV+8*sb,4)}, v28, s[{SRD_Y}:{SRD_Y+3}], s{S_TMP+1} offen{LF}")
            b(f"  buffer_load_dwordx4 {vr(HV+8*sb+4,4)}, v28, s[{SRD_Y}:{SRD_Y+3}], s{S_TMP+1} offen offset:16{LF}")
    gemm_core(b, c, "g2", w4, hloads)
    stamp(b, "c:g2 end")
    stamp(b, "g2 main done")
    T = c.VT
    b(f"  s_mov_b32 s{S_TMP}, 0xffff0000")
    for sb in range(2):
        b(f"  v_lshlrev_b32 v{12+sb}, 16, v{12+sb}")
    b(f"  s_nop 9")
    for sb in range(2):
        for half in range(2):
            o = T + 4 * ((sb * 2 + half) % 2)
            for dd in range(4):
                a = V_ACC + sb * 16 + half * 8 + 2 * dd
                hv = HV + 8 * sb + 4 * half + dd
                t0 = T + 8 + 4 * dd
                b(f"  v_cvt_pk_bf16_f32 v{t0}, v{a}, v{a+1}")
                b(f"  v_and_b32 v{t0+1}, s{S_TMP}, v{t0}")
                b(f"  v_lshlrev_b32 v{t0}, 16, v{t0}")
                b(f"  v_add_f32 v{t0}, v{t0}, v{12+sb}")
                b(f"  v_add_f32 v{t0+1}, v{t0+1}, v{12+sb}")
                b(f"  v_cvt_pk_bf16_f32 v{t0}, v{t0}, v{t0+1}")
                b(f"  v_and_b32 v{t0+1}, s{S_TMP}, v{t0}")
                b(f"  v_lshlrev_b32 v{t0}, 16, v{t0}")
                b(f"  v_lshlrev_b32 v{t0+2}, 16, v{hv}")
                b(f"  v_and_b32 v{t0+3}, s{S_TMP}, v{hv}")
                b(f"  v_add_f32 v{t0}, v{t0}, v{t0+2}")
                b(f"  v_add_f32 v{t0+1}, v{t0+1}, v{t0+3}")
                b(f"  v_cvt_pk_bf16_f32 v{o+dd}, v{t0}, v{t0+1}")
            b(f"  s_mov_b32 s{S_TMP+1}, {sb*65536}")
            b(f"  buffer_store_dwordx4 {vr(o,4)}, v28, s[{SRD_O}:{SRD_O+3}], s{S_TMP+1} offen offset:{16*half}")
    stamp(b, "g2 stores issued")
    b(f"  s_branch g2_done")
    b.label("g2_loader")
    b(f"  s_barrier                      ; matches the barrier inside wait(x4)")
    loader_loop(b, c.NS, "g2", W2F())
    b.label("g2_done")

DESC = """
One persistent launch, 256 workgroups (one per CU) x 8 waves, five phases separated by device-wide hand-offs.
  P1  workgroup p: rows s = p + 256 t (t = wave).  LayerNorm, 1024-point real FFT of each row as 32 x 32 (two MFMA stages,
      fp32 twiddles in between), then the radix-8 step of the S-direction FFT across the 8 rows (MFMA, twiddle folded in).
      Spectrum is kept for bins k = 1..511 plus the Nyquist bin in slot 0: the DC bin of a LayerNorm output row is exactly 0.
  P2  workgroup (j1, 16 bins): 256-point FFT over p as 16 x 16, multiply by the filter, inverse 256-point FFT.
  P3  inverse radix-8 step, inverse row FFT (c2r), residual h = x + y, LayerNorm -> ln2 in MFMA fragment order.
  G1  u = gelu(w1^T ln2 + b1): 128 x 128 tiles, waves 0-3 compute (32x32x16 MFMA), waves 4-7 stream w1 into an LDS ring.
  G2  out = h + w2^T u + b2: 128 x 128 tiles over half of K each, partner workgroups swap bf16 partial sums.
Hand-offs: write-through stores, drained, then sharded counters in d_ws (reset in this launch, published via d_debug) or,
for the partial sums, slots pre-filled in this launch with an all-ones word that real data never contains.
"""

def build():
    NAME = "sequential_preLN__spectral_gfnet__mixer_token_mlp__prompt"
    hdr = open(f"cdna_kernels/{NAME}.s.ref").read().split("; Override launch")[0]
    K = NAME + "_kernel"
    b = B()
    b(hdr.rstrip("\n"))
    b(f"; @launch grid=(256,1,1) block=(512,1,1) lds={LDS_TOTAL}")
    for l in DESC.strip("\n").split("\n"): b("; " + l if l else ";")
    b('.amdgcn_target "amdgcn-amd-amdhsa--gfx950"\n.text')
    b(f".globl {K}\n.p2align 8\n.type {K},@function\n{K}:")
    b(f"  s_cmp_ge_u32 s2, 256\n  s_cbranch_scc1 k_exit")
    if "stamp" in OPT: b("  v_mov_b32 v231, 0")
    stamp(b, "entry")
    b(f"  s_load_dwordx4 s[{P_X}:{P_X+3}], s[0:1], 0        ; x, w_r")
    b(f"  s_load_dwordx2 s[{P_WI}:{P_WI+1}], s[0:1], 16")
    b(f"  s_load_dwordx2 s[{P_W1}:{P_W1+1}], s[0:1], 32")
    b(f"  s_load_dwordx4 s[{P_B1}:{P_B1+3}], s[0:1], 40     ; b1, w2")
    b(f"  s_load_dwordx4 s[{P_B2}:{P_B2+3}], s[0:1], 56     ; b2, out")
    b(f"  s_load_dwordx4 s[{P_DBG}:{P_DBG+3}], s[0:1], 72")
    b(f"  v_lshrrev_b32 v6, 6, v0")
    b(f"  v_and_b32 v7, 63, v0        ; lane")
    b(f"  v_readfirstlane_b32 s{S_W}, v6")
    b(f"  v_and_b32 v8, 15, v7          ; c")
    b(f"  v_lshrrev_b32 v9, 4, v7       ; g")
    b(f"  s_waitcnt lgkmcnt(0)")
    srd(b, SRD_CNT, P_WS, 65536, WS_CNT)
    p1(b)
    p2_setup(b)
    wait(b, 0, 16, "x1c")
    stamp(b, "x1 released")
    p2_main(b)
    p3_setup(b)
    if SENT2(): b("  s_barrier")
    else: wait(b, 1, 16, "x2c")
    stamp(b, "x2 released")
    p3_main(b)
    g1(b)
    g2(b)
    b(f"  s_waitcnt vmcnt(0)")
    stamp(b, "end")
    stamp_flush(b)
    b("k_exit:\n  s_endpgm")
    b(kd(K, 240, sgpr=102))
    return b.text()

if __name__ == "__main__":
    out = sys.argv[1]
    OPT.update(sys.argv[2:])
    if "lfplain" not in OPT: LF = " sc1"
    for o in sys.argv[2:]:
        if o.startswith("ir="): IDLE_ROUNDS[0] = int(o[3:])
        if o.startswith("pfn="): PFN[:] = [int(c) for c in o[4:].split(",")]
    gemm.OPT.update(sys.argv[2:])
    t = build()
    open(out, "w").write(t)
    rep = check_text(t)
    print("\n".join(rep) if rep else "no hazards found", "| stamps:", nstamp[0])
```

```python
import sys
from asmlib import *
import gemm, fft
from gemm import (srd, f2u, WS_X1, WS_X2, WS_H, WS_LN2, WS_U, U_BYTES, S_W, R, STAGE, PR, DQ,
                  V_P, V_T, V_ACC, S_POFF, S_IT, S_DELTA, SRD_P, SRD_T, SRD_O, SRD_X, SRD_Y, S_TILE_A, S_TILE_B, S_TMP,
                  g1_cfg, g2_cfg, lane_geom)
from fft import sincos, wave_reduce, ln_finish, layernorm16, cmul_pk, gmat, MF32, MF16

OPT = set()
N7 = [0]
IDLE_ROUNDS = [7]
WPN = [0]
PFN = [0, 4, 0, 4]
WS_CNT = 30 << 20
WS_STAMP = 31 << 20
WS_WP = 32 << 20
WS_XCH = 24 << 20
W1B = 2048 * 3584 * 2
WB = 2048 * 1026

P_X, P_WR, P_WI, P_W1, P_B1, P_W2, P_B2, P_OUT, P_DBG, P_WS = 64, 66, 68, 70, 72, 74, 76, 78, 80, 82
SRD_CNT = 12
S_T = 46
SRD_A, SRD_B, SRD_C, SRD_D = 24, 28, 32, 36
SRD_PF = 56
S_STAMP = 84
SF = " sc1"
LF = ""

L1_M1, L1_M2, L1_TW, L1_EX = 0, 4096, 8192, 16384
L2_F = 32768; L2_X = L2_F + 2048; L2_W = L2_X + 16 * 1040
L3_M3 = 98304; L3_M4 = L3_M3 + 4096; L3_TW = L3_M3 + 8192; L3_EX = L3_M3 + 16384
L3_LN = L3_EX + 16384; L3_RS = 2624
LDS_TOTAL = L3_LN + 8 * L3_RS
assert LDS_TOTAL <= 163840

STAMPS = ["entry", "p1 x landed", "p1 stores issued", "p1 arrived", "x1 released", "p2 x landed", "p2 stores issued",
          "x2 released", "p3 x2 landed", "p3 stores issued", "x3 released", "g1 main done", "g1 stores issued", "x4 released",
          "g2 main done", "g2 stores issued", "end", "x1 drained", "x2 drained", "x3 drained", "x4 drained", "p1 tables done", "p1 ln done", "p1 fft done", "p3 ifft done", "p3 ln done", "c:g1 start", "c:g1 end", "c:g2 start", "c:g2 end", "g2 x landed", "p2 w landed"]
nstamp = [len(STAMPS)]
SENT = lambda: "bar" not in OPT
SENT2 = lambda: "bar" not in OPT or "sent2" in OPT
SK = lambda: "nosk" not in OPT
W1F = lambda: " nt" if "ntw1" in OPT else ""
W2F = lambda: " nt" if "ntw2" in OPT else ""
XF = lambda: " nt" if ("ntx" in OPT or "ntx1" in OPT) else ""
OF = lambda: " sc1" if "outsc1" in OPT else (" nt" if "outnt" in OPT else "")
WF = lambda: " nt" if ("ntx" in OPT or "ntw" in OPT) else ""
L_XS = 69632
def stamp(b, name):
    if "stamp" not in OPT: return
    i = STAMPS.index(name)
    op = "s_memtime" if name.startswith("c:") else "s_memrealtime"
    b(f"  {op} s[{S_STAMP}:{S_STAMP+1}]   ; stamp {i}: {name}")
    b(f"  s_waitcnt lgkmcnt(0)")
    b(f"  v_writelane_b32 v231, s{S_STAMP}, {i}")

def stamp_flush(b):
    if "stamp" not in OPT: return
    if "dbgmax" in OPT:
        SEL = [1, 23, 2, 17, 3, 4, 5, 6, 18, 7, 8, 9, 19, 10]
        srd(b, 24, P_DBG, 256)
        b(f"  v_readlane_b32 s46, v231, 0")
        b(f"  s_sub_u32 s47, 0, s46")
        b(f"  v_mov_b32 v3, 0")
        b(f"  v_writelane_b32 v3, s47, 0")
        b(f"  v_writelane_b32 v3, s46, 15")
        for i, st in enumerate(SEL):
            b(f"  v_readlane_b32 s46, v231, {st}")
            b(f"  s_nop 3")
            b(f"  v_writelane_b32 v3, s46, {i+1}")
        b(f"  v_lshlrev_b32 v2, 2, v7")
        b(f"  s_mov_b64 s[48:49], exec")
        b(f"  s_mov_b64 exec, 0xffff")
        b(f"  buffer_atomic_umax v3, v2, s[24:27], 0 offen sc1")
        b(f"  s_mov_b64 exec, s[48:49]")
        return
    if "dbgtime" in OPT:
        b(f"  s_cmp_lg_u32 s2, 100")
        b(f"  s_cbranch_scc1 dbg_skip")
        b(f"  s_cmp_lg_u32 s{S_W}, 0")
        b(f"  s_cbranch_scc1 dbg_skip")
        srd(b, 24, P_DBG, 256)
        b(f"  v_readlane_b32 s46, v231, 0")
        b(f"  s_nop 1")
        b(f"  v_subrev_u32 v3, s46, v231")
        b(f"  v_lshlrev_b32 v2, 2, v7")
        b(f"  v_subrev_u32 v2, 4, v2")
        b(f"  s_mov_b64 s[48:49], exec")
        b(f"  s_mov_b64 exec, 0x1fffe")
        b(f"  buffer_store_dword v3, v2, s[24:27], 0 offen")
        b(f"  s_mov_b64 exec, s[48:49]")
        b.label("dbg_skip")
        return
    srd(b, 24, P_WS, 1 << 20, WS_STAMP)
    b(f"  s_lshl_b32 s46, s2, 3")
    b(f"  s_add_u32 s46, s46, s{S_W}")
    b(f"  s_lshl_b32 s46, s46, 7            ; (wg*8+wave)*128")
    b(f"  v_lshlrev_b32 v2, 2, v7")
    b(f"  s_mov_b64 s[48:49], exec")
    b(f"  s_mov_b64 exec, 0xffffffff")
    b(f"  buffer_store_dword v231, v2, s[24:27], s46 offen")
    b(f"  s_mov_b64 exec, s[48:49]")

def arrive(b, bar, shard_sreg, first=False, label="", drained=False):
    if not drained: b(f"  s_waitcnt vmcnt(0)")
    stamp(b, f"x{bar+1} drained")
    b(f"  s_barrier")
    b(f"  s_cmp_lg_u32 s{S_W}, 0")
    b(f"  s_cbranch_scc1 {label}_arr_skip")
    if first:
        b(f"  s_mov_b32 s11, 100000")
        b.label(f"{label}_rdy")
        b(f"  v_cmp_ne_u32 vcc, 0, v27")
        b(f"  s_nop 1")
        b(f"  s_cmp_eq_u64 vcc, exec")
        b(f"  s_cbranch_scc1 {label}_rdy_ok")
        b(f"  buffer_load_dword v27, v26, s[{SRD_PF}:{SRD_PF+3}], 0 offen sc1")
        b(f"  s_waitcnt vmcnt(0)")
        b(f"  s_sub_u32 s11, s11, 1")
        b(f"  s_cmp_lg_u32 s11, 0")
        b(f"  s_cbranch_scc1 {label}_rdy")
        b.label(f"{label}_rdy_ok")
    b(f"  s_lshl_b32 s10, s{shard_sreg}, 8")
    b(f"  s_add_u32 s10, s10, {bar*4096}")
    b(f"  v_mov_b32 v228, s10")
    b(f"  v_mov_b32 v229, 1")
    b(f"  s_mov_b64 s[16:17], exec")
    b(f"  s_mov_b64 exec, 1")
    b(f"  buffer_atomic_add v229, v228, s[{SRD_CNT}:{SRD_CNT+3}], 0 offen sc1")
    b(f"  s_mov_b64 exec, s[16:17]")
    b.label(f"{label}_arr_skip")

def wait(b, bar, target, label, single_sreg=None):
    b(f"  s_cmp_lg_u32 s{S_W}, 0")
    b(f"  s_cbranch_scc1 {label}_w_skip")
    if single_sreg is None:
        b(f"  v_and_b32 v228, 15, v7")
        b(f"  v_lshlrev_b32 v228, 8, v228")
        b(f"  v_add_u32 v228, {bar*4096}, v228")
    else:
        b(f"  s_lshl_b32 s10, s{single_sreg}, 8")
        b(f"  s_add_u32 s10, s10, {bar*4096}")
        b(f"  v_mov_b32 v228, s10")
    b(f"  s_mov_b32 s11, 200000")
    if "pp" in OPT:
        b(f"  buffer_load_dword v229, v228, s[{SRD_CNT}:{SRD_CNT+3}], 0 offen sc1")
        b(f"  s_nop 15")
        b(f"  s_nop 15")
        b(f"  buffer_load_dword v226, v228, s[{SRD_CNT}:{SRD_CNT+3}], 0 offen sc1")
        b.label(f"{label}_poll")
        for r in (229, 226):
            b(f"  s_waitcnt vmcnt(1)")
            b(f"  v_cmp_le_u32 vcc, {target}, v{r}")
            b(f"  s_nop 1")
            b(f"  s_cmp_eq_u64 vcc, exec")
            b(f"  s_cbranch_scc1 {label}_w_skip")
            b(f"  buffer_load_dword v{r}, v228, s[{SRD_CNT}:{SRD_CNT+3}], 0 offen sc1")
        b(f"  s_sub_u32 s11, s11, 1")
        b(f"  s_cmp_lg_u32 s11, 0")
        b(f"  s_cbranch_scc1 {label}_poll")
    else:
        b.label(f"{label}_poll")
        b(f"  buffer_load_dword v229, v228, s[{SRD_CNT}:{SRD_CNT+3}], 0 offen sc1")
        b(f"  s_waitcnt vmcnt(0)")
        b(f"  v_cmp_le_u32 vcc, {target}, v229")
        b(f"  s_nop 1")
        b(f"  s_cmp_eq_u64 vcc, exec")
        b(f"  s_cbranch_scc1 {label}_w_skip")
        b(f"  s_sub_u32 s11, s11, 1")
        b(f"  s_cmp_lg_u32 s11, 0")
        b(f"  s_cbranch_scc1 {label}_poll")
    b.label(f"{label}_w_skip")
    b(f"  s_barrier")

def prefetch(b, ptr_pair, nbytes, start, length, who_scale, who_sreg, vaddr, vdst, stmp, paced=False):
    chunk = -(-length // who_scale)
    n_per_wave = -(-chunk // (512 * 128))
    stride = -(-chunk // (512 * n_per_wave))
    stride = (stride + 3) // 4 * 4
    per_instr = 64 * stride
    srd(b, SRD_PF, ptr_pair, nbytes)
    b(f"  s_mul_i32 s{stmp}, s{who_sreg}, {chunk}")
    b(f"  s_mul_i32 s{stmp+1}, s{S_W}, {n_per_wave*per_instr}")
    b(f"  s_add_u32 s{stmp}, s{stmp}, s{stmp+1}")
    if start: b(f"  s_add_u32 s{stmp}, s{stmp}, {start}")
    b(f"  v_mul_u32_u24 v{vaddr}, {stride}, v7")
    for i in range(n_per_wave):
        b(f"  buffer_load_dword v{vdst}, v{vaddr}, s[{SRD_PF}:{SRD_PF+3}], s{stmp} offen")
        if i + 1 < n_per_wave: b(f"  s_add_u32 s{stmp}, s{stmp}, {per_instr}")
        if paced: b(f"  s_waitcnt vmcnt(0)")
    return n_per_wave

V_DUMMY = 232
def pf_wide(b, ptr_pair, nbytes, s_base, n, wave_lo, wave_hi, label):
    b(f"  s_cmp_lt_u32 s{S_W}, {wave_lo}")
    b(f"  s_cbranch_scc1 {label}")
    if wave_hi < 8:
        b(f"  s_cmp_ge_u32 s{S_W}, {wave_hi}")
        b(f"  s_cbranch_scc1 {label}")
    srd(b, SRD_PF, ptr_pair, nbytes)
    b(f"  s_sub_u32 s{S_T+9}, s{S_W}, {wave_lo}")
    b(f"  s_mul_i32 s{S_T+9}, s{S_T+9}, {n*1024}")
    b(f"  s_add_u32 s{S_T+9}, s{S_T+9}, s{s_base}")
    b(f"  v_lshlrev_b32 v29, 4, v7")
    for i in range(n):
        if i and i % 4 == 0: b(f"  s_add_u32 s{S_T+9}, s{S_T+9}, 4096")
        b(f"  buffer_load_dwordx4 {vr(V_DUMMY,4)}, v29, s[{SRD_PF}:{SRD_PF+3}], s{S_T+9} offen offset:{(i%4)*1024}")
    b.label(label)

def w1_share_base(b, sreg, part):
    b(f"  s_mul_i32 s{sreg}, s2, {W1B // 256}")
    if part: b(f"  s_add_u32 s{sreg}, s{sreg}, {part}")

def w1_first_half_base(b, sreg, part):
    b(f"  s_and_b32 s{sreg}, s2, 7")
    b(f"  s_mul_i32 s{sreg}, s{sreg}, {256*7168}")
    b(f"  s_lshr_b32 s{S_T+9}, s2, 3")
    b(f"  s_mul_i32 s{S_T+9}, s{S_T+9}, {4*7168}")
    b(f"  s_add_u32 s{sreg}, s{sreg}, s{S_T+9}")
    if part: b(f"  s_add_u32 s{sreg}, s{sreg}, {part}")

def p1_tables(b):
    M1, M2, TW = L1_M1, L1_M2, L1_TW
    b(f"  v_and_b32 v10, 255, v0            ; e")
    b(f"  v_lshrrev_b32 v11, 8, v0          ; u")
    b(f"  v_bfe_u32 v12, v10, 2, 4          ; lane&15")
    b(f"  v_lshl_add_u32 v12, v11, 4, v12   ; k1")
    b(f"  v_lshrrev_b32 v13, 6, v10         ; g")
    b(f"  v_and_b32 v14, 3, v10")
    b(f"  v_lshlrev_b32 v13, 3, v13")
    b(f"  v_lshl_add_u32 v13, v14, 1, v13   ; a0 = 8g + 2i")
    b(f"  v_mul_u32_u24 v15, v13, v12       ; a0*k1")
    b(f"  v_add_u32 v16, v15, v12           ; (a0+1)*k1")
    sincos(b, 17, 18, 15, 5, 21)
    sincos(b, 19, 20, 16, 5, 21)
    b(f"  v_lshlrev_b32 v22, 2, v10")
    b(f"  v_lshl_add_u32 v22, v11, 11, v22  ; u*2048 + e*4")
    b(f"  v_cvt_pk_bf16_f32 v23, v17, v19")
    b(f"  v_cvt_pk_bf16_f32 v24, -v18, -v20")
    b(f"  ds_write_b32 v22, v23 offset:{M1}")
    b(f"  ds_write_b32 v22, v24 offset:{M1+1024}")
    sincos(b, 17, 18, 15, 10, 21)
    sincos(b, 19, 20, 16, 10, 21)
    b(f"  ds_write_b32 v22, v17 offset:{TW}")
    b(f"  ds_write_b32 v22, v18 offset:{TW+1024}")
    b(f"  ds_write_b32 v22, v19 offset:{TW+4096}")
    b(f"  ds_write_b32 v22, v20 offset:{TW+4096+1024}")
    b(f"  v_bfe_u32 v12, v10, 2, 4          ; k2")
    b(f"  v_mul_u32_u24 v15, v13, v12")
    b(f"  v_add_u32 v16, v15, v12")
    sincos(b, 17, 18, 15, 5, 21)
    sincos(b, 19, 20, 16, 5, 21)
    b(f"  v_lshlrev_b32 v22, 2, v10")
    b(f"  v_cvt_pk_bf16_f32 v23, v17, v19")
    b(f"  v_cvt_pk_bf16_f32 v24, v18, v20")
    b(f"  v_cvt_pk_bf16_f32 v25, -v18, -v20")
    b(f"  ds_write_b32 v22, v23 offset:{M2}")
    b(f"  ds_write_b32 v22, v24 offset:{M2+1024}")
    b(f"  ds_write_b32 v22, v25 offset:{M2+2048}")

def ln_fast(b, X, T, S0, alt):
    b(f"  v_readlane_b32 s{S0}, v{X}, 0              ; pivot")
    b(f"  s_nop 1")
    for i in range(0, 16, 2):
        b(f"  v_pk_add_f32 {vr(X+i,2)}, {vr(X+i,2)}, s[{S0}:{S0+1}] op_sel_hi:[1,0] neg_lo:[0,1] neg_hi:[0,1]")
    b(f"  v_pk_add_f32 {vr(T,2)}, {vr(X,2)}, {vr(X+2,2)}")
    b(f"  v_pk_add_f32 {vr(T+2,2)}, {vr(X+8,2)}, {vr(X+10,2)}")
    b(f"  v_pk_mul_f32 {vr(T+4,2)}, {vr(X,2)}, {vr(X,2)}")
    b(f"  v_pk_add_f32 {vr(T,2)}, {vr(T,2)}, {vr(X+4,2)}")
    b(f"  v_pk_add_f32 {vr(T+2,2)}, {vr(T+2,2)}, {vr(X+12,2)}")
    b(f"  v_pk_fma_f32 {vr(T+4,2)}, {vr(X+2,2)}, {vr(X+2,2)}, {vr(T+4,2)}")
    b(f"  v_pk_add_f32 {vr(T,2)}, {vr(T,2)}, {vr(X+6,2)}")
    b(f"  v_pk_add_f32 {vr(T+2,2)}, {vr(T+2,2)}, {vr(X+14,2)}")
    for i in range(4, 16, 2):
        b(f"  v_pk_fma_f32 {vr(T+4,2)}, {vr(X+i,2)}, {vr(X+i,2)}, {vr(T+4,2)}")
    b(f"  v_add_f32 v{T}, v{T}, v{T+1}")
    b(f"  v_add_f32 v{T+2}, v{T+2}, v{T+3}")
    if not alt: b(f"  v_add_f32 v{T}, v{T}, v{T+2}")
    b(f"  v_add_f32 v{T+4}, v{T+4}, v{T+5}           ; squares")
    if alt:
        wave_reduce(b, [T, T+2, T+4])
        b(f"  v_sub_f32 v{T+1}, v{T}, v{T+2}             ; E - O")
        b(f"  v_add_f32 v{T}, v{T}, v{T+2}")
        b(f"  s_nop 0")
        b(f"  v_readlane_b32 s{S0+2}, v{T}, 63")
        b(f"  v_readlane_b32 s{S0+3}, v{T+4}, 63")
        b(f"  v_readlane_b32 s{S0+4}, v{T+1}, 63")
    else:
        wave_reduce(b, [T, T+4])
        b(f"  s_nop 0")
        b(f"  v_readlane_b32 s{S0+2}, v{T}, 63")
        b(f"  v_readlane_b32 s{S0+3}, v{T+4}, 63")
    b(f"  s_nop 0")
    b(f"  v_mov_b32 v{T}, {hex(f2u(1.0/1024))}")
    b(f"  v_mul_f32 v{T+1}, s{S0+2}, v{T}            ; mean of the shifted values")
    b(f"  v_mul_f32 v{T+2}, s{S0+3}, v{T}            ; mean of their squares")
    b(f"  v_fma_f32 v{T+2}, -v{T+1}, v{T+1}, v{T+2}  ; variance")
    b(f"  v_max_f32 v{T+2}, 0, v{T+2}")
    b(f"  v_add_f32 v{T+2}, {hex(f2u(1e-5))}, v{T+2}")
    b(f"  v_rsq_f32 v{T+4}, v{T+2}")
    b(f"  s_nop 0")
    b(f"  v_mul_f32 v{T+8}, -v{T+1}, v{T+4}          ; -mean*rstd")
    if alt: b(f"  v_mul_f32 v{T+6}, s{S0+4}, v{T+4}")
    for i in range(0, 16, 2):
        b(f"  v_pk_fma_f32 {vr(X+i,2)}, {vr(X+i,2)}, {vr(T+4,2)}, {vr(T+8,2)} op_sel_hi:[1,0,0]")

def x1_store_addr(b):
    b(f"  v_lshlrev_b32 v5, 15, v9")
    b(f"  v_lshl_add_u32 v5, v8, 2, v5")
    b(f"  s_and_b32 s{S_T+6}, s2, 15")
    b(f"  s_lshl_b32 s{S_T+6}, s{S_T+6}, 4")
    b(f"  s_lshr_b32 s{S_T+7}, s2, 4")
    b(f"  s_add_u32 s{S_T+6}, s{S_T+6}, s{S_T+7}")
    b(f"  s_lshl_b32 s{S_T+6}, s{S_T+6}, 6       ; pos*64")
    b(f"  s_lshl_b32 s{S_T+7}, s{S_W}, 19        ; 4w*131072")
    b(f"  s_add_u32 s44, s{S_T+6}, s{S_T+7}")

def w_early(b):
    srd(b, SRD_C, P_WR, WB)
    srd(b, SRD_D, P_WI, WB)
    b(f"  s_and_b32 s{S_T+2}, s2, 7              ; j1")
    b(f"  v_and_b32 v215, 1, v0                ; half")
    b(f"  v_bfe_u32 v11, v0, 5, 4              ; c")
    b(f"  v_bfe_u32 v12, v0, 1, 4              ; e")
    b(f"  v_lshl_add_u32 v13, v12, 4, v11      ; j2")
    b(f"  v_lshlrev_b32 v13, 3, v13")
    b(f"  v_add_u32 v13, s{S_T+2}, v13         ; j")
    b(f"  v_mul_u32_u24 v214, 1026, v13")
    b(f"  v_lshl_add_u32 v14, v215, 4, v214")
    b(f"  s_lshr_b32 s{S_T+3}, s2, 3           ; kb")
    b(f"  s_lshl_b32 s{S_T+3}, s{S_T+3}, 5")
    b(f"  buffer_load_dwordx4 {vr(WE,4)}, v14, s[{SRD_C}:{SRD_C+3}], s{S_T+3} offen{WF()}")
    b(f"  buffer_load_dwordx4 {vr(WE+4,4)}, v14, s[{SRD_D}:{SRD_D+3}], s{S_T+3} offen{WF()}")

def p1(b):
    srd(b, SRD_A, P_X, 4 << 20)
    srd(b, SRD_B, P_WS, 4 << 20, WS_X1)
    b(f"  s_lshl_b32 s{S_T}, s{S_W}, 8")
    b(f"  s_add_u32 s{S_T}, s{S_T}, s2          ; s")
    b(f"  s_lshl_b32 s{S_T+1}, s{S_T}, 11")
    b(f"  v_lshlrev_b32 v1, 9, v9")
    b(f"  v_lshl_add_u32 v1, v8, 2, v1")
    XD = 32
    b(f"  s_cmp_ge_u32 s2, 16")
    b(f"  s_cbranch_scc1 p1_noreset")
    b(f"  s_cmp_lg_u32 s{S_W}, 0")
    b(f"  s_cbranch_scc1 p1_noreset")
    b(f"  s_lshl_b32 s{S_T+2}, s2, 8")
    b(f"  v_lshlrev_b32 v2, 12, v7")
    b(f"  v_add_u32 v2, s{S_T+2}, v2")
    b(f"  v_mov_b32 v3, 0")
    b(f"  s_mov_b64 s[48:49], exec")
    b(f"  s_mov_b64 exec, 15")
    b(f"  buffer_store_dword v3, v2, s[{SRD_CNT}:{SRD_CNT+3}], 0 offen sc1")
    b(f"  s_mov_b64 exec, s[48:49]")
    b.label("p1_noreset")
    for i in range(8):
        b(f"  buffer_load_dword v{XD+i}, v1, s[{SRD_A}:{SRD_A+3}], s{S_T+1} offen offset:{64*i}{XF()}")
    NCLR = 0
    NWE = 0
    x1_store_addr(b)
    if SENT():
        b(f"  v_mov_b32 v60, -1")
        b(f"  v_mov_b32 v61, -1")
        b(f"  v_mov_b32 v62, -1")
        b(f"  v_mov_b32 v63, -1")
        b(f"  v_bfe_u32 v2, v7, 2, 3              ; j1")
        b(f"  v_lshrrev_b32 v3, 5, v7             ; i (0,1)")
        b(f"  v_lshlrev_b32 v2, 14, v2")
        b(f"  v_lshl_add_u32 v2, v3, 17, v2")
        b(f"  v_and_b32 v3, 3, v7")
        b(f"  v_lshl_add_u32 v2, v3, 4, v2")
        b(f"  buffer_store_dwordx4 v[60:63], v2, s[{SRD_B}:{SRD_B+3}], s44 offen{SF}")
        b(f"  s_add_u32 s{S_T+7}, s44, {2*131072}")
        b(f"  buffer_store_dwordx4 v[60:63], v2, s[{SRD_B}:{SRD_B+3}], s{S_T+7} offen{SF}")
        NCLR = 2
    if "tlbw" in OPT:
        b(f"  s_cmp_lg_u32 s{S_W}, 7")
        b(f"  s_cbranch_scc1 p1_notlb")
        sh = 20 if "tlb1m" in OPT else (19 if "tlb512k" in OPT else 21)
        b(f"  v_lshlrev_b32 v2, {sh}, v7")
        lst = [(P_WS, 36 << 20), (P_W1, W1B), (P_W2, W1B), (P_WR, WB), (P_WI, WB), (P_OUT, 4 << 20), (P_B1, 7168), (P_B2, 4096)]
        for ptr, size in lst:
            srd(b, SRD_PF, ptr, size)
            b(f"  s_mov_b64 s[16:17], exec")
            n = min(64, -(-size // (1 << sh)))
            b(f"  s_mov_b64 exec, {hex((1 << n) - 1)}")
            b(f"  buffer_load_dword v230, v2, s[{SRD_PF}:{SRD_PF+3}], 0 offen sc1")
            b(f"  s_mov_b64 exec, s[16:17]")
        if "codepf" in OPT:
            b(f"  s_cmp_ge_u32 s2, 16")
            b(f"  s_cbranch_scc1 p1_nocode")
            b(f"  s_getpc_b64 s[{S_T+8}:{S_T+9}]")
            b.label("p1_pc")
            b(f"  v_lshlrev_b32 v29, 7, v7")
            b(f"  s_mov_b32 s{S_T+7}, k_exit - p1_pc")
            for i in range(5):
                b(f"  v_min_u32 v28, s{S_T+7}, v29")
                b(f"  global_load_dword v230, v28, s[{S_T+8}:{S_T+9}]")
                b(f"  v_add_u32 v29, 8192, v29")
            b.label("p1_nocode")
        if "pf7" in OPT:
            n7 = 0
            if "wpf" in OPT:
                b(f"  s_mul_i32 s{S_T+8}, s2, 8208")
                b(f"  v_lshlrev_b32 v29, 4, v7")
                for ptr in (P_WR, P_WI):
                    srd(b, SRD_PF, ptr, WB)
                    b(f"  s_mov_b32 s{S_T+9}, s{S_T+8}")
                    for i in range(9):
                        if i and i % 4 == 0: b(f"  s_add_u32 s{S_T+9}, s{S_T+9}, 4096")
                        b(f"  buffer_load_dwordx4 {vr(V_DUMMY,4)}, v29, s[{SRD_PF}:{SRD_PF+3}], s{S_T+9} offen offset:{(i%4)*1024}")
                        n7 += 1
            if PFN[0]:
                w1_share_base(b, S_T + 9, 0)
                b(f"  v_lshlrev_b32 v29, 4, v7")
                srd(b, SRD_PF, P_W1, W1B)
                for i in range(4 * PFN[0]):
                    if i and i % 4 == 0: b(f"  s_add_u32 s{S_T+9}, s{S_T+9}, 4096")
                    b(f"  buffer_load_dwordx4 {vr(V_DUMMY,4)}, v29, s[{SRD_PF}:{SRD_PF+3}], s{S_T+9} offen offset:{(i%4)*1024}")
                    n7 += 1
            N7[0] = n7
        b.label("p1_notlb")
    if "wpack" in OPT:
        srd(b, SRD_C, P_WR, WB)
        srd(b, SRD_D, P_WI, WB)
        b(f"  s_lshl_b32 s{S_T+2}, s2, 3")
        b(f"  s_add_u32 s{S_T+2}, s{S_T+2}, s{S_W}")
        b(f"  s_mul_i32 s45, s{S_T+2}, 1026")
        b(f"  v_lshlrev_b32 v14, 4, v7")
        b(f"  buffer_load_dwordx4 {vr(WE,4)}, v14, s[{SRD_C}:{SRD_C+3}], s45 offen")
        b(f"  buffer_load_dwordx4 {vr(WE+4,4)}, v14, s[{SRD_D}:{SRD_D+3}], s45 offen")
        b(f"  v_mov_b32 v15, 1024")
        b(f"  buffer_load_ushort v212, v15, s[{SRD_C}:{SRD_C+3}], s45 offen")
        b(f"  buffer_load_ushort v213, v15, s[{SRD_D}:{SRD_D+3}], s45 offen")
        NCLR += 4
    if "wearly" in OPT:
        w_early(b); NCLR += 2
    npf = 0
    if "burn" in OPT:
        for i in range(4): b(f"  v_mov_b32 v{180+i}, 0x3f9d3f8a")
        for i in range(4): b(f"  v_mov_b32 v{184+i}, 0x3e5abf31")
        b(f"  s_nop 1")
        for i in range(24): b(f"  v_mfma_f32_32x32x16_bf16 v[{(i%2)*16+144}:{(i%2)*16+159}], v[180:183], v[184:187], v[{(i%2)*16+144}:{(i%2)*16+159}]")
    p1_tables(b)
    GM = 30
    gmat(b, GM, 2, False, 10)
    srd(b, SRD_PF, P_DBG, 256)
    b(f"  s_and_b32 s{S_T+8}, s2, 15")
    b(f"  s_lshl_b32 s{S_T+9}, s{S_T+8}, 2")
    b(f"  s_add_u32 s{S_T+9}, s{S_T+9}, 64")
    b(f"  v_mov_b32 v25, s{S_T+9}")
    b(f"  v_lshlrev_b32 v26, 2, v8")
    b(f"  v_add_u32 v26, 64, v26")
    b(f"  s_cmp_ge_u32 s2, 16")
    b(f"  s_cbranch_scc1 p1_noflag")
    b(f"  s_cmp_lg_u32 s{S_W}, 0")
    b(f"  s_cbranch_scc1 p1_noflag")
    b(f"  s_waitcnt vmcnt({8} + 0)".replace(" + 0", "") if NCLR == 0 else f"  s_waitcnt vmcnt({8 + NCLR})")
    b(f"  v_mov_b32 v3, 1")
    b(f"  s_mov_b64 s[48:49], exec")
    b(f"  s_mov_b64 exec, 1")
    b(f"  buffer_store_dword v3, v25, s[{SRD_PF}:{SRD_PF+3}], 0 offen sc1")
    b(f"  s_mov_b64 exec, s[48:49]")
    b.label("p1_noflag")
    b(f"  s_waitcnt lgkmcnt(0)")
    stamp(b, "p1 tables done")
    b(f"  s_barrier")
    NX2 = 0
    if "sent2" in OPT:
        srd(b, SRD_C, P_WS, 4 << 20, WS_X2)
        for i in range(4): b(f"  v_mov_b32 v{200+i}, -1")
        b(f"  v_lshlrev_b32 v3, 4, v0")
        b(f"  s_lshl_b32 s{S_T+7}, s2, 14")
        b(f"  buffer_store_dwordx4 v[200:203], v3, s[{SRD_C}:{SRD_C+3}], s{S_T+7} offen{SF}")
        b(f"  s_add_u32 s{S_T+7}, s{S_T+7}, 8192")
        b(f"  buffer_store_dwordx4 v[200:203], v3, s[{SRD_C}:{SRD_C+3}], s{S_T+7} offen{SF}")
        NX2 = 2
    npf = 0
    if "nopf" not in OPT:
        b(f"  s_mul_i32 s{S_T+8}, s2, 8208")
        if "ntx" not in OPT and "wpf" in OPT and "pf7" not in OPT:
            pf_wide(b, P_WR, WB, S_T + 8, 3, 0, 3, "pf_p1a")
            pf_wide(b, P_WI, WB, S_T + 8, 3, 0, 3, "pf_p1b")
        if "ntw1" not in OPT and PFN[0] and "pf7" not in OPT:
            w1_share_base(b, S_T + 8, 0)
            pf_wide(b, P_W1, W1B, S_T + 8, PFN[0], 4, 8, "pf_p1c")
    M1, M2, TW = 96, 112, 128
    b(f"  v_lshlrev_b32 v2, 4, v7")
    for i in range(4): b(f"  ds_read_b128 {vr(M1+4*i,4)}, v2 offset:{L1_M1+1024*i}")
    for i in range(3): b(f"  ds_read_b128 {vr(M2+4*i,4)}, v2 offset:{L1_M2+1024*i}")
    for i in range(8): b(f"  ds_read_b128 {vr(TW+4*i,4)}, v2 offset:{L1_TW+1024*i}")
    X = 40
    NCLR += NX2
    nW = 0 if ("nopf" in OPT or "ntx" in OPT or "wpf" not in OPT or "pf7" in OPT) else 6
    n1 = 0 if ("nopf" in OPT or "ntw1" in OPT or "pf7" in OPT) else PFN[0]
    b(f"  s_cmp_eq_u32 s{S_W}, 3")
    b(f"  s_cbranch_scc1 p1_xw0")
    b(f"  s_cmp_ge_u32 s{S_W}, 4")
    b(f"  s_cbranch_scc1 p1_xw4")
    b(f"  s_waitcnt vmcnt({NCLR + nW})")
    b(f"  s_branch p1_xwd")
    b.label("p1_xw4")
    if "tlbw" in OPT:
        b(f"  s_cmp_lg_u32 s{S_W}, 7")
        b(f"  s_cbranch_scc1 p1_xw5")
        b(f"  s_waitcnt vmcnt({min(63, NCLR + n1 + 8 + N7[0])})")
        b(f"  s_branch p1_xwd")
        b.label("p1_xw5")
    b(f"  s_waitcnt vmcnt({NCLR + n1})")
    b(f"  s_branch p1_xwd")
    b.label("p1_xw0")
    b(f"  s_waitcnt vmcnt({NCLR})")
    b.label("p1_xwd")
    stamp(b, "p1 x landed")
    if "wmid" in OPT:
        w_early(b)
        b(f"  s_cmp_ge_u32 s2, 8")
        b(f"  s_cbranch_scc1 p1_nonyq")
        b(f"  buffer_load_ushort v212, v214, s[{SRD_C}:{SRD_C+3}], 0 offen offset:1024")
        b(f"  buffer_load_ushort v213, v214, s[{SRD_D}:{SRD_D+3}], 0 offen offset:1024")
        b.label("p1_nonyq")
    if "wearly" in OPT:
        b(f"  s_cmp_ge_u32 s2, 8")
        b(f"  s_cbranch_scc1 p1_nonyq")
        b(f"  buffer_load_ushort v212, v214, s[{SRD_C}:{SRD_C+3}], 0 offen offset:1024")
        b(f"  buffer_load_ushort v213, v214, s[{SRD_D}:{SRD_D+3}], 0 offen offset:1024")
        b.label("p1_nonyq")
    srd(b, SRD_PF, P_DBG, 256)
    if "stash" in OPT:
        b(f"  s_lshl_b32 s{S_T+9}, s{S_W}, 11")
        b(f"  s_add_u32 s{S_T+9}, s{S_T+9}, {L_XS}")
        b(f"  v_add_u32 v4, s{S_T+9}, v1           ; t*2048 + g*512 + c*4")
        for i in range(8): b(f"  ds_write_b32 v4, v{XD+i} offset:{64*i}")
    for i in range(8):
        b(f"  v_lshlrev_b32 v{X+i}, 16, v{XD+i}")
        b(f"  v_and_b32 v{X+8+i}, 0xffff0000, v{XD+i}")
    T = 56
    ln_fast(b, X, T, S_T + 2, True)
    stamp(b, "p1 ln done")
    if SENT():
        b(f"  buffer_load_dword v27, v26, s[{SRD_PF}:{SRD_PF+3}], 0 offen sc1")
        b(f"  s_and_b32 s{S_T+8}, s2, 15")
        arrive(b, 0, S_T + 8, first=True, label="x1")
        stamp(b, "p1 arrived")
        srd(b, SRD_C, P_WS, 4 << 20, WS_X2)
        for i in range(4): b(f"  v_mov_b32 v{200+i}, -1")
        b(f"  v_lshlrev_b32 v2, 4, v0")
        b(f"  s_lshl_b32 s{S_T+7}, s2, 14")
        b(f"  buffer_store_dwordx4 v[200:203], v2, s[{SRD_C}:{SRD_C+3}], s{S_T+7} offen{SF}")
        b(f"  s_add_u32 s{S_T+7}, s{S_T+7}, 8192")
        b(f"  buffer_store_dwordx4 v[200:203], v2, s[{SRD_C}:{SRD_C+3}], s{S_T+7} offen{SF}")
    A = 64
    for be in range(2):
        for i in range(4):
            b(f"  v_cvt_pk_bf16_f32 v{A+4*be+i}, v{X+8*be+2*i}, v{X+8*be+2*i+1}")
    b(f"  s_waitcnt lgkmcnt(0)")
    b(f"  v_readlane_b32 s{S_T+5}, v{T+6}, 0")
    Y = 160
    for be in range(2):
        for u in range(2):
            for c in range(2):
                d = Y + ((be * 2 + u) * 2 + c) * 4
                b(f"  {MF32} {vr(d,4)}, {vr(A+4*be,4)}, {vr(M1+4*(2*u+c),4)}, 0")
    b(f"  s_nop 4")
    Bp = 72; W = 32; O = 40
    for u in range(2):
        for be in range(2):
            y = Y + ((be * 2 + u) * 2) * 4
            tw = TW + (be * 4 + u * 2) * 4
            cmul_pk(b, O + 8 * be, O + 8 * be + 4, y, y + 4, tw, tw + 4, W, False)
        for r in range(4):
            b(f"  v_cvt_pk_bf16_f32 v{Bp+8*u+r}, v{O+r}, v{O+8+r}")
            b(f"  v_cvt_pk_bf16_f32 v{Bp+8*u+4+r}, v{O+4+r}, v{O+12+r}")
    XO = 160
    b(f"  s_nop 1")
    for u in range(2):
        re, im = XO + 8 * u, XO + 8 * u + 4
        b(f"  {MF32} {vr(re,4)}, {vr(M2,4)}, {vr(Bp+8*u,4)}, 0")
        b(f"  {MF32} {vr(im,4)}, {vr(M2,4)}, {vr(Bp+8*u+4,4)}, 0")
        b(f"  {MF32} {vr(re,4)}, {vr(M2+4,4)}, {vr(Bp+8*u+4,4)}, {vr(re,4)}")
        b(f"  {MF32} {vr(im,4)}, {vr(M2+8,4)}, {vr(Bp+8*u,4)}, {vr(im,4)}")
    b(f"  s_and_b32 s{S_T+6}, s{S_W}, 1")
    b(f"  s_lshl_b32 s{S_T+6}, s{S_T+6}, 8")
    b(f"  s_lshr_b32 s{S_T+7}, s{S_W}, 1")
    b(f"  s_lshl_b32 s{S_T+7}, s{S_T+7}, 6")
    b(f"  s_add_u32 s{S_T+6}, s{S_T+6}, s{S_T+7}")
    b(f"  v_lshlrev_b32 v3, 12, v9")
    b(f"  v_lshl_add_u32 v3, v8, 2, v3")
    b(f"  v_add_u32 v3, s{S_T+6}, v3")
    b(f"  s_nop 2")
    b(f"  v_writelane_b32 v{XO}, s{S_T+5}, 0")
    b(f"  v_writelane_b32 v{XO+4}, 0, 0")
    PK = 32
    for u in range(2):
        for r in range(4):
            b(f"  v_cvt_pk_bf16_f32 v{PK+4*u+r}, v{XO+8*u+r}, v{XO+8*u+4+r}")
    for u in range(2):
        for r in range(4):
            b(f"  ds_write_b32 v3, v{PK+4*u+r} offset:{L1_EX + u*512 + r*1024}")
    if "wpack" in OPT:
        assert not SENT()
        srd(b, SRD_C, P_WS, 4 << 20, WS_WP)
        b(f"  v_lshrrev_b32 v14, 1, v7              ; kb")
        b(f"  v_lshlrev_b32 v14, 17, v14")
        b(f"  v_and_b32 v15, 1, v7")
        b(f"  v_lshl_add_u32 v14, v15, 4, v14")
        b(f"  s_and_b32 s{S_T+6}, s2, 15")
        b(f"  s_lshl_b32 s{S_T+6}, s{S_T+6}, 9       ; (p&15)<<5 * 16")
        b(f"  s_lshr_b32 s{S_T+7}, s2, 4")
        b(f"  s_lshl_b32 s{S_T+7}, s{S_T+7}, 5       ; (p>>4)<<1 * 16")
        b(f"  s_add_u32 s{S_T+6}, s{S_T+6}, s{S_T+7}")
        b(f"  s_lshl_b32 s{S_T+7}, s{S_W}, 14")
        b(f"  s_add_u32 s{S_T+6}, s{S_T+6}, s{S_T+7}")
        b(f"  s_add_u32 s{S_T+7}, s{S_T+6}, 8192")
        npf0 = 0 if ("nopf" in OPT or "pf7" in OPT) else PFN[0]
        b(f"  s_cmp_ge_u32 s{S_W}, 4")
        b(f"  s_cbranch_scc1 p1_wp4")
        b(f"  s_waitcnt vmcnt(0)")
        b(f"  s_branch p1_wpd")
        b.label("p1_wp4")
        b(f"  s_waitcnt vmcnt({npf0})")
        b.label("p1_wpd")
        b(f"  v_cmp_eq_u32 vcc, 0, v7")
        b(f"  v_and_b32 v15, 0xffff0000, v{WE}")
        b(f"  v_or_b32 v15, v15, v212")
        b(f"  v_cndmask_b32 v{WE}, v{WE}, v15, vcc")
        b(f"  v_and_b32 v15, 0xffff0000, v{WE+4}")
        b(f"  v_or_b32 v15, v15, v213")
        b(f"  v_cndmask_b32 v{WE+4}, v{WE+4}, v15, vcc")
        b(f"  buffer_store_dwordx4 {vr(WE,4)}, v14, s[{SRD_C}:{SRD_C+3}], s{S_T+6} offen{SF}")
        b(f"  buffer_store_dwordx4 {vr(WE+4,4)}, v14, s[{SRD_C}:{SRD_C+3}], s{S_T+7} offen{SF}")
    if SENT(): b(f"  s_waitcnt lgkmcnt(0) vmcnt(0)")
    else:
        b(f"  buffer_load_dword v27, v26, s[{SRD_PF}:{SRD_PF+3}], 0 offen sc1")
        b(f"  s_waitcnt lgkmcnt(0)")
    stamp(b, "p1 fft done")
    b(f"  s_barrier")
    b(f"  v_lshlrev_b32 v4, 6, v9")
    b(f"  v_lshl_add_u32 v4, v8, 2, v4")
    b(f"  s_lshl_b32 s{S_T+6}, s{S_W}, 11")
    b(f"  s_add_u32 s{S_T+6}, s{S_T+6}, {L1_EX}")
    b(f"  v_add_u32 v4, s{S_T+6}, v4")
    Bd = 40
    for i in range(4):
        b(f"  ds_read2st64_b32 {vr(Bd+2*i,2)}, v4 offset0:{2*i} offset1:{2*i+1}")
    D = 48
    for i in range(4):
        b(f"  s_waitcnt lgkmcnt({3-i})")
        b(f"  {MF16} {vr(D+4*i,4)}, {vr(GM,2)}, {vr(Bd+2*i,2)}, 0")
    b(f"  s_nop 4")
    for i in range(4):
        b(f"  v_cvt_pk_bf16_f32 v{64+2*i}, v{D+4*i}, v{D+4*i+1}")
        b(f"  v_cvt_pk_bf16_f32 v{65+2*i}, v{D+4*i+2}, v{D+4*i+3}")
        if SENT():
            b(f"  v_min_u32 v{64+2*i}, 0xfffffffe, v{64+2*i}")
            b(f"  v_min_u32 v{65+2*i}, 0xfffffffe, v{65+2*i}")
        for e in range(2):
            b(f"  s_add_u32 s{S_T+7}, s44, {i*131072 + e*16384}")
            b(f"  buffer_store_dword v{64+2*i+e}, v5, s[{SRD_B}:{SRD_B+3}], s{S_T+7} offen{SF}")
    stamp(b, "p1 stores issued")
    if not SENT():
        b(f"  s_and_b32 s{S_T+8}, s2, 15")
        arrive(b, 0, S_T + 8, first=True, label="x1")
        stamp(b, "p1 arrived")

XL2, WL2 = 32, 40
WE = 204
TC2, TS2 = 64, 68
def p2_setup(b):
    srd(b, SRD_A, P_WS, 4 << 20, WS_X1)
    srd(b, SRD_B, P_WS, 4 << 20, WS_X2)
    srd(b, SRD_C, P_WR, WB)
    srd(b, SRD_D, P_WI, WB)
    b(f"  s_and_b32 s{S_T}, s2, 7              ; j1")
    b(f"  s_lshr_b32 s{S_T+1}, s2, 3           ; kb")
    b(f"  v_and_b32 v10, 1, v0                 ; half")
    b(f"  v_bfe_u32 v11, v0, 5, 4              ; c")
    b(f"  v_bfe_u32 v12, v0, 1, 4              ; e")
    b(f"  v_lshl_add_u32 v13, v12, 4, v11      ; j2")
    b(f"  v_lshlrev_b32 v13, 3, v13")
    b(f"  v_add_u32 v13, s{S_T}, v13           ; j")
    b(f"  v_mul_u32_u24 v13, 1026, v13")
    b(f"  v_lshlrev_b32 v14, 4, v10")
    b(f"  v_add_u32 v14, v13, v14")
    b(f"  s_lshl_b32 s{S_T+3}, s{S_T+1}, 5")
    if "wearly" in OPT or "wmid" in OPT:
        b(f"  s_cmp_lg_u32 s{S_T+1}, 0")
        b(f"  s_cbranch_scc1 p2_nonyq")
        b(f"  s_waitcnt vmcnt(0)")
        b(f"  v_cmp_eq_u32 vcc, 0, v215")
        b(f"  v_and_b32 v50, 0xffff0000, v{WE}")
        b(f"  v_or_b32 v50, v50, v212")
        b(f"  v_cndmask_b32 v{WE}, v{WE}, v50, vcc")
        b(f"  v_and_b32 v50, 0xffff0000, v{WE+4}")
        b(f"  v_or_b32 v50, v50, v213")
        b(f"  v_cndmask_b32 v{WE+4}, v{WE+4}, v50, vcc")
        b.label("p2_nonyq")
    elif "wpack" in OPT:
        srd(b, SRD_C, P_WS, 4 << 20, WS_WP)
    elif "wlate" in OPT:
        b(f"  v_mov_b32 v24, v14")
        b(f"  v_mov_b32 v25, v13")
        b(f"  v_mov_b32 v26, v10                   ; half")
        b(f"  s_mov_b32 s45, s{S_T+3}              ; kb*32")
    else:
        WL = WL2
        b(f"  v_mov_b32 v24, v14")
        b(f"  v_mov_b32 v25, v13")
        b(f"  v_mov_b32 v26, v10                   ; half")
        b(f"  s_mov_b32 s45, s{S_T+3}              ; kb*32")
        WL = WL2
        b(f"  buffer_load_dwordx4 {vr(WL,4)}, v24, s[{SRD_C}:{SRD_C+3}], s45 offen{WF()}")
        b(f"  buffer_load_dwordx4 {vr(WL+4,4)}, v24, s[{SRD_D}:{SRD_D+3}], s45 offen{WF()}")
        b(f"  s_cmp_lg_u32 s{S_T+1}, 0")
        b(f"  s_cbranch_scc1 p2_nonyq")
        b(f"  buffer_load_ushort v48, v25, s[{SRD_C}:{SRD_C+3}], 0 offen offset:1024")
        b(f"  buffer_load_ushort v49, v25, s[{SRD_D}:{SRD_D+3}], 0 offen offset:1024")
        b(f"  s_waitcnt vmcnt(0)")
        b(f"  v_cmp_eq_u32 vcc, 0, v26")
        b(f"  v_and_b32 v50, 0xffff0000, v{WL}")
        b(f"  v_or_b32 v50, v50, v48")
        b(f"  v_cndmask_b32 v{WL}, v{WL}, v50, vcc")
        b(f"  v_and_b32 v50, 0xffff0000, v{WL+4}")
        b(f"  v_or_b32 v50, v50, v49")
        b(f"  v_cndmask_b32 v{WL+4}, v{WL+4}, v50, vcc")
        b.label("p2_nonyq")
        if "wdiag" in OPT:
            b(f"  s_waitcnt vmcnt(0)")
            stamp(b, "p2 w landed")
    if "es" in OPT:
        b(f"  s_cmp_ge_u32 s{S_W}, 2")
        b(f"  s_cbranch_scc1 p2_noclr")
        srd(b, SRD_PF, P_WS, 4 << 20, WS_LN2)
        for i in range(4): b(f"  v_mov_b32 v{200+i}, -1")
        b(f"  s_lshr_b32 s{S_T+8}, s2, 3")
        b(f"  s_lshl_b32 s{S_T+8}, s{S_T+8}, 17")
        b(f"  s_and_b32 s{S_T+9}, s2, 7")
        b(f"  s_lshl_b32 s{S_T+9}, s{S_T+9}, 11")
        b(f"  s_add_u32 s{S_T+8}, s{S_T+8}, s{S_T+9}")
        b(f"  v_lshlrev_b32 v2, 4, v0")
        b(f"  buffer_store_dwordx4 v[200:203], v2, s[{SRD_PF}:{SRD_PF+3}], s{S_T+8} offen{SF}")
        b.label("p2_noclr")
    npf = 0
    b(f"  v_and_b32 v15, 255, v0")
    b(f"  v_bfe_u32 v16, v15, 2, 4             ; x")
    b(f"  v_lshrrev_b32 v17, 6, v15            ; g")
    b(f"  v_and_b32 v18, 3, v15")
    b(f"  v_lshl_add_u32 v17, v17, 2, v18      ; 4g+i")
    b(f"  v_mul_u32_u24 v17, v17, v16")
    sincos(b, 18, 19, 17, 4, 20)
    b(f"  v_cmp_gt_u32 vcc, 256, v0            ; matrix 0 ?")
    b(f"  v_xor_b32 v20, 0x80000000, v19       ; -sin")
    b(f"  s_nop 0")
    b(f"  v_cndmask_b32 v21, v20, v18, vcc")
    b(f"  v_cndmask_b32 v22, v18, v19, vcc")
    b(f"  v_cvt_pk_bf16_f32 v21, v21, v22")
    b(f"  v_lshlrev_b32 v22, 2, v0")
    b(f"  ds_write_b32 v22, v21 offset:{L2_F}")
    b(f"  v_lshlrev_b32 v16, 2, v9")
    for r in range(4):
        b(f"  v_add_u32 v17, {r}, v16")
        b(f"  v_mul_u32_u24 v17, v17, v8")
        sincos(b, TC2 + r, TS2 + r, 17, 8, 20)
    b(f"  v_and_b32 v16, 3, v0                 ; i")
    b(f"  v_mul_u32_u24 v16, {4*1040}, v16")
    b(f"  v_lshrrev_b32 v17, 6, v0             ; b (0..7)")
    b(f"  v_lshl_add_u32 v16, v17, 6, v16")
    b(f"  v_bfe_u32 v17, v0, 2, 2              ; a&3")
    b(f"  v_lshl_add_u32 v16, v17, 2, v16")
    b(f"  v_bfe_u32 v17, v0, 4, 2              ; a>>2")
    b(f"  v_lshl_add_u32 v21, v17, 4, v16      ; first")
    b(f"  v_xor_b32 v17, 2, v17")
    b(f"  v_lshl_add_u32 v22, v17, 4, v16")
    b(f"  v_add_u32 v22, 512, v22              ; second (b+8)")
    b(f"  v_mul_u32_u24 v16, {4*1040}, v10")
    b(f"  v_lshl_add_u32 v16, v11, 6, v16")
    b(f"  v_and_b32 v17, 3, v12")
    b(f"  v_lshl_add_u32 v16, v17, 2, v16")
    b(f"  v_lshrrev_b32 v17, 2, v12")
    b(f"  v_lshrrev_b32 v18, 3, v11            ; c>>3")
    b(f"  v_lshlrev_b32 v18, 1, v18")
    b(f"  v_xor_b32 v17, v17, v18")
    b(f"  v_lshl_add_u32 v23, v17, 4, v16")
    b(f"  v_lshrrev_b32 v16, 3, v8")
    b(f"  v_lshlrev_b32 v16, 1, v16")
    b(f"  v_xor_b32 v16, v16, v9")
    b(f"  v_lshlrev_b32 v16, 4, v16")
    b(f"  v_lshl_add_u32 v16, v8, 6, v16")
    b(f"  s_mul_i32 s{S_T+4}, s{S_W}, {2*1040}")
    b(f"  s_mul_i32 s{S_T+5}, s{S_W}, 1040")
    b(f"  v_add_u32 v5, s{S_T+4}, v16")
    b(f"  v_add_u32 v6, s{S_T+5}, v16")
    b(f"  v_lshlrev_b32 v1, 4, v0")
    b(f"  s_lshl_b32 s{S_T+2}, s2, 14")
    b(f"  s_add_u32 s{S_T+3}, s{S_T+2}, 8192")
    b(f"  s_waitcnt lgkmcnt(0)")

def sentinel_check(b, R0, pre, n=8):
    b(f"  v_max3_u32 v16, v{R0}, v{R0+1}, v{R0+2}")
    b(f"  v_max3_u32 v17, v{R0+3}, v{R0+4}, v{R0+5}")
    b(f"  v_max3_u32 v16, v16, v{R0+6}, v{R0+7}")
    for i in range(8, n, 2): b(f"  v_max3_u32 v17, v17, v{R0+i}, v{R0+i+1}")
    b(f"  v_max_u32 v16, v16, v17")
    b(f"  v_cmp_eq_u32 vcc, -1, v16")
    b(f"  s_sub_u32 s11, s11, 1")
    b(f"  s_cmp_eq_u32 s11, 0")
    b(f"  s_cbranch_scc1 {pre}_got")
    b(f"  s_cmp_lg_u64 vcc, 0")
    b(f"  s_cbranch_scc1 {pre}_poll")
    b.label(f"{pre}_got")

def p2_main(b):
    XL = XL2; TC, TS = TC2, TS2
    if SENT():
        b(f"  s_mov_b32 s11, 200000")
        b.label("p2_poll")
    b(f"  buffer_load_dwordx4 {vr(XL,4)}, v1, s[{SRD_A}:{SRD_A+3}], s{S_T+2} offen sc1")
    b(f"  buffer_load_dwordx4 {vr(XL+4,4)}, v1, s[{SRD_A}:{SRD_A+3}], s{S_T+3} offen sc1")
    if "wpack" in OPT:
        WL = WL2
        b(f"  buffer_load_dwordx4 {vr(WL,4)}, v1, s[{SRD_C}:{SRD_C+3}], s{S_T+2} offen sc1")
        b(f"  buffer_load_dwordx4 {vr(WL+4,4)}, v1, s[{SRD_C}:{SRD_C+3}], s{S_T+3} offen sc1")
        b(f"  s_waitcnt vmcnt(2)")
    elif "wlate" in OPT:
        assert not SENT()
        WL = WL2
        b(f"  buffer_load_dwordx4 {vr(WL,4)}, v24, s[{SRD_C}:{SRD_C+3}], s45 offen{WF()}")
        b(f"  buffer_load_dwordx4 {vr(WL+4,4)}, v24, s[{SRD_D}:{SRD_D+3}], s45 offen{WF()}")
        b(f"  s_cmp_lg_u32 s{S_T+1}, 0")
        b(f"  s_cbranch_scc1 p2_nonyq")
        b(f"  buffer_load_ushort v56, v25, s[{SRD_C}:{SRD_C+3}], 0 offen offset:1024")
        b(f"  buffer_load_ushort v57, v25, s[{SRD_D}:{SRD_D+3}], 0 offen offset:1024")
        b(f"  s_waitcnt vmcnt(0)")
        b(f"  v_cmp_eq_u32 vcc, 0, v26")
        b(f"  v_and_b32 v58, 0xffff0000, v{WL}")
        b(f"  v_or_b32 v58, v58, v56")
        b(f"  v_cndmask_b32 v{WL}, v{WL}, v58, vcc")
        b(f"  v_and_b32 v58, 0xffff0000, v{WL+4}")
        b(f"  v_or_b32 v58, v58, v57")
        b(f"  v_cndmask_b32 v{WL+4}, v{WL+4}, v58, vcc")
        b.label("p2_nonyq")
        b(f"  s_waitcnt vmcnt(2)")
    else:
        b(f"  s_waitcnt vmcnt(0)")
    if SENT(): sentinel_check(b, XL, "p2")
    WL = WE if ("wearly" in OPT or "wmid" in OPT) else WL2
    b(f"  v_lshlrev_b32 v17, 4, v7")
    FR, FI = 72, 76
    AX = 48; WR, WI = 152, 156
    b(f"  ds_read_b128 {vr(FR,4)}, v17 offset:{L2_F}")
    b(f"  ds_read_b128 {vr(FI,4)}, v17 offset:{L2_F+1024}")
    Dq = [80, 88]; Oq = [96, 104]; Tq = [112, 120]; Pq = [128, 132]; Wq = [136, 144]
    stamp(b, "p2 x landed")
    for j in range(4):
        b(f"  ds_write_b32 v21, v{XL+j} offset:{L2_X + j*1040}")
        b(f"  ds_write_b32 v22, v{XL+4+j} offset:{L2_X + j*1040}")
    if "wlate" in OPT or "wpack" in OPT: b(f"  s_waitcnt vmcnt(0)")
    for j in range(4):
        b(f"  ds_write_b32 v23, v{WL+j} offset:{L2_W + j*1040}")
        b(f"  ds_write_b32 v23, v{WL+4+j} offset:{L2_W + 8*1040 + j*1040}")
    if "nopf" not in OPT and "ntw1" not in OPT and PFN[1]:
        w1_share_base(b, S_T + 8, PFN[0] * 4096)
        pf_wide(b, P_W1, W1B, S_T + 8, PFN[1], 4, 8, "pf_p2a")
    b(f"  s_waitcnt lgkmcnt(0)")
    b(f"  s_barrier")
    b(f"  ds_read_b128 {vr(AX,4)}, v5 offset:{L2_X}")
    b(f"  ds_read_b128 {vr(AX+4,4)}, v5 offset:{L2_X+1040}")
    b(f"  ds_read_b128 {vr(WR,4)}, v6 offset:{L2_W}")
    b(f"  ds_read_b128 {vr(WI,4)}, v6 offset:{L2_W+8*1040}")
    def stage(form, src):
        for k in range(2):
            d = Dq[k]
            if form == 'A':
                b(f"  {MF32} {vr(d,4)}, {vr(src[k],4)}, {vr(FR,4)}, 0")
                b(f"  {MF32} {vr(d+4,4)}, {vr(src[k],4)}, {vr(FI,4)}, 0")
            else:
                b(f"  {MF32} {vr(d,4)}, {vr(FR,4)}, {vr(src[k],4)}, 0")
                b(f"  {MF32} {vr(d+4,4)}, {vr(FI,4)}, {vr(src[k],4)}, 0")
    def twiddle_pack():
        for k in range(2):
            cmul_pk(b, Oq[k], Oq[k] + 4, Dq[k], Dq[k] + 4, TC, TS, Tq[k], False)
        for k in range(2):
            for r in range(4):
                b(f"  v_cvt_pk_bf16_f32 v{Pq[k]+r}, v{Oq[k]+r}, v{Oq[k]+4+r}")
        b(f"  s_nop 1")
    b(f"  s_waitcnt lgkmcnt(2)")
    stage('A', [AX, AX + 4])
    b(f"  s_waitcnt lgkmcnt(0)")
    for r in range(4):
        b(f"  v_lshlrev_b32 v{Wq[0]+r}, 16, v{WR+r}")
        b(f"  v_lshlrev_b32 v{Wq[0]+4+r}, 16, v{WI+r}")
        b(f"  v_and_b32 v{Wq[1]+r}, 0xffff0000, v{WR+r}")
        b(f"  v_and_b32 v{Wq[1]+4+r}, 0xffff0000, v{WI+r}")
    twiddle_pack()
    stage('B', Pq)
    b(f"  s_nop 5")
    for k in range(2):
        cmul_pk(b, Oq[k], Oq[k] + 4, Dq[k], Dq[k] + 4, Wq[k], Wq[k] + 4, Tq[k], True)
    for k in range(2):
        for r in range(4):
            b(f"  v_cvt_pk_bf16_f32 v{Pq[k]+r}, v{Oq[k]+r}, -v{Oq[k]+4+r}")
    b(f"  s_nop 1")
    stage('A', Pq)
    b(f"  s_nop 5")
    twiddle_pack()
    stage('B', Pq)
    b(f"  s_nop 5")
    for k in range(2):
        for r in range(4):
            b(f"  v_cvt_pk_bf16_f32 v{Pq[k]+r}, v{Dq[k]+r}, -v{Dq[k]+4+r}")
    b(f"  ds_write_b128 v5, {vr(Pq[0],4)} offset:{L2_X}")
    b(f"  ds_write_b128 v5, {vr(Pq[1],4)} offset:{L2_X+1040}")
    b(f"  s_waitcnt lgkmcnt(0)")
    b(f"  s_barrier")
    for j in range(4):
        b(f"  ds_read_b32 v{XL+j}, v21 offset:{L2_X + j*1040}")
        b(f"  ds_read_b32 v{XL+4+j}, v22 offset:{L2_X + j*1040}")
    b(f"  v_bfe_u32 v16, v0, 2, 4              ; a")
    b(f"  v_lshrrev_b32 v17, 6, v0             ; b")
    b(f"  v_lshl_add_u32 v16, v16, 4, v17      ; s1")
    b(f"  v_lshlrev_b32 v16, 14, v16")
    b(f"  v_and_b32 v17, 3, v0")
    b(f"  v_lshl_add_u32 v16, v17, 4, v16")
    b(f"  s_lshl_b32 s{S_T+4}, s{S_T}, 11")
    b(f"  s_lshl_b32 s{S_T+5}, s{S_T+1}, 6")
    b(f"  s_add_u32 s{S_T+4}, s{S_T+4}, s{S_T+5}")
    b(f"  s_add_u32 s{S_T+5}, s{S_T+4}, {8*16384}")
    b(f"  s_waitcnt lgkmcnt(0)")
    if SENT2():
        for j in range(8): b(f"  v_min_u32 v{XL+j}, 0xfffffffe, v{XL+j}")
    b(f"  buffer_store_dwordx4 {vr(XL,4)}, v16, s[{SRD_B}:{SRD_B+3}], s{S_T+4} offen{SF}")
    b(f"  buffer_store_dwordx4 {vr(XL+4,4)}, v16, s[{SRD_B}:{SRD_B+3}], s{S_T+5} offen{SF}")
    stamp(b, "p2 stores issued")
    if not SENT2():
        b(f"  s_and_b32 s{S_T+8}, s2, 15")
        arrive(b, 1, S_T + 8, label="x2")

V_LO = 224
S_G1A = 60
def g1_ids(b):
    b(f"  s_lshr_b32 s{S_T}, s2, 3                 ; i")
    b(f"  s_cmp_lt_u32 s{S_T}, 28")
    b(f"  s_cselect_b32 s62, 1, 0")
    b(f"  s_mul_i32 s{S_T+1}, s{S_T}, 37")
    b(f"  s_lshr_b32 s{S_T+1}, s{S_T+1}, 8         ; i/7")
    b(f"  s_mul_i32 s{S_T+2}, s{S_T+1}, 7")
    b(f"  s_sub_u32 s{S_T+2}, s{S_T}, s{S_T+2}     ; i%7")
    b(f"  s_and_b32 s{S_T+3}, s2, 7")
    b(f"  s_lshr_b32 s{S_T+4}, s{S_T+3}, 1")
    b(f"  s_mul_i32 s{S_T+4}, s{S_T+4}, 7")
    b(f"  s_add_u32 s60, s{S_T+4}, s{S_T+2}        ; ft")
    b(f"  s_and_b32 s{S_T+3}, s{S_T+3}, 1")
    b(f"  s_lshl_b32 s{S_T+3}, s{S_T+3}, 2")
    b(f"  s_add_u32 s61, s{S_T+3}, s{S_T+1}        ; dt")

S_SOFF, S_M0, S_N = 4, 5, 6
def loader_issue(b, voff, fl=""):
    for i in range(4):
        b(f"  s_add_u32 m0, s{S_M0}, {4096*i}")
        b(f"  s_nop 0")
        b(f"  buffer_load_dwordx4 v{voff+i}, s[{SRD_T}:{SRD_T+3}], s{S_SOFF} offen{fl} lds")
    b(f"  s_add_u32 s{S_SOFF}, s{S_SOFF}, s9")
    b(f"  s_add_u32 s{S_M0}, s{S_M0}, {STAGE}")
    b(f"  s_cmp_ge_u32 s{S_M0}, s{S_N+1}")
    b(f"  s_cselect_b32 s{S_N+2}, {R*STAGE}, 0")
    b(f"  s_sub_u32 s{S_M0}, s{S_M0}, s{S_N+2}")

def loader_init(b, step_bytes):
    b(f"  s_sub_u32 s50, s{S_W}, 4")
    b(f"  s_lshl_b32 s{S_M0}, s50, 10")
    b(f"  s_add_u32 s{S_N+1}, s{S_M0}, {R*STAGE}")
    b(f"  s_mov_b32 s{S_SOFF}, 0")
    b(f"  s_mov_b32 s9, {step_bytes}")

def g1_loader_addr(b):
    b(f"  s_sub_u32 s50, s{S_W}, 4      ; w'")
    for i in range(4):
        b(f"  s_lshl_b32 s49, s50, 2")
        b(f"  s_add_u32 s49, s49, {16*i}")
        b(f"  v_lshrrev_b32 v14, 4, v7")
        b(f"  v_add_u32 v14, s49, v14                 ; row 0..63")
        b(f"  v_and_b32 v15, 3, v14")
        b(f"  v_lshlrev_b32 v15, 2, v15")
        if "m16" in OPT:
            b(f"  v_bfe_u32 v16, v14, 3, 1")
            b(f"  v_lshl_add_u32 v15, v16, 1, v15")
        b(f"  v_and_b32 v16, 15, v7")
        b(f"  v_xor_b32 v16, v16, v15                 ; q")
        b(f"  v_lshrrev_b32 v17, 3, v14")
        b(f"  v_and_b32 v18, 7, v14")
        b(f"  v_lshl_add_u32 v17, v18, 8, v17         ; s")
        b(f"  v_mul_u32_u24 v17, 7168, v17")
        b(f"  v_lshl_add_u32 v17, v16, 4, v17")
        b(f"  s_lshl_b32 s49, s60, 8")
        b(f"  v_add_u32 v{V_LO+i}, s49, v17")

def g2_ids(b):
    if SK():
        b(f"  s_lshr_b32 s{S_T+1}, s2, 3")
        b(f"  s_lshr_b32 s{S_TILE_A}, s{S_T+1}, 2          ; dt")
        b(f"  s_lshr_b32 s{S_T}, s2, 1")
        b(f"  s_and_b32 s{S_T}, s{S_T}, 3")
        b(f"  s_lshl_b32 s{S_T}, s{S_T}, 2")
        b(f"  s_and_b32 s{S_T+1}, s{S_T+1}, 3")
        b(f"  s_add_u32 s{S_TILE_B}, s{S_T}, s{S_T+1}      ; st2")
        b(f"  s_and_b32 s19, s2, 1                       ; kh")
        return
    b(f"  s_and_b32 s{S_T}, s2, 1")
    b(f"  s_lshl_b32 s{S_T}, s{S_T}, 2")
    b(f"  s_lshr_b32 s{S_T+1}, s2, 3")
    b(f"  s_and_b32 s{S_T+2}, s{S_T+1}, 3")
    b(f"  s_add_u32 s{S_TILE_A}, s{S_T}, s{S_T+2}     ; dt")
    b(f"  s_lshr_b32 s{S_T}, s2, 1")
    b(f"  s_and_b32 s{S_T}, s{S_T}, 3")
    b(f"  s_lshl_b32 s{S_T}, s{S_T}, 3")
    b(f"  s_lshr_b32 s{S_T+1}, s{S_T+1}, 2")
    b(f"  s_add_u32 s{S_TILE_B}, s{S_T}, s{S_T+1}     ; st")

def g2_loader_addr(b):
    if SK():
        b(f"  s_sub_u32 s50, s{S_W}, 4")
        for i in range(4):
            b(f"  s_lshl_b32 s49, s50, 2")
            b(f"  s_add_u32 s49, s49, {16*i}")
            b(f"  v_lshrrev_b32 v14, 4, v7")
            b(f"  v_add_u32 v14, s49, v14                 ; row 0..63")
            b(f"  v_and_b32 v15, 3, v14")
            b(f"  v_lshlrev_b32 v15, 2, v15")
            if "m16" in OPT:
                b(f"  v_bfe_u32 v16, v14, 3, 1")
                b(f"  v_lshl_add_u32 v15, v16, 1, v15")
            b(f"  v_and_b32 v16, 15, v7")
            b(f"  v_xor_b32 v16, v16, v15                 ; q")
            b(f"  v_lshlrev_b32 v14, 12, v14              ; row*4096")
            b(f"  v_lshl_add_u32 v14, v16, 4, v14")
            b(f"  s_lshl_b32 s49, s{S_TILE_B}, 8          ; s0*2")
            b(f"  s_mul_i32 s48, s19, {1792*4096}         ; k half")
            b(f"  s_add_u32 s49, s49, s48")
            b(f"  v_add_u32 v{V_LO+i}, s49, v14")
        return
    b(f"  s_sub_u32 s50, s{S_W}, 4")
    for i in range(4):
        b(f"  s_lshl_b32 s49, s50, 3")
        b(f"  s_add_u32 s49, s49, {32*i}")
        b(f"  v_lshrrev_b32 v14, 3, v7")
        b(f"  v_add_u32 v14, s49, v14                 ; row")
        b(f"  v_bfe_u32 v15, v14, 1, 1")
        b(f"  v_lshlrev_b32 v15, 2, v15")
        b(f"  v_and_b32 v16, 7, v7")
        b(f"  v_xor_b32 v16, v16, v15                 ; q")
        b(f"  v_lshlrev_b32 v14, 12, v14              ; row*4096")
        b(f"  v_lshl_add_u32 v14, v16, 4, v14")
        b(f"  s_lshl_b32 s49, s{S_TILE_B}, 7          ; s0*2")
        b(f"  v_add_u32 v{V_LO+i}, s49, v14")

def loader_loop(b, NS, pre, fl=""):
    if "priol" in OPT: b("  s_setprio 2")
    if "oldstart" in OPT:
        for n in range(R - 4): loader_issue(b, V_LO, fl)
        nmain = NS - (R - 2)
    else:
        b(f"  s_waitcnt vmcnt(4)")
        b("  s_barrier                      ; B_0")
        for n in range(R - 3): loader_issue(b, V_LO, fl)
        nmain = NS - (R - 2) - 1
    b(f"  s_mov_b32 s{S_N}, {nmain}")
    b.label(f"{pre}_lloop")
    b(f"  s_waitcnt vmcnt({(R-3)*4})")
    b("  s_barrier")
    loader_issue(b, V_LO, fl)
    b(f"  s_sub_u32 s{S_N}, s{S_N}, 1")
    b(f"  s_cmp_lg_u32 s{S_N}, 0")
    b(f"  s_cbranch_scc1 {pre}_lloop")
    for i in range(R - 2):
        b(f"  s_waitcnt vmcnt({(R-3-i)*4})")
        b("  s_barrier")

BD3 = 32; XR3 = 192; GM3 = 30
def p3_tables(b):
    b(f"  v_and_b32 v10, 255, v0            ; e")
    b(f"  v_lshrrev_b32 v11, 8, v0")
    b(f"  v_bfe_u32 v12, v10, 2, 4          ; n = lane&15")
    b(f"  v_lshrrev_b32 v13, 6, v10         ; g")
    b(f"  v_and_b32 v14, 3, v10             ; r")
    b(f"  v_lshl_add_u32 v13, v13, 2, v14   ; 4g + r")
    b(f"  v_lshrrev_b32 v15, 2, v12")
    b(f"  v_lshlrev_b32 v15, 3, v15")
    b(f"  v_and_b32 v16, 3, v12")
    b(f"  v_add_u32 v15, v15, v16           ; b(n,0)")
    b(f"  v_lshl_add_u32 v16, v11, 2, v15   ; b(n, sel)")
    b(f"  v_mul_u32_u24 v17, v16, v13")
    sincos(b, 18, 19, 17, 5, 20)
    b(f"  v_lshlrev_b32 v22, 2, v10")
    b(f"  v_lshl_add_u32 v22, v11, 11, v22  ; sel*2048 + e*4")
    b(f"  v_add_u32 v22, {L3_M3}, v22")
    b(f"  v_cvt_pk_bf16_f32 v23, v18, -v19")
    b(f"  v_cvt_pk_bf16_f32 v24, v19, v18")
    b(f"  ds_write_b32 v22, v23")
    b(f"  ds_write_b32 v22, v24 offset:1024")
    b(f"  v_lshl_add_u32 v17, v11, 4, v13   ; k1")
    for z in range(2):
        b(f"  v_add_u32 v21, {16*z}, v12")
        b(f"  v_mul_u32_u24 v21, v21, v17")
        sincos(b, 18, 19, 21, 5, 20)
        b(f"  v_add_f32 v18, v18, v18")
        b(f"  v_mul_f32 v19, -2.0, v19")
        b(f"  v_cvt_pk_bf16_f32 v23, v18, v19")
        b(f"  ds_write_b32 v22, v23 offset:{4096+1024*z}")
    b(f"  v_lshlrev_b32 v23, 2, v10")
    b(f"  v_lshl_add_u32 v23, v11, 12, v23   ; u*4096 + e*4")
    b(f"  v_add_u32 v23, {L3_TW}, v23")
    for v in range(2):
        b(f"  v_add_u32 v21, {4*v}, v15")
        b(f"  v_mul_u32_u24 v21, v21, v17")
        sincos(b, 18, 19, 21, 10, 20)
        b(f"  ds_write_b32 v23, v18 offset:{2048*v}")
        b(f"  ds_write_b32 v23, v19 offset:{2048*v+1024}")

def p3_setup(b):
    srd(b, SRD_A, P_WS, 4 << 20, WS_X2)
    srd(b, SRD_B, P_X, 4 << 20)
    srd(b, SRD_C, P_WS, 4 << 20, WS_H)
    srd(b, SRD_D, P_WS, 4 << 20, WS_LN2)
    b(f"  s_lshl_b32 s{S_T+3}, s{S_W}, 8")
    b(f"  s_add_u32 s{S_T+3}, s{S_T+3}, s2")
    b(f"  s_lshl_b32 s{S_T+3}, s{S_T+3}, 11       ; s*2048")
    b(f"  v_lshlrev_b32 v4, 6, v8")
    b(f"  v_lshl_add_u32 v4, v9, 4, v4")
    if "stash" in OPT:
        b(f"  s_lshl_b32 s{S_T+9}, s{S_W}, 11")
        b(f"  s_add_u32 s{S_T+9}, s{S_T+9}, {L_XS}")
        b(f"  v_add_u32 v2, s{S_T+9}, v4")
        for z in range(2): b(f"  ds_read_b128 {vr(XR3+4*z,4)}, v2 offset:{1024*z}")
    else:
      for z in range(2):
        b(f"  buffer_load_dwordx4 {vr(XR3+4*z,4)}, v4, s[{SRD_B}:{SRD_B+3}], s{S_T+3} offen offset:{1024*z}")
    b(f"  s_mov_b32 s63, s{S_T+3}")
    if SK():
        srd(b, SRD_PF, P_WS, 4 << 20, WS_XCH)
        for i in range(4): b(f"  v_mov_b32 v{200+i}, -1")
        b(f"  v_lshlrev_b32 v2, 4, v0")
        b(f"  s_lshl_b32 s{S_T+8}, s2, 14")
        b(f"  buffer_store_dwordx4 v[200:203], v2, s[{SRD_PF}:{SRD_PF+3}], s{S_T+8} offen{SF}")
        b(f"  s_add_u32 s{S_T+8}, s{S_T+8}, 8192")
        b(f"  buffer_store_dwordx4 v[200:203], v2, s[{SRD_PF}:{SRD_PF+3}], s{S_T+8} offen{SF}")
    if "es" in OPT:
        b(f"  s_cmp_ge_u32 s{S_W}, 4")
        b(f"  s_cbranch_scc1 p3_noclr")
        srd(b, SRD_PF, P_WS, U_BYTES, WS_U)
        b(f"  s_lshr_b32 s{S_T+8}, s2, 3            ; dblk")
        b(f"  s_mul_i32 s{S_T+8}, s{S_T+8}, 229376")
        b(f"  s_lshr_b32 s{S_T+9}, s2, 2")
        b(f"  s_and_b32 s{S_T+9}, s{S_T+9}, 1       ; k half")
        b(f"  s_mul_i32 s{S_T+9}, s{S_T+9}, {112*1024}")
        b(f"  s_add_u32 s{S_T+8}, s{S_T+8}, s{S_T+9}")
        b(f"  s_and_b32 s{S_T+9}, s2, 3")
        b(f"  s_lshl_b32 s{S_T+9}, s{S_T+9}, 12")
        b(f"  s_add_u32 s{S_T+8}, s{S_T+8}, s{S_T+9}")
        b(f"  buffer_store_dwordx4 v[200:203], v2, s[{SRD_PF}:{SRD_PF+3}], s{S_T+8} offen{SF}")
        b.label("p3_noclr")
    if "nopf" not in OPT and "ntw1" not in OPT:
        if PFN[2]:
            w1_share_base(b, S_T + 8, (PFN[0] + PFN[1]) * 4096)
            pf_wide(b, P_W1, W1B, S_T + 8, PFN[2], 4, 8, "pf_p3a")
    g1_ids(b)
    g1_loader_addr(b)
    loader_init(b, 8 * 7168)
    p3_tables(b)
    gmat(b, GM3, 2, True, 10)
    b(f"  v_lshlrev_b32 v1, 12, v9")
    b(f"  v_lshl_add_u32 v1, v8, 2, v1")
    b(f"  s_lshl_b32 s{S_T}, s2, 14")
    b(f"  s_and_b32 s{S_T+1}, s{S_W}, 1")
    b(f"  s_lshl_b32 s{S_T+1}, s{S_T+1}, 6")
    b(f"  s_lshr_b32 s{S_T+2}, s{S_W}, 1")
    b(f"  s_lshl_b32 s{S_T+2}, s{S_T+2}, 9")
    b(f"  s_add_u32 s{S_T}, s{S_T}, s{S_T+1}")
    b(f"  s_add_u32 s44, s{S_T}, s{S_T+2}          ; X2 soffset")
    b(f"  s_lshl_b32 s{S_T+1}, s{S_T+1}, 4        ; u*1024")
    b(f"  s_lshr_b32 s{S_T+2}, s{S_T+2}, 1        ; q4*256")
    b(f"  s_add_u32 s45, s{S_T+1}, s{S_T+2}")
    b(f"  s_waitcnt lgkmcnt(0)")

def p3_main(b):
    Bd, XR, GM = BD3, XR3, GM3
    D = 40
    b(f"  v_lshlrev_b32 v3, 12, v9")
    b(f"  v_lshl_add_u32 v3, v8, 4, v3")
    b(f"  v_add_u32 v3, s45, v3")
    b(f"  v_add_u32 v3, {L3_EX}, v3")
    M3, M4, TW = 96, 112, 128
    b(f"  v_lshlrev_b32 v6, 4, v7")
    b(f"  v_add_u32 v6, {L3_M3}, v6")
    for i in range(4): b(f"  ds_read_b128 {vr(M3+4*i,4)}, v6 offset:{1024*i}")
    for i in range(4): b(f"  ds_read_b128 {vr(M4+4*i,4)}, v6 offset:{4096+1024*i}")
    b(f"  s_waitcnt lgkmcnt(0)")
    for i in range(8): b(f"  ds_read_b128 {vr(TW+4*i,4)}, v6 offset:{8192+1024*i}")
    if SENT2():
        b(f"  s_mov_b32 s11, 200000")
        b.label("p3_poll")
    for i in range(4):
        for e in range(2):
            b(f"  buffer_load_dword v{Bd+2*i+e}, v1, s[{SRD_A}:{SRD_A+3}], s44 offen offset:{e*2048+i*128} sc1")
    b(f"  s_waitcnt vmcnt(0)")
    if SENT2(): sentinel_check(b, Bd, "p3")
    stamp(b, "p3 x2 landed")
    if "nopf" not in OPT and "ntw1" not in OPT and PFN[3]:
        w1_share_base(b, S_T + 8, (PFN[0] + PFN[1] + PFN[2]) * 4096)
        pf_wide(b, P_W1, W1B, S_T + 8, PFN[3], 4, 8, "pf_p3b")
    for i in range(4):
        b(f"  {MF16} {vr(D+4*i,4)}, {vr(GM,2)}, {vr(Bd+2*i,2)}, 0")
    b(f"  s_nop 4")
    PK = 56
    for e in range(2):
        for i in range(4):
            b(f"  v_cvt_pk_bf16_f32 v{PK+4*e+i}, v{D+4*i+2*e}, v{D+4*i+2*e+1}")
    b(f"  ds_write_b128 v3, {vr(PK,4)}")
    b(f"  ds_write_b128 v3, {vr(PK+4,4)} offset:2048")
    b(f"  s_waitcnt lgkmcnt(0)")
    b(f"  s_barrier")
    b(f"  v_lshlrev_b32 v5, 8, v9")
    b(f"  v_lshl_add_u32 v5, v8, 4, v5")
    b(f"  s_lshl_b32 s{S_T+1}, s{S_W}, 11")
    b(f"  s_add_u32 s{S_T+1}, s{S_T+1}, {L3_EX}")
    b(f"  v_add_u32 v5, s{S_T+1}, v5")
    AU = 32
    b(f"  ds_read_b128 {vr(AU,4)}, v5")
    b(f"  ds_read_b128 {vr(AU+4,4)}, v5 offset:1024")
    b(f"  s_waitcnt lgkmcnt(0)")
    b(f"  v_readlane_b32 s{S_T+4}, v{AU}, 0")
    b(f"  v_writelane_b32 v{AU}, 0, 0")
    b(f"  s_nop 1")
    b(f"  s_lshl_b32 s{S_T+4}, s{S_T+4}, 16")
    TT = 160
    for u in range(2):
        for v in range(2):
            for c in range(2):
                d = TT + ((u * 2 + v) * 2 + c) * 4
                b(f"  {MF32} {vr(d,4)}, {vr(AU+4*u,4)}, {vr(M3+4*(2*v+c),4)}, 0")
    CI = 60
    b(f"  v_mov_b32 v{CI}, s{S_T+4}")
    b(f"  v_xor_b32 v{CI+1}, 0x80000000, v{CI}")
    b(f"  v_mov_b32 v{CI+2}, v{CI}")
    b(f"  v_mov_b32 v{CI+3}, v{CI+1}")
    b(f"  s_nop 1")
    A2 = 64; O = 40; W = 80
    for u in range(2):
        for v in range(2):
            t = TT + ((u * 2 + v) * 2) * 4
            tw = TW + ((u * 2 + v) * 2) * 4
            cmul_pk(b, O, O + 4, t, t + 4, tw, tw + 4, W, True)
            for r in range(4):
                b(f"  v_cvt_pk_bf16_f32 v{A2+(u*2+v)*4+r}, v{O+r}, v{O+4+r}")
    Y = 160
    b(f"  s_nop 1")
    for z in range(2):
        for v in range(2):
            d = Y + (z * 2 + v) * 4
            b(f"  {MF32} {vr(d,4)}, {vr(A2+(0*2+v)*4,4)}, {vr(M4+(0*2+z)*4,4)}, {vr(CI,4)}")
    for z in range(2):
        for v in range(2):
            d = Y + (z * 2 + v) * 4
            b(f"  {MF32} {vr(d,4)}, {vr(A2+(1*2+v)*4,4)}, {vr(M4+(1*2+z)*4,4)}, {vr(d,4)}")
    b(f"  s_nop 7")
    X = 40; HP = 32
    stamp(b, "p3 ifft done")
    for z in range(2):
        for dd in range(4):
            y0 = Y + z * 8 + 2 * dd
            xd = XR + 4 * z + dd
            t = 64 + 2 * (dd % 4)
            b(f"  v_lshlrev_b32 v{t}, 16, v{xd}")
            b(f"  v_and_b32 v{t+1}, 0xffff0000, v{xd}")
            b(f"  v_pk_add_f32 {vr(t,2)}, {vr(t,2)}, {vr(y0,2)}")
            b(f"  v_cvt_pk_bf16_f32 v{HP+4*z+dd}, v{t}, v{t+1}")
    for z in range(2):
        b(f"  buffer_store_dwordx4 {vr(HP+4*z,4)}, v4, s[{SRD_C}:{SRD_C+3}], s63 offen offset:{1024*z}{SF}")
    for i in range(8):
        b(f"  v_lshlrev_b32 v{X+2*i}, 16, v{HP+i}")
        b(f"  v_and_b32 v{X+2*i+1}, 0xffff0000, v{HP+i}")
    ln_fast(b, X, 64, S_T + 4, False)
    LP = 72
    stamp(b, "p3 ln done")
    for i in range(8):
        b(f"  v_cvt_pk_bf16_f32 v{LP+i}, v{X+2*i}, v{X+2*i+1}")
    b(f"  v_mul_u32_u24 v3, 80, v8")
    b(f"  v_lshl_add_u32 v3, v9, 4, v3")
    b(f"  s_mul_i32 s{S_T+1}, s{S_W}, {L3_RS}")
    b(f"  s_add_u32 s{S_T+1}, s{S_T+1}, {L3_LN}")
    b(f"  v_add_u32 v3, s{S_T+1}, v3")
    for z in range(2):
        b(f"  ds_write_b128 v3, {vr(LP+4*z,4)} offset:{z*16*80}")
    b(f"  s_waitcnt lgkmcnt(0)")
    b(f"  s_barrier")
    b(f"  v_bfe_u32 v10, v7, 2, 2")
    b(f"  v_mul_u32_u24 v10, {L3_RS}, v10")
    b(f"  v_lshrrev_b32 v11, 5, v7")
    b(f"  v_mul_u32_u24 v12, 80, v11")
    b(f"  v_add_u32 v10, v10, v12")
    if "m16" in OPT:
        b(f"  v_and_b32 v12, 3, v7")
        b(f"  v_lshl_add_u32 v10, v12, 4, v10")
        b(f"  v_bfe_u32 v12, v7, 4, 1")
        b(f"  v_lshl_add_u32 v10, v12, 3, v10")
    else:
        b(f"  v_and_b32 v12, 1, v7")
        b(f"  v_lshl_add_u32 v10, v12, 5, v10")
        b(f"  v_bfe_u32 v12, v7, 4, 1")
        b(f"  v_lshl_add_u32 v10, v12, 4, v10")
        b(f"  v_bfe_u32 v12, v7, 1, 1")
        b(f"  v_lshl_add_u32 v10, v12, 3, v10")
    b(f"  s_mul_i32 s{S_T+1}, s{S_W}, {4*80}")
    b(f"  s_add_u32 s{S_T+1}, s{S_T+1}, {L3_LN}")
    b(f"  v_add_u32 v10, s{S_T+1}, v10")
    for ps in range(2):
        b(f"  ds_read_b64_tr_b16 {vr(32+4*ps,2)}, v10 offset:{ps*160}")
        b(f"  ds_read_b64_tr_b16 {vr(34+4*ps,2)}, v10 offset:{ps*160 + 4*L3_RS}")
    b(f"  v_lshlrev_b32 v11, 17, v11")
    b(f"  v_and_b32 v12, 31, v7")
    b(f"  v_lshl_add_u32 v11, v12, 4, v11")
    b(f"  s_lshl_b32 s{S_T+1}, s{S_W}, 19")
    b(f"  s_lshl_b32 s{S_T+2}, s2, 9")
    b(f"  s_add_u32 s{S_T+1}, s{S_T+1}, s{S_T+2}")
    b(f"  s_add_u32 s{S_T+2}, s{S_T+1}, {2*131072}")
    b(f"  s_waitcnt lgkmcnt(2)")
    if "es" in OPT:
        for i in range(4): b(f"  v_min_u32 v{32+i}, 0xfffffffe, v{32+i}")
    b(f"  buffer_store_dwordx4 v[32:35], v11, s[{SRD_D}:{SRD_D+3}], s{S_T+1} offen{SF}")
    b(f"  s_waitcnt lgkmcnt(0)")
    if "es" in OPT:
        for i in range(4): b(f"  v_min_u32 v{36+i}, 0xfffffffe, v{36+i}")
    b(f"  buffer_store_dwordx4 v[36:39], v11, s[{SRD_D}:{SRD_D+3}], s{S_T+2} offen{SF}")
    stamp(b, "p3 stores issued")
    b(f"  s_and_b32 s{S_T+8}, s2, 15")
    arrive(b, 2, S_T + 8, label="x3")
    srd(b, SRD_T, P_W1, W1B)
    b(f"  s_cmp_lt_u32 s{S_W}, 4")
    b(f"  s_cbranch_scc1 p3_nodma")
    b(f"  s_cmp_eq_u32 s62, 0")
    b(f"  s_cbranch_scc1 p3_nodma")
    for n in range(2): loader_issue(b, V_LO, W1F())
    b.label("p3_nodma")

def gemm_core(b, c, pre, after_setup, after_prologue=None, posts=None):
    NB, NS = c.NB, c.NS
    acc = lambda nb: V_ACC + nb * 16
    VT = V_ACC + NB * 16
    VPR = VT + 32
    c.VT, c.VPR = VT, VPR
    c.vend = VPR + 4 * PR
    tf = lambda q: VT + (q % 8) * 4
    pr = lambda j: VPR + (j % PR) * 4
    FPI = 64
    KPI = FPI // NB
    def tread(q):
        ql = q % FPI
        lslot, within = ql // 16, ql % 16
        ks, nb = within // NB, within % NB
        off = lslot * STAGE + ks * 16 * c.rowb
        b(f"  ds_read_b64_tr_b16 {vr(tf(q),2)}, v{V_T+nb} offset:{off}")
        b(f"  ds_read_b64_tr_b16 {vr(tf(q)+2,2)}, v{V_T+nb} offset:{off+4*c.rowb}")
    def pload(j):
        b(f"  buffer_load_dwordx4 {vr(pr(j),4)}, v{V_P}, s[{SRD_P}:{SRD_P+3}], s{S_POFF} offen offset:{(j%4)*1024}{LF}")
        if j % 4 == 3: b(f"  s_add_u32 s{S_POFF}, s{S_POFF}, 4096")
    def mfma(q):
        nb = q % NB; j = q // NB; a = acc(nb)
        if "m16fake" in OPT:
            o = 8 * (j % 2)
            b(f"  v_mfma_f32_16x16x32_bf16 {vr(a+o,4)}, {vr(tf(q),4)}, {vr(pr(j),4)}, {vr(a+o,4)}")
            b(f"  v_mfma_f32_16x16x32_bf16 {vr(a+o+4,4)}, {vr(pr(j),4)}, {vr(tf(q),4)}, {vr(a+o+4,4)}")
            return
        if c.name == "g1":
            b(f"  v_mfma_f32_32x32x16_bf16 {vr(a,16)}, {vr(tf(q),4)}, {vr(pr(j),4)}, {vr(a,16)}")
        else:
            b(f"  v_mfma_f32_32x32x16_bf16 {vr(a,16)}, {vr(pr(j),4)}, {vr(tf(q),4)}, {vr(a,16)}")
    if "prioc" in OPT: b("  s_setprio 2")
    b(f"  s_mov_b32 s{S_POFF}, 0")
    S_EOFF = 18
    if "es" in OPT: b(f"  s_mov_b32 s{S_EOFF}, {3*4096}")
    b(f"  s_mov_b32 s{S_DELTA}, {4*STAGE}")
    b(f"  s_mov_b32 s{S_IT}, {NS//4 - 1}")
    if "es" in OPT:
        b(f"  s_mov_b32 s11, 200000")
        b.label(f"{pre}e0_poll")
        b(f"  buffer_load_dwordx4 {vr(pr(14),4)}, v{V_P}, s[{SRD_P}:{SRD_P+3}], s{S_EOFF} offen offset:2048 sc1")
        b(f"  s_waitcnt vmcnt(0)")
        b(f"  v_max3_u32 v16, v{pr(14)}, v{pr(14)+1}, v{pr(14)+2}")
        b(f"  v_max_u32 v16, v16, v{pr(14)+3}")
        b(f"  v_cmp_eq_u32 vcc, -1, v16")
        b(f"  s_sub_u32 s11, s11, 1")
        b(f"  s_cmp_eq_u32 s11, 0")
        b(f"  s_cbranch_scc1 {pre}e0_got")
        b(f"  s_cmp_lg_u64 vcc, 0")
        b(f"  s_cbranch_scc1 {pre}e0_poll")
        b.label(f"{pre}e0_got")
        b(f"  s_mov_b32 s11, 200000")
        b.label(f"{pre}e_poll")
        for j in range(PR - 2):
            if j % 4 == 0: b(f"  s_mov_b32 s{S_POFF}, {(j//4)*4096}")
            b(f"  buffer_load_dwordx4 {vr(pr(j),4)}, v{V_P}, s[{SRD_P}:{SRD_P+3}], s{S_POFF} offen offset:{(j%4)*1024} sc1")
        b(f"  s_waitcnt vmcnt(0)")
        sentinel_check(b, VPR, f"{pre}e", n=4 * (PR - 2))
        b(f"  s_mov_b32 s{S_POFF}, {3*4096}")
        after_setup()
    else:
        after_setup()
        for j in range(PR - 1): pload(j)
    if after_prologue: after_prologue()
    b("  s_barrier")
    for q in range(DQ): tread(q)
    def body(last):
        for q in range(FPI):
            j = q // NB
            qn = q + DQ
            do_read = not (last and qn >= FPI)
            do_pload = False
            if q % NB == 0:
                rem = KPI - 1 - j
                if (not last) or (j + PR - 1 < KPI):
                    b(f"  s_waitcnt vmcnt({PR-2})")
                    do_pload = True
                else:
                    b(f"  s_waitcnt vmcnt({min(PR-2, rem)})")
            if do_read and qn % 16 == 0:
                b("  s_barrier")
            if do_read and qn == FPI:
                for i in range(NB): b(f"  v_add_u32 v{V_T+i}, s{S_DELTA}, v{V_T+i}")
                b(f"  s_sub_u32 s{S_DELTA}, 0, s{S_DELTA}")
            if q % 2 == 0:
                left = min(DQ - 2, FPI - 2 - q) if last else DQ - 2
                b(f"  s_waitcnt lgkmcnt({2*left})")
            if "m16fake2" in OPT:
                nb = q % NB; a = acc(nb); o = 8 * (j % 2)
                ql = qn % FPI; lslot, within = ql // 16, ql % 16; ks, nbn = within // NB, within % NB
                off = lslot * STAGE + ks * 16 * c.rowb
                b(f"  v_mfma_f32_16x16x32_bf16 {vr(a+o,4)}, {vr(tf(q),4)}, {vr(pr(j),4)}, {vr(a+o,4)}")
                if do_read: b(f"  ds_read_b64_tr_b16 {vr(tf(qn),2)}, v{V_T+nbn} offset:{off}")
                b(f"  v_mfma_f32_16x16x32_bf16 {vr(a+o+4,4)}, {vr(pr(j),4)}, {vr(tf(q),4)}, {vr(a+o+4,4)}")
                if do_read: b(f"  ds_read_b64_tr_b16 {vr(tf(qn)+2,2)}, v{V_T+nbn} offset:{off+4*c.rowb}")
                if do_pload: pload(j + PR - 1)
                continue
            mfma(q)
            if do_pload: pload(j + PR - 1)
            if do_read: tread(qn)
    b.label(f"{pre}_loop")
    body(False)
    b(f"  s_sub_u32 s{S_IT}, s{S_IT}, 1")
    b(f"  s_cmp_lg_u32 s{S_IT}, 0")
    b(f"  s_cbranch_scc1 {pre}_loop")
    if posts is None:
        body(True)
        return
    F = [(q // NB, q % NB) for q in range(16)] + [(4 + r % 12, r // 12) for r in range(48)]
    def tread_f(q):
        j, nb = F[q]
        off = (j // 4) * STAGE + (j % 4) * 16 * c.rowb
        b(f"  ds_read_b64_tr_b16 {vr(tf(q),2)}, v{V_T+nb} offset:{off}")
        b(f"  ds_read_b64_tr_b16 {vr(tf(q)+2,2)}, v{V_T+nb} offset:{off+4*c.rowb}")
    for q in range(FPI):
        j, nb = F[q]
        qn = q + DQ
        first_use = (q < 16 and nb == 0) or (16 <= q < 28)
        if q == 0: b(f"  s_waitcnt vmcnt({PR-2})")
        elif first_use: b(f"  s_waitcnt vmcnt({min(PR-2, KPI - 1 - j)})")
        if q == 9: b("  s_barrier"); b("  s_barrier")
        if q == 13: b("  s_barrier")
        if q % 2 == 0:
            left = min(DQ - 2, FPI - 2 - q)
            b(f"  s_waitcnt lgkmcnt({2*left})")
        a = acc(nb)
        if c.name == "g1":
            b(f"  v_mfma_f32_32x32x16_bf16 {vr(a,16)}, {vr(tf(q),4)}, {vr(pr(j),4)}, {vr(a,16)}")
        else:
            b(f"  v_mfma_f32_32x32x16_bf16 {vr(a,16)}, {vr(pr(j),4)}, {vr(tf(q),4)}, {vr(a,16)}")
        if q == 0: pload(PR - 1)
        if qn < FPI: tread_f(qn)
        if q >= 28:
            blk, r = (q - 16) // 12 - 1, (q - 16) % 12
            fill = posts.get(blk, [])
            if fill and r >= 3:
                n = len(fill); per = -(-n // 9)
                for line in fill[(r - 3) * per:(r - 2) * per]: b(line)

V_T16 = 16
def geom16(b, sx=None):
    b(f"  v_and_b32 v8, 15, v7")
    b(f"  v_lshrrev_b32 v9, 4, v7")
    b(f"  v_lshrrev_b32 v10, 1, v9")
    b(f"  v_lshlrev_b32 v10, 10, v10")
    b(f"  v_and_b32 v11, 1, v9")
    b(f"  v_lshl_add_u32 v10, v11, 9, v10")
    b(f"  v_lshl_add_u32 v10, v8, 4, v10")
    b(f"  v_lshrrev_b32 v12, 2, v8              ; r")
    b(f"  v_lshl_add_u32 v13, v9, 3, v12        ; row")
    b(f"  v_lshlrev_b32 v12, 2, v12")
    b(f"  v_lshl_add_u32 v12, v11, 1, v12       ; f")
    b(f"  v_bfe_u32 v14, v7, 1, 1               ; c>>1")
    b(f"  v_xor_b32 v12, v12, v14")
    b(f"  v_lshlrev_b32 v13, 8, v13")
    b(f"  v_lshl_add_u32 v13, v12, 4, v13")
    b(f"  v_and_b32 v14, 1, v7")
    b(f"  v_lshl_add_u32 v{V_T16}, v14, 3, v13")
    if sx is not None: b(f"  v_xor_b32 v{V_T16}, s{sx}, v{V_T16}")
    for nb in range(1, 8): b(f"  v_xor_b32 v{V_T16+nb}, {32*nb}, v{V_T16}")

def gemm_core16(b, name, NS, pre, after_setup, after_prologue, posts):
    PRS = 8
    acc = lambda nb, db: V_ACC + (nb * 2 + db) * 4
    VT, VPR = 96, 128
    tf = lambda q: VT + (q % 8) * 4
    pr = lambda j, db: VPR + (j % PRS) * 8 + db * 4
    FPI, KPI = 64, 8
    def rd(q, jn, nbn, half):
        off = (jn // 2 % 4) * STAGE + (jn % 2) * 32 * 256 + half * 4 * 256
        b(f"  ds_read_b64_tr_b16 {vr(tf(q)+2*half,2)}, v{V_T16+nbn} offset:{off}")
    def pload(j):
        for db in range(2):
            b(f"  buffer_load_dwordx4 {vr(pr(j,db),4)}, v{V_P}, s[{SRD_P}:{SRD_P+3}], s{S_POFF} offen offset:{(j%2)*2048+db*256}{LF}")
        if j % 2 == 1: b(f"  s_add_u32 s{S_POFF}, s{S_POFF}, 4096")
    def mf(q, j, nb, db):
        a = acc(nb, db)
        if name == "g1": b(f"  v_mfma_f32_16x16x32_bf16 {vr(a,4)}, {vr(tf(q),4)}, {vr(pr(j,db),4)}, {vr(a,4)}")
        else: b(f"  v_mfma_f32_16x16x32_bf16 {vr(a,4)}, {vr(pr(j,db),4)}, {vr(tf(q),4)}, {vr(a,4)}")
    b(f"  s_mov_b32 s{S_POFF}, 0")
    b(f"  s_mov_b32 s{S_DELTA}, {4*STAGE}")
    b(f"  s_mov_b32 s{S_IT}, {NS//4 - 1}")
    after_setup()
    for j in range(PRS - 1): pload(j)
    if after_prologue: after_prologue()
    b("  s_barrier")
    for q in range(DQ):
        rd(q, q // 8, q % 8, 0); rd(q, q // 8, q % 8, 1)
    b.label(f"{pre}_loop")
    for q in range(FPI):
        j, nb = q // 8, q % 8
        qn = q + DQ
        if nb == 0: b(f"  s_waitcnt vmcnt({2*(PRS-2)})")
        if qn % 16 == 0: b("  s_barrier")
        if qn == FPI:
            for i in range(8): b(f"  v_add_u32 v{V_T16+i}, s{S_DELTA}, v{V_T16+i}")
            b(f"  s_sub_u32 s{S_DELTA}, 0, s{S_DELTA}")
        if q % 2 == 0: b(f"  s_waitcnt lgkmcnt({2*(DQ-2)})")
        mf(q, j, nb, 0)
        rd(qn, (qn % FPI) // 8, qn % 8, 0)
        mf(q, j, nb, 1)
        rd(qn, (qn % FPI) // 8, qn % 8, 1)
        if nb == 0: pload(j + PRS - 1)
    b(f"  s_sub_u32 s{S_IT}, s{S_IT}, 1")
    b(f"  s_cmp_lg_u32 s{S_IT}, 0")
    b(f"  s_cbranch_scc1 {pre}_loop")
    F = [(q // 8, q % 8) for q in range(16)] + [(2 + r % 6, r // 6) for r in range(48)]
    for q in range(FPI):
        j, nb = F[q]
        qn = q + DQ
        first_use = (q < 16 and nb == 0) or (16 <= q < 22)
        if q == 0: b(f"  s_waitcnt vmcnt({2*(PRS-2)})")
        elif first_use: b(f"  s_waitcnt vmcnt({min(2*(PRS-2), 2*(KPI-1-j))})")
        if q == 9: b("  s_barrier"); b("  s_barrier")
        if q == 13: b("  s_barrier")
        if q % 2 == 0:
            left = min(DQ - 2, FPI - 2 - q)
            b(f"  s_waitcnt lgkmcnt({2*left})")
        fill = []
        if q >= 22:
            blk, r = (q - 16) // 6 - 1, (q - 16) % 6
            L = posts.get(blk, [])
            if L and r >= 1:
                per = -(-len(L) // 5)
                fill = L[(r - 1) * per:r * per]
        h = len(fill) // 2
        mf(q, j, nb, 0)
        if qn < FPI: rd(qn, F[qn][0], F[qn][1], 0)
        for line in fill[:h]: b(line)
        mf(q, j, nb, 1)
        if qn < FPI: rd(qn, F[qn][0], F[qn][1], 1)
        for line in fill[h:]: b(line)
        if q == 0: pload(PRS - 1)

def gelu16_lines(nb, CT, t, o, vaddr):
    a = V_ACC + nb * 8
    L = []
    for h in range(0, 8, 2): L.append(f"  v_pk_mul_f32 {vr(t+h,2)}, {vr(a+h,2)}, {vr(a+h,2)}")
    for h in range(0, 8, 2): L.append(f"  v_pk_fma_f32 {vr(t+h,2)}, {vr(t+h,2)}, {vr(CT+2,2)}, {vr(CT,2)}")
    for h in range(0, 8, 2): L.append(f"  v_pk_mul_f32 {vr(t+h,2)}, {vr(t+h,2)}, {vr(a+h,2)}")
    for r in range(8): L.append(f"  v_exp_f32 v{t+r}, v{t+r}")
    for h in range(0, 8, 2): L.append(f"  v_pk_add_f32 {vr(t+h,2)}, {vr(t+h,2)}, 1.0 op_sel_hi:[1,0]")
    for r in range(8): L.append(f"  v_rcp_f32 v{t+r}, v{t+r}")
    for h in range(0, 8, 2): L.append(f"  v_pk_mul_f32 {vr(t+h,2)}, {vr(a+h,2)}, {vr(t+h,2)}")
    for i in range(4): L.append(f"  v_cvt_pk_bf16_f32 v{o+i}, v{t+2*i}, v{t+2*i+1}")
    L.append(f"  s_mov_b32 s{S_TMP+1}, {nb*1024}")
    L.append(f"  s_nop 0")
    L.append(f"  v_permlane16_swap_b32 v{o}, v{o+2}")
    L.append(f"  v_permlane16_swap_b32 v{o+1}, v{o+3}")
    L.append(f"  buffer_store_dwordx4 {vr(o,4)}, v{vaddr}, s[{SRD_O}:{SRD_O+3}], s{S_TMP+1} offen{SF}")
    return L

def g1_compute16(b):
    geom16(b)
    b(f"  s_lshl_b32 s{S_TMP}, s61, 2")
    b(f"  s_add_u32 s{S_TMP}, s{S_TMP}, s{S_W}            ; dblk")
    b(f"  s_lshl_b32 s{S_TMP+2}, s{S_TMP}, 17")
    b(f"  v_add_u32 v{V_P}, s{S_TMP+2}, v10")
    b(f"  s_lshl_b32 s{S_TMP+1}, s60, 8       ; f0*2")
    b(f"  v_lshlrev_b32 v11, 3, v9")
    b(f"  v_add_u32 v11, s{S_TMP+1}, v11")
    BV = 192
    for nb in range(8):
        b(f"  buffer_load_dwordx2 {vr(BV+2*nb,2)}, v11, s[{SRD_X}:{SRD_X+3}], 0 offen offset:{32*nb}")
    b(f"  s_mul_i32 s{S_TMP+2}, s{S_TMP}, 229376")
    b(f"  s_lshl_b32 s{S_TMP+1}, s60, 13")
    b(f"  s_add_u32 s{S_TMP+1}, s{S_TMP+1}, s{S_TMP+2}")
    b(f"  v_lshlrev_b32 v12, 4, v7")
    b(f"  v_add_u32 v28, s{S_TMP+1}, v12")
    b(f"  s_waitcnt vmcnt(0)")
    for nb in range(8):
        for db in range(2):
            a = V_ACC + (nb * 2 + db) * 4; bv = BV + 2 * nb
            b(f"  v_lshlrev_b32 v{a}, 16, v{bv}")
            b(f"  v_and_b32 v{a+1}, 0xffff0000, v{bv}")
            b(f"  v_lshlrev_b32 v{a+2}, 16, v{bv+1}")
            b(f"  v_and_b32 v{a+3}, 0xffff0000, v{bv+1}")
    K1 = -2.0 * 0.7978845608028654 * 1.4426950408889634
    K2 = K1 * 0.044715
    CT, GT, GO = 208, 212, 220
    for i, kv in enumerate((K1, K1, K2, K2)): b(f"  v_mov_b32 v{CT+i}, {hex(f2u(kv))}")
    def w3():
        wait(b, 2, 16, "x3c")
        stamp(b, "x3 released")
        stamp(b, "c:g1 start")
    posts = {nb: gelu16_lines(nb, CT, GT, GO, 28) for nb in range(7)}
    gemm_core16(b, "g1", 32, "g1", w3, None, posts)
    stamp(b, "c:g1 end")
    stamp(b, "g1 main done")
    b(f"  s_nop 7")
    for line in gelu16_lines(7, CT, GT, GO, 28): b(line)
    stamp(b, "g1 stores issued")
    b(f"  s_waitcnt vmcnt(0)")
    b(f"  s_branch g1_join")

def g2_compute16(b):
    b(f"  s_cmp_eq_u32 s19, 0")
    b(f"  s_cselect_b32 s{S_TMP+3}, 128, 0")
    geom16(b, S_TMP + 3)
    b(f"  s_lshl_b32 s{S_TMP}, s{S_TILE_A}, 2")
    b(f"  s_add_u32 s{S_TMP}, s{S_TMP}, s{S_W}        ; dblk")
    b(f"  s_mul_i32 s{S_TMP+2}, s{S_TMP}, 229376")
    b(f"  s_mul_i32 s{S_TMP+3}, s19, {112*1024}       ; k half")
    b(f"  s_add_u32 s{S_TMP+2}, s{S_TMP+2}, s{S_TMP+3}")
    b(f"  v_add_u32 v{V_P}, s{S_TMP+2}, v10")
    b(f"  s_lshl_b32 s{S_TMP+1}, s{S_TILE_B}, 7")
    b(f"  s_lshl_b32 s{S_TMP+3}, s19, 6")
    b(f"  s_add_u32 s{S_TMP+1}, s{S_TMP+1}, s{S_TMP+3}")
    b(f"  v_add_u32 v11, s{S_TMP+1}, v8              ; s0 + n")
    b(f"  v_lshlrev_b32 v12, 1, v11")
    B2 = 24
    for k in range(4): b(f"  buffer_load_ushort v{B2+k}, v12, s[{SRD_X}:{SRD_X+3}], 0 offen offset:{32*k}")
    b(f"  v_lshlrev_b32 v12, 11, v11")
    b(f"  v_lshl_add_u32 v12, v9, 4, v12             ; + 8g*2")
    b(f"  s_lshl_b32 s{S_TMP+2}, s{S_TMP}, 6")
    b(f"  v_add_u32 v28, s{S_TMP+2}, v12")
    b(f"  v_lshlrev_b32 v12, 4, v7")
    b(f"  s_lshl_b32 s{S_TMP+1}, s{S_W}, 12")
    b(f"  s_lshl_b32 s{S_TMP+2}, s2, 14")
    b(f"  s_add_u32 s{S_TMP+2}, s{S_TMP+2}, s{S_TMP+1}")
    b(f"  v_add_u32 v29, s{S_TMP+2}, v12")
    b(f"  s_xor_b32 s{S_TMP+2}, s2, 1")
    b(f"  s_lshl_b32 s{S_TMP+2}, s{S_TMP+2}, 14")
    b(f"  s_add_u32 s{S_TMP+2}, s{S_TMP+2}, s{S_TMP+1}")
    b(f"  v_add_u32 v30, s{S_TMP+2}, v12")
    for i in range(64): b(f"  v_mov_b32 v{V_ACC+i}, 0")
    HV = 192
    def w4():
        b(f"  s_lshl_b32 s18, s{S_TILE_A}, 1")
        b(f"  s_add_u32 s18, s18, s19")
        wait(b, 3, 14, "x4c", single_sreg=18)
        stamp(b, "x4 released")
        stamp(b, "c:g2 start")
    def hloads():
        for k in range(4):
            b(f"  s_mov_b32 s{S_TMP+1}, {k*16*2048}")
            b(f"  buffer_load_dwordx4 {vr(HV+4*k,4)}, v28, s[{SRD_Y}:{SRD_Y+3}], s{S_TMP+1} offen{LF}")
    def send_lines(k):
        T0 = 208 + 4 * k; a = V_ACC + 8 * k
        L = [f"  v_cvt_pk_bf16_f32 v{T0+i}, v{a+2*i}, v{a+2*i+1}" for i in range(4)]
        L += [f"  v_min_u32 v{T0+i}, 0xfffffffe, v{T0+i}" for i in range(4)]
        L += [f"  s_nop 0", f"  buffer_store_dwordx4 {vr(T0,4)}, v30, s[{SRD_X}:{SRD_X+3}], 0 offen offset:{k*1024}{SF}"]
        return L
    b(f"  s_waitcnt vmcnt(0)")
    srd(b, SRD_X, P_WS, 4 << 20, WS_XCH)
    gemm_core16(b, "g2", 28, "g2", w4, hloads, {k: send_lines(k) for k in range(4)})
    stamp(b, "c:g2 end")
    stamp(b, "g2 main done")
    RX, T, KEEP = 128, 96, V_ACC + 32
    b(f"  s_mov_b32 s11, 200000")
    b.label("g2x_poll")
    for k in range(4):
        b(f"  buffer_load_dwordx4 {vr(RX+4*k,4)}, v29, s[{SRD_X}:{SRD_X+3}], 0 offen offset:{k*1024} sc1")
    b(f"  s_waitcnt vmcnt(0)")
    b(f"  v_max3_u32 v12, v{RX}, v{RX+1}, v{RX+2}")
    b(f"  v_max3_u32 v13, v{RX+3}, v{RX+4}, v{RX+5}")
    b(f"  v_max3_u32 v12, v12, v{RX+6}, v{RX+7}")
    for i in range(8, 16, 2): b(f"  v_max3_u32 v13, v13, v{RX+i}, v{RX+i+1}")
    b(f"  v_max_u32 v12, v12, v13")
    b(f"  v_cmp_eq_u32 vcc, -1, v12")
    b(f"  s_sub_u32 s11, s11, 1")
    b(f"  s_cmp_eq_u32 s11, 0")
    b(f"  s_cbranch_scc1 g2x_got")
    b(f"  s_cmp_lg_u64 vcc, 0")
    b(f"  s_cbranch_scc1 g2x_poll")
    b.label("g2x_got")
    stamp(b, "g2 x landed")
    b(f"  s_mov_b32 s{S_TMP}, 0xffff0000")
    OS = 4 * STAGE
    b(f"  v_mul_u32_u24 v14, 272, v8           ; n * 272")
    b(f"  v_lshl_add_u32 v14, v9, 4, v14       ; + g*16")
    b(f"  s_lshl_b32 s{S_TMP+1}, s{S_W}, 6")
    b(f"  s_add_u32 s{S_TMP+1}, s{S_TMP+1}, {OS}")
    b(f"  v_add_u32 v14, s{S_TMP+1}, v14")
    for k in range(4):
        b(f"  v_lshlrev_b32 v{B2+k}, 16, v{B2+k}")
    for k in range(4):
        o = T + 16 + 4 * k
        for i in range(4):
            a = KEEP + 8 * k + 2 * i; r = RX + 4 * k + i; hv = HV + 4 * k + i; t0 = T + 4 * (i % 2)
            b(f"  v_lshlrev_b32 v{t0}, 16, v{r}")
            b(f"  v_and_b32 v{t0+1}, s{S_TMP}, v{r}")
            b(f"  v_lshlrev_b32 v{t0+2}, 16, v{hv}")
            b(f"  v_and_b32 v{t0+3}, s{S_TMP}, v{hv}")
            b(f"  v_pk_add_f32 {vr(t0,2)}, {vr(t0,2)}, {vr(a,2)}")
            b(f"  v_pk_add_f32 {vr(t0,2)}, {vr(t0,2)}, {vr(t0+2,2)}")
            b(f"  v_add_f32 v{t0}, v{t0}, v{B2+k}")
            b(f"  v_add_f32 v{t0+1}, v{t0+1}, v{B2+k}")
            b(f"  v_cvt_pk_bf16_f32 v{o+i}, v{t0}, v{t0+1}")
        b(f"  ds_write_b128 v14, {vr(o,4)} offset:{k*16*272}")
    b(f"  v_lshrrev_b32 v15, 4, v7")
    b(f"  s_lshl_b32 s{S_TMP+1}, s{S_W}, 4")
    b(f"  v_add_u32 v15, s{S_TMP+1}, v15")
    b(f"  v_and_b32 v12, 15, v7")
    b(f"  v_mul_u32_u24 v14, 272, v15")
    b(f"  v_lshl_add_u32 v14, v12, 4, v14")
    b(f"  v_add_u32 v14, {OS}, v14")
    b(f"  s_lshl_b32 s{S_TMP+1}, s{S_TILE_B}, 7")
    b(f"  s_lshl_b32 s{S_TMP+2}, s19, 6")
    b(f"  s_add_u32 s{S_TMP+1}, s{S_TMP+1}, s{S_TMP+2}")
    b(f"  v_add_u32 v15, s{S_TMP+1}, v15")
    b(f"  v_lshlrev_b32 v15, 11, v15")
    b(f"  v_lshl_add_u32 v15, v12, 4, v15")
    b(f"  s_lshl_b32 s{S_TMP+1}, s{S_TILE_A}, 8")
    b(f"  v_add_u32 v15, s{S_TMP+1}, v15")
    b(f"  s_waitcnt lgkmcnt(0)")
    b(f"  s_barrier")
    for i in range(4): b(f"  ds_read_b128 {vr(T+4*i,4)}, v14 offset:{i*4*272}")
    for i in range(4):
        b(f"  s_waitcnt lgkmcnt({3-i})")
        b(f"  s_mov_b32 s{S_TMP+1}, {i*4*2048}")
        b(f"  buffer_store_dwordx4 {vr(T+4*i,4)}, v15, s[{SRD_O}:{SRD_O+3}], s{S_TMP+1} offen{OF()}")
    stamp(b, "g2 stores issued")
    b(f"  s_branch g2_done")

def idle_w1(b):
    srd(b, SRD_PF, P_W1, W1B)
    b(f"  s_and_b32 s51, s50, 7")
    b(f"  s_mul_i32 s51, s51, {256*7168}")
    b(f"  s_lshr_b32 s52, s50, 3")
    b(f"  s_mul_i32 s52, s52, {4*7168}")
    b(f"  s_add_u32 s51, s51, s52")
    b(f"  s_add_u32 s51, s51, {128*7168}")
    b(f"  s_mov_b32 s52, 7")
    b.label("pf_w1b")
    for i in range(4): b(f"  buffer_load_dwordx4 {vr(V_DUMMY,4)}, v29, s[{SRD_PF}:{SRD_PF+3}], s51 offen offset:{1024*i}")
    b(f"  s_add_u32 s51, s51, 4096")
    b(f"  s_waitcnt vmcnt(4)")
    b(f"  s_sub_u32 s52, s52, 1")
    b(f"  s_cmp_lg_u32 s52, 0")
    b(f"  s_cbranch_scc1 pf_w1b")

def idle_w2(b):
    srd(b, SRD_PF, P_W2, W1B)
    if "idleko" in OPT and "idlesc" in OPT:
        b(f"  v_lshlrev_b32 v29, 7, v7")
        for m in range(IDLE_ROUNDS[0]):
            b(f"  s_add_u32 s51, s50, {256*m}")
            b(f"  s_lshr_b32 s52, s51, 5              ; chunk")
            b(f"  s_and_b32 s51, s51, 31")
            b(f"  s_lshl_b32 s51, s51, 13")
            b(f"  s_and_b32 s53, s52, 1")
            b(f"  s_mul_i32 s53, s53, {1792*4096}")
            b(f"  s_lshr_b32 s52, s52, 1")
            b(f"  s_lshl_b32 s52, s52, 18")
            b(f"  s_add_u32 s51, s51, s52")
            b(f"  s_add_u32 s51, s51, s53")
            b(f"  buffer_load_dword v230, v29, s[{SRD_PF}:{SRD_PF+3}], s51 offen")
            if m >= 1: b(f"  s_waitcnt vmcnt(1)")
        b(f"  s_waitcnt vmcnt(0)")
        return
    if "idleko" in OPT:
        b(f"  v_lshlrev_b32 v29, 4, v7")
        b(f"  s_lshl_b32 s51, s50, 10")
        b(f"  s_add_u32 s53, s51, {1792*4096}")
        b(f"  s_mov_b32 s52, 14")
        b.label("pf_w2")
        for i in range(2):
            b(f"  buffer_load_dwordx4 {vr(V_DUMMY,4)}, v29, s[{SRD_PF}:{SRD_PF+3}], s51 offen")
            b(f"  buffer_load_dwordx4 {vr(V_DUMMY,4)}, v29, s[{SRD_PF}:{SRD_PF+3}], s53 offen")
            b(f"  s_add_u32 s51, s51, {64*4096}")
            b(f"  s_add_u32 s53, s53, {64*4096}")
        b(f"  s_waitcnt vmcnt(4)")
        b(f"  s_sub_u32 s52, s52, 1")
        b(f"  s_cmp_lg_u32 s52, 0")
        b(f"  s_cbranch_scc1 pf_w2")
        b(f"  s_waitcnt vmcnt(0)")
        return
    if "idlesc" in OPT:
        b(f"  s_mul_i32 s51, s50, {W1B // 256}")
        b(f"  v_lshlrev_b32 v29, 7, v7")
        for i in range(7):
            b(f"  buffer_load_dword v230, v29, s[{SRD_PF}:{SRD_PF+3}], s51 offen")
            b(f"  s_add_u32 s51, s51, 8192")
            if i >= 1: b(f"  s_waitcnt vmcnt(1)")
        b(f"  s_waitcnt vmcnt(0)")
        return
    b(f"  s_mul_i32 s51, s50, {W1B // 256}")
    b(f"  s_mov_b32 s52, 14")
    b.label("pf_w2")
    for i in range(4): b(f"  buffer_load_dwordx4 {vr(V_DUMMY,4)}, v29, s[{SRD_PF}:{SRD_PF+3}], s51 offen offset:{1024*i}")
    b(f"  s_add_u32 s51, s51, 4096")
    b(f"  s_waitcnt vmcnt({0 if 'idlepace' in OPT else 4})")
    b(f"  s_sub_u32 s52, s52, 1")
    b(f"  s_cmp_lg_u32 s52, 0")
    b(f"  s_cbranch_scc1 pf_w2")
    b(f"  s_waitcnt vmcnt(0)")

def g1_gelu(b, c, blocks, accof, vaddr):
    K1 = -2.0 * 0.7978845608028654 * 1.4426950408889634
    K2 = K1 * 0.044715
    T = c.VPR
    b(f"  v_mov_b32 v{T}, {hex(f2u(K1))}")
    b(f"  v_mov_b32 v{T+1}, {hex(f2u(K1))}")
    b(f"  v_mov_b32 v{T+2}, {hex(f2u(K2))}")
    b(f"  v_mov_b32 v{T+3}, {hex(f2u(K2))}")
    b(f"  s_nop 7")
    W = T + 8
    for fb in blocks:
        a = accof(fb); t = W; o = W + 16 + 8 * (fb % 2)
        for h in range(0, 16, 2): b(f"  v_pk_mul_f32 {vr(t+h,2)}, {vr(a+h,2)}, {vr(a+h,2)}")
        for h in range(0, 16, 2): b(f"  v_pk_fma_f32 {vr(t+h,2)}, {vr(t+h,2)}, {vr(T+2,2)}, {vr(T,2)}")
        for h in range(0, 16, 2): b(f"  v_pk_mul_f32 {vr(t+h,2)}, {vr(t+h,2)}, {vr(a+h,2)}")
        for r in range(16): b(f"  v_exp_f32 v{t+r}, v{t+r}")
        for h in range(0, 16, 2): b(f"  v_pk_add_f32 {vr(t+h,2)}, {vr(t+h,2)}, 1.0 op_sel_hi:[1,0]")
        for r in range(16): b(f"  v_rcp_f32 v{t+r}, v{t+r}")
        for h in range(0, 16, 2): b(f"  v_pk_mul_f32 {vr(t+h,2)}, {vr(a+h,2)}, {vr(t+h,2)}")
        for i in range(4):
            b(f"  v_cvt_pk_bf16_f32 v{o+2*i}, v{t+4*i}, v{t+4*i+1}")
            b(f"  v_cvt_pk_bf16_f32 v{o+2*i+1}, v{t+4*i+2}, v{t+4*i+3}")
        for ip in range(2):
            oo = o + 4 * ip
            b(f"  s_mov_b32 s{S_TMP+1}, {(2*fb+ip)*1024}")
            b(f"  s_nop 0")
            b(f"  v_permlane32_swap_b32 v{oo}, v{oo+2}")
            b(f"  v_permlane32_swap_b32 v{oo+1}, v{oo+3}")
            b(f"  buffer_store_dwordx4 {vr(oo,4)}, v{vaddr}, s[{SRD_O}:{SRD_O+3}], s{S_TMP+1} offen{SF}")

def gelu_lines(fb, a, CT, t, o, vaddr):
    L = []
    for h in range(0, 16, 2): L.append(f"  v_pk_mul_f32 {vr(t+h,2)}, {vr(a+h,2)}, {vr(a+h,2)}")
    for h in range(0, 16, 2): L.append(f"  v_pk_fma_f32 {vr(t+h,2)}, {vr(t+h,2)}, {vr(CT+2,2)}, {vr(CT,2)}")
    for h in range(0, 16, 2): L.append(f"  v_pk_mul_f32 {vr(t+h,2)}, {vr(t+h,2)}, {vr(a+h,2)}")
    for r in range(16): L.append(f"  v_exp_f32 v{t+r}, v{t+r}")
    for h in range(0, 16, 2): L.append(f"  v_pk_add_f32 {vr(t+h,2)}, {vr(t+h,2)}, 1.0 op_sel_hi:[1,0]")
    for r in range(16): L.append(f"  v_rcp_f32 v{t+r}, v{t+r}")
    for h in range(0, 16, 2): L.append(f"  v_pk_mul_f32 {vr(t+h,2)}, {vr(a+h,2)}, {vr(t+h,2)}")
    for i in range(4):
        L.append(f"  v_cvt_pk_bf16_f32 v{o+2*i}, v{t+4*i}, v{t+4*i+1}")
        L.append(f"  v_cvt_pk_bf16_f32 v{o+2*i+1}, v{t+4*i+2}, v{t+4*i+3}")
    if "es" in OPT:
        for i in range(8): L.append(f"  v_min_u32 v{o+i}, 0xfffffffe, v{o+i}")
    for ip in range(2):
        oo = o + 4 * ip
        L.append(f"  s_mov_b32 s{S_TMP+1}, {(2*fb+ip)*1024}")
        L.append(f"  s_nop 1")
        L.append(f"  v_permlane32_swap_b32 v{oo}, v{oo+2}")
        L.append(f"  v_permlane32_swap_b32 v{oo+1}, v{oo+3}")
        L.append(f"  buffer_store_dwordx4 {vr(oo,4)}, v{vaddr}, s[{SRD_O}:{SRD_O+3}], s{S_TMP+1} offen{SF}")
    return L

def g1(b):
    c = g1_cfg()
    b(f"  s_cmp_eq_u32 s62, 0")
    b(f"  s_cbranch_scc1 g1_inactive")
    srd(b, SRD_P, P_WS, 4 << 20, WS_LN2)
    srd(b, SRD_T, P_W1, W1B)
    srd(b, SRD_O, P_WS, U_BYTES, WS_U)
    srd(b, SRD_X, P_B1, 3584 * 2)
    b(f"  s_cmp_ge_u32 s{S_W}, 4")
    b(f"  s_cbranch_scc1 g1_loader")
    if "m16" in OPT:
        g1_compute16(b)
    else:
        g1_compute32(b, c)
    g1_rest(b, c)

def g1_compute32(b, c):
    lane_geom(b)
    b(f"  s_lshl_b32 s{S_TMP}, s61, 2")
    b(f"  s_add_u32 s{S_TMP}, s{S_TMP}, s{S_W}            ; dblk")
    b(f"  s_lshl_b32 s{S_TMP+2}, s{S_TMP}, 17")
    b(f"  v_lshlrev_b32 v10, 4, v7")
    b(f"  v_add_u32 v{V_P}, s{S_TMP+2}, v10")
    b(f"  s_lshl_b32 s{S_TMP+1}, s60, 8       ; f0*2")
    b(f"  v_lshlrev_b32 v11, 3, v9")
    b(f"  v_add_u32 v11, s{S_TMP+1}, v11")
    BV = 192
    for fb in range(4):
        for i in range(4):
            b(f"  buffer_load_dwordx2 {vr(BV+2*(4*fb+i),2)}, v11, s[{SRD_X}:{SRD_X+3}], 0 offen offset:{64*fb+16*i}")
    b(f"  v_lshl_add_u32 v20, v9, 3, v18")
    b(f"  v_lshlrev_b32 v20, 8, v20")
    b(f"  v_lshl_add_u32 v20, v18, 6, v20")
    b(f"  v_lshl_add_u32 v20, v19, 5, v20")
    b(f"  v_lshl_add_u32 v{V_T}, v22, 3, v20")
    for fb in range(1, 4):
        b(f"  v_xor_b32 v{V_T+fb}, {64*fb}, v{V_T}")
    b(f"  s_mul_i32 s{S_TMP+2}, s{S_TMP}, 229376")
    b(f"  s_lshl_b32 s{S_TMP+1}, s60, 13")
    b(f"  s_add_u32 s{S_TMP+1}, s{S_TMP+1}, s{S_TMP+2}")
    b(f"  v_add_u32 v28, s{S_TMP+1}, v10")
    b(f"  s_waitcnt vmcnt(0)")
    for fb in range(4):
        for i in range(4):
            bv = BV + 2 * (4 * fb + i); a = V_ACC + fb * 16 + 4 * i
            b(f"  v_lshlrev_b32 v{a}, 16, v{bv}")
            b(f"  v_and_b32 v{a+1}, 0xffff0000, v{bv}")
            b(f"  v_lshlrev_b32 v{a+2}, 16, v{bv+1}")
            b(f"  v_and_b32 v{a+3}, 0xffff0000, v{bv+1}")
    def w3():
        wait(b, 2, 16, "x3c")
        stamp(b, "x3 released")
        stamp(b, "c:g1 start")
    SKEW = "skew" in OPT
    if SKEW:
        K1 = -2.0 * 0.7978845608028654 * 1.4426950408889634
        K2 = K1 * 0.044715
        CT, GT, GO = 192, 196, 212
        for i, kv in enumerate((K1, K1, K2, K2)): b(f"  v_mov_b32 v{CT+i}, {hex(f2u(kv))}")
        posts = {fb: gelu_lines(fb, V_ACC + 16 * fb, CT, GT, GO, 28) for fb in range(3)}
        gemm_core(b, c, "g1", w3, None, posts)
    else:
        gemm_core(b, c, "g1", w3)
    stamp(b, "c:g1 end")
    stamp(b, "g1 main done")
    E8 = "epi8" in OPT
    XO = 4 * STAGE
    if E8:
        b(f"  s_lshl_b32 s{S_TMP+1}, s{S_W}, 13")
        b(f"  s_add_u32 s{S_TMP+1}, s{S_TMP+1}, {XO}")
        b(f"  v_add_u32 v12, s{S_TMP+1}, v10")
        b(f"  s_nop 9")
        for k in range(8): b(f"  ds_write_b128 v12, {vr(V_ACC+32+4*k,4)} offset:{1024*k}")
        b(f"  s_waitcnt lgkmcnt(0)")
        b(f"  s_barrier")
    if SKEW:
        b(f"  s_nop 9")
        for line in gelu_lines(3, V_ACC + 48, CT, GT, GO, 28): b(line)
    else:
        g1_gelu(b, c, range(2) if E8 else range(4), lambda fb: V_ACC + fb * 16, 28)
    stamp(b, "g1 stores issued")
    b(f"  s_waitcnt vmcnt(0)")
    b(f"  s_branch g1_join")
def g1_rest(b, c):
    b.label("g1_loader")
    b(f"  s_sub_u32 s50, s{S_W}, 4")
    b(f"  s_lshl_b32 s49, s50, 10")
    b(f"  s_add_u32 s{S_N+1}, s49, {R*STAGE}")
    b(f"  s_barrier                      ; matches the barrier inside wait(x3)")
    loader_loop(b, c.NS, "g1", W1F())
    stamp(b, "g1 main done")
    g2_prologue_loader(b)
    if "epi8" in OPT:
        b(f"  s_sub_u32 s{S_TMP}, s{S_W}, 4")
        b(f"  s_lshl_b32 s{S_TMP+1}, s{S_TMP}, 13")
        b(f"  s_add_u32 s{S_TMP+1}, s{S_TMP+1}, {4*STAGE}")
        b(f"  v_lshlrev_b32 v10, 4, v7")
        b(f"  v_add_u32 v12, s{S_TMP+1}, v10")
        b(f"  s_lshl_b32 s{S_TMP+1}, s61, 2")
        b(f"  s_add_u32 s{S_TMP}, s{S_TMP}, s{S_TMP+1}      ; dblk")
        b(f"  s_mul_i32 s{S_TMP+2}, s{S_TMP}, 229376")
        b(f"  s_lshl_b32 s{S_TMP+1}, s60, 13")
        b(f"  s_add_u32 s{S_TMP+1}, s{S_TMP+1}, s{S_TMP+2}")
        b(f"  v_add_u32 v28, s{S_TMP+1}, v10")
        b(f"  s_barrier")
        for k in range(8): b(f"  ds_read_b128 {vr(V_ACC+4*k,4)}, v12 offset:{1024*k}")
        b(f"  s_waitcnt lgkmcnt(0)")
        g1_gelu(b, c, range(2, 4), lambda fb: V_ACC + (fb - 2) * 16, 28)
        b(f"  s_waitcnt vmcnt(0)")
    stamp(b, "g1 stores issued")
    b.label("g1_join")
    if SK():
        b(f"  s_cmp_ge_u32 s60, 14")
        b(f"  s_cselect_b32 s18, 1, 0")
        b(f"  s_lshl_b32 s10, s61, 1")
        b(f"  s_add_u32 s18, s18, s10")
        arrive(b, 3, 18, label="x4", drained=True)
    else:
        arrive(b, 3, 61, label="x4", drained=True)
    b(f"  s_branch g2_start")
    b.label("g1_inactive")
    if "nopf" not in OPT:
        b(f"  s_sub_u32 s50, s2, 224")
        b(f"  s_lshl_b32 s50, s50, 3")
        b(f"  s_add_u32 s50, s50, s{S_W}")
        b(f"  v_lshlrev_b32 v29, 4, v7")
        if "noidle" not in OPT: idle_w2(b)
    if "es" in OPT: wait(b, 2, 16, "x3i")
    b(f"  s_cmp_lt_u32 s{S_W}, 4")
    b(f"  s_cbranch_scc1 g2_start_inactive")
    g2_prologue_loader(b)
    b.label("g2_start_inactive")
    return c

def g2_prologue_loader(b):
    g2_ids(b)
    srd(b, SRD_T, P_W2, W1B)
    g2_loader_addr(b)
    loader_init(b, (64 if SK() else 128) * 4096)
    for n in range(2): loader_issue(b, V_LO, W2F())

def g2_sk(b):
    c = g1_cfg(); c.name = "g2"; c.NS = 28
    b.label("g2_start")
    g2_ids(b)
    srd(b, SRD_P, P_WS, U_BYTES, WS_U)
    srd(b, SRD_O, P_OUT, 4 << 20)
    srd(b, SRD_X, P_B2, 2048 * 2)
    srd(b, SRD_Y, P_WS, 4 << 20, WS_H)
    b(f"  s_cmp_ge_u32 s{S_W}, 4")
    b(f"  s_cbranch_scc1 g2_loader")
    if "m16" in OPT:
        g2_compute16(b)
        b.label("g2_loader")
        b(f"  s_barrier                      ; matches the barrier inside wait(x4)")
        loader_loop(b, c.NS, "g2", W2F())
        b.label("g2_done")
        return
    lane_geom(b)
    b(f"  s_lshl_b32 s{S_TMP}, s{S_TILE_A}, 2")
    b(f"  s_add_u32 s{S_TMP}, s{S_TMP}, s{S_W}        ; dblk")
    b(f"  s_mul_i32 s{S_TMP+2}, s{S_TMP}, 229376")
    b(f"  s_mul_i32 s{S_TMP+3}, s19, {112*1024}       ; k half")
    b(f"  s_add_u32 s{S_TMP+2}, s{S_TMP+2}, s{S_TMP+3}")
    b(f"  v_lshlrev_b32 v10, 4, v7")
    b(f"  v_add_u32 v{V_P}, s{S_TMP+2}, v10")
    b(f"  s_lshl_b32 s{S_TMP+1}, s{S_TILE_B}, 7")
    b(f"  s_lshl_b32 s{S_TMP+3}, s19, 6")
    b(f"  s_add_u32 s{S_TMP+1}, s{S_TMP+1}, s{S_TMP+3}")
    b(f"  v_add_u32 v11, s{S_TMP+1}, v8              ; s0 + s'")
    b(f"  v_lshlrev_b32 v16, 1, v11")
    for sb in range(2):
        b(f"  buffer_load_ushort v{12+sb}, v16, s[{SRD_X}:{SRD_X+3}], 0 offen offset:{64*sb}")
    b(f"  v_lshlrev_b32 v17, 11, v11")
    b(f"  v_lshl_add_u32 v17, v9, 5, v17")
    b(f"  s_lshl_b32 s{S_TMP+2}, s{S_TMP}, 6")
    b(f"  v_add_u32 v28, s{S_TMP+2}, v17")
    HV = 192
    b(f"  v_lshl_add_u32 v20, v9, 3, v18")
    b(f"  v_lshlrev_b32 v20, 8, v20")
    b(f"  v_lshl_add_u32 v20, v18, 6, v20")
    b(f"  v_lshl_add_u32 v20, v19, 5, v20")
    b(f"  v_lshl_add_u32 v{V_T}, v22, 3, v20")
    b(f"  s_cmp_eq_u32 s19, 0")
    b(f"  s_cselect_b32 s{S_TMP+3}, 128, 0")
    b(f"  v_xor_b32 v{V_T}, s{S_TMP+3}, v{V_T}")
    for fb in range(1, 4):
        b(f"  v_xor_b32 v{V_T+fb}, {64*fb}, v{V_T}")
    b(f"  s_lshl_b32 s{S_TMP+1}, s{S_W}, 12")
    b(f"  s_lshl_b32 s{S_TMP+2}, s2, 14")
    b(f"  s_add_u32 s{S_TMP+2}, s{S_TMP+2}, s{S_TMP+1}")
    b(f"  v_add_u32 v29, s{S_TMP+2}, v10")
    b(f"  s_xor_b32 s{S_TMP+2}, s2, 1")
    b(f"  s_lshl_b32 s{S_TMP+2}, s{S_TMP+2}, 14")
    b(f"  s_add_u32 s{S_TMP+2}, s{S_TMP+2}, s{S_TMP+1}")
    b(f"  v_add_u32 v30, s{S_TMP+2}, v10")
    for i in range(64): b(f"  v_mov_b32 v{V_ACC+i}, 0")
    def w4():
        b(f"  s_lshl_b32 s18, s{S_TILE_A}, 1")
        b(f"  s_add_u32 s18, s18, s19")
        wait(b, 3, 14, "x4c", single_sreg=18)
        stamp(b, "x4 released")
        stamp(b, "c:g2 start")
    def hloads():
        for sb in range(2):
            b(f"  s_mov_b32 s{S_TMP+1}, {sb*65536}")
            b(f"  buffer_load_dwordx4 {vr(HV+8*sb,4)}, v28, s[{SRD_Y}:{SRD_Y+3}], s{S_TMP+1} offen{LF}")
            b(f"  buffer_load_dwordx4 {vr(HV+8*sb+4,4)}, v28, s[{SRD_Y}:{SRD_Y+3}], s{S_TMP+1} offen offset:16{LF}")
    srd_later = True
    def send_lines(k):
        T0 = 208 + 8 * k; a = V_ACC + 16 * k
        L = [f"  v_cvt_pk_bf16_f32 v{T0+i}, v{a+2*i}, v{a+2*i+1}" for i in range(8)]
        L += [f"  v_min_u32 v{T0+i}, 0xfffffffe, v{T0+i}" for i in range(8)]
        L += [f"  buffer_store_dwordx4 {vr(T0+4*p,4)}, v30, s[{SRD_X}:{SRD_X+3}], 0 offen offset:{(2*k+p)*1024}{SF}" for p in range(2)]
        return L
    def hloads2():
        hloads()
    if "skew" in OPT:
        def w4x():
            w4()
        def hl():
            hloads()
        b(f"  s_waitcnt vmcnt(0)")
        srd(b, SRD_X, P_WS, 4 << 20, WS_XCH)
        gemm_core(b, c, "g2", w4, hloads, {0: send_lines(0), 1: send_lines(1)})
    else:
        gemm_core(b, c, "g2", w4, hloads)
    stamp(b, "c:g2 end")
    stamp(b, "g2 main done")
    T = c.VT
    if "skew" not in OPT:
        srd(b, SRD_X, P_WS, 4 << 20, WS_XCH)
        b(f"  s_nop 9")
        for k in range(2):
            for line in send_lines(k): b(line)
    KEEP = V_ACC + 32
    RX = c.VPR
    b(f"  s_mov_b32 s11, 200000")
    b.label("g2x_poll")
    for k in range(4):
        b(f"  buffer_load_dwordx4 {vr(RX+4*k,4)}, v29, s[{SRD_X}:{SRD_X+3}], 0 offen offset:{k*1024} sc1")
    b(f"  s_waitcnt vmcnt(0)")
    sentinel_check(b, RX, "g2x", n=16)
    stamp(b, "g2 x landed")
    b(f"  s_mov_b32 s{S_TMP}, 0xffff0000")
    for blk in range(2):
        for i in range(8):
            a = KEEP + blk * 16 + 2 * i; r = RX + 8 * blk + i
            b(f"  v_lshlrev_b32 v16, 16, v{r}")
            b(f"  v_and_b32 v17, s{S_TMP}, v{r}")
            b(f"  v_add_f32 v{a}, v{a}, v16")
            b(f"  v_add_f32 v{a+1}, v{a+1}, v17")
    for sb in range(2):
        b(f"  v_lshlrev_b32 v{12+sb}, 16, v{12+sb}")
    OL = "outlds" in OPT
    if OL:
        OS = 4 * STAGE
        b(f"  v_mul_u32_u24 v14, 272, v8           ; s' * 272")
        b(f"  v_lshl_add_u32 v14, v9, 5, v14       ; + h*32")
        b(f"  s_lshl_b32 s{S_TMP+1}, s{S_W}, 6")
        b(f"  s_add_u32 s{S_TMP+1}, s{S_TMP+1}, {OS}")
        b(f"  v_add_u32 v14, s{S_TMP+1}, v14")
    for sb in range(2):
        for half in range(2):
            o = T + 4 * ((sb * 2 + half) % 2) if not OL else T + 16 + 4 * (sb * 2 + half)
            for dd in range(4):
                a = KEEP + sb * 16 + half * 8 + 2 * dd
                hv = HV + 8 * sb + 4 * half + dd
                t0 = T + 8 + 2 * dd if OL else T + 8 + 4 * dd
                b(f"  v_lshlrev_b32 v{t0}, 16, v{hv}")
                b(f"  v_and_b32 v{t0+1}, s{S_TMP}, v{hv}")
                b(f"  v_pk_add_f32 {vr(t0,2)}, {vr(t0,2)}, {vr(a,2)}")
                b(f"  v_add_f32 v{t0}, v{t0}, v{12+sb}")
                b(f"  v_add_f32 v{t0+1}, v{t0+1}, v{12+sb}")
                b(f"  v_cvt_pk_bf16_f32 v{o+dd}, v{t0}, v{t0+1}")
            if OL:
                b(f"  ds_write_b128 v14, {vr(o,4)} offset:{sb*32*272 + 16*half}")
            else:
                b(f"  s_mov_b32 s{S_TMP+1}, {sb*65536}")
                if "noout" not in OPT: b(f"  buffer_store_dwordx4 {vr(o,4)}, v28, s[{SRD_O}:{SRD_O+3}], s{S_TMP+1} offen offset:{16*half}{OF()}")
    if OL:
        b(f"  v_lshrrev_b32 v15, 4, v7")
        b(f"  s_lshl_b32 s{S_TMP+1}, s{S_W}, 4")
        b(f"  v_add_u32 v15, s{S_TMP+1}, v15          ; row (i = 0)")
        b(f"  v_and_b32 v16, 15, v7")
        b(f"  v_mul_u32_u24 v14, 272, v15")
        b(f"  v_lshl_add_u32 v14, v16, 4, v14")
        b(f"  v_add_u32 v14, {OS}, v14")
        b(f"  s_lshl_b32 s{S_TMP+1}, s{S_TILE_B}, 7")
        b(f"  s_lshl_b32 s{S_TMP+2}, s19, 6")
        b(f"  s_add_u32 s{S_TMP+1}, s{S_TMP+1}, s{S_TMP+2}")
        b(f"  v_add_u32 v15, s{S_TMP+1}, v15")
        b(f"  v_lshlrev_b32 v15, 11, v15")
        b(f"  v_lshl_add_u32 v15, v16, 4, v15")
        b(f"  s_lshl_b32 s{S_TMP+1}, s{S_TILE_A}, 8")
        b(f"  v_add_u32 v15, s{S_TMP+1}, v15")
        b(f"  s_waitcnt lgkmcnt(0)")
        b(f"  s_barrier")
        for i in range(4): b(f"  ds_read_b128 {vr(T+4*i,4)}, v14 offset:{i*4*272}")
        for i in range(4):
            b(f"  s_waitcnt lgkmcnt({3-i})")
            b(f"  s_mov_b32 s{S_TMP+1}, {i*4*2048}")
            b(f"  buffer_store_dwordx4 {vr(T+4*i,4)}, v15, s[{SRD_O}:{SRD_O+3}], s{S_TMP+1} offen{OF()}")
    stamp(b, "g2 stores issued")
    b(f"  s_branch g2_done")
    b.label("g2_loader")
    b(f"  s_barrier                      ; matches the barrier inside wait(x4)")
    loader_loop(b, c.NS, "g2", W2F())
    b.label("g2_done")

def g2(b):
    if SK(): return g2_sk(b)
    c = g2_cfg()
    b.label("g2_start")
    g2_ids(b)
    srd(b, SRD_P, P_WS, U_BYTES, WS_U)
    srd(b, SRD_O, P_OUT, 4 << 20)
    srd(b, SRD_X, P_B2, 2048 * 2)
    srd(b, SRD_Y, P_WS, 4 << 20, WS_H)
    b(f"  s_cmp_ge_u32 s{S_W}, 4")
    b(f"  s_cbranch_scc1 g2_loader")
    lane_geom(b)
    b(f"  s_lshl_b32 s{S_TMP}, s{S_TILE_A}, 2")
    b(f"  s_add_u32 s{S_TMP}, s{S_TMP}, s{S_W}        ; dblk")
    b(f"  s_mul_i32 s{S_TMP+2}, s{S_TMP}, 229376")
    b(f"  v_lshlrev_b32 v10, 4, v7")
    b(f"  v_add_u32 v{V_P}, s{S_TMP+2}, v10")
    b(f"  s_lshl_b32 s{S_TMP+1}, s{S_TILE_B}, 6       ; s0")
    b(f"  v_add_u32 v11, s{S_TMP+1}, v8              ; s0 + s'")
    b(f"  v_lshlrev_b32 v16, 1, v11")
    for sb in range(2):
        b(f"  buffer_load_ushort v{12+sb}, v16, s[{SRD_X}:{SRD_X+3}], 0 offen offset:{64*sb}")
    b(f"  v_lshlrev_b32 v17, 11, v11")
    b(f"  v_lshl_add_u32 v17, v9, 5, v17")
    b(f"  s_lshl_b32 s{S_TMP+2}, s{S_TMP}, 6")
    b(f"  v_add_u32 v28, s{S_TMP+2}, v17")
    HV = 160
    b(f"  v_lshl_add_u32 v20, v9, 3, v18            ; row")
    b(f"  v_bfe_u32 v21, v18, 1, 1")
    b(f"  v_lshlrev_b32 v20, 7, v20")
    b(f"  v_lshl_add_u32 v20, v21, 6, v20")
    b(f"  v_lshl_add_u32 v20, v19, 5, v20")
    b(f"  v_lshl_add_u32 v{V_T}, v22, 3, v20")
    b(f"  v_xor_b32 v{V_T+1}, 64, v{V_T}")
    for i in range(32): b(f"  v_mov_b32 v{V_ACC+i}, 0")
    def w4():
        wait(b, 3, 28, "x4c", single_sreg=S_TILE_A)
        stamp(b, "x4 released")
        stamp(b, "c:g2 start")
    def hloads():
        for sb in range(2):
            b(f"  s_mov_b32 s{S_TMP+1}, {sb*65536}")
            b(f"  buffer_load_dwordx4 {vr(HV+8*sb,4)}, v28, s[{SRD_Y}:{SRD_Y+3}], s{S_TMP+1} offen{LF}")
            b(f"  buffer_load_dwordx4 {vr(HV+8*sb+4,4)}, v28, s[{SRD_Y}:{SRD_Y+3}], s{S_TMP+1} offen offset:16{LF}")
    gemm_core(b, c, "g2", w4, hloads)
    stamp(b, "c:g2 end")
    stamp(b, "g2 main done")
    T = c.VT
    b(f"  s_mov_b32 s{S_TMP}, 0xffff0000")
    for sb in range(2):
        b(f"  v_lshlrev_b32 v{12+sb}, 16, v{12+sb}")
    b(f"  s_nop 9")
    for sb in range(2):
        for half in range(2):
            o = T + 4 * ((sb * 2 + half) % 2)
            for dd in range(4):
                a = V_ACC + sb * 16 + half * 8 + 2 * dd
                hv = HV + 8 * sb + 4 * half + dd
                t0 = T + 8 + 4 * dd
                b(f"  v_cvt_pk_bf16_f32 v{t0}, v{a}, v{a+1}")
                b(f"  v_and_b32 v{t0+1}, s{S_TMP}, v{t0}")
                b(f"  v_lshlrev_b32 v{t0}, 16, v{t0}")
                b(f"  v_add_f32 v{t0}, v{t0}, v{12+sb}")
                b(f"  v_add_f32 v{t0+1}, v{t0+1}, v{12+sb}")
                b(f"  v_cvt_pk_bf16_f32 v{t0}, v{t0}, v{t0+1}")
                b(f"  v_and_b32 v{t0+1}, s{S_TMP}, v{t0}")
                b(f"  v_lshlrev_b32 v{t0}, 16, v{t0}")
                b(f"  v_lshlrev_b32 v{t0+2}, 16, v{hv}")
                b(f"  v_and_b32 v{t0+3}, s{S_TMP}, v{hv}")
                b(f"  v_add_f32 v{t0}, v{t0}, v{t0+2}")
                b(f"  v_add_f32 v{t0+1}, v{t0+1}, v{t0+3}")
                b(f"  v_cvt_pk_bf16_f32 v{o+dd}, v{t0}, v{t0+1}")
            b(f"  s_mov_b32 s{S_TMP+1}, {sb*65536}")
            b(f"  buffer_store_dwordx4 {vr(o,4)}, v28, s[{SRD_O}:{SRD_O+3}], s{S_TMP+1} offen offset:{16*half}")
    stamp(b, "g2 stores issued")
    b(f"  s_branch g2_done")
    b.label("g2_loader")
    b(f"  s_barrier                      ; matches the barrier inside wait(x4)")
    loader_loop(b, c.NS, "g2", W2F())
    b.label("g2_done")

DESC = """
One persistent launch, 256 workgroups (one per CU) x 8 waves, five phases separated by device-wide hand-offs.
  P1  workgroup p: rows s = p + 256 t (t = wave).  LayerNorm, 1024-point real FFT of each row as 32 x 32 (two MFMA stages,
      fp32 twiddles in between), then the radix-8 step of the S-direction FFT across the 8 rows (MFMA, twiddle folded in).
      Spectrum is kept for bins k = 1..511 plus the Nyquist bin in slot 0: the DC bin of a LayerNorm output row is exactly 0.
  P2  workgroup (j1, 16 bins): 256-point FFT over p as 16 x 16, multiply by the filter, inverse 256-point FFT.
  P3  inverse radix-8 step, inverse row FFT (c2r), residual h = x + y, LayerNorm -> ln2 in MFMA fragment order.
  G1  u = gelu(w1^T ln2 + b1): 128 x 128 tiles, waves 0-3 compute (32x32x16 MFMA), waves 4-7 stream w1 into an LDS ring.
  G2  out = h + w2^T u + b2: 128 x 128 tiles over half of K each, partner workgroups swap bf16 partial sums.
Hand-offs: write-through stores, drained, then sharded counters in d_ws (reset in this launch, published via d_debug) or,
for the partial sums, slots pre-filled in this launch with an all-ones word that real data never contains.
"""

def build():
    NAME = "sequential_preLN__spectral_gfnet__mixer_token_mlp__prompt"
    hdr = open(f"cdna_kernels/{NAME}.s.ref").read().split("; Override launch")[0]
    K = NAME + "_kernel"
    b = B()
    b(hdr.rstrip("\n"))
    b(f"; @launch grid=(256,1,1) block=(512,1,1) lds={LDS_TOTAL}")
    for l in DESC.strip("\n").split("\n"): b("; " + l if l else ";")
    b('.amdgcn_target "amdgcn-amd-amdhsa--gfx950"\n.text')
    b(f".globl {K}\n.p2align 8\n.type {K},@function\n{K}:")
    b(f"  s_cmp_ge_u32 s2, 256\n  s_cbranch_scc1 k_exit")
    if "stamp" in OPT: b("  v_mov_b32 v231, 0")
    stamp(b, "entry")
    b(f"  s_load_dwordx4 s[{P_X}:{P_X+3}], s[0:1], 0        ; x, w_r")
    b(f"  s_load_dwordx2 s[{P_WI}:{P_WI+1}], s[0:1], 16")
    b(f"  s_load_dwordx2 s[{P_W1}:{P_W1+1}], s[0:1], 32")
    b(f"  s_load_dwordx4 s[{P_B1}:{P_B1+3}], s[0:1], 40     ; b1, w2")
    b(f"  s_load_dwordx4 s[{P_B2}:{P_B2+3}], s[0:1], 56     ; b2, out")
    b(f"  s_load_dwordx4 s[{P_DBG}:{P_DBG+3}], s[0:1], 72")
    b(f"  v_lshrrev_b32 v6, 6, v0")
    b(f"  v_and_b32 v7, 63, v0        ; lane")
    b(f"  v_readfirstlane_b32 s{S_W}, v6")
    b(f"  v_and_b32 v8, 15, v7          ; c")
    b(f"  v_lshrrev_b32 v9, 4, v7       ; g")
    b(f"  s_waitcnt lgkmcnt(0)")
    srd(b, SRD_CNT, P_WS, 65536, WS_CNT)
    p1(b)
    p2_setup(b)
    wait(b, 0, 16, "x1c")
    stamp(b, "x1 released")
    if "diagsleep" in OPT: b("  s_sleep 64")
    p2_main(b)
    p3_setup(b)
    if SENT2(): b("  s_barrier")
    else: wait(b, 1, 16, "x2c")
    stamp(b, "x2 released")
    p3_main(b)
    g1(b)
    g2(b)
    b(f"  s_waitcnt vmcnt(0)")
    stamp(b, "end")
    stamp_flush(b)
    b("k_exit:\n  s_endpgm")
    b(kd(K, 240, sgpr=102))
    return b.text()

if __name__ == "__main__":
    out = sys.argv[1]
    OPT.update(sys.argv[2:])
    if "lfplain" not in OPT: LF = " sc1"
    for o in sys.argv[2:]:
        if o.startswith("ir="): IDLE_ROUNDS[0] = int(o[3:])
        if o.startswith("pfn="): PFN[:] = [int(c) for c in o[4:].split(",")]
    gemm.OPT.update(sys.argv[2:])
    t = build()
    open(out, "w").write(t)
    rep = check_text(t)
    print("\n".join(rep) if rep else "no hazards found", "| stamps:", nstamp[0])
```

```python
import sys
from asmlib import *
import gemm, fft
from gemm import (srd, f2u, WS_X1, WS_X2, WS_H, WS_LN2, WS_U, U_BYTES, S_W, R, STAGE, PR, DQ,
                  V_P, V_T, V_ACC, S_POFF, S_IT, S_DELTA, SRD_P, SRD_T, SRD_O, SRD_X, SRD_Y, S_TILE_A, S_TILE_B, S_TMP,
                  g1_cfg, g2_cfg, lane_geom)
from fft import sincos, wave_reduce, ln_finish, layernorm16, cmul_pk, gmat, MF32, MF16

OPT = set()
N7 = [0]
IDLE_ROUNDS = [7]
WPN = [0]
PFN = [0, 4, 0, 4]
WS_CNT = 30 << 20
WS_STAMP = 31 << 20
WS_WP = 32 << 20
WS_XCH = 24 << 20
W1B = 2048 * 3584 * 2
WB = 2048 * 1026

P_X, P_WR, P_WI, P_W1, P_B1, P_W2, P_B2, P_OUT, P_DBG, P_WS = 64, 66, 68, 70, 72, 74, 76, 78, 80, 82
SRD_CNT = 12
S_T = 46
SRD_A, SRD_B, SRD_C, SRD_D = 24, 28, 32, 36
SRD_PF = 56
S_STAMP = 84
SF = " sc1"
LF = ""

L1_M1, L1_M2, L1_TW, L1_EX = 0, 4096, 8192, 16384
L2_F = 32768; L2_X = L2_F + 2048; L2_W = L2_X + 16 * 1040
L3_M3 = 98304; L3_M4 = L3_M3 + 4096; L3_TW = L3_M3 + 8192; L3_EX = L3_M3 + 16384
L3_LN = L3_EX + 16384; L3_RS = 2624
LDS_TOTAL = L3_LN + 8 * L3_RS
assert LDS_TOTAL <= 163840

STAMPS = ["entry", "p1 x landed", "p1 stores issued", "p1 arrived", "x1 released", "p2 x landed", "p2 stores issued",
          "x2 released", "p3 x2 landed", "p3 stores issued", "x3 released", "g1 main done", "g1 stores issued", "x4 released",
          "g2 main done", "g2 stores issued", "end", "x1 drained", "x2 drained", "x3 drained", "x4 drained", "p1 tables done", "p1 ln done", "p1 fft done", "p3 ifft done", "p3 ln done", "c:g1 start", "c:g1 end", "c:g2 start", "c:g2 end", "g2 x landed", "p2 w landed"]
nstamp = [len(STAMPS)]
M16G1 = lambda: "m16" in OPT or "m16g1" in OPT
M16G2 = lambda: "m16" in OPT or "m16g2" in OPT
SENT = lambda: "bar" not in OPT
SENT2 = lambda: "bar" not in OPT or "sent2" in OPT
SK = lambda: "nosk" not in OPT
W1F = lambda: " nt" if "ntw1" in OPT else ""
W2F = lambda: " nt" if "ntw2" in OPT else ""
XF = lambda: " nt" if ("ntx" in OPT or "ntx1" in OPT) else ""
OF = lambda: " sc1" if "outsc1" in OPT else (" nt" if "outnt" in OPT else "")
WF = lambda: " nt" if ("ntx" in OPT or "ntw" in OPT) else ""
L_XS = 69632
def stamp(b, name):
    if "stamp" not in OPT: return
    i = STAMPS.index(name)
    op = "s_memtime" if name.startswith("c:") else "s_memrealtime"
    b(f"  {op} s[{S_STAMP}:{S_STAMP+1}]   ; stamp {i}: {name}")
    b(f"  s_waitcnt lgkmcnt(0)")
    b(f"  v_writelane_b32 v231, s{S_STAMP}, {i}")

def stamp_flush(b):
    if "stamp" not in OPT: return
    if "dbgmax" in OPT:
        SEL = [1, 23, 2, 17, 3, 4, 5, 6, 18, 7, 8, 9, 19, 10]
        srd(b, 24, P_DBG, 256)
        b(f"  v_readlane_b32 s46, v231, 0")
        b(f"  s_sub_u32 s47, 0, s46")
        b(f"  v_mov_b32 v3, 0")
        b(f"  v_writelane_b32 v3, s47, 0")
        b(f"  v_writelane_b32 v3, s46, 15")
        for i, st in enumerate(SEL):
            b(f"  v_readlane_b32 s46, v231, {st}")
            b(f"  s_nop 3")
            b(f"  v_writelane_b32 v3, s46, {i+1}")
        b(f"  v_lshlrev_b32 v2, 2, v7")
        b(f"  s_mov_b64 s[48:49], exec")
        b(f"  s_mov_b64 exec, 0xffff")
        b(f"  buffer_atomic_umax v3, v2, s[24:27], 0 offen sc1")
        b(f"  s_mov_b64 exec, s[48:49]")
        return
    if "dbgtime" in OPT:
        b(f"  s_cmp_lg_u32 s2, 100")
        b(f"  s_cbranch_scc1 dbg_skip")
        b(f"  s_cmp_lg_u32 s{S_W}, 0")
        b(f"  s_cbranch_scc1 dbg_skip")
        srd(b, 24, P_DBG, 256)
        b(f"  v_readlane_b32 s46, v231, 0")
        b(f"  s_nop 1")
        b(f"  v_subrev_u32 v3, s46, v231")
        b(f"  v_lshlrev_b32 v2, 2, v7")
        b(f"  v_subrev_u32 v2, 4, v2")
        b(f"  s_mov_b64 s[48:49], exec")
        b(f"  s_mov_b64 exec, 0x1fffe")
        b(f"  buffer_store_dword v3, v2, s[24:27], 0 offen")
        b(f"  s_mov_b64 exec, s[48:49]")
        b.label("dbg_skip")
        return
    srd(b, 24, P_WS, 1 << 20, WS_STAMP)
    b(f"  s_lshl_b32 s46, s2, 3")
    b(f"  s_add_u32 s46, s46, s{S_W}")
    b(f"  s_lshl_b32 s46, s46, 7            ; (wg*8+wave)*128")
    b(f"  v_lshlrev_b32 v2, 2, v7")
    b(f"  s_mov_b64 s[48:49], exec")
    b(f"  s_mov_b64 exec, 0xffffffff")
    b(f"  buffer_store_dword v231, v2, s[24:27], s46 offen")
    b(f"  s_mov_b64 exec, s[48:49]")

def arrive(b, bar, shard_sreg, first=False, label="", drained=False):
    if not drained: b(f"  s_waitcnt vmcnt(0)")
    stamp(b, f"x{bar+1} drained")
    b(f"  s_barrier")
    b(f"  s_cmp_lg_u32 s{S_W}, 0")
    b(f"  s_cbranch_scc1 {label}_arr_skip")
    if first:
        b(f"  s_mov_b32 s11, 100000")
        b.label(f"{label}_rdy")
        b(f"  v_cmp_ne_u32 vcc, 0, v27")
        b(f"  s_nop 1")
        b(f"  s_cmp_eq_u64 vcc, exec")
        b(f"  s_cbranch_scc1 {label}_rdy_ok")
        b(f"  buffer_load_dword v27, v26, s[{SRD_PF}:{SRD_PF+3}], 0 offen sc1")
        b(f"  s_waitcnt vmcnt(0)")
        b(f"  s_sub_u32 s11, s11, 1")
        b(f"  s_cmp_lg_u32 s11, 0")
        b(f"  s_cbranch_scc1 {label}_rdy")
        b.label(f"{label}_rdy_ok")
    b(f"  s_lshl_b32 s10, s{shard_sreg}, 8")
    b(f"  s_add_u32 s10, s10, {bar*4096}")
    b(f"  v_mov_b32 v228, s10")
    b(f"  v_mov_b32 v229, 1")
    b(f"  s_mov_b64 s[16:17], exec")
    b(f"  s_mov_b64 exec, 1")
    b(f"  buffer_atomic_add v229, v228, s[{SRD_CNT}:{SRD_CNT+3}], 0 offen sc1")
    b(f"  s_mov_b64 exec, s[16:17]")
    b.label(f"{label}_arr_skip")

def wait(b, bar, target, label, single_sreg=None):
    b(f"  s_cmp_lg_u32 s{S_W}, 0")
    b(f"  s_cbranch_scc1 {label}_w_skip")
    if single_sreg is None:
        b(f"  v_and_b32 v228, 15, v7")
        b(f"  v_lshlrev_b32 v228, 8, v228")
        b(f"  v_add_u32 v228, {bar*4096}, v228")
    else:
        b(f"  s_lshl_b32 s10, s{single_sreg}, 8")
        b(f"  s_add_u32 s10, s10, {bar*4096}")
        b(f"  v_mov_b32 v228, s10")
    b(f"  s_mov_b32 s11, 200000")
    if "pp" in OPT:
        b(f"  buffer_load_dword v229, v228, s[{SRD_CNT}:{SRD_CNT+3}], 0 offen sc1")
        b(f"  s_nop 15")
        b(f"  s_nop 15")
        b(f"  buffer_load_dword v226, v228, s[{SRD_CNT}:{SRD_CNT+3}], 0 offen sc1")
        b.label(f"{label}_poll")
        for r in (229, 226):
            b(f"  s_waitcnt vmcnt(1)")
            b(f"  v_cmp_le_u32 vcc, {target}, v{r}")
            b(f"  s_nop 1")
            b(f"  s_cmp_eq_u64 vcc, exec")
            b(f"  s_cbranch_scc1 {label}_w_skip")
            b(f"  buffer_load_dword v{r}, v228, s[{SRD_CNT}:{SRD_CNT+3}], 0 offen sc1")
        b(f"  s_sub_u32 s11, s11, 1")
        b(f"  s_cmp_lg_u32 s11, 0")
        b(f"  s_cbranch_scc1 {label}_poll")
    else:
        b.label(f"{label}_poll")
        b(f"  buffer_load_dword v229, v228, s[{SRD_CNT}:{SRD_CNT+3}], 0 offen sc1")
        b(f"  s_waitcnt vmcnt(0)")
        b(f"  v_cmp_le_u32 vcc, {target}, v229")
        b(f"  s_nop 1")
        b(f"  s_cmp_eq_u64 vcc, exec")
        b(f"  s_cbranch_scc1 {label}_w_skip")
        b(f"  s_sub_u32 s11, s11, 1")
        b(f"  s_cmp_lg_u32 s11, 0")
        b(f"  s_cbranch_scc1 {label}_poll")
    b.label(f"{label}_w_skip")
    b(f"  s_barrier")

def prefetch(b, ptr_pair, nbytes, start, length, who_scale, who_sreg, vaddr, vdst, stmp, paced=False):
    chunk = -(-length // who_scale)
    n_per_wave = -(-chunk // (512 * 128))
    stride = -(-chunk // (512 * n_per_wave))
    stride = (stride + 3) // 4 * 4
    per_instr = 64 * stride
    srd(b, SRD_PF, ptr_pair, nbytes)
    b(f"  s_mul_i32 s{stmp}, s{who_sreg}, {chunk}")
    b(f"  s_mul_i32 s{stmp+1}, s{S_W}, {n_per_wave*per_instr}")
    b(f"  s_add_u32 s{stmp}, s{stmp}, s{stmp+1}")
    if start: b(f"  s_add_u32 s{stmp}, s{stmp}, {start}")
    b(f"  v_mul_u32_u24 v{vaddr}, {stride}, v7")
    for i in range(n_per_wave):
        b(f"  buffer_load_dword v{vdst}, v{vaddr}, s[{SRD_PF}:{SRD_PF+3}], s{stmp} offen")
        if i + 1 < n_per_wave: b(f"  s_add_u32 s{stmp}, s{stmp}, {per_instr}")
        if paced: b(f"  s_waitcnt vmcnt(0)")
    return n_per_wave

V_DUMMY = 232
def pf_wide(b, ptr_pair, nbytes, s_base, n, wave_lo, wave_hi, label):
    b(f"  s_cmp_lt_u32 s{S_W}, {wave_lo}")
    b(f"  s_cbranch_scc1 {label}")
    if wave_hi < 8:
        b(f"  s_cmp_ge_u32 s{S_W}, {wave_hi}")
        b(f"  s_cbranch_scc1 {label}")
    srd(b, SRD_PF, ptr_pair, nbytes)
    b(f"  s_sub_u32 s{S_T+9}, s{S_W}, {wave_lo}")
    b(f"  s_mul_i32 s{S_T+9}, s{S_T+9}, {n*1024}")
    b(f"  s_add_u32 s{S_T+9}, s{S_T+9}, s{s_base}")
    b(f"  v_lshlrev_b32 v29, 4, v7")
    for i in range(n):
        if i and i % 4 == 0: b(f"  s_add_u32 s{S_T+9}, s{S_T+9}, 4096")
        b(f"  buffer_load_dwordx4 {vr(V_DUMMY,4)}, v29, s[{SRD_PF}:{SRD_PF+3}], s{S_T+9} offen offset:{(i%4)*1024}")
    b.label(label)

def w1_share_base(b, sreg, part):
    b(f"  s_mul_i32 s{sreg}, s2, {W1B // 256}")
    if part: b(f"  s_add_u32 s{sreg}, s{sreg}, {part}")

def w1_first_half_base(b, sreg, part):
    b(f"  s_and_b32 s{sreg}, s2, 7")
    b(f"  s_mul_i32 s{sreg}, s{sreg}, {256*7168}")
    b(f"  s_lshr_b32 s{S_T+9}, s2, 3")
    b(f"  s_mul_i32 s{S_T+9}, s{S_T+9}, {4*7168}")
    b(f"  s_add_u32 s{sreg}, s{sreg}, s{S_T+9}")
    if part: b(f"  s_add_u32 s{sreg}, s{sreg}, {part}")

def p1_tables(b):
    M1, M2, TW = L1_M1, L1_M2, L1_TW
    b(f"  v_and_b32 v10, 255, v0            ; e")
    b(f"  v_lshrrev_b32 v11, 8, v0          ; u")
    b(f"  v_bfe_u32 v12, v10, 2, 4          ; lane&15")
    b(f"  v_lshl_add_u32 v12, v11, 4, v12   ; k1")
    b(f"  v_lshrrev_b32 v13, 6, v10         ; g")
    b(f"  v_and_b32 v14, 3, v10")
    b(f"  v_lshlrev_b32 v13, 3, v13")
    b(f"  v_lshl_add_u32 v13, v14, 1, v13   ; a0 = 8g + 2i")
    b(f"  v_mul_u32_u24 v15, v13, v12       ; a0*k1")
    b(f"  v_add_u32 v16, v15, v12           ; (a0+1)*k1")
    sincos(b, 17, 18, 15, 5, 21)
    sincos(b, 19, 20, 16, 5, 21)
    b(f"  v_lshlrev_b32 v22, 2, v10")
    b(f"  v_lshl_add_u32 v22, v11, 11, v22  ; u*2048 + e*4")
    b(f"  v_cvt_pk_bf16_f32 v23, v17, v19")
    b(f"  v_cvt_pk_bf16_f32 v24, -v18, -v20")
    b(f"  ds_write_b32 v22, v23 offset:{M1}")
    b(f"  ds_write_b32 v22, v24 offset:{M1+1024}")
    sincos(b, 17, 18, 15, 10, 21)
    sincos(b, 19, 20, 16, 10, 21)
    b(f"  ds_write_b32 v22, v17 offset:{TW}")
    b(f"  ds_write_b32 v22, v18 offset:{TW+1024}")
    b(f"  ds_write_b32 v22, v19 offset:{TW+4096}")
    b(f"  ds_write_b32 v22, v20 offset:{TW+4096+1024}")
    b(f"  v_bfe_u32 v12, v10, 2, 4          ; k2")
    b(f"  v_mul_u32_u24 v15, v13, v12")
    b(f"  v_add_u32 v16, v15, v12")
    sincos(b, 17, 18, 15, 5, 21)
    sincos(b, 19, 20, 16, 5, 21)
    b(f"  v_lshlrev_b32 v22, 2, v10")
    b(f"  v_cvt_pk_bf16_f32 v23, v17, v19")
    b(f"  v_cvt_pk_bf16_f32 v24, v18, v20")
    b(f"  v_cvt_pk_bf16_f32 v25, -v18, -v20")
    b(f"  ds_write_b32 v22, v23 offset:{M2}")
    b(f"  ds_write_b32 v22, v24 offset:{M2+1024}")
    b(f"  ds_write_b32 v22, v25 offset:{M2+2048}")

def ln_fast(b, X, T, S0, alt):
    b(f"  v_readlane_b32 s{S0}, v{X}, 0              ; pivot")
    b(f"  s_nop 1")
    for i in range(0, 16, 2):
        b(f"  v_pk_add_f32 {vr(X+i,2)}, {vr(X+i,2)}, s[{S0}:{S0+1}] op_sel_hi:[1,0] neg_lo:[0,1] neg_hi:[0,1]")
    b(f"  v_pk_add_f32 {vr(T,2)}, {vr(X,2)}, {vr(X+2,2)}")
    b(f"  v_pk_add_f32 {vr(T+2,2)}, {vr(X+8,2)}, {vr(X+10,2)}")
    b(f"  v_pk_mul_f32 {vr(T+4,2)}, {vr(X,2)}, {vr(X,2)}")
    b(f"  v_pk_add_f32 {vr(T,2)}, {vr(T,2)}, {vr(X+4,2)}")
    b(f"  v_pk_add_f32 {vr(T+2,2)}, {vr(T+2,2)}, {vr(X+12,2)}")
    b(f"  v_pk_fma_f32 {vr(T+4,2)}, {vr(X+2,2)}, {vr(X+2,2)}, {vr(T+4,2)}")
    b(f"  v_pk_add_f32 {vr(T,2)}, {vr(T,2)}, {vr(X+6,2)}")
    b(f"  v_pk_add_f32 {vr(T+2,2)}, {vr(T+2,2)}, {vr(X+14,2)}")
    for i in range(4, 16, 2):
        b(f"  v_pk_fma_f32 {vr(T+4,2)}, {vr(X+i,2)}, {vr(X+i,2)}, {vr(T+4,2)}")
    b(f"  v_add_f32 v{T}, v{T}, v{T+1}")
    b(f"  v_add_f32 v{T+2}, v{T+2}, v{T+3}")
    if not alt: b(f"  v_add_f32 v{T}, v{T}, v{T+2}")
    b(f"  v_add_f32 v{T+4}, v{T+4}, v{T+5}           ; squares")
    if alt:
        wave_reduce(b, [T, T+2, T+4])
        b(f"  v_sub_f32 v{T+1}, v{T}, v{T+2}             ; E - O")
        b(f"  v_add_f32 v{T}, v{T}, v{T+2}")
        b(f"  s_nop 0")
        b(f"  v_readlane_b32 s{S0+2}, v{T}, 63")
        b(f"  v_readlane_b32 s{S0+3}, v{T+4}, 63")
        b(f"  v_readlane_b32 s{S0+4}, v{T+1}, 63")
    else:
        wave_reduce(b, [T, T+4])
        b(f"  s_nop 0")
        b(f"  v_readlane_b32 s{S0+2}, v{T}, 63")
        b(f"  v_readlane_b32 s{S0+3}, v{T+4}, 63")
    b(f"  s_nop 0")
    b(f"  v_mov_b32 v{T}, {hex(f2u(1.0/1024))}")
    b(f"  v_mul_f32 v{T+1}, s{S0+2}, v{T}            ; mean of the shifted values")
    b(f"  v_mul_f32 v{T+2}, s{S0+3}, v{T}            ; mean of their squares")
    b(f"  v_fma_f32 v{T+2}, -v{T+1}, v{T+1}, v{T+2}  ; variance")
    b(f"  v_max_f32 v{T+2}, 0, v{T+2}")
    b(f"  v_add_f32 v{T+2}, {hex(f2u(1e-5))}, v{T+2}")
    b(f"  v_rsq_f32 v{T+4}, v{T+2}")
    b(f"  s_nop 0")
    b(f"  v_mul_f32 v{T+8}, -v{T+1}, v{T+4}          ; -mean*rstd")
    if alt: b(f"  v_mul_f32 v{T+6}, s{S0+4}, v{T+4}")
    for i in range(0, 16, 2):
        b(f"  v_pk_fma_f32 {vr(X+i,2)}, {vr(X+i,2)}, {vr(T+4,2)}, {vr(T+8,2)} op_sel_hi:[1,0,0]")

def x1_store_addr(b):
    b(f"  v_lshlrev_b32 v5, 15, v9")
    b(f"  v_lshl_add_u32 v5, v8, 2, v5")
    b(f"  s_and_b32 s{S_T+6}, s2, 15")
    b(f"  s_lshl_b32 s{S_T+6}, s{S_T+6}, 4")
    b(f"  s_lshr_b32 s{S_T+7}, s2, 4")
    b(f"  s_add_u32 s{S_T+6}, s{S_T+6}, s{S_T+7}")
    b(f"  s_lshl_b32 s{S_T+6}, s{S_T+6}, 6       ; pos*64")
    b(f"  s_lshl_b32 s{S_T+7}, s{S_W}, 19        ; 4w*131072")
    b(f"  s_add_u32 s44, s{S_T+6}, s{S_T+7}")

def w_early(b):
    srd(b, SRD_C, P_WR, WB)
    srd(b, SRD_D, P_WI, WB)
    b(f"  s_and_b32 s{S_T+2}, s2, 7              ; j1")
    b(f"  v_and_b32 v215, 1, v0                ; half")
    b(f"  v_bfe_u32 v11, v0, 5, 4              ; c")
    b(f"  v_bfe_u32 v12, v0, 1, 4              ; e")
    b(f"  v_lshl_add_u32 v13, v12, 4, v11      ; j2")
    b(f"  v_lshlrev_b32 v13, 3, v13")
    b(f"  v_add_u32 v13, s{S_T+2}, v13         ; j")
    b(f"  v_mul_u32_u24 v214, 1026, v13")
    b(f"  v_lshl_add_u32 v14, v215, 4, v214")
    b(f"  s_lshr_b32 s{S_T+3}, s2, 3           ; kb")
    b(f"  s_lshl_b32 s{S_T+3}, s{S_T+3}, 5")
    b(f"  buffer_load_dwordx4 {vr(WE,4)}, v14, s[{SRD_C}:{SRD_C+3}], s{S_T+3} offen{WF()}")
    b(f"  buffer_load_dwordx4 {vr(WE+4,4)}, v14, s[{SRD_D}:{SRD_D+3}], s{S_T+3} offen{WF()}")

def p1(b):
    srd(b, SRD_A, P_X, 4 << 20)
    srd(b, SRD_B, P_WS, 4 << 20, WS_X1)
    b(f"  s_lshl_b32 s{S_T}, s{S_W}, 8")
    b(f"  s_add_u32 s{S_T}, s{S_T}, s2          ; s")
    b(f"  s_lshl_b32 s{S_T+1}, s{S_T}, 11")
    b(f"  v_lshlrev_b32 v1, 9, v9")
    b(f"  v_lshl_add_u32 v1, v8, 2, v1")
    XD = 32
    b(f"  s_cmp_ge_u32 s2, 16")
    b(f"  s_cbranch_scc1 p1_noreset")
    b(f"  s_cmp_lg_u32 s{S_W}, 0")
    b(f"  s_cbranch_scc1 p1_noreset")
    b(f"  s_lshl_b32 s{S_T+2}, s2, 8")
    b(f"  v_lshlrev_b32 v2, 12, v7")
    b(f"  v_add_u32 v2, s{S_T+2}, v2")
    b(f"  v_mov_b32 v3, 0")
    b(f"  s_mov_b64 s[48:49], exec")
    b(f"  s_mov_b64 exec, 15")
    b(f"  buffer_store_dword v3, v2, s[{SRD_CNT}:{SRD_CNT+3}], 0 offen sc1")
    b(f"  s_mov_b64 exec, s[48:49]")
    b.label("p1_noreset")
    for i in range(8):
        b(f"  buffer_load_dword v{XD+i}, v1, s[{SRD_A}:{SRD_A+3}], s{S_T+1} offen offset:{64*i}{XF()}")
    NCLR = 0
    NWE = 0
    x1_store_addr(b)
    if SENT():
        b(f"  v_mov_b32 v60, -1")
        b(f"  v_mov_b32 v61, -1")
        b(f"  v_mov_b32 v62, -1")
        b(f"  v_mov_b32 v63, -1")
        b(f"  v_bfe_u32 v2, v7, 2, 3              ; j1")
        b(f"  v_lshrrev_b32 v3, 5, v7             ; i (0,1)")
        b(f"  v_lshlrev_b32 v2, 14, v2")
        b(f"  v_lshl_add_u32 v2, v3, 17, v2")
        b(f"  v_and_b32 v3, 3, v7")
        b(f"  v_lshl_add_u32 v2, v3, 4, v2")
        b(f"  buffer_store_dwordx4 v[60:63], v2, s[{SRD_B}:{SRD_B+3}], s44 offen{SF}")
        b(f"  s_add_u32 s{S_T+7}, s44, {2*131072}")
        b(f"  buffer_store_dwordx4 v[60:63], v2, s[{SRD_B}:{SRD_B+3}], s{S_T+7} offen{SF}")
        NCLR = 2
    if "tlbw" in OPT:
        b(f"  s_cmp_lg_u32 s{S_W}, 7")
        b(f"  s_cbranch_scc1 p1_notlb")
        sh = 20 if "tlb1m" in OPT else (19 if "tlb512k" in OPT else 21)
        b(f"  v_lshlrev_b32 v2, {sh}, v7")
        lst = [(P_WS, 36 << 20), (P_W1, W1B), (P_W2, W1B), (P_WR, WB), (P_WI, WB), (P_OUT, 4 << 20), (P_B1, 7168), (P_B2, 4096)]
        for ptr, size in lst:
            srd(b, SRD_PF, ptr, size)
            b(f"  s_mov_b64 s[16:17], exec")
            n = min(64, -(-size // (1 << sh)))
            b(f"  s_mov_b64 exec, {hex((1 << n) - 1)}")
            b(f"  buffer_load_dword v230, v2, s[{SRD_PF}:{SRD_PF+3}], 0 offen sc1")
            b(f"  s_mov_b64 exec, s[16:17]")
        if "codepf" in OPT:
            b(f"  s_cmp_ge_u32 s2, 16")
            b(f"  s_cbranch_scc1 p1_nocode")
            b(f"  s_getpc_b64 s[{S_T+8}:{S_T+9}]")
            b.label("p1_pc")
            b(f"  v_lshlrev_b32 v29, 7, v7")
            b(f"  s_mov_b32 s{S_T+7}, k_exit - p1_pc")
            for i in range(5):
                b(f"  v_min_u32 v28, s{S_T+7}, v29")
                b(f"  global_load_dword v230, v28, s[{S_T+8}:{S_T+9}]")
                b(f"  v_add_u32 v29, 8192, v29")
            b.label("p1_nocode")
        if "pf7" in OPT:
            n7 = 0
            if "wpf" in OPT:
                b(f"  s_mul_i32 s{S_T+8}, s2, 8208")
                b(f"  v_lshlrev_b32 v29, 4, v7")
                for ptr in (P_WR, P_WI):
                    srd(b, SRD_PF, ptr, WB)
                    b(f"  s_mov_b32 s{S_T+9}, s{S_T+8}")
                    for i in range(9):
                        if i and i % 4 == 0: b(f"  s_add_u32 s{S_T+9}, s{S_T+9}, 4096")
                        b(f"  buffer_load_dwordx4 {vr(V_DUMMY,4)}, v29, s[{SRD_PF}:{SRD_PF+3}], s{S_T+9} offen offset:{(i%4)*1024}")
                        n7 += 1
            if PFN[0]:
                w1_share_base(b, S_T + 9, 0)
                b(f"  v_lshlrev_b32 v29, 4, v7")
                srd(b, SRD_PF, P_W1, W1B)
                for i in range(4 * PFN[0]):
                    if i and i % 4 == 0: b(f"  s_add_u32 s{S_T+9}, s{S_T+9}, 4096")
                    b(f"  buffer_load_dwordx4 {vr(V_DUMMY,4)}, v29, s[{SRD_PF}:{SRD_PF+3}], s{S_T+9} offen offset:{(i%4)*1024}")
                    n7 += 1
            N7[0] = n7
        b.label("p1_notlb")
    if "wpack" in OPT:
        srd(b, SRD_C, P_WR, WB)
        srd(b, SRD_D, P_WI, WB)
        b(f"  s_lshl_b32 s{S_T+2}, s2, 3")
        b(f"  s_add_u32 s{S_T+2}, s{S_T+2}, s{S_W}")
        b(f"  s_mul_i32 s45, s{S_T+2}, 1026")
        b(f"  v_lshlrev_b32 v14, 4, v7")
        b(f"  buffer_load_dwordx4 {vr(WE,4)}, v14, s[{SRD_C}:{SRD_C+3}], s45 offen")
        b(f"  buffer_load_dwordx4 {vr(WE+4,4)}, v14, s[{SRD_D}:{SRD_D+3}], s45 offen")
        b(f"  v_mov_b32 v15, 1024")
        b(f"  buffer_load_ushort v212, v15, s[{SRD_C}:{SRD_C+3}], s45 offen")
        b(f"  buffer_load_ushort v213, v15, s[{SRD_D}:{SRD_D+3}], s45 offen")
        NCLR += 4
    if "wearly" in OPT:
        w_early(b); NCLR += 2
    npf = 0
    if "burn" in OPT:
        for i in range(4): b(f"  v_mov_b32 v{180+i}, 0x3f9d3f8a")
        for i in range(4): b(f"  v_mov_b32 v{184+i}, 0x3e5abf31")
        b(f"  s_nop 1")
        for i in range(24): b(f"  v_mfma_f32_32x32x16_bf16 v[{(i%2)*16+144}:{(i%2)*16+159}], v[180:183], v[184:187], v[{(i%2)*16+144}:{(i%2)*16+159}]")
    p1_tables(b)
    GM = 30
    gmat(b, GM, 2, False, 10)
    srd(b, SRD_PF, P_DBG, 256)
    b(f"  s_and_b32 s{S_T+8}, s2, 15")
    b(f"  s_lshl_b32 s{S_T+9}, s{S_T+8}, 2")
    b(f"  s_add_u32 s{S_T+9}, s{S_T+9}, 64")
    b(f"  v_mov_b32 v25, s{S_T+9}")
    b(f"  v_lshlrev_b32 v26, 2, v8")
    b(f"  v_add_u32 v26, 64, v26")
    b(f"  s_cmp_ge_u32 s2, 16")
    b(f"  s_cbranch_scc1 p1_noflag")
    b(f"  s_cmp_lg_u32 s{S_W}, 0")
    b(f"  s_cbranch_scc1 p1_noflag")
    b(f"  s_waitcnt vmcnt({8} + 0)".replace(" + 0", "") if NCLR == 0 else f"  s_waitcnt vmcnt({8 + NCLR})")
    b(f"  v_mov_b32 v3, 1")
    b(f"  s_mov_b64 s[48:49], exec")
    b(f"  s_mov_b64 exec, 1")
    b(f"  buffer_store_dword v3, v25, s[{SRD_PF}:{SRD_PF+3}], 0 offen sc1")
    b(f"  s_mov_b64 exec, s[48:49]")
    b.label("p1_noflag")
    b(f"  s_waitcnt lgkmcnt(0)")
    stamp(b, "p1 tables done")
    b(f"  s_barrier")
    NX2 = 0
    if "sent2" in OPT:
        srd(b, SRD_C, P_WS, 4 << 20, WS_X2)
        for i in range(4): b(f"  v_mov_b32 v{200+i}, -1")
        b(f"  v_lshlrev_b32 v3, 4, v0")
        b(f"  s_lshl_b32 s{S_T+7}, s2, 14")
        b(f"  buffer_store_dwordx4 v[200:203], v3, s[{SRD_C}:{SRD_C+3}], s{S_T+7} offen{SF}")
        b(f"  s_add_u32 s{S_T+7}, s{S_T+7}, 8192")
        b(f"  buffer_store_dwordx4 v[200:203], v3, s[{SRD_C}:{SRD_C+3}], s{S_T+7} offen{SF}")
        NX2 = 2
    npf = 0
    if "nopf" not in OPT:
        b(f"  s_mul_i32 s{S_T+8}, s2, 8208")
        if "ntx" not in OPT and "wpf" in OPT and "pf7" not in OPT:
            pf_wide(b, P_WR, WB, S_T + 8, 3, 0, 3, "pf_p1a")
            pf_wide(b, P_WI, WB, S_T + 8, 3, 0, 3, "pf_p1b")
        if "ntw1" not in OPT and PFN[0] and "pf7" not in OPT:
            w1_share_base(b, S_T + 8, 0)
            pf_wide(b, P_W1, W1B, S_T + 8, PFN[0], 4, 8, "pf_p1c")
    M1, M2, TW = 96, 112, 128
    b(f"  v_lshlrev_b32 v2, 4, v7")
    for i in range(4): b(f"  ds_read_b128 {vr(M1+4*i,4)}, v2 offset:{L1_M1+1024*i}")
    for i in range(3): b(f"  ds_read_b128 {vr(M2+4*i,4)}, v2 offset:{L1_M2+1024*i}")
    for i in range(8): b(f"  ds_read_b128 {vr(TW+4*i,4)}, v2 offset:{L1_TW+1024*i}")
    X = 40
    NCLR += NX2
    nW = 0 if ("nopf" in OPT or "ntx" in OPT or "wpf" not in OPT or "pf7" in OPT) else 6
    n1 = 0 if ("nopf" in OPT or "ntw1" in OPT or "pf7" in OPT) else PFN[0]
    b(f"  s_cmp_eq_u32 s{S_W}, 3")
    b(f"  s_cbranch_scc1 p1_xw0")
    b(f"  s_cmp_ge_u32 s{S_W}, 4")
    b(f"  s_cbranch_scc1 p1_xw4")
    b(f"  s_waitcnt vmcnt({NCLR + nW})")
    b(f"  s_branch p1_xwd")
    b.label("p1_xw4")
    if "tlbw" in OPT:
        b(f"  s_cmp_lg_u32 s{S_W}, 7")
        b(f"  s_cbranch_scc1 p1_xw5")
        b(f"  s_waitcnt vmcnt({min(63, NCLR + n1 + 8 + N7[0])})")
        b(f"  s_branch p1_xwd")
        b.label("p1_xw5")
    b(f"  s_waitcnt vmcnt({NCLR + n1})")
    b(f"  s_branch p1_xwd")
    b.label("p1_xw0")
    b(f"  s_waitcnt vmcnt({NCLR})")
    b.label("p1_xwd")
    stamp(b, "p1 x landed")
    if "wmid" in OPT:
        w_early(b)
        b(f"  s_cmp_ge_u32 s2, 8")
        b(f"  s_cbranch_scc1 p1_nonyq")
        b(f"  buffer_load_ushort v212, v214, s[{SRD_C}:{SRD_C+3}], 0 offen offset:1024")
        b(f"  buffer_load_ushort v213, v214, s[{SRD_D}:{SRD_D+3}], 0 offen offset:1024")
        b.label("p1_nonyq")
    if "wearly" in OPT:
        b(f"  s_cmp_ge_u32 s2, 8")
        b(f"  s_cbranch_scc1 p1_nonyq")
        b(f"  buffer_load_ushort v212, v214, s[{SRD_C}:{SRD_C+3}], 0 offen offset:1024")
        b(f"  buffer_load_ushort v213, v214, s[{SRD_D}:{SRD_D+3}], 0 offen offset:1024")
        b.label("p1_nonyq")
    srd(b, SRD_PF, P_DBG, 256)
    if "stash" in OPT:
        b(f"  s_lshl_b32 s{S_T+9}, s{S_W}, 11")
        b(f"  s_add_u32 s{S_T+9}, s{S_T+9}, {L_XS}")
        b(f"  v_add_u32 v4, s{S_T+9}, v1           ; t*2048 + g*512 + c*4")
        for i in range(8): b(f"  ds_write_b32 v4, v{XD+i} offset:{64*i}")
    for i in range(8):
        b(f"  v_lshlrev_b32 v{X+i}, 16, v{XD+i}")
        b(f"  v_and_b32 v{X+8+i}, 0xffff0000, v{XD+i}")
    T = 56
    ln_fast(b, X, T, S_T + 2, True)
    stamp(b, "p1 ln done")
    if SENT():
        b(f"  buffer_load_dword v27, v26, s[{SRD_PF}:{SRD_PF+3}], 0 offen sc1")
        b(f"  s_and_b32 s{S_T+8}, s2, 15")
        arrive(b, 0, S_T + 8, first=True, label="x1")
        stamp(b, "p1 arrived")
        srd(b, SRD_C, P_WS, 4 << 20, WS_X2)
        for i in range(4): b(f"  v_mov_b32 v{200+i}, -1")
        b(f"  v_lshlrev_b32 v2, 4, v0")
        b(f"  s_lshl_b32 s{S_T+7}, s2, 14")
        b(f"  buffer_store_dwordx4 v[200:203], v2, s[{SRD_C}:{SRD_C+3}], s{S_T+7} offen{SF}")
        b(f"  s_add_u32 s{S_T+7}, s{S_T+7}, 8192")
        b(f"  buffer_store_dwordx4 v[200:203], v2, s[{SRD_C}:{SRD_C+3}], s{S_T+7} offen{SF}")
    A = 64
    for be in range(2):
        for i in range(4):
            b(f"  v_cvt_pk_bf16_f32 v{A+4*be+i}, v{X+8*be+2*i}, v{X+8*be+2*i+1}")
    b(f"  s_waitcnt lgkmcnt(0)")
    b(f"  v_readlane_b32 s{S_T+5}, v{T+6}, 0")
    Y = 160
    for be in range(2):
        for u in range(2):
            for c in range(2):
                d = Y + ((be * 2 + u) * 2 + c) * 4
                b(f"  {MF32} {vr(d,4)}, {vr(A+4*be,4)}, {vr(M1+4*(2*u+c),4)}, 0")
    b(f"  s_nop 4")
    Bp = 72; W = 32; O = 40
    for u in range(2):
        for be in range(2):
            y = Y + ((be * 2 + u) * 2) * 4
            tw = TW + (be * 4 + u * 2) * 4
            cmul_pk(b, O + 8 * be, O + 8 * be + 4, y, y + 4, tw, tw + 4, W, False)
        for r in range(4):
            b(f"  v_cvt_pk_bf16_f32 v{Bp+8*u+r}, v{O+r}, v{O+8+r}")
            b(f"  v_cvt_pk_bf16_f32 v{Bp+8*u+4+r}, v{O+4+r}, v{O+12+r}")
    XO = 160
    b(f"  s_nop 1")
    for u in range(2):
        re, im = XO + 8 * u, XO + 8 * u + 4
        b(f"  {MF32} {vr(re,4)}, {vr(M2,4)}, {vr(Bp+8*u,4)}, 0")
        b(f"  {MF32} {vr(im,4)}, {vr(M2,4)}, {vr(Bp+8*u+4,4)}, 0")
        b(f"  {MF32} {vr(re,4)}, {vr(M2+4,4)}, {vr(Bp+8*u+4,4)}, {vr(re,4)}")
        b(f"  {MF32} {vr(im,4)}, {vr(M2+8,4)}, {vr(Bp+8*u,4)}, {vr(im,4)}")
    b(f"  s_and_b32 s{S_T+6}, s{S_W}, 1")
    b(f"  s_lshl_b32 s{S_T+6}, s{S_T+6}, 8")
    b(f"  s_lshr_b32 s{S_T+7}, s{S_W}, 1")
    b(f"  s_lshl_b32 s{S_T+7}, s{S_T+7}, 6")
    b(f"  s_add_u32 s{S_T+6}, s{S_T+6}, s{S_T+7}")
    b(f"  v_lshlrev_b32 v3, 12, v9")
    b(f"  v_lshl_add_u32 v3, v8, 2, v3")
    b(f"  v_add_u32 v3, s{S_T+6}, v3")
    b(f"  s_nop 2")
    b(f"  v_writelane_b32 v{XO}, s{S_T+5}, 0")
    b(f"  v_writelane_b32 v{XO+4}, 0, 0")
    PK = 32
    for u in range(2):
        for r in range(4):
            b(f"  v_cvt_pk_bf16_f32 v{PK+4*u+r}, v{XO+8*u+r}, v{XO+8*u+4+r}")
    for u in range(2):
        for r in range(4):
            b(f"  ds_write_b32 v3, v{PK+4*u+r} offset:{L1_EX + u*512 + r*1024}")
    if "wpack" in OPT:
        assert not SENT()
        srd(b, SRD_C, P_WS, 4 << 20, WS_WP)
        b(f"  v_lshrrev_b32 v14, 1, v7              ; kb")
        b(f"  v_lshlrev_b32 v14, 17, v14")
        b(f"  v_and_b32 v15, 1, v7")
        b(f"  v_lshl_add_u32 v14, v15, 4, v14")
        b(f"  s_and_b32 s{S_T+6}, s2, 15")
        b(f"  s_lshl_b32 s{S_T+6}, s{S_T+6}, 9       ; (p&15)<<5 * 16")
        b(f"  s_lshr_b32 s{S_T+7}, s2, 4")
        b(f"  s_lshl_b32 s{S_T+7}, s{S_T+7}, 5       ; (p>>4)<<1 * 16")
        b(f"  s_add_u32 s{S_T+6}, s{S_T+6}, s{S_T+7}")
        b(f"  s_lshl_b32 s{S_T+7}, s{S_W}, 14")
        b(f"  s_add_u32 s{S_T+6}, s{S_T+6}, s{S_T+7}")
        b(f"  s_add_u32 s{S_T+7}, s{S_T+6}, 8192")
        npf0 = 0 if ("nopf" in OPT or "pf7" in OPT) else PFN[0]
        b(f"  s_cmp_ge_u32 s{S_W}, 4")
        b(f"  s_cbranch_scc1 p1_wp4")
        b(f"  s_waitcnt vmcnt(0)")
        b(f"  s_branch p1_wpd")
        b.label("p1_wp4")
        b(f"  s_waitcnt vmcnt({npf0})")
        b.label("p1_wpd")
        b(f"  v_cmp_eq_u32 vcc, 0, v7")
        b(f"  v_and_b32 v15, 0xffff0000, v{WE}")
        b(f"  v_or_b32 v15, v15, v212")
        b(f"  v_cndmask_b32 v{WE}, v{WE}, v15, vcc")
        b(f"  v_and_b32 v15, 0xffff0000, v{WE+4}")
        b(f"  v_or_b32 v15, v15, v213")
        b(f"  v_cndmask_b32 v{WE+4}, v{WE+4}, v15, vcc")
        b(f"  buffer_store_dwordx4 {vr(WE,4)}, v14, s[{SRD_C}:{SRD_C+3}], s{S_T+6} offen{SF}")
        b(f"  buffer_store_dwordx4 {vr(WE+4,4)}, v14, s[{SRD_C}:{SRD_C+3}], s{S_T+7} offen{SF}")
    if SENT(): b(f"  s_waitcnt lgkmcnt(0) vmcnt(0)")
    else:
        b(f"  buffer_load_dword v27, v26, s[{SRD_PF}:{SRD_PF+3}], 0 offen sc1")
        b(f"  s_waitcnt lgkmcnt(0)")
    stamp(b, "p1 fft done")
    b(f"  s_barrier")
    b(f"  v_lshlrev_b32 v4, 6, v9")
    b(f"  v_lshl_add_u32 v4, v8, 2, v4")
    b(f"  s_lshl_b32 s{S_T+6}, s{S_W}, 11")
    b(f"  s_add_u32 s{S_T+6}, s{S_T+6}, {L1_EX}")
    b(f"  v_add_u32 v4, s{S_T+6}, v4")
    Bd = 40
    for i in range(4):
        b(f"  ds_read2st64_b32 {vr(Bd+2*i,2)}, v4 offset0:{2*i} offset1:{2*i+1}")
    D = 48
    for i in range(4):
        b(f"  s_waitcnt lgkmcnt({3-i})")
        b(f"  {MF16} {vr(D+4*i,4)}, {vr(GM,2)}, {vr(Bd+2*i,2)}, 0")
    b(f"  s_nop 4")
    for i in range(4):
        b(f"  v_cvt_pk_bf16_f32 v{64+2*i}, v{D+4*i}, v{D+4*i+1}")
        b(f"  v_cvt_pk_bf16_f32 v{65+2*i}, v{D+4*i+2}, v{D+4*i+3}")
        if SENT():
            b(f"  v_min_u32 v{64+2*i}, 0xfffffffe, v{64+2*i}")
            b(f"  v_min_u32 v{65+2*i}, 0xfffffffe, v{65+2*i}")
        for e in range(2):
            b(f"  s_add_u32 s{S_T+7}, s44, {i*131072 + e*16384}")
            b(f"  buffer_store_dword v{64+2*i+e}, v5, s[{SRD_B}:{SRD_B+3}], s{S_T+7} offen{SF}")
    stamp(b, "p1 stores issued")
    if not SENT():
        b(f"  s_and_b32 s{S_T+8}, s2, 15")
        arrive(b, 0, S_T + 8, first=True, label="x1")
        stamp(b, "p1 arrived")

XL2, WL2 = 32, 40
WE = 204
TC2, TS2 = 64, 68
def p2_setup(b):
    srd(b, SRD_A, P_WS, 4 << 20, WS_X1)
    srd(b, SRD_B, P_WS, 4 << 20, WS_X2)
    srd(b, SRD_C, P_WR, WB)
    srd(b, SRD_D, P_WI, WB)
    b(f"  s_and_b32 s{S_T}, s2, 7              ; j1")
    b(f"  s_lshr_b32 s{S_T+1}, s2, 3           ; kb")
    b(f"  v_and_b32 v10, 1, v0                 ; half")
    b(f"  v_bfe_u32 v11, v0, 5, 4              ; c")
    b(f"  v_bfe_u32 v12, v0, 1, 4              ; e")
    b(f"  v_lshl_add_u32 v13, v12, 4, v11      ; j2")
    b(f"  v_lshlrev_b32 v13, 3, v13")
    b(f"  v_add_u32 v13, s{S_T}, v13           ; j")
    b(f"  v_mul_u32_u24 v13, 1026, v13")
    b(f"  v_lshlrev_b32 v14, 4, v10")
    b(f"  v_add_u32 v14, v13, v14")
    b(f"  s_lshl_b32 s{S_T+3}, s{S_T+1}, 5")
    if "wearly" in OPT or "wmid" in OPT:
        b(f"  s_cmp_lg_u32 s{S_T+1}, 0")
        b(f"  s_cbranch_scc1 p2_nonyq")
        b(f"  s_waitcnt vmcnt(0)")
        b(f"  v_cmp_eq_u32 vcc, 0, v215")
        b(f"  v_and_b32 v50, 0xffff0000, v{WE}")
        b(f"  v_or_b32 v50, v50, v212")
        b(f"  v_cndmask_b32 v{WE}, v{WE}, v50, vcc")
        b(f"  v_and_b32 v50, 0xffff0000, v{WE+4}")
        b(f"  v_or_b32 v50, v50, v213")
        b(f"  v_cndmask_b32 v{WE+4}, v{WE+4}, v50, vcc")
        b.label("p2_nonyq")
    elif "wpack" in OPT:
        srd(b, SRD_C, P_WS, 4 << 20, WS_WP)
    elif "wlate" in OPT:
        b(f"  v_mov_b32 v24, v14")
        b(f"  v_mov_b32 v25, v13")
        b(f"  v_mov_b32 v26, v10                   ; half")
        b(f"  s_mov_b32 s45, s{S_T+3}              ; kb*32")
    else:
        WL = WL2
        b(f"  v_mov_b32 v24, v14")
        b(f"  v_mov_b32 v25, v13")
        b(f"  v_mov_b32 v26, v10                   ; half")
        b(f"  s_mov_b32 s45, s{S_T+3}              ; kb*32")
        WL = WL2
        b(f"  buffer_load_dwordx4 {vr(WL,4)}, v24, s[{SRD_C}:{SRD_C+3}], s45 offen{WF()}")
        b(f"  buffer_load_dwordx4 {vr(WL+4,4)}, v24, s[{SRD_D}:{SRD_D+3}], s45 offen{WF()}")
        b(f"  s_cmp_lg_u32 s{S_T+1}, 0")
        b(f"  s_cbranch_scc1 p2_nonyq")
        b(f"  buffer_load_ushort v48, v25, s[{SRD_C}:{SRD_C+3}], 0 offen offset:1024")
        b(f"  buffer_load_ushort v49, v25, s[{SRD_D}:{SRD_D+3}], 0 offen offset:1024")
        b(f"  s_waitcnt vmcnt(0)")
        b(f"  v_cmp_eq_u32 vcc, 0, v26")
        b(f"  v_and_b32 v50, 0xffff0000, v{WL}")
        b(f"  v_or_b32 v50, v50, v48")
        b(f"  v_cndmask_b32 v{WL}, v{WL}, v50, vcc")
        b(f"  v_and_b32 v50, 0xffff0000, v{WL+4}")
        b(f"  v_or_b32 v50, v50, v49")
        b(f"  v_cndmask_b32 v{WL+4}, v{WL+4}, v50, vcc")
        b.label("p2_nonyq")
        if "wdiag" in OPT:
            b(f"  s_waitcnt vmcnt(0)")
            stamp(b, "p2 w landed")
    if "es" in OPT:
        b(f"  s_cmp_ge_u32 s{S_W}, 2")
        b(f"  s_cbranch_scc1 p2_noclr")
        srd(b, SRD_PF, P_WS, 4 << 20, WS_LN2)
        for i in range(4): b(f"  v_mov_b32 v{200+i}, -1")
        b(f"  s_lshr_b32 s{S_T+8}, s2, 3")
        b(f"  s_lshl_b32 s{S_T+8}, s{S_T+8}, 17")
        b(f"  s_and_b32 s{S_T+9}, s2, 7")
        b(f"  s_lshl_b32 s{S_T+9}, s{S_T+9}, 11")
        b(f"  s_add_u32 s{S_T+8}, s{S_T+8}, s{S_T+9}")
        b(f"  v_lshlrev_b32 v2, 4, v0")
        b(f"  buffer_store_dwordx4 v[200:203], v2, s[{SRD_PF}:{SRD_PF+3}], s{S_T+8} offen{SF}")
        b.label("p2_noclr")
    npf = 0
    b(f"  v_and_b32 v15, 255, v0")
    b(f"  v_bfe_u32 v16, v15, 2, 4             ; x")
    b(f"  v_lshrrev_b32 v17, 6, v15            ; g")
    b(f"  v_and_b32 v18, 3, v15")
    b(f"  v_lshl_add_u32 v17, v17, 2, v18      ; 4g+i")
    b(f"  v_mul_u32_u24 v17, v17, v16")
    sincos(b, 18, 19, 17, 4, 20)
    b(f"  v_cmp_gt_u32 vcc, 256, v0            ; matrix 0 ?")
    b(f"  v_xor_b32 v20, 0x80000000, v19       ; -sin")
    b(f"  s_nop 0")
    b(f"  v_cndmask_b32 v21, v20, v18, vcc")
    b(f"  v_cndmask_b32 v22, v18, v19, vcc")
    b(f"  v_cvt_pk_bf16_f32 v21, v21, v22")
    b(f"  v_lshlrev_b32 v22, 2, v0")
    b(f"  ds_write_b32 v22, v21 offset:{L2_F}")
    b(f"  v_lshlrev_b32 v16, 2, v9")
    for r in range(4):
        b(f"  v_add_u32 v17, {r}, v16")
        b(f"  v_mul_u32_u24 v17, v17, v8")
        sincos(b, TC2 + r, TS2 + r, 17, 8, 20)
    b(f"  v_and_b32 v16, 3, v0                 ; i")
    b(f"  v_mul_u32_u24 v16, {4*1040}, v16")
    b(f"  v_lshrrev_b32 v17, 6, v0             ; b (0..7)")
    b(f"  v_lshl_add_u32 v16, v17, 6, v16")
    b(f"  v_bfe_u32 v17, v0, 2, 2              ; a&3")
    b(f"  v_lshl_add_u32 v16, v17, 2, v16")
    b(f"  v_bfe_u32 v17, v0, 4, 2              ; a>>2")
    b(f"  v_lshl_add_u32 v21, v17, 4, v16      ; first")
    b(f"  v_xor_b32 v17, 2, v17")
    b(f"  v_lshl_add_u32 v22, v17, 4, v16")
    b(f"  v_add_u32 v22, 512, v22              ; second (b+8)")
    b(f"  v_mul_u32_u24 v16, {4*1040}, v10")
    b(f"  v_lshl_add_u32 v16, v11, 6, v16")
    b(f"  v_and_b32 v17, 3, v12")
    b(f"  v_lshl_add_u32 v16, v17, 2, v16")
    b(f"  v_lshrrev_b32 v17, 2, v12")
    b(f"  v_lshrrev_b32 v18, 3, v11            ; c>>3")
    b(f"  v_lshlrev_b32 v18, 1, v18")
    b(f"  v_xor_b32 v17, v17, v18")
    b(f"  v_lshl_add_u32 v23, v17, 4, v16")
    b(f"  v_lshrrev_b32 v16, 3, v8")
    b(f"  v_lshlrev_b32 v16, 1, v16")
    b(f"  v_xor_b32 v16, v16, v9")
    b(f"  v_lshlrev_b32 v16, 4, v16")
    b(f"  v_lshl_add_u32 v16, v8, 6, v16")
    b(f"  s_mul_i32 s{S_T+4}, s{S_W}, {2*1040}")
    b(f"  s_mul_i32 s{S_T+5}, s{S_W}, 1040")
    b(f"  v_add_u32 v5, s{S_T+4}, v16")
    b(f"  v_add_u32 v6, s{S_T+5}, v16")
    b(f"  v_lshlrev_b32 v1, 4, v0")
    b(f"  s_lshl_b32 s{S_T+2}, s2, 14")
    b(f"  s_add_u32 s{S_T+3}, s{S_T+2}, 8192")
    b(f"  s_waitcnt lgkmcnt(0)")

def sentinel_check(b, R0, pre, n=8):
    b(f"  v_max3_u32 v16, v{R0}, v{R0+1}, v{R0+2}")
    b(f"  v_max3_u32 v17, v{R0+3}, v{R0+4}, v{R0+5}")
    b(f"  v_max3_u32 v16, v16, v{R0+6}, v{R0+7}")
    for i in range(8, n, 2): b(f"  v_max3_u32 v17, v17, v{R0+i}, v{R0+i+1}")
    b(f"  v_max_u32 v16, v16, v17")
    b(f"  v_cmp_eq_u32 vcc, -1, v16")
    b(f"  s_sub_u32 s11, s11, 1")
    b(f"  s_cmp_eq_u32 s11, 0")
    b(f"  s_cbranch_scc1 {pre}_got")
    b(f"  s_cmp_lg_u64 vcc, 0")
    b(f"  s_cbranch_scc1 {pre}_poll")
    b.label(f"{pre}_got")

def p2_main(b):
    XL = XL2; TC, TS = TC2, TS2
    if SENT():
        b(f"  s_mov_b32 s11, 200000")
        b.label("p2_poll")
    b(f"  buffer_load_dwordx4 {vr(XL,4)}, v1, s[{SRD_A}:{SRD_A+3}], s{S_T+2} offen sc1")
    b(f"  buffer_load_dwordx4 {vr(XL+4,4)}, v1, s[{SRD_A}:{SRD_A+3}], s{S_T+3} offen sc1")
    if "wpack" in OPT:
        WL = WL2
        b(f"  buffer_load_dwordx4 {vr(WL,4)}, v1, s[{SRD_C}:{SRD_C+3}], s{S_T+2} offen sc1")
        b(f"  buffer_load_dwordx4 {vr(WL+4,4)}, v1, s[{SRD_C}:{SRD_C+3}], s{S_T+3} offen sc1")
        b(f"  s_waitcnt vmcnt(2)")
    elif "wlate" in OPT:
        assert not SENT()
        WL = WL2
        b(f"  buffer_load_dwordx4 {vr(WL,4)}, v24, s[{SRD_C}:{SRD_C+3}], s45 offen{WF()}")
        b(f"  buffer_load_dwordx4 {vr(WL+4,4)}, v24, s[{SRD_D}:{SRD_D+3}], s45 offen{WF()}")
        b(f"  s_cmp_lg_u32 s{S_T+1}, 0")
        b(f"  s_cbranch_scc1 p2_nonyq")
        b(f"  buffer_load_ushort v56, v25, s[{SRD_C}:{SRD_C+3}], 0 offen offset:1024")
        b(f"  buffer_load_ushort v57, v25, s[{SRD_D}:{SRD_D+3}], 0 offen offset:1024")
        b(f"  s_waitcnt vmcnt(0)")
        b(f"  v_cmp_eq_u32 vcc, 0, v26")
        b(f"  v_and_b32 v58, 0xffff0000, v{WL}")
        b(f"  v_or_b32 v58, v58, v56")
        b(f"  v_cndmask_b32 v{WL}, v{WL}, v58, vcc")
        b(f"  v_and_b32 v58, 0xffff0000, v{WL+4}")
        b(f"  v_or_b32 v58, v58, v57")
        b(f"  v_cndmask_b32 v{WL+4}, v{WL+4}, v58, vcc")
        b.label("p2_nonyq")
        b(f"  s_waitcnt vmcnt(2)")
    else:
        b(f"  s_waitcnt vmcnt(0)")
    if SENT(): sentinel_check(b, XL, "p2")
    WL = WE if ("wearly" in OPT or "wmid" in OPT) else WL2
    b(f"  v_lshlrev_b32 v17, 4, v7")
    FR, FI = 72, 76
    AX = 48; WR, WI = 152, 156
    b(f"  ds_read_b128 {vr(FR,4)}, v17 offset:{L2_F}")
    b(f"  ds_read_b128 {vr(FI,4)}, v17 offset:{L2_F+1024}")
    Dq = [80, 88]; Oq = [96, 104]; Tq = [112, 120]; Pq = [128, 132]; Wq = [136, 144]
    stamp(b, "p2 x landed")
    for j in range(4):
        b(f"  ds_write_b32 v21, v{XL+j} offset:{L2_X + j*1040}")
        b(f"  ds_write_b32 v22, v{XL+4+j} offset:{L2_X + j*1040}")
    if "wlate" in OPT or "wpack" in OPT: b(f"  s_waitcnt vmcnt(0)")
    for j in range(4):
        b(f"  ds_write_b32 v23, v{WL+j} offset:{L2_W + j*1040}")
        b(f"  ds_write_b32 v23, v{WL+4+j} offset:{L2_W + 8*1040 + j*1040}")
    if "nopf" not in OPT and "ntw1" not in OPT and PFN[1]:
        w1_share_base(b, S_T + 8, PFN[0] * 4096)
        pf_wide(b, P_W1, W1B, S_T + 8, PFN[1], 4, 8, "pf_p2a")
    b(f"  s_waitcnt lgkmcnt(0)")
    b(f"  s_barrier")
    b(f"  ds_read_b128 {vr(AX,4)}, v5 offset:{L2_X}")
    b(f"  ds_read_b128 {vr(AX+4,4)}, v5 offset:{L2_X+1040}")
    b(f"  ds_read_b128 {vr(WR,4)}, v6 offset:{L2_W}")
    b(f"  ds_read_b128 {vr(WI,4)}, v6 offset:{L2_W+8*1040}")
    def stage(form, src):
        for k in range(2):
            d = Dq[k]
            if form == 'A':
                b(f"  {MF32} {vr(d,4)}, {vr(src[k],4)}, {vr(FR,4)}, 0")
                b(f"  {MF32} {vr(d+4,4)}, {vr(src[k],4)}, {vr(FI,4)}, 0")
            else:
                b(f"  {MF32} {vr(d,4)}, {vr(FR,4)}, {vr(src[k],4)}, 0")
                b(f"  {MF32} {vr(d+4,4)}, {vr(FI,4)}, {vr(src[k],4)}, 0")
    def twiddle_pack():
        for k in range(2):
            cmul_pk(b, Oq[k], Oq[k] + 4, Dq[k], Dq[k] + 4, TC, TS, Tq[k], False)
        for k in range(2):
            for r in range(4):
                b(f"  v_cvt_pk_bf16_f32 v{Pq[k]+r}, v{Oq[k]+r}, v{Oq[k]+4+r}")
        b(f"  s_nop 1")
    b(f"  s_waitcnt lgkmcnt(2)")
    stage('A', [AX, AX + 4])
    b(f"  s_waitcnt lgkmcnt(0)")
    for r in range(4):
        b(f"  v_lshlrev_b32 v{Wq[0]+r}, 16, v{WR+r}")
        b(f"  v_lshlrev_b32 v{Wq[0]+4+r}, 16, v{WI+r}")
        b(f"  v_and_b32 v{Wq[1]+r}, 0xffff0000, v{WR+r}")
        b(f"  v_and_b32 v{Wq[1]+4+r}, 0xffff0000, v{WI+r}")
    twiddle_pack()
    stage('B', Pq)
    b(f"  s_nop 5")
    for k in range(2):
        cmul_pk(b, Oq[k], Oq[k] + 4, Dq[k], Dq[k] + 4, Wq[k], Wq[k] + 4, Tq[k], True)
    for k in range(2):
        for r in range(4):
            b(f"  v_cvt_pk_bf16_f32 v{Pq[k]+r}, v{Oq[k]+r}, -v{Oq[k]+4+r}")
    b(f"  s_nop 1")
    stage('A', Pq)
    b(f"  s_nop 5")
    twiddle_pack()
    stage('B', Pq)
    b(f"  s_nop 5")
    for k in range(2):
        for r in range(4):
            b(f"  v_cvt_pk_bf16_f32 v{Pq[k]+r}, v{Dq[k]+r}, -v{Dq[k]+4+r}")
    b(f"  ds_write_b128 v5, {vr(Pq[0],4)} offset:{L2_X}")
    b(f"  ds_write_b128 v5, {vr(Pq[1],4)} offset:{L2_X+1040}")
    b(f"  s_waitcnt lgkmcnt(0)")
    b(f"  s_barrier")
    for j in range(4):
        b(f"  ds_read_b32 v{XL+j}, v21 offset:{L2_X + j*1040}")
        b(f"  ds_read_b32 v{XL+4+j}, v22 offset:{L2_X + j*1040}")
    b(f"  v_bfe_u32 v16, v0, 2, 4              ; a")
    b(f"  v_lshrrev_b32 v17, 6, v0             ; b")
    b(f"  v_lshl_add_u32 v16, v16, 4, v17      ; s1")
    b(f"  v_lshlrev_b32 v16, 14, v16")
    b(f"  v_and_b32 v17, 3, v0")
    b(f"  v_lshl_add_u32 v16, v17, 4, v16")
    b(f"  s_lshl_b32 s{S_T+4}, s{S_T}, 11")
    b(f"  s_lshl_b32 s{S_T+5}, s{S_T+1}, 6")
    b(f"  s_add_u32 s{S_T+4}, s{S_T+4}, s{S_T+5}")
    b(f"  s_add_u32 s{S_T+5}, s{S_T+4}, {8*16384}")
    b(f"  s_waitcnt lgkmcnt(0)")
    if SENT2():
        for j in range(8): b(f"  v_min_u32 v{XL+j}, 0xfffffffe, v{XL+j}")
    b(f"  buffer_store_dwordx4 {vr(XL,4)}, v16, s[{SRD_B}:{SRD_B+3}], s{S_T+4} offen{SF}")
    b(f"  buffer_store_dwordx4 {vr(XL+4,4)}, v16, s[{SRD_B}:{SRD_B+3}], s{S_T+5} offen{SF}")
    stamp(b, "p2 stores issued")
    if not SENT2():
        b(f"  s_and_b32 s{S_T+8}, s2, 15")
        arrive(b, 1, S_T + 8, label="x2")

V_LO = 224
S_G1A = 60
def g1_ids(b):
    b(f"  s_lshr_b32 s{S_T}, s2, 3                 ; i")
    b(f"  s_cmp_lt_u32 s{S_T}, 28")
    b(f"  s_cselect_b32 s62, 1, 0")
    b(f"  s_mul_i32 s{S_T+1}, s{S_T}, 37")
    b(f"  s_lshr_b32 s{S_T+1}, s{S_T+1}, 8         ; i/7")
    b(f"  s_mul_i32 s{S_T+2}, s{S_T+1}, 7")
    b(f"  s_sub_u32 s{S_T+2}, s{S_T}, s{S_T+2}     ; i%7")
    b(f"  s_and_b32 s{S_T+3}, s2, 7")
    b(f"  s_lshr_b32 s{S_T+4}, s{S_T+3}, 1")
    b(f"  s_mul_i32 s{S_T+4}, s{S_T+4}, 7")
    b(f"  s_add_u32 s60, s{S_T+4}, s{S_T+2}        ; ft")
    b(f"  s_and_b32 s{S_T+3}, s{S_T+3}, 1")
    b(f"  s_lshl_b32 s{S_T+3}, s{S_T+3}, 2")
    b(f"  s_add_u32 s61, s{S_T+3}, s{S_T+1}        ; dt")

S_SOFF, S_M0, S_N = 4, 5, 6
def loader_issue(b, voff, fl=""):
    for i in range(4):
        b(f"  s_add_u32 m0, s{S_M0}, {4096*i}")
        b(f"  s_nop 0")
        b(f"  buffer_load_dwordx4 v{voff+i}, s[{SRD_T}:{SRD_T+3}], s{S_SOFF} offen{fl} lds")
    b(f"  s_add_u32 s{S_SOFF}, s{S_SOFF}, s9")
    b(f"  s_add_u32 s{S_M0}, s{S_M0}, {STAGE}")
    b(f"  s_cmp_ge_u32 s{S_M0}, s{S_N+1}")
    b(f"  s_cselect_b32 s{S_N+2}, {R*STAGE}, 0")
    b(f"  s_sub_u32 s{S_M0}, s{S_M0}, s{S_N+2}")

def loader_init(b, step_bytes):
    b(f"  s_sub_u32 s50, s{S_W}, 4")
    b(f"  s_lshl_b32 s{S_M0}, s50, 10")
    b(f"  s_add_u32 s{S_N+1}, s{S_M0}, {R*STAGE}")
    b(f"  s_mov_b32 s{S_SOFF}, 0")
    b(f"  s_mov_b32 s9, {step_bytes}")

def g1_loader_addr(b):
    b(f"  s_sub_u32 s50, s{S_W}, 4      ; w'")
    for i in range(4):
        b(f"  s_lshl_b32 s49, s50, 2")
        b(f"  s_add_u32 s49, s49, {16*i}")
        b(f"  v_lshrrev_b32 v14, 4, v7")
        b(f"  v_add_u32 v14, s49, v14                 ; row 0..63")
        b(f"  v_and_b32 v15, 3, v14")
        b(f"  v_lshlrev_b32 v15, 2, v15")
        if M16G1():
            b(f"  v_bfe_u32 v16, v14, 3, 1")
            b(f"  v_lshl_add_u32 v15, v16, 1, v15")
        b(f"  v_and_b32 v16, 15, v7")
        b(f"  v_xor_b32 v16, v16, v15                 ; q")
        b(f"  v_lshrrev_b32 v17, 3, v14")
        b(f"  v_and_b32 v18, 7, v14")
        b(f"  v_lshl_add_u32 v17, v18, 8, v17         ; s")
        b(f"  v_mul_u32_u24 v17, 7168, v17")
        b(f"  v_lshl_add_u32 v17, v16, 4, v17")
        b(f"  s_lshl_b32 s49, s60, 8")
        b(f"  v_add_u32 v{V_LO+i}, s49, v17")

def g2_ids(b):
    if SK():
        b(f"  s_lshr_b32 s{S_T+1}, s2, 3")
        b(f"  s_lshr_b32 s{S_TILE_A}, s{S_T+1}, 2          ; dt")
        b(f"  s_lshr_b32 s{S_T}, s2, 1")
        b(f"  s_and_b32 s{S_T}, s{S_T}, 3")
        b(f"  s_lshl_b32 s{S_T}, s{S_T}, 2")
        b(f"  s_and_b32 s{S_T+1}, s{S_T+1}, 3")
        b(f"  s_add_u32 s{S_TILE_B}, s{S_T}, s{S_T+1}      ; st2")
        b(f"  s_and_b32 s19, s2, 1                       ; kh")
        return
    b(f"  s_and_b32 s{S_T}, s2, 1")
    b(f"  s_lshl_b32 s{S_T}, s{S_T}, 2")
    b(f"  s_lshr_b32 s{S_T+1}, s2, 3")
    b(f"  s_and_b32 s{S_T+2}, s{S_T+1}, 3")
    b(f"  s_add_u32 s{S_TILE_A}, s{S_T}, s{S_T+2}     ; dt")
    b(f"  s_lshr_b32 s{S_T}, s2, 1")
    b(f"  s_and_b32 s{S_T}, s{S_T}, 3")
    b(f"  s_lshl_b32 s{S_T}, s{S_T}, 3")
    b(f"  s_lshr_b32 s{S_T+1}, s{S_T+1}, 2")
    b(f"  s_add_u32 s{S_TILE_B}, s{S_T}, s{S_T+1}     ; st")

def g2_loader_addr(b):
    if SK():
        b(f"  s_sub_u32 s50, s{S_W}, 4")
        for i in range(4):
            b(f"  s_lshl_b32 s49, s50, 2")
            b(f"  s_add_u32 s49, s49, {16*i}")
            b(f"  v_lshrrev_b32 v14, 4, v7")
            b(f"  v_add_u32 v14, s49, v14                 ; row 0..63")
            b(f"  v_and_b32 v15, 3, v14")
            b(f"  v_lshlrev_b32 v15, 2, v15")
            if M16G2():
                b(f"  v_bfe_u32 v16, v14, 3, 1")
                b(f"  v_lshl_add_u32 v15, v16, 1, v15")
            b(f"  v_and_b32 v16, 15, v7")
            b(f"  v_xor_b32 v16, v16, v15                 ; q")
            b(f"  v_lshlrev_b32 v14, 12, v14              ; row*4096")
            b(f"  v_lshl_add_u32 v14, v16, 4, v14")
            b(f"  s_lshl_b32 s49, s{S_TILE_B}, 8          ; s0*2")
            b(f"  s_mul_i32 s48, s19, {1792*4096}         ; k half")
            b(f"  s_add_u32 s49, s49, s48")
            b(f"  v_add_u32 v{V_LO+i}, s49, v14")
        return
    b(f"  s_sub_u32 s50, s{S_W}, 4")
    for i in range(4):
        b(f"  s_lshl_b32 s49, s50, 3")
        b(f"  s_add_u32 s49, s49, {32*i}")
        b(f"  v_lshrrev_b32 v14, 3, v7")
        b(f"  v_add_u32 v14, s49, v14                 ; row")
        b(f"  v_bfe_u32 v15, v14, 1, 1")
        b(f"  v_lshlrev_b32 v15, 2, v15")
        b(f"  v_and_b32 v16, 7, v7")
        b(f"  v_xor_b32 v16, v16, v15                 ; q")
        b(f"  v_lshlrev_b32 v14, 12, v14              ; row*4096")
        b(f"  v_lshl_add_u32 v14, v16, 4, v14")
        b(f"  s_lshl_b32 s49, s{S_TILE_B}, 7          ; s0*2")
        b(f"  v_add_u32 v{V_LO+i}, s49, v14")

def loader_loop(b, NS, pre, fl=""):
    if "priol" in OPT: b("  s_setprio 2")
    if "oldstart" in OPT:
        for n in range(R - 4): loader_issue(b, V_LO, fl)
        nmain = NS - (R - 2)
    else:
        b(f"  s_waitcnt vmcnt(4)")
        b("  s_barrier                      ; B_0")
        for n in range(R - 3): loader_issue(b, V_LO, fl)
        nmain = NS - (R - 2) - 1
    b(f"  s_mov_b32 s{S_N}, {nmain}")
    b.label(f"{pre}_lloop")
    b(f"  s_waitcnt vmcnt({(R-3)*4})")
    b("  s_barrier")
    loader_issue(b, V_LO, fl)
    b(f"  s_sub_u32 s{S_N}, s{S_N}, 1")
    b(f"  s_cmp_lg_u32 s{S_N}, 0")
    b(f"  s_cbranch_scc1 {pre}_lloop")
    for i in range(R - 2):
        b(f"  s_waitcnt vmcnt({(R-3-i)*4})")
        b("  s_barrier")

BD3 = 32; XR3 = 192; GM3 = 30
def p3_tables(b):
    b(f"  v_and_b32 v10, 255, v0            ; e")
    b(f"  v_lshrrev_b32 v11, 8, v0")
    b(f"  v_bfe_u32 v12, v10, 2, 4          ; n = lane&15")
    b(f"  v_lshrrev_b32 v13, 6, v10         ; g")
    b(f"  v_and_b32 v14, 3, v10             ; r")
    b(f"  v_lshl_add_u32 v13, v13, 2, v14   ; 4g + r")
    b(f"  v_lshrrev_b32 v15, 2, v12")
    b(f"  v_lshlrev_b32 v15, 3, v15")
    b(f"  v_and_b32 v16, 3, v12")
    b(f"  v_add_u32 v15, v15, v16           ; b(n,0)")
    b(f"  v_lshl_add_u32 v16, v11, 2, v15   ; b(n, sel)")
    b(f"  v_mul_u32_u24 v17, v16, v13")
    sincos(b, 18, 19, 17, 5, 20)
    b(f"  v_lshlrev_b32 v22, 2, v10")
    b(f"  v_lshl_add_u32 v22, v11, 11, v22  ; sel*2048 + e*4")
    b(f"  v_add_u32 v22, {L3_M3}, v22")
    b(f"  v_cvt_pk_bf16_f32 v23, v18, -v19")
    b(f"  v_cvt_pk_bf16_f32 v24, v19, v18")
    b(f"  ds_write_b32 v22, v23")
    b(f"  ds_write_b32 v22, v24 offset:1024")
    b(f"  v_lshl_add_u32 v17, v11, 4, v13   ; k1")
    for z in range(2):
        b(f"  v_add_u32 v21, {16*z}, v12")
        b(f"  v_mul_u32_u24 v21, v21, v17")
        sincos(b, 18, 19, 21, 5, 20)
        b(f"  v_add_f32 v18, v18, v18")
        b(f"  v_mul_f32 v19, -2.0, v19")
        b(f"  v_cvt_pk_bf16_f32 v23, v18, v19")
        b(f"  ds_write_b32 v22, v23 offset:{4096+1024*z}")
    b(f"  v_lshlrev_b32 v23, 2, v10")
    b(f"  v_lshl_add_u32 v23, v11, 12, v23   ; u*4096 + e*4")
    b(f"  v_add_u32 v23, {L3_TW}, v23")
    for v in range(2):
        b(f"  v_add_u32 v21, {4*v}, v15")
        b(f"  v_mul_u32_u24 v21, v21, v17")
        sincos(b, 18, 19, 21, 10, 20)
        b(f"  ds_write_b32 v23, v18 offset:{2048*v}")
        b(f"  ds_write_b32 v23, v19 offset:{2048*v+1024}")

def p3_setup(b):
    srd(b, SRD_A, P_WS, 4 << 20, WS_X2)
    srd(b, SRD_B, P_X, 4 << 20)
    srd(b, SRD_C, P_WS, 4 << 20, WS_H)
    srd(b, SRD_D, P_WS, 4 << 20, WS_LN2)
    b(f"  s_lshl_b32 s{S_T+3}, s{S_W}, 8")
    b(f"  s_add_u32 s{S_T+3}, s{S_T+3}, s2")
    b(f"  s_lshl_b32 s{S_T+3}, s{S_T+3}, 11       ; s*2048")
    b(f"  v_lshlrev_b32 v4, 6, v8")
    b(f"  v_lshl_add_u32 v4, v9, 4, v4")
    if "stash" in OPT:
        b(f"  s_lshl_b32 s{S_T+9}, s{S_W}, 11")
        b(f"  s_add_u32 s{S_T+9}, s{S_T+9}, {L_XS}")
        b(f"  v_add_u32 v2, s{S_T+9}, v4")
        for z in range(2): b(f"  ds_read_b128 {vr(XR3+4*z,4)}, v2 offset:{1024*z}")
    else:
      for z in range(2):
        b(f"  buffer_load_dwordx4 {vr(XR3+4*z,4)}, v4, s[{SRD_B}:{SRD_B+3}], s{S_T+3} offen offset:{1024*z}")
    b(f"  s_mov_b32 s63, s{S_T+3}")
    if SK():
        srd(b, SRD_PF, P_WS, 4 << 20, WS_XCH)
        for i in range(4): b(f"  v_mov_b32 v{200+i}, -1")
        b(f"  v_lshlrev_b32 v2, 4, v0")
        b(f"  s_lshl_b32 s{S_T+8}, s2, 14")
        b(f"  buffer_store_dwordx4 v[200:203], v2, s[{SRD_PF}:{SRD_PF+3}], s{S_T+8} offen{SF}")
        b(f"  s_add_u32 s{S_T+8}, s{S_T+8}, 8192")
        b(f"  buffer_store_dwordx4 v[200:203], v2, s[{SRD_PF}:{SRD_PF+3}], s{S_T+8} offen{SF}")
    if "es" in OPT:
        b(f"  s_cmp_ge_u32 s{S_W}, 4")
        b(f"  s_cbranch_scc1 p3_noclr")
        srd(b, SRD_PF, P_WS, U_BYTES, WS_U)
        b(f"  s_lshr_b32 s{S_T+8}, s2, 3            ; dblk")
        b(f"  s_mul_i32 s{S_T+8}, s{S_T+8}, 229376")
        b(f"  s_lshr_b32 s{S_T+9}, s2, 2")
        b(f"  s_and_b32 s{S_T+9}, s{S_T+9}, 1       ; k half")
        b(f"  s_mul_i32 s{S_T+9}, s{S_T+9}, {112*1024}")
        b(f"  s_add_u32 s{S_T+8}, s{S_T+8}, s{S_T+9}")
        b(f"  s_and_b32 s{S_T+9}, s2, 3")
        b(f"  s_lshl_b32 s{S_T+9}, s{S_T+9}, 12")
        b(f"  s_add_u32 s{S_T+8}, s{S_T+8}, s{S_T+9}")
        b(f"  buffer_store_dwordx4 v[200:203], v2, s[{SRD_PF}:{SRD_PF+3}], s{S_T+8} offen{SF}")
        b.label("p3_noclr")
    if "nopf" not in OPT and "ntw1" not in OPT:
        if PFN[2]:
            w1_share_base(b, S_T + 8, (PFN[0] + PFN[1]) * 4096)
            pf_wide(b, P_W1, W1B, S_T + 8, PFN[2], 4, 8, "pf_p3a")
    g1_ids(b)
    g1_loader_addr(b)
    loader_init(b, 8 * 7168)
    p3_tables(b)
    gmat(b, GM3, 2, True, 10)
    b(f"  v_lshlrev_b32 v1, 12, v9")
    b(f"  v_lshl_add_u32 v1, v8, 2, v1")
    b(f"  s_lshl_b32 s{S_T}, s2, 14")
    b(f"  s_and_b32 s{S_T+1}, s{S_W}, 1")
    b(f"  s_lshl_b32 s{S_T+1}, s{S_T+1}, 6")
    b(f"  s_lshr_b32 s{S_T+2}, s{S_W}, 1")
    b(f"  s_lshl_b32 s{S_T+2}, s{S_T+2}, 9")
    b(f"  s_add_u32 s{S_T}, s{S_T}, s{S_T+1}")
    b(f"  s_add_u32 s44, s{S_T}, s{S_T+2}          ; X2 soffset")
    b(f"  s_lshl_b32 s{S_T+1}, s{S_T+1}, 4        ; u*1024")
    b(f"  s_lshr_b32 s{S_T+2}, s{S_T+2}, 1        ; q4*256")
    b(f"  s_add_u32 s45, s{S_T+1}, s{S_T+2}")
    b(f"  s_waitcnt lgkmcnt(0)")

def p3_main(b):
    Bd, XR, GM = BD3, XR3, GM3
    D = 40
    b(f"  v_lshlrev_b32 v3, 12, v9")
    b(f"  v_lshl_add_u32 v3, v8, 4, v3")
    b(f"  v_add_u32 v3, s45, v3")
    b(f"  v_add_u32 v3, {L3_EX}, v3")
    M3, M4, TW = 96, 112, 128
    b(f"  v_lshlrev_b32 v6, 4, v7")
    b(f"  v_add_u32 v6, {L3_M3}, v6")
    for i in range(4): b(f"  ds_read_b128 {vr(M3+4*i,4)}, v6 offset:{1024*i}")
    for i in range(4): b(f"  ds_read_b128 {vr(M4+4*i,4)}, v6 offset:{4096+1024*i}")
    b(f"  s_waitcnt lgkmcnt(0)")
    for i in range(8): b(f"  ds_read_b128 {vr(TW+4*i,4)}, v6 offset:{8192+1024*i}")
    if SENT2():
        b(f"  s_mov_b32 s11, 200000")
        b.label("p3_poll")
    for i in range(4):
        for e in range(2):
            b(f"  buffer_load_dword v{Bd+2*i+e}, v1, s[{SRD_A}:{SRD_A+3}], s44 offen offset:{e*2048+i*128} sc1")
    b(f"  s_waitcnt vmcnt(0)")
    if SENT2(): sentinel_check(b, Bd, "p3")
    stamp(b, "p3 x2 landed")
    if "nopf" not in OPT and "ntw1" not in OPT and PFN[3]:
        w1_share_base(b, S_T + 8, (PFN[0] + PFN[1] + PFN[2]) * 4096)
        pf_wide(b, P_W1, W1B, S_T + 8, PFN[3], 4, 8, "pf_p3b")
    for i in range(4):
        b(f"  {MF16} {vr(D+4*i,4)}, {vr(GM,2)}, {vr(Bd+2*i,2)}, 0")
    b(f"  s_nop 4")
    PK = 56
    for e in range(2):
        for i in range(4):
            b(f"  v_cvt_pk_bf16_f32 v{PK+4*e+i}, v{D+4*i+2*e}, v{D+4*i+2*e+1}")
    b(f"  ds_write_b128 v3, {vr(PK,4)}")
    b(f"  ds_write_b128 v3, {vr(PK+4,4)} offset:2048")
    b(f"  s_waitcnt lgkmcnt(0)")
    b(f"  s_barrier")
    b(f"  v_lshlrev_b32 v5, 8, v9")
    b(f"  v_lshl_add_u32 v5, v8, 4, v5")
    b(f"  s_lshl_b32 s{S_T+1}, s{S_W}, 11")
    b(f"  s_add_u32 s{S_T+1}, s{S_T+1}, {L3_EX}")
    b(f"  v_add_u32 v5, s{S_T+1}, v5")
    AU = 32
    b(f"  ds_read_b128 {vr(AU,4)}, v5")
    b(f"  ds_read_b128 {vr(AU+4,4)}, v5 offset:1024")
    b(f"  s_waitcnt lgkmcnt(0)")
    b(f"  v_readlane_b32 s{S_T+4}, v{AU}, 0")
    b(f"  v_writelane_b32 v{AU}, 0, 0")
    b(f"  s_nop 1")
    b(f"  s_lshl_b32 s{S_T+4}, s{S_T+4}, 16")
    TT = 160
    for u in range(2):
        for v in range(2):
            for c in range(2):
                d = TT + ((u * 2 + v) * 2 + c) * 4
                b(f"  {MF32} {vr(d,4)}, {vr(AU+4*u,4)}, {vr(M3+4*(2*v+c),4)}, 0")
    CI = 60
    b(f"  v_mov_b32 v{CI}, s{S_T+4}")
    b(f"  v_xor_b32 v{CI+1}, 0x80000000, v{CI}")
    b(f"  v_mov_b32 v{CI+2}, v{CI}")
    b(f"  v_mov_b32 v{CI+3}, v{CI+1}")
    b(f"  s_nop 1")
    A2 = 64; O = 40; W = 80
    for u in range(2):
        for v in range(2):
            t = TT + ((u * 2 + v) * 2) * 4
            tw = TW + ((u * 2 + v) * 2) * 4
            cmul_pk(b, O, O + 4, t, t + 4, tw, tw + 4, W, True)
            for r in range(4):
                b(f"  v_cvt_pk_bf16_f32 v{A2+(u*2+v)*4+r}, v{O+r}, v{O+4+r}")
    Y = 160
    b(f"  s_nop 1")
    for z in range(2):
        for v in range(2):
            d = Y + (z * 2 + v) * 4
            b(f"  {MF32} {vr(d,4)}, {vr(A2+(0*2+v)*4,4)}, {vr(M4+(0*2+z)*4,4)}, {vr(CI,4)}")
    for z in range(2):
        for v in range(2):
            d = Y + (z * 2 + v) * 4
            b(f"  {MF32} {vr(d,4)}, {vr(A2+(1*2+v)*4,4)}, {vr(M4+(1*2+z)*4,4)}, {vr(d,4)}")
    b(f"  s_nop 7")
    X = 40; HP = 32
    stamp(b, "p3 ifft done")
    for z in range(2):
        for dd in range(4):
            y0 = Y + z * 8 + 2 * dd
            xd = XR + 4 * z + dd
            t = 64 + 2 * (dd % 4)
            b(f"  v_lshlrev_b32 v{t}, 16, v{xd}")
            b(f"  v_and_b32 v{t+1}, 0xffff0000, v{xd}")
            b(f"  v_pk_add_f32 {vr(t,2)}, {vr(t,2)}, {vr(y0,2)}")
            b(f"  v_cvt_pk_bf16_f32 v{HP+4*z+dd}, v{t}, v{t+1}")
    for z in range(2):
        b(f"  buffer_store_dwordx4 {vr(HP+4*z,4)}, v4, s[{SRD_C}:{SRD_C+3}], s63 offen offset:{1024*z}{SF}")
    for i in range(8):
        b(f"  v_lshlrev_b32 v{X+2*i}, 16, v{HP+i}")
        b(f"  v_and_b32 v{X+2*i+1}, 0xffff0000, v{HP+i}")
    ln_fast(b, X, 64, S_T + 4, False)
    LP = 72
    stamp(b, "p3 ln done")
    for i in range(8):
        b(f"  v_cvt_pk_bf16_f32 v{LP+i}, v{X+2*i}, v{X+2*i+1}")
    b(f"  v_mul_u32_u24 v3, 80, v8")
    b(f"  v_lshl_add_u32 v3, v9, 4, v3")
    b(f"  s_mul_i32 s{S_T+1}, s{S_W}, {L3_RS}")
    b(f"  s_add_u32 s{S_T+1}, s{S_T+1}, {L3_LN}")
    b(f"  v_add_u32 v3, s{S_T+1}, v3")
    for z in range(2):
        b(f"  ds_write_b128 v3, {vr(LP+4*z,4)} offset:{z*16*80}")
    b(f"  s_waitcnt lgkmcnt(0)")
    b(f"  s_barrier")
    b(f"  v_bfe_u32 v10, v7, 2, 2")
    b(f"  v_mul_u32_u24 v10, {L3_RS}, v10")
    b(f"  v_lshrrev_b32 v11, 5, v7")
    b(f"  v_mul_u32_u24 v12, 80, v11")
    b(f"  v_add_u32 v10, v10, v12")
    if M16G2():
        b(f"  v_and_b32 v12, 3, v7")
        b(f"  v_lshl_add_u32 v10, v12, 4, v10")
        b(f"  v_bfe_u32 v12, v7, 4, 1")
        b(f"  v_lshl_add_u32 v10, v12, 3, v10")
    else:
        b(f"  v_and_b32 v12, 1, v7")
        b(f"  v_lshl_add_u32 v10, v12, 5, v10")
        b(f"  v_bfe_u32 v12, v7, 4, 1")
        b(f"  v_lshl_add_u32 v10, v12, 4, v10")
        b(f"  v_bfe_u32 v12, v7, 1, 1")
        b(f"  v_lshl_add_u32 v10, v12, 3, v10")
    b(f"  s_mul_i32 s{S_T+1}, s{S_W}, {4*80}")
    b(f"  s_add_u32 s{S_T+1}, s{S_T+1}, {L3_LN}")
    b(f"  v_add_u32 v10, s{S_T+1}, v10")
    for ps in range(2):
        b(f"  ds_read_b64_tr_b16 {vr(32+4*ps,2)}, v10 offset:{ps*160}")
        b(f"  ds_read_b64_tr_b16 {vr(34+4*ps,2)}, v10 offset:{ps*160 + 4*L3_RS}")
    b(f"  v_lshlrev_b32 v11, 17, v11")
    b(f"  v_and_b32 v12, 31, v7")
    b(f"  v_lshl_add_u32 v11, v12, 4, v11")
    b(f"  s_lshl_b32 s{S_T+1}, s{S_W}, 19")
    b(f"  s_lshl_b32 s{S_T+2}, s2, 9")
    b(f"  s_add_u32 s{S_T+1}, s{S_T+1}, s{S_T+2}")
    b(f"  s_add_u32 s{S_T+2}, s{S_T+1}, {2*131072}")
    b(f"  s_waitcnt lgkmcnt(2)")
    if "es" in OPT:
        for i in range(4): b(f"  v_min_u32 v{32+i}, 0xfffffffe, v{32+i}")
    b(f"  buffer_store_dwordx4 v[32:35], v11, s[{SRD_D}:{SRD_D+3}], s{S_T+1} offen{SF}")
    b(f"  s_waitcnt lgkmcnt(0)")
    if "es" in OPT:
        for i in range(4): b(f"  v_min_u32 v{36+i}, 0xfffffffe, v{36+i}")
    b(f"  buffer_store_dwordx4 v[36:39], v11, s[{SRD_D}:{SRD_D+3}], s{S_T+2} offen{SF}")
    stamp(b, "p3 stores issued")
    b(f"  s_and_b32 s{S_T+8}, s2, 15")
    arrive(b, 2, S_T + 8, label="x3")
    srd(b, SRD_T, P_W1, W1B)
    b(f"  s_cmp_lt_u32 s{S_W}, 4")
    b(f"  s_cbranch_scc1 p3_nodma")
    b(f"  s_cmp_eq_u32 s62, 0")
    b(f"  s_cbranch_scc1 p3_nodma")
    for n in range(2): loader_issue(b, V_LO, W1F())
    b.label("p3_nodma")

def gemm_core(b, c, pre, after_setup, after_prologue=None, posts=None):
    NB, NS = c.NB, c.NS
    acc = lambda nb: V_ACC + nb * 16
    VT = V_ACC + NB * 16
    VPR = VT + 32
    c.VT, c.VPR = VT, VPR
    c.vend = VPR + 4 * PR
    tf = lambda q: VT + (q % 8) * 4
    pr = lambda j: VPR + (j % PR) * 4
    FPI = 64
    KPI = FPI // NB
    def tread(q):
        ql = q % FPI
        lslot, within = ql // 16, ql % 16
        ks, nb = within // NB, within % NB
        off = lslot * STAGE + ks * 16 * c.rowb
        b(f"  ds_read_b64_tr_b16 {vr(tf(q),2)}, v{V_T+nb} offset:{off}")
        b(f"  ds_read_b64_tr_b16 {vr(tf(q)+2,2)}, v{V_T+nb} offset:{off+4*c.rowb}")
    def pload(j):
        b(f"  buffer_load_dwordx4 {vr(pr(j),4)}, v{V_P}, s[{SRD_P}:{SRD_P+3}], s{S_POFF} offen offset:{(j%4)*1024}{LF}")
        if j % 4 == 3: b(f"  s_add_u32 s{S_POFF}, s{S_POFF}, 4096")
    def mfma(q):
        nb = q % NB; j = q // NB; a = acc(nb)
        if "m16fake" in OPT:
            o = 8 * (j % 2)
            b(f"  v_mfma_f32_16x16x32_bf16 {vr(a+o,4)}, {vr(tf(q),4)}, {vr(pr(j),4)}, {vr(a+o,4)}")
            b(f"  v_mfma_f32_16x16x32_bf16 {vr(a+o+4,4)}, {vr(pr(j),4)}, {vr(tf(q),4)}, {vr(a+o+4,4)}")
            return
        if c.name == "g1":
            b(f"  v_mfma_f32_32x32x16_bf16 {vr(a,16)}, {vr(tf(q),4)}, {vr(pr(j),4)}, {vr(a,16)}")
        else:
            b(f"  v_mfma_f32_32x32x16_bf16 {vr(a,16)}, {vr(pr(j),4)}, {vr(tf(q),4)}, {vr(a,16)}")
    if "prioc" in OPT: b("  s_setprio 2")
    b(f"  s_mov_b32 s{S_POFF}, 0")
    S_EOFF = 18
    if "es" in OPT: b(f"  s_mov_b32 s{S_EOFF}, {3*4096}")
    b(f"  s_mov_b32 s{S_DELTA}, {4*STAGE}")
    b(f"  s_mov_b32 s{S_IT}, {NS//4 - 1}")
    if "es" in OPT:
        b(f"  s_mov_b32 s11, 200000")
        b.label(f"{pre}e0_poll")
        b(f"  buffer_load_dwordx4 {vr(pr(14),4)}, v{V_P}, s[{SRD_P}:{SRD_P+3}], s{S_EOFF} offen offset:2048 sc1")
        b(f"  s_waitcnt vmcnt(0)")
        b(f"  v_max3_u32 v16, v{pr(14)}, v{pr(14)+1}, v{pr(14)+2}")
        b(f"  v_max_u32 v16, v16, v{pr(14)+3}")
        b(f"  v_cmp_eq_u32 vcc, -1, v16")
        b(f"  s_sub_u32 s11, s11, 1")
        b(f"  s_cmp_eq_u32 s11, 0")
        b(f"  s_cbranch_scc1 {pre}e0_got")
        b(f"  s_cmp_lg_u64 vcc, 0")
        b(f"  s_cbranch_scc1 {pre}e0_poll")
        b.label(f"{pre}e0_got")
        b(f"  s_mov_b32 s11, 200000")
        b.label(f"{pre}e_poll")
        for j in range(PR - 2):
            if j % 4 == 0: b(f"  s_mov_b32 s{S_POFF}, {(j//4)*4096}")
            b(f"  buffer_load_dwordx4 {vr(pr(j),4)}, v{V_P}, s[{SRD_P}:{SRD_P+3}], s{S_POFF} offen offset:{(j%4)*1024} sc1")
        b(f"  s_waitcnt vmcnt(0)")
        sentinel_check(b, VPR, f"{pre}e", n=4 * (PR - 2))
        b(f"  s_mov_b32 s{S_POFF}, {3*4096}")
        after_setup()
    else:
        after_setup()
        for j in range(PR - 1): pload(j)
    if after_prologue: after_prologue()
    b("  s_barrier")
    for q in range(DQ): tread(q)
    def body(last):
        for q in range(FPI):
            j = q // NB
            qn = q + DQ
            do_read = not (last and qn >= FPI)
            do_pload = False
            if q % NB == 0:
                rem = KPI - 1 - j
                if (not last) or (j + PR - 1 < KPI):
                    b(f"  s_waitcnt vmcnt({PR-2})")
                    do_pload = True
                else:
                    b(f"  s_waitcnt vmcnt({min(PR-2, rem)})")
            if do_read and qn % 16 == 0:
                b("  s_barrier")
            if do_read and qn == FPI:
                for i in range(NB): b(f"  v_add_u32 v{V_T+i}, s{S_DELTA}, v{V_T+i}")
                b(f"  s_sub_u32 s{S_DELTA}, 0, s{S_DELTA}")
            if q % 2 == 0:
                left = min(DQ - 2, FPI - 2 - q) if last else DQ - 2
                b(f"  s_waitcnt lgkmcnt({2*left})")
            if "m16fake2" in OPT:
                nb = q % NB; a = acc(nb); o = 8 * (j % 2)
                ql = qn % FPI; lslot, within = ql // 16, ql % 16; ks, nbn = within // NB, within % NB
                off = lslot * STAGE + ks * 16 * c.rowb
                b(f"  v_mfma_f32_16x16x32_bf16 {vr(a+o,4)}, {vr(tf(q),4)}, {vr(pr(j),4)}, {vr(a+o,4)}")
                if do_read: b(f"  ds_read_b64_tr_b16 {vr(tf(qn),2)}, v{V_T+nbn} offset:{off}")
                b(f"  v_mfma_f32_16x16x32_bf16 {vr(a+o+4,4)}, {vr(pr(j),4)}, {vr(tf(q),4)}, {vr(a+o+4,4)}")
                if do_read: b(f"  ds_read_b64_tr_b16 {vr(tf(qn)+2,2)}, v{V_T+nbn} offset:{off+4*c.rowb}")
                if do_pload: pload(j + PR - 1)
                continue
            mfma(q)
            if do_pload: pload(j + PR - 1)
            if do_read: tread(qn)
    b.label(f"{pre}_loop")
    body(False)
    b(f"  s_sub_u32 s{S_IT}, s{S_IT}, 1")
    b(f"  s_cmp_lg_u32 s{S_IT}, 0")
    b(f"  s_cbranch_scc1 {pre}_loop")
    if posts is None:
        body(True)
        return
    F = [(q // NB, q % NB) for q in range(16)] + [(4 + r % 12, r // 12) for r in range(48)]
    def tread_f(q):
        j, nb = F[q]
        off = (j // 4) * STAGE + (j % 4) * 16 * c.rowb
        b(f"  ds_read_b64_tr_b16 {vr(tf(q),2)}, v{V_T+nb} offset:{off}")
        b(f"  ds_read_b64_tr_b16 {vr(tf(q)+2,2)}, v{V_T+nb} offset:{off+4*c.rowb}")
    for q in range(FPI):
        j, nb = F[q]
        qn = q + DQ
        first_use = (q < 16 and nb == 0) or (16 <= q < 28)
        if q == 0: b(f"  s_waitcnt vmcnt({PR-2})")
        elif first_use: b(f"  s_waitcnt vmcnt({min(PR-2, KPI - 1 - j)})")
        if q == 9: b("  s_barrier"); b("  s_barrier")
        if q == 13: b("  s_barrier")
        if q % 2 == 0:
            left = min(DQ - 2, FPI - 2 - q)
            b(f"  s_waitcnt lgkmcnt({2*left})")
        a = acc(nb)
        if c.name == "g1":
            b(f"  v_mfma_f32_32x32x16_bf16 {vr(a,16)}, {vr(tf(q),4)}, {vr(pr(j),4)}, {vr(a,16)}")
        else:
            b(f"  v_mfma_f32_32x32x16_bf16 {vr(a,16)}, {vr(pr(j),4)}, {vr(tf(q),4)}, {vr(a,16)}")
        if q == 0: pload(PR - 1)
        if qn < FPI: tread_f(qn)
        if q >= 28:
            blk, r = (q - 16) // 12 - 1, (q - 16) % 12
            fill = posts.get(blk, [])
            if fill and r >= 3:
                n = len(fill); per = -(-n // 9)
                for line in fill[(r - 3) * per:(r - 2) * per]: b(line)

HAND_CNT = 150016
V_T16 = 16
def geom16(b, sx=None):
    b(f"  v_and_b32 v8, 15, v7")
    b(f"  v_lshrrev_b32 v9, 4, v7")
    b(f"  v_lshrrev_b32 v10, 1, v9")
    b(f"  v_lshlrev_b32 v10, 10, v10")
    b(f"  v_and_b32 v11, 1, v9")
    b(f"  v_lshl_add_u32 v10, v11, 9, v10")
    b(f"  v_lshl_add_u32 v10, v8, 4, v10")
    b(f"  v_lshrrev_b32 v12, 2, v8              ; r")
    b(f"  v_lshl_add_u32 v13, v9, 3, v12        ; row")
    b(f"  v_lshlrev_b32 v12, 2, v12")
    b(f"  v_lshl_add_u32 v12, v11, 1, v12       ; f")
    b(f"  v_bfe_u32 v14, v7, 1, 1               ; c>>1")
    b(f"  v_xor_b32 v12, v12, v14")
    b(f"  v_lshlrev_b32 v13, 8, v13")
    b(f"  v_lshl_add_u32 v13, v12, 4, v13")
    b(f"  v_and_b32 v14, 1, v7")
    b(f"  v_lshl_add_u32 v{V_T16}, v14, 3, v13")
    if sx is not None: b(f"  v_xor_b32 v{V_T16}, s{sx}, v{V_T16}")
    for nb in range(1, 8): b(f"  v_xor_b32 v{V_T16+nb}, {32*nb}, v{V_T16}")

def gemm_core16(b, name, NS, pre, after_setup, after_prologue, posts):
    PRS = 8
    acc = lambda nb, db: V_ACC + (nb * 2 + db) * 4
    VT, VPR = 96, 128
    tf = lambda q: VT + (q % 8) * 4
    pr = lambda j, db: VPR + (j % PRS) * 8 + db * 4
    FPI, KPI = 64, 8
    def rd(q, jn, nbn, half):
        if "halfrd" in OPT and half == 1: return
        off = (jn // 2 % 4) * STAGE + (jn % 2) * 32 * 256 + half * 4 * 256
        b(f"  ds_read_b64_tr_b16 {vr(tf(q)+2*half,2)}, v{V_T16+nbn} offset:{off}")
    def pload(j):
        for db in range(2):
            b(f"  buffer_load_dwordx4 {vr(pr(j,db),4)}, v{V_P}, s[{SRD_P}:{SRD_P+3}], s{S_POFF} offen offset:{(j%2)*2048+db*256}{LF}")
        if j % 2 == 1: b(f"  s_add_u32 s{S_POFF}, s{S_POFF}, 4096")
    def mf(q, j, nb, db):
        a = acc(nb, db)
        if name == "g1": b(f"  v_mfma_f32_16x16x32_bf16 {vr(a,4)}, {vr(tf(q),4)}, {vr(pr(j,db),4)}, {vr(a,4)}")
        else: b(f"  v_mfma_f32_16x16x32_bf16 {vr(a,4)}, {vr(pr(j,db),4)}, {vr(tf(q),4)}, {vr(a,4)}")
    b(f"  s_mov_b32 s{S_POFF}, 0")
    b(f"  s_mov_b32 s{S_DELTA}, {4*STAGE}")
    b(f"  s_mov_b32 s{S_IT}, {NS//4 - 1}")
    after_setup()
    for j in range(PRS - 1): pload(j)
    if after_prologue: after_prologue()
    b("  s_barrier")
    for q in range(DQ):
        rd(q, q // 8, q % 8, 0); rd(q, q // 8, q % 8, 1)
    b.label(f"{pre}_loop")
    SPREAD = "spread" in OPT
    def pload1(j, db):
        b(f"  buffer_load_dwordx4 {vr(pr(j,db),4)}, v{V_P}, s[{SRD_P}:{SRD_P+3}], s{S_POFF} offen offset:{(j%2)*2048+db*256}{LF}")
    if SPREAD: b(f"  s_waitcnt vmcnt({2*(PRS-2)})")
    for q in range(FPI):
        j, nb = q // 8, q % 8
        qn = q + DQ
        if not SPREAD:
            if nb == 0: b(f"  s_waitcnt vmcnt({2*(PRS-2)})")
            if qn % 16 == 0: b("  s_barrier")
            if qn == FPI:
                for i in range(8): b(f"  v_add_u32 v{V_T16+i}, s{S_DELTA}, v{V_T16+i}")
                b(f"  s_sub_u32 s{S_DELTA}, 0, s{S_DELTA}")
            if q % 2 == 0: b(f"  s_waitcnt lgkmcnt({(1 if 'halfrd' in OPT else 2)*(DQ-2)})")
            mf(q, j, nb, 0)
            rd(qn, (qn % FPI) // 8, qn % 8, 0)
            mf(q, j, nb, 1)
            rd(qn, (qn % FPI) // 8, qn % 8, 1)
            if nb == 0: pload(j + PRS - 1)
            continue
        if qn % 16 == 0: b("  s_barrier")
        if q % 2 == 0: b(f"  s_waitcnt lgkmcnt({2*(DQ-2)})")
        if qn >= FPI and qn - FPI < 8: b(f"  v_add_u32 v{V_T16+qn-FPI}, s{S_DELTA}, v{V_T16+qn-FPI}")
        mf(q, j, nb, 0)
        rd(qn, (qn % FPI) // 8, qn % 8, 0)
        if nb == 0: pload1(j + PRS - 1, 0)
        if nb == 1: pload1(j + PRS - 1, 1)
        if nb == 2 and (j + PRS - 1) % 2 == 1: b(f"  s_add_u32 s{S_POFF}, s{S_POFF}, 4096")
        if nb == 7 and j < KPI - 1: b(f"  s_waitcnt vmcnt({2*(PRS-2)})")
        mf(q, j, nb, 1)
        rd(qn, (qn % FPI) // 8, qn % 8, 1)
    if SPREAD:
        b(f"  v_add_u32 v{V_T16+7}, s{S_DELTA}, v{V_T16+7}")
        b(f"  s_sub_u32 s{S_DELTA}, 0, s{S_DELTA}")
    b(f"  s_sub_u32 s{S_IT}, s{S_IT}, 1")
    b(f"  s_cmp_lg_u32 s{S_IT}, 0")
    b(f"  s_cbranch_scc1 {pre}_loop")
    F = [(q // 8, q % 8) for q in range(16)] + [(2 + r % 6, r // 6) for r in range(48)]
    for q in range(FPI):
        j, nb = F[q]
        qn = q + DQ
        first_use = (q < 16 and nb == 0) or (16 <= q < 22)
        if q == 0: b(f"  s_waitcnt vmcnt({2*(PRS-2)})")
        elif first_use: b(f"  s_waitcnt vmcnt({min(2*(PRS-2), 2*(KPI-1-j))})")
        if q == 9: b("  s_barrier"); b("  s_barrier")
        if q == 13: b("  s_barrier")
        if q % 2 == 0:
            left = min(DQ - 2, FPI - 2 - q)
            b(f"  s_waitcnt lgkmcnt({2*left})")
        fill = []
        if q >= 22:
            blk, r = (q - 16) // 6 - 1, (q - 16) % 6
            L = posts.get(blk, [])
            r0 = 1 if len(L) > 4 else 2
            if L and r >= r0:
                per = -(-len(L) // (6 - r0))
                fill = L[(r - r0) * per:(r - r0 + 1) * per]
        h = len(fill) // 2
        mf(q, j, nb, 0)
        if qn < FPI: rd(qn, F[qn][0], F[qn][1], 0)
        for line in fill[:h]: b(line)
        mf(q, j, nb, 1)
        if qn < FPI: rd(qn, F[qn][0], F[qn][1], 1)
        for line in fill[h:]: b(line)
        if q == 0: pload(PRS - 1)

def gelu16_lines(nb, CT, t, o, vaddr, sreg=None):
    sreg = S_TMP + 1 if sreg is None else sreg
    a = V_ACC + nb * 8
    L = []
    for h in range(0, 8, 2): L.append(f"  v_pk_mul_f32 {vr(t+h,2)}, {vr(a+h,2)}, {vr(a+h,2)}")
    for h in range(0, 8, 2): L.append(f"  v_pk_fma_f32 {vr(t+h,2)}, {vr(t+h,2)}, {vr(CT+2,2)}, {vr(CT,2)}")
    for h in range(0, 8, 2): L.append(f"  v_pk_mul_f32 {vr(t+h,2)}, {vr(t+h,2)}, {vr(a+h,2)}")
    for r in range(8): L.append(f"  v_exp_f32 v{t+r}, v{t+r}")
    for h in range(0, 8, 2): L.append(f"  v_pk_add_f32 {vr(t+h,2)}, {vr(t+h,2)}, 1.0 op_sel_hi:[1,0]")
    for r in range(8): L.append(f"  v_rcp_f32 v{t+r}, v{t+r}")
    for h in range(0, 8, 2): L.append(f"  v_pk_mul_f32 {vr(t+h,2)}, {vr(a+h,2)}, {vr(t+h,2)}")
    for i in range(4): L.append(f"  v_cvt_pk_bf16_f32 v{o+i}, v{t+2*i}, v{t+2*i+1}")
    L.append(f"  s_mov_b32 s{sreg}, {nb*1024}")
    L.append(f"  s_nop 0")
    L.append(f"  v_permlane16_swap_b32 v{o}, v{o+2}")
    L.append(f"  v_permlane16_swap_b32 v{o+1}, v{o+3}")
    L.append(f"  buffer_store_dwordx4 {vr(o,4)}, v{vaddr}, s[{SRD_O}:{SRD_O+3}], s{sreg} offen{SF}")
    return L

def g1_compute16(b):
    geom16(b)
    b(f"  s_lshl_b32 s{S_TMP}, s61, 2")
    b(f"  s_add_u32 s{S_TMP}, s{S_TMP}, s{S_W}            ; dblk")
    b(f"  s_lshl_b32 s{S_TMP+2}, s{S_TMP}, 17")
    b(f"  v_add_u32 v{V_P}, s{S_TMP+2}, v10")
    b(f"  s_lshl_b32 s{S_TMP+1}, s60, 8       ; f0*2")
    b(f"  v_lshlrev_b32 v11, 3, v9")
    b(f"  v_add_u32 v11, s{S_TMP+1}, v11")
    BV = 192
    for nb in range(8):
        b(f"  buffer_load_dwordx2 {vr(BV+2*nb,2)}, v11, s[{SRD_X}:{SRD_X+3}], 0 offen offset:{32*nb}")
    b(f"  s_mul_i32 s{S_TMP+2}, s{S_TMP}, 229376")
    b(f"  s_lshl_b32 s{S_TMP+1}, s60, 13")
    b(f"  s_add_u32 s{S_TMP+1}, s{S_TMP+1}, s{S_TMP+2}")
    b(f"  v_lshlrev_b32 v12, 4, v7")
    b(f"  v_add_u32 v28, s{S_TMP+1}, v12")
    b(f"  s_waitcnt vmcnt(0)")
    for nb in range(8):
        for db in range(2):
            a = V_ACC + (nb * 2 + db) * 4; bv = BV + 2 * nb
            b(f"  v_lshlrev_b32 v{a}, 16, v{bv}")
            b(f"  v_and_b32 v{a+1}, 0xffff0000, v{bv}")
            b(f"  v_lshlrev_b32 v{a+2}, 16, v{bv+1}")
            b(f"  v_and_b32 v{a+3}, 0xffff0000, v{bv+1}")
    K1 = -2.0 * 0.7978845608028654 * 1.4426950408889634
    K2 = K1 * 0.044715
    CT, GT, GO = 208, 212, 220
    for i, kv in enumerate((K1, K1, K2, K2)): b(f"  v_mov_b32 v{CT+i}, {hex(f2u(kv))}")
    def w3():
        wait(b, 2, 16, "x3c")
        stamp(b, "x3 released")
        stamp(b, "c:g1 start")
    if "hand" in OPT:
        b(f"  s_lshl_b32 s{S_TMP+1}, s{S_W}, 14")
        b(f"  v_lshlrev_b32 v12, 4, v7")
        b(f"  v_add_u32 v26, s{S_TMP+1}, v12           ; hand-over base")
        b(f"  s_lshl_b32 s{S_TMP+1}, s{S_W}, 2")
        b(f"  s_add_u32 s{S_TMP+1}, s{S_TMP+1}, {HAND_CNT}")
        b(f"  v_mov_b32 v27, s{S_TMP+1}")
        b(f"  v_mov_b32 v25, 0")
        b(f"  ds_write_b32 v27, v25")
        b(f"  s_waitcnt lgkmcnt(0)")
        def hand(nb):
            a = V_ACC + nb * 8
            return [f"  ds_write_b128 v26, {vr(a,4)} offset:{nb*2048}", f"  ds_write_b128 v26, {vr(a+4,4)} offset:{nb*2048+1024}",
                    f"  v_mov_b32 v25, {nb+1}", f"  ds_write_b32 v27, v25"]
        posts = {nb: hand(nb) for nb in range(7)}
    elif "g1ns" in OPT:
        posts = {}
    else:
        posts = {nb: gelu16_lines(nb, CT, GT, GO, 28) for nb in range(7)}
    gemm_core16(b, "g1", 32, "g1", w3, None, posts)
    stamp(b, "c:g1 end")
    stamp(b, "g1 main done")
    b(f"  s_nop 7")
    if "g1ns" in OPT:
        for nb in range(0, 8, 2):
            La = gelu16_lines(nb, CT, 128, 144, 28); Lb = gelu16_lines(nb + 1, CT, 136, 148, 28, S_TMP + 2)
            for x, y in zip(La, Lb): b(x); b(y)
    else:
        for line in gelu16_lines(7, CT, GT, GO, 28): b(line)
    stamp(b, "g1 stores issued")
    b(f"  s_waitcnt vmcnt(0)")
    b(f"  s_branch g1_join")

def g2_compute16(b):
    b(f"  s_cmp_eq_u32 s19, 0")
    b(f"  s_cselect_b32 s{S_TMP+3}, 128, 0")
    geom16(b, S_TMP + 3)
    b(f"  s_lshl_b32 s{S_TMP}, s{S_TILE_A}, 2")
    b(f"  s_add_u32 s{S_TMP}, s{S_TMP}, s{S_W}        ; dblk")
    b(f"  s_mul_i32 s{S_TMP+2}, s{S_TMP}, 229376")
    b(f"  s_mul_i32 s{S_TMP+3}, s19, {112*1024}       ; k half")
    b(f"  s_add_u32 s{S_TMP+2}, s{S_TMP+2}, s{S_TMP+3}")
    b(f"  v_add_u32 v{V_P}, s{S_TMP+2}, v10")
    b(f"  s_lshl_b32 s{S_TMP+1}, s{S_TILE_B}, 7")
    b(f"  s_lshl_b32 s{S_TMP+3}, s19, 6")
    b(f"  s_add_u32 s{S_TMP+1}, s{S_TMP+1}, s{S_TMP+3}")
    b(f"  v_add_u32 v11, s{S_TMP+1}, v8              ; s0 + n")
    b(f"  v_lshlrev_b32 v12, 1, v11")
    B2 = 24
    for k in range(4): b(f"  buffer_load_ushort v{B2+k}, v12, s[{SRD_X}:{SRD_X+3}], 0 offen offset:{32*k}")
    b(f"  v_lshlrev_b32 v12, 11, v11")
    b(f"  v_lshl_add_u32 v12, v9, 4, v12             ; + 8g*2")
    b(f"  s_lshl_b32 s{S_TMP+2}, s{S_TMP}, 6")
    b(f"  v_add_u32 v28, s{S_TMP+2}, v12")
    b(f"  v_lshlrev_b32 v12, 4, v7")
    b(f"  s_lshl_b32 s{S_TMP+1}, s{S_W}, 12")
    b(f"  s_lshl_b32 s{S_TMP+2}, s2, 14")
    b(f"  s_add_u32 s{S_TMP+2}, s{S_TMP+2}, s{S_TMP+1}")
    b(f"  v_add_u32 v29, s{S_TMP+2}, v12")
    b(f"  s_xor_b32 s{S_TMP+2}, s2, 1")
    b(f"  s_lshl_b32 s{S_TMP+2}, s{S_TMP+2}, 14")
    b(f"  s_add_u32 s{S_TMP+2}, s{S_TMP+2}, s{S_TMP+1}")
    b(f"  v_add_u32 v30, s{S_TMP+2}, v12")
    for i in range(64): b(f"  v_mov_b32 v{V_ACC+i}, 0")
    HV = 192
    def w4():
        b(f"  s_lshl_b32 s18, s{S_TILE_A}, 1")
        b(f"  s_add_u32 s18, s18, s19")
        wait(b, 3, 14, "x4c", single_sreg=18)
        stamp(b, "x4 released")
        stamp(b, "c:g2 start")
    def hloads():
        for k in range(4):
            b(f"  s_mov_b32 s{S_TMP+1}, {k*16*2048}")
            b(f"  buffer_load_dwordx4 {vr(HV+4*k,4)}, v28, s[{SRD_Y}:{SRD_Y+3}], s{S_TMP+1} offen{LF}")
    def send_lines(k):
        T0 = 208 + 4 * k; a = V_ACC + 8 * k
        L = [f"  v_cvt_pk_bf16_f32 v{T0+i}, v{a+2*i}, v{a+2*i+1}" for i in range(4)]
        L += [f"  v_min_u32 v{T0+i}, 0xfffffffe, v{T0+i}" for i in range(4)]
        L += [f"  s_nop 0", f"  buffer_store_dwordx4 {vr(T0,4)}, v30, s[{SRD_X}:{SRD_X+3}], 0 offen offset:{k*1024}{SF}"]
        return L
    b(f"  s_waitcnt vmcnt(0)")
    srd(b, SRD_X, P_WS, 4 << 20, WS_XCH)
    gemm_core16(b, "g2", 28, "g2", w4, hloads, {k: send_lines(k) for k in range(4)})
    stamp(b, "c:g2 end")
    stamp(b, "g2 main done")
    RX, T, KEEP = 128, 96, V_ACC + 32
    b(f"  s_mov_b32 s11, 200000")
    b.label("g2x_poll")
    for k in range(4):
        b(f"  buffer_load_dwordx4 {vr(RX+4*k,4)}, v29, s[{SRD_X}:{SRD_X+3}], 0 offen offset:{k*1024} sc1")
    b(f"  s_waitcnt vmcnt(0)")
    b(f"  v_max3_u32 v12, v{RX}, v{RX+1}, v{RX+2}")
    b(f"  v_max3_u32 v13, v{RX+3}, v{RX+4}, v{RX+5}")
    b(f"  v_max3_u32 v12, v12, v{RX+6}, v{RX+7}")
    for i in range(8, 16, 2): b(f"  v_max3_u32 v13, v13, v{RX+i}, v{RX+i+1}")
    b(f"  v_max_u32 v12, v12, v13")
    b(f"  v_cmp_eq_u32 vcc, -1, v12")
    b(f"  s_sub_u32 s11, s11, 1")
    b(f"  s_cmp_eq_u32 s11, 0")
    b(f"  s_cbranch_scc1 g2x_got")
    b(f"  s_cmp_lg_u64 vcc, 0")
    b(f"  s_cbranch_scc1 g2x_poll")
    b.label("g2x_got")
    stamp(b, "g2 x landed")
    b(f"  s_mov_b32 s{S_TMP}, 0xffff0000")
    OS = 4 * STAGE
    b(f"  v_mul_u32_u24 v14, 272, v8           ; n * 272")
    b(f"  v_lshl_add_u32 v14, v9, 4, v14       ; + g*16")
    b(f"  s_lshl_b32 s{S_TMP+1}, s{S_W}, 6")
    b(f"  s_add_u32 s{S_TMP+1}, s{S_TMP+1}, {OS}")
    b(f"  v_add_u32 v14, s{S_TMP+1}, v14")
    for k in range(4):
        b(f"  v_lshlrev_b32 v{B2+k}, 16, v{B2+k}")
    for k in range(4):
        o = T + 16 + 4 * k
        for i in range(4):
            a = KEEP + 8 * k + 2 * i; r = RX + 4 * k + i; hv = HV + 4 * k + i; t0 = T + 4 * (i % 2)
            b(f"  v_lshlrev_b32 v{t0}, 16, v{r}")
            b(f"  v_and_b32 v{t0+1}, s{S_TMP}, v{r}")
            b(f"  v_lshlrev_b32 v{t0+2}, 16, v{hv}")
            b(f"  v_and_b32 v{t0+3}, s{S_TMP}, v{hv}")
            b(f"  v_pk_add_f32 {vr(t0,2)}, {vr(t0,2)}, {vr(a,2)}")
            b(f"  v_pk_add_f32 {vr(t0,2)}, {vr(t0,2)}, {vr(t0+2,2)}")
            b(f"  v_add_f32 v{t0}, v{t0}, v{B2+k}")
            b(f"  v_add_f32 v{t0+1}, v{t0+1}, v{B2+k}")
            b(f"  v_cvt_pk_bf16_f32 v{o+i}, v{t0}, v{t0+1}")
        b(f"  ds_write_b128 v14, {vr(o,4)} offset:{k*16*272}")
    b(f"  v_lshrrev_b32 v15, 4, v7")
    b(f"  s_lshl_b32 s{S_TMP+1}, s{S_W}, 4")
    b(f"  v_add_u32 v15, s{S_TMP+1}, v15")
    b(f"  v_and_b32 v12, 15, v7")
    b(f"  v_mul_u32_u24 v14, 272, v15")
    b(f"  v_lshl_add_u32 v14, v12, 4, v14")
    b(f"  v_add_u32 v14, {OS}, v14")
    b(f"  s_lshl_b32 s{S_TMP+1}, s{S_TILE_B}, 7")
    b(f"  s_lshl_b32 s{S_TMP+2}, s19, 6")
    b(f"  s_add_u32 s{S_TMP+1}, s{S_TMP+1}, s{S_TMP+2}")
    b(f"  v_add_u32 v15, s{S_TMP+1}, v15")
    b(f"  v_lshlrev_b32 v15, 11, v15")
    b(f"  v_lshl_add_u32 v15, v12, 4, v15")
    b(f"  s_lshl_b32 s{S_TMP+1}, s{S_TILE_A}, 8")
    b(f"  v_add_u32 v15, s{S_TMP+1}, v15")
    b(f"  s_waitcnt lgkmcnt(0)")
    b(f"  s_barrier")
    for i in range(4): b(f"  ds_read_b128 {vr(T+4*i,4)}, v14 offset:{i*4*272}")
    for i in range(4):
        b(f"  s_waitcnt lgkmcnt({3-i})")
        b(f"  s_mov_b32 s{S_TMP+1}, {i*4*2048}")
        b(f"  buffer_store_dwordx4 {vr(T+4*i,4)}, v15, s[{SRD_O}:{SRD_O+3}], s{S_TMP+1} offen{OF()}")
    stamp(b, "g2 stores issued")
    b(f"  s_branch g2_done")

def idle_w1(b):
    srd(b, SRD_PF, P_W1, W1B)
    b(f"  s_and_b32 s51, s50, 7")
    b(f"  s_mul_i32 s51, s51, {256*7168}")
    b(f"  s_lshr_b32 s52, s50, 3")
    b(f"  s_mul_i32 s52, s52, {4*7168}")
    b(f"  s_add_u32 s51, s51, s52")
    b(f"  s_add_u32 s51, s51, {128*7168}")
    b(f"  s_mov_b32 s52, 7")
    b.label("pf_w1b")
    for i in range(4): b(f"  buffer_load_dwordx4 {vr(V_DUMMY,4)}, v29, s[{SRD_PF}:{SRD_PF+3}], s51 offen offset:{1024*i}")
    b(f"  s_add_u32 s51, s51, 4096")
    b(f"  s_waitcnt vmcnt(4)")
    b(f"  s_sub_u32 s52, s52, 1")
    b(f"  s_cmp_lg_u32 s52, 0")
    b(f"  s_cbranch_scc1 pf_w1b")

def idle_w2(b):
    srd(b, SRD_PF, P_W2, W1B)
    if "idleko" in OPT and "idlesc" in OPT:
        b(f"  v_lshlrev_b32 v29, 7, v7")
        for m in range(IDLE_ROUNDS[0]):
            b(f"  s_add_u32 s51, s50, {256*m}")
            b(f"  s_lshr_b32 s52, s51, 5              ; chunk")
            b(f"  s_and_b32 s51, s51, 31")
            b(f"  s_lshl_b32 s51, s51, 13")
            b(f"  s_and_b32 s53, s52, 1")
            b(f"  s_mul_i32 s53, s53, {1792*4096}")
            b(f"  s_lshr_b32 s52, s52, 1")
            b(f"  s_lshl_b32 s52, s52, 18")
            b(f"  s_add_u32 s51, s51, s52")
            b(f"  s_add_u32 s51, s51, s53")
            b(f"  buffer_load_dword v230, v29, s[{SRD_PF}:{SRD_PF+3}], s51 offen")
            if m >= 1: b(f"  s_waitcnt vmcnt(1)")
        b(f"  s_waitcnt vmcnt(0)")
        return
    if "idleko" in OPT:
        b(f"  v_lshlrev_b32 v29, 4, v7")
        b(f"  s_lshl_b32 s51, s50, 10")
        b(f"  s_add_u32 s53, s51, {1792*4096}")
        b(f"  s_mov_b32 s52, 14")
        b.label("pf_w2")
        for i in range(2):
            b(f"  buffer_load_dwordx4 {vr(V_DUMMY,4)}, v29, s[{SRD_PF}:{SRD_PF+3}], s51 offen")
            b(f"  buffer_load_dwordx4 {vr(V_DUMMY,4)}, v29, s[{SRD_PF}:{SRD_PF+3}], s53 offen")
            b(f"  s_add_u32 s51, s51, {64*4096}")
            b(f"  s_add_u32 s53, s53, {64*4096}")
        b(f"  s_waitcnt vmcnt(4)")
        b(f"  s_sub_u32 s52, s52, 1")
        b(f"  s_cmp_lg_u32 s52, 0")
        b(f"  s_cbranch_scc1 pf_w2")
        b(f"  s_waitcnt vmcnt(0)")
        return
    if "idlesc" in OPT:
        b(f"  s_mul_i32 s51, s50, {W1B // 256}")
        b(f"  v_lshlrev_b32 v29, 7, v7")
        for i in range(7):
            b(f"  buffer_load_dword v230, v29, s[{SRD_PF}:{SRD_PF+3}], s51 offen")
            b(f"  s_add_u32 s51, s51, 8192")
            if i >= 1: b(f"  s_waitcnt vmcnt(1)")
        b(f"  s_waitcnt vmcnt(0)")
        return
    b(f"  s_mul_i32 s51, s50, {W1B // 256}")
    b(f"  s_mov_b32 s52, 14")
    b.label("pf_w2")
    for i in range(4): b(f"  buffer_load_dwordx4 {vr(V_DUMMY,4)}, v29, s[{SRD_PF}:{SRD_PF+3}], s51 offen offset:{1024*i}")
    b(f"  s_add_u32 s51, s51, 4096")
    b(f"  s_waitcnt vmcnt({0 if 'idlepace' in OPT else 4})")
    b(f"  s_sub_u32 s52, s52, 1")
    b(f"  s_cmp_lg_u32 s52, 0")
    b(f"  s_cbranch_scc1 pf_w2")
    b(f"  s_waitcnt vmcnt(0)")

def g1_gelu(b, c, blocks, accof, vaddr):
    K1 = -2.0 * 0.7978845608028654 * 1.4426950408889634
    K2 = K1 * 0.044715
    T = c.VPR
    b(f"  v_mov_b32 v{T}, {hex(f2u(K1))}")
    b(f"  v_mov_b32 v{T+1}, {hex(f2u(K1))}")
    b(f"  v_mov_b32 v{T+2}, {hex(f2u(K2))}")
    b(f"  v_mov_b32 v{T+3}, {hex(f2u(K2))}")
    b(f"  s_nop 7")
    W = T + 8
    for fb in blocks:
        a = accof(fb); t = W; o = W + 16 + 8 * (fb % 2)
        for h in range(0, 16, 2): b(f"  v_pk_mul_f32 {vr(t+h,2)}, {vr(a+h,2)}, {vr(a+h,2)}")
        for h in range(0, 16, 2): b(f"  v_pk_fma_f32 {vr(t+h,2)}, {vr(t+h,2)}, {vr(T+2,2)}, {vr(T,2)}")
        for h in range(0, 16, 2): b(f"  v_pk_mul_f32 {vr(t+h,2)}, {vr(t+h,2)}, {vr(a+h,2)}")
        for r in range(16): b(f"  v_exp_f32 v{t+r}, v{t+r}")
        for h in range(0, 16, 2): b(f"  v_pk_add_f32 {vr(t+h,2)}, {vr(t+h,2)}, 1.0 op_sel_hi:[1,0]")
        for r in range(16): b(f"  v_rcp_f32 v{t+r}, v{t+r}")
        for h in range(0, 16, 2): b(f"  v_pk_mul_f32 {vr(t+h,2)}, {vr(a+h,2)}, {vr(t+h,2)}")
        for i in range(4):
            b(f"  v_cvt_pk_bf16_f32 v{o+2*i}, v{t+4*i}, v{t+4*i+1}")
            b(f"  v_cvt_pk_bf16_f32 v{o+2*i+1}, v{t+4*i+2}, v{t+4*i+3}")
        for ip in range(2):
            oo = o + 4 * ip
            b(f"  s_mov_b32 s{S_TMP+1}, {(2*fb+ip)*1024}")
            b(f"  s_nop 0")
            b(f"  v_permlane32_swap_b32 v{oo}, v{oo+2}")
            b(f"  v_permlane32_swap_b32 v{oo+1}, v{oo+3}")
            b(f"  buffer_store_dwordx4 {vr(oo,4)}, v{vaddr}, s[{SRD_O}:{SRD_O+3}], s{S_TMP+1} offen{SF}")

def gelu_lines(fb, a, CT, t, o, vaddr):
    L = []
    for h in range(0, 16, 2): L.append(f"  v_pk_mul_f32 {vr(t+h,2)}, {vr(a+h,2)}, {vr(a+h,2)}")
    for h in range(0, 16, 2): L.append(f"  v_pk_fma_f32 {vr(t+h,2)}, {vr(t+h,2)}, {vr(CT+2,2)}, {vr(CT,2)}")
    for h in range(0, 16, 2): L.append(f"  v_pk_mul_f32 {vr(t+h,2)}, {vr(t+h,2)}, {vr(a+h,2)}")
    for r in range(16): L.append(f"  v_exp_f32 v{t+r}, v{t+r}")
    for h in range(0, 16, 2): L.append(f"  v_pk_add_f32 {vr(t+h,2)}, {vr(t+h,2)}, 1.0 op_sel_hi:[1,0]")
    for r in range(16): L.append(f"  v_rcp_f32 v{t+r}, v{t+r}")
    for h in range(0, 16, 2): L.append(f"  v_pk_mul_f32 {vr(t+h,2)}, {vr(a+h,2)}, {vr(t+h,2)}")
    for i in range(4):
        L.append(f"  v_cvt_pk_bf16_f32 v{o+2*i}, v{t+4*i}, v{t+4*i+1}")
        L.append(f"  v_cvt_pk_bf16_f32 v{o+2*i+1}, v{t+4*i+2}, v{t+4*i+3}")
    if "es" in OPT:
        for i in range(8): L.append(f"  v_min_u32 v{o+i}, 0xfffffffe, v{o+i}")
    for ip in range(2):
        oo = o + 4 * ip
        L.append(f"  s_mov_b32 s{S_TMP+1}, {(2*fb+ip)*1024}")
        L.append(f"  s_nop 1")
        L.append(f"  v_permlane32_swap_b32 v{oo}, v{oo+2}")
        L.append(f"  v_permlane32_swap_b32 v{oo+1}, v{oo+3}")
        L.append(f"  buffer_store_dwordx4 {vr(oo,4)}, v{vaddr}, s[{SRD_O}:{SRD_O+3}], s{S_TMP+1} offen{SF}")
    return L

def g1(b):
    c = g1_cfg()
    b(f"  s_cmp_eq_u32 s62, 0")
    b(f"  s_cbranch_scc1 g1_inactive")
    srd(b, SRD_P, P_WS, 4 << 20, WS_LN2)
    srd(b, SRD_T, P_W1, W1B)
    srd(b, SRD_O, P_WS, U_BYTES, WS_U)
    srd(b, SRD_X, P_B1, 3584 * 2)
    b(f"  s_cmp_ge_u32 s{S_W}, 4")
    b(f"  s_cbranch_scc1 g1_loader")
    if M16G1():
        g1_compute16(b)
    else:
        g1_compute32(b, c)
    g1_rest(b, c)

def g1_compute32(b, c):
    lane_geom(b)
    b(f"  s_lshl_b32 s{S_TMP}, s61, 2")
    b(f"  s_add_u32 s{S_TMP}, s{S_TMP}, s{S_W}            ; dblk")
    b(f"  s_lshl_b32 s{S_TMP+2}, s{S_TMP}, 17")
    b(f"  v_lshlrev_b32 v10, 4, v7")
    b(f"  v_add_u32 v{V_P}, s{S_TMP+2}, v10")
    b(f"  s_lshl_b32 s{S_TMP+1}, s60, 8       ; f0*2")
    b(f"  v_lshlrev_b32 v11, 3, v9")
    b(f"  v_add_u32 v11, s{S_TMP+1}, v11")
    BV = 192
    for fb in range(4):
        for i in range(4):
            b(f"  buffer_load_dwordx2 {vr(BV+2*(4*fb+i),2)}, v11, s[{SRD_X}:{SRD_X+3}], 0 offen offset:{64*fb+16*i}")
    b(f"  v_lshl_add_u32 v20, v9, 3, v18")
    b(f"  v_lshlrev_b32 v20, 8, v20")
    b(f"  v_lshl_add_u32 v20, v18, 6, v20")
    b(f"  v_lshl_add_u32 v20, v19, 5, v20")
    b(f"  v_lshl_add_u32 v{V_T}, v22, 3, v20")
    for fb in range(1, 4):
        b(f"  v_xor_b32 v{V_T+fb}, {64*fb}, v{V_T}")
    b(f"  s_mul_i32 s{S_TMP+2}, s{S_TMP}, 229376")
    b(f"  s_lshl_b32 s{S_TMP+1}, s60, 13")
    b(f"  s_add_u32 s{S_TMP+1}, s{S_TMP+1}, s{S_TMP+2}")
    b(f"  v_add_u32 v28, s{S_TMP+1}, v10")
    b(f"  s_waitcnt vmcnt(0)")
    for fb in range(4):
        for i in range(4):
            bv = BV + 2 * (4 * fb + i); a = V_ACC + fb * 16 + 4 * i
            b(f"  v_lshlrev_b32 v{a}, 16, v{bv}")
            b(f"  v_and_b32 v{a+1}, 0xffff0000, v{bv}")
            b(f"  v_lshlrev_b32 v{a+2}, 16, v{bv+1}")
            b(f"  v_and_b32 v{a+3}, 0xffff0000, v{bv+1}")
    def w3():
        wait(b, 2, 16, "x3c")
        stamp(b, "x3 released")
        stamp(b, "c:g1 start")
    SKEW = "skew" in OPT
    if SKEW:
        K1 = -2.0 * 0.7978845608028654 * 1.4426950408889634
        K2 = K1 * 0.044715
        CT, GT, GO = 192, 196, 212
        for i, kv in enumerate((K1, K1, K2, K2)): b(f"  v_mov_b32 v{CT+i}, {hex(f2u(kv))}")
        posts = {fb: gelu_lines(fb, V_ACC + 16 * fb, CT, GT, GO, 28) for fb in range(3)}
        gemm_core(b, c, "g1", w3, None, posts)
    else:
        gemm_core(b, c, "g1", w3)
    stamp(b, "c:g1 end")
    stamp(b, "g1 main done")
    E8 = "epi8" in OPT
    XO = 4 * STAGE
    if E8:
        b(f"  s_lshl_b32 s{S_TMP+1}, s{S_W}, 13")
        b(f"  s_add_u32 s{S_TMP+1}, s{S_TMP+1}, {XO}")
        b(f"  v_add_u32 v12, s{S_TMP+1}, v10")
        b(f"  s_nop 9")
        for k in range(8): b(f"  ds_write_b128 v12, {vr(V_ACC+32+4*k,4)} offset:{1024*k}")
        b(f"  s_waitcnt lgkmcnt(0)")
        b(f"  s_barrier")
    if SKEW:
        b(f"  s_nop 9")
        for line in gelu_lines(3, V_ACC + 48, CT, GT, GO, 28): b(line)
    else:
        g1_gelu(b, c, range(2) if E8 else range(4), lambda fb: V_ACC + fb * 16, 28)
    stamp(b, "g1 stores issued")
    b(f"  s_waitcnt vmcnt(0)")
    b(f"  s_branch g1_join")
def g1_rest(b, c):
    b.label("g1_loader")
    b(f"  s_sub_u32 s50, s{S_W}, 4")
    b(f"  s_lshl_b32 s49, s50, 10")
    b(f"  s_add_u32 s{S_N+1}, s49, {R*STAGE}")
    b(f"  s_barrier                      ; matches the barrier inside wait(x3)")
    loader_loop(b, c.NS, "g1", W1F())
    stamp(b, "g1 main done")
    if "hand" in OPT and M16G1():
        b(f"  s_sub_u32 s{S_TMP}, s{S_W}, 4")
        b(f"  s_lshl_b32 s{S_TMP+1}, s{S_TMP}, 14")
        b(f"  v_lshlrev_b32 v12, 4, v7")
        b(f"  v_add_u32 v26, s{S_TMP+1}, v12")
        b(f"  s_lshl_b32 s{S_TMP+1}, s{S_TMP}, 2")
        b(f"  s_add_u32 s{S_TMP+1}, s{S_TMP+1}, {HAND_CNT}")
        b(f"  v_mov_b32 v27, s{S_TMP+1}")
        b(f"  s_lshl_b32 s{S_TMP+1}, s61, 2")
        b(f"  s_add_u32 s{S_TMP}, s{S_TMP}, s{S_TMP+1}      ; dblk")
        b(f"  s_mul_i32 s{S_TMP+2}, s{S_TMP}, 229376")
        b(f"  s_lshl_b32 s{S_TMP+1}, s60, 13")
        b(f"  s_add_u32 s{S_TMP+1}, s{S_TMP+1}, s{S_TMP+2}")
        b(f"  v_add_u32 v28, s{S_TMP+1}, v12")
        K1 = -2.0 * 0.7978845608028654 * 1.4426950408889634
        K2 = K1 * 0.044715
        CT, GT, GO = 208, 212, 220
        for i, kv in enumerate((K1, K1, K2, K2)): b(f"  v_mov_b32 v{CT+i}, {hex(f2u(kv))}")
        for nb in range(7):
            b(f"  s_mov_b32 s11, 400000")
            b.label(f"g1h_{nb}")
            b(f"  ds_read_b32 v25, v27")
            b(f"  s_waitcnt lgkmcnt(0)")
            b(f"  v_readfirstlane_b32 s10, v25")
            b(f"  s_sub_u32 s11, s11, 1")
            b(f"  s_cmp_eq_u32 s11, 0")
            b(f"  s_cbranch_scc1 g1h_{nb}_go")
            b(f"  s_cmp_le_u32 s10, {nb}")
            b(f"  s_cbranch_scc1 g1h_{nb}")
            b.label(f"g1h_{nb}_go")
            a = V_ACC + nb * 8
            b(f"  ds_read_b128 {vr(a,4)}, v26 offset:{nb*2048}")
            b(f"  ds_read_b128 {vr(a+4,4)}, v26 offset:{nb*2048+1024}")
            b(f"  s_waitcnt lgkmcnt(0)")
            for line in gelu16_lines(nb, CT, GT, GO, 28): b(line)
    if "hand" in OPT and M16G1():
        b(f"  s_waitcnt vmcnt(0)")
    else:
        g2_prologue_loader(b)
    if "epi8" in OPT:
        b(f"  s_sub_u32 s{S_TMP}, s{S_W}, 4")
        b(f"  s_lshl_b32 s{S_TMP+1}, s{S_TMP}, 13")
        b(f"  s_add_u32 s{S_TMP+1}, s{S_TMP+1}, {4*STAGE}")
        b(f"  v_lshlrev_b32 v10, 4, v7")
        b(f"  v_add_u32 v12, s{S_TMP+1}, v10")
        b(f"  s_lshl_b32 s{S_TMP+1}, s61, 2")
        b(f"  s_add_u32 s{S_TMP}, s{S_TMP}, s{S_TMP+1}      ; dblk")
        b(f"  s_mul_i32 s{S_TMP+2}, s{S_TMP}, 229376")
        b(f"  s_lshl_b32 s{S_TMP+1}, s60, 13")
        b(f"  s_add_u32 s{S_TMP+1}, s{S_TMP+1}, s{S_TMP+2}")
        b(f"  v_add_u32 v28, s{S_TMP+1}, v10")
        b(f"  s_barrier")
        for k in range(8): b(f"  ds_read_b128 {vr(V_ACC+4*k,4)}, v12 offset:{1024*k}")
        b(f"  s_waitcnt lgkmcnt(0)")
        g1_gelu(b, c, range(2, 4), lambda fb: V_ACC + (fb - 2) * 16, 28)
        b(f"  s_waitcnt vmcnt(0)")
    stamp(b, "g1 stores issued")
    b.label("g1_join")
    if SK():
        b(f"  s_cmp_ge_u32 s60, 14")
        b(f"  s_cselect_b32 s18, 1, 0")
        b(f"  s_lshl_b32 s10, s61, 1")
        b(f"  s_add_u32 s18, s18, s10")
        arrive(b, 3, 18, label="x4", drained=True)
    else:
        arrive(b, 3, 61, label="x4", drained=True)
    if "hand" in OPT and M16G1():
        b(f"  s_cmp_lt_u32 s{S_W}, 4")
        b(f"  s_cbranch_scc1 g2_start")
        g2_prologue_loader(b)
    b(f"  s_branch g2_start")
    b.label("g1_inactive")
    if "nopf" not in OPT:
        b(f"  s_sub_u32 s50, s2, 224")
        b(f"  s_lshl_b32 s50, s50, 3")
        b(f"  s_add_u32 s50, s50, s{S_W}")
        b(f"  v_lshlrev_b32 v29, 4, v7")
        if "noidle" not in OPT: idle_w2(b)
    if "es" in OPT: wait(b, 2, 16, "x3i")
    b(f"  s_cmp_lt_u32 s{S_W}, 4")
    b(f"  s_cbranch_scc1 g2_start_inactive")
    g2_prologue_loader(b)
    b.label("g2_start_inactive")
    return c

def g2_prologue_loader(b):
    g2_ids(b)
    srd(b, SRD_T, P_W2, W1B)
    g2_loader_addr(b)
    loader_init(b, (64 if SK() else 128) * 4096)
    for n in range(2): loader_issue(b, V_LO, W2F())

def g2_sk(b):
    c = g1_cfg(); c.name = "g2"; c.NS = 28
    b.label("g2_start")
    g2_ids(b)
    srd(b, SRD_P, P_WS, U_BYTES, WS_U)
    srd(b, SRD_O, P_OUT, 4 << 20)
    srd(b, SRD_X, P_B2, 2048 * 2)
    srd(b, SRD_Y, P_WS, 4 << 20, WS_H)
    b(f"  s_cmp_ge_u32 s{S_W}, 4")
    b(f"  s_cbranch_scc1 g2_loader")
    if M16G2():
        g2_compute16(b)
        b.label("g2_loader")
        b(f"  s_barrier                      ; matches the barrier inside wait(x4)")
        loader_loop(b, c.NS, "g2", W2F())
        b.label("g2_done")
        return
    lane_geom(b)
    b(f"  s_lshl_b32 s{S_TMP}, s{S_TILE_A}, 2")
    b(f"  s_add_u32 s{S_TMP}, s{S_TMP}, s{S_W}        ; dblk")
    b(f"  s_mul_i32 s{S_TMP+2}, s{S_TMP}, 229376")
    b(f"  s_mul_i32 s{S_TMP+3}, s19, {112*1024}       ; k half")
    b(f"  s_add_u32 s{S_TMP+2}, s{S_TMP+2}, s{S_TMP+3}")
    b(f"  v_lshlrev_b32 v10, 4, v7")
    b(f"  v_add_u32 v{V_P}, s{S_TMP+2}, v10")
    b(f"  s_lshl_b32 s{S_TMP+1}, s{S_TILE_B}, 7")
    b(f"  s_lshl_b32 s{S_TMP+3}, s19, 6")
    b(f"  s_add_u32 s{S_TMP+1}, s{S_TMP+1}, s{S_TMP+3}")
    b(f"  v_add_u32 v11, s{S_TMP+1}, v8              ; s0 + s'")
    b(f"  v_lshlrev_b32 v16, 1, v11")
    for sb in range(2):
        b(f"  buffer_load_ushort v{12+sb}, v16, s[{SRD_X}:{SRD_X+3}], 0 offen offset:{64*sb}")
    b(f"  v_lshlrev_b32 v17, 11, v11")
    b(f"  v_lshl_add_u32 v17, v9, 5, v17")
    b(f"  s_lshl_b32 s{S_TMP+2}, s{S_TMP}, 6")
    b(f"  v_add_u32 v28, s{S_TMP+2}, v17")
    HV = 192
    b(f"  v_lshl_add_u32 v20, v9, 3, v18")
    b(f"  v_lshlrev_b32 v20, 8, v20")
    b(f"  v_lshl_add_u32 v20, v18, 6, v20")
    b(f"  v_lshl_add_u32 v20, v19, 5, v20")
    b(f"  v_lshl_add_u32 v{V_T}, v22, 3, v20")
    b(f"  s_cmp_eq_u32 s19, 0")
    b(f"  s_cselect_b32 s{S_TMP+3}, 128, 0")
    b(f"  v_xor_b32 v{V_T}, s{S_TMP+3}, v{V_T}")
    for fb in range(1, 4):
        b(f"  v_xor_b32 v{V_T+fb}, {64*fb}, v{V_T}")
    b(f"  s_lshl_b32 s{S_TMP+1}, s{S_W}, 12")
    b(f"  s_lshl_b32 s{S_TMP+2}, s2, 14")
    b(f"  s_add_u32 s{S_TMP+2}, s{S_TMP+2}, s{S_TMP+1}")
    b(f"  v_add_u32 v29, s{S_TMP+2}, v10")
    b(f"  s_xor_b32 s{S_TMP+2}, s2, 1")
    b(f"  s_lshl_b32 s{S_TMP+2}, s{S_TMP+2}, 14")
    b(f"  s_add_u32 s{S_TMP+2}, s{S_TMP+2}, s{S_TMP+1}")
    b(f"  v_add_u32 v30, s{S_TMP+2}, v10")
    for i in range(64): b(f"  v_mov_b32 v{V_ACC+i}, 0")
    def w4():
        b(f"  s_lshl_b32 s18, s{S_TILE_A}, 1")
        b(f"  s_add_u32 s18, s18, s19")
        wait(b, 3, 14, "x4c", single_sreg=18)
        stamp(b, "x4 released")
        stamp(b, "c:g2 start")
    def hloads():
        for sb in range(2):
            b(f"  s_mov_b32 s{S_TMP+1}, {sb*65536}")
            b(f"  buffer_load_dwordx4 {vr(HV+8*sb,4)}, v28, s[{SRD_Y}:{SRD_Y+3}], s{S_TMP+1} offen{LF}")
            b(f"  buffer_load_dwordx4 {vr(HV+8*sb+4,4)}, v28, s[{SRD_Y}:{SRD_Y+3}], s{S_TMP+1} offen offset:16{LF}")
    srd_later = True
    def send_lines(k):
        T0 = 208 + 8 * k; a = V_ACC + 16 * k
        L = [f"  v_cvt_pk_bf16_f32 v{T0+i}, v{a+2*i}, v{a+2*i+1}" for i in range(8)]
        L += [f"  v_min_u32 v{T0+i}, 0xfffffffe, v{T0+i}" for i in range(8)]
        L += [f"  buffer_store_dwordx4 {vr(T0+4*p,4)}, v30, s[{SRD_X}:{SRD_X+3}], 0 offen offset:{(2*k+p)*1024}{SF}" for p in range(2)]
        return L
    def hloads2():
        hloads()
    if "skew" in OPT:
        def w4x():
            w4()
        def hl():
            hloads()
        b(f"  s_waitcnt vmcnt(0)")
        srd(b, SRD_X, P_WS, 4 << 20, WS_XCH)
        gemm_core(b, c, "g2", w4, hloads, {0: send_lines(0), 1: send_lines(1)})
    else:
        gemm_core(b, c, "g2", w4, hloads)
    stamp(b, "c:g2 end")
    stamp(b, "g2 main done")
    T = c.VT
    if "skew" not in OPT:
        srd(b, SRD_X, P_WS, 4 << 20, WS_XCH)
        b(f"  s_nop 9")
        for k in range(2):
            for line in send_lines(k): b(line)
    KEEP = V_ACC + 32
    RX = c.VPR
    b(f"  s_mov_b32 s11, 200000")
    b.label("g2x_poll")
    for k in range(4):
        b(f"  buffer_load_dwordx4 {vr(RX+4*k,4)}, v29, s[{SRD_X}:{SRD_X+3}], 0 offen offset:{k*1024} sc1")
    b(f"  s_waitcnt vmcnt(0)")
    sentinel_check(b, RX, "g2x", n=16)
    stamp(b, "g2 x landed")
    b(f"  s_mov_b32 s{S_TMP}, 0xffff0000")
    for blk in range(2):
        for i in range(8):
            a = KEEP + blk * 16 + 2 * i; r = RX + 8 * blk + i
            b(f"  v_lshlrev_b32 v16, 16, v{r}")
            b(f"  v_and_b32 v17, s{S_TMP}, v{r}")
            b(f"  v_add_f32 v{a}, v{a}, v16")
            b(f"  v_add_f32 v{a+1}, v{a+1}, v17")
    for sb in range(2):
        b(f"  v_lshlrev_b32 v{12+sb}, 16, v{12+sb}")
    OL = "outlds" in OPT
    if OL:
        OS = 4 * STAGE
        b(f"  v_mul_u32_u24 v14, 272, v8           ; s' * 272")
        b(f"  v_lshl_add_u32 v14, v9, 5, v14       ; + h*32")
        b(f"  s_lshl_b32 s{S_TMP+1}, s{S_W}, 6")
        b(f"  s_add_u32 s{S_TMP+1}, s{S_TMP+1}, {OS}")
        b(f"  v_add_u32 v14, s{S_TMP+1}, v14")
    for sb in range(2):
        for half in range(2):
            o = T + 4 * ((sb * 2 + half) % 2) if not OL else T + 16 + 4 * (sb * 2 + half)
            for dd in range(4):
                a = KEEP + sb * 16 + half * 8 + 2 * dd
                hv = HV + 8 * sb + 4 * half + dd
                t0 = T + 8 + 2 * dd if OL else T + 8 + 4 * dd
                b(f"  v_lshlrev_b32 v{t0}, 16, v{hv}")
                b(f"  v_and_b32 v{t0+1}, s{S_TMP}, v{hv}")
                b(f"  v_pk_add_f32 {vr(t0,2)}, {vr(t0,2)}, {vr(a,2)}")
                b(f"  v_add_f32 v{t0}, v{t0}, v{12+sb}")
                b(f"  v_add_f32 v{t0+1}, v{t0+1}, v{12+sb}")
                b(f"  v_cvt_pk_bf16_f32 v{o+dd}, v{t0}, v{t0+1}")
            if OL:
                b(f"  ds_write_b128 v14, {vr(o,4)} offset:{sb*32*272 + 16*half}")
            else:
                b(f"  s_mov_b32 s{S_TMP+1}, {sb*65536}")
                if "noout" not in OPT: b(f"  buffer_store_dwordx4 {vr(o,4)}, v28, s[{SRD_O}:{SRD_O+3}], s{S_TMP+1} offen offset:{16*half}{OF()}")
    if OL:
        b(f"  v_lshrrev_b32 v15, 4, v7")
        b(f"  s_lshl_b32 s{S_TMP+1}, s{S_W}, 4")
        b(f"  v_add_u32 v15, s{S_TMP+1}, v15          ; row (i = 0)")
        b(f"  v_and_b32 v16, 15, v7")
        b(f"  v_mul_u32_u24 v14, 272, v15")
        b(f"  v_lshl_add_u32 v14, v16, 4, v14")
        b(f"  v_add_u32 v14, {OS}, v14")
        b(f"  s_lshl_b32 s{S_TMP+1}, s{S_TILE_B}, 7")
        b(f"  s_lshl_b32 s{S_TMP+2}, s19, 6")
        b(f"  s_add_u32 s{S_TMP+1}, s{S_TMP+1}, s{S_TMP+2}")
        b(f"  v_add_u32 v15, s{S_TMP+1}, v15")
        b(f"  v_lshlrev_b32 v15, 11, v15")
        b(f"  v_lshl_add_u32 v15, v16, 4, v15")
        b(f"  s_lshl_b32 s{S_TMP+1}, s{S_TILE_A}, 8")
        b(f"  v_add_u32 v15, s{S_TMP+1}, v15")
        b(f"  s_waitcnt lgkmcnt(0)")
        b(f"  s_barrier")
        for i in range(4): b(f"  ds_read_b128 {vr(T+4*i,4)}, v14 offset:{i*4*272}")
        for i in range(4):
            b(f"  s_waitcnt lgkmcnt({3-i})")
            b(f"  s_mov_b32 s{S_TMP+1}, {i*4*2048}")
            b(f"  buffer_store_dwordx4 {vr(T+4*i,4)}, v15, s[{SRD_O}:{SRD_O+3}], s{S_TMP+1} offen{OF()}")
    stamp(b, "g2 stores issued")
    b(f"  s_branch g2_done")
    b.label("g2_loader")
    b(f"  s_barrier                      ; matches the barrier inside wait(x4)")
    loader_loop(b, c.NS, "g2", W2F())
    b.label("g2_done")

def g2(b):
    if SK(): return g2_sk(b)
    c = g2_cfg()
    b.label("g2_start")
    g2_ids(b)
    srd(b, SRD_P, P_WS, U_BYTES, WS_U)
    srd(b, SRD_O, P_OUT, 4 << 20)
    srd(b, SRD_X, P_B2, 2048 * 2)
    srd(b, SRD_Y, P_WS, 4 << 20, WS_H)
    b(f"  s_cmp_ge_u32 s{S_W}, 4")
    b(f"  s_cbranch_scc1 g2_loader")
    lane_geom(b)
    b(f"  s_lshl_b32 s{S_TMP}, s{S_TILE_A}, 2")
    b(f"  s_add_u32 s{S_TMP}, s{S_TMP}, s{S_W}        ; dblk")
    b(f"  s_mul_i32 s{S_TMP+2}, s{S_TMP}, 229376")
    b(f"  v_lshlrev_b32 v10, 4, v7")
    b(f"  v_add_u32 v{V_P}, s{S_TMP+2}, v10")
    b(f"  s_lshl_b32 s{S_TMP+1}, s{S_TILE_B}, 6       ; s0")
    b(f"  v_add_u32 v11, s{S_TMP+1}, v8              ; s0 + s'")
    b(f"  v_lshlrev_b32 v16, 1, v11")
    for sb in range(2):
        b(f"  buffer_load_ushort v{12+sb}, v16, s[{SRD_X}:{SRD_X+3}], 0 offen offset:{64*sb}")
    b(f"  v_lshlrev_b32 v17, 11, v11")
    b(f"  v_lshl_add_u32 v17, v9, 5, v17")
    b(f"  s_lshl_b32 s{S_TMP+2}, s{S_TMP}, 6")
    b(f"  v_add_u32 v28, s{S_TMP+2}, v17")
    HV = 160
    b(f"  v_lshl_add_u32 v20, v9, 3, v18            ; row")
    b(f"  v_bfe_u32 v21, v18, 1, 1")
    b(f"  v_lshlrev_b32 v20, 7, v20")
    b(f"  v_lshl_add_u32 v20, v21, 6, v20")
    b(f"  v_lshl_add_u32 v20, v19, 5, v20")
    b(f"  v_lshl_add_u32 v{V_T}, v22, 3, v20")
    b(f"  v_xor_b32 v{V_T+1}, 64, v{V_T}")
    for i in range(32): b(f"  v_mov_b32 v{V_ACC+i}, 0")
    def w4():
        wait(b, 3, 28, "x4c", single_sreg=S_TILE_A)
        stamp(b, "x4 released")
        stamp(b, "c:g2 start")
    def hloads():
        for sb in range(2):
            b(f"  s_mov_b32 s{S_TMP+1}, {sb*65536}")
            b(f"  buffer_load_dwordx4 {vr(HV+8*sb,4)}, v28, s[{SRD_Y}:{SRD_Y+3}], s{S_TMP+1} offen{LF}")
            b(f"  buffer_load_dwordx4 {vr(HV+8*sb+4,4)}, v28, s[{SRD_Y}:{SRD_Y+3}], s{S_TMP+1} offen offset:16{LF}")
    gemm_core(b, c, "g2", w4, hloads)
    stamp(b, "c:g2 end")
    stamp(b, "g2 main done")
    T = c.VT
    b(f"  s_mov_b32 s{S_TMP}, 0xffff0000")
    for sb in range(2):
        b(f"  v_lshlrev_b32 v{12+sb}, 16, v{12+sb}")
    b(f"  s_nop 9")
    for sb in range(2):
        for half in range(2):
            o = T + 4 * ((sb * 2 + half) % 2)
            for dd in range(4):
                a = V_ACC + sb * 16 + half * 8 + 2 * dd
                hv = HV + 8 * sb + 4 * half + dd
                t0 = T + 8 + 4 * dd
                b(f"  v_cvt_pk_bf16_f32 v{t0}, v{a}, v{a+1}")
                b(f"  v_and_b32 v{t0+1}, s{S_TMP}, v{t0}")
                b(f"  v_lshlrev_b32 v{t0}, 16, v{t0}")
                b(f"  v_add_f32 v{t0}, v{t0}, v{12+sb}")
                b(f"  v_add_f32 v{t0+1}, v{t0+1}, v{12+sb}")
                b(f"  v_cvt_pk_bf16_f32 v{t0}, v{t0}, v{t0+1}")
                b(f"  v_and_b32 v{t0+1}, s{S_TMP}, v{t0}")
                b(f"  v_lshlrev_b32 v{t0}, 16, v{t0}")
                b(f"  v_lshlrev_b32 v{t0+2}, 16, v{hv}")
                b(f"  v_and_b32 v{t0+3}, s{S_TMP}, v{hv}")
                b(f"  v_add_f32 v{t0}, v{t0}, v{t0+2}")
                b(f"  v_add_f32 v{t0+1}, v{t0+1}, v{t0+3}")
                b(f"  v_cvt_pk_bf16_f32 v{o+dd}, v{t0}, v{t0+1}")
            b(f"  s_mov_b32 s{S_TMP+1}, {sb*65536}")
            b(f"  buffer_store_dwordx4 {vr(o,4)}, v28, s[{SRD_O}:{SRD_O+3}], s{S_TMP+1} offen offset:{16*half}")
    stamp(b, "g2 stores issued")
    b(f"  s_branch g2_done")
    b.label("g2_loader")
    b(f"  s_barrier                      ; matches the barrier inside wait(x4)")
    loader_loop(b, c.NS, "g2", W2F())
    b.label("g2_done")

DESC = """
One persistent launch, 256 workgroups (one per CU) x 8 waves, five phases separated by device-wide hand-offs.
  P1  workgroup p: rows s = p + 256 t (t = wave).  LayerNorm, 1024-point real FFT of each row as 32 x 32 (two MFMA stages,
      fp32 twiddles in between), then the radix-8 step of the S-direction FFT across the 8 rows (MFMA, twiddle folded in).
      Spectrum is kept for bins k = 1..511 plus the Nyquist bin in slot 0: the DC bin of a LayerNorm output row is exactly 0.
  P2  workgroup (j1, 16 bins): 256-point FFT over p as 16 x 16, multiply by the filter, inverse 256-point FFT.
  P3  inverse radix-8 step, inverse row FFT (c2r), residual h = x + y, LayerNorm -> ln2 in MFMA fragment order.
  G1  u = gelu(w1^T ln2 + b1): 128 x 128 tiles, waves 0-3 compute (16x16x32 MFMA), waves 4-7 stream w1 into an LDS ring.
  G2  out = h + w2^T u + b2: 128 x 128 tiles over half of K each, partner workgroups swap bf16 partial sums.
Hand-offs: write-through stores, drained, then sharded counters in d_ws (reset in this launch, published via d_debug) or,
for the partial sums, slots pre-filled in this launch with an all-ones word that real data never contains.
"""

def build():
    NAME = "sequential_preLN__spectral_gfnet__mixer_token_mlp__prompt"
    hdr = open(f"cdna_kernels/{NAME}.s.ref").read().split("; Override launch")[0]
    K = NAME + "_kernel"
    b = B()
    b(hdr.rstrip("\n"))
    b(f"; @launch grid=(256,1,1) block=(512,1,1) lds={LDS_TOTAL}")
    for l in DESC.strip("\n").split("\n"): b("; " + l if l else ";")
    b('.amdgcn_target "amdgcn-amd-amdhsa--gfx950"\n.text')
    b(f".globl {K}\n.p2align 8\n.type {K},@function\n{K}:")
    b(f"  s_cmp_ge_u32 s2, 256\n  s_cbranch_scc1 k_exit")
    if "stamp" in OPT: b("  v_mov_b32 v231, 0")
    stamp(b, "entry")
    b(f"  s_load_dwordx4 s[{P_X}:{P_X+3}], s[0:1], 0        ; x, w_r")
    b(f"  s_load_dwordx2 s[{P_WI}:{P_WI+1}], s[0:1], 16")
    b(f"  s_load_dwordx2 s[{P_W1}:{P_W1+1}], s[0:1], 32")
    b(f"  s_load_dwordx4 s[{P_B1}:{P_B1+3}], s[0:1], 40     ; b1, w2")
    b(f"  s_load_dwordx4 s[{P_B2}:{P_B2+3}], s[0:1], 56     ; b2, out")
    b(f"  s_load_dwordx4 s[{P_DBG}:{P_DBG+3}], s[0:1], 72")
    b(f"  v_lshrrev_b32 v6, 6, v0")
    b(f"  v_and_b32 v7, 63, v0        ; lane")
    b(f"  v_readfirstlane_b32 s{S_W}, v6")
    b(f"  v_and_b32 v8, 15, v7          ; c")
    b(f"  v_lshrrev_b32 v9, 4, v7       ; g")
    b(f"  s_waitcnt lgkmcnt(0)")
    srd(b, SRD_CNT, P_WS, 65536, WS_CNT)
    p1(b)
    p2_setup(b)
    wait(b, 0, 16, "x1c")
    stamp(b, "x1 released")
    if "diagsleep" in OPT: b("  s_sleep 64")
    p2_main(b)
    p3_setup(b)
    if SENT2(): b("  s_barrier")
    else: wait(b, 1, 16, "x2c")
    stamp(b, "x2 released")
    p3_main(b)
    g1(b)
    g2(b)
    b(f"  s_waitcnt vmcnt(0)")
    stamp(b, "end")
    stamp_flush(b)
    b("k_exit:\n  s_endpgm")
    b(kd(K, 240, sgpr=102))
    return b.text()

if __name__ == "__main__":
    out = sys.argv[1]
    OPT.update(sys.argv[2:])
    if "lfplain" not in OPT: LF = " sc1"
    for o in sys.argv[2:]:
        if o.startswith("ir="): IDLE_ROUNDS[0] = int(o[3:])
        if o.startswith("pfn="): PFN[:] = [int(c) for c in o[4:].split(",")]
    gemm.OPT.update(sys.argv[2:])
    t = build()
    open(out, "w").write(t)
    rep = check_text(t)
    print("\n".join(rep) if rep else "no hazards found", "| stamps:", nstamp[0])
```

```python
import sys
from asmlib import *
import gemm, fft
from gemm import (srd, f2u, WS_X1, WS_X2, WS_H, WS_LN2, WS_U, U_BYTES, S_W, R, STAGE, PR, DQ,
                  V_P, V_T, V_ACC, S_POFF, S_IT, S_DELTA, SRD_P, SRD_T, SRD_O, SRD_X, SRD_Y, S_TILE_A, S_TILE_B, S_TMP,
                  g1_cfg, g2_cfg, lane_geom)
from fft import sincos, wave_reduce, ln_finish, layernorm16, cmul_pk, gmat, MF32, MF16

OPT = set()
N7 = [0]
IDLE_ROUNDS = [7]
WPN = [0]
PFN = [0, 4, 0, 4]
WS_CNT = 30 << 20
WS_STAMP = 31 << 20
WS_WP = 32 << 20
WS_XCH = 24 << 20
W1B = 2048 * 3584 * 2
WB = 2048 * 1026

P_X, P_WR, P_WI, P_W1, P_B1, P_W2, P_B2, P_OUT, P_DBG, P_WS = 64, 66, 68, 70, 72, 74, 76, 78, 80, 82
SRD_CNT = 12
S_T = 46
SRD_A, SRD_B, SRD_C, SRD_D = 24, 28, 32, 36
SRD_PF = 56
S_STAMP = 84
SF = " sc1"
LF = ""

L1_M1, L1_M2, L1_TW, L1_EX = 0, 4096, 8192, 16384
L2_F = 32768; L2_X = L2_F + 2048; L2_W = L2_X + 16 * 1040
L3_M3 = 98304; L3_M4 = L3_M3 + 4096; L3_TW = L3_M3 + 8192; L3_EX = L3_M3 + 16384
L3_LN = L3_EX + 16384; L3_RS = 2624
LDS_TOTAL = L3_LN + 8 * L3_RS
assert LDS_TOTAL <= 163840

STAMPS = ["entry", "p1 x landed", "p1 stores issued", "p1 arrived", "x1 released", "p2 x landed", "p2 stores issued",
          "x2 released", "p3 x2 landed", "p3 stores issued", "x3 released", "g1 main done", "g1 stores issued", "x4 released",
          "g2 main done", "g2 stores issued", "end", "x1 drained", "x2 drained", "x3 drained", "x4 drained", "p1 tables done", "p1 ln done", "p1 fft done", "p3 ifft done", "p3 ln done", "c:g1 start", "c:g1 end", "c:g2 start", "c:g2 end", "g2 x landed", "p2 w landed"]
nstamp = [len(STAMPS)]
M16G1 = lambda: "m16" in OPT or "m16g1" in OPT
M16G2 = lambda: "m16" in OPT or "m16g2" in OPT
SENT = lambda: "bar" not in OPT
SENT2 = lambda: "bar" not in OPT or "sent2" in OPT
SK = lambda: "nosk" not in OPT
W1F = lambda: " nt" if "ntw1" in OPT else ""
W2F = lambda: " nt" if "ntw2" in OPT else ""
XF = lambda: " nt" if ("ntx" in OPT or "ntx1" in OPT) else ""
OF = lambda: " sc1" if "outsc1" in OPT else (" nt" if "outnt" in OPT else "")
WF = lambda: " nt" if ("ntx" in OPT or "ntw" in OPT) else ""
L_XS = 69632
def stamp(b, name):
    if "stamp" not in OPT: return
    i = STAMPS.index(name)
    op = "s_memtime" if name.startswith("c:") else "s_memrealtime"
    b(f"  {op} s[{S_STAMP}:{S_STAMP+1}]   ; stamp {i}: {name}")
    b(f"  s_waitcnt lgkmcnt(0)")
    b(f"  v_writelane_b32 v231, s{S_STAMP}, {i}")

def stamp_flush(b):
    if "stamp" not in OPT: return
    if "dbgmax" in OPT:
        SEL = [1, 23, 2, 17, 3, 4, 5, 6, 18, 7, 8, 9, 19, 10]
        srd(b, 24, P_DBG, 256)
        b(f"  v_readlane_b32 s46, v231, 0")
        b(f"  s_sub_u32 s47, 0, s46")
        b(f"  v_mov_b32 v3, 0")
        b(f"  v_writelane_b32 v3, s47, 0")
        b(f"  v_writelane_b32 v3, s46, 15")
        for i, st in enumerate(SEL):
            b(f"  v_readlane_b32 s46, v231, {st}")
            b(f"  s_nop 3")
            b(f"  v_writelane_b32 v3, s46, {i+1}")
        b(f"  v_lshlrev_b32 v2, 2, v7")
        b(f"  s_mov_b64 s[48:49], exec")
        b(f"  s_mov_b64 exec, 0xffff")
        b(f"  buffer_atomic_umax v3, v2, s[24:27], 0 offen sc1")
        b(f"  s_mov_b64 exec, s[48:49]")
        return
    if "dbgtime" in OPT:
        b(f"  s_cmp_lg_u32 s2, 100")
        b(f"  s_cbranch_scc1 dbg_skip")
        b(f"  s_cmp_lg_u32 s{S_W}, 0")
        b(f"  s_cbranch_scc1 dbg_skip")
        srd(b, 24, P_DBG, 256)
        b(f"  v_readlane_b32 s46, v231, 0")
        b(f"  s_nop 1")
        b(f"  v_subrev_u32 v3, s46, v231")
        b(f"  v_lshlrev_b32 v2, 2, v7")
        b(f"  v_subrev_u32 v2, 4, v2")
        b(f"  s_mov_b64 s[48:49], exec")
        b(f"  s_mov_b64 exec, 0x1fffe")
        b(f"  buffer_store_dword v3, v2, s[24:27], 0 offen")
        b(f"  s_mov_b64 exec, s[48:49]")
        b.label("dbg_skip")
        return
    srd(b, 24, P_WS, 1 << 20, WS_STAMP)
    b(f"  s_lshl_b32 s46, s2, 3")
    b(f"  s_add_u32 s46, s46, s{S_W}")
    b(f"  s_lshl_b32 s46, s46, 7            ; (wg*8+wave)*128")
    b(f"  v_lshlrev_b32 v2, 2, v7")
    b(f"  s_mov_b64 s[48:49], exec")
    b(f"  s_mov_b64 exec, 0xffffffff")
    b(f"  buffer_store_dword v231, v2, s[24:27], s46 offen")
    b(f"  s_mov_b64 exec, s[48:49]")

def arrive(b, bar, shard_sreg, first=False, label="", drained=False):
    if not drained: b(f"  s_waitcnt vmcnt(0)")
    stamp(b, f"x{bar+1} drained")
    b(f"  s_barrier")
    b(f"  s_cmp_lg_u32 s{S_W}, 0")
    b(f"  s_cbranch_scc1 {label}_arr_skip")
    if first:
        b(f"  s_mov_b32 s11, 100000")
        b.label(f"{label}_rdy")
        b(f"  v_cmp_ne_u32 vcc, 0, v27")
        b(f"  s_nop 1")
        b(f"  s_cmp_eq_u64 vcc, exec")
        b(f"  s_cbranch_scc1 {label}_rdy_ok")
        b(f"  buffer_load_dword v27, v26, s[{SRD_PF}:{SRD_PF+3}], 0 offen sc1")
        b(f"  s_waitcnt vmcnt(0)")
        b(f"  s_sub_u32 s11, s11, 1")
        b(f"  s_cmp_lg_u32 s11, 0")
        b(f"  s_cbranch_scc1 {label}_rdy")
        b.label(f"{label}_rdy_ok")
    b(f"  s_lshl_b32 s10, s{shard_sreg}, 8")
    b(f"  s_add_u32 s10, s10, {bar*4096}")
    b(f"  v_mov_b32 v228, s10")
    b(f"  v_mov_b32 v229, 1")
    b(f"  s_mov_b64 s[16:17], exec")
    b(f"  s_mov_b64 exec, 1")
    b(f"  buffer_atomic_add v229, v228, s[{SRD_CNT}:{SRD_CNT+3}], 0 offen sc1")
    b(f"  s_mov_b64 exec, s[16:17]")
    b.label(f"{label}_arr_skip")

def wait(b, bar, target, label, single_sreg=None):
    b(f"  s_cmp_lg_u32 s{S_W}, 0")
    b(f"  s_cbranch_scc1 {label}_w_skip")
    if single_sreg is None:
        b(f"  v_and_b32 v228, 15, v7")
        b(f"  v_lshlrev_b32 v228, 8, v228")
        b(f"  v_add_u32 v228, {bar*4096}, v228")
    else:
        b(f"  s_lshl_b32 s10, s{single_sreg}, 8")
        b(f"  s_add_u32 s10, s10, {bar*4096}")
        b(f"  v_mov_b32 v228, s10")
    b(f"  s_mov_b32 s11, 200000")
    if "pp" in OPT:
        b(f"  buffer_load_dword v229, v228, s[{SRD_CNT}:{SRD_CNT+3}], 0 offen sc1")
        b(f"  s_nop 15")
        b(f"  s_nop 15")
        b(f"  buffer_load_dword v226, v228, s[{SRD_CNT}:{SRD_CNT+3}], 0 offen sc1")
        b.label(f"{label}_poll")
        for r in (229, 226):
            b(f"  s_waitcnt vmcnt(1)")
            b(f"  v_cmp_le_u32 vcc, {target}, v{r}")
            b(f"  s_nop 1")
            b(f"  s_cmp_eq_u64 vcc, exec")
            b(f"  s_cbranch_scc1 {label}_w_skip")
            b(f"  buffer_load_dword v{r}, v228, s[{SRD_CNT}:{SRD_CNT+3}], 0 offen sc1")
        b(f"  s_sub_u32 s11, s11, 1")
        b(f"  s_cmp_lg_u32 s11, 0")
        b(f"  s_cbranch_scc1 {label}_poll")
    else:
        b.label(f"{label}_poll")
        b(f"  buffer_load_dword v229, v228, s[{SRD_CNT}:{SRD_CNT+3}], 0 offen sc1")
        b(f"  s_waitcnt vmcnt(0)")
        b(f"  v_cmp_le_u32 vcc, {target}, v229")
        b(f"  s_nop 1")
        b(f"  s_cmp_eq_u64 vcc, exec")
        b(f"  s_cbranch_scc1 {label}_w_skip")
        b(f"  s_sub_u32 s11, s11, 1")
        b(f"  s_cmp_lg_u32 s11, 0")
        b(f"  s_cbranch_scc1 {label}_poll")
    b.label(f"{label}_w_skip")
    b(f"  s_barrier")

def prefetch(b, ptr_pair, nbytes, start, length, who_scale, who_sreg, vaddr, vdst, stmp, paced=False):
    chunk = -(-length // who_scale)
    n_per_wave = -(-chunk // (512 * 128))
    stride = -(-chunk // (512 * n_per_wave))
    stride = (stride + 3) // 4 * 4
    per_instr = 64 * stride
    srd(b, SRD_PF, ptr_pair, nbytes)
    b(f"  s_mul_i32 s{stmp}, s{who_sreg}, {chunk}")
    b(f"  s_mul_i32 s{stmp+1}, s{S_W}, {n_per_wave*per_instr}")
    b(f"  s_add_u32 s{stmp}, s{stmp}, s{stmp+1}")
    if start: b(f"  s_add_u32 s{stmp}, s{stmp}, {start}")
    b(f"  v_mul_u32_u24 v{vaddr}, {stride}, v7")
    for i in range(n_per_wave):
        b(f"  buffer_load_dword v{vdst}, v{vaddr}, s[{SRD_PF}:{SRD_PF+3}], s{stmp} offen")
        if i + 1 < n_per_wave: b(f"  s_add_u32 s{stmp}, s{stmp}, {per_instr}")
        if paced: b(f"  s_waitcnt vmcnt(0)")
    return n_per_wave

V_DUMMY = 232
def pf_wide(b, ptr_pair, nbytes, s_base, n, wave_lo, wave_hi, label):
    b(f"  s_cmp_lt_u32 s{S_W}, {wave_lo}")
    b(f"  s_cbranch_scc1 {label}")
    if wave_hi < 8:
        b(f"  s_cmp_ge_u32 s{S_W}, {wave_hi}")
        b(f"  s_cbranch_scc1 {label}")
    srd(b, SRD_PF, ptr_pair, nbytes)
    b(f"  s_sub_u32 s{S_T+9}, s{S_W}, {wave_lo}")
    b(f"  s_mul_i32 s{S_T+9}, s{S_T+9}, {n*1024}")
    b(f"  s_add_u32 s{S_T+9}, s{S_T+9}, s{s_base}")
    b(f"  v_lshlrev_b32 v29, 4, v7")
    for i in range(n):
        if i and i % 4 == 0: b(f"  s_add_u32 s{S_T+9}, s{S_T+9}, 4096")
        b(f"  buffer_load_dwordx4 {vr(V_DUMMY,4)}, v29, s[{SRD_PF}:{SRD_PF+3}], s{S_T+9} offen offset:{(i%4)*1024}")
    b.label(label)

def w1_share_base(b, sreg, part):
    b(f"  s_mul_i32 s{sreg}, s2, {W1B // 256}")
    if part: b(f"  s_add_u32 s{sreg}, s{sreg}, {part}")

def w1_first_half_base(b, sreg, part):
    b(f"  s_and_b32 s{sreg}, s2, 7")
    b(f"  s_mul_i32 s{sreg}, s{sreg}, {256*7168}")
    b(f"  s_lshr_b32 s{S_T+9}, s2, 3")
    b(f"  s_mul_i32 s{S_T+9}, s{S_T+9}, {4*7168}")
    b(f"  s_add_u32 s{sreg}, s{sreg}, s{S_T+9}")
    if part: b(f"  s_add_u32 s{sreg}, s{sreg}, {part}")

def p1_tables(b):
    M1, M2, TW = L1_M1, L1_M2, L1_TW
    b(f"  v_and_b32 v10, 255, v0            ; e")
    b(f"  v_lshrrev_b32 v11, 8, v0          ; u")
    b(f"  v_bfe_u32 v12, v10, 2, 4          ; lane&15")
    b(f"  v_lshl_add_u32 v12, v11, 4, v12   ; k1")
    b(f"  v_lshrrev_b32 v13, 6, v10         ; g")
    b(f"  v_and_b32 v14, 3, v10")
    b(f"  v_lshlrev_b32 v13, 3, v13")
    b(f"  v_lshl_add_u32 v13, v14, 1, v13   ; a0 = 8g + 2i")
    b(f"  v_mul_u32_u24 v15, v13, v12       ; a0*k1")
    b(f"  v_add_u32 v16, v15, v12           ; (a0+1)*k1")
    sincos(b, 17, 18, 15, 5, 21)
    sincos(b, 19, 20, 16, 5, 21)
    b(f"  v_lshlrev_b32 v22, 2, v10")
    b(f"  v_lshl_add_u32 v22, v11, 11, v22  ; u*2048 + e*4")
    b(f"  v_cvt_pk_bf16_f32 v23, v17, v19")
    b(f"  v_cvt_pk_bf16_f32 v24, -v18, -v20")
    b(f"  ds_write_b32 v22, v23 offset:{M1}")
    b(f"  ds_write_b32 v22, v24 offset:{M1+1024}")
    sincos(b, 17, 18, 15, 10, 21)
    sincos(b, 19, 20, 16, 10, 21)
    b(f"  ds_write_b32 v22, v17 offset:{TW}")
    b(f"  ds_write_b32 v22, v18 offset:{TW+1024}")
    b(f"  ds_write_b32 v22, v19 offset:{TW+4096}")
    b(f"  ds_write_b32 v22, v20 offset:{TW+4096+1024}")
    b(f"  v_bfe_u32 v12, v10, 2, 4          ; k2")
    b(f"  v_mul_u32_u24 v15, v13, v12")
    b(f"  v_add_u32 v16, v15, v12")
    sincos(b, 17, 18, 15, 5, 21)
    sincos(b, 19, 20, 16, 5, 21)
    b(f"  v_lshlrev_b32 v22, 2, v10")
    b(f"  v_cvt_pk_bf16_f32 v23, v17, v19")
    b(f"  v_cvt_pk_bf16_f32 v24, v18, v20")
    b(f"  v_cvt_pk_bf16_f32 v25, -v18, -v20")
    b(f"  ds_write_b32 v22, v23 offset:{M2}")
    b(f"  ds_write_b32 v22, v24 offset:{M2+1024}")
    b(f"  ds_write_b32 v22, v25 offset:{M2+2048}")

def ln_fast(b, X, T, S0, alt):
    b(f"  v_readlane_b32 s{S0}, v{X}, 0              ; pivot")
    b(f"  s_nop 1")
    for i in range(0, 16, 2):
        b(f"  v_pk_add_f32 {vr(X+i,2)}, {vr(X+i,2)}, s[{S0}:{S0+1}] op_sel_hi:[1,0] neg_lo:[0,1] neg_hi:[0,1]")
    b(f"  v_pk_add_f32 {vr(T,2)}, {vr(X,2)}, {vr(X+2,2)}")
    b(f"  v_pk_add_f32 {vr(T+2,2)}, {vr(X+8,2)}, {vr(X+10,2)}")
    b(f"  v_pk_mul_f32 {vr(T+4,2)}, {vr(X,2)}, {vr(X,2)}")
    b(f"  v_pk_add_f32 {vr(T,2)}, {vr(T,2)}, {vr(X+4,2)}")
    b(f"  v_pk_add_f32 {vr(T+2,2)}, {vr(T+2,2)}, {vr(X+12,2)}")
    b(f"  v_pk_fma_f32 {vr(T+4,2)}, {vr(X+2,2)}, {vr(X+2,2)}, {vr(T+4,2)}")
    b(f"  v_pk_add_f32 {vr(T,2)}, {vr(T,2)}, {vr(X+6,2)}")
    b(f"  v_pk_add_f32 {vr(T+2,2)}, {vr(T+2,2)}, {vr(X+14,2)}")
    for i in range(4, 16, 2):
        b(f"  v_pk_fma_f32 {vr(T+4,2)}, {vr(X+i,2)}, {vr(X+i,2)}, {vr(T+4,2)}")
    b(f"  v_add_f32 v{T}, v{T}, v{T+1}")
    b(f"  v_add_f32 v{T+2}, v{T+2}, v{T+3}")
    if not alt: b(f"  v_add_f32 v{T}, v{T}, v{T+2}")
    b(f"  v_add_f32 v{T+4}, v{T+4}, v{T+5}           ; squares")
    if alt:
        wave_reduce(b, [T, T+2, T+4])
        b(f"  v_sub_f32 v{T+1}, v{T}, v{T+2}             ; E - O")
        b(f"  v_add_f32 v{T}, v{T}, v{T+2}")
        b(f"  s_nop 0")
        b(f"  v_readlane_b32 s{S0+2}, v{T}, 63")
        b(f"  v_readlane_b32 s{S0+3}, v{T+4}, 63")
        b(f"  v_readlane_b32 s{S0+4}, v{T+1}, 63")
    else:
        wave_reduce(b, [T, T+4])
        b(f"  s_nop 0")
        b(f"  v_readlane_b32 s{S0+2}, v{T}, 63")
        b(f"  v_readlane_b32 s{S0+3}, v{T+4}, 63")
    b(f"  s_nop 0")
    b(f"  v_mov_b32 v{T}, {hex(f2u(1.0/1024))}")
    b(f"  v_mul_f32 v{T+1}, s{S0+2}, v{T}            ; mean of the shifted values")
    b(f"  v_mul_f32 v{T+2}, s{S0+3}, v{T}            ; mean of their squares")
    b(f"  v_fma_f32 v{T+2}, -v{T+1}, v{T+1}, v{T+2}  ; variance")
    b(f"  v_max_f32 v{T+2}, 0, v{T+2}")
    b(f"  v_add_f32 v{T+2}, {hex(f2u(1e-5))}, v{T+2}")
    b(f"  v_rsq_f32 v{T+4}, v{T+2}")
    b(f"  s_nop 0")
    b(f"  v_mul_f32 v{T+8}, -v{T+1}, v{T+4}          ; -mean*rstd")
    if alt: b(f"  v_mul_f32 v{T+6}, s{S0+4}, v{T+4}")
    for i in range(0, 16, 2):
        b(f"  v_pk_fma_f32 {vr(X+i,2)}, {vr(X+i,2)}, {vr(T+4,2)}, {vr(T+8,2)} op_sel_hi:[1,0,0]")

def x1_store_addr(b):
    b(f"  v_lshlrev_b32 v5, 15, v9")
    b(f"  v_lshl_add_u32 v5, v8, 2, v5")
    b(f"  s_and_b32 s{S_T+6}, s2, 15")
    b(f"  s_lshl_b32 s{S_T+6}, s{S_T+6}, 4")
    b(f"  s_lshr_b32 s{S_T+7}, s2, 4")
    b(f"  s_add_u32 s{S_T+6}, s{S_T+6}, s{S_T+7}")
    b(f"  s_lshl_b32 s{S_T+6}, s{S_T+6}, 6       ; pos*64")
    b(f"  s_lshl_b32 s{S_T+7}, s{S_W}, 19        ; 4w*131072")
    b(f"  s_add_u32 s44, s{S_T+6}, s{S_T+7}")

def w_early(b):
    srd(b, SRD_C, P_WR, WB)
    srd(b, SRD_D, P_WI, WB)
    b(f"  s_and_b32 s{S_T+2}, s2, 7              ; j1")
    b(f"  v_and_b32 v215, 1, v0                ; half")
    b(f"  v_bfe_u32 v11, v0, 5, 4              ; c")
    b(f"  v_bfe_u32 v12, v0, 1, 4              ; e")
    b(f"  v_lshl_add_u32 v13, v12, 4, v11      ; j2")
    b(f"  v_lshlrev_b32 v13, 3, v13")
    b(f"  v_add_u32 v13, s{S_T+2}, v13         ; j")
    b(f"  v_mul_u32_u24 v214, 1026, v13")
    b(f"  v_lshl_add_u32 v14, v215, 4, v214")
    b(f"  s_lshr_b32 s{S_T+3}, s2, 3           ; kb")
    b(f"  s_lshl_b32 s{S_T+3}, s{S_T+3}, 5")
    b(f"  buffer_load_dwordx4 {vr(WE,4)}, v14, s[{SRD_C}:{SRD_C+3}], s{S_T+3} offen{WF()}")
    b(f"  buffer_load_dwordx4 {vr(WE+4,4)}, v14, s[{SRD_D}:{SRD_D+3}], s{S_T+3} offen{WF()}")

def p1(b):
    srd(b, SRD_A, P_X, 4 << 20)
    srd(b, SRD_B, P_WS, 4 << 20, WS_X1)
    b(f"  s_lshl_b32 s{S_T}, s{S_W}, 8")
    b(f"  s_add_u32 s{S_T}, s{S_T}, s2          ; s")
    b(f"  s_lshl_b32 s{S_T+1}, s{S_T}, 11")
    b(f"  v_lshlrev_b32 v1, 9, v9")
    b(f"  v_lshl_add_u32 v1, v8, 2, v1")
    XD = 32
    b(f"  s_cmp_ge_u32 s2, 16")
    b(f"  s_cbranch_scc1 p1_noreset")
    b(f"  s_cmp_lg_u32 s{S_W}, 0")
    b(f"  s_cbranch_scc1 p1_noreset")
    b(f"  s_lshl_b32 s{S_T+2}, s2, 8")
    b(f"  v_lshlrev_b32 v2, 12, v7")
    b(f"  v_add_u32 v2, s{S_T+2}, v2")
    b(f"  v_mov_b32 v3, 0")
    b(f"  s_mov_b64 s[48:49], exec")
    b(f"  s_mov_b64 exec, 15")
    b(f"  buffer_store_dword v3, v2, s[{SRD_CNT}:{SRD_CNT+3}], 0 offen sc1")
    b(f"  s_mov_b64 exec, s[48:49]")
    b.label("p1_noreset")
    for i in range(8):
        b(f"  buffer_load_dword v{XD+i}, v1, s[{SRD_A}:{SRD_A+3}], s{S_T+1} offen offset:{64*i}{XF()}")
    NCLR = 0
    NWE = 0
    x1_store_addr(b)
    if SENT():
        b(f"  v_mov_b32 v60, -1")
        b(f"  v_mov_b32 v61, -1")
        b(f"  v_mov_b32 v62, -1")
        b(f"  v_mov_b32 v63, -1")
        b(f"  v_bfe_u32 v2, v7, 2, 3              ; j1")
        b(f"  v_lshrrev_b32 v3, 5, v7             ; i (0,1)")
        b(f"  v_lshlrev_b32 v2, 14, v2")
        b(f"  v_lshl_add_u32 v2, v3, 17, v2")
        b(f"  v_and_b32 v3, 3, v7")
        b(f"  v_lshl_add_u32 v2, v3, 4, v2")
        b(f"  buffer_store_dwordx4 v[60:63], v2, s[{SRD_B}:{SRD_B+3}], s44 offen{SF}")
        b(f"  s_add_u32 s{S_T+7}, s44, {2*131072}")
        b(f"  buffer_store_dwordx4 v[60:63], v2, s[{SRD_B}:{SRD_B+3}], s{S_T+7} offen{SF}")
        NCLR = 2
    if "tlbw" in OPT:
        b(f"  s_cmp_lg_u32 s{S_W}, 7")
        b(f"  s_cbranch_scc1 p1_notlb")
        sh = 20 if "tlb1m" in OPT else (19 if "tlb512k" in OPT else 21)
        b(f"  v_lshlrev_b32 v2, {sh}, v7")
        lst = [(P_WS, 36 << 20), (P_W1, W1B), (P_W2, W1B), (P_WR, WB), (P_WI, WB), (P_OUT, 4 << 20), (P_B1, 7168), (P_B2, 4096)]
        for ptr, size in lst:
            srd(b, SRD_PF, ptr, size)
            b(f"  s_mov_b64 s[16:17], exec")
            n = min(64, -(-size // (1 << sh)))
            b(f"  s_mov_b64 exec, {hex((1 << n) - 1)}")
            b(f"  buffer_load_dword v230, v2, s[{SRD_PF}:{SRD_PF+3}], 0 offen sc1")
            b(f"  s_mov_b64 exec, s[16:17]")
        if "codepf" in OPT:
            b(f"  s_cmp_ge_u32 s2, 16")
            b(f"  s_cbranch_scc1 p1_nocode")
            b(f"  s_getpc_b64 s[{S_T+8}:{S_T+9}]")
            b.label("p1_pc")
            b(f"  v_lshlrev_b32 v29, 7, v7")
            b(f"  s_mov_b32 s{S_T+7}, k_exit - p1_pc")
            for i in range(5):
                b(f"  v_min_u32 v28, s{S_T+7}, v29")
                b(f"  global_load_dword v230, v28, s[{S_T+8}:{S_T+9}]")
                b(f"  v_add_u32 v29, 8192, v29")
            b.label("p1_nocode")
        if "pf7" in OPT:
            n7 = 0
            if "wpf" in OPT:
                b(f"  s_mul_i32 s{S_T+8}, s2, 8208")
                b(f"  v_lshlrev_b32 v29, 4, v7")
                for ptr in (P_WR, P_WI):
                    srd(b, SRD_PF, ptr, WB)
                    b(f"  s_mov_b32 s{S_T+9}, s{S_T+8}")
                    for i in range(9):
                        if i and i % 4 == 0: b(f"  s_add_u32 s{S_T+9}, s{S_T+9}, 4096")
                        b(f"  buffer_load_dwordx4 {vr(V_DUMMY,4)}, v29, s[{SRD_PF}:{SRD_PF+3}], s{S_T+9} offen offset:{(i%4)*1024}")
                        n7 += 1
            if PFN[0]:
                w1_share_base(b, S_T + 9, 0)
                b(f"  v_lshlrev_b32 v29, 4, v7")
                srd(b, SRD_PF, P_W1, W1B)
                for i in range(4 * PFN[0]):
                    if i and i % 4 == 0: b(f"  s_add_u32 s{S_T+9}, s{S_T+9}, 4096")
                    b(f"  buffer_load_dwordx4 {vr(V_DUMMY,4)}, v29, s[{SRD_PF}:{SRD_PF+3}], s{S_T+9} offen offset:{(i%4)*1024}")
                    n7 += 1
            N7[0] = n7
        b.label("p1_notlb")
    if "wpack" in OPT:
        srd(b, SRD_C, P_WR, WB)
        srd(b, SRD_D, P_WI, WB)
        b(f"  s_lshl_b32 s{S_T+2}, s2, 3")
        b(f"  s_add_u32 s{S_T+2}, s{S_T+2}, s{S_W}")
        b(f"  s_mul_i32 s45, s{S_T+2}, 1026")
        b(f"  v_lshlrev_b32 v14, 4, v7")
        b(f"  buffer_load_dwordx4 {vr(WE,4)}, v14, s[{SRD_C}:{SRD_C+3}], s45 offen")
        b(f"  buffer_load_dwordx4 {vr(WE+4,4)}, v14, s[{SRD_D}:{SRD_D+3}], s45 offen")
        b(f"  v_mov_b32 v15, 1024")
        b(f"  buffer_load_ushort v212, v15, s[{SRD_C}:{SRD_C+3}], s45 offen")
        b(f"  buffer_load_ushort v213, v15, s[{SRD_D}:{SRD_D+3}], s45 offen")
        NCLR += 4
    if "wearly" in OPT:
        w_early(b); NCLR += 2
    npf = 0
    if "burn" in OPT:
        for i in range(4): b(f"  v_mov_b32 v{180+i}, 0x3f9d3f8a")
        for i in range(4): b(f"  v_mov_b32 v{184+i}, 0x3e5abf31")
        b(f"  s_nop 1")
        for i in range(24): b(f"  v_mfma_f32_32x32x16_bf16 v[{(i%2)*16+144}:{(i%2)*16+159}], v[180:183], v[184:187], v[{(i%2)*16+144}:{(i%2)*16+159}]")
    p1_tables(b)
    GM = 30
    gmat(b, GM, 2, False, 10)
    srd(b, SRD_PF, P_DBG, 256)
    b(f"  s_and_b32 s{S_T+8}, s2, 15")
    b(f"  s_lshl_b32 s{S_T+9}, s{S_T+8}, 2")
    b(f"  s_add_u32 s{S_T+9}, s{S_T+9}, 64")
    b(f"  v_mov_b32 v25, s{S_T+9}")
    b(f"  v_lshlrev_b32 v26, 2, v8")
    b(f"  v_add_u32 v26, 64, v26")
    b(f"  s_cmp_ge_u32 s2, 16")
    b(f"  s_cbranch_scc1 p1_noflag")
    b(f"  s_cmp_lg_u32 s{S_W}, 0")
    b(f"  s_cbranch_scc1 p1_noflag")
    b(f"  s_waitcnt vmcnt({8} + 0)".replace(" + 0", "") if NCLR == 0 else f"  s_waitcnt vmcnt({8 + NCLR})")
    b(f"  v_mov_b32 v3, 1")
    b(f"  s_mov_b64 s[48:49], exec")
    b(f"  s_mov_b64 exec, 1")
    b(f"  buffer_store_dword v3, v25, s[{SRD_PF}:{SRD_PF+3}], 0 offen sc1")
    b(f"  s_mov_b64 exec, s[48:49]")
    b.label("p1_noflag")
    b(f"  s_waitcnt lgkmcnt(0)")
    stamp(b, "p1 tables done")
    b(f"  s_barrier")
    NX2 = 0
    if "sent2" in OPT:
        srd(b, SRD_C, P_WS, 4 << 20, WS_X2)
        for i in range(4): b(f"  v_mov_b32 v{200+i}, -1")
        b(f"  v_lshlrev_b32 v3, 4, v0")
        b(f"  s_lshl_b32 s{S_T+7}, s2, 14")
        b(f"  buffer_store_dwordx4 v[200:203], v3, s[{SRD_C}:{SRD_C+3}], s{S_T+7} offen{SF}")
        b(f"  s_add_u32 s{S_T+7}, s{S_T+7}, 8192")
        b(f"  buffer_store_dwordx4 v[200:203], v3, s[{SRD_C}:{SRD_C+3}], s{S_T+7} offen{SF}")
        NX2 = 2
    if "wpfx" in OPT:
        b(f"  s_and_b32 s{S_T+8}, s2, 7")
        b(f"  s_lshr_b32 s{S_T+9}, s2, 3")
        b(f"  s_lshl_b32 s{S_T+9}, s{S_T+9}, 3")
        b(f"  s_add_u32 s{S_T+9}, s{S_T+9}, s{S_W}")
        b(f"  s_lshl_b32 s{S_T+9}, s{S_T+9}, 3")
        b(f"  s_add_u32 s{S_T+8}, s{S_T+8}, s{S_T+9}")
        b(f"  s_mul_i32 s{S_T+8}, s{S_T+8}, 1026")
        b(f"  v_lshlrev_b32 v29, 4, v7")
        for ptr in (P_WR, P_WI):
            srd(b, SRD_PF, ptr, WB)
            b(f"  buffer_load_dwordx4 {vr(V_DUMMY,4)}, v29, s[{SRD_PF}:{SRD_PF+3}], s{S_T+8} offen")
        NX2 += 2
    npf = 0
    if "nopf" not in OPT:
        b(f"  s_mul_i32 s{S_T+8}, s2, 8208")
        if "ntx" not in OPT and "wpf" in OPT and "pf7" not in OPT:
            pf_wide(b, P_WR, WB, S_T + 8, 3, 0, 3, "pf_p1a")
            pf_wide(b, P_WI, WB, S_T + 8, 3, 0, 3, "pf_p1b")
        if "ntw1" not in OPT and PFN[0] and "pf7" not in OPT:
            w1_share_base(b, S_T + 8, 0)
            pf_wide(b, P_W1, W1B, S_T + 8, PFN[0], 4, 8, "pf_p1c")
    M1, M2, TW = 96, 112, 128
    b(f"  v_lshlrev_b32 v2, 4, v7")
    for i in range(4): b(f"  ds_read_b128 {vr(M1+4*i,4)}, v2 offset:{L1_M1+1024*i}")
    for i in range(3): b(f"  ds_read_b128 {vr(M2+4*i,4)}, v2 offset:{L1_M2+1024*i}")
    for i in range(8): b(f"  ds_read_b128 {vr(TW+4*i,4)}, v2 offset:{L1_TW+1024*i}")
    X = 40
    NCLR += NX2
    nW = 0 if ("nopf" in OPT or "ntx" in OPT or "wpf" not in OPT or "pf7" in OPT) else 6
    n1 = 0 if ("nopf" in OPT or "ntw1" in OPT or "pf7" in OPT) else PFN[0]
    b(f"  s_cmp_eq_u32 s{S_W}, 3")
    b(f"  s_cbranch_scc1 p1_xw0")
    b(f"  s_cmp_ge_u32 s{S_W}, 4")
    b(f"  s_cbranch_scc1 p1_xw4")
    b(f"  s_waitcnt vmcnt({NCLR + nW})")
    b(f"  s_branch p1_xwd")
    b.label("p1_xw4")
    if "tlbw" in OPT:
        b(f"  s_cmp_lg_u32 s{S_W}, 7")
        b(f"  s_cbranch_scc1 p1_xw5")
        b(f"  s_waitcnt vmcnt({min(63, NCLR + n1 + 8 + N7[0])})")
        b(f"  s_branch p1_xwd")
        b.label("p1_xw5")
    b(f"  s_waitcnt vmcnt({NCLR + n1})")
    b(f"  s_branch p1_xwd")
    b.label("p1_xw0")
    b(f"  s_waitcnt vmcnt({NCLR})")
    b.label("p1_xwd")
    stamp(b, "p1 x landed")
    if "wmid" in OPT:
        w_early(b)
        b(f"  s_cmp_ge_u32 s2, 8")
        b(f"  s_cbranch_scc1 p1_nonyq")
        b(f"  buffer_load_ushort v212, v214, s[{SRD_C}:{SRD_C+3}], 0 offen offset:1024")
        b(f"  buffer_load_ushort v213, v214, s[{SRD_D}:{SRD_D+3}], 0 offen offset:1024")
        b.label("p1_nonyq")
    if "wearly" in OPT:
        b(f"  s_cmp_ge_u32 s2, 8")
        b(f"  s_cbranch_scc1 p1_nonyq")
        b(f"  buffer_load_ushort v212, v214, s[{SRD_C}:{SRD_C+3}], 0 offen offset:1024")
        b(f"  buffer_load_ushort v213, v214, s[{SRD_D}:{SRD_D+3}], 0 offen offset:1024")
        b.label("p1_nonyq")
    srd(b, SRD_PF, P_DBG, 256)
    if "stash" in OPT:
        b(f"  s_lshl_b32 s{S_T+9}, s{S_W}, 11")
        b(f"  s_add_u32 s{S_T+9}, s{S_T+9}, {L_XS}")
        b(f"  v_add_u32 v4, s{S_T+9}, v1           ; t*2048 + g*512 + c*4")
        for i in range(8): b(f"  ds_write_b32 v4, v{XD+i} offset:{64*i}")
    for i in range(8):
        b(f"  v_lshlrev_b32 v{X+i}, 16, v{XD+i}")
        b(f"  v_and_b32 v{X+8+i}, 0xffff0000, v{XD+i}")
    T = 56
    ln_fast(b, X, T, S_T + 2, True)
    stamp(b, "p1 ln done")
    if SENT():
        b(f"  buffer_load_dword v27, v26, s[{SRD_PF}:{SRD_PF+3}], 0 offen sc1")
        b(f"  s_and_b32 s{S_T+8}, s2, 15")
        arrive(b, 0, S_T + 8, first=True, label="x1")
        stamp(b, "p1 arrived")
        srd(b, SRD_C, P_WS, 4 << 20, WS_X2)
        for i in range(4): b(f"  v_mov_b32 v{200+i}, -1")
        b(f"  v_lshlrev_b32 v2, 4, v0")
        b(f"  s_lshl_b32 s{S_T+7}, s2, 14")
        b(f"  buffer_store_dwordx4 v[200:203], v2, s[{SRD_C}:{SRD_C+3}], s{S_T+7} offen{SF}")
        b(f"  s_add_u32 s{S_T+7}, s{S_T+7}, 8192")
        b(f"  buffer_store_dwordx4 v[200:203], v2, s[{SRD_C}:{SRD_C+3}], s{S_T+7} offen{SF}")
    A = 64
    for be in range(2):
        for i in range(4):
            b(f"  v_cvt_pk_bf16_f32 v{A+4*be+i}, v{X+8*be+2*i}, v{X+8*be+2*i+1}")
    b(f"  s_waitcnt lgkmcnt(0)")
    b(f"  v_readlane_b32 s{S_T+5}, v{T+6}, 0")
    Y = 160
    for be in range(2):
        for u in range(2):
            for c in range(2):
                d = Y + ((be * 2 + u) * 2 + c) * 4
                b(f"  {MF32} {vr(d,4)}, {vr(A+4*be,4)}, {vr(M1+4*(2*u+c),4)}, 0")
    b(f"  s_nop 4")
    Bp = 72; W = 32; O = 40
    for u in range(2):
        for be in range(2):
            y = Y + ((be * 2 + u) * 2) * 4
            tw = TW + (be * 4 + u * 2) * 4
            cmul_pk(b, O + 8 * be, O + 8 * be + 4, y, y + 4, tw, tw + 4, W, False)
        for r in range(4):
            b(f"  v_cvt_pk_bf16_f32 v{Bp+8*u+r}, v{O+r}, v{O+8+r}")
            b(f"  v_cvt_pk_bf16_f32 v{Bp+8*u+4+r}, v{O+4+r}, v{O+12+r}")
    XO = 160
    b(f"  s_nop 1")
    for u in range(2):
        re, im = XO + 8 * u, XO + 8 * u + 4
        b(f"  {MF32} {vr(re,4)}, {vr(M2,4)}, {vr(Bp+8*u,4)}, 0")
        b(f"  {MF32} {vr(im,4)}, {vr(M2,4)}, {vr(Bp+8*u+4,4)}, 0")
        b(f"  {MF32} {vr(re,4)}, {vr(M2+4,4)}, {vr(Bp+8*u+4,4)}, {vr(re,4)}")
        b(f"  {MF32} {vr(im,4)}, {vr(M2+8,4)}, {vr(Bp+8*u,4)}, {vr(im,4)}")
    b(f"  s_and_b32 s{S_T+6}, s{S_W}, 1")
    b(f"  s_lshl_b32 s{S_T+6}, s{S_T+6}, 8")
    b(f"  s_lshr_b32 s{S_T+7}, s{S_W}, 1")
    b(f"  s_lshl_b32 s{S_T+7}, s{S_T+7}, 6")
    b(f"  s_add_u32 s{S_T+6}, s{S_T+6}, s{S_T+7}")
    b(f"  v_lshlrev_b32 v3, 12, v9")
    b(f"  v_lshl_add_u32 v3, v8, 2, v3")
    b(f"  v_add_u32 v3, s{S_T+6}, v3")
    b(f"  s_nop 2")
    b(f"  v_writelane_b32 v{XO}, s{S_T+5}, 0")
    b(f"  v_writelane_b32 v{XO+4}, 0, 0")
    PK = 32
    for u in range(2):
        for r in range(4):
            b(f"  v_cvt_pk_bf16_f32 v{PK+4*u+r}, v{XO+8*u+r}, v{XO+8*u+4+r}")
    for u in range(2):
        for r in range(4):
            b(f"  ds_write_b32 v3, v{PK+4*u+r} offset:{L1_EX + u*512 + r*1024}")
    if "wpack" in OPT:
        assert not SENT()
        srd(b, SRD_C, P_WS, 4 << 20, WS_WP)
        b(f"  v_lshrrev_b32 v14, 1, v7              ; kb")
        b(f"  v_lshlrev_b32 v14, 17, v14")
        b(f"  v_and_b32 v15, 1, v7")
        b(f"  v_lshl_add_u32 v14, v15, 4, v14")
        b(f"  s_and_b32 s{S_T+6}, s2, 15")
        b(f"  s_lshl_b32 s{S_T+6}, s{S_T+6}, 9       ; (p&15)<<5 * 16")
        b(f"  s_lshr_b32 s{S_T+7}, s2, 4")
        b(f"  s_lshl_b32 s{S_T+7}, s{S_T+7}, 5       ; (p>>4)<<1 * 16")
        b(f"  s_add_u32 s{S_T+6}, s{S_T+6}, s{S_T+7}")
        b(f"  s_lshl_b32 s{S_T+7}, s{S_W}, 14")
        b(f"  s_add_u32 s{S_T+6}, s{S_T+6}, s{S_T+7}")
        b(f"  s_add_u32 s{S_T+7}, s{S_T+6}, 8192")
        npf0 = 0 if ("nopf" in OPT or "pf7" in OPT) else PFN[0]
        b(f"  s_cmp_ge_u32 s{S_W}, 4")
        b(f"  s_cbranch_scc1 p1_wp4")
        b(f"  s_waitcnt vmcnt(0)")
        b(f"  s_branch p1_wpd")
        b.label("p1_wp4")
        b(f"  s_waitcnt vmcnt({npf0})")
        b.label("p1_wpd")
        b(f"  v_cmp_eq_u32 vcc, 0, v7")
        b(f"  v_and_b32 v15, 0xffff0000, v{WE}")
        b(f"  v_or_b32 v15, v15, v212")
        b(f"  v_cndmask_b32 v{WE}, v{WE}, v15, vcc")
        b(f"  v_and_b32 v15, 0xffff0000, v{WE+4}")
        b(f"  v_or_b32 v15, v15, v213")
        b(f"  v_cndmask_b32 v{WE+4}, v{WE+4}, v15, vcc")
        b(f"  buffer_store_dwordx4 {vr(WE,4)}, v14, s[{SRD_C}:{SRD_C+3}], s{S_T+6} offen{SF}")
        b(f"  buffer_store_dwordx4 {vr(WE+4,4)}, v14, s[{SRD_C}:{SRD_C+3}], s{S_T+7} offen{SF}")
    if SENT(): b(f"  s_waitcnt lgkmcnt(0) vmcnt(0)")
    else:
        b(f"  buffer_load_dword v27, v26, s[{SRD_PF}:{SRD_PF+3}], 0 offen sc1")
        b(f"  s_waitcnt lgkmcnt(0)")
    stamp(b, "p1 fft done")
    b(f"  s_barrier")
    b(f"  v_lshlrev_b32 v4, 6, v9")
    b(f"  v_lshl_add_u32 v4, v8, 2, v4")
    b(f"  s_lshl_b32 s{S_T+6}, s{S_W}, 11")
    b(f"  s_add_u32 s{S_T+6}, s{S_T+6}, {L1_EX}")
    b(f"  v_add_u32 v4, s{S_T+6}, v4")
    Bd = 40
    for i in range(4):
        b(f"  ds_read2st64_b32 {vr(Bd+2*i,2)}, v4 offset0:{2*i} offset1:{2*i+1}")
    D = 48
    for i in range(4):
        b(f"  s_waitcnt lgkmcnt({3-i})")
        b(f"  {MF16} {vr(D+4*i,4)}, {vr(GM,2)}, {vr(Bd+2*i,2)}, 0")
    b(f"  s_nop 4")
    for i in range(4):
        b(f"  v_cvt_pk_bf16_f32 v{64+2*i}, v{D+4*i}, v{D+4*i+1}")
        b(f"  v_cvt_pk_bf16_f32 v{65+2*i}, v{D+4*i+2}, v{D+4*i+3}")
        if SENT():
            b(f"  v_min_u32 v{64+2*i}, 0xfffffffe, v{64+2*i}")
            b(f"  v_min_u32 v{65+2*i}, 0xfffffffe, v{65+2*i}")
        for e in range(2):
            b(f"  s_add_u32 s{S_T+7}, s44, {i*131072 + e*16384}")
            b(f"  buffer_store_dword v{64+2*i+e}, v5, s[{SRD_B}:{SRD_B+3}], s{S_T+7} offen{SF}")
    stamp(b, "p1 stores issued")
    if not SENT():
        b(f"  s_and_b32 s{S_T+8}, s2, 15")
        arrive(b, 0, S_T + 8, first=True, label="x1")
        stamp(b, "p1 arrived")

XL2, WL2 = 32, 40
WE = 204
TC2, TS2 = 64, 68
def p2_setup(b):
    srd(b, SRD_A, P_WS, 4 << 20, WS_X1)
    srd(b, SRD_B, P_WS, 4 << 20, WS_X2)
    srd(b, SRD_C, P_WR, WB)
    srd(b, SRD_D, P_WI, WB)
    b(f"  s_and_b32 s{S_T}, s2, 7              ; j1")
    b(f"  s_lshr_b32 s{S_T+1}, s2, 3           ; kb")
    b(f"  v_and_b32 v10, 1, v0                 ; half")
    b(f"  v_bfe_u32 v11, v0, 5, 4              ; c")
    b(f"  v_bfe_u32 v12, v0, 1, 4              ; e")
    b(f"  v_lshl_add_u32 v13, v12, 4, v11      ; j2")
    b(f"  v_lshlrev_b32 v13, 3, v13")
    b(f"  v_add_u32 v13, s{S_T}, v13           ; j")
    b(f"  v_mul_u32_u24 v13, 1026, v13")
    b(f"  v_lshlrev_b32 v14, 4, v10")
    b(f"  v_add_u32 v14, v13, v14")
    b(f"  s_lshl_b32 s{S_T+3}, s{S_T+1}, 5")
    if "wearly" in OPT or "wmid" in OPT:
        b(f"  s_cmp_lg_u32 s{S_T+1}, 0")
        b(f"  s_cbranch_scc1 p2_nonyq")
        b(f"  s_waitcnt vmcnt(0)")
        b(f"  v_cmp_eq_u32 vcc, 0, v215")
        b(f"  v_and_b32 v50, 0xffff0000, v{WE}")
        b(f"  v_or_b32 v50, v50, v212")
        b(f"  v_cndmask_b32 v{WE}, v{WE}, v50, vcc")
        b(f"  v_and_b32 v50, 0xffff0000, v{WE+4}")
        b(f"  v_or_b32 v50, v50, v213")
        b(f"  v_cndmask_b32 v{WE+4}, v{WE+4}, v50, vcc")
        b.label("p2_nonyq")
    elif "wpack" in OPT:
        srd(b, SRD_C, P_WS, 4 << 20, WS_WP)
    elif "wlate" in OPT:
        b(f"  v_mov_b32 v24, v14")
        b(f"  v_mov_b32 v25, v13")
        b(f"  v_mov_b32 v26, v10                   ; half")
        b(f"  s_mov_b32 s45, s{S_T+3}              ; kb*32")
    else:
        WL = WL2
        b(f"  v_mov_b32 v24, v14")
        b(f"  v_mov_b32 v25, v13")
        b(f"  v_mov_b32 v26, v10                   ; half")
        b(f"  s_mov_b32 s45, s{S_T+3}              ; kb*32")
        WL = WL2
        b(f"  buffer_load_dwordx4 {vr(WL,4)}, v24, s[{SRD_C}:{SRD_C+3}], s45 offen{WF()}")
        b(f"  buffer_load_dwordx4 {vr(WL+4,4)}, v24, s[{SRD_D}:{SRD_D+3}], s45 offen{WF()}")
        b(f"  s_cmp_lg_u32 s{S_T+1}, 0")
        b(f"  s_cbranch_scc1 p2_nonyq")
        b(f"  buffer_load_ushort v48, v25, s[{SRD_C}:{SRD_C+3}], 0 offen offset:1024")
        b(f"  buffer_load_ushort v49, v25, s[{SRD_D}:{SRD_D+3}], 0 offen offset:1024")
        b(f"  s_waitcnt vmcnt(0)")
        b(f"  v_cmp_eq_u32 vcc, 0, v26")
        b(f"  v_and_b32 v50, 0xffff0000, v{WL}")
        b(f"  v_or_b32 v50, v50, v48")
        b(f"  v_cndmask_b32 v{WL}, v{WL}, v50, vcc")
        b(f"  v_and_b32 v50, 0xffff0000, v{WL+4}")
        b(f"  v_or_b32 v50, v50, v49")
        b(f"  v_cndmask_b32 v{WL+4}, v{WL+4}, v50, vcc")
        b.label("p2_nonyq")
        if "wdiag" in OPT:
            b(f"  s_waitcnt vmcnt(0)")
            stamp(b, "p2 w landed")
    if "es" in OPT:
        b(f"  s_cmp_ge_u32 s{S_W}, 2")
        b(f"  s_cbranch_scc1 p2_noclr")
        srd(b, SRD_PF, P_WS, 4 << 20, WS_LN2)
        for i in range(4): b(f"  v_mov_b32 v{200+i}, -1")
        b(f"  s_lshr_b32 s{S_T+8}, s2, 3")
        b(f"  s_lshl_b32 s{S_T+8}, s{S_T+8}, 17")
        b(f"  s_and_b32 s{S_T+9}, s2, 7")
        b(f"  s_lshl_b32 s{S_T+9}, s{S_T+9}, 11")
        b(f"  s_add_u32 s{S_T+8}, s{S_T+8}, s{S_T+9}")
        b(f"  v_lshlrev_b32 v2, 4, v0")
        b(f"  buffer_store_dwordx4 v[200:203], v2, s[{SRD_PF}:{SRD_PF+3}], s{S_T+8} offen{SF}")
        b.label("p2_noclr")
    npf = 0
    b(f"  v_and_b32 v15, 255, v0")
    b(f"  v_bfe_u32 v16, v15, 2, 4             ; x")
    b(f"  v_lshrrev_b32 v17, 6, v15            ; g")
    b(f"  v_and_b32 v18, 3, v15")
    b(f"  v_lshl_add_u32 v17, v17, 2, v18      ; 4g+i")
    b(f"  v_mul_u32_u24 v17, v17, v16")
    sincos(b, 18, 19, 17, 4, 20)
    b(f"  v_cmp_gt_u32 vcc, 256, v0            ; matrix 0 ?")
    b(f"  v_xor_b32 v20, 0x80000000, v19       ; -sin")
    b(f"  s_nop 0")
    b(f"  v_cndmask_b32 v21, v20, v18, vcc")
    b(f"  v_cndmask_b32 v22, v18, v19, vcc")
    b(f"  v_cvt_pk_bf16_f32 v21, v21, v22")
    b(f"  v_lshlrev_b32 v22, 2, v0")
    b(f"  ds_write_b32 v22, v21 offset:{L2_F}")
    b(f"  v_lshlrev_b32 v16, 2, v9")
    for r in range(4):
        b(f"  v_add_u32 v17, {r}, v16")
        b(f"  v_mul_u32_u24 v17, v17, v8")
        sincos(b, TC2 + r, TS2 + r, 17, 8, 20)
    b(f"  v_and_b32 v16, 3, v0                 ; i")
    b(f"  v_mul_u32_u24 v16, {4*1040}, v16")
    b(f"  v_lshrrev_b32 v17, 6, v0             ; b (0..7)")
    b(f"  v_lshl_add_u32 v16, v17, 6, v16")
    b(f"  v_bfe_u32 v17, v0, 2, 2              ; a&3")
    b(f"  v_lshl_add_u32 v16, v17, 2, v16")
    b(f"  v_bfe_u32 v17, v0, 4, 2              ; a>>2")
    b(f"  v_lshl_add_u32 v21, v17, 4, v16      ; first")
    b(f"  v_xor_b32 v17, 2, v17")
    b(f"  v_lshl_add_u32 v22, v17, 4, v16")
    b(f"  v_add_u32 v22, 512, v22              ; second (b+8)")
    b(f"  v_mul_u32_u24 v16, {4*1040}, v10")
    b(f"  v_lshl_add_u32 v16, v11, 6, v16")
    b(f"  v_and_b32 v17, 3, v12")
    b(f"  v_lshl_add_u32 v16, v17, 2, v16")
    b(f"  v_lshrrev_b32 v17, 2, v12")
    b(f"  v_lshrrev_b32 v18, 3, v11            ; c>>3")
    b(f"  v_lshlrev_b32 v18, 1, v18")
    b(f"  v_xor_b32 v17, v17, v18")
    b(f"  v_lshl_add_u32 v23, v17, 4, v16")
    b(f"  v_lshrrev_b32 v16, 3, v8")
    b(f"  v_lshlrev_b32 v16, 1, v16")
    b(f"  v_xor_b32 v16, v16, v9")
    b(f"  v_lshlrev_b32 v16, 4, v16")
    b(f"  v_lshl_add_u32 v16, v8, 6, v16")
    b(f"  s_mul_i32 s{S_T+4}, s{S_W}, {2*1040}")
    b(f"  s_mul_i32 s{S_T+5}, s{S_W}, 1040")
    b(f"  v_add_u32 v5, s{S_T+4}, v16")
    b(f"  v_add_u32 v6, s{S_T+5}, v16")
    b(f"  v_lshlrev_b32 v1, 4, v0")
    b(f"  s_lshl_b32 s{S_T+2}, s2, 14")
    b(f"  s_add_u32 s{S_T+3}, s{S_T+2}, 8192")
    b(f"  s_waitcnt lgkmcnt(0)")

def sentinel_check(b, R0, pre, n=8):
    b(f"  v_max3_u32 v16, v{R0}, v{R0+1}, v{R0+2}")
    b(f"  v_max3_u32 v17, v{R0+3}, v{R0+4}, v{R0+5}")
    b(f"  v_max3_u32 v16, v16, v{R0+6}, v{R0+7}")
    for i in range(8, n, 2): b(f"  v_max3_u32 v17, v17, v{R0+i}, v{R0+i+1}")
    b(f"  v_max_u32 v16, v16, v17")
    b(f"  v_cmp_eq_u32 vcc, -1, v16")
    b(f"  s_sub_u32 s11, s11, 1")
    b(f"  s_cmp_eq_u32 s11, 0")
    b(f"  s_cbranch_scc1 {pre}_got")
    b(f"  s_cmp_lg_u64 vcc, 0")
    b(f"  s_cbranch_scc1 {pre}_poll")
    b.label(f"{pre}_got")

def p2_main(b):
    XL = XL2; TC, TS = TC2, TS2
    if SENT():
        b(f"  s_mov_b32 s11, 200000")
        b.label("p2_poll")
    b(f"  buffer_load_dwordx4 {vr(XL,4)}, v1, s[{SRD_A}:{SRD_A+3}], s{S_T+2} offen sc1")
    b(f"  buffer_load_dwordx4 {vr(XL+4,4)}, v1, s[{SRD_A}:{SRD_A+3}], s{S_T+3} offen sc1")
    if "wpack" in OPT:
        WL = WL2
        b(f"  buffer_load_dwordx4 {vr(WL,4)}, v1, s[{SRD_C}:{SRD_C+3}], s{S_T+2} offen sc1")
        b(f"  buffer_load_dwordx4 {vr(WL+4,4)}, v1, s[{SRD_C}:{SRD_C+3}], s{S_T+3} offen sc1")
        b(f"  s_waitcnt vmcnt(2)")
    elif "wlate" in OPT:
        assert not SENT()
        WL = WL2
        b(f"  buffer_load_dwordx4 {vr(WL,4)}, v24, s[{SRD_C}:{SRD_C+3}], s45 offen{WF()}")
        b(f"  buffer_load_dwordx4 {vr(WL+4,4)}, v24, s[{SRD_D}:{SRD_D+3}], s45 offen{WF()}")
        b(f"  s_cmp_lg_u32 s{S_T+1}, 0")
        b(f"  s_cbranch_scc1 p2_nonyq")
        b(f"  buffer_load_ushort v56, v25, s[{SRD_C}:{SRD_C+3}], 0 offen offset:1024")
        b(f"  buffer_load_ushort v57, v25, s[{SRD_D}:{SRD_D+3}], 0 offen offset:1024")
        b(f"  s_waitcnt vmcnt(0)")
        b(f"  v_cmp_eq_u32 vcc, 0, v26")
        b(f"  v_and_b32 v58, 0xffff0000, v{WL}")
        b(f"  v_or_b32 v58, v58, v56")
        b(f"  v_cndmask_b32 v{WL}, v{WL}, v58, vcc")
        b(f"  v_and_b32 v58, 0xffff0000, v{WL+4}")
        b(f"  v_or_b32 v58, v58, v57")
        b(f"  v_cndmask_b32 v{WL+4}, v{WL+4}, v58, vcc")
        b.label("p2_nonyq")
        b(f"  s_waitcnt vmcnt(2)")
    else:
        b(f"  s_waitcnt vmcnt(0)")
    if SENT(): sentinel_check(b, XL, "p2")
    WL = WE if ("wearly" in OPT or "wmid" in OPT) else WL2
    b(f"  v_lshlrev_b32 v17, 4, v7")
    FR, FI = 72, 76
    AX = 48; WR, WI = 152, 156
    b(f"  ds_read_b128 {vr(FR,4)}, v17 offset:{L2_F}")
    b(f"  ds_read_b128 {vr(FI,4)}, v17 offset:{L2_F+1024}")
    Dq = [80, 88]; Oq = [96, 104]; Tq = [112, 120]; Pq = [128, 132]; Wq = [136, 144]
    stamp(b, "p2 x landed")
    for j in range(4):
        b(f"  ds_write_b32 v21, v{XL+j} offset:{L2_X + j*1040}")
        b(f"  ds_write_b32 v22, v{XL+4+j} offset:{L2_X + j*1040}")
    if "wlate" in OPT or "wpack" in OPT: b(f"  s_waitcnt vmcnt(0)")
    for j in range(4):
        b(f"  ds_write_b32 v23, v{WL+j} offset:{L2_W + j*1040}")
        b(f"  ds_write_b32 v23, v{WL+4+j} offset:{L2_W + 8*1040 + j*1040}")
    if "nopf" not in OPT and "ntw1" not in OPT and PFN[1]:
        w1_share_base(b, S_T + 8, PFN[0] * 4096)
        pf_wide(b, P_W1, W1B, S_T + 8, PFN[1], 4, 8, "pf_p2a")
    b(f"  s_waitcnt lgkmcnt(0)")
    b(f"  s_barrier")
    b(f"  ds_read_b128 {vr(AX,4)}, v5 offset:{L2_X}")
    b(f"  ds_read_b128 {vr(AX+4,4)}, v5 offset:{L2_X+1040}")
    b(f"  ds_read_b128 {vr(WR,4)}, v6 offset:{L2_W}")
    b(f"  ds_read_b128 {vr(WI,4)}, v6 offset:{L2_W+8*1040}")
    def stage(form, src):
        for k in range(2):
            d = Dq[k]
            if form == 'A':
                b(f"  {MF32} {vr(d,4)}, {vr(src[k],4)}, {vr(FR,4)}, 0")
                b(f"  {MF32} {vr(d+4,4)}, {vr(src[k],4)}, {vr(FI,4)}, 0")
            else:
                b(f"  {MF32} {vr(d,4)}, {vr(FR,4)}, {vr(src[k],4)}, 0")
                b(f"  {MF32} {vr(d+4,4)}, {vr(FI,4)}, {vr(src[k],4)}, 0")
    def twiddle_pack():
        for k in range(2):
            cmul_pk(b, Oq[k], Oq[k] + 4, Dq[k], Dq[k] + 4, TC, TS, Tq[k], False)
        for k in range(2):
            for r in range(4):
                b(f"  v_cvt_pk_bf16_f32 v{Pq[k]+r}, v{Oq[k]+r}, v{Oq[k]+4+r}")
        b(f"  s_nop 1")
    b(f"  s_waitcnt lgkmcnt(2)")
    stage('A', [AX, AX + 4])
    b(f"  s_waitcnt lgkmcnt(0)")
    for r in range(4):
        b(f"  v_lshlrev_b32 v{Wq[0]+r}, 16, v{WR+r}")
        b(f"  v_lshlrev_b32 v{Wq[0]+4+r}, 16, v{WI+r}")
        b(f"  v_and_b32 v{Wq[1]+r}, 0xffff0000, v{WR+r}")
        b(f"  v_and_b32 v{Wq[1]+4+r}, 0xffff0000, v{WI+r}")
    twiddle_pack()
    stage('B', Pq)
    b(f"  s_nop 5")
    for k in range(2):
        cmul_pk(b, Oq[k], Oq[k] + 4, Dq[k], Dq[k] + 4, Wq[k], Wq[k] + 4, Tq[k], True)
    for k in range(2):
        for r in range(4):
            b(f"  v_cvt_pk_bf16_f32 v{Pq[k]+r}, v{Oq[k]+r}, -v{Oq[k]+4+r}")
    b(f"  s_nop 1")
    stage('A', Pq)
    b(f"  s_nop 5")
    twiddle_pack()
    stage('B', Pq)
    b(f"  s_nop 5")
    for k in range(2):
        for r in range(4):
            b(f"  v_cvt_pk_bf16_f32 v{Pq[k]+r}, v{Dq[k]+r}, -v{Dq[k]+4+r}")
    b(f"  ds_write_b128 v5, {vr(Pq[0],4)} offset:{L2_X}")
    b(f"  ds_write_b128 v5, {vr(Pq[1],4)} offset:{L2_X+1040}")
    b(f"  s_waitcnt lgkmcnt(0)")
    b(f"  s_barrier")
    for j in range(4):
        b(f"  ds_read_b32 v{XL+j}, v21 offset:{L2_X + j*1040}")
        b(f"  ds_read_b32 v{XL+4+j}, v22 offset:{L2_X + j*1040}")
    b(f"  v_bfe_u32 v16, v0, 2, 4              ; a")
    b(f"  v_lshrrev_b32 v17, 6, v0             ; b")
    b(f"  v_lshl_add_u32 v16, v16, 4, v17      ; s1")
    b(f"  v_lshlrev_b32 v16, 14, v16")
    b(f"  v_and_b32 v17, 3, v0")
    b(f"  v_lshl_add_u32 v16, v17, 4, v16")
    b(f"  s_lshl_b32 s{S_T+4}, s{S_T}, 11")
    b(f"  s_lshl_b32 s{S_T+5}, s{S_T+1}, 6")
    b(f"  s_add_u32 s{S_T+4}, s{S_T+4}, s{S_T+5}")
    b(f"  s_add_u32 s{S_T+5}, s{S_T+4}, {8*16384}")
    b(f"  s_waitcnt lgkmcnt(0)")
    if SENT2():
        for j in range(8): b(f"  v_min_u32 v{XL+j}, 0xfffffffe, v{XL+j}")
    b(f"  buffer_store_dwordx4 {vr(XL,4)}, v16, s[{SRD_B}:{SRD_B+3}], s{S_T+4} offen{SF}")
    b(f"  buffer_store_dwordx4 {vr(XL+4,4)}, v16, s[{SRD_B}:{SRD_B+3}], s{S_T+5} offen{SF}")
    stamp(b, "p2 stores issued")
    if not SENT2():
        b(f"  s_and_b32 s{S_T+8}, s2, 15")
        arrive(b, 1, S_T + 8, label="x2")

V_LO = 224
S_G1A = 60
def g1_ids(b):
    b(f"  s_lshr_b32 s{S_T}, s2, 3                 ; i")
    b(f"  s_cmp_lt_u32 s{S_T}, 28")
    b(f"  s_cselect_b32 s62, 1, 0")
    b(f"  s_mul_i32 s{S_T+1}, s{S_T}, 37")
    b(f"  s_lshr_b32 s{S_T+1}, s{S_T+1}, 8         ; i/7")
    b(f"  s_mul_i32 s{S_T+2}, s{S_T+1}, 7")
    b(f"  s_sub_u32 s{S_T+2}, s{S_T}, s{S_T+2}     ; i%7")
    b(f"  s_and_b32 s{S_T+3}, s2, 7")
    b(f"  s_lshr_b32 s{S_T+4}, s{S_T+3}, 1")
    b(f"  s_mul_i32 s{S_T+4}, s{S_T+4}, 7")
    b(f"  s_add_u32 s60, s{S_T+4}, s{S_T+2}        ; ft")
    b(f"  s_and_b32 s{S_T+3}, s{S_T+3}, 1")
    b(f"  s_lshl_b32 s{S_T+3}, s{S_T+3}, 2")
    b(f"  s_add_u32 s61, s{S_T+3}, s{S_T+1}        ; dt")

S_SOFF, S_M0, S_N = 4, 5, 6
def loader_issue(b, voff, fl=""):
    for i in range(4):
        b(f"  s_add_u32 m0, s{S_M0}, {4096*i}")
        b(f"  s_nop 0")
        b(f"  buffer_load_dwordx4 v{voff+i}, s[{SRD_T}:{SRD_T+3}], s{S_SOFF} offen{fl} lds")
    b(f"  s_add_u32 s{S_SOFF}, s{S_SOFF}, s9")
    b(f"  s_add_u32 s{S_M0}, s{S_M0}, {STAGE}")
    b(f"  s_cmp_ge_u32 s{S_M0}, s{S_N+1}")
    b(f"  s_cselect_b32 s{S_N+2}, {R*STAGE}, 0")
    b(f"  s_sub_u32 s{S_M0}, s{S_M0}, s{S_N+2}")

def loader_init(b, step_bytes):
    b(f"  s_sub_u32 s50, s{S_W}, 4")
    b(f"  s_lshl_b32 s{S_M0}, s50, 10")
    b(f"  s_add_u32 s{S_N+1}, s{S_M0}, {R*STAGE}")
    b(f"  s_mov_b32 s{S_SOFF}, 0")
    b(f"  s_mov_b32 s9, {step_bytes}")

def g1_loader_addr(b):
    b(f"  s_sub_u32 s50, s{S_W}, 4      ; w'")
    for i in range(4):
        b(f"  s_lshl_b32 s49, s50, 2")
        b(f"  s_add_u32 s49, s49, {16*i}")
        b(f"  v_lshrrev_b32 v14, 4, v7")
        b(f"  v_add_u32 v14, s49, v14                 ; row 0..63")
        b(f"  v_and_b32 v15, 3, v14")
        b(f"  v_lshlrev_b32 v15, 2, v15")
        if M16G1():
            b(f"  v_bfe_u32 v16, v14, 3, 1")
            b(f"  v_lshl_add_u32 v15, v16, 1, v15")
        b(f"  v_and_b32 v16, 15, v7")
        b(f"  v_xor_b32 v16, v16, v15                 ; q")
        b(f"  v_lshrrev_b32 v17, 3, v14")
        b(f"  v_and_b32 v18, 7, v14")
        b(f"  v_lshl_add_u32 v17, v18, 8, v17         ; s")
        b(f"  v_mul_u32_u24 v17, 7168, v17")
        b(f"  v_lshl_add_u32 v17, v16, 4, v17")
        b(f"  s_lshl_b32 s49, s60, 8")
        b(f"  v_add_u32 v{V_LO+i}, s49, v17")

def g2_ids(b):
    if SK():
        b(f"  s_lshr_b32 s{S_T+1}, s2, 3")
        b(f"  s_lshr_b32 s{S_TILE_A}, s{S_T+1}, 2          ; dt")
        b(f"  s_lshr_b32 s{S_T}, s2, 1")
        b(f"  s_and_b32 s{S_T}, s{S_T}, 3")
        b(f"  s_lshl_b32 s{S_T}, s{S_T}, 2")
        b(f"  s_and_b32 s{S_T+1}, s{S_T+1}, 3")
        b(f"  s_add_u32 s{S_TILE_B}, s{S_T}, s{S_T+1}      ; st2")
        b(f"  s_and_b32 s19, s2, 1                       ; kh")
        return
    b(f"  s_and_b32 s{S_T}, s2, 1")
    b(f"  s_lshl_b32 s{S_T}, s{S_T}, 2")
    b(f"  s_lshr_b32 s{S_T+1}, s2, 3")
    b(f"  s_and_b32 s{S_T+2}, s{S_T+1}, 3")
    b(f"  s_add_u32 s{S_TILE_A}, s{S_T}, s{S_T+2}     ; dt")
    b(f"  s_lshr_b32 s{S_T}, s2, 1")
    b(f"  s_and_b32 s{S_T}, s{S_T}, 3")
    b(f"  s_lshl_b32 s{S_T}, s{S_T}, 3")
    b(f"  s_lshr_b32 s{S_T+1}, s{S_T+1}, 2")
    b(f"  s_add_u32 s{S_TILE_B}, s{S_T}, s{S_T+1}     ; st")

def g2_loader_addr(b):
    if SK():
        b(f"  s_sub_u32 s50, s{S_W}, 4")
        for i in range(4):
            b(f"  s_lshl_b32 s49, s50, 2")
            b(f"  s_add_u32 s49, s49, {16*i}")
            b(f"  v_lshrrev_b32 v14, 4, v7")
            b(f"  v_add_u32 v14, s49, v14                 ; row 0..63")
            b(f"  v_and_b32 v15, 3, v14")
            b(f"  v_lshlrev_b32 v15, 2, v15")
            if M16G2():
                b(f"  v_bfe_u32 v16, v14, 3, 1")
                b(f"  v_lshl_add_u32 v15, v16, 1, v15")
            b(f"  v_and_b32 v16, 15, v7")
            b(f"  v_xor_b32 v16, v16, v15                 ; q")
            b(f"  v_lshlrev_b32 v14, 12, v14              ; row*4096")
            b(f"  v_lshl_add_u32 v14, v16, 4, v14")
            b(f"  s_lshl_b32 s49, s{S_TILE_B}, 8          ; s0*2")
            b(f"  s_mul_i32 s48, s19, {1792*4096}         ; k half")
            b(f"  s_add_u32 s49, s49, s48")
            b(f"  v_add_u32 v{V_LO+i}, s49, v14")
        return
    b(f"  s_sub_u32 s50, s{S_W}, 4")
    for i in range(4):
        b(f"  s_lshl_b32 s49, s50, 3")
        b(f"  s_add_u32 s49, s49, {32*i}")
        b(f"  v_lshrrev_b32 v14, 3, v7")
        b(f"  v_add_u32 v14, s49, v14                 ; row")
        b(f"  v_bfe_u32 v15, v14, 1, 1")
        b(f"  v_lshlrev_b32 v15, 2, v15")
        b(f"  v_and_b32 v16, 7, v7")
        b(f"  v_xor_b32 v16, v16, v15                 ; q")
        b(f"  v_lshlrev_b32 v14, 12, v14              ; row*4096")
        b(f"  v_lshl_add_u32 v14, v16, 4, v14")
        b(f"  s_lshl_b32 s49, s{S_TILE_B}, 7          ; s0*2")
        b(f"  v_add_u32 v{V_LO+i}, s49, v14")

def loader_loop(b, NS, pre, fl=""):
    if "priol" in OPT: b("  s_setprio 2")
    if "oldstart" in OPT:
        for n in range(R - 4): loader_issue(b, V_LO, fl)
        nmain = NS - (R - 2)
    else:
        b(f"  s_waitcnt vmcnt(4)")
        b("  s_barrier                      ; B_0")
        for n in range(R - 3): loader_issue(b, V_LO, fl)
        nmain = NS - (R - 2) - 1
    b(f"  s_mov_b32 s{S_N}, {nmain}")
    b.label(f"{pre}_lloop")
    b(f"  s_waitcnt vmcnt({(R-3)*4})")
    b("  s_barrier")
    loader_issue(b, V_LO, fl)
    b(f"  s_sub_u32 s{S_N}, s{S_N}, 1")
    b(f"  s_cmp_lg_u32 s{S_N}, 0")
    b(f"  s_cbranch_scc1 {pre}_lloop")
    for i in range(R - 2):
        b(f"  s_waitcnt vmcnt({(R-3-i)*4})")
        b("  s_barrier")

BD3 = 32; XR3 = 192; GM3 = 30
def p3_tables(b):
    b(f"  v_and_b32 v10, 255, v0            ; e")
    b(f"  v_lshrrev_b32 v11, 8, v0")
    b(f"  v_bfe_u32 v12, v10, 2, 4          ; n = lane&15")
    b(f"  v_lshrrev_b32 v13, 6, v10         ; g")
    b(f"  v_and_b32 v14, 3, v10             ; r")
    b(f"  v_lshl_add_u32 v13, v13, 2, v14   ; 4g + r")
    b(f"  v_lshrrev_b32 v15, 2, v12")
    b(f"  v_lshlrev_b32 v15, 3, v15")
    b(f"  v_and_b32 v16, 3, v12")
    b(f"  v_add_u32 v15, v15, v16           ; b(n,0)")
    b(f"  v_lshl_add_u32 v16, v11, 2, v15   ; b(n, sel)")
    b(f"  v_mul_u32_u24 v17, v16, v13")
    sincos(b, 18, 19, 17, 5, 20)
    b(f"  v_lshlrev_b32 v22, 2, v10")
    b(f"  v_lshl_add_u32 v22, v11, 11, v22  ; sel*2048 + e*4")
    b(f"  v_add_u32 v22, {L3_M3}, v22")
    b(f"  v_cvt_pk_bf16_f32 v23, v18, -v19")
    b(f"  v_cvt_pk_bf16_f32 v24, v19, v18")
    b(f"  ds_write_b32 v22, v23")
    b(f"  ds_write_b32 v22, v24 offset:1024")
    b(f"  v_lshl_add_u32 v17, v11, 4, v13   ; k1")
    for z in range(2):
        b(f"  v_add_u32 v21, {16*z}, v12")
        b(f"  v_mul_u32_u24 v21, v21, v17")
        sincos(b, 18, 19, 21, 5, 20)
        b(f"  v_add_f32 v18, v18, v18")
        b(f"  v_mul_f32 v19, -2.0, v19")
        b(f"  v_cvt_pk_bf16_f32 v23, v18, v19")
        b(f"  ds_write_b32 v22, v23 offset:{4096+1024*z}")
    b(f"  v_lshlrev_b32 v23, 2, v10")
    b(f"  v_lshl_add_u32 v23, v11, 12, v23   ; u*4096 + e*4")
    b(f"  v_add_u32 v23, {L3_TW}, v23")
    for v in range(2):
        b(f"  v_add_u32 v21, {4*v}, v15")
        b(f"  v_mul_u32_u24 v21, v21, v17")
        sincos(b, 18, 19, 21, 10, 20)
        b(f"  ds_write_b32 v23, v18 offset:{2048*v}")
        b(f"  ds_write_b32 v23, v19 offset:{2048*v+1024}")

def p3_setup(b):
    srd(b, SRD_A, P_WS, 4 << 20, WS_X2)
    srd(b, SRD_B, P_X, 4 << 20)
    srd(b, SRD_C, P_WS, 4 << 20, WS_H)
    srd(b, SRD_D, P_WS, 4 << 20, WS_LN2)
    b(f"  s_lshl_b32 s{S_T+3}, s{S_W}, 8")
    b(f"  s_add_u32 s{S_T+3}, s{S_T+3}, s2")
    b(f"  s_lshl_b32 s{S_T+3}, s{S_T+3}, 11       ; s*2048")
    b(f"  v_lshlrev_b32 v4, 6, v8")
    b(f"  v_lshl_add_u32 v4, v9, 4, v4")
    if "stash" in OPT:
        b(f"  s_lshl_b32 s{S_T+9}, s{S_W}, 11")
        b(f"  s_add_u32 s{S_T+9}, s{S_T+9}, {L_XS}")
        b(f"  v_add_u32 v2, s{S_T+9}, v4")
        for z in range(2): b(f"  ds_read_b128 {vr(XR3+4*z,4)}, v2 offset:{1024*z}")
    else:
      for z in range(2):
        b(f"  buffer_load_dwordx4 {vr(XR3+4*z,4)}, v4, s[{SRD_B}:{SRD_B+3}], s{S_T+3} offen offset:{1024*z}")
    b(f"  s_mov_b32 s63, s{S_T+3}")
    if SK():
        srd(b, SRD_PF, P_WS, 4 << 20, WS_XCH)
        for i in range(4): b(f"  v_mov_b32 v{200+i}, -1")
        b(f"  v_lshlrev_b32 v2, 4, v0")
        b(f"  s_lshl_b32 s{S_T+8}, s2, 14")
        b(f"  buffer_store_dwordx4 v[200:203], v2, s[{SRD_PF}:{SRD_PF+3}], s{S_T+8} offen{SF}")
        b(f"  s_add_u32 s{S_T+8}, s{S_T+8}, 8192")
        b(f"  buffer_store_dwordx4 v[200:203], v2, s[{SRD_PF}:{SRD_PF+3}], s{S_T+8} offen{SF}")
    if "es" in OPT:
        b(f"  s_cmp_ge_u32 s{S_W}, 4")
        b(f"  s_cbranch_scc1 p3_noclr")
        srd(b, SRD_PF, P_WS, U_BYTES, WS_U)
        b(f"  s_lshr_b32 s{S_T+8}, s2, 3            ; dblk")
        b(f"  s_mul_i32 s{S_T+8}, s{S_T+8}, 229376")
        b(f"  s_lshr_b32 s{S_T+9}, s2, 2")
        b(f"  s_and_b32 s{S_T+9}, s{S_T+9}, 1       ; k half")
        b(f"  s_mul_i32 s{S_T+9}, s{S_T+9}, {112*1024}")
        b(f"  s_add_u32 s{S_T+8}, s{S_T+8}, s{S_T+9}")
        b(f"  s_and_b32 s{S_T+9}, s2, 3")
        b(f"  s_lshl_b32 s{S_T+9}, s{S_T+9}, 12")
        b(f"  s_add_u32 s{S_T+8}, s{S_T+8}, s{S_T+9}")
        b(f"  buffer_store_dwordx4 v[200:203], v2, s[{SRD_PF}:{SRD_PF+3}], s{S_T+8} offen{SF}")
        b.label("p3_noclr")
    if "nopf" not in OPT and "ntw1" not in OPT:
        if PFN[2]:
            w1_share_base(b, S_T + 8, (PFN[0] + PFN[1]) * 4096)
            pf_wide(b, P_W1, W1B, S_T + 8, PFN[2], 4, 8, "pf_p3a")
    g1_ids(b)
    g1_loader_addr(b)
    loader_init(b, 8 * 7168)
    p3_tables(b)
    gmat(b, GM3, 2, True, 10)
    b(f"  v_lshlrev_b32 v1, 12, v9")
    b(f"  v_lshl_add_u32 v1, v8, 2, v1")
    b(f"  s_lshl_b32 s{S_T}, s2, 14")
    b(f"  s_and_b32 s{S_T+1}, s{S_W}, 1")
    b(f"  s_lshl_b32 s{S_T+1}, s{S_T+1}, 6")
    b(f"  s_lshr_b32 s{S_T+2}, s{S_W}, 1")
    b(f"  s_lshl_b32 s{S_T+2}, s{S_T+2}, 9")
    b(f"  s_add_u32 s{S_T}, s{S_T}, s{S_T+1}")
    b(f"  s_add_u32 s44, s{S_T}, s{S_T+2}          ; X2 soffset")
    b(f"  s_lshl_b32 s{S_T+1}, s{S_T+1}, 4        ; u*1024")
    b(f"  s_lshr_b32 s{S_T+2}, s{S_T+2}, 1        ; q4*256")
    b(f"  s_add_u32 s45, s{S_T+1}, s{S_T+2}")
    b(f"  s_waitcnt lgkmcnt(0)")

def p3_main(b):
    Bd, XR, GM = BD3, XR3, GM3
    D = 40
    b(f"  v_lshlrev_b32 v3, 12, v9")
    b(f"  v_lshl_add_u32 v3, v8, 4, v3")
    b(f"  v_add_u32 v3, s45, v3")
    b(f"  v_add_u32 v3, {L3_EX}, v3")
    M3, M4, TW = 96, 112, 128
    b(f"  v_lshlrev_b32 v6, 4, v7")
    b(f"  v_add_u32 v6, {L3_M3}, v6")
    for i in range(4): b(f"  ds_read_b128 {vr(M3+4*i,4)}, v6 offset:{1024*i}")
    for i in range(4): b(f"  ds_read_b128 {vr(M4+4*i,4)}, v6 offset:{4096+1024*i}")
    b(f"  s_waitcnt lgkmcnt(0)")
    for i in range(8): b(f"  ds_read_b128 {vr(TW+4*i,4)}, v6 offset:{8192+1024*i}")
    if SENT2():
        b(f"  s_mov_b32 s11, 200000")
        b.label("p3_poll")
    for i in range(4):
        for e in range(2):
            b(f"  buffer_load_dword v{Bd+2*i+e}, v1, s[{SRD_A}:{SRD_A+3}], s44 offen offset:{e*2048+i*128} sc1")
    b(f"  s_waitcnt vmcnt(0)")
    if SENT2(): sentinel_check(b, Bd, "p3")
    stamp(b, "p3 x2 landed")
    if "nopf" not in OPT and "ntw1" not in OPT and PFN[3]:
        w1_share_base(b, S_T + 8, (PFN[0] + PFN[1] + PFN[2]) * 4096)
        pf_wide(b, P_W1, W1B, S_T + 8, PFN[3], 4, 8, "pf_p3b")
    for i in range(4):
        b(f"  {MF16} {vr(D+4*i,4)}, {vr(GM,2)}, {vr(Bd+2*i,2)}, 0")
    b(f"  s_nop 4")
    PK = 56
    for e in range(2):
        for i in range(4):
            b(f"  v_cvt_pk_bf16_f32 v{PK+4*e+i}, v{D+4*i+2*e}, v{D+4*i+2*e+1}")
    b(f"  ds_write_b128 v3, {vr(PK,4)}")
    b(f"  ds_write_b128 v3, {vr(PK+4,4)} offset:2048")
    b(f"  s_waitcnt lgkmcnt(0)")
    b(f"  s_barrier")
    b(f"  v_lshlrev_b32 v5, 8, v9")
    b(f"  v_lshl_add_u32 v5, v8, 4, v5")
    b(f"  s_lshl_b32 s{S_T+1}, s{S_W}, 11")
    b(f"  s_add_u32 s{S_T+1}, s{S_T+1}, {L3_EX}")
    b(f"  v_add_u32 v5, s{S_T+1}, v5")
    AU = 32
    b(f"  ds_read_b128 {vr(AU,4)}, v5")
    b(f"  ds_read_b128 {vr(AU+4,4)}, v5 offset:1024")
    b(f"  s_waitcnt lgkmcnt(0)")
    b(f"  v_readlane_b32 s{S_T+4}, v{AU}, 0")
    b(f"  v_writelane_b32 v{AU}, 0, 0")
    b(f"  s_nop 1")
    b(f"  s_lshl_b32 s{S_T+4}, s{S_T+4}, 16")
    TT = 160
    for u in range(2):
        for v in range(2):
            for c in range(2):
                d = TT + ((u * 2 + v) * 2 + c) * 4
                b(f"  {MF32} {vr(d,4)}, {vr(AU+4*u,4)}, {vr(M3+4*(2*v+c),4)}, 0")
    CI = 60
    b(f"  v_mov_b32 v{CI}, s{S_T+4}")
    b(f"  v_xor_b32 v{CI+1}, 0x80000000, v{CI}")
    b(f"  v_mov_b32 v{CI+2}, v{CI}")
    b(f"  v_mov_b32 v{CI+3}, v{CI+1}")
    b(f"  s_nop 1")
    A2 = 64; O = 40; W = 80
    for u in range(2):
        for v in range(2):
            t = TT + ((u * 2 + v) * 2) * 4
            tw = TW + ((u * 2 + v) * 2) * 4
            cmul_pk(b, O, O + 4, t, t + 4, tw, tw + 4, W, True)
            for r in range(4):
                b(f"  v_cvt_pk_bf16_f32 v{A2+(u*2+v)*4+r}, v{O+r}, v{O+4+r}")
    Y = 160
    b(f"  s_nop 1")
    for z in range(2):
        for v in range(2):
            d = Y + (z * 2 + v) * 4
            b(f"  {MF32} {vr(d,4)}, {vr(A2+(0*2+v)*4,4)}, {vr(M4+(0*2+z)*4,4)}, {vr(CI,4)}")
    for z in range(2):
        for v in range(2):
            d = Y + (z * 2 + v) * 4
            b(f"  {MF32} {vr(d,4)}, {vr(A2+(1*2+v)*4,4)}, {vr(M4+(1*2+z)*4,4)}, {vr(d,4)}")
    b(f"  s_nop 7")
    X = 40; HP = 32
    stamp(b, "p3 ifft done")
    for z in range(2):
        for dd in range(4):
            y0 = Y + z * 8 + 2 * dd
            xd = XR + 4 * z + dd
            t = 64 + 2 * (dd % 4)
            b(f"  v_lshlrev_b32 v{t}, 16, v{xd}")
            b(f"  v_and_b32 v{t+1}, 0xffff0000, v{xd}")
            b(f"  v_pk_add_f32 {vr(t,2)}, {vr(t,2)}, {vr(y0,2)}")
            b(f"  v_cvt_pk_bf16_f32 v{HP+4*z+dd}, v{t}, v{t+1}")
    for z in range(2):
        b(f"  buffer_store_dwordx4 {vr(HP+4*z,4)}, v4, s[{SRD_C}:{SRD_C+3}], s63 offen offset:{1024*z}{SF}")
    for i in range(8):
        b(f"  v_lshlrev_b32 v{X+2*i}, 16, v{HP+i}")
        b(f"  v_and_b32 v{X+2*i+1}, 0xffff0000, v{HP+i}")
    ln_fast(b, X, 64, S_T + 4, False)
    LP = 72
    stamp(b, "p3 ln done")
    for i in range(8):
        b(f"  v_cvt_pk_bf16_f32 v{LP+i}, v{X+2*i}, v{X+2*i+1}")
    b(f"  v_mul_u32_u24 v3, 80, v8")
    b(f"  v_lshl_add_u32 v3, v9, 4, v3")
    b(f"  s_mul_i32 s{S_T+1}, s{S_W}, {L3_RS}")
    b(f"  s_add_u32 s{S_T+1}, s{S_T+1}, {L3_LN}")
    b(f"  v_add_u32 v3, s{S_T+1}, v3")
    for z in range(2):
        b(f"  ds_write_b128 v3, {vr(LP+4*z,4)} offset:{z*16*80}")
    b(f"  s_waitcnt lgkmcnt(0)")
    b(f"  s_barrier")
    b(f"  v_bfe_u32 v10, v7, 2, 2")
    b(f"  v_mul_u32_u24 v10, {L3_RS}, v10")
    b(f"  v_lshrrev_b32 v11, 5, v7")
    b(f"  v_mul_u32_u24 v12, 80, v11")
    b(f"  v_add_u32 v10, v10, v12")
    if M16G2():
        b(f"  v_and_b32 v12, 3, v7")
        b(f"  v_lshl_add_u32 v10, v12, 4, v10")
        b(f"  v_bfe_u32 v12, v7, 4, 1")
        b(f"  v_lshl_add_u32 v10, v12, 3, v10")
    else:
        b(f"  v_and_b32 v12, 1, v7")
        b(f"  v_lshl_add_u32 v10, v12, 5, v10")
        b(f"  v_bfe_u32 v12, v7, 4, 1")
        b(f"  v_lshl_add_u32 v10, v12, 4, v10")
        b(f"  v_bfe_u32 v12, v7, 1, 1")
        b(f"  v_lshl_add_u32 v10, v12, 3, v10")
    b(f"  s_mul_i32 s{S_T+1}, s{S_W}, {4*80}")
    b(f"  s_add_u32 s{S_T+1}, s{S_T+1}, {L3_LN}")
    b(f"  v_add_u32 v10, s{S_T+1}, v10")
    for ps in range(2):
        b(f"  ds_read_b64_tr_b16 {vr(32+4*ps,2)}, v10 offset:{ps*160}")
        b(f"  ds_read_b64_tr_b16 {vr(34+4*ps,2)}, v10 offset:{ps*160 + 4*L3_RS}")
    b(f"  v_lshlrev_b32 v11, 17, v11")
    b(f"  v_and_b32 v12, 31, v7")
    b(f"  v_lshl_add_u32 v11, v12, 4, v11")
    b(f"  s_lshl_b32 s{S_T+1}, s{S_W}, 19")
    b(f"  s_lshl_b32 s{S_T+2}, s2, 9")
    b(f"  s_add_u32 s{S_T+1}, s{S_T+1}, s{S_T+2}")
    b(f"  s_add_u32 s{S_T+2}, s{S_T+1}, {2*131072}")
    b(f"  s_waitcnt lgkmcnt(2)")
    if "es" in OPT:
        for i in range(4): b(f"  v_min_u32 v{32+i}, 0xfffffffe, v{32+i}")
    b(f"  buffer_store_dwordx4 v[32:35], v11, s[{SRD_D}:{SRD_D+3}], s{S_T+1} offen{SF}")
    b(f"  s_waitcnt lgkmcnt(0)")
    if "es" in OPT:
        for i in range(4): b(f"  v_min_u32 v{36+i}, 0xfffffffe, v{36+i}")
    b(f"  buffer_store_dwordx4 v[36:39], v11, s[{SRD_D}:{SRD_D+3}], s{S_T+2} offen{SF}")
    stamp(b, "p3 stores issued")
    b(f"  s_and_b32 s{S_T+8}, s2, 15")
    arrive(b, 2, S_T + 8, label="x3")
    srd(b, SRD_T, P_W1, W1B)
    b(f"  s_cmp_lt_u32 s{S_W}, 4")
    b(f"  s_cbranch_scc1 p3_nodma")
    b(f"  s_cmp_eq_u32 s62, 0")
    b(f"  s_cbranch_scc1 p3_nodma")
    for n in range(2): loader_issue(b, V_LO, W1F())
    b.label("p3_nodma")

def gemm_core(b, c, pre, after_setup, after_prologue=None, posts=None):
    NB, NS = c.NB, c.NS
    acc = lambda nb: V_ACC + nb * 16
    VT = V_ACC + NB * 16
    VPR = VT + 32
    c.VT, c.VPR = VT, VPR
    c.vend = VPR + 4 * PR
    tf = lambda q: VT + (q % 8) * 4
    pr = lambda j: VPR + (j % PR) * 4
    FPI = 64
    KPI = FPI // NB
    def tread(q):
        ql = q % FPI
        lslot, within = ql // 16, ql % 16
        ks, nb = within // NB, within % NB
        off = lslot * STAGE + ks * 16 * c.rowb
        b(f"  ds_read_b64_tr_b16 {vr(tf(q),2)}, v{V_T+nb} offset:{off}")
        b(f"  ds_read_b64_tr_b16 {vr(tf(q)+2,2)}, v{V_T+nb} offset:{off+4*c.rowb}")
    def pload(j):
        b(f"  buffer_load_dwordx4 {vr(pr(j),4)}, v{V_P}, s[{SRD_P}:{SRD_P+3}], s{S_POFF} offen offset:{(j%4)*1024}{LF}")
        if j % 4 == 3: b(f"  s_add_u32 s{S_POFF}, s{S_POFF}, 4096")
    def mfma(q):
        nb = q % NB; j = q // NB; a = acc(nb)
        if "m16fake" in OPT:
            o = 8 * (j % 2)
            b(f"  v_mfma_f32_16x16x32_bf16 {vr(a+o,4)}, {vr(tf(q),4)}, {vr(pr(j),4)}, {vr(a+o,4)}")
            b(f"  v_mfma_f32_16x16x32_bf16 {vr(a+o+4,4)}, {vr(pr(j),4)}, {vr(tf(q),4)}, {vr(a+o+4,4)}")
            return
        if c.name == "g1":
            b(f"  v_mfma_f32_32x32x16_bf16 {vr(a,16)}, {vr(tf(q),4)}, {vr(pr(j),4)}, {vr(a,16)}")
        else:
            b(f"  v_mfma_f32_32x32x16_bf16 {vr(a,16)}, {vr(pr(j),4)}, {vr(tf(q),4)}, {vr(a,16)}")
    if "prioc" in OPT: b("  s_setprio 2")
    b(f"  s_mov_b32 s{S_POFF}, 0")
    S_EOFF = 18
    if "es" in OPT: b(f"  s_mov_b32 s{S_EOFF}, {3*4096}")
    b(f"  s_mov_b32 s{S_DELTA}, {4*STAGE}")
    b(f"  s_mov_b32 s{S_IT}, {NS//4 - 1}")
    if "es" in OPT:
        b(f"  s_mov_b32 s11, 200000")
        b.label(f"{pre}e0_poll")
        b(f"  buffer_load_dwordx4 {vr(pr(14),4)}, v{V_P}, s[{SRD_P}:{SRD_P+3}], s{S_EOFF} offen offset:2048 sc1")
        b(f"  s_waitcnt vmcnt(0)")
        b(f"  v_max3_u32 v16, v{pr(14)}, v{pr(14)+1}, v{pr(14)+2}")
        b(f"  v_max_u32 v16, v16, v{pr(14)+3}")
        b(f"  v_cmp_eq_u32 vcc, -1, v16")
        b(f"  s_sub_u32 s11, s11, 1")
        b(f"  s_cmp_eq_u32 s11, 0")
        b(f"  s_cbranch_scc1 {pre}e0_got")
        b(f"  s_cmp_lg_u64 vcc, 0")
        b(f"  s_cbranch_scc1 {pre}e0_poll")
        b.label(f"{pre}e0_got")
        b(f"  s_mov_b32 s11, 200000")
        b.label(f"{pre}e_poll")
        for j in range(PR - 2):
            if j % 4 == 0: b(f"  s_mov_b32 s{S_POFF}, {(j//4)*4096}")
            b(f"  buffer_load_dwordx4 {vr(pr(j),4)}, v{V_P}, s[{SRD_P}:{SRD_P+3}], s{S_POFF} offen offset:{(j%4)*1024} sc1")
        b(f"  s_waitcnt vmcnt(0)")
        sentinel_check(b, VPR, f"{pre}e", n=4 * (PR - 2))
        b(f"  s_mov_b32 s{S_POFF}, {3*4096}")
        after_setup()
    else:
        after_setup()
        for j in range(PR - 1): pload(j)
    if after_prologue: after_prologue()
    b("  s_barrier")
    for q in range(DQ): tread(q)
    def body(last):
        for q in range(FPI):
            j = q // NB
            qn = q + DQ
            do_read = not (last and qn >= FPI)
            do_pload = False
            if q % NB == 0:
                rem = KPI - 1 - j
                if (not last) or (j + PR - 1 < KPI):
                    b(f"  s_waitcnt vmcnt({PR-2})")
                    do_pload = True
                else:
                    b(f"  s_waitcnt vmcnt({min(PR-2, rem)})")
            if do_read and qn % 16 == 0:
                b("  s_barrier")
            if do_read and qn == FPI:
                for i in range(NB): b(f"  v_add_u32 v{V_T+i}, s{S_DELTA}, v{V_T+i}")
                b(f"  s_sub_u32 s{S_DELTA}, 0, s{S_DELTA}")
            if q % 2 == 0:
                left = min(DQ - 2, FPI - 2 - q) if last else DQ - 2
                b(f"  s_waitcnt lgkmcnt({2*left})")
            if "m16fake2" in OPT:
                nb = q % NB; a = acc(nb); o = 8 * (j % 2)
                ql = qn % FPI; lslot, within = ql // 16, ql % 16; ks, nbn = within // NB, within % NB
                off = lslot * STAGE + ks * 16 * c.rowb
                b(f"  v_mfma_f32_16x16x32_bf16 {vr(a+o,4)}, {vr(tf(q),4)}, {vr(pr(j),4)}, {vr(a+o,4)}")
                if do_read: b(f"  ds_read_b64_tr_b16 {vr(tf(qn),2)}, v{V_T+nbn} offset:{off}")
                b(f"  v_mfma_f32_16x16x32_bf16 {vr(a+o+4,4)}, {vr(pr(j),4)}, {vr(tf(q),4)}, {vr(a+o+4,4)}")
                if do_read: b(f"  ds_read_b64_tr_b16 {vr(tf(qn)+2,2)}, v{V_T+nbn} offset:{off+4*c.rowb}")
                if do_pload: pload(j + PR - 1)
                continue
            mfma(q)
            if do_pload: pload(j + PR - 1)
            if do_read: tread(qn)
    b.label(f"{pre}_loop")
    body(False)
    b(f"  s_sub_u32 s{S_IT}, s{S_IT}, 1")
    b(f"  s_cmp_lg_u32 s{S_IT}, 0")
    b(f"  s_cbranch_scc1 {pre}_loop")
    if posts is None:
        body(True)
        return
    F = [(q // NB, q % NB) for q in range(16)] + [(4 + r % 12, r // 12) for r in range(48)]
    def tread_f(q):
        j, nb = F[q]
        off = (j // 4) * STAGE + (j % 4) * 16 * c.rowb
        b(f"  ds_read_b64_tr_b16 {vr(tf(q),2)}, v{V_T+nb} offset:{off}")
        b(f"  ds_read_b64_tr_b16 {vr(tf(q)+2,2)}, v{V_T+nb} offset:{off+4*c.rowb}")
    for q in range(FPI):
        j, nb = F[q]
        qn = q + DQ
        first_use = (q < 16 and nb == 0) or (16 <= q < 28)
        if q == 0: b(f"  s_waitcnt vmcnt({PR-2})")
        elif first_use: b(f"  s_waitcnt vmcnt({min(PR-2, KPI - 1 - j)})")
        if q == 9: b("  s_barrier"); b("  s_barrier")
        if q == 13: b("  s_barrier")
        if q % 2 == 0:
            left = min(DQ - 2, FPI - 2 - q)
            b(f"  s_waitcnt lgkmcnt({2*left})")
        a = acc(nb)
        if c.name == "g1":
            b(f"  v_mfma_f32_32x32x16_bf16 {vr(a,16)}, {vr(tf(q),4)}, {vr(pr(j),4)}, {vr(a,16)}")
        else:
            b(f"  v_mfma_f32_32x32x16_bf16 {vr(a,16)}, {vr(pr(j),4)}, {vr(tf(q),4)}, {vr(a,16)}")
        if q == 0: pload(PR - 1)
        if qn < FPI: tread_f(qn)
        if q >= 28:
            blk, r = (q - 16) // 12 - 1, (q - 16) % 12
            fill = posts.get(blk, [])
            if fill and r >= 3:
                n = len(fill); per = -(-n // 9)
                for line in fill[(r - 3) * per:(r - 2) * per]: b(line)

HAND_CNT = 150016
V_T16 = 16
def geom16(b, sx=None):
    b(f"  v_and_b32 v8, 15, v7")
    b(f"  v_lshrrev_b32 v9, 4, v7")
    b(f"  v_lshrrev_b32 v10, 1, v9")
    b(f"  v_lshlrev_b32 v10, 10, v10")
    b(f"  v_and_b32 v11, 1, v9")
    b(f"  v_lshl_add_u32 v10, v11, 9, v10")
    b(f"  v_lshl_add_u32 v10, v8, 4, v10")
    b(f"  v_lshrrev_b32 v12, 2, v8              ; r")
    b(f"  v_lshl_add_u32 v13, v9, 3, v12        ; row")
    b(f"  v_lshlrev_b32 v12, 2, v12")
    b(f"  v_lshl_add_u32 v12, v11, 1, v12       ; f")
    b(f"  v_bfe_u32 v14, v7, 1, 1               ; c>>1")
    b(f"  v_xor_b32 v12, v12, v14")
    b(f"  v_lshlrev_b32 v13, 8, v13")
    b(f"  v_lshl_add_u32 v13, v12, 4, v13")
    b(f"  v_and_b32 v14, 1, v7")
    b(f"  v_lshl_add_u32 v{V_T16}, v14, 3, v13")
    if sx is not None: b(f"  v_xor_b32 v{V_T16}, s{sx}, v{V_T16}")
    for nb in range(1, 8): b(f"  v_xor_b32 v{V_T16+nb}, {32*nb}, v{V_T16}")

def gemm_core16(b, name, NS, pre, after_setup, after_prologue, posts):
    PRS = 8
    acc = lambda nb, db: V_ACC + (nb * 2 + db) * 4
    VT, VPR = 96, 128
    tf = lambda q: VT + (q % 8) * 4
    pr = lambda j, db: VPR + (j % PRS) * 8 + db * 4
    FPI, KPI = 64, 8
    def rd(q, jn, nbn, half):
        if "halfrd" in OPT and half == 1: return
        off = (jn // 2 % 4) * STAGE + (jn % 2) * 32 * 256 + half * 4 * 256
        b(f"  ds_read_b64_tr_b16 {vr(tf(q)+2*half,2)}, v{V_T16+nbn} offset:{off}")
    def pload(j):
        for db in range(2):
            b(f"  buffer_load_dwordx4 {vr(pr(j,db),4)}, v{V_P}, s[{SRD_P}:{SRD_P+3}], s{S_POFF} offen offset:{(j%2)*2048+db*256}{LF}")
        if j % 2 == 1: b(f"  s_add_u32 s{S_POFF}, s{S_POFF}, 4096")
    def mf(q, j, nb, db):
        a = acc(nb, db)
        swap = "swapab" in OPT
        if (name == "g1") != swap: b(f"  v_mfma_f32_16x16x32_bf16 {vr(a,4)}, {vr(tf(q),4)}, {vr(pr(j,db),4)}, {vr(a,4)}")
        else: b(f"  v_mfma_f32_16x16x32_bf16 {vr(a,4)}, {vr(pr(j,db),4)}, {vr(tf(q),4)}, {vr(a,4)}")
    b(f"  s_mov_b32 s{S_POFF}, 0")
    b(f"  s_mov_b32 s{S_DELTA}, {4*STAGE}")
    b(f"  s_mov_b32 s{S_IT}, {NS//4 - 1}")
    after_setup()
    for j in range(PRS - 1): pload(j)
    if after_prologue: after_prologue()
    b("  s_barrier")
    for q in range(DQ):
        rd(q, q // 8, q % 8, 0); rd(q, q // 8, q % 8, 1)
    b.label(f"{pre}_loop")
    SPREAD = "spread" in OPT
    def pload1(j, db):
        b(f"  buffer_load_dwordx4 {vr(pr(j,db),4)}, v{V_P}, s[{SRD_P}:{SRD_P+3}], s{S_POFF} offen offset:{(j%2)*2048+db*256}{LF}")
    if SPREAD: b(f"  s_waitcnt vmcnt({2*(PRS-2)})")
    for q in range(FPI):
        j, nb = q // 8, q % 8
        qn = q + DQ
        if not SPREAD:
            if nb == 0: b(f"  s_waitcnt vmcnt({2*(PRS-2)})")
            if qn % 16 == 0: b("  s_barrier")
            if qn == FPI:
                for i in range(8): b(f"  v_add_u32 v{V_T16+i}, s{S_DELTA}, v{V_T16+i}")
                b(f"  s_sub_u32 s{S_DELTA}, 0, s{S_DELTA}")
            if q % 2 == 0: b(f"  s_waitcnt lgkmcnt({(1 if 'halfrd' in OPT else 2)*(DQ-2)})")
            mf(q, j, nb, 0)
            rd(qn, (qn % FPI) // 8, qn % 8, 0)
            mf(q, j, nb, 1)
            rd(qn, (qn % FPI) // 8, qn % 8, 1)
            if nb == 0: pload(j + PRS - 1)
            continue
        if qn % 16 == 0: b("  s_barrier")
        if q % 2 == 0: b(f"  s_waitcnt lgkmcnt({2*(DQ-2)})")
        if qn >= FPI and qn - FPI < 8: b(f"  v_add_u32 v{V_T16+qn-FPI}, s{S_DELTA}, v{V_T16+qn-FPI}")
        mf(q, j, nb, 0)
        rd(qn, (qn % FPI) // 8, qn % 8, 0)
        if nb == 0: pload1(j + PRS - 1, 0)
        if nb == 1: pload1(j + PRS - 1, 1)
        if nb == 2 and (j + PRS - 1) % 2 == 1: b(f"  s_add_u32 s{S_POFF}, s{S_POFF}, 4096")
        if nb == 7 and j < KPI - 1: b(f"  s_waitcnt vmcnt({2*(PRS-2)})")
        mf(q, j, nb, 1)
        rd(qn, (qn % FPI) // 8, qn % 8, 1)
    if SPREAD:
        b(f"  v_add_u32 v{V_T16+7}, s{S_DELTA}, v{V_T16+7}")
        b(f"  s_sub_u32 s{S_DELTA}, 0, s{S_DELTA}")
    b(f"  s_sub_u32 s{S_IT}, s{S_IT}, 1")
    b(f"  s_cmp_lg_u32 s{S_IT}, 0")
    b(f"  s_cbranch_scc1 {pre}_loop")
    F = [(q // 8, q % 8) for q in range(16)] + [(2 + r % 6, r // 6) for r in range(48)]
    for q in range(FPI):
        j, nb = F[q]
        qn = q + DQ
        first_use = (q < 16 and nb == 0) or (16 <= q < 22)
        if q == 0: b(f"  s_waitcnt vmcnt({2*(PRS-2)})")
        elif first_use: b(f"  s_waitcnt vmcnt({min(2*(PRS-2), 2*(KPI-1-j))})")
        if q == 9: b("  s_barrier"); b("  s_barrier")
        if q == 13: b("  s_barrier")
        if q % 2 == 0:
            left = min(DQ - 2, FPI - 2 - q)
            b(f"  s_waitcnt lgkmcnt({2*left})")
        fill = []
        if q >= 22:
            blk, r = (q - 16) // 6 - 1, (q - 16) % 6
            L = posts.get(blk, [])
            r0 = 1 if len(L) > 4 else 2
            if L and r >= r0:
                per = -(-len(L) // (6 - r0))
                fill = L[(r - r0) * per:(r - r0 + 1) * per]
        h = len(fill) // 2
        mf(q, j, nb, 0)
        if qn < FPI: rd(qn, F[qn][0], F[qn][1], 0)
        for line in fill[:h]: b(line)
        mf(q, j, nb, 1)
        if qn < FPI: rd(qn, F[qn][0], F[qn][1], 1)
        for line in fill[h:]: b(line)
        if q == 0: pload(PRS - 1)

def gelu16_lines(nb, CT, t, o, vaddr, sreg=None):
    sreg = S_TMP + 1 if sreg is None else sreg
    a = V_ACC + nb * 8
    L = []
    for h in range(0, 8, 2): L.append(f"  v_pk_mul_f32 {vr(t+h,2)}, {vr(a+h,2)}, {vr(a+h,2)}")
    for h in range(0, 8, 2): L.append(f"  v_pk_fma_f32 {vr(t+h,2)}, {vr(t+h,2)}, {vr(CT+2,2)}, {vr(CT,2)}")
    for h in range(0, 8, 2): L.append(f"  v_pk_mul_f32 {vr(t+h,2)}, {vr(t+h,2)}, {vr(a+h,2)}")
    for r in range(8): L.append(f"  v_exp_f32 v{t+r}, v{t+r}")
    for h in range(0, 8, 2): L.append(f"  v_pk_add_f32 {vr(t+h,2)}, {vr(t+h,2)}, 1.0 op_sel_hi:[1,0]")
    for r in range(8): L.append(f"  v_rcp_f32 v{t+r}, v{t+r}")
    for h in range(0, 8, 2): L.append(f"  v_pk_mul_f32 {vr(t+h,2)}, {vr(a+h,2)}, {vr(t+h,2)}")
    for i in range(4): L.append(f"  v_cvt_pk_bf16_f32 v{o+i}, v{t+2*i}, v{t+2*i+1}")
    L.append(f"  s_mov_b32 s{sreg}, {nb*1024}")
    L.append(f"  s_nop 0")
    L.append(f"  v_permlane16_swap_b32 v{o}, v{o+2}")
    L.append(f"  v_permlane16_swap_b32 v{o+1}, v{o+3}")
    L.append(f"  buffer_store_dwordx4 {vr(o,4)}, v{vaddr}, s[{SRD_O}:{SRD_O+3}], s{sreg} offen{SF}")
    return L

def g1_compute16(b):
    geom16(b)
    b(f"  s_lshl_b32 s{S_TMP}, s61, 2")
    b(f"  s_add_u32 s{S_TMP}, s{S_TMP}, s{S_W}            ; dblk")
    b(f"  s_lshl_b32 s{S_TMP+2}, s{S_TMP}, 17")
    b(f"  v_add_u32 v{V_P}, s{S_TMP+2}, v10")
    b(f"  s_lshl_b32 s{S_TMP+1}, s60, 8       ; f0*2")
    b(f"  v_lshlrev_b32 v11, 3, v9")
    b(f"  v_add_u32 v11, s{S_TMP+1}, v11")
    BV = 192
    for nb in range(8):
        b(f"  buffer_load_dwordx2 {vr(BV+2*nb,2)}, v11, s[{SRD_X}:{SRD_X+3}], 0 offen offset:{32*nb}")
    b(f"  s_mul_i32 s{S_TMP+2}, s{S_TMP}, 229376")
    b(f"  s_lshl_b32 s{S_TMP+1}, s60, 13")
    b(f"  s_add_u32 s{S_TMP+1}, s{S_TMP+1}, s{S_TMP+2}")
    b(f"  v_lshlrev_b32 v12, 4, v7")
    b(f"  v_add_u32 v28, s{S_TMP+1}, v12")
    b(f"  s_waitcnt vmcnt(0)")
    for nb in range(8):
        for db in range(2):
            a = V_ACC + (nb * 2 + db) * 4; bv = BV + 2 * nb
            b(f"  v_lshlrev_b32 v{a}, 16, v{bv}")
            b(f"  v_and_b32 v{a+1}, 0xffff0000, v{bv}")
            b(f"  v_lshlrev_b32 v{a+2}, 16, v{bv+1}")
            b(f"  v_and_b32 v{a+3}, 0xffff0000, v{bv+1}")
    K1 = -2.0 * 0.7978845608028654 * 1.4426950408889634
    K2 = K1 * 0.044715
    CT, GT, GO = 208, 212, 220
    for i, kv in enumerate((K1, K1, K2, K2)): b(f"  v_mov_b32 v{CT+i}, {hex(f2u(kv))}")
    def w3():
        wait(b, 2, 16, "x3c")
        stamp(b, "x3 released")
        stamp(b, "c:g1 start")
    if "hand" in OPT:
        b(f"  s_lshl_b32 s{S_TMP+1}, s{S_W}, 14")
        b(f"  v_lshlrev_b32 v12, 4, v7")
        b(f"  v_add_u32 v26, s{S_TMP+1}, v12           ; hand-over base")
        b(f"  s_lshl_b32 s{S_TMP+1}, s{S_W}, 2")
        b(f"  s_add_u32 s{S_TMP+1}, s{S_TMP+1}, {HAND_CNT}")
        b(f"  v_mov_b32 v27, s{S_TMP+1}")
        b(f"  v_mov_b32 v25, 0")
        b(f"  ds_write_b32 v27, v25")
        b(f"  s_waitcnt lgkmcnt(0)")
        def hand(nb):
            a = V_ACC + nb * 8
            return [f"  ds_write_b128 v26, {vr(a,4)} offset:{nb*2048}", f"  ds_write_b128 v26, {vr(a+4,4)} offset:{nb*2048+1024}",
                    f"  v_mov_b32 v25, {nb+1}", f"  ds_write_b32 v27, v25"]
        posts = {nb: hand(nb) for nb in range(7)}
    elif "g1ns" in OPT:
        posts = {}
    else:
        posts = {nb: gelu16_lines(nb, CT, GT, GO, 28) for nb in range(7)}
    gemm_core16(b, "g1", 32, "g1", w3, None, posts)
    stamp(b, "c:g1 end")
    stamp(b, "g1 main done")
    b(f"  s_nop 7")
    if "g1ns" in OPT:
        for nb in range(0, 8, 2):
            La = gelu16_lines(nb, CT, 128, 144, 28); Lb = gelu16_lines(nb + 1, CT, 136, 148, 28, S_TMP + 2)
            for x, y in zip(La, Lb): b(x); b(y)
    else:
        for line in gelu16_lines(7, CT, GT, GO, 28): b(line)
    stamp(b, "g1 stores issued")
    b(f"  s_waitcnt vmcnt(0)")
    b(f"  s_branch g1_join")

def g2_compute16(b):
    b(f"  s_cmp_eq_u32 s19, 0")
    b(f"  s_cselect_b32 s{S_TMP+3}, 128, 0")
    geom16(b, S_TMP + 3)
    b(f"  s_lshl_b32 s{S_TMP}, s{S_TILE_A}, 2")
    b(f"  s_add_u32 s{S_TMP}, s{S_TMP}, s{S_W}        ; dblk")
    b(f"  s_mul_i32 s{S_TMP+2}, s{S_TMP}, 229376")
    b(f"  s_mul_i32 s{S_TMP+3}, s19, {112*1024}       ; k half")
    b(f"  s_add_u32 s{S_TMP+2}, s{S_TMP+2}, s{S_TMP+3}")
    b(f"  v_add_u32 v{V_P}, s{S_TMP+2}, v10")
    b(f"  s_lshl_b32 s{S_TMP+1}, s{S_TILE_B}, 7")
    b(f"  s_lshl_b32 s{S_TMP+3}, s19, 6")
    b(f"  s_add_u32 s{S_TMP+1}, s{S_TMP+1}, s{S_TMP+3}")
    b(f"  v_add_u32 v11, s{S_TMP+1}, v8              ; s0 + n")
    b(f"  v_lshlrev_b32 v12, 1, v11")
    B2 = 24
    for k in range(4): b(f"  buffer_load_ushort v{B2+k}, v12, s[{SRD_X}:{SRD_X+3}], 0 offen offset:{32*k}")
    b(f"  v_lshlrev_b32 v12, 11, v11")
    b(f"  v_lshl_add_u32 v12, v9, 4, v12             ; + 8g*2")
    b(f"  s_lshl_b32 s{S_TMP+2}, s{S_TMP}, 6")
    b(f"  v_add_u32 v28, s{S_TMP+2}, v12")
    b(f"  v_lshlrev_b32 v12, 4, v7")
    b(f"  s_lshl_b32 s{S_TMP+1}, s{S_W}, 12")
    b(f"  s_lshl_b32 s{S_TMP+2}, s2, 14")
    b(f"  s_add_u32 s{S_TMP+2}, s{S_TMP+2}, s{S_TMP+1}")
    b(f"  v_add_u32 v29, s{S_TMP+2}, v12")
    b(f"  s_xor_b32 s{S_TMP+2}, s2, 1")
    b(f"  s_lshl_b32 s{S_TMP+2}, s{S_TMP+2}, 14")
    b(f"  s_add_u32 s{S_TMP+2}, s{S_TMP+2}, s{S_TMP+1}")
    b(f"  v_add_u32 v30, s{S_TMP+2}, v12")
    for i in range(64): b(f"  v_mov_b32 v{V_ACC+i}, 0")
    HV = 192
    def w4():
        b(f"  s_lshl_b32 s18, s{S_TILE_A}, 1")
        b(f"  s_add_u32 s18, s18, s19")
        wait(b, 3, 14, "x4c", single_sreg=18)
        stamp(b, "x4 released")
        stamp(b, "c:g2 start")
    def hloads():
        for k in range(4):
            b(f"  s_mov_b32 s{S_TMP+1}, {k*16*2048}")
            b(f"  buffer_load_dwordx4 {vr(HV+4*k,4)}, v28, s[{SRD_Y}:{SRD_Y+3}], s{S_TMP+1} offen{LF}")
    def send_lines(k):
        T0 = 208 + 4 * k; a = V_ACC + 8 * k
        L = [f"  v_cvt_pk_bf16_f32 v{T0+i}, v{a+2*i}, v{a+2*i+1}" for i in range(4)]
        L += [f"  v_min_u32 v{T0+i}, 0xfffffffe, v{T0+i}" for i in range(4)]
        L += [f"  s_nop 0", f"  buffer_store_dwordx4 {vr(T0,4)}, v30, s[{SRD_X}:{SRD_X+3}], 0 offen offset:{k*1024}{SF}"]
        return L
    b(f"  s_waitcnt vmcnt(0)")
    srd(b, SRD_X, P_WS, 4 << 20, WS_XCH)
    gemm_core16(b, "g2", 28, "g2", w4, hloads, {k: send_lines(k) for k in range(4)})
    stamp(b, "c:g2 end")
    stamp(b, "g2 main done")
    RX, T, KEEP = 128, 96, V_ACC + 32
    b(f"  s_mov_b32 s11, 200000")
    b.label("g2x_poll")
    for k in range(4):
        b(f"  buffer_load_dwordx4 {vr(RX+4*k,4)}, v29, s[{SRD_X}:{SRD_X+3}], 0 offen offset:{k*1024} sc1")
    b(f"  s_waitcnt vmcnt(0)")
    b(f"  v_max3_u32 v12, v{RX}, v{RX+1}, v{RX+2}")
    b(f"  v_max3_u32 v13, v{RX+3}, v{RX+4}, v{RX+5}")
    b(f"  v_max3_u32 v12, v12, v{RX+6}, v{RX+7}")
    for i in range(8, 16, 2): b(f"  v_max3_u32 v13, v13, v{RX+i}, v{RX+i+1}")
    b(f"  v_max_u32 v12, v12, v13")
    b(f"  v_cmp_eq_u32 vcc, -1, v12")
    b(f"  s_sub_u32 s11, s11, 1")
    b(f"  s_cmp_eq_u32 s11, 0")
    b(f"  s_cbranch_scc1 g2x_got")
    b(f"  s_cmp_lg_u64 vcc, 0")
    b(f"  s_cbranch_scc1 g2x_poll")
    b.label("g2x_got")
    stamp(b, "g2 x landed")
    b(f"  s_mov_b32 s{S_TMP}, 0xffff0000")
    OS = 4 * STAGE
    b(f"  v_mul_u32_u24 v14, 272, v8           ; n * 272")
    b(f"  v_lshl_add_u32 v14, v9, 4, v14       ; + g*16")
    b(f"  s_lshl_b32 s{S_TMP+1}, s{S_W}, 6")
    b(f"  s_add_u32 s{S_TMP+1}, s{S_TMP+1}, {OS}")
    b(f"  v_add_u32 v14, s{S_TMP+1}, v14")
    for k in range(4):
        b(f"  v_lshlrev_b32 v{B2+k}, 16, v{B2+k}")
    for k in range(4):
        o = T + 16 + 4 * k
        for i in range(4):
            a = KEEP + 8 * k + 2 * i; r = RX + 4 * k + i; hv = HV + 4 * k + i; t0 = T + 4 * (i % 2)
            b(f"  v_lshlrev_b32 v{t0}, 16, v{r}")
            b(f"  v_and_b32 v{t0+1}, s{S_TMP}, v{r}")
            b(f"  v_lshlrev_b32 v{t0+2}, 16, v{hv}")
            b(f"  v_and_b32 v{t0+3}, s{S_TMP}, v{hv}")
            b(f"  v_pk_add_f32 {vr(t0,2)}, {vr(t0,2)}, {vr(a,2)}")
            b(f"  v_pk_add_f32 {vr(t0,2)}, {vr(t0,2)}, {vr(t0+2,2)}")
            b(f"  v_add_f32 v{t0}, v{t0}, v{B2+k}")
            b(f"  v_add_f32 v{t0+1}, v{t0+1}, v{B2+k}")
            b(f"  v_cvt_pk_bf16_f32 v{o+i}, v{t0}, v{t0+1}")
        b(f"  ds_write_b128 v14, {vr(o,4)} offset:{k*16*272}")
    b(f"  v_lshrrev_b32 v15, 4, v7")
    b(f"  s_lshl_b32 s{S_TMP+1}, s{S_W}, 4")
    b(f"  v_add_u32 v15, s{S_TMP+1}, v15")
    b(f"  v_and_b32 v12, 15, v7")
    b(f"  v_mul_u32_u24 v14, 272, v15")
    b(f"  v_lshl_add_u32 v14, v12, 4, v14")
    b(f"  v_add_u32 v14, {OS}, v14")
    b(f"  s_lshl_b32 s{S_TMP+1}, s{S_TILE_B}, 7")
    b(f"  s_lshl_b32 s{S_TMP+2}, s19, 6")
    b(f"  s_add_u32 s{S_TMP+1}, s{S_TMP+1}, s{S_TMP+2}")
    b(f"  v_add_u32 v15, s{S_TMP+1}, v15")
    b(f"  v_lshlrev_b32 v15, 11, v15")
    b(f"  v_lshl_add_u32 v15, v12, 4, v15")
    b(f"  s_lshl_b32 s{S_TMP+1}, s{S_TILE_A}, 8")
    b(f"  v_add_u32 v15, s{S_TMP+1}, v15")
    b(f"  s_waitcnt lgkmcnt(0)")
    b(f"  s_barrier")
    for i in range(4): b(f"  ds_read_b128 {vr(T+4*i,4)}, v14 offset:{i*4*272}")
    for i in range(4):
        b(f"  s_waitcnt lgkmcnt({3-i})")
        b(f"  s_mov_b32 s{S_TMP+1}, {i*4*2048}")
        b(f"  buffer_store_dwordx4 {vr(T+4*i,4)}, v15, s[{SRD_O}:{SRD_O+3}], s{S_TMP+1} offen{OF()}")
    stamp(b, "g2 stores issued")
    b(f"  s_branch g2_done")

def idle_w1(b):
    srd(b, SRD_PF, P_W1, W1B)
    b(f"  s_and_b32 s51, s50, 7")
    b(f"  s_mul_i32 s51, s51, {256*7168}")
    b(f"  s_lshr_b32 s52, s50, 3")
    b(f"  s_mul_i32 s52, s52, {4*7168}")
    b(f"  s_add_u32 s51, s51, s52")
    b(f"  s_add_u32 s51, s51, {128*7168}")
    b(f"  s_mov_b32 s52, 7")
    b.label("pf_w1b")
    for i in range(4): b(f"  buffer_load_dwordx4 {vr(V_DUMMY,4)}, v29, s[{SRD_PF}:{SRD_PF+3}], s51 offen offset:{1024*i}")
    b(f"  s_add_u32 s51, s51, 4096")
    b(f"  s_waitcnt vmcnt(4)")
    b(f"  s_sub_u32 s52, s52, 1")
    b(f"  s_cmp_lg_u32 s52, 0")
    b(f"  s_cbranch_scc1 pf_w1b")

def idle_w2(b):
    srd(b, SRD_PF, P_W2, W1B)
    if "idleko" in OPT and "idlesc" in OPT:
        b(f"  v_lshlrev_b32 v29, 7, v7")
        for m in range(IDLE_ROUNDS[0]):
            b(f"  s_add_u32 s51, s50, {256*m}")
            b(f"  s_lshr_b32 s52, s51, 5              ; chunk")
            b(f"  s_and_b32 s51, s51, 31")
            b(f"  s_lshl_b32 s51, s51, 13")
            b(f"  s_and_b32 s53, s52, 1")
            b(f"  s_mul_i32 s53, s53, {1792*4096}")
            b(f"  s_lshr_b32 s52, s52, 1")
            b(f"  s_lshl_b32 s52, s52, 18")
            b(f"  s_add_u32 s51, s51, s52")
            b(f"  s_add_u32 s51, s51, s53")
            b(f"  buffer_load_dword v230, v29, s[{SRD_PF}:{SRD_PF+3}], s51 offen")
            if m >= 1: b(f"  s_waitcnt vmcnt(1)")
        b(f"  s_waitcnt vmcnt(0)")
        return
    if "idleko" in OPT:
        b(f"  v_lshlrev_b32 v29, 4, v7")
        b(f"  s_lshl_b32 s51, s50, 10")
        b(f"  s_add_u32 s53, s51, {1792*4096}")
        b(f"  s_mov_b32 s52, 14")
        b.label("pf_w2")
        for i in range(2):
            b(f"  buffer_load_dwordx4 {vr(V_DUMMY,4)}, v29, s[{SRD_PF}:{SRD_PF+3}], s51 offen")
            b(f"  buffer_load_dwordx4 {vr(V_DUMMY,4)}, v29, s[{SRD_PF}:{SRD_PF+3}], s53 offen")
            b(f"  s_add_u32 s51, s51, {64*4096}")
            b(f"  s_add_u32 s53, s53, {64*4096}")
        b(f"  s_waitcnt vmcnt(4)")
        b(f"  s_sub_u32 s52, s52, 1")
        b(f"  s_cmp_lg_u32 s52, 0")
        b(f"  s_cbranch_scc1 pf_w2")
        b(f"  s_waitcnt vmcnt(0)")
        return
    if "idlesc" in OPT:
        b(f"  s_mul_i32 s51, s50, {W1B // 256}")
        b(f"  v_lshlrev_b32 v29, 7, v7")
        for i in range(7):
            b(f"  buffer_load_dword v230, v29, s[{SRD_PF}:{SRD_PF+3}], s51 offen")
            b(f"  s_add_u32 s51, s51, 8192")
            if i >= 1: b(f"  s_waitcnt vmcnt(1)")
        b(f"  s_waitcnt vmcnt(0)")
        return
    b(f"  s_mul_i32 s51, s50, {W1B // 256}")
    b(f"  s_mov_b32 s52, 14")
    b.label("pf_w2")
    for i in range(4): b(f"  buffer_load_dwordx4 {vr(V_DUMMY,4)}, v29, s[{SRD_PF}:{SRD_PF+3}], s51 offen offset:{1024*i}")
    b(f"  s_add_u32 s51, s51, 4096")
    b(f"  s_waitcnt vmcnt({0 if 'idlepace' in OPT else 4})")
    b(f"  s_sub_u32 s52, s52, 1")
    b(f"  s_cmp_lg_u32 s52, 0")
    b(f"  s_cbranch_scc1 pf_w2")
    b(f"  s_waitcnt vmcnt(0)")

def g1_gelu(b, c, blocks, accof, vaddr):
    K1 = -2.0 * 0.7978845608028654 * 1.4426950408889634
    K2 = K1 * 0.044715
    T = c.VPR
    b(f"  v_mov_b32 v{T}, {hex(f2u(K1))}")
    b(f"  v_mov_b32 v{T+1}, {hex(f2u(K1))}")
    b(f"  v_mov_b32 v{T+2}, {hex(f2u(K2))}")
    b(f"  v_mov_b32 v{T+3}, {hex(f2u(K2))}")
    b(f"  s_nop 7")
    W = T + 8
    for fb in blocks:
        a = accof(fb); t = W; o = W + 16 + 8 * (fb % 2)
        for h in range(0, 16, 2): b(f"  v_pk_mul_f32 {vr(t+h,2)}, {vr(a+h,2)}, {vr(a+h,2)}")
        for h in range(0, 16, 2): b(f"  v_pk_fma_f32 {vr(t+h,2)}, {vr(t+h,2)}, {vr(T+2,2)}, {vr(T,2)}")
        for h in range(0, 16, 2): b(f"  v_pk_mul_f32 {vr(t+h,2)}, {vr(t+h,2)}, {vr(a+h,2)}")
        for r in range(16): b(f"  v_exp_f32 v{t+r}, v{t+r}")
        for h in range(0, 16, 2): b(f"  v_pk_add_f32 {vr(t+h,2)}, {vr(t+h,2)}, 1.0 op_sel_hi:[1,0]")
        for r in range(16): b(f"  v_rcp_f32 v{t+r}, v{t+r}")
        for h in range(0, 16, 2): b(f"  v_pk_mul_f32 {vr(t+h,2)}, {vr(a+h,2)}, {vr(t+h,2)}")
        for i in range(4):
            b(f"  v_cvt_pk_bf16_f32 v{o+2*i}, v{t+4*i}, v{t+4*i+1}")
            b(f"  v_cvt_pk_bf16_f32 v{o+2*i+1}, v{t+4*i+2}, v{t+4*i+3}")
        for ip in range(2):
            oo = o + 4 * ip
            b(f"  s_mov_b32 s{S_TMP+1}, {(2*fb+ip)*1024}")
            b(f"  s_nop 0")
            b(f"  v_permlane32_swap_b32 v{oo}, v{oo+2}")
            b(f"  v_permlane32_swap_b32 v{oo+1}, v{oo+3}")
            b(f"  buffer_store_dwordx4 {vr(oo,4)}, v{vaddr}, s[{SRD_O}:{SRD_O+3}], s{S_TMP+1} offen{SF}")

def gelu_lines(fb, a, CT, t, o, vaddr):
    L = []
    for h in range(0, 16, 2): L.append(f"  v_pk_mul_f32 {vr(t+h,2)}, {vr(a+h,2)}, {vr(a+h,2)}")
    for h in range(0, 16, 2): L.append(f"  v_pk_fma_f32 {vr(t+h,2)}, {vr(t+h,2)}, {vr(CT+2,2)}, {vr(CT,2)}")
    for h in range(0, 16, 2): L.append(f"  v_pk_mul_f32 {vr(t+h,2)}, {vr(t+h,2)}, {vr(a+h,2)}")
    for r in range(16): L.append(f"  v_exp_f32 v{t+r}, v{t+r}")
    for h in range(0, 16, 2): L.append(f"  v_pk_add_f32 {vr(t+h,2)}, {vr(t+h,2)}, 1.0 op_sel_hi:[1,0]")
    for r in range(16): L.append(f"  v_rcp_f32 v{t+r}, v{t+r}")
    for h in range(0, 16, 2): L.append(f"  v_pk_mul_f32 {vr(t+h,2)}, {vr(a+h,2)}, {vr(t+h,2)}")
    for i in range(4):
        L.append(f"  v_cvt_pk_bf16_f32 v{o+2*i}, v{t+4*i}, v{t+4*i+1}")
        L.append(f"  v_cvt_pk_bf16_f32 v{o+2*i+1}, v{t+4*i+2}, v{t+4*i+3}")
    if "es" in OPT:
        for i in range(8): L.append(f"  v_min_u32 v{o+i}, 0xfffffffe, v{o+i}")
    for ip in range(2):
        oo = o + 4 * ip
        L.append(f"  s_mov_b32 s{S_TMP+1}, {(2*fb+ip)*1024}")
        L.append(f"  s_nop 1")
        L.append(f"  v_permlane32_swap_b32 v{oo}, v{oo+2}")
        L.append(f"  v_permlane32_swap_b32 v{oo+1}, v{oo+3}")
        L.append(f"  buffer_store_dwordx4 {vr(oo,4)}, v{vaddr}, s[{SRD_O}:{SRD_O+3}], s{S_TMP+1} offen{SF}")
    return L

def g1(b):
    c = g1_cfg()
    b(f"  s_cmp_eq_u32 s62, 0")
    b(f"  s_cbranch_scc1 g1_inactive")
    srd(b, SRD_P, P_WS, 4 << 20, WS_LN2)
    srd(b, SRD_T, P_W1, W1B)
    srd(b, SRD_O, P_WS, U_BYTES, WS_U)
    srd(b, SRD_X, P_B1, 3584 * 2)
    b(f"  s_cmp_ge_u32 s{S_W}, 4")
    b(f"  s_cbranch_scc1 g1_loader")
    if M16G1():
        g1_compute16(b)
    else:
        g1_compute32(b, c)
    g1_rest(b, c)

def g1_compute32(b, c):
    lane_geom(b)
    b(f"  s_lshl_b32 s{S_TMP}, s61, 2")
    b(f"  s_add_u32 s{S_TMP}, s{S_TMP}, s{S_W}            ; dblk")
    b(f"  s_lshl_b32 s{S_TMP+2}, s{S_TMP}, 17")
    b(f"  v_lshlrev_b32 v10, 4, v7")
    b(f"  v_add_u32 v{V_P}, s{S_TMP+2}, v10")
    b(f"  s_lshl_b32 s{S_TMP+1}, s60, 8       ; f0*2")
    b(f"  v_lshlrev_b32 v11, 3, v9")
    b(f"  v_add_u32 v11, s{S_TMP+1}, v11")
    BV = 192
    for fb in range(4):
        for i in range(4):
            b(f"  buffer_load_dwordx2 {vr(BV+2*(4*fb+i),2)}, v11, s[{SRD_X}:{SRD_X+3}], 0 offen offset:{64*fb+16*i}")
    b(f"  v_lshl_add_u32 v20, v9, 3, v18")
    b(f"  v_lshlrev_b32 v20, 8, v20")
    b(f"  v_lshl_add_u32 v20, v18, 6, v20")
    b(f"  v_lshl_add_u32 v20, v19, 5, v20")
    b(f"  v_lshl_add_u32 v{V_T}, v22, 3, v20")
    for fb in range(1, 4):
        b(f"  v_xor_b32 v{V_T+fb}, {64*fb}, v{V_T}")
    b(f"  s_mul_i32 s{S_TMP+2}, s{S_TMP}, 229376")
    b(f"  s_lshl_b32 s{S_TMP+1}, s60, 13")
    b(f"  s_add_u32 s{S_TMP+1}, s{S_TMP+1}, s{S_TMP+2}")
    b(f"  v_add_u32 v28, s{S_TMP+1}, v10")
    b(f"  s_waitcnt vmcnt(0)")
    for fb in range(4):
        for i in range(4):
            bv = BV + 2 * (4 * fb + i); a = V_ACC + fb * 16 + 4 * i
            b(f"  v_lshlrev_b32 v{a}, 16, v{bv}")
            b(f"  v_and_b32 v{a+1}, 0xffff0000, v{bv}")
            b(f"  v_lshlrev_b32 v{a+2}, 16, v{bv+1}")
            b(f"  v_and_b32 v{a+3}, 0xffff0000, v{bv+1}")
    def w3():
        wait(b, 2, 16, "x3c")
        stamp(b, "x3 released")
        stamp(b, "c:g1 start")
    SKEW = "skew" in OPT
    if SKEW:
        K1 = -2.0 * 0.7978845608028654 * 1.4426950408889634
        K2 = K1 * 0.044715
        CT, GT, GO = 192, 196, 212
        for i, kv in enumerate((K1, K1, K2, K2)): b(f"  v_mov_b32 v{CT+i}, {hex(f2u(kv))}")
        posts = {fb: gelu_lines(fb, V_ACC + 16 * fb, CT, GT, GO, 28) for fb in range(3)}
        gemm_core(b, c, "g1", w3, None, posts)
    else:
        gemm_core(b, c, "g1", w3)
    stamp(b, "c:g1 end")
    stamp(b, "g1 main done")
    E8 = "epi8" in OPT
    XO = 4 * STAGE
    if E8:
        b(f"  s_lshl_b32 s{S_TMP+1}, s{S_W}, 13")
        b(f"  s_add_u32 s{S_TMP+1}, s{S_TMP+1}, {XO}")
        b(f"  v_add_u32 v12, s{S_TMP+1}, v10")
        b(f"  s_nop 9")
        for k in range(8): b(f"  ds_write_b128 v12, {vr(V_ACC+32+4*k,4)} offset:{1024*k}")
        b(f"  s_waitcnt lgkmcnt(0)")
        b(f"  s_barrier")
    if SKEW:
        b(f"  s_nop 9")
        for line in gelu_lines(3, V_ACC + 48, CT, GT, GO, 28): b(line)
    else:
        g1_gelu(b, c, range(2) if E8 else range(4), lambda fb: V_ACC + fb * 16, 28)
    stamp(b, "g1 stores issued")
    b(f"  s_waitcnt vmcnt(0)")
    b(f"  s_branch g1_join")
def g1_rest(b, c):
    b.label("g1_loader")
    b(f"  s_sub_u32 s50, s{S_W}, 4")
    b(f"  s_lshl_b32 s49, s50, 10")
    b(f"  s_add_u32 s{S_N+1}, s49, {R*STAGE}")
    b(f"  s_barrier                      ; matches the barrier inside wait(x3)")
    loader_loop(b, c.NS, "g1", W1F())
    stamp(b, "g1 main done")
    if "hand" in OPT and M16G1():
        b(f"  s_sub_u32 s{S_TMP}, s{S_W}, 4")
        b(f"  s_lshl_b32 s{S_TMP+1}, s{S_TMP}, 14")
        b(f"  v_lshlrev_b32 v12, 4, v7")
        b(f"  v_add_u32 v26, s{S_TMP+1}, v12")
        b(f"  s_lshl_b32 s{S_TMP+1}, s{S_TMP}, 2")
        b(f"  s_add_u32 s{S_TMP+1}, s{S_TMP+1}, {HAND_CNT}")
        b(f"  v_mov_b32 v27, s{S_TMP+1}")
        b(f"  s_lshl_b32 s{S_TMP+1}, s61, 2")
        b(f"  s_add_u32 s{S_TMP}, s{S_TMP}, s{S_TMP+1}      ; dblk")
        b(f"  s_mul_i32 s{S_TMP+2}, s{S_TMP}, 229376")
        b(f"  s_lshl_b32 s{S_TMP+1}, s60, 13")
        b(f"  s_add_u32 s{S_TMP+1}, s{S_TMP+1}, s{S_TMP+2}")
        b(f"  v_add_u32 v28, s{S_TMP+1}, v12")
        K1 = -2.0 * 0.7978845608028654 * 1.4426950408889634
        K2 = K1 * 0.044715
        CT, GT, GO = 208, 212, 220
        for i, kv in enumerate((K1, K1, K2, K2)): b(f"  v_mov_b32 v{CT+i}, {hex(f2u(kv))}")
        for nb in range(7):
            b(f"  s_mov_b32 s11, 400000")
            b.label(f"g1h_{nb}")
            b(f"  ds_read_b32 v25, v27")
            b(f"  s_waitcnt lgkmcnt(0)")
            b(f"  v_readfirstlane_b32 s10, v25")
            b(f"  s_sub_u32 s11, s11, 1")
            b(f"  s_cmp_eq_u32 s11, 0")
            b(f"  s_cbranch_scc1 g1h_{nb}_go")
            b(f"  s_cmp_le_u32 s10, {nb}")
            b(f"  s_cbranch_scc1 g1h_{nb}")
            b.label(f"g1h_{nb}_go")
            a = V_ACC + nb * 8
            b(f"  ds_read_b128 {vr(a,4)}, v26 offset:{nb*2048}")
            b(f"  ds_read_b128 {vr(a+4,4)}, v26 offset:{nb*2048+1024}")
            b(f"  s_waitcnt lgkmcnt(0)")
            for line in gelu16_lines(nb, CT, GT, GO, 28): b(line)
    if "hand" in OPT and M16G1():
        b(f"  s_waitcnt vmcnt(0)")
    else:
        g2_prologue_loader(b)
    if "epi8" in OPT:
        b(f"  s_sub_u32 s{S_TMP}, s{S_W}, 4")
        b(f"  s_lshl_b32 s{S_TMP+1}, s{S_TMP}, 13")
        b(f"  s_add_u32 s{S_TMP+1}, s{S_TMP+1}, {4*STAGE}")
        b(f"  v_lshlrev_b32 v10, 4, v7")
        b(f"  v_add_u32 v12, s{S_TMP+1}, v10")
        b(f"  s_lshl_b32 s{S_TMP+1}, s61, 2")
        b(f"  s_add_u32 s{S_TMP}, s{S_TMP}, s{S_TMP+1}      ; dblk")
        b(f"  s_mul_i32 s{S_TMP+2}, s{S_TMP}, 229376")
        b(f"  s_lshl_b32 s{S_TMP+1}, s60, 13")
        b(f"  s_add_u32 s{S_TMP+1}, s{S_TMP+1}, s{S_TMP+2}")
        b(f"  v_add_u32 v28, s{S_TMP+1}, v10")
        b(f"  s_barrier")
        for k in range(8): b(f"  ds_read_b128 {vr(V_ACC+4*k,4)}, v12 offset:{1024*k}")
        b(f"  s_waitcnt lgkmcnt(0)")
        g1_gelu(b, c, range(2, 4), lambda fb: V_ACC + (fb - 2) * 16, 28)
        b(f"  s_waitcnt vmcnt(0)")
    stamp(b, "g1 stores issued")
    b.label("g1_join")
    if SK():
        b(f"  s_cmp_ge_u32 s60, 14")
        b(f"  s_cselect_b32 s18, 1, 0")
        b(f"  s_lshl_b32 s10, s61, 1")
        b(f"  s_add_u32 s18, s18, s10")
        arrive(b, 3, 18, label="x4", drained=True)
    else:
        arrive(b, 3, 61, label="x4", drained=True)
    if "hand" in OPT and M16G1():
        b(f"  s_cmp_lt_u32 s{S_W}, 4")
        b(f"  s_cbranch_scc1 g2_start")
        g2_prologue_loader(b)
    b(f"  s_branch g2_start")
    b.label("g1_inactive")
    if "nopf" not in OPT:
        b(f"  s_sub_u32 s50, s2, 224")
        b(f"  s_lshl_b32 s50, s50, 3")
        b(f"  s_add_u32 s50, s50, s{S_W}")
        b(f"  v_lshlrev_b32 v29, 4, v7")
        if "noidle" not in OPT: idle_w2(b)
    if "es" in OPT: wait(b, 2, 16, "x3i")
    b(f"  s_cmp_lt_u32 s{S_W}, 4")
    b(f"  s_cbranch_scc1 g2_start_inactive")
    g2_prologue_loader(b)
    b.label("g2_start_inactive")
    return c

def g2_prologue_loader(b):
    g2_ids(b)
    srd(b, SRD_T, P_W2, W1B)
    g2_loader_addr(b)
    loader_init(b, (64 if SK() else 128) * 4096)
    for n in range(2): loader_issue(b, V_LO, W2F())

def g2_sk(b):
    c = g1_cfg(); c.name = "g2"; c.NS = 28
    b.label("g2_start")
    g2_ids(b)
    srd(b, SRD_P, P_WS, U_BYTES, WS_U)
    srd(b, SRD_O, P_OUT, 4 << 20)
    srd(b, SRD_X, P_B2, 2048 * 2)
    srd(b, SRD_Y, P_WS, 4 << 20, WS_H)
    b(f"  s_cmp_ge_u32 s{S_W}, 4")
    b(f"  s_cbranch_scc1 g2_loader")
    if M16G2():
        g2_compute16(b)
        b.label("g2_loader")
        b(f"  s_barrier                      ; matches the barrier inside wait(x4)")
        loader_loop(b, c.NS, "g2", W2F())
        b.label("g2_done")
        return
    lane_geom(b)
    b(f"  s_lshl_b32 s{S_TMP}, s{S_TILE_A}, 2")
    b(f"  s_add_u32 s{S_TMP}, s{S_TMP}, s{S_W}        ; dblk")
    b(f"  s_mul_i32 s{S_TMP+2}, s{S_TMP}, 229376")
    b(f"  s_mul_i32 s{S_TMP+3}, s19, {112*1024}       ; k half")
    b(f"  s_add_u32 s{S_TMP+2}, s{S_TMP+2}, s{S_TMP+3}")
    b(f"  v_lshlrev_b32 v10, 4, v7")
    b(f"  v_add_u32 v{V_P}, s{S_TMP+2}, v10")
    b(f"  s_lshl_b32 s{S_TMP+1}, s{S_TILE_B}, 7")
    b(f"  s_lshl_b32 s{S_TMP+3}, s19, 6")
    b(f"  s_add_u32 s{S_TMP+1}, s{S_TMP+1}, s{S_TMP+3}")
    b(f"  v_add_u32 v11, s{S_TMP+1}, v8              ; s0 + s'")
    b(f"  v_lshlrev_b32 v16, 1, v11")
    for sb in range(2):
        b(f"  buffer_load_ushort v{12+sb}, v16, s[{SRD_X}:{SRD_X+3}], 0 offen offset:{64*sb}")
    b(f"  v_lshlrev_b32 v17, 11, v11")
    b(f"  v_lshl_add_u32 v17, v9, 5, v17")
    b(f"  s_lshl_b32 s{S_TMP+2}, s{S_TMP}, 6")
    b(f"  v_add_u32 v28, s{S_TMP+2}, v17")
    HV = 192
    b(f"  v_lshl_add_u32 v20, v9, 3, v18")
    b(f"  v_lshlrev_b32 v20, 8, v20")
    b(f"  v_lshl_add_u32 v20, v18, 6, v20")
    b(f"  v_lshl_add_u32 v20, v19, 5, v20")
    b(f"  v_lshl_add_u32 v{V_T}, v22, 3, v20")
    b(f"  s_cmp_eq_u32 s19, 0")
    b(f"  s_cselect_b32 s{S_TMP+3}, 128, 0")
    b(f"  v_xor_b32 v{V_T}, s{S_TMP+3}, v{V_T}")
    for fb in range(1, 4):
        b(f"  v_xor_b32 v{V_T+fb}, {64*fb}, v{V_T}")
    b(f"  s_lshl_b32 s{S_TMP+1}, s{S_W}, 12")
    b(f"  s_lshl_b32 s{S_TMP+2}, s2, 14")
    b(f"  s_add_u32 s{S_TMP+2}, s{S_TMP+2}, s{S_TMP+1}")
    b(f"  v_add_u32 v29, s{S_TMP+2}, v10")
    b(f"  s_xor_b32 s{S_TMP+2}, s2, 1")
    b(f"  s_lshl_b32 s{S_TMP+2}, s{S_TMP+2}, 14")
    b(f"  s_add_u32 s{S_TMP+2}, s{S_TMP+2}, s{S_TMP+1}")
    b(f"  v_add_u32 v30, s{S_TMP+2}, v10")
    for i in range(64): b(f"  v_mov_b32 v{V_ACC+i}, 0")
    def w4():
        b(f"  s_lshl_b32 s18, s{S_TILE_A}, 1")
        b(f"  s_add_u32 s18, s18, s19")
        wait(b, 3, 14, "x4c", single_sreg=18)
        stamp(b, "x4 released")
        stamp(b, "c:g2 start")
    def hloads():
        for sb in range(2):
            b(f"  s_mov_b32 s{S_TMP+1}, {sb*65536}")
            b(f"  buffer_load_dwordx4 {vr(HV+8*sb,4)}, v28, s[{SRD_Y}:{SRD_Y+3}], s{S_TMP+1} offen{LF}")
            b(f"  buffer_load_dwordx4 {vr(HV+8*sb+4,4)}, v28, s[{SRD_Y}:{SRD_Y+3}], s{S_TMP+1} offen offset:16{LF}")
    srd_later = True
    def send_lines(k):
        T0 = 208 + 8 * k; a = V_ACC + 16 * k
        L = [f"  v_cvt_pk_bf16_f32 v{T0+i}, v{a+2*i}, v{a+2*i+1}" for i in range(8)]
        L += [f"  v_min_u32 v{T0+i}, 0xfffffffe, v{T0+i}" for i in range(8)]
        L += [f"  buffer_store_dwordx4 {vr(T0+4*p,4)}, v30, s[{SRD_X}:{SRD_X+3}], 0 offen offset:{(2*k+p)*1024}{SF}" for p in range(2)]
        return L
    def hloads2():
        hloads()
    if "skew" in OPT:
        def w4x():
            w4()
        def hl():
            hloads()
        b(f"  s_waitcnt vmcnt(0)")
        srd(b, SRD_X, P_WS, 4 << 20, WS_XCH)
        gemm_core(b, c, "g2", w4, hloads, {0: send_lines(0), 1: send_lines(1)})
    else:
        gemm_core(b, c, "g2", w4, hloads)
    stamp(b, "c:g2 end")
    stamp(b, "g2 main done")
    T = c.VT
    if "skew" not in OPT:
        srd(b, SRD_X, P_WS, 4 << 20, WS_XCH)
        b(f"  s_nop 9")
        for k in range(2):
            for line in send_lines(k): b(line)
    KEEP = V_ACC + 32
    RX = c.VPR
    b(f"  s_mov_b32 s11, 200000")
    b.label("g2x_poll")
    for k in range(4):
        b(f"  buffer_load_dwordx4 {vr(RX+4*k,4)}, v29, s[{SRD_X}:{SRD_X+3}], 0 offen offset:{k*1024} sc1")
    b(f"  s_waitcnt vmcnt(0)")
    sentinel_check(b, RX, "g2x", n=16)
    stamp(b, "g2 x landed")
    b(f"  s_mov_b32 s{S_TMP}, 0xffff0000")
    for blk in range(2):
        for i in range(8):
            a = KEEP + blk * 16 + 2 * i; r = RX + 8 * blk + i
            b(f"  v_lshlrev_b32 v16, 16, v{r}")
            b(f"  v_and_b32 v17, s{S_TMP}, v{r}")
            b(f"  v_add_f32 v{a}, v{a}, v16")
            b(f"  v_add_f32 v{a+1}, v{a+1}, v17")
    for sb in range(2):
        b(f"  v_lshlrev_b32 v{12+sb}, 16, v{12+sb}")
    OL = "outlds" in OPT
    if OL:
        OS = 4 * STAGE
        b(f"  v_mul_u32_u24 v14, 272, v8           ; s' * 272")
        b(f"  v_lshl_add_u32 v14, v9, 5, v14       ; + h*32")
        b(f"  s_lshl_b32 s{S_TMP+1}, s{S_W}, 6")
        b(f"  s_add_u32 s{S_TMP+1}, s{S_TMP+1}, {OS}")
        b(f"  v_add_u32 v14, s{S_TMP+1}, v14")
    for sb in range(2):
        for half in range(2):
            o = T + 4 * ((sb * 2 + half) % 2) if not OL else T + 16 + 4 * (sb * 2 + half)
            for dd in range(4):
                a = KEEP + sb * 16 + half * 8 + 2 * dd
                hv = HV + 8 * sb + 4 * half + dd
                t0 = T + 8 + 2 * dd if OL else T + 8 + 4 * dd
                b(f"  v_lshlrev_b32 v{t0}, 16, v{hv}")
                b(f"  v_and_b32 v{t0+1}, s{S_TMP}, v{hv}")
                b(f"  v_pk_add_f32 {vr(t0,2)}, {vr(t0,2)}, {vr(a,2)}")
                b(f"  v_add_f32 v{t0}, v{t0}, v{12+sb}")
                b(f"  v_add_f32 v{t0+1}, v{t0+1}, v{12+sb}")
                b(f"  v_cvt_pk_bf16_f32 v{o+dd}, v{t0}, v{t0+1}")
            if OL:
                b(f"  ds_write_b128 v14, {vr(o,4)} offset:{sb*32*272 + 16*half}")
            else:
                b(f"  s_mov_b32 s{S_TMP+1}, {sb*65536}")
                if "noout" not in OPT: b(f"  buffer_store_dwordx4 {vr(o,4)}, v28, s[{SRD_O}:{SRD_O+3}], s{S_TMP+1} offen offset:{16*half}{OF()}")
    if OL:
        b(f"  v_lshrrev_b32 v15, 4, v7")
        b(f"  s_lshl_b32 s{S_TMP+1}, s{S_W}, 4")
        b(f"  v_add_u32 v15, s{S_TMP+1}, v15          ; row (i = 0)")
        b(f"  v_and_b32 v16, 15, v7")
        b(f"  v_mul_u32_u24 v14, 272, v15")
        b(f"  v_lshl_add_u32 v14, v16, 4, v14")
        b(f"  v_add_u32 v14, {OS}, v14")
        b(f"  s_lshl_b32 s{S_TMP+1}, s{S_TILE_B}, 7")
        b(f"  s_lshl_b32 s{S_TMP+2}, s19, 6")
        b(f"  s_add_u32 s{S_TMP+1}, s{S_TMP+1}, s{S_TMP+2}")
        b(f"  v_add_u32 v15, s{S_TMP+1}, v15")
        b(f"  v_lshlrev_b32 v15, 11, v15")
        b(f"  v_lshl_add_u32 v15, v16, 4, v15")
        b(f"  s_lshl_b32 s{S_TMP+1}, s{S_TILE_A}, 8")
        b(f"  v_add_u32 v15, s{S_TMP+1}, v15")
        b(f"  s_waitcnt lgkmcnt(0)")
        b(f"  s_barrier")
        for i in range(4): b(f"  ds_read_b128 {vr(T+4*i,4)}, v14 offset:{i*4*272}")
        for i in range(4):
            b(f"  s_waitcnt lgkmcnt({3-i})")
            b(f"  s_mov_b32 s{S_TMP+1}, {i*4*2048}")
            b(f"  buffer_store_dwordx4 {vr(T+4*i,4)}, v15, s[{SRD_O}:{SRD_O+3}], s{S_TMP+1} offen{OF()}")
    stamp(b, "g2 stores issued")
    b(f"  s_branch g2_done")
    b.label("g2_loader")
    b(f"  s_barrier                      ; matches the barrier inside wait(x4)")
    loader_loop(b, c.NS, "g2", W2F())
    b.label("g2_done")

def g2(b):
    if SK(): return g2_sk(b)
    c = g2_cfg()
    b.label("g2_start")
    g2_ids(b)
    srd(b, SRD_P, P_WS, U_BYTES, WS_U)
    srd(b, SRD_O, P_OUT, 4 << 20)
    srd(b, SRD_X, P_B2, 2048 * 2)
    srd(b, SRD_Y, P_WS, 4 << 20, WS_H)
    b(f"  s_cmp_ge_u32 s{S_W}, 4")
    b(f"  s_cbranch_scc1 g2_loader")
    lane_geom(b)
    b(f"  s_lshl_b32 s{S_TMP}, s{S_TILE_A}, 2")
    b(f"  s_add_u32 s{S_TMP}, s{S_TMP}, s{S_W}        ; dblk")
    b(f"  s_mul_i32 s{S_TMP+2}, s{S_TMP}, 229376")
    b(f"  v_lshlrev_b32 v10, 4, v7")
    b(f"  v_add_u32 v{V_P}, s{S_TMP+2}, v10")
    b(f"  s_lshl_b32 s{S_TMP+1}, s{S_TILE_B}, 6       ; s0")
    b(f"  v_add_u32 v11, s{S_TMP+1}, v8              ; s0 + s'")
    b(f"  v_lshlrev_b32 v16, 1, v11")
    for sb in range(2):
        b(f"  buffer_load_ushort v{12+sb}, v16, s[{SRD_X}:{SRD_X+3}], 0 offen offset:{64*sb}")
    b(f"  v_lshlrev_b32 v17, 11, v11")
    b(f"  v_lshl_add_u32 v17, v9, 5, v17")
    b(f"  s_lshl_b32 s{S_TMP+2}, s{S_TMP}, 6")
    b(f"  v_add_u32 v28, s{S_TMP+2}, v17")
    HV = 160
    b(f"  v_lshl_add_u32 v20, v9, 3, v18            ; row")
    b(f"  v_bfe_u32 v21, v18, 1, 1")
    b(f"  v_lshlrev_b32 v20, 7, v20")
    b(f"  v_lshl_add_u32 v20, v21, 6, v20")
    b(f"  v_lshl_add_u32 v20, v19, 5, v20")
    b(f"  v_lshl_add_u32 v{V_T}, v22, 3, v20")
    b(f"  v_xor_b32 v{V_T+1}, 64, v{V_T}")
    for i in range(32): b(f"  v_mov_b32 v{V_ACC+i}, 0")
    def w4():
        wait(b, 3, 28, "x4c", single_sreg=S_TILE_A)
        stamp(b, "x4 released")
        stamp(b, "c:g2 start")
    def hloads():
        for sb in range(2):
            b(f"  s_mov_b32 s{S_TMP+1}, {sb*65536}")
            b(f"  buffer_load_dwordx4 {vr(HV+8*sb,4)}, v28, s[{SRD_Y}:{SRD_Y+3}], s{S_TMP+1} offen{LF}")
            b(f"  buffer_load_dwordx4 {vr(HV+8*sb+4,4)}, v28, s[{SRD_Y}:{SRD_Y+3}], s{S_TMP+1} offen offset:16{LF}")
    gemm_core(b, c, "g2", w4, hloads)
    stamp(b, "c:g2 end")
    stamp(b, "g2 main done")
    T = c.VT
    b(f"  s_mov_b32 s{S_TMP}, 0xffff0000")
    for sb in range(2):
        b(f"  v_lshlrev_b32 v{12+sb}, 16, v{12+sb}")
    b(f"  s_nop 9")
    for sb in range(2):
        for half in range(2):
            o = T + 4 * ((sb * 2 + half) % 2)
            for dd in range(4):
                a = V_ACC + sb * 16 + half * 8 + 2 * dd
                hv = HV + 8 * sb + 4 * half + dd
                t0 = T + 8 + 4 * dd
                b(f"  v_cvt_pk_bf16_f32 v{t0}, v{a}, v{a+1}")
                b(f"  v_and_b32 v{t0+1}, s{S_TMP}, v{t0}")
                b(f"  v_lshlrev_b32 v{t0}, 16, v{t0}")
                b(f"  v_add_f32 v{t0}, v{t0}, v{12+sb}")
                b(f"  v_add_f32 v{t0+1}, v{t0+1}, v{12+sb}")
                b(f"  v_cvt_pk_bf16_f32 v{t0}, v{t0}, v{t0+1}")
                b(f"  v_and_b32 v{t0+1}, s{S_TMP}, v{t0}")
                b(f"  v_lshlrev_b32 v{t0}, 16, v{t0}")
                b(f"  v_lshlrev_b32 v{t0+2}, 16, v{hv}")
                b(f"  v_and_b32 v{t0+3}, s{S_TMP}, v{hv}")
                b(f"  v_add_f32 v{t0}, v{t0}, v{t0+2}")
                b(f"  v_add_f32 v{t0+1}, v{t0+1}, v{t0+3}")
                b(f"  v_cvt_pk_bf16_f32 v{o+dd}, v{t0}, v{t0+1}")
            b(f"  s_mov_b32 s{S_TMP+1}, {sb*65536}")
            b(f"  buffer_store_dwordx4 {vr(o,4)}, v28, s[{SRD_O}:{SRD_O+3}], s{S_TMP+1} offen offset:{16*half}")
    stamp(b, "g2 stores issued")
    b(f"  s_branch g2_done")
    b.label("g2_loader")
    b(f"  s_barrier                      ; matches the barrier inside wait(x4)")
    loader_loop(b, c.NS, "g2", W2F())
    b.label("g2_done")

DESC = """
One persistent launch, 256 workgroups (one per CU) x 8 waves, five phases separated by device-wide hand-offs.
  P1  workgroup p: rows s = p + 256 t (t = wave).  LayerNorm, 1024-point real FFT of each row as 32 x 32 (two MFMA stages,
      fp32 twiddles in between), then the radix-8 step of the S-direction FFT across the 8 rows (MFMA, twiddle folded in).
      Spectrum is kept for bins k = 1..511 plus the Nyquist bin in slot 0: the DC bin of a LayerNorm output row is exactly 0.
  P2  workgroup (j1, 16 bins): 256-point FFT over p as 16 x 16, multiply by the filter, inverse 256-point FFT.
  P3  inverse radix-8 step, inverse row FFT (c2r), residual h = x + y, LayerNorm -> ln2 in MFMA fragment order.
  G1  u = gelu(w1^T ln2 + b1): 128 x 128 tiles, waves 0-3 compute (16x16x32 MFMA), waves 4-7 stream w1 into an LDS ring.
  G2  out = h + w2^T u + b2: 128 x 128 tiles over half of K each, partner workgroups swap bf16 partial sums.
Hand-offs: write-through stores, drained, then sharded counters in d_ws (reset in this launch, published via d_debug) or,
for the partial sums, slots pre-filled in this launch with an all-ones word that real data never contains.
"""

def build():
    NAME = "sequential_preLN__spectral_gfnet__mixer_token_mlp__prompt"
    hdr = open(f"cdna_kernels/{NAME}.s.ref").read().split("; Override launch")[0]
    K = NAME + "_kernel"
    b = B()
    b(hdr.rstrip("\n"))
    b(f"; @launch grid=(256,1,1) block=(512,1,1) lds={LDS_TOTAL}")
    for l in DESC.strip("\n").split("\n"): b("; " + l if l else ";")
    b('.amdgcn_target "amdgcn-amd-amdhsa--gfx950"\n.text')
    b(f".globl {K}\n.p2align 8\n.type {K},@function\n{K}:")
    b(f"  s_cmp_ge_u32 s2, 256\n  s_cbranch_scc1 k_exit")
    if "stamp" in OPT: b("  v_mov_b32 v231, 0")
    stamp(b, "entry")
    b(f"  s_load_dwordx4 s[{P_X}:{P_X+3}], s[0:1], 0        ; x, w_r")
    b(f"  s_load_dwordx2 s[{P_WI}:{P_WI+1}], s[0:1], 16")
    b(f"  s_load_dwordx2 s[{P_W1}:{P_W1+1}], s[0:1], 32")
    b(f"  s_load_dwordx4 s[{P_B1}:{P_B1+3}], s[0:1], 40     ; b1, w2")
    b(f"  s_load_dwordx4 s[{P_B2}:{P_B2+3}], s[0:1], 56     ; b2, out")
    b(f"  s_load_dwordx4 s[{P_DBG}:{P_DBG+3}], s[0:1], 72")
    b(f"  v_lshrrev_b32 v6, 6, v0")
    b(f"  v_and_b32 v7, 63, v0        ; lane")
    b(f"  v_readfirstlane_b32 s{S_W}, v6")
    b(f"  v_and_b32 v8, 15, v7          ; c")
    b(f"  v_lshrrev_b32 v9, 4, v7       ; g")
    b(f"  s_waitcnt lgkmcnt(0)")
    srd(b, SRD_CNT, P_WS, 65536, WS_CNT)
    p1(b)
    p2_setup(b)
    wait(b, 0, 16, "x1c")
    stamp(b, "x1 released")
    if "diagsleep" in OPT: b("  s_sleep 64")
    p2_main(b)
    p3_setup(b)
    if SENT2(): b("  s_barrier")
    else: wait(b, 1, 16, "x2c")
    stamp(b, "x2 released")
    p3_main(b)
    g1(b)
    g2(b)
    b(f"  s_waitcnt vmcnt(0)")
    stamp(b, "end")
    stamp_flush(b)
    b("k_exit:\n  s_endpgm")
    b(kd(K, 240, sgpr=102))
    return b.text()

if __name__ == "__main__":
    out = sys.argv[1]
    OPT.update(sys.argv[2:])
    if "lfplain" not in OPT: LF = " sc1"
    for o in sys.argv[2:]:
        if o.startswith("ir="): IDLE_ROUNDS[0] = int(o[3:])
        if o.startswith("pfn="): PFN[:] = [int(c) for c in o[4:].split(",")]
    gemm.OPT.update(sys.argv[2:])
    t = build()
    open(out, "w").write(t)
    rep = check_text(t)
    print("\n".join(rep) if rep else "no hazards found", "| stamps:", nstamp[0])
```
